```python
import torch

def _softmax(x, axis=-1):
    return torch.softmax(x, dim=axis)
def _gelu(x):
    return torch.nn.functional.gelu(x, approximate="tanh")
def _silu(x):
    return torch.nn.functional.silu(x)
def _sigmoid(x):
    return torch.sigmoid(x)
def _layernorm(x, axis=-1, eps=1e-5):
    m = x.mean(dim=axis, keepdim=True)
    v = x.var(dim=axis, keepdim=True, unbiased=False)
    return (x - m) / torch.sqrt(v + eps)
def _scatter_add(tgt, idx, src, axis=0):
    return tgt.clone().index_add_(axis, idx, src)
def _segment_sum(src, seg, n):
    out = torch.zeros((n,) + src.shape[1:], dtype=src.dtype)
    return out.index_add_(0, seg, src)
def _pad(x, pw):
    flat = tuple(v for pair in reversed(pw) for v in pair)
    return torch.nn.functional.pad(x, flat)

kernel_name = 'recurrent_scan__ssm_conv_s4__moe_arch_mod__prompt'

def setup_inputs():

    _w = (lambda a: (lambda t: t.to(torch.bfloat16) if t.is_floating_point() else t)(torch.as_tensor(a)))
    def _A_setup():
        B, L, D, N = 1, 2048, 512, 128
        A_re = -(lambda _x: torch.exp(torch.as_tensor(_x)))((lambda *s: torch.randn(*s, dtype=torch.bfloat16) * 6.4)(D, N))
        A_im = torch.pi * (lambda *s: torch.randn(*s, dtype=torch.bfloat16) * 0.05)(D, N)
        B_re = (lambda *s: torch.randn(*s, dtype=torch.bfloat16) * 0.1)(D, N)
        B_im = (lambda *s: torch.randn(*s, dtype=torch.bfloat16) * 0.1)(D, N)
        C_re = (lambda *s: torch.randn(*s, dtype=torch.bfloat16) * 0.1)(D, N)
        C_im = (lambda *s: torch.randn(*s, dtype=torch.bfloat16) * 0.1)(D, N)
        log_dt = (lambda *s: torch.randn(*s, dtype=torch.bfloat16) * 0.05)(D) * 0.5 - 4.0
        Dskip = (lambda *s: torch.randn(*s, dtype=torch.bfloat16) * 0.05)(D)
        return {
            "u": _w((lambda *s: torch.randn(*s, dtype=torch.bfloat16) * 0.05)(B, L, D)),
            "A_re": _w(A_re),
            "A_im": _w(A_im),
            "B_re": _w(B_re),
            "B_im": _w(B_im),
            "C_re": _w(C_re),
            "C_im": _w(C_im),
            "log_dt": _w(log_dt),
            "Dskip": _w(Dskip),
        }
    _A_in = _A_setup()

    def _B_setup():
        B, S, D, F, C = 1, 2048, 512, 1376, 1
        return {
            "x": _w((lambda *s: torch.randn(*s, dtype=torch.bfloat16) * 0.05)(B, S, D)),
            "w_r": _w((lambda *s: torch.randn(*s, dtype=torch.bfloat16) * 6.4)(D)),
            "w_gate": _w((lambda *s: torch.randn(*s, dtype=torch.bfloat16) * 0.1)(D, F)),
            "w_up": _w((lambda *s: torch.randn(*s, dtype=torch.bfloat16) * 0.1)(D, F)),
            "w_down": _w((lambda *s: torch.randn(*s, dtype=torch.bfloat16) * 0.1)(F, D)),
        }
    _B_in = _B_setup()

    return {
        "A_u": _A_in["u"],
        "A_A_re": _A_in["A_re"],
        "A_A_im": _A_in["A_im"],
        "A_B_re": _A_in["B_re"],
        "A_B_im": _A_in["B_im"],
        "A_C_re": _A_in["C_re"],
        "A_C_im": _A_in["C_im"],
        "A_log_dt": _A_in["log_dt"],
        "A_Dskip": _A_in["Dskip"],
        "B_x": _B_in["x"],
        "B_w_r": _B_in["w_r"],
        "B_w_gate": _B_in["w_gate"],
        "B_w_up": _B_in["w_up"],
        "B_w_down": _B_in["w_down"],
    }

def reference(A_u, A_A_re, A_A_im, A_B_re, A_B_im, A_C_re, A_C_im, A_log_dt, A_Dskip, B_x, B_w_r, B_w_gate, B_w_up, B_w_down):
    def _A_ref(u, A_re, A_im, B_re, B_im, C_re, C_im, log_dt, Dskip):
        Bsz, L, D = u.shape
        dt = torch.exp(log_dt)[:, None]
        A = A_re + 1j * A_im
        Bc = B_re + 1j * B_im
        Cc = C_re + 1j * C_im
        logdA = dt * A
        dB = dt * Bc
        l = (lambda x, dt: x.to(dt))(torch.arange(L), A_re.dtype)
        P = torch.exp(logdA[:, :, None] * l[None, None, :])
        K = torch.einsum("dn,dnl,dn->dl", Cc, P, dB).real
        L2 = 2 * L
        Kp = _pad(K, ((0, 0), (0, L)))
        up = (lambda x, *d: x.permute(*d))(u, 0, 2, 1)
        up = _pad(up, ((0, 0), (0, 0), (0, L)))
        Kf = (lambda x, axes=(-2,-1): torch.fft.rfft2(x.float(), dim=axes))(Kp[:, None, :], axes=(-2, -1))
        Uf = (lambda x, axes=(-2,-1): torch.fft.rfft2(x.float(), dim=axes))(up[:, :, None, :], axes=(-2, -1))
        Yf = Uf * Kf[None, :, :, :]
        y = (lambda x, s, axes=(-2,-1): torch.fft.irfft2(x, s=s, dim=axes).to(torch.bfloat16))(Yf, (1, L2), axes=(-2, -1))[:, :, 0, :L]
        y = (lambda x, *d: x.permute(*d))(y, 0, 2, 1) + u * Dskip[None, None, :]
        return y

    def _B_ref(x, w_r, w_gate, w_up, w_down):
        B, S, D = x.shape
        C = 1
        r = x @ w_r
        idx = torch.argsort(-r, axis=-1)[:, :C]
        idx_e = (lambda x, n, axis: torch.repeat_interleave(x, n, dim=axis))(idx.reshape(B, C, 1), D, axis=2)
        x_sel = (lambda x, i, axis: torch.take_along_dim(x, i, dim=axis))(x, idx_e, axis=1)
        g = _silu(x_sel @ w_gate)
        u = x_sel @ w_up
        y = (g * u) @ w_down
        r_sel = _sigmoid((lambda x, i, axis: torch.take_along_dim(x, i, dim=axis))(r, idx, axis=1))
        y = y * r_sel.reshape(B, C, 1)
        b_off = (torch.arange(B) * S).reshape(B, 1)
        flat_idx = (idx + b_off).reshape(B * C)
        zero = (x * 0.0).reshape(B * S, D)
        upd = _scatter_add(zero, flat_idx, y.reshape(B * C, D), axis=0)
        return x + upd.reshape(B, S, D)

    x = A_u
    xn = _layernorm(x, axis=-1)
    s = _A_ref(xn, A_A_re, A_A_im, A_B_re, A_B_im, A_C_re, A_C_im, A_log_dt, A_Dskip)
    g = _silu(_B_ref(xn, B_w_r, B_w_gate, B_w_up, B_w_down))
    return x + s * g
```

```python
import re

TRANS = ('v_exp_f32','v_log_f32','v_rcp_f32','v_rsq_f32','v_sqrt_f32','v_sin_f32','v_cos_f32','v_rcp_iflag_f32')

def regs_of(op):
    op = op.strip()
    op = op.lstrip('-')
    m = re.fullmatch(r'(?:abs\(|\|)?([vsa])(\d+)(?:\)|\|)?', op)
    if m: return [(m.group(1), int(m.group(2)))]
    m = re.fullmatch(r'([vsa])\[(\d+):(\d+)\]', op)
    if m: return [(m.group(1), i) for i in range(int(m.group(2)), int(m.group(3))+1)]
    if op in ('vcc','vcc_lo','vcc_hi'): return [('vcc',0)]
    if op in ('exec','exec_lo','exec_hi'): return [('exec',0)]
    if op == 'm0': return [('m0',0)]
    return []

class Ins:
    def __init__(self, text):
        self.text = text
        t = text.split(';')[0].strip()
        parts = t.split(None, 1)
        self.mn = parts[0] if parts else ''
        rest = parts[1] if len(parts) > 1 else ''
        ops, cur, depth = [], '', 0
        for ch in rest:
            if ch in '[(': depth += 1
            if ch in '])': depth -= 1
            if ch == ',' and depth == 0:
                ops.append(cur.strip()); cur = ''
            else: cur += ch
        if cur.strip(): ops.append(cur.strip())
        self.mods = ''
        if ops:
            sp = ops[-1].split(None, 1)
            if len(sp) > 1:
                ops[-1] = sp[0]; self.mods = sp[1]
        self.ops = ops
        mn = self.mn
        self.is_mfma = mn.startswith('v_mfma')
        self.is_valu = mn.startswith('v_') and not self.is_mfma
        self.is_trans = any(mn.startswith(x) for x in TRANS)
        self.is_ds = mn.startswith('ds_')
        self.is_vmem = mn.startswith('global_') or mn.startswith('buffer_')
        self.is_salu = mn.startswith('s_')
        self.is_dpp = ('_dpp' in mn) or any(k in self.mods for k in ('row_shr','row_shl','row_ror','quad_perm','row_bcast','row_mirror','row_half_mirror','wave_','row_newbcast'))
        self.is_permlane = mn.startswith('v_permlane')
        self.is_readlane = mn.startswith('v_readlane') or mn.startswith('v_readfirstlane')
        self.dst, self.src = [], []
        R = [regs_of(o) for o in ops]
        if self.is_mfma:
            self.dst = R[0]; self.srcA = R[1]; self.srcB = R[2]; self.srcC = R[3]
            self.src = R[1] + R[2] + R[3]
            self.passes = 8 if '32x32' in mn else 4
        elif self.is_valu:
            if mn == 'v_nop': pass
            elif self.is_permlane:
                self.dst = R[0] + R[1]; self.src = R[0] + R[1]
            else:
                self.dst = list(R[0]); self.src = [r for x in R[1:] for r in x]
                if any(mn.startswith(x) for x in ('v_add_co','v_sub_co','v_addc_co','v_subb_co','v_div_scale','v_mad_u64')):
                    self.dst += R[1]; self.src = [r for x in R[2:] for r in x]
                if mn.startswith('v_fmac') or mn.startswith('v_dot2c') or mn.startswith('v_writelane') or self.is_dpp:
                    self.src += R[0]
                if mn.startswith('v_cmpx'): self.dst += [('exec',0)]
        elif self.is_ds:
            if mn.startswith('ds_read') or mn.startswith('ds_bpermute') or mn.startswith('ds_swizzle') or '_rtn' in mn:
                self.dst = R[0]; self.src = [r for x in R[1:] for r in x]
            else:
                self.src = [r for x in R for r in x]
            if 'addtid' in mn: self.src.append(('m0',0))
        elif self.is_vmem:
            if '_lds_' in mn or ' lds' in (' '+self.mods):
                self.src = [r for x in R for r in x] + [('m0',0)]
            elif 'load' in mn:
                self.dst = R[0]; self.src = [r for x in R[1:] for r in x]
                if 'd16' in mn: self.src += R[0]
            else:
                self.src = [r for x in R for r in x]
        elif self.is_salu:
            if mn.startswith('s_cmp') or mn.startswith('s_bitcmp') or mn in ('s_waitcnt','s_barrier','s_nop','s_setprio','s_endpgm','s_sleep') or mn.startswith('s_cbranch') or mn == 's_branch':
                self.src = [r for x in R for r in x]
            elif R:
                self.dst = list(R[0]); self.src = [r for x in R[1:] for r in x]
                if 'saveexec' in mn: self.dst.append(('exec',0))
        self.wide_store = self.is_vmem and ('store_dwordx4' in mn or 'store_dwordx3' in mn)

    def states(self):
        if self.mn == 's_nop': return int(self.ops[0], 0) + 1
        return 1

class Asm:
    def __init__(self):
        self.lines = []
        self.hist = []
        self.nops = 0
    def raw(self, text):
        self.lines.append(text)
    def label(self, name):
        self.lines.append(name + ':')
    def comment(self, c):
        self.lines.append('    ; ' + c)
    def need(self, ins):
        need = 0
        dist = 0
        for p in reversed(self.hist):
            if dist >= 20: break
            req = 0
            pd = set(p.dst)
            vsrc = set(r for r in ins.src if r[0] in 'va')
            ssrc = set(r for r in ins.src if r[0] in ('s','vcc'))
            if p.is_valu:
                pv = set(r for r in pd if r[0] in 'va'); ps = set(r for r in pd if r[0] in ('s','vcc'))
                if ins.is_dpp and ins.is_valu and pv & set(regs_of(ins.ops[1])): req = max(req, 2)
                if ins.is_permlane and pv & vsrc: req = max(req, 2)
                if ins.is_readlane and pv & vsrc: req = max(req, 1)
                if ins.is_mfma and pv & vsrc: req = max(req, 2)
                if p.is_trans and (ins.is_valu or ins.is_mfma) and not ins.is_trans and pv & vsrc: req = max(req, 1)
                if p.is_trans and ins.is_trans and pv & vsrc: req = max(req, 1)
                if ps & ssrc:
                    if ins.is_readlane or ins.mn.startswith('v_writelane'): req = max(req, 4)
                    elif ins.is_valu: req = max(req, 2)
                    elif ins.is_vmem: req = max(req, 5)
                    elif ins.is_salu: req = max(req, 1)
                if ('vcc',0) in ps and ins.mn.startswith('s_cbranch_vcc'): req = max(req, 1)
                if ('exec',0) in pd:
                    if ins.is_dpp: req = max(req, 5)
                    elif ins.is_readlane or ins.is_permlane or ins.is_mfma: req = max(req, 4)
                if 'sdwa' in p.mn or 'op_sel' in p.mods and not p.mn.startswith('v_pk'):
                    if ins.is_valu and pv & (vsrc | set(ins.dst)): req = max(req, 1)
            if p.is_valu and p.mn.startswith('v_dot'):
                pv = set(pd)
                if ins.mn == p.mn:
                    ab = set(regs_of(ins.ops[1])) | set(regs_of(ins.ops[2]))
                    if pv & ab: req = max(req, 3)
                elif pv & (vsrc | set(ins.dst)): req = max(req, 3)
            if p.is_mfma:
                big = 12 if p.passes == 8 else 8
                if ins.is_mfma:
                    if pd & (set(ins.srcA) | set(ins.srcB)): req = max(req, big)
                    c = set(ins.srcC)
                    if pd & c and not (pd == c and p.passes == ins.passes): req = max(req, 10 if p.passes == 8 else 6)
                    elif pd & set(ins.dst) and not pd == c: req = max(req, 10 if p.passes == 8 else 6)
                elif (ins.is_valu or ins.is_ds or ins.is_vmem) and pd & (vsrc | set(ins.dst)): req = max(req, big)
                if ins.is_valu and set(p.srcC) & set(ins.dst): req = max(req, 7 if p.passes == 8 else 3)
            if p.is_salu and ('m0',0) in pd and ('m0',0) in ins.src and (ins.is_ds or ins.is_vmem): req = max(req, 1)
            if p.wide_store and (ins.is_valu or ins.is_mfma):
                data = set(regs_of(p.ops[1])) if p.mn.startswith('global_') else set(regs_of(p.ops[0]))
                if data & set(ins.dst): req = max(req, 2)
            if p.is_ds and p.mn.startswith('ds_write_b128') and ins.is_valu:
                pass
            need = max(need, req - dist)
            dist += p.states()
        return need
    def __call__(self, text):
        for t in text.strip().split('\n'):
            t = t.strip()
            if not t: continue
            if t.startswith(';'): self.comment(t[1:].strip()); continue
            if t.endswith(':'): self.label(t[:-1]); continue
            if t.startswith('.'): self.raw(t); continue
            ins = Ins(t)
            n = self.need(ins)
            while n > 0:
                k = min(n, 16)
                nop = Ins('s_nop %d' % (k-1))
                self.lines.append('    ' + nop.text); self.hist.append(nop); self.nops += 1
                n -= k
            self.lines.append('    ' + t)
            self.hist.append(ins)
    def text(self):
        return '\n'.join(self.lines) + '\n'

def v(n, cnt=1):
    return 'v%d' % n if cnt == 1 else 'v[%d:%d]' % (n, n+cnt-1)
def s(n, cnt=1):
    return 's%d' % n if cnt == 1 else 's[%d:%d]' % (n, n+cnt-1)
```

```python
import sys
from asmlib import *

KN = 'recurrent_scan__ssm_conv_s4__moe_arch_mod__prompt'

DEFAULTS = dict(stamp=0, wlate=1, force_slow=0, prefetch=1, spinmax=1<<16, dump=0)

RS    = 2064
STAGE = 0
R4    = 0;      R4S = 16480
YX    = 66048;  YCS = 5120; YTS = 1280; YGS = 320
U     = 109440; US = 4576
TAB   = 127744; TS = 1552
WL    = 133952; WL1 = 8320
SL    = 150528
AM    = 158720
FF    = 158752
FP    = 158784
LDS_BYTES = 159808
W_EP = 0; W_ST = 0x1000; W_FL = 0x6000; W_FP = 0x10000; W_IN = 0x100000; W_STAMP = 0x800000; W_DUMP = 0x1000000

sX, sARE, sAIM, sBRE, sBIM, sCRE, sCIM, sLDT = 4, 6, 8, 10, 12, 14, 16, 18
sDSK, sWR, sWG, sWU, sWD, sOUT, sDBG, sWS = 20, 24, 26, 28, 30, 32, 34, 36
sW, sK, sJ, sCGL, sH, sCH0, sT, sXCC, sTAG, sTAGX = 38, 39, 40, 41, 42, 43, 44, 45, 46, 47
sLD, sDS = 48, 50
sONES, sF8, sPROD, sIDX, sKEY, sCNT = 52, 53, 54, 55, 56, 57
sT0, sT1, sT2, sT3 = 58, 59, 60, 61
sM = 64
sH8 = 72
sHI = 80
sSTP = 82
sWI = 84

vTID, vL = 0, 1
vGA = 2
vSEL = 10
vR4W, vUW, vST0, vST1, vFL, vIN, vXG, vXC = 16, 17, 18, 19, 20, 21, 22, 23
vKA, vKB, vTW1, vTW2, vTW3, vTW4 = 24, 25, 26, 27, 28, 29
vCA, vCB, vY = 30, 31, 32
vWT, vWDA, vFPA, vEP, vPF, vROW, vSTA = 33, 34, 35, 36, 37, 38, 39
vD = 40
vG = 48
vXF = 56
vXN = 72
vE = 88
vP = 104
vWD = 232
vT = 240

def cmul(a, d, x, y):
    a('v_pk_mul_f32 %s, %s, %s op_sel:[1,1] op_sel_hi:[1,0]' % (v(d,2), v(x,2), v(y,2)))
    a('v_pk_fma_f32 %s, %s, %s, %s op_sel:[0,0,0] op_sel_hi:[0,1,1] neg_lo:[0,0,1]' % (v(d,2), v(x,2), v(y,2), v(d,2)))

def tiles(h): return [2*i + ((i ^ h) & 1) for i in range(4)]

def generate(**opt):
    o = dict(DEFAULTS); o.update(opt)
    a = Asm()
    nstamp = [0]
    def stamp(i):
        if not o['stamp']: return
        a('s_memrealtime %s' % s(sSTP,2))
        a('s_waitcnt lgkmcnt(0)')
        a('v_mov_b32 v254, %s' % s(sSTP))
        a('v_mov_b32 v255, %s' % s(sSTP+1))
        a('s_mov_b64 exec, 1')
        a('global_store_dwordx2 %s, v[254:255], %s offset:%d' % (v(vSTA), s(sWS,2), i*8))
        a('s_mov_b64 exec, -1')
    SV = 1 if o['stamp'] else 0
    def vm(n):
        a('s_waitcnt vmcnt(%d)' % (0 if SV else n))

    a.raw('; @launch grid=(256,1,1) block=(512,1,1) lds=%d' % LDS_BYTES)
    a.raw('.amdgcn_target "amdgcn-amd-amdhsa--gfx950"\n.text\n.globl %s_kernel\n.p2align 8\n.type %s_kernel,@function\n%s_kernel:' % (KN,KN,KN))
    a('''
    s_cmp_ge_u32 s2, 256
    s_cbranch_scc1 L_end
    s_load_dwordx16 s[4:19], s[0:1], 0
    s_load_dwordx16 s[20:35], s[0:1], 64
    s_load_dwordx2 s[36:37], s[0:1], 128
    ''')
    a('v_lshrrev_b32 %s, 6, v0' % v(vT))
    a('v_and_b32 %s, 63, v0' % v(vL))
    a('v_readfirstlane_b32 %s, %s' % (s(sW), v(vT)))
    a('s_and_b32 %s, s2, 7' % s(sK))
    a('s_lshr_b32 %s, s2, 3' % s(sJ))
    a('s_and_b32 %s, %s, 15' % (s(sCGL), s(sJ)))
    a('s_lshr_b32 %s, %s, 4' % (s(sH), s(sJ)))
    a('s_lshl_b32 %s, %s, 6' % (s(sCH0), s(sK)))
    a('s_lshl_b32 %s, %s, 2' % (s(sT0), s(sCGL)))
    a('s_add_u32 %s, %s, %s' % (s(sCH0), s(sCH0), s(sT0)))
    a('s_and_b32 %s, %s, 3' % (s(sWI), s(sW)))
    for i in range(6): a('v_mov_b32 %s, 0' % v(vP+i))
    a('s_lshl_b32 %s, %s, 8' % (s(sT0), s(sCH0)))
    a('v_lshl_add_u32 %s, v0, 1, %s' % (v(vT+1), s(sT0)))
    a('v_mov_b32 %s, 0' % v(vT+2))
    if o['stamp']:
        a('s_lshl_b32 %s, s2, 3' % s(sT1))
        a('s_add_u32 %s, %s, %s' % (s(sT1), s(sT1), s(sW)))
        a('s_lshl_b32 %s, %s, 8' % (s(sT1), s(sT1)))
        a('s_add_u32 %s, %s, %d' % (s(sT1), s(sT1), W_STAMP))
        a('v_mov_b32 %s, %s' % (v(vSTA), s(sT1)))
    a('s_cmp_ge_u32 %s, 4' % s(sW))
    a('s_cbranch_scc1 L_h_load')
    a('s_lshl_b32 %s, %s, 16' % (s(sT0), s(sJ)))
    a('s_lshl_b32 %s, %s, 14' % (s(sT1), s(sW)))
    a('s_add_u32 %s, %s, %s' % (s(sT0), s(sT0), s(sT1)))
    a('s_lshl_b32 %s, %s, 7' % (s(sT1), s(sK)))
    a('s_add_u32 %s, %s, %s' % (s(sT0), s(sT0), s(sT1)))
    a('v_lshrrev_b32 %s, 3, %s' % (v(vT+3), v(vL)))
    a('v_and_b32 %s, 7, %s' % (v(vT+4), v(vL)))
    a('v_lshlrev_b32 %s, 10, %s' % (v(vT+3), v(vT+3)))
    a('v_lshl_add_u32 %s, %s, 4, %s' % (v(vT+3), v(vT+4), v(vT+3)))
    a('v_add_u32 %s, %s, %s' % (v(vT+3), s(sT0), v(vT+3)))
    a('v_add_u32 %s, 8192, %s' % (v(vT+4), v(vT+3)))
    a('s_waitcnt lgkmcnt(0)')
    stamp(0)
    a('global_load_dwordx4 %s, %s, %s' % (v(vD,4), v(vT+3), s(sX,2)))
    a('global_load_dwordx4 %s, %s, %s' % (v(vD+4,4), v(vT+4), s(sX,2)))
    a('s_branch L_param_load')
    a('L_h_load:')
    a('s_lshl_b32 %s, s2, 13' % s(sT0))
    a('s_lshl_b32 %s, %s, 11' % (s(sT1), s(sWI)))
    a('s_add_u32 %s, %s, %s' % (s(sT0), s(sT0), s(sT1)))
    a('v_and_b32 %s, 31, %s' % (v(vT+3), v(vL)))
    a('v_lshlrev_b32 %s, 4, %s' % (v(vT+3), v(vT+3)))
    a('v_lshrrev_b32 %s, 5, %s' % (v(vT+4), v(vL)))
    a('v_lshl_add_u32 %s, %s, 10, %s' % (v(vT+4), v(vT+4), v(vT+3)))
    a('v_add_u32 %s, %s, %s' % (v(vT+4), s(sT0), v(vT+4)))
    a('s_setprio 2')
    a('s_waitcnt lgkmcnt(0)')
    stamp(0)
    a('global_load_dwordx4 %s, %s, %s' % (v(vG,4), v(vT+3), s(sWR,2)))
    a('global_load_dwordx4 %s, %s, %s offset:512' % (v(vG+4,4), v(vT+3), s(sWR,2)))
    a('global_load_dwordx4 %s, %s, %s' % (v(vD,4), v(vT+4), s(sX,2)))
    a('global_load_dwordx4 %s, %s, %s offset:512' % (v(vD+4,4), v(vT+4), s(sX,2)))
    a('L_param_load:')
    for i, p in enumerate((sARE, sAIM, sBRE, sBIM, sCRE, sCIM)):
        a('global_load_short_d16_hi %s, %s, %s' % (v(vP+i), v(vT+1), s(p,2)))
    a('global_load_dword %s, %s, %s sc1' % (v(vEP), v(vT+2), s(sWS,2)))
    a('s_lshl_b32 %s, %s, 1' % (s(sT0), s(sCH0)))
    a('s_load_dwordx2 %s, %s, %s' % (s(sLD,2), s(sLDT,2), s(sT0)))
    a('s_load_dwordx2 %s, %s, %s' % (s(sDS,2), s(sDSK,2), s(sT0)))
    a('s_getreg_b32 %s, hwreg(HW_REG_XCC_ID, 0, 4)' % s(sXCC))
    a('s_mov_b32 %s, 0x3f803f80' % s(sONES))
    a('s_mov_b32 %s, 0xffff0000' % s(sHI))
    a('s_lshr_b32 %s, %s, 2' % (s(sT0), s(sW)))
    a('s_xor_b32 %s, %s, %s' % (s(sT0), s(sT0), s(sWI)))
    a('s_xor_b32 %s, %s, %s' % (s(sT0), s(sT0), s(sH)))
    a('s_xor_b32 %s, %s, 1' % (s(sT0), s(sT0)))
    a('s_and_b32 %s, %s, 1' % (s(sT0), s(sT0)))
    a('s_lshl_b32 %s, %s, 1' % (s(sT), s(sWI)))
    a('s_add_u32 %s, %s, %s' % (s(sT), s(sT), s(sT0)))
    a('s_lshr_b32 %s, %s, 3' % (s(sT0), s(sJ)))
    a('s_lshl_b32 %s, %s, 3' % (s(sT0), s(sT0)))
    a('s_add_u32 %s, %s, %s' % (s(sT0), s(sT0), s(sK)))
    a('s_lshl_b32 %s, %s, 3' % (s(sT0), s(sT0)))
    a('s_and_b32 %s, %s, 7' % (s(sT1), s(sJ)))
    a('s_add_u32 %s, %s, %s' % (s(sF8), s(sT0), s(sT1)))
    a('s_cmp_lt_u32 %s, 172' % s(sF8))
    a('s_cselect_b32 %s, 1, 0' % s(sPROD))

    a('v_mov_b32 %s, 0' % v(vT))
    a('v_mov_b32 %s, 0x3f80' % v(vT+1))
    a('s_lshl_b32 %s, %s, 8' % (s(sT0), s(sW)))
    a('s_mov_b32 m0, %s' % s(sT0))
    a('ds_write_addtid_b32 %s offset:%d' % (v(vT+1), STAGE))
    a('v_and_b32 %s, 127, v0' % v(vT+2))
    a('v_min_u32 %s, 119, %s' % (v(vT+2), v(vT+2)))
    a('v_lshrrev_b32 %s, 7, v0' % v(vT+3))
    a('v_mul_u32_u24 %s, %d, %s' % (v(vT+4), US, v(vT+3)))
    a('v_lshl_add_u32 %s, %s, 2, %s' % (v(vT+4), v(vT+2), v(vT+4)))
    a('v_add_u32 %s, %d, %s' % (v(vT+4), U, v(vT+4)))
    a('ds_write_b32 %s, %s' % (v(vT+4), v(vT)))
    a('v_mul_u32_u24 %s, %d, %s' % (v(vT+4), TS, v(vT+3)))
    a('v_and_b32 %s, 1, v0' % v(vT+2))
    a('v_lshl_add_u32 %s, %s, 2, %s' % (v(vT+4), v(vT+2), v(vT+4)))
    a('v_add_u32 %s, %d, %s' % (v(vT+4), TAB, v(vT+4)))
    a('ds_write_b32 %s, %s' % (v(vT+4), v(vT)))
    a('v_and_b32 %s, 3, v0' % v(vT+2))
    a('v_lshlrev_b32 %s, 2, %s' % (v(vT+2), v(vT+2)))
    a('v_add_u32 %s, %d, %s' % (v(vT+2), FF, v(vT+2)))
    a('ds_write_b32 %s, %s' % (v(vT+2), v(vT)))

    pos = [vXF+i for i in range(7)]
    a('v_lshlrev_b32 %s, 2, v0' % v(vT))
    for i in range(7):
        a('v_add_u32 %s, %d, %s' % (v(pos[i]), i+1, v(vT)))
    a('s_cmp_eq_u32 %s, 0' % s(sW))
    a('s_cbranch_scc1 L_pos_done')
    for i in range(7):
        a('v_add_u32 %s, -4, %s' % (v(pos[i]), v(pos[i])))
        a('v_cvt_f32_u32 %s, %s' % (v(pos[i]), v(pos[i])))
    for i in range(7):
        a('v_cvt_pk_bf16_f32 %s, %s, %s' % (v(pos[i]), v(pos[i]), v(pos[i])))
    for i in range(7):
        a('v_lshrrev_b32 %s, 16, %s' % (v(pos[i]), v(pos[i])))
        a('v_add_u32 %s, %d, %s' % (v(pos[i]), 4 - 0x4280, v(pos[i])))
    a('L_pos_done:')
    b1, b2 = vT+1, vT+2
    a('v_and_b32 %s, -2, %s' % (v(b1), v(pos[2])))
    a('v_add_u32 %s, -2, %s' % (v(b1), v(b1)))
    a('v_and_b32 %s, -2, %s' % (v(b2), v(pos[3])))
    for c in range(4):
        a('v_lshlrev_b32 %s, 1, %s' % (v(vGA+2*c), v(b1)))
        a('v_lshlrev_b32 %s, 1, %s' % (v(vGA+2*c+1), v(b2)))
        a('v_add_u32 %s, %d, %s' % (v(vGA+2*c), TAB + c*TS, v(vGA+2*c)))
        a('v_add_u32 %s, %d, %s' % (v(vGA+2*c+1), TAB + c*TS, v(vGA+2*c+1)))
    for i in range(3): a('v_sub_u32 %s, %s, %s' % (v(pos[i]), v(pos[i]), v(b1)))
    for i in range(3,7): a('v_sub_u32 %s, %s, %s' % (v(pos[i]), v(pos[i]), v(b2)))
    a('s_mov_b32 %s, 0x0202' % s(sT0))
    a('s_mov_b32 %s, 0x02020000' % s(sT1))
    a('v_mov_b32 %s, 0x01000100' % v(vT+3))
    def sel(dst, lo, hi, lo_add=0, hi_add=0):
        a('v_mad_u32_u24 %s, %s, %s, %s' % (v(dst), v(lo), s(sT0), v(vT+3)))
        a('v_mul_lo_u32 %s, %s, %s' % (v(vT+4), v(hi), s(sT1)))
        a('v_add_u32 %s, %s, %s' % (v(dst), v(dst), v(vT+4)))
        k = (lo_add*0x0202 + hi_add*0x02020000) & 0xffffffff
        if k: a('v_add_u32 %s, 0x%x, %s' % (v(dst), k, v(dst)))
    sel(vSEL+0, pos[1], pos[0])
    sel(vSEL+1, pos[2], pos[1])
    sel(vSEL+2, pos[3], pos[2], 2, -2)
    sel(vSEL+3, pos[4], pos[3])
    sel(vSEL+4, pos[5], pos[4])
    sel(vSEL+5, pos[6], pos[5])
    a('v_lshlrev_b32 %s, 5, v0' % v(vR4W))
    a('v_add_u32 %s, %d, %s' % (v(vR4W), R4 + 96, v(vR4W)))
    a('s_lshl_b32 %s, %s, 6' % (s(sT0), s(sT)))
    a('v_add_u32 %s, %s, %s' % (v(vT), s(sT0), v(vL)))
    a('v_lshlrev_b32 %s, 2, %s' % (v(vROW), v(vT)))
    a('v_lshlrev_b32 %s, 3, %s' % (v(vUW), v(vT)))
    a('v_add_u32 %s, %d, %s' % (v(vUW), U + 480, v(vUW)))
    a('v_lshlrev_b32 %s, 4, %s' % (v(vST0), v(vT)))
    a('v_add_u32 %s, %d, %s' % (v(vST1), W_ST + 8192, v(vST0)))
    a('v_add_u32 %s, %d, %s' % (v(vST0), W_ST, v(vST0)))
    a('s_lshl_b32 %s, %s, 1' % (s(sT0), s(sCH0)))
    a('v_lshlrev_b32 %s, 12, %s' % (v(vXG), v(vT)))
    a('v_add_u32 %s, %s, %s' % (v(vXG), s(sT0), v(vXG)))
    a('v_lshrrev_b32 %s, 2, %s' % (v(vT+1), v(vT)))
    a('s_lshl_b32 %s, %s, 9' % (s(sT0), s(sK)))
    a('s_add_u32 %s, %s, %d' % (s(sT0), s(sT0), W_FL))
    a('v_lshl_add_u32 %s, %s, 2, %s' % (v(vFL), v(vT+1), s(sT0)))
    a('s_lshl_b32 %s, %s, 18' % (s(sT0), s(sK)))
    a('s_lshl_b32 %s, %s, 14' % (s(sT1), s(sCGL)))
    a('s_add_u32 %s, %s, %s' % (s(sT0), s(sT0), s(sT1)))
    a('s_add_u32 %s, %s, %d' % (s(sT2), s(sT0), W_IN))
    a('v_and_b32 %s, 3, %s' % (v(vT+2), v(vL)))
    a('v_lshlrev_b32 %s, 4, %s' % (v(vT+2), v(vT+2)))
    a('v_lshl_add_u32 %s, %s, 7, %s' % (v(vIN), v(vT+1), v(vT+2)))
    a('v_add_u32 %s, %s, %s' % (v(vIN), s(sT2), v(vIN)))
    a('v_lshrrev_b32 %s, 4, %s' % (v(vT+1), v(vT)))
    a('s_lshl_b32 %s, %s, 5' % (s(sT0), s(sK)))
    a('s_add_u32 %s, %s, %d' % (s(sT0), s(sT0), W_ST + 12))
    a('v_lshl_add_u32 %s, %s, 8, %s' % (v(vXC), v(vT+1), s(sT0)))
    a('v_and_b32 %s, 15, %s' % (v(vT+5), v(vL)))
    a('v_lshrrev_b32 %s, 4, %s' % (v(vT+6), v(vL)))
    a('s_cmp_ge_u32 %s, 4' % s(sW))
    a('s_cbranch_scc1 L_h_setup')

    a('v_and_b32 %s, 31, %s' % (v(vT), v(vL)))
    a('v_lshrrev_b32 %s, 5, %s' % (v(vT+1), v(vL)))
    a('s_lshl_b32 %s, %s, 9' % (s(sT0), s(sW)))
    a('v_lshl_add_u32 %s, %s, 4, %s' % (v(vT+2), v(vT+1), s(sT0)))
    a('s_movk_i32 %s, %d' % (s(sT1), RS))
    a('v_mad_u32_u24 %s, %s, %s, %s' % (v(vKB), v(vT), s(sT1), v(vT+2)))
    a('v_add_u32 %s, -16, %s' % (v(vT+3), v(vT)))
    a('v_cmp_lt_u32 vcc, 20, %s' % v(vT))
    a('v_cndmask_b32 %s, %s, %s, vcc' % (v(vT+3), v(vT), v(vT+3)))
    a('v_mad_u32_u24 %s, %s, %s, %s' % (v(vKA), v(vT+3), s(sT1), v(vT+2)))
    a('v_add_u32 %s, %d, %s' % (v(vKA), STAGE + 32*RS, v(vKA)))
    a('s_mul_i32 %s, %s, %d' % (s(sT0), s(sW), TS))
    a('s_add_u32 %s, %s, %d' % (s(sT0), s(sT0), TAB + 8))
    a('v_lshlrev_b32 %s, 4, %s' % (v(vTW1), v(vT)))
    a('v_lshl_add_u32 %s, %s, 3, %s' % (v(vTW1), v(vT+1), v(vTW1)))
    a('v_add_u32 %s, %s, %s' % (v(vTW1), s(sT0), v(vTW1)))
    a('v_cmp_eq_u32 vcc, 0, %s' % v(vT+1))
    a('v_lshlrev_b32 %s, 3, %s' % (v(vT+3), v(vT)))
    a('v_add_u32 %s, 512, %s' % (v(vT+3), v(vT+3)))
    a('v_lshlrev_b32 %s, 2, %s' % (v(vT+4), v(vT)))
    a('v_add_u32 %s, 768, %s' % (v(vT+4), v(vT+4)))
    a('v_cndmask_b32 %s, %s, %s, vcc' % (v(vTW2), v(vT+4), v(vT+3)))
    a('v_add_u32 %s, %s, %s' % (v(vTW2), s(sT0), v(vTW2)))
    a('v_mul_u32_u24 %s, 124, %s' % (v(vT+3), v(vT+1)))
    a('v_add3_u32 %s, %s, %s, 4' % (v(vTW3), v(vTW2), v(vT+3)))
    a('v_lshlrev_b32 %s, 1, %s' % (v(vTW4), v(vT)))
    a('v_lshl_add_u32 %s, %s, 8, %s' % (v(vTW4), v(vT+1), v(vTW4)))
    a('s_add_u32 %s, %s, 1024' % (s(sT0), s(sT0)))
    a('v_add_u32 %s, %s, %s' % (v(vTW4), s(sT0), v(vTW4)))
    a('s_mul_i32 %s, %s, %d' % (s(sT0), s(sW), R4S))
    a('s_add_u32 %s, %s, %d' % (s(sT0), s(sT0), R4 + 8*24))
    a('v_lshlrev_b32 %s, 3, %s' % (v(vT+3), v(vT+6)))
    a('v_sub_u32 %s, %s, %s' % (v(vT+3), v(vT+5), v(vT+3)))
    a('v_lshl_add_u32 %s, %s, 3, %s' % (v(vCA), v(vT+3), s(sT0)))
    a('s_mul_i32 %s, %s, %d' % (s(sT0), s(sW), US))
    a('s_add_u32 %s, %s, %d' % (s(sT0), s(sT0), U))
    a('v_lshlrev_b32 %s, 4, %s' % (v(vT+3), v(vT+6)))
    a('v_lshl_add_u32 %s, %s, 5, %s' % (v(vT+3), v(vT+5), v(vT+3)))
    a('v_add_u32 %s, %s, %s' % (v(vCB), s(sT0), v(vT+3)))
    a('s_mul_i32 %s, %s, %d' % (s(sT0), s(sW), YCS))
    a('s_add_u32 %s, %s, %d' % (s(sT0), s(sT0), YX))
    a('v_mul_u32_u24 %s, %d, %s' % (v(vT+3), YGS, v(vT+6)))
    a('v_lshl_add_u32 %s, %s, 4, %s' % (v(vT+3), v(vT+5), v(vT+3)))
    a('v_add_u32 %s, %s, %s' % (v(vY), s(sT0), v(vT+3)))
    slw, slr, ina = vXN, vXN+1, vXN+4
    a('s_lshl_b32 %s, %s, 11' % (s(sT0), s(sW)))
    a('s_add_u32 %s, %s, %d' % (s(sT0), s(sT0), SL))
    a('v_lshrrev_b32 %s, 3, %s' % (v(vT), v(vL)))
    a('v_and_b32 %s, 7, %s' % (v(vT+1), v(vL)))
    a('v_lshrrev_b32 %s, 1, %s' % (v(vT+2), v(vT)))
    a('v_xor_b32 %s, %s, %s' % (v(vT+2), v(vT+2), v(vT+1)))
    a('v_lshlrev_b32 %s, 4, %s' % (v(vT+2), v(vT+2)))
    a('v_lshl_add_u32 %s, %s, 7, %s' % (v(vT+2), v(vT), v(vT+2)))
    a('v_add_u32 %s, %s, %s' % (v(slw), s(sT0), v(vT+2)))
    a('v_xor_b32 %s, 64, %s' % (v(slw+5), v(slw)))
    a('v_and_b32 %s, 3, %s' % (v(vT+2), v(vL)))
    a('v_bfe_u32 %s, %s, 2, 1' % (v(vT+3), v(vL)))
    a('v_lshl_add_u32 %s, %s, 1, %s' % (v(vT+2), v(vT+2), v(vT+3)))
    a('v_lshrrev_b32 %s, 1, %s' % (v(vT+3), v(vT)))
    a('v_xor_b32 %s, %s, %s' % (v(vT+3), v(vT+3), v(vT+2)))
    a('v_lshlrev_b32 %s, 4, %s' % (v(vT+3), v(vT+3)))
    a('v_lshl_add_u32 %s, %s, 8, %s' % (v(vT+3), v(vT+2), v(vT+3)))
    a('v_and_b32 %s, 1, %s' % (v(vT+4), v(vT)))
    a('v_lshl_add_u32 %s, %s, 3, %s' % (v(vT+3), v(vT+4), v(vT+3)))
    a('v_add_u32 %s, %s, %s' % (v(slr), s(sT0), v(vT+3)))
    a('v_xor_b32 %s, 64, %s' % (v(slr+1), v(slr)))
    a('s_lshl_b32 %s, %s, 18' % (s(sT0), s(sK)))
    a('s_lshl_b32 %s, %s, 9' % (s(sT1), s(sJ)))
    a('s_add_u32 %s, %s, %s' % (s(sT0), s(sT0), s(sT1)))
    a('s_lshl_b32 %s, %s, 7' % (s(sT1), s(sW)))
    a('s_add_u32 %s, %s, %s' % (s(sT0), s(sT0), s(sT1)))
    a('s_add_u32 %s, %s, %d' % (s(sT0), s(sT0), W_IN))
    a('v_lshlrev_b32 %s, 4, %s' % (v(vT+1), v(vT+1)))
    a('v_lshl_add_u32 %s, %s, 14, %s' % (v(vT+1), v(vT), v(vT+1)))
    a('v_add_u32 %s, %s, %s' % (v(ina), s(sT0), v(vT+1)))
    a('v_add_u32 %s, 0x20000, %s' % (v(ina-1), v(ina)))
    a('s_lshl_b32 %s, %s, 9' % (s(sT0), s(sK)))
    a('s_lshl_b32 %s, %s, 4' % (s(sT1), s(sJ)))
    a('s_add_u32 %s, %s, %s' % (s(sT0), s(sT0), s(sT1)))
    a('s_lshl_b32 %s, %s, 2' % (s(sT1), s(sW)))
    a('s_add_u32 %s, %s, %s' % (s(sT0), s(sT0), s(sT1)))
    a('s_add_u32 %s, %s, %d' % (s(sT0), s(sT0), W_FL))
    a('v_mov_b32 %s, %s' % (v(vFPA), s(sT0)))
    a('v_mov_b32 %s, 4096' % v(vWDA))
    vm(7)
    stamp(1)
    a('ds_write_b128 %s, %s' % (v(slw), v(vD,4)))
    a('ds_write_b128 %s, %s offset:1024' % (v(slw+5), v(vD+4,4)))
    a('ds_read_b64 %s, %s' % (v(vG,2), v(slr)))
    a('ds_read_b64 %s, %s offset:128' % (v(vG+2,2), v(slr)))
    a('ds_read_b64 %s, %s' % (v(vG+4,2), v(slr+1)))
    a('ds_read_b64 %s, %s offset:128' % (v(vG+6,2), v(slr+1)))
    a('s_waitcnt lgkmcnt(0)')
    a('global_store_dwordx4 %s, %s, %s' % (v(ina), v(vG,4), s(sWS,2)))
    a('global_store_dwordx4 %s, %s, %s' % (v(ina-1), v(vG+4,4), s(sWS,2)))
    vm(2)
    a('s_branch L_kgen')

    a('L_h_setup:')
    a('s_mul_i32 %s, %s, %d' % (s(sT0), s(sWI), YTS))
    a('s_add_u32 %s, %s, %d' % (s(sT0), s(sT0), YX))
    a('v_and_b32 %s, 3, %s' % (v(vT), v(vL)))
    a('v_lshrrev_b32 %s, 2, %s' % (v(vT+1), v(vL)))
    a('v_mul_u32_u24 %s, %d, %s' % (v(vT), YGS, v(vT)))
    a('v_lshl_add_u32 %s, %s, 4, %s' % (v(vT), v(vT+1), v(vT)))
    a('v_add_u32 %s, %s, %s' % (v(vY), s(sT0), v(vT)))
    a('v_lshrrev_b32 %s, 2, %s' % (v(vT), v(vT+5)))
    a('v_lshl_add_u32 %s, %s, 2, %s' % (v(vT), v(vT+6), v(vT)))
    a('v_bfe_u32 %s, %s, 1, 1' % (v(vT+1), v(vL)))
    a('v_mul_u32_u24 %s, %d, %s' % (v(vT+1), WL1, v(vT+1)))
    a('v_lshl_add_u32 %s, %s, 4, %s' % (v(vT), v(vT), v(vT+1)))
    a('v_and_b32 %s, 1, %s' % (v(vT+1), v(vL)))
    a('v_lshl_add_u32 %s, %s, 3, %s' % (v(vT), v(vT+1), v(vT)))
    a('s_lshl_b32 %s, %s, 11' % (s(sT0), s(sWI)))
    a('s_add_u32 %s, %s, %d' % (s(sT0), s(sT0), WL))
    a('v_add_u32 %s, %s, %s' % (v(vWT), s(sT0), v(vT)))
    a('s_lshl_b32 %s, %s, 7' % (s(sT0), s(sWI)))
    a('v_add_u32 %s, %s, %s' % (v(vT), s(sT0), v(vL)))
    a('s_lshl_b32 %s, %s, 4' % (s(sT1), s(sF8)))
    a('v_mul_u32_u24 %s, 2752, %s' % (v(vT), v(vT)))
    a('v_add_u32 %s, %s, %s' % (v(vKA), s(sT1), v(vT)))
    a('v_add_u32 %s, %d, %s' % (v(vKB), 64*2752, v(vKA)))
    a('v_and_b32 %s, 255, v0' % v(vT))
    a('s_lshl_b32 %s, %s, 13' % (s(sT0), s(sF8)))
    a('v_lshl_add_u32 %s, %s, 2, %s' % (v(vWDA), v(vT), s(sT0)))
    a('v_add_u32 %s, 4096, %s' % (v(vWDA), v(vWDA)))
    a('v_lshrrev_b32 %s, 1, %s' % (v(vT+1), v(vT)))
    a('v_mul_u32_u24 %s, 6144, %s' % (v(vT+1), v(vT+1)))
    a('v_and_b32 %s, 1, %s' % (v(vT), v(vT)))
    a('v_lshl_add_u32 %s, %s, 4, %s' % (v(vT+1), v(vT), v(vT+1)))
    a('s_lshl_b32 %s, %s, 5' % (s(sT0), s(sF8)))
    a('s_add_u32 %s, %s, %d' % (s(sT0), s(sT0), W_FP))
    a('v_add_u32 %s, %s, %s' % (v(vFPA), s(sT0), v(vT+1)))
    a('v_lshlrev_b32 %s, 3, %s' % (v(vT), v(vT+6)))
    a('v_lshl_add_u32 %s, %s, 6, %s' % (v(vCA), v(vT+5), v(vT)))
    a('s_lshl_b32 %s, %s, 8' % (s(sT0), s(sWI)))
    a('s_add_u32 %s, %s, %d' % (s(sT0), s(sT0), FP))
    a('v_lshl_add_u32 %s, %s, 2, %s' % (v(vCB), v(vL), s(sT0)))
    a('v_lshlrev_b32 %s, 2, %s' % (v(vTW1), v(vT+5)))
    a('v_add_u32 %s, %d, %s' % (v(vTW1), FP, v(vTW1)))
    a('s_lshl_b32 %s, %s, 2' % (s(sT0), s(sWI)))
    a('s_add_u32 %s, %s, %d' % (s(sT0), s(sT0), FF))
    a('v_mov_b32 %s, %s' % (v(vTW2), s(sT0)))
    a('v_mov_b32 %s, %d' % (v(vTW3), FF))
    a('s_lshl_b32 %s, s2, 5' % s(sT0))
    a('s_lshr_b32 %s, %s, 1' % (s(sT1), s(sWI)))
    a('s_lshl_b32 %s, %s, 4' % (s(sT1), s(sT1)))
    a('s_add_u32 %s, %s, %s' % (s(sT0), s(sT0), s(sT1)))
    a('s_and_b32 %s, %s, 1' % (s(sT1), s(sWI)))
    a('s_lshl_b32 %s, %s, 13' % (s(sT1), s(sT1)))
    a('s_add_u32 %s, %s, %s' % (s(sT0), s(sT0), s(sT1)))
    a('s_add_u32 %s, %s, %d' % (s(sT0), s(sT0), W_ST))
    a('v_mov_b32 %s, %s' % (v(vTW4), s(sT0)))
    rk, pfa = vXN, vXN+1
    a('s_lshl_b32 %s, s2, 3' % s(sT0))
    a('s_lshl_b32 %s, %s, 1' % (s(sT1), s(sWI)))
    a('s_add_u32 %s, %s, %s' % (s(sT0), s(sT0), s(sT1)))
    a('s_sub_u32 %s, 0xffff, %s' % (s(sT0), s(sT0)))
    a('v_lshrrev_b32 %s, 5, %s' % (v(rk), v(vL)))
    a('v_sub_u32 %s, %s, %s' % (v(rk), s(sT0), v(rk)))
    a('s_lshl_b32 %s, %s, 13' % (s(sT0), s(sH)))
    a('s_lshl_b32 %s, %s, 11' % (s(sT1), s(sWI)))
    a('s_add_u32 %s, %s, %s' % (s(sT0), s(sT0), s(sT1)))
    a('s_add_u32 %s, %s, %s' % (s(sT0), s(sT0), s(sT2)))
    a('v_lshl_add_u32 %s, %s, 7, %s' % (v(pfa), v(vT+5), s(sT0)))
    S1, S2, S3, S4 = vXF, vXF+1, vXF+2, vXF+3
    def red32(regs):
        for m in ('row_shr:1','row_shr:2','row_shr:4','row_shr:8'):
            for r in regs: a('v_add_f32_dpp %s, %s, %s %s row_mask:0xf bank_mask:0xf' % (v(r), v(r), v(r), m))
        for r in regs: a('v_add_f32_dpp %s, %s, %s row_bcast:15 row_mask:0xa bank_mask:0xf' % (v(r), v(r), v(r)))
    for r in (S1,S2,S3,S4): a('v_mov_b32 %s, 0' % v(r))
    vm(9)
    for i in range(8): a('v_dot2_f32_bf16 %s, %s, %s, %s' % (v(S4), v(vG+i), s(sONES), v(S4)))
    red32([S4])
    vm(7)
    stamp(1)
    if o['prefetch']:
        a('s_mov_b64 exec, 0xffff')
        a('global_load_dword %s, %s, %s nt' % (v(vPF), v(pfa), s(sWS,2)))
        a('s_mov_b64 exec, -1')
    for i in range(8):
        a('v_dot2_f32_bf16 %s, %s, %s, %s' % (v(S1), v(vD+i), s(sONES), v(S1)))
        a('v_dot2_f32_bf16 %s, %s, %s, %s' % (v(S2), v(vD+i), v(vD+i), v(S2)))
        a('v_dot2_f32_bf16 %s, %s, %s, %s' % (v(S3), v(vD+i), v(vG+i), v(S3)))
    red32([S1,S2,S3])
    t = vT
    a('v_mul_f32 %s, 0x3b000000, %s' % (v(S1), v(S1)))
    a('v_mul_f32 %s, 0x3b000000, %s' % (v(S2), v(S2)))
    a('v_fma_f32 %s, -%s, %s, %s' % (v(S2), v(S1), v(S1), v(S2)))
    a('v_max_f32 %s, 0, %s' % (v(S2), v(S2)))
    a('v_cvt_pk_bf16_f32 %s, %s, %s' % (v(t), v(S1), v(S2)))
    a('v_and_b32 %s, %s, %s' % (v(t), s(sHI), v(t)))
    a('v_add_f32 %s, 0x3727c5ac, %s' % (v(t), v(t)))
    a('v_cvt_pk_bf16_f32 %s, %s, %s' % (v(t), v(t), v(t)))
    a('v_and_b32 %s, %s, %s' % (v(t), s(sHI), v(t)))
    a('v_sqrt_f32 %s, %s' % (v(t), v(t)))
    g = vE
    a('v_cvt_pk_bf16_f32 %s, %s, %s' % (v(g+1), v(S1), v(t)))
    a('v_and_b32 %s, %s, %s' % (v(t), s(sHI), v(g+1)))
    a('v_lshlrev_b32 %s, 16, %s' % (v(t+1), v(g+1)))
    a('v_rcp_f32 %s, %s' % (v(t), v(t)))
    a('v_fma_f32 %s, -%s, %s, %s' % (v(S3), v(t+1), v(S4), v(S3)))
    a('v_readlane_b32 %s, %s, 31' % (s(sT0), v(g+1)))
    a('v_mul_f32 %s, %s, %s' % (v(S3), v(S3), v(t)))
    a('v_cvt_pk_bf16_f32 %s, %s, %s' % (v(S3), v(S3), v(S3)))
    a('v_mov_b32 %s, %s' % (v(g), s(sT0)))
    a('v_ashrrev_i32 %s, 31, %s' % (v(t), v(S3)))
    a('v_or_b32 %s, 0x80000000, %s' % (v(t), v(t)))
    a('v_xor_b32 %s, %s, %s' % (v(t), v(t), v(S3)))
    a('v_and_or_b32 %s, %s, %s, %s' % (v(t), v(t), s(sHI), v(rk)))
    vm(1 if o['prefetch'] else 0)
    a('v_readlane_b32 %s, %s, 31' % (s(sT0), v(t)))
    a('v_readfirstlane_b32 %s, %s' % (s(sTAG), v(vEP)))
    a('v_max_u32 %s, %s, %s' % (v(g+2), s(sT0), v(t)))
    a('s_add_u32 %s, %s, 16' % (s(sTAG), s(sTAG)))
    a('s_and_b32 %s, %s, -16' % (s(sTAG), s(sTAG)))
    a('s_or_b32 %s, %s, %s' % (s(sTAGX), s(sTAG), s(sXCC)))
    a('v_mov_b32 %s, %s' % (v(g+3), s(sTAGX)))
    a('s_mov_b32 exec_lo, 0')
    a('s_mov_b32 exec_hi, 0x80000000')
    a('global_store_dwordx4 %s, %s, %s sc1' % (v(vTW4), v(g,4), s(sWS,2)))
    a('s_mov_b64 exec, -1')
    a('s_setprio 0')
    stamp(2)

    a('L_kgen:')
    are, aim, bre, bim, cre, cim = [vP+i for i in range(6)]
    dt = vP+6; t0 = vP+7
    z1, z2, z4, ZZ, w1, w2, w4, c0 = [vP+8+2*i for i in range(8)]
    hq = [vP+24+2*i for i in range(8)]
    lq = [vP+40+2*i for i in range(8)]
    cv = [vP+56+i for i in range(8)]
    a('s_waitcnt lgkmcnt(0)')
    a('s_lshr_b32 %s, %s, 1' % (s(sT0), s(sW)))
    a('s_lshl_b32 %s, %s, 4' % (s(sT0), s(sT0)))
    a('s_lshr_b64 %s, %s, %s' % (s(sLD,2), s(sLD,2), s(sT0)))
    a('s_lshl_b32 %s, %s, 16' % (s(sT0), s(sLD)))
    a('v_mov_b32 %s, 0x3fb8aa3b' % v(t0))
    a('v_mul_f32 %s, %s, %s' % (v(dt), s(sT0), v(t0)))
    a('v_exp_f32 %s, %s' % (v(dt), v(dt)))
    a('s_lshl_b32 %s, %s, 8' % (s(sT0), s(sW)))
    a('s_mov_b32 m0, %s' % s(sT0))
    a('v_cvt_pk_bf16_f32 %s, %s, %s' % (v(dt), v(dt), v(dt)))
    a('v_and_b32 %s, %s, %s' % (v(dt), s(sHI), v(dt)))
    a('v_mul_f32 %s, %s, %s' % (v(are), v(dt), v(are)))
    a('v_mul_f32 %s, %s, %s' % (v(aim), v(dt), v(aim)))
    a('v_mul_f32 %s, %s, %s' % (v(are), v(t0), v(are)))
    a('v_mul_f32 %s, 0.15915494, %s' % (v(aim), v(aim)))
    a('v_exp_f32 %s, %s' % (v(cv[0]), v(are)))
    a('v_fract_f32 %s, %s' % (v(cv[1]), v(aim)))
    a('v_mul_f32 %s, 0x43800000, %s' % (v(are), v(are)))
    a('v_cos_f32 %s, %s' % (v(z1), v(cv[1])))
    a('v_mul_f32 %s, 0x43800000, %s' % (v(aim), v(aim)))
    a('v_sin_f32 %s, %s' % (v(z1+1), v(cv[1])))
    a('v_fract_f32 %s, %s' % (v(cv[3]), v(aim)))
    a('v_exp_f32 %s, %s' % (v(cv[2]), v(are)))
    a('v_mul_f32 %s, %s, %s' % (v(z1), v(cv[0]), v(z1)))
    a('v_cos_f32 %s, %s' % (v(ZZ), v(cv[3])))
    a('v_mul_f32 %s, %s, %s' % (v(z1+1), v(cv[0]), v(z1+1)))
    a('v_sin_f32 %s, %s' % (v(ZZ+1), v(cv[3])))
    a('v_mul_f32 %s, %s, %s' % (v(bre), v(dt), v(bre)))
    a('v_mul_f32 %s, %s, %s' % (v(bim), v(dt), v(bim)))
    cmul(a, z2, z1, z1)
    a('v_mul_f32 %s, %s, %s' % (v(ZZ), v(cv[2]), v(ZZ)))
    a('v_mul_f32 %s, %s, %s' % (v(ZZ+1), v(cv[2]), v(ZZ+1)))
    cmul(a, hq[0], cre, bre)
    cmul(a, z4, z2, z2)
    ci = [0]
    m0_hi = [False]
    def put(row, reg, neg):
        c = cv[ci[0] % 8]; ci[0] += 1
        a('v_cvt_pk_bf16_f32 %s, %s, %s%s' % (v(c), v(reg), '-' if neg else '', v(reg+1)))
        off = row*RS - (30*RS if m0_hi[0] else 0)
        assert 0 <= off < 65536, (row, off)
        a('ds_write_addtid_b32 %s offset:%d' % (v(c), STAGE + off))
    cmul(a, w1, z4, z4)
    cmul(a, hq[1], hq[0], z1)
    cmul(a, w2, w1, w1)
    put(1, w1, False)
    cmul(a, hq[2], hq[0], z2)
    cmul(a, lq[3], w2, w1)
    put(2, w2, False)
    cmul(a, w4, w2, w2)
    put(3, lq[3], False)
    cur = {1: w1, 2: w2, 3: lq[3], 4: w4}
    put(4, w4, False)
    def lo_step(j):
        d = lq[j % 8]
        cmul(a, d, cur[j-4], w4); cur[j] = d
        put(j, d, False)
    for j in range(5, 14): lo_step(j)
    a('s_cmp_ge_u32 %s, 4' % s(sW))
    a('s_cbranch_scc1 L_noflag')
    a('s_waitcnt vmcnt(0)')
    a('v_readfirstlane_b32 %s, %s' % (s(sTAG), v(vEP)))
    a('s_add_u32 %s, %s, 16' % (s(sTAG), s(sTAG)))
    a('s_and_b32 %s, %s, -16' % (s(sTAG), s(sTAG)))
    a('s_or_b32 %s, %s, %s' % (s(sTAGX), s(sTAG), s(sXCC)))
    a('v_mov_b32 %s, %s' % (v(vT), s(sTAGX)))
    a('s_mov_b64 exec, 1')
    a('global_store_dword %s, %s, %s' % (v(vFPA), v(vT), s(sWS,2)))
    a('s_mov_b64 exec, -1')
    stamp(2)
    a('L_noflag:')
    for j in range(14, 30): lo_step(j)
    a('s_lshl_b32 %s, %s, 8' % (s(sT0), s(sW)))
    a('s_add_u32 %s, %s, %d' % (s(sT0), s(sT0), 30*RS))
    a('s_mov_b32 m0, %s' % s(sT0))
    m0_hi[0] = True
    for j in range(30, 32): lo_step(j)
    a('global_load_dword %s, %s, %s sc1' % (v(vPF), v(vFL), s(sWS,2)))
    put(32, hq[0], True); put(33, hq[1], True); put(34, hq[2], True)
    cmul(a, hq[3], hq[1], z2);  cmul(a, hq[4], hq[0], z4)
    put(35, hq[3], True); put(36, hq[4], True)
    cmul(a, hq[5], hq[1], z4);  cmul(a, hq[6], hq[2], z4); cmul(a, hq[7], hq[3], z4)
    put(37, hq[5], True); put(38, hq[6], True); put(39, hq[7], True)
    A0, A2, A4, A6 = lq[0], lq[1], lq[2], lq[3]
    cmul(a, A0, hq[0], ZZ); cmul(a, A2, hq[2], ZZ); cmul(a, A4, hq[4], ZZ); cmul(a, A6, hq[6], ZZ)
    put(40, A0, True)
    B0, B4 = lq[4], lq[5]
    cmul(a, B0, A0, ZZ); put(41, A2, True); cmul(a, B4, A4, ZZ); put(42, A4, True)
    C0, C4 = lq[6], lq[7]
    cmul(a, C0, B0, ZZ); put(43, A6, True); cmul(a, C4, B4, ZZ); put(44, B0, True)
    cmul(a, hq[1], C0, ZZ); put(45, B4, True); put(46, C0, True)
    cmul(a, hq[2], hq[1], ZZ); put(47, C4, True); put(48, hq[1], True)
    cmul(a, hq[3], hq[2], ZZ); put(49, hq[2], True)
    cmul(a, hq[4], hq[3], ZZ); put(50, hq[3], True)
    cmul(a, hq[5], hq[4], ZZ); put(51, hq[4], True); put(52, hq[5], True)
    stamp(3)

    a('s_waitcnt vmcnt(0)')
    a('v_cmp_ne_u32 vcc, %s, %s' % (s(sTAGX), v(vPF)))
    if o['force_slow']: a('s_branch L_gather')
    a('s_cbranch_vccz L_fast')
    a('s_mov_b32 %s, %d' % (s(sCNT), o['spinmax']))
    a('L_flagspin:')
    a('global_load_dword %s, %s, %s sc1' % (v(vPF), v(vFL), s(sWS,2)))
    a('global_load_dword %s, %s, %s sc1' % (v(vT), v(vXC), s(sWS,2)))
    a('s_waitcnt vmcnt(0)')
    a('v_cmp_ne_u32 vcc, %s, %s' % (s(sTAGX), v(vPF)))
    a('s_cbranch_vccz L_fast')
    a('v_xor_b32 %s, %s, %s' % (v(vT), s(sTAGX), v(vT)))
    a('v_add_u32 %s, -1, %s' % (v(vT), v(vT)))
    a('v_cmp_gt_u32 vcc, 15, %s' % v(vT))
    a('s_cbranch_vccnz L_gather')
    a('s_sub_u32 %s, %s, 1' % (s(sCNT), s(sCNT)))
    a('s_cmp_lg_u32 %s, 0' % s(sCNT))
    a('s_cbranch_scc1 L_flagspin')
    a('L_gather:')
    for r in range(4):
        a('global_load_dwordx2 %s, %s, %s offset:%d' % (v(vD+2*r,2), v(vXG), s(sX,2), r*1024))
    a('s_branch L_stats')
    a('L_fast:')
    a('global_load_dwordx4 %s, %s, %s sc1' % (v(vD,4), v(vIN), s(sWS,2)))
    a('global_load_dwordx4 %s, %s, %s offset:64 sc1' % (v(vD+4,4), v(vIN), s(sWS,2)))
    a('L_stats:')
    a('global_load_dwordx4 %s, %s, %s sc1' % (v(vG,4), v(vST0), s(sWS,2)))
    a('global_load_dwordx4 %s, %s, %s sc1' % (v(vG+4,4), v(vST1), s(sWS,2)))
    def wloads():
        a('s_lshl_b32 %s, %s, 11' % (s(sT0), s(sWI)))
        a('s_add_u32 %s, %s, %d' % (s(sT0), s(sT0), WL))
        for mu, base in enumerate((sWG, sWU)):
            for i, r in enumerate((vKA, vKB)):
                a('s_add_u32 m0, %s, %d' % (s(sT0), mu*WL1 + i*1024))
                a('global_load_lds_dwordx4 %s, %s' % (v(r), s(base,2)))
        for i in range(8):
            a('global_load_dword %s, %s, %s offset:%d' % (v(vWD+i), v(vWDA), s(sWD,2), i*1024 - 4096))
    a('s_waitcnt lgkmcnt(0)')
    stamp(4)
    a('s_barrier')
    a('s_cmp_ge_u32 %s, 4' % s(sW))
    a('s_cbranch_scc1 L_h_b3')
    KD = vP; KF = vP + 16
    NB = 6
    def kread(sidx):
        r = KF + 8*(sidx % NB)
        a('ds_read_b128 %s, %s offset:%d' % (v(r,4), v(vKA), 32*sidx))
        a('ds_read_b128 %s, %s offset:%d' % (v(r+4,4), v(vKB), 32*sidx))
    for i in range(NB): kread(i)
    for sidx in range(16):
        outstanding = min(16, sidx + NB) - sidx - 1
        a('s_waitcnt lgkmcnt(%d)' % (2*outstanding))
        r = KF + 8*(sidx % NB)
        a('v_mfma_f32_32x32x16_bf16 %s, %s, %s, %s' % (v(KD,16), v(r,4), v(r+4,4), '0' if sidx == 0 else v(KD,16)))
        if sidx + NB < 16: kread(sidx + NB)
    for i in range(6):
        a('v_cvt_pk_bf16_f32 %s, %s, %s' % (v(vT+i), v(KD+2*i), v(KD+2*i+1)))
    a('ds_write_b64 %s, %s' % (v(vTW1), v(vT,2)))
    a('ds_write_b32 %s, %s' % (v(vTW2), v(vT+2)))
    a('ds_write_b32 %s, %s' % (v(vTW3), v(vT+3)))
    a('ds_write_b16 %s, %s' % (v(vTW4), v(vT+4)))
    a('ds_write_b16_d16_hi %s, %s offset:64' % (v(vTW4), v(vT+4)))
    a('ds_write_b16 %s, %s offset:128' % (v(vTW4), v(vT+5)))
    a('ds_write_b16_d16_hi %s, %s offset:192' % (v(vTW4), v(vT+5)))
    a('s_waitcnt lgkmcnt(0)')
    a('s_branch L_b3')
    a('L_h_b3:')
    if not o['wlate']:
        a('s_cmp_eq_u32 %s, 0' % s(sPROD))
        a('s_cbranch_scc1 L_b3')
        a('s_waitcnt vmcnt(0)')
        wloads()
    a('L_b3:')
    stamp(5)
    a('s_barrier')
    Wq = vP; Q = vP + 16
    for c in range(4):
        a('ds_read2_b32 %s, %s offset0:0 offset1:1' % (v(Wq+4*c,2), v(vGA+2*c)))
        a('ds_read2_b32 %s, %s offset0:0 offset1:1' % (v(Wq+4*c+2,2), v(vGA+2*c+1)))
    a('s_cmp_lg_u32 %s, 7' % s(sW))
    a('s_cbranch_scc1 L_nopad')
    a('v_bfe_u32 %s, %s, 3, 2' % (v(vT), v(vL)))
    a('v_and_b32 %s, 7, %s' % (v(vT+1), v(vL)))
    a('v_min_u32 %s, 5, %s' % (v(vT+1), v(vT+1)))
    a('v_mul_u32_u24 %s, %d, %s' % (v(vT), R4S, v(vT)))
    a('v_lshl_add_u32 %s, %s, 4, %s' % (v(vT), v(vT+1), v(vT)))
    for i in range(4): a('v_mov_b32 %s, 0' % v(vT+4+i))
    a('ds_write_b128 %s, %s offset:%d' % (v(vT), v(vT+4,4), R4))
    a('s_waitcnt lgkmcnt(1)')
    a('L_nopad:')
    for c in range(4):
        a('s_waitcnt lgkmcnt(%d)' % (6 if c == 0 else 6))
        W0, W1, W2, W3 = [Wq+4*c+i for i in range(4)]
        q = Q + 8*c
        a('v_perm_b32 %s, %s, %s, %s' % (v(q+0), v(W2), v(W1), v(vSEL+2)))
        a('v_perm_b32 %s, %s, %s, %s' % (v(q+1), v(W1), v(W0), v(vSEL+0)))
        a('v_perm_b32 %s, %s, %s, %s' % (v(q+2), v(W3), v(W2), v(vSEL+3)))
        a('v_perm_b32 %s, %s, %s, %s' % (v(q+3), v(W1), v(W0), v(vSEL+1)))
        a('ds_write_b128 %s, %s offset:%d' % (v(vR4W), v(q,4), c*R4S))
        a('v_perm_b32 %s, %s, %s, %s' % (v(q+4), v(W3), v(W2), v(vSEL+4)))
        a('v_mov_b32 %s, %s' % (v(q+5), v(q+0)))
        a('v_perm_b32 %s, %s, %s, %s' % (v(q+6), v(W3), v(W2), v(vSEL+5)))
        a('v_mov_b32 %s, %s' % (v(q+7), v(q+2)))
        a('ds_write_b128 %s, %s offset:%d' % (v(vR4W), v(q+4,4), c*R4S + 16))
    stamp(6)
    if o['wlate']: a('s_waitcnt vmcnt(0)')
    else:
        a('s_cmp_lt_u32 %s, 4' % s(sW))
        a('s_cbranch_scc1 L_nw0')
        a('s_cmp_lg_u32 %s, 0' % s(sPROD))
        a('s_cbranch_scc1 L_nw1')
        a('L_nw0:')
        a('s_waitcnt vmcnt(0)')
        a('L_nw1:')
    a('s_mov_b32 %s, %d' % (s(sCNT), o['spinmax']))
    a('L_statspin:')
    a('v_xor_b32 %s, %s, %s' % (v(vT), s(sTAG), v(vG+3)))
    a('v_xor_b32 %s, %s, %s' % (v(vT+1), s(sTAG), v(vG+7)))
    a('v_or_b32 %s, %s, %s' % (v(vT), v(vT), v(vT+1)))
    a('v_cmp_lt_u32 vcc, 15, %s' % v(vT))
    a('s_cbranch_vccz L_statok')
    a('global_load_dwordx4 %s, %s, %s sc1' % (v(vG,4), v(vST0), s(sWS,2)))
    a('global_load_dwordx4 %s, %s, %s sc1' % (v(vG+4,4), v(vST1), s(sWS,2)))
    a('s_sub_u32 %s, %s, 1' % (s(sCNT), s(sCNT)))
    a('s_cmp_lg_u32 %s, 0' % s(sCNT))
    a('s_waitcnt vmcnt(0)')
    a('s_cbranch_scc1 L_statspin')
    a('L_statok:')
    stamp(7)
    stq = [vG, vG+1, vG+4, vG+5]
    rho = [vT+i for i in range(4)]; mu = [vT+4+i for i in range(4)]
    key = vT+8
    for r in range(4): a('v_and_b32 %s, %s, %s' % (v(rho[r]), s(sHI), v(stq[r])))
    a('v_max_u32 %s, %s, %s' % (v(key), v(vG+2), v(vG+6)))
    for r in range(4):
        a('v_rcp_f32 %s, %s' % (v(rho[r]), v(rho[r])))
        a('v_lshlrev_b32 %s, 16, %s' % (v(mu[r]), v(stq[r])))
    kred = ['row_shr:1 row_mask:0xf','row_shr:2 row_mask:0xf','row_shr:4 row_mask:0xf','row_shr:8 row_mask:0xf','row_bcast:15 row_mask:0xa','row_bcast:31 row_mask:0xc']
    for r in range(4):
        a('v_mul_f32_e64 %s, -%s, %s' % (v(mu[r]), v(mu[r]), v(rho[r])))
        a('v_lshlrev_b32 %s, 16, %s' % (v(vXF+4*r), v(vD+2*r)))
        a('v_and_b32 %s, %s, %s' % (v(vXF+4*r+1), s(sHI), v(vD+2*r)))
        a('v_lshlrev_b32 %s, 16, %s' % (v(vXF+4*r+2), v(vD+2*r+1)))
        a('v_and_b32 %s, %s, %s' % (v(vXF+4*r+3), s(sHI), v(vD+2*r+1)))
        a('v_max_u32_dpp %s, %s, %s %s bank_mask:0xf' % (v(key), v(key), v(key), kred[r]))
        for c in range(4):
            a('v_fma_f32 %s, %s, %s, %s' % (v(vXN+4*r+c), v(vXF+4*r+c), v(rho[r]), v(mu[r])))
    a('v_max_u32_dpp %s, %s, %s %s bank_mask:0xf' % (v(key), v(key), v(key), kred[4]))
    XP = vG
    for c in range(4):
        a('v_cvt_pk_bf16_f32 %s, %s, %s' % (v(XP+2*c), v(vXN+c), v(vXN+4+c)))
        a('v_cvt_pk_bf16_f32 %s, %s, %s' % (v(XP+2*c+1), v(vXN+8+c), v(vXN+12+c)))
        a('ds_write_b64 %s, %s offset:%d' % (v(vUW), v(XP+2*c,2), c*US))
        if c == 0: a('v_max_u32_dpp %s, %s, %s %s bank_mask:0xf' % (v(key), v(key), v(key), kred[5]))
    a('s_lshl_b32 %s, %s, 2' % (s(sT0), s(sW)))
    a('s_add_u32 %s, %s, %d' % (s(sT0), s(sT0), AM))
    a('v_mov_b32 %s, %s' % (v(vT+9), s(sT0)))
    a('s_mov_b32 exec_lo, 0')
    a('s_mov_b32 exec_hi, 0x80000000')
    a('ds_write_b32 %s, %s' % (v(vT+9), v(key)))
    a('s_mov_b64 exec, -1')
    a('v_mov_b32 %s, %d' % (v(vT+9), AM))
    a('s_waitcnt lgkmcnt(0)')
    stamp(8)
    a('s_barrier')
    def read_idx():
        a('ds_read_b128 %s, %s' % (v(vT,4), v(vT+9)))
        a('ds_read_b128 %s, %s offset:16' % (v(vT+4,4), v(vT+9)))
        a('s_waitcnt lgkmcnt(0)')
        a('v_max3_u32 %s, %s, %s, %s' % (v(vT), v(vT), v(vT+1), v(vT+2)))
        a('v_max3_u32 %s, %s, %s, %s' % (v(vT+3), v(vT+3), v(vT+4), v(vT+5)))
        a('v_max3_u32 %s, %s, %s, %s' % (v(vT), v(vT), v(vT+6), v(vT+7)))
        a('v_max_u32 %s, %s, %s' % (v(vT), v(vT), v(vT+3)))
        a('v_readfirstlane_b32 %s, %s' % (s(sKEY), v(vT)))
        a('s_and_b32 %s, %s, 0xffff' % (s(sIDX), s(sKEY)))
        a('s_sub_u32 %s, 0xffff, %s' % (s(sIDX), s(sIDX)))
        a('s_and_b32 %s, %s, 2047' % (s(sIDX), s(sIDX)))
    a('s_cmp_ge_u32 %s, 4' % s(sW))
    a('s_cbranch_scc1 L_helper')

    ACC = vP; FR = vP + 16; NFR = 28
    a('s_setprio 1')
    a('s_cmp_eq_u32 %s, 0' % s(sH))
    a('s_cbranch_scc0 L_conv1')
    def conv(h):
        tl = tiles(h)
        ops = []
        for c0 in range(8):
            lst = [(i, c1, q - c1) for i, q in enumerate(tl) for c1 in range(q+1)]
            lst.sort(key=lambda x: (max(x[1], x[2]), x[1]))
            for i, c1, qp in lst: ops.append((i, ('A', c0, c1), ('B', c0, qp)))
        order = []; last = {}
        for n, (i, ak, bk) in enumerate(ops):
            for k in (ak, bk):
                if k not in last: order.append(k)
                last[k] = n
        first = {}
        for n, (i, ak, bk) in enumerate(ops):
            for k in (ak, bk): first.setdefault(k, n)
        free = list(range(NFR)); slot = {}; issued = []
        nxt = 0; started = set()
        MAXOUT = 14
        def n_instr(k): return 2 if k[0] == 'A' else 1
        done_upto = [0]
        def issue(k):
            sl = free.pop(0); slot[k] = sl; r = FR + 4*sl
            if k[0] == 'A':
                off = 256*(8*k[2] + k[1])
                a('ds_read_b64 %s, %s offset:%d' % (v(r,2), v(vCA), off + 32))
                a('ds_read_b64 %s, %s offset:%d' % (v(r+2,2), v(vCA), off))
                issued.extend([k, k])
            else:
                off = 2*(224 + 256*k[2] - 32*k[1])
                a('ds_read_b128 %s, %s offset:%d' % (v(r,4), v(vCB), off))
                issued.append(k)
        for n, (i, ak, bk) in enumerate(ops):
            budget = 99 if n == 0 else 2
            while nxt < len(order) and free and budget > 0:
                k = order[nxt]
                must = first[k] <= n
                if not must and (len(issued) + n_instr(k) - done_upto[0] > MAXOUT): break
                issue(k); nxt += 1; budget -= n_instr(k)
            while ak not in slot or bk not in slot:
                k = order[nxt]; issue(k); nxt += 1
            need = max(j for j, k in enumerate(issued) if k in (ak, bk)) + 1
            if need > done_upto[0]:
                cnt = len(issued) - need
                assert cnt <= 15
                a('s_waitcnt lgkmcnt(%d)' % cnt); done_upto[0] = need
            acc = ACC + 4*i
            cin = v(acc,4) if i in started else '0'
            started.add(i)
            a('v_mfma_f32_16x16x32_bf16 %s, %s, %s, %s' % (v(acc,4), v(FR+4*slot[ak],4), v(FR+4*slot[bk],4), cin))
            for k in (ak, bk):
                if last[k] == n: free.append(slot[k])
    conv(0)
    a('s_branch L_convdone')
    a('L_conv1:')
    conv(1)
    a('L_convdone:')
    a('s_nop 7')
    for i in range(4):
        a('ds_write_b128 %s, %s offset:%d' % (v(vY), v(ACC+4*i,4), i*YTS))
    a('s_waitcnt lgkmcnt(0)')
    stamp(9)
    a('s_barrier')
    a('s_cmp_lg_u32 %s, 0' % s(sW))
    a('s_cbranch_scc1 L_end')
    a('s_cmp_lg_u32 s2, 0')
    a('s_cbranch_scc1 L_noep')
    a('v_mov_b32 %s, 0' % v(vT+10))
    a('v_mov_b32 %s, %s' % (v(vT+11), s(sTAG)))
    a('s_mov_b64 exec, 1')
    a('global_store_dword %s, %s, %s sc1' % (v(vT+10), v(vT+11), s(sWS,2)))
    a('s_mov_b64 exec, -1')
    a('L_noep:')
    read_idx()
    a('s_lshr_b32 %s, %s, 8' % (s(sT0), s(sIDX)))
    a('s_lshr_b32 %s, %s, 9' % (s(sT1), s(sIDX)))
    a('s_xor_b32 %s, %s, %s' % (s(sT0), s(sT0), s(sT1)))
    a('s_xor_b32 %s, %s, %s' % (s(sT0), s(sT0), s(sH)))
    a('s_bitcmp1_b32 %s, 0' % s(sT0))
    a('s_cbranch_scc1 L_end')
    a('s_setprio 3')
    F = vP
    par = vT+12
    a('v_and_b32 %s, 1, %s' % (v(par), v(vL)))
    a('s_lshr_b32 %s, %s, 2' % (s(sT0), s(sCH0)))
    a('s_mul_i32 %s, %s, 6144' % (s(sT0), s(sT0)))
    a('s_add_u32 %s, %s, %d' % (s(sT0), s(sT0), W_FP + 3072))
    a('v_lshl_add_u32 %s, %s, 4, %s' % (v(vFPA), v(vL), s(sT0)))
    a('s_lshl_b32 %s, %s, 10' % (s(sT0), s(sIDX)))
    a('s_lshl_b32 %s, %s, 1' % (s(sT2), s(sCH0)))
    a('s_add_u32 %s, %s, %s' % (s(sT0), s(sT0), s(sT2)))
    xo, xv = vT+13, vXF+8
    a('v_lshl_add_u32 %s, %s, 2, %s' % (v(xo), v(par), s(sT0)))
    a('global_load_dword %s, %s, %s' % (v(xv), v(xo), s(sX,2)))
    a('s_mul_i32 %s, %s, %d' % (s(sT1), s(sT1), YTS))
    a('s_bfe_u32 %s, %s, 0x20002' % (s(sT0), s(sIDX)))
    a('s_mul_i32 %s, %s, %d' % (s(sT0), s(sT0), YGS))
    a('s_add_u32 %s, %s, %s' % (s(sT1), s(sT1), s(sT0)))
    a('s_bfe_u32 %s, %s, 0x40004' % (s(sT0), s(sIDX)))
    a('s_lshl_b32 %s, %s, 4' % (s(sT0), s(sT0)))
    a('s_add_u32 %s, %s, %s' % (s(sT1), s(sT1), s(sT0)))
    a('s_and_b32 %s, %s, 3' % (s(sT0), s(sIDX)))
    a('s_lshl_b32 %s, %s, 2' % (s(sT0), s(sT0)))
    a('s_add_u32 %s, %s, %s' % (s(sT1), s(sT1), s(sT0)))
    a('s_add_u32 %s, %s, %d' % (s(sT1), s(sT1), YX))
    a('v_mul_u32_u24 %s, %d, %s' % (v(vT), 2*YCS, v(par)))
    a('v_add_u32 %s, %s, %s' % (v(vT), s(sT1), v(vT)))
    y0, y1, n0, n1, d0, d1 = vXF, vXF+1, vXF+2, vXF+3, vXF+4, vXF+5
    a('ds_read_b32 %s, %s' % (v(y0), v(vT)))
    a('ds_read_b32 %s, %s offset:%d' % (v(y1), v(vT), YCS))
    a('s_lshl_b32 %s, %s, 1' % (s(sT0), s(sIDX)))
    a('s_add_u32 %s, %s, %d' % (s(sT0), s(sT0), U + 480))
    a('v_mul_u32_u24 %s, %d, %s' % (v(vT+1), 2*US, v(par)))
    a('v_add_u32 %s, %s, %s' % (v(vT+1), s(sT0), v(vT+1)))
    a('ds_read_u16 %s, %s' % (v(n0), v(vT+1)))
    a('ds_read_u16 %s, %s offset:%d' % (v(n1), v(vT+1), US))
    a('v_cmp_eq_u32 vcc, 0, %s' % v(par))
    a('v_mov_b32 %s, %s' % (v(d0), s(sDS)))
    a('v_mov_b32 %s, %s' % (v(d1), s(sDS+1)))
    a('v_cndmask_b32 %s, %s, %s, vcc' % (v(d0), v(d1), v(d0)))
    a('v_and_b32 %s, %s, %s' % (v(d1), s(sHI), v(d0)))
    a('v_lshlrev_b32 %s, 16, %s' % (v(d0), v(d0)))
    a('s_and_b32 %s, %s, %s' % (s(sT0), s(sKEY), s(sHI)))
    a('s_xor_b32 %s, %s, 0x80000000' % (s(sT1), s(sT0)))
    a('s_xor_b32 %s, %s, %s' % (s(sT2), s(sT0), s(sHI)))
    a('s_bitcmp1_b32 %s, 31' % s(sT0))
    a('s_cselect_b32 %s, %s, %s' % (s(sT0), s(sT1), s(sT2)))
    sg = vXF+6
    a('v_mov_b32 %s, 0xbfb8aa3b' % v(vT+2))
    a('v_mul_f32 %s, %s, %s' % (v(sg), s(sT0), v(vT+2)))
    a('v_exp_f32 %s, %s' % (v(sg), v(sg)))
    a('v_add_f32 %s, 1.0, %s' % (v(sg), v(sg)))
    a('v_rcp_f32 %s, %s' % (v(sg), v(sg)))
    a('v_cvt_pk_bf16_f32 %s, %s, %s' % (v(sg), v(sg), v(sg)))
    a('v_and_b32 %s, %s, %s' % (v(sg), s(sHI), v(sg)))
    a('v_mov_b32 %s, 0' % v(F+20))
    a('v_mov_b32 %s, 0' % v(F+21))
    a('v_mov_b32 %s, %s' % (v(F+22), s(sTAG)))
    a('s_waitcnt lgkmcnt(0)')
    a('v_lshlrev_b32 %s, 16, %s' % (v(n0), v(n0)))
    a('v_lshlrev_b32 %s, 16, %s' % (v(n1), v(n1)))
    a('v_fma_f32 %s, %s, %s, %s' % (v(y0), v(n0), v(d0), v(y0)))
    a('v_fma_f32 %s, %s, %s, %s' % (v(y1), v(n1), v(d1), v(y1)))
    a('s_mov_b32 %s, %d' % (s(sCNT), o['spinmax']))
    a('L_ffnspin:')
    for i in range(5):
        a('global_load_dwordx4 %s, %s, %s offset:%d sc1' % (v(F+4*i,4), v(vFPA), s(sWS,2), i*1024 - 3072))
    a('s_mov_b64 exec, 0xffffff')
    a('global_load_dwordx4 %s, %s, %s offset:2048 sc1' % (v(F+20,4), v(vFPA), s(sWS,2)))
    a('s_mov_b64 exec, -1')
    a('s_waitcnt vmcnt(0)')
    for i in range(6): a('v_xor_b32 %s, %s, %s' % (v(vT+i), s(sTAG), v(F+4*i+2)))
    a('v_or3_b32 %s, %s, %s, %s' % (v(vT), v(vT), v(vT+1), v(vT+2)))
    a('v_or3_b32 %s, %s, %s, %s' % (v(vT+3), v(vT+3), v(vT+4), v(vT+5)))
    a('v_or_b32 %s, %s, %s' % (v(vT), v(vT), v(vT+3)))
    a('v_cmp_ne_u32 vcc, 0, %s' % v(vT))
    a('s_cbranch_vccz L_ffnok')
    a('s_sub_u32 %s, %s, 1' % (s(sCNT), s(sCNT)))
    a('s_cmp_lg_u32 %s, 0' % s(sCNT))
    a('s_cbranch_scc1 L_ffnspin')
    a('L_ffnok:')
    stamp(11)
    p0, p1 = F, F+1
    for e in range(2):
        a('v_add_f32 %s, %s, %s' % (v(F+e), v(F+e), v(F+4+e)))
        a('v_add_f32 %s, %s, %s' % (v(F+8+e), v(F+8+e), v(F+12+e)))
        a('v_add_f32 %s, %s, %s' % (v(F+16+e), v(F+16+e), v(F+20+e)))
    for e in range(2): a('v_add_f32 %s, %s, %s' % (v(F+e), v(F+e), v(F+8+e)))
    for e in range(2): a('v_add_f32 %s, %s, %s' % (v(F+e), v(F+e), v(F+16+e)))
    for m in (2,4,8):
        for e in range(2): a('v_add_f32_dpp %s, %s, %s row_ror:%d row_mask:0xf bank_mask:0xf' % (v(F+e), v(F+e), v(F+e), m))
    for pl in ('v_permlane16_swap_b32','v_permlane32_swap_b32'):
        for e in range(2): a('v_mov_b32 %s, %s' % (v(F+4+e), v(F+e)))
        for e in range(2): a('%s %s, %s' % (pl, v(F+e), v(F+4+e)))
        for e in range(2): a('v_add_f32 %s, %s, %s' % (v(F+e), v(F+e), v(F+4+e)))
    def rnd2(r0, r1, t):
        a('v_cvt_pk_bf16_f32 %s, %s, %s' % (v(t), v(r0), v(r1)))
        a('v_lshlrev_b32 %s, 16, %s' % (v(r0), v(t)))
        a('v_and_b32 %s, %s, %s' % (v(r1), s(sHI), v(t)))
    rnd2(p0, p1, vT)
    for e in range(2): a('v_mul_f32 %s, %s, %s' % (v(F+e), v(F+e), v(sg)))
    rnd2(p0, p1, vT)
    a('v_add_f32 %s, %s, %s' % (v(p0), v(p0), v(n0)))
    a('v_add_f32 %s, %s, %s' % (v(p1), v(p1), v(n1)))
    rnd2(p0, p1, vT)
    for e in range(2): a('v_mul_f32 %s, 0xbfb8aa3b, %s' % (v(F+4+e), v(F+e)))
    for e in range(2): a('v_exp_f32 %s, %s' % (v(F+4+e), v(F+4+e)))
    for e in range(2): a('v_add_f32 %s, 1.0, %s' % (v(F+4+e), v(F+4+e)))
    for e in range(2): a('v_rcp_f32 %s, %s' % (v(F+4+e), v(F+4+e)))
    a('v_lshlrev_b32 %s, 16, %s' % (v(vT+1), v(xv)))
    a('v_and_b32 %s, %s, %s' % (v(vT+2), s(sHI), v(xv)))
    for e in range(2): a('v_mul_f32 %s, %s, %s' % (v(F+e), v(F+e), v(F+4+e)))
    a('v_fma_f32 %s, %s, %s, %s' % (v(vT+1), v(y0), v(p0), v(vT+1)))
    a('v_fma_f32 %s, %s, %s, %s' % (v(vT+2), v(y1), v(p1), v(vT+2)))
    a('v_cvt_pk_bf16_f32 %s, %s, %s' % (v(vT), v(vT+1), v(vT+2)))
    a('s_mov_b64 exec, 3')
    a('global_store_dword %s, %s, %s' % (v(xo), v(vT), s(sOUT,2)))
    a('s_mov_b64 exec, -1')
    stamp(12)
    a('s_endpgm')

    a('L_helper:')
    read_idx()
    XS = vP
    a('s_cmp_eq_u32 %s, 0' % s(sPROD))
    a('s_cbranch_scc1 L_h_pre')
    a('s_lshl_b32 %s, %s, 10' % (s(sT0), s(sIDX)))
    a('v_add_u32 %s, %s, %s' % (v(vT), s(sT0), v(vCA)))
    a('s_lshr_b32 %s, %s, 2' % (s(sT0), s(sIDX)))
    a('s_lshl_b32 %s, %s, 4' % (s(sT0), s(sT0)))
    a('s_bfe_u32 %s, %s, 0x10001' % (s(sT1), s(sIDX)))
    a('s_lshl_b32 %s, %s, 13' % (s(sT1), s(sT1)))
    a('s_add_u32 %s, %s, %s' % (s(sT0), s(sT0), s(sT1)))
    a('s_and_b32 %s, %s, 1' % (s(sT1), s(sIDX)))
    a('s_lshl_b32 %s, %s, 2' % (s(sT1), s(sT1)))
    a('s_add_u32 %s, %s, %s' % (s(sT0), s(sT0), s(sT1)))
    a('s_add_u32 %s, %s, %d' % (s(sT0), s(sT0), W_ST))
    a('v_mov_b32 %s, %s' % (v(vT+1), s(sT0)))
    a('global_load_dwordx2 %s, %s, %s' % (v(XS,2), v(vT), s(sX,2)))
    a('global_load_dwordx2 %s, %s, %s offset:32' % (v(XS+2,2), v(vT), s(sX,2)))
    a('global_load_dword %s, %s, %s sc1' % (v(XS+4), v(vT+1), s(sWS,2)))
    if o['wlate']: wloads()
    a('L_h_pre:')
    Dv = [vT+10+c for c in range(4)]
    a('s_lshl_b32 %s, %s, 16' % (s(sT0), s(sDS)))
    a('v_mov_b32 %s, %s' % (v(Dv[0]), s(sT0)))
    a('s_and_b32 %s, %s, %s' % (s(sT0), s(sDS), s(sHI)))
    a('v_mov_b32 %s, %s' % (v(Dv[1]), s(sT0)))
    a('s_lshl_b32 %s, %s, 16' % (s(sT0), s(sDS+1)))
    a('v_mov_b32 %s, %s' % (v(Dv[2]), s(sT0)))
    a('s_and_b32 %s, %s, %s' % (s(sT0), s(sDS+1), s(sHI)))
    a('v_mov_b32 %s, %s' % (v(Dv[3]), s(sT0)))
    for c in range(4):
        for r in range(4):
            src = XP + 2*c + (r >> 1)
            if r & 1: a('v_and_b32 %s, %s, %s' % (v(vXN+4*r+c), s(sHI), v(src)))
            else:     a('v_lshlrev_b32 %s, 16, %s' % (v(vXN+4*r+c), v(src)))
        for r in range(4): a('v_mul_f32 %s, 0xbfb8aa3b, %s' % (v(vT+r), v(vXN+4*r+c)))
        for r in range(4): a('v_exp_f32 %s, %s' % (v(vT+r), v(vT+r)))
        for r in range(4):
            a('v_mul_f32 %s, %s, %s' % (v(vE+4*r+c), v(vXN+4*r+c), v(Dv[c])))
            a('v_add_f32 %s, 1.0, %s' % (v(vT+r), v(vT+r)))
        for r in range(4): a('v_rcp_f32 %s, %s' % (v(vT+r), v(vT+r)))
        for r in range(4): a('v_mul_f32 %s, %s, %s' % (v(vXN+4*r+c), v(vXN+4*r+c), v(vT+r)))
        for r in range(4): a('v_fma_f32 %s, %s, %s, %s' % (v(vE+4*r+c), v(vE+4*r+c), v(vXN+4*r+c), v(vXF+4*r+c)))
    for r in range(4):
        a('v_add_u32 %s, %d, %s' % (v(vT), r, v(vROW)))
        a('v_cmp_ne_u32 %s, %s, %s' % (s(sM+2*r,2), s(sIDX), v(vT)))
    stamp(9)
    a('s_cmp_eq_u32 %s, 0' % s(sPROD))
    a('s_cbranch_scc1 L_h_b5')
    WF = vP + 8; DD = vP + 24; XA = vP + 40; WDF = vP + 48
    a('s_waitcnt vmcnt(0)')
    for sp in range(4):
        a('ds_read_b64_tr_b16 %s, %s offset:%d' % (v(WF+4*sp,2), v(vWT), 512*sp))
        a('ds_read_b64_tr_b16 %s, %s offset:%d' % (v(WF+4*sp+2,2), v(vWT), 512*sp + 256))
    a('v_and_b32 %s, %s, %s' % (v(vT), s(sHI), v(XS+4)))
    a('v_lshlrev_b32 %s, 16, %s' % (v(vT+1), v(XS+4)))
    a('v_rcp_f32 %s, %s' % (v(vT), v(vT)))
    for i in range(4):
        a('v_lshlrev_b32 %s, 16, %s' % (v(vT+2+2*i), v(XS+i)))
        a('v_and_b32 %s, %s, %s' % (v(vT+3+2*i), s(sHI), v(XS+i)))
    a('v_mul_f32_e64 %s, -%s, %s' % (v(vT+1), v(vT+1), v(vT)))
    for i in range(8): a('v_fma_f32 %s, %s, %s, %s' % (v(vT+2+i), v(vT+2+i), v(vT), v(vT+1)))
    for i in range(4): a('v_cvt_pk_bf16_f32 %s, %s, %s' % (v(XA+i), v(vT+2+2*i), v(vT+3+2*i)))
    a('s_waitcnt lgkmcnt(0)')
    for sp in range(4):
        a('v_mfma_f32_16x16x32_bf16 %s, %s, %s, 0' % (v(DD+4*sp,4), v(XA,4), v(WF+4*sp,4)))
    for i in range(8):
        a('v_lshlrev_b32 %s, 16, %s' % (v(WDF+2*i), v(vWD+i)))
        a('v_and_b32 %s, %s, %s' % (v(WDF+2*i+1), s(sHI), v(vWD+i)))
    a('v_add_f32 %s, %s, %s' % (v(vT), v(DD), v(DD+5)))
    a('v_add_f32 %s, %s, %s' % (v(vT+1), v(DD+10), v(DD+15)))
    a('v_mov_b32 %s, 1' % v(vT+2))
    a('v_add_f32 %s, %s, %s' % (v(vT), v(vT), v(vT+1)))
    a('ds_write_b32 %s, %s' % (v(vCB), v(vT)))
    a('s_mov_b64 exec, 1')
    a('ds_write_b32 %s, %s' % (v(vTW2), v(vT+2)))
    a('s_mov_b64 exec, -1')
    a('s_mov_b32 %s, %d' % (s(sCNT), o['spinmax']))
    a('L_hspin:')
    a('ds_read_b128 %s, %s' % (v(vT+4,4), v(vTW3)))
    for i in range(4): a('ds_read_b32 %s, %s offset:%d' % (v(vT+i), v(vTW1), i*320))
    a('s_waitcnt lgkmcnt(0)')
    a('v_and_b32 %s, %s, %s' % (v(vT+4), v(vT+4), v(vT+5)))
    a('v_and_b32 %s, %s, %s' % (v(vT+6), v(vT+6), v(vT+7)))
    a('v_and_b32 %s, %s, %s' % (v(vT+4), v(vT+4), v(vT+6)))
    a('v_cmp_eq_u32 vcc, 0, %s' % v(vT+4))
    a('s_cbranch_vccz L_hok')
    a('s_sub_u32 %s, %s, 1' % (s(sCNT), s(sCNT)))
    a('s_cmp_lg_u32 %s, 0' % s(sCNT))
    a('s_cbranch_scc1 L_hspin')
    a('L_hok:')
    a('v_add_f32 %s, %s, %s' % (v(vT), v(vT), v(vT+1)))
    a('v_add_f32 %s, %s, %s' % (v(vT+2), v(vT+2), v(vT+3)))
    a('v_add_f32 %s, %s, %s' % (v(vT), v(vT), v(vT+2)))
    a('v_cvt_pk_bf16_f32 %s, %s, %s' % (v(vT), v(vT), v(vT)))
    a('v_and_b32 %s, %s, %s' % (v(vT), s(sHI), v(vT)))
    a('v_mul_f32 %s, 0xbfb8aa3b, %s' % (v(vT+1), v(vT)))
    a('v_exp_f32 %s, %s' % (v(vT+1), v(vT+1)))
    a('v_mov_b32_dpp %s, %s row_ror:8 row_mask:0xf bank_mask:0xf' % (v(vT+2), v(vT)))
    a('v_add_f32 %s, 1.0, %s' % (v(vT+1), v(vT+1)))
    a('v_rcp_f32 %s, %s' % (v(vT+1), v(vT+1)))
    a('v_mul_f32 %s, %s, %s' % (v(vT+1), v(vT), v(vT+1)))
    a('v_cvt_pk_bf16_f32 %s, %s, %s' % (v(vT+1), v(vT+1), v(vT+1)))
    a('v_and_b32 %s, %s, %s' % (v(vT+1), s(sHI), v(vT+1)))
    a('v_mul_f32 %s, %s, %s' % (v(vT+1), v(vT+1), v(vT+2)))
    a('v_cvt_pk_bf16_f32 %s, %s, %s' % (v(vT+1), v(vT+1), v(vT+1)))
    a('v_and_b32 %s, %s, %s' % (v(vT+1), s(sHI), v(vT+1)))
    for i in range(8): a('v_readlane_b32 %s, %s, %d' % (s(sH8+i), v(vT+1), i))
    gq = vT+4
    a('v_mov_b32 %s, %s' % (v(gq+2), s(sTAG)))
    a('v_mov_b32 %s, 0' % v(gq+3))
    for i in range(8):
        for e in range(2):
            if i == 0: a('v_mul_f32 %s, %s, %s' % (v(gq+e), s(sH8), v(WDF+e)))
            else: a('v_fmac_f32 %s, %s, %s' % (v(gq+e), s(sH8+i), v(WDF+2*i+e)))
    a('global_store_dwordx4 %s, %s, %s sc1' % (v(vFPA), v(gq,4), s(sWS,2)))
    stamp(10)
    a('L_h_b5:')
    a('s_barrier')
    YR = vP
    for c in range(4): a('ds_read_b128 %s, %s offset:%d' % (v(YR+4*c,4), v(vY), c*YCS))
    a('s_waitcnt lgkmcnt(0)')
    for r in range(4):
        for c in range(4):
            a('v_fma_f32 %s, %s, %s, %s' % (v(vE+4*r+c), v(YR+4*c+r), v(vXN+4*r+c), v(vE+4*r+c)))
        a('v_cvt_pk_bf16_f32 %s, %s, %s' % (v(vD+2*r), v(vE+4*r), v(vE+4*r+1)))
        a('v_cvt_pk_bf16_f32 %s, %s, %s' % (v(vD+2*r+1), v(vE+4*r+2), v(vE+4*r+3)))
        a('s_mov_b64 exec, %s' % s(sM+2*r,2))
        a('global_store_dwordx2 %s, %s, %s offset:%d' % (v(vXG), v(vD+2*r,2), s(sOUT,2), r*1024))
        a('s_mov_b64 exec, -1')
    if o['stamp']:
        stamp(11)
        a('s_waitcnt vmcnt(0)')
        stamp(12)
    a('L_end:')
    a('s_endpgm')
    a.raw('''.section .rodata,"a"
.p2align 6
.amdhsa_kernel %s_kernel
  .amdhsa_next_free_vgpr 256
  .amdhsa_next_free_sgpr 96
  .amdhsa_accum_offset 256
  .amdhsa_group_segment_fixed_size 0
  .amdhsa_kernarg_size 136
  .amdhsa_user_sgpr_count 2
  .amdhsa_user_sgpr_kernarg_segment_ptr 1
  .amdhsa_system_sgpr_workgroup_id_x 1
.end_amdhsa_kernel''' % KN)
    return a.text()

if __name__ == '__main__':
    out = sys.argv[1]
    opt = {}
    for kv in sys.argv[2:]:
        k, val = kv.split('='); opt[k] = int(val, 0)
    open(out, 'w').write(generate(**opt))
```

```python
import sys
from asmlib import *

KN = 'recurrent_scan__ssm_conv_s4__moe_arch_mod__prompt'

DEFAULTS = dict(stamp=0, wlate=1, force_slow=0, prefetch=1, spinmax=1<<16, dump=0, diag=-1, diagclk=0)

RS    = 2064
STAGE = 0
R4    = 0;      R4S = 16480
YX    = 66048;  YCS = 5120; YTS = 1280; YGS = 320
U     = 109440; US = 4576
TAB   = 127744; TS = 1552
WL    = 133952; WL1 = 8320
SL    = 150528
AM    = 158720
FF    = 158752
FP    = 158784
LDS_BYTES = 159808
W_EP = 0; W_ST = 0x1000; W_FL = 0x6000; W_FP = 0x10000; W_IN = 0x100000; W_STAMP = 0x800000; W_DUMP = 0x1000000

sX, sARE, sAIM, sBRE, sBIM, sCRE, sCIM, sLDT = 4, 6, 8, 10, 12, 14, 16, 18
sDSK, sWR, sWG, sWU, sWD, sOUT, sDBG, sWS = 20, 24, 26, 28, 30, 32, 34, 36
sW, sK, sJ, sCGL, sH, sCH0, sT, sXCC, sTAG, sTAGX = 38, 39, 40, 41, 42, 43, 44, 45, 46, 47
sLD, sDS = 48, 50
sONES, sF8, sPROD, sIDX, sKEY, sCNT = 52, 53, 54, 55, 56, 57
sT0, sT1, sT2, sT3 = 58, 59, 60, 61
sM = 64
sH8 = 72
sHI = 80
sSTP = 82
sWI = 84

vTID, vL = 0, 1
vGA = 2
vSEL = 10
vR4W, vUW, vST0, vST1, vFL, vIN, vXG, vXC = 16, 17, 18, 19, 20, 21, 22, 23
vKA, vKB, vTW1, vTW2, vTW3, vTW4 = 24, 25, 26, 27, 28, 29
vCA, vCB, vY = 30, 31, 32
vWT, vWDA, vFPA, vEP, vPF, vROW, vSTA = 33, 34, 35, 36, 37, 38, 39
vD = 40
vG = 48
vXF = 56
vXN = 72
vE = 88
vP = 104
vWD = 232
vT = 240

def cmul(a, d, x, y):
    a('v_pk_mul_f32 %s, %s, %s op_sel:[1,1] op_sel_hi:[1,0]' % (v(d,2), v(x,2), v(y,2)))
    a('v_pk_fma_f32 %s, %s, %s, %s op_sel:[0,0,0] op_sel_hi:[0,1,1] neg_lo:[0,0,1]' % (v(d,2), v(x,2), v(y,2), v(d,2)))

def tiles(h): return [2*i + ((i ^ h) & 1) for i in range(4)]

def generate(**opt):
    o = dict(DEFAULTS); o.update(opt)
    a = Asm()
    nstamp = [0]
    def stamp(i):
        if o['diag'] == i:
            a('s_memrealtime s[88:89]')
            a('s_waitcnt lgkmcnt(0)')
        if not o['stamp']: return
        a('s_memrealtime %s' % s(sSTP,2))
        a('s_waitcnt lgkmcnt(0)')
        a('v_mov_b32 v254, %s' % s(sSTP))
        a('v_mov_b32 v255, %s' % s(sSTP+1))
        a('s_mov_b64 exec, 1')
        a('global_store_dwordx2 %s, v[254:255], %s offset:%d' % (v(vSTA), s(sWS,2), i*8))
        a('s_mov_b64 exec, -1')
    SV = 1 if o['stamp'] else 0
    def vm(n):
        a('s_waitcnt vmcnt(%d)' % (0 if SV else n))

    a.raw('; @launch grid=(256,1,1) block=(512,1,1) lds=%d' % LDS_BYTES)
    a.raw('.amdgcn_target "amdgcn-amd-amdhsa--gfx950"\n.text\n.globl %s_kernel\n.p2align 8\n.type %s_kernel,@function\n%s_kernel:' % (KN,KN,KN))
    a('''
    s_cmp_ge_u32 s2, 256
    s_cbranch_scc1 L_end
    s_load_dwordx16 s[4:19], s[0:1], 0
    s_load_dwordx16 s[20:35], s[0:1], 64
    s_load_dwordx2 s[36:37], s[0:1], 128
    ''')
    if o['diag'] >= 0: a('s_memrealtime s[86:87]')
    a('v_lshrrev_b32 %s, 6, v0' % v(vT))
    a('v_and_b32 %s, 63, v0' % v(vL))
    a('v_readfirstlane_b32 %s, %s' % (s(sW), v(vT)))
    a('s_and_b32 %s, s2, 7' % s(sK))
    a('s_lshr_b32 %s, s2, 3' % s(sJ))
    a('s_and_b32 %s, %s, 15' % (s(sCGL), s(sJ)))
    a('s_lshr_b32 %s, %s, 4' % (s(sH), s(sJ)))
    a('s_lshl_b32 %s, %s, 6' % (s(sCH0), s(sK)))
    a('s_lshl_b32 %s, %s, 2' % (s(sT0), s(sCGL)))
    a('s_add_u32 %s, %s, %s' % (s(sCH0), s(sCH0), s(sT0)))
    a('s_and_b32 %s, %s, 3' % (s(sWI), s(sW)))
    for i in range(6): a('v_mov_b32 %s, 0' % v(vP+i))
    a('s_lshl_b32 %s, %s, 8' % (s(sT0), s(sCH0)))
    a('v_lshl_add_u32 %s, v0, 1, %s' % (v(vT+1), s(sT0)))
    a('v_mov_b32 %s, 0' % v(vT+2))
    if o['stamp']:
        a('s_lshl_b32 %s, s2, 3' % s(sT1))
        a('s_add_u32 %s, %s, %s' % (s(sT1), s(sT1), s(sW)))
        a('s_lshl_b32 %s, %s, 8' % (s(sT1), s(sT1)))
        a('s_add_u32 %s, %s, %d' % (s(sT1), s(sT1), W_STAMP))
        a('v_mov_b32 %s, %s' % (v(vSTA), s(sT1)))
    a('s_cmp_ge_u32 %s, 4' % s(sW))
    a('s_cbranch_scc1 L_h_load')
    a('s_lshl_b32 %s, %s, 16' % (s(sT0), s(sJ)))
    a('s_lshl_b32 %s, %s, 14' % (s(sT1), s(sW)))
    a('s_add_u32 %s, %s, %s' % (s(sT0), s(sT0), s(sT1)))
    a('s_lshl_b32 %s, %s, 7' % (s(sT1), s(sK)))
    a('s_add_u32 %s, %s, %s' % (s(sT0), s(sT0), s(sT1)))
    a('v_lshrrev_b32 %s, 3, %s' % (v(vT+3), v(vL)))
    a('v_and_b32 %s, 7, %s' % (v(vT+4), v(vL)))
    a('v_lshlrev_b32 %s, 10, %s' % (v(vT+3), v(vT+3)))
    a('v_lshl_add_u32 %s, %s, 4, %s' % (v(vT+3), v(vT+4), v(vT+3)))
    a('v_add_u32 %s, %s, %s' % (v(vT+3), s(sT0), v(vT+3)))
    a('v_add_u32 %s, 8192, %s' % (v(vT+4), v(vT+3)))
    a('s_waitcnt lgkmcnt(0)')
    stamp(0)
    a('global_load_dwordx4 %s, %s, %s' % (v(vD,4), v(vT+3), s(sX,2)))
    a('global_load_dwordx4 %s, %s, %s' % (v(vD+4,4), v(vT+4), s(sX,2)))
    a('s_branch L_param_load')
    a('L_h_load:')
    a('s_lshl_b32 %s, s2, 13' % s(sT0))
    a('s_lshl_b32 %s, %s, 11' % (s(sT1), s(sWI)))
    a('s_add_u32 %s, %s, %s' % (s(sT0), s(sT0), s(sT1)))
    a('v_and_b32 %s, 31, %s' % (v(vT+3), v(vL)))
    a('v_lshlrev_b32 %s, 4, %s' % (v(vT+3), v(vT+3)))
    a('v_lshrrev_b32 %s, 5, %s' % (v(vT+4), v(vL)))
    a('v_lshl_add_u32 %s, %s, 10, %s' % (v(vT+4), v(vT+4), v(vT+3)))
    a('v_add_u32 %s, %s, %s' % (v(vT+4), s(sT0), v(vT+4)))
    a('s_setprio 2')
    a('s_waitcnt lgkmcnt(0)')
    stamp(0)
    a('global_load_dwordx4 %s, %s, %s' % (v(vG,4), v(vT+3), s(sWR,2)))
    a('global_load_dwordx4 %s, %s, %s offset:512' % (v(vG+4,4), v(vT+3), s(sWR,2)))
    a('global_load_dwordx4 %s, %s, %s' % (v(vD,4), v(vT+4), s(sX,2)))
    a('global_load_dwordx4 %s, %s, %s offset:512' % (v(vD+4,4), v(vT+4), s(sX,2)))
    a('L_param_load:')
    for i, p in enumerate((sARE, sAIM, sBRE, sBIM, sCRE, sCIM)):
        a('global_load_short_d16_hi %s, %s, %s' % (v(vP+i), v(vT+1), s(p,2)))
    a('global_load_dword %s, %s, %s sc1' % (v(vEP), v(vT+2), s(sWS,2)))
    a('s_lshl_b32 %s, %s, 1' % (s(sT0), s(sCH0)))
    a('s_load_dwordx2 %s, %s, %s' % (s(sLD,2), s(sLDT,2), s(sT0)))
    a('s_load_dwordx2 %s, %s, %s' % (s(sDS,2), s(sDSK,2), s(sT0)))
    a('s_getreg_b32 %s, hwreg(HW_REG_XCC_ID, 0, 4)' % s(sXCC))
    a('s_mov_b32 %s, 0x3f803f80' % s(sONES))
    a('s_mov_b32 %s, 0xffff0000' % s(sHI))
    a('s_lshr_b32 %s, %s, 2' % (s(sT0), s(sW)))
    a('s_xor_b32 %s, %s, %s' % (s(sT0), s(sT0), s(sWI)))
    a('s_xor_b32 %s, %s, %s' % (s(sT0), s(sT0), s(sH)))
    a('s_xor_b32 %s, %s, 1' % (s(sT0), s(sT0)))
    a('s_and_b32 %s, %s, 1' % (s(sT0), s(sT0)))
    a('s_lshl_b32 %s, %s, 1' % (s(sT), s(sWI)))
    a('s_add_u32 %s, %s, %s' % (s(sT), s(sT), s(sT0)))
    a('s_lshr_b32 %s, %s, 3' % (s(sT0), s(sJ)))
    a('s_lshl_b32 %s, %s, 3' % (s(sT0), s(sT0)))
    a('s_add_u32 %s, %s, %s' % (s(sT0), s(sT0), s(sK)))
    a('s_lshl_b32 %s, %s, 3' % (s(sT0), s(sT0)))
    a('s_and_b32 %s, %s, 7' % (s(sT1), s(sJ)))
    a('s_add_u32 %s, %s, %s' % (s(sF8), s(sT0), s(sT1)))
    a('s_cmp_lt_u32 %s, 172' % s(sF8))
    a('s_cselect_b32 %s, 1, 0' % s(sPROD))

    a('v_mov_b32 %s, 0' % v(vT))
    a('v_mov_b32 %s, 0x3f80' % v(vT+1))
    a('s_lshl_b32 %s, %s, 8' % (s(sT0), s(sW)))
    a('s_mov_b32 m0, %s' % s(sT0))
    a('ds_write_addtid_b32 %s offset:%d' % (v(vT+1), STAGE))
    a('v_and_b32 %s, 127, v0' % v(vT+2))
    a('v_min_u32 %s, 119, %s' % (v(vT+2), v(vT+2)))
    a('v_lshrrev_b32 %s, 7, v0' % v(vT+3))
    a('v_mul_u32_u24 %s, %d, %s' % (v(vT+4), US, v(vT+3)))
    a('v_lshl_add_u32 %s, %s, 2, %s' % (v(vT+4), v(vT+2), v(vT+4)))
    a('v_add_u32 %s, %d, %s' % (v(vT+4), U, v(vT+4)))
    a('ds_write_b32 %s, %s' % (v(vT+4), v(vT)))
    a('v_mul_u32_u24 %s, %d, %s' % (v(vT+4), TS, v(vT+3)))
    a('v_and_b32 %s, 1, v0' % v(vT+2))
    a('v_lshl_add_u32 %s, %s, 2, %s' % (v(vT+4), v(vT+2), v(vT+4)))
    a('v_add_u32 %s, %d, %s' % (v(vT+4), TAB, v(vT+4)))
    a('ds_write_b32 %s, %s' % (v(vT+4), v(vT)))
    a('v_and_b32 %s, 3, v0' % v(vT+2))
    a('v_lshlrev_b32 %s, 2, %s' % (v(vT+2), v(vT+2)))
    a('v_add_u32 %s, %d, %s' % (v(vT+2), FF, v(vT+2)))
    a('ds_write_b32 %s, %s' % (v(vT+2), v(vT)))

    pos = [vXF+i for i in range(7)]
    a('v_lshlrev_b32 %s, 2, v0' % v(vT))
    for i in range(7):
        a('v_add_u32 %s, %d, %s' % (v(pos[i]), i+1, v(vT)))
    a('s_cmp_eq_u32 %s, 0' % s(sW))
    a('s_cbranch_scc1 L_pos_done')
    for i in range(7):
        a('v_add_u32 %s, -4, %s' % (v(pos[i]), v(pos[i])))
        a('v_cvt_f32_u32 %s, %s' % (v(pos[i]), v(pos[i])))
    for i in range(7):
        a('v_cvt_pk_bf16_f32 %s, %s, %s' % (v(pos[i]), v(pos[i]), v(pos[i])))
    for i in range(7):
        a('v_lshrrev_b32 %s, 16, %s' % (v(pos[i]), v(pos[i])))
        a('v_add_u32 %s, %d, %s' % (v(pos[i]), 4 - 0x4280, v(pos[i])))
    a('L_pos_done:')
    b1, b2 = vT+1, vT+2
    a('v_and_b32 %s, -2, %s' % (v(b1), v(pos[2])))
    a('v_add_u32 %s, -2, %s' % (v(b1), v(b1)))
    a('v_and_b32 %s, -2, %s' % (v(b2), v(pos[3])))
    for c in range(4):
        a('v_lshlrev_b32 %s, 1, %s' % (v(vGA+2*c), v(b1)))
        a('v_lshlrev_b32 %s, 1, %s' % (v(vGA+2*c+1), v(b2)))
        a('v_add_u32 %s, %d, %s' % (v(vGA+2*c), TAB + c*TS, v(vGA+2*c)))
        a('v_add_u32 %s, %d, %s' % (v(vGA+2*c+1), TAB + c*TS, v(vGA+2*c+1)))
    for i in range(3): a('v_sub_u32 %s, %s, %s' % (v(pos[i]), v(pos[i]), v(b1)))
    for i in range(3,7): a('v_sub_u32 %s, %s, %s' % (v(pos[i]), v(pos[i]), v(b2)))
    a('s_mov_b32 %s, 0x0202' % s(sT0))
    a('s_mov_b32 %s, 0x02020000' % s(sT1))
    a('v_mov_b32 %s, 0x01000100' % v(vT+3))
    def sel(dst, lo, hi, lo_add=0, hi_add=0):
        a('v_mad_u32_u24 %s, %s, %s, %s' % (v(dst), v(lo), s(sT0), v(vT+3)))
        a('v_mul_lo_u32 %s, %s, %s' % (v(vT+4), v(hi), s(sT1)))
        a('v_add_u32 %s, %s, %s' % (v(dst), v(dst), v(vT+4)))
        k = (lo_add*0x0202 + hi_add*0x02020000) & 0xffffffff
        if k: a('v_add_u32 %s, 0x%x, %s' % (v(dst), k, v(dst)))
    sel(vSEL+0, pos[1], pos[0])
    sel(vSEL+1, pos[2], pos[1])
    sel(vSEL+2, pos[3], pos[2], 2, -2)
    sel(vSEL+3, pos[4], pos[3])
    sel(vSEL+4, pos[5], pos[4])
    sel(vSEL+5, pos[6], pos[5])
    a('v_lshlrev_b32 %s, 5, v0' % v(vR4W))
    a('v_add_u32 %s, %d, %s' % (v(vR4W), R4 + 96, v(vR4W)))
    a('s_lshl_b32 %s, %s, 6' % (s(sT0), s(sT)))
    a('v_add_u32 %s, %s, %s' % (v(vT), s(sT0), v(vL)))
    a('v_lshlrev_b32 %s, 2, %s' % (v(vROW), v(vT)))
    a('v_lshlrev_b32 %s, 3, %s' % (v(vUW), v(vT)))
    a('v_add_u32 %s, %d, %s' % (v(vUW), U + 480, v(vUW)))
    a('v_lshlrev_b32 %s, 4, %s' % (v(vST0), v(vT)))
    a('v_add_u32 %s, %d, %s' % (v(vST1), W_ST + 8192, v(vST0)))
    a('v_add_u32 %s, %d, %s' % (v(vST0), W_ST, v(vST0)))
    a('s_lshl_b32 %s, %s, 1' % (s(sT0), s(sCH0)))
    a('v_lshlrev_b32 %s, 12, %s' % (v(vXG), v(vT)))
    a('v_add_u32 %s, %s, %s' % (v(vXG), s(sT0), v(vXG)))
    a('v_lshrrev_b32 %s, 2, %s' % (v(vT+1), v(vT)))
    a('s_lshl_b32 %s, %s, 9' % (s(sT0), s(sK)))
    a('s_add_u32 %s, %s, %d' % (s(sT0), s(sT0), W_FL))
    a('v_lshl_add_u32 %s, %s, 2, %s' % (v(vFL), v(vT+1), s(sT0)))
    a('s_lshl_b32 %s, %s, 18' % (s(sT0), s(sK)))
    a('s_lshl_b32 %s, %s, 14' % (s(sT1), s(sCGL)))
    a('s_add_u32 %s, %s, %s' % (s(sT0), s(sT0), s(sT1)))
    a('s_add_u32 %s, %s, %d' % (s(sT2), s(sT0), W_IN))
    a('v_and_b32 %s, 3, %s' % (v(vT+2), v(vL)))
    a('v_lshlrev_b32 %s, 4, %s' % (v(vT+2), v(vT+2)))
    a('v_lshl_add_u32 %s, %s, 7, %s' % (v(vIN), v(vT+1), v(vT+2)))
    a('v_add_u32 %s, %s, %s' % (v(vIN), s(sT2), v(vIN)))
    a('v_lshrrev_b32 %s, 4, %s' % (v(vT+1), v(vT)))
    a('s_lshl_b32 %s, %s, 5' % (s(sT0), s(sK)))
    a('s_add_u32 %s, %s, %d' % (s(sT0), s(sT0), W_ST + 12))
    a('v_lshl_add_u32 %s, %s, 8, %s' % (v(vXC), v(vT+1), s(sT0)))
    a('v_and_b32 %s, 15, %s' % (v(vT+5), v(vL)))
    a('v_lshrrev_b32 %s, 4, %s' % (v(vT+6), v(vL)))
    a('s_cmp_ge_u32 %s, 4' % s(sW))
    a('s_cbranch_scc1 L_h_setup')

    a('v_and_b32 %s, 31, %s' % (v(vT), v(vL)))
    a('v_lshrrev_b32 %s, 5, %s' % (v(vT+1), v(vL)))
    a('s_lshl_b32 %s, %s, 9' % (s(sT0), s(sW)))
    a('v_lshl_add_u32 %s, %s, 4, %s' % (v(vT+2), v(vT+1), s(sT0)))
    a('s_movk_i32 %s, %d' % (s(sT1), RS))
    a('v_mad_u32_u24 %s, %s, %s, %s' % (v(vKB), v(vT), s(sT1), v(vT+2)))
    a('v_add_u32 %s, -16, %s' % (v(vT+3), v(vT)))
    a('v_cmp_lt_u32 vcc, 20, %s' % v(vT))
    a('v_cndmask_b32 %s, %s, %s, vcc' % (v(vT+3), v(vT), v(vT+3)))
    a('v_mad_u32_u24 %s, %s, %s, %s' % (v(vKA), v(vT+3), s(sT1), v(vT+2)))
    a('v_add_u32 %s, %d, %s' % (v(vKA), STAGE + 32*RS, v(vKA)))
    a('s_mul_i32 %s, %s, %d' % (s(sT0), s(sW), TS))
    a('s_add_u32 %s, %s, %d' % (s(sT0), s(sT0), TAB + 8))
    a('v_lshlrev_b32 %s, 4, %s' % (v(vTW1), v(vT)))
    a('v_lshl_add_u32 %s, %s, 3, %s' % (v(vTW1), v(vT+1), v(vTW1)))
    a('v_add_u32 %s, %s, %s' % (v(vTW1), s(sT0), v(vTW1)))
    a('v_cmp_eq_u32 vcc, 0, %s' % v(vT+1))
    a('v_lshlrev_b32 %s, 3, %s' % (v(vT+3), v(vT)))
    a('v_add_u32 %s, 512, %s' % (v(vT+3), v(vT+3)))
    a('v_lshlrev_b32 %s, 2, %s' % (v(vT+4), v(vT)))
    a('v_add_u32 %s, 768, %s' % (v(vT+4), v(vT+4)))
    a('v_cndmask_b32 %s, %s, %s, vcc' % (v(vTW2), v(vT+4), v(vT+3)))
    a('v_add_u32 %s, %s, %s' % (v(vTW2), s(sT0), v(vTW2)))
    a('v_mul_u32_u24 %s, 124, %s' % (v(vT+3), v(vT+1)))
    a('v_add3_u32 %s, %s, %s, 4' % (v(vTW3), v(vTW2), v(vT+3)))
    a('v_lshlrev_b32 %s, 1, %s' % (v(vTW4), v(vT)))
    a('v_lshl_add_u32 %s, %s, 8, %s' % (v(vTW4), v(vT+1), v(vTW4)))
    a('s_add_u32 %s, %s, 1024' % (s(sT0), s(sT0)))
    a('v_add_u32 %s, %s, %s' % (v(vTW4), s(sT0), v(vTW4)))
    a('s_mul_i32 %s, %s, %d' % (s(sT0), s(sW), R4S))
    a('s_add_u32 %s, %s, %d' % (s(sT0), s(sT0), R4 + 8*24))
    a('v_lshlrev_b32 %s, 3, %s' % (v(vT+3), v(vT+6)))
    a('v_sub_u32 %s, %s, %s' % (v(vT+3), v(vT+5), v(vT+3)))
    a('v_lshl_add_u32 %s, %s, 3, %s' % (v(vCA), v(vT+3), s(sT0)))
    a('s_mul_i32 %s, %s, %d' % (s(sT0), s(sW), US))
    a('s_add_u32 %s, %s, %d' % (s(sT0), s(sT0), U))
    a('v_lshlrev_b32 %s, 4, %s' % (v(vT+3), v(vT+6)))
    a('v_lshl_add_u32 %s, %s, 5, %s' % (v(vT+3), v(vT+5), v(vT+3)))
    a('v_add_u32 %s, %s, %s' % (v(vCB), s(sT0), v(vT+3)))
    a('s_mul_i32 %s, %s, %d' % (s(sT0), s(sW), YCS))
    a('s_add_u32 %s, %s, %d' % (s(sT0), s(sT0), YX))
    a('v_mul_u32_u24 %s, %d, %s' % (v(vT+3), YGS, v(vT+6)))
    a('v_lshl_add_u32 %s, %s, 4, %s' % (v(vT+3), v(vT+5), v(vT+3)))
    a('v_add_u32 %s, %s, %s' % (v(vY), s(sT0), v(vT+3)))
    slw, slr, ina = vXN, vXN+1, vXN+4
    a('s_lshl_b32 %s, %s, 11' % (s(sT0), s(sW)))
    a('s_add_u32 %s, %s, %d' % (s(sT0), s(sT0), SL))
    a('v_lshrrev_b32 %s, 3, %s' % (v(vT), v(vL)))
    a('v_and_b32 %s, 7, %s' % (v(vT+1), v(vL)))
    a('v_lshrrev_b32 %s, 1, %s' % (v(vT+2), v(vT)))
    a('v_xor_b32 %s, %s, %s' % (v(vT+2), v(vT+2), v(vT+1)))
    a('v_lshlrev_b32 %s, 4, %s' % (v(vT+2), v(vT+2)))
    a('v_lshl_add_u32 %s, %s, 7, %s' % (v(vT+2), v(vT), v(vT+2)))
    a('v_add_u32 %s, %s, %s' % (v(slw), s(sT0), v(vT+2)))
    a('v_xor_b32 %s, 64, %s' % (v(slw+5), v(slw)))
    a('v_and_b32 %s, 3, %s' % (v(vT+2), v(vL)))
    a('v_bfe_u32 %s, %s, 2, 1' % (v(vT+3), v(vL)))
    a('v_lshl_add_u32 %s, %s, 1, %s' % (v(vT+2), v(vT+2), v(vT+3)))
    a('v_lshrrev_b32 %s, 1, %s' % (v(vT+3), v(vT)))
    a('v_xor_b32 %s, %s, %s' % (v(vT+3), v(vT+3), v(vT+2)))
    a('v_lshlrev_b32 %s, 4, %s' % (v(vT+3), v(vT+3)))
    a('v_lshl_add_u32 %s, %s, 8, %s' % (v(vT+3), v(vT+2), v(vT+3)))
    a('v_and_b32 %s, 1, %s' % (v(vT+4), v(vT)))
    a('v_lshl_add_u32 %s, %s, 3, %s' % (v(vT+3), v(vT+4), v(vT+3)))
    a('v_add_u32 %s, %s, %s' % (v(slr), s(sT0), v(vT+3)))
    a('v_xor_b32 %s, 64, %s' % (v(slr+1), v(slr)))
    a('s_lshl_b32 %s, %s, 18' % (s(sT0), s(sK)))
    a('s_lshl_b32 %s, %s, 9' % (s(sT1), s(sJ)))
    a('s_add_u32 %s, %s, %s' % (s(sT0), s(sT0), s(sT1)))
    a('s_lshl_b32 %s, %s, 7' % (s(sT1), s(sW)))
    a('s_add_u32 %s, %s, %s' % (s(sT0), s(sT0), s(sT1)))
    a('s_add_u32 %s, %s, %d' % (s(sT0), s(sT0), W_IN))
    a('v_lshlrev_b32 %s, 4, %s' % (v(vT+1), v(vT+1)))
    a('v_lshl_add_u32 %s, %s, 14, %s' % (v(vT+1), v(vT), v(vT+1)))
    a('v_add_u32 %s, %s, %s' % (v(ina), s(sT0), v(vT+1)))
    a('v_add_u32 %s, 0x20000, %s' % (v(ina-1), v(ina)))
    a('s_lshl_b32 %s, %s, 9' % (s(sT0), s(sK)))
    a('s_lshl_b32 %s, %s, 4' % (s(sT1), s(sJ)))
    a('s_add_u32 %s, %s, %s' % (s(sT0), s(sT0), s(sT1)))
    a('s_lshl_b32 %s, %s, 2' % (s(sT1), s(sW)))
    a('s_add_u32 %s, %s, %s' % (s(sT0), s(sT0), s(sT1)))
    a('s_add_u32 %s, %s, %d' % (s(sT0), s(sT0), W_FL))
    a('v_mov_b32 %s, %s' % (v(vFPA), s(sT0)))
    a('v_mov_b32 %s, 4096' % v(vWDA))
    vm(7)
    stamp(1)
    a('ds_write_b128 %s, %s' % (v(slw), v(vD,4)))
    a('ds_write_b128 %s, %s offset:1024' % (v(slw+5), v(vD+4,4)))
    a('ds_read_b64 %s, %s' % (v(vG,2), v(slr)))
    a('ds_read_b64 %s, %s offset:128' % (v(vG+2,2), v(slr)))
    a('ds_read_b64 %s, %s' % (v(vG+4,2), v(slr+1)))
    a('ds_read_b64 %s, %s offset:128' % (v(vG+6,2), v(slr+1)))
    a('s_waitcnt lgkmcnt(0)')
    a('global_store_dwordx4 %s, %s, %s' % (v(ina), v(vG,4), s(sWS,2)))
    a('global_store_dwordx4 %s, %s, %s' % (v(ina-1), v(vG+4,4), s(sWS,2)))
    vm(2)
    a('s_branch L_kgen')

    a('L_h_setup:')
    a('s_mul_i32 %s, %s, %d' % (s(sT0), s(sWI), YTS))
    a('s_add_u32 %s, %s, %d' % (s(sT0), s(sT0), YX))
    a('v_and_b32 %s, 3, %s' % (v(vT), v(vL)))
    a('v_lshrrev_b32 %s, 2, %s' % (v(vT+1), v(vL)))
    a('v_mul_u32_u24 %s, %d, %s' % (v(vT), YGS, v(vT)))
    a('v_lshl_add_u32 %s, %s, 4, %s' % (v(vT), v(vT+1), v(vT)))
    a('v_add_u32 %s, %s, %s' % (v(vY), s(sT0), v(vT)))
    a('v_lshrrev_b32 %s, 2, %s' % (v(vT), v(vT+5)))
    a('v_lshl_add_u32 %s, %s, 2, %s' % (v(vT), v(vT+6), v(vT)))
    a('v_bfe_u32 %s, %s, 1, 1' % (v(vT+1), v(vL)))
    a('v_mul_u32_u24 %s, %d, %s' % (v(vT+1), WL1, v(vT+1)))
    a('v_lshl_add_u32 %s, %s, 4, %s' % (v(vT), v(vT), v(vT+1)))
    a('v_and_b32 %s, 1, %s' % (v(vT+1), v(vL)))
    a('v_lshl_add_u32 %s, %s, 3, %s' % (v(vT), v(vT+1), v(vT)))
    a('s_lshl_b32 %s, %s, 11' % (s(sT0), s(sWI)))
    a('s_add_u32 %s, %s, %d' % (s(sT0), s(sT0), WL))
    a('v_add_u32 %s, %s, %s' % (v(vWT), s(sT0), v(vT)))
    a('s_lshl_b32 %s, %s, 7' % (s(sT0), s(sWI)))
    a('v_add_u32 %s, %s, %s' % (v(vT), s(sT0), v(vL)))
    a('s_lshl_b32 %s, %s, 4' % (s(sT1), s(sF8)))
    a('v_mul_u32_u24 %s, 2752, %s' % (v(vT), v(vT)))
    a('v_add_u32 %s, %s, %s' % (v(vKA), s(sT1), v(vT)))
    a('v_add_u32 %s, %d, %s' % (v(vKB), 64*2752, v(vKA)))
    a('v_and_b32 %s, 255, v0' % v(vT))
    a('s_lshl_b32 %s, %s, 13' % (s(sT0), s(sF8)))
    a('v_lshl_add_u32 %s, %s, 2, %s' % (v(vWDA), v(vT), s(sT0)))
    a('v_add_u32 %s, 4096, %s' % (v(vWDA), v(vWDA)))
    a('v_lshrrev_b32 %s, 1, %s' % (v(vT+1), v(vT)))
    a('v_mul_u32_u24 %s, 6144, %s' % (v(vT+1), v(vT+1)))
    a('v_and_b32 %s, 1, %s' % (v(vT), v(vT)))
    a('v_lshl_add_u32 %s, %s, 4, %s' % (v(vT+1), v(vT), v(vT+1)))
    a('s_lshl_b32 %s, %s, 5' % (s(sT0), s(sF8)))
    a('s_add_u32 %s, %s, %d' % (s(sT0), s(sT0), W_FP))
    a('v_add_u32 %s, %s, %s' % (v(vFPA), s(sT0), v(vT+1)))
    a('v_lshlrev_b32 %s, 3, %s' % (v(vT), v(vT+6)))
    a('v_lshl_add_u32 %s, %s, 6, %s' % (v(vCA), v(vT+5), v(vT)))
    a('s_lshl_b32 %s, %s, 8' % (s(sT0), s(sWI)))
    a('s_add_u32 %s, %s, %d' % (s(sT0), s(sT0), FP))
    a('v_lshl_add_u32 %s, %s, 2, %s' % (v(vCB), v(vL), s(sT0)))
    a('v_lshlrev_b32 %s, 2, %s' % (v(vTW1), v(vT+5)))
    a('v_add_u32 %s, %d, %s' % (v(vTW1), FP, v(vTW1)))
    a('s_lshl_b32 %s, %s, 2' % (s(sT0), s(sWI)))
    a('s_add_u32 %s, %s, %d' % (s(sT0), s(sT0), FF))
    a('v_mov_b32 %s, %s' % (v(vTW2), s(sT0)))
    a('v_mov_b32 %s, %d' % (v(vTW3), FF))
    a('s_lshl_b32 %s, s2, 5' % s(sT0))
    a('s_lshr_b32 %s, %s, 1' % (s(sT1), s(sWI)))
    a('s_lshl_b32 %s, %s, 4' % (s(sT1), s(sT1)))
    a('s_add_u32 %s, %s, %s' % (s(sT0), s(sT0), s(sT1)))
    a('s_and_b32 %s, %s, 1' % (s(sT1), s(sWI)))
    a('s_lshl_b32 %s, %s, 13' % (s(sT1), s(sT1)))
    a('s_add_u32 %s, %s, %s' % (s(sT0), s(sT0), s(sT1)))
    a('s_add_u32 %s, %s, %d' % (s(sT0), s(sT0), W_ST))
    a('v_mov_b32 %s, %s' % (v(vTW4), s(sT0)))
    rk, pfa = vXN, vXN+1
    a('s_lshl_b32 %s, s2, 3' % s(sT0))
    a('s_lshl_b32 %s, %s, 1' % (s(sT1), s(sWI)))
    a('s_add_u32 %s, %s, %s' % (s(sT0), s(sT0), s(sT1)))
    a('s_sub_u32 %s, 0xffff, %s' % (s(sT0), s(sT0)))
    a('v_lshrrev_b32 %s, 5, %s' % (v(rk), v(vL)))
    a('v_sub_u32 %s, %s, %s' % (v(rk), s(sT0), v(rk)))
    a('s_lshl_b32 %s, %s, 13' % (s(sT0), s(sH)))
    a('s_lshl_b32 %s, %s, 11' % (s(sT1), s(sWI)))
    a('s_add_u32 %s, %s, %s' % (s(sT0), s(sT0), s(sT1)))
    a('s_add_u32 %s, %s, %s' % (s(sT0), s(sT0), s(sT2)))
    a('v_lshl_add_u32 %s, %s, 7, %s' % (v(pfa), v(vT+5), s(sT0)))
    S1, S2, S3, S4 = vXF, vXF+1, vXF+2, vXF+3
    def red32(regs):
        for m in ('row_shr:1','row_shr:2','row_shr:4','row_shr:8'):
            for r in regs: a('v_add_f32_dpp %s, %s, %s %s row_mask:0xf bank_mask:0xf' % (v(r), v(r), v(r), m))
        for r in regs: a('v_add_f32_dpp %s, %s, %s row_bcast:15 row_mask:0xa bank_mask:0xf' % (v(r), v(r), v(r)))
    for r in (S1,S2,S3,S4): a('v_mov_b32 %s, 0' % v(r))
    vm(9)
    for i in range(8): a('v_dot2_f32_bf16 %s, %s, %s, %s' % (v(S4), v(vG+i), s(sONES), v(S4)))
    red32([S4])
    vm(7)
    stamp(1)
    if o['prefetch']:
        a('s_mov_b64 exec, 0xffff')
        a('global_load_dword %s, %s, %s nt' % (v(vPF), v(pfa), s(sWS,2)))
        a('s_mov_b64 exec, -1')
    for i in range(8):
        a('v_dot2_f32_bf16 %s, %s, %s, %s' % (v(S1), v(vD+i), s(sONES), v(S1)))
        a('v_dot2_f32_bf16 %s, %s, %s, %s' % (v(S2), v(vD+i), v(vD+i), v(S2)))
        a('v_dot2_f32_bf16 %s, %s, %s, %s' % (v(S3), v(vD+i), v(vG+i), v(S3)))
    red32([S1,S2,S3])
    t = vT
    a('v_mul_f32 %s, 0x3b000000, %s' % (v(S1), v(S1)))
    a('v_mul_f32 %s, 0x3b000000, %s' % (v(S2), v(S2)))
    a('v_fma_f32 %s, -%s, %s, %s' % (v(S2), v(S1), v(S1), v(S2)))
    a('v_max_f32 %s, 0, %s' % (v(S2), v(S2)))
    a('v_cvt_pk_bf16_f32 %s, %s, %s' % (v(t), v(S1), v(S2)))
    a('v_and_b32 %s, %s, %s' % (v(t), s(sHI), v(t)))
    a('v_add_f32 %s, 0x3727c5ac, %s' % (v(t), v(t)))
    a('v_cvt_pk_bf16_f32 %s, %s, %s' % (v(t), v(t), v(t)))
    a('v_and_b32 %s, %s, %s' % (v(t), s(sHI), v(t)))
    a('v_sqrt_f32 %s, %s' % (v(t), v(t)))
    g = vE
    a('v_cvt_pk_bf16_f32 %s, %s, %s' % (v(g+1), v(S1), v(t)))
    a('v_and_b32 %s, %s, %s' % (v(t), s(sHI), v(g+1)))
    a('v_lshlrev_b32 %s, 16, %s' % (v(t+1), v(g+1)))
    a('v_rcp_f32 %s, %s' % (v(t), v(t)))
    a('v_fma_f32 %s, -%s, %s, %s' % (v(S3), v(t+1), v(S4), v(S3)))
    a('v_readlane_b32 %s, %s, 31' % (s(sT0), v(g+1)))
    a('v_mul_f32 %s, %s, %s' % (v(S3), v(S3), v(t)))
    a('v_cvt_pk_bf16_f32 %s, %s, %s' % (v(S3), v(S3), v(S3)))
    a('v_mov_b32 %s, %s' % (v(g), s(sT0)))
    a('v_ashrrev_i32 %s, 31, %s' % (v(t), v(S3)))
    a('v_or_b32 %s, 0x80000000, %s' % (v(t), v(t)))
    a('v_xor_b32 %s, %s, %s' % (v(t), v(t), v(S3)))
    a('v_and_or_b32 %s, %s, %s, %s' % (v(t), v(t), s(sHI), v(rk)))
    vm(1 if o['prefetch'] else 0)
    a('v_readlane_b32 %s, %s, 31' % (s(sT0), v(t)))
    a('v_readfirstlane_b32 %s, %s' % (s(sTAG), v(vEP)))
    a('v_max_u32 %s, %s, %s' % (v(g+2), s(sT0), v(t)))
    a('s_add_u32 %s, %s, 16' % (s(sTAG), s(sTAG)))
    a('s_and_b32 %s, %s, -16' % (s(sTAG), s(sTAG)))
    a('s_or_b32 %s, %s, %s' % (s(sTAGX), s(sTAG), s(sXCC)))
    a('v_mov_b32 %s, %s' % (v(g+3), s(sTAGX)))
    a('s_mov_b32 exec_lo, 0')
    a('s_mov_b32 exec_hi, 0x80000000')
    a('global_store_dwordx4 %s, %s, %s sc1' % (v(vTW4), v(g,4), s(sWS,2)))
    a('s_mov_b64 exec, -1')
    a('s_setprio 0')
    stamp(2)

    a('L_kgen:')
    are, aim, bre, bim, cre, cim = [vP+i for i in range(6)]
    dt = vP+6; t0 = vP+7
    z1, z2, z4, ZZ, w1, w2, w4, c0 = [vP+8+2*i for i in range(8)]
    hq = [vP+24+2*i for i in range(8)]
    lq = [vP+40+2*i for i in range(8)]
    cv = [vP+56+i for i in range(8)]
    a('s_waitcnt lgkmcnt(0)')
    a('s_lshr_b32 %s, %s, 1' % (s(sT0), s(sW)))
    a('s_lshl_b32 %s, %s, 4' % (s(sT0), s(sT0)))
    a('s_lshr_b64 %s, %s, %s' % (s(sLD,2), s(sLD,2), s(sT0)))
    a('s_lshl_b32 %s, %s, 16' % (s(sT0), s(sLD)))
    a('v_mov_b32 %s, 0x3fb8aa3b' % v(t0))
    a('v_mul_f32 %s, %s, %s' % (v(dt), s(sT0), v(t0)))
    a('v_exp_f32 %s, %s' % (v(dt), v(dt)))
    a('s_lshl_b32 %s, %s, 8' % (s(sT0), s(sW)))
    a('s_mov_b32 m0, %s' % s(sT0))
    a('v_cvt_pk_bf16_f32 %s, %s, %s' % (v(dt), v(dt), v(dt)))
    a('v_and_b32 %s, %s, %s' % (v(dt), s(sHI), v(dt)))
    a('v_mul_f32 %s, %s, %s' % (v(are), v(dt), v(are)))
    a('v_mul_f32 %s, %s, %s' % (v(aim), v(dt), v(aim)))
    a('v_mul_f32 %s, %s, %s' % (v(are), v(t0), v(are)))
    a('v_mul_f32 %s, 0.15915494, %s' % (v(aim), v(aim)))
    a('v_exp_f32 %s, %s' % (v(cv[0]), v(are)))
    a('v_fract_f32 %s, %s' % (v(cv[1]), v(aim)))
    a('v_mul_f32 %s, 0x43800000, %s' % (v(are), v(are)))
    a('v_cos_f32 %s, %s' % (v(z1), v(cv[1])))
    a('v_mul_f32 %s, 0x43800000, %s' % (v(aim), v(aim)))
    a('v_sin_f32 %s, %s' % (v(z1+1), v(cv[1])))
    a('v_fract_f32 %s, %s' % (v(cv[3]), v(aim)))
    a('v_exp_f32 %s, %s' % (v(cv[2]), v(are)))
    a('v_mul_f32 %s, %s, %s' % (v(z1), v(cv[0]), v(z1)))
    a('v_cos_f32 %s, %s' % (v(ZZ), v(cv[3])))
    a('v_mul_f32 %s, %s, %s' % (v(z1+1), v(cv[0]), v(z1+1)))
    a('v_sin_f32 %s, %s' % (v(ZZ+1), v(cv[3])))
    a('v_mul_f32 %s, %s, %s' % (v(bre), v(dt), v(bre)))
    a('v_mul_f32 %s, %s, %s' % (v(bim), v(dt), v(bim)))
    cmul(a, z2, z1, z1)
    a('v_mul_f32 %s, %s, %s' % (v(ZZ), v(cv[2]), v(ZZ)))
    a('v_mul_f32 %s, %s, %s' % (v(ZZ+1), v(cv[2]), v(ZZ+1)))
    cmul(a, hq[0], cre, bre)
    cmul(a, z4, z2, z2)
    ci = [0]
    m0_hi = [False]
    def put(row, reg, neg):
        c = cv[ci[0] % 8]; ci[0] += 1
        a('v_cvt_pk_bf16_f32 %s, %s, %s%s' % (v(c), v(reg), '-' if neg else '', v(reg+1)))
        off = row*RS - (30*RS if m0_hi[0] else 0)
        assert 0 <= off < 65536, (row, off)
        a('ds_write_addtid_b32 %s offset:%d' % (v(c), STAGE + off))
    cmul(a, w1, z4, z4)
    cmul(a, hq[1], hq[0], z1)
    cmul(a, w2, w1, w1)
    put(1, w1, False)
    cmul(a, hq[2], hq[0], z2)
    cmul(a, lq[3], w2, w1)
    put(2, w2, False)
    cmul(a, w4, w2, w2)
    put(3, lq[3], False)
    cur = {1: w1, 2: w2, 3: lq[3], 4: w4}
    put(4, w4, False)
    def lo_step(j):
        d = lq[j % 8]
        cmul(a, d, cur[j-4], w4); cur[j] = d
        put(j, d, False)
    for j in range(5, 14): lo_step(j)
    a('s_cmp_ge_u32 %s, 4' % s(sW))
    a('s_cbranch_scc1 L_noflag')
    a('s_waitcnt vmcnt(0)')
    a('v_readfirstlane_b32 %s, %s' % (s(sTAG), v(vEP)))
    a('s_add_u32 %s, %s, 16' % (s(sTAG), s(sTAG)))
    a('s_and_b32 %s, %s, -16' % (s(sTAG), s(sTAG)))
    a('s_or_b32 %s, %s, %s' % (s(sTAGX), s(sTAG), s(sXCC)))
    a('v_mov_b32 %s, %s' % (v(vT), s(sTAGX)))
    a('s_mov_b64 exec, 1')
    a('global_store_dword %s, %s, %s' % (v(vFPA), v(vT), s(sWS,2)))
    a('s_mov_b64 exec, -1')
    stamp(2)
    a('L_noflag:')
    for j in range(14, 30): lo_step(j)
    a('s_lshl_b32 %s, %s, 8' % (s(sT0), s(sW)))
    a('s_add_u32 %s, %s, %d' % (s(sT0), s(sT0), 30*RS))
    a('s_mov_b32 m0, %s' % s(sT0))
    m0_hi[0] = True
    for j in range(30, 32): lo_step(j)
    a('global_load_dword %s, %s, %s sc1' % (v(vPF), v(vFL), s(sWS,2)))
    put(32, hq[0], True); put(33, hq[1], True); put(34, hq[2], True)
    cmul(a, hq[3], hq[1], z2);  cmul(a, hq[4], hq[0], z4)
    put(35, hq[3], True); put(36, hq[4], True)
    cmul(a, hq[5], hq[1], z4);  cmul(a, hq[6], hq[2], z4); cmul(a, hq[7], hq[3], z4)
    put(37, hq[5], True); put(38, hq[6], True); put(39, hq[7], True)
    A0, A2, A4, A6 = lq[0], lq[1], lq[2], lq[3]
    cmul(a, A0, hq[0], ZZ); cmul(a, A2, hq[2], ZZ); cmul(a, A4, hq[4], ZZ); cmul(a, A6, hq[6], ZZ)
    put(40, A0, True)
    B0, B4 = lq[4], lq[5]
    cmul(a, B0, A0, ZZ); put(41, A2, True); cmul(a, B4, A4, ZZ); put(42, A4, True)
    C0, C4 = lq[6], lq[7]
    cmul(a, C0, B0, ZZ); put(43, A6, True); cmul(a, C4, B4, ZZ); put(44, B0, True)
    cmul(a, hq[1], C0, ZZ); put(45, B4, True); put(46, C0, True)
    cmul(a, hq[2], hq[1], ZZ); put(47, C4, True); put(48, hq[1], True)
    cmul(a, hq[3], hq[2], ZZ); put(49, hq[2], True)
    cmul(a, hq[4], hq[3], ZZ); put(50, hq[3], True)
    cmul(a, hq[5], hq[4], ZZ); put(51, hq[4], True); put(52, hq[5], True)
    stamp(3)

    a('s_waitcnt vmcnt(0)')
    a('v_cmp_ne_u32 vcc, %s, %s' % (s(sTAGX), v(vPF)))
    if o['force_slow']: a('s_branch L_gather')
    a('s_cbranch_vccz L_fast')
    a('s_mov_b32 %s, %d' % (s(sCNT), o['spinmax']))
    a('L_flagspin:')
    a('global_load_dword %s, %s, %s sc1' % (v(vPF), v(vFL), s(sWS,2)))
    a('global_load_dword %s, %s, %s sc1' % (v(vT), v(vXC), s(sWS,2)))
    a('s_waitcnt vmcnt(0)')
    a('v_cmp_ne_u32 vcc, %s, %s' % (s(sTAGX), v(vPF)))
    a('s_cbranch_vccz L_fast')
    a('v_xor_b32 %s, %s, %s' % (v(vT), s(sTAGX), v(vT)))
    a('v_add_u32 %s, -1, %s' % (v(vT), v(vT)))
    a('v_cmp_gt_u32 vcc, 15, %s' % v(vT))
    a('s_cbranch_vccnz L_gather')
    a('s_sub_u32 %s, %s, 1' % (s(sCNT), s(sCNT)))
    a('s_cmp_lg_u32 %s, 0' % s(sCNT))
    a('s_cbranch_scc1 L_flagspin')
    a('L_gather:')
    for r in range(4):
        a('global_load_dwordx2 %s, %s, %s offset:%d' % (v(vD+2*r,2), v(vXG), s(sX,2), r*1024))
    a('s_branch L_stats')
    a('L_fast:')
    a('global_load_dwordx4 %s, %s, %s sc1' % (v(vD,4), v(vIN), s(sWS,2)))
    a('global_load_dwordx4 %s, %s, %s offset:64 sc1' % (v(vD+4,4), v(vIN), s(sWS,2)))
    a('L_stats:')
    a('global_load_dwordx4 %s, %s, %s sc1' % (v(vG,4), v(vST0), s(sWS,2)))
    a('global_load_dwordx4 %s, %s, %s sc1' % (v(vG+4,4), v(vST1), s(sWS,2)))
    def wloads():
        a('s_lshl_b32 %s, %s, 11' % (s(sT0), s(sWI)))
        a('s_add_u32 %s, %s, %d' % (s(sT0), s(sT0), WL))
        for mu, base in enumerate((sWG, sWU)):
            for i, r in enumerate((vKA, vKB)):
                a('s_add_u32 m0, %s, %d' % (s(sT0), mu*WL1 + i*1024))
                a('global_load_lds_dwordx4 %s, %s' % (v(r), s(base,2)))
        for i in range(8):
            a('global_load_dword %s, %s, %s offset:%d' % (v(vWD+i), v(vWDA), s(sWD,2), i*1024 - 4096))
    a('s_waitcnt lgkmcnt(0)')
    stamp(4)
    a('s_barrier')
    a('s_cmp_ge_u32 %s, 4' % s(sW))
    a('s_cbranch_scc1 L_h_b3')
    KD = vP; KF = vP + 16
    NB = 6
    def kread(sidx):
        r = KF + 8*(sidx % NB)
        a('ds_read_b128 %s, %s offset:%d' % (v(r,4), v(vKA), 32*sidx))
        a('ds_read_b128 %s, %s offset:%d' % (v(r+4,4), v(vKB), 32*sidx))
    for i in range(NB): kread(i)
    for sidx in range(16):
        outstanding = min(16, sidx + NB) - sidx - 1
        a('s_waitcnt lgkmcnt(%d)' % (2*outstanding))
        r = KF + 8*(sidx % NB)
        a('v_mfma_f32_32x32x16_bf16 %s, %s, %s, %s' % (v(KD,16), v(r,4), v(r+4,4), '0' if sidx == 0 else v(KD,16)))
        if sidx + NB < 16: kread(sidx + NB)
    for i in range(6):
        a('v_cvt_pk_bf16_f32 %s, %s, %s' % (v(vT+i), v(KD+2*i), v(KD+2*i+1)))
    a('ds_write_b64 %s, %s' % (v(vTW1), v(vT,2)))
    a('ds_write_b32 %s, %s' % (v(vTW2), v(vT+2)))
    a('ds_write_b32 %s, %s' % (v(vTW3), v(vT+3)))
    a('ds_write_b16 %s, %s' % (v(vTW4), v(vT+4)))
    a('ds_write_b16_d16_hi %s, %s offset:64' % (v(vTW4), v(vT+4)))
    a('ds_write_b16 %s, %s offset:128' % (v(vTW4), v(vT+5)))
    a('ds_write_b16_d16_hi %s, %s offset:192' % (v(vTW4), v(vT+5)))
    a('s_waitcnt lgkmcnt(0)')
    a('s_branch L_b3')
    a('L_h_b3:')
    if not o['wlate']:
        a('s_cmp_eq_u32 %s, 0' % s(sPROD))
        a('s_cbranch_scc1 L_b3')
        a('s_waitcnt vmcnt(0)')
        wloads()
    a('L_b3:')
    stamp(5)
    a('s_barrier')
    Wq = vP; Q = vP + 16
    for c in range(4):
        a('ds_read2_b32 %s, %s offset0:0 offset1:1' % (v(Wq+4*c,2), v(vGA+2*c)))
        a('ds_read2_b32 %s, %s offset0:0 offset1:1' % (v(Wq+4*c+2,2), v(vGA+2*c+1)))
    a('s_cmp_lg_u32 %s, 7' % s(sW))
    a('s_cbranch_scc1 L_nopad')
    a('v_bfe_u32 %s, %s, 3, 2' % (v(vT), v(vL)))
    a('v_and_b32 %s, 7, %s' % (v(vT+1), v(vL)))
    a('v_min_u32 %s, 5, %s' % (v(vT+1), v(vT+1)))
    a('v_mul_u32_u24 %s, %d, %s' % (v(vT), R4S, v(vT)))
    a('v_lshl_add_u32 %s, %s, 4, %s' % (v(vT), v(vT+1), v(vT)))
    for i in range(4): a('v_mov_b32 %s, 0' % v(vT+4+i))
    a('ds_write_b128 %s, %s offset:%d' % (v(vT), v(vT+4,4), R4))
    a('s_waitcnt lgkmcnt(1)')
    a('L_nopad:')
    for c in range(4):
        a('s_waitcnt lgkmcnt(%d)' % (6 if c == 0 else 6))
        W0, W1, W2, W3 = [Wq+4*c+i for i in range(4)]
        q = Q + 8*c
        a('v_perm_b32 %s, %s, %s, %s' % (v(q+0), v(W2), v(W1), v(vSEL+2)))
        a('v_perm_b32 %s, %s, %s, %s' % (v(q+1), v(W1), v(W0), v(vSEL+0)))
        a('v_perm_b32 %s, %s, %s, %s' % (v(q+2), v(W3), v(W2), v(vSEL+3)))
        a('v_perm_b32 %s, %s, %s, %s' % (v(q+3), v(W1), v(W0), v(vSEL+1)))
        a('ds_write_b128 %s, %s offset:%d' % (v(vR4W), v(q,4), c*R4S))
        a('v_perm_b32 %s, %s, %s, %s' % (v(q+4), v(W3), v(W2), v(vSEL+4)))
        a('v_mov_b32 %s, %s' % (v(q+5), v(q+0)))
        a('v_perm_b32 %s, %s, %s, %s' % (v(q+6), v(W3), v(W2), v(vSEL+5)))
        a('v_mov_b32 %s, %s' % (v(q+7), v(q+2)))
        a('ds_write_b128 %s, %s offset:%d' % (v(vR4W), v(q+4,4), c*R4S + 16))
    stamp(6)
    if o['wlate']: a('s_waitcnt vmcnt(0)')
    else:
        a('s_cmp_lt_u32 %s, 4' % s(sW))
        a('s_cbranch_scc1 L_nw0')
        a('s_cmp_lg_u32 %s, 0' % s(sPROD))
        a('s_cbranch_scc1 L_nw1')
        a('L_nw0:')
        a('s_waitcnt vmcnt(0)')
        a('L_nw1:')
    a('s_mov_b32 %s, %d' % (s(sCNT), o['spinmax']))
    a('L_statspin:')
    a('v_xor_b32 %s, %s, %s' % (v(vT), s(sTAG), v(vG+3)))
    a('v_xor_b32 %s, %s, %s' % (v(vT+1), s(sTAG), v(vG+7)))
    a('v_or_b32 %s, %s, %s' % (v(vT), v(vT), v(vT+1)))
    a('v_cmp_lt_u32 vcc, 15, %s' % v(vT))
    a('s_cbranch_vccz L_statok')
    a('global_load_dwordx4 %s, %s, %s sc1' % (v(vG,4), v(vST0), s(sWS,2)))
    a('global_load_dwordx4 %s, %s, %s sc1' % (v(vG+4,4), v(vST1), s(sWS,2)))
    a('s_sub_u32 %s, %s, 1' % (s(sCNT), s(sCNT)))
    a('s_cmp_lg_u32 %s, 0' % s(sCNT))
    a('s_waitcnt vmcnt(0)')
    a('s_cbranch_scc1 L_statspin')
    a('L_statok:')
    stamp(7)
    stq = [vG, vG+1, vG+4, vG+5]
    rho = [vT+i for i in range(4)]; mu = [vT+4+i for i in range(4)]
    key = vT+8
    for r in range(4): a('v_and_b32 %s, %s, %s' % (v(rho[r]), s(sHI), v(stq[r])))
    a('v_max_u32 %s, %s, %s' % (v(key), v(vG+2), v(vG+6)))
    for r in range(4):
        a('v_rcp_f32 %s, %s' % (v(rho[r]), v(rho[r])))
        a('v_lshlrev_b32 %s, 16, %s' % (v(mu[r]), v(stq[r])))
    kred = ['row_shr:1 row_mask:0xf','row_shr:2 row_mask:0xf','row_shr:4 row_mask:0xf','row_shr:8 row_mask:0xf','row_bcast:15 row_mask:0xa','row_bcast:31 row_mask:0xc']
    for r in range(4):
        a('v_mul_f32_e64 %s, -%s, %s' % (v(mu[r]), v(mu[r]), v(rho[r])))
        a('v_lshlrev_b32 %s, 16, %s' % (v(vXF+4*r), v(vD+2*r)))
        a('v_and_b32 %s, %s, %s' % (v(vXF+4*r+1), s(sHI), v(vD+2*r)))
        a('v_lshlrev_b32 %s, 16, %s' % (v(vXF+4*r+2), v(vD+2*r+1)))
        a('v_and_b32 %s, %s, %s' % (v(vXF+4*r+3), s(sHI), v(vD+2*r+1)))
        a('v_max_u32_dpp %s, %s, %s %s bank_mask:0xf' % (v(key), v(key), v(key), kred[r]))
        for c in range(4):
            a('v_fma_f32 %s, %s, %s, %s' % (v(vXN+4*r+c), v(vXF+4*r+c), v(rho[r]), v(mu[r])))
    a('v_max_u32_dpp %s, %s, %s %s bank_mask:0xf' % (v(key), v(key), v(key), kred[4]))
    XP = vG
    for c in range(4):
        a('v_cvt_pk_bf16_f32 %s, %s, %s' % (v(XP+2*c), v(vXN+c), v(vXN+4+c)))
        a('v_cvt_pk_bf16_f32 %s, %s, %s' % (v(XP+2*c+1), v(vXN+8+c), v(vXN+12+c)))
        a('ds_write_b64 %s, %s offset:%d' % (v(vUW), v(XP+2*c,2), c*US))
        if c == 0: a('v_max_u32_dpp %s, %s, %s %s bank_mask:0xf' % (v(key), v(key), v(key), kred[5]))
    a('s_lshl_b32 %s, %s, 2' % (s(sT0), s(sW)))
    a('s_add_u32 %s, %s, %d' % (s(sT0), s(sT0), AM))
    a('v_mov_b32 %s, %s' % (v(vT+9), s(sT0)))
    a('s_mov_b32 exec_lo, 0')
    a('s_mov_b32 exec_hi, 0x80000000')
    a('ds_write_b32 %s, %s' % (v(vT+9), v(key)))
    a('s_mov_b64 exec, -1')
    a('v_mov_b32 %s, %d' % (v(vT+9), AM))
    a('s_waitcnt lgkmcnt(0)')
    stamp(8)
    a('s_barrier')
    def read_idx():
        a('ds_read_b128 %s, %s' % (v(vT,4), v(vT+9)))
        a('ds_read_b128 %s, %s offset:16' % (v(vT+4,4), v(vT+9)))
        a('s_waitcnt lgkmcnt(0)')
        a('v_max3_u32 %s, %s, %s, %s' % (v(vT), v(vT), v(vT+1), v(vT+2)))
        a('v_max3_u32 %s, %s, %s, %s' % (v(vT+3), v(vT+3), v(vT+4), v(vT+5)))
        a('v_max3_u32 %s, %s, %s, %s' % (v(vT), v(vT), v(vT+6), v(vT+7)))
        a('v_max_u32 %s, %s, %s' % (v(vT), v(vT), v(vT+3)))
        a('v_readfirstlane_b32 %s, %s' % (s(sKEY), v(vT)))
        a('s_and_b32 %s, %s, 0xffff' % (s(sIDX), s(sKEY)))
        a('s_sub_u32 %s, 0xffff, %s' % (s(sIDX), s(sIDX)))
        a('s_and_b32 %s, %s, 2047' % (s(sIDX), s(sIDX)))
    a('s_cmp_ge_u32 %s, 4' % s(sW))
    a('s_cbranch_scc1 L_helper')

    ACC = vP; FR = vP + 16; NFR = 28
    a('s_setprio 1')
    a('s_cmp_eq_u32 %s, 0' % s(sH))
    a('s_cbranch_scc0 L_conv1')
    def conv(h):
        tl = tiles(h)
        ops = []
        for c0 in range(8):
            lst = [(i, c1, q - c1) for i, q in enumerate(tl) for c1 in range(q+1)]
            lst.sort(key=lambda x: (max(x[1], x[2]), x[1]))
            for i, c1, qp in lst: ops.append((i, ('A', c0, c1), ('B', c0, qp)))
        order = []; last = {}
        for n, (i, ak, bk) in enumerate(ops):
            for k in (ak, bk):
                if k not in last: order.append(k)
                last[k] = n
        first = {}
        for n, (i, ak, bk) in enumerate(ops):
            for k in (ak, bk): first.setdefault(k, n)
        free = list(range(NFR)); slot = {}; issued = []
        nxt = 0; started = set()
        MAXOUT = 14
        def n_instr(k): return 2 if k[0] == 'A' else 1
        done_upto = [0]
        def issue(k):
            sl = free.pop(0); slot[k] = sl; r = FR + 4*sl
            if k[0] == 'A':
                off = 256*(8*k[2] + k[1])
                a('ds_read_b64 %s, %s offset:%d' % (v(r,2), v(vCA), off + 32))
                a('ds_read_b64 %s, %s offset:%d' % (v(r+2,2), v(vCA), off))
                issued.extend([k, k])
            else:
                off = 2*(224 + 256*k[2] - 32*k[1])
                a('ds_read_b128 %s, %s offset:%d' % (v(r,4), v(vCB), off))
                issued.append(k)
        for n, (i, ak, bk) in enumerate(ops):
            budget = 99 if n == 0 else 2
            while nxt < len(order) and free and budget > 0:
                k = order[nxt]
                must = first[k] <= n
                if not must and (len(issued) + n_instr(k) - done_upto[0] > MAXOUT): break
                issue(k); nxt += 1; budget -= n_instr(k)
            while ak not in slot or bk not in slot:
                k = order[nxt]; issue(k); nxt += 1
            need = max(j for j, k in enumerate(issued) if k in (ak, bk)) + 1
            if need > done_upto[0]:
                cnt = len(issued) - need
                assert cnt <= 15
                a('s_waitcnt lgkmcnt(%d)' % cnt); done_upto[0] = need
            acc = ACC + 4*i
            cin = v(acc,4) if i in started else '0'
            started.add(i)
            a('v_mfma_f32_16x16x32_bf16 %s, %s, %s, %s' % (v(acc,4), v(FR+4*slot[ak],4), v(FR+4*slot[bk],4), cin))
            for k in (ak, bk):
                if last[k] == n: free.append(slot[k])
    conv(0)
    a('s_branch L_convdone')
    a('L_conv1:')
    conv(1)
    a('L_convdone:')
    a('s_nop 7')
    for i in range(4):
        a('ds_write_b128 %s, %s offset:%d' % (v(vY), v(ACC+4*i,4), i*YTS))
    a('s_waitcnt lgkmcnt(0)')
    stamp(9)
    a('s_barrier')
    a('s_cmp_lg_u32 %s, 0' % s(sW))
    a('s_cbranch_scc1 L_end')
    a('s_cmp_lg_u32 s2, 0')
    a('s_cbranch_scc1 L_noep')
    a('v_mov_b32 %s, 0' % v(vT+10))
    a('v_mov_b32 %s, %s' % (v(vT+11), s(sTAG)))
    a('s_mov_b64 exec, 1')
    a('global_store_dword %s, %s, %s sc1' % (v(vT+10), v(vT+11), s(sWS,2)))
    a('s_mov_b64 exec, -1')
    a('L_noep:')
    read_idx()
    a('s_lshr_b32 %s, %s, 8' % (s(sT0), s(sIDX)))
    a('s_lshr_b32 %s, %s, 9' % (s(sT1), s(sIDX)))
    a('s_xor_b32 %s, %s, %s' % (s(sT0), s(sT0), s(sT1)))
    a('s_xor_b32 %s, %s, %s' % (s(sT0), s(sT0), s(sH)))
    a('s_bitcmp1_b32 %s, 0' % s(sT0))
    a('s_cbranch_scc1 L_end')
    a('s_setprio 3')
    F = vP
    par = vT+12
    a('v_and_b32 %s, 1, %s' % (v(par), v(vL)))
    a('s_lshr_b32 %s, %s, 2' % (s(sT0), s(sCH0)))
    a('s_mul_i32 %s, %s, 6144' % (s(sT0), s(sT0)))
    a('s_add_u32 %s, %s, %d' % (s(sT0), s(sT0), W_FP + 3072))
    a('v_lshl_add_u32 %s, %s, 4, %s' % (v(vFPA), v(vL), s(sT0)))
    a('s_lshl_b32 %s, %s, 10' % (s(sT0), s(sIDX)))
    a('s_lshl_b32 %s, %s, 1' % (s(sT2), s(sCH0)))
    a('s_add_u32 %s, %s, %s' % (s(sT0), s(sT0), s(sT2)))
    xo, xv = vT+13, vXF+8
    a('v_lshl_add_u32 %s, %s, 2, %s' % (v(xo), v(par), s(sT0)))
    a('global_load_dword %s, %s, %s' % (v(xv), v(xo), s(sX,2)))
    a('s_mul_i32 %s, %s, %d' % (s(sT1), s(sT1), YTS))
    a('s_bfe_u32 %s, %s, 0x20002' % (s(sT0), s(sIDX)))
    a('s_mul_i32 %s, %s, %d' % (s(sT0), s(sT0), YGS))
    a('s_add_u32 %s, %s, %s' % (s(sT1), s(sT1), s(sT0)))
    a('s_bfe_u32 %s, %s, 0x40004' % (s(sT0), s(sIDX)))
    a('s_lshl_b32 %s, %s, 4' % (s(sT0), s(sT0)))
    a('s_add_u32 %s, %s, %s' % (s(sT1), s(sT1), s(sT0)))
    a('s_and_b32 %s, %s, 3' % (s(sT0), s(sIDX)))
    a('s_lshl_b32 %s, %s, 2' % (s(sT0), s(sT0)))
    a('s_add_u32 %s, %s, %s' % (s(sT1), s(sT1), s(sT0)))
    a('s_add_u32 %s, %s, %d' % (s(sT1), s(sT1), YX))
    a('v_mul_u32_u24 %s, %d, %s' % (v(vT), 2*YCS, v(par)))
    a('v_add_u32 %s, %s, %s' % (v(vT), s(sT1), v(vT)))
    y0, y1, n0, n1, d0, d1 = vXF, vXF+1, vXF+2, vXF+3, vXF+4, vXF+5
    a('ds_read_b32 %s, %s' % (v(y0), v(vT)))
    a('ds_read_b32 %s, %s offset:%d' % (v(y1), v(vT), YCS))
    a('s_lshl_b32 %s, %s, 1' % (s(sT0), s(sIDX)))
    a('s_add_u32 %s, %s, %d' % (s(sT0), s(sT0), U + 480))
    a('v_mul_u32_u24 %s, %d, %s' % (v(vT+1), 2*US, v(par)))
    a('v_add_u32 %s, %s, %s' % (v(vT+1), s(sT0), v(vT+1)))
    a('ds_read_u16 %s, %s' % (v(n0), v(vT+1)))
    a('ds_read_u16 %s, %s offset:%d' % (v(n1), v(vT+1), US))
    a('v_cmp_eq_u32 vcc, 0, %s' % v(par))
    a('v_mov_b32 %s, %s' % (v(d0), s(sDS)))
    a('v_mov_b32 %s, %s' % (v(d1), s(sDS+1)))
    a('v_cndmask_b32 %s, %s, %s, vcc' % (v(d0), v(d1), v(d0)))
    a('v_and_b32 %s, %s, %s' % (v(d1), s(sHI), v(d0)))
    a('v_lshlrev_b32 %s, 16, %s' % (v(d0), v(d0)))
    a('s_and_b32 %s, %s, %s' % (s(sT0), s(sKEY), s(sHI)))
    a('s_xor_b32 %s, %s, 0x80000000' % (s(sT1), s(sT0)))
    a('s_xor_b32 %s, %s, %s' % (s(sT2), s(sT0), s(sHI)))
    a('s_bitcmp1_b32 %s, 31' % s(sT0))
    a('s_cselect_b32 %s, %s, %s' % (s(sT0), s(sT1), s(sT2)))
    sg = vXF+6
    a('v_mov_b32 %s, 0xbfb8aa3b' % v(vT+2))
    a('v_mul_f32 %s, %s, %s' % (v(sg), s(sT0), v(vT+2)))
    a('v_exp_f32 %s, %s' % (v(sg), v(sg)))
    a('v_add_f32 %s, 1.0, %s' % (v(sg), v(sg)))
    a('v_rcp_f32 %s, %s' % (v(sg), v(sg)))
    a('v_cvt_pk_bf16_f32 %s, %s, %s' % (v(sg), v(sg), v(sg)))
    a('v_and_b32 %s, %s, %s' % (v(sg), s(sHI), v(sg)))
    a('v_mov_b32 %s, 0' % v(F+20))
    a('v_mov_b32 %s, 0' % v(F+21))
    a('v_mov_b32 %s, %s' % (v(F+22), s(sTAG)))
    a('s_waitcnt lgkmcnt(0)')
    a('v_lshlrev_b32 %s, 16, %s' % (v(n0), v(n0)))
    a('v_lshlrev_b32 %s, 16, %s' % (v(n1), v(n1)))
    a('v_fma_f32 %s, %s, %s, %s' % (v(y0), v(n0), v(d0), v(y0)))
    a('v_fma_f32 %s, %s, %s, %s' % (v(y1), v(n1), v(d1), v(y1)))
    a('s_mov_b32 %s, %d' % (s(sCNT), o['spinmax']))
    a('L_ffnspin:')
    for i in range(5):
        a('global_load_dwordx4 %s, %s, %s offset:%d sc1' % (v(F+4*i,4), v(vFPA), s(sWS,2), i*1024 - 3072))
    a('s_mov_b64 exec, 0xffffff')
    a('global_load_dwordx4 %s, %s, %s offset:2048 sc1' % (v(F+20,4), v(vFPA), s(sWS,2)))
    a('s_mov_b64 exec, -1')
    a('s_waitcnt vmcnt(0)')
    for i in range(6): a('v_xor_b32 %s, %s, %s' % (v(vT+i), s(sTAG), v(F+4*i+2)))
    a('v_or3_b32 %s, %s, %s, %s' % (v(vT), v(vT), v(vT+1), v(vT+2)))
    a('v_or3_b32 %s, %s, %s, %s' % (v(vT+3), v(vT+3), v(vT+4), v(vT+5)))
    a('v_or_b32 %s, %s, %s' % (v(vT), v(vT), v(vT+3)))
    a('v_cmp_ne_u32 vcc, 0, %s' % v(vT))
    a('s_cbranch_vccz L_ffnok')
    a('s_sub_u32 %s, %s, 1' % (s(sCNT), s(sCNT)))
    a('s_cmp_lg_u32 %s, 0' % s(sCNT))
    a('s_cbranch_scc1 L_ffnspin')
    a('L_ffnok:')
    stamp(11)
    p0, p1 = F, F+1
    for e in range(2):
        a('v_add_f32 %s, %s, %s' % (v(F+e), v(F+e), v(F+4+e)))
        a('v_add_f32 %s, %s, %s' % (v(F+8+e), v(F+8+e), v(F+12+e)))
        a('v_add_f32 %s, %s, %s' % (v(F+16+e), v(F+16+e), v(F+20+e)))
    for e in range(2): a('v_add_f32 %s, %s, %s' % (v(F+e), v(F+e), v(F+8+e)))
    for e in range(2): a('v_add_f32 %s, %s, %s' % (v(F+e), v(F+e), v(F+16+e)))
    for m in (2,4,8):
        for e in range(2): a('v_add_f32_dpp %s, %s, %s row_ror:%d row_mask:0xf bank_mask:0xf' % (v(F+e), v(F+e), v(F+e), m))
    for pl in ('v_permlane16_swap_b32','v_permlane32_swap_b32'):
        for e in range(2): a('v_mov_b32 %s, %s' % (v(F+4+e), v(F+e)))
        for e in range(2): a('%s %s, %s' % (pl, v(F+e), v(F+4+e)))
        for e in range(2): a('v_add_f32 %s, %s, %s' % (v(F+e), v(F+e), v(F+4+e)))
    def rnd2(r0, r1, t):
        a('v_cvt_pk_bf16_f32 %s, %s, %s' % (v(t), v(r0), v(r1)))
        a('v_lshlrev_b32 %s, 16, %s' % (v(r0), v(t)))
        a('v_and_b32 %s, %s, %s' % (v(r1), s(sHI), v(t)))
    rnd2(p0, p1, vT)
    for e in range(2): a('v_mul_f32 %s, %s, %s' % (v(F+e), v(F+e), v(sg)))
    rnd2(p0, p1, vT)
    a('v_add_f32 %s, %s, %s' % (v(p0), v(p0), v(n0)))
    a('v_add_f32 %s, %s, %s' % (v(p1), v(p1), v(n1)))
    rnd2(p0, p1, vT)
    for e in range(2): a('v_mul_f32 %s, 0xbfb8aa3b, %s' % (v(F+4+e), v(F+e)))
    for e in range(2): a('v_exp_f32 %s, %s' % (v(F+4+e), v(F+4+e)))
    for e in range(2): a('v_add_f32 %s, 1.0, %s' % (v(F+4+e), v(F+4+e)))
    for e in range(2): a('v_rcp_f32 %s, %s' % (v(F+4+e), v(F+4+e)))
    a('v_lshlrev_b32 %s, 16, %s' % (v(vT+1), v(xv)))
    a('v_and_b32 %s, %s, %s' % (v(vT+2), s(sHI), v(xv)))
    for e in range(2): a('v_mul_f32 %s, %s, %s' % (v(F+e), v(F+e), v(F+4+e)))
    a('v_fma_f32 %s, %s, %s, %s' % (v(vT+1), v(y0), v(p0), v(vT+1)))
    a('v_fma_f32 %s, %s, %s, %s' % (v(vT+2), v(y1), v(p1), v(vT+2)))
    a('v_cvt_pk_bf16_f32 %s, %s, %s' % (v(vT), v(vT+1), v(vT+2)))
    a('s_mov_b64 exec, 3')
    a('global_store_dword %s, %s, %s' % (v(xo), v(vT), s(sOUT,2)))
    a('s_mov_b64 exec, -1')
    stamp(12)
    a('s_endpgm')

    a('L_helper:')
    read_idx()
    XS = vP
    a('s_cmp_eq_u32 %s, 0' % s(sPROD))
    a('s_cbranch_scc1 L_h_pre')
    a('s_lshl_b32 %s, %s, 10' % (s(sT0), s(sIDX)))
    a('v_add_u32 %s, %s, %s' % (v(vT), s(sT0), v(vCA)))
    a('s_lshr_b32 %s, %s, 2' % (s(sT0), s(sIDX)))
    a('s_lshl_b32 %s, %s, 4' % (s(sT0), s(sT0)))
    a('s_bfe_u32 %s, %s, 0x10001' % (s(sT1), s(sIDX)))
    a('s_lshl_b32 %s, %s, 13' % (s(sT1), s(sT1)))
    a('s_add_u32 %s, %s, %s' % (s(sT0), s(sT0), s(sT1)))
    a('s_and_b32 %s, %s, 1' % (s(sT1), s(sIDX)))
    a('s_lshl_b32 %s, %s, 2' % (s(sT1), s(sT1)))
    a('s_add_u32 %s, %s, %s' % (s(sT0), s(sT0), s(sT1)))
    a('s_add_u32 %s, %s, %d' % (s(sT0), s(sT0), W_ST))
    a('v_mov_b32 %s, %s' % (v(vT+1), s(sT0)))
    a('global_load_dwordx2 %s, %s, %s' % (v(XS,2), v(vT), s(sX,2)))
    a('global_load_dwordx2 %s, %s, %s offset:32' % (v(XS+2,2), v(vT), s(sX,2)))
    a('global_load_dword %s, %s, %s sc1' % (v(XS+4), v(vT+1), s(sWS,2)))
    if o['wlate']: wloads()
    a('L_h_pre:')
    Dv = [vT+10+c for c in range(4)]
    a('s_lshl_b32 %s, %s, 16' % (s(sT0), s(sDS)))
    a('v_mov_b32 %s, %s' % (v(Dv[0]), s(sT0)))
    a('s_and_b32 %s, %s, %s' % (s(sT0), s(sDS), s(sHI)))
    a('v_mov_b32 %s, %s' % (v(Dv[1]), s(sT0)))
    a('s_lshl_b32 %s, %s, 16' % (s(sT0), s(sDS+1)))
    a('v_mov_b32 %s, %s' % (v(Dv[2]), s(sT0)))
    a('s_and_b32 %s, %s, %s' % (s(sT0), s(sDS+1), s(sHI)))
    a('v_mov_b32 %s, %s' % (v(Dv[3]), s(sT0)))
    for c in range(4):
        for r in range(4):
            src = XP + 2*c + (r >> 1)
            if r & 1: a('v_and_b32 %s, %s, %s' % (v(vXN+4*r+c), s(sHI), v(src)))
            else:     a('v_lshlrev_b32 %s, 16, %s' % (v(vXN+4*r+c), v(src)))
        for r in range(4): a('v_mul_f32 %s, 0xbfb8aa3b, %s' % (v(vT+r), v(vXN+4*r+c)))
        for r in range(4): a('v_exp_f32 %s, %s' % (v(vT+r), v(vT+r)))
        for r in range(4):
            a('v_mul_f32 %s, %s, %s' % (v(vE+4*r+c), v(vXN+4*r+c), v(Dv[c])))
            a('v_add_f32 %s, 1.0, %s' % (v(vT+r), v(vT+r)))
        for r in range(4): a('v_rcp_f32 %s, %s' % (v(vT+r), v(vT+r)))
        for r in range(4): a('v_mul_f32 %s, %s, %s' % (v(vXN+4*r+c), v(vXN+4*r+c), v(vT+r)))
        for r in range(4): a('v_fma_f32 %s, %s, %s, %s' % (v(vE+4*r+c), v(vE+4*r+c), v(vXN+4*r+c), v(vXF+4*r+c)))
    for r in range(4):
        a('v_add_u32 %s, %d, %s' % (v(vT), r, v(vROW)))
        a('v_cmp_ne_u32 %s, %s, %s' % (s(sM+2*r,2), s(sIDX), v(vT)))
    stamp(9)
    a('s_cmp_eq_u32 %s, 0' % s(sPROD))
    a('s_cbranch_scc1 L_h_b5')
    WF = vP + 8; DD = vP + 24; XA = vP + 40; WDF = vP + 48
    a('s_waitcnt vmcnt(0)')
    for sp in range(4):
        a('ds_read_b64_tr_b16 %s, %s offset:%d' % (v(WF+4*sp,2), v(vWT), 512*sp))
        a('ds_read_b64_tr_b16 %s, %s offset:%d' % (v(WF+4*sp+2,2), v(vWT), 512*sp + 256))
    a('v_and_b32 %s, %s, %s' % (v(vT), s(sHI), v(XS+4)))
    a('v_lshlrev_b32 %s, 16, %s' % (v(vT+1), v(XS+4)))
    a('v_rcp_f32 %s, %s' % (v(vT), v(vT)))
    for i in range(4):
        a('v_lshlrev_b32 %s, 16, %s' % (v(vT+2+2*i), v(XS+i)))
        a('v_and_b32 %s, %s, %s' % (v(vT+3+2*i), s(sHI), v(XS+i)))
    a('v_mul_f32_e64 %s, -%s, %s' % (v(vT+1), v(vT+1), v(vT)))
    for i in range(8): a('v_fma_f32 %s, %s, %s, %s' % (v(vT+2+i), v(vT+2+i), v(vT), v(vT+1)))
    for i in range(4): a('v_cvt_pk_bf16_f32 %s, %s, %s' % (v(XA+i), v(vT+2+2*i), v(vT+3+2*i)))
    a('s_waitcnt lgkmcnt(0)')
    for sp in range(4):
        a('v_mfma_f32_16x16x32_bf16 %s, %s, %s, 0' % (v(DD+4*sp,4), v(XA,4), v(WF+4*sp,4)))
    for i in range(8):
        a('v_lshlrev_b32 %s, 16, %s' % (v(WDF+2*i), v(vWD+i)))
        a('v_and_b32 %s, %s, %s' % (v(WDF+2*i+1), s(sHI), v(vWD+i)))
    a('v_add_f32 %s, %s, %s' % (v(vT), v(DD), v(DD+5)))
    a('v_add_f32 %s, %s, %s' % (v(vT+1), v(DD+10), v(DD+15)))
    a('v_mov_b32 %s, 1' % v(vT+2))
    a('v_add_f32 %s, %s, %s' % (v(vT), v(vT), v(vT+1)))
    a('ds_write_b32 %s, %s' % (v(vCB), v(vT)))
    a('s_mov_b64 exec, 1')
    a('ds_write_b32 %s, %s' % (v(vTW2), v(vT+2)))
    a('s_mov_b64 exec, -1')
    a('s_mov_b32 %s, %d' % (s(sCNT), o['spinmax']))
    a('L_hspin:')
    a('ds_read_b128 %s, %s' % (v(vT+4,4), v(vTW3)))
    for i in range(4): a('ds_read_b32 %s, %s offset:%d' % (v(vT+i), v(vTW1), i*320))
    a('s_waitcnt lgkmcnt(0)')
    a('v_and_b32 %s, %s, %s' % (v(vT+4), v(vT+4), v(vT+5)))
    a('v_and_b32 %s, %s, %s' % (v(vT+6), v(vT+6), v(vT+7)))
    a('v_and_b32 %s, %s, %s' % (v(vT+4), v(vT+4), v(vT+6)))
    a('v_cmp_eq_u32 vcc, 0, %s' % v(vT+4))
    a('s_cbranch_vccz L_hok')
    a('s_sub_u32 %s, %s, 1' % (s(sCNT), s(sCNT)))
    a('s_cmp_lg_u32 %s, 0' % s(sCNT))
    a('s_cbranch_scc1 L_hspin')
    a('L_hok:')
    a('v_add_f32 %s, %s, %s' % (v(vT), v(vT), v(vT+1)))
    a('v_add_f32 %s, %s, %s' % (v(vT+2), v(vT+2), v(vT+3)))
    a('v_add_f32 %s, %s, %s' % (v(vT), v(vT), v(vT+2)))
    a('v_cvt_pk_bf16_f32 %s, %s, %s' % (v(vT), v(vT), v(vT)))
    a('v_and_b32 %s, %s, %s' % (v(vT), s(sHI), v(vT)))
    a('v_mul_f32 %s, 0xbfb8aa3b, %s' % (v(vT+1), v(vT)))
    a('v_exp_f32 %s, %s' % (v(vT+1), v(vT+1)))
    a('v_mov_b32_dpp %s, %s row_ror:8 row_mask:0xf bank_mask:0xf' % (v(vT+2), v(vT)))
    a('v_add_f32 %s, 1.0, %s' % (v(vT+1), v(vT+1)))
    a('v_rcp_f32 %s, %s' % (v(vT+1), v(vT+1)))
    a('v_mul_f32 %s, %s, %s' % (v(vT+1), v(vT), v(vT+1)))
    a('v_cvt_pk_bf16_f32 %s, %s, %s' % (v(vT+1), v(vT+1), v(vT+1)))
    a('v_and_b32 %s, %s, %s' % (v(vT+1), s(sHI), v(vT+1)))
    a('v_mul_f32 %s, %s, %s' % (v(vT+1), v(vT+1), v(vT+2)))
    a('v_cvt_pk_bf16_f32 %s, %s, %s' % (v(vT+1), v(vT+1), v(vT+1)))
    a('v_and_b32 %s, %s, %s' % (v(vT+1), s(sHI), v(vT+1)))
    for i in range(8): a('v_readlane_b32 %s, %s, %d' % (s(sH8+i), v(vT+1), i))
    gq = vT+4
    a('v_mov_b32 %s, %s' % (v(gq+2), s(sTAG)))
    a('v_mov_b32 %s, 0' % v(gq+3))
    for i in range(8):
        for e in range(2):
            if i == 0: a('v_mul_f32 %s, %s, %s' % (v(gq+e), s(sH8), v(WDF+e)))
            else: a('v_fmac_f32 %s, %s, %s' % (v(gq+e), s(sH8+i), v(WDF+2*i+e)))
    a('global_store_dwordx4 %s, %s, %s sc1' % (v(vFPA), v(gq,4), s(sWS,2)))
    stamp(10)
    a('L_h_b5:')
    a('s_barrier')
    YR = vP
    for c in range(4): a('ds_read_b128 %s, %s offset:%d' % (v(YR+4*c,4), v(vY), c*YCS))
    a('s_waitcnt lgkmcnt(0)')
    for r in range(4):
        for c in range(4):
            a('v_fma_f32 %s, %s, %s, %s' % (v(vE+4*r+c), v(YR+4*c+r), v(vXN+4*r+c), v(vE+4*r+c)))
        a('v_cvt_pk_bf16_f32 %s, %s, %s' % (v(vD+2*r), v(vE+4*r), v(vE+4*r+1)))
        a('v_cvt_pk_bf16_f32 %s, %s, %s' % (v(vD+2*r+1), v(vE+4*r+2), v(vE+4*r+3)))
        a('s_mov_b64 exec, %s' % s(sM+2*r,2))
        a('global_store_dwordx2 %s, %s, %s offset:%d' % (v(vXG), v(vD+2*r,2), s(sOUT,2), r*1024))
        a('s_mov_b64 exec, -1')
    if o['stamp'] or o['diag'] >= 0 or o['diagclk']:
        stamp(11)
        a('s_waitcnt vmcnt(0)')
        stamp(12)
    if o['diag'] >= 0:
        a('s_memrealtime s[90:91]')
        a('s_sub_u32 s88, s88, s86')
        a('s_lshl_b32 s88, s88, 2')
        a('s_waitcnt lgkmcnt(0)')
        a('s_add_u32 s88, s88, s90')
        a('L_diag:')
        a('s_memrealtime s[90:91]')
        a('s_waitcnt lgkmcnt(0)')
        a('s_sub_u32 s90, s90, s88')
        a('s_cmp_lt_i32 s90, 0')
        a('s_cbranch_scc1 L_diag')
    if o['diagclk']:
        a('s_memtime s[88:89]')
        a('s_waitcnt lgkmcnt(0)')
        a('s_add_u32 s88, s88, %d' % o['diagclk'])
        a('L_diag:')
        a('s_memtime s[90:91]')
        a('s_waitcnt lgkmcnt(0)')
        a('s_sub_u32 s90, s90, s88')
        a('s_cmp_lt_i32 s90, 0')
        a('s_cbranch_scc1 L_diag')
    a('L_end:')
    a('s_endpgm')
    a.raw('''.section .rodata,"a"
.p2align 6
.amdhsa_kernel %s_kernel
  .amdhsa_next_free_vgpr 256
  .amdhsa_next_free_sgpr 96
  .amdhsa_accum_offset 256
  .amdhsa_group_segment_fixed_size 0
  .amdhsa_kernarg_size 136
  .amdhsa_user_sgpr_count 2
  .amdhsa_user_sgpr_kernarg_segment_ptr 1
  .amdhsa_system_sgpr_workgroup_id_x 1
.end_amdhsa_kernel''' % KN)
    return a.text()

if __name__ == '__main__':
    out = sys.argv[1]
    opt = {}
    for kv in sys.argv[2:]:
        k, val = kv.split('='); opt[k] = int(val, 0)
    open(out, 'w').write(generate(**opt))
```

```python
import sys
from asmlib import *

KN = 'recurrent_scan__ssm_conv_s4__moe_arch_mod__prompt'

DEFAULTS = dict(stamp=0, wlate=1, force_slow=0, prefetch=1, spinmax=1<<16, dump=0, diag=-1, diagclk=0, cyc=0, nohelp=0, diagk=-1, maxout=15, group=3, minfly=6)

RS    = 2064
STAGE = 0
R4    = 0;      R4S = 18560; CAS = 288
YX    = 74240;  YCS = 5120; YTS = 1280; YGS = 320
U     = 109440; US = 4576
TAB   = 127744; TS = 1552
WL    = 133952; WL1 = 8320
SL    = 150528
AM    = 158720
FF    = 158752
FP    = 158784
LDS_BYTES = 159808
W_EP = 0; W_ST = 0x1000; W_FL = 0x6000; W_FP = 0x10000; W_IN = 0x100000; W_STAMP = 0x800000; W_DUMP = 0x1000000

sX, sARE, sAIM, sBRE, sBIM, sCRE, sCIM, sLDT = 4, 6, 8, 10, 12, 14, 16, 18
sDSK, sWR, sWG, sWU, sWD, sOUT, sDBG, sWS = 20, 24, 26, 28, 30, 32, 34, 36
sW, sK, sJ, sCGL, sH, sCH0, sT, sXCC, sTAG, sTAGX = 38, 39, 40, 41, 42, 43, 44, 45, 46, 47
sLD, sDS = 48, 50
sONES, sF8, sPROD, sIDX, sKEY, sCNT = 52, 53, 54, 55, 56, 57
sT0, sT1, sT2, sT3 = 58, 59, 60, 61
sM = 64
sH8 = 72
sHI = 80
sSTP = 82
sWI = 84

vTID, vL = 0, 1
vGA = 2
vSEL = 10
vR4W, vUW, vST0, vST1, vFL, vIN, vXG, vXC = 16, 17, 18, 19, 20, 21, 22, 23
vKA, vKB, vTW1, vTW2, vTW3, vTW4 = 24, 25, 26, 27, 28, 29
vCA, vCB, vY = 30, 31, 32
vCA2 = 33
vWT, vWDA, vFPA, vEP, vPF, vROW, vSTA = 33, 34, 35, 36, 37, 38, 39
vD = 40
vG = 48
vXF = 56
vXN = 72
vE = 88
vP = 104
vWD = 232
vT = 240

def cmul(a, d, x, y):
    a('v_pk_mul_f32 %s, %s, %s op_sel:[1,1] op_sel_hi:[1,0]' % (v(d,2), v(x,2), v(y,2)))
    a('v_pk_fma_f32 %s, %s, %s, %s op_sel:[0,0,0] op_sel_hi:[0,1,1] neg_lo:[0,0,1]' % (v(d,2), v(x,2), v(y,2), v(d,2)))

def tiles(h): return [2*i + ((i ^ h) & 1) for i in range(4)]

def generate(**opt):
    o = dict(DEFAULTS); o.update(opt)
    a = Asm()
    nstamp = [0]
    def stamp(i):
        if o['diag'] == i:
            a('s_memrealtime s[88:89]')
            a('s_waitcnt lgkmcnt(0)')
        if not o['stamp']: return
        a('%s %s' % ('s_memtime' if o['cyc'] else 's_memrealtime', s(sSTP,2)))
        a('s_waitcnt lgkmcnt(0)')
        a('s_mov_b32 s%d, %s' % (86+i, s(sSTP)))
    SV = 0
    def vm(n):
        a('s_waitcnt vmcnt(%d)' % (0 if SV else n))

    a.raw('; @launch grid=(256,1,1) block=(512,1,1) lds=%d' % LDS_BYTES)
    a.raw('.amdgcn_target "amdgcn-amd-amdhsa--gfx950"\n.text\n.globl %s_kernel\n.p2align 8\n.type %s_kernel,@function\n%s_kernel:' % (KN,KN,KN))
    a('''
    s_cmp_ge_u32 s2, 256
    s_cbranch_scc1 L_end
    s_load_dwordx16 s[4:19], s[0:1], 0
    s_load_dwordx16 s[20:35], s[0:1], 64
    s_load_dwordx2 s[36:37], s[0:1], 128
    ''')
    if o['diag'] >= 0: a('s_memrealtime s[86:87]')
    if o['stamp']: a('%s s[100:101]' % ('s_memtime' if o['cyc'] else 's_memrealtime'))
    a('v_lshrrev_b32 %s, 6, v0' % v(vT))
    a('v_and_b32 %s, 63, v0' % v(vL))
    a('v_readfirstlane_b32 %s, %s' % (s(sW), v(vT)))
    a('s_and_b32 %s, s2, 7' % s(sK))
    a('s_lshr_b32 %s, s2, 3' % s(sJ))
    a('s_and_b32 %s, %s, 15' % (s(sCGL), s(sJ)))
    a('s_lshr_b32 %s, %s, 4' % (s(sH), s(sJ)))
    a('s_lshl_b32 %s, %s, 6' % (s(sCH0), s(sK)))
    a('s_lshl_b32 %s, %s, 2' % (s(sT0), s(sCGL)))
    a('s_add_u32 %s, %s, %s' % (s(sCH0), s(sCH0), s(sT0)))
    a('s_and_b32 %s, %s, 3' % (s(sWI), s(sW)))
    for i in range(6): a('v_mov_b32 %s, 0' % v(vP+i))
    a('s_lshl_b32 %s, %s, 8' % (s(sT0), s(sCH0)))
    a('v_lshl_add_u32 %s, v0, 1, %s' % (v(vT+1), s(sT0)))
    a('v_mov_b32 %s, 0' % v(vT+2))
    if o['stamp']:
        a('s_lshl_b32 %s, s2, 3' % s(sT1))
        a('s_add_u32 %s, %s, %s' % (s(sT1), s(sT1), s(sW)))
        a('s_lshl_b32 %s, %s, 8' % (s(sT1), s(sT1)))
        a('s_add_u32 %s, %s, %d' % (s(sT1), s(sT1), W_STAMP))
        a('v_lshl_add_u32 %s, %s, 2, %s' % (v(vSTA), v(vL), s(sT1)))
        for i in range(14): a('s_mov_b32 s%d, 0' % (86+i))
    a('s_cmp_ge_u32 %s, 4' % s(sW))
    a('s_cbranch_scc1 L_h_load')
    a('s_lshl_b32 %s, %s, 16' % (s(sT0), s(sJ)))
    a('s_lshl_b32 %s, %s, 14' % (s(sT1), s(sW)))
    a('s_add_u32 %s, %s, %s' % (s(sT0), s(sT0), s(sT1)))
    a('s_lshl_b32 %s, %s, 7' % (s(sT1), s(sK)))
    a('s_add_u32 %s, %s, %s' % (s(sT0), s(sT0), s(sT1)))
    a('v_lshrrev_b32 %s, 3, %s' % (v(vT+3), v(vL)))
    a('v_and_b32 %s, 7, %s' % (v(vT+4), v(vL)))
    a('v_lshlrev_b32 %s, 10, %s' % (v(vT+3), v(vT+3)))
    a('v_lshl_add_u32 %s, %s, 4, %s' % (v(vT+3), v(vT+4), v(vT+3)))
    a('v_add_u32 %s, %s, %s' % (v(vT+3), s(sT0), v(vT+3)))
    a('v_add_u32 %s, 8192, %s' % (v(vT+4), v(vT+3)))
    a('s_waitcnt lgkmcnt(0)')
    if o['stamp']: a('s_mov_b32 s99, s100')
    stamp(0)
    a('global_load_dwordx4 %s, %s, %s' % (v(vD,4), v(vT+3), s(sX,2)))
    a('global_load_dwordx4 %s, %s, %s' % (v(vD+4,4), v(vT+4), s(sX,2)))
    a('s_branch L_param_load')
    a('L_h_load:')
    a('s_lshl_b32 %s, s2, 13' % s(sT0))
    a('s_lshl_b32 %s, %s, 11' % (s(sT1), s(sWI)))
    a('s_add_u32 %s, %s, %s' % (s(sT0), s(sT0), s(sT1)))
    a('v_and_b32 %s, 31, %s' % (v(vT+3), v(vL)))
    a('v_lshlrev_b32 %s, 4, %s' % (v(vT+3), v(vT+3)))
    a('v_lshrrev_b32 %s, 5, %s' % (v(vT+4), v(vL)))
    a('v_lshl_add_u32 %s, %s, 10, %s' % (v(vT+4), v(vT+4), v(vT+3)))
    a('v_add_u32 %s, %s, %s' % (v(vT+4), s(sT0), v(vT+4)))
    a('s_setprio 2')
    a('s_waitcnt lgkmcnt(0)')
    if o['stamp']: a('s_mov_b32 s99, s100')
    stamp(0)
    a('global_load_dwordx4 %s, %s, %s' % (v(vG,4), v(vT+3), s(sWR,2)))
    a('global_load_dwordx4 %s, %s, %s offset:512' % (v(vG+4,4), v(vT+3), s(sWR,2)))
    a('global_load_dwordx4 %s, %s, %s' % (v(vD,4), v(vT+4), s(sX,2)))
    a('global_load_dwordx4 %s, %s, %s offset:512' % (v(vD+4,4), v(vT+4), s(sX,2)))
    a('L_param_load:')
    for i, p in enumerate((sARE, sAIM, sBRE, sBIM, sCRE, sCIM)):
        a('global_load_short_d16_hi %s, %s, %s' % (v(vP+i), v(vT+1), s(p,2)))
    a('global_load_dword %s, %s, %s sc1' % (v(vEP), v(vT+2), s(sWS,2)))
    a('s_lshl_b32 %s, %s, 1' % (s(sT0), s(sCH0)))
    a('s_load_dwordx2 %s, %s, %s' % (s(sLD,2), s(sLDT,2), s(sT0)))
    a('s_load_dwordx2 %s, %s, %s' % (s(sDS,2), s(sDSK,2), s(sT0)))
    a('s_getreg_b32 %s, hwreg(HW_REG_XCC_ID, 0, 4)' % s(sXCC))
    a('s_mov_b32 %s, 0x3f803f80' % s(sONES))
    a('s_mov_b32 %s, 0xffff0000' % s(sHI))
    a('s_lshr_b32 %s, %s, 2' % (s(sT0), s(sW)))
    a('s_xor_b32 %s, %s, %s' % (s(sT0), s(sT0), s(sWI)))
    a('s_xor_b32 %s, %s, %s' % (s(sT0), s(sT0), s(sH)))
    a('s_xor_b32 %s, %s, 1' % (s(sT0), s(sT0)))
    a('s_and_b32 %s, %s, 1' % (s(sT0), s(sT0)))
    a('s_lshl_b32 %s, %s, 1' % (s(sT), s(sWI)))
    a('s_add_u32 %s, %s, %s' % (s(sT), s(sT), s(sT0)))
    a('s_lshr_b32 %s, %s, 3' % (s(sT0), s(sJ)))
    a('s_lshl_b32 %s, %s, 3' % (s(sT0), s(sT0)))
    a('s_add_u32 %s, %s, %s' % (s(sT0), s(sT0), s(sK)))
    a('s_lshl_b32 %s, %s, 3' % (s(sT0), s(sT0)))
    a('s_and_b32 %s, %s, 7' % (s(sT1), s(sJ)))
    a('s_add_u32 %s, %s, %s' % (s(sF8), s(sT0), s(sT1)))
    a('s_cmp_lt_u32 %s, 172' % s(sF8))
    a('s_cselect_b32 %s, 1, 0' % s(sPROD))

    a('v_mov_b32 %s, 0' % v(vT))
    a('v_mov_b32 %s, 0x3f80' % v(vT+1))
    a('s_lshl_b32 %s, %s, 8' % (s(sT0), s(sW)))
    a('s_mov_b32 m0, %s' % s(sT0))
    a('ds_write_addtid_b32 %s offset:%d' % (v(vT+1), STAGE))
    a('v_and_b32 %s, 127, v0' % v(vT+2))
    a('v_min_u32 %s, 119, %s' % (v(vT+2), v(vT+2)))
    a('v_lshrrev_b32 %s, 7, v0' % v(vT+3))
    a('v_mul_u32_u24 %s, %d, %s' % (v(vT+4), US, v(vT+3)))
    a('v_lshl_add_u32 %s, %s, 2, %s' % (v(vT+4), v(vT+2), v(vT+4)))
    a('v_add_u32 %s, %d, %s' % (v(vT+4), U, v(vT+4)))
    a('ds_write_b32 %s, %s' % (v(vT+4), v(vT)))
    a('v_mul_u32_u24 %s, %d, %s' % (v(vT+4), TS, v(vT+3)))
    a('v_and_b32 %s, 1, v0' % v(vT+2))
    a('v_lshl_add_u32 %s, %s, 2, %s' % (v(vT+4), v(vT+2), v(vT+4)))
    a('v_add_u32 %s, %d, %s' % (v(vT+4), TAB, v(vT+4)))
    a('ds_write_b32 %s, %s' % (v(vT+4), v(vT)))
    a('v_and_b32 %s, 3, v0' % v(vT+2))
    a('v_lshlrev_b32 %s, 2, %s' % (v(vT+2), v(vT+2)))
    a('v_add_u32 %s, %d, %s' % (v(vT+2), FF, v(vT+2)))
    a('ds_write_b32 %s, %s' % (v(vT+2), v(vT)))

    pos = [vXF+i for i in range(7)]
    a('v_lshlrev_b32 %s, 2, v0' % v(vT))
    for i in range(7):
        a('v_add_u32 %s, %d, %s' % (v(pos[i]), i+1, v(vT)))
    a('s_cmp_eq_u32 %s, 0' % s(sW))
    a('s_cbranch_scc1 L_pos_done')
    for i in range(7):
        a('v_add_u32 %s, -4, %s' % (v(pos[i]), v(pos[i])))
        a('v_cvt_f32_u32 %s, %s' % (v(pos[i]), v(pos[i])))
    for i in range(7):
        a('v_cvt_pk_bf16_f32 %s, %s, %s' % (v(pos[i]), v(pos[i]), v(pos[i])))
    for i in range(7):
        a('v_lshrrev_b32 %s, 16, %s' % (v(pos[i]), v(pos[i])))
        a('v_add_u32 %s, %d, %s' % (v(pos[i]), 4 - 0x4280, v(pos[i])))
    a('L_pos_done:')
    b1, b2 = vT+1, vT+2
    a('v_and_b32 %s, -2, %s' % (v(b1), v(pos[2])))
    a('v_add_u32 %s, -2, %s' % (v(b1), v(b1)))
    a('v_and_b32 %s, -2, %s' % (v(b2), v(pos[3])))
    for c in range(4):
        a('v_lshlrev_b32 %s, 1, %s' % (v(vGA+2*c), v(b1)))
        a('v_lshlrev_b32 %s, 1, %s' % (v(vGA+2*c+1), v(b2)))
        a('v_add_u32 %s, %d, %s' % (v(vGA+2*c), TAB + c*TS, v(vGA+2*c)))
        a('v_add_u32 %s, %d, %s' % (v(vGA+2*c+1), TAB + c*TS, v(vGA+2*c+1)))
    for i in range(3): a('v_sub_u32 %s, %s, %s' % (v(pos[i]), v(pos[i]), v(b1)))
    for i in range(3,7): a('v_sub_u32 %s, %s, %s' % (v(pos[i]), v(pos[i]), v(b2)))
    a('s_mov_b32 %s, 0x0202' % s(sT0))
    a('s_mov_b32 %s, 0x02020000' % s(sT1))
    a('v_mov_b32 %s, 0x01000100' % v(vT+3))
    def sel(dst, lo, hi, lo_add=0, hi_add=0):
        a('v_mad_u32_u24 %s, %s, %s, %s' % (v(dst), v(lo), s(sT0), v(vT+3)))
        a('v_mul_lo_u32 %s, %s, %s' % (v(vT+4), v(hi), s(sT1)))
        a('v_add_u32 %s, %s, %s' % (v(dst), v(dst), v(vT+4)))
        k = (lo_add*0x0202 + hi_add*0x02020000) & 0xffffffff
        if k: a('v_add_u32 %s, 0x%x, %s' % (v(dst), k, v(dst)))
    sel(vSEL+0, pos[1], pos[0])
    sel(vSEL+1, pos[2], pos[1])
    sel(vSEL+2, pos[3], pos[2], 2, -2)
    sel(vSEL+3, pos[4], pos[3])
    sel(vSEL+4, pos[5], pos[4])
    sel(vSEL+5, pos[6], pos[5])
    a('v_lshrrev_b32 %s, 2, v0' % v(vT))
    a('v_lshlrev_b32 %s, 4, %s' % (v(vT), v(vT)))
    a('v_lshl_add_u32 %s, v0, 5, %s' % (v(vR4W), v(vT)))
    a('v_add_u32 %s, %d, %s' % (v(vR4W), R4 + 144, v(vR4W)))
    a('s_lshl_b32 %s, %s, 6' % (s(sT0), s(sT)))
    a('v_add_u32 %s, %s, %s' % (v(vT), s(sT0), v(vL)))
    a('v_lshlrev_b32 %s, 2, %s' % (v(vROW), v(vT)))
    a('v_lshlrev_b32 %s, 3, %s' % (v(vUW), v(vT)))
    a('v_add_u32 %s, %d, %s' % (v(vUW), U + 480, v(vUW)))
    a('v_lshlrev_b32 %s, 4, %s' % (v(vST0), v(vT)))
    a('v_add_u32 %s, %d, %s' % (v(vST1), W_ST + 8192, v(vST0)))
    a('v_add_u32 %s, %d, %s' % (v(vST0), W_ST, v(vST0)))
    a('s_lshl_b32 %s, %s, 1' % (s(sT0), s(sCH0)))
    a('v_lshlrev_b32 %s, 12, %s' % (v(vXG), v(vT)))
    a('v_add_u32 %s, %s, %s' % (v(vXG), s(sT0), v(vXG)))
    a('v_lshrrev_b32 %s, 2, %s' % (v(vT+1), v(vT)))
    a('s_lshl_b32 %s, %s, 9' % (s(sT0), s(sK)))
    a('s_add_u32 %s, %s, %d' % (s(sT0), s(sT0), W_FL))
    a('v_lshl_add_u32 %s, %s, 2, %s' % (v(vFL), v(vT+1), s(sT0)))
    a('s_lshl_b32 %s, %s, 18' % (s(sT0), s(sK)))
    a('s_lshl_b32 %s, %s, 14' % (s(sT1), s(sCGL)))
    a('s_add_u32 %s, %s, %s' % (s(sT0), s(sT0), s(sT1)))
    a('s_add_u32 %s, %s, %d' % (s(sT2), s(sT0), W_IN))
    a('v_and_b32 %s, 3, %s' % (v(vT+2), v(vL)))
    a('v_lshlrev_b32 %s, 4, %s' % (v(vT+2), v(vT+2)))
    a('v_lshl_add_u32 %s, %s, 7, %s' % (v(vIN), v(vT+1), v(vT+2)))
    a('v_add_u32 %s, %s, %s' % (v(vIN), s(sT2), v(vIN)))
    a('v_lshrrev_b32 %s, 4, %s' % (v(vT+1), v(vT)))
    a('s_lshl_b32 %s, %s, 5' % (s(sT0), s(sK)))
    a('s_add_u32 %s, %s, %d' % (s(sT0), s(sT0), W_ST + 12))
    a('v_lshl_add_u32 %s, %s, 8, %s' % (v(vXC), v(vT+1), s(sT0)))
    a('v_and_b32 %s, 15, %s' % (v(vT+5), v(vL)))
    a('v_lshrrev_b32 %s, 4, %s' % (v(vT+6), v(vL)))
    a('s_cmp_ge_u32 %s, 4' % s(sW))
    a('s_cbranch_scc1 L_h_setup')

    a('v_and_b32 %s, 31, %s' % (v(vT), v(vL)))
    a('v_lshrrev_b32 %s, 5, %s' % (v(vT+1), v(vL)))
    a('s_lshl_b32 %s, %s, 9' % (s(sT0), s(sW)))
    a('v_lshl_add_u32 %s, %s, 4, %s' % (v(vT+2), v(vT+1), s(sT0)))
    a('s_movk_i32 %s, %d' % (s(sT1), RS))
    a('v_mad_u32_u24 %s, %s, %s, %s' % (v(vKB), v(vT), s(sT1), v(vT+2)))
    a('v_add_u32 %s, -16, %s' % (v(vT+3), v(vT)))
    a('v_cmp_lt_u32 vcc, 20, %s' % v(vT))
    a('v_cndmask_b32 %s, %s, %s, vcc' % (v(vT+3), v(vT), v(vT+3)))
    a('v_mad_u32_u24 %s, %s, %s, %s' % (v(vKA), v(vT+3), s(sT1), v(vT+2)))
    a('v_add_u32 %s, %d, %s' % (v(vKA), STAGE + 32*RS, v(vKA)))
    a('s_mul_i32 %s, %s, %d' % (s(sT0), s(sW), TS))
    a('s_add_u32 %s, %s, %d' % (s(sT0), s(sT0), TAB + 8))
    a('v_lshlrev_b32 %s, 4, %s' % (v(vTW1), v(vT)))
    a('v_lshl_add_u32 %s, %s, 3, %s' % (v(vTW1), v(vT+1), v(vTW1)))
    a('v_add_u32 %s, %s, %s' % (v(vTW1), s(sT0), v(vTW1)))
    a('v_cmp_eq_u32 vcc, 0, %s' % v(vT+1))
    a('v_lshlrev_b32 %s, 3, %s' % (v(vT+3), v(vT)))
    a('v_add_u32 %s, 512, %s' % (v(vT+3), v(vT+3)))
    a('v_lshlrev_b32 %s, 2, %s' % (v(vT+4), v(vT)))
    a('v_add_u32 %s, 768, %s' % (v(vT+4), v(vT+4)))
    a('v_cndmask_b32 %s, %s, %s, vcc' % (v(vTW2), v(vT+4), v(vT+3)))
    a('v_add_u32 %s, %s, %s' % (v(vTW2), s(sT0), v(vTW2)))
    a('v_mul_u32_u24 %s, 124, %s' % (v(vT+3), v(vT+1)))
    a('v_add3_u32 %s, %s, %s, 4' % (v(vTW3), v(vTW2), v(vT+3)))
    a('v_lshlrev_b32 %s, 1, %s' % (v(vTW4), v(vT)))
    a('v_lshl_add_u32 %s, %s, 8, %s' % (v(vTW4), v(vT+1), v(vTW4)))
    a('s_add_u32 %s, %s, 1024' % (s(sT0), s(sT0)))
    a('v_add_u32 %s, %s, %s' % (v(vTW4), s(sT0), v(vTW4)))
    a('s_mul_i32 %s, %s, %d' % (s(sT0), s(sW), R4S))
    a('s_add_u32 %s, %s, %d' % (s(sT0), s(sT0), R4))
    a('v_lshlrev_b32 %s, 3, %s' % (v(vT+3), v(vT+6)))
    a('v_sub_u32 %s, %s, %s' % (v(vT+3), v(vT+5), v(vT+3)))
    for reg, k in ((vCA, 32), (vCA2, 28)):
        a('v_add_u32 %s, %d, %s' % (v(vT+4), k, v(vT+3)))
        a('v_lshrrev_b32 %s, 4, %s' % (v(vT+7), v(vT+4)))
        a('v_lshl_add_u32 %s, %s, 3, %s' % (v(reg), v(vT+4), s(sT0)))
        a('v_lshl_add_u32 %s, %s, 4, %s' % (v(reg), v(vT+7), v(reg)))
    a('s_mul_i32 %s, %s, %d' % (s(sT0), s(sW), US))
    a('s_add_u32 %s, %s, %d' % (s(sT0), s(sT0), U))
    a('v_lshlrev_b32 %s, 4, %s' % (v(vT+3), v(vT+6)))
    a('v_lshl_add_u32 %s, %s, 5, %s' % (v(vT+3), v(vT+5), v(vT+3)))
    a('v_add_u32 %s, %s, %s' % (v(vCB), s(sT0), v(vT+3)))
    a('s_mul_i32 %s, %s, %d' % (s(sT0), s(sW), YCS))
    a('s_add_u32 %s, %s, %d' % (s(sT0), s(sT0), YX))
    a('v_mul_u32_u24 %s, %d, %s' % (v(vT+3), YGS, v(vT+6)))
    a('v_lshl_add_u32 %s, %s, 4, %s' % (v(vT+3), v(vT+5), v(vT+3)))
    a('v_add_u32 %s, %s, %s' % (v(vY), s(sT0), v(vT+3)))
    slw, slr, ina = vXN, vXN+1, vXN+4
    a('s_lshl_b32 %s, %s, 11' % (s(sT0), s(sW)))
    a('s_add_u32 %s, %s, %d' % (s(sT0), s(sT0), SL))
    a('v_lshrrev_b32 %s, 3, %s' % (v(vT), v(vL)))
    a('v_and_b32 %s, 7, %s' % (v(vT+1), v(vL)))
    a('v_lshrrev_b32 %s, 1, %s' % (v(vT+2), v(vT)))
    a('v_xor_b32 %s, %s, %s' % (v(vT+2), v(vT+2), v(vT+1)))
    a('v_lshlrev_b32 %s, 4, %s' % (v(vT+2), v(vT+2)))
    a('v_lshl_add_u32 %s, %s, 7, %s' % (v(vT+2), v(vT), v(vT+2)))
    a('v_add_u32 %s, %s, %s' % (v(slw), s(sT0), v(vT+2)))
    a('v_xor_b32 %s, 64, %s' % (v(slw+5), v(slw)))
    a('v_and_b32 %s, 3, %s' % (v(vT+2), v(vL)))
    a('v_bfe_u32 %s, %s, 2, 1' % (v(vT+3), v(vL)))
    a('v_lshl_add_u32 %s, %s, 1, %s' % (v(vT+2), v(vT+2), v(vT+3)))
    a('v_lshrrev_b32 %s, 1, %s' % (v(vT+3), v(vT)))
    a('v_xor_b32 %s, %s, %s' % (v(vT+3), v(vT+3), v(vT+2)))
    a('v_lshlrev_b32 %s, 4, %s' % (v(vT+3), v(vT+3)))
    a('v_lshl_add_u32 %s, %s, 8, %s' % (v(vT+3), v(vT+2), v(vT+3)))
    a('v_and_b32 %s, 1, %s' % (v(vT+4), v(vT)))
    a('v_lshl_add_u32 %s, %s, 3, %s' % (v(vT+3), v(vT+4), v(vT+3)))
    a('v_add_u32 %s, %s, %s' % (v(slr), s(sT0), v(vT+3)))
    a('v_xor_b32 %s, 64, %s' % (v(slr+1), v(slr)))
    a('s_lshl_b32 %s, %s, 18' % (s(sT0), s(sK)))
    a('s_lshl_b32 %s, %s, 9' % (s(sT1), s(sJ)))
    a('s_add_u32 %s, %s, %s' % (s(sT0), s(sT0), s(sT1)))
    a('s_lshl_b32 %s, %s, 7' % (s(sT1), s(sW)))
    a('s_add_u32 %s, %s, %s' % (s(sT0), s(sT0), s(sT1)))
    a('s_add_u32 %s, %s, %d' % (s(sT0), s(sT0), W_IN))
    a('v_lshlrev_b32 %s, 4, %s' % (v(vT+1), v(vT+1)))
    a('v_lshl_add_u32 %s, %s, 14, %s' % (v(vT+1), v(vT), v(vT+1)))
    a('v_add_u32 %s, %s, %s' % (v(ina), s(sT0), v(vT+1)))
    a('v_add_u32 %s, 0x20000, %s' % (v(ina-1), v(ina)))
    a('s_lshl_b32 %s, %s, 9' % (s(sT0), s(sK)))
    a('s_lshl_b32 %s, %s, 4' % (s(sT1), s(sJ)))
    a('s_add_u32 %s, %s, %s' % (s(sT0), s(sT0), s(sT1)))
    a('s_lshl_b32 %s, %s, 2' % (s(sT1), s(sW)))
    a('s_add_u32 %s, %s, %s' % (s(sT0), s(sT0), s(sT1)))
    a('s_add_u32 %s, %s, %d' % (s(sT0), s(sT0), W_FL))
    a('v_mov_b32 %s, %s' % (v(vFPA), s(sT0)))
    a('v_mov_b32 %s, 4096' % v(vWDA))
    vm(7)
    stamp(1)
    a('ds_write_b128 %s, %s' % (v(slw), v(vD,4)))
    a('ds_write_b128 %s, %s offset:1024' % (v(slw+5), v(vD+4,4)))
    a('ds_read_b64 %s, %s' % (v(vG,2), v(slr)))
    a('ds_read_b64 %s, %s offset:128' % (v(vG+2,2), v(slr)))
    a('ds_read_b64 %s, %s' % (v(vG+4,2), v(slr+1)))
    a('ds_read_b64 %s, %s offset:128' % (v(vG+6,2), v(slr+1)))
    a('s_waitcnt lgkmcnt(0)')
    a('global_store_dwordx4 %s, %s, %s' % (v(ina), v(vG,4), s(sWS,2)))
    a('global_store_dwordx4 %s, %s, %s' % (v(ina-1), v(vG+4,4), s(sWS,2)))
    vm(2)
    a('s_branch L_kgen')

    a('L_h_setup:')
    a('s_mul_i32 %s, %s, %d' % (s(sT0), s(sWI), YTS))
    a('s_add_u32 %s, %s, %d' % (s(sT0), s(sT0), YX))
    a('v_and_b32 %s, 3, %s' % (v(vT), v(vL)))
    a('v_lshrrev_b32 %s, 2, %s' % (v(vT+1), v(vL)))
    a('v_mul_u32_u24 %s, %d, %s' % (v(vT), YGS, v(vT)))
    a('v_lshl_add_u32 %s, %s, 4, %s' % (v(vT), v(vT+1), v(vT)))
    a('v_add_u32 %s, %s, %s' % (v(vY), s(sT0), v(vT)))
    a('v_lshrrev_b32 %s, 2, %s' % (v(vT), v(vT+5)))
    a('v_lshl_add_u32 %s, %s, 2, %s' % (v(vT), v(vT+6), v(vT)))
    a('v_bfe_u32 %s, %s, 1, 1' % (v(vT+1), v(vL)))
    a('v_mul_u32_u24 %s, %d, %s' % (v(vT+1), WL1, v(vT+1)))
    a('v_lshl_add_u32 %s, %s, 4, %s' % (v(vT), v(vT), v(vT+1)))
    a('v_and_b32 %s, 1, %s' % (v(vT+1), v(vL)))
    a('v_lshl_add_u32 %s, %s, 3, %s' % (v(vT), v(vT+1), v(vT)))
    a('s_lshl_b32 %s, %s, 11' % (s(sT0), s(sWI)))
    a('s_add_u32 %s, %s, %d' % (s(sT0), s(sT0), WL))
    a('v_add_u32 %s, %s, %s' % (v(vWT), s(sT0), v(vT)))
    a('s_lshl_b32 %s, %s, 7' % (s(sT0), s(sWI)))
    a('v_add_u32 %s, %s, %s' % (v(vT), s(sT0), v(vL)))
    a('s_lshl_b32 %s, %s, 4' % (s(sT1), s(sF8)))
    a('v_mul_u32_u24 %s, 2752, %s' % (v(vT), v(vT)))
    a('v_add_u32 %s, %s, %s' % (v(vKA), s(sT1), v(vT)))
    a('v_add_u32 %s, %d, %s' % (v(vKB), 64*2752, v(vKA)))
    a('v_and_b32 %s, 255, v0' % v(vT))
    a('s_lshl_b32 %s, %s, 13' % (s(sT0), s(sF8)))
    a('v_lshl_add_u32 %s, %s, 2, %s' % (v(vWDA), v(vT), s(sT0)))
    a('v_add_u32 %s, 4096, %s' % (v(vWDA), v(vWDA)))
    a('v_lshrrev_b32 %s, 1, %s' % (v(vT+1), v(vT)))
    a('v_mul_u32_u24 %s, 6144, %s' % (v(vT+1), v(vT+1)))
    a('v_and_b32 %s, 1, %s' % (v(vT), v(vT)))
    a('v_lshl_add_u32 %s, %s, 4, %s' % (v(vT+1), v(vT), v(vT+1)))
    a('s_lshl_b32 %s, %s, 5' % (s(sT0), s(sF8)))
    a('s_add_u32 %s, %s, %d' % (s(sT0), s(sT0), W_FP))
    a('v_add_u32 %s, %s, %s' % (v(vFPA), s(sT0), v(vT+1)))
    a('v_lshlrev_b32 %s, 3, %s' % (v(vT), v(vT+6)))
    a('v_lshl_add_u32 %s, %s, 6, %s' % (v(vCA), v(vT+5), v(vT)))
    a('s_lshl_b32 %s, %s, 8' % (s(sT0), s(sWI)))
    a('s_add_u32 %s, %s, %d' % (s(sT0), s(sT0), FP))
    a('v_lshl_add_u32 %s, %s, 2, %s' % (v(vCB), v(vL), s(sT0)))
    a('v_lshlrev_b32 %s, 2, %s' % (v(vTW1), v(vT+5)))
    a('v_add_u32 %s, %d, %s' % (v(vTW1), FP, v(vTW1)))
    a('s_lshl_b32 %s, %s, 2' % (s(sT0), s(sWI)))
    a('s_add_u32 %s, %s, %d' % (s(sT0), s(sT0), FF))
    a('v_mov_b32 %s, %s' % (v(vTW2), s(sT0)))
    a('v_mov_b32 %s, %d' % (v(vTW3), FF))
    a('s_lshl_b32 %s, s2, 5' % s(sT0))
    a('s_lshr_b32 %s, %s, 1' % (s(sT1), s(sWI)))
    a('s_lshl_b32 %s, %s, 4' % (s(sT1), s(sT1)))
    a('s_add_u32 %s, %s, %s' % (s(sT0), s(sT0), s(sT1)))
    a('s_and_b32 %s, %s, 1' % (s(sT1), s(sWI)))
    a('s_lshl_b32 %s, %s, 13' % (s(sT1), s(sT1)))
    a('s_add_u32 %s, %s, %s' % (s(sT0), s(sT0), s(sT1)))
    a('s_add_u32 %s, %s, %d' % (s(sT0), s(sT0), W_ST))
    a('v_mov_b32 %s, %s' % (v(vTW4), s(sT0)))
    rk, pfa = vXN, vXN+1
    a('s_lshl_b32 %s, s2, 3' % s(sT0))
    a('s_lshl_b32 %s, %s, 1' % (s(sT1), s(sWI)))
    a('s_add_u32 %s, %s, %s' % (s(sT0), s(sT0), s(sT1)))
    a('s_sub_u32 %s, 0xffff, %s' % (s(sT0), s(sT0)))
    a('v_lshrrev_b32 %s, 5, %s' % (v(rk), v(vL)))
    a('v_sub_u32 %s, %s, %s' % (v(rk), s(sT0), v(rk)))
    a('s_lshl_b32 %s, %s, 13' % (s(sT0), s(sH)))
    a('s_lshl_b32 %s, %s, 11' % (s(sT1), s(sWI)))
    a('s_add_u32 %s, %s, %s' % (s(sT0), s(sT0), s(sT1)))
    a('s_add_u32 %s, %s, %s' % (s(sT0), s(sT0), s(sT2)))
    a('v_lshl_add_u32 %s, %s, 7, %s' % (v(pfa), v(vT+5), s(sT0)))
    S1, S2, S3, S4 = vXF, vXF+1, vXF+2, vXF+3
    def red32(regs):
        for m in ('row_shr:1','row_shr:2','row_shr:4','row_shr:8'):
            for r in regs: a('v_add_f32_dpp %s, %s, %s %s row_mask:0xf bank_mask:0xf' % (v(r), v(r), v(r), m))
        for r in regs: a('v_add_f32_dpp %s, %s, %s row_bcast:15 row_mask:0xa bank_mask:0xf' % (v(r), v(r), v(r)))
    for r in (S1,S2,S3,S4): a('v_mov_b32 %s, 0' % v(r))
    vm(9)
    for i in range(8): a('v_dot2_f32_bf16 %s, %s, %s, %s' % (v(S4), v(vG+i), s(sONES), v(S4)))
    red32([S4])
    vm(7)
    stamp(1)
    if o['prefetch']:
        a('s_mov_b64 exec, 0xffff')
        a('global_load_dword %s, %s, %s nt' % (v(vPF), v(pfa), s(sWS,2)))
        a('s_mov_b64 exec, -1')
    for i in range(8):
        a('v_dot2_f32_bf16 %s, %s, %s, %s' % (v(S1), v(vD+i), s(sONES), v(S1)))
        a('v_dot2_f32_bf16 %s, %s, %s, %s' % (v(S2), v(vD+i), v(vD+i), v(S2)))
        a('v_dot2_f32_bf16 %s, %s, %s, %s' % (v(S3), v(vD+i), v(vG+i), v(S3)))
    red32([S1,S2,S3])
    t = vT
    a('v_mul_f32 %s, 0x3b000000, %s' % (v(S1), v(S1)))
    a('v_mul_f32 %s, 0x3b000000, %s' % (v(S2), v(S2)))
    a('v_fma_f32 %s, -%s, %s, %s' % (v(S2), v(S1), v(S1), v(S2)))
    a('v_max_f32 %s, 0, %s' % (v(S2), v(S2)))
    a('v_cvt_pk_bf16_f32 %s, %s, %s' % (v(t), v(S1), v(S2)))
    a('v_and_b32 %s, %s, %s' % (v(t), s(sHI), v(t)))
    a('v_add_f32 %s, 0x3727c5ac, %s' % (v(t), v(t)))
    a('v_cvt_pk_bf16_f32 %s, %s, %s' % (v(t), v(t), v(t)))
    a('v_and_b32 %s, %s, %s' % (v(t), s(sHI), v(t)))
    a('v_sqrt_f32 %s, %s' % (v(t), v(t)))
    g = vE
    a('v_cvt_pk_bf16_f32 %s, %s, %s' % (v(g+1), v(S1), v(t)))
    a('v_and_b32 %s, %s, %s' % (v(t), s(sHI), v(g+1)))
    a('v_lshlrev_b32 %s, 16, %s' % (v(t+1), v(g+1)))
    a('v_rcp_f32 %s, %s' % (v(t), v(t)))
    a('v_fma_f32 %s, -%s, %s, %s' % (v(S3), v(t+1), v(S4), v(S3)))
    a('v_readlane_b32 %s, %s, 31' % (s(sT0), v(g+1)))
    a('v_mul_f32 %s, %s, %s' % (v(S3), v(S3), v(t)))
    a('v_cvt_pk_bf16_f32 %s, %s, %s' % (v(S3), v(S3), v(S3)))
    a('v_mov_b32 %s, %s' % (v(g), s(sT0)))
    a('v_ashrrev_i32 %s, 31, %s' % (v(t), v(S3)))
    a('v_or_b32 %s, 0x80000000, %s' % (v(t), v(t)))
    a('v_xor_b32 %s, %s, %s' % (v(t), v(t), v(S3)))
    a('v_and_or_b32 %s, %s, %s, %s' % (v(t), v(t), s(sHI), v(rk)))
    vm(1 if o['prefetch'] else 0)
    a('v_readlane_b32 %s, %s, 31' % (s(sT0), v(t)))
    a('v_readfirstlane_b32 %s, %s' % (s(sTAG), v(vEP)))
    a('v_max_u32 %s, %s, %s' % (v(g+2), s(sT0), v(t)))
    a('s_add_u32 %s, %s, 16' % (s(sTAG), s(sTAG)))
    a('s_and_b32 %s, %s, -16' % (s(sTAG), s(sTAG)))
    a('s_or_b32 %s, %s, %s' % (s(sTAGX), s(sTAG), s(sXCC)))
    a('v_mov_b32 %s, %s' % (v(g+3), s(sTAGX)))
    a('s_mov_b32 exec_lo, 0')
    a('s_mov_b32 exec_hi, 0x80000000')
    a('global_store_dwordx4 %s, %s, %s sc1' % (v(vTW4), v(g,4), s(sWS,2)))
    a('s_mov_b64 exec, -1')
    a('s_setprio 0')
    stamp(2)

    a('L_kgen:')
    are, aim, bre, bim, cre, cim = [vP+i for i in range(6)]
    dt = vP+6; t0 = vP+7
    z1, z2, z4, ZZ, w1, w2, w4, c0 = [vP+8+2*i for i in range(8)]
    hq = [vP+24+2*i for i in range(8)]
    lq = [vP+40+2*i for i in range(8)]
    cv = [vP+56+i for i in range(8)]
    a('s_waitcnt lgkmcnt(0)')
    a('s_lshr_b32 %s, %s, 1' % (s(sT0), s(sW)))
    a('s_lshl_b32 %s, %s, 4' % (s(sT0), s(sT0)))
    a('s_lshr_b64 %s, %s, %s' % (s(sLD,2), s(sLD,2), s(sT0)))
    a('s_lshl_b32 %s, %s, 16' % (s(sT0), s(sLD)))
    a('v_mov_b32 %s, 0x3fb8aa3b' % v(t0))
    a('v_mul_f32 %s, %s, %s' % (v(dt), s(sT0), v(t0)))
    a('v_exp_f32 %s, %s' % (v(dt), v(dt)))
    a('s_lshl_b32 %s, %s, 8' % (s(sT0), s(sW)))
    a('s_mov_b32 m0, %s' % s(sT0))
    a('v_cvt_pk_bf16_f32 %s, %s, %s' % (v(dt), v(dt), v(dt)))
    a('v_and_b32 %s, %s, %s' % (v(dt), s(sHI), v(dt)))
    a('v_mul_f32 %s, %s, %s' % (v(are), v(dt), v(are)))
    a('v_mul_f32 %s, %s, %s' % (v(aim), v(dt), v(aim)))
    a('v_mul_f32 %s, %s, %s' % (v(are), v(t0), v(are)))
    a('v_mul_f32 %s, 0.15915494, %s' % (v(aim), v(aim)))
    a('v_exp_f32 %s, %s' % (v(cv[0]), v(are)))
    a('v_fract_f32 %s, %s' % (v(cv[1]), v(aim)))
    a('v_mul_f32 %s, 0x43800000, %s' % (v(are), v(are)))
    a('v_cos_f32 %s, %s' % (v(z1), v(cv[1])))
    a('v_mul_f32 %s, 0x43800000, %s' % (v(aim), v(aim)))
    a('v_sin_f32 %s, %s' % (v(z1+1), v(cv[1])))
    a('v_fract_f32 %s, %s' % (v(cv[3]), v(aim)))
    a('v_exp_f32 %s, %s' % (v(cv[2]), v(are)))
    a('v_mul_f32 %s, %s, %s' % (v(z1), v(cv[0]), v(z1)))
    a('v_cos_f32 %s, %s' % (v(ZZ), v(cv[3])))
    a('v_mul_f32 %s, %s, %s' % (v(z1+1), v(cv[0]), v(z1+1)))
    a('v_sin_f32 %s, %s' % (v(ZZ+1), v(cv[3])))
    a('v_mul_f32 %s, %s, %s' % (v(bre), v(dt), v(bre)))
    a('v_mul_f32 %s, %s, %s' % (v(bim), v(dt), v(bim)))
    cmul(a, z2, z1, z1)
    a('v_mul_f32 %s, %s, %s' % (v(ZZ), v(cv[2]), v(ZZ)))
    a('v_mul_f32 %s, %s, %s' % (v(ZZ+1), v(cv[2]), v(ZZ+1)))
    cmul(a, hq[0], cre, bre)
    cmul(a, z4, z2, z2)
    ci = [0]
    m0_hi = [False]
    def put(row, reg, neg):
        c = cv[ci[0] % 8]; ci[0] += 1
        a('v_cvt_pk_bf16_f32 %s, %s, %s%s' % (v(c), v(reg), '-' if neg else '', v(reg+1)))
        off = row*RS - (30*RS if m0_hi[0] else 0)
        assert 0 <= off < 65536, (row, off)
        a('ds_write_addtid_b32 %s offset:%d' % (v(c), STAGE + off))
    cmul(a, w1, z4, z4)
    cmul(a, hq[1], hq[0], z1)
    cmul(a, w2, w1, w1)
    put(1, w1, False)
    cmul(a, hq[2], hq[0], z2)
    cmul(a, lq[3], w2, w1)
    put(2, w2, False)
    cmul(a, w4, w2, w2)
    put(3, lq[3], False)
    cur = {1: w1, 2: w2, 3: lq[3], 4: w4}
    put(4, w4, False)
    def lo_step(j):
        d = lq[j % 8]
        cmul(a, d, cur[j-4], w4); cur[j] = d
        put(j, d, False)
    for j in range(5, 14): lo_step(j)
    a('s_cmp_ge_u32 %s, 4' % s(sW))
    a('s_cbranch_scc1 L_noflag')
    a('s_waitcnt vmcnt(0)')
    a('v_readfirstlane_b32 %s, %s' % (s(sTAG), v(vEP)))
    a('s_add_u32 %s, %s, 16' % (s(sTAG), s(sTAG)))
    a('s_and_b32 %s, %s, -16' % (s(sTAG), s(sTAG)))
    a('s_or_b32 %s, %s, %s' % (s(sTAGX), s(sTAG), s(sXCC)))
    a('v_mov_b32 %s, %s' % (v(vT), s(sTAGX)))
    a('s_mov_b64 exec, 1')
    a('global_store_dword %s, %s, %s' % (v(vFPA), v(vT), s(sWS,2)))
    a('s_mov_b64 exec, -1')
    stamp(2)
    a('L_noflag:')
    for j in range(14, 30): lo_step(j)
    a('s_lshl_b32 %s, %s, 8' % (s(sT0), s(sW)))
    a('s_add_u32 %s, %s, %d' % (s(sT0), s(sT0), 30*RS))
    a('s_mov_b32 m0, %s' % s(sT0))
    m0_hi[0] = True
    for j in range(30, 32): lo_step(j)
    a('global_load_dword %s, %s, %s sc1' % (v(vPF), v(vFL), s(sWS,2)))
    put(32, hq[0], True); put(33, hq[1], True); put(34, hq[2], True)
    cmul(a, hq[3], hq[1], z2);  cmul(a, hq[4], hq[0], z4)
    put(35, hq[3], True); put(36, hq[4], True)
    cmul(a, hq[5], hq[1], z4);  cmul(a, hq[6], hq[2], z4); cmul(a, hq[7], hq[3], z4)
    put(37, hq[5], True); put(38, hq[6], True); put(39, hq[7], True)
    A0, A2, A4, A6 = lq[0], lq[1], lq[2], lq[3]
    cmul(a, A0, hq[0], ZZ); cmul(a, A2, hq[2], ZZ); cmul(a, A4, hq[4], ZZ); cmul(a, A6, hq[6], ZZ)
    put(40, A0, True)
    B0, B4 = lq[4], lq[5]
    cmul(a, B0, A0, ZZ); put(41, A2, True); cmul(a, B4, A4, ZZ); put(42, A4, True)
    C0, C4 = lq[6], lq[7]
    cmul(a, C0, B0, ZZ); put(43, A6, True); cmul(a, C4, B4, ZZ); put(44, B0, True)
    cmul(a, hq[1], C0, ZZ); put(45, B4, True); put(46, C0, True)
    cmul(a, hq[2], hq[1], ZZ); put(47, C4, True); put(48, hq[1], True)
    cmul(a, hq[3], hq[2], ZZ); put(49, hq[2], True)
    cmul(a, hq[4], hq[3], ZZ); put(50, hq[3], True)
    cmul(a, hq[5], hq[4], ZZ); put(51, hq[4], True); put(52, hq[5], True)
    stamp(3)

    a('s_waitcnt vmcnt(0)')
    a('v_cmp_ne_u32 vcc, %s, %s' % (s(sTAGX), v(vPF)))
    if o['force_slow']: a('s_branch L_gather')
    a('s_cbranch_vccz L_fast')
    a('s_mov_b32 %s, %d' % (s(sCNT), o['spinmax']))
    a('L_flagspin:')
    a('global_load_dword %s, %s, %s sc1' % (v(vPF), v(vFL), s(sWS,2)))
    a('global_load_dword %s, %s, %s sc1' % (v(vT), v(vXC), s(sWS,2)))
    a('s_waitcnt vmcnt(0)')
    a('v_cmp_ne_u32 vcc, %s, %s' % (s(sTAGX), v(vPF)))
    a('s_cbranch_vccz L_fast')
    a('v_xor_b32 %s, %s, %s' % (v(vT), s(sTAGX), v(vT)))
    a('v_add_u32 %s, -1, %s' % (v(vT), v(vT)))
    a('v_cmp_gt_u32 vcc, 15, %s' % v(vT))
    a('s_cbranch_vccnz L_gather')
    a('s_sub_u32 %s, %s, 1' % (s(sCNT), s(sCNT)))
    a('s_cmp_lg_u32 %s, 0' % s(sCNT))
    a('s_cbranch_scc1 L_flagspin')
    a('L_gather:')
    for r in range(4):
        a('global_load_dwordx2 %s, %s, %s offset:%d' % (v(vD+2*r,2), v(vXG), s(sX,2), r*1024))
    a('s_branch L_stats')
    a('L_fast:')
    a('global_load_dwordx4 %s, %s, %s sc1' % (v(vD,4), v(vIN), s(sWS,2)))
    a('global_load_dwordx4 %s, %s, %s offset:64 sc1' % (v(vD+4,4), v(vIN), s(sWS,2)))
    a('L_stats:')
    a('global_load_dwordx4 %s, %s, %s sc1' % (v(vG,4), v(vST0), s(sWS,2)))
    a('global_load_dwordx4 %s, %s, %s sc1' % (v(vG+4,4), v(vST1), s(sWS,2)))
    def wloads():
        a('s_lshl_b32 %s, %s, 11' % (s(sT0), s(sWI)))
        a('s_add_u32 %s, %s, %d' % (s(sT0), s(sT0), WL))
        for mu, base in enumerate((sWG, sWU)):
            for i, r in enumerate((vKA, vKB)):
                a('s_add_u32 m0, %s, %d' % (s(sT0), mu*WL1 + i*1024))
                a('global_load_lds_dwordx4 %s, %s' % (v(r), s(base,2)))
        for i in range(8):
            a('global_load_dword %s, %s, %s offset:%d' % (v(vWD+i), v(vWDA), s(sWD,2), i*1024 - 4096))
    a('s_waitcnt lgkmcnt(0)')
    stamp(4)
    a('s_barrier')
    a('s_cmp_ge_u32 %s, 4' % s(sW))
    a('s_cbranch_scc1 L_h_b3')
    KD = vP; KF = vP + 16
    NB = 6
    def kread(sidx):
        r = KF + 8*(sidx % NB)
        a('ds_read_b128 %s, %s offset:%d' % (v(r,4), v(vKA), 32*sidx))
        a('ds_read_b128 %s, %s offset:%d' % (v(r+4,4), v(vKB), 32*sidx))
    for i in range(NB): kread(i)
    for sidx in range(16):
        outstanding = min(16, sidx + NB) - sidx - 1
        a('s_waitcnt lgkmcnt(%d)' % (2*outstanding))
        r = KF + 8*(sidx % NB)
        a('v_mfma_f32_32x32x16_bf16 %s, %s, %s, %s' % (v(KD,16), v(r,4), v(r+4,4), '0' if sidx == 0 else v(KD,16)))
        if sidx + NB < 16: kread(sidx + NB)
    for i in range(6):
        a('v_cvt_pk_bf16_f32 %s, %s, %s' % (v(vT+i), v(KD+2*i), v(KD+2*i+1)))
    a('ds_write_b64 %s, %s' % (v(vTW1), v(vT,2)))
    a('ds_write_b32 %s, %s' % (v(vTW2), v(vT+2)))
    a('ds_write_b32 %s, %s' % (v(vTW3), v(vT+3)))
    a('ds_write_b16 %s, %s' % (v(vTW4), v(vT+4)))
    a('ds_write_b16_d16_hi %s, %s offset:64' % (v(vTW4), v(vT+4)))
    a('ds_write_b16 %s, %s offset:128' % (v(vTW4), v(vT+5)))
    a('ds_write_b16_d16_hi %s, %s offset:192' % (v(vTW4), v(vT+5)))
    a('s_waitcnt lgkmcnt(0)')
    a('s_branch L_b3')
    a('L_h_b3:')
    if not o['wlate']:
        a('s_cmp_eq_u32 %s, 0' % s(sPROD))
        a('s_cbranch_scc1 L_b3')
        a('s_waitcnt vmcnt(0)')
        wloads()
    a('L_b3:')
    stamp(5)
    a('s_barrier')
    Wq = vP; Q = vP + 16
    for c in range(4):
        a('ds_read2_b32 %s, %s offset0:0 offset1:1' % (v(Wq+4*c,2), v(vGA+2*c)))
        a('ds_read2_b32 %s, %s offset0:0 offset1:1' % (v(Wq+4*c+2,2), v(vGA+2*c+1)))
    a('s_cmp_lg_u32 %s, 7' % s(sW))
    a('s_cbranch_scc1 L_nopad')
    a('v_bfe_u32 %s, %s, 3, 2' % (v(vT), v(vL)))
    a('v_and_b32 %s, 7, %s' % (v(vT+1), v(vL)))
    a('v_mul_u32_u24 %s, %d, %s' % (v(vT), R4S, v(vT)))
    a('v_lshl_add_u32 %s, %s, 4, %s' % (v(vT), v(vT+1), v(vT)))
    for i in range(4): a('v_mov_b32 %s, 0' % v(vT+4+i))
    a('ds_write_b128 %s, %s offset:%d' % (v(vT), v(vT+4,4), R4))
    a('s_waitcnt lgkmcnt(1)')
    a('L_nopad:')
    for c in range(4):
        a('s_waitcnt lgkmcnt(%d)' % (6 if c == 0 else 6))
        W0, W1, W2, W3 = [Wq+4*c+i for i in range(4)]
        q = Q + 8*c
        a('v_perm_b32 %s, %s, %s, %s' % (v(q+0), v(W2), v(W1), v(vSEL+2)))
        a('v_perm_b32 %s, %s, %s, %s' % (v(q+1), v(W1), v(W0), v(vSEL+0)))
        a('v_perm_b32 %s, %s, %s, %s' % (v(q+2), v(W3), v(W2), v(vSEL+3)))
        a('v_perm_b32 %s, %s, %s, %s' % (v(q+3), v(W1), v(W0), v(vSEL+1)))
        a('ds_write_b128 %s, %s offset:%d' % (v(vR4W), v(q,4), c*R4S))
        a('v_perm_b32 %s, %s, %s, %s' % (v(q+4), v(W3), v(W2), v(vSEL+4)))
        a('v_mov_b32 %s, %s' % (v(q+5), v(q+0)))
        a('v_perm_b32 %s, %s, %s, %s' % (v(q+6), v(W3), v(W2), v(vSEL+5)))
        a('v_mov_b32 %s, %s' % (v(q+7), v(q+2)))
        a('ds_write_b128 %s, %s offset:%d' % (v(vR4W), v(q+4,4), c*R4S + 16))
    stamp(6)
    if o['wlate']: a('s_waitcnt vmcnt(0)')
    else:
        a('s_cmp_lt_u32 %s, 4' % s(sW))
        a('s_cbranch_scc1 L_nw0')
        a('s_cmp_lg_u32 %s, 0' % s(sPROD))
        a('s_cbranch_scc1 L_nw1')
        a('L_nw0:')
        a('s_waitcnt vmcnt(0)')
        a('L_nw1:')
    a('s_mov_b32 %s, %d' % (s(sCNT), o['spinmax']))
    a('L_statspin:')
    a('v_xor_b32 %s, %s, %s' % (v(vT), s(sTAG), v(vG+3)))
    a('v_xor_b32 %s, %s, %s' % (v(vT+1), s(sTAG), v(vG+7)))
    a('v_or_b32 %s, %s, %s' % (v(vT), v(vT), v(vT+1)))
    a('v_cmp_lt_u32 vcc, 15, %s' % v(vT))
    a('s_cbranch_vccz L_statok')
    a('global_load_dwordx4 %s, %s, %s sc1' % (v(vG,4), v(vST0), s(sWS,2)))
    a('global_load_dwordx4 %s, %s, %s sc1' % (v(vG+4,4), v(vST1), s(sWS,2)))
    a('s_sub_u32 %s, %s, 1' % (s(sCNT), s(sCNT)))
    a('s_cmp_lg_u32 %s, 0' % s(sCNT))
    a('s_waitcnt vmcnt(0)')
    a('s_cbranch_scc1 L_statspin')
    a('L_statok:')
    stamp(7)
    stq = [vG, vG+1, vG+4, vG+5]
    rho = [vT+i for i in range(4)]; mu = [vT+4+i for i in range(4)]
    key = vT+8
    for r in range(4): a('v_and_b32 %s, %s, %s' % (v(rho[r]), s(sHI), v(stq[r])))
    a('v_max_u32 %s, %s, %s' % (v(key), v(vG+2), v(vG+6)))
    for r in range(4):
        a('v_rcp_f32 %s, %s' % (v(rho[r]), v(rho[r])))
        a('v_lshlrev_b32 %s, 16, %s' % (v(mu[r]), v(stq[r])))
    kred = ['row_shr:1 row_mask:0xf','row_shr:2 row_mask:0xf','row_shr:4 row_mask:0xf','row_shr:8 row_mask:0xf','row_bcast:15 row_mask:0xa','row_bcast:31 row_mask:0xc']
    for r in range(4):
        a('v_mul_f32_e64 %s, -%s, %s' % (v(mu[r]), v(mu[r]), v(rho[r])))
        a('v_lshlrev_b32 %s, 16, %s' % (v(vXF+4*r), v(vD+2*r)))
        a('v_and_b32 %s, %s, %s' % (v(vXF+4*r+1), s(sHI), v(vD+2*r)))
        a('v_lshlrev_b32 %s, 16, %s' % (v(vXF+4*r+2), v(vD+2*r+1)))
        a('v_and_b32 %s, %s, %s' % (v(vXF+4*r+3), s(sHI), v(vD+2*r+1)))
        a('v_max_u32_dpp %s, %s, %s %s bank_mask:0xf' % (v(key), v(key), v(key), kred[r]))
        for c in range(4):
            a('v_fma_f32 %s, %s, %s, %s' % (v(vXN+4*r+c), v(vXF+4*r+c), v(rho[r]), v(mu[r])))
    a('v_max_u32_dpp %s, %s, %s %s bank_mask:0xf' % (v(key), v(key), v(key), kred[4]))
    XP = vG
    for c in range(4):
        a('v_cvt_pk_bf16_f32 %s, %s, %s' % (v(XP+2*c), v(vXN+c), v(vXN+4+c)))
        a('v_cvt_pk_bf16_f32 %s, %s, %s' % (v(XP+2*c+1), v(vXN+8+c), v(vXN+12+c)))
        a('ds_write_b64 %s, %s offset:%d' % (v(vUW), v(XP+2*c,2), c*US))
        if c == 0: a('v_max_u32_dpp %s, %s, %s %s bank_mask:0xf' % (v(key), v(key), v(key), kred[5]))
    a('s_lshl_b32 %s, %s, 2' % (s(sT0), s(sW)))
    a('s_add_u32 %s, %s, %d' % (s(sT0), s(sT0), AM))
    a('v_mov_b32 %s, %s' % (v(vT+9), s(sT0)))
    a('s_mov_b32 exec_lo, 0')
    a('s_mov_b32 exec_hi, 0x80000000')
    a('ds_write_b32 %s, %s' % (v(vT+9), v(key)))
    a('s_mov_b64 exec, -1')
    a('v_mov_b32 %s, %d' % (v(vT+9), AM))
    a('s_waitcnt lgkmcnt(0)')
    stamp(8)
    a('s_barrier')
    def read_idx():
        a('ds_read_b128 %s, %s' % (v(vT,4), v(vT+9)))
        a('ds_read_b128 %s, %s offset:16' % (v(vT+4,4), v(vT+9)))
        a('s_waitcnt lgkmcnt(0)')
        a('v_max3_u32 %s, %s, %s, %s' % (v(vT), v(vT), v(vT+1), v(vT+2)))
        a('v_max3_u32 %s, %s, %s, %s' % (v(vT+3), v(vT+3), v(vT+4), v(vT+5)))
        a('v_max3_u32 %s, %s, %s, %s' % (v(vT), v(vT), v(vT+6), v(vT+7)))
        a('v_max_u32 %s, %s, %s' % (v(vT), v(vT), v(vT+3)))
        a('v_readfirstlane_b32 %s, %s' % (s(sKEY), v(vT)))
        a('s_and_b32 %s, %s, 0xffff' % (s(sIDX), s(sKEY)))
        a('s_sub_u32 %s, 0xffff, %s' % (s(sIDX), s(sIDX)))
        a('s_and_b32 %s, %s, 2047' % (s(sIDX), s(sIDX)))
    a('s_cmp_ge_u32 %s, 4' % s(sW))
    a('s_cbranch_scc1 L_helper')

    ACC = vP; FR = vP + 16; NFR = 28
    stamp(10)
    a('s_setprio 1')
    a('s_cmp_eq_u32 %s, 0' % s(sH))
    a('s_cbranch_scc0 L_conv1')
    def conv(h):
        tl = tiles(h)
        ops = []
        for c0 in range(8):
            lst = [(i, c1, q - c1) for i, q in enumerate(tl) for c1 in range(q+1)]
            have = set(); seq = []
            while lst:
                def cost(x):
                    return (2*(('A',x[1]) not in have) + (('B',x[2]) not in have), bool(seq) and seq[-1][0] == x[0], max(x[1],x[2]))
                x = min(lst, key=cost); lst.remove(x); seq.append(x); have.add(('A',x[1])); have.add(('B',x[2]))
            for i, c1, qp in seq: ops.append((i, ('A', c0, c1), ('B', c0, qp)))
        order = []; last = {}
        for n, (i, ak, bk) in enumerate(ops):
            for k in (bk, ak):
                if k not in last: order.append(k)
                last[k] = n
        L = []
        for k in order:
            L += [(k,0),(k,1)] if k[0] == 'A' else [(k,0)]
        endidx = {}
        for j,(k,p) in enumerate(L): endidx[k] = j+1
        need = []; m = 0
        for (i, ak, bk) in ops:
            m = max(m, endidx[ak], endidx[bk]); need.append(m)
        free = list(range(NFR)); slot = {}
        st = dict(issued=0, done=0)
        MAXOUT = o['maxout']; G = o['group']
        def can_issue():
            if st['issued'] >= len(L): return False
            if st['issued'] - st['done'] >= MAXOUT: return False
            k,p = L[st['issued']]
            return p == 1 or bool(free)
        def issue():
            k,p = L[st['issued']]
            if p == 0: slot[k] = free.pop(0)
            r = FR + 4*slot[k]
            if k[0] == 'A':
                off = CAS*(8*k[2] + k[1])
                a('ds_read_b64 %s, %s offset:%d' % (v(r+2*p,2), v(vCA2 if p else vCA), off))
            else:
                off = 2*(224 + 256*k[2] - 32*k[1])
                a('ds_read_b128 %s, %s offset:%d' % (v(r,4), v(vCB), off))
            st['issued'] += 1
        started = set()
        while can_issue(): issue()
        for n, (i, ak, bk) in enumerate(ops):
            if need[n] > st['done']:
                while st['issued'] < need[n]:
                    st['done'] = max(st['done'], st['issued'] - MAXOUT + 1); issue()
                tgt = need[n]
                for m2 in range(n, min(n+G, len(ops))):
                    if need[m2] <= st['issued'] - o['minfly'] or need[m2] == len(L) == st['issued']: tgt = max(tgt, need[m2])
                a('s_waitcnt lgkmcnt(%d)' % (st['issued'] - tgt)); st['done'] = tgt
            acc = ACC + 4*i
            cin = v(acc,4) if i in started else '0'
            started.add(i)
            a('v_mfma_f32_16x16x32_bf16 %s, %s, %s, %s' % (v(acc,4), v(FR+4*slot[ak],4), v(FR+4*slot[bk],4), cin))
            for k in (ak, bk):
                if last[k] == n: free.append(slot[k])
            budget = 2
            if n+1 < len(ops) and need[n+1] > st['done']: budget = 1
            while budget > 0 and can_issue():
                issue(); budget -= 1
    conv(0)
    a('s_branch L_convdone')
    a('L_conv1:')
    conv(1)
    a('L_convdone:')
    a('s_nop 7')
    for i in range(4):
        a('ds_write_b128 %s, %s offset:%d' % (v(vY), v(ACC+4*i,4), i*YTS))
    a('s_waitcnt lgkmcnt(0)')
    stamp(9)
    a('s_barrier')
    a('s_cmp_lg_u32 %s, 0' % s(sW))
    a('s_cbranch_scc1 L_exit')
    a('s_cmp_lg_u32 s2, 0')
    a('s_cbranch_scc1 L_noep')
    a('v_mov_b32 %s, 0' % v(vT+10))
    a('v_mov_b32 %s, %s' % (v(vT+11), s(sTAG)))
    a('s_mov_b64 exec, 1')
    a('global_store_dword %s, %s, %s sc1' % (v(vT+10), v(vT+11), s(sWS,2)))
    a('s_mov_b64 exec, -1')
    a('L_noep:')
    read_idx()
    a('s_lshr_b32 %s, %s, 8' % (s(sT0), s(sIDX)))
    a('s_lshr_b32 %s, %s, 9' % (s(sT1), s(sIDX)))
    a('s_xor_b32 %s, %s, %s' % (s(sT0), s(sT0), s(sT1)))
    a('s_xor_b32 %s, %s, %s' % (s(sT0), s(sT0), s(sH)))
    a('s_bitcmp1_b32 %s, 0' % s(sT0))
    a('s_cbranch_scc1 L_exit')
    if o['nohelp']: a('s_branch L_exit')
    a('s_setprio 3')
    F = vP
    par = vT+12
    a('v_and_b32 %s, 1, %s' % (v(par), v(vL)))
    a('s_lshr_b32 %s, %s, 2' % (s(sT0), s(sCH0)))
    a('s_mul_i32 %s, %s, 6144' % (s(sT0), s(sT0)))
    a('s_add_u32 %s, %s, %d' % (s(sT0), s(sT0), W_FP + 3072))
    a('v_lshl_add_u32 %s, %s, 4, %s' % (v(vFPA), v(vL), s(sT0)))
    a('s_lshl_b32 %s, %s, 10' % (s(sT0), s(sIDX)))
    a('s_lshl_b32 %s, %s, 1' % (s(sT2), s(sCH0)))
    a('s_add_u32 %s, %s, %s' % (s(sT0), s(sT0), s(sT2)))
    xo, xv = vT+13, vXF+8
    a('v_lshl_add_u32 %s, %s, 2, %s' % (v(xo), v(par), s(sT0)))
    a('global_load_dword %s, %s, %s' % (v(xv), v(xo), s(sX,2)))
    a('s_mul_i32 %s, %s, %d' % (s(sT1), s(sT1), YTS))
    a('s_bfe_u32 %s, %s, 0x20002' % (s(sT0), s(sIDX)))
    a('s_mul_i32 %s, %s, %d' % (s(sT0), s(sT0), YGS))
    a('s_add_u32 %s, %s, %s' % (s(sT1), s(sT1), s(sT0)))
    a('s_bfe_u32 %s, %s, 0x40004' % (s(sT0), s(sIDX)))
    a('s_lshl_b32 %s, %s, 4' % (s(sT0), s(sT0)))
    a('s_add_u32 %s, %s, %s' % (s(sT1), s(sT1), s(sT0)))
    a('s_and_b32 %s, %s, 3' % (s(sT0), s(sIDX)))
    a('s_lshl_b32 %s, %s, 2' % (s(sT0), s(sT0)))
    a('s_add_u32 %s, %s, %s' % (s(sT1), s(sT1), s(sT0)))
    a('s_add_u32 %s, %s, %d' % (s(sT1), s(sT1), YX))
    a('v_mul_u32_u24 %s, %d, %s' % (v(vT), 2*YCS, v(par)))
    a('v_add_u32 %s, %s, %s' % (v(vT), s(sT1), v(vT)))
    y0, y1, n0, n1, d0, d1 = vXF, vXF+1, vXF+2, vXF+3, vXF+4, vXF+5
    a('ds_read_b32 %s, %s' % (v(y0), v(vT)))
    a('ds_read_b32 %s, %s offset:%d' % (v(y1), v(vT), YCS))
    a('s_lshl_b32 %s, %s, 1' % (s(sT0), s(sIDX)))
    a('s_add_u32 %s, %s, %d' % (s(sT0), s(sT0), U + 480))
    a('v_mul_u32_u24 %s, %d, %s' % (v(vT+1), 2*US, v(par)))
    a('v_add_u32 %s, %s, %s' % (v(vT+1), s(sT0), v(vT+1)))
    a('ds_read_u16 %s, %s' % (v(n0), v(vT+1)))
    a('ds_read_u16 %s, %s offset:%d' % (v(n1), v(vT+1), US))
    a('v_cmp_eq_u32 vcc, 0, %s' % v(par))
    a('v_mov_b32 %s, %s' % (v(d0), s(sDS)))
    a('v_mov_b32 %s, %s' % (v(d1), s(sDS+1)))
    a('v_cndmask_b32 %s, %s, %s, vcc' % (v(d0), v(d1), v(d0)))
    a('v_and_b32 %s, %s, %s' % (v(d1), s(sHI), v(d0)))
    a('v_lshlrev_b32 %s, 16, %s' % (v(d0), v(d0)))
    a('s_and_b32 %s, %s, %s' % (s(sT0), s(sKEY), s(sHI)))
    a('s_xor_b32 %s, %s, 0x80000000' % (s(sT1), s(sT0)))
    a('s_xor_b32 %s, %s, %s' % (s(sT2), s(sT0), s(sHI)))
    a('s_bitcmp1_b32 %s, 31' % s(sT0))
    a('s_cselect_b32 %s, %s, %s' % (s(sT0), s(sT1), s(sT2)))
    sg = vXF+6
    a('v_mov_b32 %s, 0xbfb8aa3b' % v(vT+2))
    a('v_mul_f32 %s, %s, %s' % (v(sg), s(sT0), v(vT+2)))
    a('v_exp_f32 %s, %s' % (v(sg), v(sg)))
    a('v_add_f32 %s, 1.0, %s' % (v(sg), v(sg)))
    a('v_rcp_f32 %s, %s' % (v(sg), v(sg)))
    a('v_cvt_pk_bf16_f32 %s, %s, %s' % (v(sg), v(sg), v(sg)))
    a('v_and_b32 %s, %s, %s' % (v(sg), s(sHI), v(sg)))
    a('v_mov_b32 %s, 0' % v(F+20))
    a('v_mov_b32 %s, 0' % v(F+21))
    a('v_mov_b32 %s, %s' % (v(F+22), s(sTAG)))
    a('s_waitcnt lgkmcnt(0)')
    a('v_lshlrev_b32 %s, 16, %s' % (v(n0), v(n0)))
    a('v_lshlrev_b32 %s, 16, %s' % (v(n1), v(n1)))
    a('v_fma_f32 %s, %s, %s, %s' % (v(y0), v(n0), v(d0), v(y0)))
    a('v_fma_f32 %s, %s, %s, %s' % (v(y1), v(n1), v(d1), v(y1)))
    a('s_mov_b32 %s, %d' % (s(sCNT), o['spinmax']))
    a('L_ffnspin:')
    for i in range(5):
        a('global_load_dwordx4 %s, %s, %s offset:%d sc1' % (v(F+4*i,4), v(vFPA), s(sWS,2), i*1024 - 3072))
    a('s_mov_b64 exec, 0xffffff')
    a('global_load_dwordx4 %s, %s, %s offset:2048 sc1' % (v(F+20,4), v(vFPA), s(sWS,2)))
    a('s_mov_b64 exec, -1')
    a('s_waitcnt vmcnt(0)')
    for i in range(6): a('v_xor_b32 %s, %s, %s' % (v(vT+i), s(sTAG), v(F+4*i+2)))
    a('v_or3_b32 %s, %s, %s, %s' % (v(vT), v(vT), v(vT+1), v(vT+2)))
    a('v_or3_b32 %s, %s, %s, %s' % (v(vT+3), v(vT+3), v(vT+4), v(vT+5)))
    a('v_or_b32 %s, %s, %s' % (v(vT), v(vT), v(vT+3)))
    a('v_cmp_ne_u32 vcc, 0, %s' % v(vT))
    a('s_cbranch_vccz L_ffnok')
    a('s_sub_u32 %s, %s, 1' % (s(sCNT), s(sCNT)))
    a('s_cmp_lg_u32 %s, 0' % s(sCNT))
    a('s_cbranch_scc1 L_ffnspin')
    a('L_ffnok:')
    stamp(11)
    p0, p1 = F, F+1
    for e in range(2):
        a('v_add_f32 %s, %s, %s' % (v(F+e), v(F+e), v(F+4+e)))
        a('v_add_f32 %s, %s, %s' % (v(F+8+e), v(F+8+e), v(F+12+e)))
        a('v_add_f32 %s, %s, %s' % (v(F+16+e), v(F+16+e), v(F+20+e)))
    for e in range(2): a('v_add_f32 %s, %s, %s' % (v(F+e), v(F+e), v(F+8+e)))
    for e in range(2): a('v_add_f32 %s, %s, %s' % (v(F+e), v(F+e), v(F+16+e)))
    for m in (2,4,8):
        for e in range(2): a('v_add_f32_dpp %s, %s, %s row_ror:%d row_mask:0xf bank_mask:0xf' % (v(F+e), v(F+e), v(F+e), m))
    for pl in ('v_permlane16_swap_b32','v_permlane32_swap_b32'):
        for e in range(2): a('v_mov_b32 %s, %s' % (v(F+4+e), v(F+e)))
        for e in range(2): a('%s %s, %s' % (pl, v(F+e), v(F+4+e)))
        for e in range(2): a('v_add_f32 %s, %s, %s' % (v(F+e), v(F+e), v(F+4+e)))
    def rnd2(r0, r1, t):
        a('v_cvt_pk_bf16_f32 %s, %s, %s' % (v(t), v(r0), v(r1)))
        a('v_lshlrev_b32 %s, 16, %s' % (v(r0), v(t)))
        a('v_and_b32 %s, %s, %s' % (v(r1), s(sHI), v(t)))
    rnd2(p0, p1, vT)
    for e in range(2): a('v_mul_f32 %s, %s, %s' % (v(F+e), v(F+e), v(sg)))
    rnd2(p0, p1, vT)
    a('v_add_f32 %s, %s, %s' % (v(p0), v(p0), v(n0)))
    a('v_add_f32 %s, %s, %s' % (v(p1), v(p1), v(n1)))
    rnd2(p0, p1, vT)
    for e in range(2): a('v_mul_f32 %s, 0xbfb8aa3b, %s' % (v(F+4+e), v(F+e)))
    for e in range(2): a('v_exp_f32 %s, %s' % (v(F+4+e), v(F+4+e)))
    for e in range(2): a('v_add_f32 %s, 1.0, %s' % (v(F+4+e), v(F+4+e)))
    for e in range(2): a('v_rcp_f32 %s, %s' % (v(F+4+e), v(F+4+e)))
    a('v_lshlrev_b32 %s, 16, %s' % (v(vT+1), v(xv)))
    a('v_and_b32 %s, %s, %s' % (v(vT+2), s(sHI), v(xv)))
    for e in range(2): a('v_mul_f32 %s, %s, %s' % (v(F+e), v(F+e), v(F+4+e)))
    a('v_fma_f32 %s, %s, %s, %s' % (v(vT+1), v(y0), v(p0), v(vT+1)))
    a('v_fma_f32 %s, %s, %s, %s' % (v(vT+2), v(y1), v(p1), v(vT+2)))
    a('v_cvt_pk_bf16_f32 %s, %s, %s' % (v(vT), v(vT+1), v(vT+2)))
    a('s_mov_b64 exec, 3')
    a('global_store_dword %s, %s, %s' % (v(xo), v(vT), s(sOUT,2)))
    a('s_mov_b64 exec, -1')
    if o['stamp']:
        a('s_waitcnt vmcnt(0)')
        stamp(12)
        a('s_branch L_exit')
    else:
        a('s_endpgm')

    a('L_helper:')
    if o['nohelp']:
        a('s_barrier')
        a('s_branch L_exit')
    read_idx()
    XS = vP
    a('s_cmp_eq_u32 %s, 0' % s(sPROD))
    a('s_cbranch_scc1 L_h_pre')
    a('s_lshl_b32 %s, %s, 10' % (s(sT0), s(sIDX)))
    a('v_add_u32 %s, %s, %s' % (v(vT), s(sT0), v(vCA)))
    a('s_lshr_b32 %s, %s, 2' % (s(sT0), s(sIDX)))
    a('s_lshl_b32 %s, %s, 4' % (s(sT0), s(sT0)))
    a('s_bfe_u32 %s, %s, 0x10001' % (s(sT1), s(sIDX)))
    a('s_lshl_b32 %s, %s, 13' % (s(sT1), s(sT1)))
    a('s_add_u32 %s, %s, %s' % (s(sT0), s(sT0), s(sT1)))
    a('s_and_b32 %s, %s, 1' % (s(sT1), s(sIDX)))
    a('s_lshl_b32 %s, %s, 2' % (s(sT1), s(sT1)))
    a('s_add_u32 %s, %s, %s' % (s(sT0), s(sT0), s(sT1)))
    a('s_add_u32 %s, %s, %d' % (s(sT0), s(sT0), W_ST))
    a('v_mov_b32 %s, %s' % (v(vT+1), s(sT0)))
    a('global_load_dwordx2 %s, %s, %s' % (v(XS,2), v(vT), s(sX,2)))
    a('global_load_dwordx2 %s, %s, %s offset:32' % (v(XS+2,2), v(vT), s(sX,2)))
    a('global_load_dword %s, %s, %s sc1' % (v(XS+4), v(vT+1), s(sWS,2)))
    if o['wlate']: wloads()
    a('L_h_pre:')
    Dv = [vT+10+c for c in range(4)]
    a('s_lshl_b32 %s, %s, 16' % (s(sT0), s(sDS)))
    a('v_mov_b32 %s, %s' % (v(Dv[0]), s(sT0)))
    a('s_and_b32 %s, %s, %s' % (s(sT0), s(sDS), s(sHI)))
    a('v_mov_b32 %s, %s' % (v(Dv[1]), s(sT0)))
    a('s_lshl_b32 %s, %s, 16' % (s(sT0), s(sDS+1)))
    a('v_mov_b32 %s, %s' % (v(Dv[2]), s(sT0)))
    a('s_and_b32 %s, %s, %s' % (s(sT0), s(sDS+1), s(sHI)))
    a('v_mov_b32 %s, %s' % (v(Dv[3]), s(sT0)))
    for c in range(4):
        for r in range(4):
            src = XP + 2*c + (r >> 1)
            if r & 1: a('v_and_b32 %s, %s, %s' % (v(vXN+4*r+c), s(sHI), v(src)))
            else:     a('v_lshlrev_b32 %s, 16, %s' % (v(vXN+4*r+c), v(src)))
        for r in range(4): a('v_mul_f32 %s, 0xbfb8aa3b, %s' % (v(vT+r), v(vXN+4*r+c)))
        for r in range(4): a('v_exp_f32 %s, %s' % (v(vT+r), v(vT+r)))
        for r in range(4):
            a('v_mul_f32 %s, %s, %s' % (v(vE+4*r+c), v(vXN+4*r+c), v(Dv[c])))
            a('v_add_f32 %s, 1.0, %s' % (v(vT+r), v(vT+r)))
        for r in range(4): a('v_rcp_f32 %s, %s' % (v(vT+r), v(vT+r)))
        for r in range(4): a('v_mul_f32 %s, %s, %s' % (v(vXN+4*r+c), v(vXN+4*r+c), v(vT+r)))
        for r in range(4): a('v_fma_f32 %s, %s, %s, %s' % (v(vE+4*r+c), v(vE+4*r+c), v(vXN+4*r+c), v(vXF+4*r+c)))
    for r in range(4):
        a('v_add_u32 %s, %d, %s' % (v(vT), r, v(vROW)))
        a('v_cmp_ne_u32 %s, %s, %s' % (s(sM+2*r,2), s(sIDX), v(vT)))
    stamp(9)
    a('s_cmp_eq_u32 %s, 0' % s(sPROD))
    a('s_cbranch_scc1 L_h_b5')
    WF = vP + 8; DD = vP + 24; XA = vP + 40; WDF = vP + 48
    a('s_waitcnt vmcnt(0)')
    for sp in range(4):
        a('ds_read_b64_tr_b16 %s, %s offset:%d' % (v(WF+4*sp,2), v(vWT), 512*sp))
        a('ds_read_b64_tr_b16 %s, %s offset:%d' % (v(WF+4*sp+2,2), v(vWT), 512*sp + 256))
    a('v_and_b32 %s, %s, %s' % (v(vT), s(sHI), v(XS+4)))
    a('v_lshlrev_b32 %s, 16, %s' % (v(vT+1), v(XS+4)))
    a('v_rcp_f32 %s, %s' % (v(vT), v(vT)))
    for i in range(4):
        a('v_lshlrev_b32 %s, 16, %s' % (v(vT+2+2*i), v(XS+i)))
        a('v_and_b32 %s, %s, %s' % (v(vT+3+2*i), s(sHI), v(XS+i)))
    a('v_mul_f32_e64 %s, -%s, %s' % (v(vT+1), v(vT+1), v(vT)))
    for i in range(8): a('v_fma_f32 %s, %s, %s, %s' % (v(vT+2+i), v(vT+2+i), v(vT), v(vT+1)))
    for i in range(4): a('v_cvt_pk_bf16_f32 %s, %s, %s' % (v(XA+i), v(vT+2+2*i), v(vT+3+2*i)))
    a('s_waitcnt lgkmcnt(0)')
    for sp in range(4):
        a('v_mfma_f32_16x16x32_bf16 %s, %s, %s, 0' % (v(DD+4*sp,4), v(XA,4), v(WF+4*sp,4)))
    for i in range(8):
        a('v_lshlrev_b32 %s, 16, %s' % (v(WDF+2*i), v(vWD+i)))
        a('v_and_b32 %s, %s, %s' % (v(WDF+2*i+1), s(sHI), v(vWD+i)))
    a('v_add_f32 %s, %s, %s' % (v(vT), v(DD), v(DD+5)))
    a('v_add_f32 %s, %s, %s' % (v(vT+1), v(DD+10), v(DD+15)))
    a('v_mov_b32 %s, 1' % v(vT+2))
    a('v_add_f32 %s, %s, %s' % (v(vT), v(vT), v(vT+1)))
    a('ds_write_b32 %s, %s' % (v(vCB), v(vT)))
    a('s_mov_b64 exec, 1')
    a('ds_write_b32 %s, %s' % (v(vTW2), v(vT+2)))
    a('s_mov_b64 exec, -1')
    a('s_mov_b32 %s, %d' % (s(sCNT), o['spinmax']))
    a('L_hspin:')
    a('ds_read_b128 %s, %s' % (v(vT+4,4), v(vTW3)))
    for i in range(4): a('ds_read_b32 %s, %s offset:%d' % (v(vT+i), v(vTW1), i*320))
    a('s_waitcnt lgkmcnt(0)')
    a('v_and_b32 %s, %s, %s' % (v(vT+4), v(vT+4), v(vT+5)))
    a('v_and_b32 %s, %s, %s' % (v(vT+6), v(vT+6), v(vT+7)))
    a('v_and_b32 %s, %s, %s' % (v(vT+4), v(vT+4), v(vT+6)))
    a('v_cmp_eq_u32 vcc, 0, %s' % v(vT+4))
    a('s_cbranch_vccz L_hok')
    a('s_sub_u32 %s, %s, 1' % (s(sCNT), s(sCNT)))
    a('s_cmp_lg_u32 %s, 0' % s(sCNT))
    a('s_cbranch_scc1 L_hspin')
    a('L_hok:')
    a('v_add_f32 %s, %s, %s' % (v(vT), v(vT), v(vT+1)))
    a('v_add_f32 %s, %s, %s' % (v(vT+2), v(vT+2), v(vT+3)))
    a('v_add_f32 %s, %s, %s' % (v(vT), v(vT), v(vT+2)))
    a('v_cvt_pk_bf16_f32 %s, %s, %s' % (v(vT), v(vT), v(vT)))
    a('v_and_b32 %s, %s, %s' % (v(vT), s(sHI), v(vT)))
    a('v_mul_f32 %s, 0xbfb8aa3b, %s' % (v(vT+1), v(vT)))
    a('v_exp_f32 %s, %s' % (v(vT+1), v(vT+1)))
    a('v_mov_b32_dpp %s, %s row_ror:8 row_mask:0xf bank_mask:0xf' % (v(vT+2), v(vT)))
    a('v_add_f32 %s, 1.0, %s' % (v(vT+1), v(vT+1)))
    a('v_rcp_f32 %s, %s' % (v(vT+1), v(vT+1)))
    a('v_mul_f32 %s, %s, %s' % (v(vT+1), v(vT), v(vT+1)))
    a('v_cvt_pk_bf16_f32 %s, %s, %s' % (v(vT+1), v(vT+1), v(vT+1)))
    a('v_and_b32 %s, %s, %s' % (v(vT+1), s(sHI), v(vT+1)))
    a('v_mul_f32 %s, %s, %s' % (v(vT+1), v(vT+1), v(vT+2)))
    a('v_cvt_pk_bf16_f32 %s, %s, %s' % (v(vT+1), v(vT+1), v(vT+1)))
    a('v_and_b32 %s, %s, %s' % (v(vT+1), s(sHI), v(vT+1)))
    for i in range(8): a('v_readlane_b32 %s, %s, %d' % (s(sH8+i), v(vT+1), i))
    gq = vT+4
    a('v_mov_b32 %s, %s' % (v(gq+2), s(sTAG)))
    a('v_mov_b32 %s, 0' % v(gq+3))
    for i in range(8):
        for e in range(2):
            if i == 0: a('v_mul_f32 %s, %s, %s' % (v(gq+e), s(sH8), v(WDF+e)))
            else: a('v_fmac_f32 %s, %s, %s' % (v(gq+e), s(sH8+i), v(WDF+2*i+e)))
    a('global_store_dwordx4 %s, %s, %s sc1' % (v(vFPA), v(gq,4), s(sWS,2)))
    stamp(10)
    a('L_h_b5:')
    a('s_barrier')
    YR = vP
    for c in range(4): a('ds_read_b128 %s, %s offset:%d' % (v(YR+4*c,4), v(vY), c*YCS))
    a('s_waitcnt lgkmcnt(0)')
    for r in range(4):
        for c in range(4):
            a('v_fma_f32 %s, %s, %s, %s' % (v(vE+4*r+c), v(YR+4*c+r), v(vXN+4*r+c), v(vE+4*r+c)))
        a('v_cvt_pk_bf16_f32 %s, %s, %s' % (v(vD+2*r), v(vE+4*r), v(vE+4*r+1)))
        a('v_cvt_pk_bf16_f32 %s, %s, %s' % (v(vD+2*r+1), v(vE+4*r+2), v(vE+4*r+3)))
        a('s_mov_b64 exec, %s' % s(sM+2*r,2))
        a('global_store_dwordx2 %s, %s, %s offset:%d' % (v(vXG), v(vD+2*r,2), s(sOUT,2), r*1024))
        a('s_mov_b64 exec, -1')
    if o['stamp'] or o['diag'] >= 0 or o['diagclk']:
        stamp(11)
        a('s_waitcnt vmcnt(0)')
        stamp(12)
    if o['diag'] >= 0:
        if o['diagk'] >= 0:
            a('s_cmp_lg_u32 %s, %d' % (s(sK), o['diagk']))
            a('s_cbranch_scc1 L_end')
        a('s_memrealtime s[90:91]')
        a('s_sub_u32 s88, s88, s86')
        a('s_lshl_b32 s88, s88, 2')
        a('s_waitcnt lgkmcnt(0)')
        a('s_add_u32 s88, s88, s90')
        a('L_diag:')
        a('s_memrealtime s[90:91]')
        a('s_waitcnt lgkmcnt(0)')
        a('s_sub_u32 s90, s90, s88')
        a('s_cmp_lt_i32 s90, 0')
        a('s_cbranch_scc1 L_diag')
    if o['diagclk']:
        a('s_memtime s[88:89]')
        a('s_waitcnt lgkmcnt(0)')
        a('s_add_u32 s88, s88, %d' % o['diagclk'])
        a('L_diag:')
        a('s_memtime s[90:91]')
        a('s_waitcnt lgkmcnt(0)')
        a('s_sub_u32 s90, s90, s88')
        a('s_cmp_lt_i32 s90, 0')
        a('s_cbranch_scc1 L_diag')
    a('L_exit:')
    if o['stamp']:
        a('v_mov_b32 v254, 0')
        for i in range(14): a('v_writelane_b32 v254, s%d, %d' % (86+i, i))
        a('global_store_dword %s, v254, %s' % (v(vSTA), s(sWS,2)))
    a('L_end:')
    a('s_endpgm')
    a.raw('''.section .rodata,"a"
.p2align 6
.amdhsa_kernel %s_kernel
  .amdhsa_next_free_vgpr 256
  .amdhsa_next_free_sgpr 102
  .amdhsa_accum_offset 256
  .amdhsa_group_segment_fixed_size 0
  .amdhsa_kernarg_size 136
  .amdhsa_user_sgpr_count 2
  .amdhsa_user_sgpr_kernarg_segment_ptr 1
  .amdhsa_system_sgpr_workgroup_id_x 1
.end_amdhsa_kernel''' % KN)
    return a.text()

if __name__ == '__main__':
    out = sys.argv[1]
    opt = {}
    for kv in sys.argv[2:]:
        k, val = kv.split('='); opt[k] = int(val, 0)
    open(out, 'w').write(generate(**opt))
```

```python
import sys
from asmlib import *

KN = 'recurrent_scan__ssm_conv_s4__moe_arch_mod__prompt'

DEFAULTS = dict(stamp=0, wlate=1, force_slow=0, prefetch=1, spinmax=1<<16, dump=0, diag=-1, diagclk=0, cyc=0, nohelp=0, diagk=-1, maxout=15, group=3, minfly=6)

RS    = 2064
STAGE = 0
R4    = 0;      R4S = 18560; CAS = 288
YX    = 74240;  YCS = 5120; YTS = 1280; YGS = 320
U     = 109440; US = 4576
TAB   = 127744; TS = 1552
WL    = 133952; WL1 = 8320
SL    = 150528
AM    = 158720
FF    = 158752
FP    = 158784
LDS_BYTES = 159808
W_EP = 0; W_ST = 0x1000; W_FL = 0x6000; W_FP = 0x10000; W_IN = 0x100000; W_STAMP = 0x800000; W_DUMP = 0x1000000

sX, sARE, sAIM, sBRE, sBIM, sCRE, sCIM, sLDT = 4, 6, 8, 10, 12, 14, 16, 18
sDSK, sWR, sWG, sWU, sWD, sOUT, sDBG, sWS = 20, 24, 26, 28, 30, 32, 34, 36
sW, sK, sJ, sCGL, sH, sCH0, sT, sXCC, sTAG, sTAGX = 38, 39, 40, 41, 42, 43, 44, 45, 46, 47
sLD, sDS = 48, 50
sONES, sF8, sPROD, sIDX, sKEY, sCNT = 52, 53, 54, 55, 56, 57
sT0, sT1, sT2, sT3 = 58, 59, 60, 61
sM = 64
sH8 = 72
sHI = 80
sSTP = 82
sWI = 84

vTID, vL = 0, 1
vGA = 2
vSEL = 10
vR4W, vUW, vST0, vST1, vFL, vIN, vXG, vXC = 16, 17, 18, 19, 20, 21, 22, 23
vKA, vKB, vTW1, vTW2, vTW3, vTW4 = 24, 25, 26, 27, 28, 29
vCA, vCB, vY = 30, 31, 32
vCA2 = 33
vWT, vWDA, vFPA, vEP, vPF, vROW, vSTA = 33, 34, 35, 36, 37, 38, 39
vD = 40
vG = 48
vXF = 56
vXN = 72
vE = 88
vP = 104
vWD = 232
vT = 240

def cmul(a, d, x, y):
    a('v_pk_mul_f32 %s, %s, %s op_sel:[1,1] op_sel_hi:[1,0]' % (v(d,2), v(x,2), v(y,2)))
    a('v_pk_fma_f32 %s, %s, %s, %s op_sel:[0,0,0] op_sel_hi:[0,1,1] neg_lo:[0,0,1]' % (v(d,2), v(x,2), v(y,2), v(d,2)))

def tiles(h): return [2*i + ((i ^ h) & 1) for i in range(4)]

def generate(**opt):
    o = dict(DEFAULTS); o.update(opt)
    a = Asm()
    nstamp = [0]
    def stamp(i):
        if o['diag'] == i:
            a('s_memrealtime s[88:89]')
            a('s_waitcnt lgkmcnt(0)')
        if not o['stamp']: return
        a('%s %s' % ('s_memtime' if o['cyc'] else 's_memrealtime', s(sSTP,2)))
        a('s_waitcnt lgkmcnt(0)')
        a('s_mov_b32 s%d, %s' % (86+i, s(sSTP)))
    SV = 0
    def vm(n):
        a('s_waitcnt vmcnt(%d)' % (0 if SV else n))

    a.raw('; @launch grid=(256,1,1) block=(512,1,1) lds=%d' % LDS_BYTES)
    a.raw('.amdgcn_target "amdgcn-amd-amdhsa--gfx950"\n.text\n.globl %s_kernel\n.p2align 8\n.type %s_kernel,@function\n%s_kernel:' % (KN,KN,KN))
    a('''
    s_cmp_ge_u32 s2, 256
    s_cbranch_scc1 L_end
    s_load_dwordx16 s[4:19], s[0:1], 0
    s_load_dwordx16 s[20:35], s[0:1], 64
    s_load_dwordx2 s[36:37], s[0:1], 128
    ''')
    if o['diag'] >= 0: a('s_memrealtime s[86:87]')
    if o['stamp']: a('%s s[100:101]' % ('s_memtime' if o['cyc'] else 's_memrealtime'))
    a('v_lshrrev_b32 %s, 6, v0' % v(vT))
    a('v_and_b32 %s, 63, v0' % v(vL))
    a('v_readfirstlane_b32 %s, %s' % (s(sW), v(vT)))
    a('s_and_b32 %s, s2, 7' % s(sK))
    a('s_lshr_b32 %s, s2, 3' % s(sJ))
    a('s_and_b32 %s, %s, 15' % (s(sCGL), s(sJ)))
    a('s_lshr_b32 %s, %s, 4' % (s(sH), s(sJ)))
    a('s_lshl_b32 %s, %s, 6' % (s(sCH0), s(sK)))
    a('s_lshl_b32 %s, %s, 2' % (s(sT0), s(sCGL)))
    a('s_add_u32 %s, %s, %s' % (s(sCH0), s(sCH0), s(sT0)))
    a('s_and_b32 %s, %s, 3' % (s(sWI), s(sW)))
    for i in range(6): a('v_mov_b32 %s, 0' % v(vP+i))
    a('s_lshl_b32 %s, %s, 8' % (s(sT0), s(sCH0)))
    a('v_lshl_add_u32 %s, v0, 1, %s' % (v(vT+1), s(sT0)))
    a('v_mov_b32 %s, 0' % v(vT+2))
    if o['stamp']:
        a('s_lshl_b32 %s, s2, 3' % s(sT1))
        a('s_add_u32 %s, %s, %s' % (s(sT1), s(sT1), s(sW)))
        a('s_lshl_b32 %s, %s, 8' % (s(sT1), s(sT1)))
        a('s_add_u32 %s, %s, %d' % (s(sT1), s(sT1), W_STAMP))
        a('v_lshl_add_u32 %s, %s, 2, %s' % (v(vSTA), v(vL), s(sT1)))
        for i in range(14): a('s_mov_b32 s%d, 0' % (86+i))
    a('s_cmp_ge_u32 %s, 4' % s(sW))
    a('s_cbranch_scc1 L_h_load')
    a('s_lshl_b32 %s, %s, 16' % (s(sT0), s(sJ)))
    a('s_lshl_b32 %s, %s, 14' % (s(sT1), s(sW)))
    a('s_add_u32 %s, %s, %s' % (s(sT0), s(sT0), s(sT1)))
    a('s_lshl_b32 %s, %s, 7' % (s(sT1), s(sK)))
    a('s_add_u32 %s, %s, %s' % (s(sT0), s(sT0), s(sT1)))
    a('v_lshrrev_b32 %s, 3, %s' % (v(vT+3), v(vL)))
    a('v_and_b32 %s, 7, %s' % (v(vT+4), v(vL)))
    a('v_lshlrev_b32 %s, 10, %s' % (v(vT+3), v(vT+3)))
    a('v_lshl_add_u32 %s, %s, 4, %s' % (v(vT+3), v(vT+4), v(vT+3)))
    a('v_add_u32 %s, %s, %s' % (v(vT+3), s(sT0), v(vT+3)))
    a('v_add_u32 %s, 8192, %s' % (v(vT+4), v(vT+3)))
    a('s_waitcnt lgkmcnt(0)')
    if o['stamp']: a('s_mov_b32 s99, s100')
    stamp(0)
    a('global_load_dwordx4 %s, %s, %s' % (v(vD,4), v(vT+3), s(sX,2)))
    a('global_load_dwordx4 %s, %s, %s' % (v(vD+4,4), v(vT+4), s(sX,2)))
    a('s_branch L_param_load')
    a('L_h_load:')
    a('s_lshl_b32 %s, s2, 13' % s(sT0))
    a('s_lshl_b32 %s, %s, 11' % (s(sT1), s(sWI)))
    a('s_add_u32 %s, %s, %s' % (s(sT0), s(sT0), s(sT1)))
    a('v_and_b32 %s, 31, %s' % (v(vT+3), v(vL)))
    a('v_lshlrev_b32 %s, 4, %s' % (v(vT+3), v(vT+3)))
    a('v_lshrrev_b32 %s, 5, %s' % (v(vT+4), v(vL)))
    a('v_lshl_add_u32 %s, %s, 10, %s' % (v(vT+4), v(vT+4), v(vT+3)))
    a('v_add_u32 %s, %s, %s' % (v(vT+4), s(sT0), v(vT+4)))
    a('s_setprio 2')
    a('s_waitcnt lgkmcnt(0)')
    if o['stamp']: a('s_mov_b32 s99, s100')
    stamp(0)
    a('global_load_dwordx4 %s, %s, %s' % (v(vG,4), v(vT+3), s(sWR,2)))
    a('global_load_dwordx4 %s, %s, %s offset:512' % (v(vG+4,4), v(vT+3), s(sWR,2)))
    a('global_load_dwordx4 %s, %s, %s' % (v(vD,4), v(vT+4), s(sX,2)))
    a('global_load_dwordx4 %s, %s, %s offset:512' % (v(vD+4,4), v(vT+4), s(sX,2)))
    a('L_param_load:')
    for i, p in enumerate((sARE, sAIM, sBRE, sBIM, sCRE, sCIM)):
        a('global_load_short_d16_hi %s, %s, %s' % (v(vP+i), v(vT+1), s(p,2)))
    a('global_load_dword %s, %s, %s sc1' % (v(vEP), v(vT+2), s(sWS,2)))
    a('s_lshl_b32 %s, %s, 1' % (s(sT0), s(sCH0)))
    a('s_load_dwordx2 %s, %s, %s' % (s(sLD,2), s(sLDT,2), s(sT0)))
    a('s_load_dwordx2 %s, %s, %s' % (s(sDS,2), s(sDSK,2), s(sT0)))
    a('s_getreg_b32 %s, hwreg(HW_REG_XCC_ID, 0, 4)' % s(sXCC))
    a('s_mov_b32 %s, 0x3f803f80' % s(sONES))
    a('s_mov_b32 %s, 0xffff0000' % s(sHI))
    a('s_lshr_b32 %s, %s, 2' % (s(sT0), s(sW)))
    a('s_xor_b32 %s, %s, %s' % (s(sT0), s(sT0), s(sWI)))
    a('s_xor_b32 %s, %s, %s' % (s(sT0), s(sT0), s(sH)))
    a('s_xor_b32 %s, %s, 1' % (s(sT0), s(sT0)))
    a('s_and_b32 %s, %s, 1' % (s(sT0), s(sT0)))
    a('s_lshl_b32 %s, %s, 1' % (s(sT), s(sWI)))
    a('s_add_u32 %s, %s, %s' % (s(sT), s(sT), s(sT0)))
    a('s_lshr_b32 %s, %s, 3' % (s(sT0), s(sJ)))
    a('s_lshl_b32 %s, %s, 3' % (s(sT0), s(sT0)))
    a('s_add_u32 %s, %s, %s' % (s(sT0), s(sT0), s(sK)))
    a('s_lshl_b32 %s, %s, 3' % (s(sT0), s(sT0)))
    a('s_and_b32 %s, %s, 7' % (s(sT1), s(sJ)))
    a('s_add_u32 %s, %s, %s' % (s(sF8), s(sT0), s(sT1)))
    a('s_cmp_lt_u32 %s, 172' % s(sF8))
    a('s_cselect_b32 %s, 1, 0' % s(sPROD))

    a('v_mov_b32 %s, 0' % v(vT))
    a('v_mov_b32 %s, 0x3f80' % v(vT+1))
    a('s_lshl_b32 %s, %s, 8' % (s(sT0), s(sW)))
    a('s_mov_b32 m0, %s' % s(sT0))
    a('ds_write_addtid_b32 %s offset:%d' % (v(vT+1), STAGE))
    a('v_and_b32 %s, 127, v0' % v(vT+2))
    a('v_min_u32 %s, 119, %s' % (v(vT+2), v(vT+2)))
    a('v_lshrrev_b32 %s, 7, v0' % v(vT+3))
    a('v_mul_u32_u24 %s, %d, %s' % (v(vT+4), US, v(vT+3)))
    a('v_lshl_add_u32 %s, %s, 2, %s' % (v(vT+4), v(vT+2), v(vT+4)))
    a('v_add_u32 %s, %d, %s' % (v(vT+4), U, v(vT+4)))
    a('ds_write_b32 %s, %s' % (v(vT+4), v(vT)))
    a('v_mul_u32_u24 %s, %d, %s' % (v(vT+4), TS, v(vT+3)))
    a('v_and_b32 %s, 1, v0' % v(vT+2))
    a('v_lshl_add_u32 %s, %s, 2, %s' % (v(vT+4), v(vT+2), v(vT+4)))
    a('v_add_u32 %s, %d, %s' % (v(vT+4), TAB, v(vT+4)))
    a('ds_write_b32 %s, %s' % (v(vT+4), v(vT)))
    a('v_and_b32 %s, 3, v0' % v(vT+2))
    a('v_lshlrev_b32 %s, 2, %s' % (v(vT+2), v(vT+2)))
    a('v_add_u32 %s, %d, %s' % (v(vT+2), FF, v(vT+2)))
    a('ds_write_b32 %s, %s' % (v(vT+2), v(vT)))

    pos = [vXF+i for i in range(7)]
    a('v_lshlrev_b32 %s, 2, v0' % v(vT))
    for i in range(7):
        a('v_add_u32 %s, %d, %s' % (v(pos[i]), i+1, v(vT)))
    a('s_cmp_eq_u32 %s, 0' % s(sW))
    a('s_cbranch_scc1 L_pos_done')
    for i in range(7):
        a('v_add_u32 %s, -4, %s' % (v(pos[i]), v(pos[i])))
        a('v_cvt_f32_u32 %s, %s' % (v(pos[i]), v(pos[i])))
    for i in range(7):
        a('v_cvt_pk_bf16_f32 %s, %s, %s' % (v(pos[i]), v(pos[i]), v(pos[i])))
    for i in range(7):
        a('v_lshrrev_b32 %s, 16, %s' % (v(pos[i]), v(pos[i])))
        a('v_add_u32 %s, %d, %s' % (v(pos[i]), 4 - 0x4280, v(pos[i])))
    a('L_pos_done:')
    b1, b2 = vT+1, vT+2
    a('v_and_b32 %s, -2, %s' % (v(b1), v(pos[2])))
    a('v_add_u32 %s, -2, %s' % (v(b1), v(b1)))
    a('v_and_b32 %s, -2, %s' % (v(b2), v(pos[3])))
    for c in range(4):
        a('v_lshlrev_b32 %s, 1, %s' % (v(vGA+2*c), v(b1)))
        a('v_lshlrev_b32 %s, 1, %s' % (v(vGA+2*c+1), v(b2)))
        a('v_add_u32 %s, %d, %s' % (v(vGA+2*c), TAB + c*TS, v(vGA+2*c)))
        a('v_add_u32 %s, %d, %s' % (v(vGA+2*c+1), TAB + c*TS, v(vGA+2*c+1)))
    for i in range(3): a('v_sub_u32 %s, %s, %s' % (v(pos[i]), v(pos[i]), v(b1)))
    for i in range(3,7): a('v_sub_u32 %s, %s, %s' % (v(pos[i]), v(pos[i]), v(b2)))
    a('s_mov_b32 %s, 0x0202' % s(sT0))
    a('s_mov_b32 %s, 0x02020000' % s(sT1))
    a('v_mov_b32 %s, 0x01000100' % v(vT+3))
    def sel(dst, lo, hi, lo_add=0, hi_add=0):
        a('v_mad_u32_u24 %s, %s, %s, %s' % (v(dst), v(lo), s(sT0), v(vT+3)))
        a('v_mul_lo_u32 %s, %s, %s' % (v(vT+4), v(hi), s(sT1)))
        a('v_add_u32 %s, %s, %s' % (v(dst), v(dst), v(vT+4)))
        k = (lo_add*0x0202 + hi_add*0x02020000) & 0xffffffff
        if k: a('v_add_u32 %s, 0x%x, %s' % (v(dst), k, v(dst)))
    sel(vSEL+0, pos[1], pos[0])
    sel(vSEL+1, pos[2], pos[1])
    sel(vSEL+2, pos[3], pos[2], 2, -2)
    sel(vSEL+3, pos[4], pos[3])
    sel(vSEL+4, pos[5], pos[4])
    sel(vSEL+5, pos[6], pos[5])
    a('v_lshrrev_b32 %s, 2, v0' % v(vT))
    a('v_lshlrev_b32 %s, 4, %s' % (v(vT), v(vT)))
    a('v_lshl_add_u32 %s, v0, 5, %s' % (v(vR4W), v(vT)))
    a('v_add_u32 %s, %d, %s' % (v(vR4W), R4 + 144, v(vR4W)))
    a('s_lshl_b32 %s, %s, 6' % (s(sT0), s(sT)))
    a('v_add_u32 %s, %s, %s' % (v(vT), s(sT0), v(vL)))
    a('v_lshlrev_b32 %s, 2, %s' % (v(vROW), v(vT)))
    a('v_lshlrev_b32 %s, 3, %s' % (v(vUW), v(vT)))
    a('v_add_u32 %s, %d, %s' % (v(vUW), U + 480, v(vUW)))
    a('v_lshlrev_b32 %s, 4, %s' % (v(vST0), v(vT)))
    a('v_add_u32 %s, %d, %s' % (v(vST1), W_ST + 8192, v(vST0)))
    a('v_add_u32 %s, %d, %s' % (v(vST0), W_ST, v(vST0)))
    a('s_lshl_b32 %s, %s, 1' % (s(sT0), s(sCH0)))
    a('v_lshlrev_b32 %s, 12, %s' % (v(vXG), v(vT)))
    a('v_add_u32 %s, %s, %s' % (v(vXG), s(sT0), v(vXG)))
    a('v_lshrrev_b32 %s, 2, %s' % (v(vT+1), v(vT)))
    a('s_lshl_b32 %s, %s, 9' % (s(sT0), s(sK)))
    a('s_add_u32 %s, %s, %d' % (s(sT0), s(sT0), W_FL))
    a('v_lshl_add_u32 %s, %s, 2, %s' % (v(vFL), v(vT+1), s(sT0)))
    a('s_lshl_b32 %s, %s, 18' % (s(sT0), s(sK)))
    a('s_lshl_b32 %s, %s, 14' % (s(sT1), s(sCGL)))
    a('s_add_u32 %s, %s, %s' % (s(sT0), s(sT0), s(sT1)))
    a('s_add_u32 %s, %s, %d' % (s(sT2), s(sT0), W_IN))
    a('v_and_b32 %s, 3, %s' % (v(vT+2), v(vL)))
    a('v_lshlrev_b32 %s, 4, %s' % (v(vT+2), v(vT+2)))
    a('v_lshl_add_u32 %s, %s, 7, %s' % (v(vIN), v(vT+1), v(vT+2)))
    a('v_add_u32 %s, %s, %s' % (v(vIN), s(sT2), v(vIN)))
    a('v_lshrrev_b32 %s, 4, %s' % (v(vT+1), v(vT)))
    a('s_lshl_b32 %s, %s, 5' % (s(sT0), s(sK)))
    a('s_add_u32 %s, %s, %d' % (s(sT0), s(sT0), W_ST + 12))
    a('v_lshl_add_u32 %s, %s, 8, %s' % (v(vXC), v(vT+1), s(sT0)))
    a('v_and_b32 %s, 15, %s' % (v(vT+5), v(vL)))
    a('v_lshrrev_b32 %s, 4, %s' % (v(vT+6), v(vL)))
    a('s_cmp_ge_u32 %s, 4' % s(sW))
    a('s_cbranch_scc1 L_h_setup')

    a('v_and_b32 %s, 31, %s' % (v(vT), v(vL)))
    a('v_lshrrev_b32 %s, 5, %s' % (v(vT+1), v(vL)))
    a('s_lshl_b32 %s, %s, 9' % (s(sT0), s(sW)))
    a('v_lshl_add_u32 %s, %s, 4, %s' % (v(vT+2), v(vT+1), s(sT0)))
    a('s_movk_i32 %s, %d' % (s(sT1), RS))
    a('v_mad_u32_u24 %s, %s, %s, %s' % (v(vKB), v(vT), s(sT1), v(vT+2)))
    a('v_add_u32 %s, -16, %s' % (v(vT+3), v(vT)))
    a('v_cmp_lt_u32 vcc, 20, %s' % v(vT))
    a('v_cndmask_b32 %s, %s, %s, vcc' % (v(vT+3), v(vT), v(vT+3)))
    a('v_mad_u32_u24 %s, %s, %s, %s' % (v(vKA), v(vT+3), s(sT1), v(vT+2)))
    a('v_add_u32 %s, %d, %s' % (v(vKA), STAGE + 32*RS, v(vKA)))
    a('s_mul_i32 %s, %s, %d' % (s(sT0), s(sW), TS))
    a('s_add_u32 %s, %s, %d' % (s(sT0), s(sT0), TAB + 8))
    a('v_lshlrev_b32 %s, 4, %s' % (v(vTW1), v(vT)))
    a('v_lshl_add_u32 %s, %s, 3, %s' % (v(vTW1), v(vT+1), v(vTW1)))
    a('v_add_u32 %s, %s, %s' % (v(vTW1), s(sT0), v(vTW1)))
    a('v_cmp_eq_u32 vcc, 0, %s' % v(vT+1))
    a('v_lshlrev_b32 %s, 3, %s' % (v(vT+3), v(vT)))
    a('v_add_u32 %s, 512, %s' % (v(vT+3), v(vT+3)))
    a('v_lshlrev_b32 %s, 2, %s' % (v(vT+4), v(vT)))
    a('v_add_u32 %s, 768, %s' % (v(vT+4), v(vT+4)))
    a('v_cndmask_b32 %s, %s, %s, vcc' % (v(vTW2), v(vT+4), v(vT+3)))
    a('v_add_u32 %s, %s, %s' % (v(vTW2), s(sT0), v(vTW2)))
    a('v_mul_u32_u24 %s, 124, %s' % (v(vT+3), v(vT+1)))
    a('v_add3_u32 %s, %s, %s, 4' % (v(vTW3), v(vTW2), v(vT+3)))
    a('v_lshlrev_b32 %s, 1, %s' % (v(vTW4), v(vT)))
    a('v_lshl_add_u32 %s, %s, 8, %s' % (v(vTW4), v(vT+1), v(vTW4)))
    a('s_add_u32 %s, %s, 1024' % (s(sT0), s(sT0)))
    a('v_add_u32 %s, %s, %s' % (v(vTW4), s(sT0), v(vTW4)))
    a('s_mul_i32 %s, %s, %d' % (s(sT0), s(sW), R4S))
    a('s_add_u32 %s, %s, %d' % (s(sT0), s(sT0), R4))
    a('v_lshlrev_b32 %s, 3, %s' % (v(vT+3), v(vT+6)))
    a('v_sub_u32 %s, %s, %s' % (v(vT+3), v(vT+5), v(vT+3)))
    for reg, k in ((vCA, 32), (vCA2, 28)):
        a('v_add_u32 %s, %d, %s' % (v(vT+4), k, v(vT+3)))
        a('v_lshrrev_b32 %s, 4, %s' % (v(vT+7), v(vT+4)))
        a('v_lshl_add_u32 %s, %s, 3, %s' % (v(reg), v(vT+4), s(sT0)))
        a('v_lshl_add_u32 %s, %s, 4, %s' % (v(reg), v(vT+7), v(reg)))
    a('s_mul_i32 %s, %s, %d' % (s(sT0), s(sW), US))
    a('s_add_u32 %s, %s, %d' % (s(sT0), s(sT0), U))
    a('v_lshlrev_b32 %s, 4, %s' % (v(vT+3), v(vT+6)))
    a('v_lshl_add_u32 %s, %s, 5, %s' % (v(vT+3), v(vT+5), v(vT+3)))
    a('v_add_u32 %s, %s, %s' % (v(vCB), s(sT0), v(vT+3)))
    a('s_mul_i32 %s, %s, %d' % (s(sT0), s(sW), YCS))
    a('s_add_u32 %s, %s, %d' % (s(sT0), s(sT0), YX))
    a('v_mul_u32_u24 %s, %d, %s' % (v(vT+3), YGS, v(vT+6)))
    a('v_lshl_add_u32 %s, %s, 4, %s' % (v(vT+3), v(vT+5), v(vT+3)))
    a('v_add_u32 %s, %s, %s' % (v(vY), s(sT0), v(vT+3)))
    slw, slr, ina = vXN, vXN+1, vXN+4
    a('s_lshl_b32 %s, %s, 11' % (s(sT0), s(sW)))
    a('s_add_u32 %s, %s, %d' % (s(sT0), s(sT0), SL))
    a('v_lshrrev_b32 %s, 3, %s' % (v(vT), v(vL)))
    a('v_and_b32 %s, 7, %s' % (v(vT+1), v(vL)))
    a('v_lshrrev_b32 %s, 1, %s' % (v(vT+2), v(vT)))
    a('v_xor_b32 %s, %s, %s' % (v(vT+2), v(vT+2), v(vT+1)))
    a('v_lshlrev_b32 %s, 4, %s' % (v(vT+2), v(vT+2)))
    a('v_lshl_add_u32 %s, %s, 7, %s' % (v(vT+2), v(vT), v(vT+2)))
    a('v_add_u32 %s, %s, %s' % (v(slw), s(sT0), v(vT+2)))
    a('v_xor_b32 %s, 64, %s' % (v(slw+5), v(slw)))
    a('v_and_b32 %s, 3, %s' % (v(vT+2), v(vL)))
    a('v_bfe_u32 %s, %s, 2, 1' % (v(vT+3), v(vL)))
    a('v_lshl_add_u32 %s, %s, 1, %s' % (v(vT+2), v(vT+2), v(vT+3)))
    a('v_lshrrev_b32 %s, 1, %s' % (v(vT+3), v(vT)))
    a('v_xor_b32 %s, %s, %s' % (v(vT+3), v(vT+3), v(vT+2)))
    a('v_lshlrev_b32 %s, 4, %s' % (v(vT+3), v(vT+3)))
    a('v_lshl_add_u32 %s, %s, 8, %s' % (v(vT+3), v(vT+2), v(vT+3)))
    a('v_and_b32 %s, 1, %s' % (v(vT+4), v(vT)))
    a('v_lshl_add_u32 %s, %s, 3, %s' % (v(vT+3), v(vT+4), v(vT+3)))
    a('v_add_u32 %s, %s, %s' % (v(slr), s(sT0), v(vT+3)))
    a('v_xor_b32 %s, 64, %s' % (v(slr+1), v(slr)))
    a('s_lshl_b32 %s, %s, 18' % (s(sT0), s(sK)))
    a('s_lshl_b32 %s, %s, 9' % (s(sT1), s(sJ)))
    a('s_add_u32 %s, %s, %s' % (s(sT0), s(sT0), s(sT1)))
    a('s_lshl_b32 %s, %s, 7' % (s(sT1), s(sW)))
    a('s_add_u32 %s, %s, %s' % (s(sT0), s(sT0), s(sT1)))
    a('s_add_u32 %s, %s, %d' % (s(sT0), s(sT0), W_IN))
    a('v_lshlrev_b32 %s, 4, %s' % (v(vT+1), v(vT+1)))
    a('v_lshl_add_u32 %s, %s, 14, %s' % (v(vT+1), v(vT), v(vT+1)))
    a('v_add_u32 %s, %s, %s' % (v(ina), s(sT0), v(vT+1)))
    a('v_add_u32 %s, 0x20000, %s' % (v(ina-1), v(ina)))
    a('s_lshl_b32 %s, %s, 9' % (s(sT0), s(sK)))
    a('s_lshl_b32 %s, %s, 4' % (s(sT1), s(sJ)))
    a('s_add_u32 %s, %s, %s' % (s(sT0), s(sT0), s(sT1)))
    a('s_lshl_b32 %s, %s, 2' % (s(sT1), s(sW)))
    a('s_add_u32 %s, %s, %s' % (s(sT0), s(sT0), s(sT1)))
    a('s_add_u32 %s, %s, %d' % (s(sT0), s(sT0), W_FL))
    a('v_mov_b32 %s, %s' % (v(vFPA), s(sT0)))
    a('v_mov_b32 %s, 4096' % v(vWDA))
    vm(7)
    stamp(1)
    a('ds_write_b128 %s, %s' % (v(slw), v(vD,4)))
    a('ds_write_b128 %s, %s offset:1024' % (v(slw+5), v(vD+4,4)))
    a('ds_read_b64 %s, %s' % (v(vG,2), v(slr)))
    a('ds_read_b64 %s, %s offset:128' % (v(vG+2,2), v(slr)))
    a('ds_read_b64 %s, %s' % (v(vG+4,2), v(slr+1)))
    a('ds_read_b64 %s, %s offset:128' % (v(vG+6,2), v(slr+1)))
    a('s_waitcnt lgkmcnt(0)')
    a('global_store_dwordx4 %s, %s, %s' % (v(ina), v(vG,4), s(sWS,2)))
    a('global_store_dwordx4 %s, %s, %s' % (v(ina-1), v(vG+4,4), s(sWS,2)))
    vm(2)
    a('s_branch L_kgen')

    a('L_h_setup:')
    a('s_mul_i32 %s, %s, %d' % (s(sT0), s(sWI), YTS))
    a('s_add_u32 %s, %s, %d' % (s(sT0), s(sT0), YX))
    a('v_and_b32 %s, 3, %s' % (v(vT), v(vL)))
    a('v_lshrrev_b32 %s, 2, %s' % (v(vT+1), v(vL)))
    a('v_mul_u32_u24 %s, %d, %s' % (v(vT), YGS, v(vT)))
    a('v_lshl_add_u32 %s, %s, 4, %s' % (v(vT), v(vT+1), v(vT)))
    a('v_add_u32 %s, %s, %s' % (v(vY), s(sT0), v(vT)))
    a('v_lshrrev_b32 %s, 2, %s' % (v(vT), v(vT+5)))
    a('v_lshl_add_u32 %s, %s, 2, %s' % (v(vT), v(vT+6), v(vT)))
    a('v_bfe_u32 %s, %s, 1, 1' % (v(vT+1), v(vL)))
    a('v_mul_u32_u24 %s, %d, %s' % (v(vT+1), WL1, v(vT+1)))
    a('v_lshl_add_u32 %s, %s, 4, %s' % (v(vT), v(vT), v(vT+1)))
    a('v_and_b32 %s, 1, %s' % (v(vT+1), v(vL)))
    a('v_lshl_add_u32 %s, %s, 3, %s' % (v(vT), v(vT+1), v(vT)))
    a('s_lshl_b32 %s, %s, 11' % (s(sT0), s(sWI)))
    a('s_add_u32 %s, %s, %d' % (s(sT0), s(sT0), WL))
    a('v_add_u32 %s, %s, %s' % (v(vWT), s(sT0), v(vT)))
    a('s_lshl_b32 %s, %s, 7' % (s(sT0), s(sWI)))
    a('v_add_u32 %s, %s, %s' % (v(vT), s(sT0), v(vL)))
    a('s_lshl_b32 %s, %s, 4' % (s(sT1), s(sF8)))
    a('v_mul_u32_u24 %s, 2752, %s' % (v(vT), v(vT)))
    a('v_add_u32 %s, %s, %s' % (v(vKA), s(sT1), v(vT)))
    a('v_add_u32 %s, %d, %s' % (v(vKB), 64*2752, v(vKA)))
    a('v_and_b32 %s, 255, v0' % v(vT))
    a('s_lshl_b32 %s, %s, 13' % (s(sT0), s(sF8)))
    a('v_lshl_add_u32 %s, %s, 2, %s' % (v(vWDA), v(vT), s(sT0)))
    a('v_add_u32 %s, 4096, %s' % (v(vWDA), v(vWDA)))
    a('v_lshrrev_b32 %s, 1, %s' % (v(vT+1), v(vT)))
    a('v_mul_u32_u24 %s, 6144, %s' % (v(vT+1), v(vT+1)))
    a('v_and_b32 %s, 1, %s' % (v(vT), v(vT)))
    a('v_lshl_add_u32 %s, %s, 4, %s' % (v(vT+1), v(vT), v(vT+1)))
    a('s_lshl_b32 %s, %s, 5' % (s(sT0), s(sF8)))
    a('s_add_u32 %s, %s, %d' % (s(sT0), s(sT0), W_FP))
    a('v_add_u32 %s, %s, %s' % (v(vFPA), s(sT0), v(vT+1)))
    a('v_lshlrev_b32 %s, 3, %s' % (v(vT), v(vT+6)))
    a('v_lshl_add_u32 %s, %s, 6, %s' % (v(vCA), v(vT+5), v(vT)))
    a('s_lshl_b32 %s, %s, 8' % (s(sT0), s(sWI)))
    a('s_add_u32 %s, %s, %d' % (s(sT0), s(sT0), FP))
    a('v_lshl_add_u32 %s, %s, 2, %s' % (v(vCB), v(vL), s(sT0)))
    a('v_lshlrev_b32 %s, 2, %s' % (v(vTW1), v(vT+5)))
    a('v_add_u32 %s, %d, %s' % (v(vTW1), FP, v(vTW1)))
    a('s_lshl_b32 %s, %s, 2' % (s(sT0), s(sWI)))
    a('s_add_u32 %s, %s, %d' % (s(sT0), s(sT0), FF))
    a('v_mov_b32 %s, %s' % (v(vTW2), s(sT0)))
    a('v_mov_b32 %s, %d' % (v(vTW3), FF))
    a('s_lshl_b32 %s, s2, 5' % s(sT0))
    a('s_lshr_b32 %s, %s, 1' % (s(sT1), s(sWI)))
    a('s_lshl_b32 %s, %s, 4' % (s(sT1), s(sT1)))
    a('s_add_u32 %s, %s, %s' % (s(sT0), s(sT0), s(sT1)))
    a('s_and_b32 %s, %s, 1' % (s(sT1), s(sWI)))
    a('s_lshl_b32 %s, %s, 13' % (s(sT1), s(sT1)))
    a('s_add_u32 %s, %s, %s' % (s(sT0), s(sT0), s(sT1)))
    a('s_add_u32 %s, %s, %d' % (s(sT0), s(sT0), W_ST))
    a('v_mov_b32 %s, %s' % (v(vTW4), s(sT0)))
    rk, pfa = vXN, vXN+1
    a('s_lshl_b32 %s, s2, 3' % s(sT0))
    a('s_lshl_b32 %s, %s, 1' % (s(sT1), s(sWI)))
    a('s_add_u32 %s, %s, %s' % (s(sT0), s(sT0), s(sT1)))
    a('s_sub_u32 %s, 0xffff, %s' % (s(sT0), s(sT0)))
    a('v_lshrrev_b32 %s, 5, %s' % (v(rk), v(vL)))
    a('v_sub_u32 %s, %s, %s' % (v(rk), s(sT0), v(rk)))
    a('s_lshl_b32 %s, %s, 13' % (s(sT0), s(sH)))
    a('s_lshl_b32 %s, %s, 11' % (s(sT1), s(sWI)))
    a('s_add_u32 %s, %s, %s' % (s(sT0), s(sT0), s(sT1)))
    a('s_add_u32 %s, %s, %s' % (s(sT0), s(sT0), s(sT2)))
    a('v_lshl_add_u32 %s, %s, 7, %s' % (v(pfa), v(vT+5), s(sT0)))
    S1, S2, S3, S4 = vXF, vXF+1, vXF+2, vXF+3
    def red32(regs):
        for m in ('row_shr:1','row_shr:2','row_shr:4','row_shr:8'):
            for r in regs: a('v_add_f32_dpp %s, %s, %s %s row_mask:0xf bank_mask:0xf' % (v(r), v(r), v(r), m))
        for r in regs: a('v_add_f32_dpp %s, %s, %s row_bcast:15 row_mask:0xa bank_mask:0xf' % (v(r), v(r), v(r)))
    for r in (S1,S2,S3,S4): a('v_mov_b32 %s, 0' % v(r))
    vm(9)
    for i in range(8): a('v_dot2_f32_bf16 %s, %s, %s, %s' % (v(S4), v(vG+i), s(sONES), v(S4)))
    red32([S4])
    vm(7)
    stamp(1)
    if o['prefetch']:
        a('s_mov_b64 exec, 0xffff')
        a('global_load_dword %s, %s, %s nt' % (v(vPF), v(pfa), s(sWS,2)))
        a('s_mov_b64 exec, -1')
    for i in range(8):
        a('v_dot2_f32_bf16 %s, %s, %s, %s' % (v(S1), v(vD+i), s(sONES), v(S1)))
        a('v_dot2_f32_bf16 %s, %s, %s, %s' % (v(S2), v(vD+i), v(vD+i), v(S2)))
        a('v_dot2_f32_bf16 %s, %s, %s, %s' % (v(S3), v(vD+i), v(vG+i), v(S3)))
    red32([S1,S2,S3])
    t = vT
    a('v_mul_f32 %s, 0x3b000000, %s' % (v(S1), v(S1)))
    a('v_mul_f32 %s, 0x3b000000, %s' % (v(S2), v(S2)))
    a('v_fma_f32 %s, -%s, %s, %s' % (v(S2), v(S1), v(S1), v(S2)))
    a('v_max_f32 %s, 0, %s' % (v(S2), v(S2)))
    a('v_cvt_pk_bf16_f32 %s, %s, %s' % (v(t), v(S1), v(S2)))
    a('v_and_b32 %s, %s, %s' % (v(t), s(sHI), v(t)))
    a('v_add_f32 %s, 0x3727c5ac, %s' % (v(t), v(t)))
    a('v_cvt_pk_bf16_f32 %s, %s, %s' % (v(t), v(t), v(t)))
    a('v_and_b32 %s, %s, %s' % (v(t), s(sHI), v(t)))
    a('v_sqrt_f32 %s, %s' % (v(t), v(t)))
    g = vE
    a('v_cvt_pk_bf16_f32 %s, %s, %s' % (v(g+1), v(S1), v(t)))
    a('v_and_b32 %s, %s, %s' % (v(t), s(sHI), v(g+1)))
    a('v_lshlrev_b32 %s, 16, %s' % (v(t+1), v(g+1)))
    a('v_rcp_f32 %s, %s' % (v(t), v(t)))
    a('v_fma_f32 %s, -%s, %s, %s' % (v(S3), v(t+1), v(S4), v(S3)))
    a('v_readlane_b32 %s, %s, 31' % (s(sT0), v(g+1)))
    a('v_mul_f32 %s, %s, %s' % (v(S3), v(S3), v(t)))
    a('v_cvt_pk_bf16_f32 %s, %s, %s' % (v(S3), v(S3), v(S3)))
    a('v_mov_b32 %s, %s' % (v(g), s(sT0)))
    a('v_ashrrev_i32 %s, 31, %s' % (v(t), v(S3)))
    a('v_or_b32 %s, 0x80000000, %s' % (v(t), v(t)))
    a('v_xor_b32 %s, %s, %s' % (v(t), v(t), v(S3)))
    a('v_and_or_b32 %s, %s, %s, %s' % (v(t), v(t), s(sHI), v(rk)))
    vm(1 if o['prefetch'] else 0)
    a('v_readlane_b32 %s, %s, 31' % (s(sT0), v(t)))
    a('v_readfirstlane_b32 %s, %s' % (s(sTAG), v(vEP)))
    a('v_max_u32 %s, %s, %s' % (v(g+2), s(sT0), v(t)))
    a('s_add_u32 %s, %s, 16' % (s(sTAG), s(sTAG)))
    a('s_and_b32 %s, %s, -16' % (s(sTAG), s(sTAG)))
    a('s_or_b32 %s, %s, %s' % (s(sTAGX), s(sTAG), s(sXCC)))
    a('v_mov_b32 %s, %s' % (v(g+3), s(sTAGX)))
    a('s_mov_b32 exec_lo, 0')
    a('s_mov_b32 exec_hi, 0x80000000')
    a('global_store_dwordx4 %s, %s, %s sc1' % (v(vTW4), v(g,4), s(sWS,2)))
    a('s_mov_b64 exec, -1')
    a('s_setprio 0')
    stamp(2)
    if o['diag'] == 14:
        a('s_mov_b32 %s, %d' % (s(sCNT), o['spinmax']))
        a('L_dspin:')
        a('global_load_dwordx4 %s, %s, %s sc1' % (v(vG,4), v(vST0), s(sWS,2)))
        a('global_load_dwordx4 %s, %s, %s sc1' % (v(vG+4,4), v(vST1), s(sWS,2)))
        a('s_waitcnt vmcnt(0)')
        a('v_xor_b32 %s, %s, %s' % (v(vT), s(sTAG), v(vG+3)))
        a('v_xor_b32 %s, %s, %s' % (v(vT+1), s(sTAG), v(vG+7)))
        a('v_or_b32 %s, %s, %s' % (v(vT), v(vT), v(vT+1)))
        a('v_cmp_lt_u32 vcc, 15, %s' % v(vT))
        a('s_cbranch_vccz L_dok')
        a('s_sub_u32 %s, %s, 1' % (s(sCNT), s(sCNT)))
        a('s_cmp_lg_u32 %s, 0' % s(sCNT))
        a('s_cbranch_scc1 L_dspin')
        a('L_dok:')
        stamp(14)

    a('L_kgen:')
    are, aim, bre, bim, cre, cim = [vP+i for i in range(6)]
    dt = vP+6; t0 = vP+7
    z1, z2, z4, ZZ, w1, w2, w4, c0 = [vP+8+2*i for i in range(8)]
    hq = [vP+24+2*i for i in range(8)]
    lq = [vP+40+2*i for i in range(8)]
    cv = [vP+56+i for i in range(8)]
    a('s_waitcnt lgkmcnt(0)')
    a('s_lshr_b32 %s, %s, 1' % (s(sT0), s(sW)))
    a('s_lshl_b32 %s, %s, 4' % (s(sT0), s(sT0)))
    a('s_lshr_b64 %s, %s, %s' % (s(sLD,2), s(sLD,2), s(sT0)))
    a('s_lshl_b32 %s, %s, 16' % (s(sT0), s(sLD)))
    a('v_mov_b32 %s, 0x3fb8aa3b' % v(t0))
    a('v_mul_f32 %s, %s, %s' % (v(dt), s(sT0), v(t0)))
    a('v_exp_f32 %s, %s' % (v(dt), v(dt)))
    a('s_lshl_b32 %s, %s, 8' % (s(sT0), s(sW)))
    a('s_mov_b32 m0, %s' % s(sT0))
    a('v_cvt_pk_bf16_f32 %s, %s, %s' % (v(dt), v(dt), v(dt)))
    a('v_and_b32 %s, %s, %s' % (v(dt), s(sHI), v(dt)))
    a('v_mul_f32 %s, %s, %s' % (v(are), v(dt), v(are)))
    a('v_mul_f32 %s, %s, %s' % (v(aim), v(dt), v(aim)))
    a('v_mul_f32 %s, %s, %s' % (v(are), v(t0), v(are)))
    a('v_mul_f32 %s, 0.15915494, %s' % (v(aim), v(aim)))
    a('v_exp_f32 %s, %s' % (v(cv[0]), v(are)))
    a('v_fract_f32 %s, %s' % (v(cv[1]), v(aim)))
    a('v_mul_f32 %s, 0x43800000, %s' % (v(are), v(are)))
    a('v_cos_f32 %s, %s' % (v(z1), v(cv[1])))
    a('v_mul_f32 %s, 0x43800000, %s' % (v(aim), v(aim)))
    a('v_sin_f32 %s, %s' % (v(z1+1), v(cv[1])))
    a('v_fract_f32 %s, %s' % (v(cv[3]), v(aim)))
    a('v_exp_f32 %s, %s' % (v(cv[2]), v(are)))
    a('v_mul_f32 %s, %s, %s' % (v(z1), v(cv[0]), v(z1)))
    a('v_cos_f32 %s, %s' % (v(ZZ), v(cv[3])))
    a('v_mul_f32 %s, %s, %s' % (v(z1+1), v(cv[0]), v(z1+1)))
    a('v_sin_f32 %s, %s' % (v(ZZ+1), v(cv[3])))
    a('v_mul_f32 %s, %s, %s' % (v(bre), v(dt), v(bre)))
    a('v_mul_f32 %s, %s, %s' % (v(bim), v(dt), v(bim)))
    cmul(a, z2, z1, z1)
    a('v_mul_f32 %s, %s, %s' % (v(ZZ), v(cv[2]), v(ZZ)))
    a('v_mul_f32 %s, %s, %s' % (v(ZZ+1), v(cv[2]), v(ZZ+1)))
    cmul(a, hq[0], cre, bre)
    cmul(a, z4, z2, z2)
    ci = [0]
    m0_hi = [False]
    def put(row, reg, neg):
        c = cv[ci[0] % 8]; ci[0] += 1
        a('v_cvt_pk_bf16_f32 %s, %s, %s%s' % (v(c), v(reg), '-' if neg else '', v(reg+1)))
        off = row*RS - (30*RS if m0_hi[0] else 0)
        assert 0 <= off < 65536, (row, off)
        a('ds_write_addtid_b32 %s offset:%d' % (v(c), STAGE + off))
    cmul(a, w1, z4, z4)
    cmul(a, hq[1], hq[0], z1)
    cmul(a, w2, w1, w1)
    put(1, w1, False)
    cmul(a, hq[2], hq[0], z2)
    cmul(a, lq[3], w2, w1)
    put(2, w2, False)
    cmul(a, w4, w2, w2)
    put(3, lq[3], False)
    cur = {1: w1, 2: w2, 3: lq[3], 4: w4}
    put(4, w4, False)
    def lo_step(j):
        d = lq[j % 8]
        cmul(a, d, cur[j-4], w4); cur[j] = d
        put(j, d, False)
    for j in range(5, 14): lo_step(j)
    a('s_cmp_ge_u32 %s, 4' % s(sW))
    a('s_cbranch_scc1 L_noflag')
    a('s_waitcnt vmcnt(0)')
    a('v_readfirstlane_b32 %s, %s' % (s(sTAG), v(vEP)))
    a('s_add_u32 %s, %s, 16' % (s(sTAG), s(sTAG)))
    a('s_and_b32 %s, %s, -16' % (s(sTAG), s(sTAG)))
    a('s_or_b32 %s, %s, %s' % (s(sTAGX), s(sTAG), s(sXCC)))
    a('v_mov_b32 %s, %s' % (v(vT), s(sTAGX)))
    a('s_mov_b64 exec, 1')
    a('global_store_dword %s, %s, %s' % (v(vFPA), v(vT), s(sWS,2)))
    a('s_mov_b64 exec, -1')
    stamp(2)
    a('L_noflag:')
    for j in range(14, 30): lo_step(j)
    a('s_lshl_b32 %s, %s, 8' % (s(sT0), s(sW)))
    a('s_add_u32 %s, %s, %d' % (s(sT0), s(sT0), 30*RS))
    a('s_mov_b32 m0, %s' % s(sT0))
    m0_hi[0] = True
    for j in range(30, 32): lo_step(j)
    a('global_load_dword %s, %s, %s sc1' % (v(vPF), v(vFL), s(sWS,2)))
    put(32, hq[0], True); put(33, hq[1], True); put(34, hq[2], True)
    cmul(a, hq[3], hq[1], z2);  cmul(a, hq[4], hq[0], z4)
    put(35, hq[3], True); put(36, hq[4], True)
    cmul(a, hq[5], hq[1], z4);  cmul(a, hq[6], hq[2], z4); cmul(a, hq[7], hq[3], z4)
    put(37, hq[5], True); put(38, hq[6], True); put(39, hq[7], True)
    A0, A2, A4, A6 = lq[0], lq[1], lq[2], lq[3]
    cmul(a, A0, hq[0], ZZ); cmul(a, A2, hq[2], ZZ); cmul(a, A4, hq[4], ZZ); cmul(a, A6, hq[6], ZZ)
    put(40, A0, True)
    B0, B4 = lq[4], lq[5]
    cmul(a, B0, A0, ZZ); put(41, A2, True); cmul(a, B4, A4, ZZ); put(42, A4, True)
    C0, C4 = lq[6], lq[7]
    cmul(a, C0, B0, ZZ); put(43, A6, True); cmul(a, C4, B4, ZZ); put(44, B0, True)
    cmul(a, hq[1], C0, ZZ); put(45, B4, True); put(46, C0, True)
    cmul(a, hq[2], hq[1], ZZ); put(47, C4, True); put(48, hq[1], True)
    cmul(a, hq[3], hq[2], ZZ); put(49, hq[2], True)
    cmul(a, hq[4], hq[3], ZZ); put(50, hq[3], True)
    cmul(a, hq[5], hq[4], ZZ); put(51, hq[4], True); put(52, hq[5], True)
    stamp(3)

    a('s_waitcnt vmcnt(0)')
    a('v_cmp_ne_u32 vcc, %s, %s' % (s(sTAGX), v(vPF)))
    if o['force_slow']: a('s_branch L_gather')
    a('s_cbranch_vccz L_fast')
    a('s_mov_b32 %s, %d' % (s(sCNT), o['spinmax']))
    a('L_flagspin:')
    a('global_load_dword %s, %s, %s sc1' % (v(vPF), v(vFL), s(sWS,2)))
    a('global_load_dword %s, %s, %s sc1' % (v(vT), v(vXC), s(sWS,2)))
    a('s_waitcnt vmcnt(0)')
    a('v_cmp_ne_u32 vcc, %s, %s' % (s(sTAGX), v(vPF)))
    a('s_cbranch_vccz L_fast')
    a('v_xor_b32 %s, %s, %s' % (v(vT), s(sTAGX), v(vT)))
    a('v_add_u32 %s, -1, %s' % (v(vT), v(vT)))
    a('v_cmp_gt_u32 vcc, 15, %s' % v(vT))
    a('s_cbranch_vccnz L_gather')
    a('s_sub_u32 %s, %s, 1' % (s(sCNT), s(sCNT)))
    a('s_cmp_lg_u32 %s, 0' % s(sCNT))
    a('s_cbranch_scc1 L_flagspin')
    a('L_gather:')
    for r in range(4):
        a('global_load_dwordx2 %s, %s, %s offset:%d' % (v(vD+2*r,2), v(vXG), s(sX,2), r*1024))
    a('s_branch L_stats')
    a('L_fast:')
    a('global_load_dwordx4 %s, %s, %s sc1' % (v(vD,4), v(vIN), s(sWS,2)))
    a('global_load_dwordx4 %s, %s, %s offset:64 sc1' % (v(vD+4,4), v(vIN), s(sWS,2)))
    a('L_stats:')
    a('global_load_dwordx4 %s, %s, %s sc1' % (v(vG,4), v(vST0), s(sWS,2)))
    a('global_load_dwordx4 %s, %s, %s sc1' % (v(vG+4,4), v(vST1), s(sWS,2)))
    def wloads():
        a('s_lshl_b32 %s, %s, 11' % (s(sT0), s(sWI)))
        a('s_add_u32 %s, %s, %d' % (s(sT0), s(sT0), WL))
        for mu, base in enumerate((sWG, sWU)):
            for i, r in enumerate((vKA, vKB)):
                a('s_add_u32 m0, %s, %d' % (s(sT0), mu*WL1 + i*1024))
                a('global_load_lds_dwordx4 %s, %s' % (v(r), s(base,2)))
        for i in range(8):
            a('global_load_dword %s, %s, %s offset:%d' % (v(vWD+i), v(vWDA), s(sWD,2), i*1024 - 4096))
    a('s_waitcnt lgkmcnt(0)')
    stamp(4)
    a('s_barrier')
    a('s_cmp_ge_u32 %s, 4' % s(sW))
    a('s_cbranch_scc1 L_h_b3')
    KD = vP; KF = vP + 16
    NB = 6
    def kread(sidx):
        r = KF + 8*(sidx % NB)
        a('ds_read_b128 %s, %s offset:%d' % (v(r,4), v(vKA), 32*sidx))
        a('ds_read_b128 %s, %s offset:%d' % (v(r+4,4), v(vKB), 32*sidx))
    for i in range(NB): kread(i)
    for sidx in range(16):
        outstanding = min(16, sidx + NB) - sidx - 1
        a('s_waitcnt lgkmcnt(%d)' % (2*outstanding))
        r = KF + 8*(sidx % NB)
        a('v_mfma_f32_32x32x16_bf16 %s, %s, %s, %s' % (v(KD,16), v(r,4), v(r+4,4), '0' if sidx == 0 else v(KD,16)))
        if sidx + NB < 16: kread(sidx + NB)
    for i in range(6):
        a('v_cvt_pk_bf16_f32 %s, %s, %s' % (v(vT+i), v(KD+2*i), v(KD+2*i+1)))
    a('ds_write_b64 %s, %s' % (v(vTW1), v(vT,2)))
    a('ds_write_b32 %s, %s' % (v(vTW2), v(vT+2)))
    a('ds_write_b32 %s, %s' % (v(vTW3), v(vT+3)))
    a('ds_write_b16 %s, %s' % (v(vTW4), v(vT+4)))
    a('ds_write_b16_d16_hi %s, %s offset:64' % (v(vTW4), v(vT+4)))
    a('ds_write_b16 %s, %s offset:128' % (v(vTW4), v(vT+5)))
    a('ds_write_b16_d16_hi %s, %s offset:192' % (v(vTW4), v(vT+5)))
    a('s_waitcnt lgkmcnt(0)')
    a('s_branch L_b3')
    a('L_h_b3:')
    if not o['wlate']:
        a('s_cmp_eq_u32 %s, 0' % s(sPROD))
        a('s_cbranch_scc1 L_b3')
        a('s_waitcnt vmcnt(0)')
        wloads()
    a('L_b3:')
    stamp(5)
    a('s_barrier')
    Wq = vP; Q = vP + 16
    for c in range(4):
        a('ds_read2_b32 %s, %s offset0:0 offset1:1' % (v(Wq+4*c,2), v(vGA+2*c)))
        a('ds_read2_b32 %s, %s offset0:0 offset1:1' % (v(Wq+4*c+2,2), v(vGA+2*c+1)))
    a('s_cmp_lg_u32 %s, 7' % s(sW))
    a('s_cbranch_scc1 L_nopad')
    a('v_bfe_u32 %s, %s, 3, 2' % (v(vT), v(vL)))
    a('v_and_b32 %s, 7, %s' % (v(vT+1), v(vL)))
    a('v_mul_u32_u24 %s, %d, %s' % (v(vT), R4S, v(vT)))
    a('v_lshl_add_u32 %s, %s, 4, %s' % (v(vT), v(vT+1), v(vT)))
    for i in range(4): a('v_mov_b32 %s, 0' % v(vT+4+i))
    a('ds_write_b128 %s, %s offset:%d' % (v(vT), v(vT+4,4), R4))
    a('s_waitcnt lgkmcnt(1)')
    a('L_nopad:')
    for c in range(4):
        a('s_waitcnt lgkmcnt(%d)' % (6 if c == 0 else 6))
        W0, W1, W2, W3 = [Wq+4*c+i for i in range(4)]
        q = Q + 8*c
        a('v_perm_b32 %s, %s, %s, %s' % (v(q+0), v(W2), v(W1), v(vSEL+2)))
        a('v_perm_b32 %s, %s, %s, %s' % (v(q+1), v(W1), v(W0), v(vSEL+0)))
        a('v_perm_b32 %s, %s, %s, %s' % (v(q+2), v(W3), v(W2), v(vSEL+3)))
        a('v_perm_b32 %s, %s, %s, %s' % (v(q+3), v(W1), v(W0), v(vSEL+1)))
        a('ds_write_b128 %s, %s offset:%d' % (v(vR4W), v(q,4), c*R4S))
        a('v_perm_b32 %s, %s, %s, %s' % (v(q+4), v(W3), v(W2), v(vSEL+4)))
        a('v_mov_b32 %s, %s' % (v(q+5), v(q+0)))
        a('v_perm_b32 %s, %s, %s, %s' % (v(q+6), v(W3), v(W2), v(vSEL+5)))
        a('v_mov_b32 %s, %s' % (v(q+7), v(q+2)))
        a('ds_write_b128 %s, %s offset:%d' % (v(vR4W), v(q+4,4), c*R4S + 16))
    stamp(6)
    if o['wlate']: a('s_waitcnt vmcnt(0)')
    else:
        a('s_cmp_lt_u32 %s, 4' % s(sW))
        a('s_cbranch_scc1 L_nw0')
        a('s_cmp_lg_u32 %s, 0' % s(sPROD))
        a('s_cbranch_scc1 L_nw1')
        a('L_nw0:')
        a('s_waitcnt vmcnt(0)')
        a('L_nw1:')
    a('s_mov_b32 %s, %d' % (s(sCNT), o['spinmax']))
    a('L_statspin:')
    a('v_xor_b32 %s, %s, %s' % (v(vT), s(sTAG), v(vG+3)))
    a('v_xor_b32 %s, %s, %s' % (v(vT+1), s(sTAG), v(vG+7)))
    a('v_or_b32 %s, %s, %s' % (v(vT), v(vT), v(vT+1)))
    a('v_cmp_lt_u32 vcc, 15, %s' % v(vT))
    a('s_cbranch_vccz L_statok')
    a('global_load_dwordx4 %s, %s, %s sc1' % (v(vG,4), v(vST0), s(sWS,2)))
    a('global_load_dwordx4 %s, %s, %s sc1' % (v(vG+4,4), v(vST1), s(sWS,2)))
    a('s_sub_u32 %s, %s, 1' % (s(sCNT), s(sCNT)))
    a('s_cmp_lg_u32 %s, 0' % s(sCNT))
    a('s_waitcnt vmcnt(0)')
    a('s_cbranch_scc1 L_statspin')
    a('L_statok:')
    stamp(7)
    stq = [vG, vG+1, vG+4, vG+5]
    rho = [vT+i for i in range(4)]; mu = [vT+4+i for i in range(4)]
    key = vT+8
    for r in range(4): a('v_and_b32 %s, %s, %s' % (v(rho[r]), s(sHI), v(stq[r])))
    a('v_max_u32 %s, %s, %s' % (v(key), v(vG+2), v(vG+6)))
    for r in range(4):
        a('v_rcp_f32 %s, %s' % (v(rho[r]), v(rho[r])))
        a('v_lshlrev_b32 %s, 16, %s' % (v(mu[r]), v(stq[r])))
    kred = ['row_shr:1 row_mask:0xf','row_shr:2 row_mask:0xf','row_shr:4 row_mask:0xf','row_shr:8 row_mask:0xf','row_bcast:15 row_mask:0xa','row_bcast:31 row_mask:0xc']
    for r in range(4):
        a('v_mul_f32_e64 %s, -%s, %s' % (v(mu[r]), v(mu[r]), v(rho[r])))
        a('v_lshlrev_b32 %s, 16, %s' % (v(vXF+4*r), v(vD+2*r)))
        a('v_and_b32 %s, %s, %s' % (v(vXF+4*r+1), s(sHI), v(vD+2*r)))
        a('v_lshlrev_b32 %s, 16, %s' % (v(vXF+4*r+2), v(vD+2*r+1)))
        a('v_and_b32 %s, %s, %s' % (v(vXF+4*r+3), s(sHI), v(vD+2*r+1)))
        a('v_max_u32_dpp %s, %s, %s %s bank_mask:0xf' % (v(key), v(key), v(key), kred[r]))
        for c in range(4):
            a('v_fma_f32 %s, %s, %s, %s' % (v(vXN+4*r+c), v(vXF+4*r+c), v(rho[r]), v(mu[r])))
    a('v_max_u32_dpp %s, %s, %s %s bank_mask:0xf' % (v(key), v(key), v(key), kred[4]))
    XP = vG
    for c in range(4):
        a('v_cvt_pk_bf16_f32 %s, %s, %s' % (v(XP+2*c), v(vXN+c), v(vXN+4+c)))
        a('v_cvt_pk_bf16_f32 %s, %s, %s' % (v(XP+2*c+1), v(vXN+8+c), v(vXN+12+c)))
        a('ds_write_b64 %s, %s offset:%d' % (v(vUW), v(XP+2*c,2), c*US))
        if c == 0: a('v_max_u32_dpp %s, %s, %s %s bank_mask:0xf' % (v(key), v(key), v(key), kred[5]))
    a('s_lshl_b32 %s, %s, 2' % (s(sT0), s(sW)))
    a('s_add_u32 %s, %s, %d' % (s(sT0), s(sT0), AM))
    a('v_mov_b32 %s, %s' % (v(vT+9), s(sT0)))
    a('s_mov_b32 exec_lo, 0')
    a('s_mov_b32 exec_hi, 0x80000000')
    a('ds_write_b32 %s, %s' % (v(vT+9), v(key)))
    a('s_mov_b64 exec, -1')
    a('v_mov_b32 %s, %d' % (v(vT+9), AM))
    a('s_waitcnt lgkmcnt(0)')
    stamp(8)
    a('s_barrier')
    def read_idx():
        a('ds_read_b128 %s, %s' % (v(vT,4), v(vT+9)))
        a('ds_read_b128 %s, %s offset:16' % (v(vT+4,4), v(vT+9)))
        a('s_waitcnt lgkmcnt(0)')
        a('v_max3_u32 %s, %s, %s, %s' % (v(vT), v(vT), v(vT+1), v(vT+2)))
        a('v_max3_u32 %s, %s, %s, %s' % (v(vT+3), v(vT+3), v(vT+4), v(vT+5)))
        a('v_max3_u32 %s, %s, %s, %s' % (v(vT), v(vT), v(vT+6), v(vT+7)))
        a('v_max_u32 %s, %s, %s' % (v(vT), v(vT), v(vT+3)))
        a('v_readfirstlane_b32 %s, %s' % (s(sKEY), v(vT)))
        a('s_and_b32 %s, %s, 0xffff' % (s(sIDX), s(sKEY)))
        a('s_sub_u32 %s, 0xffff, %s' % (s(sIDX), s(sIDX)))
        a('s_and_b32 %s, %s, 2047' % (s(sIDX), s(sIDX)))
    a('s_cmp_ge_u32 %s, 4' % s(sW))
    a('s_cbranch_scc1 L_helper')

    ACC = vP; FR = vP + 16; NFR = 28
    stamp(10)
    a('s_setprio 1')
    a('s_cmp_eq_u32 %s, 0' % s(sH))
    a('s_cbranch_scc0 L_conv1')
    def conv(h):
        tl = tiles(h)
        ops = []
        for c0 in range(8):
            lst = [(i, c1, q - c1) for i, q in enumerate(tl) for c1 in range(q+1)]
            have = set(); seq = []
            while lst:
                def cost(x):
                    return (2*(('A',x[1]) not in have) + (('B',x[2]) not in have), bool(seq) and seq[-1][0] == x[0], max(x[1],x[2]))
                x = min(lst, key=cost); lst.remove(x); seq.append(x); have.add(('A',x[1])); have.add(('B',x[2]))
            for i, c1, qp in seq: ops.append((i, ('A', c0, c1), ('B', c0, qp)))
        order = []; last = {}
        for n, (i, ak, bk) in enumerate(ops):
            for k in (bk, ak):
                if k not in last: order.append(k)
                last[k] = n
        L = []
        for k in order:
            L += [(k,0),(k,1)] if k[0] == 'A' else [(k,0)]
        endidx = {}
        for j,(k,p) in enumerate(L): endidx[k] = j+1
        need = []; m = 0
        for (i, ak, bk) in ops:
            m = max(m, endidx[ak], endidx[bk]); need.append(m)
        free = list(range(NFR)); slot = {}
        st = dict(issued=0, done=0)
        MAXOUT = o['maxout']; G = o['group']
        def can_issue():
            if st['issued'] >= len(L): return False
            if st['issued'] - st['done'] >= MAXOUT: return False
            k,p = L[st['issued']]
            return p == 1 or bool(free)
        def issue():
            k,p = L[st['issued']]
            if p == 0: slot[k] = free.pop(0)
            r = FR + 4*slot[k]
            if k[0] == 'A':
                off = CAS*(8*k[2] + k[1])
                a('ds_read_b64 %s, %s offset:%d' % (v(r+2*p,2), v(vCA2 if p else vCA), off))
            else:
                off = 2*(224 + 256*k[2] - 32*k[1])
                a('ds_read_b128 %s, %s offset:%d' % (v(r,4), v(vCB), off))
            st['issued'] += 1
        started = set()
        while can_issue(): issue()
        for n, (i, ak, bk) in enumerate(ops):
            if need[n] > st['done']:
                while st['issued'] < need[n]:
                    st['done'] = max(st['done'], st['issued'] - MAXOUT + 1); issue()
                tgt = need[n]
                for m2 in range(n, min(n+G, len(ops))):
                    if need[m2] <= st['issued'] - o['minfly'] or need[m2] == len(L) == st['issued']: tgt = max(tgt, need[m2])
                a('s_waitcnt lgkmcnt(%d)' % (st['issued'] - tgt)); st['done'] = tgt
            acc = ACC + 4*i
            cin = v(acc,4) if i in started else '0'
            started.add(i)
            a('v_mfma_f32_16x16x32_bf16 %s, %s, %s, %s' % (v(acc,4), v(FR+4*slot[ak],4), v(FR+4*slot[bk],4), cin))
            for k in (ak, bk):
                if last[k] == n: free.append(slot[k])
            budget = 2
            if n+1 < len(ops) and need[n+1] > st['done']: budget = 1
            while budget > 0 and can_issue():
                issue(); budget -= 1
    conv(0)
    a('s_branch L_convdone')
    a('L_conv1:')
    conv(1)
    a('L_convdone:')
    a('s_nop 7')
    for i in range(4):
        a('ds_write_b128 %s, %s offset:%d' % (v(vY), v(ACC+4*i,4), i*YTS))
    a('s_waitcnt lgkmcnt(0)')
    stamp(9)
    a('s_barrier')
    a('s_cmp_lg_u32 %s, 0' % s(sW))
    a('s_cbranch_scc1 L_exit')
    a('s_cmp_lg_u32 s2, 0')
    a('s_cbranch_scc1 L_noep')
    a('v_mov_b32 %s, 0' % v(vT+10))
    a('v_mov_b32 %s, %s' % (v(vT+11), s(sTAG)))
    a('s_mov_b64 exec, 1')
    a('global_store_dword %s, %s, %s sc1' % (v(vT+10), v(vT+11), s(sWS,2)))
    a('s_mov_b64 exec, -1')
    a('L_noep:')
    read_idx()
    a('s_lshr_b32 %s, %s, 8' % (s(sT0), s(sIDX)))
    a('s_lshr_b32 %s, %s, 9' % (s(sT1), s(sIDX)))
    a('s_xor_b32 %s, %s, %s' % (s(sT0), s(sT0), s(sT1)))
    a('s_xor_b32 %s, %s, %s' % (s(sT0), s(sT0), s(sH)))
    a('s_bitcmp1_b32 %s, 0' % s(sT0))
    a('s_cbranch_scc1 L_exit')
    if o['nohelp']: a('s_branch L_exit')
    a('s_setprio 3')
    F = vP
    par = vT+12
    a('v_and_b32 %s, 1, %s' % (v(par), v(vL)))
    a('s_lshr_b32 %s, %s, 2' % (s(sT0), s(sCH0)))
    a('s_mul_i32 %s, %s, 6144' % (s(sT0), s(sT0)))
    a('s_add_u32 %s, %s, %d' % (s(sT0), s(sT0), W_FP + 3072))
    a('v_lshl_add_u32 %s, %s, 4, %s' % (v(vFPA), v(vL), s(sT0)))
    a('s_lshl_b32 %s, %s, 10' % (s(sT0), s(sIDX)))
    a('s_lshl_b32 %s, %s, 1' % (s(sT2), s(sCH0)))
    a('s_add_u32 %s, %s, %s' % (s(sT0), s(sT0), s(sT2)))
    xo, xv = vT+13, vXF+8
    a('v_lshl_add_u32 %s, %s, 2, %s' % (v(xo), v(par), s(sT0)))
    a('global_load_dword %s, %s, %s' % (v(xv), v(xo), s(sX,2)))
    a('s_mul_i32 %s, %s, %d' % (s(sT1), s(sT1), YTS))
    a('s_bfe_u32 %s, %s, 0x20002' % (s(sT0), s(sIDX)))
    a('s_mul_i32 %s, %s, %d' % (s(sT0), s(sT0), YGS))
    a('s_add_u32 %s, %s, %s' % (s(sT1), s(sT1), s(sT0)))
    a('s_bfe_u32 %s, %s, 0x40004' % (s(sT0), s(sIDX)))
    a('s_lshl_b32 %s, %s, 4' % (s(sT0), s(sT0)))
    a('s_add_u32 %s, %s, %s' % (s(sT1), s(sT1), s(sT0)))
    a('s_and_b32 %s, %s, 3' % (s(sT0), s(sIDX)))
    a('s_lshl_b32 %s, %s, 2' % (s(sT0), s(sT0)))
    a('s_add_u32 %s, %s, %s' % (s(sT1), s(sT1), s(sT0)))
    a('s_add_u32 %s, %s, %d' % (s(sT1), s(sT1), YX))
    a('v_mul_u32_u24 %s, %d, %s' % (v(vT), 2*YCS, v(par)))
    a('v_add_u32 %s, %s, %s' % (v(vT), s(sT1), v(vT)))
    y0, y1, n0, n1, d0, d1 = vXF, vXF+1, vXF+2, vXF+3, vXF+4, vXF+5
    a('ds_read_b32 %s, %s' % (v(y0), v(vT)))
    a('ds_read_b32 %s, %s offset:%d' % (v(y1), v(vT), YCS))
    a('s_lshl_b32 %s, %s, 1' % (s(sT0), s(sIDX)))
    a('s_add_u32 %s, %s, %d' % (s(sT0), s(sT0), U + 480))
    a('v_mul_u32_u24 %s, %d, %s' % (v(vT+1), 2*US, v(par)))
    a('v_add_u32 %s, %s, %s' % (v(vT+1), s(sT0), v(vT+1)))
    a('ds_read_u16 %s, %s' % (v(n0), v(vT+1)))
    a('ds_read_u16 %s, %s offset:%d' % (v(n1), v(vT+1), US))
    a('v_cmp_eq_u32 vcc, 0, %s' % v(par))
    a('v_mov_b32 %s, %s' % (v(d0), s(sDS)))
    a('v_mov_b32 %s, %s' % (v(d1), s(sDS+1)))
    a('v_cndmask_b32 %s, %s, %s, vcc' % (v(d0), v(d1), v(d0)))
    a('v_and_b32 %s, %s, %s' % (v(d1), s(sHI), v(d0)))
    a('v_lshlrev_b32 %s, 16, %s' % (v(d0), v(d0)))
    a('s_and_b32 %s, %s, %s' % (s(sT0), s(sKEY), s(sHI)))
    a('s_xor_b32 %s, %s, 0x80000000' % (s(sT1), s(sT0)))
    a('s_xor_b32 %s, %s, %s' % (s(sT2), s(sT0), s(sHI)))
    a('s_bitcmp1_b32 %s, 31' % s(sT0))
    a('s_cselect_b32 %s, %s, %s' % (s(sT0), s(sT1), s(sT2)))
    sg = vXF+6
    a('v_mov_b32 %s, 0xbfb8aa3b' % v(vT+2))
    a('v_mul_f32 %s, %s, %s' % (v(sg), s(sT0), v(vT+2)))
    a('v_exp_f32 %s, %s' % (v(sg), v(sg)))
    a('v_add_f32 %s, 1.0, %s' % (v(sg), v(sg)))
    a('v_rcp_f32 %s, %s' % (v(sg), v(sg)))
    a('v_cvt_pk_bf16_f32 %s, %s, %s' % (v(sg), v(sg), v(sg)))
    a('v_and_b32 %s, %s, %s' % (v(sg), s(sHI), v(sg)))
    a('v_mov_b32 %s, 0' % v(F+20))
    a('v_mov_b32 %s, 0' % v(F+21))
    a('v_mov_b32 %s, %s' % (v(F+22), s(sTAG)))
    a('s_waitcnt lgkmcnt(0)')
    a('v_lshlrev_b32 %s, 16, %s' % (v(n0), v(n0)))
    a('v_lshlrev_b32 %s, 16, %s' % (v(n1), v(n1)))
    a('v_fma_f32 %s, %s, %s, %s' % (v(y0), v(n0), v(d0), v(y0)))
    a('v_fma_f32 %s, %s, %s, %s' % (v(y1), v(n1), v(d1), v(y1)))
    a('s_mov_b32 %s, %d' % (s(sCNT), o['spinmax']))
    a('L_ffnspin:')
    for i in range(5):
        a('global_load_dwordx4 %s, %s, %s offset:%d sc1' % (v(F+4*i,4), v(vFPA), s(sWS,2), i*1024 - 3072))
    a('s_mov_b64 exec, 0xffffff')
    a('global_load_dwordx4 %s, %s, %s offset:2048 sc1' % (v(F+20,4), v(vFPA), s(sWS,2)))
    a('s_mov_b64 exec, -1')
    a('s_waitcnt vmcnt(0)')
    for i in range(6): a('v_xor_b32 %s, %s, %s' % (v(vT+i), s(sTAG), v(F+4*i+2)))
    a('v_or3_b32 %s, %s, %s, %s' % (v(vT), v(vT), v(vT+1), v(vT+2)))
    a('v_or3_b32 %s, %s, %s, %s' % (v(vT+3), v(vT+3), v(vT+4), v(vT+5)))
    a('v_or_b32 %s, %s, %s' % (v(vT), v(vT), v(vT+3)))
    a('v_cmp_ne_u32 vcc, 0, %s' % v(vT))
    a('s_cbranch_vccz L_ffnok')
    a('s_sub_u32 %s, %s, 1' % (s(sCNT), s(sCNT)))
    a('s_cmp_lg_u32 %s, 0' % s(sCNT))
    a('s_cbranch_scc1 L_ffnspin')
    a('L_ffnok:')
    stamp(11)
    p0, p1 = F, F+1
    for e in range(2):
        a('v_add_f32 %s, %s, %s' % (v(F+e), v(F+e), v(F+4+e)))
        a('v_add_f32 %s, %s, %s' % (v(F+8+e), v(F+8+e), v(F+12+e)))
        a('v_add_f32 %s, %s, %s' % (v(F+16+e), v(F+16+e), v(F+20+e)))
    for e in range(2): a('v_add_f32 %s, %s, %s' % (v(F+e), v(F+e), v(F+8+e)))
    for e in range(2): a('v_add_f32 %s, %s, %s' % (v(F+e), v(F+e), v(F+16+e)))
    for m in (2,4,8):
        for e in range(2): a('v_add_f32_dpp %s, %s, %s row_ror:%d row_mask:0xf bank_mask:0xf' % (v(F+e), v(F+e), v(F+e), m))
    for pl in ('v_permlane16_swap_b32','v_permlane32_swap_b32'):
        for e in range(2): a('v_mov_b32 %s, %s' % (v(F+4+e), v(F+e)))
        for e in range(2): a('%s %s, %s' % (pl, v(F+e), v(F+4+e)))
        for e in range(2): a('v_add_f32 %s, %s, %s' % (v(F+e), v(F+e), v(F+4+e)))
    def rnd2(r0, r1, t):
        a('v_cvt_pk_bf16_f32 %s, %s, %s' % (v(t), v(r0), v(r1)))
        a('v_lshlrev_b32 %s, 16, %s' % (v(r0), v(t)))
        a('v_and_b32 %s, %s, %s' % (v(r1), s(sHI), v(t)))
    rnd2(p0, p1, vT)
    for e in range(2): a('v_mul_f32 %s, %s, %s' % (v(F+e), v(F+e), v(sg)))
    rnd2(p0, p1, vT)
    a('v_add_f32 %s, %s, %s' % (v(p0), v(p0), v(n0)))
    a('v_add_f32 %s, %s, %s' % (v(p1), v(p1), v(n1)))
    rnd2(p0, p1, vT)
    for e in range(2): a('v_mul_f32 %s, 0xbfb8aa3b, %s' % (v(F+4+e), v(F+e)))
    for e in range(2): a('v_exp_f32 %s, %s' % (v(F+4+e), v(F+4+e)))
    for e in range(2): a('v_add_f32 %s, 1.0, %s' % (v(F+4+e), v(F+4+e)))
    for e in range(2): a('v_rcp_f32 %s, %s' % (v(F+4+e), v(F+4+e)))
    a('v_lshlrev_b32 %s, 16, %s' % (v(vT+1), v(xv)))
    a('v_and_b32 %s, %s, %s' % (v(vT+2), s(sHI), v(xv)))
    for e in range(2): a('v_mul_f32 %s, %s, %s' % (v(F+e), v(F+e), v(F+4+e)))
    a('v_fma_f32 %s, %s, %s, %s' % (v(vT+1), v(y0), v(p0), v(vT+1)))
    a('v_fma_f32 %s, %s, %s, %s' % (v(vT+2), v(y1), v(p1), v(vT+2)))
    a('v_cvt_pk_bf16_f32 %s, %s, %s' % (v(vT), v(vT+1), v(vT+2)))
    a('s_mov_b64 exec, 3')
    a('global_store_dword %s, %s, %s' % (v(xo), v(vT), s(sOUT,2)))
    a('s_mov_b64 exec, -1')
    if o['stamp']:
        a('s_waitcnt vmcnt(0)')
        stamp(12)
        a('s_branch L_exit')
    else:
        a('s_endpgm')

    a('L_helper:')
    if o['nohelp']:
        a('s_barrier')
        a('s_branch L_exit')
    read_idx()
    XS = vP
    a('s_cmp_eq_u32 %s, 0' % s(sPROD))
    a('s_cbranch_scc1 L_h_pre')
    a('s_lshl_b32 %s, %s, 10' % (s(sT0), s(sIDX)))
    a('v_add_u32 %s, %s, %s' % (v(vT), s(sT0), v(vCA)))
    a('s_lshr_b32 %s, %s, 2' % (s(sT0), s(sIDX)))
    a('s_lshl_b32 %s, %s, 4' % (s(sT0), s(sT0)))
    a('s_bfe_u32 %s, %s, 0x10001' % (s(sT1), s(sIDX)))
    a('s_lshl_b32 %s, %s, 13' % (s(sT1), s(sT1)))
    a('s_add_u32 %s, %s, %s' % (s(sT0), s(sT0), s(sT1)))
    a('s_and_b32 %s, %s, 1' % (s(sT1), s(sIDX)))
    a('s_lshl_b32 %s, %s, 2' % (s(sT1), s(sT1)))
    a('s_add_u32 %s, %s, %s' % (s(sT0), s(sT0), s(sT1)))
    a('s_add_u32 %s, %s, %d' % (s(sT0), s(sT0), W_ST))
    a('v_mov_b32 %s, %s' % (v(vT+1), s(sT0)))
    a('global_load_dwordx2 %s, %s, %s' % (v(XS,2), v(vT), s(sX,2)))
    a('global_load_dwordx2 %s, %s, %s offset:32' % (v(XS+2,2), v(vT), s(sX,2)))
    a('global_load_dword %s, %s, %s sc1' % (v(XS+4), v(vT+1), s(sWS,2)))
    if o['wlate']: wloads()
    a('L_h_pre:')
    Dv = [vT+10+c for c in range(4)]
    a('s_lshl_b32 %s, %s, 16' % (s(sT0), s(sDS)))
    a('v_mov_b32 %s, %s' % (v(Dv[0]), s(sT0)))
    a('s_and_b32 %s, %s, %s' % (s(sT0), s(sDS), s(sHI)))
    a('v_mov_b32 %s, %s' % (v(Dv[1]), s(sT0)))
    a('s_lshl_b32 %s, %s, 16' % (s(sT0), s(sDS+1)))
    a('v_mov_b32 %s, %s' % (v(Dv[2]), s(sT0)))
    a('s_and_b32 %s, %s, %s' % (s(sT0), s(sDS+1), s(sHI)))
    a('v_mov_b32 %s, %s' % (v(Dv[3]), s(sT0)))
    for c in range(4):
        for r in range(4):
            src = XP + 2*c + (r >> 1)
            if r & 1: a('v_and_b32 %s, %s, %s' % (v(vXN+4*r+c), s(sHI), v(src)))
            else:     a('v_lshlrev_b32 %s, 16, %s' % (v(vXN+4*r+c), v(src)))
        for r in range(4): a('v_mul_f32 %s, 0xbfb8aa3b, %s' % (v(vT+r), v(vXN+4*r+c)))
        for r in range(4): a('v_exp_f32 %s, %s' % (v(vT+r), v(vT+r)))
        for r in range(4):
            a('v_mul_f32 %s, %s, %s' % (v(vE+4*r+c), v(vXN+4*r+c), v(Dv[c])))
            a('v_add_f32 %s, 1.0, %s' % (v(vT+r), v(vT+r)))
        for r in range(4): a('v_rcp_f32 %s, %s' % (v(vT+r), v(vT+r)))
        for r in range(4): a('v_mul_f32 %s, %s, %s' % (v(vXN+4*r+c), v(vXN+4*r+c), v(vT+r)))
        for r in range(4): a('v_fma_f32 %s, %s, %s, %s' % (v(vE+4*r+c), v(vE+4*r+c), v(vXN+4*r+c), v(vXF+4*r+c)))
    for r in range(4):
        a('v_add_u32 %s, %d, %s' % (v(vT), r, v(vROW)))
        a('v_cmp_ne_u32 %s, %s, %s' % (s(sM+2*r,2), s(sIDX), v(vT)))
    stamp(9)
    a('s_cmp_eq_u32 %s, 0' % s(sPROD))
    a('s_cbranch_scc1 L_h_b5')
    WF = vP + 8; DD = vP + 24; XA = vP + 40; WDF = vP + 48
    a('s_waitcnt vmcnt(0)')
    for sp in range(4):
        a('ds_read_b64_tr_b16 %s, %s offset:%d' % (v(WF+4*sp,2), v(vWT), 512*sp))
        a('ds_read_b64_tr_b16 %s, %s offset:%d' % (v(WF+4*sp+2,2), v(vWT), 512*sp + 256))
    a('v_and_b32 %s, %s, %s' % (v(vT), s(sHI), v(XS+4)))
    a('v_lshlrev_b32 %s, 16, %s' % (v(vT+1), v(XS+4)))
    a('v_rcp_f32 %s, %s' % (v(vT), v(vT)))
    for i in range(4):
        a('v_lshlrev_b32 %s, 16, %s' % (v(vT+2+2*i), v(XS+i)))
        a('v_and_b32 %s, %s, %s' % (v(vT+3+2*i), s(sHI), v(XS+i)))
    a('v_mul_f32_e64 %s, -%s, %s' % (v(vT+1), v(vT+1), v(vT)))
    for i in range(8): a('v_fma_f32 %s, %s, %s, %s' % (v(vT+2+i), v(vT+2+i), v(vT), v(vT+1)))
    for i in range(4): a('v_cvt_pk_bf16_f32 %s, %s, %s' % (v(XA+i), v(vT+2+2*i), v(vT+3+2*i)))
    a('s_waitcnt lgkmcnt(0)')
    for sp in range(4):
        a('v_mfma_f32_16x16x32_bf16 %s, %s, %s, 0' % (v(DD+4*sp,4), v(XA,4), v(WF+4*sp,4)))
    for i in range(8):
        a('v_lshlrev_b32 %s, 16, %s' % (v(WDF+2*i), v(vWD+i)))
        a('v_and_b32 %s, %s, %s' % (v(WDF+2*i+1), s(sHI), v(vWD+i)))
    a('v_add_f32 %s, %s, %s' % (v(vT), v(DD), v(DD+5)))
    a('v_add_f32 %s, %s, %s' % (v(vT+1), v(DD+10), v(DD+15)))
    a('v_mov_b32 %s, 1' % v(vT+2))
    a('v_add_f32 %s, %s, %s' % (v(vT), v(vT), v(vT+1)))
    a('ds_write_b32 %s, %s' % (v(vCB), v(vT)))
    a('s_mov_b64 exec, 1')
    a('ds_write_b32 %s, %s' % (v(vTW2), v(vT+2)))
    a('s_mov_b64 exec, -1')
    a('s_mov_b32 %s, %d' % (s(sCNT), o['spinmax']))
    a('L_hspin:')
    a('ds_read_b128 %s, %s' % (v(vT+4,4), v(vTW3)))
    for i in range(4): a('ds_read_b32 %s, %s offset:%d' % (v(vT+i), v(vTW1), i*320))
    a('s_waitcnt lgkmcnt(0)')
    a('v_and_b32 %s, %s, %s' % (v(vT+4), v(vT+4), v(vT+5)))
    a('v_and_b32 %s, %s, %s' % (v(vT+6), v(vT+6), v(vT+7)))
    a('v_and_b32 %s, %s, %s' % (v(vT+4), v(vT+4), v(vT+6)))
    a('v_cmp_eq_u32 vcc, 0, %s' % v(vT+4))
    a('s_cbranch_vccz L_hok')
    a('s_sub_u32 %s, %s, 1' % (s(sCNT), s(sCNT)))
    a('s_cmp_lg_u32 %s, 0' % s(sCNT))
    a('s_cbranch_scc1 L_hspin')
    a('L_hok:')
    a('v_add_f32 %s, %s, %s' % (v(vT), v(vT), v(vT+1)))
    a('v_add_f32 %s, %s, %s' % (v(vT+2), v(vT+2), v(vT+3)))
    a('v_add_f32 %s, %s, %s' % (v(vT), v(vT), v(vT+2)))
    a('v_cvt_pk_bf16_f32 %s, %s, %s' % (v(vT), v(vT), v(vT)))
    a('v_and_b32 %s, %s, %s' % (v(vT), s(sHI), v(vT)))
    a('v_mul_f32 %s, 0xbfb8aa3b, %s' % (v(vT+1), v(vT)))
    a('v_exp_f32 %s, %s' % (v(vT+1), v(vT+1)))
    a('v_mov_b32_dpp %s, %s row_ror:8 row_mask:0xf bank_mask:0xf' % (v(vT+2), v(vT)))
    a('v_add_f32 %s, 1.0, %s' % (v(vT+1), v(vT+1)))
    a('v_rcp_f32 %s, %s' % (v(vT+1), v(vT+1)))
    a('v_mul_f32 %s, %s, %s' % (v(vT+1), v(vT), v(vT+1)))
    a('v_cvt_pk_bf16_f32 %s, %s, %s' % (v(vT+1), v(vT+1), v(vT+1)))
    a('v_and_b32 %s, %s, %s' % (v(vT+1), s(sHI), v(vT+1)))
    a('v_mul_f32 %s, %s, %s' % (v(vT+1), v(vT+1), v(vT+2)))
    a('v_cvt_pk_bf16_f32 %s, %s, %s' % (v(vT+1), v(vT+1), v(vT+1)))
    a('v_and_b32 %s, %s, %s' % (v(vT+1), s(sHI), v(vT+1)))
    for i in range(8): a('v_readlane_b32 %s, %s, %d' % (s(sH8+i), v(vT+1), i))
    gq = vT+4
    a('v_mov_b32 %s, %s' % (v(gq+2), s(sTAG)))
    a('v_mov_b32 %s, 0' % v(gq+3))
    for i in range(8):
        for e in range(2):
            if i == 0: a('v_mul_f32 %s, %s, %s' % (v(gq+e), s(sH8), v(WDF+e)))
            else: a('v_fmac_f32 %s, %s, %s' % (v(gq+e), s(sH8+i), v(WDF+2*i+e)))
    a('global_store_dwordx4 %s, %s, %s sc1' % (v(vFPA), v(gq,4), s(sWS,2)))
    stamp(10)
    a('L_h_b5:')
    a('s_barrier')
    YR = vP
    for c in range(4): a('ds_read_b128 %s, %s offset:%d' % (v(YR+4*c,4), v(vY), c*YCS))
    a('s_waitcnt lgkmcnt(0)')
    for r in range(4):
        for c in range(4):
            a('v_fma_f32 %s, %s, %s, %s' % (v(vE+4*r+c), v(YR+4*c+r), v(vXN+4*r+c), v(vE+4*r+c)))
        a('v_cvt_pk_bf16_f32 %s, %s, %s' % (v(vD+2*r), v(vE+4*r), v(vE+4*r+1)))
        a('v_cvt_pk_bf16_f32 %s, %s, %s' % (v(vD+2*r+1), v(vE+4*r+2), v(vE+4*r+3)))
        a('s_mov_b64 exec, %s' % s(sM+2*r,2))
        a('global_store_dwordx2 %s, %s, %s offset:%d' % (v(vXG), v(vD+2*r,2), s(sOUT,2), r*1024))
        a('s_mov_b64 exec, -1')
    if o['stamp'] or o['diag'] >= 0 or o['diagclk']:
        stamp(11)
        a('s_waitcnt vmcnt(0)')
        stamp(12)
    if o['diag'] >= 0:
        if o['diagk'] >= 0:
            a('s_cmp_lg_u32 %s, %d' % (s(sK), o['diagk']))
            a('s_cbranch_scc1 L_end')
        a('s_memrealtime s[90:91]')
        a('s_sub_u32 s88, s88, s86')
        a('s_lshl_b32 s88, s88, 2')
        a('s_waitcnt lgkmcnt(0)')
        a('s_add_u32 s88, s88, s90')
        a('L_diag:')
        a('s_memrealtime s[90:91]')
        a('s_waitcnt lgkmcnt(0)')
        a('s_sub_u32 s90, s90, s88')
        a('s_cmp_lt_i32 s90, 0')
        a('s_cbranch_scc1 L_diag')
    if o['diagclk']:
        a('s_memtime s[88:89]')
        a('s_waitcnt lgkmcnt(0)')
        a('s_add_u32 s88, s88, %d' % o['diagclk'])
        a('L_diag:')
        a('s_memtime s[90:91]')
        a('s_waitcnt lgkmcnt(0)')
        a('s_sub_u32 s90, s90, s88')
        a('s_cmp_lt_i32 s90, 0')
        a('s_cbranch_scc1 L_diag')
    a('L_exit:')
    if o['stamp']:
        a('v_mov_b32 v254, 0')
        for i in range(14): a('v_writelane_b32 v254, s%d, %d' % (86+i, i))
        a('global_store_dword %s, v254, %s' % (v(vSTA), s(sWS,2)))
    a('L_end:')
    a('s_endpgm')
    a.raw('''.section .rodata,"a"
.p2align 6
.amdhsa_kernel %s_kernel
  .amdhsa_next_free_vgpr 256
  .amdhsa_next_free_sgpr 102
  .amdhsa_accum_offset 256
  .amdhsa_group_segment_fixed_size 0
  .amdhsa_kernarg_size 136
  .amdhsa_user_sgpr_count 2
  .amdhsa_user_sgpr_kernarg_segment_ptr 1
  .amdhsa_system_sgpr_workgroup_id_x 1
.end_amdhsa_kernel''' % KN)
    return a.text()

if __name__ == '__main__':
    out = sys.argv[1]
    opt = {}
    for kv in sys.argv[2:]:
        k, val = kv.split('='); opt[k] = int(val, 0)
    open(out, 'w').write(generate(**opt))
```

```python
import sys
from asmlib import *

KN = 'recurrent_scan__ssm_conv_s4__moe_arch_mod__prompt'

DEFAULTS = dict(stamp=0, wlate=1, force_slow=0, prefetch=1, spinmax=1<<16, dump=0, diag=-1, diagclk=0, cyc=0, nohelp=0, diagk=-1, diagx=-1, maxout=15, group=3, minfly=6)

RS    = 2064
STAGE = 0
R4    = 0;      R4S = 18560; CAS = 288
YX    = 74240;  YCS = 5120; YTS = 1280; YGS = 320
U     = 109440; US = 4576
TAB   = 127744; TS = 1552
WL    = 133952; WL1 = 8320
SL    = 150528
AM    = 158720
FF    = 158752
FP    = 158784
LDS_BYTES = 159808
W_EP = 0; W_ST = 0x1000; W_FL = 0x6000; W_FP = 0x10000; W_IN = 0x100000; W_STAMP = 0x800000; W_DUMP = 0x1000000

sX, sARE, sAIM, sBRE, sBIM, sCRE, sCIM, sLDT = 4, 6, 8, 10, 12, 14, 16, 18
sDSK, sWR, sWG, sWU, sWD, sOUT, sDBG, sWS = 20, 24, 26, 28, 30, 32, 34, 36
sW, sK, sJ, sCGL, sH, sCH0, sT, sXCC, sTAG, sTAGX = 38, 39, 40, 41, 42, 43, 44, 45, 46, 47
sLD, sDS = 48, 50
sONES, sF8, sPROD, sIDX, sKEY, sCNT = 52, 53, 54, 55, 56, 57
sT0, sT1, sT2, sT3 = 58, 59, 60, 61
sM = 64
sH8 = 72
sHI = 80
sSTP = 82
sWI = 84

vTID, vL = 0, 1
vGA = 2
vSEL = 10
vR4W, vUW, vST0, vST1, vFL, vIN, vXG, vXC = 16, 17, 18, 19, 20, 21, 22, 23
vKA, vKB, vTW1, vTW2, vTW3, vTW4 = 24, 25, 26, 27, 28, 29
vCA, vCB, vY = 30, 31, 32
vCA2 = 33
vWT, vWDA, vFPA, vEP, vPF, vROW, vSTA = 33, 34, 35, 36, 37, 38, 39
vD = 40
vG = 48
vXF = 56
vXN = 72
vE = 88
vP = 104
vWD = 232
vT = 240

def cmul(a, d, x, y):
    a('v_pk_mul_f32 %s, %s, %s op_sel:[1,1] op_sel_hi:[1,0]' % (v(d,2), v(x,2), v(y,2)))
    a('v_pk_fma_f32 %s, %s, %s, %s op_sel:[0,0,0] op_sel_hi:[0,1,1] neg_lo:[0,0,1]' % (v(d,2), v(x,2), v(y,2), v(d,2)))

def tiles(h): return [2*i + ((i ^ h) & 1) for i in range(4)]

def generate(**opt):
    o = dict(DEFAULTS); o.update(opt)
    a = Asm()
    nstamp = [0]
    def stamp(i):
        if o['diag'] == i:
            a('s_memrealtime s[88:89]')
            a('s_waitcnt lgkmcnt(0)')
        if not o['stamp']: return
        a('%s %s' % ('s_memtime' if o['cyc'] else 's_memrealtime', s(sSTP,2)))
        a('s_waitcnt lgkmcnt(0)')
        a('s_mov_b32 s%d, %s' % (86+i, s(sSTP)))
    SV = 0
    def vm(n):
        a('s_waitcnt vmcnt(%d)' % (0 if SV else n))

    a.raw('; @launch grid=(256,1,1) block=(512,1,1) lds=%d' % LDS_BYTES)
    a.raw('.amdgcn_target "amdgcn-amd-amdhsa--gfx950"\n.text\n.globl %s_kernel\n.p2align 8\n.type %s_kernel,@function\n%s_kernel:' % (KN,KN,KN))
    a('''
    s_cmp_ge_u32 s2, 256
    s_cbranch_scc1 L_end
    s_load_dwordx16 s[4:19], s[0:1], 0
    s_load_dwordx16 s[20:35], s[0:1], 64
    s_load_dwordx2 s[36:37], s[0:1], 128
    ''')
    if o['diag'] >= 0 or o['diagx'] >= 0: a('s_memrealtime s[86:87]')
    if o['stamp']: a('%s s[100:101]' % ('s_memtime' if o['cyc'] else 's_memrealtime'))
    a('v_lshrrev_b32 %s, 6, v0' % v(vT))
    a('v_and_b32 %s, 63, v0' % v(vL))
    a('v_readfirstlane_b32 %s, %s' % (s(sW), v(vT)))
    a('s_and_b32 %s, s2, 7' % s(sK))
    a('s_lshr_b32 %s, s2, 3' % s(sJ))
    a('s_and_b32 %s, %s, 15' % (s(sCGL), s(sJ)))
    a('s_lshr_b32 %s, %s, 4' % (s(sH), s(sJ)))
    a('s_lshl_b32 %s, %s, 6' % (s(sCH0), s(sK)))
    a('s_lshl_b32 %s, %s, 2' % (s(sT0), s(sCGL)))
    a('s_add_u32 %s, %s, %s' % (s(sCH0), s(sCH0), s(sT0)))
    a('s_and_b32 %s, %s, 3' % (s(sWI), s(sW)))
    for i in range(6): a('v_mov_b32 %s, 0' % v(vP+i))
    a('s_lshl_b32 %s, %s, 8' % (s(sT0), s(sCH0)))
    a('v_lshl_add_u32 %s, v0, 1, %s' % (v(vT+1), s(sT0)))
    a('v_mov_b32 %s, 0' % v(vT+2))
    if o['stamp']:
        a('s_lshl_b32 %s, s2, 3' % s(sT1))
        a('s_add_u32 %s, %s, %s' % (s(sT1), s(sT1), s(sW)))
        a('s_lshl_b32 %s, %s, 8' % (s(sT1), s(sT1)))
        a('s_add_u32 %s, %s, %d' % (s(sT1), s(sT1), W_STAMP))
        a('v_lshl_add_u32 %s, %s, 2, %s' % (v(vSTA), v(vL), s(sT1)))
        for i in range(14): a('s_mov_b32 s%d, 0' % (86+i))
    a('s_cmp_ge_u32 %s, 4' % s(sW))
    a('s_cbranch_scc1 L_h_load')
    a('s_lshl_b32 %s, %s, 16' % (s(sT0), s(sJ)))
    a('s_lshl_b32 %s, %s, 14' % (s(sT1), s(sW)))
    a('s_add_u32 %s, %s, %s' % (s(sT0), s(sT0), s(sT1)))
    a('s_lshl_b32 %s, %s, 7' % (s(sT1), s(sK)))
    a('s_add_u32 %s, %s, %s' % (s(sT0), s(sT0), s(sT1)))
    a('v_lshrrev_b32 %s, 3, %s' % (v(vT+3), v(vL)))
    a('v_and_b32 %s, 7, %s' % (v(vT+4), v(vL)))
    a('v_lshlrev_b32 %s, 10, %s' % (v(vT+3), v(vT+3)))
    a('v_lshl_add_u32 %s, %s, 4, %s' % (v(vT+3), v(vT+4), v(vT+3)))
    a('v_add_u32 %s, %s, %s' % (v(vT+3), s(sT0), v(vT+3)))
    a('v_add_u32 %s, 8192, %s' % (v(vT+4), v(vT+3)))
    a('s_waitcnt lgkmcnt(0)')
    if o['stamp']: a('s_mov_b32 s99, s100')
    stamp(0)
    a('global_load_dwordx4 %s, %s, %s' % (v(vD,4), v(vT+3), s(sX,2)))
    a('global_load_dwordx4 %s, %s, %s' % (v(vD+4,4), v(vT+4), s(sX,2)))
    a('s_branch L_param_load')
    a('L_h_load:')
    a('s_lshl_b32 %s, s2, 13' % s(sT0))
    a('s_lshl_b32 %s, %s, 11' % (s(sT1), s(sWI)))
    a('s_add_u32 %s, %s, %s' % (s(sT0), s(sT0), s(sT1)))
    a('v_and_b32 %s, 31, %s' % (v(vT+3), v(vL)))
    a('v_lshlrev_b32 %s, 4, %s' % (v(vT+3), v(vT+3)))
    a('v_lshrrev_b32 %s, 5, %s' % (v(vT+4), v(vL)))
    a('v_lshl_add_u32 %s, %s, 10, %s' % (v(vT+4), v(vT+4), v(vT+3)))
    a('v_add_u32 %s, %s, %s' % (v(vT+4), s(sT0), v(vT+4)))
    a('s_setprio 2')
    a('s_waitcnt lgkmcnt(0)')
    if o['stamp']: a('s_mov_b32 s99, s100')
    stamp(0)
    a('global_load_dwordx4 %s, %s, %s' % (v(vG,4), v(vT+3), s(sWR,2)))
    a('global_load_dwordx4 %s, %s, %s offset:512' % (v(vG+4,4), v(vT+3), s(sWR,2)))
    a('global_load_dwordx4 %s, %s, %s' % (v(vD,4), v(vT+4), s(sX,2)))
    a('global_load_dwordx4 %s, %s, %s offset:512' % (v(vD+4,4), v(vT+4), s(sX,2)))
    a('L_param_load:')
    for i, p in enumerate((sARE, sAIM, sBRE, sBIM, sCRE, sCIM)):
        a('global_load_short_d16_hi %s, %s, %s' % (v(vP+i), v(vT+1), s(p,2)))
    a('global_load_dword %s, %s, %s sc1' % (v(vEP), v(vT+2), s(sWS,2)))
    a('s_lshl_b32 %s, %s, 1' % (s(sT0), s(sCH0)))
    a('s_load_dwordx2 %s, %s, %s' % (s(sLD,2), s(sLDT,2), s(sT0)))
    a('s_load_dwordx2 %s, %s, %s' % (s(sDS,2), s(sDSK,2), s(sT0)))
    a('s_getreg_b32 %s, hwreg(HW_REG_XCC_ID, 0, 4)' % s(sXCC))
    a('s_mov_b32 %s, 0x3f803f80' % s(sONES))
    a('s_mov_b32 %s, 0xffff0000' % s(sHI))
    a('s_lshr_b32 %s, %s, 2' % (s(sT0), s(sW)))
    a('s_xor_b32 %s, %s, %s' % (s(sT0), s(sT0), s(sWI)))
    a('s_xor_b32 %s, %s, %s' % (s(sT0), s(sT0), s(sH)))
    a('s_xor_b32 %s, %s, 1' % (s(sT0), s(sT0)))
    a('s_and_b32 %s, %s, 1' % (s(sT0), s(sT0)))
    a('s_lshl_b32 %s, %s, 1' % (s(sT), s(sWI)))
    a('s_add_u32 %s, %s, %s' % (s(sT), s(sT), s(sT0)))
    a('s_lshr_b32 %s, %s, 3' % (s(sT0), s(sJ)))
    a('s_lshl_b32 %s, %s, 3' % (s(sT0), s(sT0)))
    a('s_add_u32 %s, %s, %s' % (s(sT0), s(sT0), s(sK)))
    a('s_lshl_b32 %s, %s, 3' % (s(sT0), s(sT0)))
    a('s_and_b32 %s, %s, 7' % (s(sT1), s(sJ)))
    a('s_add_u32 %s, %s, %s' % (s(sF8), s(sT0), s(sT1)))
    a('s_cmp_lt_u32 %s, 172' % s(sF8))
    a('s_cselect_b32 %s, 1, 0' % s(sPROD))

    a('v_mov_b32 %s, 0' % v(vT))
    a('v_mov_b32 %s, 0x3f80' % v(vT+1))
    a('s_lshl_b32 %s, %s, 8' % (s(sT0), s(sW)))
    a('s_mov_b32 m0, %s' % s(sT0))
    a('ds_write_addtid_b32 %s offset:%d' % (v(vT+1), STAGE))
    a('v_and_b32 %s, 127, v0' % v(vT+2))
    a('v_min_u32 %s, 119, %s' % (v(vT+2), v(vT+2)))
    a('v_lshrrev_b32 %s, 7, v0' % v(vT+3))
    a('v_mul_u32_u24 %s, %d, %s' % (v(vT+4), US, v(vT+3)))
    a('v_lshl_add_u32 %s, %s, 2, %s' % (v(vT+4), v(vT+2), v(vT+4)))
    a('v_add_u32 %s, %d, %s' % (v(vT+4), U, v(vT+4)))
    a('ds_write_b32 %s, %s' % (v(vT+4), v(vT)))
    a('v_mul_u32_u24 %s, %d, %s' % (v(vT+4), TS, v(vT+3)))
    a('v_and_b32 %s, 1, v0' % v(vT+2))
    a('v_lshl_add_u32 %s, %s, 2, %s' % (v(vT+4), v(vT+2), v(vT+4)))
    a('v_add_u32 %s, %d, %s' % (v(vT+4), TAB, v(vT+4)))
    a('ds_write_b32 %s, %s' % (v(vT+4), v(vT)))
    a('v_and_b32 %s, 3, v0' % v(vT+2))
    a('v_lshlrev_b32 %s, 2, %s' % (v(vT+2), v(vT+2)))
    a('v_add_u32 %s, %d, %s' % (v(vT+2), FF, v(vT+2)))
    a('ds_write_b32 %s, %s' % (v(vT+2), v(vT)))

    pos = [vXF+i for i in range(7)]
    a('v_lshlrev_b32 %s, 2, v0' % v(vT))
    for i in range(7):
        a('v_add_u32 %s, %d, %s' % (v(pos[i]), i+1, v(vT)))
    a('s_cmp_eq_u32 %s, 0' % s(sW))
    a('s_cbranch_scc1 L_pos_done')
    for i in range(7):
        a('v_add_u32 %s, -4, %s' % (v(pos[i]), v(pos[i])))
        a('v_cvt_f32_u32 %s, %s' % (v(pos[i]), v(pos[i])))
    for i in range(7):
        a('v_cvt_pk_bf16_f32 %s, %s, %s' % (v(pos[i]), v(pos[i]), v(pos[i])))
    for i in range(7):
        a('v_lshrrev_b32 %s, 16, %s' % (v(pos[i]), v(pos[i])))
        a('v_add_u32 %s, %d, %s' % (v(pos[i]), 4 - 0x4280, v(pos[i])))
    a('L_pos_done:')
    b1, b2 = vT+1, vT+2
    a('v_and_b32 %s, -2, %s' % (v(b1), v(pos[2])))
    a('v_add_u32 %s, -2, %s' % (v(b1), v(b1)))
    a('v_and_b32 %s, -2, %s' % (v(b2), v(pos[3])))
    for c in range(4):
        a('v_lshlrev_b32 %s, 1, %s' % (v(vGA+2*c), v(b1)))
        a('v_lshlrev_b32 %s, 1, %s' % (v(vGA+2*c+1), v(b2)))
        a('v_add_u32 %s, %d, %s' % (v(vGA+2*c), TAB + c*TS, v(vGA+2*c)))
        a('v_add_u32 %s, %d, %s' % (v(vGA+2*c+1), TAB + c*TS, v(vGA+2*c+1)))
    for i in range(3): a('v_sub_u32 %s, %s, %s' % (v(pos[i]), v(pos[i]), v(b1)))
    for i in range(3,7): a('v_sub_u32 %s, %s, %s' % (v(pos[i]), v(pos[i]), v(b2)))
    a('s_mov_b32 %s, 0x0202' % s(sT0))
    a('s_mov_b32 %s, 0x02020000' % s(sT1))
    a('v_mov_b32 %s, 0x01000100' % v(vT+3))
    def sel(dst, lo, hi, lo_add=0, hi_add=0):
        a('v_mad_u32_u24 %s, %s, %s, %s' % (v(dst), v(lo), s(sT0), v(vT+3)))
        a('v_mul_lo_u32 %s, %s, %s' % (v(vT+4), v(hi), s(sT1)))
        a('v_add_u32 %s, %s, %s' % (v(dst), v(dst), v(vT+4)))
        k = (lo_add*0x0202 + hi_add*0x02020000) & 0xffffffff
        if k: a('v_add_u32 %s, 0x%x, %s' % (v(dst), k, v(dst)))
    sel(vSEL+0, pos[1], pos[0])
    sel(vSEL+1, pos[2], pos[1])
    sel(vSEL+2, pos[3], pos[2], 2, -2)
    sel(vSEL+3, pos[4], pos[3])
    sel(vSEL+4, pos[5], pos[4])
    sel(vSEL+5, pos[6], pos[5])
    a('v_lshrrev_b32 %s, 2, v0' % v(vT))
    a('v_lshlrev_b32 %s, 4, %s' % (v(vT), v(vT)))
    a('v_lshl_add_u32 %s, v0, 5, %s' % (v(vR4W), v(vT)))
    a('v_add_u32 %s, %d, %s' % (v(vR4W), R4 + 144, v(vR4W)))
    a('s_lshl_b32 %s, %s, 6' % (s(sT0), s(sT)))
    a('v_add_u32 %s, %s, %s' % (v(vT), s(sT0), v(vL)))
    a('v_lshlrev_b32 %s, 2, %s' % (v(vROW), v(vT)))
    a('v_lshlrev_b32 %s, 3, %s' % (v(vUW), v(vT)))
    a('v_add_u32 %s, %d, %s' % (v(vUW), U + 480, v(vUW)))
    a('v_lshlrev_b32 %s, 4, %s' % (v(vST0), v(vT)))
    a('v_add_u32 %s, %d, %s' % (v(vST1), W_ST + 8192, v(vST0)))
    a('v_add_u32 %s, %d, %s' % (v(vST0), W_ST, v(vST0)))
    a('s_lshl_b32 %s, %s, 1' % (s(sT0), s(sCH0)))
    a('v_lshlrev_b32 %s, 12, %s' % (v(vXG), v(vT)))
    a('v_add_u32 %s, %s, %s' % (v(vXG), s(sT0), v(vXG)))
    a('v_lshrrev_b32 %s, 2, %s' % (v(vT+1), v(vT)))
    a('s_lshl_b32 %s, %s, 9' % (s(sT0), s(sK)))
    a('s_add_u32 %s, %s, %d' % (s(sT0), s(sT0), W_FL))
    a('v_lshl_add_u32 %s, %s, 2, %s' % (v(vFL), v(vT+1), s(sT0)))
    a('s_lshl_b32 %s, %s, 18' % (s(sT0), s(sK)))
    a('s_lshl_b32 %s, %s, 14' % (s(sT1), s(sCGL)))
    a('s_add_u32 %s, %s, %s' % (s(sT0), s(sT0), s(sT1)))
    a('s_add_u32 %s, %s, %d' % (s(sT2), s(sT0), W_IN))
    a('v_and_b32 %s, 3, %s' % (v(vT+2), v(vL)))
    a('v_lshlrev_b32 %s, 4, %s' % (v(vT+2), v(vT+2)))
    a('v_lshl_add_u32 %s, %s, 7, %s' % (v(vIN), v(vT+1), v(vT+2)))
    a('v_add_u32 %s, %s, %s' % (v(vIN), s(sT2), v(vIN)))
    a('v_lshrrev_b32 %s, 4, %s' % (v(vT+1), v(vT)))
    a('s_lshl_b32 %s, %s, 5' % (s(sT0), s(sK)))
    a('s_add_u32 %s, %s, %d' % (s(sT0), s(sT0), W_ST + 12))
    a('v_lshl_add_u32 %s, %s, 8, %s' % (v(vXC), v(vT+1), s(sT0)))
    a('v_and_b32 %s, 15, %s' % (v(vT+5), v(vL)))
    a('v_lshrrev_b32 %s, 4, %s' % (v(vT+6), v(vL)))
    a('s_cmp_ge_u32 %s, 4' % s(sW))
    a('s_cbranch_scc1 L_h_setup')

    a('v_and_b32 %s, 31, %s' % (v(vT), v(vL)))
    a('v_lshrrev_b32 %s, 5, %s' % (v(vT+1), v(vL)))
    a('s_lshl_b32 %s, %s, 9' % (s(sT0), s(sW)))
    a('v_lshl_add_u32 %s, %s, 4, %s' % (v(vT+2), v(vT+1), s(sT0)))
    a('s_movk_i32 %s, %d' % (s(sT1), RS))
    a('v_mad_u32_u24 %s, %s, %s, %s' % (v(vKB), v(vT), s(sT1), v(vT+2)))
    a('v_add_u32 %s, -16, %s' % (v(vT+3), v(vT)))
    a('v_cmp_lt_u32 vcc, 20, %s' % v(vT))
    a('v_cndmask_b32 %s, %s, %s, vcc' % (v(vT+3), v(vT), v(vT+3)))
    a('v_mad_u32_u24 %s, %s, %s, %s' % (v(vKA), v(vT+3), s(sT1), v(vT+2)))
    a('v_add_u32 %s, %d, %s' % (v(vKA), STAGE + 32*RS, v(vKA)))
    a('s_mul_i32 %s, %s, %d' % (s(sT0), s(sW), TS))
    a('s_add_u32 %s, %s, %d' % (s(sT0), s(sT0), TAB + 8))
    a('v_lshlrev_b32 %s, 4, %s' % (v(vTW1), v(vT)))
    a('v_lshl_add_u32 %s, %s, 3, %s' % (v(vTW1), v(vT+1), v(vTW1)))
    a('v_add_u32 %s, %s, %s' % (v(vTW1), s(sT0), v(vTW1)))
    a('v_cmp_eq_u32 vcc, 0, %s' % v(vT+1))
    a('v_lshlrev_b32 %s, 3, %s' % (v(vT+3), v(vT)))
    a('v_add_u32 %s, 512, %s' % (v(vT+3), v(vT+3)))
    a('v_lshlrev_b32 %s, 2, %s' % (v(vT+4), v(vT)))
    a('v_add_u32 %s, 768, %s' % (v(vT+4), v(vT+4)))
    a('v_cndmask_b32 %s, %s, %s, vcc' % (v(vTW2), v(vT+4), v(vT+3)))
    a('v_add_u32 %s, %s, %s' % (v(vTW2), s(sT0), v(vTW2)))
    a('v_mul_u32_u24 %s, 124, %s' % (v(vT+3), v(vT+1)))
    a('v_add3_u32 %s, %s, %s, 4' % (v(vTW3), v(vTW2), v(vT+3)))
    a('v_lshlrev_b32 %s, 1, %s' % (v(vTW4), v(vT)))
    a('v_lshl_add_u32 %s, %s, 8, %s' % (v(vTW4), v(vT+1), v(vTW4)))
    a('s_add_u32 %s, %s, 1024' % (s(sT0), s(sT0)))
    a('v_add_u32 %s, %s, %s' % (v(vTW4), s(sT0), v(vTW4)))
    a('s_mul_i32 %s, %s, %d' % (s(sT0), s(sW), R4S))
    a('s_add_u32 %s, %s, %d' % (s(sT0), s(sT0), R4))
    a('v_lshlrev_b32 %s, 3, %s' % (v(vT+3), v(vT+6)))
    a('v_sub_u32 %s, %s, %s' % (v(vT+3), v(vT+5), v(vT+3)))
    for reg, k in ((vCA, 32), (vCA2, 28)):
        a('v_add_u32 %s, %d, %s' % (v(vT+4), k, v(vT+3)))
        a('v_lshrrev_b32 %s, 4, %s' % (v(vT+7), v(vT+4)))
        a('v_lshl_add_u32 %s, %s, 3, %s' % (v(reg), v(vT+4), s(sT0)))
        a('v_lshl_add_u32 %s, %s, 4, %s' % (v(reg), v(vT+7), v(reg)))
    a('s_mul_i32 %s, %s, %d' % (s(sT0), s(sW), US))
    a('s_add_u32 %s, %s, %d' % (s(sT0), s(sT0), U))
    a('v_lshlrev_b32 %s, 4, %s' % (v(vT+3), v(vT+6)))
    a('v_lshl_add_u32 %s, %s, 5, %s' % (v(vT+3), v(vT+5), v(vT+3)))
    a('v_add_u32 %s, %s, %s' % (v(vCB), s(sT0), v(vT+3)))
    a('s_mul_i32 %s, %s, %d' % (s(sT0), s(sW), YCS))
    a('s_add_u32 %s, %s, %d' % (s(sT0), s(sT0), YX))
    a('v_mul_u32_u24 %s, %d, %s' % (v(vT+3), YGS, v(vT+6)))
    a('v_lshl_add_u32 %s, %s, 4, %s' % (v(vT+3), v(vT+5), v(vT+3)))
    a('v_add_u32 %s, %s, %s' % (v(vY), s(sT0), v(vT+3)))
    slw, slr, ina = vXN, vXN+1, vXN+4
    a('s_lshl_b32 %s, %s, 11' % (s(sT0), s(sW)))
    a('s_add_u32 %s, %s, %d' % (s(sT0), s(sT0), SL))
    a('v_lshrrev_b32 %s, 3, %s' % (v(vT), v(vL)))
    a('v_and_b32 %s, 7, %s' % (v(vT+1), v(vL)))
    a('v_lshrrev_b32 %s, 1, %s' % (v(vT+2), v(vT)))
    a('v_xor_b32 %s, %s, %s' % (v(vT+2), v(vT+2), v(vT+1)))
    a('v_lshlrev_b32 %s, 4, %s' % (v(vT+2), v(vT+2)))
    a('v_lshl_add_u32 %s, %s, 7, %s' % (v(vT+2), v(vT), v(vT+2)))
    a('v_add_u32 %s, %s, %s' % (v(slw), s(sT0), v(vT+2)))
    a('v_xor_b32 %s, 64, %s' % (v(slw+5), v(slw)))
    a('v_and_b32 %s, 3, %s' % (v(vT+2), v(vL)))
    a('v_bfe_u32 %s, %s, 2, 1' % (v(vT+3), v(vL)))
    a('v_lshl_add_u32 %s, %s, 1, %s' % (v(vT+2), v(vT+2), v(vT+3)))
    a('v_lshrrev_b32 %s, 1, %s' % (v(vT+3), v(vT)))
    a('v_xor_b32 %s, %s, %s' % (v(vT+3), v(vT+3), v(vT+2)))
    a('v_lshlrev_b32 %s, 4, %s' % (v(vT+3), v(vT+3)))
    a('v_lshl_add_u32 %s, %s, 8, %s' % (v(vT+3), v(vT+2), v(vT+3)))
    a('v_and_b32 %s, 1, %s' % (v(vT+4), v(vT)))
    a('v_lshl_add_u32 %s, %s, 3, %s' % (v(vT+3), v(vT+4), v(vT+3)))
    a('v_add_u32 %s, %s, %s' % (v(slr), s(sT0), v(vT+3)))
    a('v_xor_b32 %s, 64, %s' % (v(slr+1), v(slr)))
    a('s_lshl_b32 %s, %s, 18' % (s(sT0), s(sK)))
    a('s_lshl_b32 %s, %s, 9' % (s(sT1), s(sJ)))
    a('s_add_u32 %s, %s, %s' % (s(sT0), s(sT0), s(sT1)))
    a('s_lshl_b32 %s, %s, 7' % (s(sT1), s(sW)))
    a('s_add_u32 %s, %s, %s' % (s(sT0), s(sT0), s(sT1)))
    a('s_add_u32 %s, %s, %d' % (s(sT0), s(sT0), W_IN))
    a('v_lshlrev_b32 %s, 4, %s' % (v(vT+1), v(vT+1)))
    a('v_lshl_add_u32 %s, %s, 14, %s' % (v(vT+1), v(vT), v(vT+1)))
    a('v_add_u32 %s, %s, %s' % (v(ina), s(sT0), v(vT+1)))
    a('v_add_u32 %s, 0x20000, %s' % (v(ina-1), v(ina)))
    a('s_lshl_b32 %s, %s, 9' % (s(sT0), s(sK)))
    a('s_lshl_b32 %s, %s, 4' % (s(sT1), s(sJ)))
    a('s_add_u32 %s, %s, %s' % (s(sT0), s(sT0), s(sT1)))
    a('s_lshl_b32 %s, %s, 2' % (s(sT1), s(sW)))
    a('s_add_u32 %s, %s, %s' % (s(sT0), s(sT0), s(sT1)))
    a('s_add_u32 %s, %s, %d' % (s(sT0), s(sT0), W_FL))
    a('v_mov_b32 %s, %s' % (v(vFPA), s(sT0)))
    a('v_mov_b32 %s, 4096' % v(vWDA))
    vm(7)
    stamp(1)
    a('ds_write_b128 %s, %s' % (v(slw), v(vD,4)))
    a('ds_write_b128 %s, %s offset:1024' % (v(slw+5), v(vD+4,4)))
    a('ds_read_b64 %s, %s' % (v(vG,2), v(slr)))
    a('ds_read_b64 %s, %s offset:128' % (v(vG+2,2), v(slr)))
    a('ds_read_b64 %s, %s' % (v(vG+4,2), v(slr+1)))
    a('ds_read_b64 %s, %s offset:128' % (v(vG+6,2), v(slr+1)))
    a('s_waitcnt lgkmcnt(0)')
    a('global_store_dwordx4 %s, %s, %s' % (v(ina), v(vG,4), s(sWS,2)))
    a('global_store_dwordx4 %s, %s, %s' % (v(ina-1), v(vG+4,4), s(sWS,2)))
    vm(2)
    a('s_branch L_kgen')

    a('L_h_setup:')
    a('s_mul_i32 %s, %s, %d' % (s(sT0), s(sWI), YTS))
    a('s_add_u32 %s, %s, %d' % (s(sT0), s(sT0), YX))
    a('v_and_b32 %s, 3, %s' % (v(vT), v(vL)))
    a('v_lshrrev_b32 %s, 2, %s' % (v(vT+1), v(vL)))
    a('v_mul_u32_u24 %s, %d, %s' % (v(vT), YGS, v(vT)))
    a('v_lshl_add_u32 %s, %s, 4, %s' % (v(vT), v(vT+1), v(vT)))
    a('v_add_u32 %s, %s, %s' % (v(vY), s(sT0), v(vT)))
    a('v_lshrrev_b32 %s, 2, %s' % (v(vT), v(vT+5)))
    a('v_lshl_add_u32 %s, %s, 2, %s' % (v(vT), v(vT+6), v(vT)))
    a('v_bfe_u32 %s, %s, 1, 1' % (v(vT+1), v(vL)))
    a('v_mul_u32_u24 %s, %d, %s' % (v(vT+1), WL1, v(vT+1)))
    a('v_lshl_add_u32 %s, %s, 4, %s' % (v(vT), v(vT), v(vT+1)))
    a('v_and_b32 %s, 1, %s' % (v(vT+1), v(vL)))
    a('v_lshl_add_u32 %s, %s, 3, %s' % (v(vT), v(vT+1), v(vT)))
    a('s_lshl_b32 %s, %s, 11' % (s(sT0), s(sWI)))
    a('s_add_u32 %s, %s, %d' % (s(sT0), s(sT0), WL))
    a('v_add_u32 %s, %s, %s' % (v(vWT), s(sT0), v(vT)))
    a('s_lshl_b32 %s, %s, 7' % (s(sT0), s(sWI)))
    a('v_add_u32 %s, %s, %s' % (v(vT), s(sT0), v(vL)))
    a('s_lshl_b32 %s, %s, 4' % (s(sT1), s(sF8)))
    a('v_mul_u32_u24 %s, 2752, %s' % (v(vT), v(vT)))
    a('v_add_u32 %s, %s, %s' % (v(vKA), s(sT1), v(vT)))
    a('v_add_u32 %s, %d, %s' % (v(vKB), 64*2752, v(vKA)))
    a('v_and_b32 %s, 255, v0' % v(vT))
    a('s_lshl_b32 %s, %s, 13' % (s(sT0), s(sF8)))
    a('v_lshl_add_u32 %s, %s, 2, %s' % (v(vWDA), v(vT), s(sT0)))
    a('v_add_u32 %s, 4096, %s' % (v(vWDA), v(vWDA)))
    a('v_lshrrev_b32 %s, 1, %s' % (v(vT+1), v(vT)))
    a('v_mul_u32_u24 %s, 6144, %s' % (v(vT+1), v(vT+1)))
    a('v_and_b32 %s, 1, %s' % (v(vT), v(vT)))
    a('v_lshl_add_u32 %s, %s, 4, %s' % (v(vT+1), v(vT), v(vT+1)))
    a('s_lshl_b32 %s, %s, 5' % (s(sT0), s(sF8)))
    a('s_add_u32 %s, %s, %d' % (s(sT0), s(sT0), W_FP))
    a('v_add_u32 %s, %s, %s' % (v(vFPA), s(sT0), v(vT+1)))
    a('v_lshlrev_b32 %s, 3, %s' % (v(vT), v(vT+6)))
    a('v_lshl_add_u32 %s, %s, 6, %s' % (v(vCA), v(vT+5), v(vT)))
    a('s_lshl_b32 %s, %s, 8' % (s(sT0), s(sWI)))
    a('s_add_u32 %s, %s, %d' % (s(sT0), s(sT0), FP))
    a('v_lshl_add_u32 %s, %s, 2, %s' % (v(vCB), v(vL), s(sT0)))
    a('v_lshlrev_b32 %s, 2, %s' % (v(vTW1), v(vT+5)))
    a('v_add_u32 %s, %d, %s' % (v(vTW1), FP, v(vTW1)))
    a('s_lshl_b32 %s, %s, 2' % (s(sT0), s(sWI)))
    a('s_add_u32 %s, %s, %d' % (s(sT0), s(sT0), FF))
    a('v_mov_b32 %s, %s' % (v(vTW2), s(sT0)))
    a('v_mov_b32 %s, %d' % (v(vTW3), FF))
    a('s_lshl_b32 %s, s2, 5' % s(sT0))
    a('s_lshr_b32 %s, %s, 1' % (s(sT1), s(sWI)))
    a('s_lshl_b32 %s, %s, 4' % (s(sT1), s(sT1)))
    a('s_add_u32 %s, %s, %s' % (s(sT0), s(sT0), s(sT1)))
    a('s_and_b32 %s, %s, 1' % (s(sT1), s(sWI)))
    a('s_lshl_b32 %s, %s, 13' % (s(sT1), s(sT1)))
    a('s_add_u32 %s, %s, %s' % (s(sT0), s(sT0), s(sT1)))
    a('s_add_u32 %s, %s, %d' % (s(sT0), s(sT0), W_ST))
    a('v_mov_b32 %s, %s' % (v(vTW4), s(sT0)))
    rk, pfa = vXN, vXN+1
    a('s_lshl_b32 %s, s2, 3' % s(sT0))
    a('s_lshl_b32 %s, %s, 1' % (s(sT1), s(sWI)))
    a('s_add_u32 %s, %s, %s' % (s(sT0), s(sT0), s(sT1)))
    a('s_sub_u32 %s, 0xffff, %s' % (s(sT0), s(sT0)))
    a('v_lshrrev_b32 %s, 5, %s' % (v(rk), v(vL)))
    a('v_sub_u32 %s, %s, %s' % (v(rk), s(sT0), v(rk)))
    a('s_lshl_b32 %s, %s, 13' % (s(sT0), s(sH)))
    a('s_lshl_b32 %s, %s, 11' % (s(sT1), s(sWI)))
    a('s_add_u32 %s, %s, %s' % (s(sT0), s(sT0), s(sT1)))
    a('s_add_u32 %s, %s, %s' % (s(sT0), s(sT0), s(sT2)))
    a('v_lshl_add_u32 %s, %s, 7, %s' % (v(pfa), v(vT+5), s(sT0)))
    S1, S2, S3, S4 = vXF, vXF+1, vXF+2, vXF+3
    def red32(regs):
        for m in ('row_shr:1','row_shr:2','row_shr:4','row_shr:8'):
            for r in regs: a('v_add_f32_dpp %s, %s, %s %s row_mask:0xf bank_mask:0xf' % (v(r), v(r), v(r), m))
        for r in regs: a('v_add_f32_dpp %s, %s, %s row_bcast:15 row_mask:0xa bank_mask:0xf' % (v(r), v(r), v(r)))
    for r in (S1,S2,S3,S4): a('v_mov_b32 %s, 0' % v(r))
    vm(9)
    for i in range(8): a('v_dot2_f32_bf16 %s, %s, %s, %s' % (v(S4), v(vG+i), s(sONES), v(S4)))
    red32([S4])
    vm(7)
    stamp(1)
    if o['prefetch']:
        a('s_mov_b64 exec, 0xffff')
        a('global_load_dword %s, %s, %s nt' % (v(vPF), v(pfa), s(sWS,2)))
        a('s_mov_b64 exec, -1')
    for i in range(8):
        a('v_dot2_f32_bf16 %s, %s, %s, %s' % (v(S1), v(vD+i), s(sONES), v(S1)))
        a('v_dot2_f32_bf16 %s, %s, %s, %s' % (v(S2), v(vD+i), v(vD+i), v(S2)))
        a('v_dot2_f32_bf16 %s, %s, %s, %s' % (v(S3), v(vD+i), v(vG+i), v(S3)))
    red32([S1,S2,S3])
    t = vT
    a('v_mul_f32 %s, 0x3b000000, %s' % (v(S1), v(S1)))
    a('v_mul_f32 %s, 0x3b000000, %s' % (v(S2), v(S2)))
    a('v_fma_f32 %s, -%s, %s, %s' % (v(S2), v(S1), v(S1), v(S2)))
    a('v_max_f32 %s, 0, %s' % (v(S2), v(S2)))
    a('v_cvt_pk_bf16_f32 %s, %s, %s' % (v(t), v(S1), v(S2)))
    a('v_and_b32 %s, %s, %s' % (v(t), s(sHI), v(t)))
    a('v_add_f32 %s, 0x3727c5ac, %s' % (v(t), v(t)))
    a('v_cvt_pk_bf16_f32 %s, %s, %s' % (v(t), v(t), v(t)))
    a('v_and_b32 %s, %s, %s' % (v(t), s(sHI), v(t)))
    a('v_sqrt_f32 %s, %s' % (v(t), v(t)))
    g = vE
    a('v_cvt_pk_bf16_f32 %s, %s, %s' % (v(g+1), v(S1), v(t)))
    a('v_and_b32 %s, %s, %s' % (v(t), s(sHI), v(g+1)))
    a('v_lshlrev_b32 %s, 16, %s' % (v(t+1), v(g+1)))
    a('v_rcp_f32 %s, %s' % (v(t), v(t)))
    a('v_fma_f32 %s, -%s, %s, %s' % (v(S3), v(t+1), v(S4), v(S3)))
    a('v_readlane_b32 %s, %s, 31' % (s(sT0), v(g+1)))
    a('v_mul_f32 %s, %s, %s' % (v(S3), v(S3), v(t)))
    a('v_cvt_pk_bf16_f32 %s, %s, %s' % (v(S3), v(S3), v(S3)))
    a('v_mov_b32 %s, %s' % (v(g), s(sT0)))
    a('v_ashrrev_i32 %s, 31, %s' % (v(t), v(S3)))
    a('v_or_b32 %s, 0x80000000, %s' % (v(t), v(t)))
    a('v_xor_b32 %s, %s, %s' % (v(t), v(t), v(S3)))
    a('v_and_or_b32 %s, %s, %s, %s' % (v(t), v(t), s(sHI), v(rk)))
    vm(1 if o['prefetch'] else 0)
    a('v_readlane_b32 %s, %s, 31' % (s(sT0), v(t)))
    a('v_readfirstlane_b32 %s, %s' % (s(sTAG), v(vEP)))
    a('v_max_u32 %s, %s, %s' % (v(g+2), s(sT0), v(t)))
    a('s_add_u32 %s, %s, 16' % (s(sTAG), s(sTAG)))
    a('s_and_b32 %s, %s, -16' % (s(sTAG), s(sTAG)))
    a('s_or_b32 %s, %s, %s' % (s(sTAGX), s(sTAG), s(sXCC)))
    a('v_mov_b32 %s, %s' % (v(g+3), s(sTAGX)))
    a('s_mov_b32 exec_lo, 0')
    a('s_mov_b32 exec_hi, 0x80000000')
    a('global_store_dwordx4 %s, %s, %s sc1' % (v(vTW4), v(g,4), s(sWS,2)))
    a('s_mov_b64 exec, -1')
    a('s_setprio 0')
    stamp(2)
    if o['diagx'] >= 0:
        a('s_lshl_b32 %s, s2, 2' % s(sT0))
        a('s_add_u32 %s, %s, %d' % (s(sT0), s(sT0), W_STAMP))
        a('v_mov_b32 %s, %s' % (v(vT), s(sT0)))
        a('v_mov_b32 %s, s86' % v(vT+1))
        a('s_mov_b64 exec, 1')
        a('global_store_dword %s, %s, %s sc1' % (v(vT), v(vT+1), s(sWS,2)))
        a('s_mov_b64 exec, -1')
    if o['diag'] == 14:
        a('s_mov_b32 %s, %d' % (s(sCNT), o['spinmax']))
        a('L_dspin:')
        a('global_load_dwordx4 %s, %s, %s sc1' % (v(vG,4), v(vST0), s(sWS,2)))
        a('global_load_dwordx4 %s, %s, %s sc1' % (v(vG+4,4), v(vST1), s(sWS,2)))
        a('s_waitcnt vmcnt(0)')
        a('v_xor_b32 %s, %s, %s' % (v(vT), s(sTAG), v(vG+3)))
        a('v_xor_b32 %s, %s, %s' % (v(vT+1), s(sTAG), v(vG+7)))
        a('v_or_b32 %s, %s, %s' % (v(vT), v(vT), v(vT+1)))
        a('v_cmp_lt_u32 vcc, 15, %s' % v(vT))
        a('s_cbranch_vccz L_dok')
        a('s_sub_u32 %s, %s, 1' % (s(sCNT), s(sCNT)))
        a('s_cmp_lg_u32 %s, 0' % s(sCNT))
        a('s_cbranch_scc1 L_dspin')
        a('L_dok:')
        stamp(14)

    a('L_kgen:')
    are, aim, bre, bim, cre, cim = [vP+i for i in range(6)]
    dt = vP+6; t0 = vP+7
    z1, z2, z4, ZZ, w1, w2, w4, c0 = [vP+8+2*i for i in range(8)]
    hq = [vP+24+2*i for i in range(8)]
    lq = [vP+40+2*i for i in range(8)]
    cv = [vP+56+i for i in range(8)]
    a('s_waitcnt lgkmcnt(0)')
    a('s_lshr_b32 %s, %s, 1' % (s(sT0), s(sW)))
    a('s_lshl_b32 %s, %s, 4' % (s(sT0), s(sT0)))
    a('s_lshr_b64 %s, %s, %s' % (s(sLD,2), s(sLD,2), s(sT0)))
    a('s_lshl_b32 %s, %s, 16' % (s(sT0), s(sLD)))
    a('v_mov_b32 %s, 0x3fb8aa3b' % v(t0))
    a('v_mul_f32 %s, %s, %s' % (v(dt), s(sT0), v(t0)))
    a('v_exp_f32 %s, %s' % (v(dt), v(dt)))
    a('s_lshl_b32 %s, %s, 8' % (s(sT0), s(sW)))
    a('s_mov_b32 m0, %s' % s(sT0))
    a('v_cvt_pk_bf16_f32 %s, %s, %s' % (v(dt), v(dt), v(dt)))
    a('v_and_b32 %s, %s, %s' % (v(dt), s(sHI), v(dt)))
    a('v_mul_f32 %s, %s, %s' % (v(are), v(dt), v(are)))
    a('v_mul_f32 %s, %s, %s' % (v(aim), v(dt), v(aim)))
    a('v_mul_f32 %s, %s, %s' % (v(are), v(t0), v(are)))
    a('v_mul_f32 %s, 0.15915494, %s' % (v(aim), v(aim)))
    a('v_exp_f32 %s, %s' % (v(cv[0]), v(are)))
    a('v_fract_f32 %s, %s' % (v(cv[1]), v(aim)))
    a('v_mul_f32 %s, 0x43800000, %s' % (v(are), v(are)))
    a('v_cos_f32 %s, %s' % (v(z1), v(cv[1])))
    a('v_mul_f32 %s, 0x43800000, %s' % (v(aim), v(aim)))
    a('v_sin_f32 %s, %s' % (v(z1+1), v(cv[1])))
    a('v_fract_f32 %s, %s' % (v(cv[3]), v(aim)))
    a('v_exp_f32 %s, %s' % (v(cv[2]), v(are)))
    a('v_mul_f32 %s, %s, %s' % (v(z1), v(cv[0]), v(z1)))
    a('v_cos_f32 %s, %s' % (v(ZZ), v(cv[3])))
    a('v_mul_f32 %s, %s, %s' % (v(z1+1), v(cv[0]), v(z1+1)))
    a('v_sin_f32 %s, %s' % (v(ZZ+1), v(cv[3])))
    a('v_mul_f32 %s, %s, %s' % (v(bre), v(dt), v(bre)))
    a('v_mul_f32 %s, %s, %s' % (v(bim), v(dt), v(bim)))
    cmul(a, z2, z1, z1)
    a('v_mul_f32 %s, %s, %s' % (v(ZZ), v(cv[2]), v(ZZ)))
    a('v_mul_f32 %s, %s, %s' % (v(ZZ+1), v(cv[2]), v(ZZ+1)))
    cmul(a, hq[0], cre, bre)
    cmul(a, z4, z2, z2)
    ci = [0]
    m0_hi = [False]
    def put(row, reg, neg):
        c = cv[ci[0] % 8]; ci[0] += 1
        a('v_cvt_pk_bf16_f32 %s, %s, %s%s' % (v(c), v(reg), '-' if neg else '', v(reg+1)))
        off = row*RS - (30*RS if m0_hi[0] else 0)
        assert 0 <= off < 65536, (row, off)
        a('ds_write_addtid_b32 %s offset:%d' % (v(c), STAGE + off))
    cmul(a, w1, z4, z4)
    cmul(a, hq[1], hq[0], z1)
    cmul(a, w2, w1, w1)
    put(1, w1, False)
    cmul(a, hq[2], hq[0], z2)
    cmul(a, lq[3], w2, w1)
    put(2, w2, False)
    cmul(a, w4, w2, w2)
    put(3, lq[3], False)
    cur = {1: w1, 2: w2, 3: lq[3], 4: w4}
    put(4, w4, False)
    def lo_step(j):
        d = lq[j % 8]
        cmul(a, d, cur[j-4], w4); cur[j] = d
        put(j, d, False)
    for j in range(5, 14): lo_step(j)
    a('s_cmp_ge_u32 %s, 4' % s(sW))
    a('s_cbranch_scc1 L_noflag')
    a('s_waitcnt vmcnt(0)')
    a('v_readfirstlane_b32 %s, %s' % (s(sTAG), v(vEP)))
    a('s_add_u32 %s, %s, 16' % (s(sTAG), s(sTAG)))
    a('s_and_b32 %s, %s, -16' % (s(sTAG), s(sTAG)))
    a('s_or_b32 %s, %s, %s' % (s(sTAGX), s(sTAG), s(sXCC)))
    a('v_mov_b32 %s, %s' % (v(vT), s(sTAGX)))
    a('s_mov_b64 exec, 1')
    a('global_store_dword %s, %s, %s' % (v(vFPA), v(vT), s(sWS,2)))
    a('s_mov_b64 exec, -1')
    stamp(2)
    a('L_noflag:')
    for j in range(14, 30): lo_step(j)
    a('s_lshl_b32 %s, %s, 8' % (s(sT0), s(sW)))
    a('s_add_u32 %s, %s, %d' % (s(sT0), s(sT0), 30*RS))
    a('s_mov_b32 m0, %s' % s(sT0))
    m0_hi[0] = True
    for j in range(30, 32): lo_step(j)
    a('global_load_dword %s, %s, %s sc1' % (v(vPF), v(vFL), s(sWS,2)))
    put(32, hq[0], True); put(33, hq[1], True); put(34, hq[2], True)
    cmul(a, hq[3], hq[1], z2);  cmul(a, hq[4], hq[0], z4)
    put(35, hq[3], True); put(36, hq[4], True)
    cmul(a, hq[5], hq[1], z4);  cmul(a, hq[6], hq[2], z4); cmul(a, hq[7], hq[3], z4)
    put(37, hq[5], True); put(38, hq[6], True); put(39, hq[7], True)
    A0, A2, A4, A6 = lq[0], lq[1], lq[2], lq[3]
    cmul(a, A0, hq[0], ZZ); cmul(a, A2, hq[2], ZZ); cmul(a, A4, hq[4], ZZ); cmul(a, A6, hq[6], ZZ)
    put(40, A0, True)
    B0, B4 = lq[4], lq[5]
    cmul(a, B0, A0, ZZ); put(41, A2, True); cmul(a, B4, A4, ZZ); put(42, A4, True)
    C0, C4 = lq[6], lq[7]
    cmul(a, C0, B0, ZZ); put(43, A6, True); cmul(a, C4, B4, ZZ); put(44, B0, True)
    cmul(a, hq[1], C0, ZZ); put(45, B4, True); put(46, C0, True)
    cmul(a, hq[2], hq[1], ZZ); put(47, C4, True); put(48, hq[1], True)
    cmul(a, hq[3], hq[2], ZZ); put(49, hq[2], True)
    cmul(a, hq[4], hq[3], ZZ); put(50, hq[3], True)
    cmul(a, hq[5], hq[4], ZZ); put(51, hq[4], True); put(52, hq[5], True)
    stamp(3)

    a('s_waitcnt vmcnt(0)')
    a('v_cmp_ne_u32 vcc, %s, %s' % (s(sTAGX), v(vPF)))
    if o['force_slow']: a('s_branch L_gather')
    a('s_cbranch_vccz L_fast')
    a('s_mov_b32 %s, %d' % (s(sCNT), o['spinmax']))
    a('L_flagspin:')
    a('global_load_dword %s, %s, %s sc1' % (v(vPF), v(vFL), s(sWS,2)))
    a('global_load_dword %s, %s, %s sc1' % (v(vT), v(vXC), s(sWS,2)))
    a('s_waitcnt vmcnt(0)')
    a('v_cmp_ne_u32 vcc, %s, %s' % (s(sTAGX), v(vPF)))
    a('s_cbranch_vccz L_fast')
    a('v_xor_b32 %s, %s, %s' % (v(vT), s(sTAGX), v(vT)))
    a('v_add_u32 %s, -1, %s' % (v(vT), v(vT)))
    a('v_cmp_gt_u32 vcc, 15, %s' % v(vT))
    a('s_cbranch_vccnz L_gather')
    a('s_sub_u32 %s, %s, 1' % (s(sCNT), s(sCNT)))
    a('s_cmp_lg_u32 %s, 0' % s(sCNT))
    a('s_cbranch_scc1 L_flagspin')
    a('L_gather:')
    for r in range(4):
        a('global_load_dwordx2 %s, %s, %s offset:%d' % (v(vD+2*r,2), v(vXG), s(sX,2), r*1024))
    a('s_branch L_stats')
    a('L_fast:')
    a('global_load_dwordx4 %s, %s, %s sc1' % (v(vD,4), v(vIN), s(sWS,2)))
    a('global_load_dwordx4 %s, %s, %s offset:64 sc1' % (v(vD+4,4), v(vIN), s(sWS,2)))
    a('L_stats:')
    a('global_load_dwordx4 %s, %s, %s sc1' % (v(vG,4), v(vST0), s(sWS,2)))
    a('global_load_dwordx4 %s, %s, %s sc1' % (v(vG+4,4), v(vST1), s(sWS,2)))
    def wloads():
        a('s_lshl_b32 %s, %s, 11' % (s(sT0), s(sWI)))
        a('s_add_u32 %s, %s, %d' % (s(sT0), s(sT0), WL))
        for mu, base in enumerate((sWG, sWU)):
            for i, r in enumerate((vKA, vKB)):
                a('s_add_u32 m0, %s, %d' % (s(sT0), mu*WL1 + i*1024))
                a('global_load_lds_dwordx4 %s, %s' % (v(r), s(base,2)))
        for i in range(8):
            a('global_load_dword %s, %s, %s offset:%d' % (v(vWD+i), v(vWDA), s(sWD,2), i*1024 - 4096))
    a('s_waitcnt lgkmcnt(0)')
    stamp(4)
    a('s_barrier')
    a('s_cmp_ge_u32 %s, 4' % s(sW))
    a('s_cbranch_scc1 L_h_b3')
    KD = vP; KF = vP + 16
    NB = 6
    def kread(sidx):
        r = KF + 8*(sidx % NB)
        a('ds_read_b128 %s, %s offset:%d' % (v(r,4), v(vKA), 32*sidx))
        a('ds_read_b128 %s, %s offset:%d' % (v(r+4,4), v(vKB), 32*sidx))
    for i in range(NB): kread(i)
    for sidx in range(16):
        outstanding = min(16, sidx + NB) - sidx - 1
        a('s_waitcnt lgkmcnt(%d)' % (2*outstanding))
        r = KF + 8*(sidx % NB)
        a('v_mfma_f32_32x32x16_bf16 %s, %s, %s, %s' % (v(KD,16), v(r,4), v(r+4,4), '0' if sidx == 0 else v(KD,16)))
        if sidx + NB < 16: kread(sidx + NB)
    for i in range(6):
        a('v_cvt_pk_bf16_f32 %s, %s, %s' % (v(vT+i), v(KD+2*i), v(KD+2*i+1)))
    a('ds_write_b64 %s, %s' % (v(vTW1), v(vT,2)))
    a('ds_write_b32 %s, %s' % (v(vTW2), v(vT+2)))
    a('ds_write_b32 %s, %s' % (v(vTW3), v(vT+3)))
    a('ds_write_b16 %s, %s' % (v(vTW4), v(vT+4)))
    a('ds_write_b16_d16_hi %s, %s offset:64' % (v(vTW4), v(vT+4)))
    a('ds_write_b16 %s, %s offset:128' % (v(vTW4), v(vT+5)))
    a('ds_write_b16_d16_hi %s, %s offset:192' % (v(vTW4), v(vT+5)))
    a('s_waitcnt lgkmcnt(0)')
    a('s_branch L_b3')
    a('L_h_b3:')
    if not o['wlate']:
        a('s_cmp_eq_u32 %s, 0' % s(sPROD))
        a('s_cbranch_scc1 L_b3')
        a('s_waitcnt vmcnt(0)')
        wloads()
    a('L_b3:')
    stamp(5)
    a('s_barrier')
    Wq = vP; Q = vP + 16
    for c in range(4):
        a('ds_read2_b32 %s, %s offset0:0 offset1:1' % (v(Wq+4*c,2), v(vGA+2*c)))
        a('ds_read2_b32 %s, %s offset0:0 offset1:1' % (v(Wq+4*c+2,2), v(vGA+2*c+1)))
    a('s_cmp_lg_u32 %s, 7' % s(sW))
    a('s_cbranch_scc1 L_nopad')
    a('v_bfe_u32 %s, %s, 3, 2' % (v(vT), v(vL)))
    a('v_and_b32 %s, 7, %s' % (v(vT+1), v(vL)))
    a('v_mul_u32_u24 %s, %d, %s' % (v(vT), R4S, v(vT)))
    a('v_lshl_add_u32 %s, %s, 4, %s' % (v(vT), v(vT+1), v(vT)))
    for i in range(4): a('v_mov_b32 %s, 0' % v(vT+4+i))
    a('ds_write_b128 %s, %s offset:%d' % (v(vT), v(vT+4,4), R4))
    a('s_waitcnt lgkmcnt(1)')
    a('L_nopad:')
    for c in range(4):
        a('s_waitcnt lgkmcnt(%d)' % (6 if c == 0 else 6))
        W0, W1, W2, W3 = [Wq+4*c+i for i in range(4)]
        q = Q + 8*c
        a('v_perm_b32 %s, %s, %s, %s' % (v(q+0), v(W2), v(W1), v(vSEL+2)))
        a('v_perm_b32 %s, %s, %s, %s' % (v(q+1), v(W1), v(W0), v(vSEL+0)))
        a('v_perm_b32 %s, %s, %s, %s' % (v(q+2), v(W3), v(W2), v(vSEL+3)))
        a('v_perm_b32 %s, %s, %s, %s' % (v(q+3), v(W1), v(W0), v(vSEL+1)))
        a('ds_write_b128 %s, %s offset:%d' % (v(vR4W), v(q,4), c*R4S))
        a('v_perm_b32 %s, %s, %s, %s' % (v(q+4), v(W3), v(W2), v(vSEL+4)))
        a('v_mov_b32 %s, %s' % (v(q+5), v(q+0)))
        a('v_perm_b32 %s, %s, %s, %s' % (v(q+6), v(W3), v(W2), v(vSEL+5)))
        a('v_mov_b32 %s, %s' % (v(q+7), v(q+2)))
        a('ds_write_b128 %s, %s offset:%d' % (v(vR4W), v(q+4,4), c*R4S + 16))
    stamp(6)
    if o['wlate']: a('s_waitcnt vmcnt(0)')
    else:
        a('s_cmp_lt_u32 %s, 4' % s(sW))
        a('s_cbranch_scc1 L_nw0')
        a('s_cmp_lg_u32 %s, 0' % s(sPROD))
        a('s_cbranch_scc1 L_nw1')
        a('L_nw0:')
        a('s_waitcnt vmcnt(0)')
        a('L_nw1:')
    a('s_mov_b32 %s, %d' % (s(sCNT), o['spinmax']))
    a('L_statspin:')
    a('v_xor_b32 %s, %s, %s' % (v(vT), s(sTAG), v(vG+3)))
    a('v_xor_b32 %s, %s, %s' % (v(vT+1), s(sTAG), v(vG+7)))
    a('v_or_b32 %s, %s, %s' % (v(vT), v(vT), v(vT+1)))
    a('v_cmp_lt_u32 vcc, 15, %s' % v(vT))
    a('s_cbranch_vccz L_statok')
    a('global_load_dwordx4 %s, %s, %s sc1' % (v(vG,4), v(vST0), s(sWS,2)))
    a('global_load_dwordx4 %s, %s, %s sc1' % (v(vG+4,4), v(vST1), s(sWS,2)))
    a('s_sub_u32 %s, %s, 1' % (s(sCNT), s(sCNT)))
    a('s_cmp_lg_u32 %s, 0' % s(sCNT))
    a('s_waitcnt vmcnt(0)')
    a('s_cbranch_scc1 L_statspin')
    a('L_statok:')
    stamp(7)
    stq = [vG, vG+1, vG+4, vG+5]
    rho = [vT+i for i in range(4)]; mu = [vT+4+i for i in range(4)]
    key = vT+8
    for r in range(4): a('v_and_b32 %s, %s, %s' % (v(rho[r]), s(sHI), v(stq[r])))
    a('v_max_u32 %s, %s, %s' % (v(key), v(vG+2), v(vG+6)))
    for r in range(4):
        a('v_rcp_f32 %s, %s' % (v(rho[r]), v(rho[r])))
        a('v_lshlrev_b32 %s, 16, %s' % (v(mu[r]), v(stq[r])))
    kred = ['row_shr:1 row_mask:0xf','row_shr:2 row_mask:0xf','row_shr:4 row_mask:0xf','row_shr:8 row_mask:0xf','row_bcast:15 row_mask:0xa','row_bcast:31 row_mask:0xc']
    for r in range(4):
        a('v_mul_f32_e64 %s, -%s, %s' % (v(mu[r]), v(mu[r]), v(rho[r])))
        a('v_lshlrev_b32 %s, 16, %s' % (v(vXF+4*r), v(vD+2*r)))
        a('v_and_b32 %s, %s, %s' % (v(vXF+4*r+1), s(sHI), v(vD+2*r)))
        a('v_lshlrev_b32 %s, 16, %s' % (v(vXF+4*r+2), v(vD+2*r+1)))
        a('v_and_b32 %s, %s, %s' % (v(vXF+4*r+3), s(sHI), v(vD+2*r+1)))
        a('v_max_u32_dpp %s, %s, %s %s bank_mask:0xf' % (v(key), v(key), v(key), kred[r]))
        for c in range(4):
            a('v_fma_f32 %s, %s, %s, %s' % (v(vXN+4*r+c), v(vXF+4*r+c), v(rho[r]), v(mu[r])))
    a('v_max_u32_dpp %s, %s, %s %s bank_mask:0xf' % (v(key), v(key), v(key), kred[4]))
    XP = vG
    for c in range(4):
        a('v_cvt_pk_bf16_f32 %s, %s, %s' % (v(XP+2*c), v(vXN+c), v(vXN+4+c)))
        a('v_cvt_pk_bf16_f32 %s, %s, %s' % (v(XP+2*c+1), v(vXN+8+c), v(vXN+12+c)))
        a('ds_write_b64 %s, %s offset:%d' % (v(vUW), v(XP+2*c,2), c*US))
        if c == 0: a('v_max_u32_dpp %s, %s, %s %s bank_mask:0xf' % (v(key), v(key), v(key), kred[5]))
    a('s_lshl_b32 %s, %s, 2' % (s(sT0), s(sW)))
    a('s_add_u32 %s, %s, %d' % (s(sT0), s(sT0), AM))
    a('v_mov_b32 %s, %s' % (v(vT+9), s(sT0)))
    a('s_mov_b32 exec_lo, 0')
    a('s_mov_b32 exec_hi, 0x80000000')
    a('ds_write_b32 %s, %s' % (v(vT+9), v(key)))
    a('s_mov_b64 exec, -1')
    a('v_mov_b32 %s, %d' % (v(vT+9), AM))
    a('s_waitcnt lgkmcnt(0)')
    stamp(8)
    a('s_barrier')
    def read_idx():
        a('ds_read_b128 %s, %s' % (v(vT,4), v(vT+9)))
        a('ds_read_b128 %s, %s offset:16' % (v(vT+4,4), v(vT+9)))
        a('s_waitcnt lgkmcnt(0)')
        a('v_max3_u32 %s, %s, %s, %s' % (v(vT), v(vT), v(vT+1), v(vT+2)))
        a('v_max3_u32 %s, %s, %s, %s' % (v(vT+3), v(vT+3), v(vT+4), v(vT+5)))
        a('v_max3_u32 %s, %s, %s, %s' % (v(vT), v(vT), v(vT+6), v(vT+7)))
        a('v_max_u32 %s, %s, %s' % (v(vT), v(vT), v(vT+3)))
        a('v_readfirstlane_b32 %s, %s' % (s(sKEY), v(vT)))
        a('s_and_b32 %s, %s, 0xffff' % (s(sIDX), s(sKEY)))
        a('s_sub_u32 %s, 0xffff, %s' % (s(sIDX), s(sIDX)))
        a('s_and_b32 %s, %s, 2047' % (s(sIDX), s(sIDX)))
    a('s_cmp_ge_u32 %s, 4' % s(sW))
    a('s_cbranch_scc1 L_helper')

    ACC = vP; FR = vP + 16; NFR = 28
    stamp(10)
    a('s_setprio 1')
    a('s_cmp_eq_u32 %s, 0' % s(sH))
    a('s_cbranch_scc0 L_conv1')
    def conv(h):
        tl = tiles(h)
        ops = []
        for c0 in range(8):
            lst = [(i, c1, q - c1) for i, q in enumerate(tl) for c1 in range(q+1)]
            have = set(); seq = []
            while lst:
                def cost(x):
                    return (2*(('A',x[1]) not in have) + (('B',x[2]) not in have), bool(seq) and seq[-1][0] == x[0], max(x[1],x[2]))
                x = min(lst, key=cost); lst.remove(x); seq.append(x); have.add(('A',x[1])); have.add(('B',x[2]))
            for i, c1, qp in seq: ops.append((i, ('A', c0, c1), ('B', c0, qp)))
        order = []; last = {}
        for n, (i, ak, bk) in enumerate(ops):
            for k in (bk, ak):
                if k not in last: order.append(k)
                last[k] = n
        L = []
        for k in order:
            L += [(k,0),(k,1)] if k[0] == 'A' else [(k,0)]
        endidx = {}
        for j,(k,p) in enumerate(L): endidx[k] = j+1
        need = []; m = 0
        for (i, ak, bk) in ops:
            m = max(m, endidx[ak], endidx[bk]); need.append(m)
        free = list(range(NFR)); slot = {}
        st = dict(issued=0, done=0)
        MAXOUT = o['maxout']; G = o['group']
        def can_issue():
            if st['issued'] >= len(L): return False
            if st['issued'] - st['done'] >= MAXOUT: return False
            k,p = L[st['issued']]
            return p == 1 or bool(free)
        def issue():
            k,p = L[st['issued']]
            if p == 0: slot[k] = free.pop(0)
            r = FR + 4*slot[k]
            if k[0] == 'A':
                off = CAS*(8*k[2] + k[1])
                a('ds_read_b64 %s, %s offset:%d' % (v(r+2*p,2), v(vCA2 if p else vCA), off))
            else:
                off = 2*(224 + 256*k[2] - 32*k[1])
                a('ds_read_b128 %s, %s offset:%d' % (v(r,4), v(vCB), off))
            st['issued'] += 1
        started = set()
        while can_issue(): issue()
        for n, (i, ak, bk) in enumerate(ops):
            if need[n] > st['done']:
                while st['issued'] < need[n]:
                    st['done'] = max(st['done'], st['issued'] - MAXOUT + 1); issue()
                tgt = need[n]
                for m2 in range(n, min(n+G, len(ops))):
                    if need[m2] <= st['issued'] - o['minfly'] or need[m2] == len(L) == st['issued']: tgt = max(tgt, need[m2])
                a('s_waitcnt lgkmcnt(%d)' % (st['issued'] - tgt)); st['done'] = tgt
            acc = ACC + 4*i
            cin = v(acc,4) if i in started else '0'
            started.add(i)
            a('v_mfma_f32_16x16x32_bf16 %s, %s, %s, %s' % (v(acc,4), v(FR+4*slot[ak],4), v(FR+4*slot[bk],4), cin))
            for k in (ak, bk):
                if last[k] == n: free.append(slot[k])
            budget = 2
            if n+1 < len(ops) and need[n+1] > st['done']: budget = 1
            while budget > 0 and can_issue():
                issue(); budget -= 1
    conv(0)
    a('s_branch L_convdone')
    a('L_conv1:')
    conv(1)
    a('L_convdone:')
    a('s_nop 7')
    for i in range(4):
        a('ds_write_b128 %s, %s offset:%d' % (v(vY), v(ACC+4*i,4), i*YTS))
    a('s_waitcnt lgkmcnt(0)')
    stamp(9)
    a('s_barrier')
    a('s_cmp_lg_u32 %s, 0' % s(sW))
    a('s_cbranch_scc1 L_exit')
    a('s_cmp_lg_u32 s2, 0')
    a('s_cbranch_scc1 L_noep')
    a('v_mov_b32 %s, 0' % v(vT+10))
    a('v_mov_b32 %s, %s' % (v(vT+11), s(sTAG)))
    a('s_mov_b64 exec, 1')
    a('global_store_dword %s, %s, %s sc1' % (v(vT+10), v(vT+11), s(sWS,2)))
    a('s_mov_b64 exec, -1')
    a('L_noep:')
    read_idx()
    a('s_lshr_b32 %s, %s, 8' % (s(sT0), s(sIDX)))
    a('s_lshr_b32 %s, %s, 9' % (s(sT1), s(sIDX)))
    a('s_xor_b32 %s, %s, %s' % (s(sT0), s(sT0), s(sT1)))
    a('s_xor_b32 %s, %s, %s' % (s(sT0), s(sT0), s(sH)))
    a('s_bitcmp1_b32 %s, 0' % s(sT0))
    a('s_cbranch_scc1 L_exit')
    if o['nohelp']: a('s_branch L_exit')
    a('s_setprio 3')
    F = vP
    par = vT+12
    a('v_and_b32 %s, 1, %s' % (v(par), v(vL)))
    a('s_lshr_b32 %s, %s, 2' % (s(sT0), s(sCH0)))
    a('s_mul_i32 %s, %s, 6144' % (s(sT0), s(sT0)))
    a('s_add_u32 %s, %s, %d' % (s(sT0), s(sT0), W_FP + 3072))
    a('v_lshl_add_u32 %s, %s, 4, %s' % (v(vFPA), v(vL), s(sT0)))
    a('s_lshl_b32 %s, %s, 10' % (s(sT0), s(sIDX)))
    a('s_lshl_b32 %s, %s, 1' % (s(sT2), s(sCH0)))
    a('s_add_u32 %s, %s, %s' % (s(sT0), s(sT0), s(sT2)))
    xo, xv = vT+13, vXF+8
    a('v_lshl_add_u32 %s, %s, 2, %s' % (v(xo), v(par), s(sT0)))
    a('global_load_dword %s, %s, %s' % (v(xv), v(xo), s(sX,2)))
    a('s_mul_i32 %s, %s, %d' % (s(sT1), s(sT1), YTS))
    a('s_bfe_u32 %s, %s, 0x20002' % (s(sT0), s(sIDX)))
    a('s_mul_i32 %s, %s, %d' % (s(sT0), s(sT0), YGS))
    a('s_add_u32 %s, %s, %s' % (s(sT1), s(sT1), s(sT0)))
    a('s_bfe_u32 %s, %s, 0x40004' % (s(sT0), s(sIDX)))
    a('s_lshl_b32 %s, %s, 4' % (s(sT0), s(sT0)))
    a('s_add_u32 %s, %s, %s' % (s(sT1), s(sT1), s(sT0)))
    a('s_and_b32 %s, %s, 3' % (s(sT0), s(sIDX)))
    a('s_lshl_b32 %s, %s, 2' % (s(sT0), s(sT0)))
    a('s_add_u32 %s, %s, %s' % (s(sT1), s(sT1), s(sT0)))
    a('s_add_u32 %s, %s, %d' % (s(sT1), s(sT1), YX))
    a('v_mul_u32_u24 %s, %d, %s' % (v(vT), 2*YCS, v(par)))
    a('v_add_u32 %s, %s, %s' % (v(vT), s(sT1), v(vT)))
    y0, y1, n0, n1, d0, d1 = vXF, vXF+1, vXF+2, vXF+3, vXF+4, vXF+5
    a('ds_read_b32 %s, %s' % (v(y0), v(vT)))
    a('ds_read_b32 %s, %s offset:%d' % (v(y1), v(vT), YCS))
    a('s_lshl_b32 %s, %s, 1' % (s(sT0), s(sIDX)))
    a('s_add_u32 %s, %s, %d' % (s(sT0), s(sT0), U + 480))
    a('v_mul_u32_u24 %s, %d, %s' % (v(vT+1), 2*US, v(par)))
    a('v_add_u32 %s, %s, %s' % (v(vT+1), s(sT0), v(vT+1)))
    a('ds_read_u16 %s, %s' % (v(n0), v(vT+1)))
    a('ds_read_u16 %s, %s offset:%d' % (v(n1), v(vT+1), US))
    a('v_cmp_eq_u32 vcc, 0, %s' % v(par))
    a('v_mov_b32 %s, %s' % (v(d0), s(sDS)))
    a('v_mov_b32 %s, %s' % (v(d1), s(sDS+1)))
    a('v_cndmask_b32 %s, %s, %s, vcc' % (v(d0), v(d1), v(d0)))
    a('v_and_b32 %s, %s, %s' % (v(d1), s(sHI), v(d0)))
    a('v_lshlrev_b32 %s, 16, %s' % (v(d0), v(d0)))
    a('s_and_b32 %s, %s, %s' % (s(sT0), s(sKEY), s(sHI)))
    a('s_xor_b32 %s, %s, 0x80000000' % (s(sT1), s(sT0)))
    a('s_xor_b32 %s, %s, %s' % (s(sT2), s(sT0), s(sHI)))
    a('s_bitcmp1_b32 %s, 31' % s(sT0))
    a('s_cselect_b32 %s, %s, %s' % (s(sT0), s(sT1), s(sT2)))
    sg = vXF+6
    a('v_mov_b32 %s, 0xbfb8aa3b' % v(vT+2))
    a('v_mul_f32 %s, %s, %s' % (v(sg), s(sT0), v(vT+2)))
    a('v_exp_f32 %s, %s' % (v(sg), v(sg)))
    a('v_add_f32 %s, 1.0, %s' % (v(sg), v(sg)))
    a('v_rcp_f32 %s, %s' % (v(sg), v(sg)))
    a('v_cvt_pk_bf16_f32 %s, %s, %s' % (v(sg), v(sg), v(sg)))
    a('v_and_b32 %s, %s, %s' % (v(sg), s(sHI), v(sg)))
    a('v_mov_b32 %s, 0' % v(F+20))
    a('v_mov_b32 %s, 0' % v(F+21))
    a('v_mov_b32 %s, %s' % (v(F+22), s(sTAG)))
    a('s_waitcnt lgkmcnt(0)')
    a('v_lshlrev_b32 %s, 16, %s' % (v(n0), v(n0)))
    a('v_lshlrev_b32 %s, 16, %s' % (v(n1), v(n1)))
    a('v_fma_f32 %s, %s, %s, %s' % (v(y0), v(n0), v(d0), v(y0)))
    a('v_fma_f32 %s, %s, %s, %s' % (v(y1), v(n1), v(d1), v(y1)))
    a('s_mov_b32 %s, %d' % (s(sCNT), o['spinmax']))
    a('L_ffnspin:')
    for i in range(5):
        a('global_load_dwordx4 %s, %s, %s offset:%d sc1' % (v(F+4*i,4), v(vFPA), s(sWS,2), i*1024 - 3072))
    a('s_mov_b64 exec, 0xffffff')
    a('global_load_dwordx4 %s, %s, %s offset:2048 sc1' % (v(F+20,4), v(vFPA), s(sWS,2)))
    a('s_mov_b64 exec, -1')
    a('s_waitcnt vmcnt(0)')
    for i in range(6): a('v_xor_b32 %s, %s, %s' % (v(vT+i), s(sTAG), v(F+4*i+2)))
    a('v_or3_b32 %s, %s, %s, %s' % (v(vT), v(vT), v(vT+1), v(vT+2)))
    a('v_or3_b32 %s, %s, %s, %s' % (v(vT+3), v(vT+3), v(vT+4), v(vT+5)))
    a('v_or_b32 %s, %s, %s' % (v(vT), v(vT), v(vT+3)))
    a('v_cmp_ne_u32 vcc, 0, %s' % v(vT))
    a('s_cbranch_vccz L_ffnok')
    a('s_sub_u32 %s, %s, 1' % (s(sCNT), s(sCNT)))
    a('s_cmp_lg_u32 %s, 0' % s(sCNT))
    a('s_cbranch_scc1 L_ffnspin')
    a('L_ffnok:')
    stamp(11)
    p0, p1 = F, F+1
    for e in range(2):
        a('v_add_f32 %s, %s, %s' % (v(F+e), v(F+e), v(F+4+e)))
        a('v_add_f32 %s, %s, %s' % (v(F+8+e), v(F+8+e), v(F+12+e)))
        a('v_add_f32 %s, %s, %s' % (v(F+16+e), v(F+16+e), v(F+20+e)))
    for e in range(2): a('v_add_f32 %s, %s, %s' % (v(F+e), v(F+e), v(F+8+e)))
    for e in range(2): a('v_add_f32 %s, %s, %s' % (v(F+e), v(F+e), v(F+16+e)))
    for m in (2,4,8):
        for e in range(2): a('v_add_f32_dpp %s, %s, %s row_ror:%d row_mask:0xf bank_mask:0xf' % (v(F+e), v(F+e), v(F+e), m))
    for pl in ('v_permlane16_swap_b32','v_permlane32_swap_b32'):
        for e in range(2): a('v_mov_b32 %s, %s' % (v(F+4+e), v(F+e)))
        for e in range(2): a('%s %s, %s' % (pl, v(F+e), v(F+4+e)))
        for e in range(2): a('v_add_f32 %s, %s, %s' % (v(F+e), v(F+e), v(F+4+e)))
    def rnd2(r0, r1, t):
        a('v_cvt_pk_bf16_f32 %s, %s, %s' % (v(t), v(r0), v(r1)))
        a('v_lshlrev_b32 %s, 16, %s' % (v(r0), v(t)))
        a('v_and_b32 %s, %s, %s' % (v(r1), s(sHI), v(t)))
    rnd2(p0, p1, vT)
    for e in range(2): a('v_mul_f32 %s, %s, %s' % (v(F+e), v(F+e), v(sg)))
    rnd2(p0, p1, vT)
    a('v_add_f32 %s, %s, %s' % (v(p0), v(p0), v(n0)))
    a('v_add_f32 %s, %s, %s' % (v(p1), v(p1), v(n1)))
    rnd2(p0, p1, vT)
    for e in range(2): a('v_mul_f32 %s, 0xbfb8aa3b, %s' % (v(F+4+e), v(F+e)))
    for e in range(2): a('v_exp_f32 %s, %s' % (v(F+4+e), v(F+4+e)))
    for e in range(2): a('v_add_f32 %s, 1.0, %s' % (v(F+4+e), v(F+4+e)))
    for e in range(2): a('v_rcp_f32 %s, %s' % (v(F+4+e), v(F+4+e)))
    a('v_lshlrev_b32 %s, 16, %s' % (v(vT+1), v(xv)))
    a('v_and_b32 %s, %s, %s' % (v(vT+2), s(sHI), v(xv)))
    for e in range(2): a('v_mul_f32 %s, %s, %s' % (v(F+e), v(F+e), v(F+4+e)))
    a('v_fma_f32 %s, %s, %s, %s' % (v(vT+1), v(y0), v(p0), v(vT+1)))
    a('v_fma_f32 %s, %s, %s, %s' % (v(vT+2), v(y1), v(p1), v(vT+2)))
    a('v_cvt_pk_bf16_f32 %s, %s, %s' % (v(vT), v(vT+1), v(vT+2)))
    a('s_mov_b64 exec, 3')
    a('global_store_dword %s, %s, %s' % (v(xo), v(vT), s(sOUT,2)))
    a('s_mov_b64 exec, -1')
    if o['stamp']:
        a('s_waitcnt vmcnt(0)')
        stamp(12)
        a('s_branch L_exit')
    else:
        a('s_endpgm')

    a('L_helper:')
    if o['nohelp']:
        a('s_barrier')
        a('s_branch L_exit')
    read_idx()
    XS = vP
    a('s_cmp_eq_u32 %s, 0' % s(sPROD))
    a('s_cbranch_scc1 L_h_pre')
    a('s_lshl_b32 %s, %s, 10' % (s(sT0), s(sIDX)))
    a('v_add_u32 %s, %s, %s' % (v(vT), s(sT0), v(vCA)))
    a('s_lshr_b32 %s, %s, 2' % (s(sT0), s(sIDX)))
    a('s_lshl_b32 %s, %s, 4' % (s(sT0), s(sT0)))
    a('s_bfe_u32 %s, %s, 0x10001' % (s(sT1), s(sIDX)))
    a('s_lshl_b32 %s, %s, 13' % (s(sT1), s(sT1)))
    a('s_add_u32 %s, %s, %s' % (s(sT0), s(sT0), s(sT1)))
    a('s_and_b32 %s, %s, 1' % (s(sT1), s(sIDX)))
    a('s_lshl_b32 %s, %s, 2' % (s(sT1), s(sT1)))
    a('s_add_u32 %s, %s, %s' % (s(sT0), s(sT0), s(sT1)))
    a('s_add_u32 %s, %s, %d' % (s(sT0), s(sT0), W_ST))
    a('v_mov_b32 %s, %s' % (v(vT+1), s(sT0)))
    a('global_load_dwordx2 %s, %s, %s' % (v(XS,2), v(vT), s(sX,2)))
    a('global_load_dwordx2 %s, %s, %s offset:32' % (v(XS+2,2), v(vT), s(sX,2)))
    a('global_load_dword %s, %s, %s sc1' % (v(XS+4), v(vT+1), s(sWS,2)))
    if o['wlate']: wloads()
    a('L_h_pre:')
    Dv = [vT+10+c for c in range(4)]
    a('s_lshl_b32 %s, %s, 16' % (s(sT0), s(sDS)))
    a('v_mov_b32 %s, %s' % (v(Dv[0]), s(sT0)))
    a('s_and_b32 %s, %s, %s' % (s(sT0), s(sDS), s(sHI)))
    a('v_mov_b32 %s, %s' % (v(Dv[1]), s(sT0)))
    a('s_lshl_b32 %s, %s, 16' % (s(sT0), s(sDS+1)))
    a('v_mov_b32 %s, %s' % (v(Dv[2]), s(sT0)))
    a('s_and_b32 %s, %s, %s' % (s(sT0), s(sDS+1), s(sHI)))
    a('v_mov_b32 %s, %s' % (v(Dv[3]), s(sT0)))
    for c in range(4):
        for r in range(4):
            src = XP + 2*c + (r >> 1)
            if r & 1: a('v_and_b32 %s, %s, %s' % (v(vXN+4*r+c), s(sHI), v(src)))
            else:     a('v_lshlrev_b32 %s, 16, %s' % (v(vXN+4*r+c), v(src)))
        for r in range(4): a('v_mul_f32 %s, 0xbfb8aa3b, %s' % (v(vT+r), v(vXN+4*r+c)))
        for r in range(4): a('v_exp_f32 %s, %s' % (v(vT+r), v(vT+r)))
        for r in range(4):
            a('v_mul_f32 %s, %s, %s' % (v(vE+4*r+c), v(vXN+4*r+c), v(Dv[c])))
            a('v_add_f32 %s, 1.0, %s' % (v(vT+r), v(vT+r)))
        for r in range(4): a('v_rcp_f32 %s, %s' % (v(vT+r), v(vT+r)))
        for r in range(4): a('v_mul_f32 %s, %s, %s' % (v(vXN+4*r+c), v(vXN+4*r+c), v(vT+r)))
        for r in range(4): a('v_fma_f32 %s, %s, %s, %s' % (v(vE+4*r+c), v(vE+4*r+c), v(vXN+4*r+c), v(vXF+4*r+c)))
    for r in range(4):
        a('v_add_u32 %s, %d, %s' % (v(vT), r, v(vROW)))
        a('v_cmp_ne_u32 %s, %s, %s' % (s(sM+2*r,2), s(sIDX), v(vT)))
    stamp(9)
    a('s_cmp_eq_u32 %s, 0' % s(sPROD))
    a('s_cbranch_scc1 L_h_b5')
    WF = vP + 8; DD = vP + 24; XA = vP + 40; WDF = vP + 48
    a('s_waitcnt vmcnt(0)')
    for sp in range(4):
        a('ds_read_b64_tr_b16 %s, %s offset:%d' % (v(WF+4*sp,2), v(vWT), 512*sp))
        a('ds_read_b64_tr_b16 %s, %s offset:%d' % (v(WF+4*sp+2,2), v(vWT), 512*sp + 256))
    a('v_and_b32 %s, %s, %s' % (v(vT), s(sHI), v(XS+4)))
    a('v_lshlrev_b32 %s, 16, %s' % (v(vT+1), v(XS+4)))
    a('v_rcp_f32 %s, %s' % (v(vT), v(vT)))
    for i in range(4):
        a('v_lshlrev_b32 %s, 16, %s' % (v(vT+2+2*i), v(XS+i)))
        a('v_and_b32 %s, %s, %s' % (v(vT+3+2*i), s(sHI), v(XS+i)))
    a('v_mul_f32_e64 %s, -%s, %s' % (v(vT+1), v(vT+1), v(vT)))
    for i in range(8): a('v_fma_f32 %s, %s, %s, %s' % (v(vT+2+i), v(vT+2+i), v(vT), v(vT+1)))
    for i in range(4): a('v_cvt_pk_bf16_f32 %s, %s, %s' % (v(XA+i), v(vT+2+2*i), v(vT+3+2*i)))
    a('s_waitcnt lgkmcnt(0)')
    for sp in range(4):
        a('v_mfma_f32_16x16x32_bf16 %s, %s, %s, 0' % (v(DD+4*sp,4), v(XA,4), v(WF+4*sp,4)))
    for i in range(8):
        a('v_lshlrev_b32 %s, 16, %s' % (v(WDF+2*i), v(vWD+i)))
        a('v_and_b32 %s, %s, %s' % (v(WDF+2*i+1), s(sHI), v(vWD+i)))
    a('v_add_f32 %s, %s, %s' % (v(vT), v(DD), v(DD+5)))
    a('v_add_f32 %s, %s, %s' % (v(vT+1), v(DD+10), v(DD+15)))
    a('v_mov_b32 %s, 1' % v(vT+2))
    a('v_add_f32 %s, %s, %s' % (v(vT), v(vT), v(vT+1)))
    a('ds_write_b32 %s, %s' % (v(vCB), v(vT)))
    a('s_mov_b64 exec, 1')
    a('ds_write_b32 %s, %s' % (v(vTW2), v(vT+2)))
    a('s_mov_b64 exec, -1')
    a('s_mov_b32 %s, %d' % (s(sCNT), o['spinmax']))
    a('L_hspin:')
    a('ds_read_b128 %s, %s' % (v(vT+4,4), v(vTW3)))
    for i in range(4): a('ds_read_b32 %s, %s offset:%d' % (v(vT+i), v(vTW1), i*320))
    a('s_waitcnt lgkmcnt(0)')
    a('v_and_b32 %s, %s, %s' % (v(vT+4), v(vT+4), v(vT+5)))
    a('v_and_b32 %s, %s, %s' % (v(vT+6), v(vT+6), v(vT+7)))
    a('v_and_b32 %s, %s, %s' % (v(vT+4), v(vT+4), v(vT+6)))
    a('v_cmp_eq_u32 vcc, 0, %s' % v(vT+4))
    a('s_cbranch_vccz L_hok')
    a('s_sub_u32 %s, %s, 1' % (s(sCNT), s(sCNT)))
    a('s_cmp_lg_u32 %s, 0' % s(sCNT))
    a('s_cbranch_scc1 L_hspin')
    a('L_hok:')
    a('v_add_f32 %s, %s, %s' % (v(vT), v(vT), v(vT+1)))
    a('v_add_f32 %s, %s, %s' % (v(vT+2), v(vT+2), v(vT+3)))
    a('v_add_f32 %s, %s, %s' % (v(vT), v(vT), v(vT+2)))
    a('v_cvt_pk_bf16_f32 %s, %s, %s' % (v(vT), v(vT), v(vT)))
    a('v_and_b32 %s, %s, %s' % (v(vT), s(sHI), v(vT)))
    a('v_mul_f32 %s, 0xbfb8aa3b, %s' % (v(vT+1), v(vT)))
    a('v_exp_f32 %s, %s' % (v(vT+1), v(vT+1)))
    a('v_mov_b32_dpp %s, %s row_ror:8 row_mask:0xf bank_mask:0xf' % (v(vT+2), v(vT)))
    a('v_add_f32 %s, 1.0, %s' % (v(vT+1), v(vT+1)))
    a('v_rcp_f32 %s, %s' % (v(vT+1), v(vT+1)))
    a('v_mul_f32 %s, %s, %s' % (v(vT+1), v(vT), v(vT+1)))
    a('v_cvt_pk_bf16_f32 %s, %s, %s' % (v(vT+1), v(vT+1), v(vT+1)))
    a('v_and_b32 %s, %s, %s' % (v(vT+1), s(sHI), v(vT+1)))
    a('v_mul_f32 %s, %s, %s' % (v(vT+1), v(vT+1), v(vT+2)))
    a('v_cvt_pk_bf16_f32 %s, %s, %s' % (v(vT+1), v(vT+1), v(vT+1)))
    a('v_and_b32 %s, %s, %s' % (v(vT+1), s(sHI), v(vT+1)))
    for i in range(8): a('v_readlane_b32 %s, %s, %d' % (s(sH8+i), v(vT+1), i))
    gq = vT+4
    a('v_mov_b32 %s, %s' % (v(gq+2), s(sTAG)))
    a('v_mov_b32 %s, 0' % v(gq+3))
    for i in range(8):
        for e in range(2):
            if i == 0: a('v_mul_f32 %s, %s, %s' % (v(gq+e), s(sH8), v(WDF+e)))
            else: a('v_fmac_f32 %s, %s, %s' % (v(gq+e), s(sH8+i), v(WDF+2*i+e)))
    a('global_store_dwordx4 %s, %s, %s sc1' % (v(vFPA), v(gq,4), s(sWS,2)))
    stamp(10)
    a('L_h_b5:')
    a('s_barrier')
    YR = vP
    for c in range(4): a('ds_read_b128 %s, %s offset:%d' % (v(YR+4*c,4), v(vY), c*YCS))
    a('s_waitcnt lgkmcnt(0)')
    for r in range(4):
        for c in range(4):
            a('v_fma_f32 %s, %s, %s, %s' % (v(vE+4*r+c), v(YR+4*c+r), v(vXN+4*r+c), v(vE+4*r+c)))
        a('v_cvt_pk_bf16_f32 %s, %s, %s' % (v(vD+2*r), v(vE+4*r), v(vE+4*r+1)))
        a('v_cvt_pk_bf16_f32 %s, %s, %s' % (v(vD+2*r+1), v(vE+4*r+2), v(vE+4*r+3)))
        a('s_mov_b64 exec, %s' % s(sM+2*r,2))
        a('global_store_dwordx2 %s, %s, %s offset:%d' % (v(vXG), v(vD+2*r,2), s(sOUT,2), r*1024))
        a('s_mov_b64 exec, -1')
    if o['stamp'] or o['diag'] >= 0 or o['diagclk']:
        stamp(11)
        a('s_waitcnt vmcnt(0)')
        stamp(12)
    if o['diag'] >= 0:
        if o['diagk'] >= 0:
            a('s_cmp_lg_u32 %s, %d' % (s(sK), o['diagk']))
            a('s_cbranch_scc1 L_end')
        a('s_memrealtime s[90:91]')
        a('s_sub_u32 s88, s88, s86')
        a('s_lshl_b32 s88, s88, 2')
        a('s_waitcnt lgkmcnt(0)')
        a('s_add_u32 s88, s88, s90')
        a('L_diag:')
        a('s_memrealtime s[90:91]')
        a('s_waitcnt lgkmcnt(0)')
        a('s_sub_u32 s90, s90, s88')
        a('s_cmp_lt_i32 s90, 0')
        a('s_cbranch_scc1 L_diag')
    if o['diagx'] >= 0:
        a('s_cmp_lg_u32 %s, %d' % (s(sXCC if o['diagx'] < 8 else sK), o['diagx'] % 8))
        a('s_cbranch_scc1 L_end')
        a('v_lshlrev_b32 %s, 4, %s' % (v(vT), v(vL)))
        a('v_add_u32 %s, %d, %s' % (v(vT), W_STAMP, v(vT)))
        a('global_load_dwordx4 %s, %s, %s sc1' % (v(vT+4,4), v(vT), s(sWS,2)))
        a('s_waitcnt vmcnt(0)')
        for i in range(4): a('v_sub_u32 %s, s86, %s' % (v(vT+4+i), v(vT+4+i)))
        a('v_max3_i32 %s, %s, %s, %s' % (v(vT+4), v(vT+4), v(vT+5), v(vT+6)))
        a('v_max_i32 %s, %s, %s' % (v(vT+4), v(vT+4), v(vT+7)))
        for mm in ['row_shr:1 row_mask:0xf','row_shr:2 row_mask:0xf','row_shr:4 row_mask:0xf','row_shr:8 row_mask:0xf','row_bcast:15 row_mask:0xa','row_bcast:31 row_mask:0xc']:
            a('v_max_i32_dpp %s, %s, %s %s bank_mask:0xf' % (v(vT+4), v(vT+4), v(vT+4), mm))
        a('v_readlane_b32 s88, %s, 63' % v(vT+4))
        a('s_memrealtime s[90:91]')
        a('s_min_u32 s88, s88, 1000')
        a('s_lshl_b32 s88, s88, 3')
        a('s_waitcnt lgkmcnt(0)')
        a('s_add_u32 s88, s88, s90')
        a('L_diag:')
        a('s_memrealtime s[90:91]')
        a('s_waitcnt lgkmcnt(0)')
        a('s_sub_u32 s90, s90, s88')
        a('s_cmp_lt_i32 s90, 0')
        a('s_cbranch_scc1 L_diag')
    if o['diagclk']:
        a('s_memtime s[88:89]')
        a('s_waitcnt lgkmcnt(0)')
        a('s_add_u32 s88, s88, %d' % o['diagclk'])
        a('L_diag:')
        a('s_memtime s[90:91]')
        a('s_waitcnt lgkmcnt(0)')
        a('s_sub_u32 s90, s90, s88')
        a('s_cmp_lt_i32 s90, 0')
        a('s_cbranch_scc1 L_diag')
    a('L_exit:')
    if o['stamp']:
        a('v_mov_b32 v254, 0')
        for i in range(14): a('v_writelane_b32 v254, s%d, %d' % (86+i, i))
        a('global_store_dword %s, v254, %s' % (v(vSTA), s(sWS,2)))
    a('L_end:')
    a('s_endpgm')
    a.raw('''.section .rodata,"a"
.p2align 6
.amdhsa_kernel %s_kernel
  .amdhsa_next_free_vgpr 256
  .amdhsa_next_free_sgpr 102
  .amdhsa_accum_offset 256
  .amdhsa_group_segment_fixed_size 0
  .amdhsa_kernarg_size 136
  .amdhsa_user_sgpr_count 2
  .amdhsa_user_sgpr_kernarg_segment_ptr 1
  .amdhsa_system_sgpr_workgroup_id_x 1
.end_amdhsa_kernel''' % KN)
    return a.text()

if __name__ == '__main__':
    out = sys.argv[1]
    opt = {}
    for kv in sys.argv[2:]:
        k, val = kv.split('='); opt[k] = int(val, 0)
    open(out, 'w').write(generate(**opt))
```

```python
import sys
from asmlib import *

KN = 'recurrent_scan__ssm_conv_s4__moe_arch_mod__prompt'

DEFAULTS = dict(stamp=0, cyc=0, force_slow=0, prefetch=1, wpf=1, spinmax=1 << 16, diag=-1,
                maxout=15, group=3, minfly=6, b6=1, b6cnt=1, nb=6, wdearly=0, wpfb3=1, hnormfirst=1, ffnprio=2)

RS = 2064
STAGE = 0
R4 = 0; R4S = 18560; CAS = 288
YX = 74240; YCS = 5120; YTS = 1280; YGS = 320
U = 109440; US = 4576
TAB = 127744; TS = 1552
WL = 133952; WL1 = 8320
SL = 150528
AM = 158720
FF = 158752
TG = 158768
PF = 158784
FP = 158848
LDS_BYTES = 159872
W_ST = 0x1000; W_FL = 0x6000; W_FP = 0x10000; W_IN = 0x100000; W_STAMP = 0x800000

sX, sARE, sAIM, sBRE, sBIM, sCRE, sCIM, sLDT = 4, 6, 8, 10, 12, 14, 16, 18
sDSK, sWR, sWG, sWU, sWD, sOUT, sDBG, sWS = 20, 24, 26, 28, 30, 32, 34, 36
sW, sK, sJ, sCGL, sH, sCH0, sT, sXCC, sTAG, sTAGX = 38, 39, 40, 41, 42, 43, 44, 45, 46, 47
sPB, sDS = 48, 50
sONES, sF8, sPROD, sIDX, sKEY, sCNT = 52, 53, 54, 55, 56, 57
sT0, sT1, sT2, sT3 = 58, 59, 60, 61
sOWN, sINB = 62, 63
sM = 64
sH8 = 72
sHI = 80
sSTP = 82
sWI = 84

vL = 1
vGA = 2
vSEL = 10
vR4W, vUW, vST0, vST1, vFL, vIN, vXG, vXC = 16, 17, 18, 19, 20, 21, 22, 23
vKA, vKB, vPD, vY = 24, 25, 26, 27
vA0, vA1, vA2, vA3, vA4, vA5, vA6, vA7 = 28, 29, 30, 31, 32, 33, 34, 35
vEP, vPFD, vROW, vSTA = 36, 37, 38, 39
vD = 40
vG = 48
vXF = 56
vXN = 72
vE = 88
vP = 104
vB0, vB1, vB2, vB3, vB4, vB5 = 224, 225, 226, 227, 228, 229
vWD = 232
vT = 240
vCA, vCA2, vCB, vFLO = vA0, vA1, vA2, vA3
vTW1, vTW2, vTW3, vTW4, vWT, vWDA, vFPA, vXS = vA0, vA1, vA2, vA3, vA4, vA5, vA6, vA7
vWS0, vWS1, vFPW, vFPR, vFFW, vSTP = vB0, vB1, vB2, vB3, vB4, vB5
vPFA, vPFW = 230, 231


def tiles(h): return [2 * i + ((i ^ h) & 1) for i in range(4)]


def generate(**opt):
    o = dict(DEFAULTS); o.update(opt)
    a = Asm()
    V = v; S = s

    def stamp(i):
        if o['diag'] == i:
            a('s_memrealtime s[88:89]\ns_waitcnt lgkmcnt(0)')
        if not o['stamp']: return
        a(f"{'s_memtime' if o['cyc'] else 's_memrealtime'} {S(sSTP,2)}\ns_waitcnt lgkmcnt(0)\ns_mov_b32 s{86+i}, {S(sSTP)}")

    def cmul(d, x, y):
        a(f'v_pk_mul_f32 {V(d,2)}, {V(x,2)}, {V(y,2)} op_sel:[1,1] op_sel_hi:[1,0]')
        a(f'v_pk_fma_f32 {V(d,2)}, {V(x,2)}, {V(y,2)}, {V(d,2)} op_sel:[0,0,0] op_sel_hi:[0,1,1] neg_lo:[0,0,1]')

    def lane63(): a('s_mov_b32 exec_lo, 0\ns_mov_b32 exec_hi, 0x80000000')
    def alllanes(): a('s_mov_b64 exec, -1')
    def spin_init(): a(f"s_mov_b32 {S(sCNT)}, {o['spinmax']}")
    def spin_next(lbl): a(f's_sub_u32 {S(sCNT)}, {S(sCNT)}, 1\ns_cmp_lg_u32 {S(sCNT)}, 0\ns_cbranch_scc1 {lbl}')

    def ssum(dst, *terms):
        first = True; const = 0
        for t in terms:
            if isinstance(t, int): const += t; continue
            r, sh = t
            if first:
                a(f's_lshl_b32 {S(dst)}, {S(r)}, {sh}' if sh else f's_mov_b32 {S(dst)}, {S(r)}'); first = False
            elif sh:
                a(f's_lshl_b32 {S(sT3)}, {S(r)}, {sh}\ns_add_u32 {S(dst)}, {S(dst)}, {S(sT3)}')
            else:
                a(f's_add_u32 {S(dst)}, {S(dst)}, {S(r)}')
        if const: a(f's_add_u32 {S(dst)}, {S(dst)}, {const}')

    def smul(dst, r, k, const=0):
        a(f's_mul_i32 {S(dst)}, {S(r)}, {k}')
        if const: a(f's_add_u32 {S(dst)}, {S(dst)}, {const}')

    T = [vT + i for i in range(16)]

    a.raw('; @launch grid=(256,1,1) block=(512,1,1) lds=%d' % LDS_BYTES)
    a.raw('.amdgcn_target "amdgcn-amd-amdhsa--gfx950"\n.text\n.globl %s_kernel\n.p2align 8\n.type %s_kernel,@function\n%s_kernel:' % (KN, KN, KN))
    a('''
    s_cmp_ge_u32 s2, 256
    s_cbranch_scc1 L_end
    s_load_dwordx16 s[4:19], s[0:1], 0
    s_load_dwordx16 s[20:35], s[0:1], 64
    s_load_dwordx2 s[36:37], s[0:1], 128
    ''')
    if o['diag'] >= 0: a('s_memrealtime s[86:87]')
    if o['stamp']: a(f"{'s_memtime' if o['cyc'] else 's_memrealtime'} s[100:101]")
    a(f'''
    v_lshrrev_b32 {V(T[0])}, 6, v0
    v_and_b32 {V(vL)}, 63, v0
    v_readfirstlane_b32 {S(sW)}, {V(T[0])}
    s_and_b32 {S(sK)}, s2, 7
    s_lshr_b32 {S(sJ)}, s2, 3
    s_and_b32 {S(sCGL)}, {S(sJ)}, 15
    s_lshr_b32 {S(sH)}, {S(sJ)}, 4
    s_and_b32 {S(sWI)}, {S(sW)}, 3
    ''')
    ssum(sCH0, (sK, 6), (sCGL, 2))
    for i in range(7): a(f'v_mov_b32 {V(vP+i)}, 0')
    a(f's_add_u32 {S(sT1)}, {S(sCH0)}, {S(sWI)}')
    a(f's_lshr_b32 {S(sT2)}, {S(sW)}, 2')
    ssum(sT0, (sT1, 8), (sT2, 7))
    a(f'v_lshl_add_u32 {V(T[1])}, {V(vL)}, 1, {S(sT0)}')
    a(f's_lshl_b32 {S(sT1)}, {S(sT1)}, 1')
    a(f'v_mov_b32 {V(T[2])}, {S(sT1)}')
    if o['stamp']:
        ssum(sT1, (2, 11), (sW, 8), W_STAMP)
        a(f'v_lshl_add_u32 {V(vSTA)}, {V(vL)}, 2, {S(sT1)}')
        for i in range(14): a(f's_mov_b32 s{86+i}, 0')

    def param_loads():
        for i, p in enumerate((sARE, sAIM, sBRE, sBIM, sCRE, sCIM)):
            a(f'global_load_short_d16_hi {V(vP+i)}, {V(T[1])}, {S(p,2)}')
        a(f'global_load_short_d16_hi {V(vP+6)}, {V(T[2])}, {S(sLDT,2)}')

    a(f's_cmp_ge_u32 {S(sW)}, 4\ns_cbranch_scc1 L_h_load')
    ssum(sT0, (sJ, 16), (sW, 14), (sK, 7))
    a(f'''
    v_lshrrev_b32 {V(T[3])}, 3, {V(vL)}
    v_and_b32 {V(T[4])}, 7, {V(vL)}
    v_lshlrev_b32 {V(T[3])}, 10, {V(T[3])}
    v_lshl_add_u32 {V(T[3])}, {V(T[4])}, 4, {V(T[3])}
    v_add_u32 {V(T[3])}, {S(sT0)}, {V(T[3])}
    v_add_u32 {V(T[4])}, 8192, {V(T[3])}
    s_waitcnt lgkmcnt(0)
    ''')
    if o['stamp']: a('s_mov_b32 s99, s100')
    if o['diag'] >= 0: a('s_mov_b32 s88, s86')
    stamp(0)
    a(f'global_load_dwordx4 {V(vD,4)}, {V(T[3])}, {S(sX,2)}')
    a(f'global_load_dwordx4 {V(vD+4,4)}, {V(T[4])}, {S(sX,2)}')
    param_loads()
    a('s_branch L_init')
    a('L_h_load:')
    ssum(sT0, (2, 13), (sWI, 11))
    a(f'''
    v_and_b32 {V(T[3])}, 31, {V(vL)}
    v_lshlrev_b32 {V(T[3])}, 4, {V(T[3])}
    v_lshrrev_b32 {V(T[4])}, 5, {V(vL)}
    v_lshl_add_u32 {V(T[4])}, {V(T[4])}, 10, {V(T[3])}
    v_add_u32 {V(T[4])}, {S(sT0)}, {V(T[4])}
    v_mov_b32 {V(T[5])}, 0
    s_setprio 2
    s_waitcnt lgkmcnt(0)
    ''')
    if o['stamp']: a('s_mov_b32 s99, s100')
    if o['diag'] >= 0: a('s_mov_b32 s88, s86')
    stamp(0)
    a(f'''
    global_load_dwordx4 {V(vG,4)}, {V(T[3])}, {S(sWR,2)}
    global_load_dwordx4 {V(vG+4,4)}, {V(T[3])}, {S(sWR,2)} offset:512
    global_load_dwordx4 {V(vD,4)}, {V(T[4])}, {S(sX,2)}
    global_load_dwordx4 {V(vD+4,4)}, {V(T[4])}, {S(sX,2)} offset:512
    global_load_dword {V(vEP)}, {V(T[5])}, {S(sWS,2)} sc1
    ''')
    param_loads()

    a('L_init:')
    a(f'''
    v_mov_b32 {V(T[6])}, 0
    v_mov_b32 {V(T[7])}, 0x3f80
    s_lshl_b32 {S(sT0)}, {S(sW)}, 8
    s_mov_b32 m0, {S(sT0)}
    v_and_b32 {V(T[8])}, 127, v0
    ds_write_addtid_b32 {V(T[7])} offset:{STAGE}
    v_min_u32 {V(T[8])}, 119, {V(T[8])}
    v_lshrrev_b32 {V(T[9])}, 7, v0
    v_mul_u32_u24 {V(T[10])}, {US}, {V(T[9])}
    v_lshl_add_u32 {V(T[10])}, {V(T[8])}, 2, {V(T[10])}
    v_add_u32 {V(T[10])}, {U}, {V(T[10])}
    ds_write_b32 {V(T[10])}, {V(T[6])}
    s_cmp_lg_u32 {S(sW)}, 0
    s_cbranch_scc1 L_init2
    v_bfe_u32 {V(T[9])}, {V(vL)}, 1, 2
    v_mul_u32_u24 {V(T[9])}, {TS}, {V(T[9])}
    v_and_b32 {V(T[8])}, 1, {V(vL)}
    v_lshl_add_u32 {V(T[9])}, {V(T[8])}, 2, {V(T[9])}
    v_add_u32 {V(T[9])}, {TAB}, {V(T[9])}
    v_and_b32 {V(T[8])}, 15, {V(vL)}
    v_lshlrev_b32 {V(T[8])}, 2, {V(T[8])}
    v_add_u32 {V(T[8])}, {FF}, {V(T[8])}
    s_mov_b64 exec, 0xffff
    ds_write_b32 {V(T[9])}, {V(T[6])}
    ds_write_b32 {V(T[8])}, {V(T[6])}
    s_mov_b64 exec, -1
    L_init2:
    s_waitcnt lgkmcnt(0)
    s_barrier
    s_lshl_b32 {S(sT0)}, {S(sCH0)}, 1
    s_load_dwordx2 {S(sDS,2)}, {S(sDSK,2)}, {S(sT0)}
    s_getreg_b32 {S(sXCC)}, hwreg(HW_REG_XCC_ID, 0, 4)
    s_mov_b32 {S(sONES)}, 0x3f803f80
    s_mov_b32 {S(sHI)}, 0xffff0000
    s_lshr_b32 {S(sT0)}, {S(sW)}, 2
    s_xor_b32 {S(sT0)}, {S(sT0)}, {S(sWI)}
    s_xor_b32 {S(sT0)}, {S(sT0)}, {S(sH)}
    s_xor_b32 {S(sT0)}, {S(sT0)}, 1
    s_and_b32 {S(sT0)}, {S(sT0)}, 1
    s_lshl_b32 {S(sT)}, {S(sWI)}, 1
    s_add_u32 {S(sT)}, {S(sT)}, {S(sT0)}
    s_lshr_b32 {S(sT0)}, {S(sJ)}, 3
    s_and_b32 {S(sT1)}, {S(sJ)}, 7
    ''')
    ssum(sF8, (sT0, 6), (sK, 3), (sT1, 0))
    a(f'''
    s_cmp_lt_u32 {S(sF8)}, 172
    s_cselect_b32 {S(sPROD)}, 1, 0
    s_cselect_b32 {S(sF8)}, {S(sF8)}, {S(sJ)}
    ''')

    pos = [vXF + i for i in range(7)]
    a(f'v_lshlrev_b32 {V(T[0])}, 2, v0')
    a(f's_cmp_eq_u32 {S(sW)}, 0\ns_cbranch_scc1 L_pos0')
    for i in range(7): a(f'v_add_u32 {V(pos[i])}, {i-3}, {V(T[0])}')
    for i in range(7): a(f'v_cvt_f32_u32 {V(pos[i])}, {V(pos[i])}')
    for i in range(0, 7, 2):
        j = min(i + 1, 6)
        a(f'v_cvt_pk_bf16_f32 {V(T[8+i//2])}, {V(pos[i])}, {V(pos[j])}')
    a(f'v_mov_b32 {V(T[1])}, {4 - 0x4280}')
    for i in range(7):
        a(f'v_bfe_u32 {V(pos[i])}, {V(T[8+i//2])}, {16*(i&1)}, 16')
        a(f'v_add_u32 {V(pos[i])}, {V(T[1])}, {V(pos[i])}')
    a('s_branch L_pos_done')
    a('L_pos0:')
    for i in range(7): a(f'v_add_u32 {V(pos[i])}, {i+1}, {V(T[0])}')
    a('L_pos_done:')
    b1, b2 = T[1], T[2]
    a(f'''
    v_and_b32 {V(b1)}, -2, {V(pos[2])}
    v_add_u32 {V(b1)}, -2, {V(b1)}
    v_and_b32 {V(b2)}, -2, {V(pos[3])}
    v_add_u32 {V(T[3])}, {V(b1)}, {V(b1)}
    v_add_u32 {V(T[4])}, {V(b2)}, {V(b2)}
    ''')
    for c in range(4):
        a(f'v_add_u32 {V(vGA+2*c)}, {TAB + c*TS}, {V(T[3])}')
        a(f'v_add_u32 {V(vGA+2*c+1)}, {TAB + c*TS}, {V(T[4])}')
    for i in range(3): a(f'v_sub_u32 {V(pos[i])}, {V(pos[i])}, {V(b1)}')
    for i in range(3, 7): a(f'v_sub_u32 {V(pos[i])}, {V(pos[i])}, {V(b2)}')
    a(f's_movk_i32 {S(sT0)}, 0x0202\nv_mov_b32 {V(T[3])}, 0x0100')
    for i in range(7): a(f'v_mad_u32_u24 {V(pos[i])}, {V(pos[i])}, {S(sT0)}, {V(T[3])}')
    for dst, lo, hi in ((0, 1, 0), (1, 2, 1), (2, 3, 2), (3, 4, 3), (4, 5, 4), (5, 6, 5)):
        a(f'v_lshl_or_b32 {V(vSEL+dst)}, {V(pos[hi])}, 16, {V(pos[lo])}')
    a(f'v_add_u32 {V(vSEL+2)}, 0x{(2*0x0202 - 2*0x02020000) & 0xffffffff:x}, {V(vSEL+2)}')
    a(f'''
    v_and_b32 {V(T[0])}, -4, v0
    v_lshlrev_b32 {V(T[0])}, 2, {V(T[0])}
    v_lshl_add_u32 {V(vR4W)}, v0, 5, {V(T[0])}
    v_add_u32 {V(vR4W)}, {R4 + 144}, {V(vR4W)}
    ''')
    a(f's_lshl_b32 {S(sT0)}, {S(sT)}, 6')
    a(f'v_add_u32 {V(T[0])}, {S(sT0)}, {V(vL)}')
    ssum(sINB, (sK, 18), (sCGL, 14), W_IN)
    ssum(sT1, (sK, 9), W_FL)
    ssum(sT2, (sK, 5), W_ST + 12)
    a(f'''
    v_lshlrev_b32 {V(vROW)}, 2, {V(T[0])}
    v_lshlrev_b32 {V(vUW)}, 3, {V(T[0])}
    v_add_u32 {V(vUW)}, {U + 480}, {V(vUW)}
    v_lshlrev_b32 {V(vST0)}, 4, {V(T[0])}
    v_add_u32 {V(vST1)}, {W_ST + 8192}, {V(vST0)}
    v_add_u32 {V(vST0)}, {W_ST}, {V(vST0)}
    s_lshl_b32 {S(sT0)}, {S(sCH0)}, 1
    v_lshl_add_u32 {V(vXG)}, {V(T[0])}, 12, {S(sT0)}
    v_lshrrev_b32 {V(T[1])}, 2, {V(T[0])}
    v_lshl_add_u32 {V(vFL)}, {V(T[1])}, 2, {S(sT1)}
    v_and_b32 {V(T[2])}, 3, {V(vL)}
    v_lshl_add_u32 {V(T[2])}, {V(T[2])}, 4, {S(sINB)}
    v_lshl_add_u32 {V(vIN)}, {V(T[1])}, 7, {V(T[2])}
    v_lshrrev_b32 {V(T[1])}, 4, {V(T[0])}
    v_lshl_add_u32 {V(vXC)}, {V(T[1])}, 8, {S(sT2)}
    ''')
    smul(sT1, sWI, US, U + 480)
    a(f'''
    v_and_b32 {V(T[0])}, 31, {V(vL)}
    v_lshrrev_b32 {V(T[1])}, 5, {V(vL)}
    s_lshl_b32 {S(sT0)}, {S(sW)}, 8
    v_lshl_add_u32 {V(T[2])}, {V(T[1])}, 4, {S(sT0)}
    s_movk_i32 {S(sT0)}, {RS}
    v_mad_u32_u24 {V(vKB)}, {V(T[0])}, {S(sT0)}, {V(T[2])}
    v_add_u32 {V(T[3])}, -16, {V(T[0])}
    v_cmp_lt_u32 vcc, 20, {V(T[0])}
    v_lshl_add_u32 {V(vPD)}, {V(vL)}, 4, {S(sT1)}
    v_cndmask_b32 {V(T[3])}, {V(T[0])}, {V(T[3])}, vcc
    v_mad_u32_u24 {V(vKA)}, {V(T[3])}, {S(sT0)}, {V(T[2])}
    v_add_u32 {V(vKA)}, {STAGE + 32*RS}, {V(vKA)}
    v_and_b32 {V(T[5])}, 15, {V(vL)}
    v_lshrrev_b32 {V(T[6])}, 4, {V(vL)}
    s_cmp_ge_u32 {S(sW)}, 4
    s_cbranch_scc1 L_h_setup
    ''')

    smul(sT0, sW, R4S, R4)
    a(f'v_lshlrev_b32 {V(T[3])}, 3, {V(T[6])}\nv_sub_u32 {V(T[3])}, {V(T[5])}, {V(T[3])}')
    for reg, k in ((vCA, 32), (vCA2, 28)):
        a(f'''
        v_add_u32 {V(T[4])}, {k}, {V(T[3])}
        v_lshrrev_b32 {V(T[7])}, 4, {V(T[4])}
        v_lshl_add_u32 {V(reg)}, {V(T[4])}, 3, {S(sT0)}
        v_lshl_add_u32 {V(reg)}, {V(T[7])}, 4, {V(reg)}
        ''')
    smul(sT0, sW, US, U)
    a(f'''
    v_lshl_add_u32 {V(T[3])}, {V(T[6])}, 4, {S(sT0)}
    v_lshl_add_u32 {V(vCB)}, {V(T[5])}, 5, {V(T[3])}
    ''')
    smul(sT0, sW, YCS, YX)
    a(f'''
    v_mul_u32_u24 {V(T[3])}, {YGS}, {V(T[6])}
    v_lshl_add_u32 {V(T[3])}, {V(T[5])}, 4, {V(T[3])}
    v_add_u32 {V(vY)}, {S(sT0)}, {V(T[3])}
    ''')
    slw, slw1, slr, slr1, ina, ina1, tga, pfa_c = [vXN + i for i in range(8)]
    ssum(sT0, (sW, 11), SL)
    a(f'''
    v_lshrrev_b32 {V(T[0])}, 3, {V(vL)}
    v_and_b32 {V(T[1])}, 7, {V(vL)}
    v_xor_b32 {V(T[2])}, {V(T[6])}, {V(T[1])}
    v_lshl_add_u32 {V(T[2])}, {V(T[2])}, 4, {S(sT0)}
    v_lshl_add_u32 {V(slw)}, {V(T[0])}, 7, {V(T[2])}
    v_xor_b32 {V(slw1)}, 64, {V(slw)}
    v_and_b32 {V(T[2])}, 3, {V(vL)}
    v_bfe_u32 {V(T[3])}, {V(vL)}, 2, 1
    v_lshl_add_u32 {V(T[2])}, {V(T[2])}, 1, {V(T[3])}
    v_xor_b32 {V(T[3])}, {V(T[6])}, {V(T[2])}
    v_lshl_add_u32 {V(T[3])}, {V(T[3])}, 4, {S(sT0)}
    v_lshl_add_u32 {V(T[3])}, {V(T[2])}, 8, {V(T[3])}
    v_and_b32 {V(T[4])}, 1, {V(T[0])}
    v_lshl_add_u32 {V(slr)}, {V(T[4])}, 3, {V(T[3])}
    v_xor_b32 {V(slr1)}, 64, {V(slr)}
    ''')
    ssum(sT0, (sK, 18), (sJ, 9), (sW, 7), W_IN)
    a(f'''
    v_lshl_add_u32 {V(T[1])}, {V(T[1])}, 4, {S(sT0)}
    v_lshl_add_u32 {V(ina)}, {V(T[0])}, 14, {V(T[1])}
    v_add_u32 {V(ina1)}, 0x20000, {V(ina)}
    ''')
    ssum(sT0, (sK, 9), (sJ, 4), (sW, 2), W_FL)
    a(f'v_mov_b32 {V(vFLO)}, {S(sT0)}')
    ssum(sT0, (sW, 2), TG)
    a(f'v_mov_b32 {V(tga)}, {S(sT0)}')
    for r in (vA4, vA5, vA6, vA7, vB0, vB1, vB5, vPFA): a(f'v_mov_b32 {V(r)}, 4096')
    a(f's_mov_b64 {S(sPB,2)}, {S(sWD,2)}')
    a('s_waitcnt vmcnt(7)')
    stamp(1)
    a(f'''
    ds_write_b128 {V(slw)}, {V(vD,4)}
    ds_write_b128 {V(slw1)}, {V(vD+4,4)} offset:1024
    ds_read_b64 {V(vG,2)}, {V(slr)}
    ds_read_b64 {V(vG+2,2)}, {V(slr)} offset:128
    ds_read_b64 {V(vG+4,2)}, {V(slr1)}
    ds_read_b64 {V(vG+6,2)}, {V(slr1)} offset:128
    s_waitcnt lgkmcnt(0)
    global_store_dwordx4 {V(ina)}, {V(vG,4)}, {S(sWS,2)}
    global_store_dwordx4 {V(ina1)}, {V(vG+4,4)}, {S(sWS,2)}
    s_waitcnt vmcnt(2)
    s_branch L_kgen
    ''')

    a('L_h_setup:')
    smul(sT0, sWI, YTS, YX)
    a(f'''
    v_and_b32 {V(T[2])}, 3, {V(vL)}
    v_lshrrev_b32 {V(T[3])}, 2, {V(vL)}
    v_mul_u32_u24 {V(T[2])}, {YGS}, {V(T[2])}
    v_lshl_add_u32 {V(T[2])}, {V(T[3])}, 4, {V(T[2])}
    v_add_u32 {V(vY)}, {S(sT0)}, {V(T[2])}
    ''')
    smul(sT0, sWI, TS, TAB + 8)
    a(f'''
    v_lshl_add_u32 {V(T[2])}, {V(T[1])}, 3, {S(sT0)}
    v_lshl_add_u32 {V(vTW1)}, {V(T[0])}, 4, {V(T[2])}
    v_sub_u32 {V(T[2])}, 3, {V(T[1])}
    v_lshlrev_b32 {V(T[2])}, {V(T[2])}, {V(T[0])}
    v_lshl_add_u32 {V(T[3])}, {V(T[1])}, 8, {S(sT0)}
    v_add_u32 {V(T[3])}, 512, {V(T[3])}
    v_add_u32 {V(vTW2)}, {V(T[2])}, {V(T[3])}
    v_mul_u32_u24 {V(T[2])}, 124, {V(T[1])}
    v_add3_u32 {V(vTW3)}, {V(vTW2)}, {V(T[2])}, 4
    v_lshl_add_u32 {V(vTW4)}, {V(T[0])}, 1, {V(T[3])}
    v_add_u32 {V(vTW4)}, 512, {V(vTW4)}
    ''')
    ssum(sT0, (sWI, 11), WL)
    a(f'''
    v_lshrrev_b32 {V(T[2])}, 2, {V(T[5])}
    v_lshl_add_u32 {V(T[2])}, {V(T[6])}, 2, {V(T[2])}
    v_bfe_u32 {V(T[3])}, {V(vL)}, 1, 1
    v_mul_u32_u24 {V(T[3])}, {WL1}, {V(T[3])}
    v_lshl_add_u32 {V(T[2])}, {V(T[2])}, 4, {V(T[3])}
    v_and_b32 {V(T[3])}, 1, {V(vL)}
    v_lshl_add_u32 {V(T[2])}, {V(T[3])}, 3, {V(T[2])}
    v_add_u32 {V(vWT)}, {S(sT0)}, {V(T[2])}
    s_lshl_b32 {S(sT0)}, {S(sWI)}, 7
    v_add_u32 {V(T[2])}, {S(sT0)}, {V(vL)}
    s_lshl_b32 {S(sT1)}, {S(sF8)}, 4
    v_mul_u32_u24 {V(T[2])}, 2752, {V(T[2])}
    v_add_u32 {V(vWS0)}, {S(sT1)}, {V(T[2])}
    v_add_u32 {V(vWS1)}, {64*2752}, {V(vWS0)}
    v_and_b32 {V(T[2])}, 255, v0
    ''')
    ssum(sT0, (sF8, 13), 4096)
    ssum(sT1, (sF8, 5), W_FP)
    a(f'''
    v_lshl_add_u32 {V(vWDA)}, {V(T[2])}, 2, {S(sT0)}
    v_lshrrev_b32 {V(T[4])}, 1, {V(T[2])}
    v_mul_u32_u24 {V(T[4])}, 6144, {V(T[4])}
    v_lshl_add_u32 {V(T[4])}, {V(T[3])}, 4, {V(T[4])}
    v_add_u32 {V(vFPA)}, {S(sT1)}, {V(T[4])}
    v_lshlrev_b32 {V(T[2])}, 3, {V(T[6])}
    v_lshl_add_u32 {V(vXS)}, {V(T[5])}, 6, {V(T[2])}
    ''')
    ssum(sT0, (sWI, 8), FP)
    ssum(sT1, (sWI, 2), FF)
    a(f'''
    v_lshl_add_u32 {V(vFPW)}, {V(vL)}, 2, {S(sT0)}
    v_lshlrev_b32 {V(vFPR)}, 2, {V(T[5])}
    v_add_u32 {V(vFPR)}, {FP}, {V(vFPR)}
    v_mov_b32 {V(vFFW)}, {S(sT1)}
    s_lshr_b32 {S(sT1)}, {S(sWI)}, 1
    s_and_b32 {S(sT2)}, {S(sWI)}, 1
    ''')
    ssum(sT0, (2, 5), (sT1, 4), (sT2, 13), W_ST)
    a(f'v_mov_b32 {V(vSTP)}, {S(sT0)}')
    rk = vXN
    ssum(sT0, (2, 3), (sWI, 1))
    a(f'''
    s_sub_u32 {S(sT0)}, 0xffff, {S(sT0)}
    v_sub_u32 {V(rk)}, {S(sT0)}, {V(T[1])}
    ''')
    pfi = vXN + 1; pfa = vPFA
    ssum(sT0, (sH, 13), (sWI, 11), (sINB, 0))
    a(f'v_lshl_add_u32 {V(pfi)}, {V(T[5])}, 7, {S(sT0)}')
    a(f'''
    s_lshl_b32 {S(sT0)}, {S(sF8)}, 13
    v_lshl_add_u32 {V(pfa)}, {V(vL)}, 7, {S(sT0)}
    s_mov_b64 {S(sPB,2)}, {S(sWD,2)}
    s_cmp_eq_u32 {S(sWI)}, 3
    s_cbranch_scc1 L_pf_done
    s_mov_b64 {S(sPB,2)}, {S(sWG,2)}
    s_bitcmp1_b32 {S(sJ)}, 0
    s_cbranch_scc0 L_pf_gate
    s_mov_b64 {S(sPB,2)}, {S(sWU,2)}
    L_pf_gate:
    s_lshr_b32 {S(sT1)}, {S(sJ)}, 1
    s_lshl_b32 {S(sT1)}, {S(sT1)}, 5
    v_lshrrev_b32 {V(T[2])}, 1, {V(vL)}
    v_add_u32 {V(T[2])}, {S(sT1)}, {V(T[2])}
    v_mul_u32_u24 {V(T[2])}, 2752, {V(T[2])}
    v_mul_u32_u24 {V(T[3])}, 124, {V(T[3])}
    ''')
    ssum(sT0, (sWI, 10), (sK, 7))
    a(f'''
    s_min_u32 {S(sT0)}, {S(sT0)}, 2624
    v_add3_u32 {V(pfa)}, {V(T[2])}, {V(T[3])}, {S(sT0)}
    L_pf_done:
    ''')
    S1, S2, S3, S4 = vXF, vXF + 1, vXF + 2, vXF + 3

    def red32(regs):
        for m in ('row_shr:1', 'row_shr:2', 'row_shr:4', 'row_shr:8'):
            for r in regs: a(f'v_add_f32_dpp {V(r)}, {V(r)}, {V(r)} {m} row_mask:0xf bank_mask:0xf')
        for r in regs: a(f'v_add_f32_dpp {V(r)}, {V(r)}, {V(r)} row_bcast:15 row_mask:0xa bank_mask:0xf')
    for r in (S1, S2, S3, S4): a(f'v_mov_b32 {V(r)}, 0')
    e2 = 1 if o['wpf'] == 2 else 0
    if e2: a(f'global_load_dword {V(vPFW)}, {V(vPFA)}, {S(sPB,2)} nt')
    a(f's_waitcnt vmcnt({10 + e2})')
    for i in range(8): a(f'v_dot2_f32_bf16 {V(S4)}, {V(vG+i)}, {S(sONES)}, {V(S4)}')
    red32([S4])
    a(f's_waitcnt vmcnt({8 + e2})')
    stamp(1)
    nlate = e2
    if o['prefetch']:
        a('s_mov_b64 exec, 0xffff')
        a(f'global_load_dword {V(vPFD)}, {V(pfi)}, {S(sWS,2)} nt'); nlate += 1
        alllanes()
    for i in range(8):
        a(f'v_dot2_f32_bf16 {V(S1)}, {V(vD+i)}, {S(sONES)}, {V(S1)}')
        a(f'v_dot2_f32_bf16 {V(S2)}, {V(vD+i)}, {V(vD+i)}, {V(S2)}')
        a(f'v_dot2_f32_bf16 {V(S3)}, {V(vD+i)}, {V(vG+i)}, {V(S3)}')
    red32([S1, S2, S3])
    t = T[0]; g = vE
    a(f'''
    v_mul_f32 {V(S1)}, 0x3b000000, {V(S1)}
    v_mul_f32 {V(S2)}, 0x3b000000, {V(S2)}
    s_waitcnt vmcnt({7 + nlate})
    v_fma_f32 {V(S2)}, -{V(S1)}, {V(S1)}, {V(S2)}
    v_readfirstlane_b32 {S(sTAG)}, {V(vEP)}
    v_max_f32 {V(S2)}, 0, {V(S2)}
    v_cvt_pk_bf16_f32 {V(t)}, {V(S1)}, {V(S2)}
    s_add_u32 {S(sTAG)}, {S(sTAG)}, 16
    v_and_b32 {V(t)}, {S(sHI)}, {V(t)}
    s_and_b32 {S(sTAG)}, {S(sTAG)}, -16
    v_add_f32 {V(t)}, 0x3727c5ac, {V(t)}
    s_or_b32 {S(sTAGX)}, {S(sTAG)}, {S(sXCC)}
    v_cvt_pk_bf16_f32 {V(t)}, {V(t)}, {V(t)}
    v_and_b32 {V(t)}, {S(sHI)}, {V(t)}
    v_sqrt_f32 {V(t)}, {V(t)}
    v_mov_b32 {V(g+3)}, {S(sTAGX)}
    v_cvt_pk_bf16_f32 {V(g+1)}, {V(S1)}, {V(t)}
    v_and_b32 {V(t)}, {S(sHI)}, {V(g+1)}
    v_lshlrev_b32 {V(t+1)}, 16, {V(g+1)}
    v_rcp_f32 {V(t)}, {V(t)}
    v_fma_f32 {V(S3)}, -{V(t+1)}, {V(S4)}, {V(S3)}
    v_readlane_b32 {S(sT0)}, {V(g+1)}, 31
    v_mul_f32 {V(S3)}, {V(S3)}, {V(t)}
    v_cvt_pk_bf16_f32 {V(S3)}, {V(S3)}, {V(S3)}
    v_mov_b32 {V(g)}, {S(sT0)}
    v_ashrrev_i32 {V(t)}, 31, {V(S3)}
    v_or_b32 {V(t)}, 0x80000000, {V(t)}
    v_xor_b32 {V(t)}, {V(t)}, {V(S3)}
    v_and_or_b32 {V(t)}, {V(t)}, {S(sHI)}, {V(rk)}
    s_add_u32 {S(sT1)}, {S(sTAG)}, 1
    v_readlane_b32 {S(sT0)}, {V(t)}, 31
    v_mov_b32 {V(t+2)}, {S(sT1)}
    v_max_u32 {V(g+2)}, {S(sT0)}, {V(t)}
    ''')
    lane63()
    a(f'global_store_dwordx4 {V(vSTP)}, {V(g,4)}, {S(sWS,2)} sc1')
    a(f'ds_write_b32 {V(vFFW)}, {V(t+2)} offset:{TG - FF}')
    alllanes()
    def wd_loads():
        for i in range(8):
            a(f'global_load_dword {V(vWD+i)}, {V(vWDA)}, {S(sWD,2)} offset:{i*1024 - 4096} nt')
    if o['wdearly']: wd_loads()
    a(f"s_setprio 0\ns_waitcnt vmcnt({(9 if o['wdearly'] else 1) + nlate}) lgkmcnt(0)")
    stamp(2)

    a('L_kgen:')
    are, aim, bre, bim, cre, cim, dt = [vP + i for i in range(7)]
    t0 = vP + 7
    z1, z2, z4, ZZ, w1, w2, w4 = [vP + 8 + 2 * i for i in range(7)]
    hq = [vP + 24 + 2 * i for i in range(8)]
    lq = [vP + 40 + 2 * i for i in range(8)]
    cv = [vP + 56 + i for i in range(8)]
    a(f'''
    v_mov_b32 {V(t0)}, 0x3fb8aa3b
    v_mul_f32 {V(dt)}, {V(dt)}, {V(t0)}
    v_exp_f32 {V(dt)}, {V(dt)}
    v_mul_f32 {V(are)}, {V(t0)}, {V(are)}
    v_cvt_pk_bf16_f32 {V(dt)}, {V(dt)}, {V(dt)}
    v_mul_f32 {V(aim)}, 0.15915494, {V(aim)}
    v_and_b32 {V(dt)}, {S(sHI)}, {V(dt)}
    v_mul_f32 {V(are)}, {V(dt)}, {V(are)}
    v_mul_f32 {V(aim)}, {V(dt)}, {V(aim)}
    v_exp_f32 {V(cv[0])}, {V(are)}
    v_fract_f32 {V(cv[1])}, {V(aim)}
    v_mul_f32 {V(are)}, 0x43800000, {V(are)}
    v_cos_f32 {V(z1)}, {V(cv[1])}
    v_mul_f32 {V(aim)}, 0x43800000, {V(aim)}
    v_sin_f32 {V(z1+1)}, {V(cv[1])}
    v_fract_f32 {V(cv[3])}, {V(aim)}
    v_exp_f32 {V(cv[2])}, {V(are)}
    v_mul_f32 {V(z1)}, {V(cv[0])}, {V(z1)}
    v_cos_f32 {V(ZZ)}, {V(cv[3])}
    v_mul_f32 {V(z1+1)}, {V(cv[0])}, {V(z1+1)}
    v_sin_f32 {V(ZZ+1)}, {V(cv[3])}
    v_mul_f32 {V(bre)}, {V(dt)}, {V(bre)}
    v_mul_f32 {V(bim)}, {V(dt)}, {V(bim)}
    ''')
    cmul(z2, z1, z1)
    a(f'v_mul_f32 {V(ZZ)}, {V(cv[2])}, {V(ZZ)}\nv_mul_f32 {V(ZZ+1)}, {V(cv[2])}, {V(ZZ+1)}')
    cmul(z4, z2, z2)
    cmul(hq[0], cre, bre)
    ci = [0]; m0_hi = [False]

    def put(row, reg, neg):
        c = cv[ci[0] % 8]; ci[0] += 1
        a(f"v_cvt_pk_bf16_f32 {V(c)}, {V(reg)}, {'-' if neg else ''}{V(reg+1)}")
        off = row * RS - (30 * RS if m0_hi[0] else 0)
        assert 0 <= off < 65536, (row, off)
        a(f'ds_write_addtid_b32 {V(c)} offset:{STAGE + off}')
    cmul(w1, z4, z4)
    cmul(hq[1], hq[0], z1)
    cmul(w2, w1, w1)
    put(1, w1, False)
    cmul(hq[2], hq[0], z2)
    cmul(lq[3], w2, w1)
    put(2, w2, False)
    cmul(w4, w2, w2)
    put(3, lq[3], False)
    cur = {1: w1, 2: w2, 3: lq[3], 4: w4}
    put(4, w4, False)

    def lo_step(j):
        d = lq[j % 8]
        cmul(d, cur[j - 4], w4); cur[j] = d
        put(j, d, False)
    for j in range(5, 12): lo_step(j)
    a(f's_cmp_ge_u32 {S(sW)}, 4\ns_cbranch_scc1 L_noflag')
    spin_init()
    a(f'''
    L_tagspin:
    ds_read_b32 {V(T[0])}, {V(tga)}
    s_waitcnt lgkmcnt(0)
    v_readfirstlane_b32 {S(sTAG)}, {V(T[0])}
    s_cmp_lg_u32 {S(sTAG)}, 0
    s_cbranch_scc1 L_tagok
    ''')
    spin_next('L_tagspin')
    a(f'''
    L_tagok:
    s_and_b32 {S(sTAG)}, {S(sTAG)}, -16
    s_or_b32 {S(sTAGX)}, {S(sTAG)}, {S(sXCC)}
    v_mov_b32 {V(T[0])}, {S(sTAGX)}
    s_mov_b64 exec, 1
    s_waitcnt vmcnt(0)
    global_store_dword {V(vFLO)}, {V(T[0])}, {S(sWS,2)}
    s_mov_b64 exec, -1
    ''')
    stamp(2)
    a('L_noflag:')
    for j in range(12, 30): lo_step(j)
    ssum(sT0, (sW, 8), 30 * RS)
    a(f's_mov_b32 m0, {S(sT0)}')
    m0_hi[0] = True
    for j in range(30, 32): lo_step(j)
    put(32, hq[0], True); put(33, hq[1], True); put(34, hq[2], True)
    cmul(hq[3], hq[1], z2); cmul(hq[4], hq[0], z4)
    put(35, hq[3], True); put(36, hq[4], True)
    a(f'global_load_dword {V(vPFD)}, {V(vFL)}, {S(sWS,2)} sc1')
    cmul(hq[5], hq[1], z4); cmul(hq[6], hq[2], z4); cmul(hq[7], hq[3], z4)
    put(37, hq[5], True); put(38, hq[6], True); put(39, hq[7], True)
    A0, A2, A4, A6, B0, B4, C0, C4 = lq
    cmul(A0, hq[0], ZZ); cmul(A2, hq[2], ZZ); cmul(A4, hq[4], ZZ); cmul(A6, hq[6], ZZ)
    put(40, A0, True)
    cmul(B0, A0, ZZ); put(41, A2, True); cmul(B4, A4, ZZ); put(42, A4, True)
    cmul(C0, B0, ZZ); put(43, A6, True); cmul(C4, B4, ZZ); put(44, B0, True)
    cmul(hq[1], C0, ZZ); put(45, B4, True); put(46, C0, True)
    cmul(hq[2], hq[1], ZZ); put(47, C4, True); put(48, hq[1], True)
    cmul(hq[3], hq[2], ZZ); put(49, hq[2], True)
    cmul(hq[4], hq[3], ZZ); put(50, hq[3], True)
    cmul(hq[5], hq[4], ZZ); put(51, hq[4], True); put(52, hq[5], True)
    stamp(3)

    KD = vP; KF = vP + 16; NB = o['nb']

    def kread(sidx):
        r = KF + 8 * (sidx % NB)
        a(f'ds_read_b128 {V(r,4)}, {V(vKA)} offset:{32*sidx}')
        a(f'ds_read_b128 {V(r+4,4)}, {V(vKB)} offset:{32*sidx}')

    def kmfma(cinit):
        for sidx in range(8):
            outstanding = min(8, sidx + NB) - sidx - 1
            a(f's_waitcnt lgkmcnt({2*outstanding})')
            r = KF + 8 * (sidx % NB)
            a(f"v_mfma_f32_32x32x16_bf16 {V(KD,16)}, {V(r,4)}, {V(r+4,4)}, {'0' if (sidx == 0 and not cinit) else V(KD,16)}")
            if sidx + NB < 8: kread(sidx + NB)

    def fetch_tile(tag):
        a(f's_waitcnt vmcnt(0)\nv_cmp_ne_u32 vcc, {S(sTAGX)}, {V(vPFD)}')
        if o['force_slow']: a(f's_branch L_gather{tag}')
        a(f's_cbranch_vccz L_fast{tag}')
        spin_init()
        a(f'''
        L_flagspin{tag}:
        global_load_dword {V(vPFD)}, {V(vFL)}, {S(sWS,2)} sc1
        global_load_dword {V(T[0])}, {V(vXC)}, {S(sWS,2)} sc1
        s_waitcnt vmcnt(0)
        v_cmp_ne_u32 vcc, {S(sTAGX)}, {V(vPFD)}
        s_cbranch_vccz L_fast{tag}
        v_xor_b32 {V(T[0])}, {S(sTAGX)}, {V(T[0])}
        v_add_u32 {V(T[0])}, -1, {V(T[0])}
        v_cmp_gt_u32 vcc, 15, {V(T[0])}
        s_cbranch_vccnz L_gather{tag}
        ''')
        spin_next(f'L_flagspin{tag}')
        a(f'L_gather{tag}:')
        for r in range(4):
            a(f'global_load_dwordx2 {V(vD+2*r,2)}, {V(vXG)}, {S(sX,2)} offset:{r*1024}')
        a(f'''
        s_branch L_stats{tag}
        L_fast{tag}:
        global_load_dwordx4 {V(vD,4)}, {V(vIN)}, {S(sWS,2)} sc1
        global_load_dwordx4 {V(vD+4,4)}, {V(vIN)}, {S(sWS,2)} offset:64 sc1
        L_stats{tag}:
        global_load_dwordx4 {V(vG,4)}, {V(vST0)}, {S(sWS,2)} sc1
        global_load_dwordx4 {V(vG+4,4)}, {V(vST1)}, {S(sWS,2)} sc1
        ''')

    a(f's_cmp_ge_u32 {S(sW)}, 4\ns_cbranch_scc1 L_h_k')
    for i in range(NB): kread(i)
    kmfma(False)
    a(f'v_mov_b32 {V(T[1])}, 1')
    for i in range(3): a(f'ds_write_b128 {V(vPD)}, {V(KD+4*i,4)} offset:{1024*i}')
    a(f's_mov_b64 exec, 1\nds_write_b32 {V(tga)}, {V(T[1])} offset:{PF - TG}\ns_mov_b64 exec, -1')
    stamp(4)
    fetch_tile('c')
    a('s_branch L_b3')
    a('L_h_k:')
    spin_init()
    a(f'''
    L_pspin:
    ds_read_b32 {V(T[1])}, {V(vFFW)} offset:{PF - FF}
    ''')
    for i in range(3): a(f'ds_read_b128 {V(KD+4*i,4)}, {V(vPD)} offset:{1024*i}')
    for i in range(NB - 1): kread(i)
    a(f'''
    s_waitcnt lgkmcnt({2*(NB-1) + 3})
    v_readfirstlane_b32 {S(sT0)}, {V(T[1])}
    s_cmp_lg_u32 {S(sT0)}, 0
    s_cbranch_scc1 L_pok
    s_waitcnt lgkmcnt(0)
    ''')
    spin_next('L_pspin')
    a('L_pok:')
    kread(NB - 1)
    kmfma(True)
    for i in range(6): a(f'v_cvt_pk_bf16_f32 {V(T[i])}, {V(KD+2*i)}, {V(KD+2*i+1)}')
    a(f'''
    ds_write_b64 {V(vTW1)}, {V(T[0],2)}
    ds_write_b32 {V(vTW2)}, {V(T[2])}
    ds_write_b32 {V(vTW3)}, {V(T[3])}
    ds_write_b16 {V(vTW4)}, {V(T[4])}
    ds_write_b16_d16_hi {V(vTW4)}, {V(T[4])} offset:64
    ds_write_b16 {V(vTW4)}, {V(T[5])} offset:128
    ds_write_b16_d16_hi {V(vTW4)}, {V(T[5])} offset:192
    ''')
    stamp(4)
    fetch_tile('h')
    if o['wpf'] == 1: a(f'global_load_dword {V(vPFW)}, {V(vPFA)}, {S(sPB,2)} nt')
    a('L_b3:\ns_waitcnt lgkmcnt(0)')
    stamp(5)
    a('s_barrier')

    XP = vG
    def r4_build(tag, mid=None):
        Wq = vP; Q = vP + 16
        for c in range(4):
            a(f'ds_read2_b32 {V(Wq+4*c,2)}, {V(vGA+2*c)} offset0:0 offset1:1')
            a(f'ds_read2_b32 {V(Wq+4*c+2,2)}, {V(vGA+2*c+1)} offset0:0 offset1:1')
        if tag == 'c': a(f'''
        s_cmp_lg_u32 {S(sW)}, 3
        s_cbranch_scc1 L_nopad{tag}
        v_bfe_u32 {V(T[0])}, {V(vL)}, 3, 2
        v_and_b32 {V(T[1])}, 7, {V(vL)}
        v_mul_u32_u24 {V(T[0])}, {R4S}, {V(T[0])}
        v_lshl_add_u32 {V(T[0])}, {V(T[1])}, 4, {V(T[0])}
        ''')
        if tag == 'c':
            for i in range(4): a(f'v_mov_b32 {V(T[4+i])}, 0')
        if tag == 'c': a(f'''
        s_mov_b32 exec_hi, 0
        ds_write_b128 {V(T[0])}, {V(T[4],4)} offset:{R4}
        s_mov_b64 exec, -1
        s_waitcnt lgkmcnt(1)
        L_nopad{tag}:
        ''')
        if mid: mid()
        for c in range(4):
            W0, W1, W2, W3 = [Wq + 4 * c + i for i in range(4)]
            q = Q + 8 * c
            if not mid: a('s_waitcnt lgkmcnt(6)')
            a(f'''
            v_perm_b32 {V(q+0)}, {V(W2)}, {V(W1)}, {V(vSEL+2)}
            v_perm_b32 {V(q+1)}, {V(W1)}, {V(W0)}, {V(vSEL+0)}
            v_perm_b32 {V(q+2)}, {V(W3)}, {V(W2)}, {V(vSEL+3)}
            v_perm_b32 {V(q+3)}, {V(W1)}, {V(W0)}, {V(vSEL+1)}
            v_mov_b32 {V(q+5)}, {V(q+0)}
            ds_write_b128 {V(vR4W)}, {V(q,4)} offset:{c*R4S}
            v_perm_b32 {V(q+4)}, {V(W3)}, {V(W2)}, {V(vSEL+4)}
            v_perm_b32 {V(q+6)}, {V(W3)}, {V(W2)}, {V(vSEL+5)}
            v_mov_b32 {V(q+7)}, {V(q+2)}
            ds_write_b128 {V(vR4W)}, {V(q+4,4)} offset:{c*R4S + 16}
            ''')

    def normalise(tag):
        a(f"s_waitcnt vmcnt({1 if (tag == 'h' and o['wpf'] == 1) else 0})")
        spin_init()
        a(f'''
        L_statspin{tag}:
        v_xor_b32 {V(T[0])}, {S(sTAG)}, {V(vG+3)}
        v_xor_b32 {V(T[1])}, {S(sTAG)}, {V(vG+7)}
        v_or_b32 {V(T[0])}, {V(T[0])}, {V(T[1])}
        v_cmp_lt_u32 vcc, 15, {V(T[0])}
        s_cbranch_vccz L_statok{tag}
        global_load_dwordx4 {V(vG,4)}, {V(vST0)}, {S(sWS,2)} sc1
        global_load_dwordx4 {V(vG+4,4)}, {V(vST1)}, {S(sWS,2)} sc1
        s_waitcnt vmcnt(0)
        ''')
        spin_next(f'L_statspin{tag}')
        a(f'L_statok{tag}:')
        stamp(7)
        stq = [vG, vG + 1, vG + 4, vG + 5]
        rho = [T[1], T[3], T[5], T[7]]; mu = [T[0], T[2], T[4], T[6]]
        key = T[8]
        for r in range(4): a(f'v_and_b32 {V(rho[r])}, {S(sHI)}, {V(stq[r])}')
        a(f'v_max_u32 {V(key)}, {V(vG+2)}, {V(vG+6)}')
        for r in range(4):
            a(f'v_rcp_f32 {V(rho[r])}, {V(rho[r])}')
            a(f'v_lshlrev_b32 {V(mu[r])}, 16, {V(stq[r])}')
        kred = ['row_shr:1 row_mask:0xf', 'row_shr:2 row_mask:0xf', 'row_shr:4 row_mask:0xf', 'row_shr:8 row_mask:0xf',
                'row_bcast:15 row_mask:0xa', 'row_bcast:31 row_mask:0xc']
        def kr(i): a(f'v_max_u32_dpp {V(key)}, {V(key)}, {V(key)} {kred[i]} bank_mask:0xf')
        for r in range(4):
            a(f'''
            v_mul_f32_e64 {V(mu[r])}, -{V(mu[r])}, {V(rho[r])}
            v_lshlrev_b32 {V(vXF+4*r)}, 16, {V(vD+2*r)}
            v_and_b32 {V(vXF+4*r+1)}, {S(sHI)}, {V(vD+2*r)}
            v_lshlrev_b32 {V(vXF+4*r+2)}, 16, {V(vD+2*r+1)}
            v_and_b32 {V(vXF+4*r+3)}, {S(sHI)}, {V(vD+2*r+1)}
            ''')
            kr(r)
            for c in range(4): a(f'v_fma_f32 {V(vXN+4*r+c)}, {V(vXF+4*r+c)}, {V(rho[r])}, {V(mu[r])}')
        kr(4)
        ssum(sT0, (sW, 2), AM)
        for c in range(4):
            a(f'''
            v_cvt_pk_bf16_f32 {V(XP+2*c)}, {V(vXN+c)}, {V(vXN+4+c)}
            v_cvt_pk_bf16_f32 {V(XP+2*c+1)}, {V(vXN+8+c)}, {V(vXN+12+c)}
            ds_write_b64 {V(vUW)}, {V(XP+2*c,2)} offset:{c*US}
            ''')
            if c == 0: kr(5)
            if c == 1: a(f'v_mov_b32 {V(T[9])}, {S(sT0)}')
        lane63()
        a(f'ds_write_b32 {V(T[9])}, {V(key)}')
        alllanes()

    a(f's_cmp_ge_u32 {S(sW)}, 4\ns_cbranch_scc1 L_h_r4')
    r4_build('c'); stamp(6); normalise('c')
    a('s_branch L_b4\nL_h_r4:')
    if o['hnormfirst']:
        def mid():
            normalise('h')
            if o['wpf'] == 3: a(f'global_load_dword {V(vPFW)}, {V(vPFA)}, {S(sPB,2)} nt')
            a('s_waitcnt lgkmcnt(5)'); stamp(6)
        r4_build('h', mid)
    else:
        r4_build('h'); stamp(6); normalise('h')
    a('L_b4:')
    a(f'v_mov_b32 {V(T[9])}, {AM}\ns_waitcnt lgkmcnt(0)')
    stamp(8)
    a('s_barrier')

    def read_idx():
        a(f'''
        ds_read_b128 {V(T[0],4)}, {V(T[9])}
        ds_read_b128 {V(T[4],4)}, {V(T[9])} offset:16
        s_waitcnt lgkmcnt(0)
        v_max3_u32 {V(T[0])}, {V(T[0])}, {V(T[1])}, {V(T[2])}
        v_max3_u32 {V(T[3])}, {V(T[3])}, {V(T[4])}, {V(T[5])}
        v_max3_u32 {V(T[0])}, {V(T[0])}, {V(T[6])}, {V(T[7])}
        v_max_u32 {V(T[0])}, {V(T[0])}, {V(T[3])}
        v_readfirstlane_b32 {S(sKEY)}, {V(T[0])}
        s_andn2_b32 {S(sIDX)}, 2047, {S(sKEY)}
        s_lshr_b32 {S(sT0)}, {S(sIDX)}, 8
        s_lshr_b32 {S(sT1)}, {S(sIDX)}, 9
        s_xor_b32 {S(sT0)}, {S(sT0)}, {S(sT1)}
        s_xor_b32 {S(sT0)}, {S(sT0)}, {S(sH)}
        s_andn2_b32 {S(sOWN)}, 1, {S(sT0)}
        ''')

    def stat_addr(dst):
        a(f's_lshr_b32 {S(sT0)}, {S(sIDX)}, 2\ns_bfe_u32 {S(sT1)}, {S(sIDX)}, 0x10001\ns_and_b32 {S(sT2)}, {S(sIDX)}, 1')
        ssum(sT0, (sT0, 4), (sT1, 13), (sT2, 2), W_ST)
        a(f'v_mov_b32 {V(dst)}, {S(sT0)}')

    a(f's_cmp_ge_u32 {S(sW)}, 4\ns_cbranch_scc1 L_helper')

    ACC = vP; FR = vP + 16; NFR = 28
    stamp(10)
    a(f's_setprio 1\ns_cmp_eq_u32 {S(sH)}, 0\ns_cbranch_scc0 L_conv1')

    def conv(h):
        tl = tiles(h)
        ops = []
        for c0 in range(8):
            lst = [(i, c1, q - c1) for i, q in enumerate(tl) for c1 in range(q + 1)]
            have = set(); seq = []
            while lst:
                def cost(x):
                    base = (2 * (('A', x[1]) not in have) + (('B', x[2]) not in have), bool(seq) and seq[-1][0] == x[0], max(x[1], x[2]))
                    return ((x[0],) + base) if c0 == 7 else base
                x = min(lst, key=cost); lst.remove(x); seq.append(x); have.add(('A', x[1])); have.add(('B', x[2]))
            for i, c1, qp in seq: ops.append((i, ('A', c0, c1), ('B', c0, qp)))
        order = []; last = {}; lastacc = {}
        for n, (i, ak, bk) in enumerate(ops):
            lastacc[i] = n
            for k in (bk, ak):
                if k not in last: order.append(k)
                last[k] = n
        L = []
        for k in order: L += [(k, 0), (k, 1)] if k[0] == 'A' else [(k, 0)]
        endidx = {}
        for j, (k, p) in enumerate(L): endidx[k] = j + 1
        need = []; m = 0
        for (i, ak, bk) in ops:
            m = max(m, endidx[ak], endidx[bk]); need.append(m)
        free = list(range(NFR)); slot = {}
        st = dict(issued=0, done=0)
        seqpos = []
        nds = [0]
        donepos = [0]
        MAXOUT = o['maxout']; G = o['group']

        def can_issue():
            if st['issued'] >= len(L) or nds[0] - donepos[0] >= MAXOUT: return False
            k, p = L[st['issued']]
            return p == 1 or bool(free)

        def issue():
            k, p = L[st['issued']]
            if p == 0: slot[k] = free.pop(0)
            r = FR + 4 * slot[k]
            if k[0] == 'A':
                a(f'ds_read_b64 {V(r+2*p,2)}, {V(vCA2 if p else vCA)} offset:{CAS*(8*k[2] + k[1])}')
            else:
                a(f'ds_read_b128 {V(r,4)}, {V(vCB)} offset:{2*(224 + 256*k[2] - 32*k[1])}')
            st['issued'] += 1; nds[0] += 1; seqpos.append(nds[0])
        started = set(); written = set()
        while can_issue(): issue()
        for n, (i, ak, bk) in enumerate(ops):
            if need[n] > st['done']:
                while st['issued'] < need[n]:
                    assert nds[0] - donepos[0] < 15
                    issue()
                tgt = need[n]
                for m2 in range(n, min(n + G, len(ops))):
                    if need[m2] <= st['issued'] - o['minfly'] or need[m2] <= len(L) == st['issued']: tgt = max(tgt, need[m2])
                a(f's_waitcnt lgkmcnt({nds[0] - seqpos[tgt-1]})'); st['done'] = tgt; donepos[0] = seqpos[tgt - 1]
            acc = ACC + 4 * i
            cin = V(acc, 4) if i in started else '0'
            started.add(i)
            a(f'v_mfma_f32_16x16x32_bf16 {V(acc,4)}, {V(FR+4*slot[ak],4)}, {V(FR+4*slot[bk],4)}, {cin}')
            for k in (ak, bk):
                if last[k] == n: free.append(slot[k])
            budget = 2
            if n + 1 < len(ops) and need[n + 1] > st['done']: budget = 1
            for i2 in range(4):
                if i2 not in written and lastacc[i2] + 4 <= n and budget > 0 and nds[0] - donepos[0] < 15:
                    a(f'ds_write_b128 {V(vY)}, {V(ACC+4*i2,4)} offset:{i2*YTS}')
                    written.add(i2); nds[0] += 1; budget -= 1
            while budget > 0 and can_issue():
                issue(); budget -= 1
        for i2 in range(4):
            if i2 not in written: a(f'ds_write_b128 {V(vY)}, {V(ACC+4*i2,4)} offset:{i2*YTS}')
    conv(0)
    a('s_branch L_convdone\nL_conv1:')
    conv(1)
    a('L_convdone:\ns_waitcnt lgkmcnt(0)')
    stamp(9)
    a(f's_barrier\ns_cmp_lg_u32 {S(sW)}, 0\ns_cbranch_scc1 L_exit')
    a(f'''
    s_cmp_lg_u32 s2, 0
    s_cbranch_scc1 L_noep
    v_mov_b32 {V(T[10])}, 0
    v_mov_b32 {V(T[11])}, {S(sTAG)}
    s_mov_b64 exec, 1
    global_store_dword {V(T[10])}, {V(T[11])}, {S(sWS,2)} sc1
    s_mov_b64 exec, -1
    L_noep:
    ''')
    read_idx()
    a(f's_cmp_eq_u32 {S(sOWN)}, 0\ns_cbranch_scc1 L_exit\ns_setprio 3')
    F = vP
    par, xo, fpa = T[12], T[13], T[14]
    y0, y1, n0, n1, d0, d1, sg, xv, sv, x0, x1 = [vXF + i for i in range(11)]
    a(f'v_and_b32 {V(par)}, 1, {V(vL)}')
    ssum(sT0, (sIDX, 10), (sCH0, 1))
    a(f'v_lshl_add_u32 {V(xo)}, {V(par)}, 2, {S(sT0)}')
    stat_addr(T[10])
    a(f'global_load_dword {V(xv)}, {V(xo)}, {S(sX,2)}')
    a(f'global_load_dword {V(sv)}, {V(T[10])}, {S(sWS,2)} sc1')
    a(f's_lshr_b32 {S(sT0)}, {S(sCH0)}, 2')
    smul(sT0, sT0, 6144, W_FP + 3072)
    a(f'v_lshl_add_u32 {V(fpa)}, {V(vL)}, 4, {S(sT0)}')
    a(f'''
    s_lshr_b32 {S(sT1)}, {S(sIDX)}, 9
    s_mul_i32 {S(sT1)}, {S(sT1)}, {YTS}
    s_bfe_u32 {S(sT0)}, {S(sIDX)}, 0x20002
    s_mul_i32 {S(sT0)}, {S(sT0)}, {YGS}
    s_add_u32 {S(sT1)}, {S(sT1)}, {S(sT0)}
    s_bfe_u32 {S(sT0)}, {S(sIDX)}, 0x40004
    s_and_b32 {S(sT2)}, {S(sIDX)}, 3
    ''')
    ssum(sT1, (sT1, 0), (sT0, 4), (sT2, 2), YX)
    a(f'''
    v_mul_u32_u24 {V(T[0])}, {2*YCS}, {V(par)}
    v_add_u32 {V(T[0])}, {S(sT1)}, {V(T[0])}
    ds_read_b32 {V(y0)}, {V(T[0])}
    ds_read_b32 {V(y1)}, {V(T[0])} offset:{YCS}
    s_and_b32 {S(sT0)}, {S(sKEY)}, {S(sHI)}
    s_xor_b32 {S(sT1)}, {S(sT0)}, 0x80000000
    s_xor_b32 {S(sT2)}, {S(sT0)}, {S(sHI)}
    s_bitcmp1_b32 {S(sT0)}, 31
    s_cselect_b32 {S(sT0)}, {S(sT1)}, {S(sT2)}
    v_mov_b32 {V(T[2])}, 0xbfb8aa3b
    v_mul_f32 {V(sg)}, {S(sT0)}, {V(T[2])}
    v_exp_f32 {V(sg)}, {V(sg)}
    v_cmp_eq_u32 vcc, 0, {V(par)}
    v_add_f32 {V(sg)}, 1.0, {V(sg)}
    v_rcp_f32 {V(sg)}, {V(sg)}
    v_mov_b32 {V(F+20)}, 0
    v_cvt_pk_bf16_f32 {V(sg)}, {V(sg)}, {V(sg)}
    v_mov_b32 {V(F+21)}, 0
    v_and_b32 {V(sg)}, {S(sHI)}, {V(sg)}
    v_mov_b32 {V(F+22)}, {S(sTAG)}
    s_waitcnt lgkmcnt(0)
    v_mov_b32 {V(d0)}, {S(sDS)}
    v_mov_b32 {V(d1)}, {S(sDS+1)}
    v_cndmask_b32 {V(d0)}, {V(d1)}, {V(d0)}, vcc
    v_and_b32 {V(d1)}, {S(sHI)}, {V(d0)}
    v_lshlrev_b32 {V(d0)}, 16, {V(d0)}
    ''')

    def rnd2(r0, r1, t):
        a(f'v_cvt_pk_bf16_f32 {V(t)}, {V(r0)}, {V(r1)}\nv_lshlrev_b32 {V(r0)}, 16, {V(t)}\nv_and_b32 {V(r1)}, {S(sHI)}, {V(t)}')
    rnd2(y0, y1, T[0])
    a(f'''
    s_waitcnt vmcnt(0)
    v_and_b32 {V(T[1])}, {S(sHI)}, {V(sv)}
    v_lshlrev_b32 {V(T[2])}, 16, {V(sv)}
    v_rcp_f32 {V(T[1])}, {V(T[1])}
    v_lshlrev_b32 {V(x0)}, 16, {V(xv)}
    v_and_b32 {V(x1)}, {S(sHI)}, {V(xv)}
    v_sub_f32 {V(n0)}, {V(x0)}, {V(T[2])}
    v_sub_f32 {V(n1)}, {V(x1)}, {V(T[2])}
    ''')
    rnd2(n0, n1, T[0])
    a(f'v_mul_f32 {V(n0)}, {V(n0)}, {V(T[1])}\nv_mul_f32 {V(n1)}, {V(n1)}, {V(T[1])}')
    rnd2(n0, n1, T[0])
    a(f'v_mul_f32 {V(d0)}, {V(d0)}, {V(n0)}\nv_mul_f32 {V(d1)}, {V(d1)}, {V(n1)}')
    rnd2(d0, d1, T[0])
    a(f'v_add_f32 {V(y0)}, {V(y0)}, {V(d0)}\nv_add_f32 {V(y1)}, {V(y1)}, {V(d1)}')
    rnd2(y0, y1, T[0])
    if o['b6']: a('s_barrier')
    spin_init()
    a('L_ffnspin:')
    for i in range(5):
        a(f'global_load_dwordx4 {V(F+4*i,4)}, {V(fpa)}, {S(sWS,2)} offset:{i*1024 - 3072} sc1')
    a(f'''
    s_mov_b64 exec, 0xffffff
    global_load_dwordx4 {V(F+20,4)}, {V(fpa)}, {S(sWS,2)} offset:2048 sc1
    s_mov_b64 exec, -1
    s_waitcnt vmcnt(0)
    ''')
    for i in range(6): a(f'v_xor_b32 {V(T[i])}, {S(sTAG)}, {V(F+4*i+2)}')
    a(f'''
    v_or3_b32 {V(T[0])}, {V(T[0])}, {V(T[1])}, {V(T[2])}
    v_or3_b32 {V(T[3])}, {V(T[3])}, {V(T[4])}, {V(T[5])}
    v_or_b32 {V(T[0])}, {V(T[0])}, {V(T[3])}
    v_cmp_ne_u32 vcc, 0, {V(T[0])}
    s_cbranch_vccz L_ffnok
    ''')
    spin_next('L_ffnspin')
    a('L_ffnok:')
    stamp(11)
    p0, p1 = F, F + 1
    for e in range(2):
        a(f'v_add_f32 {V(F+e)}, {V(F+e)}, {V(F+4+e)}')
        a(f'v_add_f32 {V(F+8+e)}, {V(F+8+e)}, {V(F+12+e)}')
        a(f'v_add_f32 {V(F+16+e)}, {V(F+16+e)}, {V(F+20+e)}')
    for e in range(2): a(f'v_add_f32 {V(F+e)}, {V(F+e)}, {V(F+8+e)}')
    for e in range(2): a(f'v_add_f32 {V(F+e)}, {V(F+e)}, {V(F+16+e)}')
    for m in (2, 4, 8):
        for e in range(2): a(f'v_add_f32_dpp {V(F+e)}, {V(F+e)}, {V(F+e)} row_ror:{m} row_mask:0xf bank_mask:0xf')
    for pl in ('v_permlane16_swap_b32', 'v_permlane32_swap_b32'):
        for e in range(2): a(f'v_mov_b32 {V(F+4+e)}, {V(F+e)}')
        for e in range(2): a(f'{pl} {V(F+e)}, {V(F+4+e)}')
        for e in range(2): a(f'v_add_f32 {V(F+e)}, {V(F+e)}, {V(F+4+e)}')
    rnd2(p0, p1, T[0])
    for e in range(2): a(f'v_mul_f32 {V(F+e)}, {V(F+e)}, {V(sg)}')
    rnd2(p0, p1, T[0])
    a(f'v_add_f32 {V(p0)}, {V(p0)}, {V(n0)}\nv_add_f32 {V(p1)}, {V(p1)}, {V(n1)}')
    rnd2(p0, p1, T[0])
    for e in range(2): a(f'v_mul_f32 {V(F+4+e)}, 0xbfb8aa3b, {V(F+e)}')
    for e in range(2): a(f'v_exp_f32 {V(F+4+e)}, {V(F+4+e)}')
    for e in range(2): a(f'v_add_f32 {V(F+4+e)}, 1.0, {V(F+4+e)}')
    for e in range(2): a(f'v_rcp_f32 {V(F+4+e)}, {V(F+4+e)}')
    for e in range(2): a(f'v_mul_f32 {V(F+e)}, {V(F+e)}, {V(F+4+e)}')
    rnd2(p0, p1, T[0])
    a(f'v_mul_f32 {V(p0)}, {V(p0)}, {V(y0)}\nv_mul_f32 {V(p1)}, {V(p1)}, {V(y1)}')
    rnd2(p0, p1, T[0])
    a(f'''
    v_add_f32 {V(p0)}, {V(p0)}, {V(x0)}
    v_add_f32 {V(p1)}, {V(p1)}, {V(x1)}
    v_cvt_pk_bf16_f32 {V(T[0])}, {V(p0)}, {V(p1)}
    s_mov_b64 exec, 3
    global_store_dword {V(xo)}, {V(T[0])}, {S(sOUT,2)}
    s_mov_b64 exec, -1
    ''')
    if o['stamp']:
        a('s_waitcnt vmcnt(0)'); stamp(12); a('s_branch L_exit')
    else:
        a('s_endpgm')

    a('L_helper:')
    read_idx()
    XS = vP
    a(f's_cmp_eq_u32 {S(sPROD)}, 0\ns_cbranch_scc1 L_h_pre')
    a(f's_lshl_b32 {S(sT0)}, {S(sIDX)}, 10\nv_add_u32 {V(T[0])}, {S(sT0)}, {V(vXS)}')
    stat_addr(T[1])
    a(f'''
    global_load_dwordx2 {V(XS,2)}, {V(T[0])}, {S(sX,2)}
    global_load_dwordx2 {V(XS+2,2)}, {V(T[0])}, {S(sX,2)} offset:32
    global_load_dword {V(XS+4)}, {V(T[1])}, {S(sWS,2)} sc1
    ''')
    if not o['wdearly']: wd_loads()
    ssum(sT0, (sWI, 11), WL)
    for mu_, base in enumerate((sWG, sWU)):
        for i, r in enumerate((vWS0, vWS1)):
            a(f's_add_u32 m0, {S(sT0)}, {mu_*WL1 + i*1024}')
            a(f'global_load_lds_dwordx4 {V(r)}, {S(base,2)}')
    a('L_h_pre:')
    Dv = [T[10 + c] for c in range(4)]
    a(f'''
    s_lshl_b32 {S(sT0)}, {S(sDS)}, 16
    s_and_b32 {S(sT1)}, {S(sDS)}, {S(sHI)}
    s_lshl_b32 {S(sT2)}, {S(sDS+1)}, 16
    s_and_b32 {S(sT3)}, {S(sDS+1)}, {S(sHI)}
    ''')
    for c in range(4): a(f'v_mov_b32 {V(Dv[c])}, {S(sT0+c)}')
    for c in range(4):
        for r in range(4):
            src = XP + 2 * c + (r >> 1)
            if r & 1: a(f'v_and_b32 {V(vXN+4*r+c)}, {S(sHI)}, {V(src)}')
            else:     a(f'v_lshlrev_b32 {V(vXN+4*r+c)}, 16, {V(src)}')
        for r in range(4): a(f'v_mul_f32 {V(T[r])}, 0xbfb8aa3b, {V(vXN+4*r+c)}')
        for r in range(4): a(f'v_exp_f32 {V(T[r])}, {V(T[r])}')
        for r in range(4):
            a(f'v_mul_f32 {V(vE+4*r+c)}, {V(vXN+4*r+c)}, {V(Dv[c])}')
            a(f'v_add_f32 {V(T[r])}, 1.0, {V(T[r])}')
        for r in range(4): a(f'v_rcp_f32 {V(T[r])}, {V(T[r])}')
        for r in range(4): a(f'v_mul_f32 {V(vXN+4*r+c)}, {V(vXN+4*r+c)}, {V(T[r])}')
        for r in range(4): a(f'v_fma_f32 {V(vE+4*r+c)}, {V(vE+4*r+c)}, {V(vXN+4*r+c)}, {V(vXF+4*r+c)}')
    for r in range(4):
        a(f'v_add_u32 {V(T[0])}, {r}, {V(vROW)}\nv_cmp_ne_u32 {S(sM+2*r,2)}, {S(sIDX)}, {V(T[0])}')
    stamp(9)
    a(f's_cmp_eq_u32 {S(sPROD)}, 0\ns_cbranch_scc1 L_h_b5')
    WF = vP + 8; DD = vP + 24; XA = vP + 40; WDF = vP + 48
    a(f"s_setprio {o['ffnprio']}")
    def wd_unpack():
        for i in range(8):
            a(f'v_lshlrev_b32 {V(WDF+2*i)}, 16, {V(vWD+i)}\nv_and_b32 {V(WDF+2*i+1)}, {S(sHI)}, {V(vWD+i)}')
    if o['wdearly']: wd_unpack()
    a(f'''
    s_waitcnt vmcnt({4 if o['wdearly'] else 12})
    v_and_b32 {V(T[0])}, {S(sHI)}, {V(XS+4)}
    v_lshlrev_b32 {V(T[1])}, 16, {V(XS+4)}
    v_rcp_f32 {V(T[0])}, {V(T[0])}
    ''')
    for i in range(4):
        a(f'v_lshlrev_b32 {V(T[2+2*i])}, 16, {V(XS+i)}\nv_and_b32 {V(T[3+2*i])}, {S(sHI)}, {V(XS+i)}')
    for i in range(8): a(f'v_sub_f32 {V(T[2+i])}, {V(T[2+i])}, {V(T[1])}')
    for i in range(4): rnd2(T[2 + 2 * i], T[3 + 2 * i], XA + i)
    for i in range(8): a(f'v_mul_f32 {V(T[2+i])}, {V(T[2+i])}, {V(T[0])}')
    for i in range(4): a(f'v_cvt_pk_bf16_f32 {V(XA+i)}, {V(T[2+2*i])}, {V(T[3+2*i])}')
    if not o['wdearly']:
        a('s_waitcnt vmcnt(4)'); wd_unpack()
    a('s_waitcnt vmcnt(0)')
    stamp(0)
    for sp in range(4):
        a(f'ds_read_b64_tr_b16 {V(WF+4*sp,2)}, {V(vWT)} offset:{512*sp}')
        a(f'ds_read_b64_tr_b16 {V(WF+4*sp+2,2)}, {V(vWT)} offset:{512*sp + 256}')
    for sp in range(4):
        a(f's_waitcnt lgkmcnt({6 - 2*sp})')
        a(f'v_mfma_f32_16x16x32_bf16 {V(DD+4*sp,4)}, {V(XA,4)}, {V(WF+4*sp,4)}, 0')
    a(f'''
    v_mov_b32 {V(T[2])}, 1
    v_mov_b32 {V(T[8])}, {FF}
    v_add_f32 {V(T[0])}, {V(DD)}, {V(DD+5)}
    v_add_f32 {V(T[1])}, {V(DD+10)}, {V(DD+15)}
    v_add_f32 {V(T[0])}, {V(T[0])}, {V(T[1])}
    ds_write_b32 {V(vFPW)}, {V(T[0])}
    s_mov_b64 exec, 1
    ds_write_b32 {V(vFFW)}, {V(T[2])}
    s_mov_b64 exec, -1
    ''')
    spin_init()
    a(f'L_hspin:\nds_read_b128 {V(T[4],4)}, {V(T[8])}')
    for i in range(4): a(f'ds_read_b32 {V(T[i])}, {V(vFPR)} offset:{i*320}')
    a(f'''
    s_waitcnt lgkmcnt(0)
    v_and_b32 {V(T[4])}, {V(T[4])}, {V(T[5])}
    v_and_b32 {V(T[6])}, {V(T[6])}, {V(T[7])}
    v_and_b32 {V(T[4])}, {V(T[4])}, {V(T[6])}
    v_cmp_eq_u32 vcc, 0, {V(T[4])}
    s_cbranch_vccz L_hok
    ''')
    spin_next('L_hspin')
    gq = T[4]
    a(f'''
    L_hok:
    v_add_f32 {V(T[0])}, {V(T[0])}, {V(T[1])}
    v_add_f32 {V(T[2])}, {V(T[2])}, {V(T[3])}
    v_add_f32 {V(T[0])}, {V(T[0])}, {V(T[2])}
    v_cvt_pk_bf16_f32 {V(T[0])}, {V(T[0])}, {V(T[0])}
    v_and_b32 {V(T[0])}, {S(sHI)}, {V(T[0])}
    v_mul_f32 {V(T[1])}, 0xbfb8aa3b, {V(T[0])}
    v_exp_f32 {V(T[1])}, {V(T[1])}
    v_mov_b32_dpp {V(T[2])}, {V(T[0])} row_ror:8 row_mask:0xf bank_mask:0xf
    v_add_f32 {V(T[1])}, 1.0, {V(T[1])}
    v_rcp_f32 {V(T[1])}, {V(T[1])}
    v_mov_b32 {V(gq+2)}, {S(sTAG)}
    v_mul_f32 {V(T[1])}, {V(T[0])}, {V(T[1])}
    v_cvt_pk_bf16_f32 {V(T[1])}, {V(T[1])}, {V(T[1])}
    v_and_b32 {V(T[1])}, {S(sHI)}, {V(T[1])}
    v_mul_f32 {V(T[1])}, {V(T[1])}, {V(T[2])}
    v_cvt_pk_bf16_f32 {V(T[1])}, {V(T[1])}, {V(T[1])}
    v_and_b32 {V(T[1])}, {S(sHI)}, {V(T[1])}
    v_mov_b32 {V(gq+3)}, 0
    ''')
    for i in range(8): a(f'v_readlane_b32 {S(sH8+i)}, {V(T[1])}, {i}')
    for i in range(8):
        for e in range(2):
            if i == 0: a(f'v_mul_f32 {V(gq+e)}, {S(sH8)}, {V(WDF+e)}')
            else: a(f'v_fmac_f32 {V(gq+e)}, {S(sH8+i)}, {V(WDF+2*i+e)}')
    a(f'global_store_dwordx4 {V(vFPA)}, {V(gq,4)}, {S(sWS,2)} sc1')
    stamp(10)
    a('L_h_b5:\ns_barrier')
    YR = vP
    for c in range(4): a(f'ds_read_b128 {V(YR+4*c,4)}, {V(vY)} offset:{c*YCS}')
    if o['b6']:
        a(f'''
        s_lshr_b32 {S(sT0)}, {S(sWI)}, 1
        s_and_b32 {S(sT1)}, {S(sT0)}, {S(sOWN)}
        s_andn2_b32 {S(sT2)}, {S(sOWN)}, {S(sT0)}
        s_cmp_eq_u32 {S(sT1)}, 0
        s_cbranch_scc1 L_h_st
        s_barrier
        L_h_st:
        ''')
    a('s_waitcnt lgkmcnt(0)')
    for r in range(4):
        for c in range(4):
            a(f'v_fma_f32 {V(vE+4*r+c)}, {V(YR+4*c+r)}, {V(vXN+4*r+c)}, {V(vE+4*r+c)}')
        a(f'''
        v_cvt_pk_bf16_f32 {V(vD+2*r)}, {V(vE+4*r)}, {V(vE+4*r+1)}
        v_cvt_pk_bf16_f32 {V(vD+2*r+1)}, {V(vE+4*r+2)}, {V(vE+4*r+3)}
        s_mov_b64 exec, {S(sM+2*r,2)}
        global_store_dwordx2 {V(vXG)}, {V(vD+2*r,2)}, {S(sOUT,2)} offset:{r*1024}
        s_mov_b64 exec, -1
        ''')
    if o['b6']:
        a(f'''
        s_cmp_eq_u32 {S(sT2)}, 0
        s_cbranch_scc1 L_h_done
        s_waitcnt vmcnt({o['b6cnt']})
        s_barrier
        L_h_done:
        ''')
    if o['stamp'] or o['diag'] >= 0:
        stamp(11)
        a('s_waitcnt vmcnt(0)')
        stamp(12)
    if o['diag'] >= 0:
        a('''
        s_memrealtime s[90:91]
        s_sub_u32 s88, s88, s86
        s_min_u32 s88, s88, 2000
        s_lshl_b32 s88, s88, 2
        s_waitcnt lgkmcnt(0)
        s_add_u32 s88, s88, s90
        L_diag:
        s_memrealtime s[90:91]
        s_waitcnt lgkmcnt(0)
        s_sub_u32 s90, s90, s88
        s_cmp_lt_i32 s90, 0
        s_cbranch_scc1 L_diag
        ''')
    a('L_exit:')
    if o['stamp']:
        a('v_mov_b32 v254, 0')
        for i in range(14): a(f'v_writelane_b32 v254, s{86+i}, {i}')
        a(f'global_store_dword {V(vSTA)}, v254, {S(sWS,2)}')
    a('L_end:\ns_endpgm')
    a.raw('''.section .rodata,"a"
.p2align 6
.amdhsa_kernel %s_kernel
  .amdhsa_next_free_vgpr 256
  .amdhsa_next_free_sgpr 102
  .amdhsa_accum_offset 256
  .amdhsa_group_segment_fixed_size 0
  .amdhsa_kernarg_size 136
  .amdhsa_user_sgpr_count 2
  .amdhsa_user_sgpr_kernarg_segment_ptr 1
  .amdhsa_system_sgpr_workgroup_id_x 1
.end_amdhsa_kernel''' % KN)
    return a.text()


if __name__ == '__main__':
    out = sys.argv[1]
    opt = {}
    for kv in sys.argv[2:]:
        k, val = kv.split('='); opt[k] = int(val, 0)
    open(out, 'w').write(generate(**opt))
```

```python
import sys
from asmlib import *

KN = 'recurrent_scan__ssm_conv_s4__moe_arch_mod__prompt'

DEFAULTS = dict(stamp=0, cyc=0, force_slow=0, prefetch=1, wpf=1, spinmax=1 << 16, diag=-1,
                maxout=15, group=3, minfly=6, b6=1, b6cnt=1, nb=6, wdearly=0, wpfb3=1, hnormfirst=1, ffnprio=2, tlb=0, tlbsh=16, wnt=0, xnt=0, pnt=0)

RS = 2064
STAGE = 0
R4 = 0; R4S = 18560; CAS = 288
YX = 74240; YCS = 5120; YTS = 1280; YGS = 320
U = 109440; US = 4576
TAB = 127744; TS = 1552
WL = 133952; WL1 = 8320
SL = 150528
AM = 158720
FF = 158752
TG = 158768
PF = 158784
FP = 158848
LDS_BYTES = 159872
W_ST = 0x1000; W_FL = 0x6000; W_FP = 0x10000; W_IN = 0x100000; W_STAMP = 0x800000

sX, sARE, sAIM, sBRE, sBIM, sCRE, sCIM, sLDT = 4, 6, 8, 10, 12, 14, 16, 18
sDSK, sWR, sWG, sWU, sWD, sOUT, sDBG, sWS = 20, 24, 26, 28, 30, 32, 34, 36
sW, sK, sJ, sCGL, sH, sCH0, sT, sXCC, sTAG, sTAGX = 38, 39, 40, 41, 42, 43, 44, 45, 46, 47
sPB, sDS = 48, 50
sONES, sF8, sPROD, sIDX, sKEY, sCNT = 52, 53, 54, 55, 56, 57
sT0, sT1, sT2, sT3 = 58, 59, 60, 61
sOWN, sINB = 62, 63
sM = 64
sH8 = 72
sHI = 80
sSTP = 82
sWI = 84

vL = 1
vGA = 2
vSEL = 10
vR4W, vUW, vST0, vST1, vFL, vIN, vXG, vXC = 16, 17, 18, 19, 20, 21, 22, 23
vKA, vKB, vPD, vY = 24, 25, 26, 27
vA0, vA1, vA2, vA3, vA4, vA5, vA6, vA7 = 28, 29, 30, 31, 32, 33, 34, 35
vEP, vPFD, vROW, vSTA = 36, 37, 38, 39
vD = 40
vG = 48
vXF = 56
vXN = 72
vE = 88
vP = 104
vB0, vB1, vB2, vB3, vB4, vB5 = 224, 225, 226, 227, 228, 229
vWD = 232
vT = 240
vCA, vCA2, vCB, vFLO = vA0, vA1, vA2, vA3
vTW1, vTW2, vTW3, vTW4, vWT, vWDA, vFPA, vXS = vA0, vA1, vA2, vA3, vA4, vA5, vA6, vA7
vWS0, vWS1, vFPW, vFPR, vFFW, vSTP = vB0, vB1, vB2, vB3, vB4, vB5
vPFA, vPFW = 230, 231
vTLB = 223


def tiles(h): return [2 * i + ((i ^ h) & 1) for i in range(4)]


def generate(**opt):
    o = dict(DEFAULTS); o.update(opt)
    a = Asm()
    V = v; S = s

    def stamp(i):
        if o['diag'] == i:
            a('s_memrealtime s[88:89]\ns_waitcnt lgkmcnt(0)')
        if not o['stamp']: return
        a(f"{'s_memtime' if o['cyc'] else 's_memrealtime'} {S(sSTP,2)}\ns_waitcnt lgkmcnt(0)\ns_mov_b32 s{86+i}, {S(sSTP)}")

    def cmul(d, x, y):
        a(f'v_pk_mul_f32 {V(d,2)}, {V(x,2)}, {V(y,2)} op_sel:[1,1] op_sel_hi:[1,0]')
        a(f'v_pk_fma_f32 {V(d,2)}, {V(x,2)}, {V(y,2)}, {V(d,2)} op_sel:[0,0,0] op_sel_hi:[0,1,1] neg_lo:[0,0,1]')

    def lane63(): a('s_mov_b32 exec_lo, 0\ns_mov_b32 exec_hi, 0x80000000')
    def alllanes(): a('s_mov_b64 exec, -1')
    def spin_init(): a(f"s_mov_b32 {S(sCNT)}, {o['spinmax']}")
    def spin_next(lbl): a(f's_sub_u32 {S(sCNT)}, {S(sCNT)}, 1\ns_cmp_lg_u32 {S(sCNT)}, 0\ns_cbranch_scc1 {lbl}')

    def ssum(dst, *terms):
        first = True; const = 0
        for t in terms:
            if isinstance(t, int): const += t; continue
            r, sh = t
            if first:
                a(f's_lshl_b32 {S(dst)}, {S(r)}, {sh}' if sh else f's_mov_b32 {S(dst)}, {S(r)}'); first = False
            elif sh:
                a(f's_lshl_b32 {S(sT3)}, {S(r)}, {sh}\ns_add_u32 {S(dst)}, {S(dst)}, {S(sT3)}')
            else:
                a(f's_add_u32 {S(dst)}, {S(dst)}, {S(r)}')
        if const: a(f's_add_u32 {S(dst)}, {S(dst)}, {const}')

    def smul(dst, r, k, const=0):
        a(f's_mul_i32 {S(dst)}, {S(r)}, {k}')
        if const: a(f's_add_u32 {S(dst)}, {S(dst)}, {const}')

    T = [vT + i for i in range(16)]

    a.raw('; @launch grid=(256,1,1) block=(512,1,1) lds=%d' % LDS_BYTES)
    a.raw('.amdgcn_target "amdgcn-amd-amdhsa--gfx950"\n.text\n.globl %s_kernel\n.p2align 8\n.type %s_kernel,@function\n%s_kernel:' % (KN, KN, KN))
    a('''
    s_cmp_ge_u32 s2, 256
    s_cbranch_scc1 L_end
    s_load_dwordx16 s[4:19], s[0:1], 0
    s_load_dwordx16 s[20:35], s[0:1], 64
    s_load_dwordx2 s[36:37], s[0:1], 128
    ''')
    if o['diag'] >= 0: a('s_memrealtime s[86:87]')
    if o['stamp']: a(f"{'s_memtime' if o['cyc'] else 's_memrealtime'} s[100:101]")
    a(f'''
    v_lshrrev_b32 {V(T[0])}, 6, v0
    v_and_b32 {V(vL)}, 63, v0
    v_readfirstlane_b32 {S(sW)}, {V(T[0])}
    s_and_b32 {S(sK)}, s2, 7
    s_lshr_b32 {S(sJ)}, s2, 3
    s_and_b32 {S(sCGL)}, {S(sJ)}, 15
    s_lshr_b32 {S(sH)}, {S(sJ)}, 4
    s_and_b32 {S(sWI)}, {S(sW)}, 3
    ''')
    ssum(sCH0, (sK, 6), (sCGL, 2))
    for i in range(7): a(f'v_mov_b32 {V(vP+i)}, 0')
    a(f's_add_u32 {S(sT1)}, {S(sCH0)}, {S(sWI)}')
    a(f's_lshr_b32 {S(sT2)}, {S(sW)}, 2')
    ssum(sT0, (sT1, 8), (sT2, 7))
    a(f'v_lshl_add_u32 {V(T[1])}, {V(vL)}, 1, {S(sT0)}')
    a(f's_lshl_b32 {S(sT1)}, {S(sT1)}, 1')
    a(f'v_mov_b32 {V(T[2])}, {S(sT1)}')
    if o['stamp']:
        ssum(sT1, (2, 11), (sW, 8), W_STAMP)
        a(f'v_lshl_add_u32 {V(vSTA)}, {V(vL)}, 2, {S(sT1)}')
        for i in range(14): a(f's_mov_b32 s{86+i}, 0')

    def param_loads():
        for i, p in enumerate((sARE, sAIM, sBRE, sBIM, sCRE, sCIM)):
            a(f"global_load_short_d16_hi {V(vP+i)}, {V(T[1])}, {S(p,2)}{' nt' if o['pnt'] else ''}")
        a(f'global_load_short_d16_hi {V(vP+6)}, {V(T[2])}, {S(sLDT,2)}')

    a(f's_cmp_ge_u32 {S(sW)}, 4\ns_cbranch_scc1 L_h_load')
    ssum(sT0, (sJ, 16), (sW, 14), (sK, 7))
    a(f'''
    v_lshrrev_b32 {V(T[3])}, 3, {V(vL)}
    v_and_b32 {V(T[4])}, 7, {V(vL)}
    v_lshlrev_b32 {V(T[3])}, 10, {V(T[3])}
    v_lshl_add_u32 {V(T[3])}, {V(T[4])}, 4, {V(T[3])}
    v_add_u32 {V(T[3])}, {S(sT0)}, {V(T[3])}
    v_add_u32 {V(T[4])}, 8192, {V(T[3])}
    s_waitcnt lgkmcnt(0)
    ''')
    if o['stamp']: a('s_mov_b32 s99, s100')
    if o['diag'] >= 0: a('s_mov_b32 s88, s86')
    stamp(0)
    XNT = ' nt' if o['xnt'] else ''
    a(f'global_load_dwordx4 {V(vD,4)}, {V(T[3])}, {S(sX,2)}{XNT}')
    a(f'global_load_dwordx4 {V(vD+4,4)}, {V(T[4])}, {S(sX,2)}{XNT}')
    param_loads()
    a('s_branch L_init')
    a('L_h_load:')
    ssum(sT0, (2, 13), (sWI, 11))
    a(f'''
    v_and_b32 {V(T[3])}, 31, {V(vL)}
    v_lshlrev_b32 {V(T[3])}, 4, {V(T[3])}
    v_lshrrev_b32 {V(T[4])}, 5, {V(vL)}
    v_lshl_add_u32 {V(T[4])}, {V(T[4])}, 10, {V(T[3])}
    v_add_u32 {V(T[4])}, {S(sT0)}, {V(T[4])}
    v_mov_b32 {V(T[5])}, 0
    s_setprio 2
    s_waitcnt lgkmcnt(0)
    ''')
    if o['stamp']: a('s_mov_b32 s99, s100')
    if o['diag'] >= 0: a('s_mov_b32 s88, s86')
    stamp(0)
    a(f'''
    global_load_dwordx4 {V(vG,4)}, {V(T[3])}, {S(sWR,2)}
    global_load_dwordx4 {V(vG+4,4)}, {V(T[3])}, {S(sWR,2)} offset:512
    global_load_dwordx4 {V(vD,4)}, {V(T[4])}, {S(sX,2)}{XNT}
    global_load_dwordx4 {V(vD+4,4)}, {V(T[4])}, {S(sX,2)} offset:512{XNT}
    global_load_dword {V(vEP)}, {V(T[5])}, {S(sWS,2)} sc1
    ''')
    param_loads()

    a('L_init:')
    if o['tlb']:
        a.comment('touch the pages that are first needed late, so their translations are fetched during the start-up wait')
        sh = o['tlbsh']
        a(f'v_lshlrev_b32 {V(T[11])}, {sh}, {V(vL)}')
        for w, base, size in ((0, sWG, 1409024), (1, sWU, 1409024), (2, sWD, 1409024), (3, sOUT, 2097152), (4, sWS, 0x300000)):
            n = min(64, (size + (1 << sh) - 1) >> sh)
            a(f's_cmp_lg_u32 {S(sW)}, {w}\ns_cbranch_scc1 L_tlb{w}')
            a(f's_bfm_b64 exec, {n}, 0' if n < 64 else 's_nop 0')
            a(f'global_load_dword {V(vTLB)}, {V(T[11])}, {S(base,2)}')
            a(f's_mov_b64 exec, -1\ns_branch L_tlbx\nL_tlb{w}:')
        a(f's_mov_b64 exec, 1\nglobal_load_dword {V(vTLB)}, {V(T[11])}, {S(sX,2)}\ns_mov_b64 exec, -1')
        a('L_tlbx:')
    a(f'''
    v_mov_b32 {V(T[6])}, 0
    v_mov_b32 {V(T[7])}, 0x3f80
    s_lshl_b32 {S(sT0)}, {S(sW)}, 8
    s_mov_b32 m0, {S(sT0)}
    v_and_b32 {V(T[8])}, 127, v0
    ds_write_addtid_b32 {V(T[7])} offset:{STAGE}
    v_min_u32 {V(T[8])}, 119, {V(T[8])}
    v_lshrrev_b32 {V(T[9])}, 7, v0
    v_mul_u32_u24 {V(T[10])}, {US}, {V(T[9])}
    v_lshl_add_u32 {V(T[10])}, {V(T[8])}, 2, {V(T[10])}
    v_add_u32 {V(T[10])}, {U}, {V(T[10])}
    ds_write_b32 {V(T[10])}, {V(T[6])}
    s_cmp_lg_u32 {S(sW)}, 0
    s_cbranch_scc1 L_init2
    v_bfe_u32 {V(T[9])}, {V(vL)}, 1, 2
    v_mul_u32_u24 {V(T[9])}, {TS}, {V(T[9])}
    v_and_b32 {V(T[8])}, 1, {V(vL)}
    v_lshl_add_u32 {V(T[9])}, {V(T[8])}, 2, {V(T[9])}
    v_add_u32 {V(T[9])}, {TAB}, {V(T[9])}
    v_and_b32 {V(T[8])}, 15, {V(vL)}
    v_lshlrev_b32 {V(T[8])}, 2, {V(T[8])}
    v_add_u32 {V(T[8])}, {FF}, {V(T[8])}
    s_mov_b64 exec, 0xffff
    ds_write_b32 {V(T[9])}, {V(T[6])}
    ds_write_b32 {V(T[8])}, {V(T[6])}
    s_mov_b64 exec, -1
    L_init2:
    s_waitcnt lgkmcnt(0)
    s_barrier
    s_lshl_b32 {S(sT0)}, {S(sCH0)}, 1
    s_load_dwordx2 {S(sDS,2)}, {S(sDSK,2)}, {S(sT0)}
    s_getreg_b32 {S(sXCC)}, hwreg(HW_REG_XCC_ID, 0, 4)
    s_mov_b32 {S(sONES)}, 0x3f803f80
    s_mov_b32 {S(sHI)}, 0xffff0000
    s_lshr_b32 {S(sT0)}, {S(sW)}, 2
    s_xor_b32 {S(sT0)}, {S(sT0)}, {S(sWI)}
    s_xor_b32 {S(sT0)}, {S(sT0)}, {S(sH)}
    s_xor_b32 {S(sT0)}, {S(sT0)}, 1
    s_and_b32 {S(sT0)}, {S(sT0)}, 1
    s_lshl_b32 {S(sT)}, {S(sWI)}, 1
    s_add_u32 {S(sT)}, {S(sT)}, {S(sT0)}
    s_lshr_b32 {S(sT0)}, {S(sJ)}, 3
    s_and_b32 {S(sT1)}, {S(sJ)}, 7
    ''')
    ssum(sF8, (sT0, 6), (sK, 3), (sT1, 0))
    a(f'''
    s_cmp_lt_u32 {S(sF8)}, 172
    s_cselect_b32 {S(sPROD)}, 1, 0
    s_cselect_b32 {S(sF8)}, {S(sF8)}, {S(sJ)}
    ''')

    pos = [vXF + i for i in range(7)]
    a(f'v_lshlrev_b32 {V(T[0])}, 2, v0')
    a(f's_cmp_eq_u32 {S(sW)}, 0\ns_cbranch_scc1 L_pos0')
    for i in range(7): a(f'v_add_u32 {V(pos[i])}, {i-3}, {V(T[0])}')
    for i in range(7): a(f'v_cvt_f32_u32 {V(pos[i])}, {V(pos[i])}')
    for i in range(0, 7, 2):
        j = min(i + 1, 6)
        a(f'v_cvt_pk_bf16_f32 {V(T[8+i//2])}, {V(pos[i])}, {V(pos[j])}')
    a(f'v_mov_b32 {V(T[1])}, {4 - 0x4280}')
    for i in range(7):
        a(f'v_bfe_u32 {V(pos[i])}, {V(T[8+i//2])}, {16*(i&1)}, 16')
        a(f'v_add_u32 {V(pos[i])}, {V(T[1])}, {V(pos[i])}')
    a('s_branch L_pos_done')
    a('L_pos0:')
    for i in range(7): a(f'v_add_u32 {V(pos[i])}, {i+1}, {V(T[0])}')
    a('L_pos_done:')
    b1, b2 = T[1], T[2]
    a(f'''
    v_and_b32 {V(b1)}, -2, {V(pos[2])}
    v_add_u32 {V(b1)}, -2, {V(b1)}
    v_and_b32 {V(b2)}, -2, {V(pos[3])}
    v_add_u32 {V(T[3])}, {V(b1)}, {V(b1)}
    v_add_u32 {V(T[4])}, {V(b2)}, {V(b2)}
    ''')
    for c in range(4):
        a(f'v_add_u32 {V(vGA+2*c)}, {TAB + c*TS}, {V(T[3])}')
        a(f'v_add_u32 {V(vGA+2*c+1)}, {TAB + c*TS}, {V(T[4])}')
    for i in range(3): a(f'v_sub_u32 {V(pos[i])}, {V(pos[i])}, {V(b1)}')
    for i in range(3, 7): a(f'v_sub_u32 {V(pos[i])}, {V(pos[i])}, {V(b2)}')
    a(f's_movk_i32 {S(sT0)}, 0x0202\nv_mov_b32 {V(T[3])}, 0x0100')
    for i in range(7): a(f'v_mad_u32_u24 {V(pos[i])}, {V(pos[i])}, {S(sT0)}, {V(T[3])}')
    for dst, lo, hi in ((0, 1, 0), (1, 2, 1), (2, 3, 2), (3, 4, 3), (4, 5, 4), (5, 6, 5)):
        a(f'v_lshl_or_b32 {V(vSEL+dst)}, {V(pos[hi])}, 16, {V(pos[lo])}')
    a(f'v_add_u32 {V(vSEL+2)}, 0x{(2*0x0202 - 2*0x02020000) & 0xffffffff:x}, {V(vSEL+2)}')
    a(f'''
    v_and_b32 {V(T[0])}, -4, v0
    v_lshlrev_b32 {V(T[0])}, 2, {V(T[0])}
    v_lshl_add_u32 {V(vR4W)}, v0, 5, {V(T[0])}
    v_add_u32 {V(vR4W)}, {R4 + 144}, {V(vR4W)}
    ''')
    a(f's_lshl_b32 {S(sT0)}, {S(sT)}, 6')
    a(f'v_add_u32 {V(T[0])}, {S(sT0)}, {V(vL)}')
    ssum(sINB, (sK, 18), (sCGL, 14), W_IN)
    ssum(sT1, (sK, 9), W_FL)
    ssum(sT2, (sK, 5), W_ST + 12)
    a(f'''
    v_lshlrev_b32 {V(vROW)}, 2, {V(T[0])}
    v_lshlrev_b32 {V(vUW)}, 3, {V(T[0])}
    v_add_u32 {V(vUW)}, {U + 480}, {V(vUW)}
    v_lshlrev_b32 {V(vST0)}, 4, {V(T[0])}
    v_add_u32 {V(vST1)}, {W_ST + 8192}, {V(vST0)}
    v_add_u32 {V(vST0)}, {W_ST}, {V(vST0)}
    s_lshl_b32 {S(sT0)}, {S(sCH0)}, 1
    v_lshl_add_u32 {V(vXG)}, {V(T[0])}, 12, {S(sT0)}
    v_lshrrev_b32 {V(T[1])}, 2, {V(T[0])}
    v_lshl_add_u32 {V(vFL)}, {V(T[1])}, 2, {S(sT1)}
    v_and_b32 {V(T[2])}, 3, {V(vL)}
    v_lshl_add_u32 {V(T[2])}, {V(T[2])}, 4, {S(sINB)}
    v_lshl_add_u32 {V(vIN)}, {V(T[1])}, 7, {V(T[2])}
    v_lshrrev_b32 {V(T[1])}, 4, {V(T[0])}
    v_lshl_add_u32 {V(vXC)}, {V(T[1])}, 8, {S(sT2)}
    ''')
    smul(sT1, sWI, US, U + 480)
    a(f'''
    v_and_b32 {V(T[0])}, 31, {V(vL)}
    v_lshrrev_b32 {V(T[1])}, 5, {V(vL)}
    s_lshl_b32 {S(sT0)}, {S(sW)}, 8
    v_lshl_add_u32 {V(T[2])}, {V(T[1])}, 4, {S(sT0)}
    s_movk_i32 {S(sT0)}, {RS}
    v_mad_u32_u24 {V(vKB)}, {V(T[0])}, {S(sT0)}, {V(T[2])}
    v_add_u32 {V(T[3])}, -16, {V(T[0])}
    v_cmp_lt_u32 vcc, 20, {V(T[0])}
    v_lshl_add_u32 {V(vPD)}, {V(vL)}, 4, {S(sT1)}
    v_cndmask_b32 {V(T[3])}, {V(T[0])}, {V(T[3])}, vcc
    v_mad_u32_u24 {V(vKA)}, {V(T[3])}, {S(sT0)}, {V(T[2])}
    v_add_u32 {V(vKA)}, {STAGE + 32*RS}, {V(vKA)}
    v_and_b32 {V(T[5])}, 15, {V(vL)}
    v_lshrrev_b32 {V(T[6])}, 4, {V(vL)}
    s_cmp_ge_u32 {S(sW)}, 4
    s_cbranch_scc1 L_h_setup
    ''')

    smul(sT0, sW, R4S, R4)
    a(f'v_lshlrev_b32 {V(T[3])}, 3, {V(T[6])}\nv_sub_u32 {V(T[3])}, {V(T[5])}, {V(T[3])}')
    for reg, k in ((vCA, 32), (vCA2, 28)):
        a(f'''
        v_add_u32 {V(T[4])}, {k}, {V(T[3])}
        v_lshrrev_b32 {V(T[7])}, 4, {V(T[4])}
        v_lshl_add_u32 {V(reg)}, {V(T[4])}, 3, {S(sT0)}
        v_lshl_add_u32 {V(reg)}, {V(T[7])}, 4, {V(reg)}
        ''')
    smul(sT0, sW, US, U)
    a(f'''
    v_lshl_add_u32 {V(T[3])}, {V(T[6])}, 4, {S(sT0)}
    v_lshl_add_u32 {V(vCB)}, {V(T[5])}, 5, {V(T[3])}
    ''')
    smul(sT0, sW, YCS, YX)
    a(f'''
    v_mul_u32_u24 {V(T[3])}, {YGS}, {V(T[6])}
    v_lshl_add_u32 {V(T[3])}, {V(T[5])}, 4, {V(T[3])}
    v_add_u32 {V(vY)}, {S(sT0)}, {V(T[3])}
    ''')
    slw, slw1, slr, slr1, ina, ina1, tga, pfa_c = [vXN + i for i in range(8)]
    ssum(sT0, (sW, 11), SL)
    a(f'''
    v_lshrrev_b32 {V(T[0])}, 3, {V(vL)}
    v_and_b32 {V(T[1])}, 7, {V(vL)}
    v_xor_b32 {V(T[2])}, {V(T[6])}, {V(T[1])}
    v_lshl_add_u32 {V(T[2])}, {V(T[2])}, 4, {S(sT0)}
    v_lshl_add_u32 {V(slw)}, {V(T[0])}, 7, {V(T[2])}
    v_xor_b32 {V(slw1)}, 64, {V(slw)}
    v_and_b32 {V(T[2])}, 3, {V(vL)}
    v_bfe_u32 {V(T[3])}, {V(vL)}, 2, 1
    v_lshl_add_u32 {V(T[2])}, {V(T[2])}, 1, {V(T[3])}
    v_xor_b32 {V(T[3])}, {V(T[6])}, {V(T[2])}
    v_lshl_add_u32 {V(T[3])}, {V(T[3])}, 4, {S(sT0)}
    v_lshl_add_u32 {V(T[3])}, {V(T[2])}, 8, {V(T[3])}
    v_and_b32 {V(T[4])}, 1, {V(T[0])}
    v_lshl_add_u32 {V(slr)}, {V(T[4])}, 3, {V(T[3])}
    v_xor_b32 {V(slr1)}, 64, {V(slr)}
    ''')
    ssum(sT0, (sK, 18), (sJ, 9), (sW, 7), W_IN)
    a(f'''
    v_lshl_add_u32 {V(T[1])}, {V(T[1])}, 4, {S(sT0)}
    v_lshl_add_u32 {V(ina)}, {V(T[0])}, 14, {V(T[1])}
    v_add_u32 {V(ina1)}, 0x20000, {V(ina)}
    ''')
    ssum(sT0, (sK, 9), (sJ, 4), (sW, 2), W_FL)
    a(f'v_mov_b32 {V(vFLO)}, {S(sT0)}')
    ssum(sT0, (sW, 2), TG)
    a(f'v_mov_b32 {V(tga)}, {S(sT0)}')
    for r in (vA4, vA5, vA6, vA7, vB0, vB1, vB5, vPFA): a(f'v_mov_b32 {V(r)}, 4096')
    a(f's_mov_b64 {S(sPB,2)}, {S(sWD,2)}')
    a(f"s_waitcnt vmcnt({7 + o['tlb']})")
    stamp(1)
    a(f'''
    ds_write_b128 {V(slw)}, {V(vD,4)}
    ds_write_b128 {V(slw1)}, {V(vD+4,4)} offset:1024
    ds_read_b64 {V(vG,2)}, {V(slr)}
    ds_read_b64 {V(vG+2,2)}, {V(slr)} offset:128
    ds_read_b64 {V(vG+4,2)}, {V(slr1)}
    ds_read_b64 {V(vG+6,2)}, {V(slr1)} offset:128
    s_waitcnt lgkmcnt(0)
    global_store_dwordx4 {V(ina)}, {V(vG,4)}, {S(sWS,2)}
    global_store_dwordx4 {V(ina1)}, {V(vG+4,4)}, {S(sWS,2)}
    s_waitcnt vmcnt({2 + o['tlb']})
    s_branch L_kgen
    ''')

    a('L_h_setup:')
    smul(sT0, sWI, YTS, YX)
    a(f'''
    v_and_b32 {V(T[2])}, 3, {V(vL)}
    v_lshrrev_b32 {V(T[3])}, 2, {V(vL)}
    v_mul_u32_u24 {V(T[2])}, {YGS}, {V(T[2])}
    v_lshl_add_u32 {V(T[2])}, {V(T[3])}, 4, {V(T[2])}
    v_add_u32 {V(vY)}, {S(sT0)}, {V(T[2])}
    ''')
    smul(sT0, sWI, TS, TAB + 8)
    a(f'''
    v_lshl_add_u32 {V(T[2])}, {V(T[1])}, 3, {S(sT0)}
    v_lshl_add_u32 {V(vTW1)}, {V(T[0])}, 4, {V(T[2])}
    v_sub_u32 {V(T[2])}, 3, {V(T[1])}
    v_lshlrev_b32 {V(T[2])}, {V(T[2])}, {V(T[0])}
    v_lshl_add_u32 {V(T[3])}, {V(T[1])}, 8, {S(sT0)}
    v_add_u32 {V(T[3])}, 512, {V(T[3])}
    v_add_u32 {V(vTW2)}, {V(T[2])}, {V(T[3])}
    v_mul_u32_u24 {V(T[2])}, 124, {V(T[1])}
    v_add3_u32 {V(vTW3)}, {V(vTW2)}, {V(T[2])}, 4
    v_lshl_add_u32 {V(vTW4)}, {V(T[0])}, 1, {V(T[3])}
    v_add_u32 {V(vTW4)}, 512, {V(vTW4)}
    ''')
    ssum(sT0, (sWI, 11), WL)
    a(f'''
    v_lshrrev_b32 {V(T[2])}, 2, {V(T[5])}
    v_lshl_add_u32 {V(T[2])}, {V(T[6])}, 2, {V(T[2])}
    v_bfe_u32 {V(T[3])}, {V(vL)}, 1, 1
    v_mul_u32_u24 {V(T[3])}, {WL1}, {V(T[3])}
    v_lshl_add_u32 {V(T[2])}, {V(T[2])}, 4, {V(T[3])}
    v_and_b32 {V(T[3])}, 1, {V(vL)}
    v_lshl_add_u32 {V(T[2])}, {V(T[3])}, 3, {V(T[2])}
    v_add_u32 {V(vWT)}, {S(sT0)}, {V(T[2])}
    s_lshl_b32 {S(sT0)}, {S(sWI)}, 7
    v_add_u32 {V(T[2])}, {S(sT0)}, {V(vL)}
    s_lshl_b32 {S(sT1)}, {S(sF8)}, 4
    v_mul_u32_u24 {V(T[2])}, 2752, {V(T[2])}
    v_add_u32 {V(vWS0)}, {S(sT1)}, {V(T[2])}
    v_add_u32 {V(vWS1)}, {64*2752}, {V(vWS0)}
    v_and_b32 {V(T[2])}, 255, v0
    ''')
    ssum(sT0, (sF8, 13), 4096)
    ssum(sT1, (sF8, 5), W_FP)
    a(f'''
    v_lshl_add_u32 {V(vWDA)}, {V(T[2])}, 2, {S(sT0)}
    v_lshrrev_b32 {V(T[4])}, 1, {V(T[2])}
    v_mul_u32_u24 {V(T[4])}, 6144, {V(T[4])}
    v_lshl_add_u32 {V(T[4])}, {V(T[3])}, 4, {V(T[4])}
    v_add_u32 {V(vFPA)}, {S(sT1)}, {V(T[4])}
    v_lshlrev_b32 {V(T[2])}, 3, {V(T[6])}
    v_lshl_add_u32 {V(vXS)}, {V(T[5])}, 6, {V(T[2])}
    ''')
    ssum(sT0, (sWI, 8), FP)
    ssum(sT1, (sWI, 2), FF)
    a(f'''
    v_lshl_add_u32 {V(vFPW)}, {V(vL)}, 2, {S(sT0)}
    v_lshlrev_b32 {V(vFPR)}, 2, {V(T[5])}
    v_add_u32 {V(vFPR)}, {FP}, {V(vFPR)}
    v_mov_b32 {V(vFFW)}, {S(sT1)}
    s_lshr_b32 {S(sT1)}, {S(sWI)}, 1
    s_and_b32 {S(sT2)}, {S(sWI)}, 1
    ''')
    ssum(sT0, (2, 5), (sT1, 4), (sT2, 13), W_ST)
    a(f'v_mov_b32 {V(vSTP)}, {S(sT0)}')
    rk = vXN
    ssum(sT0, (2, 3), (sWI, 1))
    a(f'''
    s_sub_u32 {S(sT0)}, 0xffff, {S(sT0)}
    v_sub_u32 {V(rk)}, {S(sT0)}, {V(T[1])}
    ''')
    pfi = vXN + 1; pfa = vPFA
    ssum(sT0, (sH, 13), (sWI, 11), (sINB, 0))
    a(f'v_lshl_add_u32 {V(pfi)}, {V(T[5])}, 7, {S(sT0)}')
    a(f'''
    s_lshl_b32 {S(sT0)}, {S(sF8)}, 13
    v_lshl_add_u32 {V(pfa)}, {V(vL)}, 7, {S(sT0)}
    s_mov_b64 {S(sPB,2)}, {S(sWD,2)}
    s_cmp_eq_u32 {S(sWI)}, 3
    s_cbranch_scc1 L_pf_done
    s_mov_b64 {S(sPB,2)}, {S(sWG,2)}
    s_bitcmp1_b32 {S(sJ)}, 0
    s_cbranch_scc0 L_pf_gate
    s_mov_b64 {S(sPB,2)}, {S(sWU,2)}
    L_pf_gate:
    s_lshr_b32 {S(sT1)}, {S(sJ)}, 1
    s_lshl_b32 {S(sT1)}, {S(sT1)}, 5
    v_lshrrev_b32 {V(T[2])}, 1, {V(vL)}
    v_add_u32 {V(T[2])}, {S(sT1)}, {V(T[2])}
    v_mul_u32_u24 {V(T[2])}, 2752, {V(T[2])}
    v_mul_u32_u24 {V(T[3])}, 124, {V(T[3])}
    ''')
    ssum(sT0, (sWI, 10), (sK, 7))
    a(f'''
    s_min_u32 {S(sT0)}, {S(sT0)}, 2624
    v_add3_u32 {V(pfa)}, {V(T[2])}, {V(T[3])}, {S(sT0)}
    L_pf_done:
    ''')
    S1, S2, S3, S4 = vXF, vXF + 1, vXF + 2, vXF + 3

    def red32(regs):
        for m in ('row_shr:1', 'row_shr:2', 'row_shr:4', 'row_shr:8'):
            for r in regs: a(f'v_add_f32_dpp {V(r)}, {V(r)}, {V(r)} {m} row_mask:0xf bank_mask:0xf')
        for r in regs: a(f'v_add_f32_dpp {V(r)}, {V(r)}, {V(r)} row_bcast:15 row_mask:0xa bank_mask:0xf')
    for r in (S1, S2, S3, S4): a(f'v_mov_b32 {V(r)}, 0')
    e2 = o['tlb'] + (1 if o['wpf'] == 2 else 0)
    if o['wpf'] == 2: a(f'global_load_dword {V(vPFW)}, {V(vPFA)}, {S(sPB,2)} nt')
    a(f's_waitcnt vmcnt({10 + e2})')
    for i in range(8): a(f'v_dot2_f32_bf16 {V(S4)}, {V(vG+i)}, {S(sONES)}, {V(S4)}')
    red32([S4])
    a(f's_waitcnt vmcnt({8 + e2})')
    stamp(1)
    nlate = e2
    if o['prefetch']:
        a('s_mov_b64 exec, 0xffff')
        a(f'global_load_dword {V(vPFD)}, {V(pfi)}, {S(sWS,2)} nt'); nlate += 1
        alllanes()
    for i in range(8):
        a(f'v_dot2_f32_bf16 {V(S1)}, {V(vD+i)}, {S(sONES)}, {V(S1)}')
        a(f'v_dot2_f32_bf16 {V(S2)}, {V(vD+i)}, {V(vD+i)}, {V(S2)}')
        a(f'v_dot2_f32_bf16 {V(S3)}, {V(vD+i)}, {V(vG+i)}, {V(S3)}')
    red32([S1, S2, S3])
    t = T[0]; g = vE
    a(f'''
    v_mul_f32 {V(S1)}, 0x3b000000, {V(S1)}
    v_mul_f32 {V(S2)}, 0x3b000000, {V(S2)}
    s_waitcnt vmcnt({7 + nlate})
    v_fma_f32 {V(S2)}, -{V(S1)}, {V(S1)}, {V(S2)}
    v_readfirstlane_b32 {S(sTAG)}, {V(vEP)}
    v_max_f32 {V(S2)}, 0, {V(S2)}
    v_cvt_pk_bf16_f32 {V(t)}, {V(S1)}, {V(S2)}
    s_add_u32 {S(sTAG)}, {S(sTAG)}, 16
    v_and_b32 {V(t)}, {S(sHI)}, {V(t)}
    s_and_b32 {S(sTAG)}, {S(sTAG)}, -16
    v_add_f32 {V(t)}, 0x3727c5ac, {V(t)}
    s_or_b32 {S(sTAGX)}, {S(sTAG)}, {S(sXCC)}
    v_cvt_pk_bf16_f32 {V(t)}, {V(t)}, {V(t)}
    v_and_b32 {V(t)}, {S(sHI)}, {V(t)}
    v_sqrt_f32 {V(t)}, {V(t)}
    v_mov_b32 {V(g+3)}, {S(sTAGX)}
    v_cvt_pk_bf16_f32 {V(g+1)}, {V(S1)}, {V(t)}
    v_and_b32 {V(t)}, {S(sHI)}, {V(g+1)}
    v_lshlrev_b32 {V(t+1)}, 16, {V(g+1)}
    v_rcp_f32 {V(t)}, {V(t)}
    v_fma_f32 {V(S3)}, -{V(t+1)}, {V(S4)}, {V(S3)}
    v_readlane_b32 {S(sT0)}, {V(g+1)}, 31
    v_mul_f32 {V(S3)}, {V(S3)}, {V(t)}
    v_cvt_pk_bf16_f32 {V(S3)}, {V(S3)}, {V(S3)}
    v_mov_b32 {V(g)}, {S(sT0)}
    v_ashrrev_i32 {V(t)}, 31, {V(S3)}
    v_or_b32 {V(t)}, 0x80000000, {V(t)}
    v_xor_b32 {V(t)}, {V(t)}, {V(S3)}
    v_and_or_b32 {V(t)}, {V(t)}, {S(sHI)}, {V(rk)}
    s_add_u32 {S(sT1)}, {S(sTAG)}, 1
    v_readlane_b32 {S(sT0)}, {V(t)}, 31
    v_mov_b32 {V(t+2)}, {S(sT1)}
    v_max_u32 {V(g+2)}, {S(sT0)}, {V(t)}
    ''')
    lane63()
    a(f'global_store_dwordx4 {V(vSTP)}, {V(g,4)}, {S(sWS,2)} sc1')
    a(f'ds_write_b32 {V(vFFW)}, {V(t+2)} offset:{TG - FF}')
    alllanes()
    def wd_loads():
        for i in range(8):
            a(f'global_load_dword {V(vWD+i)}, {V(vWDA)}, {S(sWD,2)} offset:{i*1024 - 4096} nt')
    if o['wdearly']: wd_loads()
    a(f"s_setprio 0\ns_waitcnt vmcnt({(9 if o['wdearly'] else 1) + nlate}) lgkmcnt(0)")
    stamp(2)

    a('L_kgen:')
    are, aim, bre, bim, cre, cim, dt = [vP + i for i in range(7)]
    t0 = vP + 7
    z1, z2, z4, ZZ, w1, w2, w4 = [vP + 8 + 2 * i for i in range(7)]
    hq = [vP + 24 + 2 * i for i in range(8)]
    lq = [vP + 40 + 2 * i for i in range(8)]
    cv = [vP + 56 + i for i in range(8)]
    a(f'''
    v_mov_b32 {V(t0)}, 0x3fb8aa3b
    v_mul_f32 {V(dt)}, {V(dt)}, {V(t0)}
    v_exp_f32 {V(dt)}, {V(dt)}
    v_mul_f32 {V(are)}, {V(t0)}, {V(are)}
    v_cvt_pk_bf16_f32 {V(dt)}, {V(dt)}, {V(dt)}
    v_mul_f32 {V(aim)}, 0.15915494, {V(aim)}
    v_and_b32 {V(dt)}, {S(sHI)}, {V(dt)}
    v_mul_f32 {V(are)}, {V(dt)}, {V(are)}
    v_mul_f32 {V(aim)}, {V(dt)}, {V(aim)}
    v_exp_f32 {V(cv[0])}, {V(are)}
    v_fract_f32 {V(cv[1])}, {V(aim)}
    v_mul_f32 {V(are)}, 0x43800000, {V(are)}
    v_cos_f32 {V(z1)}, {V(cv[1])}
    v_mul_f32 {V(aim)}, 0x43800000, {V(aim)}
    v_sin_f32 {V(z1+1)}, {V(cv[1])}
    v_fract_f32 {V(cv[3])}, {V(aim)}
    v_exp_f32 {V(cv[2])}, {V(are)}
    v_mul_f32 {V(z1)}, {V(cv[0])}, {V(z1)}
    v_cos_f32 {V(ZZ)}, {V(cv[3])}
    v_mul_f32 {V(z1+1)}, {V(cv[0])}, {V(z1+1)}
    v_sin_f32 {V(ZZ+1)}, {V(cv[3])}
    v_mul_f32 {V(bre)}, {V(dt)}, {V(bre)}
    v_mul_f32 {V(bim)}, {V(dt)}, {V(bim)}
    ''')
    cmul(z2, z1, z1)
    a(f'v_mul_f32 {V(ZZ)}, {V(cv[2])}, {V(ZZ)}\nv_mul_f32 {V(ZZ+1)}, {V(cv[2])}, {V(ZZ+1)}')
    cmul(z4, z2, z2)
    cmul(hq[0], cre, bre)
    ci = [0]; m0_hi = [False]

    def put(row, reg, neg):
        c = cv[ci[0] % 8]; ci[0] += 1
        a(f"v_cvt_pk_bf16_f32 {V(c)}, {V(reg)}, {'-' if neg else ''}{V(reg+1)}")
        off = row * RS - (30 * RS if m0_hi[0] else 0)
        assert 0 <= off < 65536, (row, off)
        a(f'ds_write_addtid_b32 {V(c)} offset:{STAGE + off}')
    cmul(w1, z4, z4)
    cmul(hq[1], hq[0], z1)
    cmul(w2, w1, w1)
    put(1, w1, False)
    cmul(hq[2], hq[0], z2)
    cmul(lq[3], w2, w1)
    put(2, w2, False)
    cmul(w4, w2, w2)
    put(3, lq[3], False)
    cur = {1: w1, 2: w2, 3: lq[3], 4: w4}
    put(4, w4, False)

    def lo_step(j):
        d = lq[j % 8]
        cmul(d, cur[j - 4], w4); cur[j] = d
        put(j, d, False)
    for j in range(5, 12): lo_step(j)
    a(f's_cmp_ge_u32 {S(sW)}, 4\ns_cbranch_scc1 L_noflag')
    spin_init()
    a(f'''
    L_tagspin:
    ds_read_b32 {V(T[0])}, {V(tga)}
    s_waitcnt lgkmcnt(0)
    v_readfirstlane_b32 {S(sTAG)}, {V(T[0])}
    s_cmp_lg_u32 {S(sTAG)}, 0
    s_cbranch_scc1 L_tagok
    ''')
    spin_next('L_tagspin')
    a(f'''
    L_tagok:
    s_and_b32 {S(sTAG)}, {S(sTAG)}, -16
    s_or_b32 {S(sTAGX)}, {S(sTAG)}, {S(sXCC)}
    v_mov_b32 {V(T[0])}, {S(sTAGX)}
    s_mov_b64 exec, 1
    s_waitcnt vmcnt(0)
    global_store_dword {V(vFLO)}, {V(T[0])}, {S(sWS,2)}
    s_mov_b64 exec, -1
    ''')
    stamp(2)
    a('L_noflag:')
    for j in range(12, 30): lo_step(j)
    ssum(sT0, (sW, 8), 30 * RS)
    a(f's_mov_b32 m0, {S(sT0)}')
    m0_hi[0] = True
    for j in range(30, 32): lo_step(j)
    put(32, hq[0], True); put(33, hq[1], True); put(34, hq[2], True)
    cmul(hq[3], hq[1], z2); cmul(hq[4], hq[0], z4)
    put(35, hq[3], True); put(36, hq[4], True)
    a(f'global_load_dword {V(vPFD)}, {V(vFL)}, {S(sWS,2)} sc1')
    cmul(hq[5], hq[1], z4); cmul(hq[6], hq[2], z4); cmul(hq[7], hq[3], z4)
    put(37, hq[5], True); put(38, hq[6], True); put(39, hq[7], True)
    A0, A2, A4, A6, B0, B4, C0, C4 = lq
    cmul(A0, hq[0], ZZ); cmul(A2, hq[2], ZZ); cmul(A4, hq[4], ZZ); cmul(A6, hq[6], ZZ)
    put(40, A0, True)
    cmul(B0, A0, ZZ); put(41, A2, True); cmul(B4, A4, ZZ); put(42, A4, True)
    cmul(C0, B0, ZZ); put(43, A6, True); cmul(C4, B4, ZZ); put(44, B0, True)
    cmul(hq[1], C0, ZZ); put(45, B4, True); put(46, C0, True)
    cmul(hq[2], hq[1], ZZ); put(47, C4, True); put(48, hq[1], True)
    cmul(hq[3], hq[2], ZZ); put(49, hq[2], True)
    cmul(hq[4], hq[3], ZZ); put(50, hq[3], True)
    cmul(hq[5], hq[4], ZZ); put(51, hq[4], True); put(52, hq[5], True)
    stamp(3)

    KD = vP; KF = vP + 16; NB = o['nb']

    def kread(sidx):
        r = KF + 8 * (sidx % NB)
        a(f'ds_read_b128 {V(r,4)}, {V(vKA)} offset:{32*sidx}')
        a(f'ds_read_b128 {V(r+4,4)}, {V(vKB)} offset:{32*sidx}')

    def kmfma(cinit):
        for sidx in range(8):
            outstanding = min(8, sidx + NB) - sidx - 1
            a(f's_waitcnt lgkmcnt({2*outstanding})')
            r = KF + 8 * (sidx % NB)
            a(f"v_mfma_f32_32x32x16_bf16 {V(KD,16)}, {V(r,4)}, {V(r+4,4)}, {'0' if (sidx == 0 and not cinit) else V(KD,16)}")
            if sidx + NB < 8: kread(sidx + NB)

    def fetch_tile(tag):
        a(f's_waitcnt vmcnt(0)\nv_cmp_ne_u32 vcc, {S(sTAGX)}, {V(vPFD)}')
        if o['force_slow']: a(f's_branch L_gather{tag}')
        a(f's_cbranch_vccz L_fast{tag}')
        spin_init()
        a(f'''
        L_flagspin{tag}:
        global_load_dword {V(vPFD)}, {V(vFL)}, {S(sWS,2)} sc1
        global_load_dword {V(T[0])}, {V(vXC)}, {S(sWS,2)} sc1
        s_waitcnt vmcnt(0)
        v_cmp_ne_u32 vcc, {S(sTAGX)}, {V(vPFD)}
        s_cbranch_vccz L_fast{tag}
        v_xor_b32 {V(T[0])}, {S(sTAGX)}, {V(T[0])}
        v_add_u32 {V(T[0])}, -1, {V(T[0])}
        v_cmp_gt_u32 vcc, 15, {V(T[0])}
        s_cbranch_vccnz L_gather{tag}
        ''')
        spin_next(f'L_flagspin{tag}')
        a(f'L_gather{tag}:')
        for r in range(4):
            a(f'global_load_dwordx2 {V(vD+2*r,2)}, {V(vXG)}, {S(sX,2)} offset:{r*1024}')
        a(f'''
        s_branch L_stats{tag}
        L_fast{tag}:
        global_load_dwordx4 {V(vD,4)}, {V(vIN)}, {S(sWS,2)} sc1
        global_load_dwordx4 {V(vD+4,4)}, {V(vIN)}, {S(sWS,2)} offset:64 sc1
        L_stats{tag}:
        global_load_dwordx4 {V(vG,4)}, {V(vST0)}, {S(sWS,2)} sc1
        global_load_dwordx4 {V(vG+4,4)}, {V(vST1)}, {S(sWS,2)} sc1
        ''')

    a(f's_cmp_ge_u32 {S(sW)}, 4\ns_cbranch_scc1 L_h_k')
    for i in range(NB): kread(i)
    kmfma(False)
    a(f'v_mov_b32 {V(T[1])}, 1')
    for i in range(3): a(f'ds_write_b128 {V(vPD)}, {V(KD+4*i,4)} offset:{1024*i}')
    a(f's_mov_b64 exec, 1\nds_write_b32 {V(tga)}, {V(T[1])} offset:{PF - TG}\ns_mov_b64 exec, -1')
    stamp(4)
    fetch_tile('c')
    a('s_branch L_b3')
    a('L_h_k:')
    spin_init()
    a(f'''
    L_pspin:
    ds_read_b32 {V(T[1])}, {V(vFFW)} offset:{PF - FF}
    ''')
    for i in range(3): a(f'ds_read_b128 {V(KD+4*i,4)}, {V(vPD)} offset:{1024*i}')
    for i in range(NB - 1): kread(i)
    a(f'''
    s_waitcnt lgkmcnt({2*(NB-1) + 3})
    v_readfirstlane_b32 {S(sT0)}, {V(T[1])}
    s_cmp_lg_u32 {S(sT0)}, 0
    s_cbranch_scc1 L_pok
    s_waitcnt lgkmcnt(0)
    ''')
    spin_next('L_pspin')
    a('L_pok:')
    kread(NB - 1)
    kmfma(True)
    for i in range(6): a(f'v_cvt_pk_bf16_f32 {V(T[i])}, {V(KD+2*i)}, {V(KD+2*i+1)}')
    a(f'''
    ds_write_b64 {V(vTW1)}, {V(T[0],2)}
    ds_write_b32 {V(vTW2)}, {V(T[2])}
    ds_write_b32 {V(vTW3)}, {V(T[3])}
    ds_write_b16 {V(vTW4)}, {V(T[4])}
    ds_write_b16_d16_hi {V(vTW4)}, {V(T[4])} offset:64
    ds_write_b16 {V(vTW4)}, {V(T[5])} offset:128
    ds_write_b16_d16_hi {V(vTW4)}, {V(T[5])} offset:192
    ''')
    stamp(4)
    fetch_tile('h')
    if o['wpf'] == 1: a(f'global_load_dword {V(vPFW)}, {V(vPFA)}, {S(sPB,2)} nt')
    a('L_b3:\ns_waitcnt lgkmcnt(0)')
    stamp(5)
    a('s_barrier')

    XP = vG
    def r4_build(tag, mid=None):
        Wq = vP; Q = vP + 16
        for c in range(4):
            a(f'ds_read2_b32 {V(Wq+4*c,2)}, {V(vGA+2*c)} offset0:0 offset1:1')
            a(f'ds_read2_b32 {V(Wq+4*c+2,2)}, {V(vGA+2*c+1)} offset0:0 offset1:1')
        if tag == 'c': a(f'''
        s_cmp_lg_u32 {S(sW)}, 3
        s_cbranch_scc1 L_nopad{tag}
        v_bfe_u32 {V(T[0])}, {V(vL)}, 3, 2
        v_and_b32 {V(T[1])}, 7, {V(vL)}
        v_mul_u32_u24 {V(T[0])}, {R4S}, {V(T[0])}
        v_lshl_add_u32 {V(T[0])}, {V(T[1])}, 4, {V(T[0])}
        ''')
        if tag == 'c':
            for i in range(4): a(f'v_mov_b32 {V(T[4+i])}, 0')
        if tag == 'c': a(f'''
        s_mov_b32 exec_hi, 0
        ds_write_b128 {V(T[0])}, {V(T[4],4)} offset:{R4}
        s_mov_b64 exec, -1
        s_waitcnt lgkmcnt(1)
        L_nopad{tag}:
        ''')
        if mid: mid()
        for c in range(4):
            W0, W1, W2, W3 = [Wq + 4 * c + i for i in range(4)]
            q = Q + 8 * c
            if not mid: a('s_waitcnt lgkmcnt(6)')
            a(f'''
            v_perm_b32 {V(q+0)}, {V(W2)}, {V(W1)}, {V(vSEL+2)}
            v_perm_b32 {V(q+1)}, {V(W1)}, {V(W0)}, {V(vSEL+0)}
            v_perm_b32 {V(q+2)}, {V(W3)}, {V(W2)}, {V(vSEL+3)}
            v_perm_b32 {V(q+3)}, {V(W1)}, {V(W0)}, {V(vSEL+1)}
            v_mov_b32 {V(q+5)}, {V(q+0)}
            ds_write_b128 {V(vR4W)}, {V(q,4)} offset:{c*R4S}
            v_perm_b32 {V(q+4)}, {V(W3)}, {V(W2)}, {V(vSEL+4)}
            v_perm_b32 {V(q+6)}, {V(W3)}, {V(W2)}, {V(vSEL+5)}
            v_mov_b32 {V(q+7)}, {V(q+2)}
            ds_write_b128 {V(vR4W)}, {V(q+4,4)} offset:{c*R4S + 16}
            ''')

    def normalise(tag):
        a(f"s_waitcnt vmcnt({1 if (tag == 'h' and o['wpf'] == 1) else 0})")
        spin_init()
        a(f'''
        L_statspin{tag}:
        v_xor_b32 {V(T[0])}, {S(sTAG)}, {V(vG+3)}
        v_xor_b32 {V(T[1])}, {S(sTAG)}, {V(vG+7)}
        v_or_b32 {V(T[0])}, {V(T[0])}, {V(T[1])}
        v_cmp_lt_u32 vcc, 15, {V(T[0])}
        s_cbranch_vccz L_statok{tag}
        global_load_dwordx4 {V(vG,4)}, {V(vST0)}, {S(sWS,2)} sc1
        global_load_dwordx4 {V(vG+4,4)}, {V(vST1)}, {S(sWS,2)} sc1
        s_waitcnt vmcnt(0)
        ''')
        spin_next(f'L_statspin{tag}')
        a(f'L_statok{tag}:')
        stamp(7)
        stq = [vG, vG + 1, vG + 4, vG + 5]
        rho = [T[1], T[3], T[5], T[7]]; mu = [T[0], T[2], T[4], T[6]]
        key = T[8]
        for r in range(4): a(f'v_and_b32 {V(rho[r])}, {S(sHI)}, {V(stq[r])}')
        a(f'v_max_u32 {V(key)}, {V(vG+2)}, {V(vG+6)}')
        for r in range(4):
            a(f'v_rcp_f32 {V(rho[r])}, {V(rho[r])}')
            a(f'v_lshlrev_b32 {V(mu[r])}, 16, {V(stq[r])}')
        kred = ['row_shr:1 row_mask:0xf', 'row_shr:2 row_mask:0xf', 'row_shr:4 row_mask:0xf', 'row_shr:8 row_mask:0xf',
                'row_bcast:15 row_mask:0xa', 'row_bcast:31 row_mask:0xc']
        def kr(i): a(f'v_max_u32_dpp {V(key)}, {V(key)}, {V(key)} {kred[i]} bank_mask:0xf')
        for r in range(4):
            a(f'''
            v_mul_f32_e64 {V(mu[r])}, -{V(mu[r])}, {V(rho[r])}
            v_lshlrev_b32 {V(vXF+4*r)}, 16, {V(vD+2*r)}
            v_and_b32 {V(vXF+4*r+1)}, {S(sHI)}, {V(vD+2*r)}
            v_lshlrev_b32 {V(vXF+4*r+2)}, 16, {V(vD+2*r+1)}
            v_and_b32 {V(vXF+4*r+3)}, {S(sHI)}, {V(vD+2*r+1)}
            ''')
            kr(r)
            for c in range(4): a(f'v_fma_f32 {V(vXN+4*r+c)}, {V(vXF+4*r+c)}, {V(rho[r])}, {V(mu[r])}')
        kr(4)
        ssum(sT0, (sW, 2), AM)
        for c in range(4):
            a(f'''
            v_cvt_pk_bf16_f32 {V(XP+2*c)}, {V(vXN+c)}, {V(vXN+4+c)}
            v_cvt_pk_bf16_f32 {V(XP+2*c+1)}, {V(vXN+8+c)}, {V(vXN+12+c)}
            ds_write_b64 {V(vUW)}, {V(XP+2*c,2)} offset:{c*US}
            ''')
            if c == 0: kr(5)
            if c == 1: a(f'v_mov_b32 {V(T[9])}, {S(sT0)}')
        lane63()
        a(f'ds_write_b32 {V(T[9])}, {V(key)}')
        alllanes()

    a(f's_cmp_ge_u32 {S(sW)}, 4\ns_cbranch_scc1 L_h_r4')
    r4_build('c'); stamp(6); normalise('c')
    a('s_branch L_b4\nL_h_r4:')
    if o['hnormfirst']:
        def mid():
            normalise('h')
            if o['wpf'] == 3: a(f'global_load_dword {V(vPFW)}, {V(vPFA)}, {S(sPB,2)} nt')
            a('s_waitcnt lgkmcnt(5)'); stamp(6)
        r4_build('h', mid)
    else:
        r4_build('h'); stamp(6); normalise('h')
    a('L_b4:')
    a(f'v_mov_b32 {V(T[9])}, {AM}\ns_waitcnt lgkmcnt(0)')
    stamp(8)
    a('s_barrier')

    def read_idx():
        a(f'''
        ds_read_b128 {V(T[0],4)}, {V(T[9])}
        ds_read_b128 {V(T[4],4)}, {V(T[9])} offset:16
        s_waitcnt lgkmcnt(0)
        v_max3_u32 {V(T[0])}, {V(T[0])}, {V(T[1])}, {V(T[2])}
        v_max3_u32 {V(T[3])}, {V(T[3])}, {V(T[4])}, {V(T[5])}
        v_max3_u32 {V(T[0])}, {V(T[0])}, {V(T[6])}, {V(T[7])}
        v_max_u32 {V(T[0])}, {V(T[0])}, {V(T[3])}
        v_readfirstlane_b32 {S(sKEY)}, {V(T[0])}
        s_andn2_b32 {S(sIDX)}, 2047, {S(sKEY)}
        s_lshr_b32 {S(sT0)}, {S(sIDX)}, 8
        s_lshr_b32 {S(sT1)}, {S(sIDX)}, 9
        s_xor_b32 {S(sT0)}, {S(sT0)}, {S(sT1)}
        s_xor_b32 {S(sT0)}, {S(sT0)}, {S(sH)}
        s_andn2_b32 {S(sOWN)}, 1, {S(sT0)}
        ''')

    def stat_addr(dst):
        a(f's_lshr_b32 {S(sT0)}, {S(sIDX)}, 2\ns_bfe_u32 {S(sT1)}, {S(sIDX)}, 0x10001\ns_and_b32 {S(sT2)}, {S(sIDX)}, 1')
        ssum(sT0, (sT0, 4), (sT1, 13), (sT2, 2), W_ST)
        a(f'v_mov_b32 {V(dst)}, {S(sT0)}')

    a(f's_cmp_ge_u32 {S(sW)}, 4\ns_cbranch_scc1 L_helper')

    ACC = vP; FR = vP + 16; NFR = 28
    stamp(10)
    a(f's_setprio 1\ns_cmp_eq_u32 {S(sH)}, 0\ns_cbranch_scc0 L_conv1')

    def conv(h):
        tl = tiles(h)
        ops = []
        for c0 in range(8):
            lst = [(i, c1, q - c1) for i, q in enumerate(tl) for c1 in range(q + 1)]
            have = set(); seq = []
            while lst:
                def cost(x):
                    base = (2 * (('A', x[1]) not in have) + (('B', x[2]) not in have), bool(seq) and seq[-1][0] == x[0], max(x[1], x[2]))
                    return ((x[0],) + base) if c0 == 7 else base
                x = min(lst, key=cost); lst.remove(x); seq.append(x); have.add(('A', x[1])); have.add(('B', x[2]))
            for i, c1, qp in seq: ops.append((i, ('A', c0, c1), ('B', c0, qp)))
        order = []; last = {}; lastacc = {}
        for n, (i, ak, bk) in enumerate(ops):
            lastacc[i] = n
            for k in (bk, ak):
                if k not in last: order.append(k)
                last[k] = n
        L = []
        for k in order: L += [(k, 0), (k, 1)] if k[0] == 'A' else [(k, 0)]
        endidx = {}
        for j, (k, p) in enumerate(L): endidx[k] = j + 1
        need = []; m = 0
        for (i, ak, bk) in ops:
            m = max(m, endidx[ak], endidx[bk]); need.append(m)
        free = list(range(NFR)); slot = {}
        st = dict(issued=0, done=0)
        seqpos = []
        nds = [0]
        donepos = [0]
        MAXOUT = o['maxout']; G = o['group']

        def can_issue():
            if st['issued'] >= len(L) or nds[0] - donepos[0] >= MAXOUT: return False
            k, p = L[st['issued']]
            return p == 1 or bool(free)

        def issue():
            k, p = L[st['issued']]
            if p == 0: slot[k] = free.pop(0)
            r = FR + 4 * slot[k]
            if k[0] == 'A':
                a(f'ds_read_b64 {V(r+2*p,2)}, {V(vCA2 if p else vCA)} offset:{CAS*(8*k[2] + k[1])}')
            else:
                a(f'ds_read_b128 {V(r,4)}, {V(vCB)} offset:{2*(224 + 256*k[2] - 32*k[1])}')
            st['issued'] += 1; nds[0] += 1; seqpos.append(nds[0])
        started = set(); written = set()
        while can_issue(): issue()
        for n, (i, ak, bk) in enumerate(ops):
            if need[n] > st['done']:
                while st['issued'] < need[n]:
                    assert nds[0] - donepos[0] < 15
                    issue()
                tgt = need[n]
                for m2 in range(n, min(n + G, len(ops))):
                    if need[m2] <= st['issued'] - o['minfly'] or need[m2] <= len(L) == st['issued']: tgt = max(tgt, need[m2])
                a(f's_waitcnt lgkmcnt({nds[0] - seqpos[tgt-1]})'); st['done'] = tgt; donepos[0] = seqpos[tgt - 1]
            acc = ACC + 4 * i
            cin = V(acc, 4) if i in started else '0'
            started.add(i)
            a(f'v_mfma_f32_16x16x32_bf16 {V(acc,4)}, {V(FR+4*slot[ak],4)}, {V(FR+4*slot[bk],4)}, {cin}')
            for k in (ak, bk):
                if last[k] == n: free.append(slot[k])
            budget = 2
            if n + 1 < len(ops) and need[n + 1] > st['done']: budget = 1
            for i2 in range(4):
                if i2 not in written and lastacc[i2] + 4 <= n and budget > 0 and nds[0] - donepos[0] < 15:
                    a(f'ds_write_b128 {V(vY)}, {V(ACC+4*i2,4)} offset:{i2*YTS}')
                    written.add(i2); nds[0] += 1; budget -= 1
            while budget > 0 and can_issue():
                issue(); budget -= 1
        for i2 in range(4):
            if i2 not in written: a(f'ds_write_b128 {V(vY)}, {V(ACC+4*i2,4)} offset:{i2*YTS}')
    conv(0)
    a('s_branch L_convdone\nL_conv1:')
    conv(1)
    a('L_convdone:\ns_waitcnt lgkmcnt(0)')
    stamp(9)
    a(f's_barrier\ns_cmp_lg_u32 {S(sW)}, 0\ns_cbranch_scc1 L_exit')
    a(f'''
    s_cmp_lg_u32 s2, 0
    s_cbranch_scc1 L_noep
    v_mov_b32 {V(T[10])}, 0
    v_mov_b32 {V(T[11])}, {S(sTAG)}
    s_mov_b64 exec, 1
    global_store_dword {V(T[10])}, {V(T[11])}, {S(sWS,2)} sc1
    s_mov_b64 exec, -1
    L_noep:
    ''')
    read_idx()
    a(f's_cmp_eq_u32 {S(sOWN)}, 0\ns_cbranch_scc1 L_exit\ns_setprio 3')
    F = vP
    par, xo, fpa = T[12], T[13], T[14]
    y0, y1, n0, n1, d0, d1, sg, xv, sv, x0, x1 = [vXF + i for i in range(11)]
    a(f'v_and_b32 {V(par)}, 1, {V(vL)}')
    ssum(sT0, (sIDX, 10), (sCH0, 1))
    a(f'v_lshl_add_u32 {V(xo)}, {V(par)}, 2, {S(sT0)}')
    stat_addr(T[10])
    a(f'global_load_dword {V(xv)}, {V(xo)}, {S(sX,2)}')
    a(f'global_load_dword {V(sv)}, {V(T[10])}, {S(sWS,2)} sc1')
    a(f's_lshr_b32 {S(sT0)}, {S(sCH0)}, 2')
    smul(sT0, sT0, 6144, W_FP + 3072)
    a(f'v_lshl_add_u32 {V(fpa)}, {V(vL)}, 4, {S(sT0)}')
    a(f'''
    s_lshr_b32 {S(sT1)}, {S(sIDX)}, 9
    s_mul_i32 {S(sT1)}, {S(sT1)}, {YTS}
    s_bfe_u32 {S(sT0)}, {S(sIDX)}, 0x20002
    s_mul_i32 {S(sT0)}, {S(sT0)}, {YGS}
    s_add_u32 {S(sT1)}, {S(sT1)}, {S(sT0)}
    s_bfe_u32 {S(sT0)}, {S(sIDX)}, 0x40004
    s_and_b32 {S(sT2)}, {S(sIDX)}, 3
    ''')
    ssum(sT1, (sT1, 0), (sT0, 4), (sT2, 2), YX)
    a(f'''
    v_mul_u32_u24 {V(T[0])}, {2*YCS}, {V(par)}
    v_add_u32 {V(T[0])}, {S(sT1)}, {V(T[0])}
    ds_read_b32 {V(y0)}, {V(T[0])}
    ds_read_b32 {V(y1)}, {V(T[0])} offset:{YCS}
    s_and_b32 {S(sT0)}, {S(sKEY)}, {S(sHI)}
    s_xor_b32 {S(sT1)}, {S(sT0)}, 0x80000000
    s_xor_b32 {S(sT2)}, {S(sT0)}, {S(sHI)}
    s_bitcmp1_b32 {S(sT0)}, 31
    s_cselect_b32 {S(sT0)}, {S(sT1)}, {S(sT2)}
    v_mov_b32 {V(T[2])}, 0xbfb8aa3b
    v_mul_f32 {V(sg)}, {S(sT0)}, {V(T[2])}
    v_exp_f32 {V(sg)}, {V(sg)}
    v_cmp_eq_u32 vcc, 0, {V(par)}
    v_add_f32 {V(sg)}, 1.0, {V(sg)}
    v_rcp_f32 {V(sg)}, {V(sg)}
    v_mov_b32 {V(F+20)}, 0
    v_cvt_pk_bf16_f32 {V(sg)}, {V(sg)}, {V(sg)}
    v_mov_b32 {V(F+21)}, 0
    v_and_b32 {V(sg)}, {S(sHI)}, {V(sg)}
    v_mov_b32 {V(F+22)}, {S(sTAG)}
    s_waitcnt lgkmcnt(0)
    v_mov_b32 {V(d0)}, {S(sDS)}
    v_mov_b32 {V(d1)}, {S(sDS+1)}
    v_cndmask_b32 {V(d0)}, {V(d1)}, {V(d0)}, vcc
    v_and_b32 {V(d1)}, {S(sHI)}, {V(d0)}
    v_lshlrev_b32 {V(d0)}, 16, {V(d0)}
    ''')

    def rnd2(r0, r1, t):
        a(f'v_cvt_pk_bf16_f32 {V(t)}, {V(r0)}, {V(r1)}\nv_lshlrev_b32 {V(r0)}, 16, {V(t)}\nv_and_b32 {V(r1)}, {S(sHI)}, {V(t)}')
    rnd2(y0, y1, T[0])
    a(f'''
    s_waitcnt vmcnt(0)
    v_and_b32 {V(T[1])}, {S(sHI)}, {V(sv)}
    v_lshlrev_b32 {V(T[2])}, 16, {V(sv)}
    v_rcp_f32 {V(T[1])}, {V(T[1])}
    v_lshlrev_b32 {V(x0)}, 16, {V(xv)}
    v_and_b32 {V(x1)}, {S(sHI)}, {V(xv)}
    v_sub_f32 {V(n0)}, {V(x0)}, {V(T[2])}
    v_sub_f32 {V(n1)}, {V(x1)}, {V(T[2])}
    ''')
    rnd2(n0, n1, T[0])
    a(f'v_mul_f32 {V(n0)}, {V(n0)}, {V(T[1])}\nv_mul_f32 {V(n1)}, {V(n1)}, {V(T[1])}')
    rnd2(n0, n1, T[0])
    a(f'v_mul_f32 {V(d0)}, {V(d0)}, {V(n0)}\nv_mul_f32 {V(d1)}, {V(d1)}, {V(n1)}')
    rnd2(d0, d1, T[0])
    a(f'v_add_f32 {V(y0)}, {V(y0)}, {V(d0)}\nv_add_f32 {V(y1)}, {V(y1)}, {V(d1)}')
    rnd2(y0, y1, T[0])
    if o['b6']: a('s_barrier')
    spin_init()
    a('L_ffnspin:')
    for i in range(5):
        a(f'global_load_dwordx4 {V(F+4*i,4)}, {V(fpa)}, {S(sWS,2)} offset:{i*1024 - 3072} sc1')
    a(f'''
    s_mov_b64 exec, 0xffffff
    global_load_dwordx4 {V(F+20,4)}, {V(fpa)}, {S(sWS,2)} offset:2048 sc1
    s_mov_b64 exec, -1
    s_waitcnt vmcnt(0)
    ''')
    for i in range(6): a(f'v_xor_b32 {V(T[i])}, {S(sTAG)}, {V(F+4*i+2)}')
    a(f'''
    v_or3_b32 {V(T[0])}, {V(T[0])}, {V(T[1])}, {V(T[2])}
    v_or3_b32 {V(T[3])}, {V(T[3])}, {V(T[4])}, {V(T[5])}
    v_or_b32 {V(T[0])}, {V(T[0])}, {V(T[3])}
    v_cmp_ne_u32 vcc, 0, {V(T[0])}
    s_cbranch_vccz L_ffnok
    ''')
    spin_next('L_ffnspin')
    a('L_ffnok:')
    stamp(11)
    p0, p1 = F, F + 1
    for e in range(2):
        a(f'v_add_f32 {V(F+e)}, {V(F+e)}, {V(F+4+e)}')
        a(f'v_add_f32 {V(F+8+e)}, {V(F+8+e)}, {V(F+12+e)}')
        a(f'v_add_f32 {V(F+16+e)}, {V(F+16+e)}, {V(F+20+e)}')
    for e in range(2): a(f'v_add_f32 {V(F+e)}, {V(F+e)}, {V(F+8+e)}')
    for e in range(2): a(f'v_add_f32 {V(F+e)}, {V(F+e)}, {V(F+16+e)}')
    for m in (2, 4, 8):
        for e in range(2): a(f'v_add_f32_dpp {V(F+e)}, {V(F+e)}, {V(F+e)} row_ror:{m} row_mask:0xf bank_mask:0xf')
    for pl in ('v_permlane16_swap_b32', 'v_permlane32_swap_b32'):
        for e in range(2): a(f'v_mov_b32 {V(F+4+e)}, {V(F+e)}')
        for e in range(2): a(f'{pl} {V(F+e)}, {V(F+4+e)}')
        for e in range(2): a(f'v_add_f32 {V(F+e)}, {V(F+e)}, {V(F+4+e)}')
    rnd2(p0, p1, T[0])
    for e in range(2): a(f'v_mul_f32 {V(F+e)}, {V(F+e)}, {V(sg)}')
    rnd2(p0, p1, T[0])
    a(f'v_add_f32 {V(p0)}, {V(p0)}, {V(n0)}\nv_add_f32 {V(p1)}, {V(p1)}, {V(n1)}')
    rnd2(p0, p1, T[0])
    for e in range(2): a(f'v_mul_f32 {V(F+4+e)}, 0xbfb8aa3b, {V(F+e)}')
    for e in range(2): a(f'v_exp_f32 {V(F+4+e)}, {V(F+4+e)}')
    for e in range(2): a(f'v_add_f32 {V(F+4+e)}, 1.0, {V(F+4+e)}')
    for e in range(2): a(f'v_rcp_f32 {V(F+4+e)}, {V(F+4+e)}')
    for e in range(2): a(f'v_mul_f32 {V(F+e)}, {V(F+e)}, {V(F+4+e)}')
    rnd2(p0, p1, T[0])
    a(f'v_mul_f32 {V(p0)}, {V(p0)}, {V(y0)}\nv_mul_f32 {V(p1)}, {V(p1)}, {V(y1)}')
    rnd2(p0, p1, T[0])
    a(f'''
    v_add_f32 {V(p0)}, {V(p0)}, {V(x0)}
    v_add_f32 {V(p1)}, {V(p1)}, {V(x1)}
    v_cvt_pk_bf16_f32 {V(T[0])}, {V(p0)}, {V(p1)}
    s_mov_b64 exec, 3
    global_store_dword {V(xo)}, {V(T[0])}, {S(sOUT,2)}
    s_mov_b64 exec, -1
    ''')
    if o['stamp']:
        a('s_waitcnt vmcnt(0)'); stamp(12); a('s_branch L_exit')
    else:
        a('s_endpgm')

    a('L_helper:')
    read_idx()
    XS = vP
    a(f's_cmp_eq_u32 {S(sPROD)}, 0\ns_cbranch_scc1 L_h_pre')
    a(f's_lshl_b32 {S(sT0)}, {S(sIDX)}, 10\nv_add_u32 {V(T[0])}, {S(sT0)}, {V(vXS)}')
    stat_addr(T[1])
    a(f'''
    global_load_dwordx2 {V(XS,2)}, {V(T[0])}, {S(sX,2)}
    global_load_dwordx2 {V(XS+2,2)}, {V(T[0])}, {S(sX,2)} offset:32
    global_load_dword {V(XS+4)}, {V(T[1])}, {S(sWS,2)} sc1
    ''')
    if not o['wdearly']: wd_loads()
    ssum(sT0, (sWI, 11), WL)
    for mu_, base in enumerate((sWG, sWU)):
        for i, r in enumerate((vWS0, vWS1)):
            a(f's_add_u32 m0, {S(sT0)}, {mu_*WL1 + i*1024}')
            a(f"global_load_lds_dwordx4 {V(r)}, {S(base,2)}{' nt' if o['wnt'] else ''}")
    a('L_h_pre:')
    Dv = [T[10 + c] for c in range(4)]
    a(f'''
    s_lshl_b32 {S(sT0)}, {S(sDS)}, 16
    s_and_b32 {S(sT1)}, {S(sDS)}, {S(sHI)}
    s_lshl_b32 {S(sT2)}, {S(sDS+1)}, 16
    s_and_b32 {S(sT3)}, {S(sDS+1)}, {S(sHI)}
    ''')
    for c in range(4): a(f'v_mov_b32 {V(Dv[c])}, {S(sT0+c)}')
    for c in range(4):
        for r in range(4):
            src = XP + 2 * c + (r >> 1)
            if r & 1: a(f'v_and_b32 {V(vXN+4*r+c)}, {S(sHI)}, {V(src)}')
            else:     a(f'v_lshlrev_b32 {V(vXN+4*r+c)}, 16, {V(src)}')
        for r in range(4): a(f'v_mul_f32 {V(T[r])}, 0xbfb8aa3b, {V(vXN+4*r+c)}')
        for r in range(4): a(f'v_exp_f32 {V(T[r])}, {V(T[r])}')
        for r in range(4):
            a(f'v_mul_f32 {V(vE+4*r+c)}, {V(vXN+4*r+c)}, {V(Dv[c])}')
            a(f'v_add_f32 {V(T[r])}, 1.0, {V(T[r])}')
        for r in range(4): a(f'v_rcp_f32 {V(T[r])}, {V(T[r])}')
        for r in range(4): a(f'v_mul_f32 {V(vXN+4*r+c)}, {V(vXN+4*r+c)}, {V(T[r])}')
        for r in range(4): a(f'v_fma_f32 {V(vE+4*r+c)}, {V(vE+4*r+c)}, {V(vXN+4*r+c)}, {V(vXF+4*r+c)}')
    for r in range(4):
        a(f'v_add_u32 {V(T[0])}, {r}, {V(vROW)}\nv_cmp_ne_u32 {S(sM+2*r,2)}, {S(sIDX)}, {V(T[0])}')
    stamp(9)
    a(f's_cmp_eq_u32 {S(sPROD)}, 0\ns_cbranch_scc1 L_h_b5')
    WF = vP + 8; DD = vP + 24; XA = vP + 40; WDF = vP + 48
    a(f"s_setprio {o['ffnprio']}")
    def wd_unpack():
        for i in range(8):
            a(f'v_lshlrev_b32 {V(WDF+2*i)}, 16, {V(vWD+i)}\nv_and_b32 {V(WDF+2*i+1)}, {S(sHI)}, {V(vWD+i)}')
    if o['wdearly']: wd_unpack()
    a(f'''
    s_waitcnt vmcnt({4 if o['wdearly'] else 12})
    v_and_b32 {V(T[0])}, {S(sHI)}, {V(XS+4)}
    v_lshlrev_b32 {V(T[1])}, 16, {V(XS+4)}
    v_rcp_f32 {V(T[0])}, {V(T[0])}
    ''')
    for i in range(4):
        a(f'v_lshlrev_b32 {V(T[2+2*i])}, 16, {V(XS+i)}\nv_and_b32 {V(T[3+2*i])}, {S(sHI)}, {V(XS+i)}')
    for i in range(8): a(f'v_sub_f32 {V(T[2+i])}, {V(T[2+i])}, {V(T[1])}')
    for i in range(4): rnd2(T[2 + 2 * i], T[3 + 2 * i], XA + i)
    for i in range(8): a(f'v_mul_f32 {V(T[2+i])}, {V(T[2+i])}, {V(T[0])}')
    for i in range(4): a(f'v_cvt_pk_bf16_f32 {V(XA+i)}, {V(T[2+2*i])}, {V(T[3+2*i])}')
    if not o['wdearly']:
        a('s_waitcnt vmcnt(4)'); wd_unpack()
    a('s_waitcnt vmcnt(0)')
    stamp(0)
    for sp in range(4):
        a(f'ds_read_b64_tr_b16 {V(WF+4*sp,2)}, {V(vWT)} offset:{512*sp}')
        a(f'ds_read_b64_tr_b16 {V(WF+4*sp+2,2)}, {V(vWT)} offset:{512*sp + 256}')
    for sp in range(4):
        a(f's_waitcnt lgkmcnt({6 - 2*sp})')
        a(f'v_mfma_f32_16x16x32_bf16 {V(DD+4*sp,4)}, {V(XA,4)}, {V(WF+4*sp,4)}, 0')
    a(f'''
    v_mov_b32 {V(T[2])}, 1
    v_mov_b32 {V(T[8])}, {FF}
    v_add_f32 {V(T[0])}, {V(DD)}, {V(DD+5)}
    v_add_f32 {V(T[1])}, {V(DD+10)}, {V(DD+15)}
    v_add_f32 {V(T[0])}, {V(T[0])}, {V(T[1])}
    ds_write_b32 {V(vFPW)}, {V(T[0])}
    s_mov_b64 exec, 1
    ds_write_b32 {V(vFFW)}, {V(T[2])}
    s_mov_b64 exec, -1
    ''')
    spin_init()
    a(f'L_hspin:\nds_read_b128 {V(T[4],4)}, {V(T[8])}')
    for i in range(4): a(f'ds_read_b32 {V(T[i])}, {V(vFPR)} offset:{i*320}')
    a(f'''
    s_waitcnt lgkmcnt(0)
    v_and_b32 {V(T[4])}, {V(T[4])}, {V(T[5])}
    v_and_b32 {V(T[6])}, {V(T[6])}, {V(T[7])}
    v_and_b32 {V(T[4])}, {V(T[4])}, {V(T[6])}
    v_cmp_eq_u32 vcc, 0, {V(T[4])}
    s_cbranch_vccz L_hok
    ''')
    spin_next('L_hspin')
    gq = T[4]
    a(f'''
    L_hok:
    v_add_f32 {V(T[0])}, {V(T[0])}, {V(T[1])}
    v_add_f32 {V(T[2])}, {V(T[2])}, {V(T[3])}
    v_add_f32 {V(T[0])}, {V(T[0])}, {V(T[2])}
    v_cvt_pk_bf16_f32 {V(T[0])}, {V(T[0])}, {V(T[0])}
    v_and_b32 {V(T[0])}, {S(sHI)}, {V(T[0])}
    v_mul_f32 {V(T[1])}, 0xbfb8aa3b, {V(T[0])}
    v_exp_f32 {V(T[1])}, {V(T[1])}
    v_mov_b32_dpp {V(T[2])}, {V(T[0])} row_ror:8 row_mask:0xf bank_mask:0xf
    v_add_f32 {V(T[1])}, 1.0, {V(T[1])}
    v_rcp_f32 {V(T[1])}, {V(T[1])}
    v_mov_b32 {V(gq+2)}, {S(sTAG)}
    v_mul_f32 {V(T[1])}, {V(T[0])}, {V(T[1])}
    v_cvt_pk_bf16_f32 {V(T[1])}, {V(T[1])}, {V(T[1])}
    v_and_b32 {V(T[1])}, {S(sHI)}, {V(T[1])}
    v_mul_f32 {V(T[1])}, {V(T[1])}, {V(T[2])}
    v_cvt_pk_bf16_f32 {V(T[1])}, {V(T[1])}, {V(T[1])}
    v_and_b32 {V(T[1])}, {S(sHI)}, {V(T[1])}
    v_mov_b32 {V(gq+3)}, 0
    ''')
    for i in range(8): a(f'v_readlane_b32 {S(sH8+i)}, {V(T[1])}, {i}')
    for i in range(8):
        for e in range(2):
            if i == 0: a(f'v_mul_f32 {V(gq+e)}, {S(sH8)}, {V(WDF+e)}')
            else: a(f'v_fmac_f32 {V(gq+e)}, {S(sH8+i)}, {V(WDF+2*i+e)}')
    a(f'global_store_dwordx4 {V(vFPA)}, {V(gq,4)}, {S(sWS,2)} sc1')
    stamp(10)
    a('L_h_b5:\ns_barrier')
    YR = vP
    for c in range(4): a(f'ds_read_b128 {V(YR+4*c,4)}, {V(vY)} offset:{c*YCS}')
    if o['b6']:
        a(f'''
        s_lshr_b32 {S(sT0)}, {S(sWI)}, 1
        s_and_b32 {S(sT1)}, {S(sT0)}, {S(sOWN)}
        s_andn2_b32 {S(sT2)}, {S(sOWN)}, {S(sT0)}
        s_cmp_eq_u32 {S(sT1)}, 0
        s_cbranch_scc1 L_h_st
        s_barrier
        L_h_st:
        ''')
    a('s_waitcnt lgkmcnt(0)')
    for r in range(4):
        for c in range(4):
            a(f'v_fma_f32 {V(vE+4*r+c)}, {V(YR+4*c+r)}, {V(vXN+4*r+c)}, {V(vE+4*r+c)}')
        a(f'''
        v_cvt_pk_bf16_f32 {V(vD+2*r)}, {V(vE+4*r)}, {V(vE+4*r+1)}
        v_cvt_pk_bf16_f32 {V(vD+2*r+1)}, {V(vE+4*r+2)}, {V(vE+4*r+3)}
        s_mov_b64 exec, {S(sM+2*r,2)}
        global_store_dwordx2 {V(vXG)}, {V(vD+2*r,2)}, {S(sOUT,2)} offset:{r*1024}
        s_mov_b64 exec, -1
        ''')
    if o['b6']:
        a(f'''
        s_cmp_eq_u32 {S(sT2)}, 0
        s_cbranch_scc1 L_h_done
        s_waitcnt vmcnt({o['b6cnt']})
        s_barrier
        L_h_done:
        ''')
    if o['stamp'] or o['diag'] >= 0:
        stamp(11)
        a('s_waitcnt vmcnt(0)')
        stamp(12)
    if o['diag'] >= 0:
        a('''
        s_memrealtime s[90:91]
        s_sub_u32 s88, s88, s86
        s_min_u32 s88, s88, 2000
        s_lshl_b32 s88, s88, 2
        s_waitcnt lgkmcnt(0)
        s_add_u32 s88, s88, s90
        L_diag:
        s_memrealtime s[90:91]
        s_waitcnt lgkmcnt(0)
        s_sub_u32 s90, s90, s88
        s_cmp_lt_i32 s90, 0
        s_cbranch_scc1 L_diag
        ''')
    a('L_exit:')
    if o['stamp']:
        a('v_mov_b32 v254, 0')
        for i in range(14): a(f'v_writelane_b32 v254, s{86+i}, {i}')
        a(f'global_store_dword {V(vSTA)}, v254, {S(sWS,2)}')
    a('L_end:\ns_endpgm')
    a.raw('''.section .rodata,"a"
.p2align 6
.amdhsa_kernel %s_kernel
  .amdhsa_next_free_vgpr 256
  .amdhsa_next_free_sgpr 102
  .amdhsa_accum_offset 256
  .amdhsa_group_segment_fixed_size 0
  .amdhsa_kernarg_size 136
  .amdhsa_user_sgpr_count 2
  .amdhsa_user_sgpr_kernarg_segment_ptr 1
  .amdhsa_system_sgpr_workgroup_id_x 1
.end_amdhsa_kernel''' % KN)
    return a.text()


if __name__ == '__main__':
    out = sys.argv[1]
    opt = {}
    for kv in sys.argv[2:]:
        k, val = kv.split('='); opt[k] = int(val, 0)
    open(out, 'w').write(generate(**opt))
```

```python
import sys
from asmlib import *

KN = 'recurrent_scan__ssm_conv_s4__moe_arch_mod__prompt'

DEFAULTS = dict(stamp=0, cyc=0, force_slow=0, prefetch=1, wpf=1, spinmax=1 << 16, diag=-1,
                maxout=15, group=3, minfly=6, b6=1, b6cnt=1, nb=6, wdearly=0, wpfb3=1, hnormfirst=1, ffnprio=2, tlb=0, tlbsh=16, wnt=0, xnt=0, pnt=0, wb3=1, rot=1)

RS = 2064
STAGE = 0
R4 = 0; R4S = 18560; CAS = 288
YX = 74240; YCS = 5120; YTS = 1280; YGS = 320
U = 109440; US = 4576
TAB = 127744; TS = 1552
WL = 133952; WL1 = 8320
SL = 150528
AM = 158720
FF = 158752
TG = 158768
PF = 158784
FP = 158848
LDS_BYTES = 159872
W_ST = 0x1000; W_FL = 0x6000; W_FP = 0x10000; W_IN = 0x100000; W_STAMP = 0x800000

sX, sARE, sAIM, sBRE, sBIM, sCRE, sCIM, sLDT = 4, 6, 8, 10, 12, 14, 16, 18
sDSK, sWR, sWG, sWU, sWD, sOUT, sDBG, sWS = 20, 24, 26, 28, 30, 32, 34, 36
sW, sK, sJ, sCGL, sH, sCH0, sT, sXCC, sTAG, sTAGX = 38, 39, 40, 41, 42, 43, 44, 45, 46, 47
sPB, sDS = 48, 50
sONES, sF8, sPROD, sIDX, sKEY, sCNT = 52, 53, 54, 55, 56, 57
sT0, sT1, sT2, sT3 = 58, 59, 60, 61
sOWN, sINB = 62, 63
sM = 64
sH8 = 72
sHI = 80
sSTP = 82
sWI = 84

vL = 1
vGA = 2
vSEL = 10
vR4W, vUW, vST0, vST1, vFL, vIN, vXG, vXC = 16, 17, 18, 19, 20, 21, 22, 23
vKA, vKB, vPD, vY = 24, 25, 26, 27
vA0, vA1, vA2, vA3, vA4, vA5, vA6, vA7 = 28, 29, 30, 31, 32, 33, 34, 35
vEP, vPFD, vROW, vSTA = 36, 37, 38, 39
vD = 40
vG = 48
vXF = 56
vXN = 72
vE = 88
vP = 104
vB0, vB1, vB2, vB3, vB4, vB5 = 224, 225, 226, 227, 228, 229
vWD = 232
vT = 240
vCA, vCA2, vCB, vFLO = vA0, vA1, vA2, vA3
vTW1, vTW2, vTW3, vTW4, vWT, vWDA, vFPA, vXS = vA0, vA1, vA2, vA3, vA4, vA5, vA6, vA7
vWS0, vWS1, vFPW, vFPR, vFFW, vSTP = vB0, vB1, vB2, vB3, vB4, vB5
vPFA, vPFW = 230, 231
vTLB = 223
vWDR = 222


def tiles(h): return [2 * i + ((i ^ h) & 1) for i in range(4)]


def generate(**opt):
    o = dict(DEFAULTS); o.update(opt)
    a = Asm()
    V = v; S = s

    def stamp(i):
        if o['diag'] == i:
            a('s_memrealtime s[88:89]\ns_waitcnt lgkmcnt(0)')
        if not o['stamp']: return
        a(f"{'s_memtime' if o['cyc'] else 's_memrealtime'} {S(sSTP,2)}\ns_waitcnt lgkmcnt(0)\ns_mov_b32 s{86+i}, {S(sSTP)}")

    def cmul(d, x, y):
        a(f'v_pk_mul_f32 {V(d,2)}, {V(x,2)}, {V(y,2)} op_sel:[1,1] op_sel_hi:[1,0]')
        a(f'v_pk_fma_f32 {V(d,2)}, {V(x,2)}, {V(y,2)}, {V(d,2)} op_sel:[0,0,0] op_sel_hi:[0,1,1] neg_lo:[0,0,1]')

    def lane63(): a('s_mov_b32 exec_lo, 0\ns_mov_b32 exec_hi, 0x80000000')
    def alllanes(): a('s_mov_b64 exec, -1')
    def spin_init(): a(f"s_mov_b32 {S(sCNT)}, {o['spinmax']}")
    def spin_next(lbl): a(f's_sub_u32 {S(sCNT)}, {S(sCNT)}, 1\ns_cmp_lg_u32 {S(sCNT)}, 0\ns_cbranch_scc1 {lbl}')

    def ssum(dst, *terms):
        first = True; const = 0
        for t in terms:
            if isinstance(t, int): const += t; continue
            r, sh = t
            if first:
                a(f's_lshl_b32 {S(dst)}, {S(r)}, {sh}' if sh else f's_mov_b32 {S(dst)}, {S(r)}'); first = False
            elif sh:
                a(f's_lshl_b32 {S(sT3)}, {S(r)}, {sh}\ns_add_u32 {S(dst)}, {S(dst)}, {S(sT3)}')
            else:
                a(f's_add_u32 {S(dst)}, {S(dst)}, {S(r)}')
        if const: a(f's_add_u32 {S(dst)}, {S(dst)}, {const}')

    def smul(dst, r, k, const=0):
        a(f's_mul_i32 {S(dst)}, {S(r)}, {k}')
        if const: a(f's_add_u32 {S(dst)}, {S(dst)}, {const}')

    T = [vT + i for i in range(16)]

    a.raw('; @launch grid=(256,1,1) block=(512,1,1) lds=%d' % LDS_BYTES)
    a.raw('.amdgcn_target "amdgcn-amd-amdhsa--gfx950"\n.text\n.globl %s_kernel\n.p2align 8\n.type %s_kernel,@function\n%s_kernel:' % (KN, KN, KN))
    a('''
    s_cmp_ge_u32 s2, 256
    s_cbranch_scc1 L_end
    s_load_dwordx16 s[4:19], s[0:1], 0
    s_load_dwordx16 s[20:35], s[0:1], 64
    s_load_dwordx2 s[36:37], s[0:1], 128
    ''')
    if o['diag'] >= 0: a('s_memrealtime s[86:87]')
    if o['stamp']: a(f"{'s_memtime' if o['cyc'] else 's_memrealtime'} s[100:101]")
    a(f'''
    v_lshrrev_b32 {V(T[0])}, 6, v0
    v_and_b32 {V(vL)}, 63, v0
    v_readfirstlane_b32 {S(sW)}, {V(T[0])}
    s_and_b32 {S(sK)}, s2, 7
    s_lshr_b32 {S(sJ)}, s2, 3
    s_and_b32 {S(sCGL)}, {S(sJ)}, 15
    s_lshr_b32 {S(sH)}, {S(sJ)}, 4
    s_and_b32 {S(sWI)}, {S(sW)}, 3
    ''')
    ssum(sCH0, (sK, 6), (sCGL, 2))
    for i in range(7): a(f'v_mov_b32 {V(vP+i)}, 0')
    a(f's_add_u32 {S(sT1)}, {S(sCH0)}, {S(sWI)}')
    a(f's_lshr_b32 {S(sT2)}, {S(sW)}, 2')
    ssum(sT0, (sT1, 8), (sT2, 7))
    a(f'v_lshl_add_u32 {V(T[1])}, {V(vL)}, 1, {S(sT0)}')
    a(f's_lshl_b32 {S(sT1)}, {S(sT1)}, 1')
    a(f'v_mov_b32 {V(T[2])}, {S(sT1)}')
    if o['stamp']:
        ssum(sT1, (2, 11), (sW, 8), W_STAMP)
        a(f'v_lshl_add_u32 {V(vSTA)}, {V(vL)}, 2, {S(sT1)}')
        for i in range(14): a(f's_mov_b32 s{86+i}, 0')

    def param_loads():
        for i, p in enumerate((sARE, sAIM, sBRE, sBIM, sCRE, sCIM)):
            a(f"global_load_short_d16_hi {V(vP+i)}, {V(T[1])}, {S(p,2)}{' nt' if o['pnt'] else ''}")
        a(f'global_load_short_d16_hi {V(vP+6)}, {V(T[2])}, {S(sLDT,2)}')

    a(f's_cmp_ge_u32 {S(sW)}, 4\ns_cbranch_scc1 L_h_load')
    ssum(sT0, (sJ, 16), (sW, 14), (sK, 7))
    a(f'''
    v_lshrrev_b32 {V(T[3])}, 3, {V(vL)}
    v_and_b32 {V(T[4])}, 7, {V(vL)}
    v_lshlrev_b32 {V(T[3])}, 10, {V(T[3])}
    v_lshl_add_u32 {V(T[3])}, {V(T[4])}, 4, {V(T[3])}
    v_add_u32 {V(T[3])}, {S(sT0)}, {V(T[3])}
    v_add_u32 {V(T[4])}, 8192, {V(T[3])}
    s_waitcnt lgkmcnt(0)
    ''')
    if o['stamp']: a('s_mov_b32 s99, s100')
    if o['diag'] >= 0: a('s_mov_b32 s88, s86')
    stamp(0)
    XNT = ' nt' if o['xnt'] else ''
    a(f'global_load_dwordx4 {V(vD,4)}, {V(T[3])}, {S(sX,2)}{XNT}')
    a(f'global_load_dwordx4 {V(vD+4,4)}, {V(T[4])}, {S(sX,2)}{XNT}')
    param_loads()
    a('s_branch L_init')
    a('L_h_load:')
    ssum(sT0, (2, 13), (sWI, 11))
    a(f'''
    v_and_b32 {V(T[3])}, 31, {V(vL)}
    v_lshlrev_b32 {V(T[3])}, 4, {V(T[3])}
    v_lshrrev_b32 {V(T[4])}, 5, {V(vL)}
    v_lshl_add_u32 {V(T[4])}, {V(T[4])}, 10, {V(T[3])}
    v_add_u32 {V(T[4])}, {S(sT0)}, {V(T[4])}
    v_mov_b32 {V(T[5])}, 0
    s_setprio 2
    s_waitcnt lgkmcnt(0)
    ''')
    if o['stamp']: a('s_mov_b32 s99, s100')
    if o['diag'] >= 0: a('s_mov_b32 s88, s86')
    stamp(0)
    a(f'''
    global_load_dwordx4 {V(vG,4)}, {V(T[3])}, {S(sWR,2)}
    global_load_dwordx4 {V(vG+4,4)}, {V(T[3])}, {S(sWR,2)} offset:512
    global_load_dwordx4 {V(vD,4)}, {V(T[4])}, {S(sX,2)}{XNT}
    global_load_dwordx4 {V(vD+4,4)}, {V(T[4])}, {S(sX,2)} offset:512{XNT}
    global_load_dword {V(vEP)}, {V(T[5])}, {S(sWS,2)} sc1
    ''')
    param_loads()

    a('L_init:')
    if o['tlb']:
        a.comment('touch the pages that are first needed late, so their translations are fetched during the start-up wait')
        sh = o['tlbsh']
        a(f'v_lshlrev_b32 {V(T[11])}, {sh}, {V(vL)}')
        for w, base, size in ((0, sWG, 1409024), (1, sWU, 1409024), (2, sWD, 1409024), (3, sOUT, 2097152), (4, sWS, 0x300000)):
            n = min(64, (size + (1 << sh) - 1) >> sh)
            a(f's_cmp_lg_u32 {S(sW)}, {w}\ns_cbranch_scc1 L_tlb{w}')
            a(f's_bfm_b64 exec, {n}, 0' if n < 64 else 's_nop 0')
            a(f'global_load_dword {V(vTLB)}, {V(T[11])}, {S(base,2)}')
            a(f's_mov_b64 exec, -1\ns_branch L_tlbx\nL_tlb{w}:')
        a(f's_mov_b64 exec, 1\nglobal_load_dword {V(vTLB)}, {V(T[11])}, {S(sX,2)}\ns_mov_b64 exec, -1')
        a('L_tlbx:')
    a(f'''
    v_mov_b32 {V(T[6])}, 0
    v_mov_b32 {V(T[7])}, 0x3f80
    s_lshl_b32 {S(sT0)}, {S(sW)}, 8
    s_mov_b32 m0, {S(sT0)}
    v_and_b32 {V(T[8])}, 127, v0
    ds_write_addtid_b32 {V(T[7])} offset:{STAGE}
    v_min_u32 {V(T[8])}, 119, {V(T[8])}
    v_lshrrev_b32 {V(T[9])}, 7, v0
    v_mul_u32_u24 {V(T[10])}, {US}, {V(T[9])}
    v_lshl_add_u32 {V(T[10])}, {V(T[8])}, 2, {V(T[10])}
    v_add_u32 {V(T[10])}, {U}, {V(T[10])}
    ds_write_b32 {V(T[10])}, {V(T[6])}
    s_cmp_lg_u32 {S(sW)}, 0
    s_cbranch_scc1 L_init2
    v_bfe_u32 {V(T[9])}, {V(vL)}, 1, 2
    v_mul_u32_u24 {V(T[9])}, {TS}, {V(T[9])}
    v_and_b32 {V(T[8])}, 1, {V(vL)}
    v_lshl_add_u32 {V(T[9])}, {V(T[8])}, 2, {V(T[9])}
    v_add_u32 {V(T[9])}, {TAB}, {V(T[9])}
    v_and_b32 {V(T[8])}, 15, {V(vL)}
    v_lshlrev_b32 {V(T[8])}, 2, {V(T[8])}
    v_add_u32 {V(T[8])}, {FF}, {V(T[8])}
    s_mov_b64 exec, 0xffff
    ds_write_b32 {V(T[9])}, {V(T[6])}
    ds_write_b32 {V(T[8])}, {V(T[6])}
    s_mov_b64 exec, -1
    L_init2:
    s_waitcnt lgkmcnt(0)
    s_barrier
    s_lshl_b32 {S(sT0)}, {S(sCH0)}, 1
    s_load_dwordx2 {S(sDS,2)}, {S(sDSK,2)}, {S(sT0)}
    s_getreg_b32 {S(sXCC)}, hwreg(HW_REG_XCC_ID, 0, 4)
    s_mov_b32 {S(sONES)}, 0x3f803f80
    s_mov_b32 {S(sHI)}, 0xffff0000
    s_lshr_b32 {S(sT0)}, {S(sW)}, 2
    s_xor_b32 {S(sT0)}, {S(sT0)}, {S(sWI)}
    s_xor_b32 {S(sT0)}, {S(sT0)}, {S(sH)}
    s_xor_b32 {S(sT0)}, {S(sT0)}, 1
    s_and_b32 {S(sT0)}, {S(sT0)}, 1
    s_lshl_b32 {S(sT)}, {S(sWI)}, 1
    s_add_u32 {S(sT)}, {S(sT)}, {S(sT0)}
    s_lshr_b32 {S(sT0)}, {S(sJ)}, 3
    s_and_b32 {S(sT1)}, {S(sJ)}, 7
    ''')
    ssum(sF8, (sT0, 6), (sK, 3), (sT1, 0))
    a(f'''
    s_cmp_lt_u32 {S(sF8)}, 172
    s_cselect_b32 {S(sPROD)}, 1, 0
    s_cselect_b32 {S(sF8)}, {S(sF8)}, {S(sJ)}
    ''')

    pos = [vXF + i for i in range(7)]
    a(f'v_lshlrev_b32 {V(T[0])}, 2, v0')
    a(f's_cmp_eq_u32 {S(sW)}, 0\ns_cbranch_scc1 L_pos0')
    for i in range(7): a(f'v_add_u32 {V(pos[i])}, {i-3}, {V(T[0])}')
    for i in range(7): a(f'v_cvt_f32_u32 {V(pos[i])}, {V(pos[i])}')
    for i in range(0, 7, 2):
        j = min(i + 1, 6)
        a(f'v_cvt_pk_bf16_f32 {V(T[8+i//2])}, {V(pos[i])}, {V(pos[j])}')
    a(f'v_mov_b32 {V(T[1])}, {4 - 0x4280}')
    for i in range(7):
        a(f'v_bfe_u32 {V(pos[i])}, {V(T[8+i//2])}, {16*(i&1)}, 16')
        a(f'v_add_u32 {V(pos[i])}, {V(T[1])}, {V(pos[i])}')
    a('s_branch L_pos_done')
    a('L_pos0:')
    for i in range(7): a(f'v_add_u32 {V(pos[i])}, {i+1}, {V(T[0])}')
    a('L_pos_done:')
    b1, b2 = T[1], T[2]
    a(f'''
    v_and_b32 {V(b1)}, -2, {V(pos[2])}
    v_add_u32 {V(b1)}, -2, {V(b1)}
    v_and_b32 {V(b2)}, -2, {V(pos[3])}
    v_add_u32 {V(T[3])}, {V(b1)}, {V(b1)}
    v_add_u32 {V(T[4])}, {V(b2)}, {V(b2)}
    ''')
    for c in range(4):
        a(f'v_add_u32 {V(vGA+2*c)}, {TAB + c*TS}, {V(T[3])}')
        a(f'v_add_u32 {V(vGA+2*c+1)}, {TAB + c*TS}, {V(T[4])}')
    for i in range(3): a(f'v_sub_u32 {V(pos[i])}, {V(pos[i])}, {V(b1)}')
    for i in range(3, 7): a(f'v_sub_u32 {V(pos[i])}, {V(pos[i])}, {V(b2)}')
    a(f's_movk_i32 {S(sT0)}, 0x0202\nv_mov_b32 {V(T[3])}, 0x0100')
    for i in range(7): a(f'v_mad_u32_u24 {V(pos[i])}, {V(pos[i])}, {S(sT0)}, {V(T[3])}')
    for dst, lo, hi in ((0, 1, 0), (1, 2, 1), (2, 3, 2), (3, 4, 3), (4, 5, 4), (5, 6, 5)):
        a(f'v_lshl_or_b32 {V(vSEL+dst)}, {V(pos[hi])}, 16, {V(pos[lo])}')
    a(f'v_add_u32 {V(vSEL+2)}, 0x{(2*0x0202 - 2*0x02020000) & 0xffffffff:x}, {V(vSEL+2)}')
    a(f'''
    v_and_b32 {V(T[0])}, -4, v0
    v_lshlrev_b32 {V(T[0])}, 2, {V(T[0])}
    v_lshl_add_u32 {V(vR4W)}, v0, 5, {V(T[0])}
    v_add_u32 {V(vR4W)}, {R4 + 144}, {V(vR4W)}
    ''')
    a(f's_lshl_b32 {S(sT0)}, {S(sT)}, 6')
    a(f'v_add_u32 {V(T[0])}, {S(sT0)}, {V(vL)}')
    ssum(sINB, (sK, 18), (sCGL, 14), W_IN)
    ssum(sT1, (sK, 9), W_FL)
    ssum(sT2, (sK, 5), W_ST + 12)
    a(f'''
    v_lshlrev_b32 {V(vROW)}, 2, {V(T[0])}
    v_lshlrev_b32 {V(vUW)}, 3, {V(T[0])}
    v_add_u32 {V(vUW)}, {U + 480}, {V(vUW)}
    v_lshlrev_b32 {V(vST0)}, 4, {V(T[0])}
    v_add_u32 {V(vST1)}, {W_ST + 8192}, {V(vST0)}
    v_add_u32 {V(vST0)}, {W_ST}, {V(vST0)}
    s_lshl_b32 {S(sT0)}, {S(sCH0)}, 1
    v_lshl_add_u32 {V(vXG)}, {V(T[0])}, 12, {S(sT0)}
    v_lshrrev_b32 {V(T[1])}, 2, {V(T[0])}
    v_lshl_add_u32 {V(vFL)}, {V(T[1])}, 2, {S(sT1)}
    v_and_b32 {V(T[2])}, 3, {V(vL)}
    v_lshl_add_u32 {V(T[2])}, {V(T[2])}, 4, {S(sINB)}
    v_lshl_add_u32 {V(vIN)}, {V(T[1])}, 7, {V(T[2])}
    v_lshrrev_b32 {V(T[1])}, 4, {V(T[0])}
    v_lshl_add_u32 {V(vXC)}, {V(T[1])}, 8, {S(sT2)}
    ''')
    smul(sT1, sWI, US, U + 480)
    a(f'''
    v_and_b32 {V(T[0])}, 31, {V(vL)}
    v_lshrrev_b32 {V(T[1])}, 5, {V(vL)}
    s_lshl_b32 {S(sT0)}, {S(sW)}, 8
    v_lshl_add_u32 {V(T[2])}, {V(T[1])}, 4, {S(sT0)}
    s_movk_i32 {S(sT0)}, {RS}
    v_mad_u32_u24 {V(vKB)}, {V(T[0])}, {S(sT0)}, {V(T[2])}
    v_add_u32 {V(T[3])}, -16, {V(T[0])}
    v_cmp_lt_u32 vcc, 20, {V(T[0])}
    v_lshl_add_u32 {V(vPD)}, {V(vL)}, 4, {S(sT1)}
    v_cndmask_b32 {V(T[3])}, {V(T[0])}, {V(T[3])}, vcc
    v_mad_u32_u24 {V(vKA)}, {V(T[3])}, {S(sT0)}, {V(T[2])}
    v_add_u32 {V(vKA)}, {STAGE + 32*RS}, {V(vKA)}
    v_and_b32 {V(T[5])}, 15, {V(vL)}
    v_lshrrev_b32 {V(T[6])}, 4, {V(vL)}
    s_cmp_ge_u32 {S(sW)}, 4
    s_cbranch_scc1 L_h_setup
    ''')

    smul(sT0, sW, R4S, R4)
    a(f'v_lshlrev_b32 {V(T[3])}, 3, {V(T[6])}\nv_sub_u32 {V(T[3])}, {V(T[5])}, {V(T[3])}')
    for reg, k in ((vCA, 32), (vCA2, 28)):
        a(f'''
        v_add_u32 {V(T[4])}, {k}, {V(T[3])}
        v_lshrrev_b32 {V(T[7])}, 4, {V(T[4])}
        v_lshl_add_u32 {V(reg)}, {V(T[4])}, 3, {S(sT0)}
        v_lshl_add_u32 {V(reg)}, {V(T[7])}, 4, {V(reg)}
        ''')
    smul(sT0, sW, US, U)
    a(f'''
    v_lshl_add_u32 {V(T[3])}, {V(T[6])}, 4, {S(sT0)}
    v_lshl_add_u32 {V(vCB)}, {V(T[5])}, 5, {V(T[3])}
    ''')
    smul(sT0, sW, YCS, YX)
    a(f'''
    v_mul_u32_u24 {V(T[3])}, {YGS}, {V(T[6])}
    v_lshl_add_u32 {V(T[3])}, {V(T[5])}, 4, {V(T[3])}
    v_add_u32 {V(vY)}, {S(sT0)}, {V(T[3])}
    ''')
    slw, slw1, slr, slr1, ina, ina1, tga, pfa_c = [vXN + i for i in range(8)]
    ssum(sT0, (sW, 11), SL)
    a(f'''
    v_lshrrev_b32 {V(T[0])}, 3, {V(vL)}
    v_and_b32 {V(T[1])}, 7, {V(vL)}
    v_xor_b32 {V(T[2])}, {V(T[6])}, {V(T[1])}
    v_lshl_add_u32 {V(T[2])}, {V(T[2])}, 4, {S(sT0)}
    v_lshl_add_u32 {V(slw)}, {V(T[0])}, 7, {V(T[2])}
    v_xor_b32 {V(slw1)}, 64, {V(slw)}
    v_and_b32 {V(T[2])}, 3, {V(vL)}
    v_bfe_u32 {V(T[3])}, {V(vL)}, 2, 1
    v_lshl_add_u32 {V(T[2])}, {V(T[2])}, 1, {V(T[3])}
    v_xor_b32 {V(T[3])}, {V(T[6])}, {V(T[2])}
    v_lshl_add_u32 {V(T[3])}, {V(T[3])}, 4, {S(sT0)}
    v_lshl_add_u32 {V(T[3])}, {V(T[2])}, 8, {V(T[3])}
    v_and_b32 {V(T[4])}, 1, {V(T[0])}
    v_lshl_add_u32 {V(slr)}, {V(T[4])}, 3, {V(T[3])}
    v_xor_b32 {V(slr1)}, 64, {V(slr)}
    ''')
    ssum(sT0, (sK, 18), (sJ, 9), (sW, 7), W_IN)
    a(f'''
    v_lshl_add_u32 {V(T[1])}, {V(T[1])}, 4, {S(sT0)}
    v_lshl_add_u32 {V(ina)}, {V(T[0])}, 14, {V(T[1])}
    v_add_u32 {V(ina1)}, 0x20000, {V(ina)}
    ''')
    ssum(sT0, (sK, 9), (sJ, 4), (sW, 2), W_FL)
    a(f'v_mov_b32 {V(vFLO)}, {S(sT0)}')
    ssum(sT0, (sW, 2), TG)
    a(f'v_mov_b32 {V(tga)}, {S(sT0)}')
    for r in (vA4, vA5, vA6, vA7, vB0, vB1, vB5, vPFA): a(f'v_mov_b32 {V(r)}, 4096')
    for r in (sPB, sM, sM+2, sM+4, sM+6): a(f's_mov_b64 {S(r,2)}, {S(sWD,2)}')
    a(f"s_waitcnt vmcnt({7 + o['tlb']})")
    stamp(1)
    a(f'''
    ds_write_b128 {V(slw)}, {V(vD,4)}
    ds_write_b128 {V(slw1)}, {V(vD+4,4)} offset:1024
    ds_read_b64 {V(vG,2)}, {V(slr)}
    ds_read_b64 {V(vG+2,2)}, {V(slr)} offset:128
    ds_read_b64 {V(vG+4,2)}, {V(slr1)}
    ds_read_b64 {V(vG+6,2)}, {V(slr1)} offset:128
    s_waitcnt lgkmcnt(0)
    global_store_dwordx4 {V(ina)}, {V(vG,4)}, {S(sWS,2)}
    global_store_dwordx4 {V(ina1)}, {V(vG+4,4)}, {S(sWS,2)}
    s_waitcnt vmcnt({2 + o['tlb']})
    s_branch L_kgen
    ''')

    a('L_h_setup:')
    smul(sT0, sWI, YTS, YX)
    a(f'''
    v_and_b32 {V(T[2])}, 3, {V(vL)}
    v_lshrrev_b32 {V(T[3])}, 2, {V(vL)}
    v_mul_u32_u24 {V(T[2])}, {YGS}, {V(T[2])}
    v_lshl_add_u32 {V(T[2])}, {V(T[3])}, 4, {V(T[2])}
    v_add_u32 {V(vY)}, {S(sT0)}, {V(T[2])}
    ''')
    smul(sT0, sWI, TS, TAB + 8)
    a(f'''
    v_lshl_add_u32 {V(T[2])}, {V(T[1])}, 3, {S(sT0)}
    v_lshl_add_u32 {V(vTW1)}, {V(T[0])}, 4, {V(T[2])}
    v_sub_u32 {V(T[2])}, 3, {V(T[1])}
    v_lshlrev_b32 {V(T[2])}, {V(T[2])}, {V(T[0])}
    v_lshl_add_u32 {V(T[3])}, {V(T[1])}, 8, {S(sT0)}
    v_add_u32 {V(T[3])}, 512, {V(T[3])}
    v_add_u32 {V(vTW2)}, {V(T[2])}, {V(T[3])}
    v_mul_u32_u24 {V(T[2])}, 124, {V(T[1])}
    v_add3_u32 {V(vTW3)}, {V(vTW2)}, {V(T[2])}, 4
    v_lshl_add_u32 {V(vTW4)}, {V(T[0])}, 1, {V(T[3])}
    v_add_u32 {V(vTW4)}, 512, {V(vTW4)}
    ''')
    ssum(sT0, (sWI, 11), WL)
    a(f'''
    v_lshrrev_b32 {V(T[2])}, 2, {V(T[5])}
    v_lshl_add_u32 {V(T[2])}, {V(T[6])}, 2, {V(T[2])}
    v_bfe_u32 {V(T[3])}, {V(vL)}, 1, 1
    v_mul_u32_u24 {V(T[3])}, {WL1}, {V(T[3])}
    v_lshl_add_u32 {V(T[2])}, {V(T[2])}, 4, {V(T[3])}
    v_and_b32 {V(T[3])}, 1, {V(vL)}
    v_lshl_add_u32 {V(T[2])}, {V(T[3])}, 3, {V(T[2])}
    v_add_u32 {V(vWT)}, {S(sT0)}, {V(T[2])}
    s_lshl_b32 {S(sT0)}, {S(sWI)}, 7
    v_add_u32 {V(T[2])}, {S(sT0)}, {V(vL)}
    s_lshl_b32 {S(sT1)}, {S(sF8)}, 4
    v_mul_u32_u24 {V(T[2])}, 2752, {V(T[2])}
    v_add_u32 {V(vWS0)}, {S(sT1)}, {V(T[2])}
    v_and_b32 {V(T[2])}, 255, v0
    ''')
    ssum(sT0, (sF8, 13), (sWI, 8))
    ssum(sT1, (sF8, 5), W_FP)
    ssum(sT2, (sWI, 11), SL)
    a(f'''
    v_lshl_add_u32 {V(vWDA)}, {V(T[5])}, 4, {S(sT0)}
    v_lshl_add_u32 {V(vWDA)}, {V(T[6])}, 10, {V(vWDA)}
    v_add_u32 {V(vWS1)}, 4096, {V(vWDA)}
    v_lshl_add_u32 {V(vWDR)}, {V(vL)}, 2, {S(sT2)}
    v_lshrrev_b32 {V(T[4])}, 1, {V(T[2])}
    v_mul_u32_u24 {V(T[4])}, 6144, {V(T[4])}
    v_lshl_add_u32 {V(T[4])}, {V(T[3])}, 4, {V(T[4])}
    v_add_u32 {V(vFPA)}, {S(sT1)}, {V(T[4])}
    v_lshlrev_b32 {V(T[2])}, 3, {V(T[6])}
    v_lshl_add_u32 {V(vXS)}, {V(T[5])}, 6, {V(T[2])}
    ''')
    ssum(sT0, (sWI, 8), FP)
    ssum(sT1, (sWI, 2), FF)
    a(f'''
    v_lshl_add_u32 {V(vFPW)}, {V(vL)}, 2, {S(sT0)}
    v_lshlrev_b32 {V(vFPR)}, 2, {V(T[5])}
    v_add_u32 {V(vFPR)}, {FP}, {V(vFPR)}
    v_mov_b32 {V(vFFW)}, {S(sT1)}
    s_lshr_b32 {S(sT1)}, {S(sWI)}, 1
    s_and_b32 {S(sT2)}, {S(sWI)}, 1
    ''')
    ssum(sT0, (2, 5), (sT1, 4), (sT2, 13), W_ST)
    a(f'v_mov_b32 {V(vSTP)}, {S(sT0)}')
    rk = vXN
    ssum(sT0, (2, 3), (sWI, 1))
    a(f'''
    s_sub_u32 {S(sT0)}, 0xffff, {S(sT0)}
    v_sub_u32 {V(rk)}, {S(sT0)}, {V(T[1])}
    ''')
    ssum(sT0, (sWI, 11), WL)
    for t in range(4):
        a(f'''
        s_add_u32 {S(sT1)}, {S(sJ) if o['rot'] else 0}, {t}
        s_bitcmp1_b32 {S(sT1)}, 1
        s_cselect_b64 {S(sM+2*t,2)}, {S(sWU,2)}, {S(sWG,2)}
        s_cselect_b32 {S(sT2)}, {WL1}, 0
        s_add_u32 {S(sT2)}, {S(sT2)}, {S(sT0)}
        s_bitcmp1_b32 {S(sT1)}, 0
        s_cselect_b32 {S(sT1)}, {64*2752}, 0
        s_cselect_b32 {S(sT3)}, 1024, 0
        s_add_u32 {S(sH8+t)}, {S(sT2)}, {S(sT3)}
        s_add_u32 {S(sM+2*t)}, {S(sM+2*t)}, {S(sT1)}
        s_addc_u32 {S(sM+2*t+1)}, {S(sM+2*t+1)}, 0
        ''')
    pfi = vXN + 1; pfa = vPFA
    ssum(sT0, (sH, 13), (sWI, 11), (sINB, 0))
    a(f'v_lshl_add_u32 {V(pfi)}, {V(T[5])}, 7, {S(sT0)}')
    a(f'''
    s_lshl_b32 {S(sT0)}, {S(sF8)}, 13
    v_lshl_add_u32 {V(pfa)}, {V(vL)}, 7, {S(sT0)}
    s_mov_b64 {S(sPB,2)}, {S(sWD,2)}
    s_cmp_eq_u32 {S(sWI)}, 3
    s_cbranch_scc1 L_pf_done
    s_mov_b64 {S(sPB,2)}, {S(sWG,2)}
    s_bitcmp1_b32 {S(sJ)}, 0
    s_cbranch_scc0 L_pf_gate
    s_mov_b64 {S(sPB,2)}, {S(sWU,2)}
    L_pf_gate:
    s_lshr_b32 {S(sT1)}, {S(sJ)}, 1
    s_lshl_b32 {S(sT1)}, {S(sT1)}, 5
    v_lshrrev_b32 {V(T[2])}, 1, {V(vL)}
    v_add_u32 {V(T[2])}, {S(sT1)}, {V(T[2])}
    v_mul_u32_u24 {V(T[2])}, 2752, {V(T[2])}
    v_mul_u32_u24 {V(T[3])}, 124, {V(T[3])}
    ''')
    ssum(sT0, (sWI, 10), (sK, 7))
    a(f'''
    s_min_u32 {S(sT0)}, {S(sT0)}, 2624
    v_add3_u32 {V(pfa)}, {V(T[2])}, {V(T[3])}, {S(sT0)}
    L_pf_done:
    ''')
    S1, S2, S3, S4 = vXF, vXF + 1, vXF + 2, vXF + 3

    def red32(regs):
        for m in ('row_shr:1', 'row_shr:2', 'row_shr:4', 'row_shr:8'):
            for r in regs: a(f'v_add_f32_dpp {V(r)}, {V(r)}, {V(r)} {m} row_mask:0xf bank_mask:0xf')
        for r in regs: a(f'v_add_f32_dpp {V(r)}, {V(r)}, {V(r)} row_bcast:15 row_mask:0xa bank_mask:0xf')
    for r in (S1, S2, S3, S4): a(f'v_mov_b32 {V(r)}, 0')
    e2 = o['tlb'] + (1 if o['wpf'] == 2 else 0)
    if o['wpf'] == 2: a(f'global_load_dword {V(vPFW)}, {V(vPFA)}, {S(sPB,2)} nt')
    a(f's_waitcnt vmcnt({10 + e2})')
    for i in range(8): a(f'v_dot2_f32_bf16 {V(S4)}, {V(vG+i)}, {S(sONES)}, {V(S4)}')
    red32([S4])
    a(f's_waitcnt vmcnt({8 + e2})')
    stamp(1)
    nlate = e2
    if o['prefetch']:
        a('s_mov_b64 exec, 0xffff')
        a(f'global_load_dword {V(vPFD)}, {V(pfi)}, {S(sWS,2)} nt'); nlate += 1
        alllanes()
    for i in range(8):
        a(f'v_dot2_f32_bf16 {V(S1)}, {V(vD+i)}, {S(sONES)}, {V(S1)}')
        a(f'v_dot2_f32_bf16 {V(S2)}, {V(vD+i)}, {V(vD+i)}, {V(S2)}')
        a(f'v_dot2_f32_bf16 {V(S3)}, {V(vD+i)}, {V(vG+i)}, {V(S3)}')
    red32([S1, S2, S3])
    t = T[0]; g = vE
    a(f'''
    v_mul_f32 {V(S1)}, 0x3b000000, {V(S1)}
    v_mul_f32 {V(S2)}, 0x3b000000, {V(S2)}
    s_waitcnt vmcnt({7 + nlate})
    v_fma_f32 {V(S2)}, -{V(S1)}, {V(S1)}, {V(S2)}
    v_readfirstlane_b32 {S(sTAG)}, {V(vEP)}
    v_max_f32 {V(S2)}, 0, {V(S2)}
    v_cvt_pk_bf16_f32 {V(t)}, {V(S1)}, {V(S2)}
    s_add_u32 {S(sTAG)}, {S(sTAG)}, 16
    v_and_b32 {V(t)}, {S(sHI)}, {V(t)}
    s_and_b32 {S(sTAG)}, {S(sTAG)}, -16
    v_add_f32 {V(t)}, 0x3727c5ac, {V(t)}
    s_or_b32 {S(sTAGX)}, {S(sTAG)}, {S(sXCC)}
    v_cvt_pk_bf16_f32 {V(t)}, {V(t)}, {V(t)}
    v_and_b32 {V(t)}, {S(sHI)}, {V(t)}
    v_sqrt_f32 {V(t)}, {V(t)}
    v_mov_b32 {V(g+3)}, {S(sTAGX)}
    v_cvt_pk_bf16_f32 {V(g+1)}, {V(S1)}, {V(t)}
    v_and_b32 {V(t)}, {S(sHI)}, {V(g+1)}
    v_lshlrev_b32 {V(t+1)}, 16, {V(g+1)}
    v_rcp_f32 {V(t)}, {V(t)}
    v_fma_f32 {V(S3)}, -{V(t+1)}, {V(S4)}, {V(S3)}
    v_readlane_b32 {S(sT0)}, {V(g+1)}, 31
    v_mul_f32 {V(S3)}, {V(S3)}, {V(t)}
    v_cvt_pk_bf16_f32 {V(S3)}, {V(S3)}, {V(S3)}
    v_mov_b32 {V(g)}, {S(sT0)}
    v_ashrrev_i32 {V(t)}, 31, {V(S3)}
    v_or_b32 {V(t)}, 0x80000000, {V(t)}
    v_xor_b32 {V(t)}, {V(t)}, {V(S3)}
    v_and_or_b32 {V(t)}, {V(t)}, {S(sHI)}, {V(rk)}
    s_add_u32 {S(sT1)}, {S(sTAG)}, 1
    v_readlane_b32 {S(sT0)}, {V(t)}, 31
    v_mov_b32 {V(t+2)}, {S(sT1)}
    v_max_u32 {V(g+2)}, {S(sT0)}, {V(t)}
    ''')
    lane63()
    a(f'global_store_dwordx4 {V(vSTP)}, {V(g,4)}, {S(sWS,2)} sc1')
    a(f'ds_write_b32 {V(vFFW)}, {V(t+2)} offset:{TG - FF}')
    alllanes()
    a(f"s_setprio 0\ns_waitcnt vmcnt({1 + nlate}) lgkmcnt(0)")
    stamp(2)

    a('L_kgen:')
    are, aim, bre, bim, cre, cim, dt = [vP + i for i in range(7)]
    t0 = vP + 7
    z1, z2, z4, ZZ, w1, w2, w4 = [vP + 8 + 2 * i for i in range(7)]
    hq = [vP + 24 + 2 * i for i in range(8)]
    lq = [vP + 40 + 2 * i for i in range(8)]
    cv = [vP + 56 + i for i in range(8)]
    a(f'''
    v_mov_b32 {V(t0)}, 0x3fb8aa3b
    v_mul_f32 {V(dt)}, {V(dt)}, {V(t0)}
    v_exp_f32 {V(dt)}, {V(dt)}
    v_mul_f32 {V(are)}, {V(t0)}, {V(are)}
    v_cvt_pk_bf16_f32 {V(dt)}, {V(dt)}, {V(dt)}
    v_mul_f32 {V(aim)}, 0.15915494, {V(aim)}
    v_and_b32 {V(dt)}, {S(sHI)}, {V(dt)}
    v_mul_f32 {V(are)}, {V(dt)}, {V(are)}
    v_mul_f32 {V(aim)}, {V(dt)}, {V(aim)}
    v_exp_f32 {V(cv[0])}, {V(are)}
    v_fract_f32 {V(cv[1])}, {V(aim)}
    v_mul_f32 {V(are)}, 0x43800000, {V(are)}
    v_cos_f32 {V(z1)}, {V(cv[1])}
    v_mul_f32 {V(aim)}, 0x43800000, {V(aim)}
    v_sin_f32 {V(z1+1)}, {V(cv[1])}
    v_fract_f32 {V(cv[3])}, {V(aim)}
    v_exp_f32 {V(cv[2])}, {V(are)}
    v_mul_f32 {V(z1)}, {V(cv[0])}, {V(z1)}
    v_cos_f32 {V(ZZ)}, {V(cv[3])}
    v_mul_f32 {V(z1+1)}, {V(cv[0])}, {V(z1+1)}
    v_sin_f32 {V(ZZ+1)}, {V(cv[3])}
    v_mul_f32 {V(bre)}, {V(dt)}, {V(bre)}
    v_mul_f32 {V(bim)}, {V(dt)}, {V(bim)}
    ''')
    cmul(z2, z1, z1)
    a(f'v_mul_f32 {V(ZZ)}, {V(cv[2])}, {V(ZZ)}\nv_mul_f32 {V(ZZ+1)}, {V(cv[2])}, {V(ZZ+1)}')
    cmul(z4, z2, z2)
    cmul(hq[0], cre, bre)
    ci = [0]; m0_hi = [False]

    def put(row, reg, neg):
        c = cv[ci[0] % 8]; ci[0] += 1
        a(f"v_cvt_pk_bf16_f32 {V(c)}, {V(reg)}, {'-' if neg else ''}{V(reg+1)}")
        off = row * RS - (30 * RS if m0_hi[0] else 0)
        assert 0 <= off < 65536, (row, off)
        a(f'ds_write_addtid_b32 {V(c)} offset:{STAGE + off}')
    cmul(w1, z4, z4)
    cmul(hq[1], hq[0], z1)
    cmul(w2, w1, w1)
    put(1, w1, False)
    cmul(hq[2], hq[0], z2)
    cmul(lq[3], w2, w1)
    put(2, w2, False)
    cmul(w4, w2, w2)
    put(3, lq[3], False)
    cur = {1: w1, 2: w2, 3: lq[3], 4: w4}
    put(4, w4, False)

    def lo_step(j):
        d = lq[j % 8]
        cmul(d, cur[j - 4], w4); cur[j] = d
        put(j, d, False)
    for j in range(5, 12): lo_step(j)
    a(f's_cmp_ge_u32 {S(sW)}, 4\ns_cbranch_scc1 L_noflag')
    spin_init()
    a(f'''
    L_tagspin:
    ds_read_b32 {V(T[0])}, {V(tga)}
    s_waitcnt lgkmcnt(0)
    v_readfirstlane_b32 {S(sTAG)}, {V(T[0])}
    s_cmp_lg_u32 {S(sTAG)}, 0
    s_cbranch_scc1 L_tagok
    ''')
    spin_next('L_tagspin')
    a(f'''
    L_tagok:
    s_and_b32 {S(sTAG)}, {S(sTAG)}, -16
    s_or_b32 {S(sTAGX)}, {S(sTAG)}, {S(sXCC)}
    v_mov_b32 {V(T[0])}, {S(sTAGX)}
    s_mov_b64 exec, 1
    s_waitcnt vmcnt(0)
    global_store_dword {V(vFLO)}, {V(T[0])}, {S(sWS,2)}
    s_mov_b64 exec, -1
    ''')
    stamp(2)
    a('L_noflag:')
    for j in range(12, 30): lo_step(j)
    ssum(sT0, (sW, 8), 30 * RS)
    a(f's_mov_b32 m0, {S(sT0)}')
    m0_hi[0] = True
    for j in range(30, 32): lo_step(j)
    put(32, hq[0], True); put(33, hq[1], True); put(34, hq[2], True)
    cmul(hq[3], hq[1], z2); cmul(hq[4], hq[0], z4)
    put(35, hq[3], True); put(36, hq[4], True)
    a(f'global_load_dword {V(vPFD)}, {V(vFL)}, {S(sWS,2)} sc1')
    cmul(hq[5], hq[1], z4); cmul(hq[6], hq[2], z4); cmul(hq[7], hq[3], z4)
    put(37, hq[5], True); put(38, hq[6], True); put(39, hq[7], True)
    A0, A2, A4, A6, B0, B4, C0, C4 = lq
    cmul(A0, hq[0], ZZ); cmul(A2, hq[2], ZZ); cmul(A4, hq[4], ZZ); cmul(A6, hq[6], ZZ)
    put(40, A0, True)
    cmul(B0, A0, ZZ); put(41, A2, True); cmul(B4, A4, ZZ); put(42, A4, True)
    cmul(C0, B0, ZZ); put(43, A6, True); cmul(C4, B4, ZZ); put(44, B0, True)
    cmul(hq[1], C0, ZZ); put(45, B4, True); put(46, C0, True)
    cmul(hq[2], hq[1], ZZ); put(47, C4, True); put(48, hq[1], True)
    cmul(hq[3], hq[2], ZZ); put(49, hq[2], True)
    cmul(hq[4], hq[3], ZZ); put(50, hq[3], True)
    cmul(hq[5], hq[4], ZZ); put(51, hq[4], True); put(52, hq[5], True)
    stamp(3)

    KD = vP; KF = vP + 16; NB = o['nb']

    def kread(sidx):
        r = KF + 8 * (sidx % NB)
        a(f'ds_read_b128 {V(r,4)}, {V(vKA)} offset:{32*sidx}')
        a(f'ds_read_b128 {V(r+4,4)}, {V(vKB)} offset:{32*sidx}')

    def kmfma(cinit):
        for sidx in range(8):
            outstanding = min(8, sidx + NB) - sidx - 1
            a(f's_waitcnt lgkmcnt({2*outstanding})')
            r = KF + 8 * (sidx % NB)
            a(f"v_mfma_f32_32x32x16_bf16 {V(KD,16)}, {V(r,4)}, {V(r+4,4)}, {'0' if (sidx == 0 and not cinit) else V(KD,16)}")
            if sidx + NB < 8: kread(sidx + NB)

    def fetch_tile(tag):
        a(f's_waitcnt vmcnt(0)\nv_cmp_ne_u32 vcc, {S(sTAGX)}, {V(vPFD)}')
        if o['force_slow']: a(f's_branch L_gather{tag}')
        a(f's_cbranch_vccz L_fast{tag}')
        spin_init()
        a(f'''
        L_flagspin{tag}:
        global_load_dword {V(vPFD)}, {V(vFL)}, {S(sWS,2)} sc1
        global_load_dword {V(T[0])}, {V(vXC)}, {S(sWS,2)} sc1
        s_waitcnt vmcnt(0)
        v_cmp_ne_u32 vcc, {S(sTAGX)}, {V(vPFD)}
        s_cbranch_vccz L_fast{tag}
        v_xor_b32 {V(T[0])}, {S(sTAGX)}, {V(T[0])}
        v_add_u32 {V(T[0])}, -1, {V(T[0])}
        v_cmp_gt_u32 vcc, 15, {V(T[0])}
        s_cbranch_vccnz L_gather{tag}
        ''')
        spin_next(f'L_flagspin{tag}')
        a(f'L_gather{tag}:')
        for r in range(4):
            a(f'global_load_dwordx2 {V(vD+2*r,2)}, {V(vXG)}, {S(sX,2)} offset:{r*1024}')
        a(f'''
        s_branch L_stats{tag}
        L_fast{tag}:
        global_load_dwordx4 {V(vD,4)}, {V(vIN)}, {S(sWS,2)} sc1
        global_load_dwordx4 {V(vD+4,4)}, {V(vIN)}, {S(sWS,2)} offset:64 sc1
        L_stats{tag}:
        global_load_dwordx4 {V(vG,4)}, {V(vST0)}, {S(sWS,2)} sc1
        global_load_dwordx4 {V(vG+4,4)}, {V(vST1)}, {S(sWS,2)} sc1
        ''')

    a(f's_cmp_ge_u32 {S(sW)}, 4\ns_cbranch_scc1 L_h_k')
    for i in range(NB): kread(i)
    kmfma(False)
    a(f'v_mov_b32 {V(T[1])}, 1')
    for i in range(3): a(f'ds_write_b128 {V(vPD)}, {V(KD+4*i,4)} offset:{1024*i}')
    a(f's_mov_b64 exec, 1\nds_write_b32 {V(tga)}, {V(T[1])} offset:{PF - TG}\ns_mov_b64 exec, -1')
    stamp(4)
    fetch_tile('c')
    a('s_branch L_b3')
    a('L_h_k:')
    spin_init()
    a(f'''
    L_pspin:
    ds_read_b32 {V(T[1])}, {V(vFFW)} offset:{PF - FF}
    ''')
    for i in range(3): a(f'ds_read_b128 {V(KD+4*i,4)}, {V(vPD)} offset:{1024*i}')
    for i in range(NB - 1): kread(i)
    a(f'''
    s_waitcnt lgkmcnt({2*(NB-1) + 3})
    v_readfirstlane_b32 {S(sT0)}, {V(T[1])}
    s_cmp_lg_u32 {S(sT0)}, 0
    s_cbranch_scc1 L_pok
    s_waitcnt lgkmcnt(0)
    ''')
    spin_next('L_pspin')
    a('L_pok:')
    kread(NB - 1)
    kmfma(True)
    for i in range(6): a(f'v_cvt_pk_bf16_f32 {V(T[i])}, {V(KD+2*i)}, {V(KD+2*i+1)}')
    a(f'''
    ds_write_b64 {V(vTW1)}, {V(T[0],2)}
    ds_write_b32 {V(vTW2)}, {V(T[2])}
    ds_write_b32 {V(vTW3)}, {V(T[3])}
    ds_write_b16 {V(vTW4)}, {V(T[4])}
    ds_write_b16_d16_hi {V(vTW4)}, {V(T[4])} offset:64
    ds_write_b16 {V(vTW4)}, {V(T[5])} offset:128
    ds_write_b16_d16_hi {V(vTW4)}, {V(T[5])} offset:192
    ''')
    stamp(4)
    fetch_tile('h')
    if o['wpf'] == 1: a(f'global_load_dword {V(vPFW)}, {V(vPFA)}, {S(sPB,2)} nt')
    a('L_b3:\ns_waitcnt lgkmcnt(0)')
    stamp(5)
    a('s_barrier')

    def w_dma():
        ssum(sT0, (sWI, 11), SL)
        a(f's_mov_b32 m0, {S(sT0)}')
        a(f'global_load_lds_dwordx4 {V(vWDA)}, {S(sWD,2)} nt')
        a(f's_add_u32 m0, {S(sT0)}, 1024')
        a(f'global_load_lds_dwordx4 {V(vWS1)}, {S(sWD,2)} nt')
        for t in range(4):
            a(f's_mov_b32 m0, {S(sH8+t)}')
            a(f'global_load_lds_dwordx4 {V(vWS0)}, {S(sM+2*t,2)}')

    XP = vG
    def r4_build(tag, mid=None):
        Wq = vP; Q = vP + 16
        for c in range(4):
            a(f'ds_read2_b32 {V(Wq+4*c,2)}, {V(vGA+2*c)} offset0:0 offset1:1')
            a(f'ds_read2_b32 {V(Wq+4*c+2,2)}, {V(vGA+2*c+1)} offset0:0 offset1:1')
        if tag == 'c': a(f'''
        s_cmp_lg_u32 {S(sW)}, 3
        s_cbranch_scc1 L_nopad{tag}
        v_bfe_u32 {V(T[0])}, {V(vL)}, 3, 2
        v_and_b32 {V(T[1])}, 7, {V(vL)}
        v_mul_u32_u24 {V(T[0])}, {R4S}, {V(T[0])}
        v_lshl_add_u32 {V(T[0])}, {V(T[1])}, 4, {V(T[0])}
        ''')
        if tag == 'c':
            for i in range(4): a(f'v_mov_b32 {V(T[4+i])}, 0')
        if tag == 'c': a(f'''
        s_mov_b32 exec_hi, 0
        ds_write_b128 {V(T[0])}, {V(T[4],4)} offset:{R4}
        s_mov_b64 exec, -1
        s_waitcnt lgkmcnt(1)
        L_nopad{tag}:
        ''')
        if mid: mid()
        for c in range(4):
            W0, W1, W2, W3 = [Wq + 4 * c + i for i in range(4)]
            q = Q + 8 * c
            if not mid: a('s_waitcnt lgkmcnt(6)')
            a(f'''
            v_perm_b32 {V(q+0)}, {V(W2)}, {V(W1)}, {V(vSEL+2)}
            v_perm_b32 {V(q+1)}, {V(W1)}, {V(W0)}, {V(vSEL+0)}
            v_perm_b32 {V(q+2)}, {V(W3)}, {V(W2)}, {V(vSEL+3)}
            v_perm_b32 {V(q+3)}, {V(W1)}, {V(W0)}, {V(vSEL+1)}
            v_mov_b32 {V(q+5)}, {V(q+0)}
            ds_write_b128 {V(vR4W)}, {V(q,4)} offset:{c*R4S}
            v_perm_b32 {V(q+4)}, {V(W3)}, {V(W2)}, {V(vSEL+4)}
            v_perm_b32 {V(q+6)}, {V(W3)}, {V(W2)}, {V(vSEL+5)}
            v_mov_b32 {V(q+7)}, {V(q+2)}
            ds_write_b128 {V(vR4W)}, {V(q+4,4)} offset:{c*R4S + 16}
            ''')

    def normalise(tag):
        if tag == 'h' and o['wb3']:
            a(f's_cmp_eq_u32 {S(sPROD)}, 0\ns_cbranch_scc1 L_nw0')
            w_dma()
            a(f"s_waitcnt vmcnt(6)\ns_branch L_nw1\nL_nw0:\ns_waitcnt vmcnt(0)\nL_nw1:")
        else:
            a(f"s_waitcnt vmcnt({1 if (tag == 'h' and o['wpf'] == 1) else 0})")
        spin_init()
        a(f'''
        L_statspin{tag}:
        v_xor_b32 {V(T[0])}, {S(sTAG)}, {V(vG+3)}
        v_xor_b32 {V(T[1])}, {S(sTAG)}, {V(vG+7)}
        v_or_b32 {V(T[0])}, {V(T[0])}, {V(T[1])}
        v_cmp_lt_u32 vcc, 15, {V(T[0])}
        s_cbranch_vccz L_statok{tag}
        global_load_dwordx4 {V(vG,4)}, {V(vST0)}, {S(sWS,2)} sc1
        global_load_dwordx4 {V(vG+4,4)}, {V(vST1)}, {S(sWS,2)} sc1
        s_waitcnt vmcnt(0)
        ''')
        spin_next(f'L_statspin{tag}')
        a(f'L_statok{tag}:')
        stamp(7)
        stq = [vG, vG + 1, vG + 4, vG + 5]
        rho = [T[1], T[3], T[5], T[7]]; mu = [T[0], T[2], T[4], T[6]]
        key = T[8]
        for r in range(4): a(f'v_and_b32 {V(rho[r])}, {S(sHI)}, {V(stq[r])}')
        a(f'v_max_u32 {V(key)}, {V(vG+2)}, {V(vG+6)}')
        for r in range(4):
            a(f'v_rcp_f32 {V(rho[r])}, {V(rho[r])}')
            a(f'v_lshlrev_b32 {V(mu[r])}, 16, {V(stq[r])}')
        kred = ['row_shr:1 row_mask:0xf', 'row_shr:2 row_mask:0xf', 'row_shr:4 row_mask:0xf', 'row_shr:8 row_mask:0xf',
                'row_bcast:15 row_mask:0xa', 'row_bcast:31 row_mask:0xc']
        def kr(i): a(f'v_max_u32_dpp {V(key)}, {V(key)}, {V(key)} {kred[i]} bank_mask:0xf')
        for r in range(4):
            a(f'''
            v_mul_f32_e64 {V(mu[r])}, -{V(mu[r])}, {V(rho[r])}
            v_lshlrev_b32 {V(vXF+4*r)}, 16, {V(vD+2*r)}
            v_and_b32 {V(vXF+4*r+1)}, {S(sHI)}, {V(vD+2*r)}
            v_lshlrev_b32 {V(vXF+4*r+2)}, 16, {V(vD+2*r+1)}
            v_and_b32 {V(vXF+4*r+3)}, {S(sHI)}, {V(vD+2*r+1)}
            ''')
            kr(r)
            for c in range(4): a(f'v_fma_f32 {V(vXN+4*r+c)}, {V(vXF+4*r+c)}, {V(rho[r])}, {V(mu[r])}')
        kr(4)
        ssum(sT0, (sW, 2), AM)
        for c in range(4):
            a(f'''
            v_cvt_pk_bf16_f32 {V(XP+2*c)}, {V(vXN+c)}, {V(vXN+4+c)}
            v_cvt_pk_bf16_f32 {V(XP+2*c+1)}, {V(vXN+8+c)}, {V(vXN+12+c)}
            ds_write_b64 {V(vUW)}, {V(XP+2*c,2)} offset:{c*US}
            ''')
            if c == 0: kr(5)
            if c == 1: a(f'v_mov_b32 {V(T[9])}, {S(sT0)}')
        lane63()
        a(f'ds_write_b32 {V(T[9])}, {V(key)}')
        alllanes()

    a(f's_cmp_ge_u32 {S(sW)}, 4\ns_cbranch_scc1 L_h_r4')
    r4_build('c'); stamp(6); normalise('c')
    a('s_branch L_b4\nL_h_r4:')
    if o['hnormfirst']:
        def mid():
            normalise('h')
            if o['wpf'] == 3: a(f'global_load_dword {V(vPFW)}, {V(vPFA)}, {S(sPB,2)} nt')
            a('s_waitcnt lgkmcnt(5)'); stamp(6)
        r4_build('h', mid)
    else:
        r4_build('h'); stamp(6); normalise('h')
    a('L_b4:')
    a(f'v_mov_b32 {V(T[9])}, {AM}\ns_waitcnt lgkmcnt(0)')
    stamp(8)
    a('s_barrier')

    def read_idx():
        a(f'''
        ds_read_b128 {V(T[0],4)}, {V(T[9])}
        ds_read_b128 {V(T[4],4)}, {V(T[9])} offset:16
        s_waitcnt lgkmcnt(0)
        v_max3_u32 {V(T[0])}, {V(T[0])}, {V(T[1])}, {V(T[2])}
        v_max3_u32 {V(T[3])}, {V(T[3])}, {V(T[4])}, {V(T[5])}
        v_max3_u32 {V(T[0])}, {V(T[0])}, {V(T[6])}, {V(T[7])}
        v_max_u32 {V(T[0])}, {V(T[0])}, {V(T[3])}
        v_readfirstlane_b32 {S(sKEY)}, {V(T[0])}
        s_andn2_b32 {S(sIDX)}, 2047, {S(sKEY)}
        s_lshr_b32 {S(sT0)}, {S(sIDX)}, 8
        s_lshr_b32 {S(sT1)}, {S(sIDX)}, 9
        s_xor_b32 {S(sT0)}, {S(sT0)}, {S(sT1)}
        s_xor_b32 {S(sT0)}, {S(sT0)}, {S(sH)}
        s_andn2_b32 {S(sOWN)}, 1, {S(sT0)}
        ''')

    def stat_addr(dst):
        a(f's_lshr_b32 {S(sT0)}, {S(sIDX)}, 2\ns_bfe_u32 {S(sT1)}, {S(sIDX)}, 0x10001\ns_and_b32 {S(sT2)}, {S(sIDX)}, 1')
        ssum(sT0, (sT0, 4), (sT1, 13), (sT2, 2), W_ST)
        a(f'v_mov_b32 {V(dst)}, {S(sT0)}')

    a(f's_cmp_ge_u32 {S(sW)}, 4\ns_cbranch_scc1 L_helper')

    ACC = vP; FR = vP + 16; NFR = 28
    stamp(10)
    a(f's_setprio 1\ns_cmp_eq_u32 {S(sH)}, 0\ns_cbranch_scc0 L_conv1')

    def conv(h):
        tl = tiles(h)
        ops = []
        for c0 in range(8):
            lst = [(i, c1, q - c1) for i, q in enumerate(tl) for c1 in range(q + 1)]
            have = set(); seq = []
            while lst:
                def cost(x):
                    base = (2 * (('A', x[1]) not in have) + (('B', x[2]) not in have), bool(seq) and seq[-1][0] == x[0], max(x[1], x[2]))
                    return ((x[0],) + base) if c0 == 7 else base
                x = min(lst, key=cost); lst.remove(x); seq.append(x); have.add(('A', x[1])); have.add(('B', x[2]))
            for i, c1, qp in seq: ops.append((i, ('A', c0, c1), ('B', c0, qp)))
        order = []; last = {}; lastacc = {}
        for n, (i, ak, bk) in enumerate(ops):
            lastacc[i] = n
            for k in (bk, ak):
                if k not in last: order.append(k)
                last[k] = n
        L = []
        for k in order: L += [(k, 0), (k, 1)] if k[0] == 'A' else [(k, 0)]
        endidx = {}
        for j, (k, p) in enumerate(L): endidx[k] = j + 1
        need = []; m = 0
        for (i, ak, bk) in ops:
            m = max(m, endidx[ak], endidx[bk]); need.append(m)
        free = list(range(NFR)); slot = {}
        st = dict(issued=0, done=0)
        seqpos = []
        nds = [0]
        donepos = [0]
        MAXOUT = o['maxout']; G = o['group']

        def can_issue():
            if st['issued'] >= len(L) or nds[0] - donepos[0] >= MAXOUT: return False
            k, p = L[st['issued']]
            return p == 1 or bool(free)

        def issue():
            k, p = L[st['issued']]
            if p == 0: slot[k] = free.pop(0)
            r = FR + 4 * slot[k]
            if k[0] == 'A':
                a(f'ds_read_b64 {V(r+2*p,2)}, {V(vCA2 if p else vCA)} offset:{CAS*(8*k[2] + k[1])}')
            else:
                a(f'ds_read_b128 {V(r,4)}, {V(vCB)} offset:{2*(224 + 256*k[2] - 32*k[1])}')
            st['issued'] += 1; nds[0] += 1; seqpos.append(nds[0])
        started = set(); written = set()
        while can_issue(): issue()
        for n, (i, ak, bk) in enumerate(ops):
            if need[n] > st['done']:
                while st['issued'] < need[n]:
                    assert nds[0] - donepos[0] < 15
                    issue()
                tgt = need[n]
                for m2 in range(n, min(n + G, len(ops))):
                    if need[m2] <= st['issued'] - o['minfly'] or need[m2] <= len(L) == st['issued']: tgt = max(tgt, need[m2])
                a(f's_waitcnt lgkmcnt({nds[0] - seqpos[tgt-1]})'); st['done'] = tgt; donepos[0] = seqpos[tgt - 1]
            acc = ACC + 4 * i
            cin = V(acc, 4) if i in started else '0'
            started.add(i)
            a(f'v_mfma_f32_16x16x32_bf16 {V(acc,4)}, {V(FR+4*slot[ak],4)}, {V(FR+4*slot[bk],4)}, {cin}')
            for k in (ak, bk):
                if last[k] == n: free.append(slot[k])
            budget = 2
            if n + 1 < len(ops) and need[n + 1] > st['done']: budget = 1
            for i2 in range(4):
                if i2 not in written and lastacc[i2] + 4 <= n and budget > 0 and nds[0] - donepos[0] < 15:
                    a(f'ds_write_b128 {V(vY)}, {V(ACC+4*i2,4)} offset:{i2*YTS}')
                    written.add(i2); nds[0] += 1; budget -= 1
            while budget > 0 and can_issue():
                issue(); budget -= 1
        for i2 in range(4):
            if i2 not in written: a(f'ds_write_b128 {V(vY)}, {V(ACC+4*i2,4)} offset:{i2*YTS}')
    conv(0)
    a('s_branch L_convdone\nL_conv1:')
    conv(1)
    a('L_convdone:\ns_waitcnt lgkmcnt(0)')
    stamp(9)
    a(f's_barrier\ns_cmp_lg_u32 {S(sW)}, 0\ns_cbranch_scc1 L_exit')
    a(f'''
    s_cmp_lg_u32 s2, 0
    s_cbranch_scc1 L_noep
    v_mov_b32 {V(T[10])}, 0
    v_mov_b32 {V(T[11])}, {S(sTAG)}
    s_mov_b64 exec, 1
    global_store_dword {V(T[10])}, {V(T[11])}, {S(sWS,2)} sc1
    s_mov_b64 exec, -1
    L_noep:
    ''')
    read_idx()
    a(f's_cmp_eq_u32 {S(sOWN)}, 0\ns_cbranch_scc1 L_exit\ns_setprio 3')
    F = vP
    par, xo, fpa = T[12], T[13], T[14]
    y0, y1, n0, n1, d0, d1, sg, xv, sv, x0, x1 = [vXF + i for i in range(11)]
    a(f'v_and_b32 {V(par)}, 1, {V(vL)}')
    ssum(sT0, (sIDX, 10), (sCH0, 1))
    a(f'v_lshl_add_u32 {V(xo)}, {V(par)}, 2, {S(sT0)}')
    stat_addr(T[10])
    a(f'global_load_dword {V(xv)}, {V(xo)}, {S(sX,2)}')
    a(f'global_load_dword {V(sv)}, {V(T[10])}, {S(sWS,2)} sc1')
    a(f's_lshr_b32 {S(sT0)}, {S(sCH0)}, 2')
    smul(sT0, sT0, 6144, W_FP + 3072)
    a(f'v_lshl_add_u32 {V(fpa)}, {V(vL)}, 4, {S(sT0)}')
    a(f'''
    s_lshr_b32 {S(sT1)}, {S(sIDX)}, 9
    s_mul_i32 {S(sT1)}, {S(sT1)}, {YTS}
    s_bfe_u32 {S(sT0)}, {S(sIDX)}, 0x20002
    s_mul_i32 {S(sT0)}, {S(sT0)}, {YGS}
    s_add_u32 {S(sT1)}, {S(sT1)}, {S(sT0)}
    s_bfe_u32 {S(sT0)}, {S(sIDX)}, 0x40004
    s_and_b32 {S(sT2)}, {S(sIDX)}, 3
    ''')
    ssum(sT1, (sT1, 0), (sT0, 4), (sT2, 2), YX)
    a(f'''
    v_mul_u32_u24 {V(T[0])}, {2*YCS}, {V(par)}
    v_add_u32 {V(T[0])}, {S(sT1)}, {V(T[0])}
    ds_read_b32 {V(y0)}, {V(T[0])}
    ds_read_b32 {V(y1)}, {V(T[0])} offset:{YCS}
    s_and_b32 {S(sT0)}, {S(sKEY)}, {S(sHI)}
    s_xor_b32 {S(sT1)}, {S(sT0)}, 0x80000000
    s_xor_b32 {S(sT2)}, {S(sT0)}, {S(sHI)}
    s_bitcmp1_b32 {S(sT0)}, 31
    s_cselect_b32 {S(sT0)}, {S(sT1)}, {S(sT2)}
    v_mov_b32 {V(T[2])}, 0xbfb8aa3b
    v_mul_f32 {V(sg)}, {S(sT0)}, {V(T[2])}
    v_exp_f32 {V(sg)}, {V(sg)}
    v_cmp_eq_u32 vcc, 0, {V(par)}
    v_add_f32 {V(sg)}, 1.0, {V(sg)}
    v_rcp_f32 {V(sg)}, {V(sg)}
    v_mov_b32 {V(F+20)}, 0
    v_cvt_pk_bf16_f32 {V(sg)}, {V(sg)}, {V(sg)}
    v_mov_b32 {V(F+21)}, 0
    v_and_b32 {V(sg)}, {S(sHI)}, {V(sg)}
    v_mov_b32 {V(F+22)}, {S(sTAG)}
    s_waitcnt lgkmcnt(0)
    v_mov_b32 {V(d0)}, {S(sDS)}
    v_mov_b32 {V(d1)}, {S(sDS+1)}
    v_cndmask_b32 {V(d0)}, {V(d1)}, {V(d0)}, vcc
    v_and_b32 {V(d1)}, {S(sHI)}, {V(d0)}
    v_lshlrev_b32 {V(d0)}, 16, {V(d0)}
    ''')

    def rnd2(r0, r1, t):
        a(f'v_cvt_pk_bf16_f32 {V(t)}, {V(r0)}, {V(r1)}\nv_lshlrev_b32 {V(r0)}, 16, {V(t)}\nv_and_b32 {V(r1)}, {S(sHI)}, {V(t)}')
    rnd2(y0, y1, T[0])
    a(f'''
    s_waitcnt vmcnt(0)
    v_and_b32 {V(T[1])}, {S(sHI)}, {V(sv)}
    v_lshlrev_b32 {V(T[2])}, 16, {V(sv)}
    v_rcp_f32 {V(T[1])}, {V(T[1])}
    v_lshlrev_b32 {V(x0)}, 16, {V(xv)}
    v_and_b32 {V(x1)}, {S(sHI)}, {V(xv)}
    v_sub_f32 {V(n0)}, {V(x0)}, {V(T[2])}
    v_sub_f32 {V(n1)}, {V(x1)}, {V(T[2])}
    ''')
    rnd2(n0, n1, T[0])
    a(f'v_mul_f32 {V(n0)}, {V(n0)}, {V(T[1])}\nv_mul_f32 {V(n1)}, {V(n1)}, {V(T[1])}')
    rnd2(n0, n1, T[0])
    a(f'v_mul_f32 {V(d0)}, {V(d0)}, {V(n0)}\nv_mul_f32 {V(d1)}, {V(d1)}, {V(n1)}')
    rnd2(d0, d1, T[0])
    a(f'v_add_f32 {V(y0)}, {V(y0)}, {V(d0)}\nv_add_f32 {V(y1)}, {V(y1)}, {V(d1)}')
    rnd2(y0, y1, T[0])
    if o['b6']: a('s_barrier')
    spin_init()
    a('L_ffnspin:')
    for i in range(5):
        a(f'global_load_dwordx4 {V(F+4*i,4)}, {V(fpa)}, {S(sWS,2)} offset:{i*1024 - 3072} sc1')
    a(f'''
    s_mov_b64 exec, 0xffffff
    global_load_dwordx4 {V(F+20,4)}, {V(fpa)}, {S(sWS,2)} offset:2048 sc1
    s_mov_b64 exec, -1
    s_waitcnt vmcnt(0)
    ''')
    for i in range(6): a(f'v_xor_b32 {V(T[i])}, {S(sTAG)}, {V(F+4*i+2)}')
    a(f'''
    v_or3_b32 {V(T[0])}, {V(T[0])}, {V(T[1])}, {V(T[2])}
    v_or3_b32 {V(T[3])}, {V(T[3])}, {V(T[4])}, {V(T[5])}
    v_or_b32 {V(T[0])}, {V(T[0])}, {V(T[3])}
    v_cmp_ne_u32 vcc, 0, {V(T[0])}
    s_cbranch_vccz L_ffnok
    ''')
    spin_next('L_ffnspin')
    a('L_ffnok:')
    stamp(11)
    p0, p1 = F, F + 1
    for e in range(2):
        a(f'v_add_f32 {V(F+e)}, {V(F+e)}, {V(F+4+e)}')
        a(f'v_add_f32 {V(F+8+e)}, {V(F+8+e)}, {V(F+12+e)}')
        a(f'v_add_f32 {V(F+16+e)}, {V(F+16+e)}, {V(F+20+e)}')
    for e in range(2): a(f'v_add_f32 {V(F+e)}, {V(F+e)}, {V(F+8+e)}')
    for e in range(2): a(f'v_add_f32 {V(F+e)}, {V(F+e)}, {V(F+16+e)}')
    for m in (2, 4, 8):
        for e in range(2): a(f'v_add_f32_dpp {V(F+e)}, {V(F+e)}, {V(F+e)} row_ror:{m} row_mask:0xf bank_mask:0xf')
    for pl in ('v_permlane16_swap_b32', 'v_permlane32_swap_b32'):
        for e in range(2): a(f'v_mov_b32 {V(F+4+e)}, {V(F+e)}')
        for e in range(2): a(f'{pl} {V(F+e)}, {V(F+4+e)}')
        for e in range(2): a(f'v_add_f32 {V(F+e)}, {V(F+e)}, {V(F+4+e)}')
    rnd2(p0, p1, T[0])
    for e in range(2): a(f'v_mul_f32 {V(F+e)}, {V(F+e)}, {V(sg)}')
    rnd2(p0, p1, T[0])
    a(f'v_add_f32 {V(p0)}, {V(p0)}, {V(n0)}\nv_add_f32 {V(p1)}, {V(p1)}, {V(n1)}')
    rnd2(p0, p1, T[0])
    for e in range(2): a(f'v_mul_f32 {V(F+4+e)}, 0xbfb8aa3b, {V(F+e)}')
    for e in range(2): a(f'v_exp_f32 {V(F+4+e)}, {V(F+4+e)}')
    for e in range(2): a(f'v_add_f32 {V(F+4+e)}, 1.0, {V(F+4+e)}')
    for e in range(2): a(f'v_rcp_f32 {V(F+4+e)}, {V(F+4+e)}')
    for e in range(2): a(f'v_mul_f32 {V(F+e)}, {V(F+e)}, {V(F+4+e)}')
    rnd2(p0, p1, T[0])
    a(f'v_mul_f32 {V(p0)}, {V(p0)}, {V(y0)}\nv_mul_f32 {V(p1)}, {V(p1)}, {V(y1)}')
    rnd2(p0, p1, T[0])
    a(f'''
    v_add_f32 {V(p0)}, {V(p0)}, {V(x0)}
    v_add_f32 {V(p1)}, {V(p1)}, {V(x1)}
    v_cvt_pk_bf16_f32 {V(T[0])}, {V(p0)}, {V(p1)}
    s_mov_b64 exec, 3
    global_store_dword {V(xo)}, {V(T[0])}, {S(sOUT,2)}
    s_mov_b64 exec, -1
    ''')
    if o['stamp']:
        a('s_waitcnt vmcnt(0)'); stamp(12); a('s_branch L_exit')
    else:
        a('s_endpgm')

    a('L_helper:')
    read_idx()
    XS = vP
    a(f's_cmp_eq_u32 {S(sPROD)}, 0\ns_cbranch_scc1 L_h_pre')
    a(f's_lshl_b32 {S(sT0)}, {S(sIDX)}, 10\nv_add_u32 {V(T[0])}, {S(sT0)}, {V(vXS)}')
    stat_addr(T[1])
    a(f'''
    global_load_dwordx2 {V(XS,2)}, {V(T[0])}, {S(sX,2)}
    global_load_dwordx2 {V(XS+2,2)}, {V(T[0])}, {S(sX,2)} offset:32
    global_load_dword {V(XS+4)}, {V(T[1])}, {S(sWS,2)} sc1
    ''')
    if not o['wb3']: w_dma()
    a('L_h_pre:')
    Dv = [T[10 + c] for c in range(4)]
    a(f'''
    s_lshl_b32 {S(sT0)}, {S(sDS)}, 16
    s_and_b32 {S(sT1)}, {S(sDS)}, {S(sHI)}
    s_lshl_b32 {S(sT2)}, {S(sDS+1)}, 16
    s_and_b32 {S(sT3)}, {S(sDS+1)}, {S(sHI)}
    ''')
    for c in range(4): a(f'v_mov_b32 {V(Dv[c])}, {S(sT0+c)}')
    for c in range(4):
        for r in range(4):
            src = XP + 2 * c + (r >> 1)
            if r & 1: a(f'v_and_b32 {V(vXN+4*r+c)}, {S(sHI)}, {V(src)}')
            else:     a(f'v_lshlrev_b32 {V(vXN+4*r+c)}, 16, {V(src)}')
        for r in range(4): a(f'v_mul_f32 {V(T[r])}, 0xbfb8aa3b, {V(vXN+4*r+c)}')
        for r in range(4): a(f'v_exp_f32 {V(T[r])}, {V(T[r])}')
        for r in range(4):
            a(f'v_mul_f32 {V(vE+4*r+c)}, {V(vXN+4*r+c)}, {V(Dv[c])}')
            a(f'v_add_f32 {V(T[r])}, 1.0, {V(T[r])}')
        for r in range(4): a(f'v_rcp_f32 {V(T[r])}, {V(T[r])}')
        for r in range(4): a(f'v_mul_f32 {V(vXN+4*r+c)}, {V(vXN+4*r+c)}, {V(T[r])}')
        for r in range(4): a(f'v_fma_f32 {V(vE+4*r+c)}, {V(vE+4*r+c)}, {V(vXN+4*r+c)}, {V(vXF+4*r+c)}')
    for r in range(4):
        a(f'v_add_u32 {V(T[0])}, {r}, {V(vROW)}\nv_cmp_ne_u32 {S(sM+2*r,2)}, {S(sIDX)}, {V(T[0])}')
    stamp(9)
    a(f's_cmp_eq_u32 {S(sPROD)}, 0\ns_cbranch_scc1 L_h_b5')
    WF = vP + 8; DD = vP + 24; XA = vP + 40; WDF = vP + 48
    a(f"s_setprio {o['ffnprio']}")
    def wd_unpack():
        for i in range(8):
            a(f'v_lshlrev_b32 {V(WDF+2*i)}, 16, {V(vWD+i)}\nv_and_b32 {V(WDF+2*i+1)}, {S(sHI)}, {V(vWD+i)}')
    a(f'''
    s_waitcnt vmcnt({0 if o['wb3'] else 6})
    ''')
    def tr_reads():
        stamp(0)
        for sp in range(4):
            a(f'ds_read_b64_tr_b16 {V(WF+4*sp,2)}, {V(vWT)} offset:{512*sp}')
            a(f'ds_read_b64_tr_b16 {V(WF+4*sp+2,2)}, {V(vWT)} offset:{512*sp + 256}')
        for i in range(4): a(f'ds_read2st64_b32 {V(vWD+2*i,2)}, {V(vWDR)} offset0:{2*i} offset1:{2*i+1}')
    if o['wb3']: tr_reads()
    a(f'''
    v_and_b32 {V(T[0])}, {S(sHI)}, {V(XS+4)}
    v_lshlrev_b32 {V(T[1])}, 16, {V(XS+4)}
    v_rcp_f32 {V(T[0])}, {V(T[0])}
    ''')
    for i in range(4):
        a(f'v_lshlrev_b32 {V(T[2+2*i])}, 16, {V(XS+i)}\nv_and_b32 {V(T[3+2*i])}, {S(sHI)}, {V(XS+i)}')
    for i in range(8): a(f'v_sub_f32 {V(T[2+i])}, {V(T[2+i])}, {V(T[1])}')
    for i in range(4): rnd2(T[2 + 2 * i], T[3 + 2 * i], XA + i)
    for i in range(8): a(f'v_mul_f32 {V(T[2+i])}, {V(T[2+i])}, {V(T[0])}')
    for i in range(4): a(f'v_cvt_pk_bf16_f32 {V(XA+i)}, {V(T[2+2*i])}, {V(T[3+2*i])}')
    if not o['wb3']:
        a("s_waitcnt vmcnt(0)")
        tr_reads()
    for sp in range(4):
        a(f's_waitcnt lgkmcnt({10 - 2*sp})')
        a(f'v_mfma_f32_16x16x32_bf16 {V(DD+4*sp,4)}, {V(XA,4)}, {V(WF+4*sp,4)}, 0')
    a('s_waitcnt lgkmcnt(0)'); wd_unpack()
    a(f'''
    v_mov_b32 {V(T[2])}, 1
    v_mov_b32 {V(T[8])}, {FF}
    v_add_f32 {V(T[0])}, {V(DD)}, {V(DD+5)}
    v_add_f32 {V(T[1])}, {V(DD+10)}, {V(DD+15)}
    v_add_f32 {V(T[0])}, {V(T[0])}, {V(T[1])}
    ds_write_b32 {V(vFPW)}, {V(T[0])}
    s_mov_b64 exec, 1
    ds_write_b32 {V(vFFW)}, {V(T[2])}
    s_mov_b64 exec, -1
    ''')
    spin_init()
    a(f'L_hspin:\nds_read_b128 {V(T[4],4)}, {V(T[8])}')
    for i in range(4): a(f'ds_read_b32 {V(T[i])}, {V(vFPR)} offset:{i*320}')
    a(f'''
    s_waitcnt lgkmcnt(0)
    v_and_b32 {V(T[4])}, {V(T[4])}, {V(T[5])}
    v_and_b32 {V(T[6])}, {V(T[6])}, {V(T[7])}
    v_and_b32 {V(T[4])}, {V(T[4])}, {V(T[6])}
    v_cmp_eq_u32 vcc, 0, {V(T[4])}
    s_cbranch_vccz L_hok
    ''')
    spin_next('L_hspin')
    gq = T[4]
    a(f'''
    L_hok:
    v_add_f32 {V(T[0])}, {V(T[0])}, {V(T[1])}
    v_add_f32 {V(T[2])}, {V(T[2])}, {V(T[3])}
    v_add_f32 {V(T[0])}, {V(T[0])}, {V(T[2])}
    v_cvt_pk_bf16_f32 {V(T[0])}, {V(T[0])}, {V(T[0])}
    v_and_b32 {V(T[0])}, {S(sHI)}, {V(T[0])}
    v_mul_f32 {V(T[1])}, 0xbfb8aa3b, {V(T[0])}
    v_exp_f32 {V(T[1])}, {V(T[1])}
    v_mov_b32_dpp {V(T[2])}, {V(T[0])} row_ror:8 row_mask:0xf bank_mask:0xf
    v_add_f32 {V(T[1])}, 1.0, {V(T[1])}
    v_rcp_f32 {V(T[1])}, {V(T[1])}
    v_mov_b32 {V(gq+2)}, {S(sTAG)}
    v_mul_f32 {V(T[1])}, {V(T[0])}, {V(T[1])}
    v_cvt_pk_bf16_f32 {V(T[1])}, {V(T[1])}, {V(T[1])}
    v_and_b32 {V(T[1])}, {S(sHI)}, {V(T[1])}
    v_mul_f32 {V(T[1])}, {V(T[1])}, {V(T[2])}
    v_cvt_pk_bf16_f32 {V(T[1])}, {V(T[1])}, {V(T[1])}
    v_and_b32 {V(T[1])}, {S(sHI)}, {V(T[1])}
    v_mov_b32 {V(gq+3)}, 0
    ''')
    for i in range(8): a(f'v_readlane_b32 {S(sH8+i)}, {V(T[1])}, {i}')
    for i in range(8):
        for e in range(2):
            if i == 0: a(f'v_mul_f32 {V(gq+e)}, {S(sH8)}, {V(WDF+e)}')
            else: a(f'v_fmac_f32 {V(gq+e)}, {S(sH8+i)}, {V(WDF+2*i+e)}')
    a(f'global_store_dwordx4 {V(vFPA)}, {V(gq,4)}, {S(sWS,2)} sc1')
    stamp(10)
    a('L_h_b5:\ns_barrier')
    YR = vP
    for c in range(4): a(f'ds_read_b128 {V(YR+4*c,4)}, {V(vY)} offset:{c*YCS}')
    if o['b6']:
        a(f'''
        s_lshr_b32 {S(sT0)}, {S(sWI)}, 1
        s_and_b32 {S(sT1)}, {S(sT0)}, {S(sOWN)}
        s_andn2_b32 {S(sT2)}, {S(sOWN)}, {S(sT0)}
        s_cmp_eq_u32 {S(sT1)}, 0
        s_cbranch_scc1 L_h_st
        s_barrier
        L_h_st:
        ''')
    a('s_waitcnt lgkmcnt(0)')
    for r in range(4):
        for c in range(4):
            a(f'v_fma_f32 {V(vE+4*r+c)}, {V(YR+4*c+r)}, {V(vXN+4*r+c)}, {V(vE+4*r+c)}')
        a(f'''
        v_cvt_pk_bf16_f32 {V(vD+2*r)}, {V(vE+4*r)}, {V(vE+4*r+1)}
        v_cvt_pk_bf16_f32 {V(vD+2*r+1)}, {V(vE+4*r+2)}, {V(vE+4*r+3)}
        s_mov_b64 exec, {S(sM+2*r,2)}
        global_store_dwordx2 {V(vXG)}, {V(vD+2*r,2)}, {S(sOUT,2)} offset:{r*1024}
        s_mov_b64 exec, -1
        ''')
    if o['b6']:
        a(f'''
        s_cmp_eq_u32 {S(sT2)}, 0
        s_cbranch_scc1 L_h_done
        s_waitcnt vmcnt({o['b6cnt']})
        s_barrier
        L_h_done:
        ''')
    if o['stamp'] or o['diag'] >= 0:
        stamp(11)
        a('s_waitcnt vmcnt(0)')
        stamp(12)
    if o['diag'] >= 0:
        a('''
        s_memrealtime s[90:91]
        s_sub_u32 s88, s88, s86
        s_min_u32 s88, s88, 2000
        s_lshl_b32 s88, s88, 2
        s_waitcnt lgkmcnt(0)
        s_add_u32 s88, s88, s90
        L_diag:
        s_memrealtime s[90:91]
        s_waitcnt lgkmcnt(0)
        s_sub_u32 s90, s90, s88
        s_cmp_lt_i32 s90, 0
        s_cbranch_scc1 L_diag
        ''')
    a('L_exit:')
    if o['stamp']:
        a('v_mov_b32 v254, 0')
        for i in range(14): a(f'v_writelane_b32 v254, s{86+i}, {i}')
        a(f'global_store_dword {V(vSTA)}, v254, {S(sWS,2)}')
    a('L_end:\ns_endpgm')
    a.raw('''.section .rodata,"a"
.p2align 6
.amdhsa_kernel %s_kernel
  .amdhsa_next_free_vgpr 256
  .amdhsa_next_free_sgpr 102
  .amdhsa_accum_offset 256
  .amdhsa_group_segment_fixed_size 0
  .amdhsa_kernarg_size 136
  .amdhsa_user_sgpr_count 2
  .amdhsa_user_sgpr_kernarg_segment_ptr 1
  .amdhsa_system_sgpr_workgroup_id_x 1
.end_amdhsa_kernel''' % KN)
    return a.text()


if __name__ == '__main__':
    out = sys.argv[1]
    opt = {}
    for kv in sys.argv[2:]:
        k, val = kv.split('='); opt[k] = int(val, 0)
    open(out, 'w').write(generate(**opt))
```

```python
import sys
from asmlib import *

KN = 'recurrent_scan__ssm_conv_s4__moe_arch_mod__prompt'

DEFAULTS = dict(stamp=0, cyc=0, force_slow=0, prefetch=1, wpf=1, spinmax=1 << 16, diag=-1,
                maxout=15, group=3, minfly=6, b6=1, b6cnt=1, nb=6, wdearly=0, wpfb3=1, hnormfirst=1, ffnprio=2, tlb=0, tlbsh=16, wnt=0, xnt=0, pnt=0, wb3=1, rot=1)

RS = 2064
STAGE = 0
R4 = 0; R4S = 18560; CAS = 288
YX = 74240; YCS = 5120; YTS = 1280; YGS = 320
U = 109440; US = 4576
TAB = 127744; TS = 1552
WL = 133952; WL1 = 8320
SL = 150528
AM = 158720
FF = 158752
TG = 158768
PF = 158784
FP = 158848
LDS_BYTES = 159872
W_ST = 0x1000; W_FL = 0x6000; W_FP = 0x10000; W_IN = 0x100000; W_STAMP = 0x800000

sX, sARE, sAIM, sBRE, sBIM, sCRE, sCIM, sLDT = 4, 6, 8, 10, 12, 14, 16, 18
sDSK, sWR, sWG, sWU, sWD, sOUT, sDBG, sWS = 20, 24, 26, 28, 30, 32, 34, 36
sW, sK, sJ, sCGL, sH, sCH0, sT, sXCC, sTAG, sTAGX = 38, 39, 40, 41, 42, 43, 44, 45, 46, 47
sPB, sDS = 48, 50
sONES, sF8, sPROD, sIDX, sKEY, sCNT = 52, 53, 54, 55, 56, 57
sT0, sT1, sT2, sT3 = 58, 59, 60, 61
sOWN, sINB = 62, 63
sM = 64
sH8 = 72
sHI = 80
sSTP = 82
sWI = 84

vL = 1
vGA = 2
vSEL = 10
vR4W, vUW, vST0, vST1, vFL, vIN, vXG, vXC = 16, 17, 18, 19, 20, 21, 22, 23
vKA, vKB, vPD, vY = 24, 25, 26, 27
vA0, vA1, vA2, vA3, vA4, vA5, vA6, vA7 = 28, 29, 30, 31, 32, 33, 34, 35
vEP, vPFD, vROW, vSTA = 36, 37, 38, 39
vD = 40
vG = 48
vXF = 56
vXN = 72
vE = 88
vP = 104
vB0, vB1, vB2, vB3, vB4, vB5 = 224, 225, 226, 227, 228, 229
vWD = 232
vT = 240
vCA, vCA2, vCB, vFLO = vA0, vA1, vA2, vA3
vTW1, vTW2, vTW3, vTW4, vWT, vWDA, vFPA, vXS = vA0, vA1, vA2, vA3, vA4, vA5, vA6, vA7
vWS0, vWS1, vFPW, vFPR, vFFW, vSTP = vB0, vB1, vB2, vB3, vB4, vB5
vPFA, vPFW = 230, 231
vTLB = 223
vWDR = 222


def tiles(h): return [2 * i + ((i ^ h) & 1) for i in range(4)]


def generate(**opt):
    o = dict(DEFAULTS); o.update(opt)
    a = Asm()
    V = v; S = s

    def stamp(i):
        if o['diag'] == i:
            a('s_memrealtime s[88:89]\ns_waitcnt lgkmcnt(0)')
        if not o['stamp']: return
        a(f"{'s_memtime' if o['cyc'] else 's_memrealtime'} {S(sSTP,2)}\ns_waitcnt lgkmcnt(0)\ns_mov_b32 s{86+i}, {S(sSTP)}")

    def cmul(d, x, y):
        a(f'v_pk_mul_f32 {V(d,2)}, {V(x,2)}, {V(y,2)} op_sel:[1,1] op_sel_hi:[1,0]')
        a(f'v_pk_fma_f32 {V(d,2)}, {V(x,2)}, {V(y,2)}, {V(d,2)} op_sel:[0,0,0] op_sel_hi:[0,1,1] neg_lo:[0,0,1]')

    def lane63(): a('s_mov_b32 exec_lo, 0\ns_mov_b32 exec_hi, 0x80000000')
    def alllanes(): a('s_mov_b64 exec, -1')
    def spin_init(): a(f"s_mov_b32 {S(sCNT)}, {o['spinmax']}")
    def spin_next(lbl): a(f's_sub_u32 {S(sCNT)}, {S(sCNT)}, 1\ns_cmp_lg_u32 {S(sCNT)}, 0\ns_cbranch_scc1 {lbl}')

    def ssum(dst, *terms):
        first = True; const = 0
        for t in terms:
            if isinstance(t, int): const += t; continue
            r, sh = t
            if first:
                a(f's_lshl_b32 {S(dst)}, {S(r)}, {sh}' if sh else f's_mov_b32 {S(dst)}, {S(r)}'); first = False
            elif sh:
                a(f's_lshl_b32 {S(sT3)}, {S(r)}, {sh}\ns_add_u32 {S(dst)}, {S(dst)}, {S(sT3)}')
            else:
                a(f's_add_u32 {S(dst)}, {S(dst)}, {S(r)}')
        if const: a(f's_add_u32 {S(dst)}, {S(dst)}, {const}')

    def smul(dst, r, k, const=0):
        a(f's_mul_i32 {S(dst)}, {S(r)}, {k}')
        if const: a(f's_add_u32 {S(dst)}, {S(dst)}, {const}')

    T = [vT + i for i in range(16)]

    a.raw('; @launch grid=(256,1,1) block=(512,1,1) lds=%d' % LDS_BYTES)
    a.raw('.amdgcn_target "amdgcn-amd-amdhsa--gfx950"\n.text\n.globl %s_kernel\n.p2align 8\n.type %s_kernel,@function\n%s_kernel:' % (KN, KN, KN))
    a('''
    s_cmp_ge_u32 s2, 256
    s_cbranch_scc1 L_end
    s_load_dwordx16 s[4:19], s[0:1], 0
    s_load_dwordx16 s[20:35], s[0:1], 64
    s_load_dwordx2 s[36:37], s[0:1], 128
    ''')
    if o['diag'] >= 0: a('s_memrealtime s[86:87]')
    if o['stamp']: a(f"{'s_memtime' if o['cyc'] else 's_memrealtime'} s[100:101]")
    a(f'''
    v_lshrrev_b32 {V(T[0])}, 6, v0
    v_and_b32 {V(vL)}, 63, v0
    v_readfirstlane_b32 {S(sW)}, {V(T[0])}
    s_and_b32 {S(sK)}, s2, 7
    s_lshr_b32 {S(sJ)}, s2, 3
    s_and_b32 {S(sCGL)}, {S(sJ)}, 15
    s_lshr_b32 {S(sH)}, {S(sJ)}, 4
    s_and_b32 {S(sWI)}, {S(sW)}, 3
    ''')
    ssum(sCH0, (sK, 6), (sCGL, 2))
    for i in range(7): a(f'v_mov_b32 {V(vP+i)}, 0')
    a(f's_add_u32 {S(sT1)}, {S(sCH0)}, {S(sWI)}')
    a(f's_lshr_b32 {S(sT2)}, {S(sW)}, 2')
    ssum(sT0, (sT1, 8), (sT2, 7))
    a(f'v_lshl_add_u32 {V(T[1])}, {V(vL)}, 1, {S(sT0)}')
    a(f's_lshl_b32 {S(sT1)}, {S(sT1)}, 1')
    a(f'v_mov_b32 {V(T[2])}, {S(sT1)}')
    if o['stamp']:
        ssum(sT1, (2, 11), (sW, 8), W_STAMP)
        a(f'v_lshl_add_u32 {V(vSTA)}, {V(vL)}, 2, {S(sT1)}')
        for i in range(14): a(f's_mov_b32 s{86+i}, 0')

    def param_loads():
        for i, p in enumerate((sARE, sAIM, sBRE, sBIM, sCRE, sCIM)):
            a(f"global_load_short_d16_hi {V(vP+i)}, {V(T[1])}, {S(p,2)}{' nt' if o['pnt'] else ''}")
        a(f'global_load_short_d16_hi {V(vP+6)}, {V(T[2])}, {S(sLDT,2)}')

    a(f's_cmp_ge_u32 {S(sW)}, 4\ns_cbranch_scc1 L_h_load')
    ssum(sT0, (sJ, 16), (sW, 14), (sK, 7))
    a(f'''
    v_lshrrev_b32 {V(T[3])}, 3, {V(vL)}
    v_and_b32 {V(T[4])}, 7, {V(vL)}
    v_lshlrev_b32 {V(T[3])}, 10, {V(T[3])}
    v_lshl_add_u32 {V(T[3])}, {V(T[4])}, 4, {V(T[3])}
    v_add_u32 {V(T[3])}, {S(sT0)}, {V(T[3])}
    v_add_u32 {V(T[4])}, 8192, {V(T[3])}
    s_waitcnt lgkmcnt(0)
    ''')
    if o['stamp']: a('s_mov_b32 s99, s100')
    if o['diag'] >= 0: a('s_mov_b32 s88, s86')
    stamp(0)
    XNT = ' nt' if o['xnt'] else ''
    a(f'global_load_dwordx4 {V(vD,4)}, {V(T[3])}, {S(sX,2)}{XNT}')
    a(f'global_load_dwordx4 {V(vD+4,4)}, {V(T[4])}, {S(sX,2)}{XNT}')
    param_loads()
    a('s_branch L_init')
    a('L_h_load:')
    ssum(sT0, (2, 13), (sWI, 11))
    a(f'''
    v_and_b32 {V(T[3])}, 31, {V(vL)}
    v_lshlrev_b32 {V(T[3])}, 4, {V(T[3])}
    v_lshrrev_b32 {V(T[4])}, 5, {V(vL)}
    v_lshl_add_u32 {V(T[4])}, {V(T[4])}, 10, {V(T[3])}
    v_add_u32 {V(T[4])}, {S(sT0)}, {V(T[4])}
    v_mov_b32 {V(T[5])}, 0
    s_setprio 2
    s_waitcnt lgkmcnt(0)
    ''')
    if o['stamp']: a('s_mov_b32 s99, s100')
    if o['diag'] >= 0: a('s_mov_b32 s88, s86')
    stamp(0)
    a(f'''
    global_load_dwordx4 {V(vG,4)}, {V(T[3])}, {S(sWR,2)}
    global_load_dwordx4 {V(vG+4,4)}, {V(T[3])}, {S(sWR,2)} offset:512
    global_load_dwordx4 {V(vD,4)}, {V(T[4])}, {S(sX,2)}{XNT}
    global_load_dwordx4 {V(vD+4,4)}, {V(T[4])}, {S(sX,2)} offset:512{XNT}
    global_load_dword {V(vEP)}, {V(T[5])}, {S(sWS,2)} sc1
    ''')
    param_loads()

    a('L_init:')
    if o['tlb']:
        a.comment('touch the pages that are first needed late, so their translations are fetched during the start-up wait')
        sh = o['tlbsh']
        a(f'v_lshlrev_b32 {V(T[11])}, {sh}, {V(vL)}')
        for w, base, size in ((0, sWG, 1409024), (1, sWU, 1409024), (2, sWD, 1409024), (3, sOUT, 2097152), (4, sWS, 0x300000)):
            n = min(64, (size + (1 << sh) - 1) >> sh)
            a(f's_cmp_lg_u32 {S(sW)}, {w}\ns_cbranch_scc1 L_tlb{w}')
            a(f's_bfm_b64 exec, {n}, 0' if n < 64 else 's_nop 0')
            a(f'global_load_dword {V(vTLB)}, {V(T[11])}, {S(base,2)}')
            a(f's_mov_b64 exec, -1\ns_branch L_tlbx\nL_tlb{w}:')
        a(f's_mov_b64 exec, 1\nglobal_load_dword {V(vTLB)}, {V(T[11])}, {S(sX,2)}\ns_mov_b64 exec, -1')
        a('L_tlbx:')
    a(f'''
    v_mov_b32 {V(T[6])}, 0
    v_mov_b32 {V(T[7])}, 0x3f80
    s_lshl_b32 {S(sT0)}, {S(sW)}, 8
    s_mov_b32 m0, {S(sT0)}
    v_and_b32 {V(T[8])}, 127, v0
    ds_write_addtid_b32 {V(T[7])} offset:{STAGE}
    v_min_u32 {V(T[8])}, 119, {V(T[8])}
    v_lshrrev_b32 {V(T[9])}, 7, v0
    v_mul_u32_u24 {V(T[10])}, {US}, {V(T[9])}
    v_lshl_add_u32 {V(T[10])}, {V(T[8])}, 2, {V(T[10])}
    v_add_u32 {V(T[10])}, {U}, {V(T[10])}
    ds_write_b32 {V(T[10])}, {V(T[6])}
    s_cmp_lg_u32 {S(sW)}, 0
    s_cbranch_scc1 L_init2
    v_bfe_u32 {V(T[9])}, {V(vL)}, 1, 2
    v_mul_u32_u24 {V(T[9])}, {TS}, {V(T[9])}
    v_and_b32 {V(T[8])}, 1, {V(vL)}
    v_lshl_add_u32 {V(T[9])}, {V(T[8])}, 2, {V(T[9])}
    v_add_u32 {V(T[9])}, {TAB}, {V(T[9])}
    v_and_b32 {V(T[8])}, 15, {V(vL)}
    v_lshlrev_b32 {V(T[8])}, 2, {V(T[8])}
    v_add_u32 {V(T[8])}, {FF}, {V(T[8])}
    s_mov_b64 exec, 0xffff
    ds_write_b32 {V(T[9])}, {V(T[6])}
    ds_write_b32 {V(T[8])}, {V(T[6])}
    s_mov_b64 exec, -1
    L_init2:
    s_waitcnt lgkmcnt(0)
    s_barrier
    s_lshl_b32 {S(sT0)}, {S(sCH0)}, 1
    s_load_dwordx2 {S(sDS,2)}, {S(sDSK,2)}, {S(sT0)}
    s_getreg_b32 {S(sXCC)}, hwreg(HW_REG_XCC_ID, 0, 4)
    s_mov_b32 {S(sONES)}, 0x3f803f80
    s_mov_b32 {S(sHI)}, 0xffff0000
    s_lshr_b32 {S(sT0)}, {S(sW)}, 2
    s_xor_b32 {S(sT0)}, {S(sT0)}, {S(sWI)}
    s_xor_b32 {S(sT0)}, {S(sT0)}, {S(sH)}
    s_xor_b32 {S(sT0)}, {S(sT0)}, 1
    s_and_b32 {S(sT0)}, {S(sT0)}, 1
    s_lshl_b32 {S(sT)}, {S(sWI)}, 1
    s_add_u32 {S(sT)}, {S(sT)}, {S(sT0)}
    s_lshr_b32 {S(sT0)}, {S(sJ)}, 3
    s_and_b32 {S(sT1)}, {S(sJ)}, 7
    ''')
    ssum(sF8, (sT0, 6), (sK, 3), (sT1, 0))
    a(f'''
    s_cmp_lt_u32 {S(sF8)}, 172
    s_cselect_b32 {S(sPROD)}, 1, 0
    s_cselect_b32 {S(sF8)}, {S(sF8)}, {S(sJ)}
    ''')

    pos = [vXF + i for i in range(7)]
    a(f'v_lshlrev_b32 {V(T[0])}, 2, v0')
    a(f's_cmp_eq_u32 {S(sW)}, 0\ns_cbranch_scc1 L_pos0')
    for i in range(7): a(f'v_add_u32 {V(pos[i])}, {i-3}, {V(T[0])}')
    for i in range(7): a(f'v_cvt_f32_u32 {V(pos[i])}, {V(pos[i])}')
    for i in range(0, 7, 2):
        j = min(i + 1, 6)
        a(f'v_cvt_pk_bf16_f32 {V(T[8+i//2])}, {V(pos[i])}, {V(pos[j])}')
    a(f'v_mov_b32 {V(T[1])}, {4 - 0x4280}')
    for i in range(7):
        a(f'v_bfe_u32 {V(pos[i])}, {V(T[8+i//2])}, {16*(i&1)}, 16')
        a(f'v_add_u32 {V(pos[i])}, {V(T[1])}, {V(pos[i])}')
    a('s_branch L_pos_done')
    a('L_pos0:')
    for i in range(7): a(f'v_add_u32 {V(pos[i])}, {i+1}, {V(T[0])}')
    a('L_pos_done:')
    b1, b2 = T[1], T[2]
    a(f'''
    v_and_b32 {V(b1)}, -2, {V(pos[2])}
    v_add_u32 {V(b1)}, -2, {V(b1)}
    v_and_b32 {V(b2)}, -2, {V(pos[3])}
    v_add_u32 {V(T[3])}, {V(b1)}, {V(b1)}
    v_add_u32 {V(T[4])}, {V(b2)}, {V(b2)}
    ''')
    for c in range(4):
        a(f'v_add_u32 {V(vGA+2*c)}, {TAB + c*TS}, {V(T[3])}')
        a(f'v_add_u32 {V(vGA+2*c+1)}, {TAB + c*TS}, {V(T[4])}')
    for i in range(3): a(f'v_sub_u32 {V(pos[i])}, {V(pos[i])}, {V(b1)}')
    for i in range(3, 7): a(f'v_sub_u32 {V(pos[i])}, {V(pos[i])}, {V(b2)}')
    a(f's_movk_i32 {S(sT0)}, 0x0202\nv_mov_b32 {V(T[3])}, 0x0100')
    for i in range(7): a(f'v_mad_u32_u24 {V(pos[i])}, {V(pos[i])}, {S(sT0)}, {V(T[3])}')
    for dst, lo, hi in ((0, 1, 0), (1, 2, 1), (2, 3, 2), (3, 4, 3), (4, 5, 4), (5, 6, 5)):
        a(f'v_lshl_or_b32 {V(vSEL+dst)}, {V(pos[hi])}, 16, {V(pos[lo])}')
    a(f'v_add_u32 {V(vSEL+2)}, 0x{(2*0x0202 - 2*0x02020000) & 0xffffffff:x}, {V(vSEL+2)}')
    a(f'''
    v_and_b32 {V(T[0])}, -4, v0
    v_lshlrev_b32 {V(T[0])}, 2, {V(T[0])}
    v_lshl_add_u32 {V(vR4W)}, v0, 5, {V(T[0])}
    v_add_u32 {V(vR4W)}, {R4 + 144}, {V(vR4W)}
    ''')
    a(f's_lshl_b32 {S(sT0)}, {S(sT)}, 6')
    a(f'v_add_u32 {V(T[0])}, {S(sT0)}, {V(vL)}')
    ssum(sINB, (sK, 18), (sCGL, 14), W_IN)
    ssum(sT1, (sK, 9), W_FL)
    ssum(sT2, (sK, 5), W_ST + 12)
    a(f'''
    v_lshlrev_b32 {V(vROW)}, 2, {V(T[0])}
    v_lshlrev_b32 {V(vUW)}, 3, {V(T[0])}
    v_add_u32 {V(vUW)}, {U + 480}, {V(vUW)}
    v_lshlrev_b32 {V(vST0)}, 4, {V(T[0])}
    v_add_u32 {V(vST1)}, {W_ST + 8192}, {V(vST0)}
    v_add_u32 {V(vST0)}, {W_ST}, {V(vST0)}
    s_lshl_b32 {S(sT0)}, {S(sCH0)}, 1
    v_lshl_add_u32 {V(vXG)}, {V(T[0])}, 12, {S(sT0)}
    v_lshrrev_b32 {V(T[1])}, 2, {V(T[0])}
    v_lshl_add_u32 {V(vFL)}, {V(T[1])}, 2, {S(sT1)}
    v_and_b32 {V(T[2])}, 3, {V(vL)}
    v_lshl_add_u32 {V(T[2])}, {V(T[2])}, 4, {S(sINB)}
    v_lshl_add_u32 {V(vIN)}, {V(T[1])}, 7, {V(T[2])}
    v_lshrrev_b32 {V(T[1])}, 4, {V(T[0])}
    v_lshl_add_u32 {V(vXC)}, {V(T[1])}, 8, {S(sT2)}
    ''')
    smul(sT1, sWI, US, U + 480)
    a(f'''
    v_and_b32 {V(T[0])}, 31, {V(vL)}
    v_lshrrev_b32 {V(T[1])}, 5, {V(vL)}
    s_lshl_b32 {S(sT0)}, {S(sW)}, 8
    v_lshl_add_u32 {V(T[2])}, {V(T[1])}, 4, {S(sT0)}
    s_movk_i32 {S(sT0)}, {RS}
    v_mad_u32_u24 {V(vKB)}, {V(T[0])}, {S(sT0)}, {V(T[2])}
    v_add_u32 {V(T[3])}, -16, {V(T[0])}
    v_cmp_lt_u32 vcc, 20, {V(T[0])}
    v_lshl_add_u32 {V(vPD)}, {V(vL)}, 4, {S(sT1)}
    v_cndmask_b32 {V(T[3])}, {V(T[0])}, {V(T[3])}, vcc
    v_mad_u32_u24 {V(vKA)}, {V(T[3])}, {S(sT0)}, {V(T[2])}
    v_add_u32 {V(vKA)}, {STAGE + 32*RS}, {V(vKA)}
    v_and_b32 {V(T[5])}, 15, {V(vL)}
    v_lshrrev_b32 {V(T[6])}, 4, {V(vL)}
    s_cmp_ge_u32 {S(sW)}, 4
    s_cbranch_scc1 L_h_setup
    ''')

    smul(sT0, sW, R4S, R4)
    a(f'v_lshlrev_b32 {V(T[3])}, 3, {V(T[6])}\nv_sub_u32 {V(T[3])}, {V(T[5])}, {V(T[3])}')
    for reg, k in ((vCA, 32), (vCA2, 28)):
        a(f'''
        v_add_u32 {V(T[4])}, {k}, {V(T[3])}
        v_lshrrev_b32 {V(T[7])}, 4, {V(T[4])}
        v_lshl_add_u32 {V(reg)}, {V(T[4])}, 3, {S(sT0)}
        v_lshl_add_u32 {V(reg)}, {V(T[7])}, 4, {V(reg)}
        ''')
    smul(sT0, sW, US, U)
    a(f'''
    v_lshl_add_u32 {V(T[3])}, {V(T[6])}, 4, {S(sT0)}
    v_lshl_add_u32 {V(vCB)}, {V(T[5])}, 5, {V(T[3])}
    ''')
    smul(sT0, sW, YCS, YX)
    a(f'''
    v_mul_u32_u24 {V(T[3])}, {YGS}, {V(T[6])}
    v_lshl_add_u32 {V(T[3])}, {V(T[5])}, 4, {V(T[3])}
    v_add_u32 {V(vY)}, {S(sT0)}, {V(T[3])}
    ''')
    slw, slw1, slr, slr1, ina, ina1, tga, pfa_c = [vXN + i for i in range(8)]
    ssum(sT0, (sW, 11), SL)
    a(f'''
    v_lshrrev_b32 {V(T[0])}, 3, {V(vL)}
    v_and_b32 {V(T[1])}, 7, {V(vL)}
    v_xor_b32 {V(T[2])}, {V(T[6])}, {V(T[1])}
    v_lshl_add_u32 {V(T[2])}, {V(T[2])}, 4, {S(sT0)}
    v_lshl_add_u32 {V(slw)}, {V(T[0])}, 7, {V(T[2])}
    v_xor_b32 {V(slw1)}, 64, {V(slw)}
    v_and_b32 {V(T[2])}, 3, {V(vL)}
    v_bfe_u32 {V(T[3])}, {V(vL)}, 2, 1
    v_lshl_add_u32 {V(T[2])}, {V(T[2])}, 1, {V(T[3])}
    v_xor_b32 {V(T[3])}, {V(T[6])}, {V(T[2])}
    v_lshl_add_u32 {V(T[3])}, {V(T[3])}, 4, {S(sT0)}
    v_lshl_add_u32 {V(T[3])}, {V(T[2])}, 8, {V(T[3])}
    v_and_b32 {V(T[4])}, 1, {V(T[0])}
    v_lshl_add_u32 {V(slr)}, {V(T[4])}, 3, {V(T[3])}
    v_xor_b32 {V(slr1)}, 64, {V(slr)}
    ''')
    ssum(sT0, (sK, 18), (sJ, 9), (sW, 7), W_IN)
    a(f'''
    v_lshl_add_u32 {V(T[1])}, {V(T[1])}, 4, {S(sT0)}
    v_lshl_add_u32 {V(ina)}, {V(T[0])}, 14, {V(T[1])}
    v_add_u32 {V(ina1)}, 0x20000, {V(ina)}
    ''')
    ssum(sT0, (sK, 9), (sJ, 4), (sW, 2), W_FL)
    a(f'v_mov_b32 {V(vFLO)}, {S(sT0)}')
    ssum(sT0, (sW, 2), TG)
    a(f'v_mov_b32 {V(tga)}, {S(sT0)}')
    for r in (vA4, vA5, vA6, vA7, vB0, vB1, vB5, vPFA): a(f'v_mov_b32 {V(r)}, 4096')
    for r in (sPB, sM, sM+2, sM+4, sM+6): a(f's_mov_b64 {S(r,2)}, {S(sWD,2)}')
    a(f"s_waitcnt vmcnt({7 + o['tlb']})")
    stamp(1)
    a(f'''
    ds_write_b128 {V(slw)}, {V(vD,4)}
    ds_write_b128 {V(slw1)}, {V(vD+4,4)} offset:1024
    ds_read_b64 {V(vG,2)}, {V(slr)}
    ds_read_b64 {V(vG+2,2)}, {V(slr)} offset:128
    ds_read_b64 {V(vG+4,2)}, {V(slr1)}
    ds_read_b64 {V(vG+6,2)}, {V(slr1)} offset:128
    s_waitcnt lgkmcnt(0)
    global_store_dwordx4 {V(ina)}, {V(vG,4)}, {S(sWS,2)}
    global_store_dwordx4 {V(ina1)}, {V(vG+4,4)}, {S(sWS,2)}
    s_waitcnt vmcnt({2 + o['tlb']})
    s_branch L_kgen
    ''')

    a('L_h_setup:')
    smul(sT0, sWI, YTS, YX)
    a(f'''
    v_and_b32 {V(T[2])}, 3, {V(vL)}
    v_lshrrev_b32 {V(T[3])}, 2, {V(vL)}
    v_mul_u32_u24 {V(T[2])}, {YGS}, {V(T[2])}
    v_lshl_add_u32 {V(T[2])}, {V(T[3])}, 4, {V(T[2])}
    v_add_u32 {V(vY)}, {S(sT0)}, {V(T[2])}
    ''')
    smul(sT0, sWI, TS, TAB + 8)
    a(f'''
    v_lshl_add_u32 {V(T[2])}, {V(T[1])}, 3, {S(sT0)}
    v_lshl_add_u32 {V(vTW1)}, {V(T[0])}, 4, {V(T[2])}
    v_sub_u32 {V(T[2])}, 3, {V(T[1])}
    v_lshlrev_b32 {V(T[2])}, {V(T[2])}, {V(T[0])}
    v_lshl_add_u32 {V(T[3])}, {V(T[1])}, 8, {S(sT0)}
    v_add_u32 {V(T[3])}, 512, {V(T[3])}
    v_add_u32 {V(vTW2)}, {V(T[2])}, {V(T[3])}
    v_mul_u32_u24 {V(T[2])}, 124, {V(T[1])}
    v_add3_u32 {V(vTW3)}, {V(vTW2)}, {V(T[2])}, 4
    v_lshl_add_u32 {V(vTW4)}, {V(T[0])}, 1, {V(T[3])}
    v_add_u32 {V(vTW4)}, 512, {V(vTW4)}
    ''')
    ssum(sT0, (sWI, 11), WL)
    a(f'''
    v_lshrrev_b32 {V(T[2])}, 2, {V(T[5])}
    v_lshl_add_u32 {V(T[2])}, {V(T[6])}, 2, {V(T[2])}
    v_bfe_u32 {V(T[3])}, {V(vL)}, 1, 1
    v_mul_u32_u24 {V(T[3])}, {WL1}, {V(T[3])}
    v_lshl_add_u32 {V(T[2])}, {V(T[2])}, 4, {V(T[3])}
    v_and_b32 {V(T[3])}, 1, {V(vL)}
    v_lshl_add_u32 {V(T[2])}, {V(T[3])}, 3, {V(T[2])}
    v_add_u32 {V(vWT)}, {S(sT0)}, {V(T[2])}
    s_lshl_b32 {S(sT0)}, {S(sWI)}, 7
    v_add_u32 {V(T[2])}, {S(sT0)}, {V(vL)}
    s_lshl_b32 {S(sT1)}, {S(sF8)}, 4
    v_mul_u32_u24 {V(T[2])}, 2752, {V(T[2])}
    v_add_u32 {V(vWS0)}, {S(sT1)}, {V(T[2])}
    v_and_b32 {V(T[2])}, 255, v0
    ''')
    ssum(sT0, (sF8, 13), (sWI, 8))
    ssum(sT1, (sF8, 5), W_FP)
    ssum(sT2, (sWI, 11), SL)
    a(f'''
    v_lshl_add_u32 {V(vWDA)}, {V(T[5])}, 4, {S(sT0)}
    v_lshl_add_u32 {V(vWDA)}, {V(T[6])}, 10, {V(vWDA)}
    v_add_u32 {V(vWS1)}, 4096, {V(vWDA)}
    v_lshl_add_u32 {V(vWDR)}, {V(vL)}, 2, {S(sT2)}
    v_lshrrev_b32 {V(T[4])}, 1, {V(T[2])}
    v_mul_u32_u24 {V(T[4])}, 6144, {V(T[4])}
    v_lshl_add_u32 {V(T[4])}, {V(T[3])}, 4, {V(T[4])}
    v_add_u32 {V(vFPA)}, {S(sT1)}, {V(T[4])}
    v_lshlrev_b32 {V(T[2])}, 3, {V(T[6])}
    v_lshl_add_u32 {V(vXS)}, {V(T[5])}, 6, {V(T[2])}
    ''')
    ssum(sT0, (sWI, 8), FP)
    ssum(sT1, (sWI, 2), FF)
    a(f'''
    v_lshl_add_u32 {V(vFPW)}, {V(vL)}, 2, {S(sT0)}
    v_lshlrev_b32 {V(vFPR)}, 2, {V(T[5])}
    v_add_u32 {V(vFPR)}, {FP}, {V(vFPR)}
    v_mov_b32 {V(vFFW)}, {S(sT1)}
    s_lshr_b32 {S(sT1)}, {S(sWI)}, 1
    s_and_b32 {S(sT2)}, {S(sWI)}, 1
    ''')
    ssum(sT0, (2, 5), (sT1, 4), (sT2, 13), W_ST)
    a(f'v_mov_b32 {V(vSTP)}, {S(sT0)}')
    rk = vXN
    ssum(sT0, (2, 3), (sWI, 1))
    a(f'''
    s_sub_u32 {S(sT0)}, 0xffff, {S(sT0)}
    v_sub_u32 {V(rk)}, {S(sT0)}, {V(T[1])}
    ''')
    ssum(sT0, (sWI, 11), WL)
    for t in range(4):
        a(f'''
        s_add_u32 {S(sT1)}, {S(sJ) if o['rot'] else 0}, {t}
        s_bitcmp1_b32 {S(sT1)}, 1
        s_cselect_b64 {S(sM+2*t,2)}, {S(sWU,2)}, {S(sWG,2)}
        s_cselect_b32 {S(sT2)}, {WL1}, 0
        s_add_u32 {S(sT2)}, {S(sT2)}, {S(sT0)}
        s_bitcmp1_b32 {S(sT1)}, 0
        s_cselect_b32 {S(sT1)}, {64*2752}, 0
        s_cselect_b32 {S(sT3)}, 1024, 0
        s_add_u32 {S(sH8+t)}, {S(sT2)}, {S(sT3)}
        s_add_u32 {S(sM+2*t)}, {S(sM+2*t)}, {S(sT1)}
        s_addc_u32 {S(sM+2*t+1)}, {S(sM+2*t+1)}, 0
        ''')
    pfi = vXN + 1; pfa = vPFA
    ssum(sT0, (sH, 13), (sWI, 11), (sINB, 0))
    a(f'v_lshl_add_u32 {V(pfi)}, {V(T[5])}, 7, {S(sT0)}')
    a(f'''
    s_lshl_b32 {S(sT0)}, {S(sF8)}, 13
    v_lshl_add_u32 {V(pfa)}, {V(vL)}, 7, {S(sT0)}
    s_mov_b64 {S(sPB,2)}, {S(sWD,2)}
    s_cmp_eq_u32 {S(sWI)}, 3
    s_cbranch_scc1 L_pf_done
    s_mov_b64 {S(sPB,2)}, {S(sWG,2)}
    s_bitcmp1_b32 {S(sJ)}, 0
    s_cbranch_scc0 L_pf_gate
    s_mov_b64 {S(sPB,2)}, {S(sWU,2)}
    L_pf_gate:
    s_lshr_b32 {S(sT1)}, {S(sJ)}, 1
    s_lshl_b32 {S(sT1)}, {S(sT1)}, 5
    v_lshrrev_b32 {V(T[2])}, 1, {V(vL)}
    v_add_u32 {V(T[2])}, {S(sT1)}, {V(T[2])}
    v_mul_u32_u24 {V(T[2])}, 2752, {V(T[2])}
    v_mul_u32_u24 {V(T[3])}, 124, {V(T[3])}
    ''')
    ssum(sT0, (sWI, 10), (sK, 7))
    a(f'''
    s_min_u32 {S(sT0)}, {S(sT0)}, 2624
    v_add3_u32 {V(pfa)}, {V(T[2])}, {V(T[3])}, {S(sT0)}
    L_pf_done:
    ''')
    S1, S2, S3, S4 = vXF, vXF + 1, vXF + 2, vXF + 3

    def red32(regs):
        for m in ('row_shr:1', 'row_shr:2', 'row_shr:4', 'row_shr:8'):
            for r in regs: a(f'v_add_f32_dpp {V(r)}, {V(r)}, {V(r)} {m} row_mask:0xf bank_mask:0xf')
        for r in regs: a(f'v_add_f32_dpp {V(r)}, {V(r)}, {V(r)} row_bcast:15 row_mask:0xa bank_mask:0xf')
    for r in (S1, S2, S3, S4): a(f'v_mov_b32 {V(r)}, 0')
    e2 = o['tlb'] + (1 if o['wpf'] == 2 else 0)
    if o['wpf'] == 2: a(f'global_load_dword {V(vPFW)}, {V(vPFA)}, {S(sPB,2)} nt')
    a(f's_waitcnt vmcnt({10 + e2})')
    for i in range(8): a(f'v_dot2_f32_bf16 {V(S4)}, {V(vG+i)}, {S(sONES)}, {V(S4)}')
    red32([S4])
    a(f's_waitcnt vmcnt({8 + e2})')
    stamp(1)
    nlate = e2
    if o['prefetch']:
        a('s_mov_b64 exec, 0xffff')
        a(f'global_load_dword {V(vPFD)}, {V(pfi)}, {S(sWS,2)} nt'); nlate += 1
        alllanes()
    for i in range(8):
        a(f'v_dot2_f32_bf16 {V(S1)}, {V(vD+i)}, {S(sONES)}, {V(S1)}')
        a(f'v_dot2_f32_bf16 {V(S2)}, {V(vD+i)}, {V(vD+i)}, {V(S2)}')
        a(f'v_dot2_f32_bf16 {V(S3)}, {V(vD+i)}, {V(vG+i)}, {V(S3)}')
    red32([S1, S2, S3])
    t = T[0]; g = vE
    a(f'''
    v_mul_f32 {V(S1)}, 0x3b000000, {V(S1)}
    v_mul_f32 {V(S2)}, 0x3b000000, {V(S2)}
    s_waitcnt vmcnt({7 + nlate})
    v_fma_f32 {V(S2)}, -{V(S1)}, {V(S1)}, {V(S2)}
    v_readfirstlane_b32 {S(sTAG)}, {V(vEP)}
    v_max_f32 {V(S2)}, 0, {V(S2)}
    v_cvt_pk_bf16_f32 {V(t)}, {V(S1)}, {V(S2)}
    s_add_u32 {S(sTAG)}, {S(sTAG)}, 16
    v_and_b32 {V(t)}, {S(sHI)}, {V(t)}
    s_and_b32 {S(sTAG)}, {S(sTAG)}, -16
    v_add_f32 {V(t)}, 0x3727c5ac, {V(t)}
    s_or_b32 {S(sTAGX)}, {S(sTAG)}, {S(sXCC)}
    v_cvt_pk_bf16_f32 {V(t)}, {V(t)}, {V(t)}
    v_and_b32 {V(t)}, {S(sHI)}, {V(t)}
    v_sqrt_f32 {V(t)}, {V(t)}
    v_mov_b32 {V(g+3)}, {S(sTAGX)}
    v_cvt_pk_bf16_f32 {V(g+1)}, {V(S1)}, {V(t)}
    v_and_b32 {V(t)}, {S(sHI)}, {V(g+1)}
    v_lshlrev_b32 {V(t+1)}, 16, {V(g+1)}
    v_rcp_f32 {V(t)}, {V(t)}
    v_fma_f32 {V(S3)}, -{V(t+1)}, {V(S4)}, {V(S3)}
    v_readlane_b32 {S(sT0)}, {V(g+1)}, 31
    v_mul_f32 {V(S3)}, {V(S3)}, {V(t)}
    v_cvt_pk_bf16_f32 {V(S3)}, {V(S3)}, {V(S3)}
    v_mov_b32 {V(g)}, {S(sT0)}
    v_ashrrev_i32 {V(t)}, 31, {V(S3)}
    v_or_b32 {V(t)}, 0x80000000, {V(t)}
    v_xor_b32 {V(t)}, {V(t)}, {V(S3)}
    v_and_or_b32 {V(t)}, {V(t)}, {S(sHI)}, {V(rk)}
    s_add_u32 {S(sT1)}, {S(sTAG)}, 1
    v_readlane_b32 {S(sT0)}, {V(t)}, 31
    v_mov_b32 {V(t+2)}, {S(sT1)}
    v_max_u32 {V(g+2)}, {S(sT0)}, {V(t)}
    ''')
    lane63()
    a(f'global_store_dwordx4 {V(vSTP)}, {V(g,4)}, {S(sWS,2)} sc1')
    a(f'ds_write_b32 {V(vFFW)}, {V(t+2)} offset:{TG - FF}')
    alllanes()
    a(f"s_setprio 0\ns_waitcnt vmcnt({1 + nlate}) lgkmcnt(0)")
    stamp(2)

    a('L_kgen:')
    are, aim, bre, bim, cre, cim, dt = [vP + i for i in range(7)]
    t0 = vP + 7
    z1, z2, z4, ZZ, w1, w2, w4 = [vP + 8 + 2 * i for i in range(7)]
    hq = [vP + 24 + 2 * i for i in range(8)]
    lq = [vP + 40 + 2 * i for i in range(8)]
    cv = [vP + 56 + i for i in range(8)]
    a(f'''
    v_mov_b32 {V(t0)}, 0x3fb8aa3b
    v_mul_f32 {V(dt)}, {V(dt)}, {V(t0)}
    v_exp_f32 {V(dt)}, {V(dt)}
    v_mul_f32 {V(are)}, {V(t0)}, {V(are)}
    v_cvt_pk_bf16_f32 {V(dt)}, {V(dt)}, {V(dt)}
    v_mul_f32 {V(aim)}, 0.15915494, {V(aim)}
    v_and_b32 {V(dt)}, {S(sHI)}, {V(dt)}
    v_mul_f32 {V(are)}, {V(dt)}, {V(are)}
    v_mul_f32 {V(aim)}, {V(dt)}, {V(aim)}
    v_exp_f32 {V(cv[0])}, {V(are)}
    v_fract_f32 {V(cv[1])}, {V(aim)}
    v_mul_f32 {V(are)}, 0x43800000, {V(are)}
    v_cos_f32 {V(z1)}, {V(cv[1])}
    v_mul_f32 {V(aim)}, 0x43800000, {V(aim)}
    v_sin_f32 {V(z1+1)}, {V(cv[1])}
    v_fract_f32 {V(cv[3])}, {V(aim)}
    v_exp_f32 {V(cv[2])}, {V(are)}
    v_mul_f32 {V(z1)}, {V(cv[0])}, {V(z1)}
    v_cos_f32 {V(ZZ)}, {V(cv[3])}
    v_mul_f32 {V(z1+1)}, {V(cv[0])}, {V(z1+1)}
    v_sin_f32 {V(ZZ+1)}, {V(cv[3])}
    v_mul_f32 {V(bre)}, {V(dt)}, {V(bre)}
    v_mul_f32 {V(bim)}, {V(dt)}, {V(bim)}
    ''')
    cmul(z2, z1, z1)
    a(f'v_mul_f32 {V(ZZ)}, {V(cv[2])}, {V(ZZ)}\nv_mul_f32 {V(ZZ+1)}, {V(cv[2])}, {V(ZZ+1)}')
    cmul(z4, z2, z2)
    cmul(hq[0], cre, bre)
    ci = [0]; m0_hi = [False]

    def put(row, reg, neg):
        c = cv[ci[0] % 8]; ci[0] += 1
        a(f"v_cvt_pk_bf16_f32 {V(c)}, {V(reg)}, {'-' if neg else ''}{V(reg+1)}")
        off = row * RS - (30 * RS if m0_hi[0] else 0)
        assert 0 <= off < 65536, (row, off)
        a(f'ds_write_addtid_b32 {V(c)} offset:{STAGE + off}')
    cmul(w1, z4, z4)
    cmul(hq[1], hq[0], z1)
    cmul(w2, w1, w1)
    put(1, w1, False)
    cmul(hq[2], hq[0], z2)
    cmul(lq[3], w2, w1)
    put(2, w2, False)
    cmul(w4, w2, w2)
    put(3, lq[3], False)
    cur = {1: w1, 2: w2, 3: lq[3], 4: w4}
    put(4, w4, False)

    def lo_step(j):
        d = lq[j % 8]
        cmul(d, cur[j - 4], w4); cur[j] = d
        put(j, d, False)
    for j in range(5, 12): lo_step(j)
    a(f's_cmp_ge_u32 {S(sW)}, 4\ns_cbranch_scc1 L_noflag')
    spin_init()
    a(f'''
    L_tagspin:
    ds_read_b32 {V(T[0])}, {V(tga)}
    s_waitcnt lgkmcnt(0)
    v_readfirstlane_b32 {S(sTAG)}, {V(T[0])}
    s_cmp_lg_u32 {S(sTAG)}, 0
    s_cbranch_scc1 L_tagok
    ''')
    spin_next('L_tagspin')
    a(f'''
    L_tagok:
    s_and_b32 {S(sTAG)}, {S(sTAG)}, -16
    s_or_b32 {S(sTAGX)}, {S(sTAG)}, {S(sXCC)}
    v_mov_b32 {V(T[0])}, {S(sTAGX)}
    s_mov_b64 exec, 1
    s_waitcnt vmcnt(0)
    global_store_dword {V(vFLO)}, {V(T[0])}, {S(sWS,2)}
    s_mov_b64 exec, -1
    ''')
    stamp(2)
    a('L_noflag:')
    for j in range(12, 30): lo_step(j)
    ssum(sT0, (sW, 8), 30 * RS)
    a(f's_mov_b32 m0, {S(sT0)}')
    m0_hi[0] = True
    for j in range(30, 32): lo_step(j)
    put(32, hq[0], True); put(33, hq[1], True); put(34, hq[2], True)
    cmul(hq[3], hq[1], z2); cmul(hq[4], hq[0], z4)
    put(35, hq[3], True); put(36, hq[4], True)
    a(f'global_load_dword {V(vPFD)}, {V(vFL)}, {S(sWS,2)} sc1')
    cmul(hq[5], hq[1], z4); cmul(hq[6], hq[2], z4); cmul(hq[7], hq[3], z4)
    put(37, hq[5], True); put(38, hq[6], True); put(39, hq[7], True)
    A0, A2, A4, A6, B0, B4, C0, C4 = lq
    cmul(A0, hq[0], ZZ); cmul(A2, hq[2], ZZ); cmul(A4, hq[4], ZZ); cmul(A6, hq[6], ZZ)
    put(40, A0, True)
    cmul(B0, A0, ZZ); put(41, A2, True); cmul(B4, A4, ZZ); put(42, A4, True)
    cmul(C0, B0, ZZ); put(43, A6, True); cmul(C4, B4, ZZ); put(44, B0, True)
    cmul(hq[1], C0, ZZ); put(45, B4, True); put(46, C0, True)
    cmul(hq[2], hq[1], ZZ); put(47, C4, True); put(48, hq[1], True)
    cmul(hq[3], hq[2], ZZ); put(49, hq[2], True)
    cmul(hq[4], hq[3], ZZ); put(50, hq[3], True)
    cmul(hq[5], hq[4], ZZ); put(51, hq[4], True); put(52, hq[5], True)
    stamp(3)

    KD = vP; KF = vP + 16; NB = o['nb']

    def kread(sidx):
        r = KF + 8 * (sidx % NB)
        a(f'ds_read_b128 {V(r,4)}, {V(vKA)} offset:{32*sidx}')
        a(f'ds_read_b128 {V(r+4,4)}, {V(vKB)} offset:{32*sidx}')

    def kmfma(cinit):
        for sidx in range(8):
            outstanding = min(8, sidx + NB) - sidx - 1
            a(f's_waitcnt lgkmcnt({2*outstanding})')
            r = KF + 8 * (sidx % NB)
            a(f"v_mfma_f32_32x32x16_bf16 {V(KD,16)}, {V(r,4)}, {V(r+4,4)}, {'0' if (sidx == 0 and not cinit) else V(KD,16)}")
            if sidx + NB < 8: kread(sidx + NB)

    def fetch_tile(tag):
        a(f's_waitcnt vmcnt(0)\nv_cmp_ne_u32 vcc, {S(sTAGX)}, {V(vPFD)}')
        if o['force_slow']: a(f's_branch L_gather{tag}')
        a(f's_cbranch_vccz L_fast{tag}')
        spin_init()
        a(f'''
        L_flagspin{tag}:
        global_load_dword {V(vPFD)}, {V(vFL)}, {S(sWS,2)} sc1
        global_load_dword {V(T[0])}, {V(vXC)}, {S(sWS,2)} sc1
        s_waitcnt vmcnt(0)
        v_cmp_ne_u32 vcc, {S(sTAGX)}, {V(vPFD)}
        s_cbranch_vccz L_fast{tag}
        v_xor_b32 {V(T[0])}, {S(sTAGX)}, {V(T[0])}
        v_add_u32 {V(T[0])}, -1, {V(T[0])}
        v_cmp_gt_u32 vcc, 15, {V(T[0])}
        s_cbranch_vccnz L_gather{tag}
        ''')
        spin_next(f'L_flagspin{tag}')
        a(f'L_gather{tag}:')
        for r in range(4):
            a(f'global_load_dwordx2 {V(vD+2*r,2)}, {V(vXG)}, {S(sX,2)} offset:{r*1024}')
        a(f'''
        s_branch L_stats{tag}
        L_fast{tag}:
        global_load_dwordx4 {V(vD,4)}, {V(vIN)}, {S(sWS,2)} sc1
        global_load_dwordx4 {V(vD+4,4)}, {V(vIN)}, {S(sWS,2)} offset:64 sc1
        L_stats{tag}:
        global_load_dwordx4 {V(vG,4)}, {V(vST0)}, {S(sWS,2)} sc1
        global_load_dwordx4 {V(vG+4,4)}, {V(vST1)}, {S(sWS,2)} sc1
        ''')

    a(f's_cmp_ge_u32 {S(sW)}, 4\ns_cbranch_scc1 L_h_k')
    for i in range(NB): kread(i)
    kmfma(False)
    a(f'v_mov_b32 {V(T[1])}, 1')
    for i in range(3): a(f'ds_write_b128 {V(vPD)}, {V(KD+4*i,4)} offset:{1024*i}')
    a(f's_mov_b64 exec, 1\nds_write_b32 {V(tga)}, {V(T[1])} offset:{PF - TG}\ns_mov_b64 exec, -1')
    stamp(4)
    fetch_tile('c')
    a('s_branch L_b3')
    a('L_h_k:')
    spin_init()
    a(f'''
    L_pspin:
    ds_read_b32 {V(T[1])}, {V(vFFW)} offset:{PF - FF}
    ''')
    for i in range(3): a(f'ds_read_b128 {V(KD+4*i,4)}, {V(vPD)} offset:{1024*i}')
    for i in range(NB - 1): kread(i)
    a(f'''
    s_waitcnt lgkmcnt({2*(NB-1) + 3})
    v_readfirstlane_b32 {S(sT0)}, {V(T[1])}
    s_cmp_lg_u32 {S(sT0)}, 0
    s_cbranch_scc1 L_pok
    s_waitcnt lgkmcnt(0)
    ''')
    spin_next('L_pspin')
    a('L_pok:')
    kread(NB - 1)
    kmfma(True)
    for i in range(6): a(f'v_cvt_pk_bf16_f32 {V(T[i])}, {V(KD+2*i)}, {V(KD+2*i+1)}')
    a(f'''
    ds_write_b64 {V(vTW1)}, {V(T[0],2)}
    ds_write_b32 {V(vTW2)}, {V(T[2])}
    ds_write_b32 {V(vTW3)}, {V(T[3])}
    ds_write_b16 {V(vTW4)}, {V(T[4])}
    ds_write_b16_d16_hi {V(vTW4)}, {V(T[4])} offset:64
    ds_write_b16 {V(vTW4)}, {V(T[5])} offset:128
    ds_write_b16_d16_hi {V(vTW4)}, {V(T[5])} offset:192
    ''')
    stamp(4)
    fetch_tile('h')
    if o['wpf'] == 1: a(f'global_load_dword {V(vPFW)}, {V(vPFA)}, {S(sPB,2)} nt')
    a('L_b3:\ns_waitcnt lgkmcnt(0)')
    stamp(5)
    a('s_barrier')

    def w_dma():
        ssum(sT0, (sWI, 11), SL)
        a(f's_mov_b32 m0, {S(sT0)}')
        a(f'global_load_lds_dwordx4 {V(vWDA)}, {S(sWD,2)} nt')
        a(f's_add_u32 m0, {S(sT0)}, 1024')
        a(f'global_load_lds_dwordx4 {V(vWS1)}, {S(sWD,2)} nt')
        for t in range(4):
            a(f's_mov_b32 m0, {S(sH8+t)}')
            a(f'global_load_lds_dwordx4 {V(vWS0)}, {S(sM+2*t,2)}')

    XP = vG
    def r4_build(tag, mid=None):
        Wq = vP; Q = vP + 16
        for c in range(4):
            a(f'ds_read2_b32 {V(Wq+4*c,2)}, {V(vGA+2*c)} offset0:0 offset1:1')
            a(f'ds_read2_b32 {V(Wq+4*c+2,2)}, {V(vGA+2*c+1)} offset0:0 offset1:1')
        if tag == 'c': a(f'''
        s_cmp_lg_u32 {S(sW)}, 3
        s_cbranch_scc1 L_nopad{tag}
        v_bfe_u32 {V(T[0])}, {V(vL)}, 3, 2
        v_and_b32 {V(T[1])}, 7, {V(vL)}
        v_mul_u32_u24 {V(T[0])}, {R4S}, {V(T[0])}
        v_lshl_add_u32 {V(T[0])}, {V(T[1])}, 4, {V(T[0])}
        ''')
        if tag == 'c':
            for i in range(4): a(f'v_mov_b32 {V(T[4+i])}, 0')
        if tag == 'c': a(f'''
        s_mov_b32 exec_hi, 0
        ds_write_b128 {V(T[0])}, {V(T[4],4)} offset:{R4}
        s_mov_b64 exec, -1
        s_waitcnt lgkmcnt(1)
        L_nopad{tag}:
        ''')
        if mid: mid()
        for c in range(4):
            W0, W1, W2, W3 = [Wq + 4 * c + i for i in range(4)]
            q = Q + 8 * c
            if not mid: a('s_waitcnt lgkmcnt(6)')
            a(f'''
            v_perm_b32 {V(q+0)}, {V(W2)}, {V(W1)}, {V(vSEL+2)}
            v_perm_b32 {V(q+1)}, {V(W1)}, {V(W0)}, {V(vSEL+0)}
            v_perm_b32 {V(q+2)}, {V(W3)}, {V(W2)}, {V(vSEL+3)}
            v_perm_b32 {V(q+3)}, {V(W1)}, {V(W0)}, {V(vSEL+1)}
            v_mov_b32 {V(q+5)}, {V(q+0)}
            ds_write_b128 {V(vR4W)}, {V(q,4)} offset:{c*R4S}
            v_perm_b32 {V(q+4)}, {V(W3)}, {V(W2)}, {V(vSEL+4)}
            v_perm_b32 {V(q+6)}, {V(W3)}, {V(W2)}, {V(vSEL+5)}
            v_mov_b32 {V(q+7)}, {V(q+2)}
            ds_write_b128 {V(vR4W)}, {V(q+4,4)} offset:{c*R4S + 16}
            ''')

    def normalise(tag):
        if tag == 'h' and o['wb3']:
            a(f's_cmp_eq_u32 {S(sPROD)}, 0\ns_cbranch_scc1 L_nw0')
            w_dma()
            a(f"s_waitcnt vmcnt(6)\ns_branch L_nw1\nL_nw0:\ns_waitcnt vmcnt(0)\nL_nw1:")
        else:
            a(f"s_waitcnt vmcnt({1 if (tag == 'h' and o['wpf'] == 1) else 0})")
        spin_init()
        a(f'''
        L_statspin{tag}:
        v_xor_b32 {V(T[0])}, {S(sTAG)}, {V(vG+3)}
        v_xor_b32 {V(T[1])}, {S(sTAG)}, {V(vG+7)}
        v_or_b32 {V(T[0])}, {V(T[0])}, {V(T[1])}
        v_cmp_lt_u32 vcc, 15, {V(T[0])}
        s_cbranch_vccz L_statok{tag}
        global_load_dwordx4 {V(vG,4)}, {V(vST0)}, {S(sWS,2)} sc1
        global_load_dwordx4 {V(vG+4,4)}, {V(vST1)}, {S(sWS,2)} sc1
        s_waitcnt vmcnt(0)
        ''')
        spin_next(f'L_statspin{tag}')
        a(f'L_statok{tag}:')
        stamp(7)
        stq = [vG, vG + 1, vG + 4, vG + 5]
        rho = [T[1], T[3], T[5], T[7]]; mu = [T[0], T[2], T[4], T[6]]
        key = T[8]
        for r in range(4): a(f'v_and_b32 {V(rho[r])}, {S(sHI)}, {V(stq[r])}')
        a(f'v_max_u32 {V(key)}, {V(vG+2)}, {V(vG+6)}')
        for r in range(4):
            a(f'v_rcp_f32 {V(rho[r])}, {V(rho[r])}')
            a(f'v_lshlrev_b32 {V(mu[r])}, 16, {V(stq[r])}')
        kred = ['row_shr:1 row_mask:0xf', 'row_shr:2 row_mask:0xf', 'row_shr:4 row_mask:0xf', 'row_shr:8 row_mask:0xf',
                'row_bcast:15 row_mask:0xa', 'row_bcast:31 row_mask:0xc']
        def kr(i): a(f'v_max_u32_dpp {V(key)}, {V(key)}, {V(key)} {kred[i]} bank_mask:0xf')
        for r in range(4):
            a(f'''
            v_mul_f32_e64 {V(mu[r])}, -{V(mu[r])}, {V(rho[r])}
            v_lshlrev_b32 {V(vXF+4*r)}, 16, {V(vD+2*r)}
            v_and_b32 {V(vXF+4*r+1)}, {S(sHI)}, {V(vD+2*r)}
            v_lshlrev_b32 {V(vXF+4*r+2)}, 16, {V(vD+2*r+1)}
            v_and_b32 {V(vXF+4*r+3)}, {S(sHI)}, {V(vD+2*r+1)}
            ''')
            kr(r)
            for c in range(4): a(f'v_fma_f32 {V(vXN+4*r+c)}, {V(vXF+4*r+c)}, {V(rho[r])}, {V(mu[r])}')
        kr(4)
        ssum(sT0, (sW, 2), AM)
        for c in range(4):
            a(f'''
            v_cvt_pk_bf16_f32 {V(XP+2*c)}, {V(vXN+c)}, {V(vXN+4+c)}
            v_cvt_pk_bf16_f32 {V(XP+2*c+1)}, {V(vXN+8+c)}, {V(vXN+12+c)}
            ds_write_b64 {V(vUW)}, {V(XP+2*c,2)} offset:{c*US}
            ''')
            if c == 0: kr(5)
            if c == 1: a(f'v_mov_b32 {V(T[9])}, {S(sT0)}')
        lane63()
        a(f'ds_write_b32 {V(T[9])}, {V(key)}')
        alllanes()

    a(f's_cmp_ge_u32 {S(sW)}, 4\ns_cbranch_scc1 L_h_r4')
    r4_build('c'); stamp(6); normalise('c')
    a('s_branch L_b4\nL_h_r4:')
    if o['hnormfirst']:
        def mid():
            normalise('h')
            if o['wpf'] == 3: a(f'global_load_dword {V(vPFW)}, {V(vPFA)}, {S(sPB,2)} nt')
            a('s_waitcnt lgkmcnt(5)'); stamp(6)
        r4_build('h', mid)
    else:
        r4_build('h'); stamp(6); normalise('h')
    a('L_b4:')
    a(f'v_mov_b32 {V(T[9])}, {AM}\ns_waitcnt lgkmcnt(0)')
    stamp(8)
    a('s_barrier')

    def read_idx():
        a(f'''
        ds_read_b128 {V(T[0],4)}, {V(T[9])}
        ds_read_b128 {V(T[4],4)}, {V(T[9])} offset:16
        s_waitcnt lgkmcnt(0)
        v_max3_u32 {V(T[0])}, {V(T[0])}, {V(T[1])}, {V(T[2])}
        v_max3_u32 {V(T[3])}, {V(T[3])}, {V(T[4])}, {V(T[5])}
        v_max3_u32 {V(T[0])}, {V(T[0])}, {V(T[6])}, {V(T[7])}
        v_max_u32 {V(T[0])}, {V(T[0])}, {V(T[3])}
        v_readfirstlane_b32 {S(sKEY)}, {V(T[0])}
        s_andn2_b32 {S(sIDX)}, 2047, {S(sKEY)}
        s_lshr_b32 {S(sT0)}, {S(sIDX)}, 8
        s_lshr_b32 {S(sT1)}, {S(sIDX)}, 9
        s_xor_b32 {S(sT0)}, {S(sT0)}, {S(sT1)}
        s_xor_b32 {S(sT0)}, {S(sT0)}, {S(sH)}
        s_andn2_b32 {S(sOWN)}, 1, {S(sT0)}
        ''')

    def stat_addr(dst):
        a(f's_lshr_b32 {S(sT0)}, {S(sIDX)}, 2\ns_bfe_u32 {S(sT1)}, {S(sIDX)}, 0x10001\ns_and_b32 {S(sT2)}, {S(sIDX)}, 1')
        ssum(sT0, (sT0, 4), (sT1, 13), (sT2, 2), W_ST)
        a(f'v_mov_b32 {V(dst)}, {S(sT0)}')

    a(f's_cmp_ge_u32 {S(sW)}, 4\ns_cbranch_scc1 L_helper')

    ACC = vP; FR = vP + 16; NFR = 28
    stamp(10)
    a(f's_setprio 1\ns_cmp_eq_u32 {S(sH)}, 0\ns_cbranch_scc0 L_conv1')

    def conv(h):
        tl = tiles(h)
        ops = []
        for c0 in range(8):
            lst = [(i, c1, q - c1) for i, q in enumerate(tl) for c1 in range(q + 1)]
            have = set(); seq = []
            while lst:
                def cost(x):
                    base = (2 * (('A', x[1]) not in have) + (('B', x[2]) not in have), bool(seq) and seq[-1][0] == x[0], max(x[1], x[2]))
                    return ((x[0],) + base) if c0 == 7 else base
                x = min(lst, key=cost); lst.remove(x); seq.append(x); have.add(('A', x[1])); have.add(('B', x[2]))
            for i, c1, qp in seq: ops.append((i, ('A', c0, c1), ('B', c0, qp)))
        order = []; last = {}; lastacc = {}
        for n, (i, ak, bk) in enumerate(ops):
            lastacc[i] = n
            for k in (bk, ak):
                if k not in last: order.append(k)
                last[k] = n
        L = []
        for k in order: L += [(k, 0), (k, 1)] if k[0] == 'A' else [(k, 0)]
        endidx = {}
        for j, (k, p) in enumerate(L): endidx[k] = j + 1
        need = []; m = 0
        for (i, ak, bk) in ops:
            m = max(m, endidx[ak], endidx[bk]); need.append(m)
        free = list(range(NFR)); slot = {}
        st = dict(issued=0, done=0)
        seqpos = []
        nds = [0]
        donepos = [0]
        MAXOUT = o['maxout']; G = o['group']

        def can_issue():
            if st['issued'] >= len(L) or nds[0] - donepos[0] >= MAXOUT: return False
            k, p = L[st['issued']]
            return p == 1 or bool(free)

        def issue():
            k, p = L[st['issued']]
            if p == 0: slot[k] = free.pop(0)
            r = FR + 4 * slot[k]
            if k[0] == 'A':
                a(f'ds_read_b64 {V(r+2*p,2)}, {V(vCA2 if p else vCA)} offset:{CAS*(8*k[2] + k[1])}')
            else:
                a(f'ds_read_b128 {V(r,4)}, {V(vCB)} offset:{2*(224 + 256*k[2] - 32*k[1])}')
            st['issued'] += 1; nds[0] += 1; seqpos.append(nds[0])
        started = set(); written = set()
        while can_issue(): issue()
        for n, (i, ak, bk) in enumerate(ops):
            if need[n] > st['done']:
                while st['issued'] < need[n]:
                    assert nds[0] - donepos[0] < 15
                    issue()
                tgt = need[n]
                for m2 in range(n, min(n + G, len(ops))):
                    if need[m2] <= st['issued'] - o['minfly'] or need[m2] <= len(L) == st['issued']: tgt = max(tgt, need[m2])
                a(f's_waitcnt lgkmcnt({nds[0] - seqpos[tgt-1]})'); st['done'] = tgt; donepos[0] = seqpos[tgt - 1]
            acc = ACC + 4 * i
            cin = V(acc, 4) if i in started else '0'
            started.add(i)
            a(f'v_mfma_f32_16x16x32_bf16 {V(acc,4)}, {V(FR+4*slot[ak],4)}, {V(FR+4*slot[bk],4)}, {cin}')
            for k in (ak, bk):
                if last[k] == n: free.append(slot[k])
            budget = 2
            if n + 1 < len(ops) and need[n + 1] > st['done']: budget = 1
            for i2 in range(4):
                if i2 not in written and lastacc[i2] + 4 <= n and budget > 0 and nds[0] - donepos[0] < 15:
                    a(f'ds_write_b128 {V(vY)}, {V(ACC+4*i2,4)} offset:{i2*YTS}')
                    written.add(i2); nds[0] += 1; budget -= 1
            while budget > 0 and can_issue():
                issue(); budget -= 1
        for i2 in range(4):
            if i2 not in written: a(f'ds_write_b128 {V(vY)}, {V(ACC+4*i2,4)} offset:{i2*YTS}')
    conv(0)
    a('s_branch L_convdone\nL_conv1:')
    conv(1)
    a('L_convdone:\ns_waitcnt lgkmcnt(0)')
    stamp(9)
    a(f's_barrier\ns_cmp_lg_u32 {S(sW)}, 0\ns_cbranch_scc1 L_exit')
    a(f'''
    s_cmp_lg_u32 s2, 0
    s_cbranch_scc1 L_noep
    v_mov_b32 {V(T[10])}, 0
    v_mov_b32 {V(T[11])}, {S(sTAG)}
    s_mov_b64 exec, 1
    global_store_dword {V(T[10])}, {V(T[11])}, {S(sWS,2)} sc1
    s_mov_b64 exec, -1
    L_noep:
    ''')
    read_idx()
    a(f's_cmp_eq_u32 {S(sOWN)}, 0\ns_cbranch_scc1 L_exit\ns_setprio 3')
    F = vP
    par, xo, fpa = T[12], T[13], T[14]
    y0, y1, n0, n1, d0, d1, sg, xv, sv, x0, x1 = [vXF + i for i in range(11)]
    a(f'v_and_b32 {V(par)}, 1, {V(vL)}')
    ssum(sT0, (sIDX, 10), (sCH0, 1))
    a(f'v_lshl_add_u32 {V(xo)}, {V(par)}, 2, {S(sT0)}')
    stat_addr(T[10])
    a(f'global_load_dword {V(xv)}, {V(xo)}, {S(sX,2)}')
    a(f'global_load_dword {V(sv)}, {V(T[10])}, {S(sWS,2)} sc1')
    a(f's_lshr_b32 {S(sT0)}, {S(sCH0)}, 2')
    smul(sT0, sT0, 6144, W_FP + 3072)
    a(f'v_lshl_add_u32 {V(fpa)}, {V(vL)}, 4, {S(sT0)}')
    a(f'''
    s_lshr_b32 {S(sT1)}, {S(sIDX)}, 9
    s_mul_i32 {S(sT1)}, {S(sT1)}, {YTS}
    s_bfe_u32 {S(sT0)}, {S(sIDX)}, 0x20002
    s_mul_i32 {S(sT0)}, {S(sT0)}, {YGS}
    s_add_u32 {S(sT1)}, {S(sT1)}, {S(sT0)}
    s_bfe_u32 {S(sT0)}, {S(sIDX)}, 0x40004
    s_and_b32 {S(sT2)}, {S(sIDX)}, 3
    ''')
    ssum(sT1, (sT1, 0), (sT0, 4), (sT2, 2), YX)
    a(f'''
    v_mul_u32_u24 {V(T[0])}, {2*YCS}, {V(par)}
    v_add_u32 {V(T[0])}, {S(sT1)}, {V(T[0])}
    ds_read_b32 {V(y0)}, {V(T[0])}
    ds_read_b32 {V(y1)}, {V(T[0])} offset:{YCS}
    s_and_b32 {S(sT0)}, {S(sKEY)}, {S(sHI)}
    s_xor_b32 {S(sT1)}, {S(sT0)}, 0x80000000
    s_xor_b32 {S(sT2)}, {S(sT0)}, {S(sHI)}
    s_bitcmp1_b32 {S(sT0)}, 31
    s_cselect_b32 {S(sT0)}, {S(sT1)}, {S(sT2)}
    v_mov_b32 {V(T[2])}, 0xbfb8aa3b
    v_mul_f32 {V(sg)}, {S(sT0)}, {V(T[2])}
    v_exp_f32 {V(sg)}, {V(sg)}
    v_cmp_eq_u32 vcc, 0, {V(par)}
    v_add_f32 {V(sg)}, 1.0, {V(sg)}
    v_rcp_f32 {V(sg)}, {V(sg)}
    v_mov_b32 {V(F+20)}, 0
    v_cvt_pk_bf16_f32 {V(sg)}, {V(sg)}, {V(sg)}
    v_mov_b32 {V(F+21)}, 0
    v_and_b32 {V(sg)}, {S(sHI)}, {V(sg)}
    v_mov_b32 {V(F+22)}, {S(sTAG)}
    s_waitcnt lgkmcnt(0)
    v_mov_b32 {V(d0)}, {S(sDS)}
    v_mov_b32 {V(d1)}, {S(sDS+1)}
    v_cndmask_b32 {V(d0)}, {V(d1)}, {V(d0)}, vcc
    v_and_b32 {V(d1)}, {S(sHI)}, {V(d0)}
    v_lshlrev_b32 {V(d0)}, 16, {V(d0)}
    ''')

    def rnd2(r0, r1, t):
        a(f'v_cvt_pk_bf16_f32 {V(t)}, {V(r0)}, {V(r1)}\nv_lshlrev_b32 {V(r0)}, 16, {V(t)}\nv_and_b32 {V(r1)}, {S(sHI)}, {V(t)}')
    rnd2(y0, y1, T[0])
    a(f'''
    s_waitcnt vmcnt(0)
    v_and_b32 {V(T[1])}, {S(sHI)}, {V(sv)}
    v_lshlrev_b32 {V(T[2])}, 16, {V(sv)}
    v_rcp_f32 {V(T[1])}, {V(T[1])}
    v_lshlrev_b32 {V(x0)}, 16, {V(xv)}
    v_and_b32 {V(x1)}, {S(sHI)}, {V(xv)}
    v_sub_f32 {V(n0)}, {V(x0)}, {V(T[2])}
    v_sub_f32 {V(n1)}, {V(x1)}, {V(T[2])}
    ''')
    rnd2(n0, n1, T[0])
    a(f'v_mul_f32 {V(n0)}, {V(n0)}, {V(T[1])}\nv_mul_f32 {V(n1)}, {V(n1)}, {V(T[1])}')
    rnd2(n0, n1, T[0])
    a(f'v_mul_f32 {V(d0)}, {V(d0)}, {V(n0)}\nv_mul_f32 {V(d1)}, {V(d1)}, {V(n1)}')
    rnd2(d0, d1, T[0])
    a(f'v_add_f32 {V(y0)}, {V(y0)}, {V(d0)}\nv_add_f32 {V(y1)}, {V(y1)}, {V(d1)}')
    rnd2(y0, y1, T[0])
    if o['b6']: a('s_barrier')
    spin_init()
    a('L_ffnspin:')
    for i in range(5):
        a(f'global_load_dwordx4 {V(F+4*i,4)}, {V(fpa)}, {S(sWS,2)} offset:{i*1024 - 3072} sc1')
    a(f'''
    s_mov_b64 exec, 0xffffff
    global_load_dwordx4 {V(F+20,4)}, {V(fpa)}, {S(sWS,2)} offset:2048 sc1
    s_mov_b64 exec, -1
    s_waitcnt vmcnt(0)
    ''')
    for i in range(6): a(f'v_xor_b32 {V(T[i])}, {S(sTAG)}, {V(F+4*i+2)}')
    a(f'''
    v_or3_b32 {V(T[0])}, {V(T[0])}, {V(T[1])}, {V(T[2])}
    v_or3_b32 {V(T[3])}, {V(T[3])}, {V(T[4])}, {V(T[5])}
    v_or_b32 {V(T[0])}, {V(T[0])}, {V(T[3])}
    v_cmp_ne_u32 vcc, 0, {V(T[0])}
    s_cbranch_vccz L_ffnok
    ''')
    spin_next('L_ffnspin')
    a('L_ffnok:')
    stamp(11)
    p0, p1 = F, F + 1
    for e in range(2):
        a(f'v_add_f32 {V(F+e)}, {V(F+e)}, {V(F+4+e)}')
        a(f'v_add_f32 {V(F+8+e)}, {V(F+8+e)}, {V(F+12+e)}')
        a(f'v_add_f32 {V(F+16+e)}, {V(F+16+e)}, {V(F+20+e)}')
    for e in range(2): a(f'v_add_f32 {V(F+e)}, {V(F+e)}, {V(F+8+e)}')
    for e in range(2): a(f'v_add_f32 {V(F+e)}, {V(F+e)}, {V(F+16+e)}')
    for m in (2, 4, 8):
        for e in range(2): a(f'v_add_f32_dpp {V(F+e)}, {V(F+e)}, {V(F+e)} row_ror:{m} row_mask:0xf bank_mask:0xf')
    for pl in ('v_permlane16_swap_b32', 'v_permlane32_swap_b32'):
        for e in range(2): a(f'v_mov_b32 {V(F+4+e)}, {V(F+e)}')
        for e in range(2): a(f'{pl} {V(F+e)}, {V(F+4+e)}')
        for e in range(2): a(f'v_add_f32 {V(F+e)}, {V(F+e)}, {V(F+4+e)}')
    rnd2(p0, p1, T[0])
    for e in range(2): a(f'v_mul_f32 {V(F+e)}, {V(F+e)}, {V(sg)}')
    rnd2(p0, p1, T[0])
    a(f'v_add_f32 {V(p0)}, {V(p0)}, {V(n0)}\nv_add_f32 {V(p1)}, {V(p1)}, {V(n1)}')
    rnd2(p0, p1, T[0])
    for e in range(2): a(f'v_mul_f32 {V(F+4+e)}, 0xbfb8aa3b, {V(F+e)}')
    for e in range(2): a(f'v_exp_f32 {V(F+4+e)}, {V(F+4+e)}')
    for e in range(2): a(f'v_add_f32 {V(F+4+e)}, 1.0, {V(F+4+e)}')
    for e in range(2): a(f'v_rcp_f32 {V(F+4+e)}, {V(F+4+e)}')
    for e in range(2): a(f'v_mul_f32 {V(F+e)}, {V(F+e)}, {V(F+4+e)}')
    rnd2(p0, p1, T[0])
    a(f'v_mul_f32 {V(p0)}, {V(p0)}, {V(y0)}\nv_mul_f32 {V(p1)}, {V(p1)}, {V(y1)}')
    rnd2(p0, p1, T[0])
    a(f'''
    v_add_f32 {V(p0)}, {V(p0)}, {V(x0)}
    v_add_f32 {V(p1)}, {V(p1)}, {V(x1)}
    v_cvt_pk_bf16_f32 {V(T[0])}, {V(p0)}, {V(p1)}
    s_mov_b64 exec, 3
    global_store_dword {V(xo)}, {V(T[0])}, {S(sOUT,2)}
    s_mov_b64 exec, -1
    ''')
    if o['stamp']:
        a('s_waitcnt vmcnt(0)'); stamp(12); a('s_branch L_exit')
    else:
        a('s_endpgm')

    a('L_helper:')
    read_idx()
    XS = vP
    a(f's_cmp_eq_u32 {S(sPROD)}, 0\ns_cbranch_scc1 L_h_pre')
    a(f's_lshl_b32 {S(sT0)}, {S(sIDX)}, 10\nv_add_u32 {V(T[0])}, {S(sT0)}, {V(vXS)}')
    stat_addr(T[1])
    a(f'''
    global_load_dwordx2 {V(XS,2)}, {V(T[0])}, {S(sX,2)}
    global_load_dwordx2 {V(XS+2,2)}, {V(T[0])}, {S(sX,2)} offset:32
    global_load_dword {V(XS+4)}, {V(T[1])}, {S(sWS,2)} sc1
    ''')
    if not o['wb3']: w_dma()
    a('L_h_pre:')
    Dv = [T[10 + c] for c in range(4)]
    a(f'''
    s_lshl_b32 {S(sT0)}, {S(sDS)}, 16
    s_and_b32 {S(sT1)}, {S(sDS)}, {S(sHI)}
    s_lshl_b32 {S(sT2)}, {S(sDS+1)}, 16
    s_and_b32 {S(sT3)}, {S(sDS+1)}, {S(sHI)}
    ''')
    for c in range(4): a(f'v_mov_b32 {V(Dv[c])}, {S(sT0+c)}')
    WF = vP + 8; DD = vP + 24; XA = vP + 40; WDF = vP + 48
    for c in range(4):
        if c == 2:
            a('s_waitcnt vmcnt(7)')
            for i in range(4): a(f'ds_read2st64_b32 {V(vWD+2*i,2)}, {V(vWDR)} offset0:{2*i} offset1:{2*i+1}')
        for r in range(4):
            src = XP + 2 * c + (r >> 1)
            if r & 1: a(f'v_and_b32 {V(vXN+4*r+c)}, {S(sHI)}, {V(src)}')
            else:     a(f'v_lshlrev_b32 {V(vXN+4*r+c)}, 16, {V(src)}')
        for r in range(4): a(f'v_mul_f32 {V(T[r])}, 0xbfb8aa3b, {V(vXN+4*r+c)}')
        for r in range(4): a(f'v_exp_f32 {V(T[r])}, {V(T[r])}')
        for r in range(4):
            a(f'v_mul_f32 {V(vE+4*r+c)}, {V(vXN+4*r+c)}, {V(Dv[c])}')
            a(f'v_add_f32 {V(T[r])}, 1.0, {V(T[r])}')
        for r in range(4): a(f'v_rcp_f32 {V(T[r])}, {V(T[r])}')
        for r in range(4): a(f'v_mul_f32 {V(vXN+4*r+c)}, {V(vXN+4*r+c)}, {V(T[r])}')
        for r in range(4): a(f'v_fma_f32 {V(vE+4*r+c)}, {V(vE+4*r+c)}, {V(vXN+4*r+c)}, {V(vXF+4*r+c)}')
    for r in range(4):
        a(f'v_add_u32 {V(T[0])}, {r}, {V(vROW)}\nv_cmp_ne_u32 {S(sM+2*r,2)}, {S(sIDX)}, {V(T[0])}')
    a(f's_waitcnt lgkmcnt(0)\ns_cmp_eq_u32 {S(sPROD)}, 0\ns_cbranch_scc1 L_h_b5')
    for i in range(8):
        a(f'v_lshlrev_b32 {V(WDF+2*i)}, 16, {V(vWD+i)}\nv_and_b32 {V(WDF+2*i+1)}, {S(sHI)}, {V(vWD+i)}')
    stamp(9)
    a(f"s_setprio {o['ffnprio']}")
    a('s_waitcnt vmcnt(3)')
    for sp in range(4):
        a(f'ds_read_b64_tr_b16 {V(WF+4*sp,2)}, {V(vWT)} offset:{512*sp}')
        a(f'ds_read_b64_tr_b16 {V(WF+4*sp+2,2)}, {V(vWT)} offset:{512*sp + 256}')
    gq = T[4]
    a(f'''
    v_mov_b32 {V(T[11])}, 1
    v_mov_b32 {V(T[10])}, {FF}
    s_waitcnt vmcnt(0)
    ''')
    stamp(0)
    X = [T[2+i] for i in range(8)]
    a(f'''
    v_and_b32 {V(T[12])}, {S(sHI)}, {V(XS+4)}
    v_lshlrev_b32 {V(T[14])}, 16, {V(XS+4)}
    v_rcp_f32 {V(T[12])}, {V(T[12])}
    ''')
    for i in range(4):
        a(f'v_lshlrev_b32 {V(X[2*i])}, 16, {V(XS+i)}\nv_and_b32 {V(X[2*i+1])}, {S(sHI)}, {V(XS+i)}')
        a(f'v_pk_add_f32 {V(X[2*i],2)}, {V(X[2*i],2)}, {V(T[14],2)} op_sel_hi:[1,0] neg_lo:[0,1] neg_hi:[0,1]')
    for i in range(4): a(f'v_cvt_pk_bf16_f32 {V(XA+i)}, {V(X[2*i])}, {V(X[2*i+1])}')
    for i in range(4):
        a(f'v_lshlrev_b32 {V(X[2*i])}, 16, {V(XA+i)}\nv_and_b32 {V(X[2*i+1])}, {S(sHI)}, {V(XA+i)}')
        a(f'v_pk_mul_f32 {V(X[2*i],2)}, {V(X[2*i],2)}, {V(T[12],2)} op_sel_hi:[1,0]')
    for i in range(4): a(f'v_cvt_pk_bf16_f32 {V(XA+i)}, {V(X[2*i])}, {V(X[2*i+1])}')
    a('s_waitcnt lgkmcnt(0)')
    for sp in range(4):
        a(f'v_mfma_f32_16x16x32_bf16 {V(DD+4*sp,4)}, {V(XA,4)}, {V(WF+4*sp,4)}, 0')
    spin_init()
    a(f'''
    v_add_f32 {V(T[0])}, {V(DD)}, {V(DD+5)}
    v_add_f32 {V(T[1])}, {V(DD+10)}, {V(DD+15)}
    v_add_f32 {V(T[0])}, {V(T[0])}, {V(T[1])}
    ds_write_b32 {V(vFPW)}, {V(T[0])}
    s_mov_b64 exec, 1
    ds_write_b32 {V(vFFW)}, {V(T[11])}
    s_mov_b64 exec, -1
    L_hspin:
    ds_read_b128 {V(T[4],4)}, {V(T[10])}
    ds_read2_b32 {V(T[0],2)}, {V(vFPR)} offset0:0 offset1:80
    ds_read2_b32 {V(T[2],2)}, {V(vFPR)} offset0:160 offset1:240
    s_waitcnt lgkmcnt(0)
    v_and_b32 {V(T[4])}, {V(T[4])}, {V(T[5])}
    v_add_f32 {V(T[0])}, {V(T[0])}, {V(T[1])}
    v_and_b32 {V(T[6])}, {V(T[6])}, {V(T[7])}
    v_add_f32 {V(T[2])}, {V(T[2])}, {V(T[3])}
    v_and_b32 {V(T[4])}, {V(T[4])}, {V(T[6])}
    v_add_f32 {V(T[0])}, {V(T[0])}, {V(T[2])}
    v_cmp_eq_u32 vcc, 0, {V(T[4])}
    v_cvt_pk_bf16_f32 {V(T[0])}, {V(T[0])}, {V(T[0])}
    s_cbranch_vccz L_hok
    ''')
    spin_next('L_hspin')
    a(f'''
    L_hok:
    v_and_b32 {V(T[0])}, {S(sHI)}, {V(T[0])}
    v_mul_f32 {V(T[1])}, 0xbfb8aa3b, {V(T[0])}
    v_exp_f32 {V(T[1])}, {V(T[1])}
    v_mov_b32_dpp {V(T[2])}, {V(T[0])} row_ror:8 row_mask:0xf bank_mask:0xf
    v_add_f32 {V(T[1])}, 1.0, {V(T[1])}
    v_rcp_f32 {V(T[1])}, {V(T[1])}
    v_mov_b32 {V(gq+2)}, {S(sTAG)}
    v_mul_f32 {V(T[1])}, {V(T[0])}, {V(T[1])}
    v_cvt_pk_bf16_f32 {V(T[1])}, {V(T[1])}, {V(T[1])}
    v_and_b32 {V(T[1])}, {S(sHI)}, {V(T[1])}
    v_mul_f32 {V(T[1])}, {V(T[1])}, {V(T[2])}
    v_cvt_pk_bf16_f32 {V(T[1])}, {V(T[1])}, {V(T[1])}
    v_and_b32 {V(T[1])}, {S(sHI)}, {V(T[1])}
    v_mov_b32 {V(gq+3)}, 0
    ''')
    for i in range(8):
        for e in range(2):
            a(f"{'v_mul_f32_dpp' if i == 0 else 'v_fmac_f32_dpp'} {V(gq+e)}, {V(T[1])}, {V(WDF+2*i+e)} row_newbcast:{i} row_mask:0xf bank_mask:0xf")
    a(f'global_store_dwordx4 {V(vFPA)}, {V(gq,4)}, {S(sWS,2)} sc1')
    stamp(10)
    a('L_h_b5:\ns_barrier')
    YR = vP
    for c in range(4): a(f'ds_read_b128 {V(YR+4*c,4)}, {V(vY)} offset:{c*YCS}')
    if o['b6']:
        a(f'''
        s_lshr_b32 {S(sT0)}, {S(sWI)}, 1
        s_and_b32 {S(sT1)}, {S(sT0)}, {S(sOWN)}
        s_andn2_b32 {S(sT2)}, {S(sOWN)}, {S(sT0)}
        s_cmp_eq_u32 {S(sT1)}, 0
        s_cbranch_scc1 L_h_st
        s_barrier
        L_h_st:
        ''')
    a('s_waitcnt lgkmcnt(0)')
    for r in range(4):
        for c in range(4):
            a(f'v_fma_f32 {V(vE+4*r+c)}, {V(YR+4*c+r)}, {V(vXN+4*r+c)}, {V(vE+4*r+c)}')
        a(f'''
        v_cvt_pk_bf16_f32 {V(vD+2*r)}, {V(vE+4*r)}, {V(vE+4*r+1)}
        v_cvt_pk_bf16_f32 {V(vD+2*r+1)}, {V(vE+4*r+2)}, {V(vE+4*r+3)}
        s_mov_b64 exec, {S(sM+2*r,2)}
        global_store_dwordx2 {V(vXG)}, {V(vD+2*r,2)}, {S(sOUT,2)} offset:{r*1024}
        s_mov_b64 exec, -1
        ''')
    if o['b6']:
        a(f'''
        s_cmp_eq_u32 {S(sT2)}, 0
        s_cbranch_scc1 L_h_done
        s_waitcnt vmcnt({o['b6cnt']})
        s_barrier
        L_h_done:
        ''')
    if o['stamp'] or o['diag'] >= 0:
        stamp(11)
        a('s_waitcnt vmcnt(0)')
        stamp(12)
    if o['diag'] >= 0:
        a('''
        s_memrealtime s[90:91]
        s_sub_u32 s88, s88, s86
        s_min_u32 s88, s88, 2000
        s_lshl_b32 s88, s88, 2
        s_waitcnt lgkmcnt(0)
        s_add_u32 s88, s88, s90
        L_diag:
        s_memrealtime s[90:91]
        s_waitcnt lgkmcnt(0)
        s_sub_u32 s90, s90, s88
        s_cmp_lt_i32 s90, 0
        s_cbranch_scc1 L_diag
        ''')
    a('L_exit:')
    if o['stamp']:
        a('v_mov_b32 v254, 0')
        for i in range(14): a(f'v_writelane_b32 v254, s{86+i}, {i}')
        a(f'global_store_dword {V(vSTA)}, v254, {S(sWS,2)}')
    a('L_end:\ns_endpgm')
    a.raw('''.section .rodata,"a"
.p2align 6
.amdhsa_kernel %s_kernel
  .amdhsa_next_free_vgpr 256
  .amdhsa_next_free_sgpr 102
  .amdhsa_accum_offset 256
  .amdhsa_group_segment_fixed_size 0
  .amdhsa_kernarg_size 136
  .amdhsa_user_sgpr_count 2
  .amdhsa_user_sgpr_kernarg_segment_ptr 1
  .amdhsa_system_sgpr_workgroup_id_x 1
.end_amdhsa_kernel''' % KN)
    return a.text()


if __name__ == '__main__':
    out = sys.argv[1]
    opt = {}
    for kv in sys.argv[2:]:
        k, val = kv.split('='); opt[k] = int(val, 0)
    open(out, 'w').write(generate(**opt))
```

```python
import sys
from asmlib import *

KN = 'recurrent_scan__ssm_conv_s4__moe_arch_mod__prompt'

DEFAULTS = dict(stamp=0, cyc=0, force_slow=0, prefetch=1, wpf=1, spinmax=1 << 16, diag=-1,
                maxout=15, group=3, minfly=6, b6=1, b6cnt=1, nb=6, wdearly=0, wpfb3=1, hnormfirst=1, ffnprio=2, tlb=0, tlbsh=16, wnt=0, xnt=0, pnt=0, wb3=1, rot=1, prerows=2)

RS = 2064
STAGE = 0
R4 = 0; R4S = 18560; CAS = 288
YX = 74240; YCS = 5120; YTS = 1280; YGS = 320
U = 109440; US = 4576
TAB = 127744; TS = 1552
WL = 133952; WL1 = 8320
SL = 150528
AM = 158720
FF = 158752
TG = 158768
PF = 158784
FP = 158848
LDS_BYTES = 159872
W_ST = 0x1000; W_FL = 0x6000; W_FP = 0x10000; W_IN = 0x100000; W_STAMP = 0x800000

sX, sARE, sAIM, sBRE, sBIM, sCRE, sCIM, sLDT = 4, 6, 8, 10, 12, 14, 16, 18
sDSK, sWR, sWG, sWU, sWD, sOUT, sDBG, sWS = 20, 24, 26, 28, 30, 32, 34, 36
sW, sK, sJ, sCGL, sH, sCH0, sT, sXCC, sTAG, sTAGX = 38, 39, 40, 41, 42, 43, 44, 45, 46, 47
sPB, sDS = 48, 50
sONES, sF8, sPROD, sIDX, sKEY, sCNT = 52, 53, 54, 55, 56, 57
sT0, sT1, sT2, sT3 = 58, 59, 60, 61
sOWN, sINB = 62, 63
sM = 64
sH8 = 72
sHI = 80
sSTP = 82
sWI = 84

vL = 1
vGA = 2
vSEL = 10
vR4W, vUW, vST0, vST1, vFL, vIN, vXG, vXC = 16, 17, 18, 19, 20, 21, 22, 23
vKA, vKB, vPD, vY = 24, 25, 26, 27
vA0, vA1, vA2, vA3, vA4, vA5, vA6, vA7 = 28, 29, 30, 31, 32, 33, 34, 35
vEP, vPFD, vROW, vSTA = 36, 37, 38, 39
vD = 40
vG = 48
vXF = 56
vXN = 72
vE = 88
vP = 104
vB0, vB1, vB2, vB3, vB4, vB5 = 224, 225, 226, 227, 228, 229
vWD = 232
vT = 240
vCA, vCA2, vCB, vFLO = vA0, vA1, vA2, vA3
vTW1, vTW2, vTW3, vTW4, vWT, vWDA, vFPA, vXS = vA0, vA1, vA2, vA3, vA4, vA5, vA6, vA7
vWS0, vWS1, vFPW, vFPR, vFFW, vSTP = vB0, vB1, vB2, vB3, vB4, vB5
vPFA, vPFW = 230, 231
vTLB = 223
vWDR = 222


def tiles(h): return [2 * i + ((i ^ h) & 1) for i in range(4)]


def generate(**opt):
    o = dict(DEFAULTS); o.update(opt)
    a = Asm()
    V = v; S = s

    def stamp(i):
        if o['diag'] == i:
            a('s_memrealtime s[88:89]\ns_waitcnt lgkmcnt(0)')
        if not o['stamp']: return
        a(f"{'s_memtime' if o['cyc'] else 's_memrealtime'} {S(sSTP,2)}\ns_waitcnt lgkmcnt(0)\ns_mov_b32 s{86+i}, {S(sSTP)}")

    def cmul(d, x, y):
        a(f'v_pk_mul_f32 {V(d,2)}, {V(x,2)}, {V(y,2)} op_sel:[1,1] op_sel_hi:[1,0]')
        a(f'v_pk_fma_f32 {V(d,2)}, {V(x,2)}, {V(y,2)}, {V(d,2)} op_sel:[0,0,0] op_sel_hi:[0,1,1] neg_lo:[0,0,1]')

    def lane63(): a('s_mov_b32 exec_lo, 0\ns_mov_b32 exec_hi, 0x80000000')
    def alllanes(): a('s_mov_b64 exec, -1')
    def spin_init(): a(f"s_mov_b32 {S(sCNT)}, {o['spinmax']}")
    def spin_next(lbl): a(f's_sub_u32 {S(sCNT)}, {S(sCNT)}, 1\ns_cmp_lg_u32 {S(sCNT)}, 0\ns_cbranch_scc1 {lbl}')

    def ssum(dst, *terms):
        first = True; const = 0
        for t in terms:
            if isinstance(t, int): const += t; continue
            r, sh = t
            if first:
                a(f's_lshl_b32 {S(dst)}, {S(r)}, {sh}' if sh else f's_mov_b32 {S(dst)}, {S(r)}'); first = False
            elif sh:
                a(f's_lshl_b32 {S(sT3)}, {S(r)}, {sh}\ns_add_u32 {S(dst)}, {S(dst)}, {S(sT3)}')
            else:
                a(f's_add_u32 {S(dst)}, {S(dst)}, {S(r)}')
        if const: a(f's_add_u32 {S(dst)}, {S(dst)}, {const}')

    def smul(dst, r, k, const=0):
        a(f's_mul_i32 {S(dst)}, {S(r)}, {k}')
        if const: a(f's_add_u32 {S(dst)}, {S(dst)}, {const}')

    T = [vT + i for i in range(16)]

    a.raw('; @launch grid=(256,1,1) block=(512,1,1) lds=%d' % LDS_BYTES)
    a.raw('.amdgcn_target "amdgcn-amd-amdhsa--gfx950"\n.text\n.globl %s_kernel\n.p2align 8\n.type %s_kernel,@function\n%s_kernel:' % (KN, KN, KN))
    a('''
    s_cmp_ge_u32 s2, 256
    s_cbranch_scc1 L_end
    s_load_dwordx16 s[4:19], s[0:1], 0
    s_load_dwordx16 s[20:35], s[0:1], 64
    s_load_dwordx2 s[36:37], s[0:1], 128
    ''')
    if o['diag'] >= 0: a('s_memrealtime s[86:87]')
    if o['stamp']: a(f"{'s_memtime' if o['cyc'] else 's_memrealtime'} s[100:101]")
    a(f'''
    v_lshrrev_b32 {V(T[0])}, 6, v0
    v_and_b32 {V(vL)}, 63, v0
    v_readfirstlane_b32 {S(sW)}, {V(T[0])}
    s_and_b32 {S(sK)}, s2, 7
    s_lshr_b32 {S(sJ)}, s2, 3
    s_and_b32 {S(sCGL)}, {S(sJ)}, 15
    s_lshr_b32 {S(sH)}, {S(sJ)}, 4
    s_and_b32 {S(sWI)}, {S(sW)}, 3
    ''')
    ssum(sCH0, (sK, 6), (sCGL, 2))
    for i in range(7): a(f'v_mov_b32 {V(vP+i)}, 0')
    a(f's_add_u32 {S(sT1)}, {S(sCH0)}, {S(sWI)}')
    a(f's_lshr_b32 {S(sT2)}, {S(sW)}, 2')
    ssum(sT0, (sT1, 8), (sT2, 7))
    a(f'v_lshl_add_u32 {V(T[1])}, {V(vL)}, 1, {S(sT0)}')
    a(f's_lshl_b32 {S(sT1)}, {S(sT1)}, 1')
    a(f'v_mov_b32 {V(T[2])}, {S(sT1)}')
    if o['stamp']:
        ssum(sT1, (2, 11), (sW, 8), W_STAMP)
        a(f'v_lshl_add_u32 {V(vSTA)}, {V(vL)}, 2, {S(sT1)}')
        for i in range(14): a(f's_mov_b32 s{86+i}, 0')

    def param_loads():
        for i, p in enumerate((sARE, sAIM, sBRE, sBIM, sCRE, sCIM)):
            a(f"global_load_short_d16_hi {V(vP+i)}, {V(T[1])}, {S(p,2)}{' nt' if o['pnt'] else ''}")
        a(f'global_load_short_d16_hi {V(vP+6)}, {V(T[2])}, {S(sLDT,2)}')

    a(f's_cmp_ge_u32 {S(sW)}, 4\ns_cbranch_scc1 L_h_load')
    ssum(sT0, (sJ, 16), (sW, 14), (sK, 7))
    a(f'''
    v_lshrrev_b32 {V(T[3])}, 3, {V(vL)}
    v_and_b32 {V(T[4])}, 7, {V(vL)}
    v_lshlrev_b32 {V(T[3])}, 10, {V(T[3])}
    v_lshl_add_u32 {V(T[3])}, {V(T[4])}, 4, {V(T[3])}
    v_add_u32 {V(T[3])}, {S(sT0)}, {V(T[3])}
    v_add_u32 {V(T[4])}, 8192, {V(T[3])}
    s_waitcnt lgkmcnt(0)
    ''')
    if o['stamp']: a('s_mov_b32 s99, s100')
    if o['diag'] >= 0: a('s_mov_b32 s88, s86')
    stamp(0)
    XNT = ' nt' if o['xnt'] else ''
    a(f'global_load_dwordx4 {V(vD,4)}, {V(T[3])}, {S(sX,2)}{XNT}')
    a(f'global_load_dwordx4 {V(vD+4,4)}, {V(T[4])}, {S(sX,2)}{XNT}')
    param_loads()
    a('s_branch L_init')
    a('L_h_load:')
    ssum(sT0, (2, 13), (sWI, 11))
    a(f'''
    v_and_b32 {V(T[3])}, 31, {V(vL)}
    v_lshlrev_b32 {V(T[3])}, 4, {V(T[3])}
    v_lshrrev_b32 {V(T[4])}, 5, {V(vL)}
    v_lshl_add_u32 {V(T[4])}, {V(T[4])}, 10, {V(T[3])}
    v_add_u32 {V(T[4])}, {S(sT0)}, {V(T[4])}
    v_mov_b32 {V(T[5])}, 0
    s_setprio 2
    s_waitcnt lgkmcnt(0)
    ''')
    if o['stamp']: a('s_mov_b32 s99, s100')
    if o['diag'] >= 0: a('s_mov_b32 s88, s86')
    stamp(0)
    a(f'''
    global_load_dwordx4 {V(vG,4)}, {V(T[3])}, {S(sWR,2)}
    global_load_dwordx4 {V(vG+4,4)}, {V(T[3])}, {S(sWR,2)} offset:512
    global_load_dwordx4 {V(vD,4)}, {V(T[4])}, {S(sX,2)}{XNT}
    global_load_dwordx4 {V(vD+4,4)}, {V(T[4])}, {S(sX,2)} offset:512{XNT}
    global_load_dword {V(vEP)}, {V(T[5])}, {S(sWS,2)} sc1
    ''')
    param_loads()

    a('L_init:')
    if o['tlb']:
        a.comment('touch the pages that are first needed late, so their translations are fetched during the start-up wait')
        sh = o['tlbsh']
        a(f'v_lshlrev_b32 {V(T[11])}, {sh}, {V(vL)}')
        for w, base, size in ((0, sWG, 1409024), (1, sWU, 1409024), (2, sWD, 1409024), (3, sOUT, 2097152), (4, sWS, 0x300000)):
            n = min(64, (size + (1 << sh) - 1) >> sh)
            a(f's_cmp_lg_u32 {S(sW)}, {w}\ns_cbranch_scc1 L_tlb{w}')
            a(f's_bfm_b64 exec, {n}, 0' if n < 64 else 's_nop 0')
            a(f'global_load_dword {V(vTLB)}, {V(T[11])}, {S(base,2)}')
            a(f's_mov_b64 exec, -1\ns_branch L_tlbx\nL_tlb{w}:')
        a(f's_mov_b64 exec, 1\nglobal_load_dword {V(vTLB)}, {V(T[11])}, {S(sX,2)}\ns_mov_b64 exec, -1')
        a('L_tlbx:')
    a(f'''
    v_mov_b32 {V(T[6])}, 0
    v_mov_b32 {V(T[7])}, 0x3f80
    s_lshl_b32 {S(sT0)}, {S(sW)}, 8
    s_mov_b32 m0, {S(sT0)}
    v_and_b32 {V(T[8])}, 127, v0
    ds_write_addtid_b32 {V(T[7])} offset:{STAGE}
    v_min_u32 {V(T[8])}, 119, {V(T[8])}
    v_lshrrev_b32 {V(T[9])}, 7, v0
    v_mul_u32_u24 {V(T[10])}, {US}, {V(T[9])}
    v_lshl_add_u32 {V(T[10])}, {V(T[8])}, 2, {V(T[10])}
    v_add_u32 {V(T[10])}, {U}, {V(T[10])}
    ds_write_b32 {V(T[10])}, {V(T[6])}
    s_cmp_lg_u32 {S(sW)}, 0
    s_cbranch_scc1 L_init2
    v_bfe_u32 {V(T[9])}, {V(vL)}, 1, 2
    v_mul_u32_u24 {V(T[9])}, {TS}, {V(T[9])}
    v_and_b32 {V(T[8])}, 1, {V(vL)}
    v_lshl_add_u32 {V(T[9])}, {V(T[8])}, 2, {V(T[9])}
    v_add_u32 {V(T[9])}, {TAB}, {V(T[9])}
    v_and_b32 {V(T[8])}, 15, {V(vL)}
    v_lshlrev_b32 {V(T[8])}, 2, {V(T[8])}
    v_add_u32 {V(T[8])}, {FF}, {V(T[8])}
    s_mov_b64 exec, 0xffff
    ds_write_b32 {V(T[9])}, {V(T[6])}
    ds_write_b32 {V(T[8])}, {V(T[6])}
    s_mov_b64 exec, -1
    L_init2:
    s_waitcnt lgkmcnt(0)
    s_barrier
    s_lshl_b32 {S(sT0)}, {S(sCH0)}, 1
    s_load_dwordx2 {S(sDS,2)}, {S(sDSK,2)}, {S(sT0)}
    s_getreg_b32 {S(sXCC)}, hwreg(HW_REG_XCC_ID, 0, 4)
    s_mov_b32 {S(sONES)}, 0x3f803f80
    s_mov_b32 {S(sHI)}, 0xffff0000
    s_lshr_b32 {S(sT0)}, {S(sW)}, 2
    s_xor_b32 {S(sT0)}, {S(sT0)}, {S(sWI)}
    s_xor_b32 {S(sT0)}, {S(sT0)}, {S(sH)}
    s_xor_b32 {S(sT0)}, {S(sT0)}, 1
    s_and_b32 {S(sT0)}, {S(sT0)}, 1
    s_lshl_b32 {S(sT)}, {S(sWI)}, 1
    s_add_u32 {S(sT)}, {S(sT)}, {S(sT0)}
    s_lshr_b32 {S(sT0)}, {S(sJ)}, 3
    s_and_b32 {S(sT1)}, {S(sJ)}, 7
    ''')
    ssum(sF8, (sT0, 6), (sK, 3), (sT1, 0))
    a(f'''
    s_cmp_lt_u32 {S(sF8)}, 172
    s_cselect_b32 {S(sPROD)}, 1, 0
    s_cselect_b32 {S(sF8)}, {S(sF8)}, {S(sJ)}
    ''')

    pos = [vXF + i for i in range(7)]
    a(f'v_lshlrev_b32 {V(T[0])}, 2, v0')
    a(f's_cmp_eq_u32 {S(sW)}, 0\ns_cbranch_scc1 L_pos0')
    for i in range(7): a(f'v_add_u32 {V(pos[i])}, {i-3}, {V(T[0])}')
    for i in range(7): a(f'v_cvt_f32_u32 {V(pos[i])}, {V(pos[i])}')
    for i in range(0, 7, 2):
        j = min(i + 1, 6)
        a(f'v_cvt_pk_bf16_f32 {V(T[8+i//2])}, {V(pos[i])}, {V(pos[j])}')
    a(f'v_mov_b32 {V(T[1])}, {4 - 0x4280}')
    for i in range(7):
        a(f'v_bfe_u32 {V(pos[i])}, {V(T[8+i//2])}, {16*(i&1)}, 16')
        a(f'v_add_u32 {V(pos[i])}, {V(T[1])}, {V(pos[i])}')
    a('s_branch L_pos_done')
    a('L_pos0:')
    for i in range(7): a(f'v_add_u32 {V(pos[i])}, {i+1}, {V(T[0])}')
    a('L_pos_done:')
    b1, b2 = T[1], T[2]
    a(f'''
    v_and_b32 {V(b1)}, -2, {V(pos[2])}
    v_add_u32 {V(b1)}, -2, {V(b1)}
    v_and_b32 {V(b2)}, -2, {V(pos[3])}
    v_add_u32 {V(T[3])}, {V(b1)}, {V(b1)}
    v_add_u32 {V(T[4])}, {V(b2)}, {V(b2)}
    ''')
    for c in range(4):
        a(f'v_add_u32 {V(vGA+2*c)}, {TAB + c*TS}, {V(T[3])}')
        a(f'v_add_u32 {V(vGA+2*c+1)}, {TAB + c*TS}, {V(T[4])}')
    for i in range(3): a(f'v_sub_u32 {V(pos[i])}, {V(pos[i])}, {V(b1)}')
    for i in range(3, 7): a(f'v_sub_u32 {V(pos[i])}, {V(pos[i])}, {V(b2)}')
    a(f's_movk_i32 {S(sT0)}, 0x0202\nv_mov_b32 {V(T[3])}, 0x0100')
    for i in range(7): a(f'v_mad_u32_u24 {V(pos[i])}, {V(pos[i])}, {S(sT0)}, {V(T[3])}')
    for dst, lo, hi in ((0, 1, 0), (1, 2, 1), (2, 3, 2), (3, 4, 3), (4, 5, 4), (5, 6, 5)):
        a(f'v_lshl_or_b32 {V(vSEL+dst)}, {V(pos[hi])}, 16, {V(pos[lo])}')
    a(f'v_add_u32 {V(vSEL+2)}, 0x{(2*0x0202 - 2*0x02020000) & 0xffffffff:x}, {V(vSEL+2)}')
    a(f'''
    v_and_b32 {V(T[0])}, -4, v0
    v_lshlrev_b32 {V(T[0])}, 2, {V(T[0])}
    v_lshl_add_u32 {V(vR4W)}, v0, 5, {V(T[0])}
    v_add_u32 {V(vR4W)}, {R4 + 144}, {V(vR4W)}
    ''')
    a(f's_lshl_b32 {S(sT0)}, {S(sT)}, 6')
    a(f'v_add_u32 {V(T[0])}, {S(sT0)}, {V(vL)}')
    ssum(sINB, (sK, 18), (sCGL, 14), W_IN)
    ssum(sT1, (sK, 9), W_FL)
    ssum(sT2, (sK, 5), W_ST + 12)
    a(f'''
    v_lshlrev_b32 {V(vROW)}, 2, {V(T[0])}
    v_lshlrev_b32 {V(vUW)}, 3, {V(T[0])}
    v_add_u32 {V(vUW)}, {U + 480}, {V(vUW)}
    v_lshlrev_b32 {V(vST0)}, 4, {V(T[0])}
    v_add_u32 {V(vST1)}, {W_ST + 8192}, {V(vST0)}
    v_add_u32 {V(vST0)}, {W_ST}, {V(vST0)}
    s_lshl_b32 {S(sT0)}, {S(sCH0)}, 1
    v_lshl_add_u32 {V(vXG)}, {V(T[0])}, 12, {S(sT0)}
    v_lshrrev_b32 {V(T[1])}, 2, {V(T[0])}
    v_lshl_add_u32 {V(vFL)}, {V(T[1])}, 2, {S(sT1)}
    v_and_b32 {V(T[2])}, 3, {V(vL)}
    v_lshl_add_u32 {V(T[2])}, {V(T[2])}, 4, {S(sINB)}
    v_lshl_add_u32 {V(vIN)}, {V(T[1])}, 7, {V(T[2])}
    v_lshrrev_b32 {V(T[1])}, 4, {V(T[0])}
    v_lshl_add_u32 {V(vXC)}, {V(T[1])}, 8, {S(sT2)}
    ''')
    smul(sT1, sWI, US, U + 480)
    a(f'''
    v_and_b32 {V(T[0])}, 31, {V(vL)}
    v_lshrrev_b32 {V(T[1])}, 5, {V(vL)}
    s_lshl_b32 {S(sT0)}, {S(sW)}, 8
    v_lshl_add_u32 {V(T[2])}, {V(T[1])}, 4, {S(sT0)}
    s_movk_i32 {S(sT0)}, {RS}
    v_mad_u32_u24 {V(vKB)}, {V(T[0])}, {S(sT0)}, {V(T[2])}
    v_add_u32 {V(T[3])}, -16, {V(T[0])}
    v_cmp_lt_u32 vcc, 20, {V(T[0])}
    v_lshl_add_u32 {V(vPD)}, {V(vL)}, 4, {S(sT1)}
    v_cndmask_b32 {V(T[3])}, {V(T[0])}, {V(T[3])}, vcc
    v_mad_u32_u24 {V(vKA)}, {V(T[3])}, {S(sT0)}, {V(T[2])}
    v_add_u32 {V(vKA)}, {STAGE + 32*RS}, {V(vKA)}
    v_and_b32 {V(T[5])}, 15, {V(vL)}
    v_lshrrev_b32 {V(T[6])}, 4, {V(vL)}
    s_cmp_ge_u32 {S(sW)}, 4
    s_cbranch_scc1 L_h_setup
    ''')

    smul(sT0, sW, R4S, R4)
    a(f'v_lshlrev_b32 {V(T[3])}, 3, {V(T[6])}\nv_sub_u32 {V(T[3])}, {V(T[5])}, {V(T[3])}')
    for reg, k in ((vCA, 32), (vCA2, 28)):
        a(f'''
        v_add_u32 {V(T[4])}, {k}, {V(T[3])}
        v_lshrrev_b32 {V(T[7])}, 4, {V(T[4])}
        v_lshl_add_u32 {V(reg)}, {V(T[4])}, 3, {S(sT0)}
        v_lshl_add_u32 {V(reg)}, {V(T[7])}, 4, {V(reg)}
        ''')
    smul(sT0, sW, US, U)
    a(f'''
    v_lshl_add_u32 {V(T[3])}, {V(T[6])}, 4, {S(sT0)}
    v_lshl_add_u32 {V(vCB)}, {V(T[5])}, 5, {V(T[3])}
    ''')
    smul(sT0, sW, YCS, YX)
    a(f'''
    v_mul_u32_u24 {V(T[3])}, {YGS}, {V(T[6])}
    v_lshl_add_u32 {V(T[3])}, {V(T[5])}, 4, {V(T[3])}
    v_add_u32 {V(vY)}, {S(sT0)}, {V(T[3])}
    ''')
    slw, slw1, slr, slr1, ina, ina1, tga, pfa_c = [vXN + i for i in range(8)]
    ssum(sT0, (sW, 11), SL)
    a(f'''
    v_lshrrev_b32 {V(T[0])}, 3, {V(vL)}
    v_and_b32 {V(T[1])}, 7, {V(vL)}
    v_xor_b32 {V(T[2])}, {V(T[6])}, {V(T[1])}
    v_lshl_add_u32 {V(T[2])}, {V(T[2])}, 4, {S(sT0)}
    v_lshl_add_u32 {V(slw)}, {V(T[0])}, 7, {V(T[2])}
    v_xor_b32 {V(slw1)}, 64, {V(slw)}
    v_and_b32 {V(T[2])}, 3, {V(vL)}
    v_bfe_u32 {V(T[3])}, {V(vL)}, 2, 1
    v_lshl_add_u32 {V(T[2])}, {V(T[2])}, 1, {V(T[3])}
    v_xor_b32 {V(T[3])}, {V(T[6])}, {V(T[2])}
    v_lshl_add_u32 {V(T[3])}, {V(T[3])}, 4, {S(sT0)}
    v_lshl_add_u32 {V(T[3])}, {V(T[2])}, 8, {V(T[3])}
    v_and_b32 {V(T[4])}, 1, {V(T[0])}
    v_lshl_add_u32 {V(slr)}, {V(T[4])}, 3, {V(T[3])}
    v_xor_b32 {V(slr1)}, 64, {V(slr)}
    ''')
    ssum(sT0, (sK, 18), (sJ, 9), (sW, 7), W_IN)
    a(f'''
    v_lshl_add_u32 {V(T[1])}, {V(T[1])}, 4, {S(sT0)}
    v_lshl_add_u32 {V(ina)}, {V(T[0])}, 14, {V(T[1])}
    v_add_u32 {V(ina1)}, 0x20000, {V(ina)}
    ''')
    ssum(sT0, (sK, 9), (sJ, 4), (sW, 2), W_FL)
    a(f'v_mov_b32 {V(vFLO)}, {S(sT0)}')
    ssum(sT0, (sW, 2), TG)
    a(f'v_mov_b32 {V(tga)}, {S(sT0)}')
    for r in (vA4, vA5, vA6, vA7, vB0, vB1, vB5, vPFA): a(f'v_mov_b32 {V(r)}, 4096')
    for r in (sPB, sM, sM+2, sM+4, sM+6): a(f's_mov_b64 {S(r,2)}, {S(sWD,2)}')
    a(f"s_waitcnt vmcnt({7 + o['tlb']})")
    stamp(1)
    a(f'''
    ds_write_b128 {V(slw)}, {V(vD,4)}
    ds_write_b128 {V(slw1)}, {V(vD+4,4)} offset:1024
    ds_read_b64 {V(vG,2)}, {V(slr)}
    ds_read_b64 {V(vG+2,2)}, {V(slr)} offset:128
    ds_read_b64 {V(vG+4,2)}, {V(slr1)}
    ds_read_b64 {V(vG+6,2)}, {V(slr1)} offset:128
    s_waitcnt lgkmcnt(0)
    global_store_dwordx4 {V(ina)}, {V(vG,4)}, {S(sWS,2)}
    global_store_dwordx4 {V(ina1)}, {V(vG+4,4)}, {S(sWS,2)}
    s_waitcnt vmcnt({2 + o['tlb']})
    s_branch L_kgen
    ''')

    a('L_h_setup:')
    smul(sT0, sWI, YTS, YX)
    a(f'''
    v_and_b32 {V(T[2])}, 3, {V(vL)}
    v_lshrrev_b32 {V(T[3])}, 2, {V(vL)}
    v_mul_u32_u24 {V(T[2])}, {YGS}, {V(T[2])}
    v_lshl_add_u32 {V(T[2])}, {V(T[3])}, 4, {V(T[2])}
    v_add_u32 {V(vY)}, {S(sT0)}, {V(T[2])}
    ''')
    smul(sT0, sWI, TS, TAB + 8)
    a(f'''
    v_lshl_add_u32 {V(T[2])}, {V(T[1])}, 3, {S(sT0)}
    v_lshl_add_u32 {V(vTW1)}, {V(T[0])}, 4, {V(T[2])}
    v_sub_u32 {V(T[2])}, 3, {V(T[1])}
    v_lshlrev_b32 {V(T[2])}, {V(T[2])}, {V(T[0])}
    v_lshl_add_u32 {V(T[3])}, {V(T[1])}, 8, {S(sT0)}
    v_add_u32 {V(T[3])}, 512, {V(T[3])}
    v_add_u32 {V(vTW2)}, {V(T[2])}, {V(T[3])}
    v_mul_u32_u24 {V(T[2])}, 124, {V(T[1])}
    v_add3_u32 {V(vTW3)}, {V(vTW2)}, {V(T[2])}, 4
    v_lshl_add_u32 {V(vTW4)}, {V(T[0])}, 1, {V(T[3])}
    v_add_u32 {V(vTW4)}, 512, {V(vTW4)}
    ''')
    ssum(sT0, (sWI, 11), WL)
    a(f'''
    v_lshrrev_b32 {V(T[2])}, 2, {V(T[5])}
    v_lshl_add_u32 {V(T[2])}, {V(T[6])}, 2, {V(T[2])}
    v_bfe_u32 {V(T[3])}, {V(vL)}, 1, 1
    v_mul_u32_u24 {V(T[3])}, {WL1}, {V(T[3])}
    v_lshl_add_u32 {V(T[2])}, {V(T[2])}, 4, {V(T[3])}
    v_and_b32 {V(T[3])}, 1, {V(vL)}
    v_lshl_add_u32 {V(T[2])}, {V(T[3])}, 3, {V(T[2])}
    v_add_u32 {V(vWT)}, {S(sT0)}, {V(T[2])}
    s_lshl_b32 {S(sT0)}, {S(sWI)}, 7
    v_add_u32 {V(T[2])}, {S(sT0)}, {V(vL)}
    s_lshl_b32 {S(sT1)}, {S(sF8)}, 4
    v_mul_u32_u24 {V(T[2])}, 2752, {V(T[2])}
    v_add_u32 {V(vWS0)}, {S(sT1)}, {V(T[2])}
    v_and_b32 {V(T[2])}, 255, v0
    ''')
    ssum(sT0, (sF8, 13), (sWI, 8))
    ssum(sT1, (sF8, 5), W_FP)
    ssum(sT2, (sWI, 11), SL)
    a(f'''
    v_lshl_add_u32 {V(vWDA)}, {V(T[5])}, 4, {S(sT0)}
    v_lshl_add_u32 {V(vWDA)}, {V(T[6])}, 10, {V(vWDA)}
    v_add_u32 {V(vWS1)}, 4096, {V(vWDA)}
    v_lshl_add_u32 {V(vWDR)}, {V(vL)}, 2, {S(sT2)}
    v_lshrrev_b32 {V(T[4])}, 1, {V(T[2])}
    v_mul_u32_u24 {V(T[4])}, 6144, {V(T[4])}
    v_lshl_add_u32 {V(T[4])}, {V(T[3])}, 4, {V(T[4])}
    v_add_u32 {V(vFPA)}, {S(sT1)}, {V(T[4])}
    v_lshlrev_b32 {V(T[2])}, 3, {V(T[6])}
    v_lshl_add_u32 {V(vXS)}, {V(T[5])}, 6, {V(T[2])}
    ''')
    ssum(sT0, (sWI, 8), FP)
    ssum(sT1, (sWI, 2), FF)
    a(f'''
    v_lshl_add_u32 {V(vFPW)}, {V(vL)}, 2, {S(sT0)}
    v_lshlrev_b32 {V(vFPR)}, 2, {V(T[5])}
    v_add_u32 {V(vFPR)}, {FP}, {V(vFPR)}
    v_mov_b32 {V(vFFW)}, {S(sT1)}
    s_lshr_b32 {S(sT1)}, {S(sWI)}, 1
    s_and_b32 {S(sT2)}, {S(sWI)}, 1
    ''')
    ssum(sT0, (2, 5), (sT1, 4), (sT2, 13), W_ST)
    a(f'v_mov_b32 {V(vSTP)}, {S(sT0)}')
    rk = vXN
    ssum(sT0, (2, 3), (sWI, 1))
    a(f'''
    s_sub_u32 {S(sT0)}, 0xffff, {S(sT0)}
    v_sub_u32 {V(rk)}, {S(sT0)}, {V(T[1])}
    ''')
    ssum(sT0, (sWI, 11), WL)
    for t in range(4):
        a(f'''
        s_add_u32 {S(sT1)}, {S(sJ) if o['rot'] else 0}, {t}
        s_bitcmp1_b32 {S(sT1)}, 1
        s_cselect_b64 {S(sM+2*t,2)}, {S(sWU,2)}, {S(sWG,2)}
        s_cselect_b32 {S(sT2)}, {WL1}, 0
        s_add_u32 {S(sT2)}, {S(sT2)}, {S(sT0)}
        s_bitcmp1_b32 {S(sT1)}, 0
        s_cselect_b32 {S(sT1)}, {64*2752}, 0
        s_cselect_b32 {S(sT3)}, 1024, 0
        s_add_u32 {S(sH8+t)}, {S(sT2)}, {S(sT3)}
        s_add_u32 {S(sM+2*t)}, {S(sM+2*t)}, {S(sT1)}
        s_addc_u32 {S(sM+2*t+1)}, {S(sM+2*t+1)}, 0
        ''')
    pfi = vXN + 1; pfa = vPFA
    ssum(sT0, (sH, 13), (sWI, 11), (sINB, 0))
    a(f'v_lshl_add_u32 {V(pfi)}, {V(T[5])}, 7, {S(sT0)}')
    a(f'''
    s_lshl_b32 {S(sT0)}, {S(sF8)}, 13
    v_lshl_add_u32 {V(pfa)}, {V(vL)}, 7, {S(sT0)}
    s_mov_b64 {S(sPB,2)}, {S(sWD,2)}
    s_cmp_eq_u32 {S(sWI)}, 3
    s_cbranch_scc1 L_pf_done
    s_mov_b64 {S(sPB,2)}, {S(sWG,2)}
    s_bitcmp1_b32 {S(sJ)}, 0
    s_cbranch_scc0 L_pf_gate
    s_mov_b64 {S(sPB,2)}, {S(sWU,2)}
    L_pf_gate:
    s_lshr_b32 {S(sT1)}, {S(sJ)}, 1
    s_lshl_b32 {S(sT1)}, {S(sT1)}, 5
    v_lshrrev_b32 {V(T[2])}, 1, {V(vL)}
    v_add_u32 {V(T[2])}, {S(sT1)}, {V(T[2])}
    v_mul_u32_u24 {V(T[2])}, 2752, {V(T[2])}
    v_mul_u32_u24 {V(T[3])}, 124, {V(T[3])}
    ''')
    ssum(sT0, (sWI, 10), (sK, 7))
    a(f'''
    s_min_u32 {S(sT0)}, {S(sT0)}, 2624
    v_add3_u32 {V(pfa)}, {V(T[2])}, {V(T[3])}, {S(sT0)}
    L_pf_done:
    ''')
    S1, S2, S3, S4 = vXF, vXF + 1, vXF + 2, vXF + 3

    def red32(regs):
        for m in ('row_shr:1', 'row_shr:2', 'row_shr:4', 'row_shr:8'):
            for r in regs: a(f'v_add_f32_dpp {V(r)}, {V(r)}, {V(r)} {m} row_mask:0xf bank_mask:0xf')
        for r in regs: a(f'v_add_f32_dpp {V(r)}, {V(r)}, {V(r)} row_bcast:15 row_mask:0xa bank_mask:0xf')
    for r in (S1, S2, S3, S4): a(f'v_mov_b32 {V(r)}, 0')
    e2 = o['tlb'] + (1 if o['wpf'] == 2 else 0)
    if o['wpf'] == 2: a(f'global_load_dword {V(vPFW)}, {V(vPFA)}, {S(sPB,2)} nt')
    a(f's_waitcnt vmcnt({10 + e2})')
    for i in range(8): a(f'v_dot2_f32_bf16 {V(S4)}, {V(vG+i)}, {S(sONES)}, {V(S4)}')
    red32([S4])
    a(f's_waitcnt vmcnt({8 + e2})')
    stamp(1)
    nlate = e2
    if o['prefetch']:
        a('s_mov_b64 exec, 0xffff')
        a(f'global_load_dword {V(vPFD)}, {V(pfi)}, {S(sWS,2)} nt'); nlate += 1
        alllanes()
    for i in range(8):
        a(f'v_dot2_f32_bf16 {V(S1)}, {V(vD+i)}, {S(sONES)}, {V(S1)}')
        a(f'v_dot2_f32_bf16 {V(S2)}, {V(vD+i)}, {V(vD+i)}, {V(S2)}')
        a(f'v_dot2_f32_bf16 {V(S3)}, {V(vD+i)}, {V(vG+i)}, {V(S3)}')
    red32([S1, S2, S3])
    t = T[0]; g = vE
    a(f'''
    v_mul_f32 {V(S1)}, 0x3b000000, {V(S1)}
    v_mul_f32 {V(S2)}, 0x3b000000, {V(S2)}
    s_waitcnt vmcnt({7 + nlate})
    v_fma_f32 {V(S2)}, -{V(S1)}, {V(S1)}, {V(S2)}
    v_readfirstlane_b32 {S(sTAG)}, {V(vEP)}
    v_max_f32 {V(S2)}, 0, {V(S2)}
    v_cvt_pk_bf16_f32 {V(t)}, {V(S1)}, {V(S2)}
    s_add_u32 {S(sTAG)}, {S(sTAG)}, 16
    v_and_b32 {V(t)}, {S(sHI)}, {V(t)}
    s_and_b32 {S(sTAG)}, {S(sTAG)}, -16
    v_add_f32 {V(t)}, 0x3727c5ac, {V(t)}
    s_or_b32 {S(sTAGX)}, {S(sTAG)}, {S(sXCC)}
    v_cvt_pk_bf16_f32 {V(t)}, {V(t)}, {V(t)}
    v_and_b32 {V(t)}, {S(sHI)}, {V(t)}
    v_sqrt_f32 {V(t)}, {V(t)}
    v_mov_b32 {V(g+3)}, {S(sTAGX)}
    v_cvt_pk_bf16_f32 {V(g+1)}, {V(S1)}, {V(t)}
    v_and_b32 {V(t)}, {S(sHI)}, {V(g+1)}
    v_lshlrev_b32 {V(t+1)}, 16, {V(g+1)}
    v_rcp_f32 {V(t)}, {V(t)}
    v_fma_f32 {V(S3)}, -{V(t+1)}, {V(S4)}, {V(S3)}
    v_readlane_b32 {S(sT0)}, {V(g+1)}, 31
    v_mul_f32 {V(S3)}, {V(S3)}, {V(t)}
    v_cvt_pk_bf16_f32 {V(S3)}, {V(S3)}, {V(S3)}
    v_mov_b32 {V(g)}, {S(sT0)}
    v_ashrrev_i32 {V(t)}, 31, {V(S3)}
    v_or_b32 {V(t)}, 0x80000000, {V(t)}
    v_xor_b32 {V(t)}, {V(t)}, {V(S3)}
    v_and_or_b32 {V(t)}, {V(t)}, {S(sHI)}, {V(rk)}
    s_add_u32 {S(sT1)}, {S(sTAG)}, 1
    v_readlane_b32 {S(sT0)}, {V(t)}, 31
    v_mov_b32 {V(t+2)}, {S(sT1)}
    v_max_u32 {V(g+2)}, {S(sT0)}, {V(t)}
    ''')
    lane63()
    a(f'global_store_dwordx4 {V(vSTP)}, {V(g,4)}, {S(sWS,2)} sc1')
    a(f'ds_write_b32 {V(vFFW)}, {V(t+2)} offset:{TG - FF}')
    alllanes()
    a(f"s_setprio 0\ns_waitcnt vmcnt({1 + nlate}) lgkmcnt(0)")
    stamp(2)

    a('L_kgen:')
    are, aim, bre, bim, cre, cim, dt = [vP + i for i in range(7)]
    t0 = vP + 7
    z1, z2, z4, ZZ, w1, w2, w4 = [vP + 8 + 2 * i for i in range(7)]
    hq = [vP + 24 + 2 * i for i in range(8)]
    lq = [vP + 40 + 2 * i for i in range(8)]
    cv = [vP + 56 + i for i in range(8)]
    a(f'''
    v_mov_b32 {V(t0)}, 0x3fb8aa3b
    v_mul_f32 {V(dt)}, {V(dt)}, {V(t0)}
    v_exp_f32 {V(dt)}, {V(dt)}
    v_mul_f32 {V(are)}, {V(t0)}, {V(are)}
    v_cvt_pk_bf16_f32 {V(dt)}, {V(dt)}, {V(dt)}
    v_mul_f32 {V(aim)}, 0.15915494, {V(aim)}
    v_and_b32 {V(dt)}, {S(sHI)}, {V(dt)}
    v_mul_f32 {V(are)}, {V(dt)}, {V(are)}
    v_mul_f32 {V(aim)}, {V(dt)}, {V(aim)}
    v_exp_f32 {V(cv[0])}, {V(are)}
    v_fract_f32 {V(cv[1])}, {V(aim)}
    v_mul_f32 {V(are)}, 0x43800000, {V(are)}
    v_cos_f32 {V(z1)}, {V(cv[1])}
    v_mul_f32 {V(aim)}, 0x43800000, {V(aim)}
    v_sin_f32 {V(z1+1)}, {V(cv[1])}
    v_fract_f32 {V(cv[3])}, {V(aim)}
    v_exp_f32 {V(cv[2])}, {V(are)}
    v_mul_f32 {V(z1)}, {V(cv[0])}, {V(z1)}
    v_cos_f32 {V(ZZ)}, {V(cv[3])}
    v_mul_f32 {V(z1+1)}, {V(cv[0])}, {V(z1+1)}
    v_sin_f32 {V(ZZ+1)}, {V(cv[3])}
    v_mul_f32 {V(bre)}, {V(dt)}, {V(bre)}
    v_mul_f32 {V(bim)}, {V(dt)}, {V(bim)}
    ''')
    cmul(z2, z1, z1)
    a(f'v_mul_f32 {V(ZZ)}, {V(cv[2])}, {V(ZZ)}\nv_mul_f32 {V(ZZ+1)}, {V(cv[2])}, {V(ZZ+1)}')
    cmul(z4, z2, z2)
    cmul(hq[0], cre, bre)
    ci = [0]; m0_hi = [False]

    def put(row, reg, neg):
        c = cv[ci[0] % 8]; ci[0] += 1
        a(f"v_cvt_pk_bf16_f32 {V(c)}, {V(reg)}, {'-' if neg else ''}{V(reg+1)}")
        off = row * RS - (30 * RS if m0_hi[0] else 0)
        assert 0 <= off < 65536, (row, off)
        a(f'ds_write_addtid_b32 {V(c)} offset:{STAGE + off}')
    cmul(w1, z4, z4)
    cmul(hq[1], hq[0], z1)
    cmul(w2, w1, w1)
    put(1, w1, False)
    cmul(hq[2], hq[0], z2)
    cmul(lq[3], w2, w1)
    put(2, w2, False)
    cmul(w4, w2, w2)
    put(3, lq[3], False)
    cur = {1: w1, 2: w2, 3: lq[3], 4: w4}
    put(4, w4, False)

    def lo_step(j):
        d = lq[j % 8]
        cmul(d, cur[j - 4], w4); cur[j] = d
        put(j, d, False)
    for j in range(5, 12): lo_step(j)
    a(f's_cmp_ge_u32 {S(sW)}, 4\ns_cbranch_scc1 L_noflag')
    spin_init()
    a(f'''
    L_tagspin:
    ds_read_b32 {V(T[0])}, {V(tga)}
    s_waitcnt lgkmcnt(0)
    v_readfirstlane_b32 {S(sTAG)}, {V(T[0])}
    s_cmp_lg_u32 {S(sTAG)}, 0
    s_cbranch_scc1 L_tagok
    ''')
    spin_next('L_tagspin')
    a(f'''
    L_tagok:
    s_and_b32 {S(sTAG)}, {S(sTAG)}, -16
    s_or_b32 {S(sTAGX)}, {S(sTAG)}, {S(sXCC)}
    v_mov_b32 {V(T[0])}, {S(sTAGX)}
    s_mov_b64 exec, 1
    s_waitcnt vmcnt(0)
    global_store_dword {V(vFLO)}, {V(T[0])}, {S(sWS,2)}
    s_mov_b64 exec, -1
    ''')
    stamp(2)
    a('L_noflag:')
    for j in range(12, 30): lo_step(j)
    ssum(sT0, (sW, 8), 30 * RS)
    a(f's_mov_b32 m0, {S(sT0)}')
    m0_hi[0] = True
    for j in range(30, 32): lo_step(j)
    put(32, hq[0], True); put(33, hq[1], True); put(34, hq[2], True)
    cmul(hq[3], hq[1], z2); cmul(hq[4], hq[0], z4)
    put(35, hq[3], True); put(36, hq[4], True)
    a(f'global_load_dword {V(vPFD)}, {V(vFL)}, {S(sWS,2)} sc1')
    cmul(hq[5], hq[1], z4); cmul(hq[6], hq[2], z4); cmul(hq[7], hq[3], z4)
    put(37, hq[5], True); put(38, hq[6], True); put(39, hq[7], True)
    A0, A2, A4, A6, B0, B4, C0, C4 = lq
    cmul(A0, hq[0], ZZ); cmul(A2, hq[2], ZZ); cmul(A4, hq[4], ZZ); cmul(A6, hq[6], ZZ)
    put(40, A0, True)
    cmul(B0, A0, ZZ); put(41, A2, True); cmul(B4, A4, ZZ); put(42, A4, True)
    cmul(C0, B0, ZZ); put(43, A6, True); cmul(C4, B4, ZZ); put(44, B0, True)
    cmul(hq[1], C0, ZZ); put(45, B4, True); put(46, C0, True)
    cmul(hq[2], hq[1], ZZ); put(47, C4, True); put(48, hq[1], True)
    cmul(hq[3], hq[2], ZZ); put(49, hq[2], True)
    cmul(hq[4], hq[3], ZZ); put(50, hq[3], True)
    cmul(hq[5], hq[4], ZZ); put(51, hq[4], True); put(52, hq[5], True)
    stamp(3)

    KD = vP; KF = vP + 16; NB = o['nb']

    def kread(sidx):
        r = KF + 8 * (sidx % NB)
        a(f'ds_read_b128 {V(r,4)}, {V(vKA)} offset:{32*sidx}')
        a(f'ds_read_b128 {V(r+4,4)}, {V(vKB)} offset:{32*sidx}')

    def kmfma(cinit):
        for sidx in range(8):
            outstanding = min(8, sidx + NB) - sidx - 1
            a(f's_waitcnt lgkmcnt({2*outstanding})')
            r = KF + 8 * (sidx % NB)
            a(f"v_mfma_f32_32x32x16_bf16 {V(KD,16)}, {V(r,4)}, {V(r+4,4)}, {'0' if (sidx == 0 and not cinit) else V(KD,16)}")
            if sidx + NB < 8: kread(sidx + NB)

    def fetch_tile(tag):
        a(f's_waitcnt vmcnt(0)\nv_cmp_ne_u32 vcc, {S(sTAGX)}, {V(vPFD)}')
        if o['force_slow']: a(f's_branch L_gather{tag}')
        a(f's_cbranch_vccz L_fast{tag}')
        spin_init()
        a(f'''
        L_flagspin{tag}:
        global_load_dword {V(vPFD)}, {V(vFL)}, {S(sWS,2)} sc1
        global_load_dword {V(T[0])}, {V(vXC)}, {S(sWS,2)} sc1
        s_waitcnt vmcnt(0)
        v_cmp_ne_u32 vcc, {S(sTAGX)}, {V(vPFD)}
        s_cbranch_vccz L_fast{tag}
        v_xor_b32 {V(T[0])}, {S(sTAGX)}, {V(T[0])}
        v_add_u32 {V(T[0])}, -1, {V(T[0])}
        v_cmp_gt_u32 vcc, 15, {V(T[0])}
        s_cbranch_vccnz L_gather{tag}
        ''')
        spin_next(f'L_flagspin{tag}')
        a(f'L_gather{tag}:')
        for r in range(4):
            a(f'global_load_dwordx2 {V(vD+2*r,2)}, {V(vXG)}, {S(sX,2)} offset:{r*1024}')
        a(f'''
        s_branch L_stats{tag}
        L_fast{tag}:
        global_load_dwordx4 {V(vD,4)}, {V(vIN)}, {S(sWS,2)} sc1
        global_load_dwordx4 {V(vD+4,4)}, {V(vIN)}, {S(sWS,2)} offset:64 sc1
        L_stats{tag}:
        global_load_dwordx4 {V(vG,4)}, {V(vST0)}, {S(sWS,2)} sc1
        global_load_dwordx4 {V(vG+4,4)}, {V(vST1)}, {S(sWS,2)} sc1
        ''')

    a(f's_cmp_ge_u32 {S(sW)}, 4\ns_cbranch_scc1 L_h_k')
    for i in range(NB): kread(i)
    kmfma(False)
    a(f'v_mov_b32 {V(T[1])}, 1')
    for i in range(3): a(f'ds_write_b128 {V(vPD)}, {V(KD+4*i,4)} offset:{1024*i}')
    a(f's_mov_b64 exec, 1\nds_write_b32 {V(tga)}, {V(T[1])} offset:{PF - TG}\ns_mov_b64 exec, -1')
    stamp(4)
    fetch_tile('c')
    a('s_branch L_b3')
    a('L_h_k:')
    spin_init()
    a(f'''
    L_pspin:
    ds_read_b32 {V(T[1])}, {V(vFFW)} offset:{PF - FF}
    ''')
    for i in range(3): a(f'ds_read_b128 {V(KD+4*i,4)}, {V(vPD)} offset:{1024*i}')
    for i in range(NB - 1): kread(i)
    a(f'''
    s_waitcnt lgkmcnt({2*(NB-1) + 3})
    v_readfirstlane_b32 {S(sT0)}, {V(T[1])}
    s_cmp_lg_u32 {S(sT0)}, 0
    s_cbranch_scc1 L_pok
    s_waitcnt lgkmcnt(0)
    ''')
    spin_next('L_pspin')
    a('L_pok:')
    kread(NB - 1)
    kmfma(True)
    for i in range(6): a(f'v_cvt_pk_bf16_f32 {V(T[i])}, {V(KD+2*i)}, {V(KD+2*i+1)}')
    a(f'''
    ds_write_b64 {V(vTW1)}, {V(T[0],2)}
    ds_write_b32 {V(vTW2)}, {V(T[2])}
    ds_write_b32 {V(vTW3)}, {V(T[3])}
    ds_write_b16 {V(vTW4)}, {V(T[4])}
    ds_write_b16_d16_hi {V(vTW4)}, {V(T[4])} offset:64
    ds_write_b16 {V(vTW4)}, {V(T[5])} offset:128
    ds_write_b16_d16_hi {V(vTW4)}, {V(T[5])} offset:192
    ''')
    stamp(4)
    fetch_tile('h')
    if o['wpf'] == 1: a(f'global_load_dword {V(vPFW)}, {V(vPFA)}, {S(sPB,2)} nt')
    a('L_b3:\ns_waitcnt lgkmcnt(0)')
    stamp(5)
    a('s_barrier')

    def w_dma():
        ssum(sT0, (sWI, 11), SL)
        a(f's_mov_b32 m0, {S(sT0)}')
        a(f'global_load_lds_dwordx4 {V(vWDA)}, {S(sWD,2)} nt')
        a(f's_add_u32 m0, {S(sT0)}, 1024')
        a(f'global_load_lds_dwordx4 {V(vWS1)}, {S(sWD,2)} nt')
        for t in range(4):
            a(f's_mov_b32 m0, {S(sH8+t)}')
            a(f'global_load_lds_dwordx4 {V(vWS0)}, {S(sM+2*t,2)}')

    XP = vG
    def r4_build(tag, mid=None):
        Wq = vP; Q = vP + 16
        for c in range(4):
            a(f'ds_read2_b32 {V(Wq+4*c,2)}, {V(vGA+2*c)} offset0:0 offset1:1')
            a(f'ds_read2_b32 {V(Wq+4*c+2,2)}, {V(vGA+2*c+1)} offset0:0 offset1:1')
        if tag == 'c': a(f'''
        s_cmp_lg_u32 {S(sW)}, 3
        s_cbranch_scc1 L_nopad{tag}
        v_bfe_u32 {V(T[0])}, {V(vL)}, 3, 2
        v_and_b32 {V(T[1])}, 7, {V(vL)}
        v_mul_u32_u24 {V(T[0])}, {R4S}, {V(T[0])}
        v_lshl_add_u32 {V(T[0])}, {V(T[1])}, 4, {V(T[0])}
        ''')
        if tag == 'c':
            for i in range(4): a(f'v_mov_b32 {V(T[4+i])}, 0')
        if tag == 'c': a(f'''
        s_mov_b32 exec_hi, 0
        ds_write_b128 {V(T[0])}, {V(T[4],4)} offset:{R4}
        s_mov_b64 exec, -1
        s_waitcnt lgkmcnt(1)
        L_nopad{tag}:
        ''')
        if mid: mid()
        for c in range(4):
            W0, W1, W2, W3 = [Wq + 4 * c + i for i in range(4)]
            q = Q + 8 * c
            if not mid: a('s_waitcnt lgkmcnt(6)')
            a(f'''
            v_perm_b32 {V(q+0)}, {V(W2)}, {V(W1)}, {V(vSEL+2)}
            v_perm_b32 {V(q+1)}, {V(W1)}, {V(W0)}, {V(vSEL+0)}
            v_perm_b32 {V(q+2)}, {V(W3)}, {V(W2)}, {V(vSEL+3)}
            v_perm_b32 {V(q+3)}, {V(W1)}, {V(W0)}, {V(vSEL+1)}
            v_mov_b32 {V(q+5)}, {V(q+0)}
            ds_write_b128 {V(vR4W)}, {V(q,4)} offset:{c*R4S}
            v_perm_b32 {V(q+4)}, {V(W3)}, {V(W2)}, {V(vSEL+4)}
            v_perm_b32 {V(q+6)}, {V(W3)}, {V(W2)}, {V(vSEL+5)}
            v_mov_b32 {V(q+7)}, {V(q+2)}
            ds_write_b128 {V(vR4W)}, {V(q+4,4)} offset:{c*R4S + 16}
            ''')

    def normalise(tag):
        if tag == 'h' and o['wb3']:
            a(f's_cmp_eq_u32 {S(sPROD)}, 0\ns_cbranch_scc1 L_nw0')
            w_dma()
            a(f"s_waitcnt vmcnt(6)\ns_branch L_nw1\nL_nw0:\ns_waitcnt vmcnt(0)\nL_nw1:")
        else:
            a(f"s_waitcnt vmcnt({1 if (tag == 'h' and o['wpf'] == 1) else 0})")
        spin_init()
        a(f'''
        L_statspin{tag}:
        v_xor_b32 {V(T[0])}, {S(sTAG)}, {V(vG+3)}
        v_xor_b32 {V(T[1])}, {S(sTAG)}, {V(vG+7)}
        v_or_b32 {V(T[0])}, {V(T[0])}, {V(T[1])}
        v_cmp_lt_u32 vcc, 15, {V(T[0])}
        s_cbranch_vccz L_statok{tag}
        global_load_dwordx4 {V(vG,4)}, {V(vST0)}, {S(sWS,2)} sc1
        global_load_dwordx4 {V(vG+4,4)}, {V(vST1)}, {S(sWS,2)} sc1
        s_waitcnt vmcnt(0)
        ''')
        spin_next(f'L_statspin{tag}')
        a(f'L_statok{tag}:')
        stamp(7)
        stq = [vG, vG + 1, vG + 4, vG + 5]
        rho = [T[1], T[3], T[5], T[7]]; mu = [T[0], T[2], T[4], T[6]]
        key = T[8]
        for r in range(4): a(f'v_and_b32 {V(rho[r])}, {S(sHI)}, {V(stq[r])}')
        a(f'v_max_u32 {V(key)}, {V(vG+2)}, {V(vG+6)}')
        for r in range(4):
            a(f'v_rcp_f32 {V(rho[r])}, {V(rho[r])}')
            a(f'v_lshlrev_b32 {V(mu[r])}, 16, {V(stq[r])}')
        kred = ['row_shr:1 row_mask:0xf', 'row_shr:2 row_mask:0xf', 'row_shr:4 row_mask:0xf', 'row_shr:8 row_mask:0xf',
                'row_bcast:15 row_mask:0xa', 'row_bcast:31 row_mask:0xc']
        def kr(i): a(f'v_max_u32_dpp {V(key)}, {V(key)}, {V(key)} {kred[i]} bank_mask:0xf')
        for r in range(4):
            a(f'''
            v_mul_f32_e64 {V(mu[r])}, -{V(mu[r])}, {V(rho[r])}
            v_lshlrev_b32 {V(vXF+4*r)}, 16, {V(vD+2*r)}
            v_and_b32 {V(vXF+4*r+1)}, {S(sHI)}, {V(vD+2*r)}
            v_lshlrev_b32 {V(vXF+4*r+2)}, 16, {V(vD+2*r+1)}
            v_and_b32 {V(vXF+4*r+3)}, {S(sHI)}, {V(vD+2*r+1)}
            ''')
            kr(r)
            for c in range(4): a(f'v_fma_f32 {V(vXN+4*r+c)}, {V(vXF+4*r+c)}, {V(rho[r])}, {V(mu[r])}')
        kr(4)
        ssum(sT0, (sW, 2), AM)
        for c in range(4):
            a(f'''
            v_cvt_pk_bf16_f32 {V(XP+2*c)}, {V(vXN+c)}, {V(vXN+4+c)}
            v_cvt_pk_bf16_f32 {V(XP+2*c+1)}, {V(vXN+8+c)}, {V(vXN+12+c)}
            ds_write_b64 {V(vUW)}, {V(XP+2*c,2)} offset:{c*US}
            ''')
            if c == 0: kr(5)
            if c == 1: a(f'v_mov_b32 {V(T[9])}, {S(sT0)}')
        lane63()
        a(f'ds_write_b32 {V(T[9])}, {V(key)}')
        alllanes()

    a(f's_cmp_ge_u32 {S(sW)}, 4\ns_cbranch_scc1 L_h_r4')
    r4_build('c'); stamp(6); normalise('c')
    a('s_branch L_b4\nL_h_r4:')
    if o['hnormfirst']:
        def mid():
            normalise('h')
            if o['wpf'] == 3: a(f'global_load_dword {V(vPFW)}, {V(vPFA)}, {S(sPB,2)} nt')
            a('s_waitcnt lgkmcnt(5)'); stamp(6)
        r4_build('h', mid)
    else:
        r4_build('h'); stamp(6); normalise('h')
    a('L_b4:')
    a(f'v_mov_b32 {V(T[9])}, {AM}\ns_waitcnt lgkmcnt(0)')
    stamp(8)
    a('s_barrier')

    def read_idx():
        a(f'''
        ds_read_b128 {V(T[0],4)}, {V(T[9])}
        ds_read_b128 {V(T[4],4)}, {V(T[9])} offset:16
        s_waitcnt lgkmcnt(0)
        v_max3_u32 {V(T[0])}, {V(T[0])}, {V(T[1])}, {V(T[2])}
        v_max3_u32 {V(T[3])}, {V(T[3])}, {V(T[4])}, {V(T[5])}
        v_max3_u32 {V(T[0])}, {V(T[0])}, {V(T[6])}, {V(T[7])}
        v_max_u32 {V(T[0])}, {V(T[0])}, {V(T[3])}
        v_readfirstlane_b32 {S(sKEY)}, {V(T[0])}
        s_andn2_b32 {S(sIDX)}, 2047, {S(sKEY)}
        s_lshr_b32 {S(sT0)}, {S(sIDX)}, 8
        s_lshr_b32 {S(sT1)}, {S(sIDX)}, 9
        s_xor_b32 {S(sT0)}, {S(sT0)}, {S(sT1)}
        s_xor_b32 {S(sT0)}, {S(sT0)}, {S(sH)}
        s_andn2_b32 {S(sOWN)}, 1, {S(sT0)}
        ''')

    def stat_addr(dst):
        a(f's_lshr_b32 {S(sT0)}, {S(sIDX)}, 2\ns_bfe_u32 {S(sT1)}, {S(sIDX)}, 0x10001\ns_and_b32 {S(sT2)}, {S(sIDX)}, 1')
        ssum(sT0, (sT0, 4), (sT1, 13), (sT2, 2), W_ST)
        a(f'v_mov_b32 {V(dst)}, {S(sT0)}')

    a(f's_cmp_ge_u32 {S(sW)}, 4\ns_cbranch_scc1 L_helper')

    ACC = vP; FR = vP + 16; NFR = 28
    stamp(10)
    a(f's_setprio 1\ns_cmp_eq_u32 {S(sH)}, 0\ns_cbranch_scc0 L_conv1')

    def conv(h):
        tl = tiles(h)
        ops = []
        for c0 in range(8):
            lst = [(i, c1, q - c1) for i, q in enumerate(tl) for c1 in range(q + 1)]
            have = set(); seq = []
            while lst:
                def cost(x):
                    base = (2 * (('A', x[1]) not in have) + (('B', x[2]) not in have), bool(seq) and seq[-1][0] == x[0], max(x[1], x[2]))
                    return ((x[0],) + base) if c0 == 7 else base
                x = min(lst, key=cost); lst.remove(x); seq.append(x); have.add(('A', x[1])); have.add(('B', x[2]))
            for i, c1, qp in seq: ops.append((i, ('A', c0, c1), ('B', c0, qp)))
        order = []; last = {}; lastacc = {}
        for n, (i, ak, bk) in enumerate(ops):
            lastacc[i] = n
            for k in (bk, ak):
                if k not in last: order.append(k)
                last[k] = n
        L = []
        for k in order: L += [(k, 0), (k, 1)] if k[0] == 'A' else [(k, 0)]
        endidx = {}
        for j, (k, p) in enumerate(L): endidx[k] = j + 1
        need = []; m = 0
        for (i, ak, bk) in ops:
            m = max(m, endidx[ak], endidx[bk]); need.append(m)
        free = list(range(NFR)); slot = {}
        st = dict(issued=0, done=0)
        seqpos = []
        nds = [0]
        donepos = [0]
        MAXOUT = o['maxout']; G = o['group']

        def can_issue():
            if st['issued'] >= len(L) or nds[0] - donepos[0] >= MAXOUT: return False
            k, p = L[st['issued']]
            return p == 1 or bool(free)

        def issue():
            k, p = L[st['issued']]
            if p == 0: slot[k] = free.pop(0)
            r = FR + 4 * slot[k]
            if k[0] == 'A':
                a(f'ds_read_b64 {V(r+2*p,2)}, {V(vCA2 if p else vCA)} offset:{CAS*(8*k[2] + k[1])}')
            else:
                a(f'ds_read_b128 {V(r,4)}, {V(vCB)} offset:{2*(224 + 256*k[2] - 32*k[1])}')
            st['issued'] += 1; nds[0] += 1; seqpos.append(nds[0])
        started = set(); written = set()
        while can_issue(): issue()
        for n, (i, ak, bk) in enumerate(ops):
            if need[n] > st['done']:
                while st['issued'] < need[n]:
                    assert nds[0] - donepos[0] < 15
                    issue()
                tgt = need[n]
                for m2 in range(n, min(n + G, len(ops))):
                    if need[m2] <= st['issued'] - o['minfly'] or need[m2] <= len(L) == st['issued']: tgt = max(tgt, need[m2])
                a(f's_waitcnt lgkmcnt({nds[0] - seqpos[tgt-1]})'); st['done'] = tgt; donepos[0] = seqpos[tgt - 1]
            acc = ACC + 4 * i
            cin = V(acc, 4) if i in started else '0'
            started.add(i)
            a(f'v_mfma_f32_16x16x32_bf16 {V(acc,4)}, {V(FR+4*slot[ak],4)}, {V(FR+4*slot[bk],4)}, {cin}')
            for k in (ak, bk):
                if last[k] == n: free.append(slot[k])
            budget = 2
            if n + 1 < len(ops) and need[n + 1] > st['done']: budget = 1
            for i2 in range(4):
                if i2 not in written and lastacc[i2] + 4 <= n and budget > 0 and nds[0] - donepos[0] < 15:
                    a(f'ds_write_b128 {V(vY)}, {V(ACC+4*i2,4)} offset:{i2*YTS}')
                    written.add(i2); nds[0] += 1; budget -= 1
            while budget > 0 and can_issue():
                issue(); budget -= 1
        for i2 in range(4):
            if i2 not in written: a(f'ds_write_b128 {V(vY)}, {V(ACC+4*i2,4)} offset:{i2*YTS}')
    conv(0)
    a('s_branch L_convdone\nL_conv1:')
    conv(1)
    a('L_convdone:\ns_waitcnt lgkmcnt(0)')
    stamp(9)
    a(f's_barrier\ns_cmp_lg_u32 {S(sW)}, 0\ns_cbranch_scc1 L_exit')
    a(f'''
    s_cmp_lg_u32 s2, 0
    s_cbranch_scc1 L_noep
    v_mov_b32 {V(T[10])}, 0
    v_mov_b32 {V(T[11])}, {S(sTAG)}
    s_mov_b64 exec, 1
    global_store_dword {V(T[10])}, {V(T[11])}, {S(sWS,2)} sc1
    s_mov_b64 exec, -1
    L_noep:
    ''')
    read_idx()
    a(f's_cmp_eq_u32 {S(sOWN)}, 0\ns_cbranch_scc1 L_exit\ns_setprio 3')
    F = vP
    par, xo, fpa = T[12], T[13], T[14]
    y0, y1, n0, n1, d0, d1, sg, xv, sv, x0, x1 = [vXF + i for i in range(11)]
    a(f'v_and_b32 {V(par)}, 1, {V(vL)}')
    ssum(sT0, (sIDX, 10), (sCH0, 1))
    a(f'v_lshl_add_u32 {V(xo)}, {V(par)}, 2, {S(sT0)}')
    stat_addr(T[10])
    a(f'global_load_dword {V(xv)}, {V(xo)}, {S(sX,2)}')
    a(f'global_load_dword {V(sv)}, {V(T[10])}, {S(sWS,2)} sc1')
    a(f's_lshr_b32 {S(sT0)}, {S(sCH0)}, 2')
    smul(sT0, sT0, 6144, W_FP + 3072)
    a(f'v_lshl_add_u32 {V(fpa)}, {V(vL)}, 4, {S(sT0)}')
    a(f'''
    s_lshr_b32 {S(sT1)}, {S(sIDX)}, 9
    s_mul_i32 {S(sT1)}, {S(sT1)}, {YTS}
    s_bfe_u32 {S(sT0)}, {S(sIDX)}, 0x20002
    s_mul_i32 {S(sT0)}, {S(sT0)}, {YGS}
    s_add_u32 {S(sT1)}, {S(sT1)}, {S(sT0)}
    s_bfe_u32 {S(sT0)}, {S(sIDX)}, 0x40004
    s_and_b32 {S(sT2)}, {S(sIDX)}, 3
    ''')
    ssum(sT1, (sT1, 0), (sT0, 4), (sT2, 2), YX)
    a(f'''
    v_mul_u32_u24 {V(T[0])}, {2*YCS}, {V(par)}
    v_add_u32 {V(T[0])}, {S(sT1)}, {V(T[0])}
    ds_read_b32 {V(y0)}, {V(T[0])}
    ds_read_b32 {V(y1)}, {V(T[0])} offset:{YCS}
    s_and_b32 {S(sT0)}, {S(sKEY)}, {S(sHI)}
    s_xor_b32 {S(sT1)}, {S(sT0)}, 0x80000000
    s_xor_b32 {S(sT2)}, {S(sT0)}, {S(sHI)}
    s_bitcmp1_b32 {S(sT0)}, 31
    s_cselect_b32 {S(sT0)}, {S(sT1)}, {S(sT2)}
    v_mov_b32 {V(T[2])}, 0xbfb8aa3b
    v_mul_f32 {V(sg)}, {S(sT0)}, {V(T[2])}
    v_exp_f32 {V(sg)}, {V(sg)}
    v_cmp_eq_u32 vcc, 0, {V(par)}
    v_add_f32 {V(sg)}, 1.0, {V(sg)}
    v_rcp_f32 {V(sg)}, {V(sg)}
    v_mov_b32 {V(F+20)}, 0
    v_cvt_pk_bf16_f32 {V(sg)}, {V(sg)}, {V(sg)}
    v_mov_b32 {V(F+21)}, 0
    v_and_b32 {V(sg)}, {S(sHI)}, {V(sg)}
    v_mov_b32 {V(F+22)}, {S(sTAG)}
    s_waitcnt lgkmcnt(0)
    v_mov_b32 {V(d0)}, {S(sDS)}
    v_mov_b32 {V(d1)}, {S(sDS+1)}
    v_cndmask_b32 {V(d0)}, {V(d1)}, {V(d0)}, vcc
    v_and_b32 {V(d1)}, {S(sHI)}, {V(d0)}
    v_lshlrev_b32 {V(d0)}, 16, {V(d0)}
    ''')

    def rnd2(r0, r1, t):
        a(f'v_cvt_pk_bf16_f32 {V(t)}, {V(r0)}, {V(r1)}\nv_lshlrev_b32 {V(r0)}, 16, {V(t)}\nv_and_b32 {V(r1)}, {S(sHI)}, {V(t)}')
    rnd2(y0, y1, T[0])
    a(f'''
    s_waitcnt vmcnt(0)
    v_and_b32 {V(T[1])}, {S(sHI)}, {V(sv)}
    v_lshlrev_b32 {V(T[2])}, 16, {V(sv)}
    v_rcp_f32 {V(T[1])}, {V(T[1])}
    v_lshlrev_b32 {V(x0)}, 16, {V(xv)}
    v_and_b32 {V(x1)}, {S(sHI)}, {V(xv)}
    v_sub_f32 {V(n0)}, {V(x0)}, {V(T[2])}
    v_sub_f32 {V(n1)}, {V(x1)}, {V(T[2])}
    ''')
    rnd2(n0, n1, T[0])
    a(f'v_mul_f32 {V(n0)}, {V(n0)}, {V(T[1])}\nv_mul_f32 {V(n1)}, {V(n1)}, {V(T[1])}')
    rnd2(n0, n1, T[0])
    a(f'v_mul_f32 {V(d0)}, {V(d0)}, {V(n0)}\nv_mul_f32 {V(d1)}, {V(d1)}, {V(n1)}')
    rnd2(d0, d1, T[0])
    a(f'v_add_f32 {V(y0)}, {V(y0)}, {V(d0)}\nv_add_f32 {V(y1)}, {V(y1)}, {V(d1)}')
    rnd2(y0, y1, T[0])
    if o['b6']: a('s_barrier')
    spin_init()
    a('L_ffnspin:')
    for i in range(5):
        a(f'global_load_dwordx4 {V(F+4*i,4)}, {V(fpa)}, {S(sWS,2)} offset:{i*1024 - 3072} sc1')
    a(f'''
    s_mov_b64 exec, 0xffffff
    global_load_dwordx4 {V(F+20,4)}, {V(fpa)}, {S(sWS,2)} offset:2048 sc1
    s_mov_b64 exec, -1
    s_waitcnt vmcnt(0)
    ''')
    for i in range(6): a(f'v_xor_b32 {V(T[i])}, {S(sTAG)}, {V(F+4*i+2)}')
    a(f'''
    v_or3_b32 {V(T[0])}, {V(T[0])}, {V(T[1])}, {V(T[2])}
    v_or3_b32 {V(T[3])}, {V(T[3])}, {V(T[4])}, {V(T[5])}
    v_or_b32 {V(T[0])}, {V(T[0])}, {V(T[3])}
    v_cmp_ne_u32 vcc, 0, {V(T[0])}
    s_cbranch_vccz L_ffnok
    ''')
    spin_next('L_ffnspin')
    a('L_ffnok:')
    stamp(11)
    p0, p1 = F, F + 1
    for e in range(2):
        a(f'v_add_f32 {V(F+e)}, {V(F+e)}, {V(F+4+e)}')
        a(f'v_add_f32 {V(F+8+e)}, {V(F+8+e)}, {V(F+12+e)}')
        a(f'v_add_f32 {V(F+16+e)}, {V(F+16+e)}, {V(F+20+e)}')
    for e in range(2): a(f'v_add_f32 {V(F+e)}, {V(F+e)}, {V(F+8+e)}')
    for e in range(2): a(f'v_add_f32 {V(F+e)}, {V(F+e)}, {V(F+16+e)}')
    for m in (2, 4, 8):
        for e in range(2): a(f'v_add_f32_dpp {V(F+e)}, {V(F+e)}, {V(F+e)} row_ror:{m} row_mask:0xf bank_mask:0xf')
    for pl in ('v_permlane16_swap_b32', 'v_permlane32_swap_b32'):
        for e in range(2): a(f'v_mov_b32 {V(F+4+e)}, {V(F+e)}')
        for e in range(2): a(f'{pl} {V(F+e)}, {V(F+4+e)}')
        for e in range(2): a(f'v_add_f32 {V(F+e)}, {V(F+e)}, {V(F+4+e)}')
    rnd2(p0, p1, T[0])
    for e in range(2): a(f'v_mul_f32 {V(F+e)}, {V(F+e)}, {V(sg)}')
    rnd2(p0, p1, T[0])
    a(f'v_add_f32 {V(p0)}, {V(p0)}, {V(n0)}\nv_add_f32 {V(p1)}, {V(p1)}, {V(n1)}')
    rnd2(p0, p1, T[0])
    for e in range(2): a(f'v_mul_f32 {V(F+4+e)}, 0xbfb8aa3b, {V(F+e)}')
    for e in range(2): a(f'v_exp_f32 {V(F+4+e)}, {V(F+4+e)}')
    for e in range(2): a(f'v_add_f32 {V(F+4+e)}, 1.0, {V(F+4+e)}')
    for e in range(2): a(f'v_rcp_f32 {V(F+4+e)}, {V(F+4+e)}')
    for e in range(2): a(f'v_mul_f32 {V(F+e)}, {V(F+e)}, {V(F+4+e)}')
    rnd2(p0, p1, T[0])
    a(f'v_mul_f32 {V(p0)}, {V(p0)}, {V(y0)}\nv_mul_f32 {V(p1)}, {V(p1)}, {V(y1)}')
    rnd2(p0, p1, T[0])
    a(f'''
    v_add_f32 {V(p0)}, {V(p0)}, {V(x0)}
    v_add_f32 {V(p1)}, {V(p1)}, {V(x1)}
    v_cvt_pk_bf16_f32 {V(T[0])}, {V(p0)}, {V(p1)}
    s_mov_b64 exec, 3
    global_store_dword {V(xo)}, {V(T[0])}, {S(sOUT,2)}
    s_mov_b64 exec, -1
    ''')
    if o['stamp']:
        a('s_waitcnt vmcnt(0)'); stamp(12); a('s_branch L_exit')
    else:
        a('s_endpgm')

    a('L_helper:')
    read_idx()
    XS = vP
    a(f's_cmp_eq_u32 {S(sPROD)}, 0\ns_cbranch_scc1 L_h_pre')
    a(f's_lshl_b32 {S(sT0)}, {S(sIDX)}, 10\nv_add_u32 {V(T[0])}, {S(sT0)}, {V(vXS)}')
    stat_addr(T[1])
    a(f'''
    global_load_dwordx2 {V(XS,2)}, {V(T[0])}, {S(sX,2)}
    global_load_dwordx2 {V(XS+2,2)}, {V(T[0])}, {S(sX,2)} offset:32
    global_load_dword {V(XS+4)}, {V(T[1])}, {S(sWS,2)} sc1
    ''')
    if not o['wb3']: w_dma()
    a('L_h_pre:')
    Dv = [vP + 68 + c for c in range(4)]
    a(f'''
    s_lshl_b32 {S(sT0)}, {S(sDS)}, 16
    s_and_b32 {S(sT1)}, {S(sDS)}, {S(sHI)}
    s_lshl_b32 {S(sT2)}, {S(sDS+1)}, 16
    s_and_b32 {S(sT3)}, {S(sDS+1)}, {S(sHI)}
    ''')
    for c in range(4): a(f'v_mov_b32 {V(Dv[c])}, {S(sT0+c)}')
    WF = vP + 8; DD = vP + 24; XA = vP + 40; WDF = vP + 48
    GT = [vP + 64 + i for i in range(4)]
    def ge_row(r):
        for c in range(4):
            src = XP + 2 * c + (r >> 1)
            if r & 1: a(f'v_and_b32 {V(vXN+4*r+c)}, {S(sHI)}, {V(src)}')
            else:     a(f'v_lshlrev_b32 {V(vXN+4*r+c)}, 16, {V(src)}')
        for c in range(4): a(f'v_mul_f32 {V(GT[c])}, 0xbfb8aa3b, {V(vXN+4*r+c)}')
        for c in range(4): a(f'v_exp_f32 {V(GT[c])}, {V(GT[c])}')
        for c in range(4):
            a(f'v_mul_f32 {V(vE+4*r+c)}, {V(vXN+4*r+c)}, {V(Dv[c])}')
            a(f'v_add_f32 {V(GT[c])}, 1.0, {V(GT[c])}')
        for c in range(4): a(f'v_rcp_f32 {V(GT[c])}, {V(GT[c])}')
        for c in range(4): a(f'v_mul_f32 {V(vXN+4*r+c)}, {V(vXN+4*r+c)}, {V(GT[c])}')
        for c in range(4): a(f'v_fma_f32 {V(vE+4*r+c)}, {V(vE+4*r+c)}, {V(vXN+4*r+c)}, {V(vXF+4*r+c)}')
    a('s_waitcnt vmcnt(7)')
    for i in range(4): a(f'ds_read2st64_b32 {V(vWD+2*i,2)}, {V(vWDR)} offset0:{2*i} offset1:{2*i+1}')
    for r in range(o['prerows']): ge_row(r)
    for r in range(4):
        a(f'v_add_u32 {V(T[0])}, {r}, {V(vROW)}\nv_cmp_ne_u32 {S(sM+2*r,2)}, {S(sIDX)}, {V(T[0])}')
    a(f's_waitcnt lgkmcnt(0)\ns_cmp_eq_u32 {S(sPROD)}, 0\ns_cbranch_scc1 L_h_b5')
    for i in range(8):
        a(f'v_lshlrev_b32 {V(WDF+2*i)}, 16, {V(vWD+i)}\nv_and_b32 {V(WDF+2*i+1)}, {S(sHI)}, {V(vWD+i)}')
    stamp(9)
    a(f"s_setprio {o['ffnprio']}")
    a('s_waitcnt vmcnt(3)')
    for sp in range(4):
        a(f'ds_read_b64_tr_b16 {V(WF+4*sp,2)}, {V(vWT)} offset:{512*sp}')
        a(f'ds_read_b64_tr_b16 {V(WF+4*sp+2,2)}, {V(vWT)} offset:{512*sp + 256}')
    gq = T[4]
    a(f'''
    v_mov_b32 {V(T[11])}, 1
    v_mov_b32 {V(T[10])}, {FF}
    s_waitcnt vmcnt(0)
    ''')
    stamp(0)
    X = [T[2+i] for i in range(8)]
    a(f'''
    v_and_b32 {V(T[12])}, {S(sHI)}, {V(XS+4)}
    v_lshlrev_b32 {V(T[14])}, 16, {V(XS+4)}
    v_rcp_f32 {V(T[12])}, {V(T[12])}
    ''')
    for i in range(4):
        a(f'v_lshlrev_b32 {V(X[2*i])}, 16, {V(XS+i)}\nv_and_b32 {V(X[2*i+1])}, {S(sHI)}, {V(XS+i)}')
        a(f'v_pk_add_f32 {V(X[2*i],2)}, {V(X[2*i],2)}, {V(T[14],2)} op_sel_hi:[1,0] neg_lo:[0,1] neg_hi:[0,1]')
    for i in range(4): a(f'v_cvt_pk_bf16_f32 {V(XA+i)}, {V(X[2*i])}, {V(X[2*i+1])}')
    for i in range(4):
        a(f'v_lshlrev_b32 {V(X[2*i])}, 16, {V(XA+i)}\nv_and_b32 {V(X[2*i+1])}, {S(sHI)}, {V(XA+i)}')
        a(f'v_pk_mul_f32 {V(X[2*i],2)}, {V(X[2*i],2)}, {V(T[12],2)} op_sel_hi:[1,0]')
    for i in range(4): a(f'v_cvt_pk_bf16_f32 {V(XA+i)}, {V(X[2*i])}, {V(X[2*i+1])}')
    a('s_waitcnt lgkmcnt(0)')
    for sp in range(4):
        a(f'v_mfma_f32_16x16x32_bf16 {V(DD+4*sp,4)}, {V(XA,4)}, {V(WF+4*sp,4)}, 0')
    spin_init()
    a(f'''
    v_add_f32 {V(T[0])}, {V(DD)}, {V(DD+5)}
    v_add_f32 {V(T[1])}, {V(DD+10)}, {V(DD+15)}
    v_add_f32 {V(T[0])}, {V(T[0])}, {V(T[1])}
    ds_write_b32 {V(vFPW)}, {V(T[0])}
    s_mov_b64 exec, 1
    ds_write_b32 {V(vFFW)}, {V(T[11])}
    s_mov_b64 exec, -1
    L_hspin:
    ds_read_b128 {V(T[4],4)}, {V(T[10])}
    ds_read2_b32 {V(T[0],2)}, {V(vFPR)} offset0:0 offset1:80
    ds_read2_b32 {V(T[2],2)}, {V(vFPR)} offset0:160 offset1:240
    s_waitcnt lgkmcnt(0)
    v_and_b32 {V(T[4])}, {V(T[4])}, {V(T[5])}
    v_add_f32 {V(T[0])}, {V(T[0])}, {V(T[1])}
    v_and_b32 {V(T[6])}, {V(T[6])}, {V(T[7])}
    v_add_f32 {V(T[2])}, {V(T[2])}, {V(T[3])}
    v_and_b32 {V(T[4])}, {V(T[4])}, {V(T[6])}
    v_add_f32 {V(T[0])}, {V(T[0])}, {V(T[2])}
    v_cmp_eq_u32 vcc, 0, {V(T[4])}
    v_cvt_pk_bf16_f32 {V(T[0])}, {V(T[0])}, {V(T[0])}
    s_cbranch_vccz L_hok
    ''')
    spin_next('L_hspin')
    a(f'''
    L_hok:
    v_and_b32 {V(T[0])}, {S(sHI)}, {V(T[0])}
    v_mul_f32 {V(T[1])}, 0xbfb8aa3b, {V(T[0])}
    v_exp_f32 {V(T[1])}, {V(T[1])}
    v_mov_b32_dpp {V(T[2])}, {V(T[0])} row_ror:8 row_mask:0xf bank_mask:0xf
    v_add_f32 {V(T[1])}, 1.0, {V(T[1])}
    v_rcp_f32 {V(T[1])}, {V(T[1])}
    v_mov_b32 {V(gq+2)}, {S(sTAG)}
    v_mul_f32 {V(T[1])}, {V(T[0])}, {V(T[1])}
    v_cvt_pk_bf16_f32 {V(T[1])}, {V(T[1])}, {V(T[1])}
    v_and_b32 {V(T[1])}, {S(sHI)}, {V(T[1])}
    v_mul_f32 {V(T[1])}, {V(T[1])}, {V(T[2])}
    v_cvt_pk_bf16_f32 {V(T[1])}, {V(T[1])}, {V(T[1])}
    v_and_b32 {V(T[1])}, {S(sHI)}, {V(T[1])}
    v_mov_b32 {V(gq+3)}, 0
    ''')
    for i in range(8):
        for e in range(2):
            a(f"{'v_mul_f32_dpp' if i == 0 else 'v_fmac_f32_dpp'} {V(gq+e)}, {V(T[1])}, {V(WDF+2*i+e)} row_newbcast:{i} row_mask:0xf bank_mask:0xf")
    a(f'global_store_dwordx4 {V(vFPA)}, {V(gq,4)}, {S(sWS,2)} sc1')
    stamp(10)
    a('L_h_b5:\ns_barrier')
    YR = vP
    def epilogue(ge):
        for r in range(4):
            if ge and r >= o['prerows']: ge_row(r)
            for c in range(4):
                a(f'v_fma_f32 {V(vE+4*r+c)}, {V(YR+4*c+r)}, {V(vXN+4*r+c)}, {V(vE+4*r+c)}')
            a(f'''
            v_cvt_pk_bf16_f32 {V(vD+2*r)}, {V(vE+4*r)}, {V(vE+4*r+1)}
            v_cvt_pk_bf16_f32 {V(vD+2*r+1)}, {V(vE+4*r+2)}, {V(vE+4*r+3)}
            s_mov_b64 exec, {S(sM+2*r,2)}
            global_store_dwordx2 {V(vXG)}, {V(vD+2*r,2)}, {S(sOUT,2)} offset:{r*1024}
            s_mov_b64 exec, -1
            ''')
    for c in range(4): a(f'ds_read_b128 {V(YR+4*c,4)}, {V(vY)} offset:{c*YCS}')
    if o['b6']:
        a(f'''
        s_lshr_b32 {S(sT0)}, {S(sWI)}, 1
        s_and_b32 {S(sT1)}, {S(sT0)}, {S(sOWN)}
        s_andn2_b32 {S(sT2)}, {S(sOWN)}, {S(sT0)}
        s_cmp_eq_u32 {S(sT1)}, 0
        s_cbranch_scc1 L_h_st
        ''')
        for r in range(o['prerows'], 4): ge_row(r)
        a('s_barrier\ns_waitcnt lgkmcnt(0)')
        epilogue(False)
        a('s_branch L_h_done\nL_h_st:')
    a('s_waitcnt lgkmcnt(0)')
    epilogue(True)
    for r in range(0):
        for c in range(4):
            a(f'v_fma_f32 {V(vE+4*r+c)}, {V(YR+4*c+r)}, {V(vXN+4*r+c)}, {V(vE+4*r+c)}')
        a(f'''
        v_cvt_pk_bf16_f32 {V(vD+2*r)}, {V(vE+4*r)}, {V(vE+4*r+1)}
        v_cvt_pk_bf16_f32 {V(vD+2*r+1)}, {V(vE+4*r+2)}, {V(vE+4*r+3)}
        s_mov_b64 exec, {S(sM+2*r,2)}
        global_store_dwordx2 {V(vXG)}, {V(vD+2*r,2)}, {S(sOUT,2)} offset:{r*1024}
        s_mov_b64 exec, -1
        ''')
    if o['b6']:
        a(f'''
        s_cmp_eq_u32 {S(sT2)}, 0
        s_cbranch_scc1 L_h_done
        s_waitcnt vmcnt({o['b6cnt']})
        s_barrier
        L_h_done:
        ''')
    if o['stamp'] or o['diag'] >= 0:
        stamp(11)
        a('s_waitcnt vmcnt(0)')
        stamp(12)
    if o['diag'] >= 0:
        a('''
        s_memrealtime s[90:91]
        s_sub_u32 s88, s88, s86
        s_min_u32 s88, s88, 2000
        s_lshl_b32 s88, s88, 2
        s_waitcnt lgkmcnt(0)
        s_add_u32 s88, s88, s90
        L_diag:
        s_memrealtime s[90:91]
        s_waitcnt lgkmcnt(0)
        s_sub_u32 s90, s90, s88
        s_cmp_lt_i32 s90, 0
        s_cbranch_scc1 L_diag
        ''')
    a('L_exit:')
    if o['stamp']:
        a('v_mov_b32 v254, 0')
        for i in range(14): a(f'v_writelane_b32 v254, s{86+i}, {i}')
        a(f'global_store_dword {V(vSTA)}, v254, {S(sWS,2)}')
    a('L_end:\ns_endpgm')
    a.raw('''.section .rodata,"a"
.p2align 6
.amdhsa_kernel %s_kernel
  .amdhsa_next_free_vgpr 256
  .amdhsa_next_free_sgpr 102
  .amdhsa_accum_offset 256
  .amdhsa_group_segment_fixed_size 0
  .amdhsa_kernarg_size 136
  .amdhsa_user_sgpr_count 2
  .amdhsa_user_sgpr_kernarg_segment_ptr 1
  .amdhsa_system_sgpr_workgroup_id_x 1
.end_amdhsa_kernel''' % KN)
    return a.text()


if __name__ == '__main__':
    out = sys.argv[1]
    opt = {}
    for kv in sys.argv[2:]:
        k, val = kv.split('='); opt[k] = int(val, 0)
    open(out, 'w').write(generate(**opt))
```

```python
import sys
from asmlib import *

KN = 'recurrent_scan__ssm_conv_s4__moe_arch_mod__prompt'

DEFAULTS = dict(stamp=0, cyc=0, force_slow=0, prefetch=1, wpf=1, spinmax=1 << 16, diag=-1,
                maxout=15, group=3, minfly=6, b6=1, b6cnt=1, nb=6, wdearly=0, wpfb3=1, hnormfirst=1, ffnprio=2, tlb=0, tlbsh=16, wnt=0, xnt=0, pnt=0, prerows=1, jc=4, jh=9, jf=17, p1nt=1, pfirst=0)

RS = 2064
STAGE = 0
R4 = 0; R4S = 18560; CAS = 288
YX = 74240; YCS = 5120; YTS = 1280; YGS = 320
U = 109440; US = 4576
TAB = 127744; TS = 1552
WL = 133952; WL1 = 8320
SL = 150528
AM = 158720
FF = 158752
TG = 158768
PF = 158784
FP = 158848
LDS_BYTES = 159872
W_ST = 0x1000; W_FL = 0x6000; W_FP = 0x10000; W_P1 = 0xD0000; W_IN = 0x100000; W_STAMP = 0x800000

sX, sARE, sAIM, sBRE, sBIM, sCRE, sCIM, sLDT = 4, 6, 8, 10, 12, 14, 16, 18
sDSK, sWR, sWG, sWU, sWD, sOUT, sDBG, sWS = 20, 24, 26, 28, 30, 32, 34, 36
sW, sK, sJ, sCGL, sH, sCH0, sT, sXCC, sTAG, sTAGX = 38, 39, 40, 41, 42, 43, 44, 45, 46, 47
sPB, sDS = 48, 50
sONES, sF8, sPROD, sIDX, sKEY, sCNT = 52, 53, 54, 55, 56, 57
sT0, sT1, sT2, sT3 = 58, 59, 60, 61
sOWN, sINB = 62, 63
sM = 64
sH8 = 72
sHI = 80
sSTP = 82
sWI = 84
sP1 = 85
sCM = 78
sA = 76; sR = 77
sROLE = 81

vL = 1
vGA = 2
vSEL = 10
vR4W, vUW, vST0, vST1, vFL, vIN, vXG, vXC = 16, 17, 18, 19, 20, 21, 22, 23
vKA, vKB, vPD, vY = 24, 25, 26, 27
vA0, vA1, vA2, vA3, vA4, vA5, vA6, vA7 = 28, 29, 30, 31, 32, 33, 34, 35
vEP, vPFD, vROW, vSTA = 36, 37, 38, 39
vD = 40
vG = 48
vXF = 56
vXN = 72
vE = 88
vP = 104
vB0, vB1, vB2, vB3, vB4, vB5 = 224, 225, 226, 227, 228, 229
vWD = 232
vT = 240
vCA, vCA2, vCB, vFLO = vA0, vA1, vA2, vA3
vTW1, vTW2, vTW3, vTW4, vWT, vWDA, vFPA, vXS = vA0, vA1, vA2, vA3, vA4, vA5, vA6, vA7
vWS0, vWS1, vP1W, vP1R, vFFW, vSTP = vB0, vB1, vB2, vB3, vB4, vB5
vWD1, vPFW = 230, 231
vTLB = 223
vWDR = 222


def tiles(h): return [2 * i + ((i ^ h) & 1) for i in range(4)]


def generate(**opt):
    o = dict(DEFAULTS); o.update(opt)
    a = Asm()
    V = v; S = s

    def stamp(i):
        if o['diag'] == i:
            a('s_memrealtime s[88:89]\ns_waitcnt lgkmcnt(0)')
        if not o['stamp']: return
        a(f"{'s_memtime' if o['cyc'] else 's_memrealtime'} {S(sSTP,2)}\ns_waitcnt lgkmcnt(0)\ns_mov_b32 s{86+i}, {S(sSTP)}")

    def cmul(d, x, y):
        a(f'v_pk_mul_f32 {V(d,2)}, {V(x,2)}, {V(y,2)} op_sel:[1,1] op_sel_hi:[1,0]')
        a(f'v_pk_fma_f32 {V(d,2)}, {V(x,2)}, {V(y,2)}, {V(d,2)} op_sel:[0,0,0] op_sel_hi:[0,1,1] neg_lo:[0,0,1]')

    def lane63(): a('s_mov_b32 exec_lo, 0\ns_mov_b32 exec_hi, 0x80000000')
    def alllanes(): a('s_mov_b64 exec, -1')
    def spin_init(): a(f"s_mov_b32 {S(sCNT)}, {o['spinmax']}")
    def spin_next(lbl): a(f's_sub_u32 {S(sCNT)}, {S(sCNT)}, 1\ns_cmp_lg_u32 {S(sCNT)}, 0\ns_cbranch_scc1 {lbl}')

    def ssum(dst, *terms):
        first = True; const = 0
        for t in terms:
            if isinstance(t, int): const += t; continue
            r, sh = t
            if first:
                a(f's_lshl_b32 {S(dst)}, {S(r)}, {sh}' if sh else f's_mov_b32 {S(dst)}, {S(r)}'); first = False
            elif sh:
                a(f's_lshl_b32 {S(sT3)}, {S(r)}, {sh}\ns_add_u32 {S(dst)}, {S(dst)}, {S(sT3)}')
            else:
                a(f's_add_u32 {S(dst)}, {S(dst)}, {S(r)}')
        if const: a(f's_add_u32 {S(dst)}, {S(dst)}, {const}')

    def smul(dst, r, k, const=0):
        a(f's_mul_i32 {S(dst)}, {S(r)}, {k}')
        if const: a(f's_add_u32 {S(dst)}, {S(dst)}, {const}')

    T = [vT + i for i in range(16)]

    a.raw('; @launch grid=(256,1,1) block=(512,1,1) lds=%d' % LDS_BYTES)
    a.raw('.amdgcn_target "amdgcn-amd-amdhsa--gfx950"\n.text\n.globl %s_kernel\n.p2align 8\n.type %s_kernel,@function\n%s_kernel:' % (KN, KN, KN))
    a('''
    s_cmp_ge_u32 s2, 256
    s_cbranch_scc1 L_end
    s_load_dwordx16 s[4:19], s[0:1], 0
    s_load_dwordx16 s[20:35], s[0:1], 64
    s_load_dwordx2 s[36:37], s[0:1], 128
    ''')
    if o['diag'] >= 0: a('s_memrealtime s[86:87]')
    if o['stamp']: a(f"{'s_memtime' if o['cyc'] else 's_memrealtime'} s[100:101]")
    a(f'''
    v_lshrrev_b32 {V(T[0])}, 6, v0
    v_and_b32 {V(vL)}, 63, v0
    v_readfirstlane_b32 {S(sW)}, {V(T[0])}
    s_and_b32 {S(sK)}, s2, 7
    s_lshr_b32 {S(sJ)}, s2, 3
    s_and_b32 {S(sCGL)}, {S(sJ)}, 15
    s_lshr_b32 {S(sH)}, {S(sJ)}, 4
    s_and_b32 {S(sWI)}, {S(sW)}, 3
    s_cmp_ge_u32 {S(sW)}, 4
    s_cselect_b32 {S(sROLE)}, 1, 0
    ''')
    ssum(sCH0, (sK, 6), (sCGL, 2))
    for i in range(7): a(f'v_mov_b32 {V(vP+i)}, 0')
    a(f's_add_u32 {S(sT1)}, {S(sCH0)}, {S(sWI)}')
    a(f's_lshr_b32 {S(sT2)}, {S(sW)}, 2')
    ssum(sT0, (sT1, 8), (sT2, 7))
    a(f'v_lshl_add_u32 {V(T[1])}, {V(vL)}, 1, {S(sT0)}')
    a(f's_lshl_b32 {S(sT1)}, {S(sT1)}, 1')
    a(f'v_mov_b32 {V(T[2])}, {S(sT1)}')
    if o['stamp']:
        ssum(sT1, (2, 11), (sW, 8), W_STAMP)
        a(f'v_lshl_add_u32 {V(vSTA)}, {V(vL)}, 2, {S(sT1)}')
        for i in range(14): a(f's_mov_b32 s{86+i}, 0')

    def param_loads():
        for i, p in enumerate((sARE, sAIM, sBRE, sBIM, sCRE, sCIM)):
            a(f"global_load_short_d16_hi {V(vP+i)}, {V(T[1])}, {S(p,2)}{' nt' if o['pnt'] else ''}")
        a(f'global_load_short_d16_hi {V(vP+6)}, {V(T[2])}, {S(sLDT,2)}')

    a(f's_cmp_eq_u32 {S(sROLE)}, 1\ns_cbranch_scc1 L_h_load')
    ssum(sT0, (sJ, 16), (sW, 14), (sK, 7))
    a(f'''
    v_lshrrev_b32 {V(T[3])}, 3, {V(vL)}
    v_and_b32 {V(T[4])}, 7, {V(vL)}
    v_lshlrev_b32 {V(T[3])}, 10, {V(T[3])}
    v_lshl_add_u32 {V(T[3])}, {V(T[4])}, 4, {V(T[3])}
    v_add_u32 {V(T[3])}, {S(sT0)}, {V(T[3])}
    v_add_u32 {V(T[4])}, 8192, {V(T[3])}
    s_waitcnt lgkmcnt(0)
    ''')
    if o['stamp']: a('s_mov_b32 s99, s100')
    if o['diag'] >= 0: a('s_mov_b32 s88, s86')
    stamp(0)
    XNT = ' nt' if o['xnt'] else ''
    PF1 = o['pfirst']
    if PF1: param_loads()
    a(f'global_load_dwordx4 {V(vD,4)}, {V(T[3])}, {S(sX,2)}{XNT}')
    a(f'global_load_dwordx4 {V(vD+4,4)}, {V(T[4])}, {S(sX,2)}{XNT}')
    if not PF1: param_loads()
    a('s_branch L_init')
    a('L_h_load:')
    ssum(sT0, (2, 13), (sWI, 11))
    a(f'''
    v_and_b32 {V(T[3])}, 31, {V(vL)}
    v_lshlrev_b32 {V(T[3])}, 4, {V(T[3])}
    v_lshrrev_b32 {V(T[4])}, 5, {V(vL)}
    v_lshl_add_u32 {V(T[4])}, {V(T[4])}, 10, {V(T[3])}
    v_add_u32 {V(T[4])}, {S(sT0)}, {V(T[4])}
    v_mov_b32 {V(T[5])}, 0
    s_waitcnt lgkmcnt(0)
    ''')
    if o['stamp']: a('s_mov_b32 s99, s100')
    if o['diag'] >= 0: a('s_mov_b32 s88, s86')
    stamp(0)
    if PF1: param_loads()
    a(f'''
    global_load_dwordx4 {V(vG,4)}, {V(T[3])}, {S(sWR,2)}
    global_load_dwordx4 {V(vG+4,4)}, {V(T[3])}, {S(sWR,2)} offset:512
    global_load_dwordx4 {V(vD,4)}, {V(T[4])}, {S(sX,2)}{XNT}
    global_load_dwordx4 {V(vD+4,4)}, {V(T[4])}, {S(sX,2)} offset:512{XNT}
    global_load_dword {V(vEP)}, {V(T[5])}, {S(sWS,2)} sc1
    ''')
    if not PF1: param_loads()

    a('L_init:')
    a(f'''
    v_mov_b32 {V(T[6])}, 0
    v_mov_b32 {V(T[7])}, 0x3f80
    s_lshl_b32 {S(sT0)}, {S(sW)}, 8
    s_mov_b32 m0, {S(sT0)}
    v_and_b32 {V(T[8])}, 127, v0
    ds_write_addtid_b32 {V(T[7])} offset:{STAGE}
    v_min_u32 {V(T[8])}, 119, {V(T[8])}
    v_lshrrev_b32 {V(T[9])}, 7, v0
    v_mul_u32_u24 {V(T[10])}, {US}, {V(T[9])}
    v_lshl_add_u32 {V(T[10])}, {V(T[8])}, 2, {V(T[10])}
    v_add_u32 {V(T[10])}, {U}, {V(T[10])}
    ds_write_b32 {V(T[10])}, {V(T[6])}
    s_cmp_lg_u32 {S(sW)}, 0
    s_cbranch_scc1 L_init2
    v_bfe_u32 {V(T[9])}, {V(vL)}, 1, 2
    v_mul_u32_u24 {V(T[9])}, {TS}, {V(T[9])}
    v_and_b32 {V(T[8])}, 1, {V(vL)}
    v_lshl_add_u32 {V(T[9])}, {V(T[8])}, 2, {V(T[9])}
    v_add_u32 {V(T[9])}, {TAB}, {V(T[9])}
    v_and_b32 {V(T[8])}, 15, {V(vL)}
    v_lshlrev_b32 {V(T[8])}, 2, {V(T[8])}
    v_add_u32 {V(T[8])}, {FF}, {V(T[8])}
    s_mov_b64 exec, 0xffff
    ds_write_b32 {V(T[9])}, {V(T[6])}
    ds_write_b32 {V(T[8])}, {V(T[6])}
    s_mov_b64 exec, -1
    L_init2:
    s_waitcnt lgkmcnt(0)
    s_barrier
    s_lshl_b32 {S(sT0)}, {S(sCH0)}, 1
    s_load_dwordx2 {S(sDS,2)}, {S(sDSK,2)}, {S(sT0)}
    s_getreg_b32 {S(sXCC)}, hwreg(HW_REG_XCC_ID, 0, 4)
    s_mov_b32 {S(sONES)}, 0x3f803f80
    s_mov_b32 {S(sHI)}, 0xffff0000
    s_lshr_b32 {S(sT0)}, {S(sW)}, 2
    s_xor_b32 {S(sT0)}, {S(sT0)}, {S(sWI)}
    s_xor_b32 {S(sT0)}, {S(sT0)}, {S(sH)}
    s_xor_b32 {S(sT0)}, {S(sT0)}, 1
    s_and_b32 {S(sT0)}, {S(sT0)}, 1
    s_lshl_b32 {S(sT)}, {S(sWI)}, 1
    s_add_u32 {S(sT)}, {S(sT)}, {S(sT0)}
    s_lshr_b32 {S(sT0)}, {S(sJ)}, 3
    s_and_b32 {S(sT1)}, {S(sJ)}, 7
    ''')
    ssum(sA, (sT0, 3), (sK, 0))
    a(f's_mov_b32 {S(sR)}, {S(sT1)}')
    ssum(sF8, (sA, 3), (sR, 0))
    a(f'''
    s_cmp_lt_u32 {S(sA)}, 22
    s_cselect_b32 {S(sP1)}, 1, 0
    s_cmp_lt_u32 {S(sF8)}, 172
    s_cselect_b32 {S(sPROD)}, 1, 0
    s_cselect_b32 {S(sF8)}, {S(sF8)}, {S(sJ)}
    s_lshl_b32 {S(sT0)}, {S(sK)}, 1
    s_lshl_b32 {S(sCM)}, 0x00030003, {S(sT0)}
    s_mov_b32 {S(sCM+1)}, {S(sCM)}
    ''')

    pos = [vXF + i for i in range(7)]
    a(f'v_lshlrev_b32 {V(T[0])}, 2, v0')
    a(f's_cmp_eq_u32 {S(sW)}, 0\ns_cbranch_scc1 L_pos0')
    for i in range(7): a(f'v_add_u32 {V(pos[i])}, {i-3}, {V(T[0])}')
    for i in range(7): a(f'v_cvt_f32_u32 {V(pos[i])}, {V(pos[i])}')
    for i in range(0, 7, 2):
        j = min(i + 1, 6)
        a(f'v_cvt_pk_bf16_f32 {V(T[8+i//2])}, {V(pos[i])}, {V(pos[j])}')
    a(f'v_mov_b32 {V(T[1])}, {4 - 0x4280}')
    for i in range(7):
        a(f'v_bfe_u32 {V(pos[i])}, {V(T[8+i//2])}, {16*(i&1)}, 16')
        a(f'v_add_u32 {V(pos[i])}, {V(T[1])}, {V(pos[i])}')
    a('s_branch L_pos_done')
    a('L_pos0:')
    for i in range(7): a(f'v_add_u32 {V(pos[i])}, {i+1}, {V(T[0])}')
    a('L_pos_done:')
    b1, b2 = T[1], T[2]
    a(f'''
    v_and_b32 {V(b1)}, -2, {V(pos[2])}
    v_add_u32 {V(b1)}, -2, {V(b1)}
    v_and_b32 {V(b2)}, -2, {V(pos[3])}
    v_add_u32 {V(T[3])}, {V(b1)}, {V(b1)}
    v_add_u32 {V(T[4])}, {V(b2)}, {V(b2)}
    ''')
    for c in range(4):
        a(f'v_add_u32 {V(vGA+2*c)}, {TAB + c*TS}, {V(T[3])}')
        a(f'v_add_u32 {V(vGA+2*c+1)}, {TAB + c*TS}, {V(T[4])}')
    for i in range(3): a(f'v_sub_u32 {V(pos[i])}, {V(pos[i])}, {V(b1)}')
    for i in range(3, 7): a(f'v_sub_u32 {V(pos[i])}, {V(pos[i])}, {V(b2)}')
    a(f's_movk_i32 {S(sT0)}, 0x0202\nv_mov_b32 {V(T[3])}, 0x0100')
    for i in range(7): a(f'v_mad_u32_u24 {V(pos[i])}, {V(pos[i])}, {S(sT0)}, {V(T[3])}')
    for dst, lo, hi in ((0, 1, 0), (1, 2, 1), (2, 3, 2), (3, 4, 3), (4, 5, 4), (5, 6, 5)):
        a(f'v_lshl_or_b32 {V(vSEL+dst)}, {V(pos[hi])}, 16, {V(pos[lo])}')
    a(f'v_add_u32 {V(vSEL+2)}, 0x{(2*0x0202 - 2*0x02020000) & 0xffffffff:x}, {V(vSEL+2)}')
    a(f'''
    v_and_b32 {V(T[0])}, -4, v0
    v_lshlrev_b32 {V(T[0])}, 2, {V(T[0])}
    v_lshl_add_u32 {V(vR4W)}, v0, 5, {V(T[0])}
    v_add_u32 {V(vR4W)}, {R4 + 144}, {V(vR4W)}
    ''')
    a(f's_lshl_b32 {S(sT0)}, {S(sT)}, 6')
    a(f'v_add_u32 {V(T[0])}, {S(sT0)}, {V(vL)}')
    ssum(sINB, (sK, 18), (sCGL, 14), W_IN)
    ssum(sT1, (sK, 9), W_FL)
    ssum(sT2, (sK, 5), W_ST + 12)
    a(f'''
    v_lshlrev_b32 {V(vROW)}, 2, {V(T[0])}
    v_lshlrev_b32 {V(vUW)}, 3, {V(T[0])}
    v_add_u32 {V(vUW)}, {U + 480}, {V(vUW)}
    v_lshlrev_b32 {V(vST0)}, 4, {V(T[0])}
    v_add_u32 {V(vST1)}, {W_ST + 8192}, {V(vST0)}
    v_add_u32 {V(vST0)}, {W_ST}, {V(vST0)}
    s_lshl_b32 {S(sT0)}, {S(sCH0)}, 1
    v_lshl_add_u32 {V(vXG)}, {V(T[0])}, 12, {S(sT0)}
    v_lshrrev_b32 {V(T[1])}, 2, {V(T[0])}
    v_lshl_add_u32 {V(vFL)}, {V(T[1])}, 2, {S(sT1)}
    v_and_b32 {V(T[2])}, 3, {V(vL)}
    v_lshl_add_u32 {V(T[2])}, {V(T[2])}, 4, {S(sINB)}
    v_lshl_add_u32 {V(vIN)}, {V(T[1])}, 7, {V(T[2])}
    v_lshrrev_b32 {V(T[1])}, 4, {V(T[0])}
    v_lshl_add_u32 {V(vXC)}, {V(T[1])}, 8, {S(sT2)}
    ''')
    smul(sT1, sWI, US, U + 480)
    a(f'''
    v_and_b32 {V(T[0])}, 31, {V(vL)}
    v_lshrrev_b32 {V(T[1])}, 5, {V(vL)}
    s_lshl_b32 {S(sT0)}, {S(sW)}, 8
    v_lshl_add_u32 {V(T[2])}, {V(T[1])}, 4, {S(sT0)}
    s_movk_i32 {S(sT0)}, {RS}
    v_mad_u32_u24 {V(vKB)}, {V(T[0])}, {S(sT0)}, {V(T[2])}
    v_add_u32 {V(T[3])}, -16, {V(T[0])}
    v_cmp_lt_u32 vcc, 20, {V(T[0])}
    v_lshl_add_u32 {V(vPD)}, {V(vL)}, 4, {S(sT1)}
    v_cndmask_b32 {V(T[3])}, {V(T[0])}, {V(T[3])}, vcc
    v_mad_u32_u24 {V(vKA)}, {V(T[3])}, {S(sT0)}, {V(T[2])}
    v_add_u32 {V(vKA)}, {STAGE + 32*RS}, {V(vKA)}
    v_and_b32 {V(T[5])}, 15, {V(vL)}
    v_lshrrev_b32 {V(T[6])}, 4, {V(vL)}
    s_cmp_eq_u32 {S(sROLE)}, 1
    s_cbranch_scc1 L_h_setup
    ''')

    slw, slw1, slr, slr1, ina, ina1, tga, pfa_c = [vXN + i for i in range(8)]
    ssum(sT0, (sW, 11), SL)
    a(f'''
    v_lshrrev_b32 {V(T[0])}, 3, {V(vL)}
    v_and_b32 {V(T[1])}, 7, {V(vL)}
    v_xor_b32 {V(T[2])}, {V(T[6])}, {V(T[1])}
    v_lshl_add_u32 {V(T[2])}, {V(T[2])}, 4, {S(sT0)}
    v_lshl_add_u32 {V(slw)}, {V(T[0])}, 7, {V(T[2])}
    v_xor_b32 {V(slw1)}, 64, {V(slw)}
    v_and_b32 {V(T[2])}, 3, {V(vL)}
    v_bfe_u32 {V(T[3])}, {V(vL)}, 2, 1
    v_lshl_add_u32 {V(T[2])}, {V(T[2])}, 1, {V(T[3])}
    v_xor_b32 {V(T[3])}, {V(T[6])}, {V(T[2])}
    v_lshl_add_u32 {V(T[3])}, {V(T[3])}, 4, {S(sT0)}
    v_lshl_add_u32 {V(T[3])}, {V(T[2])}, 8, {V(T[3])}
    v_and_b32 {V(T[4])}, 1, {V(T[0])}
    v_lshl_add_u32 {V(slr)}, {V(T[4])}, 3, {V(T[3])}
    v_xor_b32 {V(slr1)}, 64, {V(slr)}
    ''')
    ssum(sT0, (sK, 18), (sJ, 9), (sW, 7), W_IN)
    a(f'''
    v_lshl_add_u32 {V(T[1])}, {V(T[1])}, 4, {S(sT0)}
    v_lshl_add_u32 {V(ina)}, {V(T[0])}, 14, {V(T[1])}
    v_add_u32 {V(ina1)}, 0x20000, {V(ina)}
    ''')
    ssum(sT0, (sK, 9), (sJ, 4), (sW, 2), W_FL)
    a(f'v_mov_b32 {V(vFLO)}, {S(sT0)}')
    ssum(sT0, (sW, 2), TG)
    a(f'v_mov_b32 {V(tga)}, {S(sT0)}')
    a('s_waitcnt vmcnt(2)\ns_branch L_kgen' if PF1 else 's_branch L_c_slice')

    a('L_h_setup:')
    ssum(sT1, (sWI, 2), FF)
    a(f'''
    v_mov_b32 {V(vFFW)}, {S(sT1)}
    s_lshr_b32 {S(sT1)}, {S(sWI)}, 1
    s_and_b32 {S(sT2)}, {S(sWI)}, 1
    ''')
    ssum(sT0, (2, 5), (sT1, 4), (sT2, 13), W_ST)
    a(f'v_mov_b32 {V(vSTP)}, {S(sT0)}')
    rk, pfi = vXN, vXN + 8
    ssum(sT0, (2, 3), (sWI, 1))
    a(f's_sub_u32 {S(sT0)}, 0xffff, {S(sT0)}\nv_sub_u32 {V(rk)}, {S(sT0)}, {V(T[1])}')
    ssum(sT0, (sH, 13), (sWI, 11), (sINB, 0))
    a(f'v_lshl_add_u32 {V(pfi)}, {V(T[5])}, 7, {S(sT0)}')
    if PF1: a('s_waitcnt vmcnt(5)')

    def table_setup():
        smul(sT0, sWI, TS, TAB + 8)
        a(f'''
        v_and_b32 {V(T[0])}, 31, {V(vL)}
        v_lshrrev_b32 {V(T[1])}, 5, {V(vL)}
        v_lshl_add_u32 {V(T[2])}, {V(T[1])}, 3, {S(sT0)}
        v_lshl_add_u32 {V(vTW1)}, {V(T[0])}, 4, {V(T[2])}
        v_sub_u32 {V(T[2])}, 3, {V(T[1])}
        v_lshlrev_b32 {V(T[2])}, {V(T[2])}, {V(T[0])}
        v_lshl_add_u32 {V(T[3])}, {V(T[1])}, 8, {S(sT0)}
        v_add_u32 {V(T[3])}, 512, {V(T[3])}
        v_add_u32 {V(vTW2)}, {V(T[2])}, {V(T[3])}
        v_mul_u32_u24 {V(T[2])}, 124, {V(T[1])}
        v_add3_u32 {V(vTW3)}, {V(vTW2)}, {V(T[2])}, 4
        v_lshl_add_u32 {V(vTW4)}, {V(T[0])}, 1, {V(T[3])}
        v_add_u32 {V(vTW4)}, 512, {V(vTW4)}
        ''')

    def wsrc_setup():
        ssum(sT0, (sA, 7), (sWI, 5))
        ssum(sT1, (sF8, 13), (sWI, 8))
        ssum(sT2, (sF8, 10), W_P1)
        a(f'''
        s_min_u32 {S(sT0)}, {S(sT0)}, 2720
        v_lshrrev_b32 {V(T[6])}, 1, {V(vL)}
        v_lshl_add_u32 {V(T[6])}, {S(sR)}, 6, {V(T[6])}
        v_and_b32 {V(T[7])}, 1, {V(vL)}
        v_lshl_add_u32 {V(T[7])}, {V(T[7])}, 4, {S(sT0)}
        s_movk_i32 {S(sT0)}, 2752
        v_mad_u32_u24 {V(vWS0)}, {V(T[6])}, {S(sT0)}, {V(T[7])}
        v_add_u32 {V(vWS1)}, {32*2752}, {V(vWS0)}
        v_and_b32 {V(T[6])}, 15, {V(vL)}
        v_lshrrev_b32 {V(T[7])}, 4, {V(vL)}
        v_lshl_add_u32 {V(vWDA)}, {V(T[6])}, 4, {S(sT1)}
        v_lshl_add_u32 {V(vWDA)}, {V(T[7])}, 10, {V(vWDA)}
        v_add_u32 {V(vWD1)}, 4096, {V(vWDA)}
        v_lshl_add_u32 {V(vP1R)}, {V(vL)}, 4, {S(sT2)}
        ''')

    def ffn_setup():
        smul(sT0, sWI, YTS, YX)
        ssum(sT1, (sWI, 12), WL)
        ssum(sT2, (sWI, 11), SL)
        a(f'''
        v_and_b32 {V(T[2])}, 3, {V(vL)}
        v_lshrrev_b32 {V(T[3])}, 2, {V(vL)}
        v_mul_u32_u24 {V(T[4])}, {YGS}, {V(T[2])}
        v_lshl_add_u32 {V(T[4])}, {V(T[3])}, 4, {V(T[4])}
        v_add_u32 {V(vY)}, {S(sT0)}, {V(T[4])}
        v_lshl_add_u32 {V(T[2])}, {V(T[2])}, 3, {S(sT1)}
        v_lshl_add_u32 {V(vWT)}, {V(T[3])}, 5, {V(T[2])}
        v_lshl_add_u32 {V(vWDR)}, {V(vL)}, 2, {S(sT2)}
        v_and_b32 {V(T[2])}, 255, v0
        v_lshrrev_b32 {V(T[4])}, 1, {V(T[2])}
        v_mul_u32_u24 {V(T[4])}, 6144, {V(T[4])}
        v_and_b32 {V(T[3])}, 1, {V(vL)}
        v_lshl_add_u32 {V(T[4])}, {V(T[3])}, 4, {V(T[4])}
        ''')
        ssum(sT1, (sF8, 5), W_FP)
        a(f'v_add_u32 {V(vFPA)}, {S(sT1)}, {V(T[4])}')
        ssum(sT0, (sA, 13), (sWI, 11), (sR, 7), W_P1)
        a(f'''
        s_lshl_b32 {S(sT1)}, {S(sR)}, 7
        v_lshrrev_b32 {V(T[2])}, 4, {V(vL)}
        v_lshl_add_u32 {V(T[2])}, {V(T[2])}, 3, {S(sT1)}
        v_lshl_add_u32 {V(vXS)}, {V(T[3])}, 6, {V(T[2])}
        v_bfe_u32 {V(T[2])}, {V(vL)}, 3, 1
        v_and_b32 {V(T[3])}, 7, {V(vL)}
        v_lshl_add_u32 {V(T[3])}, {V(T[3])}, 4, {S(sT0)}
        v_lshl_add_u32 {V(vP1W)}, {V(T[2])}, 10, {V(T[3])}
        ''')

    def conv_setup():
        a(f'v_and_b32 {V(T[5])}, 15, {V(vL)}\nv_lshrrev_b32 {V(T[6])}, 4, {V(vL)}')
        smul(sT0, sW, R4S, R4)
        a(f'v_lshlrev_b32 {V(T[3])}, 3, {V(T[6])}\nv_sub_u32 {V(T[3])}, {V(T[5])}, {V(T[3])}')
        for reg, k in ((vCA, 32), (vCA2, 28)):
            a(f'''
            v_add_u32 {V(T[4])}, {k}, {V(T[3])}
            v_lshrrev_b32 {V(T[7])}, 4, {V(T[4])}
            v_lshl_add_u32 {V(reg)}, {V(T[4])}, 3, {S(sT0)}
            v_lshl_add_u32 {V(reg)}, {V(T[7])}, 4, {V(reg)}
            ''')
        smul(sT0, sW, US, U)
        a(f'''
        v_lshl_add_u32 {V(T[3])}, {V(T[6])}, 4, {S(sT0)}
        v_lshl_add_u32 {V(vCB)}, {V(T[5])}, 5, {V(T[3])}
        ''')
        smul(sT0, sW, YCS, YX)
        a(f'''
        v_mul_u32_u24 {V(T[3])}, {YGS}, {V(T[6])}
        v_lshl_add_u32 {V(T[3])}, {V(T[5])}, 4, {V(T[3])}
        v_add_u32 {V(vY)}, {S(sT0)}, {V(T[3])}
        ''')

    def slice_work():
        a('s_waitcnt vmcnt(0)' if PF1 else 's_waitcnt vmcnt(7)')
        stamp(1)
        a(f'''
        ds_write_b128 {V(slw)}, {V(vD,4)}
        ds_write_b128 {V(slw1)}, {V(vD+4,4)} offset:1024
        ds_read_b64 {V(vG,2)}, {V(slr)}
        ds_read_b64 {V(vG+2,2)}, {V(slr)} offset:128
        ds_read_b64 {V(vG+4,2)}, {V(slr1)}
        ds_read_b64 {V(vG+6,2)}, {V(slr1)} offset:128
        s_waitcnt lgkmcnt(0)
        global_store_dwordx4 {V(ina)}, {V(vG,4)}, {S(sWS,2)}
        global_store_dwordx4 {V(ina1)}, {V(vG+4,4)}, {S(sWS,2)}
        ''')


    S1, S2, S3, S4 = vXF, vXF + 1, vXF + 2, vXF + 3

    def red32(regs):
        for m in ('row_shr:1', 'row_shr:2', 'row_shr:4', 'row_shr:8'):
            for r in regs: a(f'v_add_f32_dpp {V(r)}, {V(r)}, {V(r)} {m} row_mask:0xf bank_mask:0xf')
        for r in regs: a(f'v_add_f32_dpp {V(r)}, {V(r)}, {V(r)} row_bcast:15 row_mask:0xa bank_mask:0xf')

    def ln_work():
        for r in (S1, S2, S3, S4): a(f'v_mov_b32 {V(r)}, 0')
        NP = 0 if PF1 else 7
        a(f's_setprio 2\ns_waitcnt vmcnt({3 + NP})')
        for i in range(8): a(f'v_dot2_f32_bf16 {V(S4)}, {V(vG+i)}, {S(sONES)}, {V(S4)}')
        red32([S4])
        a(f's_waitcnt vmcnt({1 + NP})')
        stamp(1)
        nlate = 0
        if o['prefetch']:
            a('s_mov_b64 exec, 0xffff')
            a(f'global_load_dword {V(vPFD)}, {V(pfi)}, {S(sWS,2)} nt'); nlate += 1
            alllanes()
        for i in range(8):
            a(f'v_dot2_f32_bf16 {V(S1)}, {V(vD+i)}, {S(sONES)}, {V(S1)}')
            a(f'v_dot2_f32_bf16 {V(S2)}, {V(vD+i)}, {V(vD+i)}, {V(S2)}')
            a(f'v_dot2_f32_bf16 {V(S3)}, {V(vD+i)}, {V(vG+i)}, {V(S3)}')
        red32([S1, S2, S3])
        t = T[0]; g = vE
        a(f'''
        v_mul_f32 {V(S1)}, 0x3b000000, {V(S1)}
        v_mul_f32 {V(S2)}, 0x3b000000, {V(S2)}
        s_waitcnt vmcnt({nlate + NP})
        v_fma_f32 {V(S2)}, -{V(S1)}, {V(S1)}, {V(S2)}
        v_readfirstlane_b32 {S(sTAG)}, {V(vEP)}
        v_max_f32 {V(S2)}, 0, {V(S2)}
        v_cvt_pk_bf16_f32 {V(t)}, {V(S1)}, {V(S2)}
        s_add_u32 {S(sTAG)}, {S(sTAG)}, 16
        v_and_b32 {V(t)}, {S(sHI)}, {V(t)}
        s_and_b32 {S(sTAG)}, {S(sTAG)}, -16
        v_add_f32 {V(t)}, 0x3727c5ac, {V(t)}
        s_or_b32 {S(sTAGX)}, {S(sTAG)}, {S(sXCC)}
        v_cvt_pk_bf16_f32 {V(t)}, {V(t)}, {V(t)}
        v_and_b32 {V(t)}, {S(sHI)}, {V(t)}
        v_sqrt_f32 {V(t)}, {V(t)}
        v_mov_b32 {V(g+3)}, {S(sTAGX)}
        v_cvt_pk_bf16_f32 {V(g+1)}, {V(S1)}, {V(t)}
        v_and_b32 {V(t)}, {S(sHI)}, {V(g+1)}
        v_lshlrev_b32 {V(t+1)}, 16, {V(g+1)}
        v_rcp_f32 {V(t)}, {V(t)}
        v_fma_f32 {V(S3)}, -{V(t+1)}, {V(S4)}, {V(S3)}
        v_readlane_b32 {S(sT0)}, {V(g+1)}, 31
        v_mul_f32 {V(S3)}, {V(S3)}, {V(t)}
        v_cvt_pk_bf16_f32 {V(S3)}, {V(S3)}, {V(S3)}
        v_mov_b32 {V(g)}, {S(sT0)}
        v_ashrrev_i32 {V(t)}, 31, {V(S3)}
        v_or_b32 {V(t)}, 0x80000000, {V(t)}
        v_xor_b32 {V(t)}, {V(t)}, {V(S3)}
        v_and_or_b32 {V(t)}, {V(t)}, {S(sHI)}, {V(rk)}
        s_add_u32 {S(sT1)}, {S(sTAG)}, 1
        v_readlane_b32 {S(sT0)}, {V(t)}, 31
        v_mov_b32 {V(t+2)}, {S(sT1)}
        v_max_u32 {V(g+2)}, {S(sT0)}, {V(t)}
        ''')
        lane63()
        a(f'global_store_dwordx4 {V(vSTP)}, {V(g,4)}, {S(sWS,2)} sc1')
        a(f'ds_write_b32 {V(vFFW)}, {V(t+2)} offset:{TG - FF}')
        alllanes()
        a(f"s_setprio 0\ns_waitcnt vmcnt({1 + nlate}) lgkmcnt(0)")
        stamp(2)

    if not PF1:
        ln_work()
        a('s_branch L_kgen\nL_c_slice:')
        slice_work()
        a('s_waitcnt vmcnt(2)')
    a('L_kgen:')
    are, aim, bre, bim, cre, cim, dt = [vP + i for i in range(7)]
    t0 = vP + 7
    z1, z2, z4, ZZ, w1, w2, w4 = [vP + 8 + 2 * i for i in range(7)]
    hq = [vP + 24 + 2 * i for i in range(8)]
    lq = [vP + 40 + 2 * i for i in range(8)]
    cv = [vP + 56 + i for i in range(8)]
    a(f'''
    v_mov_b32 {V(t0)}, 0x3fb8aa3b
    v_mul_f32 {V(dt)}, {V(dt)}, {V(t0)}
    v_exp_f32 {V(dt)}, {V(dt)}
    v_mul_f32 {V(are)}, {V(t0)}, {V(are)}
    v_cvt_pk_bf16_f32 {V(dt)}, {V(dt)}, {V(dt)}
    v_mul_f32 {V(aim)}, 0.15915494, {V(aim)}
    v_and_b32 {V(dt)}, {S(sHI)}, {V(dt)}
    v_mul_f32 {V(are)}, {V(dt)}, {V(are)}
    v_mul_f32 {V(aim)}, {V(dt)}, {V(aim)}
    v_exp_f32 {V(cv[0])}, {V(are)}
    v_fract_f32 {V(cv[1])}, {V(aim)}
    v_mul_f32 {V(are)}, 0x43800000, {V(are)}
    v_cos_f32 {V(z1)}, {V(cv[1])}
    v_mul_f32 {V(aim)}, 0x43800000, {V(aim)}
    v_sin_f32 {V(z1+1)}, {V(cv[1])}
    v_fract_f32 {V(cv[3])}, {V(aim)}
    v_exp_f32 {V(cv[2])}, {V(are)}
    v_mul_f32 {V(z1)}, {V(cv[0])}, {V(z1)}
    v_cos_f32 {V(ZZ)}, {V(cv[3])}
    v_mul_f32 {V(z1+1)}, {V(cv[0])}, {V(z1+1)}
    v_sin_f32 {V(ZZ+1)}, {V(cv[3])}
    v_mul_f32 {V(bre)}, {V(dt)}, {V(bre)}
    v_mul_f32 {V(bim)}, {V(dt)}, {V(bim)}
    ''')
    cmul(z2, z1, z1)
    a(f'v_mul_f32 {V(ZZ)}, {V(cv[2])}, {V(ZZ)}\nv_mul_f32 {V(ZZ+1)}, {V(cv[2])}, {V(ZZ+1)}')
    cmul(z4, z2, z2)
    cmul(hq[0], cre, bre)
    ci = [0]; m0_hi = [False]

    def put(row, reg, neg):
        c = cv[ci[0] % 8]; ci[0] += 1
        a(f"v_cvt_pk_bf16_f32 {V(c)}, {V(reg)}, {'-' if neg else ''}{V(reg+1)}")
        off = row * RS - (30 * RS if m0_hi[0] else 0)
        assert 0 <= off < 65536, (row, off)
        a(f'ds_write_addtid_b32 {V(c)} offset:{STAGE + off}')
    cmul(w1, z4, z4)
    cmul(hq[1], hq[0], z1)
    cmul(w2, w1, w1)
    put(1, w1, False)
    cmul(hq[2], hq[0], z2)
    cmul(lq[3], w2, w1)
    put(2, w2, False)
    cmul(w4, w2, w2)
    put(3, lq[3], False)
    cur = {1: w1, 2: w2, 3: lq[3], 4: w4}
    put(4, w4, False)

    def lo_step(j):
        d = lq[j % 8]
        cmul(d, cur[j - 4], w4); cur[j] = d
        put(j, d, False)
    def inject(j):
        if not PF1: return
        if j == o['jc']:
            a(f's_cmp_eq_u32 {S(sROLE)}, 1\ns_cbranch_scc1 L_noslice'); slice_work(); a('L_noslice:')
        if j == o['jh']:
            a(f's_cmp_eq_u32 {S(sROLE)}, 0\ns_cbranch_scc1 L_noln'); ln_work(); a('L_noln:')
    inject(4)
    for j in range(5, o['jf']):
        lo_step(j); inject(j)
    a(f's_cmp_eq_u32 {S(sROLE)}, 1\ns_cbranch_scc1 L_noflag')
    spin_init()
    a(f'''
    L_tagspin:
    ds_read_b32 {V(T[0])}, {V(tga)}
    s_waitcnt lgkmcnt(0)
    v_readfirstlane_b32 {S(sTAG)}, {V(T[0])}
    s_cmp_lg_u32 {S(sTAG)}, 0
    s_cbranch_scc1 L_tagok
    ''')
    spin_next('L_tagspin')
    a(f'''
    L_tagok:
    s_and_b32 {S(sTAG)}, {S(sTAG)}, -16
    s_or_b32 {S(sTAGX)}, {S(sTAG)}, {S(sXCC)}
    v_mov_b32 {V(T[0])}, {S(sTAGX)}
    s_mov_b64 exec, 1
    s_waitcnt vmcnt(0)
    global_store_dword {V(vFLO)}, {V(T[0])}, {S(sWS,2)}
    s_mov_b64 exec, -1
    ''')
    stamp(2)
    a('L_noflag:')
    for j in range(o['jf'], 30): lo_step(j)
    ssum(sT0, (sW, 8), 30 * RS)
    a(f's_mov_b32 m0, {S(sT0)}')
    m0_hi[0] = True
    for j in range(30, 32): lo_step(j)
    put(32, hq[0], True); put(33, hq[1], True); put(34, hq[2], True)
    cmul(hq[3], hq[1], z2); cmul(hq[4], hq[0], z4)
    put(35, hq[3], True); put(36, hq[4], True)
    a(f'global_load_dword {V(vPFD)}, {V(vFL)}, {S(sWS,2)} sc1')
    cmul(hq[5], hq[1], z4); cmul(hq[6], hq[2], z4); cmul(hq[7], hq[3], z4)
    put(37, hq[5], True); put(38, hq[6], True); put(39, hq[7], True)
    A0, A2, A4, A6, B0, B4, C0, C4 = lq
    cmul(A0, hq[0], ZZ); cmul(A2, hq[2], ZZ); cmul(A4, hq[4], ZZ); cmul(A6, hq[6], ZZ)
    put(40, A0, True)
    cmul(B0, A0, ZZ); put(41, A2, True); cmul(B4, A4, ZZ); put(42, A4, True)
    cmul(C0, B0, ZZ); put(43, A6, True); cmul(C4, B4, ZZ); put(44, B0, True)
    cmul(hq[1], C0, ZZ); put(45, B4, True); put(46, C0, True)
    cmul(hq[2], hq[1], ZZ); put(47, C4, True); put(48, hq[1], True)
    cmul(hq[3], hq[2], ZZ); put(49, hq[2], True)
    cmul(hq[4], hq[3], ZZ); put(50, hq[3], True)
    cmul(hq[5], hq[4], ZZ); put(51, hq[4], True); put(52, hq[5], True)
    stamp(3)

    KD = vP; KF = vP + 16; NB = o['nb']

    def kread(sidx):
        r = KF + 8 * (sidx % NB)
        a(f'ds_read_b128 {V(r,4)}, {V(vKA)} offset:{32*sidx}')
        a(f'ds_read_b128 {V(r+4,4)}, {V(vKB)} offset:{32*sidx}')

    def kmfma(cinit, shadow=()):
        for sidx in range(8):
            if sidx >= 2 and sidx - 2 < len(shadow): shadow[sidx - 2]()
            outstanding = min(8, sidx + NB) - sidx - 1
            a(f's_waitcnt lgkmcnt({2*outstanding})')
            r = KF + 8 * (sidx % NB)
            a(f"v_mfma_f32_32x32x16_bf16 {V(KD,16)}, {V(r,4)}, {V(r+4,4)}, {'0' if (sidx == 0 and not cinit) else V(KD,16)}")
            if sidx + NB < 8: kread(sidx + NB)

    def fetch_tile(tag):
        a(f's_waitcnt vmcnt(0)\nv_cmp_ne_u32 vcc, {S(sTAGX)}, {V(vPFD)}')
        if o['force_slow']: a(f's_branch L_gather{tag}')
        a(f's_cbranch_vccz L_fast{tag}')
        spin_init()
        a(f'''
        L_flagspin{tag}:
        global_load_dword {V(vPFD)}, {V(vFL)}, {S(sWS,2)} sc1
        global_load_dword {V(T[0])}, {V(vXC)}, {S(sWS,2)} sc1
        s_waitcnt vmcnt(0)
        v_cmp_ne_u32 vcc, {S(sTAGX)}, {V(vPFD)}
        s_cbranch_vccz L_fast{tag}
        v_xor_b32 {V(T[0])}, {S(sTAGX)}, {V(T[0])}
        v_add_u32 {V(T[0])}, -1, {V(T[0])}
        v_cmp_gt_u32 vcc, 15, {V(T[0])}
        s_cbranch_vccnz L_gather{tag}
        ''')
        spin_next(f'L_flagspin{tag}')
        a(f'L_gather{tag}:')
        for r in range(4):
            a(f'global_load_dwordx2 {V(vD+2*r,2)}, {V(vXG)}, {S(sX,2)} offset:{r*1024}')
        a(f'''
        s_branch L_stats{tag}
        L_fast{tag}:
        global_load_dwordx4 {V(vD,4)}, {V(vIN)}, {S(sWS,2)} sc1
        global_load_dwordx4 {V(vD+4,4)}, {V(vIN)}, {S(sWS,2)} offset:64 sc1
        L_stats{tag}:
        global_load_dwordx4 {V(vG,4)}, {V(vST0)}, {S(sWS,2)} sc1
        global_load_dwordx4 {V(vG+4,4)}, {V(vST1)}, {S(sWS,2)} sc1
        ''')

    a(f's_cmp_eq_u32 {S(sROLE)}, 1\ns_cbranch_scc1 L_h_k')
    for i in range(NB): kread(i)
    kmfma(False)
    a(f'v_mov_b32 {V(T[1])}, 1')
    for i in range(3): a(f'ds_write_b128 {V(vPD)}, {V(KD+4*i,4)} offset:{1024*i}')
    a(f's_mov_b64 exec, 1\nds_write_b32 {V(tga)}, {V(T[1])} offset:{PF - TG}\ns_mov_b64 exec, -1')
    stamp(4)
    fetch_tile('c')
    conv_setup()
    a('s_branch L_b3')
    a('L_h_k:')
    spin_init()
    a(f'''
    L_pspin:
    ds_read_b32 {V(T[1])}, {V(vFFW)} offset:{PF - FF}
    ''')
    for i in range(3): a(f'ds_read_b128 {V(KD+4*i,4)}, {V(vPD)} offset:{1024*i}')
    for i in range(NB - 1): kread(i)
    a(f'''
    s_waitcnt lgkmcnt({2*(NB-1) + 3})
    v_readfirstlane_b32 {S(sT0)}, {V(T[1])}
    s_cmp_lg_u32 {S(sT0)}, 0
    s_cbranch_scc1 L_pok
    s_waitcnt lgkmcnt(0)
    ''')
    spin_next('L_pspin')
    a('L_pok:')
    kread(NB - 1)
    kmfma(True, (table_setup, wsrc_setup))
    for i in range(6): a(f'v_cvt_pk_bf16_f32 {V(T[i])}, {V(KD+2*i)}, {V(KD+2*i+1)}')
    a(f'''
    ds_write_b64 {V(vTW1)}, {V(T[0],2)}
    ds_write_b32 {V(vTW2)}, {V(T[2])}
    ds_write_b32 {V(vTW3)}, {V(T[3])}
    ds_write_b16 {V(vTW4)}, {V(T[4])}
    ds_write_b16_d16_hi {V(vTW4)}, {V(T[4])} offset:64
    ds_write_b16 {V(vTW4)}, {V(T[5])} offset:128
    ds_write_b16_d16_hi {V(vTW4)}, {V(T[5])} offset:192
    ''')
    stamp(4)
    fetch_tile('h')
    a('L_b3:\ns_waitcnt lgkmcnt(0)')
    stamp(5)
    a('s_barrier')

    def w_dma():
        ssum(sT0, (sWI, 12), WL)
        for t in range(4):
            a(f's_add_u32 m0, {S(sT0)}, {1024*t}')
            a(f'global_load_lds_dwordx4 {V((vWS0, vWS1)[t&1])}, {S((sWG, sWU)[t>>1],2)}')
        ssum(sT0, (sWI, 11), SL)
        a(f's_mov_b32 m0, {S(sT0)}')
        a(f'global_load_lds_dwordx4 {V(vWDA)}, {S(sWD,2)}')
        a(f's_add_u32 m0, {S(sT0)}, 1024')
        a(f'global_load_lds_dwordx4 {V(vWD1)}, {S(sWD,2)}')
        a(f"global_load_dword {V(vPFW)}, {V(vP1R)}, {S(sWS,2)}{' nt' if o['p1nt'] else ''}")

    XP = vG
    def r4_build(tag, mid=None):
        Wq = vP; Q = vP + 16
        for c in range(4):
            a(f'ds_read2_b32 {V(Wq+4*c,2)}, {V(vGA+2*c)} offset0:0 offset1:1')
            a(f'ds_read2_b32 {V(Wq+4*c+2,2)}, {V(vGA+2*c+1)} offset0:0 offset1:1')
        if tag == 'c': a(f'''
        s_cmp_lg_u32 {S(sW)}, 3
        s_cbranch_scc1 L_nopad{tag}
        v_bfe_u32 {V(T[0])}, {V(vL)}, 3, 2
        v_and_b32 {V(T[1])}, 7, {V(vL)}
        v_mul_u32_u24 {V(T[0])}, {R4S}, {V(T[0])}
        v_lshl_add_u32 {V(T[0])}, {V(T[1])}, 4, {V(T[0])}
        ''')
        if tag == 'c':
            for i in range(4): a(f'v_mov_b32 {V(T[4+i])}, 0')
        if tag == 'c': a(f'''
        s_mov_b32 exec_hi, 0
        ds_write_b128 {V(T[0])}, {V(T[4],4)} offset:{R4}
        s_mov_b64 exec, -1
        s_waitcnt lgkmcnt(1)
        L_nopad{tag}:
        ''')
        if mid: mid()
        for c in range(4):
            W0, W1, W2, W3 = [Wq + 4 * c + i for i in range(4)]
            q = Q + 8 * c
            if not mid: a('s_waitcnt lgkmcnt(6)')
            a(f'''
            v_perm_b32 {V(q+0)}, {V(W2)}, {V(W1)}, {V(vSEL+2)}
            v_perm_b32 {V(q+1)}, {V(W1)}, {V(W0)}, {V(vSEL+0)}
            v_perm_b32 {V(q+2)}, {V(W3)}, {V(W2)}, {V(vSEL+3)}
            v_perm_b32 {V(q+3)}, {V(W1)}, {V(W0)}, {V(vSEL+1)}
            v_mov_b32 {V(q+5)}, {V(q+0)}
            ds_write_b128 {V(vR4W)}, {V(q,4)} offset:{c*R4S}
            v_perm_b32 {V(q+4)}, {V(W3)}, {V(W2)}, {V(vSEL+4)}
            v_perm_b32 {V(q+6)}, {V(W3)}, {V(W2)}, {V(vSEL+5)}
            v_mov_b32 {V(q+7)}, {V(q+2)}
            ds_write_b128 {V(vR4W)}, {V(q+4,4)} offset:{c*R4S + 16}
            ''')

    def normalise(tag):
        if tag == 'h':
            a(f's_cmp_eq_u32 {S(sP1)}, 0\ns_cbranch_scc1 L_nw0')
            w_dma()
            ffn_setup()
            a("s_waitcnt vmcnt(7)\ns_branch L_nw1\nL_nw0:")
            ffn_setup()
            a("s_waitcnt vmcnt(0)\nL_nw1:")
        else:
            a('s_waitcnt vmcnt(0)')
        spin_init()
        a(f'''
        L_statspin{tag}:
        v_xor_b32 {V(T[0])}, {S(sTAG)}, {V(vG+3)}
        v_xor_b32 {V(T[1])}, {S(sTAG)}, {V(vG+7)}
        v_or_b32 {V(T[0])}, {V(T[0])}, {V(T[1])}
        v_cmp_lt_u32 vcc, 15, {V(T[0])}
        s_cbranch_vccz L_statok{tag}
        global_load_dwordx4 {V(vG,4)}, {V(vST0)}, {S(sWS,2)} sc1
        global_load_dwordx4 {V(vG+4,4)}, {V(vST1)}, {S(sWS,2)} sc1
        s_waitcnt vmcnt(0)
        ''')
        spin_next(f'L_statspin{tag}')
        a(f'L_statok{tag}:')
        stamp(7)
        a(f'''
        v_cmp_ne_u32 vcc, {S(sTAGX)}, {V(vG+3)}
        s_and_b64 vcc, vcc, {S(sCM,2)}
        s_cbranch_vccz L_local{tag}
        v_mov_b32 {V(T[0])}, {FF}
        v_mov_b32 {V(T[1])}, 1
        ds_write_b32 {V(T[0])}, {V(T[1])}
        s_waitcnt lgkmcnt(0)
        L_local{tag}:
        ''')
        stq = [vG, vG + 1, vG + 4, vG + 5]
        rho = [T[1], T[3], T[5], T[7]]; mu = [T[0], T[2], T[4], T[6]]
        key = T[8]
        for r in range(4): a(f'v_and_b32 {V(rho[r])}, {S(sHI)}, {V(stq[r])}')
        a(f'v_max_u32 {V(key)}, {V(vG+2)}, {V(vG+6)}')
        for r in range(4):
            a(f'v_rcp_f32 {V(rho[r])}, {V(rho[r])}')
            a(f'v_lshlrev_b32 {V(mu[r])}, 16, {V(stq[r])}')
        kred = ['row_shr:1 row_mask:0xf', 'row_shr:2 row_mask:0xf', 'row_shr:4 row_mask:0xf', 'row_shr:8 row_mask:0xf',
                'row_bcast:15 row_mask:0xa', 'row_bcast:31 row_mask:0xc']
        def kr(i): a(f'v_max_u32_dpp {V(key)}, {V(key)}, {V(key)} {kred[i]} bank_mask:0xf')
        for r in range(4):
            a(f'''
            v_mul_f32_e64 {V(mu[r])}, -{V(mu[r])}, {V(rho[r])}
            v_lshlrev_b32 {V(vXF+4*r)}, 16, {V(vD+2*r)}
            v_and_b32 {V(vXF+4*r+1)}, {S(sHI)}, {V(vD+2*r)}
            v_lshlrev_b32 {V(vXF+4*r+2)}, 16, {V(vD+2*r+1)}
            v_and_b32 {V(vXF+4*r+3)}, {S(sHI)}, {V(vD+2*r+1)}
            ''')
            kr(r)
            for c in range(4): a(f'v_fma_f32 {V(vXN+4*r+c)}, {V(vXF+4*r+c)}, {V(rho[r])}, {V(mu[r])}')
        kr(4)
        ssum(sT0, (sW, 2), AM)
        for c in range(4):
            a(f'''
            v_cvt_pk_bf16_f32 {V(XP+2*c)}, {V(vXN+c)}, {V(vXN+4+c)}
            v_cvt_pk_bf16_f32 {V(XP+2*c+1)}, {V(vXN+8+c)}, {V(vXN+12+c)}
            ds_write_b64 {V(vUW)}, {V(XP+2*c,2)} offset:{c*US}
            ''')
            if c == 0: kr(5)
            if c == 1: a(f'v_mov_b32 {V(T[9])}, {S(sT0)}')
        lane63()
        a(f'ds_write_b32 {V(T[9])}, {V(key)}')
        alllanes()

    a(f's_cmp_eq_u32 {S(sROLE)}, 1\ns_cbranch_scc1 L_h_r4')
    r4_build('c'); stamp(6); normalise('c')
    a('s_branch L_b4\nL_h_r4:')
    if o['hnormfirst']:
        def mid():
            normalise('h')
            a('s_waitcnt lgkmcnt(5)'); stamp(6)
        r4_build('h', mid)
    else:
        r4_build('h'); stamp(6); normalise('h')
    a('L_b4:')
    a(f'v_mov_b32 {V(T[9])}, {AM}\ns_waitcnt lgkmcnt(0)')
    stamp(8)
    a('s_barrier')

    def read_idx():
        a(f'''
        ds_read_b128 {V(T[0],4)}, {V(T[9])}
        ds_read_b128 {V(T[4],4)}, {V(T[9])} offset:16
        s_waitcnt lgkmcnt(0)
        v_max3_u32 {V(T[0])}, {V(T[0])}, {V(T[1])}, {V(T[2])}
        v_max3_u32 {V(T[3])}, {V(T[3])}, {V(T[4])}, {V(T[5])}
        v_max3_u32 {V(T[0])}, {V(T[0])}, {V(T[6])}, {V(T[7])}
        v_max_u32 {V(T[0])}, {V(T[0])}, {V(T[3])}
        v_readfirstlane_b32 {S(sKEY)}, {V(T[0])}
        s_andn2_b32 {S(sIDX)}, 2047, {S(sKEY)}
        s_lshr_b32 {S(sT0)}, {S(sIDX)}, 8
        s_lshr_b32 {S(sT1)}, {S(sIDX)}, 9
        s_xor_b32 {S(sT0)}, {S(sT0)}, {S(sT1)}
        s_xor_b32 {S(sT0)}, {S(sT0)}, {S(sH)}
        s_andn2_b32 {S(sOWN)}, 1, {S(sT0)}
        ''')

    def stat_addr(dst):
        a(f's_lshr_b32 {S(sT0)}, {S(sIDX)}, 2\ns_bfe_u32 {S(sT1)}, {S(sIDX)}, 0x10001\ns_and_b32 {S(sT2)}, {S(sIDX)}, 1')
        ssum(sT0, (sT0, 4), (sT1, 13), (sT2, 2), W_ST)
        a(f'v_mov_b32 {V(dst)}, {S(sT0)}')

    a(f's_cmp_eq_u32 {S(sROLE)}, 1\ns_cbranch_scc1 L_helper')

    ACC = vP; FR = vP + 16; NFR = 28
    stamp(10)
    a(f's_setprio 1\ns_cmp_eq_u32 {S(sH)}, 0\ns_cbranch_scc0 L_conv1')

    def conv(h):
        tl = tiles(h)
        ops = []
        for c0 in range(8):
            lst = [(i, c1, q - c1) for i, q in enumerate(tl) for c1 in range(q + 1)]
            have = set(); seq = []
            while lst:
                def cost(x):
                    base = (2 * (('A', x[1]) not in have) + (('B', x[2]) not in have), bool(seq) and seq[-1][0] == x[0], max(x[1], x[2]))
                    return ((x[0],) + base) if c0 == 7 else base
                x = min(lst, key=cost); lst.remove(x); seq.append(x); have.add(('A', x[1])); have.add(('B', x[2]))
            for i, c1, qp in seq: ops.append((i, ('A', c0, c1), ('B', c0, qp)))
        order = []; last = {}; lastacc = {}
        for n, (i, ak, bk) in enumerate(ops):
            lastacc[i] = n
            for k in (bk, ak):
                if k not in last: order.append(k)
                last[k] = n
        L = []
        for k in order: L += [(k, 0), (k, 1)] if k[0] == 'A' else [(k, 0)]
        endidx = {}
        for j, (k, p) in enumerate(L): endidx[k] = j + 1
        need = []; m = 0
        for (i, ak, bk) in ops:
            m = max(m, endidx[ak], endidx[bk]); need.append(m)
        free = list(range(NFR)); slot = {}
        st = dict(issued=0, done=0)
        seqpos = []
        nds = [0]
        donepos = [0]
        MAXOUT = o['maxout']; G = o['group']

        def can_issue():
            if st['issued'] >= len(L) or nds[0] - donepos[0] >= MAXOUT: return False
            k, p = L[st['issued']]
            return p == 1 or bool(free)

        def issue():
            k, p = L[st['issued']]
            if p == 0: slot[k] = free.pop(0)
            r = FR + 4 * slot[k]
            if k[0] == 'A':
                a(f'ds_read_b64 {V(r+2*p,2)}, {V(vCA2 if p else vCA)} offset:{CAS*(8*k[2] + k[1])}')
            else:
                a(f'ds_read_b128 {V(r,4)}, {V(vCB)} offset:{2*(224 + 256*k[2] - 32*k[1])}')
            st['issued'] += 1; nds[0] += 1; seqpos.append(nds[0])
        started = set(); written = set()
        while can_issue(): issue()
        for n, (i, ak, bk) in enumerate(ops):
            if need[n] > st['done']:
                while st['issued'] < need[n]:
                    assert nds[0] - donepos[0] < 15
                    issue()
                tgt = need[n]
                for m2 in range(n, min(n + G, len(ops))):
                    if need[m2] <= st['issued'] - o['minfly'] or need[m2] <= len(L) == st['issued']: tgt = max(tgt, need[m2])
                a(f's_waitcnt lgkmcnt({nds[0] - seqpos[tgt-1]})'); st['done'] = tgt; donepos[0] = seqpos[tgt - 1]
            acc = ACC + 4 * i
            cin = V(acc, 4) if i in started else '0'
            started.add(i)
            a(f'v_mfma_f32_16x16x32_bf16 {V(acc,4)}, {V(FR+4*slot[ak],4)}, {V(FR+4*slot[bk],4)}, {cin}')
            for k in (ak, bk):
                if last[k] == n: free.append(slot[k])
            budget = 2
            if n + 1 < len(ops) and need[n + 1] > st['done']: budget = 1
            for i2 in range(4):
                if i2 not in written and lastacc[i2] + 4 <= n and budget > 0 and nds[0] - donepos[0] < 15:
                    a(f'ds_write_b128 {V(vY)}, {V(ACC+4*i2,4)} offset:{i2*YTS}')
                    written.add(i2); nds[0] += 1; budget -= 1
            while budget > 0 and can_issue():
                issue(); budget -= 1
        for i2 in range(4):
            if i2 not in written: a(f'ds_write_b128 {V(vY)}, {V(ACC+4*i2,4)} offset:{i2*YTS}')
    conv(0)
    a('s_branch L_convdone\nL_conv1:')
    conv(1)
    a('L_convdone:\ns_waitcnt lgkmcnt(0)')
    stamp(9)
    a(f's_barrier\ns_cmp_lg_u32 {S(sW)}, 0\ns_cbranch_scc1 L_exit')
    a(f'''
    s_cmp_lg_u32 s2, 0
    s_cbranch_scc1 L_noep
    v_mov_b32 {V(T[10])}, 0
    v_mov_b32 {V(T[11])}, {S(sTAG)}
    s_mov_b64 exec, 1
    global_store_dword {V(T[10])}, {V(T[11])}, {S(sWS,2)} sc1
    s_mov_b64 exec, -1
    L_noep:
    ''')
    read_idx()
    a(f's_cmp_eq_u32 {S(sOWN)}, 0\ns_cbranch_scc1 L_exit\ns_setprio 3')
    F = vP
    par, xo, fpa = T[12], T[13], T[14]
    y0, y1, n0, n1, d0, d1, sg, xv, sv, x0, x1 = [vXF + i for i in range(11)]
    a(f'v_and_b32 {V(par)}, 1, {V(vL)}')
    ssum(sT0, (sIDX, 10), (sCH0, 1))
    a(f'v_lshl_add_u32 {V(xo)}, {V(par)}, 2, {S(sT0)}')
    stat_addr(T[10])
    a(f'global_load_dword {V(xv)}, {V(xo)}, {S(sX,2)}')
    a(f'global_load_dword {V(sv)}, {V(T[10])}, {S(sWS,2)} sc1')
    a(f's_lshr_b32 {S(sT0)}, {S(sCH0)}, 2')
    smul(sT0, sT0, 6144, W_FP + 3072)
    a(f'v_lshl_add_u32 {V(fpa)}, {V(vL)}, 4, {S(sT0)}')
    a(f'''
    s_lshr_b32 {S(sT1)}, {S(sIDX)}, 9
    s_mul_i32 {S(sT1)}, {S(sT1)}, {YTS}
    s_bfe_u32 {S(sT0)}, {S(sIDX)}, 0x20002
    s_mul_i32 {S(sT0)}, {S(sT0)}, {YGS}
    s_add_u32 {S(sT1)}, {S(sT1)}, {S(sT0)}
    s_bfe_u32 {S(sT0)}, {S(sIDX)}, 0x40004
    s_and_b32 {S(sT2)}, {S(sIDX)}, 3
    ''')
    ssum(sT1, (sT1, 0), (sT0, 4), (sT2, 2), YX)
    a(f'''
    v_mul_u32_u24 {V(T[0])}, {2*YCS}, {V(par)}
    v_add_u32 {V(T[0])}, {S(sT1)}, {V(T[0])}
    ds_read_b32 {V(y0)}, {V(T[0])}
    ds_read_b32 {V(y1)}, {V(T[0])} offset:{YCS}
    s_and_b32 {S(sT0)}, {S(sKEY)}, {S(sHI)}
    s_xor_b32 {S(sT1)}, {S(sT0)}, 0x80000000
    s_xor_b32 {S(sT2)}, {S(sT0)}, {S(sHI)}
    s_bitcmp1_b32 {S(sT0)}, 31
    s_cselect_b32 {S(sT0)}, {S(sT1)}, {S(sT2)}
    v_mov_b32 {V(T[2])}, 0xbfb8aa3b
    v_mul_f32 {V(sg)}, {S(sT0)}, {V(T[2])}
    v_exp_f32 {V(sg)}, {V(sg)}
    v_cmp_eq_u32 vcc, 0, {V(par)}
    v_add_f32 {V(sg)}, 1.0, {V(sg)}
    v_rcp_f32 {V(sg)}, {V(sg)}
    v_mov_b32 {V(F+20)}, 0
    v_cvt_pk_bf16_f32 {V(sg)}, {V(sg)}, {V(sg)}
    v_mov_b32 {V(F+21)}, 0
    v_and_b32 {V(sg)}, {S(sHI)}, {V(sg)}
    v_mov_b32 {V(F+22)}, {S(sTAG)}
    s_waitcnt lgkmcnt(0)
    v_mov_b32 {V(d0)}, {S(sDS)}
    v_mov_b32 {V(d1)}, {S(sDS+1)}
    v_cndmask_b32 {V(d0)}, {V(d1)}, {V(d0)}, vcc
    v_and_b32 {V(d1)}, {S(sHI)}, {V(d0)}
    v_lshlrev_b32 {V(d0)}, 16, {V(d0)}
    ''')

    def rnd2(r0, r1, t):
        a(f'v_cvt_pk_bf16_f32 {V(t)}, {V(r0)}, {V(r1)}\nv_lshlrev_b32 {V(r0)}, 16, {V(t)}\nv_and_b32 {V(r1)}, {S(sHI)}, {V(t)}')
    rnd2(y0, y1, T[0])
    a(f'''
    s_waitcnt vmcnt(0)
    v_and_b32 {V(T[1])}, {S(sHI)}, {V(sv)}
    v_lshlrev_b32 {V(T[2])}, 16, {V(sv)}
    v_rcp_f32 {V(T[1])}, {V(T[1])}
    v_lshlrev_b32 {V(x0)}, 16, {V(xv)}
    v_and_b32 {V(x1)}, {S(sHI)}, {V(xv)}
    v_sub_f32 {V(n0)}, {V(x0)}, {V(T[2])}
    v_sub_f32 {V(n1)}, {V(x1)}, {V(T[2])}
    ''')
    rnd2(n0, n1, T[0])
    a(f'v_mul_f32 {V(n0)}, {V(n0)}, {V(T[1])}\nv_mul_f32 {V(n1)}, {V(n1)}, {V(T[1])}')
    rnd2(n0, n1, T[0])
    a(f'v_mul_f32 {V(d0)}, {V(d0)}, {V(n0)}\nv_mul_f32 {V(d1)}, {V(d1)}, {V(n1)}')
    rnd2(d0, d1, T[0])
    a(f'v_add_f32 {V(y0)}, {V(y0)}, {V(d0)}\nv_add_f32 {V(y1)}, {V(y1)}, {V(d1)}')
    rnd2(y0, y1, T[0])
    if o['b6']: a('s_barrier')
    spin_init()
    a('L_ffnspin:')
    for i in range(5):
        a(f'global_load_dwordx4 {V(F+4*i,4)}, {V(fpa)}, {S(sWS,2)} offset:{i*1024 - 3072} sc1')
    a(f'''
    s_mov_b64 exec, 0xffffff
    global_load_dwordx4 {V(F+20,4)}, {V(fpa)}, {S(sWS,2)} offset:2048 sc1
    s_mov_b64 exec, -1
    s_waitcnt vmcnt(0)
    ''')
    for i in range(6): a(f'v_xor_b32 {V(T[i])}, {S(sTAG)}, {V(F+4*i+2)}')
    a(f'''
    v_or3_b32 {V(T[0])}, {V(T[0])}, {V(T[1])}, {V(T[2])}
    v_or3_b32 {V(T[3])}, {V(T[3])}, {V(T[4])}, {V(T[5])}
    v_or_b32 {V(T[0])}, {V(T[0])}, {V(T[3])}
    v_cmp_ne_u32 vcc, 0, {V(T[0])}
    s_cbranch_vccz L_ffnok
    ''')
    spin_next('L_ffnspin')
    a('L_ffnok:')
    stamp(11)
    p0, p1 = F, F + 1
    for e in range(2):
        a(f'v_add_f32 {V(F+e)}, {V(F+e)}, {V(F+4+e)}')
        a(f'v_add_f32 {V(F+8+e)}, {V(F+8+e)}, {V(F+12+e)}')
        a(f'v_add_f32 {V(F+16+e)}, {V(F+16+e)}, {V(F+20+e)}')
    for e in range(2): a(f'v_add_f32 {V(F+e)}, {V(F+e)}, {V(F+8+e)}')
    for e in range(2): a(f'v_add_f32 {V(F+e)}, {V(F+e)}, {V(F+16+e)}')
    for m in (2, 4, 8):
        for e in range(2): a(f'v_add_f32_dpp {V(F+e)}, {V(F+e)}, {V(F+e)} row_ror:{m} row_mask:0xf bank_mask:0xf')
    for pl in ('v_permlane16_swap_b32', 'v_permlane32_swap_b32'):
        for e in range(2): a(f'v_mov_b32 {V(F+4+e)}, {V(F+e)}')
        for e in range(2): a(f'{pl} {V(F+e)}, {V(F+4+e)}')
        for e in range(2): a(f'v_add_f32 {V(F+e)}, {V(F+e)}, {V(F+4+e)}')
    rnd2(p0, p1, T[0])
    for e in range(2): a(f'v_mul_f32 {V(F+e)}, {V(F+e)}, {V(sg)}')
    rnd2(p0, p1, T[0])
    a(f'v_add_f32 {V(p0)}, {V(p0)}, {V(n0)}\nv_add_f32 {V(p1)}, {V(p1)}, {V(n1)}')
    rnd2(p0, p1, T[0])
    for e in range(2): a(f'v_mul_f32 {V(F+4+e)}, 0xbfb8aa3b, {V(F+e)}')
    for e in range(2): a(f'v_exp_f32 {V(F+4+e)}, {V(F+4+e)}')
    for e in range(2): a(f'v_add_f32 {V(F+4+e)}, 1.0, {V(F+4+e)}')
    for e in range(2): a(f'v_rcp_f32 {V(F+4+e)}, {V(F+4+e)}')
    for e in range(2): a(f'v_mul_f32 {V(F+e)}, {V(F+e)}, {V(F+4+e)}')
    rnd2(p0, p1, T[0])
    a(f'v_mul_f32 {V(p0)}, {V(p0)}, {V(y0)}\nv_mul_f32 {V(p1)}, {V(p1)}, {V(y1)}')
    rnd2(p0, p1, T[0])
    a(f'''
    v_add_f32 {V(p0)}, {V(p0)}, {V(x0)}
    v_add_f32 {V(p1)}, {V(p1)}, {V(x1)}
    v_cvt_pk_bf16_f32 {V(T[0])}, {V(p0)}, {V(p1)}
    s_mov_b64 exec, 3
    global_store_dword {V(xo)}, {V(T[0])}, {S(sOUT,2)}
    s_mov_b64 exec, -1
    ''')
    if o['stamp']:
        a('s_waitcnt vmcnt(0)'); stamp(12); a('s_branch L_exit')
    else:
        a('s_endpgm')

    a('L_helper:')
    a(f'ds_read_b32 {V(T[8])}, {V(T[9])} offset:{FF - AM}')
    read_idx()
    XS = vP
    a(f'v_readfirstlane_b32 {S(sT3)}, {V(T[8])}\ns_mov_b32 {S(sPB)}, {S(sT3)}')
    a(f's_cmp_eq_u32 {S(sP1)}, 0\ns_cbranch_scc1 L_h_pre')
    a(f's_lshl_b32 {S(sT0)}, {S(sIDX)}, 10\nv_add_u32 {V(T[0])}, {S(sT0)}, {V(vXS)}')
    stat_addr(T[1])
    a(f'''
    global_load_dwordx2 {V(XS,2)}, {V(T[0])}, {S(sX,2)}
    global_load_dwordx2 {V(XS+2,2)}, {V(T[0])}, {S(sX,2)} offset:32
    global_load_dword {V(XS+4)}, {V(T[1])}, {S(sWS,2)} sc1
    ''')
    a('L_h_pre:')
    Dv = [vP + 68 + c for c in range(4)]
    a(f'''
    s_lshl_b32 {S(sT0)}, {S(sDS)}, 16
    s_and_b32 {S(sT1)}, {S(sDS)}, {S(sHI)}
    s_lshl_b32 {S(sT2)}, {S(sDS+1)}, 16
    s_and_b32 {S(sT3)}, {S(sDS+1)}, {S(sHI)}
    ''')
    for c in range(4): a(f'v_mov_b32 {V(Dv[c])}, {S(sT0+c)}')
    WF = vP + 8; DD = vP + 24; XA = vP + 40; WDF = vP + 48
    GT = [vP + 64 + i for i in range(4)]
    def ge_row(r):
        for c in range(4):
            src = XP + 2 * c + (r >> 1)
            if r & 1: a(f'v_and_b32 {V(vXN+4*r+c)}, {S(sHI)}, {V(src)}')
            else:     a(f'v_lshlrev_b32 {V(vXN+4*r+c)}, 16, {V(src)}')
        for c in range(4): a(f'v_mul_f32 {V(GT[c])}, 0xbfb8aa3b, {V(vXN+4*r+c)}')
        for c in range(4): a(f'v_exp_f32 {V(GT[c])}, {V(GT[c])}')
        for c in range(4):
            a(f'v_mul_f32 {V(vE+4*r+c)}, {V(vXN+4*r+c)}, {V(Dv[c])}')
            a(f'v_add_f32 {V(GT[c])}, 1.0, {V(GT[c])}')
        for c in range(4): a(f'v_rcp_f32 {V(GT[c])}, {V(GT[c])}')
        for c in range(4): a(f'v_mul_f32 {V(vXN+4*r+c)}, {V(vXN+4*r+c)}, {V(GT[c])}')
        for c in range(4): a(f'v_fma_f32 {V(vE+4*r+c)}, {V(vE+4*r+c)}, {V(vXN+4*r+c)}, {V(vXF+4*r+c)}')
    def masks():
        for r in range(4):
            a(f'v_add_u32 {V(T[0])}, {r}, {V(vROW)}\nv_cmp_ne_u32 {S(sM+2*r,2)}, {S(sIDX)}, {V(T[0])}')
    masks()
    a(f's_cmp_eq_u32 {S(sP1)}, 0\ns_cbranch_scc1 L_h_ge')
    a(f"s_setprio {o['ffnprio']}")
    a('s_waitcnt vmcnt(3)')
    for t in range(4):
        a(f'ds_read_b64_tr_b16 {V(WF+4*t,2)}, {V(vWT)} offset:{1024*t}')
        a(f'ds_read_b64_tr_b16 {V(WF+4*t+2,2)}, {V(vWT)} offset:{1024*t + 512}')
    for i in range(4): a(f'ds_read2st64_b32 {V(vWD+2*i,2)}, {V(vWDR)} offset0:{2*i} offset1:{2*i+1}')
    gq = T[4]
    a('s_waitcnt vmcnt(0)')
    stamp(0)
    X = [T[2+i] for i in range(8)]
    a(f'''
    v_and_b32 {V(T[12])}, {S(sHI)}, {V(XS+4)}
    v_lshlrev_b32 {V(T[14])}, 16, {V(XS+4)}
    v_rcp_f32 {V(T[12])}, {V(T[12])}
    ''')
    for i in range(4):
        a(f'v_lshlrev_b32 {V(X[2*i])}, 16, {V(XS+i)}\nv_and_b32 {V(X[2*i+1])}, {S(sHI)}, {V(XS+i)}')
        for e in range(2): a(f'v_sub_f32 {V(X[2*i+e])}, {V(X[2*i+e])}, {V(T[14])}')
    for i in range(4): a(f'v_cvt_pk_bf16_f32 {V(XA+i)}, {V(X[2*i])}, {V(X[2*i+1])}')
    for i in range(4):
        a(f'v_lshlrev_b32 {V(X[2*i])}, 16, {V(XA+i)}\nv_and_b32 {V(X[2*i+1])}, {S(sHI)}, {V(XA+i)}')
        for e in range(2): a(f'v_mul_f32 {V(X[2*i+e])}, {V(X[2*i+e])}, {V(T[12])}')
    for i in range(4): a(f'v_cvt_pk_bf16_f32 {V(XA+i)}, {V(X[2*i])}, {V(X[2*i+1])}')
    a('s_waitcnt lgkmcnt(4)')
    for t in range(4):
        a(f'v_mfma_f32_16x16x32_bf16 {V(DD+4*t,4)}, {V(XA,4)}, {V(WF+4*t,4)}, 0')
    a(f'''
    v_mov_b32 {V(gq+2)}, {S(sTAG)}
    v_mov_b32 {V(gq+3)}, 0
    s_cmp_eq_u32 {S(sPB)}, 0
    v_add_f32 {V(gq)}, {V(DD)}, {V(DD+5)}
    v_add_f32 {V(gq+1)}, {V(DD+8)}, {V(DD+13)}
    s_mov_b64 exec, 0xffff
    s_cbranch_scc0 L_p1far
    global_store_dwordx4 {V(vP1W)}, {V(gq,4)}, {S(sWS,2)}
    s_branch L_p1done
    L_p1far:
    global_store_dwordx4 {V(vP1W)}, {V(gq,4)}, {S(sWS,2)} sc1
    L_p1done:
    s_mov_b64 exec, -1
    s_cmp_eq_u32 {S(sPROD)}, 0
    s_cbranch_scc1 L_h_ge
    s_waitcnt lgkmcnt(0)
    ''')
    for i in range(8):
        a(f'v_lshlrev_b32 {V(WDF+2*i)}, 16, {V(vWD+i)}\nv_and_b32 {V(WDF+2*i+1)}, {S(sHI)}, {V(vWD+i)}')
    stamp(9)
    spin_init()
    a(f'''
    L_hspin:
    global_load_dwordx4 {V(T[0],4)}, {V(vP1R)}, {S(sWS,2)} sc1
    s_waitcnt vmcnt(0)
    v_cmp_ne_u32 vcc, {S(sTAG)}, {V(T[2])}
    s_cbranch_vccz L_hok
    ''')
    spin_next('L_hspin')
    a('L_hok:')
    for e in range(2): a(f'v_add_f32_dpp {V(T[e])}, {V(T[e])}, {V(T[e])} row_ror:8 row_mask:0xf bank_mask:0xf')
    for pl in ('v_permlane16_swap_b32', 'v_permlane32_swap_b32'):
        for e in range(2): a(f'v_mov_b32 {V(T[2+e])}, {V(T[e])}')
        for e in range(2): a(f'{pl} {V(T[e])}, {V(T[2+e])}')
        for e in range(2): a(f'v_add_f32 {V(T[e])}, {V(T[e])}, {V(T[2+e])}')
    a(f'''
    v_cvt_pk_bf16_f32 {V(T[2])}, {V(T[0])}, {V(T[1])}
    v_lshlrev_b32 {V(T[0])}, 16, {V(T[2])}
    v_mul_f32 {V(T[1])}, 0xbfb8aa3b, {V(T[0])}
    v_exp_f32 {V(T[1])}, {V(T[1])}
    v_and_b32 {V(T[2])}, {S(sHI)}, {V(T[2])}
    v_add_f32 {V(T[1])}, 1.0, {V(T[1])}
    v_rcp_f32 {V(T[1])}, {V(T[1])}
    s_nop 0
    v_mul_f32 {V(T[1])}, {V(T[0])}, {V(T[1])}
    v_cvt_pk_bf16_f32 {V(T[1])}, {V(T[1])}, {V(T[1])}
    v_and_b32 {V(T[1])}, {S(sHI)}, {V(T[1])}
    v_mul_f32 {V(T[1])}, {V(T[1])}, {V(T[2])}
    v_cvt_pk_bf16_f32 {V(T[1])}, {V(T[1])}, {V(T[1])}
    v_and_b32 {V(T[1])}, {S(sHI)}, {V(T[1])}
    ''')
    for i in range(8):
        for e in range(2):
            a(f"{'v_mul_f32_dpp' if i == 0 else 'v_fmac_f32_dpp'} {V(gq+e)}, {V(T[1])}, {V(WDF+2*i+e)} row_newbcast:{i} row_mask:0xf bank_mask:0xf")
    a(f'global_store_dwordx4 {V(vFPA)}, {V(gq,4)}, {S(sWS,2)} sc1')
    stamp(10)
    a('L_h_ge:\ns_setprio 0')
    for r in range(o['prerows']): ge_row(r)
    a('L_h_b5:\ns_barrier')
    YR = vP
    def epilogue(ge):
        for r in range(4):
            if ge and r >= o['prerows']: ge_row(r)
            for c in range(4):
                a(f'v_fma_f32 {V(vE+4*r+c)}, {V(YR+4*c+r)}, {V(vXN+4*r+c)}, {V(vE+4*r+c)}')
            a(f'''
            v_cvt_pk_bf16_f32 {V(vD+2*r)}, {V(vE+4*r)}, {V(vE+4*r+1)}
            v_cvt_pk_bf16_f32 {V(vD+2*r+1)}, {V(vE+4*r+2)}, {V(vE+4*r+3)}
            s_mov_b64 exec, {S(sM+2*r,2)}
            global_store_dwordx2 {V(vXG)}, {V(vD+2*r,2)}, {S(sOUT,2)} offset:{r*1024}
            s_mov_b64 exec, -1
            ''')
    for c in range(4): a(f'ds_read_b128 {V(YR+4*c,4)}, {V(vY)} offset:{c*YCS}')
    if o['b6']:
        a(f'''
        s_lshr_b32 {S(sT0)}, {S(sWI)}, 1
        s_and_b32 {S(sT1)}, {S(sT0)}, {S(sOWN)}
        s_andn2_b32 {S(sT2)}, {S(sOWN)}, {S(sT0)}
        s_cmp_eq_u32 {S(sT1)}, 0
        s_cbranch_scc1 L_h_st
        ''')
        for r in range(o['prerows'], 4): ge_row(r)
        a('s_barrier\ns_waitcnt lgkmcnt(0)')
        epilogue(False)
        a('s_branch L_h_done\nL_h_st:')
    a('s_waitcnt lgkmcnt(0)')
    epilogue(True)
    for r in range(0):
        for c in range(4):
            a(f'v_fma_f32 {V(vE+4*r+c)}, {V(YR+4*c+r)}, {V(vXN+4*r+c)}, {V(vE+4*r+c)}')
        a(f'''
        v_cvt_pk_bf16_f32 {V(vD+2*r)}, {V(vE+4*r)}, {V(vE+4*r+1)}
        v_cvt_pk_bf16_f32 {V(vD+2*r+1)}, {V(vE+4*r+2)}, {V(vE+4*r+3)}
        s_mov_b64 exec, {S(sM+2*r,2)}
        global_store_dwordx2 {V(vXG)}, {V(vD+2*r,2)}, {S(sOUT,2)} offset:{r*1024}
        s_mov_b64 exec, -1
        ''')
    if o['b6']:
        a(f'''
        s_cmp_eq_u32 {S(sT2)}, 0
        s_cbranch_scc1 L_h_done
        s_waitcnt vmcnt({o['b6cnt']})
        s_barrier
        L_h_done:
        ''')
    if o['stamp'] or o['diag'] >= 0:
        stamp(11)
        a('s_waitcnt vmcnt(0)')
        stamp(12)
    if o['diag'] >= 0:
        a('''
        s_memrealtime s[90:91]
        s_sub_u32 s88, s88, s86
        s_min_u32 s88, s88, 2000
        s_lshl_b32 s88, s88, 2
        s_waitcnt lgkmcnt(0)
        s_add_u32 s88, s88, s90
        L_diag:
        s_memrealtime s[90:91]
        s_waitcnt lgkmcnt(0)
        s_sub_u32 s90, s90, s88
        s_cmp_lt_i32 s90, 0
        s_cbranch_scc1 L_diag
        ''')
    a('L_exit:')
    if o['stamp']:
        a('v_mov_b32 v254, 0')
        for i in range(14): a(f'v_writelane_b32 v254, s{86+i}, {i}')
        a(f'global_store_dword {V(vSTA)}, v254, {S(sWS,2)}')
    a('L_end:\ns_endpgm')
    a.raw('''.section .rodata,"a"
.p2align 6
.amdhsa_kernel %s_kernel
  .amdhsa_next_free_vgpr 256
  .amdhsa_next_free_sgpr 102
  .amdhsa_accum_offset 256
  .amdhsa_group_segment_fixed_size 0
  .amdhsa_kernarg_size 136
  .amdhsa_user_sgpr_count 2
  .amdhsa_user_sgpr_kernarg_segment_ptr 1
  .amdhsa_system_sgpr_workgroup_id_x 1
.end_amdhsa_kernel''' % KN)
    return a.text()


if __name__ == '__main__':
    out = sys.argv[1]
    opt = {}
    for kv in sys.argv[2:]:
        k, val = kv.split('='); opt[k] = int(val, 0)
    open(out, 'w').write(generate(**opt))
```

```python
import sys
from asmlib import *

KN = 'recurrent_scan__ssm_conv_s4__moe_arch_mod__prompt'

DEFAULTS = dict(stamp=0, cyc=0, force_slow=0, prefetch=1, wpf=1, spinmax=1 << 16, diag=-1,
                maxout=15, group=3, minfly=6, b6=1, b6cnt=1, nb=6, wdearly=0, wpfb3=1, hnormfirst=1, ffnprio=2, tlb=0, tlbsh=16, wnt=0, xnt=0, pnt=0, prerows=1, jc=4, jh=9, jf=17, p1nt=1, pfirst=0, cpf=1, cpfn=6)

RS = 2064
STAGE = 0
R4 = 0; R4S = 18560; CAS = 288
YX = 74240; YCS = 5120; YTS = 1280; YGS = 320
U = 109440; US = 4576
TAB = 127744; TS = 1552
WL = 133952; WL1 = 8320
SL = 150528
AM = 158720
FF = 158752
TG = 158768
PF = 158784
FP = 158848
LDS_BYTES = 159872
W_ST = 0x1000; W_FL = 0x6000; W_FP = 0x10000; W_P1 = 0xD0000; W_IN = 0x100000; W_STAMP = 0x800000

sX, sARE, sAIM, sBRE, sBIM, sCRE, sCIM, sLDT = 4, 6, 8, 10, 12, 14, 16, 18
sDSK, sWR, sWG, sWU, sWD, sOUT, sDBG, sWS = 20, 24, 26, 28, 30, 32, 34, 36
sW, sK, sJ, sCGL, sH, sCH0, sT, sXCC, sTAG, sTAGX = 38, 39, 40, 41, 42, 43, 44, 45, 46, 47
sPB, sDS = 48, 50
sONES, sF8, sPROD, sIDX, sKEY, sCNT = 52, 53, 54, 55, 56, 57
sT0, sT1, sT2, sT3 = 58, 59, 60, 61
sOWN, sINB = 62, 63
sM = 64
sH8 = 72
sHI = 80
sSTP = 82
sWI = 84
sP1 = 85
sCM = 78
sA = 76; sR = 77
sROLE = 81

vL = 1
vGA = 2
vSEL = 10
vR4W, vUW, vST0, vST1, vFL, vIN, vXG, vXC = 16, 17, 18, 19, 20, 21, 22, 23
vKA, vKB, vPD, vY = 24, 25, 26, 27
vA0, vA1, vA2, vA3, vA4, vA5, vA6, vA7 = 28, 29, 30, 31, 32, 33, 34, 35
vEP, vPFD, vROW, vSTA = 36, 37, 38, 39
vD = 40
vG = 48
vXF = 56
vXN = 72
vE = 88
vP = 104
vB0, vB1, vB2, vB3, vB4, vB5 = 224, 225, 226, 227, 228, 229
vWD = 232
vT = 240
vCA, vCA2, vCB, vFLO = vA0, vA1, vA2, vA3
vTW1, vTW2, vTW3, vTW4, vWT, vWDA, vFPA, vXS = vA0, vA1, vA2, vA3, vA4, vA5, vA6, vA7
vWS0, vWS1, vP1W, vP1R, vFFW, vSTP = vB0, vB1, vB2, vB3, vB4, vB5
vWD1, vPFW = 230, 231
vTLB = 223
vWDR = 222


def tiles(h): return [2 * i + ((i ^ h) & 1) for i in range(4)]


def generate(**opt):
    o = dict(DEFAULTS); o.update(opt)
    a = Asm()
    V = v; S = s

    def stamp(i):
        if o['diag'] == i:
            a('s_memrealtime s[88:89]\ns_waitcnt lgkmcnt(0)')
        if not o['stamp'] or (o['stamp'] == 2 and i != 12): return
        a(f"{'s_memtime' if o['cyc'] else 's_memrealtime'} {S(sSTP,2)}\ns_waitcnt lgkmcnt(0)\ns_mov_b32 s{86+i}, {S(sSTP)}")

    def cmul(d, x, y):
        a(f'v_pk_mul_f32 {V(d,2)}, {V(x,2)}, {V(y,2)} op_sel:[1,1] op_sel_hi:[1,0]')
        a(f'v_pk_fma_f32 {V(d,2)}, {V(x,2)}, {V(y,2)}, {V(d,2)} op_sel:[0,0,0] op_sel_hi:[0,1,1] neg_lo:[0,0,1]')

    def lane63(): a('s_mov_b32 exec_lo, 0\ns_mov_b32 exec_hi, 0x80000000')
    def alllanes(): a('s_mov_b64 exec, -1')
    def spin_init(): a(f"s_mov_b32 {S(sCNT)}, {o['spinmax']}")
    def spin_next(lbl): a(f's_sub_u32 {S(sCNT)}, {S(sCNT)}, 1\ns_cmp_lg_u32 {S(sCNT)}, 0\ns_cbranch_scc1 {lbl}')

    def ssum(dst, *terms):
        first = True; const = 0
        for t in terms:
            if isinstance(t, int): const += t; continue
            r, sh = t
            if first:
                a(f's_lshl_b32 {S(dst)}, {S(r)}, {sh}' if sh else f's_mov_b32 {S(dst)}, {S(r)}'); first = False
            elif sh:
                a(f's_lshl_b32 {S(sT3)}, {S(r)}, {sh}\ns_add_u32 {S(dst)}, {S(dst)}, {S(sT3)}')
            else:
                a(f's_add_u32 {S(dst)}, {S(dst)}, {S(r)}')
        if const: a(f's_add_u32 {S(dst)}, {S(dst)}, {const}')

    def smul(dst, r, k, const=0):
        a(f's_mul_i32 {S(dst)}, {S(r)}, {k}')
        if const: a(f's_add_u32 {S(dst)}, {S(dst)}, {const}')

    T = [vT + i for i in range(16)]

    a.raw('; @launch grid=(256,1,1) block=(512,1,1) lds=%d' % LDS_BYTES)
    a.raw('.amdgcn_target "amdgcn-amd-amdhsa--gfx950"\n.text\n.globl %s_kernel\n.p2align 8\n.type %s_kernel,@function\n%s_kernel:' % (KN, KN, KN))
    a('''
    s_cmp_ge_u32 s2, 256
    s_cbranch_scc1 L_end
    s_load_dwordx16 s[4:19], s[0:1], 0
    s_load_dwordx16 s[20:35], s[0:1], 64
    s_load_dwordx2 s[36:37], s[0:1], 128
    ''')
    if o['cpf']:
        a.comment('pull the rest of this kernel code into L2: a few lines per workgroup of each XCD class')
        a(f'''
        s_getpc_b64 {S(sPB,2)}
        s_lshr_b32 {S(sT0)}, s2, 3
        s_mul_i32 {S(sT0)}, {S(sT0)}, {128*o['cpfn']}
        v_lshl_add_u32 {V(vTLB)}, v0, 7, {S(sT0)}
        v_min_u32 {V(vTLB)}, L_end - L_cpf, {V(vTLB)}
        v_cmp_gt_u32 vcc, {o['cpfn']}, v0
        s_and_saveexec_b64 {S(sM,2)}, vcc
        s_cbranch_execz L_cpf
        global_load_dword {V(vTLB)}, {V(vTLB)}, {S(sPB,2)}
        L_cpf:
        s_mov_b64 exec, -1
        ''')
    if o['diag'] >= 0: a('s_memrealtime s[86:87]')
    if o['stamp']: a(f"{'s_memtime' if o['cyc'] else 's_memrealtime'} s[100:101]")
    a(f'''
    v_lshrrev_b32 {V(T[0])}, 6, v0
    v_and_b32 {V(vL)}, 63, v0
    v_readfirstlane_b32 {S(sW)}, {V(T[0])}
    s_and_b32 {S(sK)}, s2, 7
    s_lshr_b32 {S(sJ)}, s2, 3
    s_and_b32 {S(sCGL)}, {S(sJ)}, 15
    s_lshr_b32 {S(sH)}, {S(sJ)}, 4
    s_and_b32 {S(sWI)}, {S(sW)}, 3
    s_cmp_ge_u32 {S(sW)}, 4
    s_cselect_b32 {S(sROLE)}, 1, 0
    ''')
    ssum(sCH0, (sK, 6), (sCGL, 2))
    for i in range(7): a(f'v_mov_b32 {V(vP+i)}, 0')
    a(f's_add_u32 {S(sT1)}, {S(sCH0)}, {S(sWI)}')
    a(f's_lshr_b32 {S(sT2)}, {S(sW)}, 2')
    ssum(sT0, (sT1, 8), (sT2, 7))
    a(f'v_lshl_add_u32 {V(T[1])}, {V(vL)}, 1, {S(sT0)}')
    a(f's_lshl_b32 {S(sT1)}, {S(sT1)}, 1')
    a(f'v_mov_b32 {V(T[2])}, {S(sT1)}')
    if o['stamp']:
        ssum(sT1, (2, 11), (sW, 8), W_STAMP)
        a(f'v_lshl_add_u32 {V(vSTA)}, {V(vL)}, 2, {S(sT1)}')
        for i in range(14): a(f's_mov_b32 s{86+i}, 0')

    def param_loads():
        for i, p in enumerate((sARE, sAIM, sBRE, sBIM, sCRE, sCIM)):
            a(f"global_load_short_d16_hi {V(vP+i)}, {V(T[1])}, {S(p,2)}{' nt' if o['pnt'] else ''}")
        a(f'global_load_short_d16_hi {V(vP+6)}, {V(T[2])}, {S(sLDT,2)}')

    a(f's_cmp_eq_u32 {S(sROLE)}, 1\ns_cbranch_scc1 L_h_load')
    ssum(sT0, (sJ, 16), (sW, 14), (sK, 7))
    a(f'''
    v_lshrrev_b32 {V(T[3])}, 3, {V(vL)}
    v_and_b32 {V(T[4])}, 7, {V(vL)}
    v_lshlrev_b32 {V(T[3])}, 10, {V(T[3])}
    v_lshl_add_u32 {V(T[3])}, {V(T[4])}, 4, {V(T[3])}
    v_add_u32 {V(T[3])}, {S(sT0)}, {V(T[3])}
    v_add_u32 {V(T[4])}, 8192, {V(T[3])}
    s_waitcnt lgkmcnt(0)
    ''')
    if o['stamp']: a('s_mov_b32 s99, s100')
    if o['diag'] >= 0: a('s_mov_b32 s88, s86')
    stamp(0)
    XNT = ' nt' if o['xnt'] else ''
    PF1 = o['pfirst']
    if PF1: param_loads()
    a(f'global_load_dwordx4 {V(vD,4)}, {V(T[3])}, {S(sX,2)}{XNT}')
    a(f'global_load_dwordx4 {V(vD+4,4)}, {V(T[4])}, {S(sX,2)}{XNT}')
    if not PF1: param_loads()
    a('s_branch L_init')
    a('L_h_load:')
    ssum(sT0, (2, 13), (sWI, 11))
    a(f'''
    v_and_b32 {V(T[3])}, 31, {V(vL)}
    v_lshlrev_b32 {V(T[3])}, 4, {V(T[3])}
    v_lshrrev_b32 {V(T[4])}, 5, {V(vL)}
    v_lshl_add_u32 {V(T[4])}, {V(T[4])}, 10, {V(T[3])}
    v_add_u32 {V(T[4])}, {S(sT0)}, {V(T[4])}
    v_mov_b32 {V(T[5])}, 0
    s_waitcnt lgkmcnt(0)
    ''')
    if o['stamp']: a('s_mov_b32 s99, s100')
    if o['diag'] >= 0: a('s_mov_b32 s88, s86')
    stamp(0)
    if PF1: param_loads()
    a(f'''
    global_load_dwordx4 {V(vG,4)}, {V(T[3])}, {S(sWR,2)}
    global_load_dwordx4 {V(vG+4,4)}, {V(T[3])}, {S(sWR,2)} offset:512
    global_load_dwordx4 {V(vD,4)}, {V(T[4])}, {S(sX,2)}{XNT}
    global_load_dwordx4 {V(vD+4,4)}, {V(T[4])}, {S(sX,2)} offset:512{XNT}
    global_load_dword {V(vEP)}, {V(T[5])}, {S(sWS,2)} sc1
    ''')
    if not PF1: param_loads()

    a('L_init:')
    a(f'''
    v_mov_b32 {V(T[6])}, 0
    v_mov_b32 {V(T[7])}, 0x3f80
    s_lshl_b32 {S(sT0)}, {S(sW)}, 8
    s_mov_b32 m0, {S(sT0)}
    v_and_b32 {V(T[8])}, 127, v0
    ds_write_addtid_b32 {V(T[7])} offset:{STAGE}
    v_min_u32 {V(T[8])}, 119, {V(T[8])}
    v_lshrrev_b32 {V(T[9])}, 7, v0
    v_mul_u32_u24 {V(T[10])}, {US}, {V(T[9])}
    v_lshl_add_u32 {V(T[10])}, {V(T[8])}, 2, {V(T[10])}
    v_add_u32 {V(T[10])}, {U}, {V(T[10])}
    ds_write_b32 {V(T[10])}, {V(T[6])}
    s_cmp_lg_u32 {S(sW)}, 0
    s_cbranch_scc1 L_init2
    v_bfe_u32 {V(T[9])}, {V(vL)}, 1, 2
    v_mul_u32_u24 {V(T[9])}, {TS}, {V(T[9])}
    v_and_b32 {V(T[8])}, 1, {V(vL)}
    v_lshl_add_u32 {V(T[9])}, {V(T[8])}, 2, {V(T[9])}
    v_add_u32 {V(T[9])}, {TAB}, {V(T[9])}
    v_and_b32 {V(T[8])}, 15, {V(vL)}
    v_lshlrev_b32 {V(T[8])}, 2, {V(T[8])}
    v_add_u32 {V(T[8])}, {FF}, {V(T[8])}
    s_mov_b64 exec, 0xffff
    ds_write_b32 {V(T[9])}, {V(T[6])}
    ds_write_b32 {V(T[8])}, {V(T[6])}
    s_mov_b64 exec, -1
    L_init2:
    s_waitcnt lgkmcnt(0)
    s_barrier
    s_lshl_b32 {S(sT0)}, {S(sCH0)}, 1
    s_load_dwordx2 {S(sDS,2)}, {S(sDSK,2)}, {S(sT0)}
    s_getreg_b32 {S(sXCC)}, hwreg(HW_REG_XCC_ID, 0, 4)
    s_mov_b32 {S(sONES)}, 0x3f803f80
    s_mov_b32 {S(sHI)}, 0xffff0000
    s_lshr_b32 {S(sT0)}, {S(sW)}, 2
    s_xor_b32 {S(sT0)}, {S(sT0)}, {S(sWI)}
    s_xor_b32 {S(sT0)}, {S(sT0)}, {S(sH)}
    s_xor_b32 {S(sT0)}, {S(sT0)}, 1
    s_and_b32 {S(sT0)}, {S(sT0)}, 1
    s_lshl_b32 {S(sT)}, {S(sWI)}, 1
    s_add_u32 {S(sT)}, {S(sT)}, {S(sT0)}
    s_lshr_b32 {S(sT0)}, {S(sJ)}, 3
    s_and_b32 {S(sT1)}, {S(sJ)}, 7
    ''')
    ssum(sA, (sT0, 3), (sK, 0))
    a(f's_mov_b32 {S(sR)}, {S(sT1)}')
    ssum(sF8, (sA, 3), (sR, 0))
    a(f'''
    s_cmp_lt_u32 {S(sA)}, 22
    s_cselect_b32 {S(sP1)}, 1, 0
    s_cmp_lt_u32 {S(sF8)}, 172
    s_cselect_b32 {S(sPROD)}, 1, 0
    s_cselect_b32 {S(sF8)}, {S(sF8)}, {S(sJ)}
    s_lshl_b32 {S(sT0)}, {S(sK)}, 1
    s_lshl_b32 {S(sCM)}, 0x00030003, {S(sT0)}
    s_mov_b32 {S(sCM+1)}, {S(sCM)}
    ''')

    pos = [vXF + i for i in range(7)]
    a(f'v_lshlrev_b32 {V(T[0])}, 2, v0')
    a(f's_cmp_eq_u32 {S(sW)}, 0\ns_cbranch_scc1 L_pos0')
    for i in range(7): a(f'v_add_u32 {V(pos[i])}, {i-3}, {V(T[0])}')
    for i in range(7): a(f'v_cvt_f32_u32 {V(pos[i])}, {V(pos[i])}')
    for i in range(0, 7, 2):
        j = min(i + 1, 6)
        a(f'v_cvt_pk_bf16_f32 {V(T[8+i//2])}, {V(pos[i])}, {V(pos[j])}')
    a(f'v_mov_b32 {V(T[1])}, {4 - 0x4280}')
    for i in range(7):
        a(f'v_bfe_u32 {V(pos[i])}, {V(T[8+i//2])}, {16*(i&1)}, 16')
        a(f'v_add_u32 {V(pos[i])}, {V(T[1])}, {V(pos[i])}')
    a('s_branch L_pos_done')
    a('L_pos0:')
    for i in range(7): a(f'v_add_u32 {V(pos[i])}, {i+1}, {V(T[0])}')
    a('L_pos_done:')
    b1, b2 = T[1], T[2]
    a(f'''
    v_and_b32 {V(b1)}, -2, {V(pos[2])}
    v_add_u32 {V(b1)}, -2, {V(b1)}
    v_and_b32 {V(b2)}, -2, {V(pos[3])}
    v_add_u32 {V(T[3])}, {V(b1)}, {V(b1)}
    v_add_u32 {V(T[4])}, {V(b2)}, {V(b2)}
    ''')
    for c in range(4):
        a(f'v_add_u32 {V(vGA+2*c)}, {TAB + c*TS}, {V(T[3])}')
        a(f'v_add_u32 {V(vGA+2*c+1)}, {TAB + c*TS}, {V(T[4])}')
    for i in range(3): a(f'v_sub_u32 {V(pos[i])}, {V(pos[i])}, {V(b1)}')
    for i in range(3, 7): a(f'v_sub_u32 {V(pos[i])}, {V(pos[i])}, {V(b2)}')
    a(f's_movk_i32 {S(sT0)}, 0x0202\nv_mov_b32 {V(T[3])}, 0x0100')
    for i in range(7): a(f'v_mad_u32_u24 {V(pos[i])}, {V(pos[i])}, {S(sT0)}, {V(T[3])}')
    for dst, lo, hi in ((0, 1, 0), (1, 2, 1), (2, 3, 2), (3, 4, 3), (4, 5, 4), (5, 6, 5)):
        a(f'v_lshl_or_b32 {V(vSEL+dst)}, {V(pos[hi])}, 16, {V(pos[lo])}')
    a(f'v_add_u32 {V(vSEL+2)}, 0x{(2*0x0202 - 2*0x02020000) & 0xffffffff:x}, {V(vSEL+2)}')
    a(f'''
    v_and_b32 {V(T[0])}, -4, v0
    v_lshlrev_b32 {V(T[0])}, 2, {V(T[0])}
    v_lshl_add_u32 {V(vR4W)}, v0, 5, {V(T[0])}
    v_add_u32 {V(vR4W)}, {R4 + 144}, {V(vR4W)}
    ''')
    a(f's_lshl_b32 {S(sT0)}, {S(sT)}, 6')
    a(f'v_add_u32 {V(T[0])}, {S(sT0)}, {V(vL)}')
    ssum(sINB, (sK, 18), (sCGL, 14), W_IN)
    ssum(sT1, (sK, 9), W_FL)
    ssum(sT2, (sK, 5), W_ST + 12)
    a(f'''
    v_lshlrev_b32 {V(vROW)}, 2, {V(T[0])}
    v_lshlrev_b32 {V(vUW)}, 3, {V(T[0])}
    v_add_u32 {V(vUW)}, {U + 480}, {V(vUW)}
    v_lshlrev_b32 {V(vST0)}, 4, {V(T[0])}
    v_add_u32 {V(vST1)}, {W_ST + 8192}, {V(vST0)}
    v_add_u32 {V(vST0)}, {W_ST}, {V(vST0)}
    s_lshl_b32 {S(sT0)}, {S(sCH0)}, 1
    v_lshl_add_u32 {V(vXG)}, {V(T[0])}, 12, {S(sT0)}
    v_lshrrev_b32 {V(T[1])}, 2, {V(T[0])}
    v_lshl_add_u32 {V(vFL)}, {V(T[1])}, 2, {S(sT1)}
    v_and_b32 {V(T[2])}, 3, {V(vL)}
    v_lshl_add_u32 {V(T[2])}, {V(T[2])}, 4, {S(sINB)}
    v_lshl_add_u32 {V(vIN)}, {V(T[1])}, 7, {V(T[2])}
    v_lshrrev_b32 {V(T[1])}, 4, {V(T[0])}
    v_lshl_add_u32 {V(vXC)}, {V(T[1])}, 8, {S(sT2)}
    ''')
    smul(sT1, sWI, US, U + 480)
    a(f'''
    v_and_b32 {V(T[0])}, 31, {V(vL)}
    v_lshrrev_b32 {V(T[1])}, 5, {V(vL)}
    s_lshl_b32 {S(sT0)}, {S(sW)}, 8
    v_lshl_add_u32 {V(T[2])}, {V(T[1])}, 4, {S(sT0)}
    s_movk_i32 {S(sT0)}, {RS}
    v_mad_u32_u24 {V(vKB)}, {V(T[0])}, {S(sT0)}, {V(T[2])}
    v_add_u32 {V(T[3])}, -16, {V(T[0])}
    v_cmp_lt_u32 vcc, 20, {V(T[0])}
    v_lshl_add_u32 {V(vPD)}, {V(vL)}, 4, {S(sT1)}
    v_cndmask_b32 {V(T[3])}, {V(T[0])}, {V(T[3])}, vcc
    v_mad_u32_u24 {V(vKA)}, {V(T[3])}, {S(sT0)}, {V(T[2])}
    v_add_u32 {V(vKA)}, {STAGE + 32*RS}, {V(vKA)}
    v_and_b32 {V(T[5])}, 15, {V(vL)}
    v_lshrrev_b32 {V(T[6])}, 4, {V(vL)}
    s_cmp_eq_u32 {S(sROLE)}, 1
    s_cbranch_scc1 L_h_setup
    ''')

    slw, slw1, slr, slr1, ina, ina1, tga, pfa_c = [vXN + i for i in range(8)]
    ssum(sT0, (sW, 11), SL)
    a(f'''
    v_lshrrev_b32 {V(T[0])}, 3, {V(vL)}
    v_and_b32 {V(T[1])}, 7, {V(vL)}
    v_xor_b32 {V(T[2])}, {V(T[6])}, {V(T[1])}
    v_lshl_add_u32 {V(T[2])}, {V(T[2])}, 4, {S(sT0)}
    v_lshl_add_u32 {V(slw)}, {V(T[0])}, 7, {V(T[2])}
    v_xor_b32 {V(slw1)}, 64, {V(slw)}
    v_and_b32 {V(T[2])}, 3, {V(vL)}
    v_bfe_u32 {V(T[3])}, {V(vL)}, 2, 1
    v_lshl_add_u32 {V(T[2])}, {V(T[2])}, 1, {V(T[3])}
    v_xor_b32 {V(T[3])}, {V(T[6])}, {V(T[2])}
    v_lshl_add_u32 {V(T[3])}, {V(T[3])}, 4, {S(sT0)}
    v_lshl_add_u32 {V(T[3])}, {V(T[2])}, 8, {V(T[3])}
    v_and_b32 {V(T[4])}, 1, {V(T[0])}
    v_lshl_add_u32 {V(slr)}, {V(T[4])}, 3, {V(T[3])}
    v_xor_b32 {V(slr1)}, 64, {V(slr)}
    ''')
    ssum(sT0, (sK, 18), (sJ, 9), (sW, 7), W_IN)
    a(f'''
    v_lshl_add_u32 {V(T[1])}, {V(T[1])}, 4, {S(sT0)}
    v_lshl_add_u32 {V(ina)}, {V(T[0])}, 14, {V(T[1])}
    v_add_u32 {V(ina1)}, 0x20000, {V(ina)}
    ''')
    ssum(sT0, (sK, 9), (sJ, 4), (sW, 2), W_FL)
    a(f'v_mov_b32 {V(vFLO)}, {S(sT0)}')
    ssum(sT0, (sW, 2), TG)
    a(f'v_mov_b32 {V(tga)}, {S(sT0)}')
    a('s_waitcnt vmcnt(2)\ns_branch L_kgen' if PF1 else 's_branch L_c_slice')

    a('L_h_setup:')
    ssum(sT1, (sWI, 2), FF)
    a(f'''
    v_mov_b32 {V(vFFW)}, {S(sT1)}
    s_lshr_b32 {S(sT1)}, {S(sWI)}, 1
    s_and_b32 {S(sT2)}, {S(sWI)}, 1
    ''')
    ssum(sT0, (2, 5), (sT1, 4), (sT2, 13), W_ST)
    a(f'v_mov_b32 {V(vSTP)}, {S(sT0)}')
    rk, pfi = vXN, vXN + 8
    ssum(sT0, (2, 3), (sWI, 1))
    a(f's_sub_u32 {S(sT0)}, 0xffff, {S(sT0)}\nv_sub_u32 {V(rk)}, {S(sT0)}, {V(T[1])}')
    ssum(sT0, (sH, 13), (sWI, 11), (sINB, 0))
    a(f'v_lshl_add_u32 {V(pfi)}, {V(T[5])}, 7, {S(sT0)}')
    if PF1: a('s_waitcnt vmcnt(5)')

    def table_setup():
        smul(sT0, sWI, TS, TAB + 8)
        a(f'''
        v_and_b32 {V(T[0])}, 31, {V(vL)}
        v_lshrrev_b32 {V(T[1])}, 5, {V(vL)}
        v_lshl_add_u32 {V(T[2])}, {V(T[1])}, 3, {S(sT0)}
        v_lshl_add_u32 {V(vTW1)}, {V(T[0])}, 4, {V(T[2])}
        v_sub_u32 {V(T[2])}, 3, {V(T[1])}
        v_lshlrev_b32 {V(T[2])}, {V(T[2])}, {V(T[0])}
        v_lshl_add_u32 {V(T[3])}, {V(T[1])}, 8, {S(sT0)}
        v_add_u32 {V(T[3])}, 512, {V(T[3])}
        v_add_u32 {V(vTW2)}, {V(T[2])}, {V(T[3])}
        v_mul_u32_u24 {V(T[2])}, 124, {V(T[1])}
        v_add3_u32 {V(vTW3)}, {V(vTW2)}, {V(T[2])}, 4
        v_lshl_add_u32 {V(vTW4)}, {V(T[0])}, 1, {V(T[3])}
        v_add_u32 {V(vTW4)}, 512, {V(vTW4)}
        ''')

    def wsrc_setup():
        ssum(sT0, (sA, 7), (sWI, 5))
        ssum(sT1, (sF8, 13), (sWI, 8))
        ssum(sT2, (sF8, 10), W_P1)
        a(f'''
        s_min_u32 {S(sT0)}, {S(sT0)}, 2720
        v_lshrrev_b32 {V(T[6])}, 1, {V(vL)}
        v_lshl_add_u32 {V(T[6])}, {S(sR)}, 6, {V(T[6])}
        v_and_b32 {V(T[7])}, 1, {V(vL)}
        v_lshl_add_u32 {V(T[7])}, {V(T[7])}, 4, {S(sT0)}
        s_movk_i32 {S(sT0)}, 2752
        v_mad_u32_u24 {V(vWS0)}, {V(T[6])}, {S(sT0)}, {V(T[7])}
        v_add_u32 {V(vWS1)}, {32*2752}, {V(vWS0)}
        v_and_b32 {V(T[6])}, 15, {V(vL)}
        v_lshrrev_b32 {V(T[7])}, 4, {V(vL)}
        v_lshl_add_u32 {V(vWDA)}, {V(T[6])}, 4, {S(sT1)}
        v_lshl_add_u32 {V(vWDA)}, {V(T[7])}, 10, {V(vWDA)}
        v_add_u32 {V(vWD1)}, 4096, {V(vWDA)}
        v_lshl_add_u32 {V(vP1R)}, {V(vL)}, 4, {S(sT2)}
        ''')

    def ffn_setup():
        smul(sT0, sWI, YTS, YX)
        ssum(sT1, (sWI, 12), WL)
        ssum(sT2, (sWI, 11), SL)
        a(f'''
        v_and_b32 {V(T[2])}, 3, {V(vL)}
        v_lshrrev_b32 {V(T[3])}, 2, {V(vL)}
        v_mul_u32_u24 {V(T[4])}, {YGS}, {V(T[2])}
        v_lshl_add_u32 {V(T[4])}, {V(T[3])}, 4, {V(T[4])}
        v_add_u32 {V(vY)}, {S(sT0)}, {V(T[4])}
        v_lshl_add_u32 {V(T[2])}, {V(T[2])}, 3, {S(sT1)}
        v_lshl_add_u32 {V(vWT)}, {V(T[3])}, 5, {V(T[2])}
        v_lshl_add_u32 {V(vWDR)}, {V(vL)}, 2, {S(sT2)}
        v_and_b32 {V(T[2])}, 255, v0
        v_lshrrev_b32 {V(T[4])}, 1, {V(T[2])}
        v_mul_u32_u24 {V(T[4])}, 6144, {V(T[4])}
        v_and_b32 {V(T[3])}, 1, {V(vL)}
        v_lshl_add_u32 {V(T[4])}, {V(T[3])}, 4, {V(T[4])}
        ''')
        ssum(sT1, (sF8, 5), W_FP)
        a(f'v_add_u32 {V(vFPA)}, {S(sT1)}, {V(T[4])}')
        ssum(sT0, (sA, 13), (sWI, 11), (sR, 7), W_P1)
        a(f'''
        s_lshl_b32 {S(sT1)}, {S(sR)}, 7
        v_lshrrev_b32 {V(T[2])}, 4, {V(vL)}
        v_lshl_add_u32 {V(T[2])}, {V(T[2])}, 3, {S(sT1)}
        v_lshl_add_u32 {V(vXS)}, {V(T[3])}, 6, {V(T[2])}
        v_bfe_u32 {V(T[2])}, {V(vL)}, 3, 1
        v_and_b32 {V(T[3])}, 7, {V(vL)}
        v_lshl_add_u32 {V(T[3])}, {V(T[3])}, 4, {S(sT0)}
        v_lshl_add_u32 {V(vP1W)}, {V(T[2])}, 10, {V(T[3])}
        ''')

    def conv_setup():
        a(f'v_and_b32 {V(T[5])}, 15, {V(vL)}\nv_lshrrev_b32 {V(T[6])}, 4, {V(vL)}')
        smul(sT0, sW, R4S, R4)
        a(f'v_lshlrev_b32 {V(T[3])}, 3, {V(T[6])}\nv_sub_u32 {V(T[3])}, {V(T[5])}, {V(T[3])}')
        for reg, k in ((vCA, 32), (vCA2, 28)):
            a(f'''
            v_add_u32 {V(T[4])}, {k}, {V(T[3])}
            v_lshrrev_b32 {V(T[7])}, 4, {V(T[4])}
            v_lshl_add_u32 {V(reg)}, {V(T[4])}, 3, {S(sT0)}
            v_lshl_add_u32 {V(reg)}, {V(T[7])}, 4, {V(reg)}
            ''')
        smul(sT0, sW, US, U)
        a(f'''
        v_lshl_add_u32 {V(T[3])}, {V(T[6])}, 4, {S(sT0)}
        v_lshl_add_u32 {V(vCB)}, {V(T[5])}, 5, {V(T[3])}
        ''')
        smul(sT0, sW, YCS, YX)
        a(f'''
        v_mul_u32_u24 {V(T[3])}, {YGS}, {V(T[6])}
        v_lshl_add_u32 {V(T[3])}, {V(T[5])}, 4, {V(T[3])}
        v_add_u32 {V(vY)}, {S(sT0)}, {V(T[3])}
        ''')

    def slice_work():
        a('s_waitcnt vmcnt(0)' if PF1 else 's_waitcnt vmcnt(7)')
        stamp(1)
        a(f'''
        ds_write_b128 {V(slw)}, {V(vD,4)}
        ds_write_b128 {V(slw1)}, {V(vD+4,4)} offset:1024
        ds_read_b64 {V(vG,2)}, {V(slr)}
        ds_read_b64 {V(vG+2,2)}, {V(slr)} offset:128
        ds_read_b64 {V(vG+4,2)}, {V(slr1)}
        ds_read_b64 {V(vG+6,2)}, {V(slr1)} offset:128
        s_waitcnt lgkmcnt(0)
        global_store_dwordx4 {V(ina)}, {V(vG,4)}, {S(sWS,2)}
        global_store_dwordx4 {V(ina1)}, {V(vG+4,4)}, {S(sWS,2)}
        ''')


    S1, S2, S3, S4 = vXF, vXF + 1, vXF + 2, vXF + 3

    def red32(regs):
        for m in ('row_shr:1', 'row_shr:2', 'row_shr:4', 'row_shr:8'):
            for r in regs: a(f'v_add_f32_dpp {V(r)}, {V(r)}, {V(r)} {m} row_mask:0xf bank_mask:0xf')
        for r in regs: a(f'v_add_f32_dpp {V(r)}, {V(r)}, {V(r)} row_bcast:15 row_mask:0xa bank_mask:0xf')

    def ln_work():
        for r in (S1, S2, S3, S4): a(f'v_mov_b32 {V(r)}, 0')
        NP = 0 if PF1 else 7
        a(f's_setprio 2\ns_waitcnt vmcnt({3 + NP})')
        for i in range(8): a(f'v_dot2_f32_bf16 {V(S4)}, {V(vG+i)}, {S(sONES)}, {V(S4)}')
        red32([S4])
        a(f's_waitcnt vmcnt({1 + NP})')
        stamp(1)
        nlate = 0
        if o['prefetch']:
            a('s_mov_b64 exec, 0xffff')
            a(f'global_load_dword {V(vPFD)}, {V(pfi)}, {S(sWS,2)} nt'); nlate += 1
            alllanes()
        for i in range(8):
            a(f'v_dot2_f32_bf16 {V(S1)}, {V(vD+i)}, {S(sONES)}, {V(S1)}')
            a(f'v_dot2_f32_bf16 {V(S2)}, {V(vD+i)}, {V(vD+i)}, {V(S2)}')
            a(f'v_dot2_f32_bf16 {V(S3)}, {V(vD+i)}, {V(vG+i)}, {V(S3)}')
        red32([S1, S2, S3])
        t = T[0]; g = vE
        a(f'''
        v_mul_f32 {V(S1)}, 0x3b000000, {V(S1)}
        v_mul_f32 {V(S2)}, 0x3b000000, {V(S2)}
        s_waitcnt vmcnt({nlate + NP})
        v_fma_f32 {V(S2)}, -{V(S1)}, {V(S1)}, {V(S2)}
        v_readfirstlane_b32 {S(sTAG)}, {V(vEP)}
        v_max_f32 {V(S2)}, 0, {V(S2)}
        v_cvt_pk_bf16_f32 {V(t)}, {V(S1)}, {V(S2)}
        s_add_u32 {S(sTAG)}, {S(sTAG)}, 16
        v_and_b32 {V(t)}, {S(sHI)}, {V(t)}
        s_and_b32 {S(sTAG)}, {S(sTAG)}, -16
        v_add_f32 {V(t)}, 0x3727c5ac, {V(t)}
        s_or_b32 {S(sTAGX)}, {S(sTAG)}, {S(sXCC)}
        v_cvt_pk_bf16_f32 {V(t)}, {V(t)}, {V(t)}
        v_and_b32 {V(t)}, {S(sHI)}, {V(t)}
        v_sqrt_f32 {V(t)}, {V(t)}
        v_mov_b32 {V(g+3)}, {S(sTAGX)}
        v_cvt_pk_bf16_f32 {V(g+1)}, {V(S1)}, {V(t)}
        v_and_b32 {V(t)}, {S(sHI)}, {V(g+1)}
        v_lshlrev_b32 {V(t+1)}, 16, {V(g+1)}
        v_rcp_f32 {V(t)}, {V(t)}
        v_fma_f32 {V(S3)}, -{V(t+1)}, {V(S4)}, {V(S3)}
        v_readlane_b32 {S(sT0)}, {V(g+1)}, 31
        v_mul_f32 {V(S3)}, {V(S3)}, {V(t)}
        v_cvt_pk_bf16_f32 {V(S3)}, {V(S3)}, {V(S3)}
        v_mov_b32 {V(g)}, {S(sT0)}
        v_ashrrev_i32 {V(t)}, 31, {V(S3)}
        v_or_b32 {V(t)}, 0x80000000, {V(t)}
        v_xor_b32 {V(t)}, {V(t)}, {V(S3)}
        v_and_or_b32 {V(t)}, {V(t)}, {S(sHI)}, {V(rk)}
        s_add_u32 {S(sT1)}, {S(sTAG)}, 1
        v_readlane_b32 {S(sT0)}, {V(t)}, 31
        v_mov_b32 {V(t+2)}, {S(sT1)}
        v_max_u32 {V(g+2)}, {S(sT0)}, {V(t)}
        ''')
        lane63()
        a(f'global_store_dwordx4 {V(vSTP)}, {V(g,4)}, {S(sWS,2)} sc1')
        a(f'ds_write_b32 {V(vFFW)}, {V(t+2)} offset:{TG - FF}')
        alllanes()
        a(f"s_setprio 0\ns_waitcnt vmcnt({1 + nlate}) lgkmcnt(0)")
        stamp(2)

    if not PF1:
        ln_work()
        a('s_branch L_kgen\nL_c_slice:')
        slice_work()
        a('s_waitcnt vmcnt(2)')
    a('L_kgen:')
    are, aim, bre, bim, cre, cim, dt = [vP + i for i in range(7)]
    t0 = vP + 7
    z1, z2, z4, ZZ, w1, w2, w4 = [vP + 8 + 2 * i for i in range(7)]
    hq = [vP + 24 + 2 * i for i in range(8)]
    lq = [vP + 40 + 2 * i for i in range(8)]
    cv = [vP + 56 + i for i in range(8)]
    a(f'''
    v_mov_b32 {V(t0)}, 0x3fb8aa3b
    v_mul_f32 {V(dt)}, {V(dt)}, {V(t0)}
    v_exp_f32 {V(dt)}, {V(dt)}
    v_mul_f32 {V(are)}, {V(t0)}, {V(are)}
    v_cvt_pk_bf16_f32 {V(dt)}, {V(dt)}, {V(dt)}
    v_mul_f32 {V(aim)}, 0.15915494, {V(aim)}
    v_and_b32 {V(dt)}, {S(sHI)}, {V(dt)}
    v_mul_f32 {V(are)}, {V(dt)}, {V(are)}
    v_mul_f32 {V(aim)}, {V(dt)}, {V(aim)}
    v_exp_f32 {V(cv[0])}, {V(are)}
    v_fract_f32 {V(cv[1])}, {V(aim)}
    v_mul_f32 {V(are)}, 0x43800000, {V(are)}
    v_cos_f32 {V(z1)}, {V(cv[1])}
    v_mul_f32 {V(aim)}, 0x43800000, {V(aim)}
    v_sin_f32 {V(z1+1)}, {V(cv[1])}
    v_fract_f32 {V(cv[3])}, {V(aim)}
    v_exp_f32 {V(cv[2])}, {V(are)}
    v_mul_f32 {V(z1)}, {V(cv[0])}, {V(z1)}
    v_cos_f32 {V(ZZ)}, {V(cv[3])}
    v_mul_f32 {V(z1+1)}, {V(cv[0])}, {V(z1+1)}
    v_sin_f32 {V(ZZ+1)}, {V(cv[3])}
    v_mul_f32 {V(bre)}, {V(dt)}, {V(bre)}
    v_mul_f32 {V(bim)}, {V(dt)}, {V(bim)}
    ''')
    cmul(z2, z1, z1)
    a(f'v_mul_f32 {V(ZZ)}, {V(cv[2])}, {V(ZZ)}\nv_mul_f32 {V(ZZ+1)}, {V(cv[2])}, {V(ZZ+1)}')
    cmul(z4, z2, z2)
    cmul(hq[0], cre, bre)
    ci = [0]; m0_hi = [False]

    def put(row, reg, neg):
        c = cv[ci[0] % 8]; ci[0] += 1
        a(f"v_cvt_pk_bf16_f32 {V(c)}, {V(reg)}, {'-' if neg else ''}{V(reg+1)}")
        off = row * RS - (30 * RS if m0_hi[0] else 0)
        assert 0 <= off < 65536, (row, off)
        a(f'ds_write_addtid_b32 {V(c)} offset:{STAGE + off}')
    cmul(w1, z4, z4)
    cmul(hq[1], hq[0], z1)
    cmul(w2, w1, w1)
    put(1, w1, False)
    cmul(hq[2], hq[0], z2)
    cmul(lq[3], w2, w1)
    put(2, w2, False)
    cmul(w4, w2, w2)
    put(3, lq[3], False)
    cur = {1: w1, 2: w2, 3: lq[3], 4: w4}
    put(4, w4, False)

    def lo_step(j):
        d = lq[j % 8]
        cmul(d, cur[j - 4], w4); cur[j] = d
        put(j, d, False)
    def inject(j):
        if not PF1: return
        if j == o['jc']:
            a(f's_cmp_eq_u32 {S(sROLE)}, 1\ns_cbranch_scc1 L_noslice'); slice_work(); a('L_noslice:')
        if j == o['jh']:
            a(f's_cmp_eq_u32 {S(sROLE)}, 0\ns_cbranch_scc1 L_noln'); ln_work(); a('L_noln:')
    inject(4)
    for j in range(5, o['jf']):
        lo_step(j); inject(j)
    a(f's_cmp_eq_u32 {S(sROLE)}, 1\ns_cbranch_scc1 L_noflag')
    spin_init()
    a(f'''
    L_tagspin:
    ds_read_b32 {V(T[0])}, {V(tga)}
    s_waitcnt lgkmcnt(0)
    v_readfirstlane_b32 {S(sTAG)}, {V(T[0])}
    s_cmp_lg_u32 {S(sTAG)}, 0
    s_cbranch_scc1 L_tagok
    ''')
    spin_next('L_tagspin')
    a(f'''
    L_tagok:
    s_and_b32 {S(sTAG)}, {S(sTAG)}, -16
    s_or_b32 {S(sTAGX)}, {S(sTAG)}, {S(sXCC)}
    v_mov_b32 {V(T[0])}, {S(sTAGX)}
    s_mov_b64 exec, 1
    s_waitcnt vmcnt(0)
    global_store_dword {V(vFLO)}, {V(T[0])}, {S(sWS,2)}
    s_mov_b64 exec, -1
    ''')
    stamp(2)
    a('L_noflag:')
    for j in range(o['jf'], 30): lo_step(j)
    ssum(sT0, (sW, 8), 30 * RS)
    a(f's_mov_b32 m0, {S(sT0)}')
    m0_hi[0] = True
    for j in range(30, 32): lo_step(j)
    put(32, hq[0], True); put(33, hq[1], True); put(34, hq[2], True)
    cmul(hq[3], hq[1], z2); cmul(hq[4], hq[0], z4)
    put(35, hq[3], True); put(36, hq[4], True)
    a(f'global_load_dword {V(vPFD)}, {V(vFL)}, {S(sWS,2)} sc1')
    cmul(hq[5], hq[1], z4); cmul(hq[6], hq[2], z4); cmul(hq[7], hq[3], z4)
    put(37, hq[5], True); put(38, hq[6], True); put(39, hq[7], True)
    A0, A2, A4, A6, B0, B4, C0, C4 = lq
    cmul(A0, hq[0], ZZ); cmul(A2, hq[2], ZZ); cmul(A4, hq[4], ZZ); cmul(A6, hq[6], ZZ)
    put(40, A0, True)
    cmul(B0, A0, ZZ); put(41, A2, True); cmul(B4, A4, ZZ); put(42, A4, True)
    cmul(C0, B0, ZZ); put(43, A6, True); cmul(C4, B4, ZZ); put(44, B0, True)
    cmul(hq[1], C0, ZZ); put(45, B4, True); put(46, C0, True)
    cmul(hq[2], hq[1], ZZ); put(47, C4, True); put(48, hq[1], True)
    cmul(hq[3], hq[2], ZZ); put(49, hq[2], True)
    cmul(hq[4], hq[3], ZZ); put(50, hq[3], True)
    cmul(hq[5], hq[4], ZZ); put(51, hq[4], True); put(52, hq[5], True)
    stamp(3)

    KD = vP; KF = vP + 16; NB = o['nb']

    def kread(sidx):
        r = KF + 8 * (sidx % NB)
        a(f'ds_read_b128 {V(r,4)}, {V(vKA)} offset:{32*sidx}')
        a(f'ds_read_b128 {V(r+4,4)}, {V(vKB)} offset:{32*sidx}')

    def kmfma(cinit, shadow=()):
        for sidx in range(8):
            if sidx >= 2 and sidx - 2 < len(shadow): shadow[sidx - 2]()
            outstanding = min(8, sidx + NB) - sidx - 1
            a(f's_waitcnt lgkmcnt({2*outstanding})')
            r = KF + 8 * (sidx % NB)
            a(f"v_mfma_f32_32x32x16_bf16 {V(KD,16)}, {V(r,4)}, {V(r+4,4)}, {'0' if (sidx == 0 and not cinit) else V(KD,16)}")
            if sidx + NB < 8: kread(sidx + NB)

    def fetch_tile(tag):
        a(f's_waitcnt vmcnt(0)\nv_cmp_ne_u32 vcc, {S(sTAGX)}, {V(vPFD)}')
        if o['force_slow']: a(f's_branch L_gather{tag}')
        a(f's_cbranch_vccz L_fast{tag}')
        spin_init()
        a(f'''
        L_flagspin{tag}:
        global_load_dword {V(vPFD)}, {V(vFL)}, {S(sWS,2)} sc1
        global_load_dword {V(T[0])}, {V(vXC)}, {S(sWS,2)} sc1
        s_waitcnt vmcnt(0)
        v_cmp_ne_u32 vcc, {S(sTAGX)}, {V(vPFD)}
        s_cbranch_vccz L_fast{tag}
        v_xor_b32 {V(T[0])}, {S(sTAGX)}, {V(T[0])}
        v_add_u32 {V(T[0])}, -1, {V(T[0])}
        v_cmp_gt_u32 vcc, 15, {V(T[0])}
        s_cbranch_vccnz L_gather{tag}
        ''')
        spin_next(f'L_flagspin{tag}')
        a(f'L_gather{tag}:')
        for r in range(4):
            a(f'global_load_dwordx2 {V(vD+2*r,2)}, {V(vXG)}, {S(sX,2)} offset:{r*1024}')
        a(f'''
        s_branch L_stats{tag}
        L_fast{tag}:
        global_load_dwordx4 {V(vD,4)}, {V(vIN)}, {S(sWS,2)} sc1
        global_load_dwordx4 {V(vD+4,4)}, {V(vIN)}, {S(sWS,2)} offset:64 sc1
        L_stats{tag}:
        global_load_dwordx4 {V(vG,4)}, {V(vST0)}, {S(sWS,2)} sc1
        global_load_dwordx4 {V(vG+4,4)}, {V(vST1)}, {S(sWS,2)} sc1
        ''')

    a(f's_cmp_eq_u32 {S(sROLE)}, 1\ns_cbranch_scc1 L_h_k')
    for i in range(NB): kread(i)
    kmfma(False)
    a(f'v_mov_b32 {V(T[1])}, 1')
    for i in range(3): a(f'ds_write_b128 {V(vPD)}, {V(KD+4*i,4)} offset:{1024*i}')
    a(f's_mov_b64 exec, 1\nds_write_b32 {V(tga)}, {V(T[1])} offset:{PF - TG}\ns_mov_b64 exec, -1')
    stamp(4)
    fetch_tile('c')
    conv_setup()
    a('s_branch L_b3')
    a('L_h_k:')
    spin_init()
    a(f'''
    L_pspin:
    ds_read_b32 {V(T[1])}, {V(vFFW)} offset:{PF - FF}
    ''')
    for i in range(3): a(f'ds_read_b128 {V(KD+4*i,4)}, {V(vPD)} offset:{1024*i}')
    for i in range(NB - 1): kread(i)
    a(f'''
    s_waitcnt lgkmcnt({2*(NB-1) + 3})
    v_readfirstlane_b32 {S(sT0)}, {V(T[1])}
    s_cmp_lg_u32 {S(sT0)}, 0
    s_cbranch_scc1 L_pok
    s_waitcnt lgkmcnt(0)
    ''')
    spin_next('L_pspin')
    a('L_pok:')
    kread(NB - 1)
    kmfma(True, (table_setup, wsrc_setup))
    for i in range(6): a(f'v_cvt_pk_bf16_f32 {V(T[i])}, {V(KD+2*i)}, {V(KD+2*i+1)}')
    a(f'''
    ds_write_b64 {V(vTW1)}, {V(T[0],2)}
    ds_write_b32 {V(vTW2)}, {V(T[2])}
    ds_write_b32 {V(vTW3)}, {V(T[3])}
    ds_write_b16 {V(vTW4)}, {V(T[4])}
    ds_write_b16_d16_hi {V(vTW4)}, {V(T[4])} offset:64
    ds_write_b16 {V(vTW4)}, {V(T[5])} offset:128
    ds_write_b16_d16_hi {V(vTW4)}, {V(T[5])} offset:192
    ''')
    stamp(4)
    fetch_tile('h')
    a('L_b3:\ns_waitcnt lgkmcnt(0)')
    stamp(5)
    a('s_barrier')

    def w_dma():
        ssum(sT0, (sWI, 12), WL)
        for t in range(4):
            a(f's_add_u32 m0, {S(sT0)}, {1024*t}')
            a(f'global_load_lds_dwordx4 {V((vWS0, vWS1)[t&1])}, {S((sWG, sWU)[t>>1],2)}')
        ssum(sT0, (sWI, 11), SL)
        a(f's_mov_b32 m0, {S(sT0)}')
        a(f'global_load_lds_dwordx4 {V(vWDA)}, {S(sWD,2)}')
        a(f's_add_u32 m0, {S(sT0)}, 1024')
        a(f'global_load_lds_dwordx4 {V(vWD1)}, {S(sWD,2)}')
        a(f"global_load_dword {V(vPFW)}, {V(vP1R)}, {S(sWS,2)}{' nt' if o['p1nt'] else ''}")

    XP = vG
    def r4_build(tag, mid=None):
        Wq = vP; Q = vP + 16
        for c in range(4):
            a(f'ds_read2_b32 {V(Wq+4*c,2)}, {V(vGA+2*c)} offset0:0 offset1:1')
            a(f'ds_read2_b32 {V(Wq+4*c+2,2)}, {V(vGA+2*c+1)} offset0:0 offset1:1')
        if tag == 'c': a(f'''
        s_cmp_lg_u32 {S(sW)}, 3
        s_cbranch_scc1 L_nopad{tag}
        v_bfe_u32 {V(T[0])}, {V(vL)}, 3, 2
        v_and_b32 {V(T[1])}, 7, {V(vL)}
        v_mul_u32_u24 {V(T[0])}, {R4S}, {V(T[0])}
        v_lshl_add_u32 {V(T[0])}, {V(T[1])}, 4, {V(T[0])}
        ''')
        if tag == 'c':
            for i in range(4): a(f'v_mov_b32 {V(T[4+i])}, 0')
        if tag == 'c': a(f'''
        s_mov_b32 exec_hi, 0
        ds_write_b128 {V(T[0])}, {V(T[4],4)} offset:{R4}
        s_mov_b64 exec, -1
        s_waitcnt lgkmcnt(1)
        L_nopad{tag}:
        ''')
        if mid: mid()
        for c in range(4):
            W0, W1, W2, W3 = [Wq + 4 * c + i for i in range(4)]
            q = Q + 8 * c
            if not mid: a('s_waitcnt lgkmcnt(6)')
            a(f'''
            v_perm_b32 {V(q+0)}, {V(W2)}, {V(W1)}, {V(vSEL+2)}
            v_perm_b32 {V(q+1)}, {V(W1)}, {V(W0)}, {V(vSEL+0)}
            v_perm_b32 {V(q+2)}, {V(W3)}, {V(W2)}, {V(vSEL+3)}
            v_perm_b32 {V(q+3)}, {V(W1)}, {V(W0)}, {V(vSEL+1)}
            v_mov_b32 {V(q+5)}, {V(q+0)}
            ds_write_b128 {V(vR4W)}, {V(q,4)} offset:{c*R4S}
            v_perm_b32 {V(q+4)}, {V(W3)}, {V(W2)}, {V(vSEL+4)}
            v_perm_b32 {V(q+6)}, {V(W3)}, {V(W2)}, {V(vSEL+5)}
            v_mov_b32 {V(q+7)}, {V(q+2)}
            ds_write_b128 {V(vR4W)}, {V(q+4,4)} offset:{c*R4S + 16}
            ''')

    def normalise(tag):
        if tag == 'h':
            a(f's_cmp_eq_u32 {S(sP1)}, 0\ns_cbranch_scc1 L_nw0')
            w_dma()
            ffn_setup()
            a("s_waitcnt vmcnt(7)\ns_branch L_nw1\nL_nw0:")
            ffn_setup()
            a("s_waitcnt vmcnt(0)\nL_nw1:")
        else:
            a('s_waitcnt vmcnt(0)')
        spin_init()
        a(f'''
        L_statspin{tag}:
        v_xor_b32 {V(T[0])}, {S(sTAG)}, {V(vG+3)}
        v_xor_b32 {V(T[1])}, {S(sTAG)}, {V(vG+7)}
        v_or_b32 {V(T[0])}, {V(T[0])}, {V(T[1])}
        v_cmp_lt_u32 vcc, 15, {V(T[0])}
        s_cbranch_vccz L_statok{tag}
        global_load_dwordx4 {V(vG,4)}, {V(vST0)}, {S(sWS,2)} sc1
        global_load_dwordx4 {V(vG+4,4)}, {V(vST1)}, {S(sWS,2)} sc1
        s_waitcnt vmcnt(0)
        ''')
        spin_next(f'L_statspin{tag}')
        a(f'L_statok{tag}:')
        stamp(7)
        a(f'''
        v_cmp_ne_u32 vcc, {S(sTAGX)}, {V(vG+3)}
        s_and_b64 vcc, vcc, {S(sCM,2)}
        s_cbranch_vccz L_local{tag}
        v_mov_b32 {V(T[0])}, {FF}
        v_mov_b32 {V(T[1])}, 1
        ds_write_b32 {V(T[0])}, {V(T[1])}
        s_waitcnt lgkmcnt(0)
        L_local{tag}:
        ''')
        stq = [vG, vG + 1, vG + 4, vG + 5]
        rho = [T[1], T[3], T[5], T[7]]; mu = [T[0], T[2], T[4], T[6]]
        key = T[8]
        for r in range(4): a(f'v_and_b32 {V(rho[r])}, {S(sHI)}, {V(stq[r])}')
        a(f'v_max_u32 {V(key)}, {V(vG+2)}, {V(vG+6)}')
        for r in range(4):
            a(f'v_rcp_f32 {V(rho[r])}, {V(rho[r])}')
            a(f'v_lshlrev_b32 {V(mu[r])}, 16, {V(stq[r])}')
        kred = ['row_shr:1 row_mask:0xf', 'row_shr:2 row_mask:0xf', 'row_shr:4 row_mask:0xf', 'row_shr:8 row_mask:0xf',
                'row_bcast:15 row_mask:0xa', 'row_bcast:31 row_mask:0xc']
        def kr(i): a(f'v_max_u32_dpp {V(key)}, {V(key)}, {V(key)} {kred[i]} bank_mask:0xf')
        for r in range(4):
            a(f'''
            v_mul_f32_e64 {V(mu[r])}, -{V(mu[r])}, {V(rho[r])}
            v_lshlrev_b32 {V(vXF+4*r)}, 16, {V(vD+2*r)}
            v_and_b32 {V(vXF+4*r+1)}, {S(sHI)}, {V(vD+2*r)}
            v_lshlrev_b32 {V(vXF+4*r+2)}, 16, {V(vD+2*r+1)}
            v_and_b32 {V(vXF+4*r+3)}, {S(sHI)}, {V(vD+2*r+1)}
            ''')
            kr(r)
            for c in range(4): a(f'v_fma_f32 {V(vXN+4*r+c)}, {V(vXF+4*r+c)}, {V(rho[r])}, {V(mu[r])}')
        kr(4)
        ssum(sT0, (sW, 2), AM)
        for c in range(4):
            a(f'''
            v_cvt_pk_bf16_f32 {V(XP+2*c)}, {V(vXN+c)}, {V(vXN+4+c)}
            v_cvt_pk_bf16_f32 {V(XP+2*c+1)}, {V(vXN+8+c)}, {V(vXN+12+c)}
            ds_write_b64 {V(vUW)}, {V(XP+2*c,2)} offset:{c*US}
            ''')
            if c == 0: kr(5)
            if c == 1: a(f'v_mov_b32 {V(T[9])}, {S(sT0)}')
        lane63()
        a(f'ds_write_b32 {V(T[9])}, {V(key)}')
        alllanes()

    a(f's_cmp_eq_u32 {S(sROLE)}, 1\ns_cbranch_scc1 L_h_r4')
    r4_build('c'); stamp(6); normalise('c')
    a('s_branch L_b4\nL_h_r4:')
    if o['hnormfirst']:
        def mid():
            normalise('h')
            a('s_waitcnt lgkmcnt(5)'); stamp(6)
        r4_build('h', mid)
    else:
        r4_build('h'); stamp(6); normalise('h')
    a('L_b4:')
    a(f'v_mov_b32 {V(T[9])}, {AM}\ns_waitcnt lgkmcnt(0)')
    stamp(8)
    a('s_barrier')

    def read_idx():
        a(f'''
        ds_read_b128 {V(T[0],4)}, {V(T[9])}
        ds_read_b128 {V(T[4],4)}, {V(T[9])} offset:16
        s_waitcnt lgkmcnt(0)
        v_max3_u32 {V(T[0])}, {V(T[0])}, {V(T[1])}, {V(T[2])}
        v_max3_u32 {V(T[3])}, {V(T[3])}, {V(T[4])}, {V(T[5])}
        v_max3_u32 {V(T[0])}, {V(T[0])}, {V(T[6])}, {V(T[7])}
        v_max_u32 {V(T[0])}, {V(T[0])}, {V(T[3])}
        v_readfirstlane_b32 {S(sKEY)}, {V(T[0])}
        s_andn2_b32 {S(sIDX)}, 2047, {S(sKEY)}
        s_lshr_b32 {S(sT0)}, {S(sIDX)}, 8
        s_lshr_b32 {S(sT1)}, {S(sIDX)}, 9
        s_xor_b32 {S(sT0)}, {S(sT0)}, {S(sT1)}
        s_xor_b32 {S(sT0)}, {S(sT0)}, {S(sH)}
        s_andn2_b32 {S(sOWN)}, 1, {S(sT0)}
        ''')

    def stat_addr(dst):
        a(f's_lshr_b32 {S(sT0)}, {S(sIDX)}, 2\ns_bfe_u32 {S(sT1)}, {S(sIDX)}, 0x10001\ns_and_b32 {S(sT2)}, {S(sIDX)}, 1')
        ssum(sT0, (sT0, 4), (sT1, 13), (sT2, 2), W_ST)
        a(f'v_mov_b32 {V(dst)}, {S(sT0)}')

    a(f's_cmp_eq_u32 {S(sROLE)}, 1\ns_cbranch_scc1 L_helper')

    ACC = vP; FR = vP + 16; NFR = 28
    stamp(10)
    a(f's_setprio 1\ns_cmp_eq_u32 {S(sH)}, 0\ns_cbranch_scc0 L_conv1')

    def conv(h):
        tl = tiles(h)
        ops = []
        for c0 in range(8):
            lst = [(i, c1, q - c1) for i, q in enumerate(tl) for c1 in range(q + 1)]
            have = set(); seq = []
            while lst:
                def cost(x):
                    base = (2 * (('A', x[1]) not in have) + (('B', x[2]) not in have), bool(seq) and seq[-1][0] == x[0], max(x[1], x[2]))
                    return ((x[0],) + base) if c0 == 7 else base
                x = min(lst, key=cost); lst.remove(x); seq.append(x); have.add(('A', x[1])); have.add(('B', x[2]))
            for i, c1, qp in seq: ops.append((i, ('A', c0, c1), ('B', c0, qp)))
        order = []; last = {}; lastacc = {}
        for n, (i, ak, bk) in enumerate(ops):
            lastacc[i] = n
            for k in (bk, ak):
                if k not in last: order.append(k)
                last[k] = n
        L = []
        for k in order: L += [(k, 0), (k, 1)] if k[0] == 'A' else [(k, 0)]
        endidx = {}
        for j, (k, p) in enumerate(L): endidx[k] = j + 1
        need = []; m = 0
        for (i, ak, bk) in ops:
            m = max(m, endidx[ak], endidx[bk]); need.append(m)
        free = list(range(NFR)); slot = {}
        st = dict(issued=0, done=0)
        seqpos = []
        nds = [0]
        donepos = [0]
        MAXOUT = o['maxout']; G = o['group']

        def can_issue():
            if st['issued'] >= len(L) or nds[0] - donepos[0] >= MAXOUT: return False
            k, p = L[st['issued']]
            return p == 1 or bool(free)

        def issue():
            k, p = L[st['issued']]
            if p == 0: slot[k] = free.pop(0)
            r = FR + 4 * slot[k]
            if k[0] == 'A':
                a(f'ds_read_b64 {V(r+2*p,2)}, {V(vCA2 if p else vCA)} offset:{CAS*(8*k[2] + k[1])}')
            else:
                a(f'ds_read_b128 {V(r,4)}, {V(vCB)} offset:{2*(224 + 256*k[2] - 32*k[1])}')
            st['issued'] += 1; nds[0] += 1; seqpos.append(nds[0])
        started = set(); written = set()
        while can_issue(): issue()
        for n, (i, ak, bk) in enumerate(ops):
            if need[n] > st['done']:
                while st['issued'] < need[n]:
                    assert nds[0] - donepos[0] < 15
                    issue()
                tgt = need[n]
                for m2 in range(n, min(n + G, len(ops))):
                    if need[m2] <= st['issued'] - o['minfly'] or need[m2] <= len(L) == st['issued']: tgt = max(tgt, need[m2])
                a(f's_waitcnt lgkmcnt({nds[0] - seqpos[tgt-1]})'); st['done'] = tgt; donepos[0] = seqpos[tgt - 1]
            acc = ACC + 4 * i
            cin = V(acc, 4) if i in started else '0'
            started.add(i)
            a(f'v_mfma_f32_16x16x32_bf16 {V(acc,4)}, {V(FR+4*slot[ak],4)}, {V(FR+4*slot[bk],4)}, {cin}')
            for k in (ak, bk):
                if last[k] == n: free.append(slot[k])
            budget = 2
            if n + 1 < len(ops) and need[n + 1] > st['done']: budget = 1
            for i2 in range(4):
                if i2 not in written and lastacc[i2] + 4 <= n and budget > 0 and nds[0] - donepos[0] < 15:
                    a(f'ds_write_b128 {V(vY)}, {V(ACC+4*i2,4)} offset:{i2*YTS}')
                    written.add(i2); nds[0] += 1; budget -= 1
            while budget > 0 and can_issue():
                issue(); budget -= 1
        for i2 in range(4):
            if i2 not in written: a(f'ds_write_b128 {V(vY)}, {V(ACC+4*i2,4)} offset:{i2*YTS}')
    conv(0)
    a('s_branch L_convdone\nL_conv1:')
    conv(1)
    a('L_convdone:\ns_waitcnt lgkmcnt(0)')
    stamp(9)
    a(f's_barrier\ns_cmp_lg_u32 {S(sW)}, 0\ns_cbranch_scc1 L_exit')
    a(f'''
    s_cmp_lg_u32 s2, 0
    s_cbranch_scc1 L_noep
    v_mov_b32 {V(T[10])}, 0
    v_mov_b32 {V(T[11])}, {S(sTAG)}
    s_mov_b64 exec, 1
    global_store_dword {V(T[10])}, {V(T[11])}, {S(sWS,2)} sc1
    s_mov_b64 exec, -1
    L_noep:
    ''')
    read_idx()
    a(f's_cmp_eq_u32 {S(sOWN)}, 0\ns_cbranch_scc1 L_exit\ns_setprio 3')
    F = vP
    par, xo, fpa = T[12], T[13], T[14]
    y0, y1, n0, n1, d0, d1, sg, xv, sv, x0, x1 = [vXF + i for i in range(11)]
    a(f'v_and_b32 {V(par)}, 1, {V(vL)}')
    ssum(sT0, (sIDX, 10), (sCH0, 1))
    a(f'v_lshl_add_u32 {V(xo)}, {V(par)}, 2, {S(sT0)}')
    stat_addr(T[10])
    a(f'global_load_dword {V(xv)}, {V(xo)}, {S(sX,2)}')
    a(f'global_load_dword {V(sv)}, {V(T[10])}, {S(sWS,2)} sc1')
    a(f's_lshr_b32 {S(sT0)}, {S(sCH0)}, 2')
    smul(sT0, sT0, 6144, W_FP + 3072)
    a(f'v_lshl_add_u32 {V(fpa)}, {V(vL)}, 4, {S(sT0)}')
    a(f'''
    s_lshr_b32 {S(sT1)}, {S(sIDX)}, 9
    s_mul_i32 {S(sT1)}, {S(sT1)}, {YTS}
    s_bfe_u32 {S(sT0)}, {S(sIDX)}, 0x20002
    s_mul_i32 {S(sT0)}, {S(sT0)}, {YGS}
    s_add_u32 {S(sT1)}, {S(sT1)}, {S(sT0)}
    s_bfe_u32 {S(sT0)}, {S(sIDX)}, 0x40004
    s_and_b32 {S(sT2)}, {S(sIDX)}, 3
    ''')
    ssum(sT1, (sT1, 0), (sT0, 4), (sT2, 2), YX)
    a(f'''
    v_mul_u32_u24 {V(T[0])}, {2*YCS}, {V(par)}
    v_add_u32 {V(T[0])}, {S(sT1)}, {V(T[0])}
    ds_read_b32 {V(y0)}, {V(T[0])}
    ds_read_b32 {V(y1)}, {V(T[0])} offset:{YCS}
    s_and_b32 {S(sT0)}, {S(sKEY)}, {S(sHI)}
    s_xor_b32 {S(sT1)}, {S(sT0)}, 0x80000000
    s_xor_b32 {S(sT2)}, {S(sT0)}, {S(sHI)}
    s_bitcmp1_b32 {S(sT0)}, 31
    s_cselect_b32 {S(sT0)}, {S(sT1)}, {S(sT2)}
    v_mov_b32 {V(T[2])}, 0xbfb8aa3b
    v_mul_f32 {V(sg)}, {S(sT0)}, {V(T[2])}
    v_exp_f32 {V(sg)}, {V(sg)}
    v_cmp_eq_u32 vcc, 0, {V(par)}
    v_add_f32 {V(sg)}, 1.0, {V(sg)}
    v_rcp_f32 {V(sg)}, {V(sg)}
    v_mov_b32 {V(F+20)}, 0
    v_cvt_pk_bf16_f32 {V(sg)}, {V(sg)}, {V(sg)}
    v_mov_b32 {V(F+21)}, 0
    v_and_b32 {V(sg)}, {S(sHI)}, {V(sg)}
    v_mov_b32 {V(F+22)}, {S(sTAG)}
    s_waitcnt lgkmcnt(0)
    v_mov_b32 {V(d0)}, {S(sDS)}
    v_mov_b32 {V(d1)}, {S(sDS+1)}
    v_cndmask_b32 {V(d0)}, {V(d1)}, {V(d0)}, vcc
    v_and_b32 {V(d1)}, {S(sHI)}, {V(d0)}
    v_lshlrev_b32 {V(d0)}, 16, {V(d0)}
    ''')

    def rnd2(r0, r1, t):
        a(f'v_cvt_pk_bf16_f32 {V(t)}, {V(r0)}, {V(r1)}\nv_lshlrev_b32 {V(r0)}, 16, {V(t)}\nv_and_b32 {V(r1)}, {S(sHI)}, {V(t)}')
    rnd2(y0, y1, T[0])
    a(f'''
    s_waitcnt vmcnt(0)
    v_and_b32 {V(T[1])}, {S(sHI)}, {V(sv)}
    v_lshlrev_b32 {V(T[2])}, 16, {V(sv)}
    v_rcp_f32 {V(T[1])}, {V(T[1])}
    v_lshlrev_b32 {V(x0)}, 16, {V(xv)}
    v_and_b32 {V(x1)}, {S(sHI)}, {V(xv)}
    v_sub_f32 {V(n0)}, {V(x0)}, {V(T[2])}
    v_sub_f32 {V(n1)}, {V(x1)}, {V(T[2])}
    ''')
    rnd2(n0, n1, T[0])
    a(f'v_mul_f32 {V(n0)}, {V(n0)}, {V(T[1])}\nv_mul_f32 {V(n1)}, {V(n1)}, {V(T[1])}')
    rnd2(n0, n1, T[0])
    a(f'v_mul_f32 {V(d0)}, {V(d0)}, {V(n0)}\nv_mul_f32 {V(d1)}, {V(d1)}, {V(n1)}')
    rnd2(d0, d1, T[0])
    a(f'v_add_f32 {V(y0)}, {V(y0)}, {V(d0)}\nv_add_f32 {V(y1)}, {V(y1)}, {V(d1)}')
    rnd2(y0, y1, T[0])
    if o['b6']: a('s_barrier')
    spin_init()
    a('L_ffnspin:')
    for i in range(5):
        a(f'global_load_dwordx4 {V(F+4*i,4)}, {V(fpa)}, {S(sWS,2)} offset:{i*1024 - 3072} sc1')
    a(f'''
    s_mov_b64 exec, 0xffffff
    global_load_dwordx4 {V(F+20,4)}, {V(fpa)}, {S(sWS,2)} offset:2048 sc1
    s_mov_b64 exec, -1
    s_waitcnt vmcnt(0)
    ''')
    for i in range(6): a(f'v_xor_b32 {V(T[i])}, {S(sTAG)}, {V(F+4*i+2)}')
    a(f'''
    v_or3_b32 {V(T[0])}, {V(T[0])}, {V(T[1])}, {V(T[2])}
    v_or3_b32 {V(T[3])}, {V(T[3])}, {V(T[4])}, {V(T[5])}
    v_or_b32 {V(T[0])}, {V(T[0])}, {V(T[3])}
    v_cmp_ne_u32 vcc, 0, {V(T[0])}
    s_cbranch_vccz L_ffnok
    ''')
    spin_next('L_ffnspin')
    a('L_ffnok:')
    stamp(11)
    p0, p1 = F, F + 1
    for e in range(2):
        a(f'v_add_f32 {V(F+e)}, {V(F+e)}, {V(F+4+e)}')
        a(f'v_add_f32 {V(F+8+e)}, {V(F+8+e)}, {V(F+12+e)}')
        a(f'v_add_f32 {V(F+16+e)}, {V(F+16+e)}, {V(F+20+e)}')
    for e in range(2): a(f'v_add_f32 {V(F+e)}, {V(F+e)}, {V(F+8+e)}')
    for e in range(2): a(f'v_add_f32 {V(F+e)}, {V(F+e)}, {V(F+16+e)}')
    for m in (2, 4, 8):
        for e in range(2): a(f'v_add_f32_dpp {V(F+e)}, {V(F+e)}, {V(F+e)} row_ror:{m} row_mask:0xf bank_mask:0xf')
    for pl in ('v_permlane16_swap_b32', 'v_permlane32_swap_b32'):
        for e in range(2): a(f'v_mov_b32 {V(F+4+e)}, {V(F+e)}')
        for e in range(2): a(f'{pl} {V(F+e)}, {V(F+4+e)}')
        for e in range(2): a(f'v_add_f32 {V(F+e)}, {V(F+e)}, {V(F+4+e)}')
    rnd2(p0, p1, T[0])
    for e in range(2): a(f'v_mul_f32 {V(F+e)}, {V(F+e)}, {V(sg)}')
    rnd2(p0, p1, T[0])
    a(f'v_add_f32 {V(p0)}, {V(p0)}, {V(n0)}\nv_add_f32 {V(p1)}, {V(p1)}, {V(n1)}')
    rnd2(p0, p1, T[0])
    for e in range(2): a(f'v_mul_f32 {V(F+4+e)}, 0xbfb8aa3b, {V(F+e)}')
    for e in range(2): a(f'v_exp_f32 {V(F+4+e)}, {V(F+4+e)}')
    for e in range(2): a(f'v_add_f32 {V(F+4+e)}, 1.0, {V(F+4+e)}')
    for e in range(2): a(f'v_rcp_f32 {V(F+4+e)}, {V(F+4+e)}')
    for e in range(2): a(f'v_mul_f32 {V(F+e)}, {V(F+e)}, {V(F+4+e)}')
    rnd2(p0, p1, T[0])
    a(f'v_mul_f32 {V(p0)}, {V(p0)}, {V(y0)}\nv_mul_f32 {V(p1)}, {V(p1)}, {V(y1)}')
    rnd2(p0, p1, T[0])
    a(f'''
    v_add_f32 {V(p0)}, {V(p0)}, {V(x0)}
    v_add_f32 {V(p1)}, {V(p1)}, {V(x1)}
    v_cvt_pk_bf16_f32 {V(T[0])}, {V(p0)}, {V(p1)}
    s_mov_b64 exec, 3
    global_store_dword {V(xo)}, {V(T[0])}, {S(sOUT,2)}
    s_mov_b64 exec, -1
    ''')
    if o['stamp']:
        a('s_waitcnt vmcnt(0)'); stamp(12); a('s_branch L_exit')
    else:
        a('s_endpgm')

    a('L_helper:')
    a(f'ds_read_b32 {V(T[8])}, {V(T[9])} offset:{FF - AM}')
    read_idx()
    XS = vP
    a(f'v_readfirstlane_b32 {S(sT3)}, {V(T[8])}\ns_mov_b32 {S(sPB)}, {S(sT3)}')
    a(f's_cmp_eq_u32 {S(sP1)}, 0\ns_cbranch_scc1 L_h_pre')
    a(f's_lshl_b32 {S(sT0)}, {S(sIDX)}, 10\nv_add_u32 {V(T[0])}, {S(sT0)}, {V(vXS)}')
    stat_addr(T[1])
    a(f'''
    global_load_dwordx2 {V(XS,2)}, {V(T[0])}, {S(sX,2)}
    global_load_dwordx2 {V(XS+2,2)}, {V(T[0])}, {S(sX,2)} offset:32
    global_load_dword {V(XS+4)}, {V(T[1])}, {S(sWS,2)} sc1
    ''')
    a('L_h_pre:')
    Dv = [vP + 68 + c for c in range(4)]
    a(f'''
    s_lshl_b32 {S(sT0)}, {S(sDS)}, 16
    s_and_b32 {S(sT1)}, {S(sDS)}, {S(sHI)}
    s_lshl_b32 {S(sT2)}, {S(sDS+1)}, 16
    s_and_b32 {S(sT3)}, {S(sDS+1)}, {S(sHI)}
    ''')
    for c in range(4): a(f'v_mov_b32 {V(Dv[c])}, {S(sT0+c)}')
    WF = vP + 8; DD = vP + 24; XA = vP + 40; WDF = vP + 48
    GT = [vP + 64 + i for i in range(4)]
    def ge_row(r):
        for c in range(4):
            src = XP + 2 * c + (r >> 1)
            if r & 1: a(f'v_and_b32 {V(vXN+4*r+c)}, {S(sHI)}, {V(src)}')
            else:     a(f'v_lshlrev_b32 {V(vXN+4*r+c)}, 16, {V(src)}')
        for c in range(4): a(f'v_mul_f32 {V(GT[c])}, 0xbfb8aa3b, {V(vXN+4*r+c)}')
        for c in range(4): a(f'v_exp_f32 {V(GT[c])}, {V(GT[c])}')
        for c in range(4):
            a(f'v_mul_f32 {V(vE+4*r+c)}, {V(vXN+4*r+c)}, {V(Dv[c])}')
            a(f'v_add_f32 {V(GT[c])}, 1.0, {V(GT[c])}')
        for c in range(4): a(f'v_rcp_f32 {V(GT[c])}, {V(GT[c])}')
        for c in range(4): a(f'v_mul_f32 {V(vXN+4*r+c)}, {V(vXN+4*r+c)}, {V(GT[c])}')
        for c in range(4): a(f'v_fma_f32 {V(vE+4*r+c)}, {V(vE+4*r+c)}, {V(vXN+4*r+c)}, {V(vXF+4*r+c)}')
    def masks():
        for r in range(4):
            a(f'v_add_u32 {V(T[0])}, {r}, {V(vROW)}\nv_cmp_ne_u32 {S(sM+2*r,2)}, {S(sIDX)}, {V(T[0])}')
    masks()
    a(f's_cmp_eq_u32 {S(sP1)}, 0\ns_cbranch_scc1 L_h_ge')
    a(f"s_setprio {o['ffnprio']}")
    a('s_waitcnt vmcnt(3)')
    for t in range(4):
        a(f'ds_read_b64_tr_b16 {V(WF+4*t,2)}, {V(vWT)} offset:{1024*t}')
        a(f'ds_read_b64_tr_b16 {V(WF+4*t+2,2)}, {V(vWT)} offset:{1024*t + 512}')
    for i in range(4): a(f'ds_read2st64_b32 {V(vWD+2*i,2)}, {V(vWDR)} offset0:{2*i} offset1:{2*i+1}')
    gq = T[4]
    a('s_waitcnt vmcnt(0)')
    stamp(0)
    X = [T[2+i] for i in range(8)]
    a(f'''
    v_and_b32 {V(T[12])}, {S(sHI)}, {V(XS+4)}
    v_lshlrev_b32 {V(T[14])}, 16, {V(XS+4)}
    v_rcp_f32 {V(T[12])}, {V(T[12])}
    ''')
    for i in range(4):
        a(f'v_lshlrev_b32 {V(X[2*i])}, 16, {V(XS+i)}\nv_and_b32 {V(X[2*i+1])}, {S(sHI)}, {V(XS+i)}')
        for e in range(2): a(f'v_sub_f32 {V(X[2*i+e])}, {V(X[2*i+e])}, {V(T[14])}')
    for i in range(4): a(f'v_cvt_pk_bf16_f32 {V(XA+i)}, {V(X[2*i])}, {V(X[2*i+1])}')
    for i in range(4):
        a(f'v_lshlrev_b32 {V(X[2*i])}, 16, {V(XA+i)}\nv_and_b32 {V(X[2*i+1])}, {S(sHI)}, {V(XA+i)}')
        for e in range(2): a(f'v_mul_f32 {V(X[2*i+e])}, {V(X[2*i+e])}, {V(T[12])}')
    for i in range(4): a(f'v_cvt_pk_bf16_f32 {V(XA+i)}, {V(X[2*i])}, {V(X[2*i+1])}')
    a('s_waitcnt lgkmcnt(4)')
    for t in range(4):
        a(f'v_mfma_f32_16x16x32_bf16 {V(DD+4*t,4)}, {V(XA,4)}, {V(WF+4*t,4)}, 0')
    a(f'''
    v_mov_b32 {V(gq+2)}, {S(sTAG)}
    v_mov_b32 {V(gq+3)}, 0
    s_cmp_eq_u32 {S(sPB)}, 0
    v_add_f32 {V(gq)}, {V(DD)}, {V(DD+5)}
    v_add_f32 {V(gq+1)}, {V(DD+8)}, {V(DD+13)}
    s_mov_b64 exec, 0xffff
    s_cbranch_scc0 L_p1far
    global_store_dwordx4 {V(vP1W)}, {V(gq,4)}, {S(sWS,2)}
    s_branch L_p1done
    L_p1far:
    global_store_dwordx4 {V(vP1W)}, {V(gq,4)}, {S(sWS,2)} sc1
    L_p1done:
    s_mov_b64 exec, -1
    s_cmp_eq_u32 {S(sPROD)}, 0
    s_cbranch_scc1 L_h_ge
    s_waitcnt lgkmcnt(0)
    ''')
    for i in range(8):
        a(f'v_lshlrev_b32 {V(WDF+2*i)}, 16, {V(vWD+i)}\nv_and_b32 {V(WDF+2*i+1)}, {S(sHI)}, {V(vWD+i)}')
    stamp(9)
    spin_init()
    a(f'''
    L_hspin:
    global_load_dwordx4 {V(T[0],4)}, {V(vP1R)}, {S(sWS,2)} sc1
    s_waitcnt vmcnt(0)
    v_cmp_ne_u32 vcc, {S(sTAG)}, {V(T[2])}
    s_cbranch_vccz L_hok
    ''')
    spin_next('L_hspin')
    a('L_hok:')
    for e in range(2): a(f'v_add_f32_dpp {V(T[e])}, {V(T[e])}, {V(T[e])} row_ror:8 row_mask:0xf bank_mask:0xf')
    for pl in ('v_permlane16_swap_b32', 'v_permlane32_swap_b32'):
        for e in range(2): a(f'v_mov_b32 {V(T[2+e])}, {V(T[e])}')
        for e in range(2): a(f'{pl} {V(T[e])}, {V(T[2+e])}')
        for e in range(2): a(f'v_add_f32 {V(T[e])}, {V(T[e])}, {V(T[2+e])}')
    a(f'''
    v_cvt_pk_bf16_f32 {V(T[2])}, {V(T[0])}, {V(T[1])}
    v_lshlrev_b32 {V(T[0])}, 16, {V(T[2])}
    v_mul_f32 {V(T[1])}, 0xbfb8aa3b, {V(T[0])}
    v_exp_f32 {V(T[1])}, {V(T[1])}
    v_and_b32 {V(T[2])}, {S(sHI)}, {V(T[2])}
    v_add_f32 {V(T[1])}, 1.0, {V(T[1])}
    v_rcp_f32 {V(T[1])}, {V(T[1])}
    s_nop 0
    v_mul_f32 {V(T[1])}, {V(T[0])}, {V(T[1])}
    v_cvt_pk_bf16_f32 {V(T[1])}, {V(T[1])}, {V(T[1])}
    v_and_b32 {V(T[1])}, {S(sHI)}, {V(T[1])}
    v_mul_f32 {V(T[1])}, {V(T[1])}, {V(T[2])}
    v_cvt_pk_bf16_f32 {V(T[1])}, {V(T[1])}, {V(T[1])}
    v_and_b32 {V(T[1])}, {S(sHI)}, {V(T[1])}
    ''')
    for i in range(8):
        for e in range(2):
            a(f"{'v_mul_f32_dpp' if i == 0 else 'v_fmac_f32_dpp'} {V(gq+e)}, {V(T[1])}, {V(WDF+2*i+e)} row_newbcast:{i} row_mask:0xf bank_mask:0xf")
    a(f'global_store_dwordx4 {V(vFPA)}, {V(gq,4)}, {S(sWS,2)} sc1')
    stamp(10)
    a('L_h_ge:\ns_setprio 0')
    for r in range(o['prerows']): ge_row(r)
    a('L_h_b5:\ns_barrier')
    YR = vP
    def epilogue(ge):
        for r in range(4):
            if ge and r >= o['prerows']: ge_row(r)
            for c in range(4):
                a(f'v_fma_f32 {V(vE+4*r+c)}, {V(YR+4*c+r)}, {V(vXN+4*r+c)}, {V(vE+4*r+c)}')
            a(f'''
            v_cvt_pk_bf16_f32 {V(vD+2*r)}, {V(vE+4*r)}, {V(vE+4*r+1)}
            v_cvt_pk_bf16_f32 {V(vD+2*r+1)}, {V(vE+4*r+2)}, {V(vE+4*r+3)}
            s_mov_b64 exec, {S(sM+2*r,2)}
            global_store_dwordx2 {V(vXG)}, {V(vD+2*r,2)}, {S(sOUT,2)} offset:{r*1024}
            s_mov_b64 exec, -1
            ''')
    for c in range(4): a(f'ds_read_b128 {V(YR+4*c,4)}, {V(vY)} offset:{c*YCS}')
    if o['b6']:
        a(f'''
        s_lshr_b32 {S(sT0)}, {S(sWI)}, 1
        s_and_b32 {S(sT1)}, {S(sT0)}, {S(sOWN)}
        s_andn2_b32 {S(sT2)}, {S(sOWN)}, {S(sT0)}
        s_cmp_eq_u32 {S(sT1)}, 0
        s_cbranch_scc1 L_h_st
        ''')
        for r in range(o['prerows'], 4): ge_row(r)
        a('s_barrier\ns_waitcnt lgkmcnt(0)')
        epilogue(False)
        a('s_branch L_h_done\nL_h_st:')
    a('s_waitcnt lgkmcnt(0)')
    epilogue(True)
    for r in range(0):
        for c in range(4):
            a(f'v_fma_f32 {V(vE+4*r+c)}, {V(YR+4*c+r)}, {V(vXN+4*r+c)}, {V(vE+4*r+c)}')
        a(f'''
        v_cvt_pk_bf16_f32 {V(vD+2*r)}, {V(vE+4*r)}, {V(vE+4*r+1)}
        v_cvt_pk_bf16_f32 {V(vD+2*r+1)}, {V(vE+4*r+2)}, {V(vE+4*r+3)}
        s_mov_b64 exec, {S(sM+2*r,2)}
        global_store_dwordx2 {V(vXG)}, {V(vD+2*r,2)}, {S(sOUT,2)} offset:{r*1024}
        s_mov_b64 exec, -1
        ''')
    if o['b6']:
        a(f'''
        s_cmp_eq_u32 {S(sT2)}, 0
        s_cbranch_scc1 L_h_done
        s_waitcnt vmcnt({o['b6cnt']})
        s_barrier
        L_h_done:
        ''')
    if o['stamp'] or o['diag'] >= 0:
        stamp(11)
        a('s_waitcnt vmcnt(0)')
        stamp(12)
    if o['diag'] >= 0:
        a('''
        s_memrealtime s[90:91]
        s_sub_u32 s88, s88, s86
        s_min_u32 s88, s88, 2000
        s_lshl_b32 s88, s88, 2
        s_waitcnt lgkmcnt(0)
        s_add_u32 s88, s88, s90
        L_diag:
        s_memrealtime s[90:91]
        s_waitcnt lgkmcnt(0)
        s_sub_u32 s90, s90, s88
        s_cmp_lt_i32 s90, 0
        s_cbranch_scc1 L_diag
        ''')
    a('L_exit:')
    if o['stamp']:
        a('v_mov_b32 v254, 0')
        for i in range(14): a(f'v_writelane_b32 v254, s{86+i}, {i}')
        a(f'global_store_dword {V(vSTA)}, v254, {S(sWS,2)}')
    a('L_end:\ns_endpgm')
    a.raw('''.section .rodata,"a"
.p2align 6
.amdhsa_kernel %s_kernel
  .amdhsa_next_free_vgpr 256
  .amdhsa_next_free_sgpr 102
  .amdhsa_accum_offset 256
  .amdhsa_group_segment_fixed_size 0
  .amdhsa_kernarg_size 136
  .amdhsa_user_sgpr_count 2
  .amdhsa_user_sgpr_kernarg_segment_ptr 1
  .amdhsa_system_sgpr_workgroup_id_x 1
.end_amdhsa_kernel''' % KN)
    return a.text()


if __name__ == '__main__':
    out = sys.argv[1]
    opt = {}
    for kv in sys.argv[2:]:
        k, val = kv.split('='); opt[k] = int(val, 0)
    open(out, 'w').write(generate(**opt))
```

```python
import sys
from asmlib import *

KN = 'recurrent_scan__ssm_conv_s4__moe_arch_mod__prompt'

DEFAULTS = dict(stamp=0, cyc=0, force_slow=0, prefetch=1, wpf=1, spinmax=1 << 16, diag=-1,
                maxout=15, group=3, minfly=6, b6=1, b6cnt=1, nb=6, wdearly=0, wpfb3=1, hnormfirst=1, ffnprio=2, tlb=0, tlbsh=16, wnt=0, xnt=0, pnt=0, prerows=1, jc=4, jh=9, jf=17, p1nt=1, pfirst=0, cpf=1, cpfn=6)

RS = 2064
STAGE = 0
R4 = 0; R4S = 18560; CAS = 288
YX = 74240; YCS = 5120; YTS = 1280; YGS = 320
U = 109440; US = 4576
TAB = 127744; TS = 1552
WL = 133952; WL1 = 8320
SL = 150528
AM = 158720
FF = 158752
TG = 158768
PF = 158784
FP = 158848
LDS_BYTES = 159872
W_ST = 0x1000; W_FL = 0x6000; W_FP = 0x10000; W_P1 = 0xD0000; W_IN = 0x100000; W_STAMP = 0x800000

sX, sARE, sAIM, sBRE, sBIM, sCRE, sCIM, sLDT = 4, 6, 8, 10, 12, 14, 16, 18
sDSK, sWR, sWG, sWU, sWD, sOUT, sDBG, sWS = 20, 24, 26, 28, 30, 32, 34, 36
sW, sK, sJ, sCGL, sH, sCH0, sT, sXCC, sTAG, sTAGX = 38, 39, 40, 41, 42, 43, 44, 45, 46, 47
sPB, sDS = 48, 50
sONES, sF8, sPROD, sIDX, sKEY, sCNT = 52, 53, 54, 55, 56, 57
sT0, sT1, sT2, sT3 = 58, 59, 60, 61
sOWN, sINB = 62, 63
sM = 64
sH8 = 72
sHI = 80
sSTP = 82
sWI = 84
sP1 = 85
sCM = 78
sA = 76; sR = 77
sROLE = 81

vL = 1
vGA = 2
vSEL = 10
vR4W, vUW, vST0, vST1, vFL, vIN, vXG, vXC = 16, 17, 18, 19, 20, 21, 22, 23
vKA, vKB, vPD, vY = 24, 25, 26, 27
vA0, vA1, vA2, vA3, vA4, vA5, vA6, vA7 = 28, 29, 30, 31, 32, 33, 34, 35
vEP, vPFD, vROW, vSTA = 36, 37, 38, 39
vD = 40
vG = 48
vXF = 56
vXN = 72
vE = 88
vP = 104
vB0, vB1, vB2, vB3, vB4, vB5 = 224, 225, 226, 227, 228, 229
vWD = 232
vT = 240
vCA, vCA2, vCB, vFLO = vA0, vA1, vA2, vA3
vTW1, vTW2, vTW3, vTW4, vWT, vWDA, vFPA, vXS = vA0, vA1, vA2, vA3, vA4, vA5, vA6, vA7
vWS0, vWS1, vP1W, vP1R, vFFW, vSTP = vB0, vB1, vB2, vB3, vB4, vB5
vWD1, vPFW = 230, 231
vTLB = 223
vWDR = 222; vP1F = 221


def tiles(h): return [2 * i + ((i ^ h) & 1) for i in range(4)]


def generate(**opt):
    o = dict(DEFAULTS); o.update(opt)
    a = Asm()
    V = v; S = s

    def stamp(i):
        if o['diag'] == i:
            a('s_memrealtime s[88:89]\ns_waitcnt lgkmcnt(0)')
        if not o['stamp'] or (o['stamp'] == 2 and i != 12): return
        a(f"{'s_memtime' if o['cyc'] else 's_memrealtime'} {S(sSTP,2)}\ns_waitcnt lgkmcnt(0)\ns_mov_b32 s{86+i}, {S(sSTP)}")

    def cmul(d, x, y):
        a(f'v_pk_mul_f32 {V(d,2)}, {V(x,2)}, {V(y,2)} op_sel:[1,1] op_sel_hi:[1,0]')
        a(f'v_pk_fma_f32 {V(d,2)}, {V(x,2)}, {V(y,2)}, {V(d,2)} op_sel:[0,0,0] op_sel_hi:[0,1,1] neg_lo:[0,0,1]')

    def lane63(): a('s_mov_b32 exec_lo, 0\ns_mov_b32 exec_hi, 0x80000000')
    def alllanes(): a('s_mov_b64 exec, -1')
    def spin_init(): a(f"s_mov_b32 {S(sCNT)}, {o['spinmax']}")
    def spin_next(lbl): a(f's_sub_u32 {S(sCNT)}, {S(sCNT)}, 1\ns_cmp_lg_u32 {S(sCNT)}, 0\ns_cbranch_scc1 {lbl}')

    def ssum(dst, *terms):
        first = True; const = 0
        for t in terms:
            if isinstance(t, int): const += t; continue
            r, sh = t
            if first:
                a(f's_lshl_b32 {S(dst)}, {S(r)}, {sh}' if sh else f's_mov_b32 {S(dst)}, {S(r)}'); first = False
            elif sh:
                a(f's_lshl_b32 {S(sT3)}, {S(r)}, {sh}\ns_add_u32 {S(dst)}, {S(dst)}, {S(sT3)}')
            else:
                a(f's_add_u32 {S(dst)}, {S(dst)}, {S(r)}')
        if const: a(f's_add_u32 {S(dst)}, {S(dst)}, {const}')

    def smul(dst, r, k, const=0):
        a(f's_mul_i32 {S(dst)}, {S(r)}, {k}')
        if const: a(f's_add_u32 {S(dst)}, {S(dst)}, {const}')

    T = [vT + i for i in range(16)]

    a.raw('; @launch grid=(256,1,1) block=(512,1,1) lds=%d' % LDS_BYTES)
    a.raw('.amdgcn_target "amdgcn-amd-amdhsa--gfx950"\n.text\n.globl %s_kernel\n.p2align 8\n.type %s_kernel,@function\n%s_kernel:' % (KN, KN, KN))
    a('''
    s_cmp_ge_u32 s2, 256
    s_cbranch_scc1 L_end
    s_load_dwordx16 s[4:19], s[0:1], 0
    s_load_dwordx16 s[20:35], s[0:1], 64
    s_load_dwordx2 s[36:37], s[0:1], 128
    ''')
    if o['cpf']:
        a.comment('pull the rest of this kernel code into L2: a few lines per workgroup of each XCD class')
        a(f'''
        s_getpc_b64 {S(sPB,2)}
        s_lshr_b32 {S(sT0)}, s2, 3
        s_mul_i32 {S(sT0)}, {S(sT0)}, {128*o['cpfn']}
        v_lshl_add_u32 {V(vTLB)}, v0, 7, {S(sT0)}
        v_min_u32 {V(vTLB)}, L_end - L_cpf, {V(vTLB)}
        v_cmp_gt_u32 vcc, {o['cpfn']}, v0
        s_and_saveexec_b64 {S(sM,2)}, vcc
        s_cbranch_execz L_cpf
        global_load_dword {V(vTLB)}, {V(vTLB)}, {S(sPB,2)}
        L_cpf:
        s_mov_b64 exec, -1
        ''')
    if o['diag'] >= 0: a('s_memrealtime s[86:87]')
    if o['stamp']: a(f"{'s_memtime' if o['cyc'] else 's_memrealtime'} s[100:101]")
    a(f'''
    v_lshrrev_b32 {V(T[0])}, 6, v0
    v_and_b32 {V(vL)}, 63, v0
    v_readfirstlane_b32 {S(sW)}, {V(T[0])}
    s_and_b32 {S(sK)}, s2, 7
    s_lshr_b32 {S(sJ)}, s2, 3
    s_and_b32 {S(sCGL)}, {S(sJ)}, 15
    s_lshr_b32 {S(sH)}, {S(sJ)}, 4
    s_and_b32 {S(sWI)}, {S(sW)}, 3
    s_cmp_ge_u32 {S(sW)}, 4
    s_cselect_b32 {S(sROLE)}, 1, 0
    ''')
    ssum(sCH0, (sK, 6), (sCGL, 2))
    for i in range(7): a(f'v_mov_b32 {V(vP+i)}, 0')
    a(f's_add_u32 {S(sT1)}, {S(sCH0)}, {S(sWI)}')
    a(f's_lshr_b32 {S(sT2)}, {S(sW)}, 2')
    ssum(sT0, (sT1, 8), (sT2, 7))
    a(f'v_lshl_add_u32 {V(T[1])}, {V(vL)}, 1, {S(sT0)}')
    a(f's_lshl_b32 {S(sT1)}, {S(sT1)}, 1')
    a(f'v_mov_b32 {V(T[2])}, {S(sT1)}')
    if o['stamp']:
        ssum(sT1, (2, 11), (sW, 8), W_STAMP)
        a(f'v_lshl_add_u32 {V(vSTA)}, {V(vL)}, 2, {S(sT1)}')
        for i in range(14): a(f's_mov_b32 s{86+i}, 0')

    def param_loads():
        for i, p in enumerate((sARE, sAIM, sBRE, sBIM, sCRE, sCIM)):
            a(f"global_load_short_d16_hi {V(vP+i)}, {V(T[1])}, {S(p,2)}{' nt' if o['pnt'] else ''}")
        a(f'global_load_short_d16_hi {V(vP+6)}, {V(T[2])}, {S(sLDT,2)}')

    a(f's_cmp_eq_u32 {S(sROLE)}, 1\ns_cbranch_scc1 L_h_load')
    ssum(sT0, (sJ, 16), (sW, 14), (sK, 7))
    a(f'''
    v_lshrrev_b32 {V(T[3])}, 3, {V(vL)}
    v_and_b32 {V(T[4])}, 7, {V(vL)}
    v_lshlrev_b32 {V(T[3])}, 10, {V(T[3])}
    v_lshl_add_u32 {V(T[3])}, {V(T[4])}, 4, {V(T[3])}
    v_add_u32 {V(T[3])}, {S(sT0)}, {V(T[3])}
    v_add_u32 {V(T[4])}, 8192, {V(T[3])}
    s_waitcnt lgkmcnt(0)
    ''')
    if o['stamp']: a('s_mov_b32 s99, s100')
    if o['diag'] >= 0: a('s_mov_b32 s88, s86')
    stamp(0)
    XNT = ' nt' if o['xnt'] else ''
    PF1 = o['pfirst']
    if PF1: param_loads()
    a(f'global_load_dwordx4 {V(vD,4)}, {V(T[3])}, {S(sX,2)}{XNT}')
    a(f'global_load_dwordx4 {V(vD+4,4)}, {V(T[4])}, {S(sX,2)}{XNT}')
    if not PF1: param_loads()
    a('s_branch L_init')
    a('L_h_load:')
    ssum(sT0, (2, 13), (sWI, 11))
    a(f'''
    v_and_b32 {V(T[3])}, 31, {V(vL)}
    v_lshlrev_b32 {V(T[3])}, 4, {V(T[3])}
    v_lshrrev_b32 {V(T[4])}, 5, {V(vL)}
    v_lshl_add_u32 {V(T[4])}, {V(T[4])}, 10, {V(T[3])}
    v_add_u32 {V(T[4])}, {S(sT0)}, {V(T[4])}
    v_mov_b32 {V(T[5])}, 0
    s_waitcnt lgkmcnt(0)
    ''')
    if o['stamp']: a('s_mov_b32 s99, s100')
    if o['diag'] >= 0: a('s_mov_b32 s88, s86')
    stamp(0)
    if PF1: param_loads()
    a(f'''
    global_load_dwordx4 {V(vG,4)}, {V(T[3])}, {S(sWR,2)}
    global_load_dwordx4 {V(vG+4,4)}, {V(T[3])}, {S(sWR,2)} offset:512
    global_load_dwordx4 {V(vD,4)}, {V(T[4])}, {S(sX,2)}{XNT}
    global_load_dwordx4 {V(vD+4,4)}, {V(T[4])}, {S(sX,2)} offset:512{XNT}
    global_load_dword {V(vEP)}, {V(T[5])}, {S(sWS,2)} sc1
    ''')
    if not PF1: param_loads()

    a('L_init:')
    a(f'''
    v_mov_b32 {V(T[6])}, 0
    v_mov_b32 {V(T[7])}, 0x3f80
    s_lshl_b32 {S(sT0)}, {S(sW)}, 8
    s_mov_b32 m0, {S(sT0)}
    v_and_b32 {V(T[8])}, 127, v0
    ds_write_addtid_b32 {V(T[7])} offset:{STAGE}
    v_min_u32 {V(T[8])}, 119, {V(T[8])}
    v_lshrrev_b32 {V(T[9])}, 7, v0
    v_mul_u32_u24 {V(T[10])}, {US}, {V(T[9])}
    v_lshl_add_u32 {V(T[10])}, {V(T[8])}, 2, {V(T[10])}
    v_add_u32 {V(T[10])}, {U}, {V(T[10])}
    ds_write_b32 {V(T[10])}, {V(T[6])}
    s_cmp_lg_u32 {S(sW)}, 0
    s_cbranch_scc1 L_init2
    v_bfe_u32 {V(T[9])}, {V(vL)}, 1, 2
    v_mul_u32_u24 {V(T[9])}, {TS}, {V(T[9])}
    v_and_b32 {V(T[8])}, 1, {V(vL)}
    v_lshl_add_u32 {V(T[9])}, {V(T[8])}, 2, {V(T[9])}
    v_add_u32 {V(T[9])}, {TAB}, {V(T[9])}
    v_and_b32 {V(T[8])}, 15, {V(vL)}
    v_lshlrev_b32 {V(T[8])}, 2, {V(T[8])}
    v_add_u32 {V(T[8])}, {FF}, {V(T[8])}
    s_mov_b64 exec, 0xffff
    ds_write_b32 {V(T[9])}, {V(T[6])}
    ds_write_b32 {V(T[8])}, {V(T[6])}
    s_mov_b64 exec, -1
    L_init2:
    s_waitcnt lgkmcnt(0)
    s_barrier
    s_lshl_b32 {S(sT0)}, {S(sCH0)}, 1
    s_load_dwordx2 {S(sDS,2)}, {S(sDSK,2)}, {S(sT0)}
    s_getreg_b32 {S(sXCC)}, hwreg(HW_REG_XCC_ID, 0, 4)
    s_mov_b32 {S(sONES)}, 0x3f803f80
    s_mov_b32 {S(sHI)}, 0xffff0000
    s_lshr_b32 {S(sT0)}, {S(sW)}, 2
    s_xor_b32 {S(sT0)}, {S(sT0)}, {S(sWI)}
    s_xor_b32 {S(sT0)}, {S(sT0)}, {S(sH)}
    s_xor_b32 {S(sT0)}, {S(sT0)}, 1
    s_and_b32 {S(sT0)}, {S(sT0)}, 1
    s_lshl_b32 {S(sT)}, {S(sWI)}, 1
    s_add_u32 {S(sT)}, {S(sT)}, {S(sT0)}
    s_lshr_b32 {S(sT0)}, {S(sJ)}, 3
    s_and_b32 {S(sT1)}, {S(sJ)}, 7
    ''')
    ssum(sA, (sT0, 3), (sK, 0))
    a(f's_mov_b32 {S(sR)}, {S(sT1)}')
    ssum(sF8, (sA, 3), (sR, 0))
    a(f'''
    s_cmp_lt_u32 {S(sA)}, 22
    s_cselect_b32 {S(sP1)}, 1, 0
    s_cmp_lt_u32 {S(sF8)}, 172
    s_cselect_b32 {S(sPROD)}, 1, 0
    s_cselect_b32 {S(sF8)}, {S(sF8)}, {S(sJ)}
    s_lshl_b32 {S(sT0)}, {S(sK)}, 1
    s_lshl_b32 {S(sCM)}, 0x00030003, {S(sT0)}
    s_mov_b32 {S(sCM+1)}, {S(sCM)}
    ''')

    pos = [vXF + i for i in range(7)]
    a(f'v_lshlrev_b32 {V(T[0])}, 2, v0')
    a(f's_cmp_eq_u32 {S(sW)}, 0\ns_cbranch_scc1 L_pos0')
    for i in range(7): a(f'v_add_u32 {V(pos[i])}, {i-3}, {V(T[0])}')
    for i in range(7): a(f'v_cvt_f32_u32 {V(pos[i])}, {V(pos[i])}')
    for i in range(0, 7, 2):
        j = min(i + 1, 6)
        a(f'v_cvt_pk_bf16_f32 {V(T[8+i//2])}, {V(pos[i])}, {V(pos[j])}')
    a(f'v_mov_b32 {V(T[1])}, {4 - 0x4280}')
    for i in range(7):
        a(f'v_bfe_u32 {V(pos[i])}, {V(T[8+i//2])}, {16*(i&1)}, 16')
        a(f'v_add_u32 {V(pos[i])}, {V(T[1])}, {V(pos[i])}')
    a('s_branch L_pos_done')
    a('L_pos0:')
    for i in range(7): a(f'v_add_u32 {V(pos[i])}, {i+1}, {V(T[0])}')
    a('L_pos_done:')
    b1, b2 = T[1], T[2]
    a(f'''
    v_and_b32 {V(b1)}, -2, {V(pos[2])}
    v_add_u32 {V(b1)}, -2, {V(b1)}
    v_and_b32 {V(b2)}, -2, {V(pos[3])}
    v_add_u32 {V(T[3])}, {V(b1)}, {V(b1)}
    v_add_u32 {V(T[4])}, {V(b2)}, {V(b2)}
    ''')
    for c in range(4):
        a(f'v_add_u32 {V(vGA+2*c)}, {TAB + c*TS}, {V(T[3])}')
        a(f'v_add_u32 {V(vGA+2*c+1)}, {TAB + c*TS}, {V(T[4])}')
    for i in range(3): a(f'v_sub_u32 {V(pos[i])}, {V(pos[i])}, {V(b1)}')
    for i in range(3, 7): a(f'v_sub_u32 {V(pos[i])}, {V(pos[i])}, {V(b2)}')
    a(f's_movk_i32 {S(sT0)}, 0x0202\nv_mov_b32 {V(T[3])}, 0x0100')
    for i in range(7): a(f'v_mad_u32_u24 {V(pos[i])}, {V(pos[i])}, {S(sT0)}, {V(T[3])}')
    for dst, lo, hi in ((0, 1, 0), (1, 2, 1), (2, 3, 2), (3, 4, 3), (4, 5, 4), (5, 6, 5)):
        a(f'v_lshl_or_b32 {V(vSEL+dst)}, {V(pos[hi])}, 16, {V(pos[lo])}')
    a(f'v_add_u32 {V(vSEL+2)}, 0x{(2*0x0202 - 2*0x02020000) & 0xffffffff:x}, {V(vSEL+2)}')
    a(f'''
    v_and_b32 {V(T[0])}, -4, v0
    v_lshlrev_b32 {V(T[0])}, 2, {V(T[0])}
    v_lshl_add_u32 {V(vR4W)}, v0, 5, {V(T[0])}
    v_add_u32 {V(vR4W)}, {R4 + 144}, {V(vR4W)}
    ''')
    a(f's_lshl_b32 {S(sT0)}, {S(sT)}, 6')
    a(f'v_add_u32 {V(T[0])}, {S(sT0)}, {V(vL)}')
    ssum(sINB, (sK, 18), (sCGL, 14), W_IN)
    ssum(sT1, (sK, 9), W_FL)
    ssum(sT2, (sK, 5), W_ST + 12)
    a(f'''
    v_lshlrev_b32 {V(vROW)}, 2, {V(T[0])}
    v_lshlrev_b32 {V(vUW)}, 3, {V(T[0])}
    v_add_u32 {V(vUW)}, {U + 480}, {V(vUW)}
    v_lshlrev_b32 {V(vST0)}, 4, {V(T[0])}
    v_add_u32 {V(vST1)}, {W_ST + 8192}, {V(vST0)}
    v_add_u32 {V(vST0)}, {W_ST}, {V(vST0)}
    s_lshl_b32 {S(sT0)}, {S(sCH0)}, 1
    v_lshl_add_u32 {V(vXG)}, {V(T[0])}, 12, {S(sT0)}
    v_lshrrev_b32 {V(T[1])}, 2, {V(T[0])}
    v_lshl_add_u32 {V(vFL)}, {V(T[1])}, 2, {S(sT1)}
    v_and_b32 {V(T[2])}, 3, {V(vL)}
    v_lshl_add_u32 {V(T[2])}, {V(T[2])}, 4, {S(sINB)}
    v_lshl_add_u32 {V(vIN)}, {V(T[1])}, 7, {V(T[2])}
    v_lshrrev_b32 {V(T[1])}, 4, {V(T[0])}
    v_lshl_add_u32 {V(vXC)}, {V(T[1])}, 8, {S(sT2)}
    ''')
    smul(sT1, sWI, US, U + 480)
    a(f'''
    v_and_b32 {V(T[0])}, 31, {V(vL)}
    v_lshrrev_b32 {V(T[1])}, 5, {V(vL)}
    s_lshl_b32 {S(sT0)}, {S(sW)}, 8
    v_lshl_add_u32 {V(T[2])}, {V(T[1])}, 4, {S(sT0)}
    s_movk_i32 {S(sT0)}, {RS}
    v_mad_u32_u24 {V(vKB)}, {V(T[0])}, {S(sT0)}, {V(T[2])}
    v_add_u32 {V(T[3])}, -16, {V(T[0])}
    v_cmp_lt_u32 vcc, 20, {V(T[0])}
    v_lshl_add_u32 {V(vPD)}, {V(vL)}, 4, {S(sT1)}
    v_cndmask_b32 {V(T[3])}, {V(T[0])}, {V(T[3])}, vcc
    v_mad_u32_u24 {V(vKA)}, {V(T[3])}, {S(sT0)}, {V(T[2])}
    v_add_u32 {V(vKA)}, {STAGE + 32*RS}, {V(vKA)}
    v_and_b32 {V(T[5])}, 15, {V(vL)}
    v_lshrrev_b32 {V(T[6])}, 4, {V(vL)}
    s_cmp_eq_u32 {S(sROLE)}, 1
    s_cbranch_scc1 L_h_setup
    ''')

    slw, slw1, slr, slr1, ina, ina1, tga, pfa_c = [vXN + i for i in range(8)]
    ssum(sT0, (sW, 11), SL)
    a(f'''
    v_lshrrev_b32 {V(T[0])}, 3, {V(vL)}
    v_and_b32 {V(T[1])}, 7, {V(vL)}
    v_xor_b32 {V(T[2])}, {V(T[6])}, {V(T[1])}
    v_lshl_add_u32 {V(T[2])}, {V(T[2])}, 4, {S(sT0)}
    v_lshl_add_u32 {V(slw)}, {V(T[0])}, 7, {V(T[2])}
    v_xor_b32 {V(slw1)}, 64, {V(slw)}
    v_and_b32 {V(T[2])}, 3, {V(vL)}
    v_bfe_u32 {V(T[3])}, {V(vL)}, 2, 1
    v_lshl_add_u32 {V(T[2])}, {V(T[2])}, 1, {V(T[3])}
    v_xor_b32 {V(T[3])}, {V(T[6])}, {V(T[2])}
    v_lshl_add_u32 {V(T[3])}, {V(T[3])}, 4, {S(sT0)}
    v_lshl_add_u32 {V(T[3])}, {V(T[2])}, 8, {V(T[3])}
    v_and_b32 {V(T[4])}, 1, {V(T[0])}
    v_lshl_add_u32 {V(slr)}, {V(T[4])}, 3, {V(T[3])}
    v_xor_b32 {V(slr1)}, 64, {V(slr)}
    ''')
    ssum(sT0, (sK, 18), (sJ, 9), (sW, 7), W_IN)
    a(f'''
    v_lshl_add_u32 {V(T[1])}, {V(T[1])}, 4, {S(sT0)}
    v_lshl_add_u32 {V(ina)}, {V(T[0])}, 14, {V(T[1])}
    v_add_u32 {V(ina1)}, 0x20000, {V(ina)}
    ''')
    ssum(sT0, (sK, 9), (sJ, 4), (sW, 2), W_FL)
    a(f'v_mov_b32 {V(vFLO)}, {S(sT0)}')
    ssum(sT0, (sW, 2), TG)
    a(f'v_mov_b32 {V(tga)}, {S(sT0)}')
    a('s_waitcnt vmcnt(2)\ns_branch L_kgen' if PF1 else 's_branch L_c_slice')

    a('L_h_setup:')
    ssum(sT1, (sWI, 2), FF)
    a(f'''
    v_mov_b32 {V(vFFW)}, {S(sT1)}
    s_lshr_b32 {S(sT1)}, {S(sWI)}, 1
    s_and_b32 {S(sT2)}, {S(sWI)}, 1
    ''')
    ssum(sT0, (2, 5), (sT1, 4), (sT2, 13), W_ST)
    a(f'v_mov_b32 {V(vSTP)}, {S(sT0)}')
    rk, pfi = vXN, vXN + 8
    ssum(sT0, (2, 3), (sWI, 1))
    a(f's_sub_u32 {S(sT0)}, 0xffff, {S(sT0)}\nv_sub_u32 {V(rk)}, {S(sT0)}, {V(T[1])}')
    ssum(sT0, (sH, 13), (sWI, 11), (sINB, 0))
    a(f'v_lshl_add_u32 {V(pfi)}, {V(T[5])}, 7, {S(sT0)}')
    if PF1: a('s_waitcnt vmcnt(5)')

    def table_setup():
        smul(sT0, sWI, TS, TAB + 8)
        a(f'''
        v_and_b32 {V(T[0])}, 31, {V(vL)}
        v_lshrrev_b32 {V(T[1])}, 5, {V(vL)}
        v_lshl_add_u32 {V(T[2])}, {V(T[1])}, 3, {S(sT0)}
        v_lshl_add_u32 {V(vTW1)}, {V(T[0])}, 4, {V(T[2])}
        v_sub_u32 {V(T[2])}, 3, {V(T[1])}
        v_lshlrev_b32 {V(T[2])}, {V(T[2])}, {V(T[0])}
        v_lshl_add_u32 {V(T[3])}, {V(T[1])}, 8, {S(sT0)}
        v_add_u32 {V(T[3])}, 512, {V(T[3])}
        v_add_u32 {V(vTW2)}, {V(T[2])}, {V(T[3])}
        v_mul_u32_u24 {V(T[2])}, 124, {V(T[1])}
        v_add3_u32 {V(vTW3)}, {V(vTW2)}, {V(T[2])}, 4
        v_lshl_add_u32 {V(vTW4)}, {V(T[0])}, 1, {V(T[3])}
        v_add_u32 {V(vTW4)}, 512, {V(vTW4)}
        ''')

    def wsrc_setup():
        ssum(sT0, (sA, 7), (sWI, 5))
        ssum(sT1, (sF8, 13), (sWI, 8))
        ssum(sT2, (sF8, 10), W_P1)
        a(f'''
        s_min_u32 {S(sT0)}, {S(sT0)}, 2720
        v_lshrrev_b32 {V(T[6])}, 1, {V(vL)}
        v_lshl_add_u32 {V(T[6])}, {S(sR)}, 6, {V(T[6])}
        v_and_b32 {V(T[7])}, 1, {V(vL)}
        v_lshl_add_u32 {V(T[7])}, {V(T[7])}, 4, {S(sT0)}
        s_movk_i32 {S(sT0)}, 2752
        v_mad_u32_u24 {V(vWS0)}, {V(T[6])}, {S(sT0)}, {V(T[7])}
        v_add_u32 {V(vWS1)}, {32*2752}, {V(vWS0)}
        v_and_b32 {V(T[6])}, 15, {V(vL)}
        v_lshrrev_b32 {V(T[7])}, 4, {V(vL)}
        v_lshl_add_u32 {V(vWDA)}, {V(T[6])}, 4, {S(sT1)}
        v_lshl_add_u32 {V(vWDA)}, {V(T[7])}, 10, {V(vWDA)}
        v_add_u32 {V(vWD1)}, 4096, {V(vWDA)}
        v_lshl_add_u32 {V(vP1R)}, {V(vL)}, 4, {S(sT2)}
        v_lshl_add_u32 {V(vP1F)}, {V(vL)}, 7, {S(sT2)}
        ''')

    def ffn_setup():
        smul(sT0, sWI, YTS, YX)
        ssum(sT1, (sWI, 12), WL)
        ssum(sT2, (sWI, 11), SL)
        a(f'''
        v_and_b32 {V(T[2])}, 3, {V(vL)}
        v_lshrrev_b32 {V(T[3])}, 2, {V(vL)}
        v_mul_u32_u24 {V(T[4])}, {YGS}, {V(T[2])}
        v_lshl_add_u32 {V(T[4])}, {V(T[3])}, 4, {V(T[4])}
        v_add_u32 {V(vY)}, {S(sT0)}, {V(T[4])}
        v_lshl_add_u32 {V(T[2])}, {V(T[2])}, 3, {S(sT1)}
        v_lshl_add_u32 {V(vWT)}, {V(T[3])}, 5, {V(T[2])}
        v_lshl_add_u32 {V(vWDR)}, {V(vL)}, 2, {S(sT2)}
        v_and_b32 {V(T[2])}, 255, v0
        v_lshrrev_b32 {V(T[4])}, 1, {V(T[2])}
        v_mul_u32_u24 {V(T[4])}, 6144, {V(T[4])}
        v_and_b32 {V(T[3])}, 1, {V(vL)}
        v_lshl_add_u32 {V(T[4])}, {V(T[3])}, 4, {V(T[4])}
        ''')
        ssum(sT1, (sF8, 5), W_FP)
        a(f'v_add_u32 {V(vFPA)}, {S(sT1)}, {V(T[4])}')
        ssum(sT0, (sA, 13), (sWI, 11), (sR, 7), W_P1)
        a(f'''
        s_lshl_b32 {S(sT1)}, {S(sR)}, 7
        v_lshrrev_b32 {V(T[2])}, 4, {V(vL)}
        v_lshl_add_u32 {V(T[2])}, {V(T[2])}, 3, {S(sT1)}
        v_lshl_add_u32 {V(vXS)}, {V(T[3])}, 6, {V(T[2])}
        v_bfe_u32 {V(T[2])}, {V(vL)}, 3, 1
        v_and_b32 {V(T[3])}, 7, {V(vL)}
        v_lshl_add_u32 {V(T[3])}, {V(T[3])}, 4, {S(sT0)}
        v_lshl_add_u32 {V(vP1W)}, {V(T[2])}, 10, {V(T[3])}
        ''')

    def conv_setup():
        a(f'v_and_b32 {V(T[5])}, 15, {V(vL)}\nv_lshrrev_b32 {V(T[6])}, 4, {V(vL)}')
        smul(sT0, sW, R4S, R4)
        a(f'v_lshlrev_b32 {V(T[3])}, 3, {V(T[6])}\nv_sub_u32 {V(T[3])}, {V(T[5])}, {V(T[3])}')
        for reg, k in ((vCA, 32), (vCA2, 28)):
            a(f'''
            v_add_u32 {V(T[4])}, {k}, {V(T[3])}
            v_lshrrev_b32 {V(T[7])}, 4, {V(T[4])}
            v_lshl_add_u32 {V(reg)}, {V(T[4])}, 3, {S(sT0)}
            v_lshl_add_u32 {V(reg)}, {V(T[7])}, 4, {V(reg)}
            ''')
        smul(sT0, sW, US, U)
        a(f'''
        v_lshl_add_u32 {V(T[3])}, {V(T[6])}, 4, {S(sT0)}
        v_lshl_add_u32 {V(vCB)}, {V(T[5])}, 5, {V(T[3])}
        ''')
        smul(sT0, sW, YCS, YX)
        a(f'''
        v_mul_u32_u24 {V(T[3])}, {YGS}, {V(T[6])}
        v_lshl_add_u32 {V(T[3])}, {V(T[5])}, 4, {V(T[3])}
        v_add_u32 {V(vY)}, {S(sT0)}, {V(T[3])}
        ''')

    def slice_work():
        a('s_waitcnt vmcnt(0)' if PF1 else 's_waitcnt vmcnt(7)')
        stamp(1)
        a(f'''
        ds_write_b128 {V(slw)}, {V(vD,4)}
        ds_write_b128 {V(slw1)}, {V(vD+4,4)} offset:1024
        ds_read_b64 {V(vG,2)}, {V(slr)}
        ds_read_b64 {V(vG+2,2)}, {V(slr)} offset:128
        ds_read_b64 {V(vG+4,2)}, {V(slr1)}
        ds_read_b64 {V(vG+6,2)}, {V(slr1)} offset:128
        s_waitcnt lgkmcnt(0)
        global_store_dwordx4 {V(ina)}, {V(vG,4)}, {S(sWS,2)}
        global_store_dwordx4 {V(ina1)}, {V(vG+4,4)}, {S(sWS,2)}
        ''')


    S1, S2, S3, S4 = vXF, vXF + 1, vXF + 2, vXF + 3

    def red32(regs):
        for m in ('row_shr:1', 'row_shr:2', 'row_shr:4', 'row_shr:8'):
            for r in regs: a(f'v_add_f32_dpp {V(r)}, {V(r)}, {V(r)} {m} row_mask:0xf bank_mask:0xf')
        for r in regs: a(f'v_add_f32_dpp {V(r)}, {V(r)}, {V(r)} row_bcast:15 row_mask:0xa bank_mask:0xf')

    def ln_work():
        for r in (S1, S2, S3, S4): a(f'v_mov_b32 {V(r)}, 0')
        NP = 0 if PF1 else 7
        a(f's_setprio 2\ns_waitcnt vmcnt({3 + NP})')
        for i in range(8): a(f'v_dot2_f32_bf16 {V(S4)}, {V(vG+i)}, {S(sONES)}, {V(S4)}')
        red32([S4])
        a(f's_waitcnt vmcnt({1 + NP})')
        stamp(1)
        nlate = 0
        if o['prefetch']:
            a('s_mov_b64 exec, 0xffff')
            a(f'global_load_dword {V(vPFD)}, {V(pfi)}, {S(sWS,2)} nt'); nlate += 1
            alllanes()
        for i in range(8):
            a(f'v_dot2_f32_bf16 {V(S1)}, {V(vD+i)}, {S(sONES)}, {V(S1)}')
            a(f'v_dot2_f32_bf16 {V(S2)}, {V(vD+i)}, {V(vD+i)}, {V(S2)}')
            a(f'v_dot2_f32_bf16 {V(S3)}, {V(vD+i)}, {V(vG+i)}, {V(S3)}')
        red32([S1, S2, S3])
        t = T[0]; g = vE
        a(f'''
        v_mul_f32 {V(S1)}, 0x3b000000, {V(S1)}
        v_mul_f32 {V(S2)}, 0x3b000000, {V(S2)}
        s_waitcnt vmcnt({nlate + NP})
        v_fma_f32 {V(S2)}, -{V(S1)}, {V(S1)}, {V(S2)}
        v_readfirstlane_b32 {S(sTAG)}, {V(vEP)}
        v_max_f32 {V(S2)}, 0, {V(S2)}
        v_cvt_pk_bf16_f32 {V(t)}, {V(S1)}, {V(S2)}
        s_add_u32 {S(sTAG)}, {S(sTAG)}, 16
        v_and_b32 {V(t)}, {S(sHI)}, {V(t)}
        s_and_b32 {S(sTAG)}, {S(sTAG)}, -16
        v_add_f32 {V(t)}, 0x3727c5ac, {V(t)}
        s_or_b32 {S(sTAGX)}, {S(sTAG)}, {S(sXCC)}
        v_cvt_pk_bf16_f32 {V(t)}, {V(t)}, {V(t)}
        v_and_b32 {V(t)}, {S(sHI)}, {V(t)}
        v_sqrt_f32 {V(t)}, {V(t)}
        v_mov_b32 {V(g+3)}, {S(sTAGX)}
        v_cvt_pk_bf16_f32 {V(g+1)}, {V(S1)}, {V(t)}
        v_and_b32 {V(t)}, {S(sHI)}, {V(g+1)}
        v_lshlrev_b32 {V(t+1)}, 16, {V(g+1)}
        v_rcp_f32 {V(t)}, {V(t)}
        v_fma_f32 {V(S3)}, -{V(t+1)}, {V(S4)}, {V(S3)}
        v_readlane_b32 {S(sT0)}, {V(g+1)}, 31
        v_mul_f32 {V(S3)}, {V(S3)}, {V(t)}
        v_cvt_pk_bf16_f32 {V(S3)}, {V(S3)}, {V(S3)}
        v_mov_b32 {V(g)}, {S(sT0)}
        v_ashrrev_i32 {V(t)}, 31, {V(S3)}
        v_or_b32 {V(t)}, 0x80000000, {V(t)}
        v_xor_b32 {V(t)}, {V(t)}, {V(S3)}
        v_and_or_b32 {V(t)}, {V(t)}, {S(sHI)}, {V(rk)}
        s_add_u32 {S(sT1)}, {S(sTAG)}, 1
        v_readlane_b32 {S(sT0)}, {V(t)}, 31
        v_mov_b32 {V(t+2)}, {S(sT1)}
        v_max_u32 {V(g+2)}, {S(sT0)}, {V(t)}
        ''')
        lane63()
        a(f'global_store_dwordx4 {V(vSTP)}, {V(g,4)}, {S(sWS,2)} sc1')
        a(f'ds_write_b32 {V(vFFW)}, {V(t+2)} offset:{TG - FF}')
        alllanes()
        a(f"s_setprio 0\ns_waitcnt vmcnt({1 + nlate}) lgkmcnt(0)")
        stamp(2)

    if not PF1:
        ln_work()
        a('s_branch L_kgen\nL_c_slice:')
        slice_work()
        a('s_waitcnt vmcnt(2)')
    a('L_kgen:')
    are, aim, bre, bim, cre, cim, dt = [vP + i for i in range(7)]
    t0 = vP + 7
    z1, z2, z4, ZZ, w1, w2, w4 = [vP + 8 + 2 * i for i in range(7)]
    hq = [vP + 24 + 2 * i for i in range(8)]
    lq = [vP + 40 + 2 * i for i in range(8)]
    cv = [vP + 56 + i for i in range(8)]
    a(f'''
    v_mov_b32 {V(t0)}, 0x3fb8aa3b
    v_mul_f32 {V(dt)}, {V(dt)}, {V(t0)}
    v_exp_f32 {V(dt)}, {V(dt)}
    v_mul_f32 {V(are)}, {V(t0)}, {V(are)}
    v_cvt_pk_bf16_f32 {V(dt)}, {V(dt)}, {V(dt)}
    v_mul_f32 {V(aim)}, 0.15915494, {V(aim)}
    v_and_b32 {V(dt)}, {S(sHI)}, {V(dt)}
    v_mul_f32 {V(are)}, {V(dt)}, {V(are)}
    v_mul_f32 {V(aim)}, {V(dt)}, {V(aim)}
    v_exp_f32 {V(cv[0])}, {V(are)}
    v_fract_f32 {V(cv[1])}, {V(aim)}
    v_mul_f32 {V(are)}, 0x43800000, {V(are)}
    v_cos_f32 {V(z1)}, {V(cv[1])}
    v_mul_f32 {V(aim)}, 0x43800000, {V(aim)}
    v_sin_f32 {V(z1+1)}, {V(cv[1])}
    v_fract_f32 {V(cv[3])}, {V(aim)}
    v_exp_f32 {V(cv[2])}, {V(are)}
    v_mul_f32 {V(z1)}, {V(cv[0])}, {V(z1)}
    v_cos_f32 {V(ZZ)}, {V(cv[3])}
    v_mul_f32 {V(z1+1)}, {V(cv[0])}, {V(z1+1)}
    v_sin_f32 {V(ZZ+1)}, {V(cv[3])}
    v_mul_f32 {V(bre)}, {V(dt)}, {V(bre)}
    v_mul_f32 {V(bim)}, {V(dt)}, {V(bim)}
    ''')
    cmul(z2, z1, z1)
    a(f'v_mul_f32 {V(ZZ)}, {V(cv[2])}, {V(ZZ)}\nv_mul_f32 {V(ZZ+1)}, {V(cv[2])}, {V(ZZ+1)}')
    cmul(z4, z2, z2)
    cmul(hq[0], cre, bre)
    ci = [0]; m0_hi = [False]

    def put(row, reg, neg):
        c = cv[ci[0] % 8]; ci[0] += 1
        a(f"v_cvt_pk_bf16_f32 {V(c)}, {V(reg)}, {'-' if neg else ''}{V(reg+1)}")
        off = row * RS - (30 * RS if m0_hi[0] else 0)
        assert 0 <= off < 65536, (row, off)
        a(f'ds_write_addtid_b32 {V(c)} offset:{STAGE + off}')
    cmul(w1, z4, z4)
    cmul(hq[1], hq[0], z1)
    cmul(w2, w1, w1)
    put(1, w1, False)
    cmul(hq[2], hq[0], z2)
    cmul(lq[3], w2, w1)
    put(2, w2, False)
    cmul(w4, w2, w2)
    put(3, lq[3], False)
    cur = {1: w1, 2: w2, 3: lq[3], 4: w4}
    put(4, w4, False)

    def lo_step(j):
        d = lq[j % 8]
        cmul(d, cur[j - 4], w4); cur[j] = d
        put(j, d, False)
    def inject(j):
        if not PF1: return
        if j == o['jc']:
            a(f's_cmp_eq_u32 {S(sROLE)}, 1\ns_cbranch_scc1 L_noslice'); slice_work(); a('L_noslice:')
        if j == o['jh']:
            a(f's_cmp_eq_u32 {S(sROLE)}, 0\ns_cbranch_scc1 L_noln'); ln_work(); a('L_noln:')
    inject(4)
    for j in range(5, o['jf']):
        lo_step(j); inject(j)
    a(f's_cmp_eq_u32 {S(sROLE)}, 1\ns_cbranch_scc1 L_noflag')
    spin_init()
    a(f'''
    L_tagspin:
    ds_read_b32 {V(T[0])}, {V(tga)}
    s_waitcnt lgkmcnt(0)
    v_readfirstlane_b32 {S(sTAG)}, {V(T[0])}
    s_cmp_lg_u32 {S(sTAG)}, 0
    s_cbranch_scc1 L_tagok
    ''')
    spin_next('L_tagspin')
    a(f'''
    L_tagok:
    s_and_b32 {S(sTAG)}, {S(sTAG)}, -16
    s_or_b32 {S(sTAGX)}, {S(sTAG)}, {S(sXCC)}
    v_mov_b32 {V(T[0])}, {S(sTAGX)}
    s_mov_b64 exec, 1
    s_waitcnt vmcnt(0)
    global_store_dword {V(vFLO)}, {V(T[0])}, {S(sWS,2)}
    s_mov_b64 exec, -1
    ''')
    stamp(2)
    a('L_noflag:')
    for j in range(o['jf'], 30): lo_step(j)
    ssum(sT0, (sW, 8), 30 * RS)
    a(f's_mov_b32 m0, {S(sT0)}')
    m0_hi[0] = True
    for j in range(30, 32): lo_step(j)
    put(32, hq[0], True); put(33, hq[1], True); put(34, hq[2], True)
    cmul(hq[3], hq[1], z2); cmul(hq[4], hq[0], z4)
    put(35, hq[3], True); put(36, hq[4], True)
    a(f'global_load_dword {V(vPFD)}, {V(vFL)}, {S(sWS,2)} sc1')
    cmul(hq[5], hq[1], z4); cmul(hq[6], hq[2], z4); cmul(hq[7], hq[3], z4)
    put(37, hq[5], True); put(38, hq[6], True); put(39, hq[7], True)
    A0, A2, A4, A6, B0, B4, C0, C4 = lq
    cmul(A0, hq[0], ZZ); cmul(A2, hq[2], ZZ); cmul(A4, hq[4], ZZ); cmul(A6, hq[6], ZZ)
    put(40, A0, True)
    cmul(B0, A0, ZZ); put(41, A2, True); cmul(B4, A4, ZZ); put(42, A4, True)
    cmul(C0, B0, ZZ); put(43, A6, True); cmul(C4, B4, ZZ); put(44, B0, True)
    cmul(hq[1], C0, ZZ); put(45, B4, True); put(46, C0, True)
    cmul(hq[2], hq[1], ZZ); put(47, C4, True); put(48, hq[1], True)
    cmul(hq[3], hq[2], ZZ); put(49, hq[2], True)
    cmul(hq[4], hq[3], ZZ); put(50, hq[3], True)
    cmul(hq[5], hq[4], ZZ); put(51, hq[4], True); put(52, hq[5], True)
    stamp(3)

    KD = vP; KF = vP + 16; NB = o['nb']

    def kread(sidx):
        r = KF + 8 * (sidx % NB)
        a(f'ds_read_b128 {V(r,4)}, {V(vKA)} offset:{32*sidx}')
        a(f'ds_read_b128 {V(r+4,4)}, {V(vKB)} offset:{32*sidx}')

    def kmfma(cinit, shadow=()):
        for sidx in range(8):
            if sidx >= 2 and sidx - 2 < len(shadow): shadow[sidx - 2]()
            outstanding = min(8, sidx + NB) - sidx - 1
            a(f's_waitcnt lgkmcnt({2*outstanding})')
            r = KF + 8 * (sidx % NB)
            a(f"v_mfma_f32_32x32x16_bf16 {V(KD,16)}, {V(r,4)}, {V(r+4,4)}, {'0' if (sidx == 0 and not cinit) else V(KD,16)}")
            if sidx + NB < 8: kread(sidx + NB)

    def fetch_tile(tag):
        a(f's_waitcnt vmcnt(0)\nv_cmp_ne_u32 vcc, {S(sTAGX)}, {V(vPFD)}')
        if o['force_slow']: a(f's_branch L_gather{tag}')
        a(f's_cbranch_vccz L_fast{tag}')
        spin_init()
        a(f'''
        L_flagspin{tag}:
        global_load_dword {V(vPFD)}, {V(vFL)}, {S(sWS,2)} sc1
        global_load_dword {V(T[0])}, {V(vXC)}, {S(sWS,2)} sc1
        s_waitcnt vmcnt(0)
        v_cmp_ne_u32 vcc, {S(sTAGX)}, {V(vPFD)}
        s_cbranch_vccz L_fast{tag}
        v_xor_b32 {V(T[0])}, {S(sTAGX)}, {V(T[0])}
        v_add_u32 {V(T[0])}, -1, {V(T[0])}
        v_cmp_gt_u32 vcc, 15, {V(T[0])}
        s_cbranch_vccnz L_gather{tag}
        ''')
        spin_next(f'L_flagspin{tag}')
        a(f'L_gather{tag}:')
        for r in range(4):
            a(f'global_load_dwordx2 {V(vD+2*r,2)}, {V(vXG)}, {S(sX,2)} offset:{r*1024}')
        a(f'''
        s_branch L_stats{tag}
        L_fast{tag}:
        global_load_dwordx4 {V(vD,4)}, {V(vIN)}, {S(sWS,2)} sc1
        global_load_dwordx4 {V(vD+4,4)}, {V(vIN)}, {S(sWS,2)} offset:64 sc1
        L_stats{tag}:
        global_load_dwordx4 {V(vG,4)}, {V(vST0)}, {S(sWS,2)} sc1
        global_load_dwordx4 {V(vG+4,4)}, {V(vST1)}, {S(sWS,2)} sc1
        ''')

    a(f's_cmp_eq_u32 {S(sROLE)}, 1\ns_cbranch_scc1 L_h_k')
    for i in range(NB): kread(i)
    kmfma(False)
    a(f'v_mov_b32 {V(T[1])}, 1')
    for i in range(3): a(f'ds_write_b128 {V(vPD)}, {V(KD+4*i,4)} offset:{1024*i}')
    a(f's_mov_b64 exec, 1\nds_write_b32 {V(tga)}, {V(T[1])} offset:{PF - TG}\ns_mov_b64 exec, -1')
    stamp(4)
    fetch_tile('c')
    conv_setup()
    a('s_branch L_b3')
    a('L_h_k:')
    spin_init()
    a(f'''
    L_pspin:
    ds_read_b32 {V(T[1])}, {V(vFFW)} offset:{PF - FF}
    ''')
    for i in range(3): a(f'ds_read_b128 {V(KD+4*i,4)}, {V(vPD)} offset:{1024*i}')
    for i in range(NB - 1): kread(i)
    a(f'''
    s_waitcnt lgkmcnt({2*(NB-1) + 3})
    v_readfirstlane_b32 {S(sT0)}, {V(T[1])}
    s_cmp_lg_u32 {S(sT0)}, 0
    s_cbranch_scc1 L_pok
    s_waitcnt lgkmcnt(0)
    ''')
    spin_next('L_pspin')
    a('L_pok:')
    kread(NB - 1)
    kmfma(True, (table_setup, wsrc_setup))
    for i in range(6): a(f'v_cvt_pk_bf16_f32 {V(T[i])}, {V(KD+2*i)}, {V(KD+2*i+1)}')
    a(f'''
    ds_write_b64 {V(vTW1)}, {V(T[0],2)}
    ds_write_b32 {V(vTW2)}, {V(T[2])}
    ds_write_b32 {V(vTW3)}, {V(T[3])}
    ds_write_b16 {V(vTW4)}, {V(T[4])}
    ds_write_b16_d16_hi {V(vTW4)}, {V(T[4])} offset:64
    ds_write_b16 {V(vTW4)}, {V(T[5])} offset:128
    ds_write_b16_d16_hi {V(vTW4)}, {V(T[5])} offset:192
    ''')
    stamp(4)
    fetch_tile('h')
    a('L_b3:\ns_waitcnt lgkmcnt(0)')
    stamp(5)
    a('s_barrier')

    def w_dma():
        ssum(sT0, (sWI, 12), WL)
        for t in range(4):
            a(f's_add_u32 m0, {S(sT0)}, {1024*t}')
            a(f'global_load_lds_dwordx4 {V((vWS0, vWS1)[t&1])}, {S((sWG, sWU)[t>>1],2)}')

    def wd_dma():
        a(f"s_mov_b64 exec, 0xff\nglobal_load_dword {V(vPFW)}, {V(vP1F)}, {S(sWS,2)}{' nt' if o['p1nt'] else ''}\ns_mov_b64 exec, -1")
        ssum(sT0, (sWI, 11), SL)
        a(f's_mov_b32 m0, {S(sT0)}')
        a(f'global_load_lds_dwordx4 {V(vWDA)}, {S(sWD,2)}')
        a(f's_add_u32 m0, {S(sT0)}, 1024')
        a(f'global_load_lds_dwordx4 {V(vWD1)}, {S(sWD,2)}')

    XP = vG
    def r4_build(tag, mid=None):
        Wq = vP; Q = vP + 16
        for c in range(4):
            a(f'ds_read2_b32 {V(Wq+4*c,2)}, {V(vGA+2*c)} offset0:0 offset1:1')
            a(f'ds_read2_b32 {V(Wq+4*c+2,2)}, {V(vGA+2*c+1)} offset0:0 offset1:1')
        if tag == 'c': a(f'''
        s_cmp_lg_u32 {S(sW)}, 3
        s_cbranch_scc1 L_nopad{tag}
        v_bfe_u32 {V(T[0])}, {V(vL)}, 3, 2
        v_and_b32 {V(T[1])}, 7, {V(vL)}
        v_mul_u32_u24 {V(T[0])}, {R4S}, {V(T[0])}
        v_lshl_add_u32 {V(T[0])}, {V(T[1])}, 4, {V(T[0])}
        ''')
        if tag == 'c':
            for i in range(4): a(f'v_mov_b32 {V(T[4+i])}, 0')
        if tag == 'c': a(f'''
        s_mov_b32 exec_hi, 0
        ds_write_b128 {V(T[0])}, {V(T[4],4)} offset:{R4}
        s_mov_b64 exec, -1
        s_waitcnt lgkmcnt(1)
        L_nopad{tag}:
        ''')
        if mid: mid()
        for c in range(4):
            W0, W1, W2, W3 = [Wq + 4 * c + i for i in range(4)]
            q = Q + 8 * c
            if not mid: a('s_waitcnt lgkmcnt(6)')
            a(f'''
            v_perm_b32 {V(q+0)}, {V(W2)}, {V(W1)}, {V(vSEL+2)}
            v_perm_b32 {V(q+1)}, {V(W1)}, {V(W0)}, {V(vSEL+0)}
            v_perm_b32 {V(q+2)}, {V(W3)}, {V(W2)}, {V(vSEL+3)}
            v_perm_b32 {V(q+3)}, {V(W1)}, {V(W0)}, {V(vSEL+1)}
            v_mov_b32 {V(q+5)}, {V(q+0)}
            ds_write_b128 {V(vR4W)}, {V(q,4)} offset:{c*R4S}
            v_perm_b32 {V(q+4)}, {V(W3)}, {V(W2)}, {V(vSEL+4)}
            v_perm_b32 {V(q+6)}, {V(W3)}, {V(W2)}, {V(vSEL+5)}
            v_mov_b32 {V(q+7)}, {V(q+2)}
            ds_write_b128 {V(vR4W)}, {V(q+4,4)} offset:{c*R4S + 16}
            ''')

    def normalise(tag):
        if tag == 'h':
            a(f's_cmp_eq_u32 {S(sP1)}, 0\ns_cbranch_scc1 L_nw0')
            w_dma()
            ffn_setup()
            a("s_waitcnt vmcnt(4)\ns_branch L_nw1\nL_nw0:")
            ffn_setup()
            a("s_waitcnt vmcnt(0)\nL_nw1:")
        else:
            a('s_waitcnt vmcnt(0)')
        spin_init()
        a(f'''
        L_statspin{tag}:
        v_xor_b32 {V(T[0])}, {S(sTAG)}, {V(vG+3)}
        v_xor_b32 {V(T[1])}, {S(sTAG)}, {V(vG+7)}
        v_or_b32 {V(T[0])}, {V(T[0])}, {V(T[1])}
        v_cmp_lt_u32 vcc, 15, {V(T[0])}
        s_cbranch_vccz L_statok{tag}
        global_load_dwordx4 {V(vG,4)}, {V(vST0)}, {S(sWS,2)} sc1
        global_load_dwordx4 {V(vG+4,4)}, {V(vST1)}, {S(sWS,2)} sc1
        s_waitcnt vmcnt(0)
        ''')
        spin_next(f'L_statspin{tag}')
        a(f'L_statok{tag}:')
        stamp(7)
        a(f'''
        v_cmp_ne_u32 vcc, {S(sTAGX)}, {V(vG+3)}
        s_and_b64 vcc, vcc, {S(sCM,2)}
        s_cbranch_vccz L_local{tag}
        v_mov_b32 {V(T[0])}, {FF}
        v_mov_b32 {V(T[1])}, 1
        ds_write_b32 {V(T[0])}, {V(T[1])}
        s_waitcnt lgkmcnt(0)
        L_local{tag}:
        ''')
        stq = [vG, vG + 1, vG + 4, vG + 5]
        rho = [T[1], T[3], T[5], T[7]]; mu = [T[0], T[2], T[4], T[6]]
        key = T[8]
        for r in range(4): a(f'v_and_b32 {V(rho[r])}, {S(sHI)}, {V(stq[r])}')
        a(f'v_max_u32 {V(key)}, {V(vG+2)}, {V(vG+6)}')
        for r in range(4):
            a(f'v_rcp_f32 {V(rho[r])}, {V(rho[r])}')
            a(f'v_lshlrev_b32 {V(mu[r])}, 16, {V(stq[r])}')
        kred = ['row_shr:1 row_mask:0xf', 'row_shr:2 row_mask:0xf', 'row_shr:4 row_mask:0xf', 'row_shr:8 row_mask:0xf',
                'row_bcast:15 row_mask:0xa', 'row_bcast:31 row_mask:0xc']
        def kr(i): a(f'v_max_u32_dpp {V(key)}, {V(key)}, {V(key)} {kred[i]} bank_mask:0xf')
        for r in range(4):
            a(f'''
            v_mul_f32_e64 {V(mu[r])}, -{V(mu[r])}, {V(rho[r])}
            v_lshlrev_b32 {V(vXF+4*r)}, 16, {V(vD+2*r)}
            v_and_b32 {V(vXF+4*r+1)}, {S(sHI)}, {V(vD+2*r)}
            v_lshlrev_b32 {V(vXF+4*r+2)}, 16, {V(vD+2*r+1)}
            v_and_b32 {V(vXF+4*r+3)}, {S(sHI)}, {V(vD+2*r+1)}
            ''')
            kr(r)
            for c in range(4): a(f'v_fma_f32 {V(vXN+4*r+c)}, {V(vXF+4*r+c)}, {V(rho[r])}, {V(mu[r])}')
        kr(4)
        ssum(sT0, (sW, 2), AM)
        for c in range(4):
            a(f'''
            v_cvt_pk_bf16_f32 {V(XP+2*c)}, {V(vXN+c)}, {V(vXN+4+c)}
            v_cvt_pk_bf16_f32 {V(XP+2*c+1)}, {V(vXN+8+c)}, {V(vXN+12+c)}
            ds_write_b64 {V(vUW)}, {V(XP+2*c,2)} offset:{c*US}
            ''')
            if c == 0: kr(5)
            if c == 1: a(f'v_mov_b32 {V(T[9])}, {S(sT0)}')
        lane63()
        a(f'ds_write_b32 {V(T[9])}, {V(key)}')
        alllanes()

    a(f's_cmp_eq_u32 {S(sROLE)}, 1\ns_cbranch_scc1 L_h_r4')
    r4_build('c'); stamp(6); normalise('c')
    a('s_branch L_b4\nL_h_r4:')
    if o['hnormfirst']:
        def mid():
            normalise('h')
            a('s_waitcnt lgkmcnt(5)'); stamp(6)
        r4_build('h', mid)
    else:
        r4_build('h'); stamp(6); normalise('h')
    a('L_b4:')
    a(f'v_mov_b32 {V(T[9])}, {AM}\ns_waitcnt lgkmcnt(0)')
    stamp(8)
    a('s_barrier')

    def read_idx():
        a(f'''
        ds_read_b128 {V(T[0],4)}, {V(T[9])}
        ds_read_b128 {V(T[4],4)}, {V(T[9])} offset:16
        s_waitcnt lgkmcnt(0)
        v_max3_u32 {V(T[0])}, {V(T[0])}, {V(T[1])}, {V(T[2])}
        v_max3_u32 {V(T[3])}, {V(T[3])}, {V(T[4])}, {V(T[5])}
        v_max3_u32 {V(T[0])}, {V(T[0])}, {V(T[6])}, {V(T[7])}
        v_max_u32 {V(T[0])}, {V(T[0])}, {V(T[3])}
        v_readfirstlane_b32 {S(sKEY)}, {V(T[0])}
        s_andn2_b32 {S(sIDX)}, 2047, {S(sKEY)}
        s_lshr_b32 {S(sT0)}, {S(sIDX)}, 8
        s_lshr_b32 {S(sT1)}, {S(sIDX)}, 9
        s_xor_b32 {S(sT0)}, {S(sT0)}, {S(sT1)}
        s_xor_b32 {S(sT0)}, {S(sT0)}, {S(sH)}
        s_andn2_b32 {S(sOWN)}, 1, {S(sT0)}
        ''')

    def stat_addr(dst):
        a(f's_lshr_b32 {S(sT0)}, {S(sIDX)}, 2\ns_bfe_u32 {S(sT1)}, {S(sIDX)}, 0x10001\ns_and_b32 {S(sT2)}, {S(sIDX)}, 1')
        ssum(sT0, (sT0, 4), (sT1, 13), (sT2, 2), W_ST)
        a(f'v_mov_b32 {V(dst)}, {S(sT0)}')

    a(f's_cmp_eq_u32 {S(sROLE)}, 1\ns_cbranch_scc1 L_helper')

    ACC = vP; FR = vP + 16; NFR = 28
    stamp(10)
    a(f's_setprio 1\ns_cmp_eq_u32 {S(sH)}, 0\ns_cbranch_scc0 L_conv1')

    def conv(h):
        tl = tiles(h)
        ops = []
        for c0 in range(8):
            lst = [(i, c1, q - c1) for i, q in enumerate(tl) for c1 in range(q + 1)]
            have = set(); seq = []
            while lst:
                def cost(x):
                    base = (2 * (('A', x[1]) not in have) + (('B', x[2]) not in have), bool(seq) and seq[-1][0] == x[0], max(x[1], x[2]))
                    return ((x[0],) + base) if c0 == 7 else base
                x = min(lst, key=cost); lst.remove(x); seq.append(x); have.add(('A', x[1])); have.add(('B', x[2]))
            for i, c1, qp in seq: ops.append((i, ('A', c0, c1), ('B', c0, qp)))
        order = []; last = {}; lastacc = {}
        for n, (i, ak, bk) in enumerate(ops):
            lastacc[i] = n
            for k in (bk, ak):
                if k not in last: order.append(k)
                last[k] = n
        L = []
        for k in order: L += [(k, 0), (k, 1)] if k[0] == 'A' else [(k, 0)]
        endidx = {}
        for j, (k, p) in enumerate(L): endidx[k] = j + 1
        need = []; m = 0
        for (i, ak, bk) in ops:
            m = max(m, endidx[ak], endidx[bk]); need.append(m)
        free = list(range(NFR)); slot = {}
        st = dict(issued=0, done=0)
        seqpos = []
        nds = [0]
        donepos = [0]
        MAXOUT = o['maxout']; G = o['group']

        def can_issue():
            if st['issued'] >= len(L) or nds[0] - donepos[0] >= MAXOUT: return False
            k, p = L[st['issued']]
            return p == 1 or bool(free)

        def issue():
            k, p = L[st['issued']]
            if p == 0: slot[k] = free.pop(0)
            r = FR + 4 * slot[k]
            if k[0] == 'A':
                a(f'ds_read_b64 {V(r+2*p,2)}, {V(vCA2 if p else vCA)} offset:{CAS*(8*k[2] + k[1])}')
            else:
                a(f'ds_read_b128 {V(r,4)}, {V(vCB)} offset:{2*(224 + 256*k[2] - 32*k[1])}')
            st['issued'] += 1; nds[0] += 1; seqpos.append(nds[0])
        started = set(); written = set()
        while can_issue(): issue()
        for n, (i, ak, bk) in enumerate(ops):
            if need[n] > st['done']:
                while st['issued'] < need[n]:
                    assert nds[0] - donepos[0] < 15
                    issue()
                tgt = need[n]
                for m2 in range(n, min(n + G, len(ops))):
                    if need[m2] <= st['issued'] - o['minfly'] or need[m2] <= len(L) == st['issued']: tgt = max(tgt, need[m2])
                a(f's_waitcnt lgkmcnt({nds[0] - seqpos[tgt-1]})'); st['done'] = tgt; donepos[0] = seqpos[tgt - 1]
            acc = ACC + 4 * i
            cin = V(acc, 4) if i in started else '0'
            started.add(i)
            a(f'v_mfma_f32_16x16x32_bf16 {V(acc,4)}, {V(FR+4*slot[ak],4)}, {V(FR+4*slot[bk],4)}, {cin}')
            for k in (ak, bk):
                if last[k] == n: free.append(slot[k])
            budget = 2
            if n + 1 < len(ops) and need[n + 1] > st['done']: budget = 1
            for i2 in range(4):
                if i2 not in written and lastacc[i2] + 4 <= n and budget > 0 and nds[0] - donepos[0] < 15:
                    a(f'ds_write_b128 {V(vY)}, {V(ACC+4*i2,4)} offset:{i2*YTS}')
                    written.add(i2); nds[0] += 1; budget -= 1
            while budget > 0 and can_issue():
                issue(); budget -= 1
        for i2 in range(4):
            if i2 not in written: a(f'ds_write_b128 {V(vY)}, {V(ACC+4*i2,4)} offset:{i2*YTS}')
    conv(0)
    a('s_branch L_convdone\nL_conv1:')
    conv(1)
    a('L_convdone:\ns_waitcnt lgkmcnt(0)')
    stamp(9)
    a(f's_barrier\ns_cmp_lg_u32 {S(sW)}, 0\ns_cbranch_scc1 L_exit')
    a(f'''
    s_cmp_lg_u32 s2, 0
    s_cbranch_scc1 L_noep
    v_mov_b32 {V(T[10])}, 0
    v_mov_b32 {V(T[11])}, {S(sTAG)}
    s_mov_b64 exec, 1
    global_store_dword {V(T[10])}, {V(T[11])}, {S(sWS,2)} sc1
    s_mov_b64 exec, -1
    L_noep:
    ''')
    read_idx()
    a(f's_cmp_eq_u32 {S(sOWN)}, 0\ns_cbranch_scc1 L_exit\ns_setprio 3')
    F = vP
    par, xo, fpa = T[12], T[13], T[14]
    y0, y1, n0, n1, d0, d1, sg, xv, sv, x0, x1 = [vXF + i for i in range(11)]
    a(f'v_and_b32 {V(par)}, 1, {V(vL)}')
    ssum(sT0, (sIDX, 10), (sCH0, 1))
    a(f'v_lshl_add_u32 {V(xo)}, {V(par)}, 2, {S(sT0)}')
    stat_addr(T[10])
    a(f'global_load_dword {V(xv)}, {V(xo)}, {S(sX,2)}')
    a(f'global_load_dword {V(sv)}, {V(T[10])}, {S(sWS,2)} sc1')
    a(f's_lshr_b32 {S(sT0)}, {S(sCH0)}, 2')
    smul(sT0, sT0, 6144, W_FP + 3072)
    a(f'v_lshl_add_u32 {V(fpa)}, {V(vL)}, 4, {S(sT0)}')
    a(f'''
    s_lshr_b32 {S(sT1)}, {S(sIDX)}, 9
    s_mul_i32 {S(sT1)}, {S(sT1)}, {YTS}
    s_bfe_u32 {S(sT0)}, {S(sIDX)}, 0x20002
    s_mul_i32 {S(sT0)}, {S(sT0)}, {YGS}
    s_add_u32 {S(sT1)}, {S(sT1)}, {S(sT0)}
    s_bfe_u32 {S(sT0)}, {S(sIDX)}, 0x40004
    s_and_b32 {S(sT2)}, {S(sIDX)}, 3
    ''')
    ssum(sT1, (sT1, 0), (sT0, 4), (sT2, 2), YX)
    a(f'''
    v_mul_u32_u24 {V(T[0])}, {2*YCS}, {V(par)}
    v_add_u32 {V(T[0])}, {S(sT1)}, {V(T[0])}
    ds_read_b32 {V(y0)}, {V(T[0])}
    ds_read_b32 {V(y1)}, {V(T[0])} offset:{YCS}
    s_and_b32 {S(sT0)}, {S(sKEY)}, {S(sHI)}
    s_xor_b32 {S(sT1)}, {S(sT0)}, 0x80000000
    s_xor_b32 {S(sT2)}, {S(sT0)}, {S(sHI)}
    s_bitcmp1_b32 {S(sT0)}, 31
    s_cselect_b32 {S(sT0)}, {S(sT1)}, {S(sT2)}
    v_mov_b32 {V(T[2])}, 0xbfb8aa3b
    v_mul_f32 {V(sg)}, {S(sT0)}, {V(T[2])}
    v_exp_f32 {V(sg)}, {V(sg)}
    v_cmp_eq_u32 vcc, 0, {V(par)}
    v_add_f32 {V(sg)}, 1.0, {V(sg)}
    v_rcp_f32 {V(sg)}, {V(sg)}
    v_mov_b32 {V(F+20)}, 0
    v_cvt_pk_bf16_f32 {V(sg)}, {V(sg)}, {V(sg)}
    v_mov_b32 {V(F+21)}, 0
    v_and_b32 {V(sg)}, {S(sHI)}, {V(sg)}
    v_mov_b32 {V(F+22)}, {S(sTAG)}
    s_waitcnt lgkmcnt(0)
    v_mov_b32 {V(d0)}, {S(sDS)}
    v_mov_b32 {V(d1)}, {S(sDS+1)}
    v_cndmask_b32 {V(d0)}, {V(d1)}, {V(d0)}, vcc
    v_and_b32 {V(d1)}, {S(sHI)}, {V(d0)}
    v_lshlrev_b32 {V(d0)}, 16, {V(d0)}
    ''')

    def rnd2(r0, r1, t):
        a(f'v_cvt_pk_bf16_f32 {V(t)}, {V(r0)}, {V(r1)}\nv_lshlrev_b32 {V(r0)}, 16, {V(t)}\nv_and_b32 {V(r1)}, {S(sHI)}, {V(t)}')
    rnd2(y0, y1, T[0])
    a(f'''
    s_waitcnt vmcnt(0)
    v_and_b32 {V(T[1])}, {S(sHI)}, {V(sv)}
    v_lshlrev_b32 {V(T[2])}, 16, {V(sv)}
    v_rcp_f32 {V(T[1])}, {V(T[1])}
    v_lshlrev_b32 {V(x0)}, 16, {V(xv)}
    v_and_b32 {V(x1)}, {S(sHI)}, {V(xv)}
    v_sub_f32 {V(n0)}, {V(x0)}, {V(T[2])}
    v_sub_f32 {V(n1)}, {V(x1)}, {V(T[2])}
    ''')
    rnd2(n0, n1, T[0])
    a(f'v_mul_f32 {V(n0)}, {V(n0)}, {V(T[1])}\nv_mul_f32 {V(n1)}, {V(n1)}, {V(T[1])}')
    rnd2(n0, n1, T[0])
    a(f'v_mul_f32 {V(d0)}, {V(d0)}, {V(n0)}\nv_mul_f32 {V(d1)}, {V(d1)}, {V(n1)}')
    rnd2(d0, d1, T[0])
    a(f'v_add_f32 {V(y0)}, {V(y0)}, {V(d0)}\nv_add_f32 {V(y1)}, {V(y1)}, {V(d1)}')
    rnd2(y0, y1, T[0])
    if o['b6']: a('s_barrier')
    spin_init()
    a('L_ffnspin:')
    for i in range(5):
        a(f'global_load_dwordx4 {V(F+4*i,4)}, {V(fpa)}, {S(sWS,2)} offset:{i*1024 - 3072} sc1')
    a(f'''
    s_mov_b64 exec, 0xffffff
    global_load_dwordx4 {V(F+20,4)}, {V(fpa)}, {S(sWS,2)} offset:2048 sc1
    s_mov_b64 exec, -1
    s_waitcnt vmcnt(0)
    ''')
    for i in range(6): a(f'v_xor_b32 {V(T[i])}, {S(sTAG)}, {V(F+4*i+2)}')
    a(f'''
    v_or3_b32 {V(T[0])}, {V(T[0])}, {V(T[1])}, {V(T[2])}
    v_or3_b32 {V(T[3])}, {V(T[3])}, {V(T[4])}, {V(T[5])}
    v_or_b32 {V(T[0])}, {V(T[0])}, {V(T[3])}
    v_cmp_ne_u32 vcc, 0, {V(T[0])}
    s_cbranch_vccz L_ffnok
    ''')
    spin_next('L_ffnspin')
    a('L_ffnok:')
    stamp(11)
    p0, p1 = F, F + 1
    for e in range(2):
        a(f'v_add_f32 {V(F+e)}, {V(F+e)}, {V(F+4+e)}')
        a(f'v_add_f32 {V(F+8+e)}, {V(F+8+e)}, {V(F+12+e)}')
        a(f'v_add_f32 {V(F+16+e)}, {V(F+16+e)}, {V(F+20+e)}')
    for e in range(2): a(f'v_add_f32 {V(F+e)}, {V(F+e)}, {V(F+8+e)}')
    for e in range(2): a(f'v_add_f32 {V(F+e)}, {V(F+e)}, {V(F+16+e)}')
    for m in (2, 4, 8):
        for e in range(2): a(f'v_add_f32_dpp {V(F+e)}, {V(F+e)}, {V(F+e)} row_ror:{m} row_mask:0xf bank_mask:0xf')
    for pl in ('v_permlane16_swap_b32', 'v_permlane32_swap_b32'):
        for e in range(2): a(f'v_mov_b32 {V(F+4+e)}, {V(F+e)}')
        for e in range(2): a(f'{pl} {V(F+e)}, {V(F+4+e)}')
        for e in range(2): a(f'v_add_f32 {V(F+e)}, {V(F+e)}, {V(F+4+e)}')
    rnd2(p0, p1, T[0])
    for e in range(2): a(f'v_mul_f32 {V(F+e)}, {V(F+e)}, {V(sg)}')
    rnd2(p0, p1, T[0])
    a(f'v_add_f32 {V(p0)}, {V(p0)}, {V(n0)}\nv_add_f32 {V(p1)}, {V(p1)}, {V(n1)}')
    rnd2(p0, p1, T[0])
    for e in range(2): a(f'v_mul_f32 {V(F+4+e)}, 0xbfb8aa3b, {V(F+e)}')
    for e in range(2): a(f'v_exp_f32 {V(F+4+e)}, {V(F+4+e)}')
    for e in range(2): a(f'v_add_f32 {V(F+4+e)}, 1.0, {V(F+4+e)}')
    for e in range(2): a(f'v_rcp_f32 {V(F+4+e)}, {V(F+4+e)}')
    for e in range(2): a(f'v_mul_f32 {V(F+e)}, {V(F+e)}, {V(F+4+e)}')
    rnd2(p0, p1, T[0])
    a(f'v_mul_f32 {V(p0)}, {V(p0)}, {V(y0)}\nv_mul_f32 {V(p1)}, {V(p1)}, {V(y1)}')
    rnd2(p0, p1, T[0])
    a(f'''
    v_add_f32 {V(p0)}, {V(p0)}, {V(x0)}
    v_add_f32 {V(p1)}, {V(p1)}, {V(x1)}
    v_cvt_pk_bf16_f32 {V(T[0])}, {V(p0)}, {V(p1)}
    s_mov_b64 exec, 3
    global_store_dword {V(xo)}, {V(T[0])}, {S(sOUT,2)}
    s_mov_b64 exec, -1
    ''')
    if o['stamp']:
        a('s_waitcnt vmcnt(0)'); stamp(12); a('s_branch L_exit')
    else:
        a('s_endpgm')

    a('L_helper:')
    a(f'ds_read_b32 {V(T[8])}, {V(T[9])} offset:{FF - AM}')
    read_idx()
    XS = vP
    a(f'v_readfirstlane_b32 {S(sT3)}, {V(T[8])}\ns_mov_b32 {S(sPB)}, {S(sT3)}')
    a(f's_cmp_eq_u32 {S(sP1)}, 0\ns_cbranch_scc1 L_h_pre')
    a(f's_lshl_b32 {S(sT0)}, {S(sIDX)}, 10\nv_add_u32 {V(T[0])}, {S(sT0)}, {V(vXS)}')
    stat_addr(T[1])
    a(f'''
    global_load_dwordx2 {V(XS,2)}, {V(T[0])}, {S(sX,2)}
    global_load_dwordx2 {V(XS+2,2)}, {V(T[0])}, {S(sX,2)} offset:32
    global_load_dword {V(XS+4)}, {V(T[1])}, {S(sWS,2)} sc1
    ''')
    wd_dma()
    a('L_h_pre:')
    Dv = [vP + 68 + c for c in range(4)]
    a(f'''
    s_lshl_b32 {S(sT0)}, {S(sDS)}, 16
    s_and_b32 {S(sT1)}, {S(sDS)}, {S(sHI)}
    s_lshl_b32 {S(sT2)}, {S(sDS+1)}, 16
    s_and_b32 {S(sT3)}, {S(sDS+1)}, {S(sHI)}
    ''')
    for c in range(4): a(f'v_mov_b32 {V(Dv[c])}, {S(sT0+c)}')
    WF = vP + 8; DD = vP + 24; XA = vP + 40; WDF = vP + 48
    GT = [vP + 64 + i for i in range(4)]
    def ge_row(r):
        for c in range(4):
            src = XP + 2 * c + (r >> 1)
            if r & 1: a(f'v_and_b32 {V(vXN+4*r+c)}, {S(sHI)}, {V(src)}')
            else:     a(f'v_lshlrev_b32 {V(vXN+4*r+c)}, 16, {V(src)}')
        for c in range(4): a(f'v_mul_f32 {V(GT[c])}, 0xbfb8aa3b, {V(vXN+4*r+c)}')
        for c in range(4): a(f'v_exp_f32 {V(GT[c])}, {V(GT[c])}')
        for c in range(4):
            a(f'v_mul_f32 {V(vE+4*r+c)}, {V(vXN+4*r+c)}, {V(Dv[c])}')
            a(f'v_add_f32 {V(GT[c])}, 1.0, {V(GT[c])}')
        for c in range(4): a(f'v_rcp_f32 {V(GT[c])}, {V(GT[c])}')
        for c in range(4): a(f'v_mul_f32 {V(vXN+4*r+c)}, {V(vXN+4*r+c)}, {V(GT[c])}')
        for c in range(4): a(f'v_fma_f32 {V(vE+4*r+c)}, {V(vE+4*r+c)}, {V(vXN+4*r+c)}, {V(vXF+4*r+c)}')
    def masks():
        for r in range(4):
            a(f'v_add_u32 {V(T[0])}, {r}, {V(vROW)}\nv_cmp_ne_u32 {S(sM+2*r,2)}, {S(sIDX)}, {V(T[0])}')
    masks()
    a(f's_cmp_eq_u32 {S(sP1)}, 0\ns_cbranch_scc1 L_h_ge')
    a(f"s_setprio {o['ffnprio']}")
    a('s_waitcnt vmcnt(6)')
    for t in range(4):
        a(f'ds_read_b64_tr_b16 {V(WF+4*t,2)}, {V(vWT)} offset:{1024*t}')
        a(f'ds_read_b64_tr_b16 {V(WF+4*t+2,2)}, {V(vWT)} offset:{1024*t + 512}')
    gq = T[4]
    a('s_waitcnt vmcnt(3)')
    stamp(0)
    X = [T[2+i] for i in range(8)]
    a(f'''
    v_and_b32 {V(T[12])}, {S(sHI)}, {V(XS+4)}
    v_lshlrev_b32 {V(T[14])}, 16, {V(XS+4)}
    v_rcp_f32 {V(T[12])}, {V(T[12])}
    ''')
    for i in range(4):
        a(f'v_lshlrev_b32 {V(X[2*i])}, 16, {V(XS+i)}\nv_and_b32 {V(X[2*i+1])}, {S(sHI)}, {V(XS+i)}')
        for e in range(2): a(f'v_sub_f32 {V(X[2*i+e])}, {V(X[2*i+e])}, {V(T[14])}')
    for i in range(4): a(f'v_cvt_pk_bf16_f32 {V(XA+i)}, {V(X[2*i])}, {V(X[2*i+1])}')
    for i in range(4):
        a(f'v_lshlrev_b32 {V(X[2*i])}, 16, {V(XA+i)}\nv_and_b32 {V(X[2*i+1])}, {S(sHI)}, {V(XA+i)}')
        for e in range(2): a(f'v_mul_f32 {V(X[2*i+e])}, {V(X[2*i+e])}, {V(T[12])}')
    for i in range(4): a(f'v_cvt_pk_bf16_f32 {V(XA+i)}, {V(X[2*i])}, {V(X[2*i+1])}')
    a('s_waitcnt lgkmcnt(0)')
    for t in range(4):
        a(f'v_mfma_f32_16x16x32_bf16 {V(DD+4*t,4)}, {V(XA,4)}, {V(WF+4*t,4)}, 0')
    a(f'''
    v_mov_b32 {V(gq+2)}, {S(sTAG)}
    v_mov_b32 {V(gq+3)}, 0
    s_cmp_eq_u32 {S(sPB)}, 0
    v_add_f32 {V(gq)}, {V(DD)}, {V(DD+5)}
    v_add_f32 {V(gq+1)}, {V(DD+8)}, {V(DD+13)}
    s_mov_b64 exec, 0xffff
    s_cbranch_scc0 L_p1far
    global_store_dwordx4 {V(vP1W)}, {V(gq,4)}, {S(sWS,2)}
    s_branch L_p1done
    L_p1far:
    global_store_dwordx4 {V(vP1W)}, {V(gq,4)}, {S(sWS,2)} sc1
    L_p1done:
    s_mov_b64 exec, -1
    s_cmp_eq_u32 {S(sPROD)}, 0
    s_cbranch_scc1 L_h_ge
    ''')
    stamp(9)
    a(f'global_load_dwordx4 {V(T[0],4)}, {V(vP1R)}, {S(sWS,2)} sc1')
    a('s_waitcnt vmcnt(2)')
    for i in range(4): a(f'ds_read2st64_b32 {V(vWD+2*i,2)}, {V(vWDR)} offset0:{2*i} offset1:{2*i+1}')
    for i in range(8):
        if i % 2 == 0: a(f's_waitcnt lgkmcnt({3 - i//2})')
        a(f'v_lshlrev_b32 {V(WDF+2*i)}, 16, {V(vWD+i)}\nv_and_b32 {V(WDF+2*i+1)}, {S(sHI)}, {V(vWD+i)}')
    spin_init()
    a(f'''
    L_hspin:
    s_waitcnt vmcnt(0)
    v_cmp_ne_u32 vcc, {S(sTAG)}, {V(T[2])}
    s_cbranch_vccz L_hok
    global_load_dwordx4 {V(T[0],4)}, {V(vP1R)}, {S(sWS,2)} sc1
    ''')
    spin_next('L_hspin')
    a('s_waitcnt vmcnt(0)\nL_hok:')
    for e in range(2): a(f'v_add_f32_dpp {V(T[e])}, {V(T[e])}, {V(T[e])} row_ror:8 row_mask:0xf bank_mask:0xf')
    for pl in ('v_permlane16_swap_b32', 'v_permlane32_swap_b32'):
        for e in range(2): a(f'v_mov_b32 {V(T[2+e])}, {V(T[e])}')
        for e in range(2): a(f'{pl} {V(T[e])}, {V(T[2+e])}')
        for e in range(2): a(f'v_add_f32 {V(T[e])}, {V(T[e])}, {V(T[2+e])}')
    a(f'''
    v_cvt_pk_bf16_f32 {V(T[2])}, {V(T[0])}, {V(T[1])}
    v_lshlrev_b32 {V(T[0])}, 16, {V(T[2])}
    v_mul_f32 {V(T[1])}, 0xbfb8aa3b, {V(T[0])}
    v_exp_f32 {V(T[1])}, {V(T[1])}
    v_and_b32 {V(T[2])}, {S(sHI)}, {V(T[2])}
    v_add_f32 {V(T[1])}, 1.0, {V(T[1])}
    v_rcp_f32 {V(T[1])}, {V(T[1])}
    s_nop 0
    v_mul_f32 {V(T[1])}, {V(T[0])}, {V(T[1])}
    v_cvt_pk_bf16_f32 {V(T[1])}, {V(T[1])}, {V(T[1])}
    v_and_b32 {V(T[1])}, {S(sHI)}, {V(T[1])}
    v_mul_f32 {V(T[1])}, {V(T[1])}, {V(T[2])}
    v_cvt_pk_bf16_f32 {V(T[1])}, {V(T[1])}, {V(T[1])}
    v_and_b32 {V(T[1])}, {S(sHI)}, {V(T[1])}
    ''')
    for i in range(8):
        for e in range(2):
            a(f"{'v_mul_f32_dpp' if i == 0 else 'v_fmac_f32_dpp'} {V(gq+e)}, {V(T[1])}, {V(WDF+2*i+e)} row_newbcast:{i} row_mask:0xf bank_mask:0xf")
    a(f'global_store_dwordx4 {V(vFPA)}, {V(gq,4)}, {S(sWS,2)} sc1')
    stamp(10)
    a('L_h_ge:\ns_setprio 0')
    for r in range(o['prerows']): ge_row(r)
    a('L_h_b5:\ns_barrier')
    YR = vP
    def epilogue(ge):
        for r in range(4):
            if ge and r >= o['prerows']: ge_row(r)
            for c in range(4):
                a(f'v_fma_f32 {V(vE+4*r+c)}, {V(YR+4*c+r)}, {V(vXN+4*r+c)}, {V(vE+4*r+c)}')
            a(f'''
            v_cvt_pk_bf16_f32 {V(vD+2*r)}, {V(vE+4*r)}, {V(vE+4*r+1)}
            v_cvt_pk_bf16_f32 {V(vD+2*r+1)}, {V(vE+4*r+2)}, {V(vE+4*r+3)}
            s_mov_b64 exec, {S(sM+2*r,2)}
            global_store_dwordx2 {V(vXG)}, {V(vD+2*r,2)}, {S(sOUT,2)} offset:{r*1024}
            s_mov_b64 exec, -1
            ''')
    for c in range(4): a(f'ds_read_b128 {V(YR+4*c,4)}, {V(vY)} offset:{c*YCS}')
    if o['b6']:
        a(f'''
        s_lshr_b32 {S(sT0)}, {S(sWI)}, 1
        s_and_b32 {S(sT1)}, {S(sT0)}, {S(sOWN)}
        s_andn2_b32 {S(sT2)}, {S(sOWN)}, {S(sT0)}
        s_cmp_eq_u32 {S(sT1)}, 0
        s_cbranch_scc1 L_h_st
        ''')
        for r in range(o['prerows'], 4): ge_row(r)
        a('s_barrier\ns_waitcnt lgkmcnt(0)')
        epilogue(False)
        a('s_branch L_h_done\nL_h_st:')
    a('s_waitcnt lgkmcnt(0)')
    epilogue(True)
    for r in range(0):
        for c in range(4):
            a(f'v_fma_f32 {V(vE+4*r+c)}, {V(YR+4*c+r)}, {V(vXN+4*r+c)}, {V(vE+4*r+c)}')
        a(f'''
        v_cvt_pk_bf16_f32 {V(vD+2*r)}, {V(vE+4*r)}, {V(vE+4*r+1)}
        v_cvt_pk_bf16_f32 {V(vD+2*r+1)}, {V(vE+4*r+2)}, {V(vE+4*r+3)}
        s_mov_b64 exec, {S(sM+2*r,2)}
        global_store_dwordx2 {V(vXG)}, {V(vD+2*r,2)}, {S(sOUT,2)} offset:{r*1024}
        s_mov_b64 exec, -1
        ''')
    if o['b6']:
        a(f'''
        s_cmp_eq_u32 {S(sT2)}, 0
        s_cbranch_scc1 L_h_done
        s_waitcnt vmcnt({o['b6cnt']})
        s_barrier
        L_h_done:
        ''')
    if o['stamp'] or o['diag'] >= 0:
        stamp(11)
        a('s_waitcnt vmcnt(0)')
        stamp(12)
    if o['diag'] >= 0:
        a('''
        s_memrealtime s[90:91]
        s_sub_u32 s88, s88, s86
        s_min_u32 s88, s88, 2000
        s_lshl_b32 s88, s88, 2
        s_waitcnt lgkmcnt(0)
        s_add_u32 s88, s88, s90
        L_diag:
        s_memrealtime s[90:91]
        s_waitcnt lgkmcnt(0)
        s_sub_u32 s90, s90, s88
        s_cmp_lt_i32 s90, 0
        s_cbranch_scc1 L_diag
        ''')
    a('L_exit:')
    if o['stamp']:
        a('v_mov_b32 v254, 0')
        for i in range(14): a(f'v_writelane_b32 v254, s{86+i}, {i}')
        a(f'global_store_dword {V(vSTA)}, v254, {S(sWS,2)}')
    a('L_end:\ns_endpgm')
    a.raw('''.section .rodata,"a"
.p2align 6
.amdhsa_kernel %s_kernel
  .amdhsa_next_free_vgpr 256
  .amdhsa_next_free_sgpr 102
  .amdhsa_accum_offset 256
  .amdhsa_group_segment_fixed_size 0
  .amdhsa_kernarg_size 136
  .amdhsa_user_sgpr_count 2
  .amdhsa_user_sgpr_kernarg_segment_ptr 1
  .amdhsa_system_sgpr_workgroup_id_x 1
.end_amdhsa_kernel''' % KN)
    return a.text()


if __name__ == '__main__':
    out = sys.argv[1]
    opt = {}
    for kv in sys.argv[2:]:
        k, val = kv.split('='); opt[k] = int(val, 0)
    open(out, 'w').write(generate(**opt))
```

```python
import sys
from asmlib import *

KN = 'recurrent_scan__ssm_conv_s4__moe_arch_mod__prompt'

DEFAULTS = dict(stamp=0, cyc=0, force_slow=0, prefetch=1, wpf=1, spinmax=1 << 16, diag=-1,
                maxout=15, group=3, minfly=6, b6=1, b6cnt=1, nb=6, wdearly=0, wpfb3=1, hnormfirst=1, ffnprio=2, tlb=0, tlbsh=16, wnt=0, xnt=0, pnt=0, prerows=1, jc=4, jh=5, jf=12, p1nt=1, pfirst=0, cpf=1, cpfn=5, hfetch=1, wreg=1, hprio=3, hprio2=1)

RS = 2064
STAGE = 0
R4 = 0; R4S = 18560; CAS = 288
YX = 74240; YCS = 5120; YTS = 1280; YGS = 320
U = 109440; US = 4576
TAB = 127744; TS = 1552
WL = 133952; WL1 = 8320
SL = 150528
AM = 158720
FF = 158752
TG = 158768
PF = 158784
FP = 158848
LDS_BYTES = 159872
W_ST = 0x1000; W_FL = 0x6000; W_FP = 0x10000; W_P1 = 0xD0000; W_IN = 0x100000; W_STAMP = 0x800000

sX, sARE, sAIM, sBRE, sBIM, sCRE, sCIM, sLDT = 4, 6, 8, 10, 12, 14, 16, 18
sDSK, sWR, sWG, sWU, sWD, sOUT, sDBG, sWS = 20, 24, 26, 28, 30, 32, 34, 36
sW, sK, sJ, sCGL, sH, sCH0, sT, sXCC, sTAG, sTAGX = 38, 39, 40, 41, 42, 43, 44, 45, 46, 47
sPB, sDS = 48, 50
sONES, sF8, sPROD, sIDX, sKEY, sCNT = 52, 53, 54, 55, 56, 57
sT0, sT1, sT2, sT3 = 58, 59, 60, 61
sOWN, sINB = 62, 63
sM = 64
sH8 = 72
sHI = 80
sSTP = 82
sWI = 84
sP1 = 85
sCM = 78
sA = 76; sR = 77
sROLE = 81

vL = 1
vGA = 2
vSEL = 10
vR4W, vUW, vST0, vST1, vFL, vIN, vXG, vXC = 16, 17, 18, 19, 20, 21, 22, 23
vKA, vKB, vPD, vY = 24, 25, 26, 27
vA0, vA1, vA2, vA3, vA4, vA5, vA6, vA7 = 28, 29, 30, 31, 32, 33, 34, 35
vEP, vPFD, vROW, vSTA = 36, 37, 38, 39
vD = 40
vG = 48
vXF = 56
vXN = 72
vE = 88
vP = 104
vB0, vB1, vB2, vB3, vB4, vB5 = 224, 225, 226, 227, 228, 229
vWD = 232
vT = 240
vCA, vCA2, vCB, vFLO = vA0, vA1, vA2, vA3
vTW1, vTW2, vTW3, vTW4, vWT, vWDA, vFPA, vXS = vA0, vA1, vA2, vA3, vA4, vA5, vA6, vA7
vWS0, vWS1, vP1W, vP1R, vFFW, vSTP = vB0, vB1, vB2, vB3, vB4, vB5
vWD1, vPFW = 230, 231
vTLB = 223
vWDR = 222; vP1F = 221


def tiles(h): return [2 * i + ((i ^ h) & 1) for i in range(4)]


def generate(**opt):
    o = dict(DEFAULTS); o.update(opt)
    a = Asm()
    V = v; S = s

    def stamp(i):
        if o['diag'] == i:
            a('s_memrealtime s[88:89]\ns_waitcnt lgkmcnt(0)')
        if not o['stamp'] or (o['stamp'] == 2 and i != 12): return
        a(f"{'s_memtime' if o['cyc'] else 's_memrealtime'} {S(sSTP,2)}\ns_waitcnt lgkmcnt(0)\ns_mov_b32 s{86+i}, {S(sSTP)}")

    def cmul(d, x, y):
        a(f'v_pk_mul_f32 {V(d,2)}, {V(x,2)}, {V(y,2)} op_sel:[1,1] op_sel_hi:[1,0]')
        a(f'v_pk_fma_f32 {V(d,2)}, {V(x,2)}, {V(y,2)}, {V(d,2)} op_sel:[0,0,0] op_sel_hi:[0,1,1] neg_lo:[0,0,1]')

    def lane63(): a('s_mov_b32 exec_lo, 0\ns_mov_b32 exec_hi, 0x80000000')
    def alllanes(): a('s_mov_b64 exec, -1')
    def spin_init(): a(f"s_mov_b32 {S(sCNT)}, {o['spinmax']}")
    def spin_next(lbl): a(f's_sub_u32 {S(sCNT)}, {S(sCNT)}, 1\ns_cmp_lg_u32 {S(sCNT)}, 0\ns_cbranch_scc1 {lbl}')

    def ssum(dst, *terms):
        first = True; const = 0
        for t in terms:
            if isinstance(t, int): const += t; continue
            r, sh = t
            if first:
                a(f's_lshl_b32 {S(dst)}, {S(r)}, {sh}' if sh else f's_mov_b32 {S(dst)}, {S(r)}'); first = False
            elif sh:
                a(f's_lshl_b32 {S(sT3)}, {S(r)}, {sh}\ns_add_u32 {S(dst)}, {S(dst)}, {S(sT3)}')
            else:
                a(f's_add_u32 {S(dst)}, {S(dst)}, {S(r)}')
        if const: a(f's_add_u32 {S(dst)}, {S(dst)}, {const}')

    def smul(dst, r, k, const=0):
        a(f's_mul_i32 {S(dst)}, {S(r)}, {k}')
        if const: a(f's_add_u32 {S(dst)}, {S(dst)}, {const}')

    T = [vT + i for i in range(16)]

    a.raw('; @launch grid=(256,1,1) block=(512,1,1) lds=%d' % LDS_BYTES)
    a.raw('.amdgcn_target "amdgcn-amd-amdhsa--gfx950"\n.text\n.globl %s_kernel\n.p2align 8\n.type %s_kernel,@function\n%s_kernel:' % (KN, KN, KN))
    a('''
    s_cmp_ge_u32 s2, 256
    s_cbranch_scc1 L_end
    s_load_dwordx16 s[4:19], s[0:1], 0
    s_load_dwordx16 s[20:35], s[0:1], 64
    s_load_dwordx2 s[36:37], s[0:1], 128
    ''')
    if o['cpf']:
        a.comment('pull the rest of this kernel code into L2: a few lines per workgroup of each XCD class')
        a(f'''
        s_getpc_b64 {S(sPB,2)}
        s_lshr_b32 {S(sT0)}, s2, 3
        s_mul_i32 {S(sT0)}, {S(sT0)}, {128*o['cpfn']}
        v_lshl_add_u32 {V(vTLB)}, v0, 7, {S(sT0)}
        v_min_u32 {V(vTLB)}, L_end - L_cpf, {V(vTLB)}
        v_cmp_gt_u32 vcc, {o['cpfn']}, v0
        s_and_saveexec_b64 {S(sM,2)}, vcc
        s_cbranch_execz L_cpf
        global_load_dword {V(vTLB)}, {V(vTLB)}, {S(sPB,2)}
        L_cpf:
        s_mov_b64 exec, -1
        ''')
    if o['diag'] >= 0: a('s_memrealtime s[86:87]')
    if o['stamp']: a(f"{'s_memtime' if o['cyc'] else 's_memrealtime'} s[100:101]")
    a(f'''
    v_lshrrev_b32 {V(T[0])}, 6, v0
    v_and_b32 {V(vL)}, 63, v0
    v_readfirstlane_b32 {S(sW)}, {V(T[0])}
    s_and_b32 {S(sK)}, s2, 7
    s_lshr_b32 {S(sJ)}, s2, 3
    s_and_b32 {S(sCGL)}, {S(sJ)}, 15
    s_lshr_b32 {S(sH)}, {S(sJ)}, 4
    s_and_b32 {S(sWI)}, {S(sW)}, 3
    s_cmp_ge_u32 {S(sW)}, 4
    s_cselect_b32 {S(sROLE)}, 1, 0
    ''')
    ssum(sCH0, (sK, 6), (sCGL, 2))
    for i in range(7): a(f'v_mov_b32 {V(vP+i)}, 0')
    a(f's_add_u32 {S(sT1)}, {S(sCH0)}, {S(sWI)}')
    a(f's_lshr_b32 {S(sT2)}, {S(sW)}, 2')
    ssum(sT0, (sT1, 8), (sT2, 7))
    a(f'v_lshl_add_u32 {V(T[1])}, {V(vL)}, 1, {S(sT0)}')
    a(f's_lshl_b32 {S(sT1)}, {S(sT1)}, 1')
    a(f'v_mov_b32 {V(T[2])}, {S(sT1)}')
    if o['stamp']:
        ssum(sT1, (2, 11), (sW, 8), W_STAMP)
        a(f'v_lshl_add_u32 {V(vSTA)}, {V(vL)}, 2, {S(sT1)}')
        for i in range(14): a(f's_mov_b32 s{86+i}, 0')

    def param_loads():
        for i, p in enumerate((sARE, sAIM, sBRE, sBIM, sCRE, sCIM)):
            a(f"global_load_short_d16_hi {V(vP+i)}, {V(T[1])}, {S(p,2)}{' nt' if o['pnt'] else ''}")
        a(f'global_load_short_d16_hi {V(vP+6)}, {V(T[2])}, {S(sLDT,2)}')

    a(f's_cmp_eq_u32 {S(sROLE)}, 1\ns_cbranch_scc1 L_h_load')
    ssum(sT0, (sJ, 16), (sW, 14), (sK, 7))
    a(f'''
    v_lshrrev_b32 {V(T[3])}, 3, {V(vL)}
    v_and_b32 {V(T[4])}, 7, {V(vL)}
    v_lshlrev_b32 {V(T[3])}, 10, {V(T[3])}
    v_lshl_add_u32 {V(T[3])}, {V(T[4])}, 4, {V(T[3])}
    v_add_u32 {V(T[3])}, {S(sT0)}, {V(T[3])}
    v_add_u32 {V(T[4])}, 8192, {V(T[3])}
    s_waitcnt lgkmcnt(0)
    ''')
    if o['stamp']: a('s_mov_b32 s99, s100')
    if o['diag'] >= 0: a('s_mov_b32 s88, s86')
    stamp(0)
    XNT = ' nt' if o['xnt'] else ''
    PF1 = o['pfirst']
    if PF1: param_loads()
    a(f'global_load_dwordx4 {V(vD,4)}, {V(T[3])}, {S(sX,2)}{XNT}')
    a(f'global_load_dwordx4 {V(vD+4,4)}, {V(T[4])}, {S(sX,2)}{XNT}')
    if not PF1: param_loads()
    a('s_branch L_init')
    a('L_h_load:')
    ssum(sT0, (2, 13), (sWI, 11))
    a(f'''
    v_and_b32 {V(T[3])}, 31, {V(vL)}
    v_lshlrev_b32 {V(T[3])}, 4, {V(T[3])}
    v_lshrrev_b32 {V(T[4])}, 5, {V(vL)}
    v_lshl_add_u32 {V(T[4])}, {V(T[4])}, 10, {V(T[3])}
    v_add_u32 {V(T[4])}, {S(sT0)}, {V(T[4])}
    v_mov_b32 {V(T[5])}, 0
    s_waitcnt lgkmcnt(0)
    ''')
    if o['stamp']: a('s_mov_b32 s99, s100')
    if o['diag'] >= 0: a('s_mov_b32 s88, s86')
    stamp(0)
    if PF1: param_loads()
    a(f'''
    global_load_dwordx4 {V(vG,4)}, {V(T[3])}, {S(sWR,2)}
    global_load_dwordx4 {V(vG+4,4)}, {V(T[3])}, {S(sWR,2)} offset:512
    global_load_dwordx4 {V(vD,4)}, {V(T[4])}, {S(sX,2)}{XNT}
    global_load_dwordx4 {V(vD+4,4)}, {V(T[4])}, {S(sX,2)} offset:512{XNT}
    global_load_dword {V(vEP)}, {V(T[5])}, {S(sWS,2)} sc1
    ''')
    if not PF1: param_loads()

    a('L_init:')
    a(f'''
    v_mov_b32 {V(T[6])}, 0
    v_mov_b32 {V(T[7])}, 0x3f80
    s_lshl_b32 {S(sT0)}, {S(sW)}, 8
    s_mov_b32 m0, {S(sT0)}
    v_and_b32 {V(T[8])}, 127, v0
    ds_write_addtid_b32 {V(T[7])} offset:{STAGE}
    v_min_u32 {V(T[8])}, 119, {V(T[8])}
    v_lshrrev_b32 {V(T[9])}, 7, v0
    v_mul_u32_u24 {V(T[10])}, {US}, {V(T[9])}
    v_lshl_add_u32 {V(T[10])}, {V(T[8])}, 2, {V(T[10])}
    v_add_u32 {V(T[10])}, {U}, {V(T[10])}
    ds_write_b32 {V(T[10])}, {V(T[6])}
    s_cmp_lg_u32 {S(sW)}, 0
    s_cbranch_scc1 L_init2
    v_bfe_u32 {V(T[9])}, {V(vL)}, 1, 2
    v_mul_u32_u24 {V(T[9])}, {TS}, {V(T[9])}
    v_and_b32 {V(T[8])}, 1, {V(vL)}
    v_lshl_add_u32 {V(T[9])}, {V(T[8])}, 2, {V(T[9])}
    v_add_u32 {V(T[9])}, {TAB}, {V(T[9])}
    v_and_b32 {V(T[8])}, 15, {V(vL)}
    v_lshlrev_b32 {V(T[8])}, 2, {V(T[8])}
    v_add_u32 {V(T[8])}, {FF}, {V(T[8])}
    s_mov_b64 exec, 0xffff
    ds_write_b32 {V(T[9])}, {V(T[6])}
    ds_write_b32 {V(T[8])}, {V(T[6])}
    s_mov_b64 exec, -1
    L_init2:
    s_waitcnt lgkmcnt(0)
    s_barrier
    s_lshl_b32 {S(sT0)}, {S(sCH0)}, 1
    s_load_dwordx2 {S(sDS,2)}, {S(sDSK,2)}, {S(sT0)}
    s_getreg_b32 {S(sXCC)}, hwreg(HW_REG_XCC_ID, 0, 4)
    s_mov_b32 {S(sONES)}, 0x3f803f80
    s_mov_b32 {S(sHI)}, 0xffff0000
    s_lshr_b32 {S(sT0)}, {S(sW)}, 2
    s_xor_b32 {S(sT0)}, {S(sT0)}, {S(sWI)}
    s_xor_b32 {S(sT0)}, {S(sT0)}, {S(sH)}
    s_xor_b32 {S(sT0)}, {S(sT0)}, 1
    s_and_b32 {S(sT0)}, {S(sT0)}, 1
    s_lshl_b32 {S(sT)}, {S(sWI)}, 1
    s_add_u32 {S(sT)}, {S(sT)}, {S(sT0)}
    s_lshr_b32 {S(sT0)}, {S(sJ)}, 3
    s_and_b32 {S(sT1)}, {S(sJ)}, 7
    ''')
    ssum(sA, (sT0, 3), (sK, 0))
    a(f's_mov_b32 {S(sR)}, {S(sT1)}')
    ssum(sF8, (sA, 3), (sR, 0))
    a(f'''
    s_cmp_lt_u32 {S(sA)}, 22
    s_cselect_b32 {S(sP1)}, 1, 0
    s_cmp_lt_u32 {S(sF8)}, 172
    s_cselect_b32 {S(sPROD)}, 1, 0
    s_cselect_b32 {S(sF8)}, {S(sF8)}, {S(sJ)}
    s_lshl_b32 {S(sT0)}, {S(sK)}, 1
    s_lshl_b32 {S(sCM)}, 0x00030003, {S(sT0)}
    s_mov_b32 {S(sCM+1)}, {S(sCM)}
    ''')

    pos = [vXF + i for i in range(7)]
    a(f'v_lshlrev_b32 {V(T[0])}, 2, v0')
    a(f's_cmp_eq_u32 {S(sW)}, 0\ns_cbranch_scc1 L_pos0')
    for i in range(7): a(f'v_add_u32 {V(pos[i])}, {i-3}, {V(T[0])}')
    for i in range(7): a(f'v_cvt_f32_u32 {V(pos[i])}, {V(pos[i])}')
    for i in range(0, 7, 2):
        j = min(i + 1, 6)
        a(f'v_cvt_pk_bf16_f32 {V(T[8+i//2])}, {V(pos[i])}, {V(pos[j])}')
    a(f'v_mov_b32 {V(T[1])}, {4 - 0x4280}')
    for i in range(7):
        a(f'v_bfe_u32 {V(pos[i])}, {V(T[8+i//2])}, {16*(i&1)}, 16')
        a(f'v_add_u32 {V(pos[i])}, {V(T[1])}, {V(pos[i])}')
    a('s_branch L_pos_done')
    a('L_pos0:')
    for i in range(7): a(f'v_add_u32 {V(pos[i])}, {i+1}, {V(T[0])}')
    a('L_pos_done:')
    b1, b2 = T[1], T[2]
    a(f'''
    v_and_b32 {V(b1)}, -2, {V(pos[2])}
    v_add_u32 {V(b1)}, -2, {V(b1)}
    v_and_b32 {V(b2)}, -2, {V(pos[3])}
    v_add_u32 {V(T[3])}, {V(b1)}, {V(b1)}
    v_add_u32 {V(T[4])}, {V(b2)}, {V(b2)}
    ''')
    for c in range(4):
        a(f'v_add_u32 {V(vGA+2*c)}, {TAB + c*TS}, {V(T[3])}')
        a(f'v_add_u32 {V(vGA+2*c+1)}, {TAB + c*TS}, {V(T[4])}')
    for i in range(3): a(f'v_sub_u32 {V(pos[i])}, {V(pos[i])}, {V(b1)}')
    for i in range(3, 7): a(f'v_sub_u32 {V(pos[i])}, {V(pos[i])}, {V(b2)}')
    a(f's_movk_i32 {S(sT0)}, 0x0202\nv_mov_b32 {V(T[3])}, 0x0100')
    for i in range(7): a(f'v_mad_u32_u24 {V(pos[i])}, {V(pos[i])}, {S(sT0)}, {V(T[3])}')
    for dst, lo, hi in ((0, 1, 0), (1, 2, 1), (2, 3, 2), (3, 4, 3), (4, 5, 4), (5, 6, 5)):
        a(f'v_lshl_or_b32 {V(vSEL+dst)}, {V(pos[hi])}, 16, {V(pos[lo])}')
    a(f'v_add_u32 {V(vSEL+2)}, 0x{(2*0x0202 - 2*0x02020000) & 0xffffffff:x}, {V(vSEL+2)}')
    a(f'''
    v_and_b32 {V(T[0])}, -4, v0
    v_lshlrev_b32 {V(T[0])}, 2, {V(T[0])}
    v_lshl_add_u32 {V(vR4W)}, v0, 5, {V(T[0])}
    v_add_u32 {V(vR4W)}, {R4 + 144}, {V(vR4W)}
    ''')
    a(f's_lshl_b32 {S(sT0)}, {S(sT)}, 6')
    a(f'v_add_u32 {V(T[0])}, {S(sT0)}, {V(vL)}')
    ssum(sINB, (sK, 18), (sCGL, 14), W_IN)
    ssum(sT1, (sK, 9), W_FL)
    ssum(sT2, (sK, 5), W_ST + 12)
    a(f'''
    v_lshlrev_b32 {V(vROW)}, 2, {V(T[0])}
    v_lshlrev_b32 {V(vUW)}, 3, {V(T[0])}
    v_add_u32 {V(vUW)}, {U + 480}, {V(vUW)}
    v_lshlrev_b32 {V(vST0)}, 4, {V(T[0])}
    v_add_u32 {V(vST1)}, {W_ST + 8192}, {V(vST0)}
    v_add_u32 {V(vST0)}, {W_ST}, {V(vST0)}
    s_lshl_b32 {S(sT0)}, {S(sCH0)}, 1
    v_lshl_add_u32 {V(vXG)}, {V(T[0])}, 12, {S(sT0)}
    v_lshrrev_b32 {V(T[1])}, 2, {V(T[0])}
    v_lshl_add_u32 {V(vFL)}, {V(T[1])}, 2, {S(sT1)}
    v_and_b32 {V(T[2])}, 3, {V(vL)}
    v_lshl_add_u32 {V(T[2])}, {V(T[2])}, 4, {S(sINB)}
    v_lshl_add_u32 {V(vIN)}, {V(T[1])}, 7, {V(T[2])}
    v_lshrrev_b32 {V(T[1])}, 4, {V(T[0])}
    v_lshl_add_u32 {V(vXC)}, {V(T[1])}, 8, {S(sT2)}
    ''')
    smul(sT1, sWI, US, U + 480)
    a(f'''
    v_and_b32 {V(T[0])}, 31, {V(vL)}
    v_lshrrev_b32 {V(T[1])}, 5, {V(vL)}
    s_lshl_b32 {S(sT0)}, {S(sW)}, 8
    v_lshl_add_u32 {V(T[2])}, {V(T[1])}, 4, {S(sT0)}
    s_movk_i32 {S(sT0)}, {RS}
    v_mad_u32_u24 {V(vKB)}, {V(T[0])}, {S(sT0)}, {V(T[2])}
    v_add_u32 {V(T[3])}, -16, {V(T[0])}
    v_cmp_lt_u32 vcc, 20, {V(T[0])}
    v_lshl_add_u32 {V(vPD)}, {V(vL)}, 4, {S(sT1)}
    v_cndmask_b32 {V(T[3])}, {V(T[0])}, {V(T[3])}, vcc
    v_mad_u32_u24 {V(vKA)}, {V(T[3])}, {S(sT0)}, {V(T[2])}
    v_add_u32 {V(vKA)}, {STAGE + 32*RS}, {V(vKA)}
    v_and_b32 {V(T[5])}, 15, {V(vL)}
    v_lshrrev_b32 {V(T[6])}, 4, {V(vL)}
    s_cmp_eq_u32 {S(sROLE)}, 1
    s_cbranch_scc1 L_h_setup
    ''')

    slw, slw1, slr, slr1, ina, ina1, tga, pfa_c = [vXN + i for i in range(8)]
    ssum(sT0, (sW, 11), SL)
    a(f'''
    v_lshrrev_b32 {V(T[0])}, 3, {V(vL)}
    v_and_b32 {V(T[1])}, 7, {V(vL)}
    v_xor_b32 {V(T[2])}, {V(T[6])}, {V(T[1])}
    v_lshl_add_u32 {V(T[2])}, {V(T[2])}, 4, {S(sT0)}
    v_lshl_add_u32 {V(slw)}, {V(T[0])}, 7, {V(T[2])}
    v_xor_b32 {V(slw1)}, 64, {V(slw)}
    v_and_b32 {V(T[2])}, 3, {V(vL)}
    v_bfe_u32 {V(T[3])}, {V(vL)}, 2, 1
    v_lshl_add_u32 {V(T[2])}, {V(T[2])}, 1, {V(T[3])}
    v_xor_b32 {V(T[3])}, {V(T[6])}, {V(T[2])}
    v_lshl_add_u32 {V(T[3])}, {V(T[3])}, 4, {S(sT0)}
    v_lshl_add_u32 {V(T[3])}, {V(T[2])}, 8, {V(T[3])}
    v_and_b32 {V(T[4])}, 1, {V(T[0])}
    v_lshl_add_u32 {V(slr)}, {V(T[4])}, 3, {V(T[3])}
    v_xor_b32 {V(slr1)}, 64, {V(slr)}
    ''')
    ssum(sT0, (sK, 18), (sJ, 9), (sW, 7), W_IN)
    a(f'''
    v_lshl_add_u32 {V(T[1])}, {V(T[1])}, 4, {S(sT0)}
    v_lshl_add_u32 {V(ina)}, {V(T[0])}, 14, {V(T[1])}
    v_add_u32 {V(ina1)}, 0x20000, {V(ina)}
    ''')
    ssum(sT0, (sK, 9), (sJ, 4), (sW, 2), W_FL)
    a(f'v_mov_b32 {V(vFLO)}, {S(sT0)}')
    ssum(sT0, (sW, 2), TG)
    a(f'v_mov_b32 {V(tga)}, {S(sT0)}')
    a('s_waitcnt vmcnt(2)\ns_branch L_kgen' if PF1 else 's_branch L_c_slice')

    a('L_h_setup:')
    ssum(sT1, (sWI, 2), FF)
    a(f'''
    v_mov_b32 {V(vFFW)}, {S(sT1)}
    s_lshr_b32 {S(sT1)}, {S(sWI)}, 1
    s_and_b32 {S(sT2)}, {S(sWI)}, 1
    ''')
    ssum(sT0, (2, 5), (sT1, 4), (sT2, 13), W_ST)
    a(f'v_mov_b32 {V(vSTP)}, {S(sT0)}')
    rk, pfi = vXN, vXN + 8
    ssum(sT0, (2, 3), (sWI, 1))
    a(f's_sub_u32 {S(sT0)}, 0xffff, {S(sT0)}\nv_sub_u32 {V(rk)}, {S(sT0)}, {V(T[1])}')
    ssum(sT0, (sH, 13), (sWI, 11), (sINB, 0))
    a(f'v_lshl_add_u32 {V(pfi)}, {V(T[5])}, 7, {S(sT0)}')
    if PF1: a('s_waitcnt vmcnt(5)')

    def table_setup():
        smul(sT0, sWI, TS, TAB + 8)
        a(f'''
        v_and_b32 {V(T[0])}, 31, {V(vL)}
        v_lshrrev_b32 {V(T[1])}, 5, {V(vL)}
        v_lshl_add_u32 {V(T[2])}, {V(T[1])}, 3, {S(sT0)}
        v_lshl_add_u32 {V(vTW1)}, {V(T[0])}, 4, {V(T[2])}
        v_sub_u32 {V(T[2])}, 3, {V(T[1])}
        v_lshlrev_b32 {V(T[2])}, {V(T[2])}, {V(T[0])}
        v_lshl_add_u32 {V(T[3])}, {V(T[1])}, 8, {S(sT0)}
        v_add_u32 {V(T[3])}, 512, {V(T[3])}
        v_add_u32 {V(vTW2)}, {V(T[2])}, {V(T[3])}
        v_mul_u32_u24 {V(T[2])}, 124, {V(T[1])}
        v_add3_u32 {V(vTW3)}, {V(vTW2)}, {V(T[2])}, 4
        v_lshl_add_u32 {V(vTW4)}, {V(T[0])}, 1, {V(T[3])}
        v_add_u32 {V(vTW4)}, 512, {V(vTW4)}
        ''')

    def wsrc_setup():
        ssum(sT0, (sA, 7), (sWI, 5))
        ssum(sT1, (sF8, 13), (sWI, 8), 4096)
        ssum(sT2, (sF8, 10), W_P1)
        a(f'''
        s_min_u32 {S(sT0)}, {S(sT0)}, 2720
        v_lshrrev_b32 {V(T[6])}, 1, {V(vL)}
        v_lshl_add_u32 {V(T[6])}, {S(sR)}, 6, {V(T[6])}
        v_and_b32 {V(T[7])}, 1, {V(vL)}
        v_lshl_add_u32 {V(T[7])}, {V(T[7])}, 4, {S(sT0)}
        s_movk_i32 {S(sT0)}, 2752
        v_mad_u32_u24 {V(vWS0)}, {V(T[6])}, {S(sT0)}, {V(T[7])}
        v_add_u32 {V(vWS1)}, {32*2752}, {V(vWS0)}
        v_lshl_add_u32 {V(vWDA)}, {V(vL)}, 2, {S(sT1)}
        v_lshl_add_u32 {V(vP1R)}, {V(vL)}, 4, {S(sT2)}
        v_lshl_add_u32 {V(vP1F)}, {V(vL)}, 7, {S(sT2)}
        ''')

    def ffn_setup():
        smul(sT0, sWI, YTS, YX)
        ssum(sT1, (sWI, 12), WL)
        a(f'''
        v_and_b32 {V(T[2])}, 3, {V(vL)}
        v_lshrrev_b32 {V(T[3])}, 2, {V(vL)}
        v_mul_u32_u24 {V(T[4])}, {YGS}, {V(T[2])}
        v_lshl_add_u32 {V(T[4])}, {V(T[3])}, 4, {V(T[4])}
        v_add_u32 {V(vY)}, {S(sT0)}, {V(T[4])}
        v_lshl_add_u32 {V(T[2])}, {V(T[2])}, 3, {S(sT1)}
        v_lshl_add_u32 {V(vWT)}, {V(T[3])}, 5, {V(T[2])}
        v_lshl_add_u32 {V(vWDR)}, {V(vL)}, 4, {S(sT1)}
        v_and_b32 {V(T[2])}, 255, v0
        v_lshrrev_b32 {V(T[4])}, 1, {V(T[2])}
        v_mul_u32_u24 {V(T[4])}, 6144, {V(T[4])}
        v_and_b32 {V(T[3])}, 1, {V(vL)}
        v_lshl_add_u32 {V(T[4])}, {V(T[3])}, 4, {V(T[4])}
        ''')
        ssum(sT1, (sF8, 5), W_FP)
        a(f'v_add_u32 {V(vFPA)}, {S(sT1)}, {V(T[4])}')
        ssum(sT0, (sA, 13), (sWI, 11), (sR, 7), W_P1)
        a(f'''
        s_lshl_b32 {S(sT1)}, {S(sR)}, 7
        v_lshrrev_b32 {V(T[2])}, 4, {V(vL)}
        v_lshl_add_u32 {V(T[2])}, {V(T[2])}, 3, {S(sT1)}
        v_lshl_add_u32 {V(vXS)}, {V(T[3])}, 6, {V(T[2])}
        v_bfe_u32 {V(T[2])}, {V(vL)}, 3, 1
        v_and_b32 {V(T[3])}, 7, {V(vL)}
        v_lshl_add_u32 {V(T[3])}, {V(T[3])}, 4, {S(sT0)}
        v_lshl_add_u32 {V(vP1W)}, {V(T[2])}, 10, {V(T[3])}
        ''')

    def conv_setup():
        a(f'v_and_b32 {V(T[5])}, 15, {V(vL)}\nv_lshrrev_b32 {V(T[6])}, 4, {V(vL)}')
        smul(sT0, sW, R4S, R4)
        a(f'v_lshlrev_b32 {V(T[3])}, 3, {V(T[6])}\nv_sub_u32 {V(T[3])}, {V(T[5])}, {V(T[3])}')
        for reg, k in ((vCA, 32), (vCA2, 28)):
            a(f'''
            v_add_u32 {V(T[4])}, {k}, {V(T[3])}
            v_lshrrev_b32 {V(T[7])}, 4, {V(T[4])}
            v_lshl_add_u32 {V(reg)}, {V(T[4])}, 3, {S(sT0)}
            v_lshl_add_u32 {V(reg)}, {V(T[7])}, 4, {V(reg)}
            ''')
        smul(sT0, sW, US, U)
        a(f'''
        v_lshl_add_u32 {V(T[3])}, {V(T[6])}, 4, {S(sT0)}
        v_lshl_add_u32 {V(vCB)}, {V(T[5])}, 5, {V(T[3])}
        ''')
        smul(sT0, sW, YCS, YX)
        a(f'''
        v_mul_u32_u24 {V(T[3])}, {YGS}, {V(T[6])}
        v_lshl_add_u32 {V(T[3])}, {V(T[5])}, 4, {V(T[3])}
        v_add_u32 {V(vY)}, {S(sT0)}, {V(T[3])}
        ''')

    def slice_work():
        a('s_waitcnt vmcnt(0)' if PF1 else 's_waitcnt vmcnt(7)')
        stamp(1)
        a(f'''
        ds_write_b128 {V(slw)}, {V(vD,4)}
        ds_write_b128 {V(slw1)}, {V(vD+4,4)} offset:1024
        ds_read_b64 {V(vG,2)}, {V(slr)}
        ds_read_b64 {V(vG+2,2)}, {V(slr)} offset:128
        ds_read_b64 {V(vG+4,2)}, {V(slr1)}
        ds_read_b64 {V(vG+6,2)}, {V(slr1)} offset:128
        s_waitcnt lgkmcnt(0)
        global_store_dwordx4 {V(ina)}, {V(vG,4)}, {S(sWS,2)}
        global_store_dwordx4 {V(ina1)}, {V(vG+4,4)}, {S(sWS,2)}
        ''')


    S1, S2, S3, S4 = vXF, vXF + 1, vXF + 2, vXF + 3

    def red32(regs):
        for m in ('row_shr:1', 'row_shr:2', 'row_shr:4', 'row_shr:8'):
            for r in regs: a(f'v_add_f32_dpp {V(r)}, {V(r)}, {V(r)} {m} row_mask:0xf bank_mask:0xf')
        for r in regs: a(f'v_add_f32_dpp {V(r)}, {V(r)}, {V(r)} row_bcast:15 row_mask:0xa bank_mask:0xf')

    def ln_work():
        for r in (S1, S2, S3, S4): a(f'v_mov_b32 {V(r)}, 0')
        NP = 0 if PF1 else 7
        a(f's_setprio 2\ns_waitcnt vmcnt({3 + NP})')
        for i in range(8): a(f'v_dot2_f32_bf16 {V(S4)}, {V(vG+i)}, {S(sONES)}, {V(S4)}')
        red32([S4])
        a(f's_waitcnt vmcnt({1 + NP})')
        stamp(1)
        nlate = 0
        if o['prefetch']:
            a('s_mov_b64 exec, 0xffff')
            a(f'global_load_dword {V(vPFD)}, {V(pfi)}, {S(sWS,2)} nt'); nlate += 1
            alllanes()
        for i in range(8):
            a(f'v_dot2_f32_bf16 {V(S1)}, {V(vD+i)}, {S(sONES)}, {V(S1)}')
            a(f'v_dot2_f32_bf16 {V(S2)}, {V(vD+i)}, {V(vD+i)}, {V(S2)}')
            a(f'v_dot2_f32_bf16 {V(S3)}, {V(vD+i)}, {V(vG+i)}, {V(S3)}')
        red32([S1, S2, S3])
        t = T[0]; g = vE
        a(f'''
        v_mul_f32 {V(S1)}, 0x3b000000, {V(S1)}
        v_mul_f32 {V(S2)}, 0x3b000000, {V(S2)}
        s_waitcnt vmcnt({nlate + NP})
        v_fma_f32 {V(S2)}, -{V(S1)}, {V(S1)}, {V(S2)}
        v_readfirstlane_b32 {S(sTAG)}, {V(vEP)}
        v_max_f32 {V(S2)}, 0, {V(S2)}
        v_cvt_pk_bf16_f32 {V(t)}, {V(S1)}, {V(S2)}
        s_add_u32 {S(sTAG)}, {S(sTAG)}, 16
        v_and_b32 {V(t)}, {S(sHI)}, {V(t)}
        s_and_b32 {S(sTAG)}, {S(sTAG)}, -16
        v_add_f32 {V(t)}, 0x3727c5ac, {V(t)}
        s_or_b32 {S(sTAGX)}, {S(sTAG)}, {S(sXCC)}
        v_cvt_pk_bf16_f32 {V(t)}, {V(t)}, {V(t)}
        v_and_b32 {V(t)}, {S(sHI)}, {V(t)}
        v_sqrt_f32 {V(t)}, {V(t)}
        v_mov_b32 {V(g+3)}, {S(sTAGX)}
        v_cvt_pk_bf16_f32 {V(g+1)}, {V(S1)}, {V(t)}
        v_and_b32 {V(t)}, {S(sHI)}, {V(g+1)}
        v_lshlrev_b32 {V(t+1)}, 16, {V(g+1)}
        v_rcp_f32 {V(t)}, {V(t)}
        v_fma_f32 {V(S3)}, -{V(t+1)}, {V(S4)}, {V(S3)}
        v_readlane_b32 {S(sT0)}, {V(g+1)}, 31
        v_mul_f32 {V(S3)}, {V(S3)}, {V(t)}
        v_cvt_pk_bf16_f32 {V(S3)}, {V(S3)}, {V(S3)}
        v_mov_b32 {V(g)}, {S(sT0)}
        v_ashrrev_i32 {V(t)}, 31, {V(S3)}
        v_or_b32 {V(t)}, 0x80000000, {V(t)}
        v_xor_b32 {V(t)}, {V(t)}, {V(S3)}
        v_and_or_b32 {V(t)}, {V(t)}, {S(sHI)}, {V(rk)}
        s_add_u32 {S(sT1)}, {S(sTAG)}, 1
        v_readlane_b32 {S(sT0)}, {V(t)}, 31
        v_mov_b32 {V(t+2)}, {S(sT1)}
        v_max_u32 {V(g+2)}, {S(sT0)}, {V(t)}
        ''')
        lane63()
        a(f'global_store_dwordx4 {V(vSTP)}, {V(g,4)}, {S(sWS,2)} sc1')
        a(f'ds_write_b32 {V(vFFW)}, {V(t+2)} offset:{TG - FF}')
        alllanes()
        a(f"s_setprio 0\ns_waitcnt vmcnt({1 + nlate}) lgkmcnt(0)")
        stamp(2)

    if not PF1:
        ln_work()
        a('s_branch L_kgen\nL_c_slice:')
        slice_work()
        a('s_waitcnt vmcnt(2)')
    a('L_kgen:')
    are, aim, bre, bim, cre, cim, dt = [vP + i for i in range(7)]
    t0 = vP + 7
    z1, z2, z4, ZZ, w1, w2, w4 = [vP + 8 + 2 * i for i in range(7)]
    hq = [vP + 24 + 2 * i for i in range(8)]
    lq = [vP + 40 + 2 * i for i in range(8)]
    cv = [vP + 56 + i for i in range(8)]
    a(f'''
    v_mov_b32 {V(t0)}, 0x3fb8aa3b
    v_mul_f32 {V(dt)}, {V(dt)}, {V(t0)}
    v_exp_f32 {V(dt)}, {V(dt)}
    v_mul_f32 {V(are)}, {V(t0)}, {V(are)}
    v_cvt_pk_bf16_f32 {V(dt)}, {V(dt)}, {V(dt)}
    v_mul_f32 {V(aim)}, 0.15915494, {V(aim)}
    v_and_b32 {V(dt)}, {S(sHI)}, {V(dt)}
    v_mul_f32 {V(are)}, {V(dt)}, {V(are)}
    v_mul_f32 {V(aim)}, {V(dt)}, {V(aim)}
    v_exp_f32 {V(cv[0])}, {V(are)}
    v_fract_f32 {V(cv[1])}, {V(aim)}
    v_mul_f32 {V(are)}, 0x43800000, {V(are)}
    v_cos_f32 {V(z1)}, {V(cv[1])}
    v_mul_f32 {V(aim)}, 0x43800000, {V(aim)}
    v_sin_f32 {V(z1+1)}, {V(cv[1])}
    v_fract_f32 {V(cv[3])}, {V(aim)}
    v_exp_f32 {V(cv[2])}, {V(are)}
    v_mul_f32 {V(z1)}, {V(cv[0])}, {V(z1)}
    v_cos_f32 {V(ZZ)}, {V(cv[3])}
    v_mul_f32 {V(z1+1)}, {V(cv[0])}, {V(z1+1)}
    v_sin_f32 {V(ZZ+1)}, {V(cv[3])}
    v_mul_f32 {V(bre)}, {V(dt)}, {V(bre)}
    v_mul_f32 {V(bim)}, {V(dt)}, {V(bim)}
    ''')
    cmul(z2, z1, z1)
    a(f'v_mul_f32 {V(ZZ)}, {V(cv[2])}, {V(ZZ)}\nv_mul_f32 {V(ZZ+1)}, {V(cv[2])}, {V(ZZ+1)}')
    cmul(z4, z2, z2)
    cmul(hq[0], cre, bre)
    ci = [0]; m0_hi = [False]

    def put(row, reg, neg):
        c = cv[ci[0] % 8]; ci[0] += 1
        a(f"v_cvt_pk_bf16_f32 {V(c)}, {V(reg)}, {'-' if neg else ''}{V(reg+1)}")
        off = row * RS - (30 * RS if m0_hi[0] else 0)
        assert 0 <= off < 65536, (row, off)
        a(f'ds_write_addtid_b32 {V(c)} offset:{STAGE + off}')
    cmul(w1, z4, z4)
    cmul(hq[1], hq[0], z1)
    cmul(w2, w1, w1)
    put(1, w1, False)
    cmul(hq[2], hq[0], z2)
    cmul(lq[3], w2, w1)
    put(2, w2, False)
    cmul(w4, w2, w2)
    put(3, lq[3], False)
    cur = {1: w1, 2: w2, 3: lq[3], 4: w4}
    put(4, w4, False)

    def lo_step(j):
        d = lq[j % 8]
        cmul(d, cur[j - 4], w4); cur[j] = d
        put(j, d, False)
    def inject(j):
        if not PF1: return
        if j == o['jc']:
            a(f's_cmp_eq_u32 {S(sROLE)}, 1\ns_cbranch_scc1 L_noslice'); slice_work(); a('L_noslice:')
        if j == o['jh']:
            a(f's_cmp_eq_u32 {S(sROLE)}, 0\ns_cbranch_scc1 L_noln'); ln_work(); a('L_noln:')
    inject(4)
    for j in range(5, o['jf']):
        lo_step(j); inject(j)
    a(f's_cmp_eq_u32 {S(sROLE)}, 1\ns_cbranch_scc1 L_noflag')
    spin_init()
    a(f'''
    L_tagspin:
    ds_read_b32 {V(T[0])}, {V(tga)}
    s_waitcnt lgkmcnt(0)
    v_readfirstlane_b32 {S(sTAG)}, {V(T[0])}
    s_cmp_lg_u32 {S(sTAG)}, 0
    s_cbranch_scc1 L_tagok
    ''')
    spin_next('L_tagspin')
    a(f'''
    L_tagok:
    s_and_b32 {S(sTAG)}, {S(sTAG)}, -16
    s_or_b32 {S(sTAGX)}, {S(sTAG)}, {S(sXCC)}
    v_mov_b32 {V(T[0])}, {S(sTAGX)}
    s_mov_b64 exec, 1
    s_waitcnt vmcnt(0)
    global_store_dword {V(vFLO)}, {V(T[0])}, {S(sWS,2)}
    s_mov_b64 exec, -1
    ''')
    stamp(2)
    a('L_noflag:')
    for j in range(o['jf'], 30): lo_step(j)
    ssum(sT0, (sW, 8), 30 * RS)
    a(f's_mov_b32 m0, {S(sT0)}')
    m0_hi[0] = True
    for j in range(30, 32): lo_step(j)
    put(32, hq[0], True); put(33, hq[1], True); put(34, hq[2], True)
    cmul(hq[3], hq[1], z2); cmul(hq[4], hq[0], z4)
    put(35, hq[3], True); put(36, hq[4], True)
    a(f'global_load_dword {V(vPFD)}, {V(vFL)}, {S(sWS,2)} sc1')
    cmul(hq[5], hq[1], z4); cmul(hq[6], hq[2], z4); cmul(hq[7], hq[3], z4)
    put(37, hq[5], True); put(38, hq[6], True); put(39, hq[7], True)
    A0, A2, A4, A6, B0, B4, C0, C4 = lq
    cmul(A0, hq[0], ZZ); cmul(A2, hq[2], ZZ); cmul(A4, hq[4], ZZ); cmul(A6, hq[6], ZZ)
    put(40, A0, True)
    cmul(B0, A0, ZZ); put(41, A2, True); cmul(B4, A4, ZZ); put(42, A4, True)
    cmul(C0, B0, ZZ); put(43, A6, True); cmul(C4, B4, ZZ); put(44, B0, True)
    cmul(hq[1], C0, ZZ); put(45, B4, True); put(46, C0, True)
    cmul(hq[2], hq[1], ZZ); put(47, C4, True); put(48, hq[1], True)
    cmul(hq[3], hq[2], ZZ); put(49, hq[2], True)
    cmul(hq[4], hq[3], ZZ); put(50, hq[3], True)
    cmul(hq[5], hq[4], ZZ); put(51, hq[4], True); put(52, hq[5], True)
    stamp(3)

    KD = vP; KF = vP + 16; NB = o['nb']

    def kread(sidx):
        r = KF + 8 * (sidx % NB)
        a(f'ds_read_b128 {V(r,4)}, {V(vKA)} offset:{32*sidx}')
        a(f'ds_read_b128 {V(r+4,4)}, {V(vKB)} offset:{32*sidx}')

    def kmfma(cinit, shadow=()):
        for sidx in range(8):
            if sidx >= 2 and sidx - 2 < len(shadow): shadow[sidx - 2]()
            outstanding = min(8, sidx + NB) - sidx - 1
            a(f's_waitcnt lgkmcnt({2*outstanding})')
            r = KF + 8 * (sidx % NB)
            a(f"v_mfma_f32_32x32x16_bf16 {V(KD,16)}, {V(r,4)}, {V(r+4,4)}, {'0' if (sidx == 0 and not cinit) else V(KD,16)}")
            if sidx + NB < 8: kread(sidx + NB)

    def fetch_tile(tag):
        a(f's_waitcnt vmcnt(0)\nv_cmp_ne_u32 vcc, {S(sTAGX)}, {V(vPFD)}')
        if o['force_slow']: a(f's_branch L_gather{tag}')
        a(f's_cbranch_vccz L_fast{tag}')
        spin_init()
        a(f'''
        L_flagspin{tag}:
        global_load_dword {V(vPFD)}, {V(vFL)}, {S(sWS,2)} sc1
        global_load_dword {V(T[0])}, {V(vXC)}, {S(sWS,2)} sc1
        s_waitcnt vmcnt(0)
        v_cmp_ne_u32 vcc, {S(sTAGX)}, {V(vPFD)}
        s_cbranch_vccz L_fast{tag}
        v_xor_b32 {V(T[0])}, {S(sTAGX)}, {V(T[0])}
        v_add_u32 {V(T[0])}, -1, {V(T[0])}
        v_cmp_gt_u32 vcc, 15, {V(T[0])}
        s_cbranch_vccnz L_gather{tag}
        ''')
        spin_next(f'L_flagspin{tag}')
        a(f'L_gather{tag}:')
        for r in range(4):
            a(f'global_load_dwordx2 {V(vD+2*r,2)}, {V(vXG)}, {S(sX,2)} offset:{r*1024}')
        a(f'''
        s_branch L_stats{tag}
        L_fast{tag}:
        global_load_dwordx4 {V(vD,4)}, {V(vIN)}, {S(sWS,2)} sc1
        global_load_dwordx4 {V(vD+4,4)}, {V(vIN)}, {S(sWS,2)} offset:64 sc1
        L_stats{tag}:
        global_load_dwordx4 {V(vG,4)}, {V(vST0)}, {S(sWS,2)} sc1
        global_load_dwordx4 {V(vG+4,4)}, {V(vST1)}, {S(sWS,2)} sc1
        ''')

    a(f's_cmp_eq_u32 {S(sROLE)}, 1\ns_cbranch_scc1 L_h_k')
    for i in range(NB): kread(i)
    kmfma(False, (conv_setup,))
    a(f'v_mov_b32 {V(T[1])}, 1')
    for i in range(3): a(f'ds_write_b128 {V(vPD)}, {V(KD+4*i,4)} offset:{1024*i}')
    a(f's_mov_b64 exec, 1\nds_write_b32 {V(tga)}, {V(T[1])} offset:{PF - TG}\ns_mov_b64 exec, -1')
    stamp(4)
    fetch_tile('c')
    a('s_branch L_b3')
    a('L_h_k:')
    if o['hfetch']: fetch_tile('h')
    spin_init()
    a(f'''
    L_pspin:
    ds_read_b32 {V(T[1])}, {V(vFFW)} offset:{PF - FF}
    ''')
    for i in range(3): a(f'ds_read_b128 {V(KD+4*i,4)}, {V(vPD)} offset:{1024*i}')
    for i in range(NB - 1): kread(i)
    a(f'''
    s_waitcnt lgkmcnt({2*(NB-1) + 3})
    v_readfirstlane_b32 {S(sT0)}, {V(T[1])}
    s_cmp_lg_u32 {S(sT0)}, 0
    s_cbranch_scc1 L_pok
    s_waitcnt lgkmcnt(0)
    ''')
    spin_next('L_pspin')
    a('L_pok:')
    kread(NB - 1)
    kmfma(True, (table_setup, wsrc_setup))
    for i in range(6): a(f'v_cvt_pk_bf16_f32 {V(T[i])}, {V(KD+2*i)}, {V(KD+2*i+1)}')
    a(f'''
    ds_write_b64 {V(vTW1)}, {V(T[0],2)}
    ds_write_b32 {V(vTW2)}, {V(T[2])}
    ds_write_b32 {V(vTW3)}, {V(T[3])}
    ds_write_b16 {V(vTW4)}, {V(T[4])}
    ds_write_b16_d16_hi {V(vTW4)}, {V(T[4])} offset:64
    ds_write_b16 {V(vTW4)}, {V(T[5])} offset:128
    ds_write_b16_d16_hi {V(vTW4)}, {V(T[5])} offset:192
    ''')
    stamp(4)
    if not o['hfetch']: fetch_tile('h')
    if o['hprio']: a(f"s_setprio {o['hprio']}")
    a('L_b3:\ns_waitcnt lgkmcnt(0)')
    stamp(5)
    a('s_barrier')

    WR = vP + 80
    def w_dma():
        for t in range(4):
            a(f'global_load_dwordx4 {V(WR+4*t,4)}, {V((vWS0, vWS1)[t&1])}, {S((sWG, sWU)[t>>1],2)}')

    def wd_dma():
        a(f"s_mov_b64 exec, 0xff\nglobal_load_dword {V(vPFW)}, {V(vP1F)}, {S(sWS,2)}{' nt' if o['p1nt'] else ''}\ns_mov_b64 exec, -1")
        for i in range(8):
            a(f'global_load_dword {V(vWD+i)}, {V(vWDA)}, {S(sWD,2)} offset:{i*1024 - 4096}')

    XP = vG
    def r4_build(tag, mid=None):
        Wq = vP; Q = vP + 16
        for c in range(4):
            a(f'ds_read2_b32 {V(Wq+4*c,2)}, {V(vGA+2*c)} offset0:0 offset1:1')
            a(f'ds_read2_b32 {V(Wq+4*c+2,2)}, {V(vGA+2*c+1)} offset0:0 offset1:1')
        if tag == 'c': a(f'''
        s_cmp_lg_u32 {S(sW)}, 3
        s_cbranch_scc1 L_nopad{tag}
        v_bfe_u32 {V(T[0])}, {V(vL)}, 3, 2
        v_and_b32 {V(T[1])}, 7, {V(vL)}
        v_mul_u32_u24 {V(T[0])}, {R4S}, {V(T[0])}
        v_lshl_add_u32 {V(T[0])}, {V(T[1])}, 4, {V(T[0])}
        ''')
        if tag == 'c':
            for i in range(4): a(f'v_mov_b32 {V(T[4+i])}, 0')
        if tag == 'c': a(f'''
        s_mov_b32 exec_hi, 0
        ds_write_b128 {V(T[0])}, {V(T[4],4)} offset:{R4}
        s_mov_b64 exec, -1
        s_waitcnt lgkmcnt(1)
        L_nopad{tag}:
        ''')
        if tag == 'h' and o['hprio']: a(f"s_setprio {o['hprio2']}")
        if mid: mid()
        for c in range(4):
            W0, W1, W2, W3 = [Wq + 4 * c + i for i in range(4)]
            q = Q + 8 * c
            if not mid: a('s_waitcnt lgkmcnt(6)')
            a(f'''
            v_perm_b32 {V(q+0)}, {V(W2)}, {V(W1)}, {V(vSEL+2)}
            v_perm_b32 {V(q+1)}, {V(W1)}, {V(W0)}, {V(vSEL+0)}
            v_perm_b32 {V(q+2)}, {V(W3)}, {V(W2)}, {V(vSEL+3)}
            v_perm_b32 {V(q+3)}, {V(W1)}, {V(W0)}, {V(vSEL+1)}
            v_mov_b32 {V(q+5)}, {V(q+0)}
            ds_write_b128 {V(vR4W)}, {V(q,4)} offset:{c*R4S}
            v_perm_b32 {V(q+4)}, {V(W3)}, {V(W2)}, {V(vSEL+4)}
            v_perm_b32 {V(q+6)}, {V(W3)}, {V(W2)}, {V(vSEL+5)}
            v_mov_b32 {V(q+7)}, {V(q+2)}
            ds_write_b128 {V(vR4W)}, {V(q+4,4)} offset:{c*R4S + 16}
            ''')

    def normalise(tag):
        if tag == 'h':
            a(f's_cmp_eq_u32 {S(sP1)}, 0\ns_cbranch_scc1 L_nw0')
            w_dma()
            ffn_setup()
            a("s_waitcnt vmcnt(4)\ns_branch L_nw1\nL_nw0:")
            ffn_setup()
            a("s_waitcnt vmcnt(0)\nL_nw1:")
        else:
            a('s_waitcnt vmcnt(0)')
        spin_init()
        a(f'''
        L_statspin{tag}:
        v_xor_b32 {V(T[0])}, {S(sTAG)}, {V(vG+3)}
        v_xor_b32 {V(T[1])}, {S(sTAG)}, {V(vG+7)}
        v_or_b32 {V(T[0])}, {V(T[0])}, {V(T[1])}
        v_cmp_lt_u32 vcc, 15, {V(T[0])}
        s_cbranch_vccz L_statok{tag}
        global_load_dwordx4 {V(vG,4)}, {V(vST0)}, {S(sWS,2)} sc1
        global_load_dwordx4 {V(vG+4,4)}, {V(vST1)}, {S(sWS,2)} sc1
        s_waitcnt vmcnt(0)
        ''')
        spin_next(f'L_statspin{tag}')
        a(f'L_statok{tag}:')
        stamp(7)
        a(f'''
        v_cmp_ne_u32 vcc, {S(sTAGX)}, {V(vG+3)}
        s_and_b64 vcc, vcc, {S(sCM,2)}
        s_cbranch_vccz L_local{tag}
        v_mov_b32 {V(T[0])}, {FF}
        v_mov_b32 {V(T[1])}, 1
        ds_write_b32 {V(T[0])}, {V(T[1])}
        s_waitcnt lgkmcnt(0)
        L_local{tag}:
        ''')
        stq = [vG, vG + 1, vG + 4, vG + 5]
        rho = [T[1], T[3], T[5], T[7]]; mu = [T[0], T[2], T[4], T[6]]
        key = T[8]
        for r in range(4): a(f'v_and_b32 {V(rho[r])}, {S(sHI)}, {V(stq[r])}')
        a(f'v_max_u32 {V(key)}, {V(vG+2)}, {V(vG+6)}')
        for r in range(4):
            a(f'v_rcp_f32 {V(rho[r])}, {V(rho[r])}')
            a(f'v_lshlrev_b32 {V(mu[r])}, 16, {V(stq[r])}')
        kred = ['row_shr:1 row_mask:0xf', 'row_shr:2 row_mask:0xf', 'row_shr:4 row_mask:0xf', 'row_shr:8 row_mask:0xf',
                'row_bcast:15 row_mask:0xa', 'row_bcast:31 row_mask:0xc']
        def kr(i): a(f'v_max_u32_dpp {V(key)}, {V(key)}, {V(key)} {kred[i]} bank_mask:0xf')
        for r in range(4):
            a(f'''
            v_mul_f32_e64 {V(mu[r])}, -{V(mu[r])}, {V(rho[r])}
            v_lshlrev_b32 {V(vXF+4*r)}, 16, {V(vD+2*r)}
            v_and_b32 {V(vXF+4*r+1)}, {S(sHI)}, {V(vD+2*r)}
            v_lshlrev_b32 {V(vXF+4*r+2)}, 16, {V(vD+2*r+1)}
            v_and_b32 {V(vXF+4*r+3)}, {S(sHI)}, {V(vD+2*r+1)}
            ''')
            kr(r)
            for c in range(4): a(f'v_fma_f32 {V(vXN+4*r+c)}, {V(vXF+4*r+c)}, {V(rho[r])}, {V(mu[r])}')
        kr(4)
        ssum(sT0, (sW, 2), AM)
        for c in range(4):
            a(f'''
            v_cvt_pk_bf16_f32 {V(XP+2*c)}, {V(vXN+c)}, {V(vXN+4+c)}
            v_cvt_pk_bf16_f32 {V(XP+2*c+1)}, {V(vXN+8+c)}, {V(vXN+12+c)}
            ds_write_b64 {V(vUW)}, {V(XP+2*c,2)} offset:{c*US}
            ''')
            if c == 0: kr(5)
            if c == 1: a(f'v_mov_b32 {V(T[9])}, {S(sT0)}')
        lane63()
        a(f'ds_write_b32 {V(T[9])}, {V(key)}')
        alllanes()

    a(f's_cmp_eq_u32 {S(sROLE)}, 1\ns_cbranch_scc1 L_h_r4')
    r4_build('c'); stamp(6); normalise('c')
    a('s_branch L_b4\nL_h_r4:')
    if o['hnormfirst']:
        def mid():
            normalise('h')
            a('s_waitcnt lgkmcnt(5)'); stamp(6)
        r4_build('h', mid)
    else:
        r4_build('h'); stamp(6); normalise('h')
    a('s_setprio 0\nL_b4:')
    a(f'v_mov_b32 {V(T[9])}, {AM}\ns_waitcnt lgkmcnt(0)')
    stamp(8)
    a('s_barrier')

    def read_idx():
        a(f'''
        ds_read_b128 {V(T[0],4)}, {V(T[9])}
        ds_read_b128 {V(T[4],4)}, {V(T[9])} offset:16
        s_waitcnt lgkmcnt(0)
        v_max3_u32 {V(T[0])}, {V(T[0])}, {V(T[1])}, {V(T[2])}
        v_max3_u32 {V(T[3])}, {V(T[3])}, {V(T[4])}, {V(T[5])}
        v_max3_u32 {V(T[0])}, {V(T[0])}, {V(T[6])}, {V(T[7])}
        v_max_u32 {V(T[0])}, {V(T[0])}, {V(T[3])}
        v_readfirstlane_b32 {S(sKEY)}, {V(T[0])}
        s_andn2_b32 {S(sIDX)}, 2047, {S(sKEY)}
        s_lshr_b32 {S(sT0)}, {S(sIDX)}, 8
        s_lshr_b32 {S(sT1)}, {S(sIDX)}, 9
        s_xor_b32 {S(sT0)}, {S(sT0)}, {S(sT1)}
        s_xor_b32 {S(sT0)}, {S(sT0)}, {S(sH)}
        s_andn2_b32 {S(sOWN)}, 1, {S(sT0)}
        ''')

    def stat_addr(dst):
        a(f's_lshr_b32 {S(sT0)}, {S(sIDX)}, 2\ns_bfe_u32 {S(sT1)}, {S(sIDX)}, 0x10001\ns_and_b32 {S(sT2)}, {S(sIDX)}, 1')
        ssum(sT0, (sT0, 4), (sT1, 13), (sT2, 2), W_ST)
        a(f'v_mov_b32 {V(dst)}, {S(sT0)}')

    a(f's_cmp_eq_u32 {S(sROLE)}, 1\ns_cbranch_scc1 L_helper')

    ACC = vP; FR = vP + 16; NFR = 28
    stamp(10)
    a(f's_setprio 1\ns_cmp_eq_u32 {S(sH)}, 0\ns_cbranch_scc0 L_conv1')

    def conv(h):
        tl = tiles(h)
        ops = []
        for c0 in range(8):
            lst = [(i, c1, q - c1) for i, q in enumerate(tl) for c1 in range(q + 1)]
            have = set(); seq = []
            while lst:
                def cost(x):
                    base = (2 * (('A', x[1]) not in have) + (('B', x[2]) not in have), bool(seq) and seq[-1][0] == x[0], max(x[1], x[2]))
                    return ((x[0],) + base) if c0 == 7 else base
                x = min(lst, key=cost); lst.remove(x); seq.append(x); have.add(('A', x[1])); have.add(('B', x[2]))
            for i, c1, qp in seq: ops.append((i, ('A', c0, c1), ('B', c0, qp)))
        order = []; last = {}; lastacc = {}
        for n, (i, ak, bk) in enumerate(ops):
            lastacc[i] = n
            for k in (bk, ak):
                if k not in last: order.append(k)
                last[k] = n
        L = []
        for k in order: L += [(k, 0), (k, 1)] if k[0] == 'A' else [(k, 0)]
        endidx = {}
        for j, (k, p) in enumerate(L): endidx[k] = j + 1
        need = []; m = 0
        for (i, ak, bk) in ops:
            m = max(m, endidx[ak], endidx[bk]); need.append(m)
        free = list(range(NFR)); slot = {}
        st = dict(issued=0, done=0)
        seqpos = []
        nds = [0]
        donepos = [0]
        MAXOUT = o['maxout']; G = o['group']

        def can_issue():
            if st['issued'] >= len(L) or nds[0] - donepos[0] >= MAXOUT: return False
            k, p = L[st['issued']]
            return p == 1 or bool(free)

        def issue():
            k, p = L[st['issued']]
            if p == 0: slot[k] = free.pop(0)
            r = FR + 4 * slot[k]
            if k[0] == 'A':
                a(f'ds_read_b64 {V(r+2*p,2)}, {V(vCA2 if p else vCA)} offset:{CAS*(8*k[2] + k[1])}')
            else:
                a(f'ds_read_b128 {V(r,4)}, {V(vCB)} offset:{2*(224 + 256*k[2] - 32*k[1])}')
            st['issued'] += 1; nds[0] += 1; seqpos.append(nds[0])
        started = set(); written = set()
        while can_issue(): issue()
        for n, (i, ak, bk) in enumerate(ops):
            if need[n] > st['done']:
                while st['issued'] < need[n]:
                    assert nds[0] - donepos[0] < 15
                    issue()
                tgt = need[n]
                for m2 in range(n, min(n + G, len(ops))):
                    if need[m2] <= st['issued'] - o['minfly'] or need[m2] <= len(L) == st['issued']: tgt = max(tgt, need[m2])
                a(f's_waitcnt lgkmcnt({nds[0] - seqpos[tgt-1]})'); st['done'] = tgt; donepos[0] = seqpos[tgt - 1]
            acc = ACC + 4 * i
            cin = V(acc, 4) if i in started else '0'
            started.add(i)
            a(f'v_mfma_f32_16x16x32_bf16 {V(acc,4)}, {V(FR+4*slot[ak],4)}, {V(FR+4*slot[bk],4)}, {cin}')
            for k in (ak, bk):
                if last[k] == n: free.append(slot[k])
            budget = 2
            if n + 1 < len(ops) and need[n + 1] > st['done']: budget = 1
            for i2 in range(4):
                if i2 not in written and lastacc[i2] + 4 <= n and budget > 0 and nds[0] - donepos[0] < 15:
                    a(f'ds_write_b128 {V(vY)}, {V(ACC+4*i2,4)} offset:{i2*YTS}')
                    written.add(i2); nds[0] += 1; budget -= 1
            while budget > 0 and can_issue():
                issue(); budget -= 1
        for i2 in range(4):
            if i2 not in written: a(f'ds_write_b128 {V(vY)}, {V(ACC+4*i2,4)} offset:{i2*YTS}')
    conv(0)
    a('s_branch L_convdone\nL_conv1:')
    conv(1)
    a('L_convdone:\ns_waitcnt lgkmcnt(0)')
    stamp(9)
    a(f's_barrier\ns_cmp_lg_u32 {S(sW)}, 0\ns_cbranch_scc1 L_exit')
    a(f'''
    s_cmp_lg_u32 s2, 0
    s_cbranch_scc1 L_noep
    v_mov_b32 {V(T[10])}, 0
    v_mov_b32 {V(T[11])}, {S(sTAG)}
    s_mov_b64 exec, 1
    global_store_dword {V(T[10])}, {V(T[11])}, {S(sWS,2)} sc1
    s_mov_b64 exec, -1
    L_noep:
    ''')
    read_idx()
    a(f's_cmp_eq_u32 {S(sOWN)}, 0\ns_cbranch_scc1 L_exit\ns_setprio 3')
    F = vP
    par, xo, fpa = T[12], T[13], T[14]
    y0, y1, n0, n1, d0, d1, sg, xv, sv, x0, x1 = [vXF + i for i in range(11)]
    a(f'v_and_b32 {V(par)}, 1, {V(vL)}')
    ssum(sT0, (sIDX, 10), (sCH0, 1))
    a(f'v_lshl_add_u32 {V(xo)}, {V(par)}, 2, {S(sT0)}')
    stat_addr(T[10])
    a(f'global_load_dword {V(xv)}, {V(xo)}, {S(sX,2)}')
    a(f'global_load_dword {V(sv)}, {V(T[10])}, {S(sWS,2)} sc1')
    a(f's_lshr_b32 {S(sT0)}, {S(sCH0)}, 2')
    smul(sT0, sT0, 6144, W_FP + 3072)
    a(f'v_lshl_add_u32 {V(fpa)}, {V(vL)}, 4, {S(sT0)}')
    a(f'''
    s_lshr_b32 {S(sT1)}, {S(sIDX)}, 9
    s_mul_i32 {S(sT1)}, {S(sT1)}, {YTS}
    s_bfe_u32 {S(sT0)}, {S(sIDX)}, 0x20002
    s_mul_i32 {S(sT0)}, {S(sT0)}, {YGS}
    s_add_u32 {S(sT1)}, {S(sT1)}, {S(sT0)}
    s_bfe_u32 {S(sT0)}, {S(sIDX)}, 0x40004
    s_and_b32 {S(sT2)}, {S(sIDX)}, 3
    ''')
    ssum(sT1, (sT1, 0), (sT0, 4), (sT2, 2), YX)
    a(f'''
    v_mul_u32_u24 {V(T[0])}, {2*YCS}, {V(par)}
    v_add_u32 {V(T[0])}, {S(sT1)}, {V(T[0])}
    ds_read_b32 {V(y0)}, {V(T[0])}
    ds_read_b32 {V(y1)}, {V(T[0])} offset:{YCS}
    s_and_b32 {S(sT0)}, {S(sKEY)}, {S(sHI)}
    s_xor_b32 {S(sT1)}, {S(sT0)}, 0x80000000
    s_xor_b32 {S(sT2)}, {S(sT0)}, {S(sHI)}
    s_bitcmp1_b32 {S(sT0)}, 31
    s_cselect_b32 {S(sT0)}, {S(sT1)}, {S(sT2)}
    v_mov_b32 {V(T[2])}, 0xbfb8aa3b
    v_mul_f32 {V(sg)}, {S(sT0)}, {V(T[2])}
    v_exp_f32 {V(sg)}, {V(sg)}
    v_cmp_eq_u32 vcc, 0, {V(par)}
    v_add_f32 {V(sg)}, 1.0, {V(sg)}
    v_rcp_f32 {V(sg)}, {V(sg)}
    v_mov_b32 {V(F+20)}, 0
    v_cvt_pk_bf16_f32 {V(sg)}, {V(sg)}, {V(sg)}
    v_mov_b32 {V(F+21)}, 0
    v_and_b32 {V(sg)}, {S(sHI)}, {V(sg)}
    v_mov_b32 {V(F+22)}, {S(sTAG)}
    s_waitcnt lgkmcnt(0)
    v_mov_b32 {V(d0)}, {S(sDS)}
    v_mov_b32 {V(d1)}, {S(sDS+1)}
    v_cndmask_b32 {V(d0)}, {V(d1)}, {V(d0)}, vcc
    v_and_b32 {V(d1)}, {S(sHI)}, {V(d0)}
    v_lshlrev_b32 {V(d0)}, 16, {V(d0)}
    ''')

    def rnd2(r0, r1, t):
        a(f'v_cvt_pk_bf16_f32 {V(t)}, {V(r0)}, {V(r1)}\nv_lshlrev_b32 {V(r0)}, 16, {V(t)}\nv_and_b32 {V(r1)}, {S(sHI)}, {V(t)}')
    rnd2(y0, y1, T[0])
    a(f'''
    s_waitcnt vmcnt(0)
    v_and_b32 {V(T[1])}, {S(sHI)}, {V(sv)}
    v_lshlrev_b32 {V(T[2])}, 16, {V(sv)}
    v_rcp_f32 {V(T[1])}, {V(T[1])}
    v_lshlrev_b32 {V(x0)}, 16, {V(xv)}
    v_and_b32 {V(x1)}, {S(sHI)}, {V(xv)}
    v_sub_f32 {V(n0)}, {V(x0)}, {V(T[2])}
    v_sub_f32 {V(n1)}, {V(x1)}, {V(T[2])}
    ''')
    rnd2(n0, n1, T[0])
    a(f'v_mul_f32 {V(n0)}, {V(n0)}, {V(T[1])}\nv_mul_f32 {V(n1)}, {V(n1)}, {V(T[1])}')
    rnd2(n0, n1, T[0])
    a(f'v_mul_f32 {V(d0)}, {V(d0)}, {V(n0)}\nv_mul_f32 {V(d1)}, {V(d1)}, {V(n1)}')
    rnd2(d0, d1, T[0])
    a(f'v_add_f32 {V(y0)}, {V(y0)}, {V(d0)}\nv_add_f32 {V(y1)}, {V(y1)}, {V(d1)}')
    rnd2(y0, y1, T[0])
    if o['b6']: a('s_barrier')
    spin_init()
    a('L_ffnspin:')
    for i in range(5):
        a(f'global_load_dwordx4 {V(F+4*i,4)}, {V(fpa)}, {S(sWS,2)} offset:{i*1024 - 3072} sc1')
    a(f'''
    s_mov_b64 exec, 0xffffff
    global_load_dwordx4 {V(F+20,4)}, {V(fpa)}, {S(sWS,2)} offset:2048 sc1
    s_mov_b64 exec, -1
    s_waitcnt vmcnt(0)
    ''')
    for i in range(6): a(f'v_xor_b32 {V(T[i])}, {S(sTAG)}, {V(F+4*i+2)}')
    a(f'''
    v_or3_b32 {V(T[0])}, {V(T[0])}, {V(T[1])}, {V(T[2])}
    v_or3_b32 {V(T[3])}, {V(T[3])}, {V(T[4])}, {V(T[5])}
    v_or_b32 {V(T[0])}, {V(T[0])}, {V(T[3])}
    v_cmp_ne_u32 vcc, 0, {V(T[0])}
    s_cbranch_vccz L_ffnok
    ''')
    spin_next('L_ffnspin')
    a('L_ffnok:')
    stamp(11)
    p0, p1 = F, F + 1
    for e in range(2):
        a(f'v_add_f32 {V(F+e)}, {V(F+e)}, {V(F+4+e)}')
        a(f'v_add_f32 {V(F+8+e)}, {V(F+8+e)}, {V(F+12+e)}')
        a(f'v_add_f32 {V(F+16+e)}, {V(F+16+e)}, {V(F+20+e)}')
    for e in range(2): a(f'v_add_f32 {V(F+e)}, {V(F+e)}, {V(F+8+e)}')
    for e in range(2): a(f'v_add_f32 {V(F+e)}, {V(F+e)}, {V(F+16+e)}')
    for m in (2, 4, 8):
        for e in range(2): a(f'v_add_f32_dpp {V(F+e)}, {V(F+e)}, {V(F+e)} row_ror:{m} row_mask:0xf bank_mask:0xf')
    for pl in ('v_permlane16_swap_b32', 'v_permlane32_swap_b32'):
        for e in range(2): a(f'v_mov_b32 {V(F+4+e)}, {V(F+e)}')
        for e in range(2): a(f'{pl} {V(F+e)}, {V(F+4+e)}')
        for e in range(2): a(f'v_add_f32 {V(F+e)}, {V(F+e)}, {V(F+4+e)}')
    rnd2(p0, p1, T[0])
    for e in range(2): a(f'v_mul_f32 {V(F+e)}, {V(F+e)}, {V(sg)}')
    rnd2(p0, p1, T[0])
    a(f'v_add_f32 {V(p0)}, {V(p0)}, {V(n0)}\nv_add_f32 {V(p1)}, {V(p1)}, {V(n1)}')
    rnd2(p0, p1, T[0])
    for e in range(2): a(f'v_mul_f32 {V(F+4+e)}, 0xbfb8aa3b, {V(F+e)}')
    for e in range(2): a(f'v_exp_f32 {V(F+4+e)}, {V(F+4+e)}')
    for e in range(2): a(f'v_add_f32 {V(F+4+e)}, 1.0, {V(F+4+e)}')
    for e in range(2): a(f'v_rcp_f32 {V(F+4+e)}, {V(F+4+e)}')
    for e in range(2): a(f'v_mul_f32 {V(F+e)}, {V(F+e)}, {V(F+4+e)}')
    rnd2(p0, p1, T[0])
    a(f'v_mul_f32 {V(p0)}, {V(p0)}, {V(y0)}\nv_mul_f32 {V(p1)}, {V(p1)}, {V(y1)}')
    rnd2(p0, p1, T[0])
    a(f'''
    v_add_f32 {V(p0)}, {V(p0)}, {V(x0)}
    v_add_f32 {V(p1)}, {V(p1)}, {V(x1)}
    v_cvt_pk_bf16_f32 {V(T[0])}, {V(p0)}, {V(p1)}
    s_mov_b64 exec, 3
    global_store_dword {V(xo)}, {V(T[0])}, {S(sOUT,2)}
    s_mov_b64 exec, -1
    ''')
    if o['stamp']:
        a('s_waitcnt vmcnt(0)'); stamp(12); a('s_branch L_exit')
    else:
        a('s_endpgm')

    a('L_helper:')
    a(f'ds_read_b32 {V(T[8])}, {V(T[9])} offset:{FF - AM}')
    read_idx()
    XS = vP
    a(f'v_readfirstlane_b32 {S(sT3)}, {V(T[8])}\ns_mov_b32 {S(sPB)}, {S(sT3)}')
    a(f's_cmp_eq_u32 {S(sP1)}, 0\ns_cbranch_scc1 L_h_pre')
    a(f's_lshl_b32 {S(sT0)}, {S(sIDX)}, 10\nv_add_u32 {V(T[0])}, {S(sT0)}, {V(vXS)}')
    stat_addr(T[1])
    a(f'''
    global_load_dwordx2 {V(XS,2)}, {V(T[0])}, {S(sX,2)}
    global_load_dwordx2 {V(XS+2,2)}, {V(T[0])}, {S(sX,2)} offset:32
    global_load_dword {V(XS+4)}, {V(T[1])}, {S(sWS,2)} sc1
    ''')
    wd_dma()
    a('L_h_pre:')
    Dv = [vP + 68 + c for c in range(4)]
    a(f'''
    s_lshl_b32 {S(sT0)}, {S(sDS)}, 16
    s_and_b32 {S(sT1)}, {S(sDS)}, {S(sHI)}
    s_lshl_b32 {S(sT2)}, {S(sDS+1)}, 16
    s_and_b32 {S(sT3)}, {S(sDS+1)}, {S(sHI)}
    ''')
    for c in range(4): a(f'v_mov_b32 {V(Dv[c])}, {S(sT0+c)}')
    WF = vP + 8; DD = vP + 24; XA = vP + 40; WDF = vP + 48
    GT = [vP + 64 + i for i in range(4)]
    def ge_row(r):
        for c in range(4):
            src = XP + 2 * c + (r >> 1)
            if r & 1: a(f'v_and_b32 {V(vXN+4*r+c)}, {S(sHI)}, {V(src)}')
            else:     a(f'v_lshlrev_b32 {V(vXN+4*r+c)}, 16, {V(src)}')
        for c in range(4): a(f'v_mul_f32 {V(GT[c])}, 0xbfb8aa3b, {V(vXN+4*r+c)}')
        for c in range(4): a(f'v_exp_f32 {V(GT[c])}, {V(GT[c])}')
        for c in range(4):
            a(f'v_mul_f32 {V(vE+4*r+c)}, {V(vXN+4*r+c)}, {V(Dv[c])}')
            a(f'v_add_f32 {V(GT[c])}, 1.0, {V(GT[c])}')
        for c in range(4): a(f'v_rcp_f32 {V(GT[c])}, {V(GT[c])}')
        for c in range(4): a(f'v_mul_f32 {V(vXN+4*r+c)}, {V(vXN+4*r+c)}, {V(GT[c])}')
        for c in range(4): a(f'v_fma_f32 {V(vE+4*r+c)}, {V(vE+4*r+c)}, {V(vXN+4*r+c)}, {V(vXF+4*r+c)}')
    def masks():
        for r in range(4):
            a(f'v_add_u32 {V(T[0])}, {r}, {V(vROW)}\nv_cmp_ne_u32 {S(sM+2*r,2)}, {S(sIDX)}, {V(T[0])}')
    masks()
    a(f's_cmp_eq_u32 {S(sP1)}, 0\ns_cbranch_scc1 L_h_ge')
    a(f"s_setprio {o['ffnprio']}")
    a('s_waitcnt vmcnt(12)')
    for t in range(4): a(f'ds_write_b128 {V(vWDR)}, {V(WR+4*t,4)} offset:{1024*t}')
    for t in range(4):
        a(f'ds_read_b64_tr_b16 {V(WF+4*t,2)}, {V(vWT)} offset:{1024*t}')
        a(f'ds_read_b64_tr_b16 {V(WF+4*t+2,2)}, {V(vWT)} offset:{1024*t + 512}')
    gq = T[4]
    a('s_waitcnt vmcnt(9)')
    stamp(0)
    X = [T[2+i] for i in range(8)]
    a(f'''
    v_and_b32 {V(T[12])}, {S(sHI)}, {V(XS+4)}
    v_lshlrev_b32 {V(T[14])}, 16, {V(XS+4)}
    v_rcp_f32 {V(T[12])}, {V(T[12])}
    ''')
    for i in range(4):
        a(f'v_lshlrev_b32 {V(X[2*i])}, 16, {V(XS+i)}\nv_and_b32 {V(X[2*i+1])}, {S(sHI)}, {V(XS+i)}')
        for e in range(2): a(f'v_sub_f32 {V(X[2*i+e])}, {V(X[2*i+e])}, {V(T[14])}')
    for i in range(4): a(f'v_cvt_pk_bf16_f32 {V(XA+i)}, {V(X[2*i])}, {V(X[2*i+1])}')
    for i in range(4):
        a(f'v_lshlrev_b32 {V(X[2*i])}, 16, {V(XA+i)}\nv_and_b32 {V(X[2*i+1])}, {S(sHI)}, {V(XA+i)}')
        for e in range(2): a(f'v_mul_f32 {V(X[2*i+e])}, {V(X[2*i+e])}, {V(T[12])}')
    for i in range(4): a(f'v_cvt_pk_bf16_f32 {V(XA+i)}, {V(X[2*i])}, {V(X[2*i+1])}')
    a('s_waitcnt lgkmcnt(0)')
    for t in range(4):
        a(f'v_mfma_f32_16x16x32_bf16 {V(DD+4*t,4)}, {V(XA,4)}, {V(WF+4*t,4)}, 0')
    a(f'''
    v_mov_b32 {V(gq+2)}, {S(sTAG)}
    v_mov_b32 {V(gq+3)}, 0
    s_cmp_eq_u32 {S(sPB)}, 0
    v_add_f32 {V(gq)}, {V(DD)}, {V(DD+5)}
    v_add_f32 {V(gq+1)}, {V(DD+8)}, {V(DD+13)}
    s_mov_b64 exec, 0xffff
    s_cbranch_scc0 L_p1far
    global_store_dwordx4 {V(vP1W)}, {V(gq,4)}, {S(sWS,2)}
    s_branch L_p1done
    L_p1far:
    global_store_dwordx4 {V(vP1W)}, {V(gq,4)}, {S(sWS,2)} sc1
    L_p1done:
    s_mov_b64 exec, -1
    s_cmp_eq_u32 {S(sPROD)}, 0
    s_cbranch_scc1 L_h_ge
    ''')
    stamp(9)
    a(f'global_load_dwordx4 {V(T[0],4)}, {V(vP1R)}, {S(sWS,2)} sc1')
    a('s_waitcnt vmcnt(2)')
    for i in range(8):
        a(f'v_lshlrev_b32 {V(WDF+2*i)}, 16, {V(vWD+i)}\nv_and_b32 {V(WDF+2*i+1)}, {S(sHI)}, {V(vWD+i)}')
    spin_init()
    a(f'''
    L_hspin:
    s_waitcnt vmcnt(0)
    v_cmp_ne_u32 vcc, {S(sTAG)}, {V(T[2])}
    s_cbranch_vccz L_hok
    global_load_dwordx4 {V(T[0],4)}, {V(vP1R)}, {S(sWS,2)} sc1
    ''')
    spin_next('L_hspin')
    a('s_waitcnt vmcnt(0)\nL_hok:')
    for e in range(2): a(f'v_add_f32_dpp {V(T[e])}, {V(T[e])}, {V(T[e])} row_ror:8 row_mask:0xf bank_mask:0xf')
    for pl in ('v_permlane16_swap_b32', 'v_permlane32_swap_b32'):
        for e in range(2): a(f'v_mov_b32 {V(T[2+e])}, {V(T[e])}')
        for e in range(2): a(f'{pl} {V(T[e])}, {V(T[2+e])}')
        for e in range(2): a(f'v_add_f32 {V(T[e])}, {V(T[e])}, {V(T[2+e])}')
    a(f'''
    v_cvt_pk_bf16_f32 {V(T[2])}, {V(T[0])}, {V(T[1])}
    v_lshlrev_b32 {V(T[0])}, 16, {V(T[2])}
    v_mul_f32 {V(T[1])}, 0xbfb8aa3b, {V(T[0])}
    v_exp_f32 {V(T[1])}, {V(T[1])}
    v_and_b32 {V(T[2])}, {S(sHI)}, {V(T[2])}
    v_add_f32 {V(T[1])}, 1.0, {V(T[1])}
    v_rcp_f32 {V(T[1])}, {V(T[1])}
    s_nop 0
    v_mul_f32 {V(T[1])}, {V(T[0])}, {V(T[1])}
    v_cvt_pk_bf16_f32 {V(T[1])}, {V(T[1])}, {V(T[1])}
    v_and_b32 {V(T[1])}, {S(sHI)}, {V(T[1])}
    v_mul_f32 {V(T[1])}, {V(T[1])}, {V(T[2])}
    v_cvt_pk_bf16_f32 {V(T[1])}, {V(T[1])}, {V(T[1])}
    v_and_b32 {V(T[1])}, {S(sHI)}, {V(T[1])}
    ''')
    for i in range(8):
        for e in range(2):
            a(f"{'v_mul_f32_dpp' if i == 0 else 'v_fmac_f32_dpp'} {V(gq+e)}, {V(T[1])}, {V(WDF+2*i+e)} row_newbcast:{i} row_mask:0xf bank_mask:0xf")
    a(f'global_store_dwordx4 {V(vFPA)}, {V(gq,4)}, {S(sWS,2)} sc1')
    stamp(10)
    a('L_h_ge:\ns_setprio 0')
    for r in range(o['prerows']): ge_row(r)
    a('L_h_b5:\ns_barrier')
    YR = vP
    def epilogue(ge):
        for r in range(4):
            if ge and r >= o['prerows']: ge_row(r)
            for c in range(4):
                a(f'v_fma_f32 {V(vE+4*r+c)}, {V(YR+4*c+r)}, {V(vXN+4*r+c)}, {V(vE+4*r+c)}')
            a(f'''
            v_cvt_pk_bf16_f32 {V(vD+2*r)}, {V(vE+4*r)}, {V(vE+4*r+1)}
            v_cvt_pk_bf16_f32 {V(vD+2*r+1)}, {V(vE+4*r+2)}, {V(vE+4*r+3)}
            s_mov_b64 exec, {S(sM+2*r,2)}
            global_store_dwordx2 {V(vXG)}, {V(vD+2*r,2)}, {S(sOUT,2)} offset:{r*1024}
            s_mov_b64 exec, -1
            ''')
    for c in range(4): a(f'ds_read_b128 {V(YR+4*c,4)}, {V(vY)} offset:{c*YCS}')
    if o['b6']:
        a(f'''
        s_lshr_b32 {S(sT0)}, {S(sWI)}, 1
        s_and_b32 {S(sT1)}, {S(sT0)}, {S(sOWN)}
        s_andn2_b32 {S(sT2)}, {S(sOWN)}, {S(sT0)}
        s_cmp_eq_u32 {S(sT1)}, 0
        s_cbranch_scc1 L_h_st
        ''')
        for r in range(o['prerows'], 4): ge_row(r)
        a('s_barrier\ns_waitcnt lgkmcnt(0)')
        epilogue(False)
        a('s_branch L_h_done\nL_h_st:')
    a('s_waitcnt lgkmcnt(0)')
    epilogue(True)
    for r in range(0):
        for c in range(4):
            a(f'v_fma_f32 {V(vE+4*r+c)}, {V(YR+4*c+r)}, {V(vXN+4*r+c)}, {V(vE+4*r+c)}')
        a(f'''
        v_cvt_pk_bf16_f32 {V(vD+2*r)}, {V(vE+4*r)}, {V(vE+4*r+1)}
        v_cvt_pk_bf16_f32 {V(vD+2*r+1)}, {V(vE+4*r+2)}, {V(vE+4*r+3)}
        s_mov_b64 exec, {S(sM+2*r,2)}
        global_store_dwordx2 {V(vXG)}, {V(vD+2*r,2)}, {S(sOUT,2)} offset:{r*1024}
        s_mov_b64 exec, -1
        ''')
    if o['b6']:
        a(f'''
        s_cmp_eq_u32 {S(sT2)}, 0
        s_cbranch_scc1 L_h_done
        s_waitcnt vmcnt({o['b6cnt']})
        s_barrier
        L_h_done:
        ''')
    if o['stamp'] or o['diag'] >= 0:
        stamp(11)
        a('s_waitcnt vmcnt(0)')
        stamp(12)
    if o['diag'] >= 0:
        a('''
        s_memrealtime s[90:91]
        s_sub_u32 s88, s88, s86
        s_min_u32 s88, s88, 2000
        s_lshl_b32 s88, s88, 2
        s_waitcnt lgkmcnt(0)
        s_add_u32 s88, s88, s90
        L_diag:
        s_memrealtime s[90:91]
        s_waitcnt lgkmcnt(0)
        s_sub_u32 s90, s90, s88
        s_cmp_lt_i32 s90, 0
        s_cbranch_scc1 L_diag
        ''')
    a('L_exit:')
    if o['stamp']:
        a('v_mov_b32 v254, 0')
        for i in range(14): a(f'v_writelane_b32 v254, s{86+i}, {i}')
        a(f'global_store_dword {V(vSTA)}, v254, {S(sWS,2)}')
    a('L_end:\ns_endpgm')
    a.raw('''.section .rodata,"a"
.p2align 6
.amdhsa_kernel %s_kernel
  .amdhsa_next_free_vgpr 256
  .amdhsa_next_free_sgpr 102
  .amdhsa_accum_offset 256
  .amdhsa_group_segment_fixed_size 0
  .amdhsa_kernarg_size 136
  .amdhsa_user_sgpr_count 2
  .amdhsa_user_sgpr_kernarg_segment_ptr 1
  .amdhsa_system_sgpr_workgroup_id_x 1
.end_amdhsa_kernel''' % KN)
    return a.text()


if __name__ == '__main__':
    out = sys.argv[1]
    opt = {}
    for kv in sys.argv[2:]:
        k, val = kv.split('='); opt[k] = int(val, 0)
    open(out, 'w').write(generate(**opt))
```

```python
import sys
from asmlib import *

KN = 'recurrent_scan__ssm_conv_s4__moe_arch_mod__prompt'

DEFAULTS = dict(stamp=0, cyc=0, force_slow=0, prefetch=1, wpf=1, spinmax=1 << 16, diag=-1,
                maxout=15, group=3, minfly=6, b6=1, b6cnt=1, nb=6, wdearly=0, wpfb3=1, hnormfirst=1, ffnprio=2, tlb=0, tlbsh=16, wnt=0, xnt=0, pnt=0, prerows=1, jc=4, jh=5, jf=12, p1nt=1, pfirst=0, cpf=1, cpfn=5, hfetch=1, wreg=1, dsg=4, dslate=0, hprio=3, hprio2=1)

RS = 2064
STAGE = 0
R4 = 0; R4S = 18560; CAS = 288
YX = 74240; YCS = 5120; YTS = 1280; YGS = 320
U = 109440; US = 4576
TAB = 127744; TS = 1552
WL = 133952; WL1 = 8320
SL = 150528
AM = 158720
FF = 158752
TG = 158768
PF = 158784
FP = 158848
LDS_BYTES = 159872
W_ST = 0x1000; W_FL = 0x6000; W_FP = 0x10000; W_P1 = 0xD0000; W_IN = 0x100000; W_STAMP = 0x800000

sX, sARE, sAIM, sBRE, sBIM, sCRE, sCIM, sLDT = 4, 6, 8, 10, 12, 14, 16, 18
sDSK, sWR, sWG, sWU, sWD, sOUT, sDBG, sWS = 20, 24, 26, 28, 30, 32, 34, 36
sW, sK, sJ, sCGL, sH, sCH0, sT, sXCC, sTAG, sTAGX = 38, 39, 40, 41, 42, 43, 44, 45, 46, 47
sPB, sDS = 48, 50
sONES, sF8, sPROD, sIDX, sKEY, sCNT = 52, 53, 54, 55, 56, 57
sT0, sT1, sT2, sT3 = 58, 59, 60, 61
sOWN, sINB = 62, 63
sM = 64
sH8 = 72
sHI = 80
sSTP = 82
sWI = 84
sP1 = 85
sCM = 78
sA = 76; sR = 77
sROLE = 81

vL = 1
vGA = 2
vSEL = 10
vR4W, vUW, vST0, vST1, vFL, vIN, vXG, vXC = 16, 17, 18, 19, 20, 21, 22, 23
vKA, vKB, vPD, vY = 24, 25, 26, 27
vA0, vA1, vA2, vA3, vA4, vA5, vA6, vA7 = 28, 29, 30, 31, 32, 33, 34, 35
vEP, vPFD, vROW, vSTA = 36, 37, 38, 39
vD = 40
vG = 48
vXF = 56
vXN = 72
vE = 88
vP = 104
vB0, vB1, vB2, vB3, vB4, vB5 = 224, 225, 226, 227, 228, 229
vWD = 232
vT = 240
vCA, vCA2, vCB, vFLO = vA0, vA1, vA2, vA3
vTW1, vTW2, vTW3, vTW4, vWT, vWDA, vFPA, vXS = vA0, vA1, vA2, vA3, vA4, vA5, vA6, vA7
vWS0, vWS1, vP1W, vP1R, vFFW, vSTP = vB0, vB1, vB2, vB3, vB4, vB5
vWD1, vPFW = 230, 231
vTLB = 223
vWDR = 222; vP1F = 221


def tiles(h): return [2 * i + ((i ^ h) & 1) for i in range(4)]


def generate(**opt):
    o = dict(DEFAULTS); o.update(opt)
    a = Asm()
    V = v; S = s

    def stamp(i):
        if o['diag'] == i:
            a('s_memrealtime s[88:89]\ns_waitcnt lgkmcnt(0)')
        if not o['stamp'] or (o['stamp'] == 2 and i != 12): return
        a(f"{'s_memtime' if o['cyc'] else 's_memrealtime'} {S(sSTP,2)}\ns_waitcnt lgkmcnt(0)\ns_mov_b32 s{86+i}, {S(sSTP)}")

    def cmul(d, x, y):
        a(f'v_pk_mul_f32 {V(d,2)}, {V(x,2)}, {V(y,2)} op_sel:[1,1] op_sel_hi:[1,0]')
        a(f'v_pk_fma_f32 {V(d,2)}, {V(x,2)}, {V(y,2)}, {V(d,2)} op_sel:[0,0,0] op_sel_hi:[0,1,1] neg_lo:[0,0,1]')

    def lane63(): a('s_mov_b32 exec_lo, 0\ns_mov_b32 exec_hi, 0x80000000')
    def alllanes(): a('s_mov_b64 exec, -1')
    def spin_init(): a(f"s_mov_b32 {S(sCNT)}, {o['spinmax']}")
    def spin_next(lbl): a(f's_sub_u32 {S(sCNT)}, {S(sCNT)}, 1\ns_cmp_lg_u32 {S(sCNT)}, 0\ns_cbranch_scc1 {lbl}')

    def ssum(dst, *terms):
        first = True; const = 0
        for t in terms:
            if isinstance(t, int): const += t; continue
            r, sh = t
            if first:
                a(f's_lshl_b32 {S(dst)}, {S(r)}, {sh}' if sh else f's_mov_b32 {S(dst)}, {S(r)}'); first = False
            elif sh:
                a(f's_lshl_b32 {S(sT3)}, {S(r)}, {sh}\ns_add_u32 {S(dst)}, {S(dst)}, {S(sT3)}')
            else:
                a(f's_add_u32 {S(dst)}, {S(dst)}, {S(r)}')
        if const: a(f's_add_u32 {S(dst)}, {S(dst)}, {const}')

    def smul(dst, r, k, const=0):
        a(f's_mul_i32 {S(dst)}, {S(r)}, {k}')
        if const: a(f's_add_u32 {S(dst)}, {S(dst)}, {const}')

    T = [vT + i for i in range(16)]

    a.raw('; @launch grid=(256,1,1) block=(512,1,1) lds=%d' % LDS_BYTES)
    a.raw('.amdgcn_target "amdgcn-amd-amdhsa--gfx950"\n.text\n.globl %s_kernel\n.p2align 8\n.type %s_kernel,@function\n%s_kernel:' % (KN, KN, KN))
    a('''
    s_cmp_ge_u32 s2, 256
    s_cbranch_scc1 L_end
    s_load_dwordx16 s[4:19], s[0:1], 0
    s_load_dwordx16 s[20:35], s[0:1], 64
    s_load_dwordx2 s[36:37], s[0:1], 128
    ''')
    if o['cpf']:
        a.comment('pull the rest of this kernel code into L2: a few lines per workgroup of each XCD class')
        a(f'''
        s_getpc_b64 {S(sPB,2)}
        s_lshr_b32 {S(sT0)}, s2, 3
        s_mul_i32 {S(sT0)}, {S(sT0)}, {128*o['cpfn']}
        v_lshl_add_u32 {V(vTLB)}, v0, 7, {S(sT0)}
        v_min_u32 {V(vTLB)}, L_end - L_cpf, {V(vTLB)}
        v_cmp_gt_u32 vcc, {o['cpfn']}, v0
        s_and_saveexec_b64 {S(sM,2)}, vcc
        s_cbranch_execz L_cpf
        global_load_dword {V(vTLB)}, {V(vTLB)}, {S(sPB,2)}
        L_cpf:
        s_mov_b64 exec, -1
        ''')
    if o['diag'] >= 0: a('s_memrealtime s[86:87]')
    if o['stamp']: a(f"{'s_memtime' if o['cyc'] else 's_memrealtime'} s[100:101]")
    a(f'''
    v_lshrrev_b32 {V(T[0])}, 6, v0
    v_and_b32 {V(vL)}, 63, v0
    v_readfirstlane_b32 {S(sW)}, {V(T[0])}
    s_and_b32 {S(sK)}, s2, 7
    s_lshr_b32 {S(sJ)}, s2, 3
    s_and_b32 {S(sCGL)}, {S(sJ)}, 15
    s_lshr_b32 {S(sH)}, {S(sJ)}, 4
    s_and_b32 {S(sWI)}, {S(sW)}, 3
    s_cmp_ge_u32 {S(sW)}, 4
    s_cselect_b32 {S(sROLE)}, 1, 0
    ''')
    ssum(sCH0, (sK, 6), (sCGL, 2))
    for i in range(7): a(f'v_mov_b32 {V(vP+i)}, 0')
    a(f's_add_u32 {S(sT1)}, {S(sCH0)}, {S(sWI)}')
    a(f's_lshr_b32 {S(sT2)}, {S(sW)}, 2')
    ssum(sT0, (sT1, 8), (sT2, 7))
    a(f'v_lshl_add_u32 {V(T[1])}, {V(vL)}, 1, {S(sT0)}')
    a(f's_lshl_b32 {S(sT1)}, {S(sT1)}, 1')
    a(f'v_mov_b32 {V(T[2])}, {S(sT1)}')
    if o['stamp']:
        ssum(sT1, (2, 11), (sW, 8), W_STAMP)
        a(f'v_lshl_add_u32 {V(vSTA)}, {V(vL)}, 2, {S(sT1)}')
        for i in range(14): a(f's_mov_b32 s{86+i}, 0')

    def param_loads():
        for i, p in enumerate((sARE, sAIM, sBRE, sBIM, sCRE, sCIM)):
            a(f"global_load_short_d16_hi {V(vP+i)}, {V(T[1])}, {S(p,2)}{' nt' if o['pnt'] else ''}")
        a(f'global_load_short_d16_hi {V(vP+6)}, {V(T[2])}, {S(sLDT,2)}')

    a(f's_cmp_eq_u32 {S(sROLE)}, 1\ns_cbranch_scc1 L_h_load')
    ssum(sT0, (sJ, 16), (sW, 14), (sK, 7))
    a(f'''
    v_lshrrev_b32 {V(T[3])}, 3, {V(vL)}
    v_and_b32 {V(T[4])}, 7, {V(vL)}
    v_lshlrev_b32 {V(T[3])}, 10, {V(T[3])}
    v_lshl_add_u32 {V(T[3])}, {V(T[4])}, 4, {V(T[3])}
    v_add_u32 {V(T[3])}, {S(sT0)}, {V(T[3])}
    v_add_u32 {V(T[4])}, 8192, {V(T[3])}
    s_waitcnt lgkmcnt(0)
    ''')
    if o['stamp']: a('s_mov_b32 s99, s100')
    if o['diag'] >= 0: a('s_mov_b32 s88, s86')
    stamp(0)
    XNT = ' nt' if o['xnt'] else ''
    PF1 = o['pfirst']
    if PF1: param_loads()
    a(f'global_load_dwordx4 {V(vD,4)}, {V(T[3])}, {S(sX,2)}{XNT}')
    a(f'global_load_dwordx4 {V(vD+4,4)}, {V(T[4])}, {S(sX,2)}{XNT}')
    if not PF1: param_loads()
    a('s_branch L_init')
    a('L_h_load:')
    ssum(sT0, (2, 13), (sWI, 11))
    a(f'''
    v_and_b32 {V(T[3])}, 31, {V(vL)}
    v_lshlrev_b32 {V(T[3])}, 4, {V(T[3])}
    v_lshrrev_b32 {V(T[4])}, 5, {V(vL)}
    v_lshl_add_u32 {V(T[4])}, {V(T[4])}, 10, {V(T[3])}
    v_add_u32 {V(T[4])}, {S(sT0)}, {V(T[4])}
    v_mov_b32 {V(T[5])}, 0
    s_waitcnt lgkmcnt(0)
    ''')
    if o['stamp']: a('s_mov_b32 s99, s100')
    if o['diag'] >= 0: a('s_mov_b32 s88, s86')
    stamp(0)
    if PF1: param_loads()
    a(f'''
    global_load_dwordx4 {V(vG,4)}, {V(T[3])}, {S(sWR,2)}
    global_load_dwordx4 {V(vG+4,4)}, {V(T[3])}, {S(sWR,2)} offset:512
    global_load_dwordx4 {V(vD,4)}, {V(T[4])}, {S(sX,2)}{XNT}
    global_load_dwordx4 {V(vD+4,4)}, {V(T[4])}, {S(sX,2)} offset:512{XNT}
    global_load_dword {V(vEP)}, {V(T[5])}, {S(sWS,2)} sc1
    ''')
    if not PF1: param_loads()

    a('L_init:')
    a(f'''
    v_mov_b32 {V(T[6])}, 0
    v_mov_b32 {V(T[7])}, 0x3f80
    s_lshl_b32 {S(sT0)}, {S(sW)}, 8
    s_mov_b32 m0, {S(sT0)}
    v_and_b32 {V(T[8])}, 127, v0
    ds_write_addtid_b32 {V(T[7])} offset:{STAGE}
    v_min_u32 {V(T[8])}, 119, {V(T[8])}
    v_lshrrev_b32 {V(T[9])}, 7, v0
    v_mul_u32_u24 {V(T[10])}, {US}, {V(T[9])}
    v_lshl_add_u32 {V(T[10])}, {V(T[8])}, 2, {V(T[10])}
    v_add_u32 {V(T[10])}, {U}, {V(T[10])}
    ds_write_b32 {V(T[10])}, {V(T[6])}
    s_cmp_lg_u32 {S(sW)}, 0
    s_cbranch_scc1 L_init2
    v_bfe_u32 {V(T[9])}, {V(vL)}, 1, 2
    v_mul_u32_u24 {V(T[9])}, {TS}, {V(T[9])}
    v_and_b32 {V(T[8])}, 1, {V(vL)}
    v_lshl_add_u32 {V(T[9])}, {V(T[8])}, 2, {V(T[9])}
    v_add_u32 {V(T[9])}, {TAB}, {V(T[9])}
    v_and_b32 {V(T[8])}, 15, {V(vL)}
    v_lshlrev_b32 {V(T[8])}, 2, {V(T[8])}
    v_add_u32 {V(T[8])}, {FF}, {V(T[8])}
    s_mov_b64 exec, 0xffff
    ds_write_b32 {V(T[9])}, {V(T[6])}
    ds_write_b32 {V(T[8])}, {V(T[6])}
    s_mov_b64 exec, -1
    L_init2:
    s_waitcnt lgkmcnt(0)
    s_barrier
    s_lshl_b32 {S(sT0)}, {S(sCH0)}, 1
    s_load_dwordx2 {S(sDS,2)}, {S(sDSK,2)}, {S(sT0)}
    s_getreg_b32 {S(sXCC)}, hwreg(HW_REG_XCC_ID, 0, 4)
    s_mov_b32 {S(sONES)}, 0x3f803f80
    s_mov_b32 {S(sHI)}, 0xffff0000
    s_lshr_b32 {S(sT0)}, {S(sW)}, 2
    s_xor_b32 {S(sT0)}, {S(sT0)}, {S(sWI)}
    s_xor_b32 {S(sT0)}, {S(sT0)}, {S(sH)}
    s_xor_b32 {S(sT0)}, {S(sT0)}, 1
    s_and_b32 {S(sT0)}, {S(sT0)}, 1
    s_lshl_b32 {S(sT)}, {S(sWI)}, 1
    s_add_u32 {S(sT)}, {S(sT)}, {S(sT0)}
    s_lshr_b32 {S(sT0)}, {S(sJ)}, 3
    s_and_b32 {S(sT1)}, {S(sJ)}, 7
    ''')
    ssum(sA, (sT0, 3), (sK, 0))
    a(f's_mov_b32 {S(sR)}, {S(sT1)}')
    ssum(sF8, (sA, 3), (sR, 0))
    a(f'''
    s_cmp_lt_u32 {S(sA)}, 22
    s_cselect_b32 {S(sP1)}, 1, 0
    s_cmp_lt_u32 {S(sF8)}, 172
    s_cselect_b32 {S(sPROD)}, 1, 0
    s_cselect_b32 {S(sF8)}, {S(sF8)}, {S(sJ)}
    s_lshl_b32 {S(sT0)}, {S(sK)}, 1
    s_lshl_b32 {S(sCM)}, 0x00030003, {S(sT0)}
    s_mov_b32 {S(sCM+1)}, {S(sCM)}
    ''')

    pos = [vXF + i for i in range(7)]
    a(f'v_lshlrev_b32 {V(T[0])}, 2, v0')
    a(f's_cmp_eq_u32 {S(sW)}, 0\ns_cbranch_scc1 L_pos0')
    for i in range(7): a(f'v_add_u32 {V(pos[i])}, {i-3}, {V(T[0])}')
    for i in range(7): a(f'v_cvt_f32_u32 {V(pos[i])}, {V(pos[i])}')
    for i in range(0, 7, 2):
        j = min(i + 1, 6)
        a(f'v_cvt_pk_bf16_f32 {V(T[8+i//2])}, {V(pos[i])}, {V(pos[j])}')
    a(f'v_mov_b32 {V(T[1])}, {4 - 0x4280}')
    for i in range(7):
        a(f'v_bfe_u32 {V(pos[i])}, {V(T[8+i//2])}, {16*(i&1)}, 16')
        a(f'v_add_u32 {V(pos[i])}, {V(T[1])}, {V(pos[i])}')
    a('s_branch L_pos_done')
    a('L_pos0:')
    for i in range(7): a(f'v_add_u32 {V(pos[i])}, {i+1}, {V(T[0])}')
    a('L_pos_done:')
    b1, b2 = T[1], T[2]
    a(f'''
    v_and_b32 {V(b1)}, -2, {V(pos[2])}
    v_add_u32 {V(b1)}, -2, {V(b1)}
    v_and_b32 {V(b2)}, -2, {V(pos[3])}
    v_add_u32 {V(T[3])}, {V(b1)}, {V(b1)}
    v_add_u32 {V(T[4])}, {V(b2)}, {V(b2)}
    ''')
    for c in range(4):
        a(f'v_add_u32 {V(vGA+2*c)}, {TAB + c*TS}, {V(T[3])}')
        a(f'v_add_u32 {V(vGA+2*c+1)}, {TAB + c*TS}, {V(T[4])}')
    for i in range(3): a(f'v_sub_u32 {V(pos[i])}, {V(pos[i])}, {V(b1)}')
    for i in range(3, 7): a(f'v_sub_u32 {V(pos[i])}, {V(pos[i])}, {V(b2)}')
    a(f's_movk_i32 {S(sT0)}, 0x0202\nv_mov_b32 {V(T[3])}, 0x0100')
    for i in range(7): a(f'v_mad_u32_u24 {V(pos[i])}, {V(pos[i])}, {S(sT0)}, {V(T[3])}')
    for dst, lo, hi in ((0, 1, 0), (1, 2, 1), (2, 3, 2), (3, 4, 3), (4, 5, 4), (5, 6, 5)):
        a(f'v_lshl_or_b32 {V(vSEL+dst)}, {V(pos[hi])}, 16, {V(pos[lo])}')
    a(f'v_add_u32 {V(vSEL+2)}, 0x{(2*0x0202 - 2*0x02020000) & 0xffffffff:x}, {V(vSEL+2)}')
    a(f'''
    v_and_b32 {V(T[0])}, -4, v0
    v_lshlrev_b32 {V(T[0])}, 2, {V(T[0])}
    v_lshl_add_u32 {V(vR4W)}, v0, 5, {V(T[0])}
    v_add_u32 {V(vR4W)}, {R4 + 144}, {V(vR4W)}
    ''')
    a(f's_lshl_b32 {S(sT0)}, {S(sT)}, 6')
    a(f'v_add_u32 {V(T[0])}, {S(sT0)}, {V(vL)}')
    ssum(sINB, (sK, 18), (sCGL, 14), W_IN)
    ssum(sT1, (sK, 9), W_FL)
    ssum(sT2, (sK, 5), W_ST + 12)
    a(f'''
    v_lshlrev_b32 {V(vROW)}, 2, {V(T[0])}
    v_lshlrev_b32 {V(vUW)}, 3, {V(T[0])}
    v_add_u32 {V(vUW)}, {U + 480}, {V(vUW)}
    v_lshlrev_b32 {V(vST0)}, 4, {V(T[0])}
    v_add_u32 {V(vST1)}, {W_ST + 8192}, {V(vST0)}
    v_add_u32 {V(vST0)}, {W_ST}, {V(vST0)}
    s_lshl_b32 {S(sT0)}, {S(sCH0)}, 1
    v_lshl_add_u32 {V(vXG)}, {V(T[0])}, 12, {S(sT0)}
    v_lshrrev_b32 {V(T[1])}, 2, {V(T[0])}
    v_lshl_add_u32 {V(vFL)}, {V(T[1])}, 2, {S(sT1)}
    v_and_b32 {V(T[2])}, 3, {V(vL)}
    v_lshl_add_u32 {V(T[2])}, {V(T[2])}, 4, {S(sINB)}
    v_lshl_add_u32 {V(vIN)}, {V(T[1])}, 7, {V(T[2])}
    v_lshrrev_b32 {V(T[1])}, 4, {V(T[0])}
    v_lshl_add_u32 {V(vXC)}, {V(T[1])}, 8, {S(sT2)}
    ''')
    smul(sT1, sWI, US, U + 480)
    a(f'''
    v_and_b32 {V(T[0])}, 31, {V(vL)}
    v_lshrrev_b32 {V(T[1])}, 5, {V(vL)}
    s_lshl_b32 {S(sT0)}, {S(sW)}, 8
    v_lshl_add_u32 {V(T[2])}, {V(T[1])}, 4, {S(sT0)}
    s_movk_i32 {S(sT0)}, {RS}
    v_mad_u32_u24 {V(vKB)}, {V(T[0])}, {S(sT0)}, {V(T[2])}
    v_add_u32 {V(T[3])}, -16, {V(T[0])}
    v_cmp_lt_u32 vcc, 20, {V(T[0])}
    v_lshl_add_u32 {V(vPD)}, {V(vL)}, 4, {S(sT1)}
    v_cndmask_b32 {V(T[3])}, {V(T[0])}, {V(T[3])}, vcc
    v_mad_u32_u24 {V(vKA)}, {V(T[3])}, {S(sT0)}, {V(T[2])}
    v_add_u32 {V(vKA)}, {STAGE + 32*RS}, {V(vKA)}
    v_and_b32 {V(T[5])}, 15, {V(vL)}
    v_lshrrev_b32 {V(T[6])}, 4, {V(vL)}
    s_cmp_eq_u32 {S(sROLE)}, 1
    s_cbranch_scc1 L_h_setup
    ''')

    slw, slw1, slr, slr1, ina, ina1, tga, pfa_c = [vXN + i for i in range(8)]
    ssum(sT0, (sW, 11), SL)
    a(f'''
    v_lshrrev_b32 {V(T[0])}, 3, {V(vL)}
    v_and_b32 {V(T[1])}, 7, {V(vL)}
    v_xor_b32 {V(T[2])}, {V(T[6])}, {V(T[1])}
    v_lshl_add_u32 {V(T[2])}, {V(T[2])}, 4, {S(sT0)}
    v_lshl_add_u32 {V(slw)}, {V(T[0])}, 7, {V(T[2])}
    v_xor_b32 {V(slw1)}, 64, {V(slw)}
    v_and_b32 {V(T[2])}, 3, {V(vL)}
    v_bfe_u32 {V(T[3])}, {V(vL)}, 2, 1
    v_lshl_add_u32 {V(T[2])}, {V(T[2])}, 1, {V(T[3])}
    v_xor_b32 {V(T[3])}, {V(T[6])}, {V(T[2])}
    v_lshl_add_u32 {V(T[3])}, {V(T[3])}, 4, {S(sT0)}
    v_lshl_add_u32 {V(T[3])}, {V(T[2])}, 8, {V(T[3])}
    v_and_b32 {V(T[4])}, 1, {V(T[0])}
    v_lshl_add_u32 {V(slr)}, {V(T[4])}, 3, {V(T[3])}
    v_xor_b32 {V(slr1)}, 64, {V(slr)}
    ''')
    ssum(sT0, (sK, 18), (sJ, 9), (sW, 7), W_IN)
    a(f'''
    v_lshl_add_u32 {V(T[1])}, {V(T[1])}, 4, {S(sT0)}
    v_lshl_add_u32 {V(ina)}, {V(T[0])}, 14, {V(T[1])}
    v_add_u32 {V(ina1)}, 0x20000, {V(ina)}
    ''')
    ssum(sT0, (sK, 9), (sJ, 4), (sW, 2), W_FL)
    a(f'v_mov_b32 {V(vFLO)}, {S(sT0)}')
    ssum(sT0, (sW, 2), TG)
    a(f'v_mov_b32 {V(tga)}, {S(sT0)}')
    a('s_waitcnt vmcnt(2)\ns_branch L_kgen' if PF1 else 's_branch L_c_slice')

    a('L_h_setup:')
    ssum(sT1, (sWI, 2), FF)
    a(f'''
    v_mov_b32 {V(vFFW)}, {S(sT1)}
    s_lshr_b32 {S(sT1)}, {S(sWI)}, 1
    s_and_b32 {S(sT2)}, {S(sWI)}, 1
    ''')
    ssum(sT0, (2, 5), (sT1, 4), (sT2, 13), W_ST)
    a(f'v_mov_b32 {V(vSTP)}, {S(sT0)}')
    rk, pfi = vXN, vXN + 8
    ssum(sT0, (2, 3), (sWI, 1))
    a(f's_sub_u32 {S(sT0)}, 0xffff, {S(sT0)}\nv_sub_u32 {V(rk)}, {S(sT0)}, {V(T[1])}')
    ssum(sT0, (sH, 13), (sWI, 11), (sINB, 0))
    a(f'v_lshl_add_u32 {V(pfi)}, {V(T[5])}, 7, {S(sT0)}')
    if PF1: a('s_waitcnt vmcnt(5)')

    def table_setup():
        smul(sT0, sWI, TS, TAB + 8)
        a(f'''
        v_and_b32 {V(T[0])}, 31, {V(vL)}
        v_lshrrev_b32 {V(T[1])}, 5, {V(vL)}
        v_lshl_add_u32 {V(T[2])}, {V(T[1])}, 3, {S(sT0)}
        v_lshl_add_u32 {V(vTW1)}, {V(T[0])}, 4, {V(T[2])}
        v_sub_u32 {V(T[2])}, 3, {V(T[1])}
        v_lshlrev_b32 {V(T[2])}, {V(T[2])}, {V(T[0])}
        v_lshl_add_u32 {V(T[3])}, {V(T[1])}, 8, {S(sT0)}
        v_add_u32 {V(T[3])}, 512, {V(T[3])}
        v_add_u32 {V(vTW2)}, {V(T[2])}, {V(T[3])}
        v_mul_u32_u24 {V(T[2])}, 124, {V(T[1])}
        v_add3_u32 {V(vTW3)}, {V(vTW2)}, {V(T[2])}, 4
        v_lshl_add_u32 {V(vTW4)}, {V(T[0])}, 1, {V(T[3])}
        v_add_u32 {V(vTW4)}, 512, {V(vTW4)}
        ''')

    def wsrc_setup():
        ssum(sT0, (sA, 7), (sWI, 5))
        ssum(sT1, (sF8, 13), (sWI, 8), 4096)
        ssum(sT2, (sF8, 10), W_P1)
        a(f'''
        s_min_u32 {S(sT0)}, {S(sT0)}, 2720
        v_lshrrev_b32 {V(T[6])}, 1, {V(vL)}
        v_lshl_add_u32 {V(T[6])}, {S(sR)}, 6, {V(T[6])}
        v_and_b32 {V(T[7])}, 1, {V(vL)}
        v_lshl_add_u32 {V(T[7])}, {V(T[7])}, 4, {S(sT0)}
        s_movk_i32 {S(sT0)}, 2752
        v_mad_u32_u24 {V(vWS0)}, {V(T[6])}, {S(sT0)}, {V(T[7])}
        v_add_u32 {V(vWS1)}, {32*2752}, {V(vWS0)}
        v_lshl_add_u32 {V(vWDA)}, {V(vL)}, 2, {S(sT1)}
        v_lshl_add_u32 {V(vP1R)}, {V(vL)}, 4, {S(sT2)}
        v_lshl_add_u32 {V(vP1F)}, {V(vL)}, 7, {S(sT2)}
        ''')

    def ffn_setup():
        smul(sT0, sWI, YTS, YX)
        ssum(sT1, (sWI, 12), WL)
        a(f'''
        v_and_b32 {V(T[2])}, 3, {V(vL)}
        v_lshrrev_b32 {V(T[3])}, 2, {V(vL)}
        v_mul_u32_u24 {V(T[4])}, {YGS}, {V(T[2])}
        v_lshl_add_u32 {V(T[4])}, {V(T[3])}, 4, {V(T[4])}
        v_add_u32 {V(vY)}, {S(sT0)}, {V(T[4])}
        v_lshl_add_u32 {V(T[2])}, {V(T[2])}, 3, {S(sT1)}
        v_lshl_add_u32 {V(vWT)}, {V(T[3])}, 5, {V(T[2])}
        v_lshl_add_u32 {V(vWDR)}, {V(vL)}, 4, {S(sT1)}
        v_and_b32 {V(T[2])}, 255, v0
        v_lshrrev_b32 {V(T[4])}, 1, {V(T[2])}
        v_mul_u32_u24 {V(T[4])}, 6144, {V(T[4])}
        v_and_b32 {V(T[3])}, 1, {V(vL)}
        v_lshl_add_u32 {V(T[4])}, {V(T[3])}, 4, {V(T[4])}
        ''')
        ssum(sT1, (sF8, 5), W_FP)
        a(f'v_add_u32 {V(vFPA)}, {S(sT1)}, {V(T[4])}')
        ssum(sT0, (sA, 13), (sWI, 11), (sR, 7), W_P1)
        a(f'''
        s_lshl_b32 {S(sT1)}, {S(sR)}, 7
        v_lshrrev_b32 {V(T[2])}, 4, {V(vL)}
        v_lshl_add_u32 {V(T[2])}, {V(T[2])}, 3, {S(sT1)}
        v_lshl_add_u32 {V(vXS)}, {V(T[3])}, 6, {V(T[2])}
        v_bfe_u32 {V(T[2])}, {V(vL)}, 3, 1
        v_and_b32 {V(T[3])}, 7, {V(vL)}
        v_lshl_add_u32 {V(T[3])}, {V(T[3])}, 4, {S(sT0)}
        v_lshl_add_u32 {V(vP1W)}, {V(T[2])}, 10, {V(T[3])}
        ''')

    def conv_setup():
        a(f'v_and_b32 {V(T[5])}, 15, {V(vL)}\nv_lshrrev_b32 {V(T[6])}, 4, {V(vL)}')
        smul(sT0, sW, R4S, R4)
        a(f'v_lshlrev_b32 {V(T[3])}, 3, {V(T[6])}\nv_sub_u32 {V(T[3])}, {V(T[5])}, {V(T[3])}')
        for reg, k in ((vCA, 32), (vCA2, 28)):
            a(f'''
            v_add_u32 {V(T[4])}, {k}, {V(T[3])}
            v_lshrrev_b32 {V(T[7])}, 4, {V(T[4])}
            v_lshl_add_u32 {V(reg)}, {V(T[4])}, 3, {S(sT0)}
            v_lshl_add_u32 {V(reg)}, {V(T[7])}, 4, {V(reg)}
            ''')
        smul(sT0, sW, US, U)
        a(f'''
        v_lshl_add_u32 {V(T[3])}, {V(T[6])}, 4, {S(sT0)}
        v_lshl_add_u32 {V(vCB)}, {V(T[5])}, 5, {V(T[3])}
        ''')
        smul(sT0, sW, YCS, YX)
        a(f'''
        v_mul_u32_u24 {V(T[3])}, {YGS}, {V(T[6])}
        v_lshl_add_u32 {V(T[3])}, {V(T[5])}, 4, {V(T[3])}
        v_add_u32 {V(vY)}, {S(sT0)}, {V(T[3])}
        ''')

    def slice_work():
        a('s_waitcnt vmcnt(0)' if PF1 else 's_waitcnt vmcnt(7)')
        stamp(1)
        a(f'''
        ds_write_b128 {V(slw)}, {V(vD,4)}
        ds_write_b128 {V(slw1)}, {V(vD+4,4)} offset:1024
        ds_read_b64 {V(vG,2)}, {V(slr)}
        ds_read_b64 {V(vG+2,2)}, {V(slr)} offset:128
        ds_read_b64 {V(vG+4,2)}, {V(slr1)}
        ds_read_b64 {V(vG+6,2)}, {V(slr1)} offset:128
        s_waitcnt lgkmcnt(0)
        global_store_dwordx4 {V(ina)}, {V(vG,4)}, {S(sWS,2)}
        global_store_dwordx4 {V(ina1)}, {V(vG+4,4)}, {S(sWS,2)}
        ''')


    S1, S2, S3, S4 = vXF, vXF + 1, vXF + 2, vXF + 3

    def red32(regs):
        for m in ('row_shr:1', 'row_shr:2', 'row_shr:4', 'row_shr:8'):
            for r in regs: a(f'v_add_f32_dpp {V(r)}, {V(r)}, {V(r)} {m} row_mask:0xf bank_mask:0xf')
        for r in regs: a(f'v_add_f32_dpp {V(r)}, {V(r)}, {V(r)} row_bcast:15 row_mask:0xa bank_mask:0xf')

    def ln_work():
        for r in (S1, S2, S3, S4): a(f'v_mov_b32 {V(r)}, 0')
        NP = 0 if PF1 else 7
        a(f's_setprio 2\ns_waitcnt vmcnt({3 + NP})')
        for i in range(8): a(f'v_dot2_f32_bf16 {V(S4)}, {V(vG+i)}, {S(sONES)}, {V(S4)}')
        red32([S4])
        a(f's_waitcnt vmcnt({1 + NP})')
        stamp(1)
        nlate = 0
        if o['prefetch']:
            a('s_mov_b64 exec, 0xffff')
            a(f'global_load_dword {V(vPFD)}, {V(pfi)}, {S(sWS,2)} nt'); nlate += 1
            alllanes()
        for i in range(8):
            a(f'v_dot2_f32_bf16 {V(S1)}, {V(vD+i)}, {S(sONES)}, {V(S1)}')
            a(f'v_dot2_f32_bf16 {V(S2)}, {V(vD+i)}, {V(vD+i)}, {V(S2)}')
            a(f'v_dot2_f32_bf16 {V(S3)}, {V(vD+i)}, {V(vG+i)}, {V(S3)}')
        red32([S1, S2, S3])
        t = T[0]; g = vE
        a(f'''
        v_mul_f32 {V(S1)}, 0x3b000000, {V(S1)}
        v_mul_f32 {V(S2)}, 0x3b000000, {V(S2)}
        s_waitcnt vmcnt({nlate + NP})
        v_fma_f32 {V(S2)}, -{V(S1)}, {V(S1)}, {V(S2)}
        v_readfirstlane_b32 {S(sTAG)}, {V(vEP)}
        v_max_f32 {V(S2)}, 0, {V(S2)}
        v_cvt_pk_bf16_f32 {V(t)}, {V(S1)}, {V(S2)}
        s_add_u32 {S(sTAG)}, {S(sTAG)}, 16
        v_and_b32 {V(t)}, {S(sHI)}, {V(t)}
        s_and_b32 {S(sTAG)}, {S(sTAG)}, -16
        v_add_f32 {V(t)}, 0x3727c5ac, {V(t)}
        s_or_b32 {S(sTAGX)}, {S(sTAG)}, {S(sXCC)}
        v_cvt_pk_bf16_f32 {V(t)}, {V(t)}, {V(t)}
        v_and_b32 {V(t)}, {S(sHI)}, {V(t)}
        v_sqrt_f32 {V(t)}, {V(t)}
        v_mov_b32 {V(g+3)}, {S(sTAGX)}
        v_cvt_pk_bf16_f32 {V(g+1)}, {V(S1)}, {V(t)}
        v_and_b32 {V(t)}, {S(sHI)}, {V(g+1)}
        v_lshlrev_b32 {V(t+1)}, 16, {V(g+1)}
        v_rcp_f32 {V(t)}, {V(t)}
        v_fma_f32 {V(S3)}, -{V(t+1)}, {V(S4)}, {V(S3)}
        v_readlane_b32 {S(sT0)}, {V(g+1)}, 31
        v_mul_f32 {V(S3)}, {V(S3)}, {V(t)}
        v_cvt_pk_bf16_f32 {V(S3)}, {V(S3)}, {V(S3)}
        v_mov_b32 {V(g)}, {S(sT0)}
        v_ashrrev_i32 {V(t)}, 31, {V(S3)}
        v_or_b32 {V(t)}, 0x80000000, {V(t)}
        v_xor_b32 {V(t)}, {V(t)}, {V(S3)}
        v_and_or_b32 {V(t)}, {V(t)}, {S(sHI)}, {V(rk)}
        s_add_u32 {S(sT1)}, {S(sTAG)}, 1
        v_readlane_b32 {S(sT0)}, {V(t)}, 31
        v_mov_b32 {V(t+2)}, {S(sT1)}
        v_max_u32 {V(g+2)}, {S(sT0)}, {V(t)}
        ''')
        lane63()
        a(f'global_store_dwordx4 {V(vSTP)}, {V(g,4)}, {S(sWS,2)} sc1')
        a(f'ds_write_b32 {V(vFFW)}, {V(t+2)} offset:{TG - FF}')
        alllanes()
        a(f"s_setprio 0\ns_waitcnt vmcnt({1 + nlate}) lgkmcnt(0)")
        stamp(2)

    if not PF1:
        ln_work()
        a('s_branch L_kgen\nL_c_slice:')
        slice_work()
        a('s_waitcnt vmcnt(2)')
    a('L_kgen:')
    are, aim, bre, bim, cre, cim, dt = [vP + i for i in range(7)]
    t0 = vP + 7
    z1, z2, z4, ZZ, w1, w2, w4 = [vP + 8 + 2 * i for i in range(7)]
    hq = [vP + 24 + 2 * i for i in range(8)]
    lq = [vP + 40 + 2 * i for i in range(8)]
    cv = [vP + 56 + i for i in range(8)]
    a(f'''
    v_mov_b32 {V(t0)}, 0x3fb8aa3b
    v_mul_f32 {V(dt)}, {V(dt)}, {V(t0)}
    v_exp_f32 {V(dt)}, {V(dt)}
    v_mul_f32 {V(are)}, {V(t0)}, {V(are)}
    v_cvt_pk_bf16_f32 {V(dt)}, {V(dt)}, {V(dt)}
    v_mul_f32 {V(aim)}, 0.15915494, {V(aim)}
    v_and_b32 {V(dt)}, {S(sHI)}, {V(dt)}
    v_mul_f32 {V(are)}, {V(dt)}, {V(are)}
    v_mul_f32 {V(aim)}, {V(dt)}, {V(aim)}
    v_exp_f32 {V(cv[0])}, {V(are)}
    v_fract_f32 {V(cv[1])}, {V(aim)}
    v_mul_f32 {V(are)}, 0x43800000, {V(are)}
    v_cos_f32 {V(z1)}, {V(cv[1])}
    v_mul_f32 {V(aim)}, 0x43800000, {V(aim)}
    v_sin_f32 {V(z1+1)}, {V(cv[1])}
    v_fract_f32 {V(cv[3])}, {V(aim)}
    v_exp_f32 {V(cv[2])}, {V(are)}
    v_mul_f32 {V(z1)}, {V(cv[0])}, {V(z1)}
    v_cos_f32 {V(ZZ)}, {V(cv[3])}
    v_mul_f32 {V(z1+1)}, {V(cv[0])}, {V(z1+1)}
    v_sin_f32 {V(ZZ+1)}, {V(cv[3])}
    v_mul_f32 {V(bre)}, {V(dt)}, {V(bre)}
    v_mul_f32 {V(bim)}, {V(dt)}, {V(bim)}
    ''')
    cmul(z2, z1, z1)
    a(f'v_mul_f32 {V(ZZ)}, {V(cv[2])}, {V(ZZ)}\nv_mul_f32 {V(ZZ+1)}, {V(cv[2])}, {V(ZZ+1)}')
    cmul(z4, z2, z2)
    cmul(hq[0], cre, bre)
    ci = [0]; m0_hi = [False]; pend = []

    def flush(n=99):
        for x in pend[:n]: a(x)
        del pend[:n]

    def put(row, reg, neg):
        c = cv[ci[0] % 8]; ci[0] += 1
        a(f"v_cvt_pk_bf16_f32 {V(c)}, {V(reg)}, {'-' if neg else ''}{V(reg+1)}")
        off = row * RS - (30 * RS if m0_hi[0] else 0)
        assert 0 <= off < 65536, (row, off)
        pend.append(f'ds_write_addtid_b32 {V(c)} offset:{STAGE + off}')
        if len(pend) >= o['dsg'] + o['dslate']: flush(o['dsg'])
    cmul(w1, z4, z4)
    cmul(hq[1], hq[0], z1)
    cmul(w2, w1, w1)
    put(1, w1, False)
    cmul(hq[2], hq[0], z2)
    cmul(lq[3], w2, w1)
    put(2, w2, False)
    cmul(w4, w2, w2)
    put(3, lq[3], False)
    cur = {1: w1, 2: w2, 3: lq[3], 4: w4}
    put(4, w4, False)

    def lo_step(j):
        d = lq[j % 8]
        cmul(d, cur[j - 4], w4); cur[j] = d
        put(j, d, False)
    def inject(j):
        if not PF1: return
        if j == o['jc']:
            a(f's_cmp_eq_u32 {S(sROLE)}, 1\ns_cbranch_scc1 L_noslice'); slice_work(); a('L_noslice:')
        if j == o['jh']:
            a(f's_cmp_eq_u32 {S(sROLE)}, 0\ns_cbranch_scc1 L_noln'); ln_work(); a('L_noln:')
    inject(4)
    for j in range(5, o['jf']):
        lo_step(j); inject(j)
    a(f's_cmp_eq_u32 {S(sROLE)}, 1\ns_cbranch_scc1 L_noflag')
    spin_init()
    a(f'''
    L_tagspin:
    ds_read_b32 {V(T[0])}, {V(tga)}
    s_waitcnt lgkmcnt(0)
    v_readfirstlane_b32 {S(sTAG)}, {V(T[0])}
    s_cmp_lg_u32 {S(sTAG)}, 0
    s_cbranch_scc1 L_tagok
    ''')
    spin_next('L_tagspin')
    a(f'''
    L_tagok:
    s_and_b32 {S(sTAG)}, {S(sTAG)}, -16
    s_or_b32 {S(sTAGX)}, {S(sTAG)}, {S(sXCC)}
    v_mov_b32 {V(T[0])}, {S(sTAGX)}
    s_mov_b64 exec, 1
    s_waitcnt vmcnt(0)
    global_store_dword {V(vFLO)}, {V(T[0])}, {S(sWS,2)}
    s_mov_b64 exec, -1
    ''')
    stamp(2)
    a('L_noflag:')
    for j in range(o['jf'], 30): lo_step(j)
    flush()
    ssum(sT0, (sW, 8), 30 * RS)
    a(f's_mov_b32 m0, {S(sT0)}')
    m0_hi[0] = True
    for j in range(30, 32): lo_step(j)
    put(32, hq[0], True); put(33, hq[1], True); put(34, hq[2], True)
    cmul(hq[3], hq[1], z2); cmul(hq[4], hq[0], z4)
    put(35, hq[3], True); put(36, hq[4], True)
    a(f'global_load_dword {V(vPFD)}, {V(vFL)}, {S(sWS,2)} sc1')
    cmul(hq[5], hq[1], z4); cmul(hq[6], hq[2], z4); cmul(hq[7], hq[3], z4)
    put(37, hq[5], True); put(38, hq[6], True); put(39, hq[7], True)
    A0, A2, A4, A6, B0, B4, C0, C4 = lq
    cmul(A0, hq[0], ZZ); cmul(A2, hq[2], ZZ); cmul(A4, hq[4], ZZ); cmul(A6, hq[6], ZZ)
    put(40, A0, True)
    cmul(B0, A0, ZZ); put(41, A2, True); cmul(B4, A4, ZZ); put(42, A4, True)
    cmul(C0, B0, ZZ); put(43, A6, True); cmul(C4, B4, ZZ); put(44, B0, True)
    cmul(hq[1], C0, ZZ); put(45, B4, True); put(46, C0, True)
    cmul(hq[2], hq[1], ZZ); put(47, C4, True); put(48, hq[1], True)
    cmul(hq[3], hq[2], ZZ); put(49, hq[2], True)
    cmul(hq[4], hq[3], ZZ); put(50, hq[3], True)
    cmul(hq[5], hq[4], ZZ); put(51, hq[4], True); put(52, hq[5], True)
    flush()
    stamp(3)

    KD = vP; KF = vP + 16; NB = o['nb']

    def kread(sidx):
        r = KF + 8 * (sidx % NB)
        a(f'ds_read_b128 {V(r,4)}, {V(vKA)} offset:{32*sidx}')
        a(f'ds_read_b128 {V(r+4,4)}, {V(vKB)} offset:{32*sidx}')

    def kmfma(cinit, shadow=()):
        for sidx in range(8):
            if sidx >= 2 and sidx - 2 < len(shadow): shadow[sidx - 2]()
            outstanding = min(8, sidx + NB) - sidx - 1
            a(f's_waitcnt lgkmcnt({2*outstanding})')
            r = KF + 8 * (sidx % NB)
            a(f"v_mfma_f32_32x32x16_bf16 {V(KD,16)}, {V(r,4)}, {V(r+4,4)}, {'0' if (sidx == 0 and not cinit) else V(KD,16)}")
            if sidx + NB < 8: kread(sidx + NB)

    def fetch_tile(tag):
        a(f's_waitcnt vmcnt(0)\nv_cmp_ne_u32 vcc, {S(sTAGX)}, {V(vPFD)}')
        if o['force_slow']: a(f's_branch L_gather{tag}')
        a(f's_cbranch_vccz L_fast{tag}')
        spin_init()
        a(f'''
        L_flagspin{tag}:
        global_load_dword {V(vPFD)}, {V(vFL)}, {S(sWS,2)} sc1
        global_load_dword {V(T[0])}, {V(vXC)}, {S(sWS,2)} sc1
        s_waitcnt vmcnt(0)
        v_cmp_ne_u32 vcc, {S(sTAGX)}, {V(vPFD)}
        s_cbranch_vccz L_fast{tag}
        v_xor_b32 {V(T[0])}, {S(sTAGX)}, {V(T[0])}
        v_add_u32 {V(T[0])}, -1, {V(T[0])}
        v_cmp_gt_u32 vcc, 15, {V(T[0])}
        s_cbranch_vccnz L_gather{tag}
        ''')
        spin_next(f'L_flagspin{tag}')
        a(f'L_gather{tag}:')
        for r in range(4):
            a(f'global_load_dwordx2 {V(vD+2*r,2)}, {V(vXG)}, {S(sX,2)} offset:{r*1024}')
        a(f'''
        s_branch L_stats{tag}
        L_fast{tag}:
        global_load_dwordx4 {V(vD,4)}, {V(vIN)}, {S(sWS,2)} sc1
        global_load_dwordx4 {V(vD+4,4)}, {V(vIN)}, {S(sWS,2)} offset:64 sc1
        L_stats{tag}:
        global_load_dwordx4 {V(vG,4)}, {V(vST0)}, {S(sWS,2)} sc1
        global_load_dwordx4 {V(vG+4,4)}, {V(vST1)}, {S(sWS,2)} sc1
        ''')

    a(f's_cmp_eq_u32 {S(sROLE)}, 1\ns_cbranch_scc1 L_h_k')
    for i in range(NB): kread(i)
    kmfma(False, (conv_setup,))
    a(f'v_mov_b32 {V(T[1])}, 1')
    for i in range(3): a(f'ds_write_b128 {V(vPD)}, {V(KD+4*i,4)} offset:{1024*i}')
    a(f's_mov_b64 exec, 1\nds_write_b32 {V(tga)}, {V(T[1])} offset:{PF - TG}\ns_mov_b64 exec, -1')
    stamp(4)
    fetch_tile('c')
    a('s_branch L_b3')
    a('L_h_k:')
    if o['hfetch']: fetch_tile('h')
    spin_init()
    a(f'''
    L_pspin:
    ds_read_b32 {V(T[1])}, {V(vFFW)} offset:{PF - FF}
    ''')
    for i in range(3): a(f'ds_read_b128 {V(KD+4*i,4)}, {V(vPD)} offset:{1024*i}')
    for i in range(NB - 1): kread(i)
    a(f'''
    s_waitcnt lgkmcnt({2*(NB-1) + 3})
    v_readfirstlane_b32 {S(sT0)}, {V(T[1])}
    s_cmp_lg_u32 {S(sT0)}, 0
    s_cbranch_scc1 L_pok
    s_waitcnt lgkmcnt(0)
    ''')
    spin_next('L_pspin')
    a('L_pok:')
    kread(NB - 1)
    kmfma(True, (table_setup, wsrc_setup))
    for i in range(6): a(f'v_cvt_pk_bf16_f32 {V(T[i])}, {V(KD+2*i)}, {V(KD+2*i+1)}')
    a(f'''
    ds_write_b64 {V(vTW1)}, {V(T[0],2)}
    ds_write_b32 {V(vTW2)}, {V(T[2])}
    ds_write_b32 {V(vTW3)}, {V(T[3])}
    ds_write_b16 {V(vTW4)}, {V(T[4])}
    ds_write_b16_d16_hi {V(vTW4)}, {V(T[4])} offset:64
    ds_write_b16 {V(vTW4)}, {V(T[5])} offset:128
    ds_write_b16_d16_hi {V(vTW4)}, {V(T[5])} offset:192
    ''')
    stamp(4)
    if not o['hfetch']: fetch_tile('h')
    if o['hprio']: a(f"s_setprio {o['hprio']}")
    a('L_b3:\ns_waitcnt lgkmcnt(0)')
    stamp(5)
    a('s_barrier')

    WR = vP + 80
    def w_dma():
        for t in range(4):
            a(f'global_load_dwordx4 {V(WR+4*t,4)}, {V((vWS0, vWS1)[t&1])}, {S((sWG, sWU)[t>>1],2)}')

    def wd_dma():
        a(f"s_mov_b64 exec, 0xff\nglobal_load_dword {V(vPFW)}, {V(vP1F)}, {S(sWS,2)}{' nt' if o['p1nt'] else ''}\ns_mov_b64 exec, -1")
        for i in range(8):
            a(f'global_load_dword {V(vWD+i)}, {V(vWDA)}, {S(sWD,2)} offset:{i*1024 - 4096}')

    XP = vG
    def r4_build(tag, mid=None):
        Wq = vP; Q = vP + 16
        for c in range(4):
            a(f'ds_read2_b32 {V(Wq+4*c,2)}, {V(vGA+2*c)} offset0:0 offset1:1')
            a(f'ds_read2_b32 {V(Wq+4*c+2,2)}, {V(vGA+2*c+1)} offset0:0 offset1:1')
        if tag == 'c': a(f'''
        s_cmp_lg_u32 {S(sW)}, 3
        s_cbranch_scc1 L_nopad{tag}
        v_bfe_u32 {V(T[0])}, {V(vL)}, 3, 2
        v_and_b32 {V(T[1])}, 7, {V(vL)}
        v_mul_u32_u24 {V(T[0])}, {R4S}, {V(T[0])}
        v_lshl_add_u32 {V(T[0])}, {V(T[1])}, 4, {V(T[0])}
        ''')
        if tag == 'c':
            for i in range(4): a(f'v_mov_b32 {V(T[4+i])}, 0')
        if tag == 'c': a(f'''
        s_mov_b32 exec_hi, 0
        ds_write_b128 {V(T[0])}, {V(T[4],4)} offset:{R4}
        s_mov_b64 exec, -1
        s_waitcnt lgkmcnt(1)
        L_nopad{tag}:
        ''')
        if tag == 'h' and o['hprio']: a(f"s_setprio {o['hprio2']}")
        if mid: mid()
        for c in range(4):
            W0, W1, W2, W3 = [Wq + 4 * c + i for i in range(4)]
            q = Q + 8 * c
            if not mid: a('s_waitcnt lgkmcnt(6)')
            a(f'''
            v_perm_b32 {V(q+0)}, {V(W2)}, {V(W1)}, {V(vSEL+2)}
            v_perm_b32 {V(q+1)}, {V(W1)}, {V(W0)}, {V(vSEL+0)}
            v_perm_b32 {V(q+2)}, {V(W3)}, {V(W2)}, {V(vSEL+3)}
            v_perm_b32 {V(q+3)}, {V(W1)}, {V(W0)}, {V(vSEL+1)}
            v_mov_b32 {V(q+5)}, {V(q+0)}
            ds_write_b128 {V(vR4W)}, {V(q,4)} offset:{c*R4S}
            v_perm_b32 {V(q+4)}, {V(W3)}, {V(W2)}, {V(vSEL+4)}
            v_perm_b32 {V(q+6)}, {V(W3)}, {V(W2)}, {V(vSEL+5)}
            v_mov_b32 {V(q+7)}, {V(q+2)}
            ds_write_b128 {V(vR4W)}, {V(q+4,4)} offset:{c*R4S + 16}
            ''')

    def normalise(tag):
        if tag == 'h':
            a(f's_cmp_eq_u32 {S(sP1)}, 0\ns_cbranch_scc1 L_nw0')
            w_dma()
            ffn_setup()
            a("s_waitcnt vmcnt(4)\ns_branch L_nw1\nL_nw0:")
            ffn_setup()
            a("s_waitcnt vmcnt(0)\nL_nw1:")
        else:
            a('s_waitcnt vmcnt(0)')
        spin_init()
        a(f'''
        L_statspin{tag}:
        v_xor_b32 {V(T[0])}, {S(sTAG)}, {V(vG+3)}
        v_xor_b32 {V(T[1])}, {S(sTAG)}, {V(vG+7)}
        v_or_b32 {V(T[0])}, {V(T[0])}, {V(T[1])}
        v_cmp_lt_u32 vcc, 15, {V(T[0])}
        s_cbranch_vccz L_statok{tag}
        global_load_dwordx4 {V(vG,4)}, {V(vST0)}, {S(sWS,2)} sc1
        global_load_dwordx4 {V(vG+4,4)}, {V(vST1)}, {S(sWS,2)} sc1
        s_waitcnt vmcnt(0)
        ''')
        spin_next(f'L_statspin{tag}')
        a(f'L_statok{tag}:')
        stamp(7)
        a(f'''
        v_cmp_ne_u32 vcc, {S(sTAGX)}, {V(vG+3)}
        s_and_b64 vcc, vcc, {S(sCM,2)}
        s_cbranch_vccz L_local{tag}
        v_mov_b32 {V(T[0])}, {FF}
        v_mov_b32 {V(T[1])}, 1
        ds_write_b32 {V(T[0])}, {V(T[1])}
        s_waitcnt lgkmcnt(0)
        L_local{tag}:
        ''')
        stq = [vG, vG + 1, vG + 4, vG + 5]
        rho = [T[1], T[3], T[5], T[7]]; mu = [T[0], T[2], T[4], T[6]]
        key = T[8]
        for r in range(4): a(f'v_and_b32 {V(rho[r])}, {S(sHI)}, {V(stq[r])}')
        a(f'v_max_u32 {V(key)}, {V(vG+2)}, {V(vG+6)}')
        for r in range(4):
            a(f'v_rcp_f32 {V(rho[r])}, {V(rho[r])}')
            a(f'v_lshlrev_b32 {V(mu[r])}, 16, {V(stq[r])}')
        kred = ['row_shr:1 row_mask:0xf', 'row_shr:2 row_mask:0xf', 'row_shr:4 row_mask:0xf', 'row_shr:8 row_mask:0xf',
                'row_bcast:15 row_mask:0xa', 'row_bcast:31 row_mask:0xc']
        def kr(i): a(f'v_max_u32_dpp {V(key)}, {V(key)}, {V(key)} {kred[i]} bank_mask:0xf')
        for r in range(4):
            a(f'''
            v_mul_f32_e64 {V(mu[r])}, -{V(mu[r])}, {V(rho[r])}
            v_lshlrev_b32 {V(vXF+4*r)}, 16, {V(vD+2*r)}
            v_and_b32 {V(vXF+4*r+1)}, {S(sHI)}, {V(vD+2*r)}
            v_lshlrev_b32 {V(vXF+4*r+2)}, 16, {V(vD+2*r+1)}
            v_and_b32 {V(vXF+4*r+3)}, {S(sHI)}, {V(vD+2*r+1)}
            ''')
            kr(r)
            for c in range(4): a(f'v_fma_f32 {V(vXN+4*r+c)}, {V(vXF+4*r+c)}, {V(rho[r])}, {V(mu[r])}')
        kr(4)
        ssum(sT0, (sW, 2), AM)
        for c in range(4):
            a(f'''
            v_cvt_pk_bf16_f32 {V(XP+2*c)}, {V(vXN+c)}, {V(vXN+4+c)}
            v_cvt_pk_bf16_f32 {V(XP+2*c+1)}, {V(vXN+8+c)}, {V(vXN+12+c)}
            ds_write_b64 {V(vUW)}, {V(XP+2*c,2)} offset:{c*US}
            ''')
            if c == 0: kr(5)
            if c == 1: a(f'v_mov_b32 {V(T[9])}, {S(sT0)}')
        lane63()
        a(f'ds_write_b32 {V(T[9])}, {V(key)}')
        alllanes()

    a(f's_cmp_eq_u32 {S(sROLE)}, 1\ns_cbranch_scc1 L_h_r4')
    r4_build('c'); stamp(6); normalise('c')
    a('s_branch L_b4\nL_h_r4:')
    if o['hnormfirst']:
        def mid():
            normalise('h')
            a('s_waitcnt lgkmcnt(5)'); stamp(6)
        r4_build('h', mid)
    else:
        r4_build('h'); stamp(6); normalise('h')
    a('s_setprio 0\nL_b4:')
    a(f'v_mov_b32 {V(T[9])}, {AM}\ns_waitcnt lgkmcnt(0)')
    stamp(8)
    a('s_barrier')

    def read_idx():
        a(f'''
        ds_read_b128 {V(T[0],4)}, {V(T[9])}
        ds_read_b128 {V(T[4],4)}, {V(T[9])} offset:16
        s_waitcnt lgkmcnt(0)
        v_max3_u32 {V(T[0])}, {V(T[0])}, {V(T[1])}, {V(T[2])}
        v_max3_u32 {V(T[3])}, {V(T[3])}, {V(T[4])}, {V(T[5])}
        v_max3_u32 {V(T[0])}, {V(T[0])}, {V(T[6])}, {V(T[7])}
        v_max_u32 {V(T[0])}, {V(T[0])}, {V(T[3])}
        v_readfirstlane_b32 {S(sKEY)}, {V(T[0])}
        s_andn2_b32 {S(sIDX)}, 2047, {S(sKEY)}
        s_lshr_b32 {S(sT0)}, {S(sIDX)}, 8
        s_lshr_b32 {S(sT1)}, {S(sIDX)}, 9
        s_xor_b32 {S(sT0)}, {S(sT0)}, {S(sT1)}
        s_xor_b32 {S(sT0)}, {S(sT0)}, {S(sH)}
        s_andn2_b32 {S(sOWN)}, 1, {S(sT0)}
        ''')

    def stat_addr(dst):
        a(f's_lshr_b32 {S(sT0)}, {S(sIDX)}, 2\ns_bfe_u32 {S(sT1)}, {S(sIDX)}, 0x10001\ns_and_b32 {S(sT2)}, {S(sIDX)}, 1')
        ssum(sT0, (sT0, 4), (sT1, 13), (sT2, 2), W_ST)
        a(f'v_mov_b32 {V(dst)}, {S(sT0)}')

    a(f's_cmp_eq_u32 {S(sROLE)}, 1\ns_cbranch_scc1 L_helper')

    ACC = vP; FR = vP + 16; NFR = 28
    stamp(10)
    a(f's_setprio 1\ns_cmp_eq_u32 {S(sH)}, 0\ns_cbranch_scc0 L_conv1')

    def conv(h):
        tl = tiles(h)
        ops = []
        for c0 in range(8):
            lst = [(i, c1, q - c1) for i, q in enumerate(tl) for c1 in range(q + 1)]
            have = set(); seq = []
            while lst:
                def cost(x):
                    base = (2 * (('A', x[1]) not in have) + (('B', x[2]) not in have), bool(seq) and seq[-1][0] == x[0], max(x[1], x[2]))
                    return ((x[0],) + base) if c0 == 7 else base
                x = min(lst, key=cost); lst.remove(x); seq.append(x); have.add(('A', x[1])); have.add(('B', x[2]))
            for i, c1, qp in seq: ops.append((i, ('A', c0, c1), ('B', c0, qp)))
        order = []; last = {}; lastacc = {}
        for n, (i, ak, bk) in enumerate(ops):
            lastacc[i] = n
            for k in (bk, ak):
                if k not in last: order.append(k)
                last[k] = n
        L = []
        for k in order: L += [(k, 0), (k, 1)] if k[0] == 'A' else [(k, 0)]
        endidx = {}
        for j, (k, p) in enumerate(L): endidx[k] = j + 1
        need = []; m = 0
        for (i, ak, bk) in ops:
            m = max(m, endidx[ak], endidx[bk]); need.append(m)
        free = list(range(NFR)); slot = {}
        st = dict(issued=0, done=0)
        seqpos = []
        nds = [0]
        donepos = [0]
        MAXOUT = o['maxout']; G = o['group']

        def can_issue():
            if st['issued'] >= len(L) or nds[0] - donepos[0] >= MAXOUT: return False
            k, p = L[st['issued']]
            return p == 1 or bool(free)

        def issue():
            k, p = L[st['issued']]
            if p == 0: slot[k] = free.pop(0)
            r = FR + 4 * slot[k]
            if k[0] == 'A':
                a(f'ds_read_b64 {V(r+2*p,2)}, {V(vCA2 if p else vCA)} offset:{CAS*(8*k[2] + k[1])}')
            else:
                a(f'ds_read_b128 {V(r,4)}, {V(vCB)} offset:{2*(224 + 256*k[2] - 32*k[1])}')
            st['issued'] += 1; nds[0] += 1; seqpos.append(nds[0])
        started = set(); written = set()
        while can_issue(): issue()
        for n, (i, ak, bk) in enumerate(ops):
            if need[n] > st['done']:
                while st['issued'] < need[n]:
                    assert nds[0] - donepos[0] < 15
                    issue()
                tgt = need[n]
                for m2 in range(n, min(n + G, len(ops))):
                    if need[m2] <= st['issued'] - o['minfly'] or need[m2] <= len(L) == st['issued']: tgt = max(tgt, need[m2])
                a(f's_waitcnt lgkmcnt({nds[0] - seqpos[tgt-1]})'); st['done'] = tgt; donepos[0] = seqpos[tgt - 1]
            acc = ACC + 4 * i
            cin = V(acc, 4) if i in started else '0'
            started.add(i)
            a(f'v_mfma_f32_16x16x32_bf16 {V(acc,4)}, {V(FR+4*slot[ak],4)}, {V(FR+4*slot[bk],4)}, {cin}')
            for k in (ak, bk):
                if last[k] == n: free.append(slot[k])
            budget = 2
            if n + 1 < len(ops) and need[n + 1] > st['done']: budget = 1
            for i2 in range(4):
                if i2 not in written and lastacc[i2] + 4 <= n and budget > 0 and nds[0] - donepos[0] < 15:
                    a(f'ds_write_b128 {V(vY)}, {V(ACC+4*i2,4)} offset:{i2*YTS}')
                    written.add(i2); nds[0] += 1; budget -= 1
            while budget > 0 and can_issue():
                issue(); budget -= 1
        for i2 in range(4):
            if i2 not in written: a(f'ds_write_b128 {V(vY)}, {V(ACC+4*i2,4)} offset:{i2*YTS}')
    conv(0)
    a('s_branch L_convdone\nL_conv1:')
    conv(1)
    a('L_convdone:\ns_waitcnt lgkmcnt(0)')
    stamp(9)
    a(f's_barrier\ns_cmp_lg_u32 {S(sW)}, 0\ns_cbranch_scc1 L_exit')
    a(f'''
    s_cmp_lg_u32 s2, 0
    s_cbranch_scc1 L_noep
    v_mov_b32 {V(T[10])}, 0
    v_mov_b32 {V(T[11])}, {S(sTAG)}
    s_mov_b64 exec, 1
    global_store_dword {V(T[10])}, {V(T[11])}, {S(sWS,2)} sc1
    s_mov_b64 exec, -1
    L_noep:
    ''')
    read_idx()
    a(f's_cmp_eq_u32 {S(sOWN)}, 0\ns_cbranch_scc1 L_exit\ns_setprio 3')
    F = vP
    par, xo, fpa = T[12], T[13], T[14]
    y0, y1, n0, n1, d0, d1, sg, xv, sv, x0, x1 = [vXF + i for i in range(11)]
    a(f'v_and_b32 {V(par)}, 1, {V(vL)}')
    ssum(sT0, (sIDX, 10), (sCH0, 1))
    a(f'v_lshl_add_u32 {V(xo)}, {V(par)}, 2, {S(sT0)}')
    stat_addr(T[10])
    a(f'global_load_dword {V(xv)}, {V(xo)}, {S(sX,2)}')
    a(f'global_load_dword {V(sv)}, {V(T[10])}, {S(sWS,2)} sc1')
    a(f's_lshr_b32 {S(sT0)}, {S(sCH0)}, 2')
    smul(sT0, sT0, 6144, W_FP + 3072)
    a(f'v_lshl_add_u32 {V(fpa)}, {V(vL)}, 4, {S(sT0)}')
    a(f'''
    s_lshr_b32 {S(sT1)}, {S(sIDX)}, 9
    s_mul_i32 {S(sT1)}, {S(sT1)}, {YTS}
    s_bfe_u32 {S(sT0)}, {S(sIDX)}, 0x20002
    s_mul_i32 {S(sT0)}, {S(sT0)}, {YGS}
    s_add_u32 {S(sT1)}, {S(sT1)}, {S(sT0)}
    s_bfe_u32 {S(sT0)}, {S(sIDX)}, 0x40004
    s_and_b32 {S(sT2)}, {S(sIDX)}, 3
    ''')
    ssum(sT1, (sT1, 0), (sT0, 4), (sT2, 2), YX)
    a(f'''
    v_mul_u32_u24 {V(T[0])}, {2*YCS}, {V(par)}
    v_add_u32 {V(T[0])}, {S(sT1)}, {V(T[0])}
    ds_read_b32 {V(y0)}, {V(T[0])}
    ds_read_b32 {V(y1)}, {V(T[0])} offset:{YCS}
    s_and_b32 {S(sT0)}, {S(sKEY)}, {S(sHI)}
    s_xor_b32 {S(sT1)}, {S(sT0)}, 0x80000000
    s_xor_b32 {S(sT2)}, {S(sT0)}, {S(sHI)}
    s_bitcmp1_b32 {S(sT0)}, 31
    s_cselect_b32 {S(sT0)}, {S(sT1)}, {S(sT2)}
    v_mov_b32 {V(T[2])}, 0xbfb8aa3b
    v_mul_f32 {V(sg)}, {S(sT0)}, {V(T[2])}
    v_exp_f32 {V(sg)}, {V(sg)}
    v_cmp_eq_u32 vcc, 0, {V(par)}
    v_add_f32 {V(sg)}, 1.0, {V(sg)}
    v_rcp_f32 {V(sg)}, {V(sg)}
    v_mov_b32 {V(F+20)}, 0
    v_cvt_pk_bf16_f32 {V(sg)}, {V(sg)}, {V(sg)}
    v_mov_b32 {V(F+21)}, 0
    v_and_b32 {V(sg)}, {S(sHI)}, {V(sg)}
    v_mov_b32 {V(F+22)}, {S(sTAG)}
    s_waitcnt lgkmcnt(0)
    v_mov_b32 {V(d0)}, {S(sDS)}
    v_mov_b32 {V(d1)}, {S(sDS+1)}
    v_cndmask_b32 {V(d0)}, {V(d1)}, {V(d0)}, vcc
    v_and_b32 {V(d1)}, {S(sHI)}, {V(d0)}
    v_lshlrev_b32 {V(d0)}, 16, {V(d0)}
    ''')

    def rnd2(r0, r1, t):
        a(f'v_cvt_pk_bf16_f32 {V(t)}, {V(r0)}, {V(r1)}\nv_lshlrev_b32 {V(r0)}, 16, {V(t)}\nv_and_b32 {V(r1)}, {S(sHI)}, {V(t)}')
    rnd2(y0, y1, T[0])
    a(f'''
    s_waitcnt vmcnt(0)
    v_and_b32 {V(T[1])}, {S(sHI)}, {V(sv)}
    v_lshlrev_b32 {V(T[2])}, 16, {V(sv)}
    v_rcp_f32 {V(T[1])}, {V(T[1])}
    v_lshlrev_b32 {V(x0)}, 16, {V(xv)}
    v_and_b32 {V(x1)}, {S(sHI)}, {V(xv)}
    v_sub_f32 {V(n0)}, {V(x0)}, {V(T[2])}
    v_sub_f32 {V(n1)}, {V(x1)}, {V(T[2])}
    ''')
    rnd2(n0, n1, T[0])
    a(f'v_mul_f32 {V(n0)}, {V(n0)}, {V(T[1])}\nv_mul_f32 {V(n1)}, {V(n1)}, {V(T[1])}')
    rnd2(n0, n1, T[0])
    a(f'v_mul_f32 {V(d0)}, {V(d0)}, {V(n0)}\nv_mul_f32 {V(d1)}, {V(d1)}, {V(n1)}')
    rnd2(d0, d1, T[0])
    a(f'v_add_f32 {V(y0)}, {V(y0)}, {V(d0)}\nv_add_f32 {V(y1)}, {V(y1)}, {V(d1)}')
    rnd2(y0, y1, T[0])
    if o['b6']: a('s_barrier')
    spin_init()
    a('L_ffnspin:')
    for i in range(5):
        a(f'global_load_dwordx4 {V(F+4*i,4)}, {V(fpa)}, {S(sWS,2)} offset:{i*1024 - 3072} sc1')
    a(f'''
    s_mov_b64 exec, 0xffffff
    global_load_dwordx4 {V(F+20,4)}, {V(fpa)}, {S(sWS,2)} offset:2048 sc1
    s_mov_b64 exec, -1
    s_waitcnt vmcnt(0)
    ''')
    for i in range(6): a(f'v_xor_b32 {V(T[i])}, {S(sTAG)}, {V(F+4*i+2)}')
    a(f'''
    v_or3_b32 {V(T[0])}, {V(T[0])}, {V(T[1])}, {V(T[2])}
    v_or3_b32 {V(T[3])}, {V(T[3])}, {V(T[4])}, {V(T[5])}
    v_or_b32 {V(T[0])}, {V(T[0])}, {V(T[3])}
    v_cmp_ne_u32 vcc, 0, {V(T[0])}
    s_cbranch_vccz L_ffnok
    ''')
    spin_next('L_ffnspin')
    a('L_ffnok:')
    stamp(11)
    p0, p1 = F, F + 1
    for e in range(2):
        a(f'v_add_f32 {V(F+e)}, {V(F+e)}, {V(F+4+e)}')
        a(f'v_add_f32 {V(F+8+e)}, {V(F+8+e)}, {V(F+12+e)}')
        a(f'v_add_f32 {V(F+16+e)}, {V(F+16+e)}, {V(F+20+e)}')
    for e in range(2): a(f'v_add_f32 {V(F+e)}, {V(F+e)}, {V(F+8+e)}')
    for e in range(2): a(f'v_add_f32 {V(F+e)}, {V(F+e)}, {V(F+16+e)}')
    for m in (2, 4, 8):
        for e in range(2): a(f'v_add_f32_dpp {V(F+e)}, {V(F+e)}, {V(F+e)} row_ror:{m} row_mask:0xf bank_mask:0xf')
    for pl in ('v_permlane16_swap_b32', 'v_permlane32_swap_b32'):
        for e in range(2): a(f'v_mov_b32 {V(F+4+e)}, {V(F+e)}')
        for e in range(2): a(f'{pl} {V(F+e)}, {V(F+4+e)}')
        for e in range(2): a(f'v_add_f32 {V(F+e)}, {V(F+e)}, {V(F+4+e)}')
    rnd2(p0, p1, T[0])
    for e in range(2): a(f'v_mul_f32 {V(F+e)}, {V(F+e)}, {V(sg)}')
    rnd2(p0, p1, T[0])
    a(f'v_add_f32 {V(p0)}, {V(p0)}, {V(n0)}\nv_add_f32 {V(p1)}, {V(p1)}, {V(n1)}')
    rnd2(p0, p1, T[0])
    for e in range(2): a(f'v_mul_f32 {V(F+4+e)}, 0xbfb8aa3b, {V(F+e)}')
    for e in range(2): a(f'v_exp_f32 {V(F+4+e)}, {V(F+4+e)}')
    for e in range(2): a(f'v_add_f32 {V(F+4+e)}, 1.0, {V(F+4+e)}')
    for e in range(2): a(f'v_rcp_f32 {V(F+4+e)}, {V(F+4+e)}')
    for e in range(2): a(f'v_mul_f32 {V(F+e)}, {V(F+e)}, {V(F+4+e)}')
    rnd2(p0, p1, T[0])
    a(f'v_mul_f32 {V(p0)}, {V(p0)}, {V(y0)}\nv_mul_f32 {V(p1)}, {V(p1)}, {V(y1)}')
    rnd2(p0, p1, T[0])
    a(f'''
    v_add_f32 {V(p0)}, {V(p0)}, {V(x0)}
    v_add_f32 {V(p1)}, {V(p1)}, {V(x1)}
    v_cvt_pk_bf16_f32 {V(T[0])}, {V(p0)}, {V(p1)}
    s_mov_b64 exec, 3
    global_store_dword {V(xo)}, {V(T[0])}, {S(sOUT,2)}
    s_mov_b64 exec, -1
    ''')
    if o['stamp']:
        a('s_waitcnt vmcnt(0)'); stamp(12); a('s_branch L_exit')
    else:
        a('s_endpgm')

    a('L_helper:')
    a(f'ds_read_b32 {V(T[8])}, {V(T[9])} offset:{FF - AM}')
    read_idx()
    XS = vP
    a(f'v_readfirstlane_b32 {S(sT3)}, {V(T[8])}\ns_mov_b32 {S(sPB)}, {S(sT3)}')
    a(f's_cmp_eq_u32 {S(sP1)}, 0\ns_cbranch_scc1 L_h_pre')
    a(f's_lshl_b32 {S(sT0)}, {S(sIDX)}, 10\nv_add_u32 {V(T[0])}, {S(sT0)}, {V(vXS)}')
    stat_addr(T[1])
    a(f'''
    global_load_dwordx2 {V(XS,2)}, {V(T[0])}, {S(sX,2)}
    global_load_dwordx2 {V(XS+2,2)}, {V(T[0])}, {S(sX,2)} offset:32
    global_load_dword {V(XS+4)}, {V(T[1])}, {S(sWS,2)} sc1
    ''')
    wd_dma()
    a('L_h_pre:')
    Dv = [vP + 68 + c for c in range(4)]
    a(f'''
    s_lshl_b32 {S(sT0)}, {S(sDS)}, 16
    s_and_b32 {S(sT1)}, {S(sDS)}, {S(sHI)}
    s_lshl_b32 {S(sT2)}, {S(sDS+1)}, 16
    s_and_b32 {S(sT3)}, {S(sDS+1)}, {S(sHI)}
    ''')
    for c in range(4): a(f'v_mov_b32 {V(Dv[c])}, {S(sT0+c)}')
    WF = vP + 8; DD = vP + 24; XA = vP + 40; WDF = vP + 48
    GT = [vP + 64 + i for i in range(4)]
    def ge_row(r):
        for c in range(4):
            src = XP + 2 * c + (r >> 1)
            if r & 1: a(f'v_and_b32 {V(vXN+4*r+c)}, {S(sHI)}, {V(src)}')
            else:     a(f'v_lshlrev_b32 {V(vXN+4*r+c)}, 16, {V(src)}')
        for c in range(4): a(f'v_mul_f32 {V(GT[c])}, 0xbfb8aa3b, {V(vXN+4*r+c)}')
        for c in range(4): a(f'v_exp_f32 {V(GT[c])}, {V(GT[c])}')
        for c in range(4):
            a(f'v_mul_f32 {V(vE+4*r+c)}, {V(vXN+4*r+c)}, {V(Dv[c])}')
            a(f'v_add_f32 {V(GT[c])}, 1.0, {V(GT[c])}')
        for c in range(4): a(f'v_rcp_f32 {V(GT[c])}, {V(GT[c])}')
        for c in range(4): a(f'v_mul_f32 {V(vXN+4*r+c)}, {V(vXN+4*r+c)}, {V(GT[c])}')
        for c in range(4): a(f'v_fma_f32 {V(vE+4*r+c)}, {V(vE+4*r+c)}, {V(vXN+4*r+c)}, {V(vXF+4*r+c)}')
    def masks():
        for r in range(4):
            a(f'v_add_u32 {V(T[0])}, {r}, {V(vROW)}\nv_cmp_ne_u32 {S(sM+2*r,2)}, {S(sIDX)}, {V(T[0])}')
    masks()
    a(f's_cmp_eq_u32 {S(sP1)}, 0\ns_cbranch_scc1 L_h_ge')
    a(f"s_setprio {o['ffnprio']}")
    a('s_waitcnt vmcnt(12)')
    for t in range(4): a(f'ds_write_b128 {V(vWDR)}, {V(WR+4*t,4)} offset:{1024*t}')
    for t in range(4):
        a(f'ds_read_b64_tr_b16 {V(WF+4*t,2)}, {V(vWT)} offset:{1024*t}')
        a(f'ds_read_b64_tr_b16 {V(WF+4*t+2,2)}, {V(vWT)} offset:{1024*t + 512}')
    gq = T[4]
    a('s_waitcnt vmcnt(9)')
    stamp(0)
    X = [T[2+i] for i in range(8)]
    a(f'''
    v_and_b32 {V(T[12])}, {S(sHI)}, {V(XS+4)}
    v_lshlrev_b32 {V(T[14])}, 16, {V(XS+4)}
    v_rcp_f32 {V(T[12])}, {V(T[12])}
    ''')
    for i in range(4):
        a(f'v_lshlrev_b32 {V(X[2*i])}, 16, {V(XS+i)}\nv_and_b32 {V(X[2*i+1])}, {S(sHI)}, {V(XS+i)}')
        for e in range(2): a(f'v_sub_f32 {V(X[2*i+e])}, {V(X[2*i+e])}, {V(T[14])}')
    for i in range(4): a(f'v_cvt_pk_bf16_f32 {V(XA+i)}, {V(X[2*i])}, {V(X[2*i+1])}')
    for i in range(4):
        a(f'v_lshlrev_b32 {V(X[2*i])}, 16, {V(XA+i)}\nv_and_b32 {V(X[2*i+1])}, {S(sHI)}, {V(XA+i)}')
        for e in range(2): a(f'v_mul_f32 {V(X[2*i+e])}, {V(X[2*i+e])}, {V(T[12])}')
    for i in range(4): a(f'v_cvt_pk_bf16_f32 {V(XA+i)}, {V(X[2*i])}, {V(X[2*i+1])}')
    a('s_waitcnt lgkmcnt(0)')
    for t in range(4):
        a(f'v_mfma_f32_16x16x32_bf16 {V(DD+4*t,4)}, {V(XA,4)}, {V(WF+4*t,4)}, 0')
    a(f'''
    v_mov_b32 {V(gq+2)}, {S(sTAG)}
    v_mov_b32 {V(gq+3)}, 0
    s_cmp_eq_u32 {S(sPB)}, 0
    v_add_f32 {V(gq)}, {V(DD)}, {V(DD+5)}
    v_add_f32 {V(gq+1)}, {V(DD+8)}, {V(DD+13)}
    s_mov_b64 exec, 0xffff
    s_cbranch_scc0 L_p1far
    global_store_dwordx4 {V(vP1W)}, {V(gq,4)}, {S(sWS,2)}
    s_branch L_p1done
    L_p1far:
    global_store_dwordx4 {V(vP1W)}, {V(gq,4)}, {S(sWS,2)} sc1
    L_p1done:
    s_mov_b64 exec, -1
    s_cmp_eq_u32 {S(sPROD)}, 0
    s_cbranch_scc1 L_h_ge
    ''')
    stamp(9)
    a(f'global_load_dwordx4 {V(T[0],4)}, {V(vP1R)}, {S(sWS,2)} sc1')
    a('s_waitcnt vmcnt(2)')
    for i in range(8):
        a(f'v_lshlrev_b32 {V(WDF+2*i)}, 16, {V(vWD+i)}\nv_and_b32 {V(WDF+2*i+1)}, {S(sHI)}, {V(vWD+i)}')
    spin_init()
    a(f'''
    L_hspin:
    s_waitcnt vmcnt(0)
    v_cmp_ne_u32 vcc, {S(sTAG)}, {V(T[2])}
    s_cbranch_vccz L_hok
    global_load_dwordx4 {V(T[0],4)}, {V(vP1R)}, {S(sWS,2)} sc1
    ''')
    spin_next('L_hspin')
    a('s_waitcnt vmcnt(0)\nL_hok:')
    for e in range(2): a(f'v_add_f32_dpp {V(T[e])}, {V(T[e])}, {V(T[e])} row_ror:8 row_mask:0xf bank_mask:0xf')
    for pl in ('v_permlane16_swap_b32', 'v_permlane32_swap_b32'):
        for e in range(2): a(f'v_mov_b32 {V(T[2+e])}, {V(T[e])}')
        for e in range(2): a(f'{pl} {V(T[e])}, {V(T[2+e])}')
        for e in range(2): a(f'v_add_f32 {V(T[e])}, {V(T[e])}, {V(T[2+e])}')
    a(f'''
    v_cvt_pk_bf16_f32 {V(T[2])}, {V(T[0])}, {V(T[1])}
    v_lshlrev_b32 {V(T[0])}, 16, {V(T[2])}
    v_mul_f32 {V(T[1])}, 0xbfb8aa3b, {V(T[0])}
    v_exp_f32 {V(T[1])}, {V(T[1])}
    v_and_b32 {V(T[2])}, {S(sHI)}, {V(T[2])}
    v_add_f32 {V(T[1])}, 1.0, {V(T[1])}
    v_rcp_f32 {V(T[1])}, {V(T[1])}
    s_nop 0
    v_mul_f32 {V(T[1])}, {V(T[0])}, {V(T[1])}
    v_cvt_pk_bf16_f32 {V(T[1])}, {V(T[1])}, {V(T[1])}
    v_and_b32 {V(T[1])}, {S(sHI)}, {V(T[1])}
    v_mul_f32 {V(T[1])}, {V(T[1])}, {V(T[2])}
    v_cvt_pk_bf16_f32 {V(T[1])}, {V(T[1])}, {V(T[1])}
    v_and_b32 {V(T[1])}, {S(sHI)}, {V(T[1])}
    ''')
    for i in range(8):
        for e in range(2):
            a(f"{'v_mul_f32_dpp' if i == 0 else 'v_fmac_f32_dpp'} {V(gq+e)}, {V(T[1])}, {V(WDF+2*i+e)} row_newbcast:{i} row_mask:0xf bank_mask:0xf")
    a(f'global_store_dwordx4 {V(vFPA)}, {V(gq,4)}, {S(sWS,2)} sc1')
    stamp(10)
    a('L_h_ge:\ns_setprio 0')
    for r in range(o['prerows']): ge_row(r)
    a('L_h_b5:\ns_barrier')
    YR = vP
    def epilogue(ge):
        for r in range(4):
            if ge and r >= o['prerows']: ge_row(r)
            for c in range(4):
                a(f'v_fma_f32 {V(vE+4*r+c)}, {V(YR+4*c+r)}, {V(vXN+4*r+c)}, {V(vE+4*r+c)}')
            a(f'''
            v_cvt_pk_bf16_f32 {V(vD+2*r)}, {V(vE+4*r)}, {V(vE+4*r+1)}
            v_cvt_pk_bf16_f32 {V(vD+2*r+1)}, {V(vE+4*r+2)}, {V(vE+4*r+3)}
            s_mov_b64 exec, {S(sM+2*r,2)}
            global_store_dwordx2 {V(vXG)}, {V(vD+2*r,2)}, {S(sOUT,2)} offset:{r*1024}
            s_mov_b64 exec, -1
            ''')
    for c in range(4): a(f'ds_read_b128 {V(YR+4*c,4)}, {V(vY)} offset:{c*YCS}')
    if o['b6']:
        a(f'''
        s_lshr_b32 {S(sT0)}, {S(sWI)}, 1
        s_and_b32 {S(sT1)}, {S(sT0)}, {S(sOWN)}
        s_andn2_b32 {S(sT2)}, {S(sOWN)}, {S(sT0)}
        s_cmp_eq_u32 {S(sT1)}, 0
        s_cbranch_scc1 L_h_st
        ''')
        for r in range(o['prerows'], 4): ge_row(r)
        a('s_barrier\ns_waitcnt lgkmcnt(0)')
        epilogue(False)
        a('s_branch L_h_done\nL_h_st:')
    a('s_waitcnt lgkmcnt(0)')
    epilogue(True)
    for r in range(0):
        for c in range(4):
            a(f'v_fma_f32 {V(vE+4*r+c)}, {V(YR+4*c+r)}, {V(vXN+4*r+c)}, {V(vE+4*r+c)}')
        a(f'''
        v_cvt_pk_bf16_f32 {V(vD+2*r)}, {V(vE+4*r)}, {V(vE+4*r+1)}
        v_cvt_pk_bf16_f32 {V(vD+2*r+1)}, {V(vE+4*r+2)}, {V(vE+4*r+3)}
        s_mov_b64 exec, {S(sM+2*r,2)}
        global_store_dwordx2 {V(vXG)}, {V(vD+2*r,2)}, {S(sOUT,2)} offset:{r*1024}
        s_mov_b64 exec, -1
        ''')
    if o['b6']:
        a(f'''
        s_cmp_eq_u32 {S(sT2)}, 0
        s_cbranch_scc1 L_h_done
        s_waitcnt vmcnt({o['b6cnt']})
        s_barrier
        L_h_done:
        ''')
    if o['stamp'] or o['diag'] >= 0:
        stamp(11)
        a('s_waitcnt vmcnt(0)')
        stamp(12)
    if o['diag'] >= 0:
        a('''
        s_memrealtime s[90:91]
        s_sub_u32 s88, s88, s86
        s_min_u32 s88, s88, 2000
        s_lshl_b32 s88, s88, 2
        s_waitcnt lgkmcnt(0)
        s_add_u32 s88, s88, s90
        L_diag:
        s_memrealtime s[90:91]
        s_waitcnt lgkmcnt(0)
        s_sub_u32 s90, s90, s88
        s_cmp_lt_i32 s90, 0
        s_cbranch_scc1 L_diag
        ''')
    a('L_exit:')
    if o['stamp']:
        a('v_mov_b32 v254, 0')
        for i in range(14): a(f'v_writelane_b32 v254, s{86+i}, {i}')
        a(f'global_store_dword {V(vSTA)}, v254, {S(sWS,2)}')
    a('L_end:\ns_endpgm')
    a.raw('''.section .rodata,"a"
.p2align 6
.amdhsa_kernel %s_kernel
  .amdhsa_next_free_vgpr 256
  .amdhsa_next_free_sgpr 102
  .amdhsa_accum_offset 256
  .amdhsa_group_segment_fixed_size 0
  .amdhsa_kernarg_size 136
  .amdhsa_user_sgpr_count 2
  .amdhsa_user_sgpr_kernarg_segment_ptr 1
  .amdhsa_system_sgpr_workgroup_id_x 1
.end_amdhsa_kernel''' % KN)
    return a.text()


if __name__ == '__main__':
    out = sys.argv[1]
    opt = {}
    for kv in sys.argv[2:]:
        k, val = kv.split('='); opt[k] = int(val, 0)
    open(out, 'w').write(generate(**opt))
```

```python
import sys
from asmlib import *

KN = 'recurrent_scan__ssm_conv_s4__moe_arch_mod__prompt'

DEFAULTS = dict(stamp=0, cyc=0, force_slow=0, prefetch=1, wpf=1, spinmax=1 << 16, diag=-1,
                maxout=15, group=3, minfly=6, b6=1, b6cnt=1, nb=6, wdearly=0, wpfb3=1, hnormfirst=1, ffnprio=2, tlb=0, tlbsh=16, wnt=0, xnt=0, pnt=0, prerows=1, jc=4, jh=5, jf=12, p1nt=1, pfirst=0, cpf=1, cpfn=5, hfetch=0, cearly=1, call=0, roll=0, early=1, xlds=1, pro=13, rg=3, wreg=1, dsg=4, dslate=0, hprio=3, hprio2=1)

RS = 2064
STAGE = 0
R4 = 0; R4S = 18560; CAS = 288
YX = 74240; YCS = 5120; YTS = 1280; YGS = 320
U = 109440; US = 4576
TAB = 127744; TS = 1552
WL = 133952; WL1 = 8320
SL = 150528
AM = 158720
FF = 158752
TG = 158768
PF = 158784
FP = 158848
LDS_BYTES = 159872
W_ST = 0x1000; W_FL = 0x6000; W_FP = 0x10000; W_P1 = 0xD0000; W_IN = 0x100000; W_STAMP = 0x800000

sX, sARE, sAIM, sBRE, sBIM, sCRE, sCIM, sLDT = 4, 6, 8, 10, 12, 14, 16, 18
sDSK, sWR, sWG, sWU, sWD, sOUT, sDBG, sWS = 20, 24, 26, 28, 30, 32, 34, 36
sW, sK, sJ, sCGL, sH, sCH0, sT, sXCC, sTAG, sTAGX = 38, 39, 40, 41, 42, 43, 44, 45, 46, 47
sPB, sDS = 48, 50
sONES, sF8, sPROD, sIDX, sKEY, sCNT = 52, 53, 54, 55, 56, 57
sT0, sT1, sT2, sT3 = 58, 59, 60, 61
sOWN, sINB = 62, 63
sM = 64
sH8 = 72
sHI = 80
sSTP = 82
sWI = 84
sP1 = 85
sCM = 78
sA = 76; sR = 77
sROLE = 81

vL = 1
vGA = 2
vSEL = 10
vR4W, vUW, vST0, vST1, vFL, vIN, vXG, vXC = 16, 17, 18, 19, 20, 21, 22, 23
vKA, vKB, vPD, vY = 24, 25, 26, 27
vA0, vA1, vA2, vA3, vA4, vA5, vA6, vA7 = 28, 29, 30, 31, 32, 33, 34, 35
vEP, vPFD, vROW, vSTA = 36, 37, 38, 39
vD = 40
vG = 48
vXF = 56
vXN = 72
vE = 88
vP = 104
vB0, vB1, vB2, vB3, vB4, vB5 = 224, 225, 226, 227, 228, 229
vWD = 232
vT = 240
vCA, vCA2, vCB, vFLO = vA0, vA1, vA2, vA3
vTW1, vTW2, vTW3, vTW4, vWT, vWDA, vFPA, vXS = vA0, vA1, vA2, vA3, vA4, vA5, vA6, vA7
vWS0, vWS1, vP1W, vP1R, vFFW, vSTP = vB0, vB1, vB2, vB3, vB4, vB5
vWD1, vPFW = 230, 231
vTLB = 223
vWDR = 222; vP1F = 221; vXW = 220; vXR = 219


def tiles(h): return [2 * i + ((i ^ h) & 1) for i in range(4)]


def generate(**opt):
    o = dict(DEFAULTS); o.update(opt)
    a = Asm()
    V = v; S = s

    def stamp(i):
        if o['diag'] == i:
            a('s_memrealtime s[88:89]\ns_waitcnt lgkmcnt(0)')
        if not o['stamp'] or (o['stamp'] == 2 and i != 12): return
        a(f"{'s_memtime' if o['cyc'] else 's_memrealtime'} {S(sSTP,2)}\ns_waitcnt lgkmcnt(0)\ns_mov_b32 s{86+i}, {S(sSTP)}")

    def cmul(d, x, y):
        a(f'v_pk_mul_f32 {V(d,2)}, {V(x,2)}, {V(y,2)} op_sel:[1,1] op_sel_hi:[1,0]')
        a(f'v_pk_fma_f32 {V(d,2)}, {V(x,2)}, {V(y,2)}, {V(d,2)} op_sel:[0,0,0] op_sel_hi:[0,1,1] neg_lo:[0,0,1]')

    def lane63(): a('s_mov_b32 exec_lo, 0\ns_mov_b32 exec_hi, 0x80000000')
    def alllanes(): a('s_mov_b64 exec, -1')
    def spin_init(): a(f"s_mov_b32 {S(sCNT)}, {o['spinmax']}")
    def spin_next(lbl): a(f's_sub_u32 {S(sCNT)}, {S(sCNT)}, 1\ns_cmp_lg_u32 {S(sCNT)}, 0\ns_cbranch_scc1 {lbl}')

    def ssum(dst, *terms):
        first = True; const = 0
        for t in terms:
            if isinstance(t, int): const += t; continue
            r, sh = t
            if first:
                a(f's_lshl_b32 {S(dst)}, {S(r)}, {sh}' if sh else f's_mov_b32 {S(dst)}, {S(r)}'); first = False
            elif sh:
                a(f's_lshl_b32 {S(sT3)}, {S(r)}, {sh}\ns_add_u32 {S(dst)}, {S(dst)}, {S(sT3)}')
            else:
                a(f's_add_u32 {S(dst)}, {S(dst)}, {S(r)}')
        if const: a(f's_add_u32 {S(dst)}, {S(dst)}, {const}')

    def smul(dst, r, k, const=0):
        a(f's_mul_i32 {S(dst)}, {S(r)}, {k}')
        if const: a(f's_add_u32 {S(dst)}, {S(dst)}, {const}')

    T = [vT + i for i in range(16)]

    a.raw('; @launch grid=(256,1,1) block=(512,1,1) lds=%d' % LDS_BYTES)
    a.raw('.amdgcn_target "amdgcn-amd-amdhsa--gfx950"\n.text\n.globl %s_kernel\n.p2align 8\n.type %s_kernel,@function\n%s_kernel:' % (KN, KN, KN))
    a('''
    s_cmp_ge_u32 s2, 256
    s_cbranch_scc1 L_end
    s_load_dwordx16 s[4:19], s[0:1], 0
    s_load_dwordx16 s[20:35], s[0:1], 64
    s_load_dwordx2 s[36:37], s[0:1], 128
    ''')
    if o['cpf']:
        a.comment('pull the rest of this kernel code into L2: a few lines per workgroup of each XCD class')
        a(f'''
        s_getpc_b64 {S(sPB,2)}
        s_lshr_b32 {S(sT0)}, s2, 3
        s_mul_i32 {S(sT0)}, {S(sT0)}, {128*o['cpfn']}
        v_lshl_add_u32 {V(vTLB)}, v0, 7, {S(sT0)}
        v_min_u32 {V(vTLB)}, L_end - L_cpf, {V(vTLB)}
        v_cmp_gt_u32 vcc, {o['cpfn']}, v0
        s_and_saveexec_b64 {S(sM,2)}, vcc
        s_cbranch_execz L_cpf
        global_load_dword {V(vTLB)}, {V(vTLB)}, {S(sPB,2)}
        L_cpf:
        s_mov_b64 exec, -1
        ''')
    if o['diag'] >= 0: a('s_memrealtime s[86:87]')
    if o['stamp']: a(f"{'s_memtime' if o['cyc'] else 's_memrealtime'} s[100:101]")
    a(f'''
    v_lshrrev_b32 {V(T[0])}, 6, v0
    v_and_b32 {V(vL)}, 63, v0
    v_readfirstlane_b32 {S(sW)}, {V(T[0])}
    s_and_b32 {S(sK)}, s2, 7
    s_lshr_b32 {S(sJ)}, s2, 3
    s_and_b32 {S(sCGL)}, {S(sJ)}, 15
    s_lshr_b32 {S(sH)}, {S(sJ)}, 4
    s_and_b32 {S(sWI)}, {S(sW)}, 3
    s_cmp_ge_u32 {S(sW)}, 4
    s_cselect_b32 {S(sROLE)}, 1, 0
    ''')
    ssum(sCH0, (sK, 6), (sCGL, 2))
    for i in range(7): a(f'v_mov_b32 {V(vP+i)}, 0')
    a(f's_add_u32 {S(sT1)}, {S(sCH0)}, {S(sWI)}')
    a(f's_lshr_b32 {S(sT2)}, {S(sW)}, 2')
    ssum(sT0, (sT1, 8), (sT2, 7))
    a(f'v_lshl_add_u32 {V(T[1])}, {V(vL)}, 1, {S(sT0)}')
    a(f's_lshl_b32 {S(sT1)}, {S(sT1)}, 1')
    a(f'v_mov_b32 {V(T[2])}, {S(sT1)}')
    if o['stamp']:
        ssum(sT1, (2, 11), (sW, 8), W_STAMP)
        a(f'v_lshl_add_u32 {V(vSTA)}, {V(vL)}, 2, {S(sT1)}')
        for i in range(14): a(f's_mov_b32 s{86+i}, 0')

    def param_loads():
        for i, p in enumerate((sARE, sAIM, sBRE, sBIM, sCRE, sCIM)):
            a(f"global_load_short_d16_hi {V(vP+i)}, {V(T[1])}, {S(p,2)}{' nt' if o['pnt'] else ''}")
        a(f'global_load_short_d16_hi {V(vP+6)}, {V(T[2])}, {S(sLDT,2)}')

    a(f's_cmp_eq_u32 {S(sROLE)}, 1\ns_cbranch_scc1 L_h_load')
    ssum(sT0, (sJ, 16), (sW, 14), (sK, 7))
    a(f'''
    v_lshrrev_b32 {V(T[3])}, 3, {V(vL)}
    v_and_b32 {V(T[4])}, 7, {V(vL)}
    v_lshlrev_b32 {V(T[3])}, 10, {V(T[3])}
    v_lshl_add_u32 {V(T[3])}, {V(T[4])}, 4, {V(T[3])}
    v_add_u32 {V(T[3])}, {S(sT0)}, {V(T[3])}
    v_add_u32 {V(T[4])}, 8192, {V(T[3])}
    s_waitcnt lgkmcnt(0)
    ''')
    if o['stamp']: a('s_mov_b32 s99, s100')
    if o['diag'] >= 0: a('s_mov_b32 s88, s86')
    stamp(0)
    XNT = ' nt' if o['xnt'] else ''
    PF1 = o['pfirst']
    if PF1: param_loads()
    a(f'global_load_dwordx4 {V(vD,4)}, {V(T[3])}, {S(sX,2)}{XNT}')
    a(f'global_load_dwordx4 {V(vD+4,4)}, {V(T[4])}, {S(sX,2)}{XNT}')
    if not PF1: param_loads()
    a('s_branch L_init')
    a('L_h_load:')
    ssum(sT0, (2, 13), (sWI, 11))
    a(f'''
    v_and_b32 {V(T[3])}, 31, {V(vL)}
    v_lshlrev_b32 {V(T[3])}, 4, {V(T[3])}
    v_lshrrev_b32 {V(T[4])}, 5, {V(vL)}
    v_lshl_add_u32 {V(T[4])}, {V(T[4])}, 10, {V(T[3])}
    v_add_u32 {V(T[4])}, {S(sT0)}, {V(T[4])}
    v_mov_b32 {V(T[5])}, 0
    s_waitcnt lgkmcnt(0)
    ''')
    if o['stamp']: a('s_mov_b32 s99, s100')
    if o['diag'] >= 0: a('s_mov_b32 s88, s86')
    stamp(0)
    if PF1: param_loads()
    a(f'''
    global_load_dwordx4 {V(vG,4)}, {V(T[3])}, {S(sWR,2)}
    global_load_dwordx4 {V(vG+4,4)}, {V(T[3])}, {S(sWR,2)} offset:512
    global_load_dwordx4 {V(vD,4)}, {V(T[4])}, {S(sX,2)}{XNT}
    global_load_dwordx4 {V(vD+4,4)}, {V(T[4])}, {S(sX,2)} offset:512{XNT}
    global_load_dword {V(vEP)}, {V(T[5])}, {S(sWS,2)} sc1
    ''')
    if not PF1: param_loads()

    a('L_init:')
    a(f'''
    v_mov_b32 {V(T[6])}, 0
    v_mov_b32 {V(T[7])}, 0x3f80
    s_lshl_b32 {S(sT0)}, {S(sW)}, 8
    s_mov_b32 m0, {S(sT0)}
    v_and_b32 {V(T[8])}, 127, v0
    ds_write_addtid_b32 {V(T[7])} offset:{STAGE}
    v_min_u32 {V(T[8])}, 119, {V(T[8])}
    v_lshrrev_b32 {V(T[9])}, 7, v0
    v_mul_u32_u24 {V(T[10])}, {US}, {V(T[9])}
    v_lshl_add_u32 {V(T[10])}, {V(T[8])}, 2, {V(T[10])}
    v_add_u32 {V(T[10])}, {U}, {V(T[10])}
    ds_write_b32 {V(T[10])}, {V(T[6])}
    s_cmp_lg_u32 {S(sW)}, 0
    s_cbranch_scc1 L_init2
    v_bfe_u32 {V(T[9])}, {V(vL)}, 1, 2
    v_mul_u32_u24 {V(T[9])}, {TS}, {V(T[9])}
    v_and_b32 {V(T[8])}, 1, {V(vL)}
    v_lshl_add_u32 {V(T[9])}, {V(T[8])}, 2, {V(T[9])}
    v_add_u32 {V(T[9])}, {TAB}, {V(T[9])}
    v_and_b32 {V(T[8])}, 15, {V(vL)}
    v_lshlrev_b32 {V(T[8])}, 2, {V(T[8])}
    v_add_u32 {V(T[8])}, {FF}, {V(T[8])}
    s_mov_b64 exec, 0xffff
    ds_write_b32 {V(T[9])}, {V(T[6])}
    ds_write_b32 {V(T[8])}, {V(T[6])}
    s_mov_b64 exec, -1
    L_init2:
    s_waitcnt lgkmcnt(0)
    s_barrier
    s_lshl_b32 {S(sT0)}, {S(sCH0)}, 1
    s_load_dwordx2 {S(sDS,2)}, {S(sDSK,2)}, {S(sT0)}
    s_getreg_b32 {S(sXCC)}, hwreg(HW_REG_XCC_ID, 0, 4)
    s_mov_b32 {S(sONES)}, 0x3f803f80
    s_mov_b32 {S(sHI)}, 0xffff0000
    s_lshr_b32 {S(sT0)}, {S(sW)}, 2
    s_xor_b32 {S(sT0)}, {S(sT0)}, {S(sWI)}
    s_xor_b32 {S(sT0)}, {S(sT0)}, {S(sH)}
    s_xor_b32 {S(sT0)}, {S(sT0)}, 1
    s_and_b32 {S(sT0)}, {S(sT0)}, 1
    s_lshl_b32 {S(sT)}, {S(sWI)}, 1
    s_add_u32 {S(sT)}, {S(sT)}, {S(sT0)}
    s_lshr_b32 {S(sT0)}, {S(sJ)}, 3
    s_and_b32 {S(sT1)}, {S(sJ)}, 7
    ''')
    ssum(sA, (sT0, 3), (sK, 0))
    a(f's_mov_b32 {S(sR)}, {S(sT1)}')
    ssum(sF8, (sA, 3), (sR, 0))
    a(f'''
    s_cmp_lt_u32 {S(sA)}, 22
    s_cselect_b32 {S(sP1)}, 1, 0
    s_cmp_lt_u32 {S(sF8)}, 172
    s_cselect_b32 {S(sPROD)}, 1, 0
    s_cselect_b32 {S(sF8)}, {S(sF8)}, {S(sJ)}
    s_lshl_b32 {S(sT0)}, {S(sK)}, 1
    s_lshl_b32 {S(sCM)}, 0x00030003, {S(sT0)}
    s_mov_b32 {S(sCM+1)}, {S(sCM)}
    ''')

    def sel_setup(tag, toff, GA, SEL, R4W, first):
        pos = [vXF + i for i in range(7)]
        tt = 'v0'
        if toff:
            a(f'v_add_u32 {V(T[5])}, {toff}, v0'); tt = V(T[5])
        a(f'v_lshlrev_b32 {V(T[0])}, 2, {tt}')
        if first: a(f's_cmp_eq_u32 {S(sW)}, 0\ns_cbranch_scc1 L_pos0{tag}')
        for i in range(7): a(f'v_add_u32 {V(pos[i])}, {i-3}, {V(T[0])}')
        for i in range(7): a(f'v_cvt_f32_u32 {V(pos[i])}, {V(pos[i])}')
        for i in range(0, 7, 2):
            a(f'v_cvt_pk_bf16_f32 {V(T[8+i//2])}, {V(pos[i])}, {V(pos[min(i+1,6)])}')
        a(f'v_mov_b32 {V(T[1])}, {4 - 0x4280}')
        for i in range(7):
            a(f'v_bfe_u32 {V(pos[i])}, {V(T[8+i//2])}, {16*(i&1)}, 16')
            a(f'v_add_u32 {V(pos[i])}, {V(T[1])}, {V(pos[i])}')
        if first:
            a(f's_branch L_pos_done{tag}\nL_pos0{tag}:')
            for i in range(7): a(f'v_add_u32 {V(pos[i])}, {i+1}, {V(T[0])}')
            a(f'L_pos_done{tag}:')
        b1, b2 = T[1], T[2]
        a(f'''
        v_and_b32 {V(b1)}, -2, {V(pos[2])}
        v_add_u32 {V(b1)}, -2, {V(b1)}
        v_and_b32 {V(b2)}, -2, {V(pos[3])}
        v_add_u32 {V(T[3])}, {V(b1)}, {V(b1)}
        v_add_u32 {V(T[4])}, {V(b2)}, {V(b2)}
        ''')
        for c in range(4):
            a(f'v_add_u32 {V(GA+2*c)}, {TAB + c*TS}, {V(T[3])}')
            a(f'v_add_u32 {V(GA+2*c+1)}, {TAB + c*TS}, {V(T[4])}')
        for i in range(3): a(f'v_sub_u32 {V(pos[i])}, {V(pos[i])}, {V(b1)}')
        for i in range(3, 7): a(f'v_sub_u32 {V(pos[i])}, {V(pos[i])}, {V(b2)}')
        a(f's_movk_i32 {S(sT0)}, 0x0202\nv_mov_b32 {V(T[3])}, 0x0100')
        for i in range(7): a(f'v_mad_u32_u24 {V(pos[i])}, {V(pos[i])}, {S(sT0)}, {V(T[3])}')
        for dst, lo, hi in ((0, 1, 0), (1, 2, 1), (2, 3, 2), (3, 4, 3), (4, 5, 4), (5, 6, 5)):
            a(f'v_lshl_or_b32 {V(SEL+dst)}, {V(pos[hi])}, 16, {V(pos[lo])}')
        a(f'v_add_u32 {V(SEL+2)}, 0x{(2*0x0202 - 2*0x02020000) & 0xffffffff:x}, {V(SEL+2)}')
        a(f'''
        v_and_b32 {V(T[0])}, -4, {tt}
        v_lshlrev_b32 {V(T[0])}, 2, {V(T[0])}
        v_lshl_add_u32 {V(R4W)}, {tt}, 5, {V(T[0])}
        v_add_u32 {V(R4W)}, {R4 + 144}, {V(R4W)}
        ''')
    GA2, SEL2, R4W2 = vE, vE + 8, vE + 14
    if not o['call']: sel_setup('a', 0, vGA, vSEL, vR4W, True)
    a(f's_lshl_b32 {S(sT0)}, {S(sT)}, 6')
    a(f'v_add_u32 {V(T[0])}, {S(sT0)}, {V(vL)}')
    ssum(sINB, (sK, 18), (sCGL, 14), W_IN)
    ssum(sT1, (sK, 9), W_FL)
    ssum(sT2, (sK, 5), W_ST + 12)
    a(f'''
    v_lshlrev_b32 {V(vROW)}, 2, {V(T[0])}
    v_lshlrev_b32 {V(vUW)}, 3, {V(T[0])}
    v_add_u32 {V(vUW)}, {U + 480}, {V(vUW)}
    v_lshlrev_b32 {V(vST0)}, 4, {V(T[0])}
    v_add_u32 {V(vST1)}, {W_ST + 8192}, {V(vST0)}
    v_add_u32 {V(vST0)}, {W_ST}, {V(vST0)}
    s_lshl_b32 {S(sT0)}, {S(sCH0)}, 1
    v_lshl_add_u32 {V(vXG)}, {V(T[0])}, 12, {S(sT0)}
    v_lshrrev_b32 {V(T[1])}, 2, {V(T[0])}
    v_lshl_add_u32 {V(vFL)}, {V(T[1])}, 2, {S(sT1)}
    v_and_b32 {V(T[2])}, 3, {V(vL)}
    v_lshl_add_u32 {V(T[2])}, {V(T[2])}, 4, {S(sINB)}
    v_lshl_add_u32 {V(vIN)}, {V(T[1])}, 7, {V(T[2])}
    v_lshrrev_b32 {V(T[1])}, 4, {V(T[0])}
    v_lshl_add_u32 {V(vXC)}, {V(T[1])}, 8, {S(sT2)}
    ''')
    smul(sT1, sWI, 3072, WL)
    a(f'''
    v_and_b32 {V(T[0])}, 31, {V(vL)}
    v_lshrrev_b32 {V(T[1])}, 5, {V(vL)}
    s_lshl_b32 {S(sT0)}, {S(sW)}, 8
    v_lshl_add_u32 {V(T[2])}, {V(T[1])}, 4, {S(sT0)}
    s_movk_i32 {S(sT0)}, {RS}
    v_mad_u32_u24 {V(vKB)}, {V(T[0])}, {S(sT0)}, {V(T[2])}
    v_add_u32 {V(T[3])}, -16, {V(T[0])}
    v_cmp_lt_u32 vcc, 20, {V(T[0])}
    v_lshl_add_u32 {V(vPD)}, {V(vL)}, 4, {S(sT1)}
    v_cndmask_b32 {V(T[3])}, {V(T[0])}, {V(T[3])}, vcc
    v_mad_u32_u24 {V(vKA)}, {V(T[3])}, {S(sT0)}, {V(T[2])}
    v_add_u32 {V(vKA)}, {STAGE + 32*RS}, {V(vKA)}
    v_and_b32 {V(T[5])}, 15, {V(vL)}
    v_lshrrev_b32 {V(T[6])}, 4, {V(vL)}
    s_cmp_eq_u32 {S(sROLE)}, 1
    s_cbranch_scc1 L_h_setup
    ''')

    slw, slw1, slr, slr1, ina, ina1, tga, pfa_c = [vXN + i for i in range(8)]
    ssum(sT0, (sW, 11), SL)
    a(f'''
    v_lshrrev_b32 {V(T[0])}, 3, {V(vL)}
    v_and_b32 {V(T[1])}, 7, {V(vL)}
    v_xor_b32 {V(T[2])}, {V(T[6])}, {V(T[1])}
    v_lshl_add_u32 {V(T[2])}, {V(T[2])}, 4, {S(sT0)}
    v_lshl_add_u32 {V(slw)}, {V(T[0])}, 7, {V(T[2])}
    v_xor_b32 {V(slw1)}, 64, {V(slw)}
    v_and_b32 {V(T[2])}, 3, {V(vL)}
    v_bfe_u32 {V(T[3])}, {V(vL)}, 2, 1
    v_lshl_add_u32 {V(T[2])}, {V(T[2])}, 1, {V(T[3])}
    v_xor_b32 {V(T[3])}, {V(T[6])}, {V(T[2])}
    v_lshl_add_u32 {V(T[3])}, {V(T[3])}, 4, {S(sT0)}
    v_lshl_add_u32 {V(T[3])}, {V(T[2])}, 8, {V(T[3])}
    v_and_b32 {V(T[4])}, 1, {V(T[0])}
    v_lshl_add_u32 {V(slr)}, {V(T[4])}, 3, {V(T[3])}
    v_xor_b32 {V(slr1)}, 64, {V(slr)}
    ''')
    ssum(sT0, (sK, 18), (sJ, 9), (sW, 7), W_IN)
    a(f'''
    v_lshl_add_u32 {V(T[1])}, {V(T[1])}, 4, {S(sT0)}
    v_lshl_add_u32 {V(ina)}, {V(T[0])}, 14, {V(T[1])}
    v_add_u32 {V(ina1)}, 0x20000, {V(ina)}
    ''')
    ssum(sT0, (sK, 9), (sJ, 4), (sW, 2), W_FL)
    a(f'v_mov_b32 {V(vFLO)}, {S(sT0)}')
    ssum(sT0, (sW, 2), TG)
    a(f'v_mov_b32 {V(tga)}, {S(sT0)}')
    a('s_waitcnt vmcnt(2)\ns_branch L_kgen' if PF1 else 's_branch L_c_slice')

    a('L_h_setup:')
    ssum(sT1, (sWI, 2), FF)
    a(f'''
    v_mov_b32 {V(vFFW)}, {S(sT1)}
    s_lshr_b32 {S(sT1)}, {S(sWI)}, 1
    s_and_b32 {S(sT2)}, {S(sWI)}, 1
    ''')
    ssum(sT0, (2, 5), (sT1, 4), (sT2, 13), W_ST)
    a(f'v_mov_b32 {V(vSTP)}, {S(sT0)}')
    rk, pfi = vXN, vXN + 8
    ssum(sT0, (2, 3), (sWI, 1))
    a(f's_sub_u32 {S(sT0)}, 0xffff, {S(sT0)}\nv_sub_u32 {V(rk)}, {S(sT0)}, {V(T[1])}')
    ssum(sT0, (sH, 13), (sWI, 11), (sINB, 0))
    a(f'v_lshl_add_u32 {V(pfi)}, {V(T[5])}, 7, {S(sT0)}')
    if PF1: a('s_waitcnt vmcnt(5)')

    def table_setup():
        smul(sT0, sWI, TS, TAB + 8)
        a(f'''
        v_and_b32 {V(T[0])}, 31, {V(vL)}
        v_lshrrev_b32 {V(T[1])}, 5, {V(vL)}
        v_lshl_add_u32 {V(T[2])}, {V(T[1])}, 3, {S(sT0)}
        v_lshl_add_u32 {V(vTW1)}, {V(T[0])}, 4, {V(T[2])}
        v_sub_u32 {V(T[2])}, 3, {V(T[1])}
        v_lshlrev_b32 {V(T[2])}, {V(T[2])}, {V(T[0])}
        v_lshl_add_u32 {V(T[3])}, {V(T[1])}, 8, {S(sT0)}
        v_add_u32 {V(T[3])}, 512, {V(T[3])}
        v_add_u32 {V(vTW2)}, {V(T[2])}, {V(T[3])}
        v_mul_u32_u24 {V(T[2])}, 124, {V(T[1])}
        v_add3_u32 {V(vTW3)}, {V(vTW2)}, {V(T[2])}, 4
        v_lshl_add_u32 {V(vTW4)}, {V(T[0])}, 1, {V(T[3])}
        v_add_u32 {V(vTW4)}, 512, {V(vTW4)}
        ''')

    def wsrc_setup():
        ssum(sT0, (sA, 7), (sWI, 5))
        ssum(sT1, (sF8, 13), (sWI, 8), 4096)
        ssum(sT2, (sF8, 10), W_P1)
        a(f'''
        s_min_u32 {S(sT0)}, {S(sT0)}, 2720
        v_lshrrev_b32 {V(T[6])}, 1, {V(vL)}
        v_lshl_add_u32 {V(T[6])}, {S(sR)}, 6, {V(T[6])}
        v_and_b32 {V(T[7])}, 1, {V(vL)}
        v_lshl_add_u32 {V(T[7])}, {V(T[7])}, 4, {S(sT0)}
        s_movk_i32 {S(sT0)}, 2752
        v_mad_u32_u24 {V(vWS0)}, {V(T[6])}, {S(sT0)}, {V(T[7])}
        v_add_u32 {V(vWS1)}, {32*2752}, {V(vWS0)}
        v_lshl_add_u32 {V(vWDA)}, {V(vL)}, 2, {S(sT1)}
        v_lshl_add_u32 {V(vP1R)}, {V(vL)}, 4, {S(sT2)}
        v_lshl_add_u32 {V(vP1F)}, {V(vL)}, 7, {S(sT2)}
        ''')

    def ffn_setup():
        smul(sT0, sWI, YTS, YX)
        ssum(sT1, (sWI, 12), WL)
        a(f'''
        v_and_b32 {V(T[2])}, 3, {V(vL)}
        v_lshrrev_b32 {V(T[3])}, 2, {V(vL)}
        v_mul_u32_u24 {V(T[4])}, {YGS}, {V(T[2])}
        v_lshl_add_u32 {V(T[4])}, {V(T[3])}, 4, {V(T[4])}
        v_add_u32 {V(vY)}, {S(sT0)}, {V(T[4])}
        v_lshl_add_u32 {V(T[2])}, {V(T[2])}, 3, {S(sT1)}
        v_lshl_add_u32 {V(vWT)}, {V(T[3])}, 5, {V(T[2])}
        v_lshl_add_u32 {V(vWDR)}, {V(vL)}, 4, {S(sT1)}
        v_and_b32 {V(T[2])}, 255, v0
        v_lshrrev_b32 {V(T[4])}, 1, {V(T[2])}
        v_mul_u32_u24 {V(T[4])}, 6144, {V(T[4])}
        v_and_b32 {V(T[3])}, 1, {V(vL)}
        v_lshl_add_u32 {V(T[4])}, {V(T[3])}, 4, {V(T[4])}
        ''')
        ssum(sT1, (sF8, 5), W_FP)
        a(f'v_add_u32 {V(vFPA)}, {S(sT1)}, {V(T[4])}')
        ssum(sT0, (sA, 13), (sWI, 11), (sR, 7), W_P1)
        a(f'''
        s_lshl_b32 {S(sT1)}, {S(sR)}, 7
        v_and_b32 {V(T[2])}, 31, {V(vL)}
        v_lshl_add_u32 {V(vXS)}, {V(T[2])}, 2, {S(sT1)}
        s_lshl_b32 {S(sT1)}, {S(sWI)}, 8
        s_add_u32 {S(sT1)}, {S(sT1)}, {FP}
        v_lshl_add_u32 {V(vXW)}, {V(vL)}, 2, {S(sT1)}
        v_lshrrev_b32 {V(T[2])}, 4, {V(vL)}
        v_lshl_add_u32 {V(T[2])}, {V(T[2])}, 3, {S(sT1)}
        v_lshl_add_u32 {V(vXR)}, {V(T[3])}, 6, {V(T[2])}
        v_bfe_u32 {V(T[2])}, {V(vL)}, 3, 1
        v_and_b32 {V(T[3])}, 7, {V(vL)}
        v_lshl_add_u32 {V(T[3])}, {V(T[3])}, 4, {S(sT0)}
        v_lshl_add_u32 {V(vP1W)}, {V(T[2])}, 10, {V(T[3])}
        ''')

    def conv_setup():
        a(f'v_and_b32 {V(T[5])}, 15, {V(vL)}\nv_lshrrev_b32 {V(T[6])}, 4, {V(vL)}')
        smul(sT0, sW, R4S, R4)
        a(f'v_lshlrev_b32 {V(T[3])}, 3, {V(T[6])}\nv_sub_u32 {V(T[3])}, {V(T[5])}, {V(T[3])}')
        for reg, k in ((vCA, 32), (vCA2, 28)):
            a(f'''
            v_add_u32 {V(T[4])}, {k}, {V(T[3])}
            v_lshrrev_b32 {V(T[7])}, 4, {V(T[4])}
            v_lshl_add_u32 {V(reg)}, {V(T[4])}, 3, {S(sT0)}
            v_lshl_add_u32 {V(reg)}, {V(T[7])}, 4, {V(reg)}
            ''')
        smul(sT0, sW, US, U)
        a(f'''
        v_lshl_add_u32 {V(T[3])}, {V(T[6])}, 4, {S(sT0)}
        v_lshl_add_u32 {V(vCB)}, {V(T[5])}, 5, {V(T[3])}
        ''')
        smul(sT0, sW, YCS, YX)
        a(f'''
        v_mul_u32_u24 {V(T[3])}, {YGS}, {V(T[6])}
        v_lshl_add_u32 {V(T[3])}, {V(T[5])}, 4, {V(T[3])}
        v_add_u32 {V(vY)}, {S(sT0)}, {V(T[3])}
        ''')

    def slice_work():
        a('s_waitcnt vmcnt(0)' if PF1 else 's_waitcnt vmcnt(7)')
        stamp(1)
        a(f'''
        ds_write_b128 {V(slw)}, {V(vD,4)}
        ds_write_b128 {V(slw1)}, {V(vD+4,4)} offset:1024
        ds_read_b64 {V(vG,2)}, {V(slr)}
        ds_read_b64 {V(vG+2,2)}, {V(slr)} offset:128
        ds_read_b64 {V(vG+4,2)}, {V(slr1)}
        ds_read_b64 {V(vG+6,2)}, {V(slr1)} offset:128
        s_waitcnt lgkmcnt(0)
        global_store_dwordx4 {V(ina)}, {V(vG,4)}, {S(sWS,2)}
        global_store_dwordx4 {V(ina1)}, {V(vG+4,4)}, {S(sWS,2)}
        ''')


    S1, S2, S3, S4 = vXF, vXF + 1, vXF + 2, vXF + 3

    def red32(regs):
        for m in ('row_shr:1', 'row_shr:2', 'row_shr:4', 'row_shr:8'):
            for r in regs: a(f'v_add_f32_dpp {V(r)}, {V(r)}, {V(r)} {m} row_mask:0xf bank_mask:0xf')
        for r in regs: a(f'v_add_f32_dpp {V(r)}, {V(r)}, {V(r)} row_bcast:15 row_mask:0xa bank_mask:0xf')

    def ln_work():
        for r in (S1, S2, S3, S4): a(f'v_mov_b32 {V(r)}, 0')
        NP = 0 if PF1 else 7
        a(f's_setprio 2\ns_waitcnt vmcnt({3 + NP})')
        for i in range(8): a(f'v_dot2_f32_bf16 {V(S4)}, {V(vG+i)}, {S(sONES)}, {V(S4)}')
        red32([S4])
        a(f's_waitcnt vmcnt({1 + NP})')
        stamp(1)
        nlate = 0
        if o['prefetch']:
            a('s_mov_b64 exec, 0xffff')
            a(f'global_load_dword {V(vPFD)}, {V(pfi)}, {S(sWS,2)} nt'); nlate += 1
            alllanes()
        for i in range(8):
            a(f'v_dot2_f32_bf16 {V(S1)}, {V(vD+i)}, {S(sONES)}, {V(S1)}')
            a(f'v_dot2_f32_bf16 {V(S2)}, {V(vD+i)}, {V(vD+i)}, {V(S2)}')
            a(f'v_dot2_f32_bf16 {V(S3)}, {V(vD+i)}, {V(vG+i)}, {V(S3)}')
        red32([S1, S2, S3])
        t = T[0]; g = vE
        a(f'''
        v_mul_f32 {V(S1)}, 0x3b000000, {V(S1)}
        v_mul_f32 {V(S2)}, 0x3b000000, {V(S2)}
        s_waitcnt vmcnt({nlate + NP})
        v_fma_f32 {V(S2)}, -{V(S1)}, {V(S1)}, {V(S2)}
        v_readfirstlane_b32 {S(sTAG)}, {V(vEP)}
        v_max_f32 {V(S2)}, 0, {V(S2)}
        v_cvt_pk_bf16_f32 {V(t)}, {V(S1)}, {V(S2)}
        s_add_u32 {S(sTAG)}, {S(sTAG)}, 16
        v_and_b32 {V(t)}, {S(sHI)}, {V(t)}
        s_and_b32 {S(sTAG)}, {S(sTAG)}, -16
        v_add_f32 {V(t)}, 0x3727c5ac, {V(t)}
        s_or_b32 {S(sTAGX)}, {S(sTAG)}, {S(sXCC)}
        v_cvt_pk_bf16_f32 {V(t)}, {V(t)}, {V(t)}
        v_and_b32 {V(t)}, {S(sHI)}, {V(t)}
        v_sqrt_f32 {V(t)}, {V(t)}
        v_mov_b32 {V(g+3)}, {S(sTAGX)}
        v_cvt_pk_bf16_f32 {V(g+1)}, {V(S1)}, {V(t)}
        v_and_b32 {V(t)}, {S(sHI)}, {V(g+1)}
        v_lshlrev_b32 {V(t+1)}, 16, {V(g+1)}
        v_rcp_f32 {V(t)}, {V(t)}
        v_fma_f32 {V(S3)}, -{V(t+1)}, {V(S4)}, {V(S3)}
        v_readlane_b32 {S(sT0)}, {V(g+1)}, 31
        v_mul_f32 {V(S3)}, {V(S3)}, {V(t)}
        v_cvt_pk_bf16_f32 {V(S3)}, {V(S3)}, {V(S3)}
        v_mov_b32 {V(g)}, {S(sT0)}
        v_ashrrev_i32 {V(t)}, 31, {V(S3)}
        v_or_b32 {V(t)}, 0x80000000, {V(t)}
        v_xor_b32 {V(t)}, {V(t)}, {V(S3)}
        v_and_or_b32 {V(t)}, {V(t)}, {S(sHI)}, {V(rk)}
        s_add_u32 {S(sT1)}, {S(sTAG)}, 1
        v_readlane_b32 {S(sT0)}, {V(t)}, 31
        v_mov_b32 {V(t+2)}, {S(sT1)}
        v_max_u32 {V(g+2)}, {S(sT0)}, {V(t)}
        ''')
        lane63()
        a(f'global_store_dwordx4 {V(vSTP)}, {V(g,4)}, {S(sWS,2)} sc1')
        a(f'ds_write_b32 {V(vFFW)}, {V(t+2)} offset:{TG - FF}')
        alllanes()
        a(f"s_setprio 0\ns_waitcnt vmcnt({1 + nlate}) lgkmcnt(0)")
        stamp(2)

    if not PF1:
        if o['early']: table_setup(); wsrc_setup(); ffn_setup()
        ln_work()
        a('s_branch L_kgen\nL_c_slice:')
        if o['early']: conv_setup()
        slice_work()
        a('s_waitcnt vmcnt(2)')
    a('L_kgen:')
    are, aim, bre, bim, cre, cim, dt = [vP + i for i in range(7)]
    t0 = vP + 7
    z1, z2, z4, ZZ, w1, w2, w4 = [vP + 8 + 2 * i for i in range(7)]
    hq = [vP + 24 + 2 * i for i in range(8)]
    lq = [vP + 40 + 2 * i for i in range(8)]
    cv = [vP + 56 + i for i in range(8)]
    a(f'''
    v_mov_b32 {V(t0)}, 0x3fb8aa3b
    v_mul_f32 {V(dt)}, {V(dt)}, {V(t0)}
    v_exp_f32 {V(dt)}, {V(dt)}
    v_mul_f32 {V(are)}, {V(t0)}, {V(are)}
    v_cvt_pk_bf16_f32 {V(dt)}, {V(dt)}, {V(dt)}
    v_mul_f32 {V(aim)}, 0.15915494, {V(aim)}
    v_and_b32 {V(dt)}, {S(sHI)}, {V(dt)}
    v_mul_f32 {V(are)}, {V(dt)}, {V(are)}
    v_mul_f32 {V(aim)}, {V(dt)}, {V(aim)}
    v_exp_f32 {V(cv[0])}, {V(are)}
    v_fract_f32 {V(cv[1])}, {V(aim)}
    v_mul_f32 {V(are)}, 0x43800000, {V(are)}
    v_cos_f32 {V(z1)}, {V(cv[1])}
    v_mul_f32 {V(aim)}, 0x43800000, {V(aim)}
    v_sin_f32 {V(z1+1)}, {V(cv[1])}
    v_fract_f32 {V(cv[3])}, {V(aim)}
    v_exp_f32 {V(cv[2])}, {V(are)}
    v_mul_f32 {V(z1)}, {V(cv[0])}, {V(z1)}
    v_cos_f32 {V(ZZ)}, {V(cv[3])}
    v_mul_f32 {V(z1+1)}, {V(cv[0])}, {V(z1+1)}
    v_sin_f32 {V(ZZ+1)}, {V(cv[3])}
    v_mul_f32 {V(bre)}, {V(dt)}, {V(bre)}
    v_mul_f32 {V(bim)}, {V(dt)}, {V(bim)}
    ''')
    cmul(z2, z1, z1)
    a(f'v_mul_f32 {V(ZZ)}, {V(cv[2])}, {V(ZZ)}\nv_mul_f32 {V(ZZ+1)}, {V(cv[2])}, {V(ZZ+1)}')
    cmul(z4, z2, z2)
    cmul(hq[0], cre, bre)
    ci = [0]; m0_hi = [False]; pend = []

    def flush(n=99):
        for x in pend[:n]: a(x)
        del pend[:n]

    def put(row, reg, neg):
        c = cv[ci[0] % 8]; ci[0] += 1
        a(f"v_cvt_pk_bf16_f32 {V(c)}, {V(reg)}, {'-' if neg else ''}{V(reg+1)}")
        off = row * RS - (30 * RS if m0_hi[0] else 0)
        assert 0 <= off < 65536, (row, off)
        pend.append(f'ds_write_addtid_b32 {V(c)} offset:{STAGE + off}')
        if len(pend) >= o['dsg'] + o['dslate']: flush(o['dsg'])
    cmul(w1, z4, z4)
    cmul(hq[1], hq[0], z1)
    cmul(w2, w1, w1)
    put(1, w1, False)
    cmul(hq[2], hq[0], z2)
    cmul(lq[3], w2, w1)
    put(2, w2, False)
    cmul(w4, w2, w2)
    put(3, lq[3], False)
    cur = {1: w1, 2: w2, 3: lq[3], 4: w4}
    put(4, w4, False)

    def lo_step(j):
        d = lq[j % 8]
        cmul(d, cur[j - 4], w4); cur[j] = d
        put(j, d, False)
    def inject(j):
        if not PF1: return
        if j == o['jc']:
            a(f's_cmp_eq_u32 {S(sROLE)}, 1\ns_cbranch_scc1 L_noslice'); slice_work(); a('L_noslice:')
        if j == o['jh']:
            a(f's_cmp_eq_u32 {S(sROLE)}, 0\ns_cbranch_scc1 L_noln'); ln_work(); a('L_noln:')
    inject(4)
    for j in range(5, o['jf']):
        lo_step(j); inject(j)
    a(f's_cmp_eq_u32 {S(sROLE)}, 1\ns_cbranch_scc1 L_noflag')
    spin_init()
    a(f'''
    L_tagspin:
    ds_read_b32 {V(T[0])}, {V(tga)}
    s_waitcnt lgkmcnt(0)
    v_readfirstlane_b32 {S(sTAG)}, {V(T[0])}
    s_cmp_lg_u32 {S(sTAG)}, 0
    s_cbranch_scc1 L_tagok
    ''')
    spin_next('L_tagspin')
    a(f'''
    L_tagok:
    s_and_b32 {S(sTAG)}, {S(sTAG)}, -16
    s_or_b32 {S(sTAGX)}, {S(sTAG)}, {S(sXCC)}
    v_mov_b32 {V(T[0])}, {S(sTAGX)}
    s_mov_b64 exec, 1
    s_waitcnt vmcnt(0)
    global_store_dword {V(vFLO)}, {V(T[0])}, {S(sWS,2)}
    s_mov_b64 exec, -1
    ''')
    stamp(2)
    a('L_noflag:')
    for j in range(o['jf'], 30): lo_step(j)
    flush()
    ssum(sT0, (sW, 8), 30 * RS)
    a(f's_mov_b32 m0, {S(sT0)}')
    m0_hi[0] = True
    for j in range(30, 32): lo_step(j)
    put(32, hq[0], True); put(33, hq[1], True); put(34, hq[2], True)
    cmul(hq[3], hq[1], z2); cmul(hq[4], hq[0], z4)
    put(35, hq[3], True); put(36, hq[4], True)
    a(f'global_load_dword {V(vPFD)}, {V(vFL)}, {S(sWS,2)} sc1')
    cmul(hq[5], hq[1], z4); cmul(hq[6], hq[2], z4); cmul(hq[7], hq[3], z4)
    put(37, hq[5], True); put(38, hq[6], True); put(39, hq[7], True)
    A0, A2, A4, A6, B0, B4, C0, C4 = lq
    cmul(A0, hq[0], ZZ); cmul(A2, hq[2], ZZ); cmul(A4, hq[4], ZZ); cmul(A6, hq[6], ZZ)
    put(40, A0, True)
    cmul(B0, A0, ZZ); put(41, A2, True); cmul(B4, A4, ZZ); put(42, A4, True)
    cmul(C0, B0, ZZ); put(43, A6, True); cmul(C4, B4, ZZ); put(44, B0, True)
    cmul(hq[1], C0, ZZ); put(45, B4, True); put(46, C0, True)
    cmul(hq[2], hq[1], ZZ); put(47, C4, True); put(48, hq[1], True)
    cmul(hq[3], hq[2], ZZ); put(49, hq[2], True)
    cmul(hq[4], hq[3], ZZ); put(50, hq[3], True)
    cmul(hq[5], hq[4], ZZ); put(51, hq[4], True); put(52, hq[5], True)
    flush()
    stamp(3)

    KD = vP; KF = vP + 16; NB = o['nb']

    def kread(sidx):
        r = KF + 8 * (sidx % NB)
        a(f'ds_read_b128 {V(r,4)}, {V(vKA)} offset:{32*sidx}')
        a(f'ds_read_b128 {V(r+4,4)}, {V(vKB)} offset:{32*sidx}')

    def kmfma(cinit, shadow=()):
        for sidx in range(8):
            if sidx >= 2 and sidx - 2 < len(shadow): shadow[sidx - 2]()
            outstanding = min(8, sidx + NB) - sidx - 1
            a(f's_waitcnt lgkmcnt({2*outstanding})')
            r = KF + 8 * (sidx % NB)
            a(f"v_mfma_f32_32x32x16_bf16 {V(KD,16)}, {V(r,4)}, {V(r+4,4)}, {'0' if (sidx == 0 and not cinit) else V(KD,16)}")
            if sidx + NB < 8: kread(sidx + NB)

    def fetch_tile(tag):
        a(f's_waitcnt vmcnt(0)\nv_cmp_ne_u32 vcc, {S(sTAGX)}, {V(vPFD)}')
        if o['force_slow']: a(f's_branch L_gather{tag}')
        a(f's_cbranch_vccz L_fast{tag}')
        spin_init()
        a(f'''
        L_flagspin{tag}:
        global_load_dword {V(vPFD)}, {V(vFL)}, {S(sWS,2)} sc1
        global_load_dword {V(T[0])}, {V(vXC)}, {S(sWS,2)} sc1
        s_waitcnt vmcnt(0)
        v_cmp_ne_u32 vcc, {S(sTAGX)}, {V(vPFD)}
        s_cbranch_vccz L_fast{tag}
        v_xor_b32 {V(T[0])}, {S(sTAGX)}, {V(T[0])}
        v_add_u32 {V(T[0])}, -1, {V(T[0])}
        v_cmp_gt_u32 vcc, 15, {V(T[0])}
        s_cbranch_vccnz L_gather{tag}
        ''')
        spin_next(f'L_flagspin{tag}')
        a(f'L_gather{tag}:')
        for r in range(4):
            a(f'global_load_dwordx2 {V(vD+2*r,2)}, {V(vXG)}, {S(sX,2)} offset:{r*1024}')
        a(f'''
        s_branch L_stats{tag}
        L_fast{tag}:
        global_load_dwordx4 {V(vD,4)}, {V(vIN)}, {S(sWS,2)} sc1
        global_load_dwordx4 {V(vD+4,4)}, {V(vIN)}, {S(sWS,2)} offset:64 sc1
        L_stats{tag}:
        global_load_dwordx4 {V(vG,4)}, {V(vST0)}, {S(sWS,2)} sc1
        global_load_dwordx4 {V(vG+4,4)}, {V(vST1)}, {S(sWS,2)} sc1
        ''')

    WR = vP + 80
    def w_dma():
        for t in range(4):
            a(f'global_load_dwordx4 {V(WR+4*t,4)}, {V((vWS0, vWS1)[t&1])}, {S((sWG, sWU)[t>>1],2)}')

    def wd_dma():
        a(f"s_mov_b64 exec, 0xff\nglobal_load_dword {V(vPFW)}, {V(vP1F)}, {S(sWS,2)}{' nt' if o['p1nt'] else ''}\ns_mov_b64 exec, -1")
        for i in range(8):
            a(f'global_load_dword {V(vWD+i)}, {V(vWDA)}, {S(sWD,2)} offset:{i*1024 - 4096}')

    XP = vG
    def r4_build(tag, mid=None, vGA=vGA, vSEL=vSEL, vR4W=vR4W, Wq=vP, Q=vP+16, reads=True, writes=True):
        for c in range(4 if reads else 0):
            a(f'ds_read2_b32 {V(Wq+4*c,2)}, {V(vGA+2*c)} offset0:0 offset1:1')
            a(f'ds_read2_b32 {V(Wq+4*c+2,2)}, {V(vGA+2*c+1)} offset0:0 offset1:1')
        if tag == 'c': a(f'''
        s_cmp_lg_u32 {S(sW)}, 3
        s_cbranch_scc1 L_nopad{tag}
        v_bfe_u32 {V(T[0])}, {V(vL)}, 3, 2
        v_and_b32 {V(T[1])}, 7, {V(vL)}
        v_mul_u32_u24 {V(T[0])}, {R4S}, {V(T[0])}
        v_lshl_add_u32 {V(T[0])}, {V(T[1])}, 4, {V(T[0])}
        ''')
        if tag == 'c':
            for i in range(4): a(f'v_mov_b32 {V(T[4+i])}, 0')
        if tag == 'c': a(f'''
        s_mov_b32 exec_hi, 0
        ds_write_b128 {V(T[0])}, {V(T[4],4)} offset:{R4}
        s_mov_b64 exec, -1
        s_waitcnt lgkmcnt(1)
        L_nopad{tag}:
        ''')
        if tag == 'h' and o['hprio']: a(f"s_setprio {o['hprio2']}")
        if mid: mid()
        for c in range(4 if writes else 0):
            W0, W1, W2, W3 = [Wq + 4 * c + i for i in range(4)]
            q = Q + 8 * c
            if not mid: a('s_waitcnt lgkmcnt(6)')
            a(f'''
            v_perm_b32 {V(q+0)}, {V(W2)}, {V(W1)}, {V(vSEL+2)}
            v_perm_b32 {V(q+1)}, {V(W1)}, {V(W0)}, {V(vSEL+0)}
            v_perm_b32 {V(q+2)}, {V(W3)}, {V(W2)}, {V(vSEL+3)}
            v_perm_b32 {V(q+3)}, {V(W1)}, {V(W0)}, {V(vSEL+1)}
            v_mov_b32 {V(q+5)}, {V(q+0)}
            ds_write_b128 {V(vR4W)}, {V(q,4)} offset:{c*R4S}
            v_perm_b32 {V(q+4)}, {V(W3)}, {V(W2)}, {V(vSEL+4)}
            v_perm_b32 {V(q+6)}, {V(W3)}, {V(W2)}, {V(vSEL+5)}
            v_mov_b32 {V(q+7)}, {V(q+2)}
            ds_write_b128 {V(vR4W)}, {V(q+4,4)} offset:{c*R4S + 16}
            ''')

    def normalise(tag):
        if tag == 'h':
            a(f's_cmp_eq_u32 {S(sP1)}, 0\ns_cbranch_scc1 L_nw0')
            w_dma()
            if not o['early']: ffn_setup()
            a("s_waitcnt vmcnt(4)\ns_branch L_nw1\nL_nw0:")
            if not o['early']: ffn_setup()
            a("s_waitcnt vmcnt(0)\nL_nw1:")
        else:
            a('s_waitcnt vmcnt(0)')
        spin_init()
        a(f'''
        L_statspin{tag}:
        v_xor_b32 {V(T[0])}, {S(sTAG)}, {V(vG+3)}
        v_xor_b32 {V(T[1])}, {S(sTAG)}, {V(vG+7)}
        v_or_b32 {V(T[0])}, {V(T[0])}, {V(T[1])}
        v_cmp_lt_u32 vcc, 15, {V(T[0])}
        s_cbranch_vccz L_statok{tag}
        global_load_dwordx4 {V(vG,4)}, {V(vST0)}, {S(sWS,2)} sc1
        global_load_dwordx4 {V(vG+4,4)}, {V(vST1)}, {S(sWS,2)} sc1
        s_waitcnt vmcnt(0)
        ''')
        spin_next(f'L_statspin{tag}')
        a(f'L_statok{tag}:')
        stamp(7)
        a(f'''
        v_cmp_ne_u32 vcc, {S(sTAGX)}, {V(vG+3)}
        s_and_b64 vcc, vcc, {S(sCM,2)}
        s_cbranch_vccz L_local{tag}
        v_mov_b32 {V(T[0])}, {FF}
        v_mov_b32 {V(T[1])}, 1
        ds_write_b32 {V(T[0])}, {V(T[1])}
        s_waitcnt lgkmcnt(0)
        L_local{tag}:
        ''')
        stq = [vG, vG + 1, vG + 4, vG + 5]
        rho = [T[1], T[3], T[5], T[7]]; mu = [T[0], T[2], T[4], T[6]]
        key = T[8]
        for r in range(4): a(f'v_and_b32 {V(rho[r])}, {S(sHI)}, {V(stq[r])}')
        a(f'v_max_u32 {V(key)}, {V(vG+2)}, {V(vG+6)}')
        for r in range(4):
            a(f'v_rcp_f32 {V(rho[r])}, {V(rho[r])}')
            a(f'v_lshlrev_b32 {V(mu[r])}, 16, {V(stq[r])}')
        kred = ['row_shr:1 row_mask:0xf', 'row_shr:2 row_mask:0xf', 'row_shr:4 row_mask:0xf', 'row_shr:8 row_mask:0xf',
                'row_bcast:15 row_mask:0xa', 'row_bcast:31 row_mask:0xc']
        def kr(i): a(f'v_max_u32_dpp {V(key)}, {V(key)}, {V(key)} {kred[i]} bank_mask:0xf')
        for r in range(4):
            a(f'''
            v_mul_f32_e64 {V(mu[r])}, -{V(mu[r])}, {V(rho[r])}
            v_lshlrev_b32 {V(vXF+4*r)}, 16, {V(vD+2*r)}
            v_and_b32 {V(vXF+4*r+1)}, {S(sHI)}, {V(vD+2*r)}
            v_lshlrev_b32 {V(vXF+4*r+2)}, 16, {V(vD+2*r+1)}
            v_and_b32 {V(vXF+4*r+3)}, {S(sHI)}, {V(vD+2*r+1)}
            ''')
            kr(r)
            for c in range(4): a(f'v_fma_f32 {V(vXN+4*r+c)}, {V(vXF+4*r+c)}, {V(rho[r])}, {V(mu[r])}')
        kr(4)
        ssum(sT0, (sW, 2), AM)
        for c in range(4):
            a(f'''
            v_cvt_pk_bf16_f32 {V(XP+2*c)}, {V(vXN+c)}, {V(vXN+4+c)}
            v_cvt_pk_bf16_f32 {V(XP+2*c+1)}, {V(vXN+8+c)}, {V(vXN+12+c)}
            ds_write_b64 {V(vUW)}, {V(XP+2*c,2)} offset:{c*US}
            ''')
            if c == 0: kr(5)
            if c == 1: a(f'v_mov_b32 {V(T[9])}, {S(sT0)}')
        lane63()
        a(f'ds_write_b32 {V(T[9])}, {V(key)}')
        alllanes()

    a(f's_cmp_eq_u32 {S(sROLE)}, 1\ns_cbranch_scc1 L_h_k')
    if o['cearly'] == 2: fetch_tile('c')
    for i in range(NB): kread(i)
    kmfma(False, () if o['early'] else (conv_setup,))
    a(f'v_mov_b32 {V(T[1])}, 1')
    for i in range(3): a(f'ds_write_b128 {V(vPD)}, {V(KD+4*i,4)} offset:{1024*i}')
    a(f's_mov_b64 exec, 1\nds_write_b32 {V(tga)}, {V(T[1])} offset:{PF - TG}\ns_mov_b64 exec, -1')
    stamp(4)
    if o['cearly'] != 2: fetch_tile('c')
    if o['call']:
        sel_setup('a', 0, vGA, vSEL, vR4W, True)
        sel_setup('b', 256, GA2, SEL2, R4W2, False)
    if o['cearly']: normalise('c')
    a('s_branch L_b3')
    a('L_h_k:')
    if o['hfetch']: fetch_tile('h')
    spin_init()
    a(f'''
    L_pspin:
    ds_read_b32 {V(T[1])}, {V(vFFW)} offset:{PF - FF}
    ''')
    for i in range(3): a(f'ds_read_b128 {V(KD+4*i,4)}, {V(vPD)} offset:{1024*i}')
    for i in range(NB - 1): kread(i)
    a(f'''
    s_waitcnt lgkmcnt({2*(NB-1) + 3})
    v_readfirstlane_b32 {S(sT0)}, {V(T[1])}
    s_cmp_lg_u32 {S(sT0)}, 0
    s_cbranch_scc1 L_pok
    s_waitcnt lgkmcnt(0)
    ''')
    spin_next('L_pspin')
    a('L_pok:')
    kread(NB - 1)
    kmfma(True, () if o['early'] else (table_setup, wsrc_setup))
    for i in range(6): a(f'v_cvt_pk_bf16_f32 {V(T[i])}, {V(KD+2*i)}, {V(KD+2*i+1)}')
    a(f'''
    ds_write_b64 {V(vTW1)}, {V(T[0],2)}
    ds_write_b32 {V(vTW2)}, {V(T[2])}
    ds_write_b32 {V(vTW3)}, {V(T[3])}
    ds_write_b16 {V(vTW4)}, {V(T[4])}
    ds_write_b16_d16_hi {V(vTW4)}, {V(T[4])} offset:64
    ds_write_b16 {V(vTW4)}, {V(T[5])} offset:128
    ds_write_b16_d16_hi {V(vTW4)}, {V(T[5])} offset:192
    ''')
    stamp(4)
    if not o['hfetch']: fetch_tile('h')
    if o['hprio']: a(f"s_setprio {o['hprio']}")
    a('L_b3:\ns_waitcnt lgkmcnt(0)')
    stamp(5)
    a('s_barrier')

    a(f's_cmp_eq_u32 {S(sROLE)}, 1\ns_cbranch_scc1 L_h_r4')
    if o['call']:
        r4_build('c', writes=False)
        def mid2():
            a('s_waitcnt lgkmcnt(2)')
            r4_build('x', vGA=GA2, Wq=vP+48, writes=False)
            a('s_waitcnt lgkmcnt(8)')
        r4_build('x', mid2, reads=False)
        r4_build('x', lambda: a('s_waitcnt lgkmcnt(8)'), vSEL=SEL2, vR4W=R4W2, Wq=vP+48, Q=vP+64, reads=False)
    else: r4_build('c')
    stamp(6)
    if not o['cearly']: normalise('c')
    if o['roll']:
        for i in range(16): a(f'v_mov_b32 {V(vP+i)}, 0')
    a('s_branch L_b4\nL_h_r4:')
    if o['call']:
        a(f"s_setprio {o['hprio2']}")
        normalise('h')
    elif o['hnormfirst']:
        def mid():
            normalise('h')
            a('s_waitcnt lgkmcnt(5)'); stamp(6)
        r4_build('h', mid)
    else:
        r4_build('h'); stamp(6); normalise('h')
    a('s_setprio 0\nL_b4:')
    a(f'v_mov_b32 {V(T[9])}, {AM}\ns_waitcnt lgkmcnt(0)')
    stamp(8)
    a('s_barrier')

    def read_idx():
        a(f'''
        ds_read_b128 {V(T[0],4)}, {V(T[9])}
        ds_read_b128 {V(T[4],4)}, {V(T[9])} offset:16
        s_waitcnt lgkmcnt(0)
        v_max3_u32 {V(T[0])}, {V(T[0])}, {V(T[1])}, {V(T[2])}
        v_max3_u32 {V(T[3])}, {V(T[3])}, {V(T[4])}, {V(T[5])}
        v_max3_u32 {V(T[0])}, {V(T[0])}, {V(T[6])}, {V(T[7])}
        v_max_u32 {V(T[0])}, {V(T[0])}, {V(T[3])}
        v_readfirstlane_b32 {S(sKEY)}, {V(T[0])}
        s_andn2_b32 {S(sIDX)}, 2047, {S(sKEY)}
        s_lshr_b32 {S(sT0)}, {S(sIDX)}, 8
        s_lshr_b32 {S(sT1)}, {S(sIDX)}, 9
        s_xor_b32 {S(sT0)}, {S(sT0)}, {S(sT1)}
        s_xor_b32 {S(sT0)}, {S(sT0)}, {S(sH)}
        s_andn2_b32 {S(sOWN)}, 1, {S(sT0)}
        ''')

    def stat_addr(dst):
        a(f's_lshr_b32 {S(sT0)}, {S(sIDX)}, 2\ns_bfe_u32 {S(sT1)}, {S(sIDX)}, 0x10001\ns_and_b32 {S(sT2)}, {S(sIDX)}, 1')
        ssum(sT0, (sT0, 4), (sT1, 13), (sT2, 2), W_ST)
        a(f'v_mov_b32 {V(dst)}, {S(sT0)}')

    a(f's_cmp_eq_u32 {S(sROLE)}, 1\ns_cbranch_scc1 L_helper')

    ACC = vP; FR = vP + 16; NFR = 28
    stamp(10)
    a(f's_setprio 1\ns_cmp_eq_u32 {S(sH)}, 0\ns_cbranch_scc0 L_conv1')

    def conv(h):
        tl = tiles(h)
        ops = []
        for c0 in range(8):
            lst = [(i, c1, q - c1) for i, q in enumerate(tl) for c1 in range(q + 1)]
            have = set(); seq = []
            while lst:
                def cost(x):
                    base = (2 * (('A', x[1]) not in have) + (('B', x[2]) not in have), bool(seq) and seq[-1][0] == x[0], max(x[1], x[2]))
                    return ((x[0],) + base) if c0 == 7 else base
                x = min(lst, key=cost); lst.remove(x); seq.append(x); have.add(('A', x[1])); have.add(('B', x[2]))
            for i, c1, qp in seq: ops.append((i, ('A', c0, c1), ('B', c0, qp)))
        order = []; last = {}; lastacc = {}
        for n, (i, ak, bk) in enumerate(ops):
            lastacc[i] = n
            for k in (bk, ak):
                if k not in last: order.append(k)
                last[k] = n
        L = []
        for k in order: L += [(k, 0), (k, 1)] if k[0] == 'A' else [(k, 0)]
        endidx = {}
        for j, (k, p) in enumerate(L): endidx[k] = j + 1
        need = []; m = 0
        for (i, ak, bk) in ops:
            m = max(m, endidx[ak], endidx[bk]); need.append(m)
        free = list(range(NFR)); slot = {}
        st = dict(issued=0, done=0)
        seqpos = []
        nds = [0]
        donepos = [0]
        MAXOUT = o['maxout']; G = o['group']

        def can_issue():
            if st['issued'] >= len(L) or nds[0] - donepos[0] >= MAXOUT: return False
            k, p = L[st['issued']]
            return p == 1 or bool(free)

        def issue():
            k, p = L[st['issued']]
            if p == 0: slot[k] = free.pop(0)
            r = FR + 4 * slot[k]
            if k[0] == 'A':
                a(f'ds_read_b64 {V(r+2*p,2)}, {V(vCA2 if p else vCA)} offset:{CAS*(8*k[2] + k[1])}')
            else:
                a(f'ds_read_b128 {V(r,4)}, {V(vCB)} offset:{2*(224 + 256*k[2] - 32*k[1])}')
            st['issued'] += 1; nds[0] += 1; seqpos.append(nds[0])
        started = set(); written = set()
        while can_issue(): issue()
        for n, (i, ak, bk) in enumerate(ops):
            if need[n] > st['done']:
                while st['issued'] < need[n]:
                    assert nds[0] - donepos[0] < 15
                    issue()
                tgt = need[n]
                for m2 in range(n, min(n + G, len(ops))):
                    if need[m2] <= st['issued'] - o['minfly'] or need[m2] <= len(L) == st['issued']: tgt = max(tgt, need[m2])
                a(f's_waitcnt lgkmcnt({nds[0] - seqpos[tgt-1]})'); st['done'] = tgt; donepos[0] = seqpos[tgt - 1]
            acc = ACC + 4 * i
            cin = V(acc, 4) if i in started else '0'
            started.add(i)
            a(f'v_mfma_f32_16x16x32_bf16 {V(acc,4)}, {V(FR+4*slot[ak],4)}, {V(FR+4*slot[bk],4)}, {cin}')
            for k in (ak, bk):
                if last[k] == n: free.append(slot[k])
            budget = 2
            if n + 1 < len(ops) and need[n + 1] > st['done']: budget = 1
            for i2 in range(4):
                if i2 not in written and lastacc[i2] + 4 <= n and budget > 0 and nds[0] - donepos[0] < 15:
                    a(f'ds_write_b128 {V(vY)}, {V(ACC+4*i2,4)} offset:{i2*YTS}')
                    written.add(i2); nds[0] += 1; budget -= 1
            while budget > 0 and can_issue():
                issue(); budget -= 1
        for i2 in range(4):
            if i2 not in written: a(f'ds_write_b128 {V(vY)}, {V(ACC+4*i2,4)} offset:{i2*YTS}')
    def conv_rolled(h):
        tl = tiles(h)
        lst = [(i, c1, q - c1) for i, q in enumerate(tl) for c1 in range(q + 1)]
        have = set(); seq = []
        while lst:
            x = min(lst, key=lambda x: (2 * (('A', x[1]) not in have) + (('B', x[2]) not in have), bool(seq) and seq[-1][0] == x[0], max(x[1], x[2])))
            lst.remove(x); seq.append(x); have.add(('A', x[1])); have.add(('B', x[2]))
        L1 = []; seen = set(); end1 = {}
        for (i, c1, qp) in seq:
            for k in (('B', qp), ('A', c1)):
                if k not in seen:
                    seen.add(k); L1 += [(k, 0), (k, 1)] if k[0] == 'A' else [(k, 0)]; end1[k] = len(L1)
        NL = len(L1); NM = len(seq)
        def need(n):
            st, r = divmod(n, NM)
            return st * NL + max(max(end1[('A', c1)], end1[('B', qp)]) for (i, c1, qp) in seq[:r + 1])
        def slot(k, st): return FR + 4 * ((k[1] + (8 if k[0] == 'B' else 0)) + 16 * (st & 1))
        def load(j):
            st, r = divmod(j, NL); k, p = L1[r]; rg = slot(k, st)
            if k[0] == 'A': a(f'ds_read_b64 {V(rg+2*p,2)}, {V(vCA2 if p else vCA)} offset:{CAS*(8*k[1] + st)}')
            else: a(f'ds_read_b128 {V(rg,4)}, {V(vCB)} offset:{2*(224 + 256*k[1] - 32*st)}')
        P = o['pro']; G = o['rg']
        for j in range(P): load(j)
        a(f's_mov_b32 {S(sCNT)}, 4\nL_cloop{h}:')
        issued = P; done = ('x', 0)
        donecnt = need(0) - 1 - NL
        for n in range(2 * NM):
            if n % G == 0:
                tgt = need(min(n + G - 1, 2 * NM - 1))
                assert 0 <= issued - tgt <= 15, (n, issued, tgt)
                a(f's_waitcnt lgkmcnt({issued - tgt})'); donecnt = tgt
            st, r = divmod(n, NM); i, c1, qp = seq[r]
            if n == 2 * NM - 1: a(f's_sub_u32 {S(sCNT)}, {S(sCNT)}, 1\ns_cmp_lg_u32 {S(sCNT)}, 0')
            a(f'v_mfma_f32_16x16x32_bf16 {V(ACC+4*i,4)}, {V(slot(("A",c1),st),4)}, {V(slot(("B",qp),st),4)}, {V(ACC+4*i,4)}')
            want = P + ((n + 1) * 2 * NL + (2 * NM - 1)) // (2 * NM) if n < 2 * NM - 2 else P + 2 * NL
            want = min(want, P + 2 * NL)
            while issued < want:
                assert issued - donecnt < 16
                load(issued); issued += 1
            if n == 2 * NM - 2:
                a(f'v_add_u32 {V(vCA)}, {2*CAS}, {V(vCA)}\nv_add_u32 {V(vCA2)}, {2*CAS}, {V(vCA2)}\nv_add_u32 {V(vCB)}, -128, {V(vCB)}')
        a(f's_cbranch_scc1 L_cloop{h}')
        a('s_nop 3')
        for i2 in range(4): a(f'ds_write_b128 {V(vY)}, {V(ACC+4*i2,4)} offset:{i2*YTS}')
    cv_ = conv_rolled if o['roll'] else conv
    cv_(0)
    a('s_branch L_convdone\nL_conv1:')
    cv_(1)
    a('L_convdone:\ns_waitcnt lgkmcnt(0)')
    stamp(9)
    a(f's_barrier\ns_cmp_lg_u32 {S(sW)}, 0\ns_cbranch_scc1 L_exit')
    a(f'''
    s_cmp_lg_u32 s2, 0
    s_cbranch_scc1 L_noep
    v_mov_b32 {V(T[10])}, 0
    v_mov_b32 {V(T[11])}, {S(sTAG)}
    s_mov_b64 exec, 1
    global_store_dword {V(T[10])}, {V(T[11])}, {S(sWS,2)} sc1
    s_mov_b64 exec, -1
    L_noep:
    ''')
    read_idx()
    a(f's_cmp_eq_u32 {S(sOWN)}, 0\ns_cbranch_scc1 L_exit\ns_setprio 3')
    F = vP
    par, xo, fpa = T[12], T[13], T[14]
    y0, y1, n0, n1, d0, d1, sg, xv, sv, x0, x1 = [vXF + i for i in range(11)]
    a(f'v_and_b32 {V(par)}, 1, {V(vL)}')
    ssum(sT0, (sIDX, 10), (sCH0, 1))
    a(f'v_lshl_add_u32 {V(xo)}, {V(par)}, 2, {S(sT0)}')
    stat_addr(T[10])
    a(f'global_load_dword {V(xv)}, {V(xo)}, {S(sX,2)}')
    a(f'global_load_dword {V(sv)}, {V(T[10])}, {S(sWS,2)} sc1')
    a(f's_lshr_b32 {S(sT0)}, {S(sCH0)}, 2')
    smul(sT0, sT0, 6144, W_FP + 3072)
    a(f'v_lshl_add_u32 {V(fpa)}, {V(vL)}, 4, {S(sT0)}')
    a(f'''
    s_lshr_b32 {S(sT1)}, {S(sIDX)}, 9
    s_mul_i32 {S(sT1)}, {S(sT1)}, {YTS}
    s_bfe_u32 {S(sT0)}, {S(sIDX)}, 0x20002
    s_mul_i32 {S(sT0)}, {S(sT0)}, {YGS}
    s_add_u32 {S(sT1)}, {S(sT1)}, {S(sT0)}
    s_bfe_u32 {S(sT0)}, {S(sIDX)}, 0x40004
    s_and_b32 {S(sT2)}, {S(sIDX)}, 3
    ''')
    ssum(sT1, (sT1, 0), (sT0, 4), (sT2, 2), YX)
    a(f'''
    v_mul_u32_u24 {V(T[0])}, {2*YCS}, {V(par)}
    v_add_u32 {V(T[0])}, {S(sT1)}, {V(T[0])}
    ds_read_b32 {V(y0)}, {V(T[0])}
    ds_read_b32 {V(y1)}, {V(T[0])} offset:{YCS}
    s_and_b32 {S(sT0)}, {S(sKEY)}, {S(sHI)}
    s_xor_b32 {S(sT1)}, {S(sT0)}, 0x80000000
    s_xor_b32 {S(sT2)}, {S(sT0)}, {S(sHI)}
    s_bitcmp1_b32 {S(sT0)}, 31
    s_cselect_b32 {S(sT0)}, {S(sT1)}, {S(sT2)}
    v_mov_b32 {V(T[2])}, 0xbfb8aa3b
    v_mul_f32 {V(sg)}, {S(sT0)}, {V(T[2])}
    v_exp_f32 {V(sg)}, {V(sg)}
    v_cmp_eq_u32 vcc, 0, {V(par)}
    v_add_f32 {V(sg)}, 1.0, {V(sg)}
    v_rcp_f32 {V(sg)}, {V(sg)}
    v_mov_b32 {V(F+20)}, 0
    v_cvt_pk_bf16_f32 {V(sg)}, {V(sg)}, {V(sg)}
    v_mov_b32 {V(F+21)}, 0
    v_and_b32 {V(sg)}, {S(sHI)}, {V(sg)}
    v_mov_b32 {V(F+22)}, {S(sTAG)}
    s_waitcnt lgkmcnt(0)
    v_mov_b32 {V(d0)}, {S(sDS)}
    v_mov_b32 {V(d1)}, {S(sDS+1)}
    v_cndmask_b32 {V(d0)}, {V(d1)}, {V(d0)}, vcc
    v_and_b32 {V(d1)}, {S(sHI)}, {V(d0)}
    v_lshlrev_b32 {V(d0)}, 16, {V(d0)}
    ''')

    def rnd2(r0, r1, t):
        a(f'v_cvt_pk_bf16_f32 {V(t)}, {V(r0)}, {V(r1)}\nv_lshlrev_b32 {V(r0)}, 16, {V(t)}\nv_and_b32 {V(r1)}, {S(sHI)}, {V(t)}')
    rnd2(y0, y1, T[0])
    a(f'''
    s_waitcnt vmcnt(0)
    v_and_b32 {V(T[1])}, {S(sHI)}, {V(sv)}
    v_lshlrev_b32 {V(T[2])}, 16, {V(sv)}
    v_rcp_f32 {V(T[1])}, {V(T[1])}
    v_lshlrev_b32 {V(x0)}, 16, {V(xv)}
    v_and_b32 {V(x1)}, {S(sHI)}, {V(xv)}
    v_sub_f32 {V(n0)}, {V(x0)}, {V(T[2])}
    v_sub_f32 {V(n1)}, {V(x1)}, {V(T[2])}
    ''')
    rnd2(n0, n1, T[0])
    a(f'v_mul_f32 {V(n0)}, {V(n0)}, {V(T[1])}\nv_mul_f32 {V(n1)}, {V(n1)}, {V(T[1])}')
    rnd2(n0, n1, T[0])
    a(f'v_mul_f32 {V(d0)}, {V(d0)}, {V(n0)}\nv_mul_f32 {V(d1)}, {V(d1)}, {V(n1)}')
    rnd2(d0, d1, T[0])
    a(f'v_add_f32 {V(y0)}, {V(y0)}, {V(d0)}\nv_add_f32 {V(y1)}, {V(y1)}, {V(d1)}')
    rnd2(y0, y1, T[0])
    if o['b6']: a('s_barrier')
    spin_init()
    a('L_ffnspin:')
    for i in range(5):
        a(f'global_load_dwordx4 {V(F+4*i,4)}, {V(fpa)}, {S(sWS,2)} offset:{i*1024 - 3072} sc1')
    a(f'''
    s_mov_b64 exec, 0xffffff
    global_load_dwordx4 {V(F+20,4)}, {V(fpa)}, {S(sWS,2)} offset:2048 sc1
    s_mov_b64 exec, -1
    s_waitcnt vmcnt(0)
    ''')
    for i in range(6): a(f'v_xor_b32 {V(T[i])}, {S(sTAG)}, {V(F+4*i+2)}')
    a(f'''
    v_or3_b32 {V(T[0])}, {V(T[0])}, {V(T[1])}, {V(T[2])}
    v_or3_b32 {V(T[3])}, {V(T[3])}, {V(T[4])}, {V(T[5])}
    v_or_b32 {V(T[0])}, {V(T[0])}, {V(T[3])}
    v_cmp_ne_u32 vcc, 0, {V(T[0])}
    s_cbranch_vccz L_ffnok
    ''')
    spin_next('L_ffnspin')
    a('L_ffnok:')
    stamp(11)
    p0, p1 = F, F + 1
    for e in range(2):
        a(f'v_add_f32 {V(F+e)}, {V(F+e)}, {V(F+4+e)}')
        a(f'v_add_f32 {V(F+8+e)}, {V(F+8+e)}, {V(F+12+e)}')
        a(f'v_add_f32 {V(F+16+e)}, {V(F+16+e)}, {V(F+20+e)}')
    for e in range(2): a(f'v_add_f32 {V(F+e)}, {V(F+e)}, {V(F+8+e)}')
    for e in range(2): a(f'v_add_f32 {V(F+e)}, {V(F+e)}, {V(F+16+e)}')
    for m in (2, 4, 8):
        for e in range(2): a(f'v_add_f32_dpp {V(F+e)}, {V(F+e)}, {V(F+e)} row_ror:{m} row_mask:0xf bank_mask:0xf')
    for pl in ('v_permlane16_swap_b32', 'v_permlane32_swap_b32'):
        for e in range(2): a(f'v_mov_b32 {V(F+4+e)}, {V(F+e)}')
        for e in range(2): a(f'{pl} {V(F+e)}, {V(F+4+e)}')
        for e in range(2): a(f'v_add_f32 {V(F+e)}, {V(F+e)}, {V(F+4+e)}')
    rnd2(p0, p1, T[0])
    for e in range(2): a(f'v_mul_f32 {V(F+e)}, {V(F+e)}, {V(sg)}')
    rnd2(p0, p1, T[0])
    a(f'v_add_f32 {V(p0)}, {V(p0)}, {V(n0)}\nv_add_f32 {V(p1)}, {V(p1)}, {V(n1)}')
    rnd2(p0, p1, T[0])
    for e in range(2): a(f'v_mul_f32 {V(F+4+e)}, 0xbfb8aa3b, {V(F+e)}')
    for e in range(2): a(f'v_exp_f32 {V(F+4+e)}, {V(F+4+e)}')
    for e in range(2): a(f'v_add_f32 {V(F+4+e)}, 1.0, {V(F+4+e)}')
    for e in range(2): a(f'v_rcp_f32 {V(F+4+e)}, {V(F+4+e)}')
    for e in range(2): a(f'v_mul_f32 {V(F+e)}, {V(F+e)}, {V(F+4+e)}')
    rnd2(p0, p1, T[0])
    a(f'v_mul_f32 {V(p0)}, {V(p0)}, {V(y0)}\nv_mul_f32 {V(p1)}, {V(p1)}, {V(y1)}')
    rnd2(p0, p1, T[0])
    a(f'''
    v_add_f32 {V(p0)}, {V(p0)}, {V(x0)}
    v_add_f32 {V(p1)}, {V(p1)}, {V(x1)}
    v_cvt_pk_bf16_f32 {V(T[0])}, {V(p0)}, {V(p1)}
    s_mov_b64 exec, 3
    global_store_dword {V(xo)}, {V(T[0])}, {S(sOUT,2)}
    s_mov_b64 exec, -1
    ''')
    if o['stamp']:
        a('s_waitcnt vmcnt(0)'); stamp(12); a('s_branch L_exit')
    else:
        a('s_endpgm')

    a('L_helper:')
    a(f'ds_read_b32 {V(T[8])}, {V(T[9])} offset:{FF - AM}')
    read_idx()
    XS = vP
    a(f'v_readfirstlane_b32 {S(sT3)}, {V(T[8])}\ns_mov_b32 {S(sPB)}, {S(sT3)}')
    a(f's_cmp_eq_u32 {S(sP1)}, 0\ns_cbranch_scc1 L_h_pre')
    a(f's_lshl_b32 {S(sT0)}, {S(sIDX)}, 10\nv_add_u32 {V(T[0])}, {S(sT0)}, {V(vXS)}')
    stat_addr(T[1])
    a(f'''
    global_load_dword {V(XS)}, {V(T[0])}, {S(sX,2)}
    global_load_dword {V(XS+4)}, {V(T[1])}, {S(sWS,2)} sc1
    ''')
    wd_dma()
    a('L_h_pre:')
    sDV = sH8
    a(f'''
    s_lshl_b32 {S(sDV)}, {S(sDS)}, 16
    s_and_b32 {S(sDV+1)}, {S(sDS)}, {S(sHI)}
    s_lshl_b32 {S(sDV+2)}, {S(sDS+1)}, 16
    s_and_b32 {S(sDV+3)}, {S(sDS+1)}, {S(sHI)}
    ''')
    WF = vP + 8; DD = vP + 24; XA = vP + 40; WDF = vP + 48
    GT = [vP + 64 + i for i in range(4)]
    def ge_row(r):
        for c in range(4):
            src = XP + 2 * c + (r >> 1)
            if r & 1: a(f'v_and_b32 {V(vXN+4*r+c)}, {S(sHI)}, {V(src)}')
            else:     a(f'v_lshlrev_b32 {V(vXN+4*r+c)}, 16, {V(src)}')
        for c in range(4): a(f'v_mul_f32 {V(GT[c])}, 0xbfb8aa3b, {V(vXN+4*r+c)}')
        for c in range(4): a(f'v_exp_f32 {V(GT[c])}, {V(GT[c])}')
        for c in range(4):
            a(f'v_mul_f32 {V(vE+4*r+c)}, {S(sDV+c)}, {V(vXN+4*r+c)}')
            a(f'v_add_f32 {V(GT[c])}, 1.0, {V(GT[c])}')
        for c in range(4): a(f'v_rcp_f32 {V(GT[c])}, {V(GT[c])}')
        for c in range(4): a(f'v_mul_f32 {V(vXN+4*r+c)}, {V(vXN+4*r+c)}, {V(GT[c])}')
        for c in range(4): a(f'v_fma_f32 {V(vE+4*r+c)}, {V(vE+4*r+c)}, {V(vXN+4*r+c)}, {V(vXF+4*r+c)}')
    def masks():
        a(f'''
        s_lshr_b32 {S(sT0)}, {S(sIDX)}, 2
        s_lshl_b64 {S(sT2,2)}, 1, {S(sT0)}
        s_lshr_b32 {S(sT0)}, {S(sIDX)}, 8
        s_cmp_eq_u32 {S(sT0)}, {S(sT)}
        s_cselect_b64 {S(sT2,2)}, {S(sT2,2)}, 0
        s_not_b64 {S(sT2,2)}, {S(sT2,2)}
        s_and_b32 {S(sT0)}, {S(sIDX)}, 3
        ''')
        for r in range(4):
            a(f's_cmp_eq_u32 {S(sT0)}, {r}\ns_cselect_b64 {S(sM+2*r,2)}, {S(sT2,2)}, -1')
    masks()
    a(f's_cmp_eq_u32 {S(sP1)}, 0\ns_cbranch_scc1 L_h_ge')
    a(f"s_setprio {o['ffnprio']}")
    a('s_waitcnt vmcnt(11)')
    for t in range(4): a(f'ds_write_b128 {V(vWDR)}, {V(WR+4*t,4)} offset:{1024*t}')
    for t in range(4):
        a(f'ds_read_b64_tr_b16 {V(WF+4*t,2)}, {V(vWT)} offset:{1024*t}')
        a(f'ds_read_b64_tr_b16 {V(WF+4*t+2,2)}, {V(vWT)} offset:{1024*t + 512}')
    gq = T[4]
    a('s_waitcnt vmcnt(9)')
    stamp(0)
    a(f'''
    v_and_b32 {V(T[12])}, {S(sHI)}, {V(XS+4)}
    v_lshlrev_b32 {V(T[14])}, 16, {V(XS+4)}
    v_rcp_f32 {V(T[12])}, {V(T[12])}
    v_lshlrev_b32 {V(T[2])}, 16, {V(XS)}
    v_and_b32 {V(T[3])}, {S(sHI)}, {V(XS)}
    v_sub_f32 {V(T[2])}, {V(T[2])}, {V(T[14])}
    v_sub_f32 {V(T[3])}, {V(T[3])}, {V(T[14])}
    v_cvt_pk_bf16_f32 {V(T[3])}, {V(T[2])}, {V(T[3])}
    v_lshlrev_b32 {V(T[2])}, 16, {V(T[3])}
    v_and_b32 {V(T[3])}, {S(sHI)}, {V(T[3])}
    v_mul_f32 {V(T[2])}, {V(T[2])}, {V(T[12])}
    v_mul_f32 {V(T[3])}, {V(T[3])}, {V(T[12])}
    v_cvt_pk_bf16_f32 {V(T[2])}, {V(T[2])}, {V(T[3])}
    ds_write_b32 {V(vXW)}, {V(T[2])}
    ds_read_b64 {V(XA,2)}, {V(vXR)}
    ds_read_b64 {V(XA+2,2)}, {V(vXR)} offset:32
    ''')
    a('s_waitcnt lgkmcnt(0)')
    for t in range(4):
        a(f'v_mfma_f32_16x16x32_bf16 {V(DD+4*t,4)}, {V(XA,4)}, {V(WF+4*t,4)}, 0')
    a(f'''
    v_mov_b32 {V(gq+2)}, {S(sTAG)}
    v_mov_b32 {V(gq+3)}, 0
    s_cmp_eq_u32 {S(sPB)}, 0
    v_add_f32 {V(gq)}, {V(DD)}, {V(DD+5)}
    v_add_f32 {V(gq+1)}, {V(DD+8)}, {V(DD+13)}
    s_mov_b64 exec, 0xffff
    s_cbranch_scc0 L_p1far
    global_store_dwordx4 {V(vP1W)}, {V(gq,4)}, {S(sWS,2)}
    s_branch L_p1done
    L_p1far:
    global_store_dwordx4 {V(vP1W)}, {V(gq,4)}, {S(sWS,2)} sc1
    L_p1done:
    s_mov_b64 exec, -1
    s_cmp_eq_u32 {S(sPROD)}, 0
    s_cbranch_scc1 L_h_ge
    ''')
    stamp(9)
    a(f'global_load_dwordx4 {V(T[0],4)}, {V(vP1R)}, {S(sWS,2)} sc1')
    a('s_waitcnt vmcnt(2)')
    for i in range(8):
        a(f'v_lshlrev_b32 {V(WDF+2*i)}, 16, {V(vWD+i)}\nv_and_b32 {V(WDF+2*i+1)}, {S(sHI)}, {V(vWD+i)}')
    spin_init()
    a(f'''
    L_hspin:
    s_waitcnt vmcnt(0)
    v_cmp_ne_u32 vcc, {S(sTAG)}, {V(T[2])}
    s_cbranch_vccz L_hok
    global_load_dwordx4 {V(T[0],4)}, {V(vP1R)}, {S(sWS,2)} sc1
    ''')
    spin_next('L_hspin')
    a('s_waitcnt vmcnt(0)\nL_hok:')
    for e in range(2): a(f'v_add_f32_dpp {V(T[e])}, {V(T[e])}, {V(T[e])} row_ror:8 row_mask:0xf bank_mask:0xf')
    for pl in ('v_permlane16_swap_b32', 'v_permlane32_swap_b32'):
        for e in range(2): a(f'v_mov_b32 {V(T[2+e])}, {V(T[e])}')
        for e in range(2): a(f'{pl} {V(T[e])}, {V(T[2+e])}')
        for e in range(2): a(f'v_add_f32 {V(T[e])}, {V(T[e])}, {V(T[2+e])}')
    a(f'''
    v_cvt_pk_bf16_f32 {V(T[2])}, {V(T[0])}, {V(T[1])}
    v_lshlrev_b32 {V(T[0])}, 16, {V(T[2])}
    v_mul_f32 {V(T[1])}, 0xbfb8aa3b, {V(T[0])}
    v_exp_f32 {V(T[1])}, {V(T[1])}
    v_and_b32 {V(T[2])}, {S(sHI)}, {V(T[2])}
    v_add_f32 {V(T[1])}, 1.0, {V(T[1])}
    v_rcp_f32 {V(T[1])}, {V(T[1])}
    s_nop 0
    v_mul_f32 {V(T[1])}, {V(T[0])}, {V(T[1])}
    v_cvt_pk_bf16_f32 {V(T[1])}, {V(T[1])}, {V(T[1])}
    v_and_b32 {V(T[1])}, {S(sHI)}, {V(T[1])}
    v_mul_f32 {V(T[1])}, {V(T[1])}, {V(T[2])}
    v_cvt_pk_bf16_f32 {V(T[1])}, {V(T[1])}, {V(T[1])}
    v_and_b32 {V(T[1])}, {S(sHI)}, {V(T[1])}
    ''')
    for i in range(8):
        for e in range(2):
            a(f"{'v_mul_f32_dpp' if i == 0 else 'v_fmac_f32_dpp'} {V(gq+e)}, {V(T[1])}, {V(WDF+2*i+e)} row_newbcast:{i} row_mask:0xf bank_mask:0xf")
    a(f'global_store_dwordx4 {V(vFPA)}, {V(gq,4)}, {S(sWS,2)} sc1')
    stamp(10)
    a('L_h_ge:\ns_setprio 0')
    for r in range(o['prerows']): ge_row(r)
    a('L_h_b5:\ns_barrier')
    YR = vP
    def epilogue(ge):
        for r in range(4):
            if ge and r >= o['prerows']: ge_row(r)
            for c in range(4):
                a(f'v_fma_f32 {V(vE+4*r+c)}, {V(YR+4*c+r)}, {V(vXN+4*r+c)}, {V(vE+4*r+c)}')
            a(f'''
            v_cvt_pk_bf16_f32 {V(vD+2*r)}, {V(vE+4*r)}, {V(vE+4*r+1)}
            v_cvt_pk_bf16_f32 {V(vD+2*r+1)}, {V(vE+4*r+2)}, {V(vE+4*r+3)}
            s_mov_b64 exec, {S(sM+2*r,2)}
            global_store_dwordx2 {V(vXG)}, {V(vD+2*r,2)}, {S(sOUT,2)} offset:{r*1024}
            s_mov_b64 exec, -1
            ''')
    for c in range(4): a(f'ds_read_b128 {V(YR+4*c,4)}, {V(vY)} offset:{c*YCS}')
    if o['b6']:
        a(f'''
        s_lshr_b32 {S(sT0)}, {S(sWI)}, 1
        s_and_b32 {S(sT1)}, {S(sT0)}, {S(sOWN)}
        s_andn2_b32 {S(sT2)}, {S(sOWN)}, {S(sT0)}
        s_cmp_eq_u32 {S(sT1)}, 0
        s_cbranch_scc1 L_h_st
        ''')
        for r in range(o['prerows'], 4): ge_row(r)
        a('s_barrier\ns_waitcnt lgkmcnt(0)')
        epilogue(False)
        a('s_branch L_h_done\nL_h_st:')
    a('s_waitcnt lgkmcnt(0)')
    epilogue(True)
    for r in range(0):
        for c in range(4):
            a(f'v_fma_f32 {V(vE+4*r+c)}, {V(YR+4*c+r)}, {V(vXN+4*r+c)}, {V(vE+4*r+c)}')
        a(f'''
        v_cvt_pk_bf16_f32 {V(vD+2*r)}, {V(vE+4*r)}, {V(vE+4*r+1)}
        v_cvt_pk_bf16_f32 {V(vD+2*r+1)}, {V(vE+4*r+2)}, {V(vE+4*r+3)}
        s_mov_b64 exec, {S(sM+2*r,2)}
        global_store_dwordx2 {V(vXG)}, {V(vD+2*r,2)}, {S(sOUT,2)} offset:{r*1024}
        s_mov_b64 exec, -1
        ''')
    if o['b6']:
        a(f'''
        s_cmp_eq_u32 {S(sT2)}, 0
        s_cbranch_scc1 L_h_done
        s_waitcnt vmcnt({o['b6cnt']})
        s_barrier
        L_h_done:
        ''')
    if o['stamp'] or o['diag'] >= 0:
        stamp(11)
        a('s_waitcnt vmcnt(0)')
        stamp(12)
    if o['diag'] >= 0:
        a('''
        s_memrealtime s[90:91]
        s_sub_u32 s88, s88, s86
        s_min_u32 s88, s88, 2000
        s_lshl_b32 s88, s88, 2
        s_waitcnt lgkmcnt(0)
        s_add_u32 s88, s88, s90
        L_diag:
        s_memrealtime s[90:91]
        s_waitcnt lgkmcnt(0)
        s_sub_u32 s90, s90, s88
        s_cmp_lt_i32 s90, 0
        s_cbranch_scc1 L_diag
        ''')
    a('L_exit:')
    if o['stamp']:
        a('v_mov_b32 v254, 0')
        for i in range(14): a(f'v_writelane_b32 v254, s{86+i}, {i}')
        a(f'global_store_dword {V(vSTA)}, v254, {S(sWS,2)}')
    a('L_end:\ns_endpgm')
    a.raw('''.section .rodata,"a"
.p2align 6
.amdhsa_kernel %s_kernel
  .amdhsa_next_free_vgpr 256
  .amdhsa_next_free_sgpr 102
  .amdhsa_accum_offset 256
  .amdhsa_group_segment_fixed_size 0
  .amdhsa_kernarg_size 136
  .amdhsa_user_sgpr_count 2
  .amdhsa_user_sgpr_kernarg_segment_ptr 1
  .amdhsa_system_sgpr_workgroup_id_x 1
.end_amdhsa_kernel''' % KN)
    return a.text()


if __name__ == '__main__':
    out = sys.argv[1]
    opt = {}
    for kv in sys.argv[2:]:
        k, val = kv.split('='); opt[k] = int(val, 0)
    open(out, 'w').write(generate(**opt))
```

```python
import sys
from asmlib import *

KN = 'recurrent_scan__ssm_conv_s4__moe_arch_mod__prompt'

DEFAULTS = dict(stamp=0, cyc=0, force_slow=0, prefetch=1, wpf=1, spinmax=1 << 16, diag=-1,
                maxout=15, group=3, minfly=6, b6=1, b6cnt=1, nb=6, wdearly=0, wpfb3=1, hnormfirst=1, ffnprio=2, tlb=0, tlbsh=16, wnt=0, xnt=0, pnt=0, prerows=1, jc=4, jh=5, jf=12, p1nt=1, pfirst=0, cpf=1, cpfn=5, hfetch=0, cearly=1, call=0, roll=0, early=1, xlds=1, touch=0, pro=13, rg=3, wreg=1, dsg=4, dslate=0, hprio=3, hprio2=1)

RS = 2064
STAGE = 0
R4 = 0; R4S = 18560; CAS = 288
YX = 74240; YCS = 5120; YTS = 1280; YGS = 320
U = 109440; US = 4576
TAB = 127744; TS = 1552
WL = 133952; WL1 = 8320
SL = 150528
AM = 158720
FF = 158752
TG = 158768
PF = 158784
FP = 158848
LDS_BYTES = 159872
W_ST = 0x1000; W_FL = 0x6000; W_FP = 0x10000; W_P1 = 0xD0000; W_IN = 0x100000; W_STAMP = 0x800000

sX, sARE, sAIM, sBRE, sBIM, sCRE, sCIM, sLDT = 4, 6, 8, 10, 12, 14, 16, 18
sDSK, sWR, sWG, sWU, sWD, sOUT, sDBG, sWS = 20, 24, 26, 28, 30, 32, 34, 36
sW, sK, sJ, sCGL, sH, sCH0, sT, sXCC, sTAG, sTAGX = 38, 39, 40, 41, 42, 43, 44, 45, 46, 47
sPB, sDS = 48, 50
sONES, sF8, sPROD, sIDX, sKEY, sCNT = 52, 53, 54, 55, 56, 57
sT0, sT1, sT2, sT3 = 58, 59, 60, 61
sOWN, sINB = 62, 63
sM = 64
sH8 = 72
sHI = 80
sSTP = 82
sWI = 84
sP1 = 85
sCM = 78
sA = 76; sR = 77
sROLE = 81

vL = 1
vGA = 2
vSEL = 10
vR4W, vUW, vST0, vST1, vFL, vIN, vXG, vXC = 16, 17, 18, 19, 20, 21, 22, 23
vKA, vKB, vPD, vY = 24, 25, 26, 27
vA0, vA1, vA2, vA3, vA4, vA5, vA6, vA7 = 28, 29, 30, 31, 32, 33, 34, 35
vEP, vPFD, vROW, vSTA = 36, 37, 38, 39
vD = 40
vG = 48
vXF = 56
vXN = 72
vE = 88
vP = 104
vB0, vB1, vB2, vB3, vB4, vB5 = 224, 225, 226, 227, 228, 229
vWD = 232
vT = 240
vCA, vCA2, vCB, vFLO = vA0, vA1, vA2, vA3
vTW1, vTW2, vTW3, vTW4, vWT, vWDA, vFPA, vXS = vA0, vA1, vA2, vA3, vA4, vA5, vA6, vA7
vWS0, vWS1, vP1W, vP1R, vFFW, vSTP = vB0, vB1, vB2, vB3, vB4, vB5
vWD1, vPFW = 230, 231
vTLB = 223
vWDR = 222; vP1F = 221; vXW = 220; vXR = 219


def tiles(h): return [2 * i + ((i ^ h) & 1) for i in range(4)]


def generate(**opt):
    o = dict(DEFAULTS); o.update(opt)
    a = Asm()
    V = v; S = s

    def stamp(i):
        if o['diag'] == i:
            a('s_memrealtime s[88:89]\ns_waitcnt lgkmcnt(0)')
        if not o['stamp'] or (o['stamp'] == 2 and i != 12): return
        a(f"{'s_memtime' if o['cyc'] else 's_memrealtime'} {S(sSTP,2)}\ns_waitcnt lgkmcnt(0)\ns_mov_b32 s{86+i}, {S(sSTP)}")

    def cmul(d, x, y):
        a(f'v_pk_mul_f32 {V(d,2)}, {V(x,2)}, {V(y,2)} op_sel:[1,1] op_sel_hi:[1,0]')
        a(f'v_pk_fma_f32 {V(d,2)}, {V(x,2)}, {V(y,2)}, {V(d,2)} op_sel:[0,0,0] op_sel_hi:[0,1,1] neg_lo:[0,0,1]')

    def lane63(): a('s_mov_b32 exec_lo, 0\ns_mov_b32 exec_hi, 0x80000000')
    def alllanes(): a('s_mov_b64 exec, -1')
    def spin_init(): a(f"s_mov_b32 {S(sCNT)}, {o['spinmax']}")
    def spin_next(lbl): a(f's_sub_u32 {S(sCNT)}, {S(sCNT)}, 1\ns_cmp_lg_u32 {S(sCNT)}, 0\ns_cbranch_scc1 {lbl}')

    def ssum(dst, *terms):
        first = True; const = 0
        for t in terms:
            if isinstance(t, int): const += t; continue
            r, sh = t
            if first:
                a(f's_lshl_b32 {S(dst)}, {S(r)}, {sh}' if sh else f's_mov_b32 {S(dst)}, {S(r)}'); first = False
            elif sh:
                a(f's_lshl_b32 {S(sT3)}, {S(r)}, {sh}\ns_add_u32 {S(dst)}, {S(dst)}, {S(sT3)}')
            else:
                a(f's_add_u32 {S(dst)}, {S(dst)}, {S(r)}')
        if const: a(f's_add_u32 {S(dst)}, {S(dst)}, {const}')

    def smul(dst, r, k, const=0):
        a(f's_mul_i32 {S(dst)}, {S(r)}, {k}')
        if const: a(f's_add_u32 {S(dst)}, {S(dst)}, {const}')

    T = [vT + i for i in range(16)]

    a.raw('; @launch grid=(256,1,1) block=(512,1,1) lds=%d' % LDS_BYTES)
    a.raw('.amdgcn_target "amdgcn-amd-amdhsa--gfx950"\n.text\n.globl %s_kernel\n.p2align 8\n.type %s_kernel,@function\n%s_kernel:' % (KN, KN, KN))
    a('''
    s_cmp_ge_u32 s2, 256
    s_cbranch_scc1 L_end
    s_load_dwordx16 s[4:19], s[0:1], 0
    s_load_dwordx16 s[20:35], s[0:1], 64
    s_load_dwordx2 s[36:37], s[0:1], 128
    ''')
    if o['cpf']:
        a.comment('pull the rest of this kernel code into L2: a few lines per workgroup of each XCD class')
        a(f'''
        s_getpc_b64 {S(sPB,2)}
        s_lshr_b32 {S(sT0)}, s2, 3
        s_mul_i32 {S(sT0)}, {S(sT0)}, {128*o['cpfn']}
        v_lshl_add_u32 {V(vTLB)}, v0, 7, {S(sT0)}
        v_min_u32 {V(vTLB)}, L_end - L_cpf, {V(vTLB)}
        v_cmp_gt_u32 vcc, {o['cpfn']}, v0
        s_and_saveexec_b64 {S(sM,2)}, vcc
        s_cbranch_execz L_cpf
        global_load_dword {V(vTLB)}, {V(vTLB)}, {S(sPB,2)}
        L_cpf:
        s_mov_b64 exec, -1
        ''')
    if o['diag'] >= 0: a('s_memrealtime s[86:87]')
    if o['stamp']: a(f"{'s_memtime' if o['cyc'] else 's_memrealtime'} s[100:101]")
    a(f'''
    v_lshrrev_b32 {V(T[0])}, 6, v0
    v_and_b32 {V(vL)}, 63, v0
    v_readfirstlane_b32 {S(sW)}, {V(T[0])}
    s_and_b32 {S(sK)}, s2, 7
    s_lshr_b32 {S(sJ)}, s2, 3
    s_and_b32 {S(sCGL)}, {S(sJ)}, 15
    s_lshr_b32 {S(sH)}, {S(sJ)}, 4
    s_and_b32 {S(sWI)}, {S(sW)}, 3
    s_cmp_ge_u32 {S(sW)}, 4
    s_cselect_b32 {S(sROLE)}, 1, 0
    ''')
    ssum(sCH0, (sK, 6), (sCGL, 2))
    for i in range(7): a(f'v_mov_b32 {V(vP+i)}, 0')
    a(f's_add_u32 {S(sT1)}, {S(sCH0)}, {S(sWI)}')
    a(f's_lshr_b32 {S(sT2)}, {S(sW)}, 2')
    ssum(sT0, (sT1, 8), (sT2, 7))
    a(f'v_lshl_add_u32 {V(T[1])}, {V(vL)}, 1, {S(sT0)}')
    a(f's_lshl_b32 {S(sT1)}, {S(sT1)}, 1')
    a(f'v_mov_b32 {V(T[2])}, {S(sT1)}')
    if o['stamp']:
        ssum(sT1, (2, 11), (sW, 8), W_STAMP)
        a(f'v_lshl_add_u32 {V(vSTA)}, {V(vL)}, 2, {S(sT1)}')
        for i in range(14): a(f's_mov_b32 s{86+i}, 0')

    def param_loads():
        for i, p in enumerate((sARE, sAIM, sBRE, sBIM, sCRE, sCIM)):
            a(f"global_load_short_d16_hi {V(vP+i)}, {V(T[1])}, {S(p,2)}{' nt' if o['pnt'] else ''}")
        a(f'global_load_short_d16_hi {V(vP+6)}, {V(T[2])}, {S(sLDT,2)}')

    a(f's_cmp_eq_u32 {S(sROLE)}, 1\ns_cbranch_scc1 L_h_load')
    ssum(sT0, (sJ, 16), (sW, 14), (sK, 7))
    a(f'''
    v_lshrrev_b32 {V(T[3])}, 3, {V(vL)}
    v_and_b32 {V(T[4])}, 7, {V(vL)}
    v_lshlrev_b32 {V(T[3])}, 10, {V(T[3])}
    v_lshl_add_u32 {V(T[3])}, {V(T[4])}, 4, {V(T[3])}
    v_add_u32 {V(T[3])}, {S(sT0)}, {V(T[3])}
    v_add_u32 {V(T[4])}, 8192, {V(T[3])}
    s_waitcnt lgkmcnt(0)
    ''')
    if o['stamp']: a('s_mov_b32 s99, s100')
    if o['diag'] >= 0: a('s_mov_b32 s88, s86')
    stamp(0)
    XNT = ' nt' if o['xnt'] else ''
    PF1 = o['pfirst']
    if PF1: param_loads()
    a(f'global_load_dwordx4 {V(vD,4)}, {V(T[3])}, {S(sX,2)}{XNT}')
    a(f'global_load_dwordx4 {V(vD+4,4)}, {V(T[4])}, {S(sX,2)}{XNT}')
    if not PF1: param_loads()
    a('s_branch L_init')
    a('L_h_load:')
    ssum(sT0, (2, 13), (sWI, 11))
    a(f'''
    v_and_b32 {V(T[3])}, 31, {V(vL)}
    v_lshlrev_b32 {V(T[3])}, 4, {V(T[3])}
    v_lshrrev_b32 {V(T[4])}, 5, {V(vL)}
    v_lshl_add_u32 {V(T[4])}, {V(T[4])}, 10, {V(T[3])}
    v_add_u32 {V(T[4])}, {S(sT0)}, {V(T[4])}
    v_mov_b32 {V(T[5])}, 0
    s_waitcnt lgkmcnt(0)
    ''')
    if o['stamp']: a('s_mov_b32 s99, s100')
    if o['diag'] >= 0: a('s_mov_b32 s88, s86')
    stamp(0)
    if PF1: param_loads()
    a(f'''
    global_load_dwordx4 {V(vG,4)}, {V(T[3])}, {S(sWR,2)}
    global_load_dwordx4 {V(vG+4,4)}, {V(T[3])}, {S(sWR,2)} offset:512
    global_load_dwordx4 {V(vD,4)}, {V(T[4])}, {S(sX,2)}{XNT}
    global_load_dwordx4 {V(vD+4,4)}, {V(T[4])}, {S(sX,2)} offset:512{XNT}
    global_load_dword {V(vEP)}, {V(T[5])}, {S(sWS,2)} sc1
    ''')
    if not PF1: param_loads()

    a('L_init:')
    a(f'''
    v_mov_b32 {V(T[6])}, 0
    v_mov_b32 {V(T[7])}, 0x3f80
    s_lshl_b32 {S(sT0)}, {S(sW)}, 8
    s_mov_b32 m0, {S(sT0)}
    v_and_b32 {V(T[8])}, 127, v0
    ds_write_addtid_b32 {V(T[7])} offset:{STAGE}
    v_min_u32 {V(T[8])}, 119, {V(T[8])}
    v_lshrrev_b32 {V(T[9])}, 7, v0
    v_mul_u32_u24 {V(T[10])}, {US}, {V(T[9])}
    v_lshl_add_u32 {V(T[10])}, {V(T[8])}, 2, {V(T[10])}
    v_add_u32 {V(T[10])}, {U}, {V(T[10])}
    ds_write_b32 {V(T[10])}, {V(T[6])}
    s_cmp_lg_u32 {S(sW)}, 0
    s_cbranch_scc1 L_init2
    v_bfe_u32 {V(T[9])}, {V(vL)}, 1, 2
    v_mul_u32_u24 {V(T[9])}, {TS}, {V(T[9])}
    v_and_b32 {V(T[8])}, 1, {V(vL)}
    v_lshl_add_u32 {V(T[9])}, {V(T[8])}, 2, {V(T[9])}
    v_add_u32 {V(T[9])}, {TAB}, {V(T[9])}
    v_and_b32 {V(T[8])}, 15, {V(vL)}
    v_lshlrev_b32 {V(T[8])}, 2, {V(T[8])}
    v_add_u32 {V(T[8])}, {FF}, {V(T[8])}
    s_mov_b64 exec, 0xffff
    ds_write_b32 {V(T[9])}, {V(T[6])}
    ds_write_b32 {V(T[8])}, {V(T[6])}
    s_mov_b64 exec, -1
    L_init2:
    s_waitcnt lgkmcnt(0)
    s_barrier
    s_lshl_b32 {S(sT0)}, {S(sCH0)}, 1
    s_load_dwordx2 {S(sDS,2)}, {S(sDSK,2)}, {S(sT0)}
    s_getreg_b32 {S(sXCC)}, hwreg(HW_REG_XCC_ID, 0, 4)
    s_mov_b32 {S(sONES)}, 0x3f803f80
    s_mov_b32 {S(sHI)}, 0xffff0000
    s_lshr_b32 {S(sT0)}, {S(sW)}, 2
    s_xor_b32 {S(sT0)}, {S(sT0)}, {S(sWI)}
    s_xor_b32 {S(sT0)}, {S(sT0)}, {S(sH)}
    s_xor_b32 {S(sT0)}, {S(sT0)}, 1
    s_and_b32 {S(sT0)}, {S(sT0)}, 1
    s_lshl_b32 {S(sT)}, {S(sWI)}, 1
    s_add_u32 {S(sT)}, {S(sT)}, {S(sT0)}
    s_lshr_b32 {S(sT0)}, {S(sJ)}, 3
    s_and_b32 {S(sT1)}, {S(sJ)}, 7
    ''')
    ssum(sA, (sT0, 3), (sK, 0))
    a(f's_mov_b32 {S(sR)}, {S(sT1)}')
    ssum(sF8, (sA, 3), (sR, 0))
    a(f'''
    s_cmp_lt_u32 {S(sA)}, 22
    s_cselect_b32 {S(sP1)}, 1, 0
    s_cmp_lt_u32 {S(sF8)}, 172
    s_cselect_b32 {S(sPROD)}, 1, 0
    s_cselect_b32 {S(sF8)}, {S(sF8)}, {S(sJ)}
    s_lshl_b32 {S(sT0)}, {S(sK)}, 1
    s_lshl_b32 {S(sCM)}, 0x00030003, {S(sT0)}
    s_mov_b32 {S(sCM+1)}, {S(sCM)}
    ''')

    def sel_setup(tag, toff, GA, SEL, R4W, first):
        pos = [vXF + i for i in range(7)]
        tt = 'v0'
        if toff:
            a(f'v_add_u32 {V(T[5])}, {toff}, v0'); tt = V(T[5])
        a(f'v_lshlrev_b32 {V(T[0])}, 2, {tt}')
        if first: a(f's_cmp_eq_u32 {S(sW)}, 0\ns_cbranch_scc1 L_pos0{tag}')
        for i in range(7): a(f'v_add_u32 {V(pos[i])}, {i-3}, {V(T[0])}')
        for i in range(7): a(f'v_cvt_f32_u32 {V(pos[i])}, {V(pos[i])}')
        for i in range(0, 7, 2):
            a(f'v_cvt_pk_bf16_f32 {V(T[8+i//2])}, {V(pos[i])}, {V(pos[min(i+1,6)])}')
        a(f'v_mov_b32 {V(T[1])}, {4 - 0x4280}')
        for i in range(7):
            a(f'v_bfe_u32 {V(pos[i])}, {V(T[8+i//2])}, {16*(i&1)}, 16')
            a(f'v_add_u32 {V(pos[i])}, {V(T[1])}, {V(pos[i])}')
        if first:
            a(f's_branch L_pos_done{tag}\nL_pos0{tag}:')
            for i in range(7): a(f'v_add_u32 {V(pos[i])}, {i+1}, {V(T[0])}')
            a(f'L_pos_done{tag}:')
        b1, b2 = T[1], T[2]
        a(f'''
        v_and_b32 {V(b1)}, -2, {V(pos[2])}
        v_add_u32 {V(b1)}, -2, {V(b1)}
        v_and_b32 {V(b2)}, -2, {V(pos[3])}
        v_add_u32 {V(T[3])}, {V(b1)}, {V(b1)}
        v_add_u32 {V(T[4])}, {V(b2)}, {V(b2)}
        ''')
        for c in range(4):
            a(f'v_add_u32 {V(GA+2*c)}, {TAB + c*TS}, {V(T[3])}')
            a(f'v_add_u32 {V(GA+2*c+1)}, {TAB + c*TS}, {V(T[4])}')
        for i in range(3): a(f'v_sub_u32 {V(pos[i])}, {V(pos[i])}, {V(b1)}')
        for i in range(3, 7): a(f'v_sub_u32 {V(pos[i])}, {V(pos[i])}, {V(b2)}')
        a(f's_movk_i32 {S(sT0)}, 0x0202\nv_mov_b32 {V(T[3])}, 0x0100')
        for i in range(7): a(f'v_mad_u32_u24 {V(pos[i])}, {V(pos[i])}, {S(sT0)}, {V(T[3])}')
        for dst, lo, hi in ((0, 1, 0), (1, 2, 1), (2, 3, 2), (3, 4, 3), (4, 5, 4), (5, 6, 5)):
            a(f'v_lshl_or_b32 {V(SEL+dst)}, {V(pos[hi])}, 16, {V(pos[lo])}')
        a(f'v_add_u32 {V(SEL+2)}, 0x{(2*0x0202 - 2*0x02020000) & 0xffffffff:x}, {V(SEL+2)}')
        a(f'''
        v_and_b32 {V(T[0])}, -4, {tt}
        v_lshlrev_b32 {V(T[0])}, 2, {V(T[0])}
        v_lshl_add_u32 {V(R4W)}, {tt}, 5, {V(T[0])}
        v_add_u32 {V(R4W)}, {R4 + 144}, {V(R4W)}
        ''')
    GA2, SEL2, R4W2 = vE, vE + 8, vE + 14
    if not o['call']: sel_setup('a', 0, vGA, vSEL, vR4W, True)
    a(f's_lshl_b32 {S(sT0)}, {S(sT)}, 6')
    a(f'v_add_u32 {V(T[0])}, {S(sT0)}, {V(vL)}')
    ssum(sINB, (sK, 18), (sCGL, 14), W_IN)
    ssum(sT1, (sK, 9), W_FL)
    ssum(sT2, (sK, 5), W_ST + 12)
    a(f'''
    v_lshlrev_b32 {V(vROW)}, 2, {V(T[0])}
    v_lshlrev_b32 {V(vUW)}, 3, {V(T[0])}
    v_add_u32 {V(vUW)}, {U + 480}, {V(vUW)}
    v_lshlrev_b32 {V(vST0)}, 4, {V(T[0])}
    v_add_u32 {V(vST1)}, {W_ST + 8192}, {V(vST0)}
    v_add_u32 {V(vST0)}, {W_ST}, {V(vST0)}
    s_lshl_b32 {S(sT0)}, {S(sCH0)}, 1
    v_lshl_add_u32 {V(vXG)}, {V(T[0])}, 12, {S(sT0)}
    v_lshrrev_b32 {V(T[1])}, 2, {V(T[0])}
    v_lshl_add_u32 {V(vFL)}, {V(T[1])}, 2, {S(sT1)}
    v_and_b32 {V(T[2])}, 3, {V(vL)}
    v_lshl_add_u32 {V(T[2])}, {V(T[2])}, 4, {S(sINB)}
    v_lshl_add_u32 {V(vIN)}, {V(T[1])}, 7, {V(T[2])}
    v_lshrrev_b32 {V(T[1])}, 4, {V(T[0])}
    v_lshl_add_u32 {V(vXC)}, {V(T[1])}, 8, {S(sT2)}
    ''')
    smul(sT1, sWI, 3072, WL)
    a(f'''
    v_and_b32 {V(T[0])}, 31, {V(vL)}
    v_lshrrev_b32 {V(T[1])}, 5, {V(vL)}
    s_lshl_b32 {S(sT0)}, {S(sW)}, 8
    v_lshl_add_u32 {V(T[2])}, {V(T[1])}, 4, {S(sT0)}
    s_movk_i32 {S(sT0)}, {RS}
    v_mad_u32_u24 {V(vKB)}, {V(T[0])}, {S(sT0)}, {V(T[2])}
    v_add_u32 {V(T[3])}, -16, {V(T[0])}
    v_cmp_lt_u32 vcc, 20, {V(T[0])}
    v_lshl_add_u32 {V(vPD)}, {V(vL)}, 4, {S(sT1)}
    v_cndmask_b32 {V(T[3])}, {V(T[0])}, {V(T[3])}, vcc
    v_mad_u32_u24 {V(vKA)}, {V(T[3])}, {S(sT0)}, {V(T[2])}
    v_add_u32 {V(vKA)}, {STAGE + 32*RS}, {V(vKA)}
    v_and_b32 {V(T[5])}, 15, {V(vL)}
    v_lshrrev_b32 {V(T[6])}, 4, {V(vL)}
    s_cmp_eq_u32 {S(sROLE)}, 1
    s_cbranch_scc1 L_h_setup
    ''')

    slw, slw1, slr, slr1, ina, ina1, tga, pfa_c = [vXN + i for i in range(8)]
    ssum(sT0, (sW, 11), SL)
    a(f'''
    v_lshrrev_b32 {V(T[0])}, 3, {V(vL)}
    v_and_b32 {V(T[1])}, 7, {V(vL)}
    v_xor_b32 {V(T[2])}, {V(T[6])}, {V(T[1])}
    v_lshl_add_u32 {V(T[2])}, {V(T[2])}, 4, {S(sT0)}
    v_lshl_add_u32 {V(slw)}, {V(T[0])}, 7, {V(T[2])}
    v_xor_b32 {V(slw1)}, 64, {V(slw)}
    v_and_b32 {V(T[2])}, 3, {V(vL)}
    v_bfe_u32 {V(T[3])}, {V(vL)}, 2, 1
    v_lshl_add_u32 {V(T[2])}, {V(T[2])}, 1, {V(T[3])}
    v_xor_b32 {V(T[3])}, {V(T[6])}, {V(T[2])}
    v_lshl_add_u32 {V(T[3])}, {V(T[3])}, 4, {S(sT0)}
    v_lshl_add_u32 {V(T[3])}, {V(T[2])}, 8, {V(T[3])}
    v_and_b32 {V(T[4])}, 1, {V(T[0])}
    v_lshl_add_u32 {V(slr)}, {V(T[4])}, 3, {V(T[3])}
    v_xor_b32 {V(slr1)}, 64, {V(slr)}
    ''')
    ssum(sT0, (sK, 18), (sJ, 9), (sW, 7), W_IN)
    a(f'''
    v_lshl_add_u32 {V(T[1])}, {V(T[1])}, 4, {S(sT0)}
    v_lshl_add_u32 {V(ina)}, {V(T[0])}, 14, {V(T[1])}
    v_add_u32 {V(ina1)}, 0x20000, {V(ina)}
    ''')
    ssum(sT0, (sK, 9), (sJ, 4), (sW, 2), W_FL)
    a(f'v_mov_b32 {V(vFLO)}, {S(sT0)}')
    ssum(sT0, (sW, 2), TG)
    a(f'v_mov_b32 {V(tga)}, {S(sT0)}')
    a('s_waitcnt vmcnt(2)\ns_branch L_kgen' if PF1 else 's_branch L_c_slice')

    a('L_h_setup:')
    ssum(sT1, (sWI, 2), FF)
    a(f'''
    v_mov_b32 {V(vFFW)}, {S(sT1)}
    s_lshr_b32 {S(sT1)}, {S(sWI)}, 1
    s_and_b32 {S(sT2)}, {S(sWI)}, 1
    ''')
    ssum(sT0, (2, 5), (sT1, 4), (sT2, 13), W_ST)
    a(f'v_mov_b32 {V(vSTP)}, {S(sT0)}')
    rk, pfi = vXN, vXN + 8
    ssum(sT0, (2, 3), (sWI, 1))
    a(f's_sub_u32 {S(sT0)}, 0xffff, {S(sT0)}\nv_sub_u32 {V(rk)}, {S(sT0)}, {V(T[1])}')
    ssum(sT0, (sH, 13), (sWI, 11), (sINB, 0))
    a(f'v_lshl_add_u32 {V(pfi)}, {V(T[5])}, 7, {S(sT0)}')
    if PF1: a('s_waitcnt vmcnt(5)')

    def table_setup():
        smul(sT0, sWI, TS, TAB + 8)
        a(f'''
        v_and_b32 {V(T[0])}, 31, {V(vL)}
        v_lshrrev_b32 {V(T[1])}, 5, {V(vL)}
        v_lshl_add_u32 {V(T[2])}, {V(T[1])}, 3, {S(sT0)}
        v_lshl_add_u32 {V(vTW1)}, {V(T[0])}, 4, {V(T[2])}
        v_sub_u32 {V(T[2])}, 3, {V(T[1])}
        v_lshlrev_b32 {V(T[2])}, {V(T[2])}, {V(T[0])}
        v_lshl_add_u32 {V(T[3])}, {V(T[1])}, 8, {S(sT0)}
        v_add_u32 {V(T[3])}, 512, {V(T[3])}
        v_add_u32 {V(vTW2)}, {V(T[2])}, {V(T[3])}
        v_mul_u32_u24 {V(T[2])}, 124, {V(T[1])}
        v_add3_u32 {V(vTW3)}, {V(vTW2)}, {V(T[2])}, 4
        v_lshl_add_u32 {V(vTW4)}, {V(T[0])}, 1, {V(T[3])}
        v_add_u32 {V(vTW4)}, 512, {V(vTW4)}
        ''')

    def wsrc_setup():
        ssum(sT0, (sA, 7), (sWI, 5))
        ssum(sT1, (sF8, 13), (sWI, 8), 4096)
        ssum(sT2, (sF8, 10), W_P1)
        a(f'''
        s_min_u32 {S(sT0)}, {S(sT0)}, 2720
        v_lshrrev_b32 {V(T[6])}, 1, {V(vL)}
        v_lshl_add_u32 {V(T[6])}, {S(sR)}, 6, {V(T[6])}
        v_and_b32 {V(T[7])}, 1, {V(vL)}
        v_lshl_add_u32 {V(T[7])}, {V(T[7])}, 4, {S(sT0)}
        s_movk_i32 {S(sT0)}, 2752
        v_mad_u32_u24 {V(vWS0)}, {V(T[6])}, {S(sT0)}, {V(T[7])}
        v_add_u32 {V(vWS1)}, {32*2752}, {V(vWS0)}
        v_lshl_add_u32 {V(vWDA)}, {V(vL)}, 2, {S(sT1)}
        v_lshl_add_u32 {V(vP1R)}, {V(vL)}, 4, {S(sT2)}
        v_lshl_add_u32 {V(vP1F)}, {V(vL)}, 7, {S(sT2)}
        ''')

    def ffn_setup():
        smul(sT0, sWI, YTS, YX)
        ssum(sT1, (sWI, 12), WL)
        a(f'''
        v_and_b32 {V(T[2])}, 3, {V(vL)}
        v_lshrrev_b32 {V(T[3])}, 2, {V(vL)}
        v_mul_u32_u24 {V(T[4])}, {YGS}, {V(T[2])}
        v_lshl_add_u32 {V(T[4])}, {V(T[3])}, 4, {V(T[4])}
        v_add_u32 {V(vY)}, {S(sT0)}, {V(T[4])}
        v_lshl_add_u32 {V(T[2])}, {V(T[2])}, 3, {S(sT1)}
        v_lshl_add_u32 {V(vWT)}, {V(T[3])}, 5, {V(T[2])}
        v_lshl_add_u32 {V(vWDR)}, {V(vL)}, 4, {S(sT1)}
        v_and_b32 {V(T[2])}, 255, v0
        v_lshrrev_b32 {V(T[4])}, 1, {V(T[2])}
        v_mul_u32_u24 {V(T[4])}, 6144, {V(T[4])}
        v_and_b32 {V(T[3])}, 1, {V(vL)}
        v_lshl_add_u32 {V(T[4])}, {V(T[3])}, 4, {V(T[4])}
        ''')
        ssum(sT1, (sF8, 5), W_FP)
        a(f'v_add_u32 {V(vFPA)}, {S(sT1)}, {V(T[4])}')
        ssum(sT0, (sA, 13), (sWI, 11), (sR, 7), W_P1)
        a(f'''
        s_lshl_b32 {S(sT1)}, {S(sR)}, 7
        v_and_b32 {V(T[2])}, 31, {V(vL)}
        v_lshl_add_u32 {V(vXS)}, {V(T[2])}, 2, {S(sT1)}
        s_lshl_b32 {S(sT1)}, {S(sWI)}, 8
        s_add_u32 {S(sT1)}, {S(sT1)}, {FP}
        v_lshl_add_u32 {V(vXW)}, {V(vL)}, 2, {S(sT1)}
        v_lshrrev_b32 {V(T[2])}, 4, {V(vL)}
        v_lshl_add_u32 {V(T[2])}, {V(T[2])}, 3, {S(sT1)}
        v_lshl_add_u32 {V(vXR)}, {V(T[3])}, 6, {V(T[2])}
        v_bfe_u32 {V(T[2])}, {V(vL)}, 3, 1
        v_and_b32 {V(T[3])}, 7, {V(vL)}
        v_lshl_add_u32 {V(T[3])}, {V(T[3])}, 4, {S(sT0)}
        v_lshl_add_u32 {V(vP1W)}, {V(T[2])}, 10, {V(T[3])}
        ''')

    def conv_setup():
        a(f'v_and_b32 {V(T[5])}, 15, {V(vL)}\nv_lshrrev_b32 {V(T[6])}, 4, {V(vL)}')
        smul(sT0, sW, R4S, R4)
        a(f'v_lshlrev_b32 {V(T[3])}, 3, {V(T[6])}\nv_sub_u32 {V(T[3])}, {V(T[5])}, {V(T[3])}')
        for reg, k in ((vCA, 32), (vCA2, 28)):
            a(f'''
            v_add_u32 {V(T[4])}, {k}, {V(T[3])}
            v_lshrrev_b32 {V(T[7])}, 4, {V(T[4])}
            v_lshl_add_u32 {V(reg)}, {V(T[4])}, 3, {S(sT0)}
            v_lshl_add_u32 {V(reg)}, {V(T[7])}, 4, {V(reg)}
            ''')
        smul(sT0, sW, US, U)
        a(f'''
        v_lshl_add_u32 {V(T[3])}, {V(T[6])}, 4, {S(sT0)}
        v_lshl_add_u32 {V(vCB)}, {V(T[5])}, 5, {V(T[3])}
        ''')
        smul(sT0, sW, YCS, YX)
        a(f'''
        v_mul_u32_u24 {V(T[3])}, {YGS}, {V(T[6])}
        v_lshl_add_u32 {V(T[3])}, {V(T[5])}, 4, {V(T[3])}
        v_add_u32 {V(vY)}, {S(sT0)}, {V(T[3])}
        ''')

    def slice_work():
        a('s_waitcnt vmcnt(0)' if PF1 else 's_waitcnt vmcnt(7)')
        stamp(1)
        a(f'''
        ds_write_b128 {V(slw)}, {V(vD,4)}
        ds_write_b128 {V(slw1)}, {V(vD+4,4)} offset:1024
        ds_read_b64 {V(vG,2)}, {V(slr)}
        ds_read_b64 {V(vG+2,2)}, {V(slr)} offset:128
        ds_read_b64 {V(vG+4,2)}, {V(slr1)}
        ds_read_b64 {V(vG+6,2)}, {V(slr1)} offset:128
        s_waitcnt lgkmcnt(0)
        global_store_dwordx4 {V(ina)}, {V(vG,4)}, {S(sWS,2)}
        global_store_dwordx4 {V(ina1)}, {V(vG+4,4)}, {S(sWS,2)}
        ''')


    S1, S2, S3, S4 = vXF, vXF + 1, vXF + 2, vXF + 3

    def red32(regs):
        for m in ('row_shr:1', 'row_shr:2', 'row_shr:4', 'row_shr:8'):
            for r in regs: a(f'v_add_f32_dpp {V(r)}, {V(r)}, {V(r)} {m} row_mask:0xf bank_mask:0xf')
        for r in regs: a(f'v_add_f32_dpp {V(r)}, {V(r)}, {V(r)} row_bcast:15 row_mask:0xa bank_mask:0xf')

    def ln_work():
        for r in (S1, S2, S3, S4): a(f'v_mov_b32 {V(r)}, 0')
        NP = 0 if PF1 else 7
        a(f's_setprio 2\ns_waitcnt vmcnt({3 + NP})')
        for i in range(8): a(f'v_dot2_f32_bf16 {V(S4)}, {V(vG+i)}, {S(sONES)}, {V(S4)}')
        red32([S4])
        a(f's_waitcnt vmcnt({1 + NP})')
        stamp(1)
        nlate = 0
        if o['prefetch']:
            a('s_mov_b64 exec, 0xffff')
            a(f'global_load_dword {V(vPFD)}, {V(pfi)}, {S(sWS,2)} nt'); nlate += 1
            alllanes()
        for i in range(8):
            a(f'v_dot2_f32_bf16 {V(S1)}, {V(vD+i)}, {S(sONES)}, {V(S1)}')
            a(f'v_dot2_f32_bf16 {V(S2)}, {V(vD+i)}, {V(vD+i)}, {V(S2)}')
            a(f'v_dot2_f32_bf16 {V(S3)}, {V(vD+i)}, {V(vG+i)}, {V(S3)}')
        red32([S1, S2, S3])
        t = T[0]; g = vE
        a(f'''
        v_mul_f32 {V(S1)}, 0x3b000000, {V(S1)}
        v_mul_f32 {V(S2)}, 0x3b000000, {V(S2)}
        s_waitcnt vmcnt({nlate + NP})
        v_fma_f32 {V(S2)}, -{V(S1)}, {V(S1)}, {V(S2)}
        v_readfirstlane_b32 {S(sTAG)}, {V(vEP)}
        v_max_f32 {V(S2)}, 0, {V(S2)}
        v_cvt_pk_bf16_f32 {V(t)}, {V(S1)}, {V(S2)}
        s_add_u32 {S(sTAG)}, {S(sTAG)}, 16
        v_and_b32 {V(t)}, {S(sHI)}, {V(t)}
        s_and_b32 {S(sTAG)}, {S(sTAG)}, -16
        v_add_f32 {V(t)}, 0x3727c5ac, {V(t)}
        s_or_b32 {S(sTAGX)}, {S(sTAG)}, {S(sXCC)}
        v_cvt_pk_bf16_f32 {V(t)}, {V(t)}, {V(t)}
        v_and_b32 {V(t)}, {S(sHI)}, {V(t)}
        v_sqrt_f32 {V(t)}, {V(t)}
        v_mov_b32 {V(g+3)}, {S(sTAGX)}
        v_cvt_pk_bf16_f32 {V(g+1)}, {V(S1)}, {V(t)}
        v_and_b32 {V(t)}, {S(sHI)}, {V(g+1)}
        v_lshlrev_b32 {V(t+1)}, 16, {V(g+1)}
        v_rcp_f32 {V(t)}, {V(t)}
        v_fma_f32 {V(S3)}, -{V(t+1)}, {V(S4)}, {V(S3)}
        v_readlane_b32 {S(sT0)}, {V(g+1)}, 31
        v_mul_f32 {V(S3)}, {V(S3)}, {V(t)}
        v_cvt_pk_bf16_f32 {V(S3)}, {V(S3)}, {V(S3)}
        v_mov_b32 {V(g)}, {S(sT0)}
        v_ashrrev_i32 {V(t)}, 31, {V(S3)}
        v_or_b32 {V(t)}, 0x80000000, {V(t)}
        v_xor_b32 {V(t)}, {V(t)}, {V(S3)}
        v_and_or_b32 {V(t)}, {V(t)}, {S(sHI)}, {V(rk)}
        s_add_u32 {S(sT1)}, {S(sTAG)}, 1
        v_readlane_b32 {S(sT0)}, {V(t)}, 31
        v_mov_b32 {V(t+2)}, {S(sT1)}
        v_max_u32 {V(g+2)}, {S(sT0)}, {V(t)}
        ''')
        lane63()
        a(f'global_store_dwordx4 {V(vSTP)}, {V(g,4)}, {S(sWS,2)} sc1')
        a(f'ds_write_b32 {V(vFFW)}, {V(t+2)} offset:{TG - FF}')
        alllanes()
        a(f"s_setprio 0\ns_waitcnt vmcnt({1 + nlate}) lgkmcnt(0)")
        stamp(2)

    if not PF1:
        if o['early']: table_setup(); wsrc_setup(); ffn_setup()
        ln_work()
        a('s_branch L_kgen\nL_c_slice:')
        if o['early']: conv_setup()
        slice_work()
        a('s_waitcnt vmcnt(2)')
    a('L_kgen:')
    are, aim, bre, bim, cre, cim, dt = [vP + i for i in range(7)]
    t0 = vP + 7
    z1, z2, z4, ZZ, w1, w2, w4 = [vP + 8 + 2 * i for i in range(7)]
    hq = [vP + 24 + 2 * i for i in range(8)]
    lq = [vP + 40 + 2 * i for i in range(8)]
    cv = [vP + 56 + i for i in range(8)]
    a(f'''
    v_mov_b32 {V(t0)}, 0x3fb8aa3b
    v_mul_f32 {V(dt)}, {V(dt)}, {V(t0)}
    v_exp_f32 {V(dt)}, {V(dt)}
    v_mul_f32 {V(are)}, {V(t0)}, {V(are)}
    v_cvt_pk_bf16_f32 {V(dt)}, {V(dt)}, {V(dt)}
    v_mul_f32 {V(aim)}, 0.15915494, {V(aim)}
    v_and_b32 {V(dt)}, {S(sHI)}, {V(dt)}
    v_mul_f32 {V(are)}, {V(dt)}, {V(are)}
    v_mul_f32 {V(aim)}, {V(dt)}, {V(aim)}
    v_exp_f32 {V(cv[0])}, {V(are)}
    v_fract_f32 {V(cv[1])}, {V(aim)}
    v_mul_f32 {V(are)}, 0x43800000, {V(are)}
    v_cos_f32 {V(z1)}, {V(cv[1])}
    v_mul_f32 {V(aim)}, 0x43800000, {V(aim)}
    v_sin_f32 {V(z1+1)}, {V(cv[1])}
    v_fract_f32 {V(cv[3])}, {V(aim)}
    v_exp_f32 {V(cv[2])}, {V(are)}
    v_mul_f32 {V(z1)}, {V(cv[0])}, {V(z1)}
    v_cos_f32 {V(ZZ)}, {V(cv[3])}
    v_mul_f32 {V(z1+1)}, {V(cv[0])}, {V(z1+1)}
    v_sin_f32 {V(ZZ+1)}, {V(cv[3])}
    v_mul_f32 {V(bre)}, {V(dt)}, {V(bre)}
    v_mul_f32 {V(bim)}, {V(dt)}, {V(bim)}
    ''')
    cmul(z2, z1, z1)
    a(f'v_mul_f32 {V(ZZ)}, {V(cv[2])}, {V(ZZ)}\nv_mul_f32 {V(ZZ+1)}, {V(cv[2])}, {V(ZZ+1)}')
    cmul(z4, z2, z2)
    cmul(hq[0], cre, bre)
    ci = [0]; m0_hi = [False]; pend = []

    def flush(n=99):
        for x in pend[:n]: a(x)
        del pend[:n]

    def put(row, reg, neg):
        c = cv[ci[0] % 8]; ci[0] += 1
        a(f"v_cvt_pk_bf16_f32 {V(c)}, {V(reg)}, {'-' if neg else ''}{V(reg+1)}")
        off = row * RS - (30 * RS if m0_hi[0] else 0)
        assert 0 <= off < 65536, (row, off)
        pend.append(f'ds_write_addtid_b32 {V(c)} offset:{STAGE + off}')
        if len(pend) >= o['dsg'] + o['dslate']: flush(o['dsg'])
    cmul(w1, z4, z4)
    cmul(hq[1], hq[0], z1)
    cmul(w2, w1, w1)
    put(1, w1, False)
    cmul(hq[2], hq[0], z2)
    cmul(lq[3], w2, w1)
    put(2, w2, False)
    cmul(w4, w2, w2)
    put(3, lq[3], False)
    cur = {1: w1, 2: w2, 3: lq[3], 4: w4}
    put(4, w4, False)

    def lo_step(j):
        d = lq[j % 8]
        cmul(d, cur[j - 4], w4); cur[j] = d
        put(j, d, False)
    def inject(j):
        if not PF1: return
        if j == o['jc']:
            a(f's_cmp_eq_u32 {S(sROLE)}, 1\ns_cbranch_scc1 L_noslice'); slice_work(); a('L_noslice:')
        if j == o['jh']:
            a(f's_cmp_eq_u32 {S(sROLE)}, 0\ns_cbranch_scc1 L_noln'); ln_work(); a('L_noln:')
    inject(4)
    for j in range(5, o['jf']):
        lo_step(j); inject(j)
    a(f's_cmp_eq_u32 {S(sROLE)}, 1\ns_cbranch_scc1 L_noflag')
    spin_init()
    a(f'''
    L_tagspin:
    ds_read_b32 {V(T[0])}, {V(tga)}
    s_waitcnt lgkmcnt(0)
    v_readfirstlane_b32 {S(sTAG)}, {V(T[0])}
    s_cmp_lg_u32 {S(sTAG)}, 0
    s_cbranch_scc1 L_tagok
    ''')
    spin_next('L_tagspin')
    a(f'''
    L_tagok:
    s_and_b32 {S(sTAG)}, {S(sTAG)}, -16
    s_or_b32 {S(sTAGX)}, {S(sTAG)}, {S(sXCC)}
    v_mov_b32 {V(T[0])}, {S(sTAGX)}
    s_mov_b64 exec, 1
    s_waitcnt vmcnt(0)
    global_store_dword {V(vFLO)}, {V(T[0])}, {S(sWS,2)}
    s_mov_b64 exec, -1
    ''')
    if o['touch'] == 1:
        a(f's_mov_b64 exec, 1\nglobal_load_dword {V(vTLB)}, {V(vXG)}, {S(sOUT,2)}\ns_mov_b64 exec, -1')
    stamp(2)
    a('L_noflag:')
    for j in range(o['jf'], 30): lo_step(j)
    flush()
    ssum(sT0, (sW, 8), 30 * RS)
    a(f's_mov_b32 m0, {S(sT0)}')
    m0_hi[0] = True
    for j in range(30, 32): lo_step(j)
    put(32, hq[0], True); put(33, hq[1], True); put(34, hq[2], True)
    cmul(hq[3], hq[1], z2); cmul(hq[4], hq[0], z4)
    put(35, hq[3], True); put(36, hq[4], True)
    a(f'global_load_dword {V(vPFD)}, {V(vFL)}, {S(sWS,2)} sc1')
    cmul(hq[5], hq[1], z4); cmul(hq[6], hq[2], z4); cmul(hq[7], hq[3], z4)
    put(37, hq[5], True); put(38, hq[6], True); put(39, hq[7], True)
    A0, A2, A4, A6, B0, B4, C0, C4 = lq
    cmul(A0, hq[0], ZZ); cmul(A2, hq[2], ZZ); cmul(A4, hq[4], ZZ); cmul(A6, hq[6], ZZ)
    put(40, A0, True)
    cmul(B0, A0, ZZ); put(41, A2, True); cmul(B4, A4, ZZ); put(42, A4, True)
    cmul(C0, B0, ZZ); put(43, A6, True); cmul(C4, B4, ZZ); put(44, B0, True)
    cmul(hq[1], C0, ZZ); put(45, B4, True); put(46, C0, True)
    cmul(hq[2], hq[1], ZZ); put(47, C4, True); put(48, hq[1], True)
    cmul(hq[3], hq[2], ZZ); put(49, hq[2], True)
    cmul(hq[4], hq[3], ZZ); put(50, hq[3], True)
    cmul(hq[5], hq[4], ZZ); put(51, hq[4], True); put(52, hq[5], True)
    flush()
    stamp(3)

    KD = vP; KF = vP + 16; NB = o['nb']

    def kread(sidx):
        r = KF + 8 * (sidx % NB)
        a(f'ds_read_b128 {V(r,4)}, {V(vKA)} offset:{32*sidx}')
        a(f'ds_read_b128 {V(r+4,4)}, {V(vKB)} offset:{32*sidx}')

    def kmfma(cinit, shadow=()):
        for sidx in range(8):
            if sidx >= 2 and sidx - 2 < len(shadow): shadow[sidx - 2]()
            outstanding = min(8, sidx + NB) - sidx - 1
            a(f's_waitcnt lgkmcnt({2*outstanding})')
            r = KF + 8 * (sidx % NB)
            a(f"v_mfma_f32_32x32x16_bf16 {V(KD,16)}, {V(r,4)}, {V(r+4,4)}, {'0' if (sidx == 0 and not cinit) else V(KD,16)}")
            if sidx + NB < 8: kread(sidx + NB)

    def fetch_tile(tag):
        a(f's_waitcnt vmcnt(0)\nv_cmp_ne_u32 vcc, {S(sTAGX)}, {V(vPFD)}')
        if o['force_slow']: a(f's_branch L_gather{tag}')
        a(f's_cbranch_vccz L_fast{tag}')
        spin_init()
        a(f'''
        L_flagspin{tag}:
        global_load_dword {V(vPFD)}, {V(vFL)}, {S(sWS,2)} sc1
        global_load_dword {V(T[0])}, {V(vXC)}, {S(sWS,2)} sc1
        s_waitcnt vmcnt(0)
        v_cmp_ne_u32 vcc, {S(sTAGX)}, {V(vPFD)}
        s_cbranch_vccz L_fast{tag}
        v_xor_b32 {V(T[0])}, {S(sTAGX)}, {V(T[0])}
        v_add_u32 {V(T[0])}, -1, {V(T[0])}
        v_cmp_gt_u32 vcc, 15, {V(T[0])}
        s_cbranch_vccnz L_gather{tag}
        ''')
        spin_next(f'L_flagspin{tag}')
        a(f'L_gather{tag}:')
        for r in range(4):
            a(f'global_load_dwordx2 {V(vD+2*r,2)}, {V(vXG)}, {S(sX,2)} offset:{r*1024}')
        a(f'''
        s_branch L_stats{tag}
        L_fast{tag}:
        global_load_dwordx4 {V(vD,4)}, {V(vIN)}, {S(sWS,2)} sc1
        global_load_dwordx4 {V(vD+4,4)}, {V(vIN)}, {S(sWS,2)} offset:64 sc1
        L_stats{tag}:
        global_load_dwordx4 {V(vG,4)}, {V(vST0)}, {S(sWS,2)} sc1
        global_load_dwordx4 {V(vG+4,4)}, {V(vST1)}, {S(sWS,2)} sc1
        ''')

    WR = vP + 80
    def w_dma():
        for t in range(4):
            a(f'global_load_dwordx4 {V(WR+4*t,4)}, {V((vWS0, vWS1)[t&1])}, {S((sWG, sWU)[t>>1],2)}')

    def wd_dma():
        a(f"s_mov_b64 exec, 0xff\nglobal_load_dword {V(vPFW)}, {V(vP1F)}, {S(sWS,2)}{' nt' if o['p1nt'] else ''}\ns_mov_b64 exec, -1")
        for i in range(8):
            a(f'global_load_dword {V(vWD+i)}, {V(vWDA)}, {S(sWD,2)} offset:{i*1024 - 4096}')

    XP = vG
    def r4_build(tag, mid=None, vGA=vGA, vSEL=vSEL, vR4W=vR4W, Wq=vP, Q=vP+16, reads=True, writes=True):
        for c in range(4 if reads else 0):
            a(f'ds_read2_b32 {V(Wq+4*c,2)}, {V(vGA+2*c)} offset0:0 offset1:1')
            a(f'ds_read2_b32 {V(Wq+4*c+2,2)}, {V(vGA+2*c+1)} offset0:0 offset1:1')
        if tag == 'c': a(f'''
        s_cmp_lg_u32 {S(sW)}, 3
        s_cbranch_scc1 L_nopad{tag}
        v_bfe_u32 {V(T[0])}, {V(vL)}, 3, 2
        v_and_b32 {V(T[1])}, 7, {V(vL)}
        v_mul_u32_u24 {V(T[0])}, {R4S}, {V(T[0])}
        v_lshl_add_u32 {V(T[0])}, {V(T[1])}, 4, {V(T[0])}
        ''')
        if tag == 'c':
            for i in range(4): a(f'v_mov_b32 {V(T[4+i])}, 0')
        if tag == 'c': a(f'''
        s_mov_b32 exec_hi, 0
        ds_write_b128 {V(T[0])}, {V(T[4],4)} offset:{R4}
        s_mov_b64 exec, -1
        s_waitcnt lgkmcnt(1)
        L_nopad{tag}:
        ''')
        if tag == 'h' and o['hprio']: a(f"s_setprio {o['hprio2']}")
        if mid: mid()
        for c in range(4 if writes else 0):
            W0, W1, W2, W3 = [Wq + 4 * c + i for i in range(4)]
            q = Q + 8 * c
            if not mid: a('s_waitcnt lgkmcnt(6)')
            a(f'''
            v_perm_b32 {V(q+0)}, {V(W2)}, {V(W1)}, {V(vSEL+2)}
            v_perm_b32 {V(q+1)}, {V(W1)}, {V(W0)}, {V(vSEL+0)}
            v_perm_b32 {V(q+2)}, {V(W3)}, {V(W2)}, {V(vSEL+3)}
            v_perm_b32 {V(q+3)}, {V(W1)}, {V(W0)}, {V(vSEL+1)}
            v_mov_b32 {V(q+5)}, {V(q+0)}
            ds_write_b128 {V(vR4W)}, {V(q,4)} offset:{c*R4S}
            v_perm_b32 {V(q+4)}, {V(W3)}, {V(W2)}, {V(vSEL+4)}
            v_perm_b32 {V(q+6)}, {V(W3)}, {V(W2)}, {V(vSEL+5)}
            v_mov_b32 {V(q+7)}, {V(q+2)}
            ds_write_b128 {V(vR4W)}, {V(q+4,4)} offset:{c*R4S + 16}
            ''')

    def normalise(tag):
        if tag == 'h':
            a(f's_cmp_eq_u32 {S(sP1)}, 0\ns_cbranch_scc1 L_nw0')
            w_dma()
            if not o['early']: ffn_setup()
            a("s_waitcnt vmcnt(4)\ns_branch L_nw1\nL_nw0:")
            if not o['early']: ffn_setup()
            a("s_waitcnt vmcnt(0)\nL_nw1:")
        else:
            a('s_waitcnt vmcnt(0)')
        spin_init()
        a(f'''
        L_statspin{tag}:
        v_xor_b32 {V(T[0])}, {S(sTAG)}, {V(vG+3)}
        v_xor_b32 {V(T[1])}, {S(sTAG)}, {V(vG+7)}
        v_or_b32 {V(T[0])}, {V(T[0])}, {V(T[1])}
        v_cmp_lt_u32 vcc, 15, {V(T[0])}
        s_cbranch_vccz L_statok{tag}
        global_load_dwordx4 {V(vG,4)}, {V(vST0)}, {S(sWS,2)} sc1
        global_load_dwordx4 {V(vG+4,4)}, {V(vST1)}, {S(sWS,2)} sc1
        s_waitcnt vmcnt(0)
        ''')
        spin_next(f'L_statspin{tag}')
        a(f'L_statok{tag}:')
        stamp(7)
        a(f'''
        v_cmp_ne_u32 vcc, {S(sTAGX)}, {V(vG+3)}
        s_and_b64 vcc, vcc, {S(sCM,2)}
        s_cbranch_vccz L_local{tag}
        v_mov_b32 {V(T[0])}, {FF}
        v_mov_b32 {V(T[1])}, 1
        ds_write_b32 {V(T[0])}, {V(T[1])}
        s_waitcnt lgkmcnt(0)
        L_local{tag}:
        ''')
        stq = [vG, vG + 1, vG + 4, vG + 5]
        rho = [T[1], T[3], T[5], T[7]]; mu = [T[0], T[2], T[4], T[6]]
        key = T[8]
        for r in range(4): a(f'v_and_b32 {V(rho[r])}, {S(sHI)}, {V(stq[r])}')
        a(f'v_max_u32 {V(key)}, {V(vG+2)}, {V(vG+6)}')
        for r in range(4):
            a(f'v_rcp_f32 {V(rho[r])}, {V(rho[r])}')
            a(f'v_lshlrev_b32 {V(mu[r])}, 16, {V(stq[r])}')
        kred = ['row_shr:1 row_mask:0xf', 'row_shr:2 row_mask:0xf', 'row_shr:4 row_mask:0xf', 'row_shr:8 row_mask:0xf',
                'row_bcast:15 row_mask:0xa', 'row_bcast:31 row_mask:0xc']
        def kr(i): a(f'v_max_u32_dpp {V(key)}, {V(key)}, {V(key)} {kred[i]} bank_mask:0xf')
        for r in range(4):
            a(f'''
            v_mul_f32_e64 {V(mu[r])}, -{V(mu[r])}, {V(rho[r])}
            v_lshlrev_b32 {V(vXF+4*r)}, 16, {V(vD+2*r)}
            v_and_b32 {V(vXF+4*r+1)}, {S(sHI)}, {V(vD+2*r)}
            v_lshlrev_b32 {V(vXF+4*r+2)}, 16, {V(vD+2*r+1)}
            v_and_b32 {V(vXF+4*r+3)}, {S(sHI)}, {V(vD+2*r+1)}
            ''')
            kr(r)
            for c in range(4): a(f'v_fma_f32 {V(vXN+4*r+c)}, {V(vXF+4*r+c)}, {V(rho[r])}, {V(mu[r])}')
        kr(4)
        ssum(sT0, (sW, 2), AM)
        for c in range(4):
            a(f'''
            v_cvt_pk_bf16_f32 {V(XP+2*c)}, {V(vXN+c)}, {V(vXN+4+c)}
            v_cvt_pk_bf16_f32 {V(XP+2*c+1)}, {V(vXN+8+c)}, {V(vXN+12+c)}
            ds_write_b64 {V(vUW)}, {V(XP+2*c,2)} offset:{c*US}
            ''')
            if c == 0: kr(5)
            if c == 1: a(f'v_mov_b32 {V(T[9])}, {S(sT0)}')
        lane63()
        a(f'ds_write_b32 {V(T[9])}, {V(key)}')
        alllanes()

    a(f's_cmp_eq_u32 {S(sROLE)}, 1\ns_cbranch_scc1 L_h_k')
    if o['cearly'] == 2: fetch_tile('c')
    for i in range(NB): kread(i)
    kmfma(False, () if o['early'] else (conv_setup,))
    a(f'v_mov_b32 {V(T[1])}, 1')
    for i in range(3): a(f'ds_write_b128 {V(vPD)}, {V(KD+4*i,4)} offset:{1024*i}')
    a(f's_mov_b64 exec, 1\nds_write_b32 {V(tga)}, {V(T[1])} offset:{PF - TG}\ns_mov_b64 exec, -1')
    stamp(4)
    if o['cearly'] != 2: fetch_tile('c')
    if o['call']:
        sel_setup('a', 0, vGA, vSEL, vR4W, True)
        sel_setup('b', 256, GA2, SEL2, R4W2, False)
    if o['cearly']: normalise('c')
    a('s_branch L_b3')
    a('L_h_k:')
    if o['hfetch']: fetch_tile('h')
    spin_init()
    a(f'''
    L_pspin:
    ds_read_b32 {V(T[1])}, {V(vFFW)} offset:{PF - FF}
    ''')
    for i in range(3): a(f'ds_read_b128 {V(KD+4*i,4)}, {V(vPD)} offset:{1024*i}')
    for i in range(NB - 1): kread(i)
    a(f'''
    s_waitcnt lgkmcnt({2*(NB-1) + 3})
    v_readfirstlane_b32 {S(sT0)}, {V(T[1])}
    s_cmp_lg_u32 {S(sT0)}, 0
    s_cbranch_scc1 L_pok
    s_waitcnt lgkmcnt(0)
    ''')
    spin_next('L_pspin')
    a('L_pok:')
    kread(NB - 1)
    kmfma(True, () if o['early'] else (table_setup, wsrc_setup))
    for i in range(6): a(f'v_cvt_pk_bf16_f32 {V(T[i])}, {V(KD+2*i)}, {V(KD+2*i+1)}')
    a(f'''
    ds_write_b64 {V(vTW1)}, {V(T[0],2)}
    ds_write_b32 {V(vTW2)}, {V(T[2])}
    ds_write_b32 {V(vTW3)}, {V(T[3])}
    ds_write_b16 {V(vTW4)}, {V(T[4])}
    ds_write_b16_d16_hi {V(vTW4)}, {V(T[4])} offset:64
    ds_write_b16 {V(vTW4)}, {V(T[5])} offset:128
    ds_write_b16_d16_hi {V(vTW4)}, {V(T[5])} offset:192
    ''')
    stamp(4)
    if not o['hfetch']: fetch_tile('h')
    if o['hprio']: a(f"s_setprio {o['hprio']}")
    a('L_b3:\ns_waitcnt lgkmcnt(0)')
    stamp(5)
    a('s_barrier')

    a(f's_cmp_eq_u32 {S(sROLE)}, 1\ns_cbranch_scc1 L_h_r4')
    if o['call']:
        r4_build('c', writes=False)
        def mid2():
            a('s_waitcnt lgkmcnt(2)')
            r4_build('x', vGA=GA2, Wq=vP+48, writes=False)
            a('s_waitcnt lgkmcnt(8)')
        r4_build('x', mid2, reads=False)
        r4_build('x', lambda: a('s_waitcnt lgkmcnt(8)'), vSEL=SEL2, vR4W=R4W2, Wq=vP+48, Q=vP+64, reads=False)
    else: r4_build('c')
    stamp(6)
    if not o['cearly']: normalise('c')
    if o['roll']:
        for i in range(16): a(f'v_mov_b32 {V(vP+i)}, 0')
    a('s_branch L_b4\nL_h_r4:')
    if o['call']:
        a(f"s_setprio {o['hprio2']}")
        normalise('h')
    elif o['hnormfirst']:
        def mid():
            normalise('h')
            a('s_waitcnt lgkmcnt(5)'); stamp(6)
        r4_build('h', mid)
    else:
        r4_build('h'); stamp(6); normalise('h')
    a('s_setprio 0\nL_b4:')
    a(f'v_mov_b32 {V(T[9])}, {AM}\ns_waitcnt lgkmcnt(0)')
    stamp(8)
    a('s_barrier')

    def read_idx():
        a(f'''
        ds_read_b128 {V(T[0],4)}, {V(T[9])}
        ds_read_b128 {V(T[4],4)}, {V(T[9])} offset:16
        s_waitcnt lgkmcnt(0)
        v_max3_u32 {V(T[0])}, {V(T[0])}, {V(T[1])}, {V(T[2])}
        v_max3_u32 {V(T[3])}, {V(T[3])}, {V(T[4])}, {V(T[5])}
        v_max3_u32 {V(T[0])}, {V(T[0])}, {V(T[6])}, {V(T[7])}
        v_max_u32 {V(T[0])}, {V(T[0])}, {V(T[3])}
        v_readfirstlane_b32 {S(sKEY)}, {V(T[0])}
        s_andn2_b32 {S(sIDX)}, 2047, {S(sKEY)}
        s_lshr_b32 {S(sT0)}, {S(sIDX)}, 8
        s_lshr_b32 {S(sT1)}, {S(sIDX)}, 9
        s_xor_b32 {S(sT0)}, {S(sT0)}, {S(sT1)}
        s_xor_b32 {S(sT0)}, {S(sT0)}, {S(sH)}
        s_andn2_b32 {S(sOWN)}, 1, {S(sT0)}
        ''')

    def stat_addr(dst):
        a(f's_lshr_b32 {S(sT0)}, {S(sIDX)}, 2\ns_bfe_u32 {S(sT1)}, {S(sIDX)}, 0x10001\ns_and_b32 {S(sT2)}, {S(sIDX)}, 1')
        ssum(sT0, (sT0, 4), (sT1, 13), (sT2, 2), W_ST)
        a(f'v_mov_b32 {V(dst)}, {S(sT0)}')

    a(f's_cmp_eq_u32 {S(sROLE)}, 1\ns_cbranch_scc1 L_helper')

    ACC = vP; FR = vP + 16; NFR = 28
    if o['touch'] == 2:
        a(f's_mov_b64 exec, 1\nglobal_load_dword {V(T[10])}, {V(vXG)}, {S(sOUT,2)}\ns_mov_b64 exec, -1')
    stamp(10)
    a(f's_setprio 1\ns_cmp_eq_u32 {S(sH)}, 0\ns_cbranch_scc0 L_conv1')

    def conv(h):
        tl = tiles(h)
        ops = []
        for c0 in range(8):
            lst = [(i, c1, q - c1) for i, q in enumerate(tl) for c1 in range(q + 1)]
            have = set(); seq = []
            while lst:
                def cost(x):
                    base = (2 * (('A', x[1]) not in have) + (('B', x[2]) not in have), bool(seq) and seq[-1][0] == x[0], max(x[1], x[2]))
                    return ((x[0],) + base) if c0 == 7 else base
                x = min(lst, key=cost); lst.remove(x); seq.append(x); have.add(('A', x[1])); have.add(('B', x[2]))
            for i, c1, qp in seq: ops.append((i, ('A', c0, c1), ('B', c0, qp)))
        order = []; last = {}; lastacc = {}
        for n, (i, ak, bk) in enumerate(ops):
            lastacc[i] = n
            for k in (bk, ak):
                if k not in last: order.append(k)
                last[k] = n
        L = []
        for k in order: L += [(k, 0), (k, 1)] if k[0] == 'A' else [(k, 0)]
        endidx = {}
        for j, (k, p) in enumerate(L): endidx[k] = j + 1
        need = []; m = 0
        for (i, ak, bk) in ops:
            m = max(m, endidx[ak], endidx[bk]); need.append(m)
        free = list(range(NFR)); slot = {}
        st = dict(issued=0, done=0)
        seqpos = []
        nds = [0]
        donepos = [0]
        MAXOUT = o['maxout']; G = o['group']

        def can_issue():
            if st['issued'] >= len(L) or nds[0] - donepos[0] >= MAXOUT: return False
            k, p = L[st['issued']]
            return p == 1 or bool(free)

        def issue():
            k, p = L[st['issued']]
            if p == 0: slot[k] = free.pop(0)
            r = FR + 4 * slot[k]
            if k[0] == 'A':
                a(f'ds_read_b64 {V(r+2*p,2)}, {V(vCA2 if p else vCA)} offset:{CAS*(8*k[2] + k[1])}')
            else:
                a(f'ds_read_b128 {V(r,4)}, {V(vCB)} offset:{2*(224 + 256*k[2] - 32*k[1])}')
            st['issued'] += 1; nds[0] += 1; seqpos.append(nds[0])
        started = set(); written = set()
        while can_issue(): issue()
        for n, (i, ak, bk) in enumerate(ops):
            if need[n] > st['done']:
                while st['issued'] < need[n]:
                    assert nds[0] - donepos[0] < 15
                    issue()
                tgt = need[n]
                for m2 in range(n, min(n + G, len(ops))):
                    if need[m2] <= st['issued'] - o['minfly'] or need[m2] <= len(L) == st['issued']: tgt = max(tgt, need[m2])
                a(f's_waitcnt lgkmcnt({nds[0] - seqpos[tgt-1]})'); st['done'] = tgt; donepos[0] = seqpos[tgt - 1]
            acc = ACC + 4 * i
            cin = V(acc, 4) if i in started else '0'
            started.add(i)
            a(f'v_mfma_f32_16x16x32_bf16 {V(acc,4)}, {V(FR+4*slot[ak],4)}, {V(FR+4*slot[bk],4)}, {cin}')
            for k in (ak, bk):
                if last[k] == n: free.append(slot[k])
            budget = 2
            if n + 1 < len(ops) and need[n + 1] > st['done']: budget = 1
            for i2 in range(4):
                if i2 not in written and lastacc[i2] + 4 <= n and budget > 0 and nds[0] - donepos[0] < 15:
                    a(f'ds_write_b128 {V(vY)}, {V(ACC+4*i2,4)} offset:{i2*YTS}')
                    written.add(i2); nds[0] += 1; budget -= 1
            while budget > 0 and can_issue():
                issue(); budget -= 1
        for i2 in range(4):
            if i2 not in written: a(f'ds_write_b128 {V(vY)}, {V(ACC+4*i2,4)} offset:{i2*YTS}')
    def conv_rolled(h):
        tl = tiles(h)
        lst = [(i, c1, q - c1) for i, q in enumerate(tl) for c1 in range(q + 1)]
        have = set(); seq = []
        while lst:
            x = min(lst, key=lambda x: (2 * (('A', x[1]) not in have) + (('B', x[2]) not in have), bool(seq) and seq[-1][0] == x[0], max(x[1], x[2])))
            lst.remove(x); seq.append(x); have.add(('A', x[1])); have.add(('B', x[2]))
        L1 = []; seen = set(); end1 = {}
        for (i, c1, qp) in seq:
            for k in (('B', qp), ('A', c1)):
                if k not in seen:
                    seen.add(k); L1 += [(k, 0), (k, 1)] if k[0] == 'A' else [(k, 0)]; end1[k] = len(L1)
        NL = len(L1); NM = len(seq)
        def need(n):
            st, r = divmod(n, NM)
            return st * NL + max(max(end1[('A', c1)], end1[('B', qp)]) for (i, c1, qp) in seq[:r + 1])
        def slot(k, st): return FR + 4 * ((k[1] + (8 if k[0] == 'B' else 0)) + 16 * (st & 1))
        def load(j):
            st, r = divmod(j, NL); k, p = L1[r]; rg = slot(k, st)
            if k[0] == 'A': a(f'ds_read_b64 {V(rg+2*p,2)}, {V(vCA2 if p else vCA)} offset:{CAS*(8*k[1] + st)}')
            else: a(f'ds_read_b128 {V(rg,4)}, {V(vCB)} offset:{2*(224 + 256*k[1] - 32*st)}')
        P = o['pro']; G = o['rg']
        for j in range(P): load(j)
        a(f's_mov_b32 {S(sCNT)}, 4\nL_cloop{h}:')
        issued = P; done = ('x', 0)
        donecnt = need(0) - 1 - NL
        for n in range(2 * NM):
            if n % G == 0:
                tgt = need(min(n + G - 1, 2 * NM - 1))
                assert 0 <= issued - tgt <= 15, (n, issued, tgt)
                a(f's_waitcnt lgkmcnt({issued - tgt})'); donecnt = tgt
            st, r = divmod(n, NM); i, c1, qp = seq[r]
            if n == 2 * NM - 1: a(f's_sub_u32 {S(sCNT)}, {S(sCNT)}, 1\ns_cmp_lg_u32 {S(sCNT)}, 0')
            a(f'v_mfma_f32_16x16x32_bf16 {V(ACC+4*i,4)}, {V(slot(("A",c1),st),4)}, {V(slot(("B",qp),st),4)}, {V(ACC+4*i,4)}')
            want = P + ((n + 1) * 2 * NL + (2 * NM - 1)) // (2 * NM) if n < 2 * NM - 2 else P + 2 * NL
            want = min(want, P + 2 * NL)
            while issued < want:
                assert issued - donecnt < 16
                load(issued); issued += 1
            if n == 2 * NM - 2:
                a(f'v_add_u32 {V(vCA)}, {2*CAS}, {V(vCA)}\nv_add_u32 {V(vCA2)}, {2*CAS}, {V(vCA2)}\nv_add_u32 {V(vCB)}, -128, {V(vCB)}')
        a(f's_cbranch_scc1 L_cloop{h}')
        a('s_nop 3')
        for i2 in range(4): a(f'ds_write_b128 {V(vY)}, {V(ACC+4*i2,4)} offset:{i2*YTS}')
    cv_ = conv_rolled if o['roll'] else conv
    cv_(0)
    a('s_branch L_convdone\nL_conv1:')
    cv_(1)
    a('L_convdone:\ns_waitcnt lgkmcnt(0)')
    stamp(9)
    a(f's_barrier\ns_cmp_lg_u32 {S(sW)}, 0\ns_cbranch_scc1 L_exit')
    a(f'''
    s_cmp_lg_u32 s2, 0
    s_cbranch_scc1 L_noep
    v_mov_b32 {V(T[10])}, 0
    v_mov_b32 {V(T[11])}, {S(sTAG)}
    s_mov_b64 exec, 1
    global_store_dword {V(T[10])}, {V(T[11])}, {S(sWS,2)} sc1
    s_mov_b64 exec, -1
    L_noep:
    ''')
    read_idx()
    a(f's_cmp_eq_u32 {S(sOWN)}, 0\ns_cbranch_scc1 L_exit\ns_setprio 3')
    F = vP
    par, xo, fpa = T[12], T[13], T[14]
    y0, y1, n0, n1, d0, d1, sg, xv, sv, x0, x1 = [vXF + i for i in range(11)]
    a(f'v_and_b32 {V(par)}, 1, {V(vL)}')
    ssum(sT0, (sIDX, 10), (sCH0, 1))
    a(f'v_lshl_add_u32 {V(xo)}, {V(par)}, 2, {S(sT0)}')
    stat_addr(T[10])
    a(f'global_load_dword {V(xv)}, {V(xo)}, {S(sX,2)}')
    a(f'global_load_dword {V(sv)}, {V(T[10])}, {S(sWS,2)} sc1')
    a(f's_lshr_b32 {S(sT0)}, {S(sCH0)}, 2')
    smul(sT0, sT0, 6144, W_FP + 3072)
    a(f'v_lshl_add_u32 {V(fpa)}, {V(vL)}, 4, {S(sT0)}')
    a(f'''
    s_lshr_b32 {S(sT1)}, {S(sIDX)}, 9
    s_mul_i32 {S(sT1)}, {S(sT1)}, {YTS}
    s_bfe_u32 {S(sT0)}, {S(sIDX)}, 0x20002
    s_mul_i32 {S(sT0)}, {S(sT0)}, {YGS}
    s_add_u32 {S(sT1)}, {S(sT1)}, {S(sT0)}
    s_bfe_u32 {S(sT0)}, {S(sIDX)}, 0x40004
    s_and_b32 {S(sT2)}, {S(sIDX)}, 3
    ''')
    ssum(sT1, (sT1, 0), (sT0, 4), (sT2, 2), YX)
    a(f'''
    v_mul_u32_u24 {V(T[0])}, {2*YCS}, {V(par)}
    v_add_u32 {V(T[0])}, {S(sT1)}, {V(T[0])}
    ds_read_b32 {V(y0)}, {V(T[0])}
    ds_read_b32 {V(y1)}, {V(T[0])} offset:{YCS}
    s_and_b32 {S(sT0)}, {S(sKEY)}, {S(sHI)}
    s_xor_b32 {S(sT1)}, {S(sT0)}, 0x80000000
    s_xor_b32 {S(sT2)}, {S(sT0)}, {S(sHI)}
    s_bitcmp1_b32 {S(sT0)}, 31
    s_cselect_b32 {S(sT0)}, {S(sT1)}, {S(sT2)}
    v_mov_b32 {V(T[2])}, 0xbfb8aa3b
    v_mul_f32 {V(sg)}, {S(sT0)}, {V(T[2])}
    v_exp_f32 {V(sg)}, {V(sg)}
    v_cmp_eq_u32 vcc, 0, {V(par)}
    v_add_f32 {V(sg)}, 1.0, {V(sg)}
    v_rcp_f32 {V(sg)}, {V(sg)}
    v_mov_b32 {V(F+20)}, 0
    v_cvt_pk_bf16_f32 {V(sg)}, {V(sg)}, {V(sg)}
    v_mov_b32 {V(F+21)}, 0
    v_and_b32 {V(sg)}, {S(sHI)}, {V(sg)}
    v_mov_b32 {V(F+22)}, {S(sTAG)}
    s_waitcnt lgkmcnt(0)
    v_mov_b32 {V(d0)}, {S(sDS)}
    v_mov_b32 {V(d1)}, {S(sDS+1)}
    v_cndmask_b32 {V(d0)}, {V(d1)}, {V(d0)}, vcc
    v_and_b32 {V(d1)}, {S(sHI)}, {V(d0)}
    v_lshlrev_b32 {V(d0)}, 16, {V(d0)}
    ''')

    def rnd2(r0, r1, t):
        a(f'v_cvt_pk_bf16_f32 {V(t)}, {V(r0)}, {V(r1)}\nv_lshlrev_b32 {V(r0)}, 16, {V(t)}\nv_and_b32 {V(r1)}, {S(sHI)}, {V(t)}')
    rnd2(y0, y1, T[0])
    a(f'''
    s_waitcnt vmcnt(0)
    v_and_b32 {V(T[1])}, {S(sHI)}, {V(sv)}
    v_lshlrev_b32 {V(T[2])}, 16, {V(sv)}
    v_rcp_f32 {V(T[1])}, {V(T[1])}
    v_lshlrev_b32 {V(x0)}, 16, {V(xv)}
    v_and_b32 {V(x1)}, {S(sHI)}, {V(xv)}
    v_sub_f32 {V(n0)}, {V(x0)}, {V(T[2])}
    v_sub_f32 {V(n1)}, {V(x1)}, {V(T[2])}
    ''')
    rnd2(n0, n1, T[0])
    a(f'v_mul_f32 {V(n0)}, {V(n0)}, {V(T[1])}\nv_mul_f32 {V(n1)}, {V(n1)}, {V(T[1])}')
    rnd2(n0, n1, T[0])
    a(f'v_mul_f32 {V(d0)}, {V(d0)}, {V(n0)}\nv_mul_f32 {V(d1)}, {V(d1)}, {V(n1)}')
    rnd2(d0, d1, T[0])
    a(f'v_add_f32 {V(y0)}, {V(y0)}, {V(d0)}\nv_add_f32 {V(y1)}, {V(y1)}, {V(d1)}')
    rnd2(y0, y1, T[0])
    if o['b6']: a('s_barrier')
    spin_init()
    a('L_ffnspin:')
    for i in range(5):
        a(f'global_load_dwordx4 {V(F+4*i,4)}, {V(fpa)}, {S(sWS,2)} offset:{i*1024 - 3072} sc1')
    a(f'''
    s_mov_b64 exec, 0xffffff
    global_load_dwordx4 {V(F+20,4)}, {V(fpa)}, {S(sWS,2)} offset:2048 sc1
    s_mov_b64 exec, -1
    s_waitcnt vmcnt(0)
    ''')
    for i in range(6): a(f'v_xor_b32 {V(T[i])}, {S(sTAG)}, {V(F+4*i+2)}')
    a(f'''
    v_or3_b32 {V(T[0])}, {V(T[0])}, {V(T[1])}, {V(T[2])}
    v_or3_b32 {V(T[3])}, {V(T[3])}, {V(T[4])}, {V(T[5])}
    v_or_b32 {V(T[0])}, {V(T[0])}, {V(T[3])}
    v_cmp_ne_u32 vcc, 0, {V(T[0])}
    s_cbranch_vccz L_ffnok
    ''')
    spin_next('L_ffnspin')
    a('L_ffnok:')
    stamp(11)
    p0, p1 = F, F + 1
    for e in range(2):
        a(f'v_add_f32 {V(F+e)}, {V(F+e)}, {V(F+4+e)}')
        a(f'v_add_f32 {V(F+8+e)}, {V(F+8+e)}, {V(F+12+e)}')
        a(f'v_add_f32 {V(F+16+e)}, {V(F+16+e)}, {V(F+20+e)}')
    for e in range(2): a(f'v_add_f32 {V(F+e)}, {V(F+e)}, {V(F+8+e)}')
    for e in range(2): a(f'v_add_f32 {V(F+e)}, {V(F+e)}, {V(F+16+e)}')
    for m in (2, 4, 8):
        for e in range(2): a(f'v_add_f32_dpp {V(F+e)}, {V(F+e)}, {V(F+e)} row_ror:{m} row_mask:0xf bank_mask:0xf')
    for pl in ('v_permlane16_swap_b32', 'v_permlane32_swap_b32'):
        for e in range(2): a(f'v_mov_b32 {V(F+4+e)}, {V(F+e)}')
        for e in range(2): a(f'{pl} {V(F+e)}, {V(F+4+e)}')
        for e in range(2): a(f'v_add_f32 {V(F+e)}, {V(F+e)}, {V(F+4+e)}')
    rnd2(p0, p1, T[0])
    for e in range(2): a(f'v_mul_f32 {V(F+e)}, {V(F+e)}, {V(sg)}')
    rnd2(p0, p1, T[0])
    a(f'v_add_f32 {V(p0)}, {V(p0)}, {V(n0)}\nv_add_f32 {V(p1)}, {V(p1)}, {V(n1)}')
    rnd2(p0, p1, T[0])
    for e in range(2): a(f'v_mul_f32 {V(F+4+e)}, 0xbfb8aa3b, {V(F+e)}')
    for e in range(2): a(f'v_exp_f32 {V(F+4+e)}, {V(F+4+e)}')
    for e in range(2): a(f'v_add_f32 {V(F+4+e)}, 1.0, {V(F+4+e)}')
    for e in range(2): a(f'v_rcp_f32 {V(F+4+e)}, {V(F+4+e)}')
    for e in range(2): a(f'v_mul_f32 {V(F+e)}, {V(F+e)}, {V(F+4+e)}')
    rnd2(p0, p1, T[0])
    a(f'v_mul_f32 {V(p0)}, {V(p0)}, {V(y0)}\nv_mul_f32 {V(p1)}, {V(p1)}, {V(y1)}')
    rnd2(p0, p1, T[0])
    a(f'''
    v_add_f32 {V(p0)}, {V(p0)}, {V(x0)}
    v_add_f32 {V(p1)}, {V(p1)}, {V(x1)}
    v_cvt_pk_bf16_f32 {V(T[0])}, {V(p0)}, {V(p1)}
    s_mov_b64 exec, 3
    global_store_dword {V(xo)}, {V(T[0])}, {S(sOUT,2)}
    s_mov_b64 exec, -1
    ''')
    if o['stamp']:
        a('s_waitcnt vmcnt(0)'); stamp(12); a('s_branch L_exit')
    else:
        a('s_endpgm')

    a('L_helper:')
    a(f'ds_read_b32 {V(T[8])}, {V(T[9])} offset:{FF - AM}')
    read_idx()
    XS = vP
    a(f'v_readfirstlane_b32 {S(sT3)}, {V(T[8])}\ns_mov_b32 {S(sPB)}, {S(sT3)}')
    a(f's_cmp_eq_u32 {S(sP1)}, 0\ns_cbranch_scc1 L_h_pre')
    a(f's_lshl_b32 {S(sT0)}, {S(sIDX)}, 10\nv_add_u32 {V(T[0])}, {S(sT0)}, {V(vXS)}')
    stat_addr(T[1])
    a(f'''
    global_load_dword {V(XS)}, {V(T[0])}, {S(sX,2)}
    global_load_dword {V(XS+4)}, {V(T[1])}, {S(sWS,2)} sc1
    ''')
    wd_dma()
    a('L_h_pre:')
    sDV = sH8
    a(f'''
    s_lshl_b32 {S(sDV)}, {S(sDS)}, 16
    s_and_b32 {S(sDV+1)}, {S(sDS)}, {S(sHI)}
    s_lshl_b32 {S(sDV+2)}, {S(sDS+1)}, 16
    s_and_b32 {S(sDV+3)}, {S(sDS+1)}, {S(sHI)}
    ''')
    WF = vP + 8; DD = vP + 24; XA = vP + 40; WDF = vP + 48
    GT = [vP + 64 + i for i in range(4)]
    def ge_row(r):
        for c in range(4):
            src = XP + 2 * c + (r >> 1)
            if r & 1: a(f'v_and_b32 {V(vXN+4*r+c)}, {S(sHI)}, {V(src)}')
            else:     a(f'v_lshlrev_b32 {V(vXN+4*r+c)}, 16, {V(src)}')
        for c in range(4): a(f'v_mul_f32 {V(GT[c])}, 0xbfb8aa3b, {V(vXN+4*r+c)}')
        for c in range(4): a(f'v_exp_f32 {V(GT[c])}, {V(GT[c])}')
        for c in range(4):
            a(f'v_mul_f32 {V(vE+4*r+c)}, {S(sDV+c)}, {V(vXN+4*r+c)}')
            a(f'v_add_f32 {V(GT[c])}, 1.0, {V(GT[c])}')
        for c in range(4): a(f'v_rcp_f32 {V(GT[c])}, {V(GT[c])}')
        for c in range(4): a(f'v_mul_f32 {V(vXN+4*r+c)}, {V(vXN+4*r+c)}, {V(GT[c])}')
        for c in range(4): a(f'v_fma_f32 {V(vE+4*r+c)}, {V(vE+4*r+c)}, {V(vXN+4*r+c)}, {V(vXF+4*r+c)}')
    def masks():
        a(f'''
        s_lshr_b32 {S(sT0)}, {S(sIDX)}, 2
        s_lshl_b64 {S(sT2,2)}, 1, {S(sT0)}
        s_lshr_b32 {S(sT0)}, {S(sIDX)}, 8
        s_cmp_eq_u32 {S(sT0)}, {S(sT)}
        s_cselect_b64 {S(sT2,2)}, {S(sT2,2)}, 0
        s_not_b64 {S(sT2,2)}, {S(sT2,2)}
        s_and_b32 {S(sT0)}, {S(sIDX)}, 3
        ''')
        for r in range(4):
            a(f's_cmp_eq_u32 {S(sT0)}, {r}\ns_cselect_b64 {S(sM+2*r,2)}, {S(sT2,2)}, -1')
    masks()
    a(f's_cmp_eq_u32 {S(sP1)}, 0\ns_cbranch_scc1 L_h_ge')
    a(f"s_setprio {o['ffnprio']}")
    a('s_waitcnt vmcnt(11)')
    for t in range(4): a(f'ds_write_b128 {V(vWDR)}, {V(WR+4*t,4)} offset:{1024*t}')
    for t in range(4):
        a(f'ds_read_b64_tr_b16 {V(WF+4*t,2)}, {V(vWT)} offset:{1024*t}')
        a(f'ds_read_b64_tr_b16 {V(WF+4*t+2,2)}, {V(vWT)} offset:{1024*t + 512}')
    gq = T[4]
    a('s_waitcnt vmcnt(9)')
    stamp(0)
    a(f'''
    v_and_b32 {V(T[12])}, {S(sHI)}, {V(XS+4)}
    v_lshlrev_b32 {V(T[14])}, 16, {V(XS+4)}
    v_rcp_f32 {V(T[12])}, {V(T[12])}
    v_lshlrev_b32 {V(T[2])}, 16, {V(XS)}
    v_and_b32 {V(T[3])}, {S(sHI)}, {V(XS)}
    v_sub_f32 {V(T[2])}, {V(T[2])}, {V(T[14])}
    v_sub_f32 {V(T[3])}, {V(T[3])}, {V(T[14])}
    v_cvt_pk_bf16_f32 {V(T[3])}, {V(T[2])}, {V(T[3])}
    v_lshlrev_b32 {V(T[2])}, 16, {V(T[3])}
    v_and_b32 {V(T[3])}, {S(sHI)}, {V(T[3])}
    v_mul_f32 {V(T[2])}, {V(T[2])}, {V(T[12])}
    v_mul_f32 {V(T[3])}, {V(T[3])}, {V(T[12])}
    v_cvt_pk_bf16_f32 {V(T[2])}, {V(T[2])}, {V(T[3])}
    ds_write_b32 {V(vXW)}, {V(T[2])}
    ds_read_b64 {V(XA,2)}, {V(vXR)}
    ds_read_b64 {V(XA+2,2)}, {V(vXR)} offset:32
    ''')
    a('s_waitcnt lgkmcnt(0)')
    for t in range(4):
        a(f'v_mfma_f32_16x16x32_bf16 {V(DD+4*t,4)}, {V(XA,4)}, {V(WF+4*t,4)}, 0')
    a(f'''
    v_mov_b32 {V(gq+2)}, {S(sTAG)}
    v_mov_b32 {V(gq+3)}, 0
    s_cmp_eq_u32 {S(sPB)}, 0
    v_add_f32 {V(gq)}, {V(DD)}, {V(DD+5)}
    v_add_f32 {V(gq+1)}, {V(DD+8)}, {V(DD+13)}
    s_mov_b64 exec, 0xffff
    s_cbranch_scc0 L_p1far
    global_store_dwordx4 {V(vP1W)}, {V(gq,4)}, {S(sWS,2)}
    s_branch L_p1done
    L_p1far:
    global_store_dwordx4 {V(vP1W)}, {V(gq,4)}, {S(sWS,2)} sc1
    L_p1done:
    s_mov_b64 exec, -1
    s_cmp_eq_u32 {S(sPROD)}, 0
    s_cbranch_scc1 L_h_ge
    ''')
    stamp(9)
    a(f'global_load_dwordx4 {V(T[0],4)}, {V(vP1R)}, {S(sWS,2)} sc1')
    a('s_waitcnt vmcnt(2)')
    for i in range(8):
        a(f'v_lshlrev_b32 {V(WDF+2*i)}, 16, {V(vWD+i)}\nv_and_b32 {V(WDF+2*i+1)}, {S(sHI)}, {V(vWD+i)}')
    spin_init()
    a(f'''
    L_hspin:
    s_waitcnt vmcnt(0)
    v_cmp_ne_u32 vcc, {S(sTAG)}, {V(T[2])}
    s_cbranch_vccz L_hok
    global_load_dwordx4 {V(T[0],4)}, {V(vP1R)}, {S(sWS,2)} sc1
    ''')
    spin_next('L_hspin')
    a('s_waitcnt vmcnt(0)\nL_hok:')
    for e in range(2): a(f'v_add_f32_dpp {V(T[e])}, {V(T[e])}, {V(T[e])} row_ror:8 row_mask:0xf bank_mask:0xf')
    for pl in ('v_permlane16_swap_b32', 'v_permlane32_swap_b32'):
        for e in range(2): a(f'v_mov_b32 {V(T[2+e])}, {V(T[e])}')
        for e in range(2): a(f'{pl} {V(T[e])}, {V(T[2+e])}')
        for e in range(2): a(f'v_add_f32 {V(T[e])}, {V(T[e])}, {V(T[2+e])}')
    a(f'''
    v_cvt_pk_bf16_f32 {V(T[2])}, {V(T[0])}, {V(T[1])}
    v_lshlrev_b32 {V(T[0])}, 16, {V(T[2])}
    v_mul_f32 {V(T[1])}, 0xbfb8aa3b, {V(T[0])}
    v_exp_f32 {V(T[1])}, {V(T[1])}
    v_and_b32 {V(T[2])}, {S(sHI)}, {V(T[2])}
    v_add_f32 {V(T[1])}, 1.0, {V(T[1])}
    v_rcp_f32 {V(T[1])}, {V(T[1])}
    s_nop 0
    v_mul_f32 {V(T[1])}, {V(T[0])}, {V(T[1])}
    v_cvt_pk_bf16_f32 {V(T[1])}, {V(T[1])}, {V(T[1])}
    v_and_b32 {V(T[1])}, {S(sHI)}, {V(T[1])}
    v_mul_f32 {V(T[1])}, {V(T[1])}, {V(T[2])}
    v_cvt_pk_bf16_f32 {V(T[1])}, {V(T[1])}, {V(T[1])}
    v_and_b32 {V(T[1])}, {S(sHI)}, {V(T[1])}
    ''')
    for i in range(8):
        for e in range(2):
            a(f"{'v_mul_f32_dpp' if i == 0 else 'v_fmac_f32_dpp'} {V(gq+e)}, {V(T[1])}, {V(WDF+2*i+e)} row_newbcast:{i} row_mask:0xf bank_mask:0xf")
    a(f'global_store_dwordx4 {V(vFPA)}, {V(gq,4)}, {S(sWS,2)} sc1')
    stamp(10)
    a('L_h_ge:\ns_setprio 0')
    for r in range(o['prerows']): ge_row(r)
    a('L_h_b5:\ns_barrier')
    YR = vP
    def epilogue(ge):
        for r in range(4):
            if ge and r >= o['prerows']: ge_row(r)
            for c in range(4):
                a(f'v_fma_f32 {V(vE+4*r+c)}, {V(YR+4*c+r)}, {V(vXN+4*r+c)}, {V(vE+4*r+c)}')
            a(f'''
            v_cvt_pk_bf16_f32 {V(vD+2*r)}, {V(vE+4*r)}, {V(vE+4*r+1)}
            v_cvt_pk_bf16_f32 {V(vD+2*r+1)}, {V(vE+4*r+2)}, {V(vE+4*r+3)}
            s_mov_b64 exec, {S(sM+2*r,2)}
            global_store_dwordx2 {V(vXG)}, {V(vD+2*r,2)}, {S(sOUT,2)} offset:{r*1024}
            s_mov_b64 exec, -1
            ''')
    for c in range(4): a(f'ds_read_b128 {V(YR+4*c,4)}, {V(vY)} offset:{c*YCS}')
    if o['b6']:
        a(f'''
        s_lshr_b32 {S(sT0)}, {S(sWI)}, 1
        s_and_b32 {S(sT1)}, {S(sT0)}, {S(sOWN)}
        s_andn2_b32 {S(sT2)}, {S(sOWN)}, {S(sT0)}
        s_cmp_eq_u32 {S(sT1)}, 0
        s_cbranch_scc1 L_h_st
        ''')
        for r in range(o['prerows'], 4): ge_row(r)
        a('s_barrier\ns_waitcnt lgkmcnt(0)')
        epilogue(False)
        a('s_branch L_h_done\nL_h_st:')
    a('s_waitcnt lgkmcnt(0)')
    epilogue(True)
    for r in range(0):
        for c in range(4):
            a(f'v_fma_f32 {V(vE+4*r+c)}, {V(YR+4*c+r)}, {V(vXN+4*r+c)}, {V(vE+4*r+c)}')
        a(f'''
        v_cvt_pk_bf16_f32 {V(vD+2*r)}, {V(vE+4*r)}, {V(vE+4*r+1)}
        v_cvt_pk_bf16_f32 {V(vD+2*r+1)}, {V(vE+4*r+2)}, {V(vE+4*r+3)}
        s_mov_b64 exec, {S(sM+2*r,2)}
        global_store_dwordx2 {V(vXG)}, {V(vD+2*r,2)}, {S(sOUT,2)} offset:{r*1024}
        s_mov_b64 exec, -1
        ''')
    if o['b6']:
        a(f'''
        s_cmp_eq_u32 {S(sT2)}, 0
        s_cbranch_scc1 L_h_done
        s_waitcnt vmcnt({o['b6cnt']})
        s_barrier
        L_h_done:
        ''')
    if o['stamp'] or o['diag'] >= 0:
        stamp(11)
        a('s_waitcnt vmcnt(0)')
        stamp(12)
    if o['diag'] >= 0:
        a('''
        s_memrealtime s[90:91]
        s_sub_u32 s88, s88, s86
        s_min_u32 s88, s88, 2000
        s_lshl_b32 s88, s88, 2
        s_waitcnt lgkmcnt(0)
        s_add_u32 s88, s88, s90
        L_diag:
        s_memrealtime s[90:91]
        s_waitcnt lgkmcnt(0)
        s_sub_u32 s90, s90, s88
        s_cmp_lt_i32 s90, 0
        s_cbranch_scc1 L_diag
        ''')
    a('L_exit:')
    if o['stamp']:
        a('v_mov_b32 v254, 0')
        for i in range(14): a(f'v_writelane_b32 v254, s{86+i}, {i}')
        a(f'global_store_dword {V(vSTA)}, v254, {S(sWS,2)}')
    a('L_end:\ns_endpgm')
    a.raw('''.section .rodata,"a"
.p2align 6
.amdhsa_kernel %s_kernel
  .amdhsa_next_free_vgpr 256
  .amdhsa_next_free_sgpr 102
  .amdhsa_accum_offset 256
  .amdhsa_group_segment_fixed_size 0
  .amdhsa_kernarg_size 136
  .amdhsa_user_sgpr_count 2
  .amdhsa_user_sgpr_kernarg_segment_ptr 1
  .amdhsa_system_sgpr_workgroup_id_x 1
.end_amdhsa_kernel''' % KN)
    return a.text()


if __name__ == '__main__':
    out = sys.argv[1]
    opt = {}
    for kv in sys.argv[2:]:
        k, val = kv.split('='); opt[k] = int(val, 0)
    open(out, 'w').write(generate(**opt))
```

```python
import sys
from asmlib import *

KN = 'recurrent_scan__ssm_conv_s4__moe_arch_mod__prompt'

DEFAULTS = dict(stamp=0, cyc=0, force_slow=0, prefetch=1, wpf=1, spinmax=1 << 16, diag=-1,
                maxout=15, group=3, minfly=6, b6=1, b6cnt=1, nb=6, wdearly=0, wpfb3=1, hnormfirst=1, ffnprio=2, tlb=0, tlbsh=16, wnt=0, xnt=0, pnt=0, prerows=1, jc=4, jh=5, jf=12, p1nt=1, pfirst=0, cpf=1, cpfn=5, hfetch=0, cearly=0, call=0, roll=0, early=0, xlds=1, wj=6, wdj=99, touch=0, pro=13, rg=3, wreg=1, dsg=4, dslate=0, hprio=3, hprio2=1)

RS = 2064
STAGE = 0
R4 = 0; R4S = 18560; CAS = 288
YX = 74240; YCS = 5120; YTS = 1280; YGS = 320
U = 109440; US = 4576
TAB = 127744; TS = 1552
WL = 133952; WL1 = 8320
SL = 150528
AM = 158720
FF = 158752
TG = 158768
PF = 158784
FP = 158848
LDS_BYTES = 159872
W_ST = 0x1000; W_FL = 0x6000; W_FP = 0x10000; W_P1 = 0xD0000; W_IN = 0x100000; W_STAMP = 0x800000

sX, sARE, sAIM, sBRE, sBIM, sCRE, sCIM, sLDT = 4, 6, 8, 10, 12, 14, 16, 18
sDSK, sWR, sWG, sWU, sWD, sOUT, sDBG, sWS = 20, 24, 26, 28, 30, 32, 34, 36
sW, sK, sJ, sCGL, sH, sCH0, sT, sXCC, sTAG, sTAGX = 38, 39, 40, 41, 42, 43, 44, 45, 46, 47
sPB, sDS = 48, 50
sONES, sF8, sPROD, sIDX, sKEY, sCNT = 52, 53, 54, 55, 56, 57
sT0, sT1, sT2, sT3 = 58, 59, 60, 61
sOWN, sINB = 62, 63
sM = 64
sH8 = 72
sHI = 80
sSTP = 82
sWI = 84
sP1 = 85
sCM = 78
sA = 76; sR = 77
sROLE = 81

vL = 1
vGA = 2
vSEL = 10
vR4W, vUW, vST0, vST1, vFL, vIN, vXG, vXC = 16, 17, 18, 19, 20, 21, 22, 23
vKA, vKB, vPD, vY = 24, 25, 26, 27
vA0, vA1, vA2, vA3, vA4, vA5, vA6, vA7 = 28, 29, 30, 31, 32, 33, 34, 35
vEP, vPFD, vROW, vSTA = 36, 37, 38, 39
vD = 40
vG = 48
vXF = 56
vXN = 72
vE = 88
vP = 104
vB0, vB1, vB2, vB3, vB4, vB5 = 224, 225, 226, 227, 228, 229
vWD = 232
vT = 240
vCA, vCA2, vCB, vFLO = vA0, vA1, vA2, vA3
vTW1, vTW2, vTW3, vTW4, vWT, vWDA, vFPA, vXS = vA0, vA1, vA2, vA3, vA4, vA5, vA6, vA7
vWS0, vWS1, vP1W, vP1R, vFFW, vSTP = vB0, vB1, vB2, vB3, vB4, vB5
vWD1, vPFW = 230, 231
vTLB = 223
vWDR = 222; vP1F = 221; vXW = 220; vXR = 219


def tiles(h): return [2 * i + ((i ^ h) & 1) for i in range(4)]


def generate(**opt):
    o = dict(DEFAULTS); o.update(opt)
    a = Asm()
    V = v; S = s

    def stamp(i):
        if o['diag'] == i:
            a('s_memrealtime s[88:89]\ns_waitcnt lgkmcnt(0)')
        if not o['stamp'] or (o['stamp'] == 2 and i != 12): return
        a(f"{'s_memtime' if o['cyc'] else 's_memrealtime'} {S(sSTP,2)}\ns_waitcnt lgkmcnt(0)\ns_mov_b32 s{86+i}, {S(sSTP)}")

    def cmul(d, x, y):
        a(f'v_pk_mul_f32 {V(d,2)}, {V(x,2)}, {V(y,2)} op_sel:[1,1] op_sel_hi:[1,0]')
        a(f'v_pk_fma_f32 {V(d,2)}, {V(x,2)}, {V(y,2)}, {V(d,2)} op_sel:[0,0,0] op_sel_hi:[0,1,1] neg_lo:[0,0,1]')

    def lane63(): a('s_mov_b32 exec_lo, 0\ns_mov_b32 exec_hi, 0x80000000')
    def alllanes(): a('s_mov_b64 exec, -1')
    def spin_init(): a(f"s_mov_b32 {S(sCNT)}, {o['spinmax']}")
    def spin_next(lbl): a(f's_sub_u32 {S(sCNT)}, {S(sCNT)}, 1\ns_cmp_lg_u32 {S(sCNT)}, 0\ns_cbranch_scc1 {lbl}')

    def ssum(dst, *terms):
        first = True; const = 0
        for t in terms:
            if isinstance(t, int): const += t; continue
            r, sh = t
            if first:
                a(f's_lshl_b32 {S(dst)}, {S(r)}, {sh}' if sh else f's_mov_b32 {S(dst)}, {S(r)}'); first = False
            elif sh:
                a(f's_lshl_b32 {S(sT3)}, {S(r)}, {sh}\ns_add_u32 {S(dst)}, {S(dst)}, {S(sT3)}')
            else:
                a(f's_add_u32 {S(dst)}, {S(dst)}, {S(r)}')
        if const: a(f's_add_u32 {S(dst)}, {S(dst)}, {const}')

    def smul(dst, r, k, const=0):
        a(f's_mul_i32 {S(dst)}, {S(r)}, {k}')
        if const: a(f's_add_u32 {S(dst)}, {S(dst)}, {const}')

    T = [vT + i for i in range(16)]

    a.raw('; @launch grid=(256,1,1) block=(512,1,1) lds=%d' % LDS_BYTES)
    a.raw('.amdgcn_target "amdgcn-amd-amdhsa--gfx950"\n.text\n.globl %s_kernel\n.p2align 8\n.type %s_kernel,@function\n%s_kernel:' % (KN, KN, KN))
    a('''
    s_cmp_ge_u32 s2, 256
    s_cbranch_scc1 L_end
    s_load_dwordx16 s[4:19], s[0:1], 0
    s_load_dwordx16 s[20:35], s[0:1], 64
    s_load_dwordx2 s[36:37], s[0:1], 128
    ''')
    if o['cpf']:
        a.comment('pull the rest of this kernel code into L2: a few lines per workgroup of each XCD class')
        a(f'''
        s_getpc_b64 {S(sPB,2)}
        s_lshr_b32 {S(sT0)}, s2, 3
        s_mul_i32 {S(sT0)}, {S(sT0)}, {128*o['cpfn']}
        v_lshl_add_u32 {V(vTLB)}, v0, 7, {S(sT0)}
        v_min_u32 {V(vTLB)}, L_end - L_cpf, {V(vTLB)}
        v_cmp_gt_u32 vcc, {o['cpfn']}, v0
        s_and_saveexec_b64 {S(sM,2)}, vcc
        s_cbranch_execz L_cpf
        global_load_dword {V(vTLB)}, {V(vTLB)}, {S(sPB,2)}
        L_cpf:
        s_mov_b64 exec, -1
        ''')
    if o['diag'] >= 0: a('s_memrealtime s[86:87]')
    if o['stamp']: a(f"{'s_memtime' if o['cyc'] else 's_memrealtime'} s[100:101]")
    a(f'''
    v_lshrrev_b32 {V(T[0])}, 6, v0
    v_and_b32 {V(vL)}, 63, v0
    v_readfirstlane_b32 {S(sW)}, {V(T[0])}
    s_and_b32 {S(sK)}, s2, 7
    s_lshr_b32 {S(sJ)}, s2, 3
    s_and_b32 {S(sCGL)}, {S(sJ)}, 15
    s_lshr_b32 {S(sH)}, {S(sJ)}, 4
    s_and_b32 {S(sWI)}, {S(sW)}, 3
    s_cmp_ge_u32 {S(sW)}, 4
    s_cselect_b32 {S(sROLE)}, 1, 0
    ''')
    ssum(sCH0, (sK, 6), (sCGL, 2))
    for i in range(7): a(f'v_mov_b32 {V(vP+i)}, 0')
    a(f's_add_u32 {S(sT1)}, {S(sCH0)}, {S(sWI)}')
    a(f's_lshr_b32 {S(sT2)}, {S(sW)}, 2')
    ssum(sT0, (sT1, 8), (sT2, 7))
    a(f'v_lshl_add_u32 {V(T[1])}, {V(vL)}, 1, {S(sT0)}')
    a(f's_lshl_b32 {S(sT1)}, {S(sT1)}, 1')
    a(f'v_mov_b32 {V(T[2])}, {S(sT1)}')
    if o['stamp']:
        ssum(sT1, (2, 11), (sW, 8), W_STAMP)
        a(f'v_lshl_add_u32 {V(vSTA)}, {V(vL)}, 2, {S(sT1)}')
        for i in range(14): a(f's_mov_b32 s{86+i}, 0')

    def param_loads():
        for i, p in enumerate((sARE, sAIM, sBRE, sBIM, sCRE, sCIM)):
            a(f"global_load_short_d16_hi {V(vP+i)}, {V(T[1])}, {S(p,2)}{' nt' if o['pnt'] else ''}")
        a(f'global_load_short_d16_hi {V(vP+6)}, {V(T[2])}, {S(sLDT,2)}')

    a(f's_cmp_eq_u32 {S(sROLE)}, 1\ns_cbranch_scc1 L_h_load')
    ssum(sT0, (sJ, 16), (sW, 14), (sK, 7))
    a(f'''
    v_lshrrev_b32 {V(T[3])}, 3, {V(vL)}
    v_and_b32 {V(T[4])}, 7, {V(vL)}
    v_lshlrev_b32 {V(T[3])}, 10, {V(T[3])}
    v_lshl_add_u32 {V(T[3])}, {V(T[4])}, 4, {V(T[3])}
    v_add_u32 {V(T[3])}, {S(sT0)}, {V(T[3])}
    v_add_u32 {V(T[4])}, 8192, {V(T[3])}
    s_waitcnt lgkmcnt(0)
    ''')
    if o['stamp']: a('s_mov_b32 s99, s100')
    if o['diag'] >= 0: a('s_mov_b32 s88, s86')
    stamp(0)
    XNT = ' nt' if o['xnt'] else ''
    PF1 = o['pfirst']
    if PF1: param_loads()
    a(f'global_load_dwordx4 {V(vD,4)}, {V(T[3])}, {S(sX,2)}{XNT}')
    a(f'global_load_dwordx4 {V(vD+4,4)}, {V(T[4])}, {S(sX,2)}{XNT}')
    if not PF1: param_loads()
    a('s_branch L_init')
    a('L_h_load:')
    ssum(sT0, (2, 13), (sWI, 11))
    a(f'''
    v_and_b32 {V(T[3])}, 31, {V(vL)}
    v_lshlrev_b32 {V(T[3])}, 4, {V(T[3])}
    v_lshrrev_b32 {V(T[4])}, 5, {V(vL)}
    v_lshl_add_u32 {V(T[4])}, {V(T[4])}, 10, {V(T[3])}
    v_add_u32 {V(T[4])}, {S(sT0)}, {V(T[4])}
    v_mov_b32 {V(T[5])}, 0
    s_waitcnt lgkmcnt(0)
    ''')
    if o['stamp']: a('s_mov_b32 s99, s100')
    if o['diag'] >= 0: a('s_mov_b32 s88, s86')
    stamp(0)
    if PF1: param_loads()
    a(f'''
    global_load_dwordx4 {V(vG,4)}, {V(T[3])}, {S(sWR,2)}
    global_load_dwordx4 {V(vG+4,4)}, {V(T[3])}, {S(sWR,2)} offset:512
    global_load_dwordx4 {V(vD,4)}, {V(T[4])}, {S(sX,2)}{XNT}
    global_load_dwordx4 {V(vD+4,4)}, {V(T[4])}, {S(sX,2)} offset:512{XNT}
    global_load_dword {V(vEP)}, {V(T[5])}, {S(sWS,2)} sc1
    ''')
    if not PF1: param_loads()

    a('L_init:')
    a(f'''
    v_mov_b32 {V(T[6])}, 0
    v_mov_b32 {V(T[7])}, 0x3f80
    s_lshl_b32 {S(sT0)}, {S(sW)}, 8
    s_mov_b32 m0, {S(sT0)}
    v_and_b32 {V(T[8])}, 127, v0
    ds_write_addtid_b32 {V(T[7])} offset:{STAGE}
    v_min_u32 {V(T[8])}, 119, {V(T[8])}
    v_lshrrev_b32 {V(T[9])}, 7, v0
    v_mul_u32_u24 {V(T[10])}, {US}, {V(T[9])}
    v_lshl_add_u32 {V(T[10])}, {V(T[8])}, 2, {V(T[10])}
    v_add_u32 {V(T[10])}, {U}, {V(T[10])}
    ds_write_b32 {V(T[10])}, {V(T[6])}
    s_cmp_lg_u32 {S(sW)}, 0
    s_cbranch_scc1 L_init2
    v_bfe_u32 {V(T[9])}, {V(vL)}, 1, 2
    v_mul_u32_u24 {V(T[9])}, {TS}, {V(T[9])}
    v_and_b32 {V(T[8])}, 1, {V(vL)}
    v_lshl_add_u32 {V(T[9])}, {V(T[8])}, 2, {V(T[9])}
    v_add_u32 {V(T[9])}, {TAB}, {V(T[9])}
    v_and_b32 {V(T[8])}, 15, {V(vL)}
    v_lshlrev_b32 {V(T[8])}, 2, {V(T[8])}
    v_add_u32 {V(T[8])}, {FF}, {V(T[8])}
    s_mov_b64 exec, 0xffff
    ds_write_b32 {V(T[9])}, {V(T[6])}
    ds_write_b32 {V(T[8])}, {V(T[6])}
    s_mov_b64 exec, -1
    L_init2:
    s_waitcnt lgkmcnt(0)
    s_barrier
    s_lshl_b32 {S(sT0)}, {S(sCH0)}, 1
    s_load_dwordx2 {S(sDS,2)}, {S(sDSK,2)}, {S(sT0)}
    s_getreg_b32 {S(sXCC)}, hwreg(HW_REG_XCC_ID, 0, 4)
    s_mov_b32 {S(sONES)}, 0x3f803f80
    s_mov_b32 {S(sHI)}, 0xffff0000
    s_lshr_b32 {S(sT0)}, {S(sW)}, 2
    s_xor_b32 {S(sT0)}, {S(sT0)}, {S(sWI)}
    s_xor_b32 {S(sT0)}, {S(sT0)}, {S(sH)}
    s_xor_b32 {S(sT0)}, {S(sT0)}, 1
    s_and_b32 {S(sT0)}, {S(sT0)}, 1
    s_lshl_b32 {S(sT)}, {S(sWI)}, 1
    s_add_u32 {S(sT)}, {S(sT)}, {S(sT0)}
    s_lshr_b32 {S(sT0)}, {S(sJ)}, 3
    s_and_b32 {S(sT1)}, {S(sJ)}, 7
    ''')
    ssum(sA, (sT0, 3), (sK, 0))
    a(f's_mov_b32 {S(sR)}, {S(sT1)}')
    ssum(sF8, (sA, 3), (sR, 0))
    a(f'''
    s_cmp_lt_u32 {S(sA)}, 22
    s_cselect_b32 {S(sP1)}, 1, 0
    s_cmp_lt_u32 {S(sF8)}, 172
    s_cselect_b32 {S(sPROD)}, 1, 0
    s_cselect_b32 {S(sF8)}, {S(sF8)}, {S(sJ)}
    s_lshl_b32 {S(sT0)}, {S(sK)}, 1
    s_lshl_b32 {S(sCM)}, 0x00030003, {S(sT0)}
    s_mov_b32 {S(sCM+1)}, {S(sCM)}
    ''')

    def sel_setup(tag, toff, GA, SEL, R4W, first):
        pos = [vXF + i for i in range(7)]
        tt = 'v0'
        if toff:
            a(f'v_add_u32 {V(T[5])}, {toff}, v0'); tt = V(T[5])
        a(f'v_lshlrev_b32 {V(T[0])}, 2, {tt}')
        if first: a(f's_cmp_eq_u32 {S(sW)}, 0\ns_cbranch_scc1 L_pos0{tag}')
        for i in range(7): a(f'v_add_u32 {V(pos[i])}, {i-3}, {V(T[0])}')
        for i in range(7): a(f'v_cvt_f32_u32 {V(pos[i])}, {V(pos[i])}')
        for i in range(0, 7, 2):
            a(f'v_cvt_pk_bf16_f32 {V(T[8+i//2])}, {V(pos[i])}, {V(pos[min(i+1,6)])}')
        a(f'v_mov_b32 {V(T[1])}, {4 - 0x4280}')
        for i in range(7):
            a(f'v_bfe_u32 {V(pos[i])}, {V(T[8+i//2])}, {16*(i&1)}, 16')
            a(f'v_add_u32 {V(pos[i])}, {V(T[1])}, {V(pos[i])}')
        if first:
            a(f's_branch L_pos_done{tag}\nL_pos0{tag}:')
            for i in range(7): a(f'v_add_u32 {V(pos[i])}, {i+1}, {V(T[0])}')
            a(f'L_pos_done{tag}:')
        b1, b2 = T[1], T[2]
        a(f'''
        v_and_b32 {V(b1)}, -2, {V(pos[2])}
        v_add_u32 {V(b1)}, -2, {V(b1)}
        v_and_b32 {V(b2)}, -2, {V(pos[3])}
        v_add_u32 {V(T[3])}, {V(b1)}, {V(b1)}
        v_add_u32 {V(T[4])}, {V(b2)}, {V(b2)}
        ''')
        for c in range(4):
            a(f'v_add_u32 {V(GA+2*c)}, {TAB + c*TS}, {V(T[3])}')
            a(f'v_add_u32 {V(GA+2*c+1)}, {TAB + c*TS}, {V(T[4])}')
        for i in range(3): a(f'v_sub_u32 {V(pos[i])}, {V(pos[i])}, {V(b1)}')
        for i in range(3, 7): a(f'v_sub_u32 {V(pos[i])}, {V(pos[i])}, {V(b2)}')
        a(f's_movk_i32 {S(sT0)}, 0x0202\nv_mov_b32 {V(T[3])}, 0x0100')
        for i in range(7): a(f'v_mad_u32_u24 {V(pos[i])}, {V(pos[i])}, {S(sT0)}, {V(T[3])}')
        for dst, lo, hi in ((0, 1, 0), (1, 2, 1), (2, 3, 2), (3, 4, 3), (4, 5, 4), (5, 6, 5)):
            a(f'v_lshl_or_b32 {V(SEL+dst)}, {V(pos[hi])}, 16, {V(pos[lo])}')
        a(f'v_add_u32 {V(SEL+2)}, 0x{(2*0x0202 - 2*0x02020000) & 0xffffffff:x}, {V(SEL+2)}')
        a(f'''
        v_and_b32 {V(T[0])}, -4, {tt}
        v_lshlrev_b32 {V(T[0])}, 2, {V(T[0])}
        v_lshl_add_u32 {V(R4W)}, {tt}, 5, {V(T[0])}
        v_add_u32 {V(R4W)}, {R4 + 144}, {V(R4W)}
        ''')
    GA2, SEL2, R4W2 = vE, vE + 8, vE + 14
    if not o['call']: sel_setup('a', 0, vGA, vSEL, vR4W, True)
    a(f's_lshl_b32 {S(sT0)}, {S(sT)}, 6')
    a(f'v_add_u32 {V(T[0])}, {S(sT0)}, {V(vL)}')
    ssum(sINB, (sK, 18), (sCGL, 14), W_IN)
    ssum(sT1, (sK, 9), W_FL)
    ssum(sT2, (sK, 5), W_ST + 12)
    a(f'''
    v_lshlrev_b32 {V(vROW)}, 2, {V(T[0])}
    v_lshlrev_b32 {V(vUW)}, 3, {V(T[0])}
    v_add_u32 {V(vUW)}, {U + 480}, {V(vUW)}
    v_lshlrev_b32 {V(vST0)}, 4, {V(T[0])}
    v_add_u32 {V(vST1)}, {W_ST + 8192}, {V(vST0)}
    v_add_u32 {V(vST0)}, {W_ST}, {V(vST0)}
    s_lshl_b32 {S(sT0)}, {S(sCH0)}, 1
    v_lshl_add_u32 {V(vXG)}, {V(T[0])}, 12, {S(sT0)}
    v_lshrrev_b32 {V(T[1])}, 2, {V(T[0])}
    v_lshl_add_u32 {V(vFL)}, {V(T[1])}, 2, {S(sT1)}
    v_and_b32 {V(T[2])}, 3, {V(vL)}
    v_lshl_add_u32 {V(T[2])}, {V(T[2])}, 4, {S(sINB)}
    v_lshl_add_u32 {V(vIN)}, {V(T[1])}, 7, {V(T[2])}
    v_lshrrev_b32 {V(T[1])}, 4, {V(T[0])}
    v_lshl_add_u32 {V(vXC)}, {V(T[1])}, 8, {S(sT2)}
    ''')
    smul(sT1, sWI, 3072, WL)
    a(f'''
    v_and_b32 {V(T[0])}, 31, {V(vL)}
    v_lshrrev_b32 {V(T[1])}, 5, {V(vL)}
    s_lshl_b32 {S(sT0)}, {S(sW)}, 8
    v_lshl_add_u32 {V(T[2])}, {V(T[1])}, 4, {S(sT0)}
    s_movk_i32 {S(sT0)}, {RS}
    v_mad_u32_u24 {V(vKB)}, {V(T[0])}, {S(sT0)}, {V(T[2])}
    v_add_u32 {V(T[3])}, -16, {V(T[0])}
    v_cmp_lt_u32 vcc, 20, {V(T[0])}
    v_lshl_add_u32 {V(vPD)}, {V(vL)}, 4, {S(sT1)}
    v_cndmask_b32 {V(T[3])}, {V(T[0])}, {V(T[3])}, vcc
    v_mad_u32_u24 {V(vKA)}, {V(T[3])}, {S(sT0)}, {V(T[2])}
    v_add_u32 {V(vKA)}, {STAGE + 32*RS}, {V(vKA)}
    v_and_b32 {V(T[5])}, 15, {V(vL)}
    v_lshrrev_b32 {V(T[6])}, 4, {V(vL)}
    s_cmp_eq_u32 {S(sROLE)}, 1
    s_cbranch_scc1 L_h_setup
    ''')

    slw, slw1, slr, slr1, ina, ina1, tga, pfa_c = [vXN + i for i in range(8)]
    ssum(sT0, (sW, 11), SL)
    a(f'''
    v_lshrrev_b32 {V(T[0])}, 3, {V(vL)}
    v_and_b32 {V(T[1])}, 7, {V(vL)}
    v_xor_b32 {V(T[2])}, {V(T[6])}, {V(T[1])}
    v_lshl_add_u32 {V(T[2])}, {V(T[2])}, 4, {S(sT0)}
    v_lshl_add_u32 {V(slw)}, {V(T[0])}, 7, {V(T[2])}
    v_xor_b32 {V(slw1)}, 64, {V(slw)}
    v_and_b32 {V(T[2])}, 3, {V(vL)}
    v_bfe_u32 {V(T[3])}, {V(vL)}, 2, 1
    v_lshl_add_u32 {V(T[2])}, {V(T[2])}, 1, {V(T[3])}
    v_xor_b32 {V(T[3])}, {V(T[6])}, {V(T[2])}
    v_lshl_add_u32 {V(T[3])}, {V(T[3])}, 4, {S(sT0)}
    v_lshl_add_u32 {V(T[3])}, {V(T[2])}, 8, {V(T[3])}
    v_and_b32 {V(T[4])}, 1, {V(T[0])}
    v_lshl_add_u32 {V(slr)}, {V(T[4])}, 3, {V(T[3])}
    v_xor_b32 {V(slr1)}, 64, {V(slr)}
    ''')
    ssum(sT0, (sK, 18), (sJ, 9), (sW, 7), W_IN)
    a(f'''
    v_lshl_add_u32 {V(T[1])}, {V(T[1])}, 4, {S(sT0)}
    v_lshl_add_u32 {V(ina)}, {V(T[0])}, 14, {V(T[1])}
    v_add_u32 {V(ina1)}, 0x20000, {V(ina)}
    ''')
    ssum(sT0, (sK, 9), (sJ, 4), (sW, 2), W_FL)
    a(f'v_mov_b32 {V(vFLO)}, {S(sT0)}')
    ssum(sT0, (sW, 2), TG)
    a(f'v_mov_b32 {V(tga)}, {S(sT0)}')
    a('s_waitcnt vmcnt(2)\ns_branch L_kgen' if PF1 else 's_branch L_c_slice')

    a('L_h_setup:')
    ssum(sT1, (sWI, 2), FF)
    a(f'''
    v_mov_b32 {V(vFFW)}, {S(sT1)}
    s_lshr_b32 {S(sT1)}, {S(sWI)}, 1
    s_and_b32 {S(sT2)}, {S(sWI)}, 1
    ''')
    ssum(sT0, (2, 5), (sT1, 4), (sT2, 13), W_ST)
    a(f'v_mov_b32 {V(vSTP)}, {S(sT0)}')
    rk, pfi = vXN, vXN + 8
    ssum(sT0, (2, 3), (sWI, 1))
    a(f's_sub_u32 {S(sT0)}, 0xffff, {S(sT0)}\nv_sub_u32 {V(rk)}, {S(sT0)}, {V(T[1])}')
    ssum(sT0, (sH, 13), (sWI, 11), (sINB, 0))
    a(f'v_lshl_add_u32 {V(pfi)}, {V(T[5])}, 7, {S(sT0)}')
    if PF1: a('s_waitcnt vmcnt(5)')

    def table_setup():
        smul(sT0, sWI, TS, TAB + 8)
        a(f'''
        v_and_b32 {V(T[0])}, 31, {V(vL)}
        v_lshrrev_b32 {V(T[1])}, 5, {V(vL)}
        v_lshl_add_u32 {V(T[2])}, {V(T[1])}, 3, {S(sT0)}
        v_lshl_add_u32 {V(vTW1)}, {V(T[0])}, 4, {V(T[2])}
        v_sub_u32 {V(T[2])}, 3, {V(T[1])}
        v_lshlrev_b32 {V(T[2])}, {V(T[2])}, {V(T[0])}
        v_lshl_add_u32 {V(T[3])}, {V(T[1])}, 8, {S(sT0)}
        v_add_u32 {V(T[3])}, 512, {V(T[3])}
        v_add_u32 {V(vTW2)}, {V(T[2])}, {V(T[3])}
        v_mul_u32_u24 {V(T[2])}, 124, {V(T[1])}
        v_add3_u32 {V(vTW3)}, {V(vTW2)}, {V(T[2])}, 4
        v_lshl_add_u32 {V(vTW4)}, {V(T[0])}, 1, {V(T[3])}
        v_add_u32 {V(vTW4)}, 512, {V(vTW4)}
        ''')

    def wsrc_setup():
        ssum(sT0, (sA, 7), (sWI, 5))
        ssum(sT1, (sF8, 13), (sWI, 8), 4096)
        ssum(sT2, (sF8, 10), W_P1)
        a(f'''
        s_min_u32 {S(sT0)}, {S(sT0)}, 2720
        v_lshrrev_b32 {V(T[6])}, 1, {V(vL)}
        v_lshl_add_u32 {V(T[6])}, {S(sR)}, 6, {V(T[6])}
        v_and_b32 {V(T[7])}, 1, {V(vL)}
        v_lshl_add_u32 {V(T[7])}, {V(T[7])}, 4, {S(sT0)}
        s_movk_i32 {S(sT0)}, 2752
        v_mad_u32_u24 {V(vWS0)}, {V(T[6])}, {S(sT0)}, {V(T[7])}
        v_add_u32 {V(vWS1)}, {32*2752}, {V(vWS0)}
        v_lshl_add_u32 {V(vWDA)}, {V(vL)}, 2, {S(sT1)}
        v_lshl_add_u32 {V(vP1R)}, {V(vL)}, 4, {S(sT2)}
        v_lshl_add_u32 {V(vP1F)}, {V(vL)}, 7, {S(sT2)}
        ''')

    def ffn_setup():
        smul(sT0, sWI, YTS, YX)
        ssum(sT1, (sWI, 12), WL)
        a(f'''
        v_and_b32 {V(T[2])}, 3, {V(vL)}
        v_lshrrev_b32 {V(T[3])}, 2, {V(vL)}
        v_mul_u32_u24 {V(T[4])}, {YGS}, {V(T[2])}
        v_lshl_add_u32 {V(T[4])}, {V(T[3])}, 4, {V(T[4])}
        v_add_u32 {V(vY)}, {S(sT0)}, {V(T[4])}
        v_lshl_add_u32 {V(T[2])}, {V(T[2])}, 3, {S(sT1)}
        v_lshl_add_u32 {V(vWT)}, {V(T[3])}, 5, {V(T[2])}
        v_lshl_add_u32 {V(vWDR)}, {V(vL)}, 4, {S(sT1)}
        v_and_b32 {V(T[2])}, 255, v0
        v_lshrrev_b32 {V(T[4])}, 1, {V(T[2])}
        v_mul_u32_u24 {V(T[4])}, 6144, {V(T[4])}
        v_and_b32 {V(T[3])}, 1, {V(vL)}
        v_lshl_add_u32 {V(T[4])}, {V(T[3])}, 4, {V(T[4])}
        ''')
        ssum(sT1, (sF8, 5), W_FP)
        a(f'v_add_u32 {V(vFPA)}, {S(sT1)}, {V(T[4])}')
        ssum(sT0, (sA, 13), (sWI, 11), (sR, 7), W_P1)
        a(f'''
        s_lshl_b32 {S(sT1)}, {S(sR)}, 7
        v_and_b32 {V(T[2])}, 31, {V(vL)}
        v_lshl_add_u32 {V(vXS)}, {V(T[2])}, 2, {S(sT1)}
        s_lshl_b32 {S(sT1)}, {S(sWI)}, 8
        s_add_u32 {S(sT1)}, {S(sT1)}, {FP}
        v_lshl_add_u32 {V(vXW)}, {V(vL)}, 2, {S(sT1)}
        v_lshrrev_b32 {V(T[2])}, 4, {V(vL)}
        v_lshl_add_u32 {V(T[2])}, {V(T[2])}, 3, {S(sT1)}
        v_lshl_add_u32 {V(vXR)}, {V(T[3])}, 6, {V(T[2])}
        v_bfe_u32 {V(T[2])}, {V(vL)}, 3, 1
        v_and_b32 {V(T[3])}, 7, {V(vL)}
        v_lshl_add_u32 {V(T[3])}, {V(T[3])}, 4, {S(sT0)}
        v_lshl_add_u32 {V(vP1W)}, {V(T[2])}, 10, {V(T[3])}
        ''')

    def conv_setup():
        a(f'v_and_b32 {V(T[5])}, 15, {V(vL)}\nv_lshrrev_b32 {V(T[6])}, 4, {V(vL)}')
        smul(sT0, sW, R4S, R4)
        a(f'v_lshlrev_b32 {V(T[3])}, 3, {V(T[6])}\nv_sub_u32 {V(T[3])}, {V(T[5])}, {V(T[3])}')
        for reg, k in ((vCA, 32), (vCA2, 28)):
            a(f'''
            v_add_u32 {V(T[4])}, {k}, {V(T[3])}
            v_lshrrev_b32 {V(T[7])}, 4, {V(T[4])}
            v_lshl_add_u32 {V(reg)}, {V(T[4])}, 3, {S(sT0)}
            v_lshl_add_u32 {V(reg)}, {V(T[7])}, 4, {V(reg)}
            ''')
        smul(sT0, sW, US, U)
        a(f'''
        v_lshl_add_u32 {V(T[3])}, {V(T[6])}, 4, {S(sT0)}
        v_lshl_add_u32 {V(vCB)}, {V(T[5])}, 5, {V(T[3])}
        ''')
        smul(sT0, sW, YCS, YX)
        a(f'''
        v_mul_u32_u24 {V(T[3])}, {YGS}, {V(T[6])}
        v_lshl_add_u32 {V(T[3])}, {V(T[5])}, 4, {V(T[3])}
        v_add_u32 {V(vY)}, {S(sT0)}, {V(T[3])}
        ''')

    WR = vP + 80
    def w_dma():
        for t in range(4):
            a(f'global_load_dwordx4 {V(WR+4*t,4)}, {V((vWS0, vWS1)[t&1])}, {S((sWG, sWU)[t>>1],2)}')

    def wd_dma():
        a(f"s_mov_b64 exec, 0xff\nglobal_load_dword {V(vPFW)}, {V(vP1F)}, {S(sWS,2)}{' nt' if o['p1nt'] else ''}\ns_mov_b64 exec, -1")
        for i in range(8):
            a(f'global_load_dword {V(vWD+i)}, {V(vWDA)}, {S(sWD,2)} offset:{i*1024 - 4096}')

    def slice_work():
        a('s_waitcnt vmcnt(0)' if PF1 else 's_waitcnt vmcnt(7)')
        stamp(1)
        a(f'''
        ds_write_b128 {V(slw)}, {V(vD,4)}
        ds_write_b128 {V(slw1)}, {V(vD+4,4)} offset:1024
        ds_read_b64 {V(vG,2)}, {V(slr)}
        ds_read_b64 {V(vG+2,2)}, {V(slr)} offset:128
        ds_read_b64 {V(vG+4,2)}, {V(slr1)}
        ds_read_b64 {V(vG+6,2)}, {V(slr1)} offset:128
        s_waitcnt lgkmcnt(0)
        global_store_dwordx4 {V(ina)}, {V(vG,4)}, {S(sWS,2)}
        global_store_dwordx4 {V(ina1)}, {V(vG+4,4)}, {S(sWS,2)}
        ''')


    S1, S2, S3, S4 = vXF, vXF + 1, vXF + 2, vXF + 3

    def red32(regs):
        for m in ('row_shr:1', 'row_shr:2', 'row_shr:4', 'row_shr:8'):
            for r in regs: a(f'v_add_f32_dpp {V(r)}, {V(r)}, {V(r)} {m} row_mask:0xf bank_mask:0xf')
        for r in regs: a(f'v_add_f32_dpp {V(r)}, {V(r)}, {V(r)} row_bcast:15 row_mask:0xa bank_mask:0xf')

    def ln_work():
        for r in (S1, S2, S3, S4): a(f'v_mov_b32 {V(r)}, 0')
        NP = 0 if PF1 else 7
        a(f's_setprio 2\ns_waitcnt vmcnt({3 + NP})')
        for i in range(8): a(f'v_dot2_f32_bf16 {V(S4)}, {V(vG+i)}, {S(sONES)}, {V(S4)}')
        red32([S4])
        a(f's_waitcnt vmcnt({1 + NP})')
        stamp(1)
        nlate = 0
        if o['prefetch']:
            a('s_mov_b64 exec, 0xffff')
            a(f'global_load_dword {V(vPFD)}, {V(pfi)}, {S(sWS,2)} nt'); nlate += 1
            alllanes()
        for i in range(8):
            a(f'v_dot2_f32_bf16 {V(S1)}, {V(vD+i)}, {S(sONES)}, {V(S1)}')
            a(f'v_dot2_f32_bf16 {V(S2)}, {V(vD+i)}, {V(vD+i)}, {V(S2)}')
            a(f'v_dot2_f32_bf16 {V(S3)}, {V(vD+i)}, {V(vG+i)}, {V(S3)}')
        red32([S1, S2, S3])
        t = T[0]; g = vE
        a(f'''
        v_mul_f32 {V(S1)}, 0x3b000000, {V(S1)}
        v_mul_f32 {V(S2)}, 0x3b000000, {V(S2)}
        s_waitcnt vmcnt({nlate + NP})
        v_fma_f32 {V(S2)}, -{V(S1)}, {V(S1)}, {V(S2)}
        v_readfirstlane_b32 {S(sTAG)}, {V(vEP)}
        v_max_f32 {V(S2)}, 0, {V(S2)}
        v_cvt_pk_bf16_f32 {V(t)}, {V(S1)}, {V(S2)}
        s_add_u32 {S(sTAG)}, {S(sTAG)}, 16
        v_and_b32 {V(t)}, {S(sHI)}, {V(t)}
        s_and_b32 {S(sTAG)}, {S(sTAG)}, -16
        v_add_f32 {V(t)}, 0x3727c5ac, {V(t)}
        s_or_b32 {S(sTAGX)}, {S(sTAG)}, {S(sXCC)}
        v_cvt_pk_bf16_f32 {V(t)}, {V(t)}, {V(t)}
        v_and_b32 {V(t)}, {S(sHI)}, {V(t)}
        v_sqrt_f32 {V(t)}, {V(t)}
        v_mov_b32 {V(g+3)}, {S(sTAGX)}
        v_cvt_pk_bf16_f32 {V(g+1)}, {V(S1)}, {V(t)}
        v_and_b32 {V(t)}, {S(sHI)}, {V(g+1)}
        v_lshlrev_b32 {V(t+1)}, 16, {V(g+1)}
        v_rcp_f32 {V(t)}, {V(t)}
        v_fma_f32 {V(S3)}, -{V(t+1)}, {V(S4)}, {V(S3)}
        v_readlane_b32 {S(sT0)}, {V(g+1)}, 31
        v_mul_f32 {V(S3)}, {V(S3)}, {V(t)}
        v_cvt_pk_bf16_f32 {V(S3)}, {V(S3)}, {V(S3)}
        v_mov_b32 {V(g)}, {S(sT0)}
        v_ashrrev_i32 {V(t)}, 31, {V(S3)}
        v_or_b32 {V(t)}, 0x80000000, {V(t)}
        v_xor_b32 {V(t)}, {V(t)}, {V(S3)}
        v_and_or_b32 {V(t)}, {V(t)}, {S(sHI)}, {V(rk)}
        s_add_u32 {S(sT1)}, {S(sTAG)}, 1
        v_readlane_b32 {S(sT0)}, {V(t)}, 31
        v_mov_b32 {V(t+2)}, {S(sT1)}
        v_max_u32 {V(g+2)}, {S(sT0)}, {V(t)}
        ''')
        lane63()
        a(f'global_store_dwordx4 {V(vSTP)}, {V(g,4)}, {S(sWS,2)} sc1')
        a(f'ds_write_b32 {V(vFFW)}, {V(t+2)} offset:{TG - FF}')
        alllanes()
        a(f"s_setprio 0\ns_waitcnt vmcnt({1 + nlate}) lgkmcnt(0)")
        stamp(2)

    if not PF1:
        if o['early']: table_setup(); wsrc_setup(); ffn_setup()
        elif o['wj']: wsrc_setup()
        ln_work()
        a('s_branch L_kgen\nL_c_slice:')
        if o['early']: conv_setup()
        slice_work()
        a('s_waitcnt vmcnt(2)')
    a('L_kgen:')
    are, aim, bre, bim, cre, cim, dt = [vP + i for i in range(7)]
    t0 = vP + 7
    z1, z2, z4, ZZ, w1, w2, w4 = [vP + 8 + 2 * i for i in range(7)]
    hq = [vP + 24 + 2 * i for i in range(8)]
    lq = [vP + 40 + 2 * i for i in range(8)]
    cv = [vP + 56 + i for i in range(8)]
    a(f'''
    v_mov_b32 {V(t0)}, 0x3fb8aa3b
    v_mul_f32 {V(dt)}, {V(dt)}, {V(t0)}
    v_exp_f32 {V(dt)}, {V(dt)}
    v_mul_f32 {V(are)}, {V(t0)}, {V(are)}
    v_cvt_pk_bf16_f32 {V(dt)}, {V(dt)}, {V(dt)}
    v_mul_f32 {V(aim)}, 0.15915494, {V(aim)}
    v_and_b32 {V(dt)}, {S(sHI)}, {V(dt)}
    v_mul_f32 {V(are)}, {V(dt)}, {V(are)}
    v_mul_f32 {V(aim)}, {V(dt)}, {V(aim)}
    v_exp_f32 {V(cv[0])}, {V(are)}
    v_fract_f32 {V(cv[1])}, {V(aim)}
    v_mul_f32 {V(are)}, 0x43800000, {V(are)}
    v_cos_f32 {V(z1)}, {V(cv[1])}
    v_mul_f32 {V(aim)}, 0x43800000, {V(aim)}
    v_sin_f32 {V(z1+1)}, {V(cv[1])}
    v_fract_f32 {V(cv[3])}, {V(aim)}
    v_exp_f32 {V(cv[2])}, {V(are)}
    v_mul_f32 {V(z1)}, {V(cv[0])}, {V(z1)}
    v_cos_f32 {V(ZZ)}, {V(cv[3])}
    v_mul_f32 {V(z1+1)}, {V(cv[0])}, {V(z1+1)}
    v_sin_f32 {V(ZZ+1)}, {V(cv[3])}
    v_mul_f32 {V(bre)}, {V(dt)}, {V(bre)}
    v_mul_f32 {V(bim)}, {V(dt)}, {V(bim)}
    ''')
    cmul(z2, z1, z1)
    a(f'v_mul_f32 {V(ZZ)}, {V(cv[2])}, {V(ZZ)}\nv_mul_f32 {V(ZZ+1)}, {V(cv[2])}, {V(ZZ+1)}')
    cmul(z4, z2, z2)
    cmul(hq[0], cre, bre)
    ci = [0]; m0_hi = [False]; pend = []

    def flush(n=99):
        for x in pend[:n]: a(x)
        del pend[:n]

    def put(row, reg, neg):
        c = cv[ci[0] % 8]; ci[0] += 1
        a(f"v_cvt_pk_bf16_f32 {V(c)}, {V(reg)}, {'-' if neg else ''}{V(reg+1)}")
        off = row * RS - (30 * RS if m0_hi[0] else 0)
        assert 0 <= off < 65536, (row, off)
        pend.append(f'ds_write_addtid_b32 {V(c)} offset:{STAGE + off}')
        if len(pend) >= o['dsg'] + o['dslate']: flush(o['dsg'])
    cmul(w1, z4, z4)
    cmul(hq[1], hq[0], z1)
    cmul(w2, w1, w1)
    put(1, w1, False)
    cmul(hq[2], hq[0], z2)
    cmul(lq[3], w2, w1)
    put(2, w2, False)
    cmul(w4, w2, w2)
    put(3, lq[3], False)
    cur = {1: w1, 2: w2, 3: lq[3], 4: w4}
    put(4, w4, False)

    def lo_step(j):
        d = lq[j % 8]
        cmul(d, cur[j - 4], w4); cur[j] = d
        put(j, d, False)
    def inject(j):
        if j == o['wj']:
            a(f's_and_b32 {S(sT0)}, {S(sP1)}, {S(sROLE)}\ns_cbranch_scc0 L_now')
            a(f's_cmp_eq_u32 {S(sROLE)}, 0\ns_cbranch_scc1 L_now')
            w_dma()
            a('L_now:')
        if j == o['wdj']:
            a(f's_and_b32 {S(sT0)}, {S(sP1)}, {S(sROLE)}\ns_cbranch_scc0 L_nowd')
            a(f's_cmp_eq_u32 {S(sROLE)}, 0\ns_cbranch_scc1 L_nowd')
            wd_dma()
            a('L_nowd:')
        if not PF1: return
        if j == o['jc']:
            a(f's_cmp_eq_u32 {S(sROLE)}, 1\ns_cbranch_scc1 L_noslice'); slice_work(); a('L_noslice:')
        if j == o['jh']:
            a(f's_cmp_eq_u32 {S(sROLE)}, 0\ns_cbranch_scc1 L_noln'); ln_work(); a('L_noln:')
    inject(4)
    for j in range(5, o['jf']):
        lo_step(j); inject(j)
    a(f's_cmp_eq_u32 {S(sROLE)}, 1\ns_cbranch_scc1 L_noflag')
    spin_init()
    a(f'''
    L_tagspin:
    ds_read_b32 {V(T[0])}, {V(tga)}
    s_waitcnt lgkmcnt(0)
    v_readfirstlane_b32 {S(sTAG)}, {V(T[0])}
    s_cmp_lg_u32 {S(sTAG)}, 0
    s_cbranch_scc1 L_tagok
    ''')
    spin_next('L_tagspin')
    a(f'''
    L_tagok:
    s_and_b32 {S(sTAG)}, {S(sTAG)}, -16
    s_or_b32 {S(sTAGX)}, {S(sTAG)}, {S(sXCC)}
    v_mov_b32 {V(T[0])}, {S(sTAGX)}
    s_mov_b64 exec, 1
    s_waitcnt vmcnt(0)
    global_store_dword {V(vFLO)}, {V(T[0])}, {S(sWS,2)}
    s_mov_b64 exec, -1
    ''')
    if o['touch'] == 1:
        a(f's_mov_b64 exec, 1\nglobal_load_dword {V(vTLB)}, {V(vXG)}, {S(sOUT,2)}\ns_mov_b64 exec, -1')
    stamp(2)
    a('L_noflag:')
    for j in range(o['jf'], 30):
        lo_step(j); inject(j)
    flush()
    ssum(sT0, (sW, 8), 30 * RS)
    a(f's_mov_b32 m0, {S(sT0)}')
    m0_hi[0] = True
    for j in range(30, 32): lo_step(j)
    put(32, hq[0], True); put(33, hq[1], True); put(34, hq[2], True)
    cmul(hq[3], hq[1], z2); cmul(hq[4], hq[0], z4)
    put(35, hq[3], True); put(36, hq[4], True)
    a(f'global_load_dword {V(vPFD)}, {V(vFL)}, {S(sWS,2)} sc1')
    cmul(hq[5], hq[1], z4); cmul(hq[6], hq[2], z4); cmul(hq[7], hq[3], z4)
    put(37, hq[5], True); put(38, hq[6], True); put(39, hq[7], True)
    A0, A2, A4, A6, B0, B4, C0, C4 = lq
    cmul(A0, hq[0], ZZ); cmul(A2, hq[2], ZZ); cmul(A4, hq[4], ZZ); cmul(A6, hq[6], ZZ)
    put(40, A0, True)
    cmul(B0, A0, ZZ); put(41, A2, True); cmul(B4, A4, ZZ); put(42, A4, True)
    cmul(C0, B0, ZZ); put(43, A6, True); cmul(C4, B4, ZZ); put(44, B0, True)
    cmul(hq[1], C0, ZZ); put(45, B4, True); put(46, C0, True)
    cmul(hq[2], hq[1], ZZ); put(47, C4, True); put(48, hq[1], True)
    cmul(hq[3], hq[2], ZZ); put(49, hq[2], True)
    cmul(hq[4], hq[3], ZZ); put(50, hq[3], True)
    cmul(hq[5], hq[4], ZZ); put(51, hq[4], True); put(52, hq[5], True)
    flush()
    stamp(3)

    KD = vP; KF = vP + 16; NB = o['nb']

    def kread(sidx):
        r = KF + 8 * (sidx % NB)
        a(f'ds_read_b128 {V(r,4)}, {V(vKA)} offset:{32*sidx}')
        a(f'ds_read_b128 {V(r+4,4)}, {V(vKB)} offset:{32*sidx}')

    def kmfma(cinit, shadow=()):
        for sidx in range(8):
            if sidx >= 2 and sidx - 2 < len(shadow): shadow[sidx - 2]()
            outstanding = min(8, sidx + NB) - sidx - 1
            a(f's_waitcnt lgkmcnt({2*outstanding})')
            r = KF + 8 * (sidx % NB)
            a(f"v_mfma_f32_32x32x16_bf16 {V(KD,16)}, {V(r,4)}, {V(r+4,4)}, {'0' if (sidx == 0 and not cinit) else V(KD,16)}")
            if sidx + NB < 8: kread(sidx + NB)

    def fetch_tile(tag):
        a(f's_waitcnt vmcnt(0)\nv_cmp_ne_u32 vcc, {S(sTAGX)}, {V(vPFD)}')
        if o['force_slow']: a(f's_branch L_gather{tag}')
        a(f's_cbranch_vccz L_fast{tag}')
        spin_init()
        a(f'''
        L_flagspin{tag}:
        global_load_dword {V(vPFD)}, {V(vFL)}, {S(sWS,2)} sc1
        global_load_dword {V(T[0])}, {V(vXC)}, {S(sWS,2)} sc1
        s_waitcnt vmcnt(0)
        v_cmp_ne_u32 vcc, {S(sTAGX)}, {V(vPFD)}
        s_cbranch_vccz L_fast{tag}
        v_xor_b32 {V(T[0])}, {S(sTAGX)}, {V(T[0])}
        v_add_u32 {V(T[0])}, -1, {V(T[0])}
        v_cmp_gt_u32 vcc, 15, {V(T[0])}
        s_cbranch_vccnz L_gather{tag}
        ''')
        spin_next(f'L_flagspin{tag}')
        a(f'L_gather{tag}:')
        for r in range(4):
            a(f'global_load_dwordx2 {V(vD+2*r,2)}, {V(vXG)}, {S(sX,2)} offset:{r*1024}')
        a(f'''
        s_branch L_stats{tag}
        L_fast{tag}:
        global_load_dwordx4 {V(vD,4)}, {V(vIN)}, {S(sWS,2)} sc1
        global_load_dwordx4 {V(vD+4,4)}, {V(vIN)}, {S(sWS,2)} offset:64 sc1
        L_stats{tag}:
        global_load_dwordx4 {V(vG,4)}, {V(vST0)}, {S(sWS,2)} sc1
        global_load_dwordx4 {V(vG+4,4)}, {V(vST1)}, {S(sWS,2)} sc1
        ''')

    XP = vG
    def r4_build(tag, mid=None, vGA=vGA, vSEL=vSEL, vR4W=vR4W, Wq=vP, Q=vP+16, reads=True, writes=True):
        for c in range(4 if reads else 0):
            a(f'ds_read2_b32 {V(Wq+4*c,2)}, {V(vGA+2*c)} offset0:0 offset1:1')
            a(f'ds_read2_b32 {V(Wq+4*c+2,2)}, {V(vGA+2*c+1)} offset0:0 offset1:1')
        if tag == 'c': a(f'''
        s_cmp_lg_u32 {S(sW)}, 3
        s_cbranch_scc1 L_nopad{tag}
        v_bfe_u32 {V(T[0])}, {V(vL)}, 3, 2
        v_and_b32 {V(T[1])}, 7, {V(vL)}
        v_mul_u32_u24 {V(T[0])}, {R4S}, {V(T[0])}
        v_lshl_add_u32 {V(T[0])}, {V(T[1])}, 4, {V(T[0])}
        ''')
        if tag == 'c':
            for i in range(4): a(f'v_mov_b32 {V(T[4+i])}, 0')
        if tag == 'c': a(f'''
        s_mov_b32 exec_hi, 0
        ds_write_b128 {V(T[0])}, {V(T[4],4)} offset:{R4}
        s_mov_b64 exec, -1
        s_waitcnt lgkmcnt(1)
        L_nopad{tag}:
        ''')
        if tag == 'h' and o['hprio']: a(f"s_setprio {o['hprio2']}")
        if mid: mid()
        for c in range(4 if writes else 0):
            W0, W1, W2, W3 = [Wq + 4 * c + i for i in range(4)]
            q = Q + 8 * c
            if not mid: a('s_waitcnt lgkmcnt(6)')
            a(f'''
            v_perm_b32 {V(q+0)}, {V(W2)}, {V(W1)}, {V(vSEL+2)}
            v_perm_b32 {V(q+1)}, {V(W1)}, {V(W0)}, {V(vSEL+0)}
            v_perm_b32 {V(q+2)}, {V(W3)}, {V(W2)}, {V(vSEL+3)}
            v_perm_b32 {V(q+3)}, {V(W1)}, {V(W0)}, {V(vSEL+1)}
            v_mov_b32 {V(q+5)}, {V(q+0)}
            ds_write_b128 {V(vR4W)}, {V(q,4)} offset:{c*R4S}
            v_perm_b32 {V(q+4)}, {V(W3)}, {V(W2)}, {V(vSEL+4)}
            v_perm_b32 {V(q+6)}, {V(W3)}, {V(W2)}, {V(vSEL+5)}
            v_mov_b32 {V(q+7)}, {V(q+2)}
            ds_write_b128 {V(vR4W)}, {V(q+4,4)} offset:{c*R4S + 16}
            ''')

    def normalise(tag):
        if tag == 'h' and o['wj']:
            if not o['early']: ffn_setup()
            a('s_waitcnt vmcnt(0)')
        elif tag == 'h':
            a(f's_cmp_eq_u32 {S(sP1)}, 0\ns_cbranch_scc1 L_nw0')
            w_dma()
            if not o['early']: ffn_setup()
            a("s_waitcnt vmcnt(4)\ns_branch L_nw1\nL_nw0:")
            if not o['early']: ffn_setup()
            a("s_waitcnt vmcnt(0)\nL_nw1:")
        else:
            a('s_waitcnt vmcnt(0)')
        spin_init()
        a(f'''
        L_statspin{tag}:
        v_xor_b32 {V(T[0])}, {S(sTAG)}, {V(vG+3)}
        v_xor_b32 {V(T[1])}, {S(sTAG)}, {V(vG+7)}
        v_or_b32 {V(T[0])}, {V(T[0])}, {V(T[1])}
        v_cmp_lt_u32 vcc, 15, {V(T[0])}
        s_cbranch_vccz L_statok{tag}
        global_load_dwordx4 {V(vG,4)}, {V(vST0)}, {S(sWS,2)} sc1
        global_load_dwordx4 {V(vG+4,4)}, {V(vST1)}, {S(sWS,2)} sc1
        s_waitcnt vmcnt(0)
        ''')
        spin_next(f'L_statspin{tag}')
        a(f'L_statok{tag}:')
        stamp(7)
        if tag == 'h' and o['wdj'] == 99:
            a(f's_cmp_eq_u32 {S(sP1)}, 0\ns_cbranch_scc1 L_nowd')
            wd_dma()
            a('L_nowd:')
        a(f'''
        v_cmp_ne_u32 vcc, {S(sTAGX)}, {V(vG+3)}
        s_and_b64 vcc, vcc, {S(sCM,2)}
        s_cbranch_vccz L_local{tag}
        v_mov_b32 {V(T[0])}, {FF}
        v_mov_b32 {V(T[1])}, 1
        ds_write_b32 {V(T[0])}, {V(T[1])}
        s_waitcnt lgkmcnt(0)
        L_local{tag}:
        ''')
        stq = [vG, vG + 1, vG + 4, vG + 5]
        rho = [T[1], T[3], T[5], T[7]]; mu = [T[0], T[2], T[4], T[6]]
        key = T[8]
        for r in range(4): a(f'v_and_b32 {V(rho[r])}, {S(sHI)}, {V(stq[r])}')
        a(f'v_max_u32 {V(key)}, {V(vG+2)}, {V(vG+6)}')
        for r in range(4):
            a(f'v_rcp_f32 {V(rho[r])}, {V(rho[r])}')
            a(f'v_lshlrev_b32 {V(mu[r])}, 16, {V(stq[r])}')
        kred = ['row_shr:1 row_mask:0xf', 'row_shr:2 row_mask:0xf', 'row_shr:4 row_mask:0xf', 'row_shr:8 row_mask:0xf',
                'row_bcast:15 row_mask:0xa', 'row_bcast:31 row_mask:0xc']
        def kr(i): a(f'v_max_u32_dpp {V(key)}, {V(key)}, {V(key)} {kred[i]} bank_mask:0xf')
        for r in range(4):
            a(f'''
            v_mul_f32_e64 {V(mu[r])}, -{V(mu[r])}, {V(rho[r])}
            v_lshlrev_b32 {V(vXF+4*r)}, 16, {V(vD+2*r)}
            v_and_b32 {V(vXF+4*r+1)}, {S(sHI)}, {V(vD+2*r)}
            v_lshlrev_b32 {V(vXF+4*r+2)}, 16, {V(vD+2*r+1)}
            v_and_b32 {V(vXF+4*r+3)}, {S(sHI)}, {V(vD+2*r+1)}
            ''')
            kr(r)
            for c in range(4): a(f'v_fma_f32 {V(vXN+4*r+c)}, {V(vXF+4*r+c)}, {V(rho[r])}, {V(mu[r])}')
        kr(4)
        ssum(sT0, (sW, 2), AM)
        for c in range(4):
            a(f'''
            v_cvt_pk_bf16_f32 {V(XP+2*c)}, {V(vXN+c)}, {V(vXN+4+c)}
            v_cvt_pk_bf16_f32 {V(XP+2*c+1)}, {V(vXN+8+c)}, {V(vXN+12+c)}
            ds_write_b64 {V(vUW)}, {V(XP+2*c,2)} offset:{c*US}
            ''')
            if c == 0: kr(5)
            if c == 1: a(f'v_mov_b32 {V(T[9])}, {S(sT0)}')
        lane63()
        a(f'ds_write_b32 {V(T[9])}, {V(key)}')
        alllanes()

    a(f's_cmp_eq_u32 {S(sROLE)}, 1\ns_cbranch_scc1 L_h_k')
    if o['cearly'] == 2: fetch_tile('c')
    for i in range(NB): kread(i)
    kmfma(False, () if o['early'] else (conv_setup,))
    a(f'v_mov_b32 {V(T[1])}, 1')
    for i in range(3): a(f'ds_write_b128 {V(vPD)}, {V(KD+4*i,4)} offset:{1024*i}')
    a(f's_mov_b64 exec, 1\nds_write_b32 {V(tga)}, {V(T[1])} offset:{PF - TG}\ns_mov_b64 exec, -1')
    stamp(4)
    if o['cearly'] != 2: fetch_tile('c')
    if o['call']:
        sel_setup('a', 0, vGA, vSEL, vR4W, True)
        sel_setup('b', 256, GA2, SEL2, R4W2, False)
    if o['cearly']: normalise('c')
    a('s_branch L_b3')
    a('L_h_k:')
    if o['hfetch']: fetch_tile('h')
    spin_init()
    a(f'''
    L_pspin:
    ds_read_b32 {V(T[1])}, {V(vFFW)} offset:{PF - FF}
    ''')
    for i in range(3): a(f'ds_read_b128 {V(KD+4*i,4)}, {V(vPD)} offset:{1024*i}')
    for i in range(NB - 1): kread(i)
    a(f'''
    s_waitcnt lgkmcnt({2*(NB-1) + 3})
    v_readfirstlane_b32 {S(sT0)}, {V(T[1])}
    s_cmp_lg_u32 {S(sT0)}, 0
    s_cbranch_scc1 L_pok
    s_waitcnt lgkmcnt(0)
    ''')
    spin_next('L_pspin')
    a('L_pok:')
    kread(NB - 1)
    kmfma(True, () if o['early'] else (table_setup,) if o['wj'] else (table_setup, wsrc_setup))
    for i in range(6): a(f'v_cvt_pk_bf16_f32 {V(T[i])}, {V(KD+2*i)}, {V(KD+2*i+1)}')
    a(f'''
    ds_write_b64 {V(vTW1)}, {V(T[0],2)}
    ds_write_b32 {V(vTW2)}, {V(T[2])}
    ds_write_b32 {V(vTW3)}, {V(T[3])}
    ds_write_b16 {V(vTW4)}, {V(T[4])}
    ds_write_b16_d16_hi {V(vTW4)}, {V(T[4])} offset:64
    ds_write_b16 {V(vTW4)}, {V(T[5])} offset:128
    ds_write_b16_d16_hi {V(vTW4)}, {V(T[5])} offset:192
    ''')
    stamp(4)
    if not o['hfetch']: fetch_tile('h')
    if o['hprio']: a(f"s_setprio {o['hprio']}")
    a('L_b3:\ns_waitcnt lgkmcnt(0)')
    stamp(5)
    a('s_barrier')

    a(f's_cmp_eq_u32 {S(sROLE)}, 1\ns_cbranch_scc1 L_h_r4')
    if o['call']:
        r4_build('c', writes=False)
        def mid2():
            a('s_waitcnt lgkmcnt(2)')
            r4_build('x', vGA=GA2, Wq=vP+48, writes=False)
            a('s_waitcnt lgkmcnt(8)')
        r4_build('x', mid2, reads=False)
        r4_build('x', lambda: a('s_waitcnt lgkmcnt(8)'), vSEL=SEL2, vR4W=R4W2, Wq=vP+48, Q=vP+64, reads=False)
    else: r4_build('c')
    stamp(6)
    if not o['cearly']: normalise('c')
    if o['roll']:
        for i in range(16): a(f'v_mov_b32 {V(vP+i)}, 0')
    a('s_branch L_b4\nL_h_r4:')
    if o['call']:
        a(f"s_setprio {o['hprio2']}")
        normalise('h')
    elif o['hnormfirst']:
        def mid():
            normalise('h')
            a('s_waitcnt lgkmcnt(5)'); stamp(6)
        r4_build('h', mid)
    else:
        r4_build('h'); stamp(6); normalise('h')
    a('s_setprio 0\nL_b4:')
    a(f'v_mov_b32 {V(T[9])}, {AM}\ns_waitcnt lgkmcnt(0)')
    stamp(8)
    a('s_barrier')

    def read_idx():
        a(f'''
        ds_read_b128 {V(T[0],4)}, {V(T[9])}
        ds_read_b128 {V(T[4],4)}, {V(T[9])} offset:16
        s_waitcnt lgkmcnt(0)
        v_max3_u32 {V(T[0])}, {V(T[0])}, {V(T[1])}, {V(T[2])}
        v_max3_u32 {V(T[3])}, {V(T[3])}, {V(T[4])}, {V(T[5])}
        v_max3_u32 {V(T[0])}, {V(T[0])}, {V(T[6])}, {V(T[7])}
        v_max_u32 {V(T[0])}, {V(T[0])}, {V(T[3])}
        v_readfirstlane_b32 {S(sKEY)}, {V(T[0])}
        s_andn2_b32 {S(sIDX)}, 2047, {S(sKEY)}
        s_lshr_b32 {S(sT0)}, {S(sIDX)}, 8
        s_lshr_b32 {S(sT1)}, {S(sIDX)}, 9
        s_xor_b32 {S(sT0)}, {S(sT0)}, {S(sT1)}
        s_xor_b32 {S(sT0)}, {S(sT0)}, {S(sH)}
        s_andn2_b32 {S(sOWN)}, 1, {S(sT0)}
        ''')

    def stat_addr(dst):
        a(f's_lshr_b32 {S(sT0)}, {S(sIDX)}, 2\ns_bfe_u32 {S(sT1)}, {S(sIDX)}, 0x10001\ns_and_b32 {S(sT2)}, {S(sIDX)}, 1')
        ssum(sT0, (sT0, 4), (sT1, 13), (sT2, 2), W_ST)
        a(f'v_mov_b32 {V(dst)}, {S(sT0)}')

    a(f's_cmp_eq_u32 {S(sROLE)}, 1\ns_cbranch_scc1 L_helper')

    ACC = vP; FR = vP + 16; NFR = 28
    if o['touch'] == 2:
        a(f's_mov_b64 exec, 1\nglobal_load_dword {V(T[10])}, {V(vXG)}, {S(sOUT,2)}\ns_mov_b64 exec, -1')
    stamp(10)
    a(f's_setprio 1\ns_cmp_eq_u32 {S(sH)}, 0\ns_cbranch_scc0 L_conv1')

    def conv(h):
        tl = tiles(h)
        ops = []
        for c0 in range(8):
            lst = [(i, c1, q - c1) for i, q in enumerate(tl) for c1 in range(q + 1)]
            have = set(); seq = []
            while lst:
                def cost(x):
                    base = (2 * (('A', x[1]) not in have) + (('B', x[2]) not in have), bool(seq) and seq[-1][0] == x[0], max(x[1], x[2]))
                    return ((x[0],) + base) if c0 == 7 else base
                x = min(lst, key=cost); lst.remove(x); seq.append(x); have.add(('A', x[1])); have.add(('B', x[2]))
            for i, c1, qp in seq: ops.append((i, ('A', c0, c1), ('B', c0, qp)))
        order = []; last = {}; lastacc = {}
        for n, (i, ak, bk) in enumerate(ops):
            lastacc[i] = n
            for k in (bk, ak):
                if k not in last: order.append(k)
                last[k] = n
        L = []
        for k in order: L += [(k, 0), (k, 1)] if k[0] == 'A' else [(k, 0)]
        endidx = {}
        for j, (k, p) in enumerate(L): endidx[k] = j + 1
        need = []; m = 0
        for (i, ak, bk) in ops:
            m = max(m, endidx[ak], endidx[bk]); need.append(m)
        free = list(range(NFR)); slot = {}
        st = dict(issued=0, done=0)
        seqpos = []
        nds = [0]
        donepos = [0]
        MAXOUT = o['maxout']; G = o['group']

        def can_issue():
            if st['issued'] >= len(L) or nds[0] - donepos[0] >= MAXOUT: return False
            k, p = L[st['issued']]
            return p == 1 or bool(free)

        def issue():
            k, p = L[st['issued']]
            if p == 0: slot[k] = free.pop(0)
            r = FR + 4 * slot[k]
            if k[0] == 'A':
                a(f'ds_read_b64 {V(r+2*p,2)}, {V(vCA2 if p else vCA)} offset:{CAS*(8*k[2] + k[1])}')
            else:
                a(f'ds_read_b128 {V(r,4)}, {V(vCB)} offset:{2*(224 + 256*k[2] - 32*k[1])}')
            st['issued'] += 1; nds[0] += 1; seqpos.append(nds[0])
        started = set(); written = set()
        while can_issue(): issue()
        for n, (i, ak, bk) in enumerate(ops):
            if need[n] > st['done']:
                while st['issued'] < need[n]:
                    assert nds[0] - donepos[0] < 15
                    issue()
                tgt = need[n]
                for m2 in range(n, min(n + G, len(ops))):
                    if need[m2] <= st['issued'] - o['minfly'] or need[m2] <= len(L) == st['issued']: tgt = max(tgt, need[m2])
                a(f's_waitcnt lgkmcnt({nds[0] - seqpos[tgt-1]})'); st['done'] = tgt; donepos[0] = seqpos[tgt - 1]
            acc = ACC + 4 * i
            cin = V(acc, 4) if i in started else '0'
            started.add(i)
            a(f'v_mfma_f32_16x16x32_bf16 {V(acc,4)}, {V(FR+4*slot[ak],4)}, {V(FR+4*slot[bk],4)}, {cin}')
            for k in (ak, bk):
                if last[k] == n: free.append(slot[k])
            budget = 2
            if n + 1 < len(ops) and need[n + 1] > st['done']: budget = 1
            for i2 in range(4):
                if i2 not in written and lastacc[i2] + 4 <= n and budget > 0 and nds[0] - donepos[0] < 15:
                    a(f'ds_write_b128 {V(vY)}, {V(ACC+4*i2,4)} offset:{i2*YTS}')
                    written.add(i2); nds[0] += 1; budget -= 1
            while budget > 0 and can_issue():
                issue(); budget -= 1
        for i2 in range(4):
            if i2 not in written: a(f'ds_write_b128 {V(vY)}, {V(ACC+4*i2,4)} offset:{i2*YTS}')
    def conv_rolled(h):
        tl = tiles(h)
        lst = [(i, c1, q - c1) for i, q in enumerate(tl) for c1 in range(q + 1)]
        have = set(); seq = []
        while lst:
            x = min(lst, key=lambda x: (2 * (('A', x[1]) not in have) + (('B', x[2]) not in have), bool(seq) and seq[-1][0] == x[0], max(x[1], x[2])))
            lst.remove(x); seq.append(x); have.add(('A', x[1])); have.add(('B', x[2]))
        L1 = []; seen = set(); end1 = {}
        for (i, c1, qp) in seq:
            for k in (('B', qp), ('A', c1)):
                if k not in seen:
                    seen.add(k); L1 += [(k, 0), (k, 1)] if k[0] == 'A' else [(k, 0)]; end1[k] = len(L1)
        NL = len(L1); NM = len(seq)
        def need(n):
            st, r = divmod(n, NM)
            return st * NL + max(max(end1[('A', c1)], end1[('B', qp)]) for (i, c1, qp) in seq[:r + 1])
        def slot(k, st): return FR + 4 * ((k[1] + (8 if k[0] == 'B' else 0)) + 16 * (st & 1))
        def load(j):
            st, r = divmod(j, NL); k, p = L1[r]; rg = slot(k, st)
            if k[0] == 'A': a(f'ds_read_b64 {V(rg+2*p,2)}, {V(vCA2 if p else vCA)} offset:{CAS*(8*k[1] + st)}')
            else: a(f'ds_read_b128 {V(rg,4)}, {V(vCB)} offset:{2*(224 + 256*k[1] - 32*st)}')
        P = o['pro']; G = o['rg']
        for j in range(P): load(j)
        a(f's_mov_b32 {S(sCNT)}, 4\nL_cloop{h}:')
        issued = P; done = ('x', 0)
        donecnt = need(0) - 1 - NL
        for n in range(2 * NM):
            if n % G == 0:
                tgt = need(min(n + G - 1, 2 * NM - 1))
                assert 0 <= issued - tgt <= 15, (n, issued, tgt)
                a(f's_waitcnt lgkmcnt({issued - tgt})'); donecnt = tgt
            st, r = divmod(n, NM); i, c1, qp = seq[r]
            if n == 2 * NM - 1: a(f's_sub_u32 {S(sCNT)}, {S(sCNT)}, 1\ns_cmp_lg_u32 {S(sCNT)}, 0')
            a(f'v_mfma_f32_16x16x32_bf16 {V(ACC+4*i,4)}, {V(slot(("A",c1),st),4)}, {V(slot(("B",qp),st),4)}, {V(ACC+4*i,4)}')
            want = P + ((n + 1) * 2 * NL + (2 * NM - 1)) // (2 * NM) if n < 2 * NM - 2 else P + 2 * NL
            want = min(want, P + 2 * NL)
            while issued < want:
                assert issued - donecnt < 16
                load(issued); issued += 1
            if n == 2 * NM - 2:
                a(f'v_add_u32 {V(vCA)}, {2*CAS}, {V(vCA)}\nv_add_u32 {V(vCA2)}, {2*CAS}, {V(vCA2)}\nv_add_u32 {V(vCB)}, -128, {V(vCB)}')
        a(f's_cbranch_scc1 L_cloop{h}')
        a('s_nop 3')
        for i2 in range(4): a(f'ds_write_b128 {V(vY)}, {V(ACC+4*i2,4)} offset:{i2*YTS}')
    cv_ = conv_rolled if o['roll'] else conv
    cv_(0)
    a('s_branch L_convdone\nL_conv1:')
    cv_(1)
    a('L_convdone:\ns_waitcnt lgkmcnt(0)')
    stamp(9)
    a(f's_barrier\ns_cmp_lg_u32 {S(sW)}, 0\ns_cbranch_scc1 L_exit')
    a(f'''
    s_cmp_lg_u32 s2, 0
    s_cbranch_scc1 L_noep
    v_mov_b32 {V(T[10])}, 0
    v_mov_b32 {V(T[11])}, {S(sTAG)}
    s_mov_b64 exec, 1
    global_store_dword {V(T[10])}, {V(T[11])}, {S(sWS,2)} sc1
    s_mov_b64 exec, -1
    L_noep:
    ''')
    read_idx()
    a(f's_cmp_eq_u32 {S(sOWN)}, 0\ns_cbranch_scc1 L_exit\ns_setprio 3')
    F = vP
    par, xo, fpa = T[12], T[13], T[14]
    y0, y1, n0, n1, d0, d1, sg, xv, sv, x0, x1 = [vXF + i for i in range(11)]
    a(f'v_and_b32 {V(par)}, 1, {V(vL)}')
    ssum(sT0, (sIDX, 10), (sCH0, 1))
    a(f'v_lshl_add_u32 {V(xo)}, {V(par)}, 2, {S(sT0)}')
    stat_addr(T[10])
    a(f'global_load_dword {V(xv)}, {V(xo)}, {S(sX,2)}')
    a(f'global_load_dword {V(sv)}, {V(T[10])}, {S(sWS,2)} sc1')
    a(f's_lshr_b32 {S(sT0)}, {S(sCH0)}, 2')
    smul(sT0, sT0, 6144, W_FP + 3072)
    a(f'v_lshl_add_u32 {V(fpa)}, {V(vL)}, 4, {S(sT0)}')
    a(f'''
    s_lshr_b32 {S(sT1)}, {S(sIDX)}, 9
    s_mul_i32 {S(sT1)}, {S(sT1)}, {YTS}
    s_bfe_u32 {S(sT0)}, {S(sIDX)}, 0x20002
    s_mul_i32 {S(sT0)}, {S(sT0)}, {YGS}
    s_add_u32 {S(sT1)}, {S(sT1)}, {S(sT0)}
    s_bfe_u32 {S(sT0)}, {S(sIDX)}, 0x40004
    s_and_b32 {S(sT2)}, {S(sIDX)}, 3
    ''')
    ssum(sT1, (sT1, 0), (sT0, 4), (sT2, 2), YX)
    a(f'''
    v_mul_u32_u24 {V(T[0])}, {2*YCS}, {V(par)}
    v_add_u32 {V(T[0])}, {S(sT1)}, {V(T[0])}
    ds_read_b32 {V(y0)}, {V(T[0])}
    ds_read_b32 {V(y1)}, {V(T[0])} offset:{YCS}
    s_and_b32 {S(sT0)}, {S(sKEY)}, {S(sHI)}
    s_xor_b32 {S(sT1)}, {S(sT0)}, 0x80000000
    s_xor_b32 {S(sT2)}, {S(sT0)}, {S(sHI)}
    s_bitcmp1_b32 {S(sT0)}, 31
    s_cselect_b32 {S(sT0)}, {S(sT1)}, {S(sT2)}
    v_mov_b32 {V(T[2])}, 0xbfb8aa3b
    v_mul_f32 {V(sg)}, {S(sT0)}, {V(T[2])}
    v_exp_f32 {V(sg)}, {V(sg)}
    v_cmp_eq_u32 vcc, 0, {V(par)}
    v_add_f32 {V(sg)}, 1.0, {V(sg)}
    v_rcp_f32 {V(sg)}, {V(sg)}
    v_mov_b32 {V(F+20)}, 0
    v_cvt_pk_bf16_f32 {V(sg)}, {V(sg)}, {V(sg)}
    v_mov_b32 {V(F+21)}, 0
    v_and_b32 {V(sg)}, {S(sHI)}, {V(sg)}
    v_mov_b32 {V(F+22)}, {S(sTAG)}
    s_waitcnt lgkmcnt(0)
    v_mov_b32 {V(d0)}, {S(sDS)}
    v_mov_b32 {V(d1)}, {S(sDS+1)}
    v_cndmask_b32 {V(d0)}, {V(d1)}, {V(d0)}, vcc
    v_and_b32 {V(d1)}, {S(sHI)}, {V(d0)}
    v_lshlrev_b32 {V(d0)}, 16, {V(d0)}
    ''')

    def rnd2(r0, r1, t):
        a(f'v_cvt_pk_bf16_f32 {V(t)}, {V(r0)}, {V(r1)}\nv_lshlrev_b32 {V(r0)}, 16, {V(t)}\nv_and_b32 {V(r1)}, {S(sHI)}, {V(t)}')
    rnd2(y0, y1, T[0])
    a(f'''
    s_waitcnt vmcnt(0)
    v_and_b32 {V(T[1])}, {S(sHI)}, {V(sv)}
    v_lshlrev_b32 {V(T[2])}, 16, {V(sv)}
    v_rcp_f32 {V(T[1])}, {V(T[1])}
    v_lshlrev_b32 {V(x0)}, 16, {V(xv)}
    v_and_b32 {V(x1)}, {S(sHI)}, {V(xv)}
    v_sub_f32 {V(n0)}, {V(x0)}, {V(T[2])}
    v_sub_f32 {V(n1)}, {V(x1)}, {V(T[2])}
    ''')
    rnd2(n0, n1, T[0])
    a(f'v_mul_f32 {V(n0)}, {V(n0)}, {V(T[1])}\nv_mul_f32 {V(n1)}, {V(n1)}, {V(T[1])}')
    rnd2(n0, n1, T[0])
    a(f'v_mul_f32 {V(d0)}, {V(d0)}, {V(n0)}\nv_mul_f32 {V(d1)}, {V(d1)}, {V(n1)}')
    rnd2(d0, d1, T[0])
    a(f'v_add_f32 {V(y0)}, {V(y0)}, {V(d0)}\nv_add_f32 {V(y1)}, {V(y1)}, {V(d1)}')
    rnd2(y0, y1, T[0])
    if o['b6']: a('s_barrier')
    spin_init()
    a('L_ffnspin:')
    for i in range(5):
        a(f'global_load_dwordx4 {V(F+4*i,4)}, {V(fpa)}, {S(sWS,2)} offset:{i*1024 - 3072} sc1')
    a(f'''
    s_mov_b64 exec, 0xffffff
    global_load_dwordx4 {V(F+20,4)}, {V(fpa)}, {S(sWS,2)} offset:2048 sc1
    s_mov_b64 exec, -1
    s_waitcnt vmcnt(0)
    ''')
    for i in range(6): a(f'v_xor_b32 {V(T[i])}, {S(sTAG)}, {V(F+4*i+2)}')
    a(f'''
    v_or3_b32 {V(T[0])}, {V(T[0])}, {V(T[1])}, {V(T[2])}
    v_or3_b32 {V(T[3])}, {V(T[3])}, {V(T[4])}, {V(T[5])}
    v_or_b32 {V(T[0])}, {V(T[0])}, {V(T[3])}
    v_cmp_ne_u32 vcc, 0, {V(T[0])}
    s_cbranch_vccz L_ffnok
    ''')
    spin_next('L_ffnspin')
    a('L_ffnok:')
    stamp(11)
    p0, p1 = F, F + 1
    for e in range(2):
        a(f'v_add_f32 {V(F+e)}, {V(F+e)}, {V(F+4+e)}')
        a(f'v_add_f32 {V(F+8+e)}, {V(F+8+e)}, {V(F+12+e)}')
        a(f'v_add_f32 {V(F+16+e)}, {V(F+16+e)}, {V(F+20+e)}')
    for e in range(2): a(f'v_add_f32 {V(F+e)}, {V(F+e)}, {V(F+8+e)}')
    for e in range(2): a(f'v_add_f32 {V(F+e)}, {V(F+e)}, {V(F+16+e)}')
    for m in (2, 4, 8):
        for e in range(2): a(f'v_add_f32_dpp {V(F+e)}, {V(F+e)}, {V(F+e)} row_ror:{m} row_mask:0xf bank_mask:0xf')
    for pl in ('v_permlane16_swap_b32', 'v_permlane32_swap_b32'):
        for e in range(2): a(f'v_mov_b32 {V(F+4+e)}, {V(F+e)}')
        for e in range(2): a(f'{pl} {V(F+e)}, {V(F+4+e)}')
        for e in range(2): a(f'v_add_f32 {V(F+e)}, {V(F+e)}, {V(F+4+e)}')
    rnd2(p0, p1, T[0])
    for e in range(2): a(f'v_mul_f32 {V(F+e)}, {V(F+e)}, {V(sg)}')
    rnd2(p0, p1, T[0])
    a(f'v_add_f32 {V(p0)}, {V(p0)}, {V(n0)}\nv_add_f32 {V(p1)}, {V(p1)}, {V(n1)}')
    rnd2(p0, p1, T[0])
    for e in range(2): a(f'v_mul_f32 {V(F+4+e)}, 0xbfb8aa3b, {V(F+e)}')
    for e in range(2): a(f'v_exp_f32 {V(F+4+e)}, {V(F+4+e)}')
    for e in range(2): a(f'v_add_f32 {V(F+4+e)}, 1.0, {V(F+4+e)}')
    for e in range(2): a(f'v_rcp_f32 {V(F+4+e)}, {V(F+4+e)}')
    for e in range(2): a(f'v_mul_f32 {V(F+e)}, {V(F+e)}, {V(F+4+e)}')
    rnd2(p0, p1, T[0])
    a(f'v_mul_f32 {V(p0)}, {V(p0)}, {V(y0)}\nv_mul_f32 {V(p1)}, {V(p1)}, {V(y1)}')
    rnd2(p0, p1, T[0])
    a(f'''
    v_add_f32 {V(p0)}, {V(p0)}, {V(x0)}
    v_add_f32 {V(p1)}, {V(p1)}, {V(x1)}
    v_cvt_pk_bf16_f32 {V(T[0])}, {V(p0)}, {V(p1)}
    s_mov_b64 exec, 3
    global_store_dword {V(xo)}, {V(T[0])}, {S(sOUT,2)}
    s_mov_b64 exec, -1
    ''')
    if o['stamp']:
        a('s_waitcnt vmcnt(0)'); stamp(12); a('s_branch L_exit')
    else:
        a('s_endpgm')

    a('L_helper:')
    a(f'ds_read_b32 {V(T[8])}, {V(T[9])} offset:{FF - AM}')
    read_idx()
    XS = vP
    a(f'v_readfirstlane_b32 {S(sT3)}, {V(T[8])}\ns_mov_b32 {S(sPB)}, {S(sT3)}')
    a(f's_cmp_eq_u32 {S(sP1)}, 0\ns_cbranch_scc1 L_h_pre')
    a(f's_lshl_b32 {S(sT0)}, {S(sIDX)}, 10\nv_add_u32 {V(T[0])}, {S(sT0)}, {V(vXS)}')
    stat_addr(T[1])
    a(f'''
    global_load_dword {V(XS)}, {V(T[0])}, {S(sX,2)}
    global_load_dword {V(XS+4)}, {V(T[1])}, {S(sWS,2)} sc1
    ''')
    if not o['wdj']: wd_dma()
    a('L_h_pre:')
    sDV = sH8
    a(f'''
    s_lshl_b32 {S(sDV)}, {S(sDS)}, 16
    s_and_b32 {S(sDV+1)}, {S(sDS)}, {S(sHI)}
    s_lshl_b32 {S(sDV+2)}, {S(sDS+1)}, 16
    s_and_b32 {S(sDV+3)}, {S(sDS+1)}, {S(sHI)}
    ''')
    WF = vP + 8; DD = vP + 24; XA = vP + 40; WDF = vP + 48
    GT = [vP + 64 + i for i in range(4)]
    def ge_row(r):
        for c in range(4):
            src = XP + 2 * c + (r >> 1)
            if r & 1: a(f'v_and_b32 {V(vXN+4*r+c)}, {S(sHI)}, {V(src)}')
            else:     a(f'v_lshlrev_b32 {V(vXN+4*r+c)}, 16, {V(src)}')
        for c in range(4): a(f'v_mul_f32 {V(GT[c])}, 0xbfb8aa3b, {V(vXN+4*r+c)}')
        for c in range(4): a(f'v_exp_f32 {V(GT[c])}, {V(GT[c])}')
        for c in range(4):
            a(f'v_mul_f32 {V(vE+4*r+c)}, {S(sDV+c)}, {V(vXN+4*r+c)}')
            a(f'v_add_f32 {V(GT[c])}, 1.0, {V(GT[c])}')
        for c in range(4): a(f'v_rcp_f32 {V(GT[c])}, {V(GT[c])}')
        for c in range(4): a(f'v_mul_f32 {V(vXN+4*r+c)}, {V(vXN+4*r+c)}, {V(GT[c])}')
        for c in range(4): a(f'v_fma_f32 {V(vE+4*r+c)}, {V(vE+4*r+c)}, {V(vXN+4*r+c)}, {V(vXF+4*r+c)}')
    def masks():
        a(f'''
        s_lshr_b32 {S(sT0)}, {S(sIDX)}, 2
        s_lshl_b64 {S(sT2,2)}, 1, {S(sT0)}
        s_lshr_b32 {S(sT0)}, {S(sIDX)}, 8
        s_cmp_eq_u32 {S(sT0)}, {S(sT)}
        s_cselect_b64 {S(sT2,2)}, {S(sT2,2)}, 0
        s_not_b64 {S(sT2,2)}, {S(sT2,2)}
        s_and_b32 {S(sT0)}, {S(sIDX)}, 3
        ''')
        for r in range(4):
            a(f's_cmp_eq_u32 {S(sT0)}, {r}\ns_cselect_b64 {S(sM+2*r,2)}, {S(sT2,2)}, -1')
    masks()
    a(f's_cmp_eq_u32 {S(sP1)}, 0\ns_cbranch_scc1 L_h_ge')
    a(f"s_setprio {o['ffnprio']}")
    a(f"s_waitcnt vmcnt({2 if o['wdj'] else 11})")
    for t in range(4): a(f'ds_write_b128 {V(vWDR)}, {V(WR+4*t,4)} offset:{1024*t}')
    for t in range(4):
        a(f'ds_read_b64_tr_b16 {V(WF+4*t,2)}, {V(vWT)} offset:{1024*t}')
        a(f'ds_read_b64_tr_b16 {V(WF+4*t+2,2)}, {V(vWT)} offset:{1024*t + 512}')
    gq = T[4]
    def wd_unpack():
        for i in range(8):
            a(f'v_lshlrev_b32 {V(WDF+2*i)}, 16, {V(vWD+i)}\nv_and_b32 {V(WDF+2*i+1)}, {S(sHI)}, {V(vWD+i)}')
    if o['wdj']: wd_unpack()
    a(f"s_waitcnt vmcnt({0 if o['wdj'] else 9})")
    stamp(0)
    a(f'''
    v_and_b32 {V(T[12])}, {S(sHI)}, {V(XS+4)}
    v_lshlrev_b32 {V(T[14])}, 16, {V(XS+4)}
    v_rcp_f32 {V(T[12])}, {V(T[12])}
    v_lshlrev_b32 {V(T[2])}, 16, {V(XS)}
    v_and_b32 {V(T[3])}, {S(sHI)}, {V(XS)}
    v_sub_f32 {V(T[2])}, {V(T[2])}, {V(T[14])}
    v_sub_f32 {V(T[3])}, {V(T[3])}, {V(T[14])}
    v_cvt_pk_bf16_f32 {V(T[3])}, {V(T[2])}, {V(T[3])}
    v_lshlrev_b32 {V(T[2])}, 16, {V(T[3])}
    v_and_b32 {V(T[3])}, {S(sHI)}, {V(T[3])}
    v_mul_f32 {V(T[2])}, {V(T[2])}, {V(T[12])}
    v_mul_f32 {V(T[3])}, {V(T[3])}, {V(T[12])}
    v_cvt_pk_bf16_f32 {V(T[2])}, {V(T[2])}, {V(T[3])}
    ds_write_b32 {V(vXW)}, {V(T[2])}
    ds_read_b64 {V(XA,2)}, {V(vXR)}
    ds_read_b64 {V(XA+2,2)}, {V(vXR)} offset:32
    ''')
    a('s_waitcnt lgkmcnt(0)')
    for t in range(4):
        a(f'v_mfma_f32_16x16x32_bf16 {V(DD+4*t,4)}, {V(XA,4)}, {V(WF+4*t,4)}, 0')
    a(f'''
    v_mov_b32 {V(gq+2)}, {S(sTAG)}
    v_mov_b32 {V(gq+3)}, 0
    s_cmp_eq_u32 {S(sPB)}, 0
    v_add_f32 {V(gq)}, {V(DD)}, {V(DD+5)}
    v_add_f32 {V(gq+1)}, {V(DD+8)}, {V(DD+13)}
    s_mov_b64 exec, 0xffff
    s_cbranch_scc0 L_p1far
    global_store_dwordx4 {V(vP1W)}, {V(gq,4)}, {S(sWS,2)}
    s_branch L_p1done
    L_p1far:
    global_store_dwordx4 {V(vP1W)}, {V(gq,4)}, {S(sWS,2)} sc1
    L_p1done:
    s_mov_b64 exec, -1
    s_cmp_eq_u32 {S(sPROD)}, 0
    s_cbranch_scc1 L_h_ge
    ''')
    stamp(9)
    a(f'global_load_dwordx4 {V(T[0],4)}, {V(vP1R)}, {S(sWS,2)} sc1')
    if not o['wdj']:
        a('s_waitcnt vmcnt(2)'); wd_unpack()
    spin_init()
    a(f'''
    L_hspin:
    s_waitcnt vmcnt(0)
    v_cmp_ne_u32 vcc, {S(sTAG)}, {V(T[2])}
    s_cbranch_vccz L_hok
    global_load_dwordx4 {V(T[0],4)}, {V(vP1R)}, {S(sWS,2)} sc1
    ''')
    spin_next('L_hspin')
    a('s_waitcnt vmcnt(0)\nL_hok:')
    for e in range(2): a(f'v_add_f32_dpp {V(T[e])}, {V(T[e])}, {V(T[e])} row_ror:8 row_mask:0xf bank_mask:0xf')
    for pl in ('v_permlane16_swap_b32', 'v_permlane32_swap_b32'):
        for e in range(2): a(f'v_mov_b32 {V(T[2+e])}, {V(T[e])}')
        for e in range(2): a(f'{pl} {V(T[e])}, {V(T[2+e])}')
        for e in range(2): a(f'v_add_f32 {V(T[e])}, {V(T[e])}, {V(T[2+e])}')
    a(f'''
    v_cvt_pk_bf16_f32 {V(T[2])}, {V(T[0])}, {V(T[1])}
    v_lshlrev_b32 {V(T[0])}, 16, {V(T[2])}
    v_mul_f32 {V(T[1])}, 0xbfb8aa3b, {V(T[0])}
    v_exp_f32 {V(T[1])}, {V(T[1])}
    v_and_b32 {V(T[2])}, {S(sHI)}, {V(T[2])}
    v_add_f32 {V(T[1])}, 1.0, {V(T[1])}
    v_rcp_f32 {V(T[1])}, {V(T[1])}
    s_nop 0
    v_mul_f32 {V(T[1])}, {V(T[0])}, {V(T[1])}
    v_cvt_pk_bf16_f32 {V(T[1])}, {V(T[1])}, {V(T[1])}
    v_and_b32 {V(T[1])}, {S(sHI)}, {V(T[1])}
    v_mul_f32 {V(T[1])}, {V(T[1])}, {V(T[2])}
    v_cvt_pk_bf16_f32 {V(T[1])}, {V(T[1])}, {V(T[1])}
    v_and_b32 {V(T[1])}, {S(sHI)}, {V(T[1])}
    ''')
    for i in range(8):
        for e in range(2):
            a(f"{'v_mul_f32_dpp' if i == 0 else 'v_fmac_f32_dpp'} {V(gq+e)}, {V(T[1])}, {V(WDF+2*i+e)} row_newbcast:{i} row_mask:0xf bank_mask:0xf")
    a(f'global_store_dwordx4 {V(vFPA)}, {V(gq,4)}, {S(sWS,2)} sc1')
    stamp(10)
    a('L_h_ge:\ns_setprio 0')
    for r in range(o['prerows']): ge_row(r)
    a('L_h_b5:\ns_barrier')
    YR = vP
    def epilogue(ge):
        for r in range(4):
            if ge and r >= o['prerows']: ge_row(r)
            for c in range(4):
                a(f'v_fma_f32 {V(vE+4*r+c)}, {V(YR+4*c+r)}, {V(vXN+4*r+c)}, {V(vE+4*r+c)}')
            a(f'''
            v_cvt_pk_bf16_f32 {V(vD+2*r)}, {V(vE+4*r)}, {V(vE+4*r+1)}
            v_cvt_pk_bf16_f32 {V(vD+2*r+1)}, {V(vE+4*r+2)}, {V(vE+4*r+3)}
            s_mov_b64 exec, {S(sM+2*r,2)}
            global_store_dwordx2 {V(vXG)}, {V(vD+2*r,2)}, {S(sOUT,2)} offset:{r*1024}
            s_mov_b64 exec, -1
            ''')
    for c in range(4): a(f'ds_read_b128 {V(YR+4*c,4)}, {V(vY)} offset:{c*YCS}')
    if o['b6']:
        a(f'''
        s_lshr_b32 {S(sT0)}, {S(sWI)}, 1
        s_and_b32 {S(sT1)}, {S(sT0)}, {S(sOWN)}
        s_andn2_b32 {S(sT2)}, {S(sOWN)}, {S(sT0)}
        s_cmp_eq_u32 {S(sT1)}, 0
        s_cbranch_scc1 L_h_st
        ''')
        for r in range(o['prerows'], 4): ge_row(r)
        a('s_barrier\ns_waitcnt lgkmcnt(0)')
        epilogue(False)
        a('s_branch L_h_done\nL_h_st:')
    a('s_waitcnt lgkmcnt(0)')
    epilogue(True)
    for r in range(0):
        for c in range(4):
            a(f'v_fma_f32 {V(vE+4*r+c)}, {V(YR+4*c+r)}, {V(vXN+4*r+c)}, {V(vE+4*r+c)}')
        a(f'''
        v_cvt_pk_bf16_f32 {V(vD+2*r)}, {V(vE+4*r)}, {V(vE+4*r+1)}
        v_cvt_pk_bf16_f32 {V(vD+2*r+1)}, {V(vE+4*r+2)}, {V(vE+4*r+3)}
        s_mov_b64 exec, {S(sM+2*r,2)}
        global_store_dwordx2 {V(vXG)}, {V(vD+2*r,2)}, {S(sOUT,2)} offset:{r*1024}
        s_mov_b64 exec, -1
        ''')
    if o['b6']:
        a(f'''
        s_cmp_eq_u32 {S(sT2)}, 0
        s_cbranch_scc1 L_h_done
        s_waitcnt vmcnt({o['b6cnt']})
        s_barrier
        L_h_done:
        ''')
    if o['stamp'] or o['diag'] >= 0:
        stamp(11)
        a('s_waitcnt vmcnt(0)')
        stamp(12)
    if o['diag'] >= 0:
        a('''
        s_memrealtime s[90:91]
        s_sub_u32 s88, s88, s86
        s_min_u32 s88, s88, 2000
        s_lshl_b32 s88, s88, 2
        s_waitcnt lgkmcnt(0)
        s_add_u32 s88, s88, s90
        L_diag:
        s_memrealtime s[90:91]
        s_waitcnt lgkmcnt(0)
        s_sub_u32 s90, s90, s88
        s_cmp_lt_i32 s90, 0
        s_cbranch_scc1 L_diag
        ''')
    a('L_exit:')
    if o['stamp']:
        a('v_mov_b32 v254, 0')
        for i in range(14): a(f'v_writelane_b32 v254, s{86+i}, {i}')
        a(f'global_store_dword {V(vSTA)}, v254, {S(sWS,2)}')
    a('L_end:\ns_endpgm')
    a.raw('''.section .rodata,"a"
.p2align 6
.amdhsa_kernel %s_kernel
  .amdhsa_next_free_vgpr 256
  .amdhsa_next_free_sgpr 102
  .amdhsa_accum_offset 256
  .amdhsa_group_segment_fixed_size 0
  .amdhsa_kernarg_size 136
  .amdhsa_user_sgpr_count 2
  .amdhsa_user_sgpr_kernarg_segment_ptr 1
  .amdhsa_system_sgpr_workgroup_id_x 1
.end_amdhsa_kernel''' % KN)
    return a.text()


if __name__ == '__main__':
    out = sys.argv[1]
    opt = {}
    for kv in sys.argv[2:]:
        k, val = kv.split('='); opt[k] = int(val, 0)
    open(out, 'w').write(generate(**opt))
```

```python
import sys
from asmlib import *

KN = 'recurrent_scan__ssm_conv_s4__moe_arch_mod__prompt'

DEFAULTS = dict(stamp=0, cyc=0, force_slow=0, prefetch=1, wpf=1, spinmax=1 << 16, diag=-1,
                maxout=15, group=3, minfly=6, b6=1, b6cnt=1, nb=6, wdearly=0, wpfb3=1, hnormfirst=1, ffnprio=2, tlb=0, tlbsh=16, wnt=0, xnt=0, pnt=0, prerows=2, jc=4, jh=5, jf=12, p1nt=1, pfirst=0, cpf=1, cpfn=6, hfetch=0, cearly=0, call=0, roll=0, early=0, xlds=1, wj=6, wdj=99, touch=0, force_bad=0, osc1=0, pro=13, rg=3, wreg=1, dsg=4, dslate=0, hprio=3, hprio2=1)

RS = 2064
STAGE = 0
R4 = 0; R4S = 18560; CAS = 288
YX = 74240; YCS = 5120; YTS = 1280; YGS = 320
U = 109440; US = 4576
TAB = 127744; TS = 1552
WL = 133952; WL1 = 8320
SL = 150528
AM = 158720
FF = 158752
TG = 158768
PF = 158784
FP = 158848
LDS_BYTES = 159872
W_ST = 0x1000; W_FL = 0x6000; W_F2 = 0x7000; W_F3 = 0x8000; W_FP = 0x10000; W_P1 = 0xD0000; W_IN = 0x100000; W_STAMP = 0x800000

sX, sARE, sAIM, sBRE, sBIM, sCRE, sCIM, sLDT = 4, 6, 8, 10, 12, 14, 16, 18
sDSK, sWR, sWG, sWU, sWD, sOUT, sDBG, sWS = 20, 24, 26, 28, 30, 32, 34, 36
sW, sK, sJ, sCGL, sH, sCH0, sT, sXCC, sTAG, sTAGX = 38, 39, 40, 41, 42, 43, 44, 45, 46, 47
sPB, sDS = 48, 50
sONES, sF8, sPROD, sIDX, sKEY, sCNT = 52, 53, 54, 55, 56, 57
sT0, sT1, sT2, sT3 = 58, 59, 60, 61
sOWN, sINB = 62, 63
sM = 64
sH8 = 72
sHI = 80
sSTP = 82
sWI = 84
sP1 = 85
sCM = 78
sA = 76; sR = 77
sBAD = sPB; sFIN = sPB + 1
sROLE = 81

vL = 1
vGA = 2
vSEL = 10
vR4W, vUW, vST0, vST1, vFL, vIN, vXG, vXC = 16, 17, 18, 19, 20, 21, 22, 23
vKA, vKB, vPD, vY = 24, 25, 26, 27
vA0, vA1, vA2, vA3, vA4, vA5, vA6, vA7 = 28, 29, 30, 31, 32, 33, 34, 35
vEP, vPFD, vROW, vSTA = 36, 37, 38, 39
vD = 40
vG = 48
vXF = 56
vXN = 72
vE = 88
vP = 104
vB0, vB1, vB2, vB3, vB4, vB5 = 224, 225, 226, 227, 228, 229
vWD = 232
vT = 240
vCA, vCA2, vCB, vFLO = vA0, vA1, vA2, vA3
vTW1, vTW2, vTW3, vTW4, vWT, vWDA, vFPA, vXS = vA0, vA1, vA2, vA3, vA4, vA5, vA6, vA7
vWS0, vWS1, vP1W, vP1R, vFFW, vSTP = vB0, vB1, vB2, vB3, vB4, vB5
vWD1, vPFW = 230, 231
vTLB = 223
vWDR = 222; vP1F = 221; vXW = 220; vXR = 219; vF2 = 218; vF3 = 217; vWARM = 216


def tiles(h): return [2 * i + ((i ^ h) & 1) for i in range(4)]


def generate(**opt):
    o = dict(DEFAULTS); o.update(opt)
    a = Asm()
    V = v; S = s

    def stamp(i):
        if o['diag'] == i:
            a('s_memrealtime s[88:89]\ns_waitcnt lgkmcnt(0)')
        if not o['stamp'] or (o['stamp'] == 2 and i != 12): return
        a(f"{'s_memtime' if o['cyc'] else 's_memrealtime'} {S(sSTP,2)}\ns_waitcnt lgkmcnt(0)\ns_mov_b32 s{86+i}, {S(sSTP)}")

    def cmul(d, x, y):
        a(f'v_pk_mul_f32 {V(d,2)}, {V(x,2)}, {V(y,2)} op_sel:[1,1] op_sel_hi:[1,0]')
        a(f'v_pk_fma_f32 {V(d,2)}, {V(x,2)}, {V(y,2)}, {V(d,2)} op_sel:[0,0,0] op_sel_hi:[0,1,1] neg_lo:[0,0,1]')

    def lane63(): a('s_mov_b32 exec_lo, 0\ns_mov_b32 exec_hi, 0x80000000')
    def alllanes(): a('s_mov_b64 exec, -1')
    def spin_init(): a(f"s_mov_b32 {S(sCNT)}, {o['spinmax']}")
    def spin_next(lbl): a(f's_sub_u32 {S(sCNT)}, {S(sCNT)}, 1\ns_cmp_lg_u32 {S(sCNT)}, 0\ns_cbranch_scc1 {lbl}')

    def ssum(dst, *terms):
        first = True; const = 0
        for t in terms:
            if isinstance(t, int): const += t; continue
            r, sh = t
            if first:
                a(f's_lshl_b32 {S(dst)}, {S(r)}, {sh}' if sh else f's_mov_b32 {S(dst)}, {S(r)}'); first = False
            elif sh:
                a(f's_lshl_b32 {S(sT3)}, {S(r)}, {sh}\ns_add_u32 {S(dst)}, {S(dst)}, {S(sT3)}')
            else:
                a(f's_add_u32 {S(dst)}, {S(dst)}, {S(r)}')
        if const: a(f's_add_u32 {S(dst)}, {S(dst)}, {const}')

    def smul(dst, r, k, const=0):
        a(f's_mul_i32 {S(dst)}, {S(r)}, {k}')
        if const: a(f's_add_u32 {S(dst)}, {S(dst)}, {const}')

    T = [vT + i for i in range(16)]

    a.raw('; @launch grid=(256,1,1) block=(512,1,1) lds=%d' % LDS_BYTES)
    a.raw('.amdgcn_target "amdgcn-amd-amdhsa--gfx950"\n.text\n.globl %s_kernel\n.p2align 8\n.type %s_kernel,@function\n%s_kernel:' % (KN, KN, KN))
    a('''
    s_cmp_ge_u32 s2, 256
    s_cbranch_scc1 L_end
    s_load_dwordx16 s[4:19], s[0:1], 0
    s_load_dwordx16 s[20:35], s[0:1], 64
    s_load_dwordx2 s[36:37], s[0:1], 128
    ''')
    if o['cpf']:
        a.comment('pull the rest of this kernel code into L2: a few lines per workgroup of each XCD class')
        a(f'''
        s_getpc_b64 {S(sPB,2)}
        s_lshr_b32 {S(sT0)}, s2, 3
        s_mul_i32 {S(sT0)}, {S(sT0)}, {128*o['cpfn']}
        v_lshl_add_u32 {V(vTLB)}, v0, 7, {S(sT0)}
        v_min_u32 {V(vTLB)}, L_end - L_cpf, {V(vTLB)}
        v_cmp_gt_u32 vcc, {o['cpfn']}, v0
        s_and_saveexec_b64 {S(sM,2)}, vcc
        s_cbranch_execz L_cpf
        global_load_dword {V(vTLB)}, {V(vTLB)}, {S(sPB,2)}
        L_cpf:
        s_mov_b64 exec, -1
        ''')
    if o['diag'] >= 0: a('s_memrealtime s[86:87]')
    if o['stamp']: a(f"{'s_memtime' if o['cyc'] else 's_memrealtime'} s[100:101]")
    a(f'''
    v_lshrrev_b32 {V(T[0])}, 6, v0
    v_and_b32 {V(vL)}, 63, v0
    v_readfirstlane_b32 {S(sW)}, {V(T[0])}
    s_and_b32 {S(sK)}, s2, 7
    s_lshr_b32 {S(sJ)}, s2, 3
    s_and_b32 {S(sCGL)}, {S(sJ)}, 15
    s_lshr_b32 {S(sH)}, {S(sJ)}, 4
    s_and_b32 {S(sWI)}, {S(sW)}, 3
    s_cmp_ge_u32 {S(sW)}, 4
    s_cselect_b32 {S(sROLE)}, 1, 0
    ''')
    ssum(sCH0, (sK, 6), (sCGL, 2))
    for i in range(7): a(f'v_mov_b32 {V(vP+i)}, 0')
    a(f's_add_u32 {S(sT1)}, {S(sCH0)}, {S(sWI)}')
    a(f's_lshr_b32 {S(sT2)}, {S(sW)}, 2')
    ssum(sT0, (sT1, 8), (sT2, 7))
    a(f'v_lshl_add_u32 {V(T[1])}, {V(vL)}, 1, {S(sT0)}')
    a(f's_lshl_b32 {S(sT1)}, {S(sT1)}, 1')
    a(f'v_mov_b32 {V(T[2])}, {S(sT1)}')
    if o['stamp']:
        ssum(sT1, (2, 11), (sW, 8), W_STAMP)
        a(f'v_lshl_add_u32 {V(vSTA)}, {V(vL)}, 2, {S(sT1)}')
        for i in range(14): a(f's_mov_b32 s{86+i}, 0')

    def param_loads():
        for i, p in enumerate((sARE, sAIM, sBRE, sBIM, sCRE, sCIM)):
            a(f"global_load_short_d16_hi {V(vP+i)}, {V(T[1])}, {S(p,2)}{' nt' if o['pnt'] else ''}")
        a(f'global_load_short_d16_hi {V(vP+6)}, {V(T[2])}, {S(sLDT,2)}')

    a(f's_cmp_eq_u32 {S(sROLE)}, 1\ns_cbranch_scc1 L_h_load')
    ssum(sT0, (sJ, 16), (sW, 14), (sK, 7))
    a(f'''
    v_lshrrev_b32 {V(T[3])}, 3, {V(vL)}
    v_and_b32 {V(T[4])}, 7, {V(vL)}
    v_lshlrev_b32 {V(T[3])}, 10, {V(T[3])}
    v_lshl_add_u32 {V(T[3])}, {V(T[4])}, 4, {V(T[3])}
    v_add_u32 {V(vE+7)}, {S(sT0)}, {V(T[3])}
    v_add_u32 {V(vE+8)}, 8192, {V(vE+7)}
    s_waitcnt lgkmcnt(0)
    ''')
    if o['stamp']: a('s_mov_b32 s99, s100')
    if o['diag'] >= 0: a('s_mov_b32 s88, s86')
    stamp(0)
    XNT = ' nt' if o['xnt'] else ''
    PF1 = o['pfirst']
    if PF1: param_loads()
    a(f'global_load_dwordx4 {V(vD,4)}, {V(vE+7)}, {S(sX,2)}{XNT}')
    a(f'global_load_dwordx4 {V(vD+4,4)}, {V(vE+8)}, {S(sX,2)}{XNT}')
    if not PF1: param_loads()
    a('s_branch L_init')
    a('L_h_load:')
    ssum(sT0, (2, 13), (sWI, 11))
    a(f'''
    v_and_b32 {V(T[3])}, 31, {V(vL)}
    v_lshlrev_b32 {V(T[3])}, 4, {V(T[3])}
    v_lshrrev_b32 {V(T[4])}, 5, {V(vL)}
    v_lshl_add_u32 {V(T[4])}, {V(T[4])}, 10, {V(T[3])}
    v_add_u32 {V(T[4])}, {S(sT0)}, {V(T[4])}
    v_mov_b32 {V(T[5])}, 0
    s_waitcnt lgkmcnt(0)
    ''')
    if o['stamp']: a('s_mov_b32 s99, s100')
    if o['diag'] >= 0: a('s_mov_b32 s88, s86')
    stamp(0)
    if PF1: param_loads()
    a(f'''
    global_load_dwordx4 {V(vG,4)}, {V(T[3])}, {S(sWR,2)}
    global_load_dwordx4 {V(vG+4,4)}, {V(T[3])}, {S(sWR,2)} offset:512
    global_load_dwordx4 {V(vD,4)}, {V(T[4])}, {S(sX,2)}{XNT}
    global_load_dwordx4 {V(vD+4,4)}, {V(T[4])}, {S(sX,2)} offset:512{XNT}
    global_load_dword {V(vEP)}, {V(T[5])}, {S(sWS,2)} sc1
    ''')
    if not PF1: param_loads()

    a('L_init:')
    a(f'''
    v_mov_b32 {V(T[6])}, 0
    v_mov_b32 {V(T[7])}, 0x3f80
    s_lshl_b32 {S(sT0)}, {S(sW)}, 8
    s_mov_b32 m0, {S(sT0)}
    v_and_b32 {V(T[8])}, 127, v0
    ds_write_addtid_b32 {V(T[7])} offset:{STAGE}
    v_min_u32 {V(T[8])}, 119, {V(T[8])}
    v_lshrrev_b32 {V(T[9])}, 7, v0
    v_mul_u32_u24 {V(T[10])}, {US}, {V(T[9])}
    v_lshl_add_u32 {V(T[10])}, {V(T[8])}, 2, {V(T[10])}
    v_add_u32 {V(T[10])}, {U}, {V(T[10])}
    ds_write_b32 {V(T[10])}, {V(T[6])}
    s_cmp_lg_u32 {S(sW)}, 0
    s_cbranch_scc1 L_init2
    v_bfe_u32 {V(T[9])}, {V(vL)}, 1, 2
    v_mul_u32_u24 {V(T[9])}, {TS}, {V(T[9])}
    v_and_b32 {V(T[8])}, 1, {V(vL)}
    v_lshl_add_u32 {V(T[9])}, {V(T[8])}, 2, {V(T[9])}
    v_add_u32 {V(T[9])}, {TAB}, {V(T[9])}
    v_and_b32 {V(T[8])}, 15, {V(vL)}
    v_lshlrev_b32 {V(T[8])}, 2, {V(T[8])}
    v_add_u32 {V(T[8])}, {FF}, {V(T[8])}
    s_mov_b64 exec, 0xffff
    ds_write_b32 {V(T[9])}, {V(T[6])}
    ds_write_b32 {V(T[8])}, {V(T[6])}
    s_mov_b64 exec, -1
    L_init2:
    s_waitcnt lgkmcnt(0)
    s_barrier
    s_lshl_b32 {S(sT0)}, {S(sCH0)}, 1
    s_load_dwordx2 {S(sDS,2)}, {S(sDSK,2)}, {S(sT0)}
    s_getreg_b32 {S(sXCC)}, hwreg(HW_REG_XCC_ID, 0, 4)
    s_mov_b32 {S(sONES)}, 0x3f803f80
    s_mov_b32 {S(sHI)}, 0xffff0000
    s_lshr_b32 {S(sT0)}, {S(sW)}, 2
    s_xor_b32 {S(sT0)}, {S(sT0)}, {S(sWI)}
    s_xor_b32 {S(sT0)}, {S(sT0)}, {S(sH)}
    s_xor_b32 {S(sT0)}, {S(sT0)}, 1
    s_and_b32 {S(sT0)}, {S(sT0)}, 1
    s_lshl_b32 {S(sT)}, {S(sWI)}, 1
    s_add_u32 {S(sT)}, {S(sT)}, {S(sT0)}
    s_lshr_b32 {S(sT0)}, {S(sJ)}, 3
    s_and_b32 {S(sT1)}, {S(sJ)}, 7
    ''')
    ssum(sA, (sT0, 3), (sK, 0))
    a(f's_mov_b32 {S(sR)}, {S(sT1)}')
    ssum(sF8, (sA, 3), (sR, 0))
    a(f'''
    s_cmp_lt_u32 {S(sA)}, 22
    s_cselect_b32 {S(sP1)}, 1, 0
    s_cmp_lt_u32 {S(sF8)}, 172
    s_cselect_b32 {S(sPROD)}, 1, 0
    s_cselect_b32 {S(sF8)}, {S(sF8)}, {S(sJ)}
    s_lshl_b32 {S(sT0)}, {S(sK)}, 1
    s_lshl_b32 {S(sCM)}, 0x00030003, {S(sT0)}
    s_mov_b32 {S(sCM+1)}, {S(sCM)}
    ''')

    def sel_setup(tag, toff, GA, SEL, R4W, first):
        pos = [vXF + i for i in range(7)]
        tt = 'v0'
        if toff:
            a(f'v_add_u32 {V(T[5])}, {toff}, v0'); tt = V(T[5])
        a(f'v_lshlrev_b32 {V(T[0])}, 2, {tt}')
        if first: a(f's_cmp_eq_u32 {S(sW)}, 0\ns_cbranch_scc1 L_pos0{tag}')
        for i in range(7): a(f'v_add_u32 {V(pos[i])}, {i-3}, {V(T[0])}')
        for i in range(7): a(f'v_cvt_f32_u32 {V(pos[i])}, {V(pos[i])}')
        for i in range(0, 7, 2):
            a(f'v_cvt_pk_bf16_f32 {V(T[8+i//2])}, {V(pos[i])}, {V(pos[min(i+1,6)])}')
        a(f'v_mov_b32 {V(T[1])}, {4 - 0x4280}')
        for i in range(7):
            a(f'v_bfe_u32 {V(pos[i])}, {V(T[8+i//2])}, {16*(i&1)}, 16')
            a(f'v_add_u32 {V(pos[i])}, {V(T[1])}, {V(pos[i])}')
        if first:
            a(f's_branch L_pos_done{tag}\nL_pos0{tag}:')
            for i in range(7): a(f'v_add_u32 {V(pos[i])}, {i+1}, {V(T[0])}')
            a(f'L_pos_done{tag}:')
        b1, b2 = T[1], T[2]
        a(f'''
        v_and_b32 {V(b1)}, -2, {V(pos[2])}
        v_add_u32 {V(b1)}, -2, {V(b1)}
        v_and_b32 {V(b2)}, -2, {V(pos[3])}
        v_add_u32 {V(T[3])}, {V(b1)}, {V(b1)}
        v_add_u32 {V(T[4])}, {V(b2)}, {V(b2)}
        ''')
        for c in range(4):
            a(f'v_add_u32 {V(GA+2*c)}, {TAB + c*TS}, {V(T[3])}')
            a(f'v_add_u32 {V(GA+2*c+1)}, {TAB + c*TS}, {V(T[4])}')
        for i in range(3): a(f'v_sub_u32 {V(pos[i])}, {V(pos[i])}, {V(b1)}')
        for i in range(3, 7): a(f'v_sub_u32 {V(pos[i])}, {V(pos[i])}, {V(b2)}')
        a(f's_movk_i32 {S(sT0)}, 0x0202\nv_mov_b32 {V(T[3])}, 0x0100')
        for i in range(7): a(f'v_mad_u32_u24 {V(pos[i])}, {V(pos[i])}, {S(sT0)}, {V(T[3])}')
        for dst, lo, hi in ((0, 1, 0), (1, 2, 1), (2, 3, 2), (3, 4, 3), (4, 5, 4), (5, 6, 5)):
            a(f'v_lshl_or_b32 {V(SEL+dst)}, {V(pos[hi])}, 16, {V(pos[lo])}')
        a(f'v_add_u32 {V(SEL+2)}, 0x{(2*0x0202 - 2*0x02020000) & 0xffffffff:x}, {V(SEL+2)}')
        a(f'''
        v_and_b32 {V(T[0])}, -4, {tt}
        v_lshlrev_b32 {V(T[0])}, 2, {V(T[0])}
        v_lshl_add_u32 {V(R4W)}, {tt}, 5, {V(T[0])}
        v_add_u32 {V(R4W)}, {R4 + 144}, {V(R4W)}
        ''')
    GA2, SEL2, R4W2 = vE, vE + 8, vE + 14
    if not o['call']: sel_setup('a', 0, vGA, vSEL, vR4W, True)
    a(f's_lshl_b32 {S(sT0)}, {S(sT)}, 6')
    a(f'v_add_u32 {V(T[0])}, {S(sT0)}, {V(vL)}')
    ssum(sINB, (sK, 18), (sCGL, 14), W_IN)
    ssum(sT1, (sK, 9), W_FL)
    ssum(sT2, (sK, 5), W_ST + 12)
    a(f'''
    v_lshlrev_b32 {V(vROW)}, 2, {V(T[0])}
    v_lshlrev_b32 {V(vUW)}, 3, {V(T[0])}
    v_add_u32 {V(vUW)}, {U + 480}, {V(vUW)}
    v_lshlrev_b32 {V(vST0)}, 4, {V(T[0])}
    v_add_u32 {V(vST1)}, {W_ST + 8192}, {V(vST0)}
    v_add_u32 {V(vST0)}, {W_ST}, {V(vST0)}
    s_lshl_b32 {S(sT0)}, {S(sCH0)}, 1
    v_lshl_add_u32 {V(vXG)}, {V(T[0])}, 12, {S(sT0)}
    v_lshrrev_b32 {V(T[1])}, 2, {V(T[0])}
    v_lshl_add_u32 {V(vFL)}, {V(T[1])}, 2, {S(sT1)}
    v_and_b32 {V(T[2])}, 3, {V(vL)}
    v_lshl_add_u32 {V(T[2])}, {V(T[2])}, 4, {S(sINB)}
    v_lshl_add_u32 {V(vIN)}, {V(T[1])}, 7, {V(T[2])}
    v_lshrrev_b32 {V(T[1])}, 4, {V(T[0])}
    v_lshl_add_u32 {V(vXC)}, {V(T[1])}, 8, {S(sT2)}
    ''')
    smul(sT1, sWI, 3072, WL)
    a(f'''
    v_and_b32 {V(T[0])}, 31, {V(vL)}
    v_lshrrev_b32 {V(T[1])}, 5, {V(vL)}
    s_lshl_b32 {S(sT0)}, {S(sW)}, 8
    v_lshl_add_u32 {V(T[2])}, {V(T[1])}, 4, {S(sT0)}
    s_movk_i32 {S(sT0)}, {RS}
    v_mad_u32_u24 {V(vKB)}, {V(T[0])}, {S(sT0)}, {V(T[2])}
    v_add_u32 {V(T[3])}, -16, {V(T[0])}
    v_cmp_lt_u32 vcc, 20, {V(T[0])}
    v_lshl_add_u32 {V(vPD)}, {V(vL)}, 4, {S(sT1)}
    v_cndmask_b32 {V(T[3])}, {V(T[0])}, {V(T[3])}, vcc
    v_mad_u32_u24 {V(vKA)}, {V(T[3])}, {S(sT0)}, {V(T[2])}
    v_add_u32 {V(vKA)}, {STAGE + 32*RS}, {V(vKA)}
    v_and_b32 {V(T[5])}, 15, {V(vL)}
    v_lshrrev_b32 {V(T[6])}, 4, {V(vL)}
    s_cmp_eq_u32 {S(sROLE)}, 1
    s_cbranch_scc1 L_h_setup
    ''')

    slw, slw1, slr, slr1, ina, ina1, tga, so0, so1, cf2, cf3 = [vE + i for i in range(11)]
    ssum(sT0, (sW, 11), SL)
    a(f'''
    v_lshrrev_b32 {V(T[0])}, 3, {V(vL)}
    v_and_b32 {V(T[1])}, 7, {V(vL)}
    v_xor_b32 {V(T[2])}, {V(T[6])}, {V(T[1])}
    v_lshl_add_u32 {V(T[2])}, {V(T[2])}, 4, {S(sT0)}
    v_lshl_add_u32 {V(slw)}, {V(T[0])}, 7, {V(T[2])}
    v_xor_b32 {V(slw1)}, 64, {V(slw)}
    v_and_b32 {V(T[2])}, 3, {V(vL)}
    v_bfe_u32 {V(T[3])}, {V(vL)}, 2, 1
    v_lshl_add_u32 {V(T[2])}, {V(T[2])}, 1, {V(T[3])}
    v_xor_b32 {V(T[3])}, {V(T[6])}, {V(T[2])}
    v_lshl_add_u32 {V(T[3])}, {V(T[3])}, 4, {S(sT0)}
    v_lshl_add_u32 {V(T[3])}, {V(T[2])}, 8, {V(T[3])}
    v_and_b32 {V(T[4])}, 1, {V(T[0])}
    v_lshl_add_u32 {V(slr)}, {V(T[4])}, 3, {V(T[3])}
    v_xor_b32 {V(slr1)}, 64, {V(slr)}
    ''')
    ssum(sT0, (sK, 18), (sJ, 9), (sW, 7), W_IN)
    a(f'''
    v_lshl_add_u32 {V(T[1])}, {V(T[1])}, 4, {S(sT0)}
    v_lshl_add_u32 {V(ina)}, {V(T[0])}, 14, {V(T[1])}
    v_add_u32 {V(ina1)}, 0x20000, {V(ina)}
    ''')
    ssum(sT0, (sK, 9), (sJ, 4), (sW, 2), W_FL)
    a(f'v_mov_b32 {V(vFLO)}, {S(sT0)}')
    ssum(sT0, (sW, 2), TG)
    a(f'v_mov_b32 {V(tga)}, {S(sT0)}')
    a(f's_lshr_b32 {S(sT1)}, {S(sJ)}, 2')
    ssum(sT0, (sK, 9), (sT1, 6), W_F2)
    a(f'v_lshl_add_u32 {V(cf2)}, {V(T[5])}, 2, {S(sT0)}')
    ssum(sT0, (sK, 9), (sCGL, 5), (sT, 2), W_F3)
    a(f'v_mov_b32 {V(cf3)}, {S(sT0)}')
    a('s_waitcnt vmcnt(2)\ns_branch L_kgen' if PF1 else 's_branch L_c_slice')

    a('L_h_setup:')
    ssum(sT1, (sWI, 2), FF)
    a(f'''
    v_mov_b32 {V(vFFW)}, {S(sT1)}
    s_lshr_b32 {S(sT1)}, {S(sWI)}, 1
    s_and_b32 {S(sT2)}, {S(sWI)}, 1
    ''')
    ssum(sT0, (2, 5), (sT1, 4), (sT2, 13), W_ST)
    a(f'v_mov_b32 {V(vSTP)}, {S(sT0)}')
    rk, pfi = vXN, vXN + 8
    ssum(sT0, (2, 3), (sWI, 1))
    a(f's_sub_u32 {S(sT0)}, 0xffff, {S(sT0)}\nv_sub_u32 {V(rk)}, {S(sT0)}, {V(T[1])}')
    ssum(sT0, (sH, 13), (sWI, 11), (sINB, 0))
    a(f'v_lshl_add_u32 {V(pfi)}, {V(T[5])}, 7, {S(sT0)}')
    if PF1: a('s_waitcnt vmcnt(5)')

    def table_setup():
        smul(sT0, sWI, TS, TAB + 8)
        a(f'''
        v_and_b32 {V(T[0])}, 31, {V(vL)}
        v_lshrrev_b32 {V(T[1])}, 5, {V(vL)}
        v_lshl_add_u32 {V(T[2])}, {V(T[1])}, 3, {S(sT0)}
        v_lshl_add_u32 {V(vTW1)}, {V(T[0])}, 4, {V(T[2])}
        v_sub_u32 {V(T[2])}, 3, {V(T[1])}
        v_lshlrev_b32 {V(T[2])}, {V(T[2])}, {V(T[0])}
        v_lshl_add_u32 {V(T[3])}, {V(T[1])}, 8, {S(sT0)}
        v_add_u32 {V(T[3])}, 512, {V(T[3])}
        v_add_u32 {V(vTW2)}, {V(T[2])}, {V(T[3])}
        v_mul_u32_u24 {V(T[2])}, 124, {V(T[1])}
        v_add3_u32 {V(vTW3)}, {V(vTW2)}, {V(T[2])}, 4
        v_lshl_add_u32 {V(vTW4)}, {V(T[0])}, 1, {V(T[3])}
        v_add_u32 {V(vTW4)}, 512, {V(vTW4)}
        ''')

    def wsrc_setup():
        ssum(sT0, (sA, 7), (sWI, 5))
        ssum(sT1, (sF8, 13), (sWI, 8), 4096)
        ssum(sT2, (sF8, 10), W_P1)
        a(f'''
        s_min_u32 {S(sT0)}, {S(sT0)}, 2720
        v_lshrrev_b32 {V(T[6])}, 1, {V(vL)}
        v_lshl_add_u32 {V(T[6])}, {S(sR)}, 6, {V(T[6])}
        v_and_b32 {V(T[7])}, 1, {V(vL)}
        v_lshl_add_u32 {V(T[7])}, {V(T[7])}, 4, {S(sT0)}
        s_movk_i32 {S(sT0)}, 2752
        v_mad_u32_u24 {V(vWS0)}, {V(T[6])}, {S(sT0)}, {V(T[7])}
        v_add_u32 {V(vWS1)}, {32*2752}, {V(vWS0)}
        v_lshl_add_u32 {V(vWDA)}, {V(vL)}, 2, {S(sT1)}
        v_lshl_add_u32 {V(vP1R)}, {V(vL)}, 4, {S(sT2)}
        v_lshl_add_u32 {V(vP1F)}, {V(vL)}, 7, {S(sT2)}
        ''')

    def ffn_setup():
        smul(sT0, sWI, YTS, YX)
        ssum(sT1, (sWI, 12), WL)
        a(f'''
        v_and_b32 {V(T[2])}, 3, {V(vL)}
        v_lshrrev_b32 {V(T[3])}, 2, {V(vL)}
        v_mul_u32_u24 {V(T[4])}, {YGS}, {V(T[2])}
        v_lshl_add_u32 {V(T[4])}, {V(T[3])}, 4, {V(T[4])}
        v_add_u32 {V(vY)}, {S(sT0)}, {V(T[4])}
        v_lshl_add_u32 {V(T[2])}, {V(T[2])}, 3, {S(sT1)}
        v_lshl_add_u32 {V(vWT)}, {V(T[3])}, 5, {V(T[2])}
        v_lshl_add_u32 {V(vWDR)}, {V(vL)}, 4, {S(sT1)}
        v_and_b32 {V(T[2])}, 255, v0
        v_lshrrev_b32 {V(T[4])}, 1, {V(T[2])}
        v_mul_u32_u24 {V(T[4])}, 6144, {V(T[4])}
        v_and_b32 {V(T[3])}, 1, {V(vL)}
        v_lshl_add_u32 {V(T[4])}, {V(T[3])}, 4, {V(T[4])}
        ''')
        ssum(sT1, (sF8, 5), W_FP)
        a(f'v_add_u32 {V(vFPA)}, {S(sT1)}, {V(T[4])}')
        ssum(sT1, (sK, 9), (sT, 6), (sCGL, 2), W_F2)
        a(f'v_mov_b32 {V(vF2)}, {S(sT1)}')
        ssum(sT1, (sK, 9), (sCGL, 5), (sT, 2), W_F3)
        a(f'v_mov_b32 {V(vF3)}, {S(sT1)}')
        a(f's_lshr_b32 {S(sT1)}, {S(sCH0)}, 2')
        smul(sT1, sT1, 6144, W_FP + 3072)
        a(f'v_lshl_add_u32 v213, {V(vL)}, 4, {S(sT1)}\nv_mov_b32 v212, 0')
        ssum(sT0, (sA, 13), (sWI, 11), (sR, 7), W_P1)
        a(f'''
        s_lshl_b32 {S(sT1)}, {S(sR)}, 7
        v_and_b32 {V(T[2])}, 31, {V(vL)}
        v_lshl_add_u32 {V(vXS)}, {V(T[2])}, 2, {S(sT1)}
        s_lshl_b32 {S(sT1)}, {S(sWI)}, 8
        s_add_u32 {S(sT1)}, {S(sT1)}, {FP}
        v_lshl_add_u32 {V(vXW)}, {V(vL)}, 2, {S(sT1)}
        v_lshrrev_b32 {V(T[2])}, 4, {V(vL)}
        v_lshl_add_u32 {V(T[2])}, {V(T[2])}, 3, {S(sT1)}
        v_lshl_add_u32 {V(vXR)}, {V(T[3])}, 6, {V(T[2])}
        v_bfe_u32 {V(T[2])}, {V(vL)}, 3, 1
        v_and_b32 {V(T[3])}, 7, {V(vL)}
        v_lshl_add_u32 {V(T[3])}, {V(T[3])}, 4, {S(sT0)}
        v_lshl_add_u32 {V(vP1W)}, {V(T[2])}, 10, {V(T[3])}
        ''')

    def conv_setup():
        a(f'v_and_b32 {V(T[5])}, 15, {V(vL)}\nv_lshrrev_b32 {V(T[6])}, 4, {V(vL)}')
        smul(sT0, sW, R4S, R4)
        a(f'v_lshlrev_b32 {V(T[3])}, 3, {V(T[6])}\nv_sub_u32 {V(T[3])}, {V(T[5])}, {V(T[3])}')
        for reg, k in ((vCA, 32), (vCA2, 28)):
            a(f'''
            v_add_u32 {V(T[4])}, {k}, {V(T[3])}
            v_lshrrev_b32 {V(T[7])}, 4, {V(T[4])}
            v_lshl_add_u32 {V(reg)}, {V(T[4])}, 3, {S(sT0)}
            v_lshl_add_u32 {V(reg)}, {V(T[7])}, 4, {V(reg)}
            ''')
        smul(sT0, sW, US, U)
        a(f'''
        v_lshl_add_u32 {V(T[3])}, {V(T[6])}, 4, {S(sT0)}
        v_lshl_add_u32 {V(vCB)}, {V(T[5])}, 5, {V(T[3])}
        ''')
        smul(sT0, sW, YCS, YX)
        a(f'''
        v_mul_u32_u24 {V(T[3])}, {YGS}, {V(T[6])}
        v_lshl_add_u32 {V(T[3])}, {V(T[5])}, 4, {V(T[3])}
        v_add_u32 {V(vY)}, {S(sT0)}, {V(T[3])}
        ''')

    WR = vP + 80
    def w_dma():
        for t in range(4):
            a(f'global_load_dwordx4 {V(WR+4*t,4)}, {V((vWS0, vWS1)[t&1])}, {S((sWG, sWU)[t>>1],2)}')

    def wd_dma():
        a(f"s_mov_b64 exec, 0xff\nglobal_load_dword {V(vPFW)}, {V(vP1F)}, {S(sWS,2)}{' nt' if o['p1nt'] else ''}\ns_mov_b64 exec, -1")
        for i in range(8):
            a(f'global_load_dword {V(vWD+i)}, {V(vWDA)}, {S(sWD,2)} offset:{i*1024 - 4096}')

    def slice_work():
        a('s_waitcnt vmcnt(0)' if PF1 else 's_waitcnt vmcnt(7)')
        stamp(1)
        a(f'''
        ds_write_b128 {V(slw)}, {V(vD,4)}
        ds_write_b128 {V(slw1)}, {V(vD+4,4)} offset:1024
        ds_read_b64 {V(vG,2)}, {V(slr)}
        ds_read_b64 {V(vG+2,2)}, {V(slr)} offset:128
        ds_read_b64 {V(vG+4,2)}, {V(slr1)}
        ds_read_b64 {V(vG+6,2)}, {V(slr1)} offset:128
        s_waitcnt lgkmcnt(0)
        global_store_dwordx4 {V(ina)}, {V(vG,4)}, {S(sWS,2)}
        global_store_dwordx4 {V(ina1)}, {V(vG+4,4)}, {S(sWS,2)}
        ''')


    S1, S2, S3, S4 = vXF, vXF + 1, vXF + 2, vXF + 3

    def red32(regs):
        for m in ('row_shr:1', 'row_shr:2', 'row_shr:4', 'row_shr:8'):
            for r in regs: a(f'v_add_f32_dpp {V(r)}, {V(r)}, {V(r)} {m} row_mask:0xf bank_mask:0xf')
        for r in regs: a(f'v_add_f32_dpp {V(r)}, {V(r)}, {V(r)} row_bcast:15 row_mask:0xa bank_mask:0xf')

    def ln_work():
        for r in (S1, S2, S3, S4): a(f'v_mov_b32 {V(r)}, 0')
        NP = 0 if PF1 else 7
        a(f's_setprio 2\ns_waitcnt vmcnt({3 + NP})')
        for i in range(8): a(f'v_dot2_f32_bf16 {V(S4)}, {V(vG+i)}, {S(sONES)}, {V(S4)}')
        red32([S4])
        a(f's_waitcnt vmcnt({1 + NP})')
        stamp(1)
        nlate = 0
        if o['prefetch']:
            a('s_mov_b64 exec, 0xffff')
            a(f'global_load_dword {V(vPFD)}, {V(pfi)}, {S(sWS,2)} nt'); nlate += 1
            alllanes()
        for i in range(8):
            a(f'v_dot2_f32_bf16 {V(S1)}, {V(vD+i)}, {S(sONES)}, {V(S1)}')
            a(f'v_dot2_f32_bf16 {V(S2)}, {V(vD+i)}, {V(vD+i)}, {V(S2)}')
            a(f'v_dot2_f32_bf16 {V(S3)}, {V(vD+i)}, {V(vG+i)}, {V(S3)}')
        red32([S1, S2, S3])
        t = T[0]; g = vE
        a(f'''
        v_mul_f32 {V(S1)}, 0x3b000000, {V(S1)}
        v_mul_f32 {V(S2)}, 0x3b000000, {V(S2)}
        s_waitcnt vmcnt({nlate + NP})
        v_fma_f32 {V(S2)}, -{V(S1)}, {V(S1)}, {V(S2)}
        v_readfirstlane_b32 {S(sTAG)}, {V(vEP)}
        v_max_f32 {V(S2)}, 0, {V(S2)}
        v_cvt_pk_bf16_f32 {V(t)}, {V(S1)}, {V(S2)}
        s_add_u32 {S(sTAG)}, {S(sTAG)}, 16
        v_and_b32 {V(t)}, {S(sHI)}, {V(t)}
        s_and_b32 {S(sTAG)}, {S(sTAG)}, -16
        v_add_f32 {V(t)}, 0x3727c5ac, {V(t)}
        s_or_b32 {S(sTAGX)}, {S(sTAG)}, {S(sXCC)}
        v_cvt_pk_bf16_f32 {V(t)}, {V(t)}, {V(t)}
        v_and_b32 {V(t)}, {S(sHI)}, {V(t)}
        v_sqrt_f32 {V(t)}, {V(t)}
        v_mov_b32 {V(g+3)}, {S(sTAGX)}
        v_cvt_pk_bf16_f32 {V(g+1)}, {V(S1)}, {V(t)}
        v_and_b32 {V(t)}, {S(sHI)}, {V(g+1)}
        v_lshlrev_b32 {V(t+1)}, 16, {V(g+1)}
        v_rcp_f32 {V(t)}, {V(t)}
        v_fma_f32 {V(S3)}, -{V(t+1)}, {V(S4)}, {V(S3)}
        v_readlane_b32 {S(sT0)}, {V(g+1)}, 31
        v_mul_f32 {V(S3)}, {V(S3)}, {V(t)}
        v_cvt_pk_bf16_f32 {V(S3)}, {V(S3)}, {V(S3)}
        v_mov_b32 {V(g)}, {S(sT0)}
        v_ashrrev_i32 {V(t)}, 31, {V(S3)}
        v_or_b32 {V(t)}, 0x80000000, {V(t)}
        v_xor_b32 {V(t)}, {V(t)}, {V(S3)}
        v_and_or_b32 {V(t)}, {V(t)}, {S(sHI)}, {V(rk)}
        s_add_u32 {S(sT1)}, {S(sTAG)}, 1
        v_readlane_b32 {S(sT0)}, {V(t)}, 31
        v_mov_b32 {V(t+2)}, {S(sT1)}
        v_max_u32 {V(g+2)}, {S(sT0)}, {V(t)}
        ''')
        lane63()
        a(f'global_store_dwordx4 {V(vSTP)}, {V(g,4)}, {S(sWS,2)} sc1')
        a(f'ds_write_b32 {V(vFFW)}, {V(t+2)} offset:{TG - FF}')
        alllanes()
        a(f"s_setprio 0\ns_waitcnt vmcnt({1 + nlate}) lgkmcnt(0)")
        stamp(2)

    if not PF1:
        if o['early']: table_setup(); wsrc_setup(); ffn_setup()
        elif o['wj']: wsrc_setup()
        ln_work()
        a('s_branch L_kgen\nL_c_slice:')
        if o['early']: conv_setup()
        slice_work()
        a('s_waitcnt vmcnt(2)')
    a('L_kgen:')
    are, aim, bre, bim, cre, cim, dt = [vP + i for i in range(7)]
    t0 = vP + 7
    z1, z2, z4, ZZ, w1, w2, w4 = [vP + 8 + 2 * i for i in range(7)]
    hq = [vP + 24 + 2 * i for i in range(8)]
    lq = [vP + 40 + 2 * i for i in range(8)]
    cv = [vP + 56 + i for i in range(8)]
    a(f'''
    v_mov_b32 {V(t0)}, 0x3fb8aa3b
    v_mul_f32 {V(dt)}, {V(dt)}, {V(t0)}
    v_exp_f32 {V(dt)}, {V(dt)}
    v_mul_f32 {V(are)}, {V(t0)}, {V(are)}
    v_cvt_pk_bf16_f32 {V(dt)}, {V(dt)}, {V(dt)}
    v_mul_f32 {V(aim)}, 0.15915494, {V(aim)}
    v_and_b32 {V(dt)}, {S(sHI)}, {V(dt)}
    v_mul_f32 {V(are)}, {V(dt)}, {V(are)}
    v_mul_f32 {V(aim)}, {V(dt)}, {V(aim)}
    v_exp_f32 {V(cv[0])}, {V(are)}
    v_fract_f32 {V(cv[1])}, {V(aim)}
    v_mul_f32 {V(are)}, 0x43800000, {V(are)}
    v_cos_f32 {V(z1)}, {V(cv[1])}
    v_mul_f32 {V(aim)}, 0x43800000, {V(aim)}
    v_sin_f32 {V(z1+1)}, {V(cv[1])}
    v_fract_f32 {V(cv[3])}, {V(aim)}
    v_exp_f32 {V(cv[2])}, {V(are)}
    v_mul_f32 {V(z1)}, {V(cv[0])}, {V(z1)}
    v_cos_f32 {V(ZZ)}, {V(cv[3])}
    v_mul_f32 {V(z1+1)}, {V(cv[0])}, {V(z1+1)}
    v_sin_f32 {V(ZZ+1)}, {V(cv[3])}
    v_mul_f32 {V(bre)}, {V(dt)}, {V(bre)}
    v_mul_f32 {V(bim)}, {V(dt)}, {V(bim)}
    ''')
    cmul(z2, z1, z1)
    a(f'v_mul_f32 {V(ZZ)}, {V(cv[2])}, {V(ZZ)}\nv_mul_f32 {V(ZZ+1)}, {V(cv[2])}, {V(ZZ+1)}')
    cmul(z4, z2, z2)
    cmul(hq[0], cre, bre)
    ci = [0]; m0_hi = [False]; pend = []

    def flush(n=99):
        for x in pend[:n]: a(x)
        del pend[:n]

    def put(row, reg, neg):
        c = cv[ci[0] % 8]; ci[0] += 1
        a(f"v_cvt_pk_bf16_f32 {V(c)}, {V(reg)}, {'-' if neg else ''}{V(reg+1)}")
        off = row * RS - (30 * RS if m0_hi[0] else 0)
        assert 0 <= off < 65536, (row, off)
        pend.append(f'ds_write_addtid_b32 {V(c)} offset:{STAGE + off}')
        if len(pend) >= o['dsg'] + o['dslate']: flush(o['dsg'])
    cmul(w1, z4, z4)
    cmul(hq[1], hq[0], z1)
    cmul(w2, w1, w1)
    put(1, w1, False)
    cmul(hq[2], hq[0], z2)
    cmul(lq[3], w2, w1)
    put(2, w2, False)
    cmul(w4, w2, w2)
    put(3, lq[3], False)
    cur = {1: w1, 2: w2, 3: lq[3], 4: w4}
    put(4, w4, False)

    def lo_step(j):
        d = lq[j % 8]
        cmul(d, cur[j - 4], w4); cur[j] = d
        put(j, d, False)
    def inject(j):
        if j == o['wj']:
            a(f's_and_b32 {S(sT0)}, {S(sP1)}, {S(sROLE)}\ns_cbranch_scc0 L_now')
            a(f's_cmp_eq_u32 {S(sROLE)}, 0\ns_cbranch_scc1 L_now')
            w_dma()
            a('L_now:')
        if j == o['wdj']:
            a(f's_and_b32 {S(sT0)}, {S(sP1)}, {S(sROLE)}\ns_cbranch_scc0 L_nowd')
            a(f's_cmp_eq_u32 {S(sROLE)}, 0\ns_cbranch_scc1 L_nowd')
            wd_dma()
            a('L_nowd:')
        if not PF1: return
        if j == o['jc']:
            a(f's_cmp_eq_u32 {S(sROLE)}, 1\ns_cbranch_scc1 L_noslice'); slice_work(); a('L_noslice:')
        if j == o['jh']:
            a(f's_cmp_eq_u32 {S(sROLE)}, 0\ns_cbranch_scc1 L_noln'); ln_work(); a('L_noln:')
    inject(4)
    for j in range(5, o['jf']):
        lo_step(j); inject(j)
    a(f's_cmp_eq_u32 {S(sROLE)}, 1\ns_cbranch_scc1 L_noflag')
    spin_init()
    a(f'''
    L_tagspin:
    ds_read_b32 {V(T[0])}, {V(tga)}
    s_waitcnt lgkmcnt(0)
    v_readfirstlane_b32 {S(sTAG)}, {V(T[0])}
    s_cmp_lg_u32 {S(sTAG)}, 0
    s_cbranch_scc1 L_tagok
    ''')
    spin_next('L_tagspin')
    a(f'''
    L_tagok:
    s_and_b32 {S(sTAG)}, {S(sTAG)}, -16
    s_or_b32 {S(sTAGX)}, {S(sTAG)}, {S(sXCC)}
    v_mov_b32 {V(T[0])}, {S(sTAGX)}
    s_mov_b64 exec, 1
    s_waitcnt vmcnt(0)
    global_store_dword {V(vFLO)}, {V(T[0])}, {S(sWS,2)}
    global_load_dword {V(vWARM)}, {V(cf2)}, {S(sWS,2)} sc1
    global_load_dword {V(vWARM)}, {V(cf3)}, {S(sWS,2)} sc1
    s_mov_b64 exec, -1
    ''')
    if o['touch'] == 1:
        a(f's_mov_b64 exec, 1\nglobal_load_dword {V(vTLB)}, {V(vXG)}, {S(sOUT,2)}\ns_mov_b64 exec, -1')
    stamp(2)
    a('L_noflag:')
    for j in range(o['jf'], 30):
        lo_step(j); inject(j)
    flush()
    ssum(sT0, (sW, 8), 30 * RS)
    a(f's_mov_b32 m0, {S(sT0)}')
    m0_hi[0] = True
    for j in range(30, 32): lo_step(j)
    put(32, hq[0], True); put(33, hq[1], True); put(34, hq[2], True)
    cmul(hq[3], hq[1], z2); cmul(hq[4], hq[0], z4)
    put(35, hq[3], True); put(36, hq[4], True)
    a(f'global_load_dword {V(vPFD)}, {V(vFL)}, {S(sWS,2)} sc1')
    cmul(hq[5], hq[1], z4); cmul(hq[6], hq[2], z4); cmul(hq[7], hq[3], z4)
    put(37, hq[5], True); put(38, hq[6], True); put(39, hq[7], True)
    A0, A2, A4, A6, B0, B4, C0, C4 = lq
    cmul(A0, hq[0], ZZ); cmul(A2, hq[2], ZZ); cmul(A4, hq[4], ZZ); cmul(A6, hq[6], ZZ)
    put(40, A0, True)
    cmul(B0, A0, ZZ); put(41, A2, True); cmul(B4, A4, ZZ); put(42, A4, True)
    cmul(C0, B0, ZZ); put(43, A6, True); cmul(C4, B4, ZZ); put(44, B0, True)
    cmul(hq[1], C0, ZZ); put(45, B4, True); put(46, C0, True)
    cmul(hq[2], hq[1], ZZ); put(47, C4, True); put(48, hq[1], True)
    cmul(hq[3], hq[2], ZZ); put(49, hq[2], True)
    cmul(hq[4], hq[3], ZZ); put(50, hq[3], True)
    cmul(hq[5], hq[4], ZZ); put(51, hq[4], True); put(52, hq[5], True)
    flush()
    stamp(3)

    KD = vP; KF = vP + 16; NB = o['nb']

    def kread(sidx):
        r = KF + 8 * (sidx % NB)
        a(f'ds_read_b128 {V(r,4)}, {V(vKA)} offset:{32*sidx}')
        a(f'ds_read_b128 {V(r+4,4)}, {V(vKB)} offset:{32*sidx}')

    def kmfma(cinit, shadow=()):
        for sidx in range(8):
            if sidx >= 2 and sidx - 2 < len(shadow): shadow[sidx - 2]()
            outstanding = min(8, sidx + NB) - sidx - 1
            a(f's_waitcnt lgkmcnt({2*outstanding})')
            r = KF + 8 * (sidx % NB)
            a(f"v_mfma_f32_32x32x16_bf16 {V(KD,16)}, {V(r,4)}, {V(r+4,4)}, {'0' if (sidx == 0 and not cinit) else V(KD,16)}")
            if sidx + NB < 8: kread(sidx + NB)

    def fetch_tile(tag):
        a(f's_waitcnt vmcnt(0)\nv_cmp_ne_u32 vcc, {S(sTAGX)}, {V(vPFD)}')
        if o['force_slow']: a(f's_branch L_gather{tag}')
        a(f's_cbranch_vccz L_fast{tag}')
        spin_init()
        a(f'''
        L_flagspin{tag}:
        global_load_dword {V(vPFD)}, {V(vFL)}, {S(sWS,2)} sc1
        global_load_dword {V(T[0])}, {V(vXC)}, {S(sWS,2)} sc1
        s_waitcnt vmcnt(0)
        v_cmp_ne_u32 vcc, {S(sTAGX)}, {V(vPFD)}
        s_cbranch_vccz L_fast{tag}
        v_xor_b32 {V(T[0])}, {S(sTAGX)}, {V(T[0])}
        v_add_u32 {V(T[0])}, -1, {V(T[0])}
        v_cmp_gt_u32 vcc, 15, {V(T[0])}
        s_cbranch_vccnz L_gather{tag}
        ''')
        spin_next(f'L_flagspin{tag}')
        a(f'L_gather{tag}:')
        for r in range(4):
            a(f'global_load_dwordx2 {V(vD+2*r,2)}, {V(vXG)}, {S(sX,2)} offset:{r*1024}')
        a(f'''
        s_branch L_stats{tag}
        L_fast{tag}:
        global_load_dwordx4 {V(vD,4)}, {V(vIN)}, {S(sWS,2)} sc1
        global_load_dwordx4 {V(vD+4,4)}, {V(vIN)}, {S(sWS,2)} offset:64 sc1
        L_stats{tag}:
        global_load_dwordx4 {V(vG,4)}, {V(vST0)}, {S(sWS,2)} sc1
        global_load_dwordx4 {V(vG+4,4)}, {V(vST1)}, {S(sWS,2)} sc1
        ''')

    XP = vG
    def r4_build(tag, mid=None, vGA=vGA, vSEL=vSEL, vR4W=vR4W, Wq=vP, Q=vP+16, reads=True, writes=True):
        for c in range(4 if reads else 0):
            a(f'ds_read2_b32 {V(Wq+4*c,2)}, {V(vGA+2*c)} offset0:0 offset1:1')
            a(f'ds_read2_b32 {V(Wq+4*c+2,2)}, {V(vGA+2*c+1)} offset0:0 offset1:1')
        if tag == 'c': a(f'''
        s_cmp_lg_u32 {S(sW)}, 3
        s_cbranch_scc1 L_nopad{tag}
        v_bfe_u32 {V(T[0])}, {V(vL)}, 3, 2
        v_and_b32 {V(T[1])}, 7, {V(vL)}
        v_mul_u32_u24 {V(T[0])}, {R4S}, {V(T[0])}
        v_lshl_add_u32 {V(T[0])}, {V(T[1])}, 4, {V(T[0])}
        ''')
        if tag == 'c':
            for i in range(4): a(f'v_mov_b32 {V(T[4+i])}, 0')
        if tag == 'c': a(f'''
        s_mov_b32 exec_hi, 0
        ds_write_b128 {V(T[0])}, {V(T[4],4)} offset:{R4}
        s_mov_b64 exec, -1
        s_waitcnt lgkmcnt(1)
        L_nopad{tag}:
        ''')
        if tag == 'h' and o['hprio']: a(f"s_setprio {o['hprio2']}")
        if mid: mid()
        for c in range(4 if writes else 0):
            W0, W1, W2, W3 = [Wq + 4 * c + i for i in range(4)]
            q = Q + 8 * c
            if not mid: a('s_waitcnt lgkmcnt(6)')
            a(f'''
            v_perm_b32 {V(q+0)}, {V(W2)}, {V(W1)}, {V(vSEL+2)}
            v_perm_b32 {V(q+1)}, {V(W1)}, {V(W0)}, {V(vSEL+0)}
            v_perm_b32 {V(q+2)}, {V(W3)}, {V(W2)}, {V(vSEL+3)}
            v_perm_b32 {V(q+3)}, {V(W1)}, {V(W0)}, {V(vSEL+1)}
            v_mov_b32 {V(q+5)}, {V(q+0)}
            ds_write_b128 {V(vR4W)}, {V(q,4)} offset:{c*R4S}
            v_perm_b32 {V(q+4)}, {V(W3)}, {V(W2)}, {V(vSEL+4)}
            v_perm_b32 {V(q+6)}, {V(W3)}, {V(W2)}, {V(vSEL+5)}
            v_mov_b32 {V(q+7)}, {V(q+2)}
            ds_write_b128 {V(vR4W)}, {V(q+4,4)} offset:{c*R4S + 16}
            ''')

    def normalise(tag):
        if tag == 'h' and o['wj']:
            if not o['early']: ffn_setup()
            a('s_waitcnt vmcnt(0)')
        elif tag == 'h':
            a(f's_cmp_eq_u32 {S(sP1)}, 0\ns_cbranch_scc1 L_nw0')
            w_dma()
            if not o['early']: ffn_setup()
            a("s_waitcnt vmcnt(4)\ns_branch L_nw1\nL_nw0:")
            if not o['early']: ffn_setup()
            a("s_waitcnt vmcnt(0)\nL_nw1:")
        else:
            a(f's_waitcnt vmcnt(0)\nv_mov_b32 {V(T[0])}, {S(sTAGX)}\ns_mov_b64 exec, 1')
            a(f'global_store_dword {V(cf3)}, {V(T[0])}, {S(sWS,2)}\ns_mov_b64 exec, -1')
        spin_init()
        a(f'''
        L_statspin{tag}:
        v_xor_b32 {V(T[0])}, {S(sTAG)}, {V(vG+3)}
        v_xor_b32 {V(T[1])}, {S(sTAG)}, {V(vG+7)}
        v_or_b32 {V(T[0])}, {V(T[0])}, {V(T[1])}
        v_cmp_lt_u32 vcc, 15, {V(T[0])}
        s_cbranch_vccz L_statok{tag}
        global_load_dwordx4 {V(vG,4)}, {V(vST0)}, {S(sWS,2)} sc1
        global_load_dwordx4 {V(vG+4,4)}, {V(vST1)}, {S(sWS,2)} sc1
        s_waitcnt vmcnt(0)
        ''')
        spin_next(f'L_statspin{tag}')
        a(f'L_statok{tag}:')
        stamp(7)
        if tag == 'h' and o['wdj'] == 99:
            a(f's_cmp_eq_u32 {S(sP1)}, 0\ns_cbranch_scc1 L_nowd')
            wd_dma()
            a('L_nowd:')
        a(f'''
        v_cmp_ne_u32 vcc, {S(sTAGX)}, {V(vG+3)}
        s_and_b64 vcc, vcc, {S(sCM,2)}
        {'s_nop 0' if o['force_bad'] else f's_cbranch_vccz L_local{tag}'}
        v_mov_b32 {V(T[0])}, {FF}
        v_mov_b32 {V(T[1])}, 1
        ds_write_b32 {V(T[0])}, {V(T[1])}
        s_waitcnt lgkmcnt(0)
        L_local{tag}:
        ''')
        stq = [vG, vG + 1, vG + 4, vG + 5]
        rho = [T[1], T[3], T[5], T[7]]; mu = [T[0], T[2], T[4], T[6]]
        key = T[8]
        for r in range(4): a(f'v_and_b32 {V(rho[r])}, {S(sHI)}, {V(stq[r])}')
        a(f'v_max_u32 {V(key)}, {V(vG+2)}, {V(vG+6)}')
        for r in range(4):
            a(f'v_rcp_f32 {V(rho[r])}, {V(rho[r])}')
            a(f'v_lshlrev_b32 {V(mu[r])}, 16, {V(stq[r])}')
        kred = ['row_shr:1 row_mask:0xf', 'row_shr:2 row_mask:0xf', 'row_shr:4 row_mask:0xf', 'row_shr:8 row_mask:0xf',
                'row_bcast:15 row_mask:0xa', 'row_bcast:31 row_mask:0xc']
        def kr(i): a(f'v_max_u32_dpp {V(key)}, {V(key)}, {V(key)} {kred[i]} bank_mask:0xf')
        for r in range(4):
            a(f'''
            v_mul_f32_e64 {V(mu[r])}, -{V(mu[r])}, {V(rho[r])}
            v_lshlrev_b32 {V(vXF+4*r)}, 16, {V(vD+2*r)}
            v_and_b32 {V(vXF+4*r+1)}, {S(sHI)}, {V(vD+2*r)}
            v_lshlrev_b32 {V(vXF+4*r+2)}, 16, {V(vD+2*r+1)}
            v_and_b32 {V(vXF+4*r+3)}, {S(sHI)}, {V(vD+2*r+1)}
            ''')
            kr(r)
            for c in range(4): a(f'v_fma_f32 {V(vXN+4*r+c)}, {V(vXF+4*r+c)}, {V(rho[r])}, {V(mu[r])}')
        kr(4)
        ssum(sT0, (sW, 2), AM)
        for c in range(4):
            a(f'''
            v_cvt_pk_bf16_f32 {V(XP+2*c)}, {V(vXN+c)}, {V(vXN+4+c)}
            v_cvt_pk_bf16_f32 {V(XP+2*c+1)}, {V(vXN+8+c)}, {V(vXN+12+c)}
            ds_write_b64 {V(vUW)}, {V(XP+2*c,2)} offset:{c*US}
            ''')
            if c == 0: kr(5)
            if c == 1: a(f'v_mov_b32 {V(T[9])}, {S(sT0)}')
        lane63()
        a(f'ds_write_b32 {V(T[9])}, {V(key)}')
        alllanes()

    a(f's_cmp_eq_u32 {S(sROLE)}, 1\ns_cbranch_scc1 L_h_k')
    if o['cearly'] == 2: fetch_tile('c')
    for i in range(NB): kread(i)
    kmfma(False, () if o['early'] else (conv_setup,))
    a(f'v_mov_b32 {V(T[1])}, 1')
    for i in range(3): a(f'ds_write_b128 {V(vPD)}, {V(KD+4*i,4)} offset:{1024*i}')
    a(f's_mov_b64 exec, 1\nds_write_b32 {V(tga)}, {V(T[1])} offset:{PF - TG}\ns_mov_b64 exec, -1')
    stamp(4)
    if o['cearly'] != 2: fetch_tile('c')
    if o['call']:
        sel_setup('a', 0, vGA, vSEL, vR4W, True)
        sel_setup('b', 256, GA2, SEL2, R4W2, False)
    if o['cearly']: normalise('c')
    a('s_branch L_b3')
    a('L_h_k:')
    if o['hfetch']: fetch_tile('h')
    spin_init()
    a(f'''
    L_pspin:
    ds_read_b32 {V(T[1])}, {V(vFFW)} offset:{PF - FF}
    ''')
    for i in range(3): a(f'ds_read_b128 {V(KD+4*i,4)}, {V(vPD)} offset:{1024*i}')
    for i in range(NB - 1): kread(i)
    a(f'''
    s_waitcnt lgkmcnt({2*(NB-1) + 3})
    v_readfirstlane_b32 {S(sT0)}, {V(T[1])}
    s_cmp_lg_u32 {S(sT0)}, 0
    s_cbranch_scc1 L_pok
    s_waitcnt lgkmcnt(0)
    ''')
    spin_next('L_pspin')
    a('L_pok:')
    kread(NB - 1)
    kmfma(True, () if o['early'] else (table_setup,) if o['wj'] else (table_setup, wsrc_setup))
    for i in range(6): a(f'v_cvt_pk_bf16_f32 {V(T[i])}, {V(KD+2*i)}, {V(KD+2*i+1)}')
    a(f'''
    ds_write_b64 {V(vTW1)}, {V(T[0],2)}
    ds_write_b32 {V(vTW2)}, {V(T[2])}
    ds_write_b32 {V(vTW3)}, {V(T[3])}
    ds_write_b16 {V(vTW4)}, {V(T[4])}
    ds_write_b16_d16_hi {V(vTW4)}, {V(T[4])} offset:64
    ds_write_b16 {V(vTW4)}, {V(T[5])} offset:128
    ds_write_b16_d16_hi {V(vTW4)}, {V(T[5])} offset:192
    ''')
    stamp(4)
    if not o['hfetch']: fetch_tile('h')
    if o['hprio']: a(f"s_setprio {o['hprio']}")
    a('L_b3:\ns_waitcnt lgkmcnt(0)')
    stamp(5)
    a('s_barrier')

    a(f's_cmp_eq_u32 {S(sROLE)}, 1\ns_cbranch_scc1 L_h_r4')
    if o['call']:
        r4_build('c', writes=False)
        def mid2():
            a('s_waitcnt lgkmcnt(2)')
            r4_build('x', vGA=GA2, Wq=vP+48, writes=False)
            a('s_waitcnt lgkmcnt(8)')
        r4_build('x', mid2, reads=False)
        r4_build('x', lambda: a('s_waitcnt lgkmcnt(8)'), vSEL=SEL2, vR4W=R4W2, Wq=vP+48, Q=vP+64, reads=False)
    else: r4_build('c')
    stamp(6)
    if not o['cearly']: normalise('c')
    if o['roll']:
        for i in range(16): a(f'v_mov_b32 {V(vP+i)}, 0')
    a('s_branch L_b4\nL_h_r4:')
    if o['call']:
        a(f"s_setprio {o['hprio2']}")
        normalise('h')
    elif o['hnormfirst']:
        def mid():
            normalise('h')
            a('s_waitcnt lgkmcnt(5)'); stamp(6)
        r4_build('h', mid)
    else:
        r4_build('h'); stamp(6); normalise('h')
    a('s_setprio 0\nL_b4:')
    a(f'v_mov_b32 {V(T[9])}, {AM}\ns_waitcnt lgkmcnt(0)')
    stamp(8)
    a('s_barrier')

    def read_idx():
        a(f'''
        ds_read_b128 {V(T[0],4)}, {V(T[9])}
        ds_read_b128 {V(T[4],4)}, {V(T[9])} offset:16
        s_waitcnt lgkmcnt(0)
        v_max3_u32 {V(T[0])}, {V(T[0])}, {V(T[1])}, {V(T[2])}
        v_max3_u32 {V(T[3])}, {V(T[3])}, {V(T[4])}, {V(T[5])}
        v_max3_u32 {V(T[0])}, {V(T[0])}, {V(T[6])}, {V(T[7])}
        v_max_u32 {V(T[0])}, {V(T[0])}, {V(T[3])}
        v_readfirstlane_b32 {S(sKEY)}, {V(T[0])}
        s_andn2_b32 {S(sIDX)}, 2047, {S(sKEY)}
        s_lshr_b32 {S(sT0)}, {S(sIDX)}, 8
        s_lshr_b32 {S(sT1)}, {S(sIDX)}, 9
        s_xor_b32 {S(sT0)}, {S(sT0)}, {S(sT1)}
        s_xor_b32 {S(sT0)}, {S(sT0)}, {S(sH)}
        s_andn2_b32 {S(sOWN)}, 1, {S(sT0)}
        ''')

    def stat_addr(dst):
        a(f's_lshr_b32 {S(sT0)}, {S(sIDX)}, 2\ns_bfe_u32 {S(sT1)}, {S(sIDX)}, 0x10001\ns_and_b32 {S(sT2)}, {S(sIDX)}, 1')
        ssum(sT0, (sT0, 4), (sT1, 13), (sT2, 2), W_ST)
        a(f'v_mov_b32 {V(dst)}, {S(sT0)}')

    a(f's_cmp_eq_u32 {S(sROLE)}, 1\ns_cbranch_scc1 L_helper')

    ACC = vP; FR = vP + 16; NFR = 28
    if o['touch'] == 2:
        a(f's_mov_b64 exec, 1\nglobal_load_dword {V(T[10])}, {V(vXG)}, {S(sOUT,2)}\ns_mov_b64 exec, -1')
    stamp(10)
    a(f's_setprio 1\ns_cmp_eq_u32 {S(sH)}, 0\ns_cbranch_scc0 L_conv1')

    def conv(h):
        tl = tiles(h)
        ops = []
        for c0 in range(8):
            lst = [(i, c1, q - c1) for i, q in enumerate(tl) for c1 in range(q + 1)]
            have = set(); seq = []
            while lst:
                def cost(x):
                    base = (2 * (('A', x[1]) not in have) + (('B', x[2]) not in have), bool(seq) and seq[-1][0] == x[0], max(x[1], x[2]))
                    return ((x[0],) + base) if c0 == 7 else base
                x = min(lst, key=cost); lst.remove(x); seq.append(x); have.add(('A', x[1])); have.add(('B', x[2]))
            for i, c1, qp in seq: ops.append((i, ('A', c0, c1), ('B', c0, qp)))
        order = []; last = {}; lastacc = {}
        for n, (i, ak, bk) in enumerate(ops):
            lastacc[i] = n
            for k in (bk, ak):
                if k not in last: order.append(k)
                last[k] = n
        L = []
        for k in order: L += [(k, 0), (k, 1)] if k[0] == 'A' else [(k, 0)]
        endidx = {}
        for j, (k, p) in enumerate(L): endidx[k] = j + 1
        need = []; m = 0
        for (i, ak, bk) in ops:
            m = max(m, endidx[ak], endidx[bk]); need.append(m)
        free = list(range(NFR)); slot = {}
        st = dict(issued=0, done=0)
        seqpos = []
        nds = [0]
        donepos = [0]
        MAXOUT = o['maxout']; G = o['group']

        def can_issue():
            if st['issued'] >= len(L) or nds[0] - donepos[0] >= MAXOUT: return False
            k, p = L[st['issued']]
            return p == 1 or bool(free)

        def issue():
            k, p = L[st['issued']]
            if p == 0: slot[k] = free.pop(0)
            r = FR + 4 * slot[k]
            if k[0] == 'A':
                a(f'ds_read_b64 {V(r+2*p,2)}, {V(vCA2 if p else vCA)} offset:{CAS*(8*k[2] + k[1])}')
            else:
                a(f'ds_read_b128 {V(r,4)}, {V(vCB)} offset:{2*(224 + 256*k[2] - 32*k[1])}')
            st['issued'] += 1; nds[0] += 1; seqpos.append(nds[0])
        started = set(); written = set()
        while can_issue(): issue()
        for n, (i, ak, bk) in enumerate(ops):
            if need[n] > st['done']:
                while st['issued'] < need[n]:
                    assert nds[0] - donepos[0] < 15
                    issue()
                tgt = need[n]
                for m2 in range(n, min(n + G, len(ops))):
                    if need[m2] <= st['issued'] - o['minfly'] or need[m2] <= len(L) == st['issued']: tgt = max(tgt, need[m2])
                a(f's_waitcnt lgkmcnt({nds[0] - seqpos[tgt-1]})'); st['done'] = tgt; donepos[0] = seqpos[tgt - 1]
            acc = ACC + 4 * i
            cin = V(acc, 4) if i in started else '0'
            started.add(i)
            a(f'v_mfma_f32_16x16x32_bf16 {V(acc,4)}, {V(FR+4*slot[ak],4)}, {V(FR+4*slot[bk],4)}, {cin}')
            for k in (ak, bk):
                if last[k] == n: free.append(slot[k])
            budget = 2
            if n + 1 < len(ops) and need[n + 1] > st['done']: budget = 1
            for i2 in range(4):
                if i2 not in written and lastacc[i2] + 4 <= n and budget > 0 and nds[0] - donepos[0] < 15:
                    a(f'ds_write_b128 {V(vY)}, {V(ACC+4*i2,4)} offset:{i2*YTS}')
                    written.add(i2); nds[0] += 1; budget -= 1
            while budget > 0 and can_issue():
                issue(); budget -= 1
        for i2 in range(4):
            if i2 not in written: a(f'ds_write_b128 {V(vY)}, {V(ACC+4*i2,4)} offset:{i2*YTS}')
    def conv_rolled(h):
        tl = tiles(h)
        lst = [(i, c1, q - c1) for i, q in enumerate(tl) for c1 in range(q + 1)]
        have = set(); seq = []
        while lst:
            x = min(lst, key=lambda x: (2 * (('A', x[1]) not in have) + (('B', x[2]) not in have), bool(seq) and seq[-1][0] == x[0], max(x[1], x[2])))
            lst.remove(x); seq.append(x); have.add(('A', x[1])); have.add(('B', x[2]))
        L1 = []; seen = set(); end1 = {}
        for (i, c1, qp) in seq:
            for k in (('B', qp), ('A', c1)):
                if k not in seen:
                    seen.add(k); L1 += [(k, 0), (k, 1)] if k[0] == 'A' else [(k, 0)]; end1[k] = len(L1)
        NL = len(L1); NM = len(seq)
        def need(n):
            st, r = divmod(n, NM)
            return st * NL + max(max(end1[('A', c1)], end1[('B', qp)]) for (i, c1, qp) in seq[:r + 1])
        def slot(k, st): return FR + 4 * ((k[1] + (8 if k[0] == 'B' else 0)) + 16 * (st & 1))
        def load(j):
            st, r = divmod(j, NL); k, p = L1[r]; rg = slot(k, st)
            if k[0] == 'A': a(f'ds_read_b64 {V(rg+2*p,2)}, {V(vCA2 if p else vCA)} offset:{CAS*(8*k[1] + st)}')
            else: a(f'ds_read_b128 {V(rg,4)}, {V(vCB)} offset:{2*(224 + 256*k[1] - 32*st)}')
        P = o['pro']; G = o['rg']
        for j in range(P): load(j)
        a(f's_mov_b32 {S(sCNT)}, 4\nL_cloop{h}:')
        issued = P; done = ('x', 0)
        donecnt = need(0) - 1 - NL
        for n in range(2 * NM):
            if n % G == 0:
                tgt = need(min(n + G - 1, 2 * NM - 1))
                assert 0 <= issued - tgt <= 15, (n, issued, tgt)
                a(f's_waitcnt lgkmcnt({issued - tgt})'); donecnt = tgt
            st, r = divmod(n, NM); i, c1, qp = seq[r]
            if n == 2 * NM - 1: a(f's_sub_u32 {S(sCNT)}, {S(sCNT)}, 1\ns_cmp_lg_u32 {S(sCNT)}, 0')
            a(f'v_mfma_f32_16x16x32_bf16 {V(ACC+4*i,4)}, {V(slot(("A",c1),st),4)}, {V(slot(("B",qp),st),4)}, {V(ACC+4*i,4)}')
            want = P + ((n + 1) * 2 * NL + (2 * NM - 1)) // (2 * NM) if n < 2 * NM - 2 else P + 2 * NL
            want = min(want, P + 2 * NL)
            while issued < want:
                assert issued - donecnt < 16
                load(issued); issued += 1
            if n == 2 * NM - 2:
                a(f'v_add_u32 {V(vCA)}, {2*CAS}, {V(vCA)}\nv_add_u32 {V(vCA2)}, {2*CAS}, {V(vCA2)}\nv_add_u32 {V(vCB)}, -128, {V(vCB)}')
        a(f's_cbranch_scc1 L_cloop{h}')
        a('s_nop 3')
        for i2 in range(4): a(f'ds_write_b128 {V(vY)}, {V(ACC+4*i2,4)} offset:{i2*YTS}')
    cv_ = conv_rolled if o['roll'] else conv
    cv_(0)
    a('s_branch L_convdone\nL_conv1:')
    cv_(1)
    a('L_convdone:\ns_waitcnt lgkmcnt(0)')
    stamp(9)
    a('s_barrier')
    a(f'ds_read_b32 {V(T[8])}, {V(T[9])} offset:{FF - AM}')
    a(f'''
    s_or_b32 {S(sT0)}, s2, {S(sW)}
    s_cmp_lg_u32 {S(sT0)}, 0
    s_cbranch_scc1 L_noep
    v_mov_b32 {V(T[10])}, 0
    v_mov_b32 {V(T[11])}, {S(sTAG)}
    s_mov_b64 exec, 1
    global_store_dword {V(T[10])}, {V(T[11])}, {S(sWS,2)} sc1
    s_mov_b64 exec, -1
    L_noep:
    ''')
    read_idx()
    a(f'v_readfirstlane_b32 {S(sBAD)}, {V(T[8])}\ns_cmp_lg_u32 {S(sBAD)}, 0\ns_cbranch_scc1 L_exit')
    ssum(sT0, (sJ, 6), (sW, 4))
    a(f'''
    s_sub_u32 {S(sT0)}, {S(sIDX)}, {S(sT0)}
    s_lshl_b32 {S(sT1)}, {S(sT0)}, 3
    s_lshl_b64 {S(sT2,2)}, 0xff, {S(sT1)}
    s_not_b64 {S(sT2,2)}, {S(sT2,2)}
    s_lshr_b32 {S(sT0)}, {S(sT0)}, 3
    s_cmp_eq_u32 {S(sT0)}, 0
    s_cselect_b64 {S(sM,2)}, {S(sT2,2)}, -1
    s_cmp_eq_u32 {S(sT0)}, 1
    s_cselect_b64 {S(sM+2,2)}, {S(sT2,2)}, -1
    ''')
    spin_init()
    a(f'''
    L_f2spin:
    global_load_dword {V(T[0])}, {V(cf2)}, {S(sWS,2)} sc1
    s_waitcnt vmcnt(0)
    v_cmp_ne_u32 vcc, {S(sTAGX)}, {V(T[0])}
    s_cbranch_vccz L_f2ok
    ''')
    spin_next('L_f2spin')
    a('L_f2ok:')
    stamp(11)
    a(f'''
    global_load_dwordx4 {V(vG,4)}, {V(ina)}, {S(sWS,2)} sc1
    global_load_dwordx4 {V(vG+4,4)}, {V(ina1)}, {S(sWS,2)} sc1
    s_waitcnt vmcnt(1)
    ds_write_b64 {V(slr)}, {V(vG,2)}
    ds_write_b64 {V(slr)}, {V(vG+2,2)} offset:128
    s_waitcnt vmcnt(0)
    ds_write_b64 {V(slr1)}, {V(vG+4,2)}
    ds_write_b64 {V(slr1)}, {V(vG+6,2)} offset:128
    ds_read_b128 {V(vD,4)}, {V(slw)}
    ds_read_b128 {V(vD+4,4)}, {V(slw1)} offset:1024
    s_mov_b64 exec, {S(sM,2)}
    s_waitcnt lgkmcnt(1)
    global_store_dwordx4 {V(so0)}, {V(vD,4)}, {S(sOUT,2)}{' sc1' if o['osc1'] else ''}
    s_mov_b64 exec, {S(sM+2,2)}
    s_waitcnt lgkmcnt(0)
    global_store_dwordx4 {V(so1)}, {V(vD+4,4)}, {S(sOUT,2)}{' sc1' if o['osc1'] else ''}
    s_mov_b64 exec, -1
    ''')
    if o['stamp'] or o['diag'] >= 0:
        a('s_waitcnt vmcnt(0)'); stamp(12)
    a('s_branch L_exit' if o['diag'] < 0 else 's_branch L_diag0')

    F = vP + 16
    y0, y1, n0, n1, d0, d1, sg, xv, sv, x0, x1, par, xo, fpa, ya = [200 + i for i in range(15)]
    def rnd2(r0, r1, t):
        a(f'v_cvt_pk_bf16_f32 {V(t)}, {V(r0)}, {V(r1)}\nv_lshlrev_b32 {V(r0)}, 16, {V(t)}\nv_and_b32 {V(r1)}, {S(sHI)}, {V(t)}')
    def fin_pre():
        a(f'v_and_b32 {V(par)}, 1, {V(vL)}')
        ssum(sT0, (sIDX, 10), (sCH0, 1))
        a(f'v_lshl_add_u32 {V(xo)}, {V(par)}, 2, {S(sT0)}')
        stat_addr(T[10])
        a(f'global_load_dword {V(xv)}, {V(xo)}, {S(sX,2)}')
        a(f'global_load_dword {V(sv)}, {V(T[10])}, {S(sWS,2)} sc1')
        a(f'''
        s_lshr_b32 {S(sT1)}, {S(sIDX)}, 9
        s_mul_i32 {S(sT1)}, {S(sT1)}, {YTS}
        s_bfe_u32 {S(sT0)}, {S(sIDX)}, 0x20002
        s_mul_i32 {S(sT0)}, {S(sT0)}, {YGS}
        s_add_u32 {S(sT1)}, {S(sT1)}, {S(sT0)}
        s_bfe_u32 {S(sT0)}, {S(sIDX)}, 0x40004
        s_and_b32 {S(sT2)}, {S(sIDX)}, 3
        ''')
        ssum(sT1, (sT1, 0), (sT0, 4), (sT2, 2), YX)
        a(f'''
        v_mul_u32_u24 {V(ya)}, {2*YCS}, {V(par)}
        v_add_u32 {V(ya)}, {S(sT1)}, {V(ya)}
        s_and_b32 {S(sT0)}, {S(sKEY)}, {S(sHI)}
        s_xor_b32 {S(sT1)}, {S(sT0)}, 0x80000000
        s_xor_b32 {S(sT2)}, {S(sT0)}, {S(sHI)}
        s_bitcmp1_b32 {S(sT0)}, 31
        s_cselect_b32 {S(sT0)}, {S(sT1)}, {S(sT2)}
        v_mov_b32 {V(T[2])}, 0xbfb8aa3b
        v_mul_f32 {V(sg)}, {S(sT0)}, {V(T[2])}
        v_exp_f32 {V(sg)}, {V(sg)}
        v_cmp_eq_u32 vcc, 0, {V(par)}
        v_add_f32 {V(sg)}, 1.0, {V(sg)}
        v_rcp_f32 {V(sg)}, {V(sg)}
        v_mov_b32 {V(F+20)}, 0
        v_cvt_pk_bf16_f32 {V(sg)}, {V(sg)}, {V(sg)}
        v_mov_b32 {V(F+21)}, 0
        v_and_b32 {V(sg)}, {S(sHI)}, {V(sg)}
        v_mov_b32 {V(F+22)}, {S(sTAG)}
        v_mov_b32 {V(d0)}, {S(sDS)}
        v_mov_b32 {V(d1)}, {S(sDS+1)}
        v_cndmask_b32 {V(d0)}, {V(d1)}, {V(d0)}, vcc
        v_and_b32 {V(d1)}, {S(sHI)}, {V(d0)}
        v_lshlrev_b32 {V(d0)}, 16, {V(d0)}
        ''')


    def fin_polls():
        for i in range(5):
            a(f'global_load_dwordx4 {V(F+4*i,4)}, {V(fpa)}, {S(sWS,2)} offset:{i*1024 - 3072} sc1')
        a(f's_mov_b64 exec, 0xffffff\nglobal_load_dwordx4 {V(F+20,4)}, {V(fpa)}, {S(sWS,2)} offset:2048 sc1\ns_mov_b64 exec, -1')

    def fin_rest():
        rnd2(y0, y1, T[0])
        a(f'''
        v_and_b32 {V(T[1])}, {S(sHI)}, {V(sv)}
        v_lshlrev_b32 {V(T[2])}, 16, {V(sv)}
        v_rcp_f32 {V(T[1])}, {V(T[1])}
        v_lshlrev_b32 {V(x0)}, 16, {V(xv)}
        v_and_b32 {V(x1)}, {S(sHI)}, {V(xv)}
        v_sub_f32 {V(n0)}, {V(x0)}, {V(T[2])}
        v_sub_f32 {V(n1)}, {V(x1)}, {V(T[2])}
        ''')
        rnd2(n0, n1, T[0])
        a(f'v_mul_f32 {V(n0)}, {V(n0)}, {V(T[1])}\nv_mul_f32 {V(n1)}, {V(n1)}, {V(T[1])}')
        rnd2(n0, n1, T[0])
        a(f'v_mul_f32 {V(d0)}, {V(d0)}, {V(n0)}\nv_mul_f32 {V(d1)}, {V(d1)}, {V(n1)}')
        rnd2(d0, d1, T[0])
        a(f'v_add_f32 {V(y0)}, {V(y0)}, {V(d0)}\nv_add_f32 {V(y1)}, {V(y1)}, {V(d1)}')
        rnd2(y0, y1, T[0])
        spin_init()
        a('L_ffnspin:\ns_waitcnt vmcnt(0)')
        for i in range(6): a(f'v_xor_b32 {V(T[i])}, {S(sTAG)}, {V(F+4*i+2)}')
        a(f'''
        v_or3_b32 {V(T[0])}, {V(T[0])}, {V(T[1])}, {V(T[2])}
        v_or3_b32 {V(T[3])}, {V(T[3])}, {V(T[4])}, {V(T[5])}
        v_or_b32 {V(T[0])}, {V(T[0])}, {V(T[3])}
        v_cmp_ne_u32 vcc, 0, {V(T[0])}
        s_cbranch_vccz L_ffnok
        ''')
        fin_polls()
        spin_next('L_ffnspin')
        a('s_waitcnt vmcnt(0)')
        a('L_ffnok:')
        p0, p1 = F, F + 1
        for e in range(2):
            a(f'v_add_f32 {V(F+e)}, {V(F+e)}, {V(F+4+e)}')
            a(f'v_add_f32 {V(F+8+e)}, {V(F+8+e)}, {V(F+12+e)}')
            a(f'v_add_f32 {V(F+16+e)}, {V(F+16+e)}, {V(F+20+e)}')
        for e in range(2): a(f'v_add_f32 {V(F+e)}, {V(F+e)}, {V(F+8+e)}')
        for e in range(2): a(f'v_add_f32 {V(F+e)}, {V(F+e)}, {V(F+16+e)}')
        for m in (2, 4, 8):
            for e in range(2): a(f'v_add_f32_dpp {V(F+e)}, {V(F+e)}, {V(F+e)} row_ror:{m} row_mask:0xf bank_mask:0xf')
        for pl in ('v_permlane16_swap_b32', 'v_permlane32_swap_b32'):
            for e in range(2): a(f'v_mov_b32 {V(F+4+e)}, {V(F+e)}')
            for e in range(2): a(f'{pl} {V(F+e)}, {V(F+4+e)}')
            for e in range(2): a(f'v_add_f32 {V(F+e)}, {V(F+e)}, {V(F+4+e)}')
        rnd2(p0, p1, T[0])
        for e in range(2): a(f'v_mul_f32 {V(F+e)}, {V(F+e)}, {V(sg)}')
        rnd2(p0, p1, T[0])
        a(f'v_add_f32 {V(p0)}, {V(p0)}, {V(n0)}\nv_add_f32 {V(p1)}, {V(p1)}, {V(n1)}')
        rnd2(p0, p1, T[0])
        for e in range(2): a(f'v_mul_f32 {V(F+4+e)}, 0xbfb8aa3b, {V(F+e)}')
        for e in range(2): a(f'v_exp_f32 {V(F+4+e)}, {V(F+4+e)}')
        for e in range(2): a(f'v_add_f32 {V(F+4+e)}, 1.0, {V(F+4+e)}')
        for e in range(2): a(f'v_rcp_f32 {V(F+4+e)}, {V(F+4+e)}')
        for e in range(2): a(f'v_mul_f32 {V(F+e)}, {V(F+e)}, {V(F+4+e)}')
        rnd2(p0, p1, T[0])
        a(f'v_mul_f32 {V(p0)}, {V(p0)}, {V(y0)}\nv_mul_f32 {V(p1)}, {V(p1)}, {V(y1)}')
        rnd2(p0, p1, T[0])
        a(f'''
        v_add_f32 {V(p0)}, {V(p0)}, {V(x0)}
        v_add_f32 {V(p1)}, {V(p1)}, {V(x1)}
        v_cvt_pk_bf16_f32 {V(T[0])}, {V(p0)}, {V(p1)}
        s_mov_b64 exec, 3
        global_store_dword {V(xo)}, {V(T[0])}, {S(sOUT,2)}
        s_mov_b64 exec, -1
        ''')

    a('L_helper:')
    a(f'ds_read_b32 {V(T[8])}, {V(T[9])} offset:{FF - AM}')
    read_idx()
    XS = vP
    a(f'v_readfirstlane_b32 {S(sBAD)}, {V(T[8])}\ns_cmp_gt_u32 {S(sOWN)}, {S(sWI)}\ns_cselect_b32 {S(sFIN)}, 1, 0')
    a(f's_cmp_eq_u32 {S(sP1)}, 0\ns_cbranch_scc1 L_h_pre')
    a(f's_lshl_b32 {S(sT0)}, {S(sIDX)}, 10\nv_add_u32 {V(T[0])}, {S(sT0)}, {V(vXS)}')
    stat_addr(T[1])
    a(f'''
    global_load_dword {V(XS)}, {V(T[0])}, {S(sX,2)}
    global_load_dword {V(XS+4)}, {V(T[1])}, {S(sWS,2)} sc1
    ''')
    if not o['wdj']: wd_dma()
    a('L_h_pre:')
    sDV = sH8
    a(f'''
    s_lshl_b32 {S(sDV)}, {S(sDS)}, 16
    s_and_b32 {S(sDV+1)}, {S(sDS)}, {S(sHI)}
    s_lshl_b32 {S(sDV+2)}, {S(sDS+1)}, 16
    s_and_b32 {S(sDV+3)}, {S(sDS+1)}, {S(sHI)}
    ''')
    WF = vP + 8; DD = vP + 24; XA = vP + 40; WDF = vP + 48
    GT = [vP + 64 + i for i in range(4)]
    def ge_row(r):
        for c in range(4):
            src = XP + 2 * c + (r >> 1)
            if r & 1: a(f'v_and_b32 {V(vXN+4*r+c)}, {S(sHI)}, {V(src)}')
            else:     a(f'v_lshlrev_b32 {V(vXN+4*r+c)}, 16, {V(src)}')
        for c in range(4): a(f'v_mul_f32 {V(GT[c])}, 0xbfb8aa3b, {V(vXN+4*r+c)}')
        for c in range(4): a(f'v_exp_f32 {V(GT[c])}, {V(GT[c])}')
        for c in range(4):
            a(f'v_mul_f32 {V(vE+4*r+c)}, {S(sDV+c)}, {V(vXN+4*r+c)}')
            a(f'v_add_f32 {V(GT[c])}, 1.0, {V(GT[c])}')
        for c in range(4): a(f'v_rcp_f32 {V(GT[c])}, {V(GT[c])}')
        for c in range(4): a(f'v_mul_f32 {V(vXN+4*r+c)}, {V(vXN+4*r+c)}, {V(GT[c])}')
        for c in range(4): a(f'v_fma_f32 {V(vE+4*r+c)}, {V(vE+4*r+c)}, {V(vXN+4*r+c)}, {V(vXF+4*r+c)}')
    def masks():
        a(f'''
        s_lshr_b32 {S(sT0)}, {S(sIDX)}, 2
        s_lshl_b64 {S(sT2,2)}, 1, {S(sT0)}
        s_lshr_b32 {S(sT0)}, {S(sIDX)}, 8
        s_cmp_eq_u32 {S(sT0)}, {S(sT)}
        s_cselect_b64 {S(sT2,2)}, {S(sT2,2)}, 0
        s_not_b64 {S(sT2,2)}, {S(sT2,2)}
        s_and_b32 {S(sT0)}, {S(sIDX)}, 3
        ''')
        for r in range(4):
            a(f's_cmp_eq_u32 {S(sT0)}, {r}\ns_cselect_b64 {S(sM+2*r,2)}, {S(sT2,2)}, -1')
    a(f's_cmp_eq_u32 {S(sP1)}, 0\ns_cbranch_scc1 L_h_ge')
    a(f"s_setprio {o['ffnprio']}")
    a(f"s_waitcnt vmcnt({2 if o['wdj'] else 11})")
    for t in range(4): a(f'ds_write_b128 {V(vWDR)}, {V(WR+4*t,4)} offset:{1024*t}')
    for t in range(4):
        a(f'ds_read_b64_tr_b16 {V(WF+4*t,2)}, {V(vWT)} offset:{1024*t}')
        a(f'ds_read_b64_tr_b16 {V(WF+4*t+2,2)}, {V(vWT)} offset:{1024*t + 512}')
    gq = T[4]
    def wd_unpack():
        for i in range(8):
            a(f'v_lshlrev_b32 {V(WDF+2*i)}, 16, {V(vWD+i)}\nv_and_b32 {V(WDF+2*i+1)}, {S(sHI)}, {V(vWD+i)}')
    if o['wdj']: wd_unpack()
    a(f"s_waitcnt vmcnt({0 if o['wdj'] else 9})")
    stamp(0)
    a(f'''
    v_and_b32 {V(T[12])}, {S(sHI)}, {V(XS+4)}
    v_lshlrev_b32 {V(T[14])}, 16, {V(XS+4)}
    v_rcp_f32 {V(T[12])}, {V(T[12])}
    v_lshlrev_b32 {V(T[2])}, 16, {V(XS)}
    v_and_b32 {V(T[3])}, {S(sHI)}, {V(XS)}
    v_sub_f32 {V(T[2])}, {V(T[2])}, {V(T[14])}
    v_sub_f32 {V(T[3])}, {V(T[3])}, {V(T[14])}
    v_cvt_pk_bf16_f32 {V(T[3])}, {V(T[2])}, {V(T[3])}
    v_lshlrev_b32 {V(T[2])}, 16, {V(T[3])}
    v_and_b32 {V(T[3])}, {S(sHI)}, {V(T[3])}
    v_mul_f32 {V(T[2])}, {V(T[2])}, {V(T[12])}
    v_mul_f32 {V(T[3])}, {V(T[3])}, {V(T[12])}
    v_cvt_pk_bf16_f32 {V(T[2])}, {V(T[2])}, {V(T[3])}
    ds_write_b32 {V(vXW)}, {V(T[2])}
    ds_read_b64 {V(XA,2)}, {V(vXR)}
    ds_read_b64 {V(XA+2,2)}, {V(vXR)} offset:32
    ''')
    a('s_waitcnt lgkmcnt(0)')
    for t in range(4):
        a(f'v_mfma_f32_16x16x32_bf16 {V(DD+4*t,4)}, {V(XA,4)}, {V(WF+4*t,4)}, 0')
    a(f'''
    v_mov_b32 {V(gq+2)}, {S(sTAG)}
    v_mov_b32 {V(gq+3)}, 0
    s_cmp_eq_u32 {S(sPB)}, 0
    v_add_f32 {V(gq)}, {V(DD)}, {V(DD+5)}
    v_add_f32 {V(gq+1)}, {V(DD+8)}, {V(DD+13)}
    s_mov_b64 exec, 0xffff
    s_cbranch_scc0 L_p1far
    global_store_dwordx4 {V(vP1W)}, {V(gq,4)}, {S(sWS,2)}
    s_branch L_p1done
    L_p1far:
    global_store_dwordx4 {V(vP1W)}, {V(gq,4)}, {S(sWS,2)} sc1
    L_p1done:
    s_mov_b64 exec, -1
    s_cmp_eq_u32 {S(sPROD)}, 0
    s_cbranch_scc1 L_h_ge
    ''')
    stamp(9)
    a(f'global_load_dwordx4 {V(T[0],4)}, {V(vP1R)}, {S(sWS,2)} sc1')
    if not o['wdj']:
        a('s_waitcnt vmcnt(2)'); wd_unpack()
    spin_init()
    a(f'''
    L_hspin:
    s_waitcnt vmcnt(0)
    v_cmp_ne_u32 vcc, {S(sTAG)}, {V(T[2])}
    s_cbranch_vccz L_hok
    global_load_dwordx4 {V(T[0],4)}, {V(vP1R)}, {S(sWS,2)} sc1
    ''')
    spin_next('L_hspin')
    a('s_waitcnt vmcnt(0)\nL_hok:')
    for e in range(2): a(f'v_add_f32_dpp {V(T[e])}, {V(T[e])}, {V(T[e])} row_ror:8 row_mask:0xf bank_mask:0xf')
    for pl in ('v_permlane16_swap_b32', 'v_permlane32_swap_b32'):
        for e in range(2): a(f'v_mov_b32 {V(T[2+e])}, {V(T[e])}')
        for e in range(2): a(f'{pl} {V(T[e])}, {V(T[2+e])}')
        for e in range(2): a(f'v_add_f32 {V(T[e])}, {V(T[e])}, {V(T[2+e])}')
    a(f'''
    v_cvt_pk_bf16_f32 {V(T[2])}, {V(T[0])}, {V(T[1])}
    v_lshlrev_b32 {V(T[0])}, 16, {V(T[2])}
    v_mul_f32 {V(T[1])}, 0xbfb8aa3b, {V(T[0])}
    v_exp_f32 {V(T[1])}, {V(T[1])}
    v_and_b32 {V(T[2])}, {S(sHI)}, {V(T[2])}
    v_add_f32 {V(T[1])}, 1.0, {V(T[1])}
    v_rcp_f32 {V(T[1])}, {V(T[1])}
    s_nop 0
    v_mul_f32 {V(T[1])}, {V(T[0])}, {V(T[1])}
    v_cvt_pk_bf16_f32 {V(T[1])}, {V(T[1])}, {V(T[1])}
    v_and_b32 {V(T[1])}, {S(sHI)}, {V(T[1])}
    v_mul_f32 {V(T[1])}, {V(T[1])}, {V(T[2])}
    v_cvt_pk_bf16_f32 {V(T[1])}, {V(T[1])}, {V(T[1])}
    v_and_b32 {V(T[1])}, {S(sHI)}, {V(T[1])}
    ''')
    for i in range(8):
        for e in range(2):
            a(f"{'v_mul_f32_dpp' if i == 0 else 'v_fmac_f32_dpp'} {V(gq+e)}, {V(T[1])}, {V(WDF+2*i+e)} row_newbcast:{i} row_mask:0xf bank_mask:0xf")
    a(f'global_store_dwordx4 {V(vFPA)}, {V(gq,4)}, {S(sWS,2)} sc1')
    stamp(10)
    a(f'L_h_ge:\ns_setprio 0\nglobal_load_dword {V(vWARM)}, {V(vF3)}, {S(sWS,2)} sc1')
    a(f's_cmp_eq_u32 {S(sFIN)}, 0\ns_cbranch_scc1 L_h_nofp')
    fin_pre()
    a('L_h_nofp:')
    for r in range(o['prerows']): ge_row(r)
    a('L_h_b5:\ns_barrier')
    YR = vP
    def epilogue(direct):
        for r in range(4):
            if r >= o['prerows'] and (direct or r >= 2): ge_row(r)
            for c in range(4):
                a(f'v_fma_f32 {V(vE+4*r+c)}, {V(YR+4*c+r)}, {V(vXN+4*r+c)}, {V(vE+4*r+c)}')
            a(f'v_cvt_pk_bf16_f32 {V(vD+2*r)}, {V(vE+4*r)}, {V(vE+4*r+1)}')
            a(f'v_cvt_pk_bf16_f32 {V(vD+2*r+1)}, {V(vE+4*r+2)}, {V(vE+4*r+3)}')
            if direct:
                a(f's_mov_b64 exec, {S(sM+2*r,2)}')
                a(f'global_store_dwordx2 {V(vXG)}, {V(vD+2*r,2)}, {S(sOUT,2)} offset:{r*1024}\ns_mov_b64 exec, -1')
            elif r & 1:
                a(f'global_store_dwordx4 {V(vIN)}, {V(vD+2*r-2,4)}, {S(sWS,2)} offset:{32*(r-1)}')
    for c in range(4): a(f'ds_read_b128 {V(YR+4*c,4)}, {V(vY)} offset:{c*YCS}')
    a(f'''
    s_cmp_eq_u32 {S(sFIN)}, 0
    s_cbranch_scc1 L_h_noy
    ds_read_b32 {V(y0)}, {V(ya)}
    ds_read_b32 {V(y1)}, {V(ya)} offset:{YCS}
    L_h_noy:
    s_cmp_lg_u32 {S(sBAD)}, 0
    s_cbranch_scc1 L_h_direct
    ''')
    for r in range(o['prerows'], 2): ge_row(r)
    spin_init()
    a(f'''
    L_f3spin:
    s_waitcnt vmcnt(0)
    v_cmp_ne_u32 vcc, {S(sTAGX)}, {V(vWARM)}
    s_cbranch_vccz L_f3ok
    global_load_dword {V(vWARM)}, {V(vF3)}, {S(sWS,2)} sc1
    ''')
    spin_next('L_f3spin')
    a('L_f3ok:\ns_waitcnt lgkmcnt(0)')
    epilogue(False)
    a(f'''
    v_mov_b32 {V(T[0])}, {S(sTAGX)}
    s_cmp_eq_u32 {S(sFIN)}, 0
    s_cbranch_scc1 L_h_x1
    ''')
    fin_polls()
    a(f'''
    s_mov_b64 exec, 1
    s_waitcnt vmcnt(6)
    global_store_dword {V(vF2)}, {V(T[0])}, {S(sWS,2)}
    s_mov_b64 exec, -1
    s_branch L_h_fin
    L_h_x1:
    s_mov_b64 exec, 1
    s_waitcnt vmcnt(0)
    global_store_dword {V(vF2)}, {V(T[0])}, {S(sWS,2)}
    s_mov_b64 exec, -1
    s_branch L_h_done
    L_h_direct:
    ''')
    masks()
    a('s_waitcnt vmcnt(0) lgkmcnt(0)')
    epilogue(True)
    a(f's_cmp_eq_u32 {S(sFIN)}, 0\ns_cbranch_scc1 L_h_done')
    fin_polls()
    a('L_h_fin:')
    fin_rest()
    a('L_h_done:')
    if o['stamp'] or o['diag'] >= 0:
        stamp(11)
        a('s_waitcnt vmcnt(0)')
        stamp(12)
    if o['diag'] >= 0:
        a('''
        L_diag0:
        s_memrealtime s[90:91]
        s_sub_u32 s88, s88, s86
        s_min_u32 s88, s88, 2000
        s_lshl_b32 s88, s88, 2
        s_waitcnt lgkmcnt(0)
        s_add_u32 s88, s88, s90
        L_diag:
        s_memrealtime s[90:91]
        s_waitcnt lgkmcnt(0)
        s_sub_u32 s90, s90, s88
        s_cmp_lt_i32 s90, 0
        s_cbranch_scc1 L_diag
        ''')
    a('L_exit:')
    if o['stamp']:
        a('v_mov_b32 v254, 0')
        for i in range(14): a(f'v_writelane_b32 v254, s{86+i}, {i}')
        a(f'global_store_dword {V(vSTA)}, v254, {S(sWS,2)}')
    a('L_end:\ns_endpgm')
    a.raw('''.section .rodata,"a"
.p2align 6
.amdhsa_kernel %s_kernel
  .amdhsa_next_free_vgpr 256
  .amdhsa_next_free_sgpr 102
  .amdhsa_accum_offset 256
  .amdhsa_group_segment_fixed_size 0
  .amdhsa_kernarg_size 136
  .amdhsa_user_sgpr_count 2
  .amdhsa_user_sgpr_kernarg_segment_ptr 1
  .amdhsa_system_sgpr_workgroup_id_x 1
.end_amdhsa_kernel''' % KN)
    return a.text()


if __name__ == '__main__':
    out = sys.argv[1]
    opt = {}
    for kv in sys.argv[2:]:
        k, val = kv.split('='); opt[k] = int(val, 0)
    open(out, 'w').write(generate(**opt))
```

```python
import sys
from asmlib import *

KN = 'recurrent_scan__ssm_conv_s4__moe_arch_mod__prompt'

DEFAULTS = dict(stamp=0, cyc=0, diag=-1, spinmax=1 << 16, force_slow=0, force_bad=0, cpfn=4,
                pf=2, dsg=4, nb=6, maxout=12, group=4, minfly=4, ffnprio=2, lnprio=2, wpos=2, keylate=1, keyprio=2, backoff=0, gefirst=0, s2h=1, wc=1, gernd=0, wdat=70, s2prio=0, b6=1, jf=0, eplast=1)

RS = 1040
STAGE = 0
YX = 0; YWS = 10240; YTS = 1280; YGS = 320
R4 = 55168; R4S = 18560; CAS = 288
U = 92288; US = 4576
TAB = 101440; TS = 1552
PD = 104544
WL = 110720
SL = 127104
AM = 135296
XP_ = 135360
LDS_BYTES = 136448
assert SL % 128 == 0 and R4 % 16 == 0 and U % 16 == 0 and PD % 16 == 0 and AM % 16 == 0
W_ST = 0x1000; W_FL = 0x6000; W_F2 = 0x7000; W_KY = 0x8000; W_FP = 0x10000; W_P1 = 0x300000; W_IN = 0x100000; W_STAMP = 0x800000

sX, sARE, sAIM, sBRE, sBIM, sCRE, sCIM, sLDT = 4, 6, 8, 10, 12, 14, 16, 18
sDSK, sWR, sWG, sWU, sWD, sOUT, sDBG, sWS = 20, 24, 26, 28, 30, 32, 34, 36
sW, sK, sJ, sCH0, sXCC, sTAG, sTAGX, sWI = 38, 39, 40, 41, 42, 43, 44, 45
sBAD, sFIN, sDS, sONES, sF8, sPROD, sIDX, sKEY, sCNT, sHI = 46, 47, 48, 49, 50, 51, 52, 53, 54, 55
sA, sR, sT0, sT1, sT2, sT3 = 56, 57, 58, 59, 60, 61
sP1, sHALF = 62, 63
sM = 64
sDV = 80
sSTP = 82
sCM = 84

T = [240 + i for i in range(16)]
vL = 1


def generate(**opt):
    o = dict(DEFAULTS); o.update(opt)
    a = Asm()
    V = v; S = s
    CLK = 's_memtime' if o['cyc'] else 's_memrealtime'

    def stamp(i):
        if o['diag'] == i: a('s_memrealtime s[88:89]\ns_waitcnt lgkmcnt(0)')
        if not o['stamp'] or (o['stamp'] == 2 and i != 12): return
        a(f'{CLK} {S(sSTP,2)}\ns_waitcnt lgkmcnt(0)\ns_mov_b32 s{86+i}, {S(sSTP)}')

    def cmul(d, x, y):
        a(f'v_pk_mul_f32 {V(d,2)}, {V(x,2)}, {V(y,2)} op_sel:[1,1] op_sel_hi:[1,0]')
        a(f'v_pk_fma_f32 {V(d,2)}, {V(x,2)}, {V(y,2)}, {V(d,2)} op_sel:[0,0,0] op_sel_hi:[0,1,1] neg_lo:[0,0,1]')

    def lane63(): a('s_mov_b32 exec_lo, 0\ns_mov_b32 exec_hi, 0x80000000')
    def alllanes(): a('s_mov_b64 exec, -1')
    def spin_init(): a(f"s_mov_b32 {S(sCNT)}, {o['spinmax']}")
    def spin_next(lbl): a(f's_sub_u32 {S(sCNT)}, {S(sCNT)}, 1\ns_cmp_lg_u32 {S(sCNT)}, 0\ns_cbranch_scc1 {lbl}')

    def ssum(dst, *terms):
        first = True; const = 0
        for t in terms:
            if isinstance(t, int): const += t; continue
            r, sh = t
            if first:
                if sh: a(f's_lshl_b32 {S(dst)}, {S(r)}, {sh}')
                elif r != dst: a(f's_mov_b32 {S(dst)}, {S(r)}')
                first = False
            elif sh:
                a(f's_lshl_b32 {S(sT3)}, {S(r)}, {sh}\ns_add_u32 {S(dst)}, {S(dst)}, {S(sT3)}')
            else:
                a(f's_add_u32 {S(dst)}, {S(dst)}, {S(r)}')
        if const: a(f's_add_u32 {S(dst)}, {S(dst)}, {const}')

    def smul(dst, r, k, const=0):
        a(f's_mul_i32 {S(dst)}, {S(r)}, {k}')
        if const: a(f's_add_u32 {S(dst)}, {S(dst)}, {const}')

    def rnd2(r0, r1, t):
        a(f'v_cvt_pk_bf16_f32 {V(t)}, {V(r0)}, {V(r1)}\nv_lshlrev_b32 {V(r0)}, 16, {V(t)}\nv_and_b32 {V(r1)}, {S(sHI)}, {V(t)}')

    def xpose_addrs(b128a, b128b, b32a, b32b, ga, gb):
        ssum(sT0, (sWI, 11), SL)
        ssum(sT1, (sK, 18), (sJ, 8), (sWI, 6), W_IN)
        a(f'''
        v_lshrrev_b32 {V(T[0])}, 3, {V(vL)}
        v_and_b32 {V(T[1])}, 7, {V(vL)}
        v_lshrrev_b32 {V(T[2])}, 5, {V(vL)}
        v_lshlrev_b32 {V(T[2])}, 1, {V(T[2])}
        v_xor_b32 {V(T[2])}, {V(T[2])}, {V(T[1])}
        v_lshl_add_u32 {V(T[2])}, {V(T[2])}, 4, {S(sT0)}
        v_lshl_add_u32 {V(b128a)}, {V(T[0])}, 7, {V(T[2])}
        v_xor_b32 {V(b128b)}, 64, {V(b128a)}
        v_and_b32 {V(T[0])}, 3, {V(vL)}
        v_lshrrev_b32 {V(T[1])}, 4, {V(vL)}
        v_lshlrev_b32 {V(T[2])}, 1, {V(T[0])}
        v_xor_b32 {V(T[1])}, {V(T[1])}, {V(T[2])}
        v_lshl_add_u32 {V(T[1])}, {V(T[1])}, 4, {S(sT0)}
        v_lshl_add_u32 {V(T[1])}, {V(T[0])}, 9, {V(T[1])}
        v_bfe_u32 {V(T[2])}, {V(vL)}, 2, 2
        v_lshl_add_u32 {V(b32a)}, {V(T[2])}, 2, {V(T[1])}
        v_xor_b32 {V(b32b)}, 64, {V(b32a)}
        v_lshl_add_u32 {V(T[0])}, {V(T[0])}, 4, {S(sT1)}
        v_lshrrev_b32 {V(T[1])}, 2, {V(vL)}
        v_lshl_add_u32 {V(ga)}, {V(T[1])}, 13, {V(T[0])}
        v_add_u32 {V(gb)}, 0x20000, {V(ga)}
        ''')

    def slice_off(r0, r1):
        ssum(sT0, (sJ, 16), (sWI, 14), (sK, 7))
        a(f'''
        v_lshrrev_b32 {V(T[6])}, 3, {V(vL)}
        v_and_b32 {V(T[7])}, 7, {V(vL)}
        v_lshl_add_u32 {V(T[7])}, {V(T[7])}, 4, {S(sT0)}
        v_lshl_add_u32 {V(r0)}, {V(T[6])}, 10, {V(T[7])}
        v_add_u32 {V(r1)}, 8192, {V(r0)}
        ''')

    def read_idx():
        a(f'''
        v_mov_b32 {V(T[9])}, {AM}
        ds_read_b128 {V(T[0],4)}, {V(T[9])}
        ds_read_b64 {V(T[4],2)}, {V(T[9])} offset:16
        s_waitcnt lgkmcnt(0)
        v_max3_u32 {V(T[0])}, {V(T[0])}, {V(T[1])}, {V(T[2])}
        v_readfirstlane_b32 {S(sBAD)}, {V(T[4])}
        v_max_u32 {V(T[0])}, {V(T[0])}, {V(T[3])}
        v_readfirstlane_b32 {S(sTAGX)}, {V(T[5])}
        v_readfirstlane_b32 {S(sKEY)}, {V(T[0])}
        s_andn2_b32 {S(sIDX)}, 2047, {S(sKEY)}
        ''')

    def stat_addr(dst):
        a(f's_lshr_b32 {S(sT0)}, {S(sIDX)}, 2\ns_bfe_u32 {S(sT1)}, {S(sIDX)}, 0x10001\ns_and_b32 {S(sT2)}, {S(sIDX)}, 1')
        ssum(sT0, (sT0, 4), (sT1, 13), (sT2, 2), W_ST)
        a(f'v_mov_b32 {V(dst)}, {S(sT0)}')

    kred = ['row_shr:1 row_mask:0xf', 'row_shr:2 row_mask:0xf', 'row_shr:4 row_mask:0xf', 'row_shr:8 row_mask:0xf',
            'row_bcast:15 row_mask:0xa', 'row_bcast:31 row_mask:0xc']

    def stage2(PQ, WD, WDF, WDR, P1R, FPA, pre=None):
        gq = T[4]
        def p1_loads():
            for i in range(4): a(f'global_load_dwordx4 {V(PQ+4*i,4)}, {V(P1R)}, {S(sWS,2)} offset:{1024*i} sc1')
        p1_loads()
        if pre: pre()
        for i in range(4): a(f'ds_read2st64_b32 {V(WD+2*i,2)}, {V(WDR)} offset0:{2*i} offset1:{2*i+1}')
        a(f's_waitcnt lgkmcnt(0)\nv_mov_b32 {V(gq+2)}, {S(sTAG)}\nv_mov_b32 {V(gq+3)}, 0')
        for i in range(8):
            a(f'v_lshlrev_b32 {V(WDF+2*i)}, 16, {V(WD+i)}\nv_and_b32 {V(WDF+2*i+1)}, {S(sHI)}, {V(WD+i)}')
        spin_init()
        a('L_hspin:\ns_waitcnt vmcnt(0)')
        for i in range(4): a(f'v_xor_b32 {V(T[8+i])}, {S(sTAG)}, {V(PQ+4*i+2)}')
        for e in range(2): a(f'v_add_f32 {V(T[e])}, {V(PQ+e)}, {V(PQ+4+e)}')
        a(f'v_or3_b32 {V(T[8])}, {V(T[8])}, {V(T[9])}, {V(T[10])}')
        for e in range(2): a(f'v_add_f32 {V(T[2+e])}, {V(PQ+8+e)}, {V(PQ+12+e)}')
        a(f'v_or_b32 {V(T[8])}, {V(T[8])}, {V(T[11])}')
        for e in range(2): a(f'v_add_f32 {V(T[e])}, {V(T[e])}, {V(T[2+e])}')
        a(f'v_cmp_ne_u32 vcc, 0, {V(T[8])}\ns_cbranch_vccz L_hok')
        p1_loads()
        spin_next('L_hspin')
        a('s_waitcnt vmcnt(0)\nL_hok:')
        for e in range(2): a(f'v_add_f32_dpp {V(T[e])}, {V(T[e])}, {V(T[e])} row_ror:8 row_mask:0xf bank_mask:0xf')
        for pl in ('v_permlane16_swap_b32', 'v_permlane32_swap_b32'):
            for e in range(2): a(f'v_mov_b32 {V(T[2+e])}, {V(T[e])}')
            for e in range(2): a(f'{pl} {V(T[e])}, {V(T[2+e])}')
            for e in range(2): a(f'v_add_f32 {V(T[e])}, {V(T[e])}, {V(T[2+e])}')
        a(f'''
        v_cvt_pk_bf16_f32 {V(T[2])}, {V(T[0])}, {V(T[1])}
        v_lshlrev_b32 {V(T[0])}, 16, {V(T[2])}
        v_mul_f32 {V(T[1])}, 0xbfb8aa3b, {V(T[0])}
        v_exp_f32 {V(T[1])}, {V(T[1])}
        v_and_b32 {V(T[2])}, {S(sHI)}, {V(T[2])}
        v_add_f32 {V(T[1])}, 1.0, {V(T[1])}
        v_rcp_f32 {V(T[1])}, {V(T[1])}
        v_mul_f32 {V(T[1])}, {V(T[0])}, {V(T[1])}
        v_cvt_pk_bf16_f32 {V(T[1])}, {V(T[1])}, {V(T[1])}
        v_and_b32 {V(T[1])}, {S(sHI)}, {V(T[1])}
        v_mul_f32 {V(T[1])}, {V(T[1])}, {V(T[2])}
        v_cvt_pk_bf16_f32 {V(T[1])}, {V(T[1])}, {V(T[1])}
        v_and_b32 {V(T[1])}, {S(sHI)}, {V(T[1])}
        ''')
        for i in range(8):
            for e in range(2):
                a(f"{'v_mul_f32_dpp' if i == 0 else 'v_fmac_f32_dpp'} {V(gq+e)}, {V(T[1])}, {V(WDF+2*i+e)} row_newbcast:{i} row_mask:0xf bank_mask:0xf")
        a(f'global_store_dwordx4 {V(FPA)}, {V(gq,4)}, {S(sWS,2)} sc1')

    a.raw('; @launch grid=(256,1,1) block=(512,1,1) lds=%d' % LDS_BYTES)
    a.raw('.amdgcn_target "amdgcn-amd-amdhsa--gfx950"\n.text\n.globl %s_kernel\n.p2align 8\n.type %s_kernel,@function\n%s_kernel:' % (KN, KN, KN))
    vCP = 239; vSTA = 238
    a(f'''
    s_cmp_ge_u32 s2, 256
    s_cbranch_scc1 L_end
    s_load_dwordx16 s[4:19], s[0:1], 0
    s_load_dwordx16 s[20:35], s[0:1], 64
    s_load_dwordx2 s[36:37], s[0:1], 128
    s_getpc_b64 {S(sM+2,2)}
    s_lshr_b32 {S(sJ)}, s2, 3
    s_mul_i32 {S(sT0)}, {S(sJ)}, {128*o['cpfn']}
    v_lshl_add_u32 {V(vCP)}, v0, 7, {S(sT0)}
    v_min_u32 {V(vCP)}, L_end - L_cpf, {V(vCP)}
    v_cmp_gt_u32 vcc, {o['cpfn']}, v0
    s_and_saveexec_b64 {S(sM,2)}, vcc
    s_cbranch_execz L_cpf
    global_load_dword {V(vCP)}, {V(vCP)}, {S(sM+2,2)}
    L_cpf:
    s_mov_b64 exec, -1
    ''')
    if o['diag'] >= 0: a('s_memrealtime s[86:87]')
    if o['stamp']: a(f'{CLK} s[100:101]')
    a(f'''
    v_lshrrev_b32 {V(T[0])}, 6, v0
    v_and_b32 {V(vL)}, 63, v0
    v_readfirstlane_b32 {S(sW)}, {V(T[0])}
    s_and_b32 {S(sK)}, s2, 7
    s_and_b32 {S(sWI)}, {S(sW)}, 3
    ''')
    ssum(sCH0, (sK, 6), (sJ, 1))
    if o['stamp']:
        ssum(sT1, (2, 11), (sW, 8), W_STAMP)
        a(f'v_lshl_add_u32 {V(vSTA)}, {V(vL)}, 2, {S(sT1)}')
        for i in range(14): a(f's_mov_b32 s{86+i}, 0')

    def after_karg():
        a('s_waitcnt lgkmcnt(0)')
        if o['stamp']: a('s_mov_b32 s99, s100')
        if o['diag'] >= 0: a('s_mov_b32 s88, s86')
        stamp(0)
    a(f's_cmp_lt_u32 {S(sW)}, 4\ns_cbranch_scc1 L_conv')
    ssum(sT0, (2, 13), (sWI, 11))
    a(f'''
    v_and_b32 {V(T[3])}, 31, {V(vL)}
    v_lshrrev_b32 {V(T[4])}, 5, {V(vL)}
    v_lshlrev_b32 {V(T[2])}, 4, {V(T[3])}
    v_lshl_add_u32 {V(T[3])}, {V(T[4])}, 10, {V(T[2])}
    v_add_u32 {V(T[3])}, {S(sT0)}, {V(T[3])}
    v_mov_b32 {V(T[5])}, 0
    ''')
    after_karg()
    a(f'''
    global_load_dwordx4 {V(40,4)}, {V(T[3])}, {S(sX,2)}
    global_load_dwordx4 {V(44,4)}, {V(T[3])}, {S(sX,2)} offset:512
    s_mov_b64 exec, 1
    global_load_dword {V(35)}, {V(T[5])}, {S(sWS,2)} sc1
    s_mov_b64 exec, -1
    s_barrier
    global_load_dwordx4 {V(56,4)}, {V(T[2])}, {S(sWR,2)}
    global_load_dwordx4 {V(60,4)}, {V(T[2])}, {S(sWR,2)} offset:512
    ''')
    a('s_branch L_helper\nL_conv:')

    GA, SEL, R4W = 2, 10, 22
    cKA, cKB, cPD, cY, cCA, cCA2, cCB, cTW1, cTW2, cTW3, cTW4, cFL = range(24, 36)
    cG0, cG1, cLW, cLW1, cLR, cLR1, cO0, cO1, cF2, cFLO, cPFI = range(36, 47)
    cWS0, cWS1, cP1R, cFPA, cWW, cWDR, cFPR = 47, 71, 65, 67, 64, 66, 68
    cWR, cWD, cWDF, cPQ = 144, 224, 104, 120
    cG, cD, pos0, P = 48, 56, 64, 72
    sCH = sR
    a(f'''
    s_and_b32 {S(sCH)}, {S(sW)}, 1
    s_lshr_b32 {S(sT2)}, {S(sW)}, 1
    s_cmp_eq_u32 {S(sT2)}, 0
    s_cselect_b32 {S(sHALF)}, 0, 1
    s_add_u32 {S(sT1)}, {S(sCH0)}, {S(sCH)}
    ''')
    ssum(sT0, (sT1, 8), (sT2, 7))
    for i in range(7): a(f'v_mov_b32 {V(P+i)}, 0')
    a(f'''
    v_lshl_add_u32 {V(T[1])}, {V(vL)}, 1, {S(sT0)}
    s_lshl_b32 {S(sT1)}, {S(sT1)}, 1
    v_mov_b32 {V(T[2])}, {S(sT1)}
    ''')
    slice_off(cO0, cO1)
    after_karg()
    a(f'global_load_dwordx4 {V(cD,4)}, {V(cO0)}, {S(sX,2)}\nglobal_load_dwordx4 {V(cD+4,4)}, {V(cO1)}, {S(sX,2)}')
    a('s_barrier')
    a(f'''
    v_mov_b32 {V(T[6])}, 0
    v_mov_b32 {V(T[7])}, 0x3f80
    s_lshl_b32 {S(sT0)}, {S(sW)}, 8
    v_and_b32 {V(T[8])}, 127, v0
    s_mov_b32 m0, {S(sT0)}
    v_min_u32 {V(T[8])}, 119, {V(T[8])}
    ds_write_addtid_b32 {V(T[7])} offset:{STAGE}
    s_mul_i32 {S(sT0)}, {S(sHALF)}, {US}
    s_add_u32 {S(sT0)}, {S(sT0)}, {U}
    v_lshl_add_u32 {V(T[8])}, {V(T[8])}, 2, {S(sT0)}
    ds_write_b32 {V(T[8])}, {V(T[6])}
    s_mul_i32 {S(sT0)}, {S(sCH)}, {R4S}
    s_add_u32 {S(sT0)}, {S(sT0)}, {R4}
    s_mul_i32 {S(sT1)}, {S(sCH)}, {TS}
    s_add_u32 {S(sT1)}, {S(sT1)}, {TAB}
    s_cmp_eq_u32 {S(sHALF)}, 0
    s_cselect_b32 {S(sT0)}, {S(sT0)}, {S(sT1)}
    s_cselect_b32 {S(sT1)}, 31, 1
    v_min_u32 {V(T[8])}, {S(sT1)}, {V(vL)}
    v_lshl_add_u32 {V(T[8])}, {V(T[8])}, 2, {S(sT0)}
    s_mov_b32 exec_hi, 0
    ds_write_b32 {V(T[8])}, {V(T[6])}
    v_min_u32 {V(T[8])}, 10, {V(vL)}
    v_lshlrev_b32 {V(T[8])}, 2, {V(T[8])}
    v_add_u32 {V(T[8])}, {AM}, {V(T[8])}
    s_mov_b32 exec_lo, 0x7ff
    ds_write_b32 {V(T[8])}, {V(T[6])}
    s_mov_b64 exec, -1
    s_mov_b32 {S(sHI)}, 0xffff0000
    s_getreg_b32 {S(sXCC)}, hwreg(HW_REG_XCC_ID, 0, 4)
    ''')
    a(f'global_load_short_d16_hi {V(P+6)}, {V(T[2])}, {S(sLDT,2)}')
    for i, p in enumerate((sARE, sAIM, sBRE, sBIM, sCRE, sCIM)):
        a(f'global_load_short_d16_hi {V(P+i)}, {V(T[1])}, {S(p,2)}')
    a('s_waitcnt lgkmcnt(0)\ns_barrier')
    xpose_addrs(cLR, cLR1, cLW, cLW1, cG0, cG1)
    ssum(sT0, (sK, 9), (sJ, 4), (sWI, 2), W_FL)
    ssum(sT2, (sK, 18), (sJ, 13), (sWI, 11), W_IN)
    a(f'v_mov_b32 {V(cFLO)}, {S(sT0)}\nv_and_b32 {V(T[5])}, 15, {V(vL)}\nv_lshl_add_u32 {V(cPFI)}, {V(T[5])}, 7, {S(sT2)}')
    PE = 1 if o['pf'] == 2 else 0
    if PE: a(f's_mov_b64 exec, 0xffff\nglobal_load_dword {V(vCP)}, {V(cPFI)}, {S(sWS,2)} nt\ns_mov_b64 exec, -1')

    def sel_setup(tag, toff, ga, sel, r4w, first):
        pos = [pos0 + i for i in range(7)]
        tt = 'v0'
        if toff:
            a(f'v_add_u32 {V(T[5])}, {toff}, v0'); tt = V(T[5])
        a(f'v_lshlrev_b32 {V(T[0])}, 2, {tt}')
        if first: a(f's_cmp_eq_u32 {S(sW)}, 0\ns_cbranch_scc1 L_pos0{tag}')
        for i in range(7): a(f'v_add_u32 {V(pos[i])}, {i-3}, {V(T[0])}')
        for i in range(7): a(f'v_cvt_f32_u32 {V(pos[i])}, {V(pos[i])}')
        for i in range(0, 7, 2):
            a(f'v_cvt_pk_bf16_f32 {V(T[8+i//2])}, {V(pos[i])}, {V(pos[min(i+1,6)])}')
        a(f'v_mov_b32 {V(T[1])}, {4 - 0x4280}')
        for i in range(7):
            a(f'v_bfe_u32 {V(pos[i])}, {V(T[8+i//2])}, {16*(i&1)}, 16')
            a(f'v_add_u32 {V(pos[i])}, {V(T[1])}, {V(pos[i])}')
        if first:
            a(f's_branch L_pos_done{tag}\nL_pos0{tag}:')
            for i in range(7): a(f'v_add_u32 {V(pos[i])}, {i+1}, {V(T[0])}')
            a(f'L_pos_done{tag}:')
        b1, b2 = T[1], T[2]
        a(f'''
        v_and_b32 {V(b1)}, -2, {V(pos[2])}
        v_add_u32 {V(b1)}, -2, {V(b1)}
        v_and_b32 {V(b2)}, -2, {V(pos[3])}
        v_add_u32 {V(T[3])}, {V(b1)}, {V(b1)}
        v_add_u32 {V(T[4])}, {V(b2)}, {V(b2)}
        ''')
        for c in range(2):
            a(f'v_add_u32 {V(ga+2*c)}, {TAB + c*TS}, {V(T[3])}')
            a(f'v_add_u32 {V(ga+2*c+1)}, {TAB + c*TS}, {V(T[4])}')
        for i in range(3): a(f'v_sub_u32 {V(pos[i])}, {V(pos[i])}, {V(b1)}')
        for i in range(3, 7): a(f'v_sub_u32 {V(pos[i])}, {V(pos[i])}, {V(b2)}')
        a(f's_movk_i32 {S(sT0)}, 0x0202\nv_mov_b32 {V(T[3])}, 0x0100')
        for i in range(7): a(f'v_mad_u32_u24 {V(pos[i])}, {V(pos[i])}, {S(sT0)}, {V(T[3])}')
        for dst, lo, hi in ((0, 1, 0), (1, 2, 1), (2, 3, 2), (3, 4, 3), (4, 5, 4), (5, 6, 5)):
            a(f'v_lshl_or_b32 {V(sel+dst)}, {V(pos[hi])}, 16, {V(pos[lo])}')
        a(f'v_add_u32 {V(sel+2)}, 0x{(2*0x0202 - 2*0x02020000) & 0xffffffff:x}, {V(sel+2)}')
        a(f'''
        v_and_b32 {V(T[0])}, -4, {tt}
        v_lshlrev_b32 {V(T[0])}, 2, {V(T[0])}
        v_lshl_add_u32 {V(r4w)}, {tt}, 5, {V(T[0])}
        v_add_u32 {V(r4w)}, {R4 + 144}, {V(r4w)}
        ''')
    smul(sT1, sCH, 3072, PD)
    smul(sT2, sCH, TS, TAB + 8)
    a(f'''
    v_and_b32 {V(T[0])}, 31, {V(vL)}
    v_lshrrev_b32 {V(T[1])}, 5, {V(vL)}
    s_lshl_b32 {S(sT0)}, {S(sW)}, 8
    v_lshl_add_u32 {V(T[2])}, {V(T[1])}, 4, {S(sT0)}
    s_movk_i32 {S(sT0)}, {RS}
    v_mad_u32_u24 {V(cKB)}, {V(T[0])}, {S(sT0)}, {V(T[2])}
    v_add_u32 {V(T[3])}, -16, {V(T[0])}
    v_cmp_lt_u32 vcc, 20, {V(T[0])}
    v_lshl_add_u32 {V(cPD)}, {V(vL)}, 4, {S(sT1)}
    v_cndmask_b32 {V(T[3])}, {V(T[0])}, {V(T[3])}, vcc
    v_mad_u32_u24 {V(cKA)}, {V(T[3])}, {S(sT0)}, {V(T[2])}
    v_add_u32 {V(cKA)}, {STAGE + 32*RS}, {V(cKA)}
    v_lshl_add_u32 {V(T[2])}, {V(T[1])}, 3, {S(sT2)}
    v_lshl_add_u32 {V(cTW1)}, {V(T[0])}, 4, {V(T[2])}
    v_sub_u32 {V(T[2])}, 3, {V(T[1])}
    v_lshlrev_b32 {V(T[2])}, {V(T[2])}, {V(T[0])}
    v_lshl_add_u32 {V(T[3])}, {V(T[1])}, 8, {S(sT2)}
    v_add_u32 {V(T[3])}, 512, {V(T[3])}
    v_add_u32 {V(cTW2)}, {V(T[2])}, {V(T[3])}
    v_mul_u32_u24 {V(T[2])}, 124, {V(T[1])}
    v_add3_u32 {V(cTW3)}, {V(cTW2)}, {V(T[2])}, 4
    v_lshl_add_u32 {V(cTW4)}, {V(T[0])}, 1, {V(T[3])}
    v_add_u32 {V(cTW4)}, 512, {V(cTW4)}
    ''')
    ssum(sT0, (sCH, 2), AM + 24)
    a(f'v_mov_b32 {V(cFL)}, {S(sT0)}')
    sel_setup('a', 0, GA, SEL, R4W, True)

    def conv_setup():
        smul(sT0, sCH, R4S, R4)
        smul(sT1, sHALF, 4 * CAS)
        a(f'''
        s_add_u32 {S(sT0)}, {S(sT0)}, {S(sT1)}
        v_and_b32 {V(T[5])}, 15, {V(vL)}
        v_lshrrev_b32 {V(T[6])}, 4, {V(vL)}
        v_lshlrev_b32 {V(T[3])}, 3, {V(T[6])}
        v_sub_u32 {V(T[3])}, {V(T[5])}, {V(T[3])}
        ''')
        for reg, k in ((cCA, 32), (cCA2, 28)):
            a(f'''
            v_add_u32 {V(T[4])}, {k}, {V(T[3])}
            v_lshrrev_b32 {V(T[7])}, 4, {V(T[4])}
            v_lshl_add_u32 {V(reg)}, {V(T[4])}, 3, {S(sT0)}
            v_lshl_add_u32 {V(reg)}, {V(T[7])}, 4, {V(reg)}
            ''')
        smul(sT0, sCH, US, U)
        smul(sT2, sW, YWS, YX)
        a(f'''
        s_lshl_b32 {S(sT1)}, {S(sHALF)}, 8
        s_sub_u32 {S(sT0)}, {S(sT0)}, {S(sT1)}
        v_lshl_add_u32 {V(T[3])}, {V(T[6])}, 4, {S(sT0)}
        v_lshl_add_u32 {V(cCB)}, {V(T[5])}, 5, {V(T[3])}
        v_mul_u32_u24 {V(T[3])}, {YGS}, {V(T[6])}
        v_lshl_add_u32 {V(T[3])}, {V(T[5])}, 4, {V(T[3])}
        v_add_u32 {V(cY)}, {S(sT2)}, {V(T[3])}
        ''')

    def gather_setup():
        a(f'''
        s_mul_i32 {S(sT0)}, {S(sK)}, 43
        s_add_u32 {S(sT0)}, {S(sT0)}, 43
        s_lshr_b32 {S(sT0)}, {S(sT0)}, 3
        s_sub_u32 {S(sT0)}, {S(sT0)}, {S(sA)}
        s_lshl_b32 {S(sT0)}, {S(sT0)}, 2
        s_lshl_b32 {S(sF8)}, {S(sA)}, 2
        s_add_u32 {S(sF8)}, {S(sF8)}, {S(sJ)}
        s_cmp_lt_u32 {S(sJ)}, {S(sT0)}
        s_cselect_b32 {S(sPROD)}, 1, 0
        ''')
        smul(sT2, sK, 24)
        a(f's_add_u32 {S(sT2)}, {S(sT2)}, {S(sJ)}')
        ssum(sT2, (sT2, 12), W_P1)
        ssum(sT1, (sW, 12), WL)
        a(f'''
        v_lshl_add_u32 {V(cP1R)}, {V(vL)}, 4, {S(sT2)}
        v_lshl_add_u32 {V(cWW)}, {V(vL)}, 4, {S(sT1)}
        v_lshl_add_u32 {V(cWDR)}, {V(vL)}, 2, {S(sT1)}
        v_lshrrev_b32 {V(T[4])}, 1, v0
        v_mul_u32_u24 {V(T[4])}, 6144, {V(T[4])}
        v_and_b32 {V(T[3])}, 1, {V(vL)}
        v_lshl_add_u32 {V(T[4])}, {V(T[3])}, 4, {V(T[4])}
        ''')
        ssum(sT2, (sF8, 5), W_FP)
        a(f'v_add_u32 {V(cFPA)}, {S(sT2)}, {V(T[4])}\ns_lshr_b32 {S(sT0)}, {S(sCH0)}, 2\ns_and_b32 {S(sT1)}, {S(sJ)}, 1')
        smul(sT0, sT0, 6144, W_FP + 2048)
        ssum(sT0, (sT0, 0), (sT1, 4))
        a(f'v_lshl_add_u32 {V(cFPR)}, {V(vL)}, 5, {S(sT0)}')

    def wsrc_setup():
        a(f's_mul_i32 {S(sA)}, {S(sK)}, 43\ns_lshr_b32 {S(sA)}, {S(sA)}, 3')
        smul(sT0, sWI, 96)
        ssum(sT0, (sT0, 0), (sA, 6))
        a(f'''
        v_lshrrev_b32 {V(T[6])}, 3, {V(vL)}
        v_lshl_add_u32 {V(T[6])}, {S(sJ)}, 4, {V(T[6])}
        v_and_b32 {V(T[7])}, 7, {V(vL)}
        v_min_u32 {V(T[7])}, 5, {V(T[7])}
        v_lshl_add_u32 {V(T[7])}, {V(T[7])}, 4, {S(sT0)}
        v_min_u32 {V(T[7])}, 2736, {V(T[7])}
        s_movk_i32 {S(sT0)}, 2752
        v_mad_u32_u24 {V(cWS0)}, {V(T[6])}, {S(sT0)}, {V(T[7])}
        v_add_u32 {V(cWS1)}, {8*2752}, {V(cWS0)}
        ''')

    def w_loads(lo=0, hi=4):
        for t_ in range(lo, hi):
            a(f'global_load_dwordx4 {V(cWR+4*t_,4)}, {V((cWS0, cWS1)[t_&1])}, {S((sWG, sWU)[t_>>1],2)}')

    wsrc_setup()
    a(f's_waitcnt vmcnt({7 + PE})')
    stamp(1)
    a(f'''
    ds_write_b128 {V(cLR)}, {V(cD,4)}
    ds_write_b128 {V(cLR1)}, {V(cD+4,4)} offset:1024
    ds_read2_b32 {V(cG,2)}, {V(cLW)} offset0:0 offset1:32
    ds_read2_b32 {V(cG+2,2)}, {V(cLW)} offset0:64 offset1:96
    ds_read2_b32 {V(cG+4,2)}, {V(cLW1)} offset0:0 offset1:32
    ds_read2_b32 {V(cG+6,2)}, {V(cLW1)} offset0:64 offset1:96
    s_waitcnt lgkmcnt(0)
    global_store_dwordx4 {V(cG0)}, {V(cG,4)}, {S(sWS,2)}
    global_store_dwordx4 {V(cG1)}, {V(cG+4,4)}, {S(sWS,2)}
    ''')
    if o['wc'] == 4: a('s_barrier')
    if o['wc'] in (0, 4): w_loads()
    NPF = (4 if o['wc'] in (0, 2, 3, 4) else 0) + (1 if o['pf'] == 1 else 0)
    if o['pf'] == 1: a(f's_mov_b64 exec, 0xffff\nglobal_load_dword {V(vCP)}, {V(cPFI)}, {S(sWS,2)} nt\ns_mov_b64 exec, -1')
    sel_setup('b', 256, GA + 4, SEL + 6, R4W + 1, False)
    if o['wc'] == 3: a('s_barrier')
    if o['wc'] in (2, 3): w_loads()

    def flag_pub():
        spin_init()
        a(f'''
        v_mov_b32 {V(T[1])}, {AM}
        L_tagspin:
        ds_read_b32 {V(T[0])}, {V(T[1])} offset:40
        s_waitcnt lgkmcnt(0)
        v_readfirstlane_b32 {S(sTAG)}, {V(T[0])}
        s_cmp_lg_u32 {S(sTAG)}, 0
        s_cbranch_scc1 L_tagok
        ''')
        spin_next('L_tagspin')
        a(f'''
        L_tagok:
        s_and_b32 {S(sTAG)}, {S(sTAG)}, -16
        s_or_b32 {S(sTAGX)}, {S(sTAG)}, {S(sXCC)}
        v_mov_b32 {V(T[0])}, {S(sTAGX)}
        s_mov_b64 exec, 1
        s_waitcnt vmcnt({NPF})
        global_store_dword {V(cFLO)}, {V(T[0])}, {S(sWS,2)}
        s_mov_b64 exec, -1
        ''')
        if o['wc'] == 1: w_loads()
        stamp(2)
    if o['jf'] == 0: flag_pub()
    a(f"s_waitcnt vmcnt({(1 + (4 if o['wc'] == 1 else 0) if o['jf'] == 0 else 2 + 4 + PE) + NPF})")
    are, aim, bre, bim, cre, cim, dt, t0 = [P + i for i in range(8)]
    z1, z2, z4, ZZ, w1, w2, w4 = [P + 8 + 2 * i for i in range(7)]
    hq = [P + 24 + 2 * i for i in range(8)]
    lq = [P + 40 + 2 * i for i in range(8)]
    cv = [P + 56 + i for i in range(8)]
    a(f'''
    v_mov_b32 {V(t0)}, 0x3fb8aa3b
    v_mul_f32 {V(dt)}, {V(dt)}, {V(t0)}
    v_exp_f32 {V(dt)}, {V(dt)}
    v_mul_f32 {V(are)}, {V(t0)}, {V(are)}
    v_cvt_pk_bf16_f32 {V(dt)}, {V(dt)}, {V(dt)}
    v_mul_f32 {V(aim)}, 0.15915494, {V(aim)}
    v_and_b32 {V(dt)}, {S(sHI)}, {V(dt)}
    v_mul_f32 {V(are)}, {V(dt)}, {V(are)}
    v_mul_f32 {V(aim)}, {V(dt)}, {V(aim)}
    v_exp_f32 {V(cv[0])}, {V(are)}
    v_fract_f32 {V(cv[1])}, {V(aim)}
    v_mul_f32 {V(are)}, 0x43800000, {V(are)}
    v_cos_f32 {V(z1)}, {V(cv[1])}
    v_mul_f32 {V(aim)}, 0x43800000, {V(aim)}
    v_sin_f32 {V(z1+1)}, {V(cv[1])}
    v_fract_f32 {V(cv[3])}, {V(aim)}
    v_exp_f32 {V(cv[2])}, {V(are)}
    v_mul_f32 {V(z1)}, {V(cv[0])}, {V(z1)}
    v_cos_f32 {V(ZZ)}, {V(cv[3])}
    v_mul_f32 {V(z1+1)}, {V(cv[0])}, {V(z1+1)}
    v_sin_f32 {V(ZZ+1)}, {V(cv[3])}
    ''')
    cmul(z2, z1, z1)
    a(f'v_mul_f32 {V(ZZ)}, {V(cv[2])}, {V(ZZ)}\nv_mul_f32 {V(ZZ+1)}, {V(cv[2])}, {V(ZZ+1)}')
    cmul(z4, z2, z2)
    ci = [0]; pend = []

    def flush(n=99):
        for x in pend[:n]: a(x)
        del pend[:n]

    def put(row, reg, neg):
        c = cv[ci[0] % 8]; ci[0] += 1
        a(f"v_cvt_pk_bf16_f32 {V(c)}, {V(reg)}, {'-' if neg else ''}{V(reg+1)}")
        pend.append(f'ds_write_addtid_b32 {V(c)} offset:{STAGE + row*RS}')
        if len(pend) >= o['dsg']: flush()
    cmul(w1, z4, z4)
    cmul(w2, w1, w1)
    put(1, w1, False)
    cmul(lq[3], w2, w1)
    put(2, w2, False)
    cmul(w4, w2, w2)
    put(3, lq[3], False)
    cur = {1: w1, 2: w2, 3: lq[3], 4: w4}
    put(4, w4, False)
    for j in range(5, 32):
        d = lq[j % 8]
        cmul(d, cur[j - 4], w4); cur[j] = d
        put(j, d, False)
        if j == o['jf']: flag_pub()
    a(f'v_mul_f32 {V(bre)}, {V(dt)}, {V(bre)}\nv_mul_f32 {V(bim)}, {V(dt)}, {V(bim)}')
    cmul(hq[0], cre, bre)
    cmul(hq[1], hq[0], z1); put(32, hq[0], True)
    cmul(hq[2], hq[0], z2); put(33, hq[1], True)
    cmul(hq[3], hq[1], z2); put(34, hq[2], True)
    cmul(hq[4], hq[0], z4); put(35, hq[3], True)
    cmul(hq[5], hq[1], z4); put(36, hq[4], True)
    cmul(hq[6], hq[2], z4); put(37, hq[5], True)
    cmul(hq[7], hq[3], z4); put(38, hq[6], True)
    A0, A2, A4, A6, B0, B4, C0, C4 = lq
    cmul(A0, hq[0], ZZ); put(39, hq[7], True)
    cmul(A2, hq[2], ZZ); put(40, A0, True)
    cmul(A4, hq[4], ZZ); put(41, A2, True)
    cmul(A6, hq[6], ZZ); put(42, A4, True)
    cmul(B0, A0, ZZ); put(43, A6, True)
    cmul(B4, A4, ZZ); put(44, B0, True)
    cmul(C0, B0, ZZ); put(45, B4, True)
    cmul(C4, B4, ZZ); put(46, C0, True)
    cmul(hq[1], C0, ZZ); put(47, C4, True)
    cmul(hq[2], hq[1], ZZ); put(48, hq[1], True)
    cmul(hq[3], hq[2], ZZ); put(49, hq[2], True)
    cmul(hq[4], hq[3], ZZ); put(50, hq[3], True)
    cmul(hq[5], hq[4], ZZ); put(51, hq[4], True); put(52, hq[5], True)
    flush()
    stamp(3)

    KD = P; KF = P + 16; NB = o['nb']

    def kread(i):
        r = KF + 8 * (i % NB)
        a(f'ds_read_b128 {V(r,4)}, {V(cKA)} offset:{32*i}\nds_read_b128 {V(r+4,4)}, {V(cKB)} offset:{32*i}')
    for i in range(NB): kread(i)
    for i in range(8):
        a(f's_waitcnt lgkmcnt({2*(min(8, i + NB) - i - 1)})')
        r = KF + 8 * (i % NB)
        a(f"v_mfma_f32_32x32x16_bf16 {V(KD,16)}, {V(r,4)}, {V(r+4,4)}, {'0' if i == 0 else V(KD,16)}")
        if i + NB < 8: kread(i + NB)
    a(f'v_mov_b32 {V(T[7])}, 1\ns_cmp_eq_u32 {S(sHALF)}, 1\ns_cbranch_scc1 L_c_half1')
    for i in range(3): a(f'ds_write_b128 {V(cPD)}, {V(KD+4*i,4)} offset:{1024*i}')
    a(f's_mov_b64 exec, 1\nds_write_b32 {V(cFL)}, {V(T[7])}\ns_mov_b64 exec, -1')
    gather_setup(); conv_setup()
    a('s_branch L_c_tab\nL_c_half1:')
    spin_init()
    a(f'L_pspin:\nds_read_b32 {V(T[6])}, {V(cFL)}')
    for i in range(3): a(f'ds_read_b128 {V(cG+4*i,4)}, {V(cPD)} offset:{1024*i}')
    a(f'''
    s_waitcnt lgkmcnt(3)
    v_readfirstlane_b32 {S(sT0)}, {V(T[6])}
    s_cmp_lg_u32 {S(sT0)}, 0
    s_cbranch_scc1 L_pok
    s_waitcnt lgkmcnt(0)
    ''')
    spin_next('L_pspin')
    a('L_pok:\ns_waitcnt lgkmcnt(0)')
    for i in range(12): a(f'v_add_f32 {V(KD+i)}, {V(KD+i)}, {V(cG+i)}')
    for i in range(6): a(f'v_cvt_pk_bf16_f32 {V(T[i])}, {V(KD+2*i)}, {V(KD+2*i+1)}')
    a(f'''
    ds_write_b64 {V(cTW1)}, {V(T[0],2)}
    ds_write_b32 {V(cTW2)}, {V(T[2])}
    ds_write_b32 {V(cTW3)}, {V(T[3])}
    ds_write_b16 {V(cTW4)}, {V(T[4])}
    ds_write_b16_d16_hi {V(cTW4)}, {V(T[4])} offset:64
    ds_write_b16 {V(cTW4)}, {V(T[5])} offset:128
    ds_write_b16_d16_hi {V(cTW4)}, {V(T[5])} offset:192
    s_mov_b64 exec, 1
    ds_write_b32 {V(cFL)}, {V(T[7])} offset:8
    s_mov_b64 exec, -1
    L_c_tab:
    ''')
    stamp(4)
    Wq = P; Q = P + 16
    spin_init()
    a(f'v_mov_b32 {V(T[9])}, {AM}\nL_tspin:\nds_read_b64 {V(T[0],2)}, {V(T[9])} offset:32')
    for i in range(8): a(f'ds_read2_b32 {V(Wq+2*i,2)}, {V(GA+i)} offset0:0 offset1:1')
    a(f'''
    s_waitcnt lgkmcnt(8)
    v_and_b32 {V(T[0])}, {V(T[0])}, {V(T[1])}
    v_readfirstlane_b32 {S(sT0)}, {V(T[0])}
    s_cmp_lg_u32 {S(sT0)}, 0
    s_cbranch_scc1 L_tok
    s_waitcnt lgkmcnt(0)
    ''')
    spin_next('L_tspin')
    a('L_tok:')
    stamp(5)
    for n in range(4):
        st, c = n >> 1, n & 1
        W0, W1, W2, W3 = [Wq + 4 * n + i for i in range(4)]
        q = Q + 8 * n; sl = SEL + 6 * st
        a(f'''
        s_waitcnt lgkmcnt(6)
        v_perm_b32 {V(q+0)}, {V(W2)}, {V(W1)}, {V(sl+2)}
        v_perm_b32 {V(q+1)}, {V(W1)}, {V(W0)}, {V(sl+0)}
        v_perm_b32 {V(q+2)}, {V(W3)}, {V(W2)}, {V(sl+3)}
        v_perm_b32 {V(q+3)}, {V(W1)}, {V(W0)}, {V(sl+1)}
        v_perm_b32 {V(q+4)}, {V(W3)}, {V(W2)}, {V(sl+4)}
        v_mov_b32 {V(q+5)}, {V(q+0)}
        v_perm_b32 {V(q+6)}, {V(W3)}, {V(W2)}, {V(sl+5)}
        v_mov_b32 {V(q+7)}, {V(q+2)}
        ds_write_b128 {V(R4W+st)}, {V(q,4)} offset:{c*R4S}
        ds_write_b128 {V(R4W+st)}, {V(q+4,4)} offset:{c*R4S + 16}
        ''')
    a(f's_cmp_eq_u32 {S(sHALF)}, 0\ns_cbranch_scc1 L_c_b4')
    gather_setup(); conv_setup()
    a('L_c_b4:\ns_waitcnt vmcnt(0)')
    for t_ in range(4): a(f'ds_write_b128 {V(cWW)}, {V(cWR+4*t_,4)} offset:{1024*t_}')
    a(f's_lshl_b32 {S(sT0)}, {S(sCH0)}, 1\ns_load_dword {S(sDS)}, {S(sDSK,2)}, {S(sT0)}\ns_waitcnt lgkmcnt(0)')
    stamp(8)
    a('s_barrier')
    stamp(10)

    ACC = P; FR = P + 32; NFR = 30
    a('s_setprio 1')
    ops = []
    for c0 in range(4):
        lst = [(q, c1, q - c1) for q in range(8) for c1 in range(q + 1)]
        have = set(); seq = []
        while lst:
            def cost(x):
                base = (2 * (('A', x[1]) not in have) + (('B', x[2]) not in have), bool(seq) and seq[-1][0] == x[0], max(x[1], x[2]))
                return ((x[0],) + base) if c0 == 3 else base
            x = min(lst, key=cost); lst.remove(x); seq.append(x); have.add(('A', x[1])); have.add(('B', x[2]))
        for q, c1, qp in seq: ops.append((q, ('A', c0, c1), ('B', c0, qp)))
    order = []; last = {}; lastacc = {}
    for n, (i, ak, bk) in enumerate(ops):
        lastacc[i] = n
        for k in (bk, ak):
            if k not in last: order.append(k)
            last[k] = n
    L = []
    for k in order: L += [(k, 0), (k, 1)] if k[0] == 'A' else [(k, 0)]
    endidx = {}
    for j, (k, p) in enumerate(L): endidx[k] = j + 1
    need = []; m = 0
    for (i, ak, bk) in ops:
        m = max(m, endidx[ak], endidx[bk]); need.append(m)
    free = list(range(NFR)); slot = {}
    st = dict(issued=0, done=0); seqpos = []; nds = [0]; donepos = [0]

    def can_issue(cap):
        if st['issued'] >= len(L) or nds[0] - donepos[0] >= cap: return False
        k, p = L[st['issued']]
        return p == 1 or bool(free)

    def issue():
        k, p = L[st['issued']]
        if p == 0: slot[k] = free.pop(0)
        r = FR + 4 * slot[k]
        if k[0] == 'A': a(f'ds_read_b64 {V(r+2*p,2)}, {V(cCA2 if p else cCA)} offset:{CAS*(8*k[2] + k[1])}')
        else: a(f'ds_read_b128 {V(r,4)}, {V(cCB)} offset:{2*(224 + 256*k[2] - 32*k[1])}')
        st['issued'] += 1; nds[0] += 1; seqpos.append(nds[0])
    started = set(); written = set()
    while can_issue(o['maxout']): issue()
    for n, (i, ak, bk) in enumerate(ops):
        if need[n] > st['done']:
            while st['issued'] < need[n]:
                assert nds[0] - donepos[0] < 15
                issue()
            tgt = need[n]
            for m2 in range(n, min(n + o['group'], len(ops))):
                if need[m2] <= st['issued'] - o['minfly'] or need[m2] <= len(L) == st['issued']: tgt = max(tgt, need[m2])
            a(f's_waitcnt lgkmcnt({nds[0] - seqpos[tgt-1]})'); st['done'] = tgt; donepos[0] = seqpos[tgt - 1]
        acc = ACC + 4 * i
        a(f"v_mfma_f32_16x16x32_bf16 {V(acc,4)}, {V(FR+4*slot[ak],4)}, {V(FR+4*slot[bk],4)}, {V(acc,4) if i in started else '0'}")
        started.add(i)
        for k in (ak, bk):
            if last[k] == n: free.append(slot[k])
        budget = 1
        for i2 in range(8):
            if i2 not in written and lastacc[i2] + 5 <= n and budget > 0 and nds[0] - donepos[0] < 15:
                a(f'ds_write_b128 {V(cY)}, {V(ACC+4*i2,4)} offset:{i2*YTS}')
                written.add(i2); nds[0] += 1; budget -= 1
        while budget > 0 and can_issue(15) and st['issued'] < need[min(n + 14, len(ops) - 1)]:
            issue(); budget -= 1
    for i2 in range(8):
        if i2 not in written: a(f'ds_write_b128 {V(cY)}, {V(ACC+4*i2,4)} offset:{i2*YTS}')
    a('s_setprio 0\ns_waitcnt lgkmcnt(0)')
    stamp(9)
    a('s_barrier')
    if not o['s2h']:
        a(f"s_setprio {o['s2prio']}\ns_cmp_eq_u32 {S(sPROD)}, 0\ns_cbranch_scc1 L_c_nos2")
        stage2(cPQ, cWD, cWDF, cWDR, cP1R, cFPA)
        stamp(7)
    a(f'L_c_nos2:\ns_cmp_lg_u32 {S(sW)}, 0\ns_cbranch_scc1 L_exit')
    read_idx()
    a(f'''
    s_cmp_lg_u32 s2, 0
    s_cbranch_scc1 L_noep
    s_and_b32 {S(sT0)}, {S(sTAGX)}, -16
    v_mov_b32 {V(T[10])}, 0
    v_mov_b32 {V(T[11])}, {S(sT0)}
    s_mov_b64 exec, 1
    global_store_dword {V(T[10])}, {V(T[11])}, {S(sWS,2)} sc1
    s_mov_b64 exec, -1
    L_noep:
    ''')
    y0, y1, n0, n1, d0, d1, sg, xv, sv, x0, x1, xo, ya, y2, y3 = range(160, 175)
    F = 144; hFPR = cFPR
    a(f's_lshl_b32 {S(sDV)}, {S(sDS)}, 16\ns_and_b32 {S(sDV+1)}, {S(sDS)}, {S(sHI)}')
    def fin_pre():
        ssum(sT0, (sIDX, 10), (sCH0, 1))
        a(f'v_mov_b32 {V(xo)}, {S(sT0)}')
        stat_addr(T[10])
        a(f'''
        global_load_dword {V(xv)}, {V(xo)}, {S(sX,2)}
        global_load_dword {V(sv)}, {V(T[10])}, {S(sWS,2)} sc1
        s_lshr_b32 {S(sT1)}, {S(sIDX)}, 8
        s_mul_i32 {S(sT1)}, {S(sT1)}, {YTS}
        s_bfe_u32 {S(sT0)}, {S(sIDX)}, 0x20002
        s_mul_i32 {S(sT0)}, {S(sT0)}, {YGS}
        s_add_u32 {S(sT1)}, {S(sT1)}, {S(sT0)}
        s_bfe_u32 {S(sT0)}, {S(sIDX)}, 0x40004
        s_and_b32 {S(sT2)}, {S(sIDX)}, 3
        ''')
        ssum(sT1, (sT1, 0), (sT0, 4), (sT2, 2), YX)
        a(f'''
        v_mov_b32 {V(ya)}, {S(sT1)}
        s_and_b32 {S(sT0)}, {S(sKEY)}, {S(sHI)}
        s_xor_b32 {S(sT1)}, {S(sT0)}, 0x80000000
        s_xor_b32 {S(sT2)}, {S(sT0)}, {S(sHI)}
        s_bitcmp1_b32 {S(sT0)}, 31
        s_cselect_b32 {S(sT0)}, {S(sT1)}, {S(sT2)}
        v_mov_b32 {V(T[2])}, 0xbfb8aa3b
        v_mul_f32 {V(sg)}, {S(sT0)}, {V(T[2])}
        v_exp_f32 {V(sg)}, {V(sg)}
        v_mov_b32 {V(F+8)}, 0
        v_add_f32 {V(sg)}, 1.0, {V(sg)}
        v_rcp_f32 {V(sg)}, {V(sg)}
        v_mov_b32 {V(F+9)}, 0
        v_cvt_pk_bf16_f32 {V(sg)}, {V(sg)}, {V(sg)}
        v_mov_b32 {V(F+10)}, {S(sTAG)}
        v_and_b32 {V(sg)}, {S(sHI)}, {V(sg)}
        ''')
        for i, r in enumerate((y0, y1, y2, y3)): a(f'ds_read_b32 {V(r)}, {V(ya)} offset:{i*YWS}')
    def fin_polls():
        a(f'''
        global_load_dwordx4 {V(F,4)}, {V(hFPR)}, {S(sWS,2)} offset:-2048 sc1
        global_load_dwordx4 {V(F+4,4)}, {V(hFPR)}, {S(sWS,2)} sc1
        s_mov_b32 exec_hi, 0xfff
        global_load_dwordx4 {V(F+8,4)}, {V(hFPR)}, {S(sWS,2)} offset:2048 sc1
        s_mov_b64 exec, -1
        ''')
    fin_pre()
    a(f's_cmp_lg_u32 {S(sBAD)}, 0\ns_cbranch_scc1 L_c_nob6\ns_barrier\nL_c_nob6:')
    fin_polls()
    a(f'''
    s_waitcnt vmcnt(3) lgkmcnt(0)
    v_add_f32 {V(y0)}, {V(y0)}, {V(y2)}
    v_add_f32 {V(y1)}, {V(y1)}, {V(y3)}
    ''')
    rnd2(y0, y1, T[0])
    a(f'''
    v_and_b32 {V(T[1])}, {S(sHI)}, {V(sv)}
    v_lshlrev_b32 {V(T[2])}, 16, {V(sv)}
    v_rcp_f32 {V(T[1])}, {V(T[1])}
    v_lshlrev_b32 {V(x0)}, 16, {V(xv)}
    v_and_b32 {V(x1)}, {S(sHI)}, {V(xv)}
    v_sub_f32 {V(n0)}, {V(x0)}, {V(T[2])}
    v_sub_f32 {V(n1)}, {V(x1)}, {V(T[2])}
    ''')
    rnd2(n0, n1, T[0])
    a(f'v_mul_f32 {V(n0)}, {V(n0)}, {V(T[1])}\nv_mul_f32 {V(n1)}, {V(n1)}, {V(T[1])}')
    rnd2(n0, n1, T[0])
    a(f'v_mul_f32 {V(d0)}, {S(sDV)}, {V(n0)}\nv_mul_f32 {V(d1)}, {S(sDV+1)}, {V(n1)}')
    rnd2(d0, d1, T[0])
    a(f'v_add_f32 {V(y0)}, {V(y0)}, {V(d0)}\nv_add_f32 {V(y1)}, {V(y1)}, {V(d1)}')
    rnd2(y0, y1, T[0])
    spin_init()
    a('L_ffnspin:\ns_waitcnt vmcnt(0)')
    for i in range(3): a(f'v_xor_b32 {V(T[i])}, {S(sTAG)}, {V(F+4*i+2)}')
    a(f'v_or3_b32 {V(T[0])}, {V(T[0])}, {V(T[1])}, {V(T[2])}\nv_cmp_ne_u32 vcc, 0, {V(T[0])}\ns_cbranch_vccz L_ffnok')
    fin_polls()
    spin_next('L_ffnspin')
    a('s_waitcnt vmcnt(0)\nL_ffnok:')
    p0, p1 = F, F + 1
    for e in range(2): a(f'v_add_f32 {V(F+e)}, {V(F+e)}, {V(F+4+e)}')
    for e in range(2): a(f'v_add_f32 {V(F+e)}, {V(F+e)}, {V(F+8+e)}')
    for m in kred:
        for e in range(2): a(f'v_add_f32_dpp {V(F+e)}, {V(F+e)}, {V(F+e)} {m} bank_mask:0xf')
    rnd2(p0, p1, T[0])
    for e in range(2): a(f'v_mul_f32 {V(F+e)}, {V(F+e)}, {V(sg)}')
    rnd2(p0, p1, T[0])
    a(f'v_add_f32 {V(p0)}, {V(p0)}, {V(n0)}\nv_add_f32 {V(p1)}, {V(p1)}, {V(n1)}')
    rnd2(p0, p1, T[0])
    for e in range(2): a(f'v_mul_f32 {V(F+4+e)}, 0xbfb8aa3b, {V(F+e)}')
    for e in range(2): a(f'v_exp_f32 {V(F+4+e)}, {V(F+4+e)}')
    for e in range(2): a(f'v_add_f32 {V(F+4+e)}, 1.0, {V(F+4+e)}')
    for e in range(2): a(f'v_rcp_f32 {V(F+4+e)}, {V(F+4+e)}')
    for e in range(2): a(f'v_mul_f32 {V(F+e)}, {V(F+e)}, {V(F+4+e)}')
    rnd2(p0, p1, T[0])
    a(f'v_mul_f32 {V(p0)}, {V(p0)}, {V(y0)}\nv_mul_f32 {V(p1)}, {V(p1)}, {V(y1)}')
    rnd2(p0, p1, T[0])
    a(f'v_add_f32 {V(p0)}, {V(p0)}, {V(x0)}\nv_add_f32 {V(p1)}, {V(p1)}, {V(x1)}\nv_cvt_pk_bf16_f32 {V(T[0])}, {V(p0)}, {V(p1)}')
    lane63()
    a(f'global_store_dword {V(xo)}, {V(T[0])}, {S(sOUT,2)}')
    alllanes()
    stamp(11)
    if o['stamp'] or o['diag'] >= 0:
        a('s_waitcnt vmcnt(0)'); stamp(12)
    a('s_branch L_exit' if o['stamp'] else 's_branch L_diag0' if o['diag'] >= 0 else 's_endpgm')

    (hSTP, hRK, hSLW, hSLW1, hSLR, hSLR1, hINA, hINA1, hFLO, hFL, hXC, hIN, hST0, hST1, hXG, hXG1, hUW, hY,
     hWS0, hWS1, hWDA, hP1R, hP1F, hP1W, hWT, hWW, hXS, hXW, hXR, hFPA, hF2, hFPR, hPFI, hEP, hPFD, hAMW) = range(2, 38)
    vD, vS, vG, vXF, vXN, vE, XP, WR, vWD, WDF, WF, DD, XA, XS, GT = 40, 48, 56, 72, 88, 104, 120, 128, 144, 152, 168, 184, 200, 204, 206
    YR = WF
    hO0, hO1, hF2R, hWD1 = hWS0, hWS1, hFLO, hXR
    a('L_helper:')
    ssum(sT2, (sK, 18), (sJ, 13), (sWI, 11), W_IN)
    a(f'''
    v_lshl_add_u32 {V(hIN)}, {V(vL)}, 4, {S(sT2)}
    ''')
    a(f'''
    s_barrier
    s_lshl_b32 {S(sT0)}, {S(sCH0)}, 1
    s_load_dword {S(sDS)}, {S(sDSK,2)}, {S(sT0)}
    s_getreg_b32 {S(sXCC)}, hwreg(HW_REG_XCC_ID, 0, 4)
    s_mov_b32 {S(sONES)}, 0x3f803f80
    s_mov_b32 {S(sHI)}, 0xffff0000
    s_mul_i32 {S(sT0)}, {S(sK)}, 43
    s_lshr_b32 {S(sA)}, {S(sT0)}, 3
    s_add_u32 {S(sT0)}, {S(sT0)}, 43
    s_lshr_b32 {S(sT0)}, {S(sT0)}, 3
    s_sub_u32 {S(sR)}, {S(sT0)}, {S(sA)}
    s_cmp_eq_u32 {S(sWI)}, 0
    s_cselect_b32 {S(sFIN)}, 1, 0
    s_lshl_b32 {S(sT0)}, {S(sK)}, 1
    s_lshl_b32 {S(sCM)}, 0x00030003, {S(sT0)}
    s_mov_b32 {S(sCM+1)}, {S(sCM)}
    s_lshr_b32 {S(sT1)}, {S(sWI)}, 1
    s_and_b32 {S(sT2)}, {S(sWI)}, 1
    ''')
    ssum(sT0, (2, 5), (sT1, 4), (sT2, 13), W_ST)
    a(f'v_mov_b32 {V(hSTP)}, {S(sT0)}')
    ssum(sT0, (2, 3), (sWI, 1))
    a(f's_sub_u32 {S(sT0)}, 0xffff, {S(sT0)}\nv_sub_u32 {V(hRK)}, {S(sT0)}, {V(T[4])}')
    ssum(sT0, (sK, 9), (sWI, 7), W_FL)
    ssum(sT1, (sK, 5), (sWI, 11), W_ST + 12)
    ssum(sT2, (sWI, 11), W_ST)
    a(f'''
    v_and_b32 {V(T[0])}, 31, {V(vL)}
    v_lshl_add_u32 {V(hFL)}, {V(T[0])}, 2, {S(sT0)}
    v_and_b32 {V(T[0])}, 7, {V(vL)}
    v_lshl_add_u32 {V(hXC)}, {V(T[0])}, 8, {S(sT1)}
    v_lshl_add_u32 {V(hST0)}, {V(vL)}, 4, {S(sT2)}
    v_add_u32 {V(hST1)}, 8192, {V(hST0)}
    ''')
    ssum(sT0, (sWI, 19), (sCH0, 1))
    ssum(sT1, (sWI, 10), U + 480)
    ssum(sT2, (sWI, 2), AM)
    a(f'''
    v_lshl_add_u32 {V(hXG)}, {V(vL)}, 12, {S(sT0)}
    v_add_u32 {V(hXG1)}, 0x40000, {V(hXG)}
    v_lshl_add_u32 {V(hUW)}, {V(vL)}, 3, {S(sT1)}
    v_mov_b32 {V(hAMW)}, {S(sT2)}
    ''')

    def ffn_setup():
        smul(sT0, sWI, 2 * YTS, YX)
        ssum(sT1, (sWI, 12), WL)
        a(f'''
        v_and_b32 {V(T[2])}, 3, {V(vL)}
        v_lshrrev_b32 {V(T[3])}, 2, {V(vL)}
        v_mul_u32_u24 {V(T[4])}, {YGS}, {V(T[2])}
        v_lshl_add_u32 {V(T[4])}, {V(T[3])}, 4, {V(T[4])}
        v_add_u32 {V(hY)}, {S(sT0)}, {V(T[4])}
        v_lshl_add_u32 {V(T[2])}, {V(T[2])}, 3, {S(sT1)}
        v_lshl_add_u32 {V(hWT)}, {V(T[3])}, 7, {V(T[2])}
        v_lshl_add_u32 {V(hWW)}, {V(vL)}, 4, {S(sT1)}
        ''')
        smul(sT0, sK, 24)
        smul(sT1, sWI, 6)
        a(f's_add_u32 {S(sT0)}, {S(sT0)}, {S(sT1)}')
        ssum(sT0, (sT0, 12), (sJ, 7), W_P1)
        a(f'''
        s_lshl_b32 {S(sT1)}, {S(sJ)}, 5
        v_lshrrev_b32 {V(T[2])}, 4, {V(vL)}
        v_lshl_add_u32 {V(hXS)}, {V(T[2])}, 3, {S(sT1)}
        v_lshrrev_b32 {V(T[2])}, 3, {V(vL)}
        v_and_b32 {V(T[3])}, 7, {V(vL)}
        v_lshl_add_u32 {V(T[3])}, {V(T[3])}, 4, {S(sT0)}
        v_lshl_add_u32 {V(hP1W)}, {V(T[2])}, 12, {V(T[3])}
        s_mul_i32 {S(sT0)}, {S(sWI)}, 3
        s_lshl_b32 {S(sT1)}, {S(sR)}, 1
        s_sub_u32 {S(sT1)}, {S(sT1)}, {S(sT0)}
        s_min_u32 {S(sT1)}, {S(sT1)}, 3
        s_lshl_b32 {S(sT1)}, {S(sT1)}, 4
        s_bfm_b64 {S(sM+4,2)}, {S(sT1)}, 0
        ''')
        ssum(sT0, (sK, 9), (sWI, 7), (sJ, 2), W_F2)
        a(f'v_mov_b32 {V(hF2)}, {S(sT0)}\ns_lshr_b32 {S(sT1)}, {S(sJ)}, 3')
        ssum(sT0, (sK, 9), (sT1, 7), W_F2)
        a(f'v_and_b32 {V(T[0])}, 31, {V(vL)}\nv_lshl_add_u32 {V(hF2R)}, {V(T[0])}, 2, {S(sT0)}')
        xpose_addrs(hSLW, hSLW1, hSLR, hSLR1, hINA, hINA1)
        slice_off(hO0, hO1)
        a(f'''
        s_lshl_b32 {S(sT0)}, {S(sR)}, 2
        s_lshl_b32 {S(sF8)}, {S(sA)}, 2
        s_add_u32 {S(sF8)}, {S(sF8)}, {S(sJ)}
        s_cmp_lt_u32 {S(sJ)}, {S(sT0)}
        s_cselect_b32 {S(sF8)}, {S(sF8)}, {S(sJ)}
        s_cselect_b32 {S(sPROD)}, 1, 0
        s_cselect_b64 {S(sM+6,2)}, -1, 1
        ''')
        ssum(sT1, (sF8, 13), (sWI, 8))
        smul(sT2, sK, 24)
        a(f's_add_u32 {S(sT2)}, {S(sT2)}, {S(sJ)}')
        ssum(sT2, (sT2, 12), (sWI, 10), W_P1)
        a(f'''
        v_and_b32 {V(T[0])}, 15, {V(vL)}
        v_lshrrev_b32 {V(T[1])}, 4, {V(vL)}
        v_lshl_add_u32 {V(hWDA)}, {V(T[0])}, 4, {S(sT1)}
        v_lshl_add_u32 {V(hWDA)}, {V(T[1])}, 10, {V(hWDA)}
        v_add_u32 {V(hWD1)}, 4096, {V(hWDA)}
        v_lshl_add_u32 {V(hP1F)}, {V(vL)}, 7, {S(sT2)}
        ''')
        if o['s2h']:
            ssum(sT1, (sWI, 12), WL)
            ssum(sT0, (sF8, 5), W_FP)
            a(f'''
            s_lshl_b32 {S(sT3)}, {S(sWI)}, 10
            s_sub_u32 {S(sT2)}, {S(sT2)}, {S(sT3)}
            v_lshl_add_u32 {V(hP1R)}, {V(vL)}, 4, {S(sT2)}
            v_lshl_add_u32 {V(hPFI)}, {V(vL)}, 2, {S(sT1)}
            v_bfe_u32 {V(T[4])}, v0, 1, 7
            v_mul_u32_u24 {V(T[4])}, 6144, {V(T[4])}
            v_and_b32 {V(T[3])}, 1, {V(vL)}
            v_lshl_add_u32 {V(T[4])}, {V(T[3])}, 4, {V(T[4])}
            v_add_u32 {V(hFPA)}, {S(sT0)}, {V(T[4])}
            ''')

    NE = 0

    S1, S2, S3, S4 = vXF, vXF + 1, vXF + 2, vXF + 3

    def red32(regs):
        for m in ('row_shr:1', 'row_shr:2', 'row_shr:4', 'row_shr:8'):
            for r in regs: a(f'v_add_f32_dpp {V(r)}, {V(r)}, {V(r)} {m} row_mask:0xf bank_mask:0xf')
        for r in regs: a(f'v_add_f32_dpp {V(r)}, {V(r)}, {V(r)} row_bcast:15 row_mask:0xa bank_mask:0xf')
    for r in (S1, S2, S3, S4): a(f'v_mov_b32 {V(r)}, 0')
    t = T[0]; g = vE
    a(f"s_setprio {o['lnprio']}\nv_mov_b32 {V(T[3])}, {AM}\ns_waitcnt vmcnt(3)")
    stamp(1)
    for i in range(8):
        a(f'v_dot2_f32_bf16 {V(S1)}, {V(vD+i)}, {S(sONES)}, {V(S1)}')
        a(f'v_dot2_f32_bf16 {V(S2)}, {V(vD+i)}, {V(vD+i)}, {V(S2)}')
    a(f'''
    s_waitcnt vmcnt(2)
    v_readfirstlane_b32 {S(sTAG)}, {V(hEP)}
    s_add_u32 {S(sTAG)}, {S(sTAG)}, 16
    s_and_b32 {S(sTAG)}, {S(sTAG)}, -16
    s_or_b32 {S(sTAGX)}, {S(sTAG)}, {S(sXCC)}
    s_add_u32 {S(sT0)}, {S(sTAG)}, 1
    v_mov_b32 {V(g+3)}, {S(sTAGX)}
    v_mov_b32 {V(T[2])}, {S(sT0)}
    s_mov_b64 exec, 1
    ds_write_b32 {V(T[3])}, {V(T[2])} offset:40
    ds_write_b32 {V(T[3])}, {V(g+3)} offset:20
    s_mov_b64 exec, -1
    s_waitcnt vmcnt(0)
    ''')
    for i in range(8):
        a(f'v_dot2_f32_bf16 {V(S3)}, {V(vD+i)}, {V(vG+i)}, {V(S3)}')
        a(f'v_dot2_f32_bf16 {V(S4)}, {V(vG+i)}, {S(sONES)}, {V(S4)}')
    if o['wc'] == 4: a('s_barrier')
    red32([S1, S2, S3, S4])
    a(f'''
    v_mul_f32 {V(S1)}, 0x3b000000, {V(S1)}
    v_mul_f32 {V(S2)}, 0x3b000000, {V(S2)}
    v_fma_f32 {V(S2)}, -{V(S1)}, {V(S1)}, {V(S2)}
    v_max_f32 {V(S2)}, 0, {V(S2)}
    v_cvt_pk_bf16_f32 {V(t)}, {V(S1)}, {V(S2)}
    v_and_b32 {V(t)}, {S(sHI)}, {V(t)}
    v_add_f32 {V(t)}, 0x3727c5ac, {V(t)}
    v_cvt_pk_bf16_f32 {V(t)}, {V(t)}, {V(t)}
    v_and_b32 {V(t)}, {S(sHI)}, {V(t)}
    v_sqrt_f32 {V(t)}, {V(t)}
    v_cvt_pk_bf16_f32 {V(g+1)}, {V(S1)}, {V(t)}
    v_and_b32 {V(t)}, {S(sHI)}, {V(g+1)}
    v_lshlrev_b32 {V(t+1)}, 16, {V(g+1)}
    v_rcp_f32 {V(t)}, {V(t)}
    v_fma_f32 {V(S3)}, -{V(t+1)}, {V(S4)}, {V(S3)}
    v_readlane_b32 {S(sT0)}, {V(g+1)}, 31
    v_mul_f32 {V(S3)}, {V(S3)}, {V(t)}
    v_cvt_pk_bf16_f32 {V(S3)}, {V(S3)}, {V(S3)}
    v_mov_b32 {V(g)}, {S(sT0)}
    v_ashrrev_i32 {V(t)}, 31, {V(S3)}
    v_or_b32 {V(t)}, 0x80000000, {V(t)}
    v_xor_b32 {V(t)}, {V(t)}, {V(S3)}
    v_and_or_b32 {V(t)}, {V(t)}, {S(sHI)}, {V(hRK)}
    v_readlane_b32 {S(sT0)}, {V(t)}, 31
    v_max_u32 {V(g+2)}, {S(sT0)}, {V(t)}
    ''')
    lane63()
    a(f'global_store_dwordx4 {V(hSTP)}, {V(g,4)}, {S(sWS,2)} sc1')
    alllanes()
    a('s_setprio 0')
    if o['wc'] == 3: a('s_barrier')
    stamp(2)
    ffn_setup()
    a('s_waitcnt lgkmcnt(0)')
    stamp(3)

    KQ = vS
    def stat_loads():
        for i in range(4):
            a(f'global_load_dwordx4 {V(vG+4*i,4)}, {V((hST0, hST1)[i&1])}, {S(sWS,2)} offset:{1024*(i>>1)} sc1')

    def key_loads():
        for i in range(2):
            a(f'global_load_dwordx4 {V(KQ+4*i,4)}, {V(hKR)}, {S(sWS,2)} offset:{1024*i} sc1')

    if o['force_slow']: a('s_branch L_gather')
    spin_init()
    a(f'''
    L_flagspin:
    global_load_dword {V(T[1])}, {V(hFL)}, {S(sWS,2)} sc1
    s_waitcnt vmcnt(0)
    v_cmp_ne_u32 vcc, {S(sTAGX)}, {V(T[1])}
    s_cbranch_vccz L_fast
    s_sub_u32 {S(sCNT)}, {S(sCNT)}, 1
    s_and_b32 {S(sT0)}, {S(sCNT)}, 7
    s_cbranch_scc1 L_flagspin
    global_load_dword {V(T[0])}, {V(hXC)}, {S(sWS,2)} sc1
    s_waitcnt vmcnt(0)
    v_xor_b32 {V(T[0])}, {S(sTAGX)}, {V(T[0])}
    v_add_u32 {V(T[0])}, -1, {V(T[0])}
    v_cmp_gt_u32 vcc, 15, {V(T[0])}
    s_cbranch_vccnz L_gather
    s_cmp_lg_u32 {S(sCNT)}, 0
    s_cbranch_scc1 L_flagspin
    ''')
    a('L_gather:')
    for r in range(8):
        a(f'global_load_dword {V(vD+r)}, {V((hXG, hXG1)[r>>2])}, {S(sX,2)} offset:{(r&3)*1024}')
    a(f'''
    s_branch L_stats
    L_fast:
    global_load_dwordx4 {V(vD,4)}, {V(hIN)}, {S(sWS,2)} sc1
    global_load_dwordx4 {V(vD+4,4)}, {V(hIN)}, {S(sWS,2)} offset:1024 sc1
    L_stats:
    ''')
    stamp(4)
    stat_loads()
    a('s_waitcnt vmcnt(0)')
    spin_init()
    a(f'''
    L_statspin:
    v_xor_b32 {V(T[0])}, {S(sTAG)}, {V(vG+3)}
    v_xor_b32 {V(T[1])}, {S(sTAG)}, {V(vG+7)}
    v_xor_b32 {V(T[2])}, {S(sTAG)}, {V(vG+11)}
    v_xor_b32 {V(T[3])}, {S(sTAG)}, {V(vG+15)}
    v_or3_b32 {V(T[1])}, {V(T[0])}, {V(T[1])}, {V(T[3])}
    v_or_b32 {V(T[1])}, {V(T[1])}, {V(T[2])}
    v_cmp_lt_u32 vcc, 15, {V(T[1])}
    s_cbranch_vccz L_statok
    ''')
    if o['backoff']: a(f"s_sleep {o['backoff']}")
    stat_loads()
    a('s_waitcnt vmcnt(0)')
    spin_next('L_statspin')
    a('L_statok:')
    stamp(7)
    a(f'''
    v_cmp_ne_u32 vcc, {S(sXCC)}, {V(T[0])}
    v_cmp_ne_u32 {S(sT2,2)}, {S(sXCC)}, {V(T[2])}
    v_max3_u32 {V(T[8])}, {V(vG+2)}, {V(vG+6)}, {V(vG+10)}
    s_or_b64 vcc, vcc, {S(sT2,2)}
    s_and_b64 vcc, vcc, {S(sCM,2)}
    v_max_u32 {V(T[8])}, {V(T[8])}, {V(vG+14)}
    {'s_nop 0' if o['force_bad'] else 's_cbranch_vccz L_local'}
    v_mov_b32 {V(T[0])}, {AM}
    v_mov_b32 {V(T[1])}, 1
    ds_write_b32 {V(T[0])}, {V(T[1])} offset:16
    L_local:
    ''')
    key = T[8]
    rho = [T[1], T[3], T[5], T[7]]; mu = [T[0], T[2], T[4], T[6]]
    for tau in range(2):
        stq = [vG + 8 * tau + i for i in (0, 1, 4, 5)]
        for r in range(4): a(f'v_and_b32 {V(rho[r])}, {S(sHI)}, {V(stq[r])}')
        for r in range(4):
            a(f'v_rcp_f32 {V(rho[r])}, {V(rho[r])}\nv_lshlrev_b32 {V(mu[r])}, 16, {V(stq[r])}')
        for r in range(4):
            e = 8 * tau + 2 * r
            a(f'''
            v_mul_f32_e64 {V(mu[r])}, -{V(mu[r])}, {V(rho[r])}
            v_lshlrev_b32 {V(vXF+e)}, 16, {V(vD+4*tau+r)}
            v_and_b32 {V(vXF+e+1)}, {S(sHI)}, {V(vD+4*tau+r)}
            ''')
            if r < 3: a(f'v_max_u32_dpp {V(key)}, {V(key)}, {V(key)} {kred[3*tau+r]} bank_mask:0xf')
            for c in range(2): a(f'v_fma_f32 {V(vXN+e+c)}, {V(vXF+e+c)}, {V(rho[r])}, {V(mu[r])}')
        for c in range(2):
            x = XP + 4 * tau + 2 * c; e = 8 * tau + c
            a(f'v_cvt_pk_bf16_f32 {V(x)}, {V(vXN+e)}, {V(vXN+e+2)}\nv_cvt_pk_bf16_f32 {V(x+1)}, {V(vXN+e+4)}, {V(vXN+e+6)}')
        for c in range(2):
            a(f'ds_write_b64 {V(hUW)}, {V(XP+4*tau+2*c,2)} offset:{c*US + 512*tau}')
    lane63()
    a(f'ds_write_b32 {V(hAMW)}, {V(key)}')
    alllanes()
    a('s_waitcnt lgkmcnt(0)')
    stamp(8)
    a(f"s_barrier\ns_setprio {o['ffnprio']}")
    read_idx()
    a(f's_lshl_b32 {S(sT0)}, {S(sIDX)}, 10\nv_add_u32 {V(T[0])}, {S(sT0)}, {V(hXS)}')
    stat_addr(T[1])
    a(f'global_load_dwordx2 {V(XS,2)}, {V(T[0])}, {S(sX,2)}\nglobal_load_dword {V(hXW)}, {V(T[1])}, {S(sWS,2)} sc1')
    a(f'''
    s_mov_b64 exec, {S(sM+6,2)}
    global_load_dwordx4 {V(vWD,4)}, {V(hWDA)}, {S(sWD,2)}
    global_load_dwordx4 {V(vWD+4,4)}, {V(hWD1)}, {S(sWD,2)}
    s_and_b64 exec, {S(sM+6,2)}, 0xff
    global_load_dword {V(hPFD)}, {V(hP1F)}, {S(sWS,2)} nt
    s_mov_b64 exec, 1
    global_load_dword {V(hEP)}, {V(hF2R)}, {S(sWS,2)} sc1
    s_mov_b64 exec, -1
    ''')
    for t_ in range(6): a(f'ds_read_b64_tr_b16 {V(WF+2*t_,2)}, {V(hWT)} offset:{2048*(t_//3) + 32*(t_%3)}')
    a('s_setprio 0')
    a(f'L_h_pre:\ns_lshl_b32 {S(sDV)}, {S(sDS)}, 16\ns_and_b32 {S(sDV+1)}, {S(sDS)}, {S(sHI)}')

    def ge(tau, h):
        el = [8 * tau + 4 * h + i for i in range(4)]
        for i, e in enumerate(el if o['gernd'] else ()):
            src = XP + 4 * tau + 2 * (i & 1) + h
            if i >> 1: a(f'v_and_b32 {V(vXN+e)}, {S(sHI)}, {V(src)}')
            else:      a(f'v_lshlrev_b32 {V(vXN+e)}, 16, {V(src)}')
        for i, e in enumerate(el): a(f'v_mul_f32 {V(GT+i)}, 0xbfb8aa3b, {V(vXN+e)}')
        for i in range(4): a(f'v_exp_f32 {V(GT+i)}, {V(GT+i)}')
        for i, e in enumerate(el):
            a(f'v_mul_f32 {V(vE+e)}, {S(sDV+(i&1))}, {V(vXN+e)}\nv_add_f32 {V(GT+i)}, 1.0, {V(GT+i)}')
        for i in range(4): a(f'v_rcp_f32 {V(GT+i)}, {V(GT+i)}')
        for i, e in enumerate(el): a(f'v_mul_f32 {V(vXN+e)}, {V(vXN+e)}, {V(GT+i)}')
        for i, e in enumerate(el): a(f'v_fma_f32 {V(vE+e)}, {V(vE+e)}, {V(vXN+e)}, {V(vXF+e)}')
    parts = [(0, 0), (0, 1), (1, 0), (1, 1)]
    for pt in parts[:o['gefirst']]: ge(*pt)
    gq = T[4]
    def x_part():
        X = [T[8 + i] for i in range(4)]
        a(f'''
        v_and_b32 {V(T[12])}, {S(sHI)}, {V(hXW)}
        v_lshlrev_b32 {V(T[14])}, 16, {V(hXW)}
        v_rcp_f32 {V(T[12])}, {V(T[12])}
        v_lshlrev_b32 {V(X[0])}, 16, {V(XS)}
        v_and_b32 {V(X[1])}, {S(sHI)}, {V(XS)}
        v_lshlrev_b32 {V(X[2])}, 16, {V(XS+1)}
        v_and_b32 {V(X[3])}, {S(sHI)}, {V(XS+1)}
        ''')
        for i in range(4): a(f'v_sub_f32 {V(X[i])}, {V(X[i])}, {V(T[14])}')
        rnd2(X[0], X[1], T[1]); rnd2(X[2], X[3], T[2])
        for i in range(4): a(f'v_mul_f32 {V(X[i])}, {V(X[i])}, {V(T[12])}')
        a(f'''
        v_cvt_pk_bf16_f32 {V(XA)}, {V(X[0])}, {V(X[1])}
        v_cvt_pk_bf16_f32 {V(XA+1)}, {V(X[2])}, {V(X[3])}
        v_mov_b32 {V(gq+2)}, {S(sTAG)}
        v_mov_b32 {V(gq+3)}, 0
        ''')
    a(f"s_setprio {o['ffnprio']}")
    a('s_waitcnt vmcnt(4)'); stamp(5); x_part()
    a('s_waitcnt lgkmcnt(0)')
    DQ = [184, 188, 192, 196, 228, 232]
    for t_ in range(6): a(f'v_mfma_f32_16x16x16_bf16 {V(DQ[t_],4)}, {V(XA,2)}, {V(WF+2*t_,2)}, 0')
    a(f'''
    s_cmp_eq_u32 {S(sBAD)}, 0
    v_mov_b32 {V(gq)}, {V(DQ[0])}
    v_mov_b32 {V(gq+1)}, {V(DQ[3])}
    v_mov_b32_dpp {V(gq)}, {V(DQ[1])} quad_perm:[0,1,2,3] row_mask:0x2 bank_mask:0xf
    v_mov_b32_dpp {V(gq+1)}, {V(DQ[4])} quad_perm:[0,1,2,3] row_mask:0x2 bank_mask:0xf
    v_mov_b32_dpp {V(gq)}, {V(DQ[2])} quad_perm:[0,1,2,3] row_mask:0x4 bank_mask:0xf
    v_mov_b32_dpp {V(gq+1)}, {V(DQ[5])} quad_perm:[0,1,2,3] row_mask:0x4 bank_mask:0xf
    s_mov_b64 exec, {S(sM+4,2)}
    s_cbranch_scc0 L_p1far
    global_store_dwordx4 {V(hP1W)}, {V(gq,4)}, {S(sWS,2)}
    s_branch L_p1done
    L_p1far:
    global_store_dwordx4 {V(hP1W)}, {V(gq,4)}, {S(sWS,2)} sc1
    L_p1done:
    s_mov_b64 exec, -1
    ''')
    stamp(6)
    def wd_put(n): a(f's_waitcnt vmcnt({n})\nds_write_b128 {V(hWW)}, {V(vWD,4)}\nds_write_b128 {V(hWW)}, {V(vWD+4,4)} offset:1024')
    if o['s2h']:
        a(f's_cmp_eq_u32 {S(sPROD)}, 0\ns_cbranch_scc1 L_h_ge')
        stage2(WR, vWD, WDF, hPFI, hP1R, hFPA, lambda: wd_put(7))
        stamp(10)
    a('L_h_ge:\ns_setprio 0')
    for pt in parts[o['gefirst']:]: ge(*pt)
    if not o['s2h']:
        wd_put(3); a('s_waitcnt lgkmcnt(0)')
    stamp(9)
    a('s_barrier')
    for tau in range(2):
        for w in range(4): a(f'ds_read_b128 {V(YR+16*tau+4*w,4)}, {V(hY)} offset:{w*YWS + tau*YTS}')

    def out_tile(tau):
        a(f's_waitcnt lgkmcnt({4 - 4*tau})')
        for hf in range(2):
            for r in range(4):
                for c in range(2):
                    e = 8 * tau + 2 * r + c
                    a(f'v_fma_f32 {V(vE+e)}, {V(YR+16*tau+4*(2*hf+c)+r)}, {V(vXN+e)}, {V(vE+e)}')
        for r in range(4):
            a(f'v_cvt_pk_bf16_f32 {V(vD+4*tau+r)}, {V(vE+8*tau+2*r)}, {V(vE+8*tau+2*r+1)}')

    a(f's_cmp_lg_u32 {S(sBAD)}, 0\ns_cbranch_scc1 L_h_direct')
    for tau in range(2):
        out_tile(tau)
        a(f'global_store_dwordx4 {V(hIN)}, {V(vD+4*tau,4)}, {S(sWS,2)} offset:{1024*tau}')
    a('s_barrier')
    ssum(sT0, (sJ, 6), (sWI, 4))
    a(f'''
    s_sub_u32 {S(sT0)}, {S(sIDX)}, {S(sT0)}
    s_lshl_b32 {S(sT1)}, {S(sT0)}, 3
    s_lshl_b64 {S(sT2,2)}, 0xff, {S(sT1)}
    s_not_b64 {S(sT2,2)}, {S(sT2,2)}
    s_lshr_b32 {S(sT0)}, {S(sT0)}, 3
    s_cmp_eq_u32 {S(sT0)}, 0
    s_cselect_b64 {S(sM,2)}, {S(sT2,2)}, -1
    s_cmp_eq_u32 {S(sT0)}, 1
    s_cselect_b64 {S(sM+2,2)}, {S(sT2,2)}, -1
    ''')
    a(f'''
    v_mov_b32 {V(T[0])}, {S(sTAGX)}
    s_mov_b64 exec, 1
    s_waitcnt vmcnt(0)
    global_store_dword {V(hF2)}, {V(T[0])}, {S(sWS,2)}
    s_mov_b64 exec, -1
    ''')
    spin_init()
    a(f'''
    L_f2spin:
    global_load_dword {V(T[0])}, {V(hF2R)}, {S(sWS,2)} sc1
    s_waitcnt vmcnt(0)
    v_cmp_ne_u32 vcc, {S(sTAGX)}, {V(T[0])}
    s_cbranch_vccz L_f2ok
    ''')
    spin_next('L_f2spin')
    a('L_f2ok:')
    stamp(11)
    a(f'''
    global_load_dwordx4 {V(vG,4)}, {V(hINA)}, {S(sWS,2)} sc1
    global_load_dwordx4 {V(vG+4,4)}, {V(hINA1)}, {S(sWS,2)} sc1
    s_waitcnt vmcnt(1)
    ds_write2_b32 {V(hSLR)}, {V(vG)}, {V(vG+1)} offset0:0 offset1:32
    ds_write2_b32 {V(hSLR)}, {V(vG+2)}, {V(vG+3)} offset0:64 offset1:96
    s_waitcnt vmcnt(0)
    ds_write2_b32 {V(hSLR1)}, {V(vG+4)}, {V(vG+5)} offset0:0 offset1:32
    ds_write2_b32 {V(hSLR1)}, {V(vG+6)}, {V(vG+7)} offset0:64 offset1:96
    ds_read_b128 {V(vS,4)}, {V(hSLW)}
    ds_read_b128 {V(vS+4,4)}, {V(hSLW1)} offset:1024
    s_mov_b64 exec, {S(sM,2)}
    s_waitcnt lgkmcnt(1)
    global_store_dwordx4 {V(hO0)}, {V(vS,4)}, {S(sOUT,2)}
    s_mov_b64 exec, {S(sM+2,2)}
    s_waitcnt lgkmcnt(0)
    global_store_dwordx4 {V(hO1)}, {V(vS+4,4)}, {S(sOUT,2)}
    s_mov_b64 exec, -1
    ''')
    a(f'''
    s_branch L_h_done
    L_h_direct:
    s_lshr_b32 {S(sT0)}, {S(sIDX)}, 2
    s_lshl_b64 {S(sT2,2)}, 1, {S(sT0)}
    s_not_b64 {S(sT2,2)}, {S(sT2,2)}
    s_lshr_b32 {S(sT0)}, {S(sIDX)}, 8
    s_lshl_b32 {S(sT0)}, {S(sT0)}, 2
    s_and_b32 {S(sT1)}, {S(sIDX)}, 3
    s_add_u32 {S(sT0)}, {S(sT0)}, {S(sT1)}
    s_lshl_b32 {S(sT1)}, {S(sWI)}, 3
    s_sub_u32 {S(sT0)}, {S(sT0)}, {S(sT1)}
    ''')
    for tau in range(2):
        out_tile(tau)
        for r in range(4):
            a(f'''
            s_cmp_eq_u32 {S(sT0)}, {4*tau + r}
            s_cselect_b64 exec, {S(sT2,2)}, -1
            global_store_dword {V((hXG, hXG1)[tau])}, {V(vD+4*tau+r)}, {S(sOUT,2)} offset:{r*1024}
            ''')
        alllanes()
    a('L_h_done:')
    if o['stamp'] or o['diag'] >= 0:
        stamp(11)
        a('s_waitcnt vmcnt(0)')
        stamp(12)
    if o['diag'] >= 0:
        a('''
        L_diag0:
        s_memrealtime s[90:91]
        s_sub_u32 s88, s88, s86
        s_min_u32 s88, s88, 2000
        s_lshl_b32 s88, s88, 2
        s_waitcnt lgkmcnt(0)
        s_add_u32 s88, s88, s90
        L_diag:
        s_memrealtime s[90:91]
        s_waitcnt lgkmcnt(0)
        s_sub_u32 s90, s90, s88
        s_cmp_lt_i32 s90, 0
        s_cbranch_scc1 L_diag
        ''')
    a('L_exit:')
    if o['stamp']:
        a('v_mov_b32 v254, 0')
        for i in range(14): a(f'v_writelane_b32 v254, s{86+i}, {i}')
        a(f'global_store_dword {V(vSTA)}, v254, {S(sWS,2)}')
    a('L_end:\ns_endpgm')
    a.raw('''.section .rodata,"a"
.p2align 6
.amdhsa_kernel %s_kernel
  .amdhsa_next_free_vgpr 256
  .amdhsa_next_free_sgpr 102
  .amdhsa_accum_offset 256
  .amdhsa_group_segment_fixed_size 0
  .amdhsa_kernarg_size 136
  .amdhsa_user_sgpr_count 2
  .amdhsa_user_sgpr_kernarg_segment_ptr 1
  .amdhsa_system_sgpr_workgroup_id_x 1
.end_amdhsa_kernel''' % KN)
    return a.text()


if __name__ == '__main__':
    out = sys.argv[1]
    opt = {}
    for kv in sys.argv[2:]:
        k, val = kv.split('='); opt[k] = int(val, 0)
    open(out, 'w').write(generate(**opt))
```

```python
import sys
from asmlib import *

KN = 'recurrent_scan__ssm_conv_s4__moe_arch_mod__prompt'

DEFAULTS = dict(stamp=0, cyc=0, diag=-1, spinmax=1 << 16, force_slow=0, force_bad=0, cpfn=4,
                pf=2, dsg=4, nb=6, maxout=12, group=4, minfly=4, ffnprio=2, lnprio=2, wpos=2, keylate=1, keyprio=2, backoff=0, gefirst=0, s2h=1, wat=0, gemid=0, wde=0, dpoll=1, wdc=1, gap=0, publate=0, fine=0, b7=1, p1nt=1, innt=1, f2s=0, gernd=0, wdat=70, s2prio=0, b6=1, jf=0, eplast=1)

RS = 1040
STAGE = 0
YX = 0; YWS = 10240; YTS = 1280; YGS = 320
R4 = 55168; R4S = 18560; CAS = 288
U = 92288; US = 4576
TAB = 101440; TS = 1552
PD = 104544
WL = 110720
SL = 127104
AM = 135296
XP_ = 135360
WD2 = 136448
LDS_BYTES = 144640
assert SL % 128 == 0 and R4 % 16 == 0 and U % 16 == 0 and PD % 16 == 0 and AM % 16 == 0
W_ST = 0x1000; W_FL = 0x6000; W_F2 = 0x7000; W_KY = 0x8000; W_FP = 0x10000; W_P1 = 0x300000; W_IN = 0x100000; W_STAMP = 0x800000

sX, sARE, sAIM, sBRE, sBIM, sCRE, sCIM, sLDT = 4, 6, 8, 10, 12, 14, 16, 18
sDSK, sWR, sWG, sWU, sWD, sOUT, sDBG, sWS = 20, 24, 26, 28, 30, 32, 34, 36
sW, sK, sJ, sCH0, sXCC, sTAG, sTAGX, sWI = 38, 39, 40, 41, 42, 43, 44, 45
sBAD, sFIN, sDS, sONES, sF8, sPROD, sIDX, sKEY, sCNT, sHI = 46, 47, 48, 49, 50, 51, 52, 53, 54, 55
sA, sR, sT0, sT1, sT2, sT3 = 56, 57, 58, 59, 60, 61
sP1, sHALF = 62, 63
sM = 64
sDV = 22
sSTP = 96
sCM = 6; sMK = 8; sFA = 16; sFB = 18
sFL = 64

T = [240 + i for i in range(16)]
vL = 1


def generate(**opt):
    o = dict(DEFAULTS); o.update(opt)
    a = Asm()
    V = v; S = s
    CLK = 's_memtime' if o['cyc'] else 's_memrealtime'

    def fstamp(i):
        if o['fine']: stamp(i, True)

    def stamp(i, force=False):
        if o['fine'] and not force and i in (1,2,3,4,5,6,7): return
        if o['diag'] == i: a('s_memrealtime s[98:99]\ns_waitcnt lgkmcnt(0)')
        if not o['stamp'] or (o['stamp'] == 2 and i != 12): return
        a(f'{CLK} {S(sSTP,2)}\ns_waitcnt lgkmcnt(0)\nv_writelane_b32 v237, {S(sSTP)}, {i}')

    def cmul(d, x, y):
        a(f'v_pk_mul_f32 {V(d,2)}, {V(x,2)}, {V(y,2)} op_sel:[1,1] op_sel_hi:[1,0]')
        a(f'v_pk_fma_f32 {V(d,2)}, {V(x,2)}, {V(y,2)}, {V(d,2)} op_sel:[0,0,0] op_sel_hi:[0,1,1] neg_lo:[0,0,1]')

    def lane63(): a('s_mov_b32 exec_lo, 0\ns_mov_b32 exec_hi, 0x80000000')
    def alllanes(): a('s_mov_b64 exec, -1')
    def spin_init(): a(f"s_mov_b32 {S(sCNT)}, {o['spinmax']}")
    def spin_next(lbl): a(f's_sub_u32 {S(sCNT)}, {S(sCNT)}, 1\ns_cmp_lg_u32 {S(sCNT)}, 0\ns_cbranch_scc1 {lbl}')

    def ssum(dst, *terms):
        first = True; const = 0
        for t in terms:
            if isinstance(t, int): const += t; continue
            r, sh = t
            if first:
                if sh: a(f's_lshl_b32 {S(dst)}, {S(r)}, {sh}')
                elif r != dst: a(f's_mov_b32 {S(dst)}, {S(r)}')
                first = False
            elif sh:
                a(f's_lshl_b32 {S(sT3)}, {S(r)}, {sh}\ns_add_u32 {S(dst)}, {S(dst)}, {S(sT3)}')
            else:
                a(f's_add_u32 {S(dst)}, {S(dst)}, {S(r)}')
        if const: a(f's_add_u32 {S(dst)}, {S(dst)}, {const}')

    def smul(dst, r, k, const=0):
        a(f's_mul_i32 {S(dst)}, {S(r)}, {k}')
        if const: a(f's_add_u32 {S(dst)}, {S(dst)}, {const}')

    def rnd2(r0, r1, t):
        a(f'v_cvt_pk_bf16_f32 {V(t)}, {V(r0)}, {V(r1)}\nv_lshlrev_b32 {V(r0)}, 16, {V(t)}\nv_and_b32 {V(r1)}, {S(sHI)}, {V(t)}')

    def xpose_addrs(b128a, b128b, b32a, b32b, ga, gb):
        ssum(sT0, (sWI, 11), SL)
        ssum(sT1, (sK, 18), (sJ, 8), (sWI, 6), W_IN)
        a(f'''
        v_lshrrev_b32 {V(T[0])}, 3, {V(vL)}
        v_and_b32 {V(T[1])}, 7, {V(vL)}
        v_lshrrev_b32 {V(T[2])}, 5, {V(vL)}
        v_lshlrev_b32 {V(T[2])}, 1, {V(T[2])}
        v_xor_b32 {V(T[2])}, {V(T[2])}, {V(T[1])}
        v_lshl_add_u32 {V(T[2])}, {V(T[2])}, 4, {S(sT0)}
        v_lshl_add_u32 {V(b128a)}, {V(T[0])}, 7, {V(T[2])}
        v_xor_b32 {V(b128b)}, 64, {V(b128a)}
        v_and_b32 {V(T[0])}, 3, {V(vL)}
        v_lshrrev_b32 {V(T[1])}, 4, {V(vL)}
        v_lshlrev_b32 {V(T[2])}, 1, {V(T[0])}
        v_xor_b32 {V(T[1])}, {V(T[1])}, {V(T[2])}
        v_lshl_add_u32 {V(T[1])}, {V(T[1])}, 4, {S(sT0)}
        v_lshl_add_u32 {V(T[1])}, {V(T[0])}, 9, {V(T[1])}
        v_bfe_u32 {V(T[2])}, {V(vL)}, 2, 2
        v_lshl_add_u32 {V(b32a)}, {V(T[2])}, 2, {V(T[1])}
        v_xor_b32 {V(b32b)}, 64, {V(b32a)}
        v_lshl_add_u32 {V(T[0])}, {V(T[0])}, 4, {S(sT1)}
        v_lshrrev_b32 {V(T[1])}, 2, {V(vL)}
        v_lshl_add_u32 {V(ga)}, {V(T[1])}, 13, {V(T[0])}
        v_add_u32 {V(gb)}, 0x20000, {V(ga)}
        ''')

    def slice_off(r0, r1):
        ssum(sT0, (sJ, 16), (sWI, 14), (sK, 7))
        a(f'''
        v_lshrrev_b32 {V(T[6])}, 3, {V(vL)}
        v_and_b32 {V(T[7])}, 7, {V(vL)}
        v_lshl_add_u32 {V(T[7])}, {V(T[7])}, 4, {S(sT0)}
        v_lshl_add_u32 {V(r0)}, {V(T[6])}, 10, {V(T[7])}
        v_add_u32 {V(r1)}, 8192, {V(r0)}
        ''')

    def read_idx():
        a(f'''
        v_mov_b32 {V(T[9])}, {AM}
        ds_read_b128 {V(T[0],4)}, {V(T[9])}
        ds_read_b64 {V(T[4],2)}, {V(T[9])} offset:16
        s_waitcnt lgkmcnt(0)
        v_max3_u32 {V(T[0])}, {V(T[0])}, {V(T[1])}, {V(T[2])}
        v_readfirstlane_b32 {S(sBAD)}, {V(T[4])}
        v_max_u32 {V(T[0])}, {V(T[0])}, {V(T[3])}
        v_readfirstlane_b32 {S(sTAGX)}, {V(T[5])}
        v_readfirstlane_b32 {S(sKEY)}, {V(T[0])}
        s_andn2_b32 {S(sIDX)}, 2047, {S(sKEY)}
        ''')

    def stat_addr(dst):
        a(f's_lshr_b32 {S(sT0)}, {S(sIDX)}, 2\ns_bfe_u32 {S(sT1)}, {S(sIDX)}, 0x10001\ns_and_b32 {S(sT2)}, {S(sIDX)}, 1')
        ssum(sT0, (sT0, 4), (sT1, 13), (sT2, 2), W_ST)
        a(f'v_mov_b32 {V(dst)}, {S(sT0)}')

    kred = ['row_shr:1 row_mask:0xf', 'row_shr:2 row_mask:0xf', 'row_shr:4 row_mask:0xf', 'row_shr:8 row_mask:0xf',
            'row_bcast:15 row_mask:0xa', 'row_bcast:31 row_mask:0xc']

    def stage2(PQ, WD, WDF, WDR, P1R, FPA, pre=None):
        gq = T[4]
        def p1_loads():
            for i in range(4): a(f'global_load_dwordx4 {V(PQ+4*i,4)}, {V(P1R)}, {S(sWS,2)} offset:{1024*i} sc1')
        p1_loads()
        if pre: pre()
        for i in range(4): a(f'ds_read2st64_b32 {V(WD+2*i,2)}, {V(WDR)} offset0:{2*i} offset1:{2*i+1}')
        a(f's_waitcnt lgkmcnt(0)\nv_mov_b32 {V(gq+2)}, {S(sTAG)}\nv_mov_b32 {V(gq+3)}, 0')
        for i in range(8):
            a(f'v_lshlrev_b32 {V(WDF+2*i)}, 16, {V(WD+i)}\nv_and_b32 {V(WDF+2*i+1)}, {S(sHI)}, {V(WD+i)}')
        spin_init()
        a('L_hspin:\ns_waitcnt vmcnt(0)')
        for i in range(4): a(f'v_xor_b32 {V(T[8+i])}, {S(sTAG)}, {V(PQ+4*i+2)}')
        for e in range(2): a(f'v_add_f32 {V(T[e])}, {V(PQ+e)}, {V(PQ+4+e)}')
        a(f'v_or3_b32 {V(T[8])}, {V(T[8])}, {V(T[9])}, {V(T[10])}')
        for e in range(2): a(f'v_add_f32 {V(T[2+e])}, {V(PQ+8+e)}, {V(PQ+12+e)}')
        a(f'v_or_b32 {V(T[8])}, {V(T[8])}, {V(T[11])}')
        for e in range(2): a(f'v_add_f32 {V(T[e])}, {V(T[e])}, {V(T[2+e])}')
        a(f'v_cmp_ne_u32 vcc, 0, {V(T[8])}\ns_cbranch_vccz L_hok')
        p1_loads()
        spin_next('L_hspin')
        a('s_waitcnt vmcnt(0)\nL_hok:')
        for e in range(2): a(f'v_add_f32_dpp {V(T[e])}, {V(T[e])}, {V(T[e])} row_ror:8 row_mask:0xf bank_mask:0xf')
        for pl in ('v_permlane16_swap_b32', 'v_permlane32_swap_b32'):
            for e in range(2): a(f'v_mov_b32 {V(T[2+e])}, {V(T[e])}')
            for e in range(2): a(f'{pl} {V(T[e])}, {V(T[2+e])}')
            for e in range(2): a(f'v_add_f32 {V(T[e])}, {V(T[e])}, {V(T[2+e])}')
        a(f'''
        v_cvt_pk_bf16_f32 {V(T[2])}, {V(T[0])}, {V(T[1])}
        v_lshlrev_b32 {V(T[0])}, 16, {V(T[2])}
        v_mul_f32 {V(T[1])}, 0xbfb8aa3b, {V(T[0])}
        v_exp_f32 {V(T[1])}, {V(T[1])}
        v_and_b32 {V(T[2])}, {S(sHI)}, {V(T[2])}
        v_add_f32 {V(T[1])}, 1.0, {V(T[1])}
        v_rcp_f32 {V(T[1])}, {V(T[1])}
        v_mul_f32 {V(T[1])}, {V(T[0])}, {V(T[1])}
        v_cvt_pk_bf16_f32 {V(T[1])}, {V(T[1])}, {V(T[1])}
        v_and_b32 {V(T[1])}, {S(sHI)}, {V(T[1])}
        v_mul_f32 {V(T[1])}, {V(T[1])}, {V(T[2])}
        v_cvt_pk_bf16_f32 {V(T[1])}, {V(T[1])}, {V(T[1])}
        v_and_b32 {V(T[1])}, {S(sHI)}, {V(T[1])}
        ''')
        for i in range(8):
            for e in range(2):
                a(f"{'v_mul_f32_dpp' if i == 0 else 'v_fmac_f32_dpp'} {V(gq+e)}, {V(T[1])}, {V(WDF+2*i+e)} row_newbcast:{i} row_mask:0xf bank_mask:0xf")
        a(f'global_store_dwordx4 {V(FPA)}, {V(gq,4)}, {S(sWS,2)} sc1')

    def sflag_check(n, ok):
        a(f's_and_b64 {S(sT0,2)}, {S(sFL,2)}, {S(sFL+2,2)}\ns_or_b64 {S(sT2,2)}, {S(sFL,2)}, {S(sFL+2,2)}')
        for i in range(4, n, 2):
            a(f's_and_b64 {S(sT0,2)}, {S(sT0,2)}, {S(sFL+i,2)}\ns_or_b64 {S(sT2,2)}, {S(sT2,2)}, {S(sFL+i,2)}')
        a(f'''
        s_and_b32 {S(sT0)}, {S(sT0)}, {S(sT1)}
        s_or_b32 {S(sT2)}, {S(sT2)}, {S(sT3)}
        s_xor_b32 {S(sT0)}, {S(sT0)}, {S(sTAGX)}
        s_xor_b32 {S(sT2)}, {S(sT2)}, {S(sTAGX)}
        s_or_b32 {S(sT0)}, {S(sT0)}, {S(sT2)}
        s_cbranch_scc0 {ok}
        ''')

    a.raw('; @launch grid=(256,1,1) block=(512,1,1) lds=%d' % LDS_BYTES)
    a.raw('.amdgcn_target "amdgcn-amd-amdhsa--gfx950"\n.text\n.globl %s_kernel\n.p2align 8\n.type %s_kernel,@function\n%s_kernel:' % (KN, KN, KN))
    vCP = 239; vSTA = 238
    a(f'''
    s_cmp_ge_u32 s2, 256
    s_cbranch_scc1 L_end
    s_load_dwordx16 s[4:19], s[0:1], 0
    s_load_dwordx16 s[20:35], s[0:1], 64
    s_load_dwordx2 s[36:37], s[0:1], 128
    s_getpc_b64 {S(sM+2,2)}
    s_lshr_b32 {S(sJ)}, s2, 3
    s_mul_i32 {S(sT0)}, {S(sJ)}, {128*o['cpfn']}
    v_lshl_add_u32 {V(vCP)}, v0, 7, {S(sT0)}
    v_min_u32 {V(vCP)}, L_end - L_cpf, {V(vCP)}
    v_cmp_gt_u32 vcc, {o['cpfn']}, v0
    s_and_saveexec_b64 {S(sM,2)}, vcc
    s_cbranch_execz L_cpf
    global_load_dword {V(vCP)}, {V(vCP)}, {S(sM+2,2)}
    L_cpf:
    s_mov_b64 exec, -1
    ''')
    if o['diag'] >= 0: a('s_memrealtime s[96:97]')
    if o['stamp']: a(f'{CLK} s[100:101]')
    a(f'''
    v_lshrrev_b32 {V(T[0])}, 6, v0
    v_and_b32 {V(vL)}, 63, v0
    v_readfirstlane_b32 {S(sW)}, {V(T[0])}
    s_and_b32 {S(sK)}, s2, 7
    s_and_b32 {S(sWI)}, {S(sW)}, 3
    ''')
    ssum(sCH0, (sK, 6), (sJ, 1))
    if o['stamp']:
        ssum(sT1, (2, 11), (sW, 8), W_STAMP)
        a(f'v_lshl_add_u32 {V(vSTA)}, {V(vL)}, 2, {S(sT1)}')
        a('v_mov_b32 v237, 0')

    def after_karg():
        a('s_waitcnt lgkmcnt(0)')
        if o['stamp']: a('v_writelane_b32 v237, s100, 13')
        if o['diag'] >= 0: a('s_mov_b32 s98, s96')
        stamp(0)
    a(f's_cmp_lt_u32 {S(sW)}, 4\ns_cbranch_scc1 L_conv')
    ssum(sT0, (2, 13), (sWI, 11))
    a(f'''
    v_and_b32 {V(T[3])}, 31, {V(vL)}
    v_lshrrev_b32 {V(T[4])}, 5, {V(vL)}
    v_lshlrev_b32 {V(T[2])}, 4, {V(T[3])}
    v_lshl_add_u32 {V(T[3])}, {V(T[4])}, 10, {V(T[2])}
    v_add_u32 {V(T[3])}, {S(sT0)}, {V(T[3])}
    v_mov_b32 {V(T[5])}, 0
    ''')
    after_karg()
    a(f'''
    global_load_dwordx4 {V(40,4)}, {V(T[3])}, {S(sX,2)}
    global_load_dwordx4 {V(44,4)}, {V(T[3])}, {S(sX,2)} offset:512
    s_mov_b64 exec, 1
    global_load_dword {V(35)}, {V(T[5])}, {S(sWS,2)} sc1
    s_mov_b64 exec, -1
    s_barrier
    global_load_dwordx4 {V(56,4)}, {V(T[2])}, {S(sWR,2)}
    global_load_dwordx4 {V(60,4)}, {V(T[2])}, {S(sWR,2)} offset:512
    ''')
    a('s_branch L_helper\nL_conv:')

    GA, SEL, R4W = 2, 10, 22
    cKA, cKB, cPD, cY, cCA, cCA2, cCB, cTW1, cTW2, cTW3, cTW4, cFL = range(24, 36)
    cG0, cG1, cLW, cLW1, cLR, cLR1, cO0, cO1, cF2, cFLO, cPFI = range(36, 47)
    cWS0, cWS1, cP1R, cFPA, cWW, cWDR, cFPR = 47, 71, 65, 67, 64, 66, 68
    cWR, cWD, cWDF, cPQ = 144, 224, 104, 120
    cG, cD, pos0, P = 48, 56, 64, 72
    sCH = sR
    a(f'''
    s_and_b32 {S(sCH)}, {S(sW)}, 1
    s_lshr_b32 {S(sT2)}, {S(sW)}, 1
    s_cmp_eq_u32 {S(sT2)}, 0
    s_cselect_b32 {S(sHALF)}, 0, 1
    s_add_u32 {S(sT1)}, {S(sCH0)}, {S(sCH)}
    ''')
    ssum(sT0, (sT1, 8), (sT2, 7))
    for i in range(7): a(f'v_mov_b32 {V(P+i)}, 0')
    a(f'''
    v_lshl_add_u32 {V(T[1])}, {V(vL)}, 1, {S(sT0)}
    s_lshl_b32 {S(sT1)}, {S(sT1)}, 1
    v_mov_b32 {V(T[2])}, {S(sT1)}
    ''')
    slice_off(cO0, cO1)
    after_karg()
    a(f'global_load_dwordx4 {V(cD,4)}, {V(cO0)}, {S(sX,2)}\nglobal_load_dwordx4 {V(cD+4,4)}, {V(cO1)}, {S(sX,2)}')
    a('s_barrier')
    a(f'''
    v_mov_b32 {V(T[6])}, 0
    v_mov_b32 {V(T[7])}, 0x3f80
    s_lshl_b32 {S(sT0)}, {S(sW)}, 8
    v_and_b32 {V(T[8])}, 127, v0
    s_mov_b32 m0, {S(sT0)}
    v_min_u32 {V(T[8])}, 119, {V(T[8])}
    ds_write_addtid_b32 {V(T[7])} offset:{STAGE}
    s_mul_i32 {S(sT0)}, {S(sHALF)}, {US}
    s_add_u32 {S(sT0)}, {S(sT0)}, {U}
    v_lshl_add_u32 {V(T[8])}, {V(T[8])}, 2, {S(sT0)}
    ds_write_b32 {V(T[8])}, {V(T[6])}
    s_mul_i32 {S(sT0)}, {S(sCH)}, {R4S}
    s_add_u32 {S(sT0)}, {S(sT0)}, {R4}
    s_mul_i32 {S(sT1)}, {S(sCH)}, {TS}
    s_add_u32 {S(sT1)}, {S(sT1)}, {TAB}
    s_cmp_eq_u32 {S(sHALF)}, 0
    s_cselect_b32 {S(sT0)}, {S(sT0)}, {S(sT1)}
    s_cselect_b32 {S(sT1)}, 31, 1
    v_min_u32 {V(T[8])}, {S(sT1)}, {V(vL)}
    v_lshl_add_u32 {V(T[8])}, {V(T[8])}, 2, {S(sT0)}
    s_mov_b32 exec_hi, 0
    ds_write_b32 {V(T[8])}, {V(T[6])}
    v_min_u32 {V(T[8])}, 10, {V(vL)}
    v_lshlrev_b32 {V(T[8])}, 2, {V(T[8])}
    v_add_u32 {V(T[8])}, {AM}, {V(T[8])}
    s_mov_b32 exec_lo, 0x7ff
    ds_write_b32 {V(T[8])}, {V(T[6])}
    s_mov_b64 exec, -1
    s_mov_b32 {S(sHI)}, 0xffff0000
    s_getreg_b32 {S(sXCC)}, hwreg(HW_REG_XCC_ID, 0, 4)
    ''')
    a(f'global_load_short_d16_hi {V(P+6)}, {V(T[2])}, {S(sLDT,2)}')
    for i, p in enumerate((sARE, sAIM, sBRE, sBIM, sCRE, sCIM)):
        a(f'global_load_short_d16_hi {V(P+i)}, {V(T[1])}, {S(p,2)}')
    a('s_waitcnt lgkmcnt(0)\ns_barrier')
    xpose_addrs(cLR, cLR1, cLW, cLW1, cG0, cG1)
    ssum(sT2, (sK, 18), (sJ, 13), (sWI, 11), W_IN)
    a(f'v_and_b32 {V(T[5])}, 15, {V(vL)}\nv_lshl_add_u32 {V(cPFI)}, {V(T[5])}, 7, {S(sT2)}')
    PE = 1 if o['pf'] == 2 else 0
    if PE: a(f"s_mov_b64 exec, 0xffff\nglobal_load_dword {V(vCP)}, {V(cPFI)}, {S(sWS,2)}{' nt' if o['innt'] else ''}\ns_mov_b64 exec, -1")

    def sel_setup(tag, toff, ga, sel, r4w, first):
        pos = [pos0 + i for i in range(7)]
        tt = 'v0'
        if toff:
            a(f'v_add_u32 {V(T[5])}, {toff}, v0'); tt = V(T[5])
        a(f'v_lshlrev_b32 {V(T[0])}, 2, {tt}')
        if first: a(f's_cmp_eq_u32 {S(sW)}, 0\ns_cbranch_scc1 L_pos0{tag}')
        for i in range(7): a(f'v_add_u32 {V(pos[i])}, {i-3}, {V(T[0])}')
        for i in range(7): a(f'v_cvt_f32_u32 {V(pos[i])}, {V(pos[i])}')
        for i in range(0, 7, 2):
            a(f'v_cvt_pk_bf16_f32 {V(T[8+i//2])}, {V(pos[i])}, {V(pos[min(i+1,6)])}')
        a(f'v_mov_b32 {V(T[1])}, {4 - 0x4280}')
        for i in range(7):
            a(f'v_bfe_u32 {V(pos[i])}, {V(T[8+i//2])}, {16*(i&1)}, 16')
            a(f'v_add_u32 {V(pos[i])}, {V(T[1])}, {V(pos[i])}')
        if first:
            a(f's_branch L_pos_done{tag}\nL_pos0{tag}:')
            for i in range(7): a(f'v_add_u32 {V(pos[i])}, {i+1}, {V(T[0])}')
            a(f'L_pos_done{tag}:')
        b1, b2 = T[1], T[2]
        a(f'''
        v_and_b32 {V(b1)}, -2, {V(pos[2])}
        v_add_u32 {V(b1)}, -2, {V(b1)}
        v_and_b32 {V(b2)}, -2, {V(pos[3])}
        v_add_u32 {V(T[3])}, {V(b1)}, {V(b1)}
        v_add_u32 {V(T[4])}, {V(b2)}, {V(b2)}
        ''')
        for c in range(2):
            a(f'v_add_u32 {V(ga+2*c)}, {TAB + c*TS}, {V(T[3])}')
            a(f'v_add_u32 {V(ga+2*c+1)}, {TAB + c*TS}, {V(T[4])}')
        for i in range(3): a(f'v_sub_u32 {V(pos[i])}, {V(pos[i])}, {V(b1)}')
        for i in range(3, 7): a(f'v_sub_u32 {V(pos[i])}, {V(pos[i])}, {V(b2)}')
        a(f's_movk_i32 {S(sT0)}, 0x0202\nv_mov_b32 {V(T[3])}, 0x0100')
        for i in range(7): a(f'v_mad_u32_u24 {V(pos[i])}, {V(pos[i])}, {S(sT0)}, {V(T[3])}')
        for dst, lo, hi in ((0, 1, 0), (1, 2, 1), (2, 3, 2), (3, 4, 3), (4, 5, 4), (5, 6, 5)):
            a(f'v_lshl_or_b32 {V(sel+dst)}, {V(pos[hi])}, 16, {V(pos[lo])}')
        a(f'v_add_u32 {V(sel+2)}, 0x{(2*0x0202 - 2*0x02020000) & 0xffffffff:x}, {V(sel+2)}')
        a(f'''
        v_and_b32 {V(T[0])}, -4, {tt}
        v_lshlrev_b32 {V(T[0])}, 2, {V(T[0])}
        v_lshl_add_u32 {V(r4w)}, {tt}, 5, {V(T[0])}
        v_add_u32 {V(r4w)}, {R4 + 144}, {V(r4w)}
        ''')
    smul(sT1, sCH, 3072, PD)
    smul(sT2, sCH, TS, TAB + 8)
    a(f'''
    v_and_b32 {V(T[0])}, 31, {V(vL)}
    v_lshrrev_b32 {V(T[1])}, 5, {V(vL)}
    s_lshl_b32 {S(sT0)}, {S(sW)}, 8
    v_lshl_add_u32 {V(T[2])}, {V(T[1])}, 4, {S(sT0)}
    s_movk_i32 {S(sT0)}, {RS}
    v_mad_u32_u24 {V(cKB)}, {V(T[0])}, {S(sT0)}, {V(T[2])}
    v_add_u32 {V(T[3])}, -16, {V(T[0])}
    v_cmp_lt_u32 vcc, 20, {V(T[0])}
    v_lshl_add_u32 {V(cPD)}, {V(vL)}, 4, {S(sT1)}
    v_cndmask_b32 {V(T[3])}, {V(T[0])}, {V(T[3])}, vcc
    v_mad_u32_u24 {V(cKA)}, {V(T[3])}, {S(sT0)}, {V(T[2])}
    v_add_u32 {V(cKA)}, {STAGE + 32*RS}, {V(cKA)}
    v_lshl_add_u32 {V(T[2])}, {V(T[1])}, 3, {S(sT2)}
    v_lshl_add_u32 {V(cTW1)}, {V(T[0])}, 4, {V(T[2])}
    v_sub_u32 {V(T[2])}, 3, {V(T[1])}
    v_lshlrev_b32 {V(T[2])}, {V(T[2])}, {V(T[0])}
    v_lshl_add_u32 {V(T[3])}, {V(T[1])}, 8, {S(sT2)}
    v_add_u32 {V(T[3])}, 512, {V(T[3])}
    v_add_u32 {V(cTW2)}, {V(T[2])}, {V(T[3])}
    v_mul_u32_u24 {V(T[2])}, 124, {V(T[1])}
    v_add3_u32 {V(cTW3)}, {V(cTW2)}, {V(T[2])}, 4
    v_lshl_add_u32 {V(cTW4)}, {V(T[0])}, 1, {V(T[3])}
    v_add_u32 {V(cTW4)}, 512, {V(cTW4)}
    ''')
    ssum(sT0, (sCH, 2), AM + 24)
    a(f'v_mov_b32 {V(cFL)}, {S(sT0)}')
    sel_setup('a', 0, GA, SEL, R4W, True)

    def conv_setup():
        smul(sT0, sCH, R4S, R4)
        smul(sT1, sHALF, 4 * CAS)
        a(f'''
        s_add_u32 {S(sT0)}, {S(sT0)}, {S(sT1)}
        v_and_b32 {V(T[5])}, 15, {V(vL)}
        v_lshrrev_b32 {V(T[6])}, 4, {V(vL)}
        v_lshlrev_b32 {V(T[3])}, 3, {V(T[6])}
        v_sub_u32 {V(T[3])}, {V(T[5])}, {V(T[3])}
        ''')
        for reg, k in ((cCA, 32), (cCA2, 28)):
            a(f'''
            v_add_u32 {V(T[4])}, {k}, {V(T[3])}
            v_lshrrev_b32 {V(T[7])}, 4, {V(T[4])}
            v_lshl_add_u32 {V(reg)}, {V(T[4])}, 3, {S(sT0)}
            v_lshl_add_u32 {V(reg)}, {V(T[7])}, 4, {V(reg)}
            ''')
        smul(sT0, sCH, US, U)
        smul(sT2, sW, YWS, YX)
        a(f'''
        s_lshl_b32 {S(sT1)}, {S(sHALF)}, 8
        s_sub_u32 {S(sT0)}, {S(sT0)}, {S(sT1)}
        v_lshl_add_u32 {V(T[3])}, {V(T[6])}, 4, {S(sT0)}
        v_lshl_add_u32 {V(cCB)}, {V(T[5])}, 5, {V(T[3])}
        v_mul_u32_u24 {V(T[3])}, {YGS}, {V(T[6])}
        v_lshl_add_u32 {V(T[3])}, {V(T[5])}, 4, {V(T[3])}
        v_add_u32 {V(cY)}, {S(sT2)}, {V(T[3])}
        ''')

    def gather_setup():
        a(f'''
        s_mul_i32 {S(sT0)}, {S(sK)}, 43
        s_add_u32 {S(sT0)}, {S(sT0)}, 43
        s_lshr_b32 {S(sT0)}, {S(sT0)}, 3
        s_sub_u32 {S(sT0)}, {S(sT0)}, {S(sA)}
        s_lshl_b32 {S(sT0)}, {S(sT0)}, 2
        s_lshl_b32 {S(sF8)}, {S(sA)}, 2
        s_add_u32 {S(sF8)}, {S(sF8)}, {S(sJ)}
        s_cmp_lt_u32 {S(sJ)}, {S(sT0)}
        s_cselect_b32 {S(sPROD)}, 1, 0
        ''')
        smul(sT2, sK, 24)
        a(f's_add_u32 {S(sT2)}, {S(sT2)}, {S(sJ)}')
        ssum(sT2, (sT2, 12), W_P1)
        ssum(sT1, (sW, 12), WL)
        a(f'''
        v_lshl_add_u32 {V(cP1R)}, {V(vL)}, 4, {S(sT2)}
        v_lshl_add_u32 {V(cWW)}, {V(vL)}, 4, {S(sT1)}
        v_lshl_add_u32 {V(cWDR)}, {V(vL)}, 2, {S(sT1)}
        v_lshrrev_b32 {V(T[4])}, 1, v0
        v_mul_u32_u24 {V(T[4])}, 6144, {V(T[4])}
        v_and_b32 {V(T[3])}, 1, {V(vL)}
        v_lshl_add_u32 {V(T[4])}, {V(T[3])}, 4, {V(T[4])}
        ''')
        ssum(sT2, (sF8, 5), W_FP)
        a(f'v_add_u32 {V(cFPA)}, {S(sT2)}, {V(T[4])}\ns_lshr_b32 {S(sT0)}, {S(sCH0)}, 2\ns_and_b32 {S(sT1)}, {S(sJ)}, 1')
        smul(sT0, sT0, 6144, W_FP + 2048)
        ssum(sT0, (sT0, 0), (sT1, 4))
        a(f'v_lshl_add_u32 {V(cFPR)}, {V(vL)}, 5, {S(sT0)}')

    def wsrc_setup():
        a(f's_mul_i32 {S(sA)}, {S(sK)}, 43\ns_lshr_b32 {S(sA)}, {S(sA)}, 3')
        smul(sT0, sWI, 96)
        ssum(sT0, (sT0, 0), (sA, 6))
        a(f'''
        v_lshrrev_b32 {V(T[6])}, 3, {V(vL)}
        v_lshl_add_u32 {V(T[6])}, {S(sJ)}, 4, {V(T[6])}
        v_and_b32 {V(T[7])}, 7, {V(vL)}
        v_min_u32 {V(T[7])}, 5, {V(T[7])}
        v_lshl_add_u32 {V(T[7])}, {V(T[7])}, 4, {S(sT0)}
        v_min_u32 {V(T[7])}, 2736, {V(T[7])}
        s_movk_i32 {S(sT0)}, 2752
        v_mad_u32_u24 {V(cWS0)}, {V(T[6])}, {S(sT0)}, {V(T[7])}
        v_add_u32 {V(cWS1)}, {8*2752}, {V(cWS0)}
        ''')
        if o['wdc']:
            a(f'''
            s_mul_i32 {S(sT0)}, {S(sK)}, 43
            s_add_u32 {S(sT0)}, {S(sT0)}, 43
            s_lshr_b32 {S(sT0)}, {S(sT0)}, 3
            s_sub_u32 {S(sT0)}, {S(sT0)}, {S(sA)}
            s_lshl_b32 {S(sT0)}, {S(sT0)}, 2
            s_lshl_b32 {S(sF8)}, {S(sA)}, 2
            s_add_u32 {S(sF8)}, {S(sF8)}, {S(sJ)}
            s_cmp_lt_u32 {S(sJ)}, {S(sT0)}
            s_cselect_b32 {S(sF8)}, {S(sF8)}, {S(sJ)}
            s_cselect_b64 {S(sM+6,2)}, -1, 1
            ''')
            ssum(sT1, (sF8, 13), (sWI, 8))
            smul(sT2, sK, 24)
            a(f's_add_u32 {S(sT2)}, {S(sT2)}, {S(sJ)}')
            ssum(sT2, (sT2, 12), (sWI, 10), W_P1)
            a(f'''
            v_and_b32 {V(T[6])}, 15, {V(vL)}
            v_lshrrev_b32 {V(T[7])}, 4, {V(vL)}
            v_lshl_add_u32 v170, {V(T[6])}, 4, {S(sT1)}
            v_lshl_add_u32 v170, {V(T[7])}, 10, v170
            v_add_u32 v171, 4096, v170
            v_lshl_add_u32 v172, {V(vL)}, 7, {S(sT2)}
            ''')

    def w_loads(lo=0, hi=4):
        for t_ in range(lo, hi):
            a(f'global_load_dwordx4 {V(cWR+4*t_,4)}, {V((cWS0, cWS1)[t_&1])}, {S((sWG, sWU)[t_>>1],2)}')
        if o['wdc']:
            a(f'''
            s_and_b64 exec, {S(sM+6,2)}, 0xff
            global_load_dword v172, v172, {S(sWS,2)} nt
            ''')
            if o['wdc'] == 1: a(f'''
            s_mov_b64 exec, {S(sM+6,2)}
            global_load_dwordx4 v[160:163], v170, {S(sWD,2)}
            global_load_dwordx4 v[164:167], v171, {S(sWD,2)}
            ''')
            alllanes()

    wsrc_setup()
    a(f's_waitcnt vmcnt({7 + PE})')
    stamp(1)
    a(f'''
    ds_write_b128 {V(cLR)}, {V(cD,4)}
    ds_write_b128 {V(cLR1)}, {V(cD+4,4)} offset:1024
    ds_read2_b32 {V(cG,2)}, {V(cLW)} offset0:0 offset1:32
    ds_read2_b32 {V(cG+2,2)}, {V(cLW)} offset0:64 offset1:96
    ds_read2_b32 {V(cG+4,2)}, {V(cLW1)} offset0:0 offset1:32
    ds_read2_b32 {V(cG+6,2)}, {V(cLW1)} offset0:64 offset1:96
    s_waitcnt lgkmcnt(0)
    global_store_dwordx4 {V(cG0)}, {V(cG,4)}, {S(sWS,2)}
    global_store_dwordx4 {V(cG1)}, {V(cG+4,4)}, {S(sWS,2)}
    ''')
    if o['pf'] == 1: a(f"s_mov_b64 exec, 0xffff\nglobal_load_dword {V(vCP)}, {V(cPFI)}, {S(sWS,2)}{' nt' if o['innt'] else ''}\ns_mov_b64 exec, -1")
    sel_setup('b', 256, GA + 4, SEL + 6, R4W + 1, False)
    a(f"s_waitcnt vmcnt({1 if o['pf'] == 1 else 0})")
    stamp(2)
    a('s_barrier')
    are, aim, bre, bim, cre, cim, dt, t0 = [P + i for i in range(8)]
    z1, z2, z4, ZZ, w1, w2, w4 = [P + 8 + 2 * i for i in range(7)]
    hq = [P + 24 + 2 * i for i in range(8)]
    lq = [P + 40 + 2 * i for i in range(8)]
    cv = [P + 56 + i for i in range(8)]
    a(f'''
    v_mov_b32 {V(t0)}, 0x3fb8aa3b
    v_mul_f32 {V(dt)}, {V(dt)}, {V(t0)}
    v_exp_f32 {V(dt)}, {V(dt)}
    v_mul_f32 {V(are)}, {V(t0)}, {V(are)}
    v_cvt_pk_bf16_f32 {V(dt)}, {V(dt)}, {V(dt)}
    v_mul_f32 {V(aim)}, 0.15915494, {V(aim)}
    v_and_b32 {V(dt)}, {S(sHI)}, {V(dt)}
    v_mul_f32 {V(are)}, {V(dt)}, {V(are)}
    v_mul_f32 {V(aim)}, {V(dt)}, {V(aim)}
    v_exp_f32 {V(cv[0])}, {V(are)}
    v_fract_f32 {V(cv[1])}, {V(aim)}
    v_mul_f32 {V(are)}, 0x43800000, {V(are)}
    v_cos_f32 {V(z1)}, {V(cv[1])}
    ''')
    if o['wat'] == 0: w_loads()
    a(f'''
    v_mul_f32 {V(aim)}, 0x43800000, {V(aim)}
    v_sin_f32 {V(z1+1)}, {V(cv[1])}
    v_fract_f32 {V(cv[3])}, {V(aim)}
    v_exp_f32 {V(cv[2])}, {V(are)}
    v_mul_f32 {V(z1)}, {V(cv[0])}, {V(z1)}
    v_cos_f32 {V(ZZ)}, {V(cv[3])}
    v_mul_f32 {V(z1+1)}, {V(cv[0])}, {V(z1+1)}
    v_sin_f32 {V(ZZ+1)}, {V(cv[3])}
    ''')
    cmul(z2, z1, z1)
    a(f'v_mul_f32 {V(ZZ)}, {V(cv[2])}, {V(ZZ)}\nv_mul_f32 {V(ZZ+1)}, {V(cv[2])}, {V(ZZ+1)}')
    cmul(z4, z2, z2)
    ci = [0]; pend = []

    def flush(n=99):
        for x in pend[:n]: a(x)
        del pend[:n]

    def put(row, reg, neg):
        c = cv[ci[0] % 8]; ci[0] += 1
        a(f"v_cvt_pk_bf16_f32 {V(c)}, {V(reg)}, {'-' if neg else ''}{V(reg+1)}")
        pend.append(f'ds_write_addtid_b32 {V(c)} offset:{STAGE + row*RS}')
        if len(pend) >= o['dsg']: flush()
    cmul(w1, z4, z4)
    cmul(w2, w1, w1)
    put(1, w1, False)
    cmul(lq[3], w2, w1)
    put(2, w2, False)
    cmul(w4, w2, w2)
    put(3, lq[3], False)
    cur = {1: w1, 2: w2, 3: lq[3], 4: w4}
    put(4, w4, False)
    for j in range(5, 32):
        d = lq[j % 8]
        cmul(d, cur[j - 4], w4); cur[j] = d
        put(j, d, False)
        if j == o['wat']: w_loads()
    a(f'v_mul_f32 {V(bre)}, {V(dt)}, {V(bre)}\nv_mul_f32 {V(bim)}, {V(dt)}, {V(bim)}')
    cmul(hq[0], cre, bre)
    cmul(hq[1], hq[0], z1); put(32, hq[0], True)
    cmul(hq[2], hq[0], z2); put(33, hq[1], True)
    cmul(hq[3], hq[1], z2); put(34, hq[2], True)
    cmul(hq[4], hq[0], z4); put(35, hq[3], True)
    cmul(hq[5], hq[1], z4); put(36, hq[4], True)
    cmul(hq[6], hq[2], z4); put(37, hq[5], True)
    cmul(hq[7], hq[3], z4); put(38, hq[6], True)
    A0, A2, A4, A6, B0, B4, C0, C4 = lq
    cmul(A0, hq[0], ZZ); put(39, hq[7], True)
    cmul(A2, hq[2], ZZ); put(40, A0, True)
    cmul(A4, hq[4], ZZ); put(41, A2, True)
    cmul(A6, hq[6], ZZ); put(42, A4, True)
    cmul(B0, A0, ZZ); put(43, A6, True)
    cmul(B4, A4, ZZ); put(44, B0, True)
    cmul(C0, B0, ZZ); put(45, B4, True)
    cmul(C4, B4, ZZ); put(46, C0, True)
    cmul(hq[1], C0, ZZ); put(47, C4, True)
    cmul(hq[2], hq[1], ZZ); put(48, hq[1], True)
    cmul(hq[3], hq[2], ZZ); put(49, hq[2], True)
    cmul(hq[4], hq[3], ZZ); put(50, hq[3], True)
    cmul(hq[5], hq[4], ZZ); put(51, hq[4], True); put(52, hq[5], True)
    flush()
    stamp(3)

    KD = P; KF = P + 16; NB = o['nb']

    def kread(i):
        r = KF + 8 * (i % NB)
        a(f'ds_read_b128 {V(r,4)}, {V(cKA)} offset:{32*i}\nds_read_b128 {V(r+4,4)}, {V(cKB)} offset:{32*i}')
    for i in range(NB): kread(i)
    for i in range(8):
        a(f's_waitcnt lgkmcnt({2*(min(8, i + NB) - i - 1)})')
        r = KF + 8 * (i % NB)
        a(f"v_mfma_f32_32x32x16_bf16 {V(KD,16)}, {V(r,4)}, {V(r+4,4)}, {'0' if i == 0 else V(KD,16)}")
        if i + NB < 8: kread(i + NB)
    a(f'v_mov_b32 {V(T[7])}, 1\ns_cmp_eq_u32 {S(sHALF)}, 1\ns_cbranch_scc1 L_c_half1')
    for i in range(3): a(f'ds_write_b128 {V(cPD)}, {V(KD+4*i,4)} offset:{1024*i}')
    a(f's_mov_b64 exec, 1\nds_write_b32 {V(cFL)}, {V(T[7])}\ns_mov_b64 exec, -1')
    gather_setup(); conv_setup()
    a('s_branch L_c_tab\nL_c_half1:')
    spin_init()
    a(f'L_pspin:\nds_read_b32 {V(T[6])}, {V(cFL)}')
    for i in range(3): a(f'ds_read_b128 {V(cG+4*i,4)}, {V(cPD)} offset:{1024*i}')
    a(f'''
    s_waitcnt lgkmcnt(3)
    v_readfirstlane_b32 {S(sT0)}, {V(T[6])}
    s_cmp_lg_u32 {S(sT0)}, 0
    s_cbranch_scc1 L_pok
    s_waitcnt lgkmcnt(0)
    ''')
    spin_next('L_pspin')
    a('L_pok:\ns_waitcnt lgkmcnt(0)')
    for i in range(12): a(f'v_add_f32 {V(KD+i)}, {V(KD+i)}, {V(cG+i)}')
    for i in range(6): a(f'v_cvt_pk_bf16_f32 {V(T[i])}, {V(KD+2*i)}, {V(KD+2*i+1)}')
    a(f'''
    ds_write_b64 {V(cTW1)}, {V(T[0],2)}
    ds_write_b32 {V(cTW2)}, {V(T[2])}
    ds_write_b32 {V(cTW3)}, {V(T[3])}
    ds_write_b16 {V(cTW4)}, {V(T[4])}
    ds_write_b16_d16_hi {V(cTW4)}, {V(T[4])} offset:64
    ds_write_b16 {V(cTW4)}, {V(T[5])} offset:128
    ds_write_b16_d16_hi {V(cTW4)}, {V(T[5])} offset:192
    s_mov_b64 exec, 1
    ds_write_b32 {V(cFL)}, {V(T[7])} offset:8
    s_mov_b64 exec, -1
    L_c_tab:
    ''')
    stamp(4)
    Wq = P; Q = P + 16
    spin_init()
    a(f'v_mov_b32 {V(T[9])}, {AM}\nL_tspin:\nds_read_b64 {V(T[0],2)}, {V(T[9])} offset:32')
    for i in range(8): a(f'ds_read2_b32 {V(Wq+2*i,2)}, {V(GA+i)} offset0:0 offset1:1')
    a(f'''
    s_waitcnt lgkmcnt(8)
    v_and_b32 {V(T[0])}, {V(T[0])}, {V(T[1])}
    v_readfirstlane_b32 {S(sT0)}, {V(T[0])}
    s_cmp_lg_u32 {S(sT0)}, 0
    s_cbranch_scc1 L_tok
    s_waitcnt lgkmcnt(0)
    ''')
    spin_next('L_tspin')
    a('L_tok:')
    stamp(5)
    for n in range(4):
        st, c = n >> 1, n & 1
        W0, W1, W2, W3 = [Wq + 4 * n + i for i in range(4)]
        q = Q + 8 * n; sl = SEL + 6 * st
        a(f'''
        s_waitcnt lgkmcnt(6)
        v_perm_b32 {V(q+0)}, {V(W2)}, {V(W1)}, {V(sl+2)}
        v_perm_b32 {V(q+1)}, {V(W1)}, {V(W0)}, {V(sl+0)}
        v_perm_b32 {V(q+2)}, {V(W3)}, {V(W2)}, {V(sl+3)}
        v_perm_b32 {V(q+3)}, {V(W1)}, {V(W0)}, {V(sl+1)}
        v_perm_b32 {V(q+4)}, {V(W3)}, {V(W2)}, {V(sl+4)}
        v_mov_b32 {V(q+5)}, {V(q+0)}
        v_perm_b32 {V(q+6)}, {V(W3)}, {V(W2)}, {V(sl+5)}
        v_mov_b32 {V(q+7)}, {V(q+2)}
        ds_write_b128 {V(R4W+st)}, {V(q,4)} offset:{c*R4S}
        ds_write_b128 {V(R4W+st)}, {V(q+4,4)} offset:{c*R4S + 16}
        ''')
    a(f's_cmp_eq_u32 {S(sHALF)}, 0\ns_cbranch_scc1 L_c_b4')
    gather_setup(); conv_setup()
    a('L_c_b4:\ns_waitcnt vmcnt(0)')
    for t_ in range(4): a(f'ds_write_b128 {V(cWW)}, {V(cWR+4*t_,4)} offset:{1024*t_}')
    if o['wdc'] == 1:
        ssum(sT0, (sW, 11), WD2)
        a(f'v_lshl_add_u32 v170, {V(vL)}, 4, {S(sT0)}\nds_write_b128 v170, v[160:163]\nds_write_b128 v170, v[164:167] offset:1024')
    a(f's_lshl_b32 {S(sT0)}, {S(sCH0)}, 1\ns_load_dword {S(sDS)}, {S(sDSK,2)}, {S(sT0)}\ns_waitcnt lgkmcnt(0)')
    stamp(8)
    a('s_barrier')
    stamp(10)

    ACC = P; FR = P + 32; NFR = 30
    a('s_setprio 1')
    ops = []
    for c0 in range(4):
        lst = [(q, c1, q - c1) for q in range(8) for c1 in range(q + 1)]
        have = set(); seq = []
        while lst:
            def cost(x):
                base = (2 * (('A', x[1]) not in have) + (('B', x[2]) not in have), bool(seq) and seq[-1][0] == x[0], max(x[1], x[2]))
                return ((x[0],) + base) if c0 == 3 else base
            x = min(lst, key=cost); lst.remove(x); seq.append(x); have.add(('A', x[1])); have.add(('B', x[2]))
        for q, c1, qp in seq: ops.append((q, ('A', c0, c1), ('B', c0, qp)))
    order = []; last = {}; lastacc = {}
    for n, (i, ak, bk) in enumerate(ops):
        lastacc[i] = n
        for k in (bk, ak):
            if k not in last: order.append(k)
            last[k] = n
    L = []
    for k in order: L += [(k, 0), (k, 1)] if k[0] == 'A' else [(k, 0)]
    endidx = {}
    for j, (k, p) in enumerate(L): endidx[k] = j + 1
    need = []; m = 0
    for (i, ak, bk) in ops:
        m = max(m, endidx[ak], endidx[bk]); need.append(m)
    free = list(range(NFR)); slot = {}
    st = dict(issued=0, done=0); seqpos = []; nds = [0]; donepos = [0]

    def can_issue(cap):
        if st['issued'] >= len(L) or nds[0] - donepos[0] >= cap: return False
        k, p = L[st['issued']]
        return p == 1 or bool(free)

    def issue():
        k, p = L[st['issued']]
        if p == 0: slot[k] = free.pop(0)
        r = FR + 4 * slot[k]
        if k[0] == 'A': a(f'ds_read_b64 {V(r+2*p,2)}, {V(cCA2 if p else cCA)} offset:{CAS*(8*k[2] + k[1])}')
        else: a(f'ds_read_b128 {V(r,4)}, {V(cCB)} offset:{2*(224 + 256*k[2] - 32*k[1])}')
        st['issued'] += 1; nds[0] += 1; seqpos.append(nds[0])
    started = set(); written = set()
    while can_issue(o['maxout']): issue()
    for n, (i, ak, bk) in enumerate(ops):
        if need[n] > st['done']:
            while st['issued'] < need[n]:
                assert nds[0] - donepos[0] < 15
                issue()
            tgt = need[n]
            for m2 in range(n, min(n + o['group'], len(ops))):
                if need[m2] <= st['issued'] - o['minfly'] or need[m2] <= len(L) == st['issued']: tgt = max(tgt, need[m2])
            a(f's_waitcnt lgkmcnt({nds[0] - seqpos[tgt-1]})'); st['done'] = tgt; donepos[0] = seqpos[tgt - 1]
        acc = ACC + 4 * i
        a(f"v_mfma_f32_16x16x32_bf16 {V(acc,4)}, {V(FR+4*slot[ak],4)}, {V(FR+4*slot[bk],4)}, {V(acc,4) if i in started else '0'}")
        started.add(i)
        for k in (ak, bk):
            if last[k] == n: free.append(slot[k])
        budget = 1
        for i2 in range(8):
            if i2 not in written and lastacc[i2] + 5 <= n and budget > 0 and nds[0] - donepos[0] < 15:
                a(f'ds_write_b128 {V(cY)}, {V(ACC+4*i2,4)} offset:{i2*YTS}')
                written.add(i2); nds[0] += 1; budget -= 1
        while budget > 0 and can_issue(15) and st['issued'] < need[min(n + 14, len(ops) - 1)]:
            issue(); budget -= 1
    for i2 in range(8):
        if i2 not in written: a(f'ds_write_b128 {V(cY)}, {V(ACC+4*i2,4)} offset:{i2*YTS}')
    a('s_setprio 0\ns_waitcnt lgkmcnt(0)')
    stamp(9)
    a('s_barrier')
    if not o['s2h']:
        a(f"s_setprio {o['s2prio']}\ns_cmp_eq_u32 {S(sPROD)}, 0\ns_cbranch_scc1 L_c_nos2")
        stage2(cPQ, cWD, cWDF, cWDR, cP1R, cFPA)
        stamp(7)
    a(f'L_c_nos2:\ns_cmp_lg_u32 {S(sW)}, 0\ns_cbranch_scc1 L_exit')
    read_idx()
    a(f'''
    s_and_b32 {S(sTAG)}, {S(sTAGX)}, -16
    s_cmp_lg_u32 s2, 0
    s_cbranch_scc1 L_noep
    s_mov_b32 {S(sT0)}, {S(sTAG)}
    v_mov_b32 {V(T[10])}, 0
    v_mov_b32 {V(T[11])}, {S(sT0)}
    s_mov_b64 exec, 1
    global_store_dword {V(T[10])}, {V(T[11])}, {S(sWS,2)} sc1
    s_mov_b64 exec, -1
    L_noep:
    ''')
    xv, sv, y0, y1, n0, n1, d0, d1, sg, x0, x1, xo, ya, y2, y3 = range(160, 175)
    F = 144; hFPR = cFPR
    a(f's_lshl_b32 {S(sDV)}, {S(sDS)}, 16\ns_and_b32 {S(sDV+1)}, {S(sDS)}, {S(sHI)}')
    def fin_pre():
        ssum(sT0, (sIDX, 10), (sCH0, 1))
        a(f'v_mov_b32 {V(xo)}, {S(sT0)}')
        a(f'''
        ds_read_b64 {V(xv,2)}, {V(T[9])} offset:48
        s_lshr_b32 {S(sT1)}, {S(sIDX)}, 8
        s_mul_i32 {S(sT1)}, {S(sT1)}, {YTS}
        s_bfe_u32 {S(sT0)}, {S(sIDX)}, 0x20002
        s_mul_i32 {S(sT0)}, {S(sT0)}, {YGS}
        s_add_u32 {S(sT1)}, {S(sT1)}, {S(sT0)}
        s_bfe_u32 {S(sT0)}, {S(sIDX)}, 0x40004
        s_and_b32 {S(sT2)}, {S(sIDX)}, 3
        ''')
        ssum(sT1, (sT1, 0), (sT0, 4), (sT2, 2), YX)
        a(f'''
        v_mov_b32 {V(ya)}, {S(sT1)}
        s_and_b32 {S(sT0)}, {S(sKEY)}, {S(sHI)}
        s_xor_b32 {S(sT1)}, {S(sT0)}, 0x80000000
        s_xor_b32 {S(sT2)}, {S(sT0)}, {S(sHI)}
        s_bitcmp1_b32 {S(sT0)}, 31
        s_cselect_b32 {S(sT0)}, {S(sT1)}, {S(sT2)}
        v_mov_b32 {V(T[2])}, 0xbfb8aa3b
        v_mul_f32 {V(sg)}, {S(sT0)}, {V(T[2])}
        v_exp_f32 {V(sg)}, {V(sg)}
        v_mov_b32 {V(F+8)}, 0
        v_add_f32 {V(sg)}, 1.0, {V(sg)}
        v_rcp_f32 {V(sg)}, {V(sg)}
        v_mov_b32 {V(F+9)}, 0
        v_cvt_pk_bf16_f32 {V(sg)}, {V(sg)}, {V(sg)}
        v_mov_b32 {V(F+10)}, {S(sTAG)}
        v_and_b32 {V(sg)}, {S(sHI)}, {V(sg)}
        ''')
        for i, r in enumerate((y0, y1, y2, y3)): a(f'ds_read_b32 {V(r)}, {V(ya)} offset:{i*YWS}')
    def fin_polls():
        a(f'''
        global_load_dwordx4 {V(F,4)}, {V(hFPR)}, {S(sWS,2)} offset:-2048 sc1
        global_load_dwordx4 {V(F+4,4)}, {V(hFPR)}, {S(sWS,2)} sc1
        s_mov_b32 exec_hi, 0xfff
        global_load_dwordx4 {V(F+8,4)}, {V(hFPR)}, {S(sWS,2)} offset:2048 sc1
        s_mov_b64 exec, -1
        ''')
    fin_pre()
    fstamp(1)
    a(f's_cmp_lg_u32 {S(sBAD)}, 0\ns_cbranch_scc1 L_c_nob6\ns_barrier\nL_c_nob6:')
    fin_polls()
    a(f'''
    s_waitcnt lgkmcnt(0)
    v_add_f32 {V(y0)}, {V(y0)}, {V(y2)}
    v_add_f32 {V(y1)}, {V(y1)}, {V(y3)}
    ''')
    rnd2(y0, y1, T[0])
    a(f'''
    v_and_b32 {V(T[1])}, {S(sHI)}, {V(sv)}
    v_lshlrev_b32 {V(T[2])}, 16, {V(sv)}
    v_rcp_f32 {V(T[1])}, {V(T[1])}
    v_lshlrev_b32 {V(x0)}, 16, {V(xv)}
    v_and_b32 {V(x1)}, {S(sHI)}, {V(xv)}
    v_sub_f32 {V(n0)}, {V(x0)}, {V(T[2])}
    v_sub_f32 {V(n1)}, {V(x1)}, {V(T[2])}
    ''')
    rnd2(n0, n1, T[0])
    a(f'v_mul_f32 {V(n0)}, {V(n0)}, {V(T[1])}\nv_mul_f32 {V(n1)}, {V(n1)}, {V(T[1])}')
    rnd2(n0, n1, T[0])
    a(f'v_mul_f32 {V(d0)}, {S(sDV)}, {V(n0)}\nv_mul_f32 {V(d1)}, {S(sDV+1)}, {V(n1)}')
    rnd2(d0, d1, T[0])
    a(f'v_add_f32 {V(y0)}, {V(y0)}, {V(d0)}\nv_add_f32 {V(y1)}, {V(y1)}, {V(d1)}')
    rnd2(y0, y1, T[0])
    spin_init()
    a('L_ffnspin:\ns_waitcnt vmcnt(0)')
    fstamp(2)
    for i in range(3): a(f'v_xor_b32 {V(T[i])}, {S(sTAG)}, {V(F+4*i+2)}')
    a(f'v_or3_b32 {V(T[0])}, {V(T[0])}, {V(T[1])}, {V(T[2])}\nv_cmp_ne_u32 vcc, 0, {V(T[0])}\ns_cbranch_vccz L_ffnok')
    if o['b7']:
        a(f"s_cmp_lg_u32 {S(sCNT)}, {o['spinmax']}\ns_cbranch_scc1 L_c_nob7\ns_cmp_lg_u32 {S(sBAD)}, 0\ns_cbranch_scc1 L_c_nob7")
        a(f'''
        s_mov_b32 {S(sT1)}, {o['spinmax']}
        L_b7spin:
        ds_read_b32 {V(T[0])}, {V(T[9])} offset:40
        s_sub_u32 {S(sT1)}, {S(sT1)}, 1
        s_cbranch_scc1 L_c_nob7
        s_waitcnt lgkmcnt(0)
        v_readfirstlane_b32 {S(sT0)}, {V(T[0])}
        s_cmp_eq_u32 {S(sT0)}, 0
        s_cbranch_scc1 L_b7spin
        L_c_nob7:
        s_waitcnt lgkmcnt(0)
        ''')
    fin_polls()
    spin_next('L_ffnspin')
    a('s_waitcnt vmcnt(0)\nL_ffnok:')
    fstamp(3)
    p0, p1 = F, F + 1
    for e in range(2): a(f'v_add_f32 {V(F+e)}, {V(F+e)}, {V(F+4+e)}')
    for e in range(2): a(f'v_add_f32 {V(F+e)}, {V(F+e)}, {V(F+8+e)}')
    for m in kred:
        for e in range(2): a(f'v_add_f32_dpp {V(F+e)}, {V(F+e)}, {V(F+e)} {m} bank_mask:0xf')
    rnd2(p0, p1, T[0])
    for e in range(2): a(f'v_mul_f32 {V(F+e)}, {V(F+e)}, {V(sg)}')
    rnd2(p0, p1, T[0])
    a(f'v_add_f32 {V(p0)}, {V(p0)}, {V(n0)}\nv_add_f32 {V(p1)}, {V(p1)}, {V(n1)}')
    rnd2(p0, p1, T[0])
    for e in range(2): a(f'v_mul_f32 {V(F+4+e)}, 0xbfb8aa3b, {V(F+e)}')
    for e in range(2): a(f'v_exp_f32 {V(F+4+e)}, {V(F+4+e)}')
    for e in range(2): a(f'v_add_f32 {V(F+4+e)}, 1.0, {V(F+4+e)}')
    for e in range(2): a(f'v_rcp_f32 {V(F+4+e)}, {V(F+4+e)}')
    for e in range(2): a(f'v_mul_f32 {V(F+e)}, {V(F+e)}, {V(F+4+e)}')
    rnd2(p0, p1, T[0])
    a(f'v_mul_f32 {V(p0)}, {V(p0)}, {V(y0)}\nv_mul_f32 {V(p1)}, {V(p1)}, {V(y1)}')
    rnd2(p0, p1, T[0])
    a(f'v_add_f32 {V(p0)}, {V(p0)}, {V(x0)}\nv_add_f32 {V(p1)}, {V(p1)}, {V(x1)}\nv_cvt_pk_bf16_f32 {V(T[0])}, {V(p0)}, {V(p1)}')
    lane63()
    a(f'global_store_dword {V(xo)}, {V(T[0])}, {S(sOUT,2)}')
    alllanes()
    stamp(11)
    if o['stamp'] or o['diag'] >= 0:
        a('s_waitcnt vmcnt(0)'); stamp(12)
    a('s_branch L_exit' if o['stamp'] else 's_branch L_diag0' if o['diag'] >= 0 else 's_endpgm')

    (hSTP, hRK, hSLW, hSLW1, hSLR, hSLR1, hINA, hINA1, hFLO, hFL, hXC, hIN, hST0, hST1, hXG, hXG1, hUW, hY,
     hWS0, hWS1, hWDA, hP1R, hP1F, hP1W, hWT, hWW, hXS, hXW, hXR, hFPA, hF2, hFPR, hPFI, hEP, hPFD, hAMW) = range(2, 38)
    vD, vS, vG, vXF, vXN, vE, XP, WR, vWD, WDF, WF, DD, XA, XS, GT = 40, 48, 56, 72, 88, 104, 120, 128, 144, 152, 168, 184, 200, 204, 206
    YR = WF; XV = 210
    hO0, hO1, hF2R, hWD1 = hWS0, hWS1, hFLO, hXR
    a('L_helper:')
    ssum(sT2, (sK, 18), (sJ, 13), (sWI, 11), W_IN)
    a(f'''
    v_lshl_add_u32 {V(hIN)}, {V(vL)}, 4, {S(sT2)}
    ''')
    a(f'''
    s_barrier
    s_lshl_b32 {S(sT0)}, {S(sCH0)}, 1
    s_load_dword {S(sDS)}, {S(sDSK,2)}, {S(sT0)}
    s_getreg_b32 {S(sXCC)}, hwreg(HW_REG_XCC_ID, 0, 4)
    s_mov_b32 {S(sONES)}, 0x3f803f80
    s_mov_b32 {S(sHI)}, 0xffff0000
    s_mul_i32 {S(sT0)}, {S(sK)}, 43
    s_lshr_b32 {S(sA)}, {S(sT0)}, 3
    s_add_u32 {S(sT0)}, {S(sT0)}, 43
    s_lshr_b32 {S(sT0)}, {S(sT0)}, 3
    s_sub_u32 {S(sR)}, {S(sT0)}, {S(sA)}
    s_cmp_eq_u32 {S(sWI)}, 0
    s_cselect_b32 {S(sFIN)}, 1, 0
    s_lshl_b32 {S(sT0)}, {S(sK)}, 1
    s_lshl_b32 {S(sCM)}, 0x00030003, {S(sT0)}
    s_mov_b32 {S(sCM+1)}, {S(sCM)}
    s_lshr_b32 {S(sT1)}, {S(sWI)}, 1
    s_and_b32 {S(sT2)}, {S(sWI)}, 1
    ''')
    ssum(sT0, (2, 5), (sT1, 4), (sT2, 13), W_ST)
    a(f'v_mov_b32 {V(hSTP)}, {S(sT0)}')
    ssum(sT0, (2, 3), (sWI, 1))
    a(f's_sub_u32 {S(sT0)}, 0xffff, {S(sT0)}\nv_sub_u32 {V(hRK)}, {S(sT0)}, {V(T[4])}')
    hFLR = hXR + 200
    ssum(sT0, (sK, 7), (sWI, 5), W_FL)
    a(f'v_and_b32 {V(T[0])}, 7, {V(vL)}\nv_lshl_add_u32 {V(hFLR)}, {V(T[0])}, 2, {S(sT0)}')
    ssum(sT0, (sK, 7), (sJ, 2), W_FL)
    ssum(sT1, (sK, 5), (sWI, 11), W_ST + 12)
    ssum(sT2, (sWI, 11), W_ST)
    a(f'''
    v_mov_b32 {V(hFL)}, {S(sT0)}
    v_and_b32 {V(T[0])}, 7, {V(vL)}
    v_lshl_add_u32 {V(hXC)}, {V(T[0])}, 8, {S(sT1)}
    v_lshl_add_u32 {V(hST0)}, {V(vL)}, 4, {S(sT2)}
    v_add_u32 {V(hST1)}, 8192, {V(hST0)}
    ''')
    ssum(sT0, (sWI, 19), (sCH0, 1))
    ssum(sT1, (sWI, 10), U + 480)
    ssum(sT2, (sWI, 2), AM)
    a(f'''
    v_lshl_add_u32 {V(hXG)}, {V(vL)}, 12, {S(sT0)}
    v_add_u32 {V(hXG1)}, 0x40000, {V(hXG)}
    v_lshl_add_u32 {V(hUW)}, {V(vL)}, 3, {S(sT1)}
    v_mov_b32 {V(hAMW)}, {S(sT2)}
    ''')

    def late_setup():
        xpose_addrs(hSLW, hSLW1, hSLR, hSLR1, hINA, hINA1)
        slice_off(hO0, hO1)

    def ffn_setup():
        smul(sT0, sWI, 2 * YTS, YX)
        ssum(sT1, (sWI, 12), WL)
        a(f'''
        v_and_b32 {V(T[2])}, 3, {V(vL)}
        v_lshrrev_b32 {V(T[3])}, 2, {V(vL)}
        v_mul_u32_u24 {V(T[4])}, {YGS}, {V(T[2])}
        v_lshl_add_u32 {V(T[4])}, {V(T[3])}, 4, {V(T[4])}
        v_add_u32 {V(hY)}, {S(sT0)}, {V(T[4])}
        v_lshl_add_u32 {V(T[2])}, {V(T[2])}, 3, {S(sT1)}
        v_lshl_add_u32 {V(hWT)}, {V(T[3])}, 7, {V(T[2])}
        v_lshl_add_u32 {V(hWW)}, {V(vL)}, 4, {S(sT1)}
        ''')
        smul(sT0, sK, 24)
        smul(sT1, sWI, 6)
        a(f's_add_u32 {S(sT0)}, {S(sT0)}, {S(sT1)}')
        ssum(sT0, (sT0, 12), (sJ, 7), W_P1)
        a(f'''
        s_lshl_b32 {S(sT1)}, {S(sJ)}, 5
        v_lshrrev_b32 {V(T[2])}, 4, {V(vL)}
        v_lshl_add_u32 {V(hXS)}, {V(T[2])}, 3, {S(sT1)}
        v_lshrrev_b32 {V(T[2])}, 3, {V(vL)}
        v_and_b32 {V(T[3])}, 7, {V(vL)}
        v_lshl_add_u32 {V(T[3])}, {V(T[3])}, 4, {S(sT0)}
        v_lshl_add_u32 {V(hP1W)}, {V(T[2])}, 12, {V(T[3])}
        s_mul_i32 {S(sT0)}, {S(sWI)}, 3
        s_lshl_b32 {S(sT1)}, {S(sR)}, 1
        s_sub_u32 {S(sT1)}, {S(sT1)}, {S(sT0)}
        s_min_u32 {S(sT1)}, {S(sT1)}, 3
        s_lshl_b32 {S(sT1)}, {S(sT1)}, 4
        s_bfm_b64 {S(sMK,2)}, {S(sT1)}, 0
        ''')
        ssum(sT0, (sK, 9), (sWI, 7), (sJ, 2), W_F2)
        a(f'v_mov_b32 {V(hF2)}, {S(sT0)}\ns_lshr_b32 {S(sT1)}, {S(sJ)}, 3')
        ssum(sT0, (sK, 9), (sT1, 7), W_F2)
        a(f'v_and_b32 {V(T[0])}, 31, {V(vL)}\nv_lshl_add_u32 {V(hF2R)}, {V(T[0])}, 2, {S(sT0)}')
        if not o['gap']: late_setup()
        a(f'''
        s_lshl_b32 {S(sT0)}, {S(sR)}, 2
        s_lshl_b32 {S(sF8)}, {S(sA)}, 2
        s_add_u32 {S(sF8)}, {S(sF8)}, {S(sJ)}
        s_cmp_lt_u32 {S(sJ)}, {S(sT0)}
        s_cselect_b32 {S(sF8)}, {S(sF8)}, {S(sJ)}
        s_cselect_b32 {S(sPROD)}, 1, 0
        s_cselect_b64 {S(sMK+2,2)}, -1, 1
        ''')
        ssum(sT1, (sF8, 13), (sWI, 8))
        smul(sT2, sK, 24)
        a(f's_add_u32 {S(sT2)}, {S(sT2)}, {S(sJ)}')
        ssum(sT2, (sT2, 12), (sWI, 10), W_P1)
        a(f'''
        v_and_b32 {V(T[0])}, 15, {V(vL)}
        v_lshrrev_b32 {V(T[1])}, 4, {V(vL)}
        v_lshl_add_u32 {V(hWDA)}, {V(T[0])}, 4, {S(sT1)}
        v_lshl_add_u32 {V(hWDA)}, {V(T[1])}, 10, {V(hWDA)}
        v_add_u32 {V(hWD1)}, 4096, {V(hWDA)}
        v_lshl_add_u32 {V(hP1F)}, {V(vL)}, 7, {S(sT2)}
        ''')
        if o['s2h']:
            if o['wdc'] == 1: ssum(sT1, (sWI, 11), WD2)
            else: ssum(sT1, (sWI, 12), WL)
            ssum(sT0, (sF8, 5), W_FP)
            a(f'''
            s_lshl_b32 {S(sT3)}, {S(sWI)}, 10
            s_sub_u32 {S(sT2)}, {S(sT2)}, {S(sT3)}
            v_lshl_add_u32 {V(hP1R)}, {V(vL)}, 4, {S(sT2)}
            v_lshl_add_u32 {V(hPFI)}, {V(vL)}, 2, {S(sT1)}
            v_bfe_u32 {V(T[4])}, v0, 1, 7
            v_mul_u32_u24 {V(T[4])}, 6144, {V(T[4])}
            v_and_b32 {V(T[3])}, 1, {V(vL)}
            v_lshl_add_u32 {V(T[4])}, {V(T[3])}, 4, {V(T[4])}
            v_add_u32 {V(hFPA)}, {S(sT0)}, {V(T[4])}
            ''')

    NE = 0

    S1, S2, S3, S4 = vXF, vXF + 1, vXF + 2, vXF + 3

    def red32(regs):
        for m in ('row_shr:1', 'row_shr:2', 'row_shr:4', 'row_shr:8'):
            for r in regs: a(f'v_add_f32_dpp {V(r)}, {V(r)}, {V(r)} {m} row_mask:0xf bank_mask:0xf')
        for r in regs: a(f'v_add_f32_dpp {V(r)}, {V(r)}, {V(r)} row_bcast:15 row_mask:0xa bank_mask:0xf')
    for r in (S1, S2, S3, S4): a(f'v_mov_b32 {V(r)}, 0')
    t = T[0]; g = vE
    a(f"s_setprio {o['lnprio']}\nv_mov_b32 {V(T[3])}, {AM}\ns_waitcnt vmcnt(3)")
    stamp(1)
    for i in range(8):
        a(f'v_dot2_f32_bf16 {V(S1)}, {V(vD+i)}, {S(sONES)}, {V(S1)}')
        a(f'v_dot2_f32_bf16 {V(S2)}, {V(vD+i)}, {V(vD+i)}, {V(S2)}')
    a(f'''
    s_waitcnt vmcnt(2)
    v_readfirstlane_b32 {S(sTAG)}, {V(hEP)}
    s_add_u32 {S(sTAG)}, {S(sTAG)}, 16
    s_and_b32 {S(sTAG)}, {S(sTAG)}, -16
    s_or_b32 {S(sTAGX)}, {S(sTAG)}, {S(sXCC)}
    v_mov_b32 {V(g+3)}, {S(sTAGX)}
    s_mov_b64 exec, 1
    ds_write_b32 {V(T[3])}, {V(g+3)} offset:20
    s_mov_b64 exec, -1
    s_waitcnt vmcnt(0)
    ''')
    for i in range(8):
        a(f'v_dot2_f32_bf16 {V(S3)}, {V(vD+i)}, {V(vG+i)}, {V(S3)}')
        a(f'v_dot2_f32_bf16 {V(S4)}, {V(vG+i)}, {S(sONES)}, {V(S4)}')
    red32([S1, S2, S3, S4])
    a(f'''
    v_mul_f32 {V(S1)}, 0x3b000000, {V(S1)}
    v_mul_f32 {V(S2)}, 0x3b000000, {V(S2)}
    v_fma_f32 {V(S2)}, -{V(S1)}, {V(S1)}, {V(S2)}
    v_max_f32 {V(S2)}, 0, {V(S2)}
    v_cvt_pk_bf16_f32 {V(t)}, {V(S1)}, {V(S2)}
    v_and_b32 {V(t)}, {S(sHI)}, {V(t)}
    v_add_f32 {V(t)}, 0x3727c5ac, {V(t)}
    v_cvt_pk_bf16_f32 {V(t)}, {V(t)}, {V(t)}
    v_and_b32 {V(t)}, {S(sHI)}, {V(t)}
    v_sqrt_f32 {V(t)}, {V(t)}
    v_cvt_pk_bf16_f32 {V(g+1)}, {V(S1)}, {V(t)}
    v_and_b32 {V(t)}, {S(sHI)}, {V(g+1)}
    v_lshlrev_b32 {V(t+1)}, 16, {V(g+1)}
    v_rcp_f32 {V(t)}, {V(t)}
    v_fma_f32 {V(S3)}, -{V(t+1)}, {V(S4)}, {V(S3)}
    v_readlane_b32 {S(sT0)}, {V(g+1)}, 31
    v_mul_f32 {V(S3)}, {V(S3)}, {V(t)}
    v_cvt_pk_bf16_f32 {V(S3)}, {V(S3)}, {V(S3)}
    v_mov_b32 {V(g)}, {S(sT0)}
    v_ashrrev_i32 {V(t)}, 31, {V(S3)}
    v_or_b32 {V(t)}, 0x80000000, {V(t)}
    v_xor_b32 {V(t)}, {V(t)}, {V(S3)}
    v_and_or_b32 {V(t)}, {V(t)}, {S(sHI)}, {V(hRK)}
    v_readlane_b32 {S(sT0)}, {V(t)}, 31
    v_max_u32 {V(g+2)}, {S(sT0)}, {V(t)}
    ''')
    lane63()
    a(f'global_store_dwordx4 {V(hSTP)}, {V(g,4)}, {S(sWS,2)} sc1')
    alllanes()
    stamp(2)
    a(f'''
    s_cmp_lg_u32 {S(sWI)}, 0
    s_barrier
    s_cbranch_scc1 L_noflag
    s_mov_b64 exec, 1
    global_store_dword {V(hFL)}, {V(g+3)}, {S(sWS,2)}
    s_mov_b64 exec, -1
    L_noflag:
    s_setprio 0
    ''')
    ffn_setup()
    a('s_waitcnt lgkmcnt(0)')
    stamp(3)

    KQ = vS
    NWD = {0: 4, 1: 1, 2: 3}[o['wdc']]
    def wd_loads():
        if o['wdc'] != 1: a(f'''
        s_mov_b64 exec, {S(sMK+2,2)}
        global_load_dwordx4 {V(vWD,4)}, {V(hWDA)}, {S(sWD,2)}
        global_load_dwordx4 {V(vWD+4,4)}, {V(hWD1)}, {S(sWD,2)}
        ''')
        if o['wdc'] == 0: a(f'''
        s_and_b64 exec, {S(sMK+2,2)}, 0xff
        global_load_dword {V(hPFD)}, {V(hP1F)}, {S(sWS,2)} nt
        ''')
        a(f's_mov_b64 exec, 1\nglobal_load_dword {V(hEP)}, {V(hF2R)}, {S(sWS,2)} sc1\ns_mov_b64 exec, -1')

    def stat_loads():
        for i in range(4):
            a(f'global_load_dwordx4 {V(vG+4*i,4)}, {V((hST0, hST1)[i&1])}, {S(sWS,2)} offset:{1024*(i>>1)} sc1')

    def key_loads():
        for i in range(2):
            a(f'global_load_dwordx4 {V(KQ+4*i,4)}, {V(hKR)}, {S(sWS,2)} offset:{1024*i} sc1')

    if o['force_slow']: a('s_branch L_gather')
    spin_init()
    a(f'''
    L_flagspin:
    global_load_dword {V(T[1])}, {V(hFLR)}, {S(sWS,2)} sc1
    s_waitcnt vmcnt(0)
    v_cmp_ne_u32 vcc, {S(sTAGX)}, {V(T[1])}
    s_cbranch_vccz L_fast
    s_sub_u32 {S(sCNT)}, {S(sCNT)}, 1
    s_and_b32 {S(sT0)}, {S(sCNT)}, 7
    s_cbranch_scc1 L_flagspin
    global_load_dword {V(T[0])}, {V(hXC)}, {S(sWS,2)} sc1
    s_waitcnt vmcnt(0)
    v_xor_b32 {V(T[0])}, {S(sTAGX)}, {V(T[0])}
    v_add_u32 {V(T[0])}, -1, {V(T[0])}
    v_cmp_gt_u32 vcc, 15, {V(T[0])}
    s_cbranch_vccnz L_gather
    s_cmp_lg_u32 {S(sCNT)}, 0
    s_cbranch_scc1 L_flagspin
    ''')
    a('L_gather:')
    for r in range(8):
        a(f'global_load_dword {V(vD+r)}, {V((hXG, hXG1)[r>>2])}, {S(sX,2)} offset:{(r&3)*1024}')
    a(f'''
    s_branch L_stats
    L_fast:
    global_load_dwordx4 {V(vD,4)}, {V(hIN)}, {S(sWS,2)} sc1
    global_load_dwordx4 {V(vD+4,4)}, {V(hIN)}, {S(sWS,2)} offset:1024 sc1
    L_stats:
    ''')
    stamp(4)
    stat_loads()
    if o['gap']: late_setup()
    if o['wde']: wd_loads()
    a(f"s_waitcnt vmcnt({NWD if o['wde'] else 0})")
    spin_init()
    a(f'''
    L_statspin:
    v_xor_b32 {V(T[0])}, {S(sTAG)}, {V(vG+3)}
    v_xor_b32 {V(T[1])}, {S(sTAG)}, {V(vG+7)}
    v_xor_b32 {V(T[2])}, {S(sTAG)}, {V(vG+11)}
    v_xor_b32 {V(T[3])}, {S(sTAG)}, {V(vG+15)}
    v_or3_b32 {V(T[1])}, {V(T[0])}, {V(T[1])}, {V(T[3])}
    v_or_b32 {V(T[1])}, {V(T[1])}, {V(T[2])}
    v_cmp_lt_u32 vcc, 15, {V(T[1])}
    s_cbranch_vccz L_statok
    ''')
    if o['backoff']: a(f"s_sleep {o['backoff']}")
    stat_loads()
    a('s_waitcnt vmcnt(0)')
    spin_next('L_statspin')
    a('L_statok:')
    stamp(7)
    a(f'''
    v_cmp_ne_u32 vcc, {S(sXCC)}, {V(T[0])}
    v_cmp_ne_u32 {S(sT2,2)}, {S(sXCC)}, {V(T[2])}
    v_max3_u32 {V(T[8])}, {V(vG+2)}, {V(vG+6)}, {V(vG+10)}
    s_or_b64 vcc, vcc, {S(sT2,2)}
    s_and_b64 vcc, vcc, {S(sCM,2)}
    v_max_u32 {V(T[8])}, {V(T[8])}, {V(vG+14)}
    {'s_nop 0' if o['force_bad'] else 's_cbranch_vccz L_local'}
    v_mov_b32 {V(T[0])}, {AM}
    v_mov_b32 {V(T[1])}, 1
    ds_write_b32 {V(T[0])}, {V(T[1])} offset:16
    L_local:
    ''')
    key = T[8]
    rho = [T[1], T[3], T[5], T[7]]; mu = [T[0], T[2], T[4], T[6]]
    for tau in range(2):
        stq = [vG + 8 * tau + i for i in (0, 1, 4, 5)]
        for r in range(4): a(f'v_and_b32 {V(rho[r])}, {S(sHI)}, {V(stq[r])}')
        for r in range(4):
            a(f'v_rcp_f32 {V(rho[r])}, {V(rho[r])}\nv_lshlrev_b32 {V(mu[r])}, 16, {V(stq[r])}')
        for r in range(4):
            e = 8 * tau + 2 * r
            a(f'''
            v_mul_f32_e64 {V(mu[r])}, -{V(mu[r])}, {V(rho[r])}
            v_lshlrev_b32 {V(vXF+e)}, 16, {V(vD+4*tau+r)}
            v_and_b32 {V(vXF+e+1)}, {S(sHI)}, {V(vD+4*tau+r)}
            ''')
            if r < 3: a(f'v_max_u32_dpp {V(key)}, {V(key)}, {V(key)} {kred[3*tau+r]} bank_mask:0xf')
            for c in range(2): a(f'v_fma_f32 {V(vXN+e+c)}, {V(vXF+e+c)}, {V(rho[r])}, {V(mu[r])}')
        for c in range(2):
            x = XP + 4 * tau + 2 * c; e = 8 * tau + c
            a(f'v_cvt_pk_bf16_f32 {V(x)}, {V(vXN+e)}, {V(vXN+e+2)}\nv_cvt_pk_bf16_f32 {V(x+1)}, {V(vXN+e+4)}, {V(vXN+e+6)}')
        for c in range(2):
            a(f'ds_write_b64 {V(hUW)}, {V(XP+4*tau+2*c,2)} offset:{c*US + 512*tau}')
    lane63()
    a(f'ds_write_b32 {V(hAMW)}, {V(key)}')
    alllanes()
    a('s_waitcnt lgkmcnt(0)')
    stamp(8)
    a(f"s_barrier\ns_setprio {o['ffnprio']}")
    read_idx()
    a(f's_lshl_b32 {S(sT0)}, {S(sIDX)}, 10\nv_add_u32 {V(T[0])}, {S(sT0)}, {V(hXS)}')
    stat_addr(T[1])
    a(f'global_load_dwordx2 {V(XS,2)}, {V(T[0])}, {S(sX,2)}\nglobal_load_dword {V(XV+1)}, {V(T[1])}, {S(sWS,2)} sc1')
    ssum(sT0, (sIDX, 10), (sCH0, 1))
    a(f'v_mov_b32 {V(T[2])}, {S(sT0)}\ns_mov_b64 exec, 1\nglobal_load_dword {V(XV)}, {V(T[2])}, {S(sX,2)}')
    if o['wde']: alllanes()
    else: wd_loads()
    for t_ in range(6): a(f'ds_read_b64_tr_b16 {V(WF+2*t_,2)}, {V(hWT)} offset:{2048*(t_//3) + 32*(t_%3)}')
    a('s_setprio 0')
    a(f'L_h_pre:\ns_lshl_b32 {S(sDV)}, {S(sDS)}, 16\ns_and_b32 {S(sDV+1)}, {S(sDS)}, {S(sHI)}')

    def ge(tau, h):
        el = [8 * tau + 4 * h + i for i in range(4)]
        for i, e in enumerate(el if o['gernd'] else ()):
            src = XP + 4 * tau + 2 * (i & 1) + h
            if i >> 1: a(f'v_and_b32 {V(vXN+e)}, {S(sHI)}, {V(src)}')
            else:      a(f'v_lshlrev_b32 {V(vXN+e)}, 16, {V(src)}')
        for i, e in enumerate(el): a(f'v_mul_f32 {V(GT+i)}, 0xbfb8aa3b, {V(vXN+e)}')
        for i in range(4): a(f'v_exp_f32 {V(GT+i)}, {V(GT+i)}')
        for i, e in enumerate(el):
            a(f'v_mul_f32 {V(vE+e)}, {S(sDV+(i&1))}, {V(vXN+e)}\nv_add_f32 {V(GT+i)}, 1.0, {V(GT+i)}')
        for i in range(4): a(f'v_rcp_f32 {V(GT+i)}, {V(GT+i)}')
        for i, e in enumerate(el): a(f'v_mul_f32 {V(vXN+e)}, {V(vXN+e)}, {V(GT+i)}')
        for i, e in enumerate(el): a(f'v_fma_f32 {V(vE+e)}, {V(vE+e)}, {V(vXN+e)}, {V(vXF+e)}')
    parts = [(0, 0), (0, 1), (1, 0), (1, 1)]
    for pt in parts[:o['gefirst']]: ge(*pt)
    gq = T[4]
    def x_part():
        X = [T[8 + i] for i in range(4)]
        a(f'''
        v_and_b32 {V(T[12])}, {S(sHI)}, {V(XV+1)}
        v_lshlrev_b32 {V(T[14])}, 16, {V(XV+1)}
        v_rcp_f32 {V(T[12])}, {V(T[12])}
        v_lshlrev_b32 {V(X[0])}, 16, {V(XS)}
        v_and_b32 {V(X[1])}, {S(sHI)}, {V(XS)}
        v_lshlrev_b32 {V(X[2])}, 16, {V(XS+1)}
        v_and_b32 {V(X[3])}, {S(sHI)}, {V(XS+1)}
        ''')
        for i in range(4): a(f'v_sub_f32 {V(X[i])}, {V(X[i])}, {V(T[14])}')
        rnd2(X[0], X[1], T[1]); rnd2(X[2], X[3], T[2])
        for i in range(4): a(f'v_mul_f32 {V(X[i])}, {V(X[i])}, {V(T[12])}')
        a(f'''
        v_cvt_pk_bf16_f32 {V(XA)}, {V(X[0])}, {V(X[1])}
        v_cvt_pk_bf16_f32 {V(XA+1)}, {V(X[2])}, {V(X[3])}
        v_mov_b32 {V(gq+2)}, {S(sTAG)}
        v_mov_b32 {V(gq+3)}, 0
        ''')
    a(f"s_setprio {o['ffnprio']}")
    a(f"s_waitcnt vmcnt({0 if o['wde'] else NWD})"); stamp(5)
    a(f's_mov_b64 exec, 1\nds_write_b64 {V(T[9])}, {V(XV,2)} offset:48\ns_mov_b64 exec, -1')
    x_part()
    a('s_waitcnt lgkmcnt(0)')
    DQ = [184, 188, 192, 196, 228, 232]
    for t_ in range(6): a(f'v_mfma_f32_16x16x16_bf16 {V(DQ[t_],4)}, {V(XA,2)}, {V(WF+2*t_,2)}, 0')
    a(f'''
    s_cmp_eq_u32 {S(sBAD)}, 0
    v_mov_b32 {V(gq)}, {V(DQ[0])}
    v_mov_b32 {V(gq+1)}, {V(DQ[3])}
    v_mov_b32_dpp {V(gq)}, {V(DQ[1])} quad_perm:[0,1,2,3] row_mask:0x2 bank_mask:0xf
    v_mov_b32_dpp {V(gq+1)}, {V(DQ[4])} quad_perm:[0,1,2,3] row_mask:0x2 bank_mask:0xf
    v_mov_b32_dpp {V(gq)}, {V(DQ[2])} quad_perm:[0,1,2,3] row_mask:0x4 bank_mask:0xf
    v_mov_b32_dpp {V(gq+1)}, {V(DQ[5])} quad_perm:[0,1,2,3] row_mask:0x4 bank_mask:0xf
    s_mov_b64 exec, {S(sMK,2)}
    s_cbranch_scc0 L_p1far
    global_store_dwordx4 {V(hP1W)}, {V(gq,4)}, {S(sWS,2)}
    s_branch L_p1done
    L_p1far:
    global_store_dwordx4 {V(hP1W)}, {V(gq,4)}, {S(sWS,2)} sc1
    L_p1done:
    s_mov_b64 exec, -1
    ''')
    stamp(6)
    def wd_put(n): a(f's_waitcnt vmcnt({n})\nds_write_b128 {V(hWW)}, {V(vWD,4)}\nds_write_b128 {V(hWW)}, {V(vWD+4,4)} offset:1024')
    GM = min(4, o['gefirst'] + o['gemid'])
    if o['gemid']:
        a('s_setprio 0')
        for pt in parts[o['gefirst']:GM]: ge(*pt)
        a(f"s_setprio {o['ffnprio']}")
    if o['s2h']:
        a(f's_cmp_eq_u32 {S(sPROD)}, 0\ns_cbranch_scc1 L_h_ge')
        stage2(WR, vWD, WDF, hPFI, hP1R, hFPA, None if o['wdc'] == 1 else (lambda: wd_put(NWD + 3)))
        stamp(10)
    a('L_h_ge:\ns_setprio 0')
    for pt in parts[GM:]: ge(*pt)
    if not o['s2h']:
        wd_put(3); a('s_waitcnt lgkmcnt(0)')
    OLD = vG + 8
    if o['dpoll']:
        a(f'''
        ds_read2_b32 {V(OLD,2)}, {V(hSLR)} offset0:0 offset1:32
        ds_read2_b32 {V(OLD+2,2)}, {V(hSLR)} offset0:64 offset1:96
        ds_read2_b32 {V(OLD+4,2)}, {V(hSLR1)} offset0:0 offset1:32
        ds_read2_b32 {V(OLD+6,2)}, {V(hSLR1)} offset0:64 offset1:96
        ''')
    stamp(9)
    a('s_barrier')
    for tau in range(2):
        for w in range(4): a(f'ds_read_b128 {V(YR+16*tau+4*w,4)}, {V(hY)} offset:{w*YWS + tau*YTS}')

    def out_tile(tau):
        a(f's_waitcnt lgkmcnt({4 - 4*tau})')
        for hf in range(2):
            for r in range(4):
                for c in range(2):
                    e = 8 * tau + 2 * r + c
                    a(f'v_fma_f32 {V(vE+e)}, {V(YR+16*tau+4*(2*hf+c)+r)}, {V(vXN+e)}, {V(vE+e)}')
        for r in range(4):
            a(f'v_cvt_pk_bf16_f32 {V(vD+4*tau+r)}, {V(vE+8*tau+2*r)}, {V(vE+8*tau+2*r+1)}')

    a(f's_cmp_lg_u32 {S(sBAD)}, 0\ns_cbranch_scc1 L_h_direct')
    for tau in range(2):
        out_tile(tau)
        if o['dpoll']:
            for r in range(4): a(f'v_not_b32 {V(vD+4*tau+r)}, {V(vD+4*tau+r)}')
        a(f'global_store_dwordx4 {V(hIN)}, {V(vD+4*tau,4)}, {S(sWS,2)} offset:{1024*tau}')
    fstamp(1)
    a('s_barrier')
    ssum(sT0, (sJ, 6), (sWI, 4))
    a(f'''
    s_sub_u32 {S(sT0)}, {S(sIDX)}, {S(sT0)}
    s_lshl_b32 {S(sT1)}, {S(sT0)}, 3
    s_lshl_b64 {S(sT2,2)}, 0xff, {S(sT1)}
    s_not_b64 {S(sT2,2)}, {S(sT2,2)}
    s_lshr_b32 {S(sT0)}, {S(sT0)}, 3
    s_cmp_eq_u32 {S(sT0)}, 0
    s_cselect_b64 {S(sMK+4,2)}, {S(sT2,2)}, -1
    s_cmp_eq_u32 {S(sT0)}, 1
    s_cselect_b64 {S(sMK+6,2)}, {S(sT2,2)}, -1
    ''')
    if o['dpoll']:
        def g_loads(): a(f'global_load_dwordx4 {V(vG,4)}, {V(hINA)}, {S(sWS,2)} sc1\nglobal_load_dwordx4 {V(vG+4,4)}, {V(hINA1)}, {S(sWS,2)} sc1')
        g_loads()
        a(f'''
        v_mov_b32 {V(T[0])}, {S(sTAGX)}
        s_mov_b64 exec, 1
        s_waitcnt vmcnt(2)
        global_store_dword {V(hF2)}, {V(T[0])}, {S(sWS,2)}
        s_mov_b64 exec, -1
        s_waitcnt vmcnt(1)
        ''')
        fstamp(2)
        spin_init()
        a('L_dspin:')
        for i in range(8): a(f'v_xor_b32 {V(T[i])}, {V(vG+i)}, {V(OLD+i)}')
        a(f'''
        v_min3_u32 {V(T[0])}, {V(T[0])}, {V(T[1])}, {V(T[2])}
        v_min3_u32 {V(T[3])}, {V(T[3])}, {V(T[4])}, {V(T[5])}
        v_min3_u32 {V(T[0])}, {V(T[0])}, {V(T[6])}, {V(T[7])}
        v_min_u32 {V(T[0])}, {V(T[0])}, {V(T[3])}
        v_cmp_eq_u32 vcc, 0, {V(T[0])}
        s_cbranch_vccz L_dok
        s_sub_u32 {S(sCNT)}, {S(sCNT)}, 1
        s_and_b32 {S(sT0)}, {S(sCNT)}, 7
        s_cbranch_scc1 L_dmore
        global_load_dword {V(T[0])}, {V(hF2R)}, {S(sWS,2)} sc1
        s_waitcnt vmcnt(0)
        v_cmp_ne_u32 vcc, {S(sTAGX)}, {V(T[0])}
        s_cbranch_vccz L_dlast
        s_cmp_eq_u32 {S(sCNT)}, 0
        s_cbranch_scc1 L_dlast
        L_dmore:
        ''')
        g_loads()
        a('s_waitcnt vmcnt(0)\ns_branch L_dspin\nL_dlast:')
        g_loads()
        a('s_waitcnt vmcnt(0)\nL_dok:')
        fstamp(3)
        for i in range(8): a(f'v_not_b32 {V(vG+i)}, {V(vG+i)}')
        a(f'''
        v_mov_b32 {V(T[1])}, {AM}
        s_mov_b64 exec, 1
        ds_write_b32 {V(T[1])}, {V(T[1])} offset:40
        s_mov_b64 exec, -1
        ds_write2_b32 {V(hSLR)}, {V(vG)}, {V(vG+1)} offset0:0 offset1:32
        ds_write2_b32 {V(hSLR)}, {V(vG+2)}, {V(vG+3)} offset0:64 offset1:96
        ds_write2_b32 {V(hSLR1)}, {V(vG+4)}, {V(vG+5)} offset0:0 offset1:32
        ds_write2_b32 {V(hSLR1)}, {V(vG+6)}, {V(vG+7)} offset0:64 offset1:96
        ''')
    else:
        a(f'''
        v_mov_b32 {V(T[0])}, {S(sTAGX)}
        s_mov_b64 exec, 1
        s_waitcnt vmcnt(0)
        global_store_dword {V(hF2)}, {V(T[0])}, {S(sWS,2)}
        s_mov_b64 exec, -1
        ''')
        fstamp(2)
        spin_init()
        if o['f2s']:
            a(f'L_f2spin:\ns_load_dwordx16 {S(sFL,16)}, {S(sFB,2)}, 0x0 glc\ns_load_dwordx16 {S(sFL+16,16)}, {S(sFB,2)}, 0x40 glc\ns_waitcnt lgkmcnt(0)')
            sflag_check(32, 'L_f2ok')
        else: a(f'''
        L_f2spin:
        global_load_dword {V(T[0])}, {V(hF2R)}, {S(sWS,2)} sc1
        s_waitcnt vmcnt(0)
        v_cmp_ne_u32 vcc, {S(sTAGX)}, {V(T[0])}
        s_cbranch_vccz L_f2ok
        ''')
        spin_next('L_f2spin')
        a('L_f2ok:')
        fstamp(3)
        a(f'''
        global_load_dwordx4 {V(vG,4)}, {V(hINA)}, {S(sWS,2)} sc1
        global_load_dwordx4 {V(vG+4,4)}, {V(hINA1)}, {S(sWS,2)} sc1
        v_mov_b32 {V(T[1])}, {AM}
        s_mov_b64 exec, 1
        ds_write_b32 {V(T[1])}, {V(T[1])} offset:40
        s_mov_b64 exec, -1
        s_waitcnt vmcnt(1)
        ds_write2_b32 {V(hSLR)}, {V(vG)}, {V(vG+1)} offset0:0 offset1:32
        ds_write2_b32 {V(hSLR)}, {V(vG+2)}, {V(vG+3)} offset0:64 offset1:96
        s_waitcnt vmcnt(0)
        ''')
        fstamp(4)
        a(f'''
        ds_write2_b32 {V(hSLR1)}, {V(vG+4)}, {V(vG+5)} offset0:0 offset1:32
        ds_write2_b32 {V(hSLR1)}, {V(vG+6)}, {V(vG+7)} offset0:64 offset1:96
        ''')
    a(f'''
    ds_read_b128 {V(vS,4)}, {V(hSLW)}
    ds_read_b128 {V(vS+4,4)}, {V(hSLW1)} offset:1024
    s_mov_b64 exec, {S(sMK+4,2)}
    s_waitcnt lgkmcnt(1)
    global_store_dwordx4 {V(hO0)}, {V(vS,4)}, {S(sOUT,2)}
    s_mov_b64 exec, {S(sMK+6,2)}
    s_waitcnt lgkmcnt(0)
    global_store_dwordx4 {V(hO1)}, {V(vS+4,4)}, {S(sOUT,2)}
    s_mov_b64 exec, -1
    ''')
    a(f'''
    s_branch L_h_done
    L_h_direct:
    s_lshr_b32 {S(sT0)}, {S(sIDX)}, 2
    s_lshl_b64 {S(sT2,2)}, 1, {S(sT0)}
    s_not_b64 {S(sT2,2)}, {S(sT2,2)}
    s_lshr_b32 {S(sT0)}, {S(sIDX)}, 8
    s_lshl_b32 {S(sT0)}, {S(sT0)}, 2
    s_and_b32 {S(sT1)}, {S(sIDX)}, 3
    s_add_u32 {S(sT0)}, {S(sT0)}, {S(sT1)}
    s_lshl_b32 {S(sT1)}, {S(sWI)}, 3
    s_sub_u32 {S(sT0)}, {S(sT0)}, {S(sT1)}
    ''')
    for tau in range(2):
        out_tile(tau)
        for r in range(4):
            a(f'''
            s_cmp_eq_u32 {S(sT0)}, {4*tau + r}
            s_cselect_b64 exec, {S(sT2,2)}, -1
            global_store_dword {V((hXG, hXG1)[tau])}, {V(vD+4*tau+r)}, {S(sOUT,2)} offset:{r*1024}
            ''')
        alllanes()
    a('L_h_done:')
    if o['stamp'] or o['diag'] >= 0:
        stamp(11)
        a('s_waitcnt vmcnt(0)')
        stamp(12)
    if o['diag'] >= 0:
        a('''
        L_diag0:
        s_memrealtime s[100:101]
        s_sub_u32 s98, s98, s96
        s_min_u32 s98, s98, 2000
        s_lshl_b32 s98, s98, 2
        s_waitcnt lgkmcnt(0)
        s_add_u32 s98, s98, s100
        L_diag:
        s_memrealtime s[100:101]
        s_waitcnt lgkmcnt(0)
        s_sub_u32 s100, s100, s98
        s_cmp_lt_i32 s100, 0
        s_cbranch_scc1 L_diag
        ''')
    a('L_exit:')
    if o['stamp']:
        a(f'global_store_dword {V(vSTA)}, v237, {S(sWS,2)}')
    a('L_end:\ns_endpgm')
    a.raw('''.section .rodata,"a"
.p2align 6
.amdhsa_kernel %s_kernel
  .amdhsa_next_free_vgpr 256
  .amdhsa_next_free_sgpr 102
  .amdhsa_accum_offset 256
  .amdhsa_group_segment_fixed_size 0
  .amdhsa_kernarg_size 136
  .amdhsa_user_sgpr_count 2
  .amdhsa_user_sgpr_kernarg_segment_ptr 1
  .amdhsa_system_sgpr_workgroup_id_x 1
.end_amdhsa_kernel''' % KN)
    return a.text()


if __name__ == '__main__':
    out = sys.argv[1]
    opt = {}
    for kv in sys.argv[2:]:
        k, val = kv.split('='); opt[k] = int(val, 0)
    open(out, 'w').write(generate(**opt))
```

```python
import sys
from asmlib import *

KN = 'recurrent_scan__ssm_conv_s4__moe_arch_mod__prompt'

DEFAULTS = dict(stamp=0, cyc=0, diag=-1, spinmax=1 << 16, force_slow=0, force_bad=0, cpfn=4,
                pf=2, dsg=4, nb=6, maxout=12, group=4, minfly=4, ffnprio=2, lnprio=2, wpos=2, keylate=1, keyprio=2, backoff=0, gefirst=0, s2h=1, wat=0, gemid=0, wde=1, dpoll=1, wdc=0, gap=1, polllate=1, ont=0, int_=0, publate=0, fine=0, b7=0, p1nt=1, innt=1, f2s=0, gernd=0, wdat=70, s2prio=0, b6=1, jf=0, eplast=1)

RS = 1040
STAGE = 0
YX = 0; YWS = 10240; YTS = 1280; YGS = 320
R4 = 55168; R4S = 18560; CAS = 288
U = 92288; US = 4576
TAB = 101440; TS = 1552
PD = 104544
WL = 110720
SL = 127104
AM = 135296
XP_ = 135360
WD2 = 136448
LDS_BYTES = 144640
assert SL % 128 == 0 and R4 % 16 == 0 and U % 16 == 0 and PD % 16 == 0 and AM % 16 == 0
W_ST = 0x1000; W_FL = 0x6000; W_F2 = 0x7000; W_KY = 0x8000; W_FP = 0x10000; W_P1 = 0x300000; W_IN = 0x100000; W_STAMP = 0x800000

sX, sARE, sAIM, sBRE, sBIM, sCRE, sCIM, sLDT = 4, 6, 8, 10, 12, 14, 16, 18
sDSK, sWR, sWG, sWU, sWD, sOUT, sDBG, sWS = 20, 24, 26, 28, 30, 32, 34, 36
sW, sK, sJ, sCH0, sXCC, sTAG, sTAGX, sWI = 38, 39, 40, 41, 42, 43, 44, 45
sBAD, sFIN, sDS, sONES, sF8, sPROD, sIDX, sKEY, sCNT, sHI = 46, 47, 48, 49, 50, 51, 52, 53, 54, 55
sA, sR, sT0, sT1, sT2, sT3 = 56, 57, 58, 59, 60, 61
sP1, sHALF = 62, 63
sM = 64
sDV = 22
sSTP = 96
sCM = 6; sMK = 8; sFA = 16; sFB = 18
sFL = 64

T = [240 + i for i in range(16)]
vL = 1


def generate(**opt):
    o = dict(DEFAULTS); o.update(opt)
    a = Asm()
    V = v; S = s
    CLK = 's_memtime' if o['cyc'] else 's_memrealtime'

    def fstamp(i):
        if o['fine']: stamp(i, True)

    def stamp(i, force=False):
        if o['fine'] and not force and i in (1,2,3,4,5,6,7): return
        if o['diag'] == i: a('s_memrealtime s[98:99]\ns_waitcnt lgkmcnt(0)')
        if not o['stamp'] or (o['stamp'] == 2 and i != 12): return
        a(f'{CLK} {S(sSTP,2)}\ns_waitcnt lgkmcnt(0)\nv_writelane_b32 v237, {S(sSTP)}, {i}')

    def cmul(d, x, y):
        a(f'v_pk_mul_f32 {V(d,2)}, {V(x,2)}, {V(y,2)} op_sel:[1,1] op_sel_hi:[1,0]')
        a(f'v_pk_fma_f32 {V(d,2)}, {V(x,2)}, {V(y,2)}, {V(d,2)} op_sel:[0,0,0] op_sel_hi:[0,1,1] neg_lo:[0,0,1]')

    def lane63(): a('s_mov_b32 exec_lo, 0\ns_mov_b32 exec_hi, 0x80000000')
    def alllanes(): a('s_mov_b64 exec, -1')
    def spin_init(): a(f"s_mov_b32 {S(sCNT)}, {o['spinmax']}")
    def spin_next(lbl): a(f's_sub_u32 {S(sCNT)}, {S(sCNT)}, 1\ns_cmp_lg_u32 {S(sCNT)}, 0\ns_cbranch_scc1 {lbl}')

    def ssum(dst, *terms):
        first = True; const = 0
        for t in terms:
            if isinstance(t, int): const += t; continue
            r, sh = t
            if first:
                if sh: a(f's_lshl_b32 {S(dst)}, {S(r)}, {sh}')
                elif r != dst: a(f's_mov_b32 {S(dst)}, {S(r)}')
                first = False
            elif sh:
                a(f's_lshl_b32 {S(sT3)}, {S(r)}, {sh}\ns_add_u32 {S(dst)}, {S(dst)}, {S(sT3)}')
            else:
                a(f's_add_u32 {S(dst)}, {S(dst)}, {S(r)}')
        if const: a(f's_add_u32 {S(dst)}, {S(dst)}, {const}')

    def smul(dst, r, k, const=0):
        a(f's_mul_i32 {S(dst)}, {S(r)}, {k}')
        if const: a(f's_add_u32 {S(dst)}, {S(dst)}, {const}')

    def rnd2(r0, r1, t):
        a(f'v_cvt_pk_bf16_f32 {V(t)}, {V(r0)}, {V(r1)}\nv_lshlrev_b32 {V(r0)}, 16, {V(t)}\nv_and_b32 {V(r1)}, {S(sHI)}, {V(t)}')

    def xpose_addrs(b128a, b128b, b32a, b32b, ga, gb):
        ssum(sT0, (sWI, 11), SL)
        ssum(sT1, (sK, 18), (sJ, 8), (sWI, 6), W_IN)
        a(f'''
        v_lshrrev_b32 {V(T[0])}, 3, {V(vL)}
        v_and_b32 {V(T[1])}, 7, {V(vL)}
        v_lshrrev_b32 {V(T[2])}, 5, {V(vL)}
        v_lshlrev_b32 {V(T[2])}, 1, {V(T[2])}
        v_xor_b32 {V(T[2])}, {V(T[2])}, {V(T[1])}
        v_lshl_add_u32 {V(T[2])}, {V(T[2])}, 4, {S(sT0)}
        v_lshl_add_u32 {V(b128a)}, {V(T[0])}, 7, {V(T[2])}
        v_xor_b32 {V(b128b)}, 64, {V(b128a)}
        v_and_b32 {V(T[0])}, 3, {V(vL)}
        v_lshrrev_b32 {V(T[1])}, 4, {V(vL)}
        v_lshlrev_b32 {V(T[2])}, 1, {V(T[0])}
        v_xor_b32 {V(T[1])}, {V(T[1])}, {V(T[2])}
        v_lshl_add_u32 {V(T[1])}, {V(T[1])}, 4, {S(sT0)}
        v_lshl_add_u32 {V(T[1])}, {V(T[0])}, 9, {V(T[1])}
        v_bfe_u32 {V(T[2])}, {V(vL)}, 2, 2
        v_lshl_add_u32 {V(b32a)}, {V(T[2])}, 2, {V(T[1])}
        v_xor_b32 {V(b32b)}, 64, {V(b32a)}
        v_lshl_add_u32 {V(T[0])}, {V(T[0])}, 4, {S(sT1)}
        v_lshrrev_b32 {V(T[1])}, 2, {V(vL)}
        v_lshl_add_u32 {V(ga)}, {V(T[1])}, 13, {V(T[0])}
        v_add_u32 {V(gb)}, 0x20000, {V(ga)}
        ''')

    def slice_off(r0, r1):
        ssum(sT0, (sJ, 16), (sWI, 14), (sK, 7))
        a(f'''
        v_lshrrev_b32 {V(T[6])}, 3, {V(vL)}
        v_and_b32 {V(T[7])}, 7, {V(vL)}
        v_lshl_add_u32 {V(T[7])}, {V(T[7])}, 4, {S(sT0)}
        v_lshl_add_u32 {V(r0)}, {V(T[6])}, 10, {V(T[7])}
        v_add_u32 {V(r1)}, 8192, {V(r0)}
        ''')

    def read_idx():
        a(f'''
        v_mov_b32 {V(T[9])}, {AM}
        ds_read_b128 {V(T[0],4)}, {V(T[9])}
        ds_read_b64 {V(T[4],2)}, {V(T[9])} offset:16
        s_waitcnt lgkmcnt(0)
        v_max3_u32 {V(T[0])}, {V(T[0])}, {V(T[1])}, {V(T[2])}
        v_readfirstlane_b32 {S(sBAD)}, {V(T[4])}
        v_max_u32 {V(T[0])}, {V(T[0])}, {V(T[3])}
        v_readfirstlane_b32 {S(sTAGX)}, {V(T[5])}
        v_readfirstlane_b32 {S(sKEY)}, {V(T[0])}
        s_andn2_b32 {S(sIDX)}, 2047, {S(sKEY)}
        ''')

    def stat_addr(dst):
        a(f's_lshr_b32 {S(sT0)}, {S(sIDX)}, 2\ns_bfe_u32 {S(sT1)}, {S(sIDX)}, 0x10001\ns_and_b32 {S(sT2)}, {S(sIDX)}, 1')
        ssum(sT0, (sT0, 4), (sT1, 13), (sT2, 2), W_ST)
        a(f'v_mov_b32 {V(dst)}, {S(sT0)}')

    kred = ['row_shr:1 row_mask:0xf', 'row_shr:2 row_mask:0xf', 'row_shr:4 row_mask:0xf', 'row_shr:8 row_mask:0xf',
            'row_bcast:15 row_mask:0xa', 'row_bcast:31 row_mask:0xc']

    def stage2(PQ, WD, WDF, WDR, P1R, FPA, pre=None):
        gq = T[4]
        def p1_loads():
            for i in range(4): a(f'global_load_dwordx4 {V(PQ+4*i,4)}, {V(P1R)}, {S(sWS,2)} offset:{1024*i} sc1')
        p1_loads()
        if pre: pre()
        for i in range(4): a(f'ds_read2st64_b32 {V(WD+2*i,2)}, {V(WDR)} offset0:{2*i} offset1:{2*i+1}')
        a(f's_waitcnt lgkmcnt(0)\nv_mov_b32 {V(gq+2)}, {S(sTAG)}\nv_mov_b32 {V(gq+3)}, 0')
        for i in range(8):
            a(f'v_lshlrev_b32 {V(WDF+2*i)}, 16, {V(WD+i)}\nv_and_b32 {V(WDF+2*i+1)}, {S(sHI)}, {V(WD+i)}')
        spin_init()
        a('L_hspin:\ns_waitcnt vmcnt(0)')
        for i in range(4): a(f'v_xor_b32 {V(T[8+i])}, {S(sTAG)}, {V(PQ+4*i+2)}')
        for e in range(2): a(f'v_add_f32 {V(T[e])}, {V(PQ+e)}, {V(PQ+4+e)}')
        a(f'v_or3_b32 {V(T[8])}, {V(T[8])}, {V(T[9])}, {V(T[10])}')
        for e in range(2): a(f'v_add_f32 {V(T[2+e])}, {V(PQ+8+e)}, {V(PQ+12+e)}')
        a(f'v_or_b32 {V(T[8])}, {V(T[8])}, {V(T[11])}')
        for e in range(2): a(f'v_add_f32 {V(T[e])}, {V(T[e])}, {V(T[2+e])}')
        a(f'v_cmp_ne_u32 vcc, 0, {V(T[8])}\ns_cbranch_vccz L_hok')
        p1_loads()
        spin_next('L_hspin')
        a('s_waitcnt vmcnt(0)\nL_hok:')
        for e in range(2): a(f'v_add_f32_dpp {V(T[e])}, {V(T[e])}, {V(T[e])} row_ror:8 row_mask:0xf bank_mask:0xf')
        for pl in ('v_permlane16_swap_b32', 'v_permlane32_swap_b32'):
            for e in range(2): a(f'v_mov_b32 {V(T[2+e])}, {V(T[e])}')
            for e in range(2): a(f'{pl} {V(T[e])}, {V(T[2+e])}')
            for e in range(2): a(f'v_add_f32 {V(T[e])}, {V(T[e])}, {V(T[2+e])}')
        a(f'''
        v_cvt_pk_bf16_f32 {V(T[2])}, {V(T[0])}, {V(T[1])}
        v_lshlrev_b32 {V(T[0])}, 16, {V(T[2])}
        v_mul_f32 {V(T[1])}, 0xbfb8aa3b, {V(T[0])}
        v_exp_f32 {V(T[1])}, {V(T[1])}
        v_and_b32 {V(T[2])}, {S(sHI)}, {V(T[2])}
        v_add_f32 {V(T[1])}, 1.0, {V(T[1])}
        v_rcp_f32 {V(T[1])}, {V(T[1])}
        v_mul_f32 {V(T[1])}, {V(T[0])}, {V(T[1])}
        v_cvt_pk_bf16_f32 {V(T[1])}, {V(T[1])}, {V(T[1])}
        v_and_b32 {V(T[1])}, {S(sHI)}, {V(T[1])}
        v_mul_f32 {V(T[1])}, {V(T[1])}, {V(T[2])}
        v_cvt_pk_bf16_f32 {V(T[1])}, {V(T[1])}, {V(T[1])}
        v_and_b32 {V(T[1])}, {S(sHI)}, {V(T[1])}
        ''')
        for i in range(8):
            for e in range(2):
                a(f"{'v_mul_f32_dpp' if i == 0 else 'v_fmac_f32_dpp'} {V(gq+e)}, {V(T[1])}, {V(WDF+2*i+e)} row_newbcast:{i} row_mask:0xf bank_mask:0xf")
        a(f'global_store_dwordx4 {V(FPA)}, {V(gq,4)}, {S(sWS,2)} sc1')

    def sflag_check(n, ok):
        a(f's_and_b64 {S(sT0,2)}, {S(sFL,2)}, {S(sFL+2,2)}\ns_or_b64 {S(sT2,2)}, {S(sFL,2)}, {S(sFL+2,2)}')
        for i in range(4, n, 2):
            a(f's_and_b64 {S(sT0,2)}, {S(sT0,2)}, {S(sFL+i,2)}\ns_or_b64 {S(sT2,2)}, {S(sT2,2)}, {S(sFL+i,2)}')
        a(f'''
        s_and_b32 {S(sT0)}, {S(sT0)}, {S(sT1)}
        s_or_b32 {S(sT2)}, {S(sT2)}, {S(sT3)}
        s_xor_b32 {S(sT0)}, {S(sT0)}, {S(sTAGX)}
        s_xor_b32 {S(sT2)}, {S(sT2)}, {S(sTAGX)}
        s_or_b32 {S(sT0)}, {S(sT0)}, {S(sT2)}
        s_cbranch_scc0 {ok}
        ''')

    a.raw('; @launch grid=(256,1,1) block=(512,1,1) lds=%d' % LDS_BYTES)
    a.raw('.amdgcn_target "amdgcn-amd-amdhsa--gfx950"\n.text\n.globl %s_kernel\n.p2align 8\n.type %s_kernel,@function\n%s_kernel:' % (KN, KN, KN))
    vCP = 239; vSTA = 238
    a(f'''
    s_cmp_ge_u32 s2, 256
    s_cbranch_scc1 L_end
    s_load_dwordx16 s[4:19], s[0:1], 0
    s_load_dwordx16 s[20:35], s[0:1], 64
    s_load_dwordx2 s[36:37], s[0:1], 128
    s_getpc_b64 {S(sM+2,2)}
    s_lshr_b32 {S(sJ)}, s2, 3
    s_mul_i32 {S(sT0)}, {S(sJ)}, {128*o['cpfn']}
    v_lshl_add_u32 {V(vCP)}, v0, 7, {S(sT0)}
    v_min_u32 {V(vCP)}, L_end - L_cpf, {V(vCP)}
    v_cmp_gt_u32 vcc, {o['cpfn']}, v0
    s_and_saveexec_b64 {S(sM,2)}, vcc
    s_cbranch_execz L_cpf
    global_load_dword {V(vCP)}, {V(vCP)}, {S(sM+2,2)}
    L_cpf:
    s_mov_b64 exec, -1
    ''')
    if o['diag'] >= 0: a('s_memrealtime s[96:97]')
    if o['stamp']: a(f'{CLK} s[100:101]')
    a(f'''
    v_lshrrev_b32 {V(T[0])}, 6, v0
    v_and_b32 {V(vL)}, 63, v0
    v_readfirstlane_b32 {S(sW)}, {V(T[0])}
    s_and_b32 {S(sK)}, s2, 7
    s_and_b32 {S(sWI)}, {S(sW)}, 3
    ''')
    ssum(sCH0, (sK, 6), (sJ, 1))
    if o['stamp']:
        ssum(sT1, (2, 11), (sW, 8), W_STAMP)
        a(f'v_lshl_add_u32 {V(vSTA)}, {V(vL)}, 2, {S(sT1)}')
        a('v_mov_b32 v237, 0')

    def after_karg():
        a('s_waitcnt lgkmcnt(0)')
        if o['stamp']: a('v_writelane_b32 v237, s100, 13')
        if o['diag'] >= 0: a('s_mov_b32 s98, s96')
        stamp(0)
    a(f's_cmp_lt_u32 {S(sW)}, 4\ns_cbranch_scc1 L_conv')
    ssum(sT0, (2, 13), (sWI, 11))
    a(f'''
    v_and_b32 {V(T[3])}, 31, {V(vL)}
    v_lshrrev_b32 {V(T[4])}, 5, {V(vL)}
    v_lshlrev_b32 {V(T[2])}, 4, {V(T[3])}
    v_lshl_add_u32 {V(T[3])}, {V(T[4])}, 10, {V(T[2])}
    v_add_u32 {V(T[3])}, {S(sT0)}, {V(T[3])}
    v_mov_b32 {V(T[5])}, 0
    ''')
    after_karg()
    a(f'''
    global_load_dwordx4 {V(40,4)}, {V(T[3])}, {S(sX,2)}
    global_load_dwordx4 {V(44,4)}, {V(T[3])}, {S(sX,2)} offset:512
    s_mov_b64 exec, 1
    global_load_dword {V(35)}, {V(T[5])}, {S(sWS,2)} sc1
    s_mov_b64 exec, -1
    s_barrier
    global_load_dwordx4 {V(56,4)}, {V(T[2])}, {S(sWR,2)}
    global_load_dwordx4 {V(60,4)}, {V(T[2])}, {S(sWR,2)} offset:512
    ''')
    a('s_branch L_helper\nL_conv:')

    GA, SEL, R4W = 2, 10, 22
    cKA, cKB, cPD, cY, cCA, cCA2, cCB, cTW1, cTW2, cTW3, cTW4, cFL = range(24, 36)
    cG0, cG1, cLW, cLW1, cLR, cLR1, cO0, cO1, cF2, cFLO, cPFI = range(36, 47)
    cWS0, cWS1, cP1R, cFPA, cWW, cWDR, cFPR = 47, 71, 65, 67, 64, 66, 68
    cWR, cWD, cWDF, cPQ = 144, 224, 104, 120
    cG, cD, pos0, P = 48, 56, 64, 72
    sCH = sR
    a(f'''
    s_and_b32 {S(sCH)}, {S(sW)}, 1
    s_lshr_b32 {S(sT2)}, {S(sW)}, 1
    s_cmp_eq_u32 {S(sT2)}, 0
    s_cselect_b32 {S(sHALF)}, 0, 1
    s_add_u32 {S(sT1)}, {S(sCH0)}, {S(sCH)}
    ''')
    ssum(sT0, (sT1, 8), (sT2, 7))
    for i in range(7): a(f'v_mov_b32 {V(P+i)}, 0')
    a(f'''
    v_lshl_add_u32 {V(T[1])}, {V(vL)}, 1, {S(sT0)}
    s_lshl_b32 {S(sT1)}, {S(sT1)}, 1
    v_mov_b32 {V(T[2])}, {S(sT1)}
    ''')
    slice_off(cO0, cO1)
    after_karg()
    a(f'global_load_dwordx4 {V(cD,4)}, {V(cO0)}, {S(sX,2)}\nglobal_load_dwordx4 {V(cD+4,4)}, {V(cO1)}, {S(sX,2)}')
    a('s_barrier')
    a(f'''
    v_mov_b32 {V(T[6])}, 0
    v_mov_b32 {V(T[7])}, 0x3f80
    s_lshl_b32 {S(sT0)}, {S(sW)}, 8
    v_and_b32 {V(T[8])}, 127, v0
    s_mov_b32 m0, {S(sT0)}
    v_min_u32 {V(T[8])}, 119, {V(T[8])}
    ds_write_addtid_b32 {V(T[7])} offset:{STAGE}
    s_mul_i32 {S(sT0)}, {S(sHALF)}, {US}
    s_add_u32 {S(sT0)}, {S(sT0)}, {U}
    v_lshl_add_u32 {V(T[8])}, {V(T[8])}, 2, {S(sT0)}
    ds_write_b32 {V(T[8])}, {V(T[6])}
    s_mul_i32 {S(sT0)}, {S(sCH)}, {R4S}
    s_add_u32 {S(sT0)}, {S(sT0)}, {R4}
    s_mul_i32 {S(sT1)}, {S(sCH)}, {TS}
    s_add_u32 {S(sT1)}, {S(sT1)}, {TAB}
    s_cmp_eq_u32 {S(sHALF)}, 0
    s_cselect_b32 {S(sT0)}, {S(sT0)}, {S(sT1)}
    s_cselect_b32 {S(sT1)}, 31, 1
    v_min_u32 {V(T[8])}, {S(sT1)}, {V(vL)}
    v_lshl_add_u32 {V(T[8])}, {V(T[8])}, 2, {S(sT0)}
    s_mov_b32 exec_hi, 0
    ds_write_b32 {V(T[8])}, {V(T[6])}
    v_min_u32 {V(T[8])}, 10, {V(vL)}
    v_lshlrev_b32 {V(T[8])}, 2, {V(T[8])}
    v_add_u32 {V(T[8])}, {AM}, {V(T[8])}
    s_mov_b32 exec_lo, 0x7ff
    ds_write_b32 {V(T[8])}, {V(T[6])}
    s_mov_b64 exec, -1
    s_mov_b32 {S(sHI)}, 0xffff0000
    s_getreg_b32 {S(sXCC)}, hwreg(HW_REG_XCC_ID, 0, 4)
    ''')
    a(f'global_load_short_d16_hi {V(P+6)}, {V(T[2])}, {S(sLDT,2)}')
    for i, p in enumerate((sARE, sAIM, sBRE, sBIM, sCRE, sCIM)):
        a(f'global_load_short_d16_hi {V(P+i)}, {V(T[1])}, {S(p,2)}')
    a('s_waitcnt lgkmcnt(0)\ns_barrier')
    xpose_addrs(cLR, cLR1, cLW, cLW1, cG0, cG1)
    ssum(sT2, (sK, 18), (sJ, 13), (sWI, 11), W_IN)
    a(f'v_and_b32 {V(T[5])}, 15, {V(vL)}\nv_lshl_add_u32 {V(cPFI)}, {V(T[5])}, 7, {S(sT2)}')
    PE = 1 if o['pf'] == 2 else 0
    if PE: a(f"s_mov_b64 exec, 0xffff\nglobal_load_dword {V(vCP)}, {V(cPFI)}, {S(sWS,2)}{' nt' if o['innt'] else ''}\ns_mov_b64 exec, -1")

    def sel_setup(tag, toff, ga, sel, r4w, first):
        pos = [pos0 + i for i in range(7)]
        tt = 'v0'
        if toff:
            a(f'v_add_u32 {V(T[5])}, {toff}, v0'); tt = V(T[5])
        a(f'v_lshlrev_b32 {V(T[0])}, 2, {tt}')
        if first: a(f's_cmp_eq_u32 {S(sW)}, 0\ns_cbranch_scc1 L_pos0{tag}')
        for i in range(7): a(f'v_add_u32 {V(pos[i])}, {i-3}, {V(T[0])}')
        for i in range(7): a(f'v_cvt_f32_u32 {V(pos[i])}, {V(pos[i])}')
        for i in range(0, 7, 2):
            a(f'v_cvt_pk_bf16_f32 {V(T[8+i//2])}, {V(pos[i])}, {V(pos[min(i+1,6)])}')
        a(f'v_mov_b32 {V(T[1])}, {4 - 0x4280}')
        for i in range(7):
            a(f'v_bfe_u32 {V(pos[i])}, {V(T[8+i//2])}, {16*(i&1)}, 16')
            a(f'v_add_u32 {V(pos[i])}, {V(T[1])}, {V(pos[i])}')
        if first:
            a(f's_branch L_pos_done{tag}\nL_pos0{tag}:')
            for i in range(7): a(f'v_add_u32 {V(pos[i])}, {i+1}, {V(T[0])}')
            a(f'L_pos_done{tag}:')
        b1, b2 = T[1], T[2]
        a(f'''
        v_and_b32 {V(b1)}, -2, {V(pos[2])}
        v_add_u32 {V(b1)}, -2, {V(b1)}
        v_and_b32 {V(b2)}, -2, {V(pos[3])}
        v_add_u32 {V(T[3])}, {V(b1)}, {V(b1)}
        v_add_u32 {V(T[4])}, {V(b2)}, {V(b2)}
        ''')
        for c in range(2):
            a(f'v_add_u32 {V(ga+2*c)}, {TAB + c*TS}, {V(T[3])}')
            a(f'v_add_u32 {V(ga+2*c+1)}, {TAB + c*TS}, {V(T[4])}')
        for i in range(3): a(f'v_sub_u32 {V(pos[i])}, {V(pos[i])}, {V(b1)}')
        for i in range(3, 7): a(f'v_sub_u32 {V(pos[i])}, {V(pos[i])}, {V(b2)}')
        a(f's_movk_i32 {S(sT0)}, 0x0202\nv_mov_b32 {V(T[3])}, 0x0100')
        for i in range(7): a(f'v_mad_u32_u24 {V(pos[i])}, {V(pos[i])}, {S(sT0)}, {V(T[3])}')
        for dst, lo, hi in ((0, 1, 0), (1, 2, 1), (2, 3, 2), (3, 4, 3), (4, 5, 4), (5, 6, 5)):
            a(f'v_lshl_or_b32 {V(sel+dst)}, {V(pos[hi])}, 16, {V(pos[lo])}')
        a(f'v_add_u32 {V(sel+2)}, 0x{(2*0x0202 - 2*0x02020000) & 0xffffffff:x}, {V(sel+2)}')
        a(f'''
        v_and_b32 {V(T[0])}, -4, {tt}
        v_lshlrev_b32 {V(T[0])}, 2, {V(T[0])}
        v_lshl_add_u32 {V(r4w)}, {tt}, 5, {V(T[0])}
        v_add_u32 {V(r4w)}, {R4 + 144}, {V(r4w)}
        ''')
    smul(sT1, sCH, 3072, PD)
    smul(sT2, sCH, TS, TAB + 8)
    a(f'''
    v_and_b32 {V(T[0])}, 31, {V(vL)}
    v_lshrrev_b32 {V(T[1])}, 5, {V(vL)}
    s_lshl_b32 {S(sT0)}, {S(sW)}, 8
    v_lshl_add_u32 {V(T[2])}, {V(T[1])}, 4, {S(sT0)}
    s_movk_i32 {S(sT0)}, {RS}
    v_mad_u32_u24 {V(cKB)}, {V(T[0])}, {S(sT0)}, {V(T[2])}
    v_add_u32 {V(T[3])}, -16, {V(T[0])}
    v_cmp_lt_u32 vcc, 20, {V(T[0])}
    v_lshl_add_u32 {V(cPD)}, {V(vL)}, 4, {S(sT1)}
    v_cndmask_b32 {V(T[3])}, {V(T[0])}, {V(T[3])}, vcc
    v_mad_u32_u24 {V(cKA)}, {V(T[3])}, {S(sT0)}, {V(T[2])}
    v_add_u32 {V(cKA)}, {STAGE + 32*RS}, {V(cKA)}
    v_lshl_add_u32 {V(T[2])}, {V(T[1])}, 3, {S(sT2)}
    v_lshl_add_u32 {V(cTW1)}, {V(T[0])}, 4, {V(T[2])}
    v_sub_u32 {V(T[2])}, 3, {V(T[1])}
    v_lshlrev_b32 {V(T[2])}, {V(T[2])}, {V(T[0])}
    v_lshl_add_u32 {V(T[3])}, {V(T[1])}, 8, {S(sT2)}
    v_add_u32 {V(T[3])}, 512, {V(T[3])}
    v_add_u32 {V(cTW2)}, {V(T[2])}, {V(T[3])}
    v_mul_u32_u24 {V(T[2])}, 124, {V(T[1])}
    v_add3_u32 {V(cTW3)}, {V(cTW2)}, {V(T[2])}, 4
    v_lshl_add_u32 {V(cTW4)}, {V(T[0])}, 1, {V(T[3])}
    v_add_u32 {V(cTW4)}, 512, {V(cTW4)}
    ''')
    ssum(sT0, (sCH, 2), AM + 24)
    a(f'v_mov_b32 {V(cFL)}, {S(sT0)}')
    sel_setup('a', 0, GA, SEL, R4W, True)

    def conv_setup():
        smul(sT0, sCH, R4S, R4)
        smul(sT1, sHALF, 4 * CAS)
        a(f'''
        s_add_u32 {S(sT0)}, {S(sT0)}, {S(sT1)}
        v_and_b32 {V(T[5])}, 15, {V(vL)}
        v_lshrrev_b32 {V(T[6])}, 4, {V(vL)}
        v_lshlrev_b32 {V(T[3])}, 3, {V(T[6])}
        v_sub_u32 {V(T[3])}, {V(T[5])}, {V(T[3])}
        ''')
        for reg, k in ((cCA, 32), (cCA2, 28)):
            a(f'''
            v_add_u32 {V(T[4])}, {k}, {V(T[3])}
            v_lshrrev_b32 {V(T[7])}, 4, {V(T[4])}
            v_lshl_add_u32 {V(reg)}, {V(T[4])}, 3, {S(sT0)}
            v_lshl_add_u32 {V(reg)}, {V(T[7])}, 4, {V(reg)}
            ''')
        smul(sT0, sCH, US, U)
        smul(sT2, sW, YWS, YX)
        a(f'''
        s_lshl_b32 {S(sT1)}, {S(sHALF)}, 8
        s_sub_u32 {S(sT0)}, {S(sT0)}, {S(sT1)}
        v_lshl_add_u32 {V(T[3])}, {V(T[6])}, 4, {S(sT0)}
        v_lshl_add_u32 {V(cCB)}, {V(T[5])}, 5, {V(T[3])}
        v_mul_u32_u24 {V(T[3])}, {YGS}, {V(T[6])}
        v_lshl_add_u32 {V(T[3])}, {V(T[5])}, 4, {V(T[3])}
        v_add_u32 {V(cY)}, {S(sT2)}, {V(T[3])}
        ''')

    def gather_setup():
        a(f'''
        s_mul_i32 {S(sT0)}, {S(sK)}, 43
        s_add_u32 {S(sT0)}, {S(sT0)}, 43
        s_lshr_b32 {S(sT0)}, {S(sT0)}, 3
        s_sub_u32 {S(sT0)}, {S(sT0)}, {S(sA)}
        s_lshl_b32 {S(sT0)}, {S(sT0)}, 2
        s_lshl_b32 {S(sF8)}, {S(sA)}, 2
        s_add_u32 {S(sF8)}, {S(sF8)}, {S(sJ)}
        s_cmp_lt_u32 {S(sJ)}, {S(sT0)}
        s_cselect_b32 {S(sPROD)}, 1, 0
        ''')
        smul(sT2, sK, 24)
        a(f's_add_u32 {S(sT2)}, {S(sT2)}, {S(sJ)}')
        ssum(sT2, (sT2, 12), W_P1)
        ssum(sT1, (sW, 12), WL)
        a(f'''
        v_lshl_add_u32 {V(cP1R)}, {V(vL)}, 4, {S(sT2)}
        v_lshl_add_u32 {V(cWW)}, {V(vL)}, 4, {S(sT1)}
        v_lshl_add_u32 {V(cWDR)}, {V(vL)}, 2, {S(sT1)}
        v_lshrrev_b32 {V(T[4])}, 1, v0
        v_mul_u32_u24 {V(T[4])}, 6144, {V(T[4])}
        v_and_b32 {V(T[3])}, 1, {V(vL)}
        v_lshl_add_u32 {V(T[4])}, {V(T[3])}, 4, {V(T[4])}
        ''')
        ssum(sT2, (sF8, 5), W_FP)
        a(f'v_add_u32 {V(cFPA)}, {S(sT2)}, {V(T[4])}\ns_lshr_b32 {S(sT0)}, {S(sCH0)}, 2\ns_and_b32 {S(sT1)}, {S(sJ)}, 1')
        smul(sT0, sT0, 6144, W_FP + 2048)
        ssum(sT0, (sT0, 0), (sT1, 4))
        a(f'v_lshl_add_u32 {V(cFPR)}, {V(vL)}, 5, {S(sT0)}')

    def wsrc_setup():
        a(f's_mul_i32 {S(sA)}, {S(sK)}, 43\ns_lshr_b32 {S(sA)}, {S(sA)}, 3')
        smul(sT0, sWI, 96)
        ssum(sT0, (sT0, 0), (sA, 6))
        a(f'''
        v_lshrrev_b32 {V(T[6])}, 3, {V(vL)}
        v_lshl_add_u32 {V(T[6])}, {S(sJ)}, 4, {V(T[6])}
        v_and_b32 {V(T[7])}, 7, {V(vL)}
        v_min_u32 {V(T[7])}, 5, {V(T[7])}
        v_lshl_add_u32 {V(T[7])}, {V(T[7])}, 4, {S(sT0)}
        v_min_u32 {V(T[7])}, 2736, {V(T[7])}
        s_movk_i32 {S(sT0)}, 2752
        v_mad_u32_u24 {V(cWS0)}, {V(T[6])}, {S(sT0)}, {V(T[7])}
        v_add_u32 {V(cWS1)}, {8*2752}, {V(cWS0)}
        ''')
        if o['wdc']:
            a(f'''
            s_mul_i32 {S(sT0)}, {S(sK)}, 43
            s_add_u32 {S(sT0)}, {S(sT0)}, 43
            s_lshr_b32 {S(sT0)}, {S(sT0)}, 3
            s_sub_u32 {S(sT0)}, {S(sT0)}, {S(sA)}
            s_lshl_b32 {S(sT0)}, {S(sT0)}, 2
            s_lshl_b32 {S(sF8)}, {S(sA)}, 2
            s_add_u32 {S(sF8)}, {S(sF8)}, {S(sJ)}
            s_cmp_lt_u32 {S(sJ)}, {S(sT0)}
            s_cselect_b32 {S(sF8)}, {S(sF8)}, {S(sJ)}
            s_cselect_b64 {S(sM+6,2)}, -1, 1
            ''')
            ssum(sT1, (sF8, 13), (sWI, 8))
            smul(sT2, sK, 24)
            a(f's_add_u32 {S(sT2)}, {S(sT2)}, {S(sJ)}')
            ssum(sT2, (sT2, 12), (sWI, 10), W_P1)
            a(f'''
            v_and_b32 {V(T[6])}, 15, {V(vL)}
            v_lshrrev_b32 {V(T[7])}, 4, {V(vL)}
            v_lshl_add_u32 v170, {V(T[6])}, 4, {S(sT1)}
            v_lshl_add_u32 v170, {V(T[7])}, 10, v170
            v_add_u32 v171, 4096, v170
            v_lshl_add_u32 v172, {V(vL)}, 7, {S(sT2)}
            ''')

    def w_loads(lo=0, hi=4):
        for t_ in range(lo, hi):
            a(f'global_load_dwordx4 {V(cWR+4*t_,4)}, {V((cWS0, cWS1)[t_&1])}, {S((sWG, sWU)[t_>>1],2)}')
        if o['wdc']:
            a(f'''
            s_and_b64 exec, {S(sM+6,2)}, 0xff
            global_load_dword v172, v172, {S(sWS,2)} nt
            ''')
            if o['wdc'] == 1: a(f'''
            s_mov_b64 exec, {S(sM+6,2)}
            global_load_dwordx4 v[160:163], v170, {S(sWD,2)}
            global_load_dwordx4 v[164:167], v171, {S(sWD,2)}
            ''')
            alllanes()

    wsrc_setup()
    a(f's_waitcnt vmcnt({7 + PE})')
    stamp(1)
    a(f'''
    ds_write_b128 {V(cLR)}, {V(cD,4)}
    ds_write_b128 {V(cLR1)}, {V(cD+4,4)} offset:1024
    ds_read2_b32 {V(cG,2)}, {V(cLW)} offset0:0 offset1:32
    ds_read2_b32 {V(cG+2,2)}, {V(cLW)} offset0:64 offset1:96
    ds_read2_b32 {V(cG+4,2)}, {V(cLW1)} offset0:0 offset1:32
    ds_read2_b32 {V(cG+6,2)}, {V(cLW1)} offset0:64 offset1:96
    s_waitcnt lgkmcnt(0)
    global_store_dwordx4 {V(cG0)}, {V(cG,4)}, {S(sWS,2)}{' nt' if o['int_'] else ''}
    global_store_dwordx4 {V(cG1)}, {V(cG+4,4)}, {S(sWS,2)}{' nt' if o['int_'] else ''}
    ''')
    if o['pf'] == 1: a(f"s_mov_b64 exec, 0xffff\nglobal_load_dword {V(vCP)}, {V(cPFI)}, {S(sWS,2)}{' nt' if o['innt'] else ''}\ns_mov_b64 exec, -1")
    sel_setup('b', 256, GA + 4, SEL + 6, R4W + 1, False)
    a(f"s_waitcnt vmcnt({1 if o['pf'] == 1 else 0})")
    stamp(2)
    a('s_barrier')
    are, aim, bre, bim, cre, cim, dt, t0 = [P + i for i in range(8)]
    z1, z2, z4, ZZ, w1, w2, w4 = [P + 8 + 2 * i for i in range(7)]
    hq = [P + 24 + 2 * i for i in range(8)]
    lq = [P + 40 + 2 * i for i in range(8)]
    cv = [P + 56 + i for i in range(8)]
    a(f'''
    v_mov_b32 {V(t0)}, 0x3fb8aa3b
    v_mul_f32 {V(dt)}, {V(dt)}, {V(t0)}
    v_exp_f32 {V(dt)}, {V(dt)}
    v_mul_f32 {V(are)}, {V(t0)}, {V(are)}
    v_cvt_pk_bf16_f32 {V(dt)}, {V(dt)}, {V(dt)}
    v_mul_f32 {V(aim)}, 0.15915494, {V(aim)}
    v_and_b32 {V(dt)}, {S(sHI)}, {V(dt)}
    v_mul_f32 {V(are)}, {V(dt)}, {V(are)}
    v_mul_f32 {V(aim)}, {V(dt)}, {V(aim)}
    v_exp_f32 {V(cv[0])}, {V(are)}
    v_fract_f32 {V(cv[1])}, {V(aim)}
    v_mul_f32 {V(are)}, 0x43800000, {V(are)}
    v_cos_f32 {V(z1)}, {V(cv[1])}
    ''')
    if o['wat'] == 0: w_loads()
    a(f'''
    v_mul_f32 {V(aim)}, 0x43800000, {V(aim)}
    v_sin_f32 {V(z1+1)}, {V(cv[1])}
    v_fract_f32 {V(cv[3])}, {V(aim)}
    v_exp_f32 {V(cv[2])}, {V(are)}
    v_mul_f32 {V(z1)}, {V(cv[0])}, {V(z1)}
    v_cos_f32 {V(ZZ)}, {V(cv[3])}
    v_mul_f32 {V(z1+1)}, {V(cv[0])}, {V(z1+1)}
    v_sin_f32 {V(ZZ+1)}, {V(cv[3])}
    ''')
    cmul(z2, z1, z1)
    a(f'v_mul_f32 {V(ZZ)}, {V(cv[2])}, {V(ZZ)}\nv_mul_f32 {V(ZZ+1)}, {V(cv[2])}, {V(ZZ+1)}')
    cmul(z4, z2, z2)
    ci = [0]; pend = []

    def flush(n=99):
        for x in pend[:n]: a(x)
        del pend[:n]

    def put(row, reg, neg):
        c = cv[ci[0] % 8]; ci[0] += 1
        a(f"v_cvt_pk_bf16_f32 {V(c)}, {V(reg)}, {'-' if neg else ''}{V(reg+1)}")
        pend.append(f'ds_write_addtid_b32 {V(c)} offset:{STAGE + row*RS}')
        if len(pend) >= o['dsg']: flush()
    cmul(w1, z4, z4)
    cmul(w2, w1, w1)
    put(1, w1, False)
    cmul(lq[3], w2, w1)
    put(2, w2, False)
    cmul(w4, w2, w2)
    put(3, lq[3], False)
    cur = {1: w1, 2: w2, 3: lq[3], 4: w4}
    put(4, w4, False)
    for j in range(5, 32):
        d = lq[j % 8]
        cmul(d, cur[j - 4], w4); cur[j] = d
        put(j, d, False)
        if j == o['wat']: w_loads()
    a(f'v_mul_f32 {V(bre)}, {V(dt)}, {V(bre)}\nv_mul_f32 {V(bim)}, {V(dt)}, {V(bim)}')
    cmul(hq[0], cre, bre)
    cmul(hq[1], hq[0], z1); put(32, hq[0], True)
    cmul(hq[2], hq[0], z2); put(33, hq[1], True)
    cmul(hq[3], hq[1], z2); put(34, hq[2], True)
    cmul(hq[4], hq[0], z4); put(35, hq[3], True)
    cmul(hq[5], hq[1], z4); put(36, hq[4], True)
    cmul(hq[6], hq[2], z4); put(37, hq[5], True)
    cmul(hq[7], hq[3], z4); put(38, hq[6], True)
    A0, A2, A4, A6, B0, B4, C0, C4 = lq
    cmul(A0, hq[0], ZZ); put(39, hq[7], True)
    cmul(A2, hq[2], ZZ); put(40, A0, True)
    cmul(A4, hq[4], ZZ); put(41, A2, True)
    cmul(A6, hq[6], ZZ); put(42, A4, True)
    cmul(B0, A0, ZZ); put(43, A6, True)
    cmul(B4, A4, ZZ); put(44, B0, True)
    cmul(C0, B0, ZZ); put(45, B4, True)
    cmul(C4, B4, ZZ); put(46, C0, True)
    cmul(hq[1], C0, ZZ); put(47, C4, True)
    cmul(hq[2], hq[1], ZZ); put(48, hq[1], True)
    cmul(hq[3], hq[2], ZZ); put(49, hq[2], True)
    cmul(hq[4], hq[3], ZZ); put(50, hq[3], True)
    cmul(hq[5], hq[4], ZZ); put(51, hq[4], True); put(52, hq[5], True)
    flush()
    stamp(3)

    KD = P; KF = P + 16; NB = o['nb']

    def kread(i):
        r = KF + 8 * (i % NB)
        a(f'ds_read_b128 {V(r,4)}, {V(cKA)} offset:{32*i}\nds_read_b128 {V(r+4,4)}, {V(cKB)} offset:{32*i}')
    for i in range(NB): kread(i)
    for i in range(8):
        a(f's_waitcnt lgkmcnt({2*(min(8, i + NB) - i - 1)})')
        r = KF + 8 * (i % NB)
        a(f"v_mfma_f32_32x32x16_bf16 {V(KD,16)}, {V(r,4)}, {V(r+4,4)}, {'0' if i == 0 else V(KD,16)}")
        if i + NB < 8: kread(i + NB)
    a(f'v_mov_b32 {V(T[7])}, 1\ns_cmp_eq_u32 {S(sHALF)}, 1\ns_cbranch_scc1 L_c_half1')
    for i in range(3): a(f'ds_write_b128 {V(cPD)}, {V(KD+4*i,4)} offset:{1024*i}')
    a(f's_mov_b64 exec, 1\nds_write_b32 {V(cFL)}, {V(T[7])}\ns_mov_b64 exec, -1')
    gather_setup(); conv_setup()
    a('s_branch L_c_tab\nL_c_half1:')
    spin_init()
    a(f'L_pspin:\nds_read_b32 {V(T[6])}, {V(cFL)}')
    for i in range(3): a(f'ds_read_b128 {V(cG+4*i,4)}, {V(cPD)} offset:{1024*i}')
    a(f'''
    s_waitcnt lgkmcnt(3)
    v_readfirstlane_b32 {S(sT0)}, {V(T[6])}
    s_cmp_lg_u32 {S(sT0)}, 0
    s_cbranch_scc1 L_pok
    s_waitcnt lgkmcnt(0)
    ''')
    spin_next('L_pspin')
    a('L_pok:\ns_waitcnt lgkmcnt(0)')
    for i in range(12): a(f'v_add_f32 {V(KD+i)}, {V(KD+i)}, {V(cG+i)}')
    for i in range(6): a(f'v_cvt_pk_bf16_f32 {V(T[i])}, {V(KD+2*i)}, {V(KD+2*i+1)}')
    a(f'''
    ds_write_b64 {V(cTW1)}, {V(T[0],2)}
    ds_write_b32 {V(cTW2)}, {V(T[2])}
    ds_write_b32 {V(cTW3)}, {V(T[3])}
    ds_write_b16 {V(cTW4)}, {V(T[4])}
    ds_write_b16_d16_hi {V(cTW4)}, {V(T[4])} offset:64
    ds_write_b16 {V(cTW4)}, {V(T[5])} offset:128
    ds_write_b16_d16_hi {V(cTW4)}, {V(T[5])} offset:192
    s_mov_b64 exec, 1
    ds_write_b32 {V(cFL)}, {V(T[7])} offset:8
    s_mov_b64 exec, -1
    L_c_tab:
    ''')
    stamp(4)
    Wq = P; Q = P + 16
    spin_init()
    a(f'v_mov_b32 {V(T[9])}, {AM}\nL_tspin:\nds_read_b64 {V(T[0],2)}, {V(T[9])} offset:32')
    for i in range(8): a(f'ds_read2_b32 {V(Wq+2*i,2)}, {V(GA+i)} offset0:0 offset1:1')
    a(f'''
    s_waitcnt lgkmcnt(8)
    v_and_b32 {V(T[0])}, {V(T[0])}, {V(T[1])}
    v_readfirstlane_b32 {S(sT0)}, {V(T[0])}
    s_cmp_lg_u32 {S(sT0)}, 0
    s_cbranch_scc1 L_tok
    s_waitcnt lgkmcnt(0)
    ''')
    spin_next('L_tspin')
    a('L_tok:')
    stamp(5)
    for n in range(4):
        st, c = n >> 1, n & 1
        W0, W1, W2, W3 = [Wq + 4 * n + i for i in range(4)]
        q = Q + 8 * n; sl = SEL + 6 * st
        a(f'''
        s_waitcnt lgkmcnt(6)
        v_perm_b32 {V(q+0)}, {V(W2)}, {V(W1)}, {V(sl+2)}
        v_perm_b32 {V(q+1)}, {V(W1)}, {V(W0)}, {V(sl+0)}
        v_perm_b32 {V(q+2)}, {V(W3)}, {V(W2)}, {V(sl+3)}
        v_perm_b32 {V(q+3)}, {V(W1)}, {V(W0)}, {V(sl+1)}
        v_perm_b32 {V(q+4)}, {V(W3)}, {V(W2)}, {V(sl+4)}
        v_mov_b32 {V(q+5)}, {V(q+0)}
        v_perm_b32 {V(q+6)}, {V(W3)}, {V(W2)}, {V(sl+5)}
        v_mov_b32 {V(q+7)}, {V(q+2)}
        ds_write_b128 {V(R4W+st)}, {V(q,4)} offset:{c*R4S}
        ds_write_b128 {V(R4W+st)}, {V(q+4,4)} offset:{c*R4S + 16}
        ''')
    a(f's_cmp_eq_u32 {S(sHALF)}, 0\ns_cbranch_scc1 L_c_b4')
    gather_setup(); conv_setup()
    a('L_c_b4:\ns_waitcnt vmcnt(0)')
    for t_ in range(4): a(f'ds_write_b128 {V(cWW)}, {V(cWR+4*t_,4)} offset:{1024*t_}')
    if o['wdc'] == 1:
        ssum(sT0, (sW, 11), WD2)
        a(f'v_lshl_add_u32 v170, {V(vL)}, 4, {S(sT0)}\nds_write_b128 v170, v[160:163]\nds_write_b128 v170, v[164:167] offset:1024')
    a(f's_lshl_b32 {S(sT0)}, {S(sCH0)}, 1\ns_load_dword {S(sDS)}, {S(sDSK,2)}, {S(sT0)}\ns_waitcnt lgkmcnt(0)')
    stamp(8)
    a('s_barrier')
    stamp(10)

    ACC = P; FR = P + 32; NFR = 30
    a('s_setprio 1')
    ops = []
    for c0 in range(4):
        lst = [(q, c1, q - c1) for q in range(8) for c1 in range(q + 1)]
        have = set(); seq = []
        while lst:
            def cost(x):
                base = (2 * (('A', x[1]) not in have) + (('B', x[2]) not in have), bool(seq) and seq[-1][0] == x[0], max(x[1], x[2]))
                return ((x[0],) + base) if c0 == 3 else base
            x = min(lst, key=cost); lst.remove(x); seq.append(x); have.add(('A', x[1])); have.add(('B', x[2]))
        for q, c1, qp in seq: ops.append((q, ('A', c0, c1), ('B', c0, qp)))
    order = []; last = {}; lastacc = {}
    for n, (i, ak, bk) in enumerate(ops):
        lastacc[i] = n
        for k in (bk, ak):
            if k not in last: order.append(k)
            last[k] = n
    L = []
    for k in order: L += [(k, 0), (k, 1)] if k[0] == 'A' else [(k, 0)]
    endidx = {}
    for j, (k, p) in enumerate(L): endidx[k] = j + 1
    need = []; m = 0
    for (i, ak, bk) in ops:
        m = max(m, endidx[ak], endidx[bk]); need.append(m)
    free = list(range(NFR)); slot = {}
    st = dict(issued=0, done=0); seqpos = []; nds = [0]; donepos = [0]

    def can_issue(cap):
        if st['issued'] >= len(L) or nds[0] - donepos[0] >= cap: return False
        k, p = L[st['issued']]
        return p == 1 or bool(free)

    def issue():
        k, p = L[st['issued']]
        if p == 0: slot[k] = free.pop(0)
        r = FR + 4 * slot[k]
        if k[0] == 'A': a(f'ds_read_b64 {V(r+2*p,2)}, {V(cCA2 if p else cCA)} offset:{CAS*(8*k[2] + k[1])}')
        else: a(f'ds_read_b128 {V(r,4)}, {V(cCB)} offset:{2*(224 + 256*k[2] - 32*k[1])}')
        st['issued'] += 1; nds[0] += 1; seqpos.append(nds[0])
    started = set(); written = set()
    while can_issue(o['maxout']): issue()
    for n, (i, ak, bk) in enumerate(ops):
        if need[n] > st['done']:
            while st['issued'] < need[n]:
                assert nds[0] - donepos[0] < 15
                issue()
            tgt = need[n]
            for m2 in range(n, min(n + o['group'], len(ops))):
                if need[m2] <= st['issued'] - o['minfly'] or need[m2] <= len(L) == st['issued']: tgt = max(tgt, need[m2])
            a(f's_waitcnt lgkmcnt({nds[0] - seqpos[tgt-1]})'); st['done'] = tgt; donepos[0] = seqpos[tgt - 1]
        acc = ACC + 4 * i
        a(f"v_mfma_f32_16x16x32_bf16 {V(acc,4)}, {V(FR+4*slot[ak],4)}, {V(FR+4*slot[bk],4)}, {V(acc,4) if i in started else '0'}")
        started.add(i)
        for k in (ak, bk):
            if last[k] == n: free.append(slot[k])
        budget = 1
        for i2 in range(8):
            if i2 not in written and lastacc[i2] + 5 <= n and budget > 0 and nds[0] - donepos[0] < 15:
                a(f'ds_write_b128 {V(cY)}, {V(ACC+4*i2,4)} offset:{i2*YTS}')
                written.add(i2); nds[0] += 1; budget -= 1
        while budget > 0 and can_issue(15) and st['issued'] < need[min(n + 14, len(ops) - 1)]:
            issue(); budget -= 1
    for i2 in range(8):
        if i2 not in written: a(f'ds_write_b128 {V(cY)}, {V(ACC+4*i2,4)} offset:{i2*YTS}')
    a('s_setprio 0\ns_waitcnt lgkmcnt(0)')
    stamp(9)
    a('s_barrier')
    if not o['s2h']:
        a(f"s_setprio {o['s2prio']}\ns_cmp_eq_u32 {S(sPROD)}, 0\ns_cbranch_scc1 L_c_nos2")
        stage2(cPQ, cWD, cWDF, cWDR, cP1R, cFPA)
        stamp(7)
    a(f'L_c_nos2:\ns_cmp_lg_u32 {S(sW)}, 0\ns_cbranch_scc1 L_exit')
    read_idx()
    a(f'''
    s_and_b32 {S(sTAG)}, {S(sTAGX)}, -16
    s_cmp_lg_u32 s2, 0
    s_cbranch_scc1 L_noep
    s_mov_b32 {S(sT0)}, {S(sTAG)}
    v_mov_b32 {V(T[10])}, 0
    v_mov_b32 {V(T[11])}, {S(sT0)}
    s_mov_b64 exec, 1
    global_store_dword {V(T[10])}, {V(T[11])}, {S(sWS,2)} sc1
    s_mov_b64 exec, -1
    L_noep:
    ''')
    xv, sv, y0, y1, n0, n1, d0, d1, sg, x0, x1, xo, ya, y2, y3 = range(160, 175)
    F = 144; hFPR = cFPR
    a(f's_lshl_b32 {S(sDV)}, {S(sDS)}, 16\ns_and_b32 {S(sDV+1)}, {S(sDS)}, {S(sHI)}')
    def fin_pre():
        ssum(sT0, (sIDX, 10), (sCH0, 1))
        a(f'v_mov_b32 {V(xo)}, {S(sT0)}')
        a(f'''
        ds_read_b64 {V(xv,2)}, {V(T[9])} offset:48
        s_lshr_b32 {S(sT1)}, {S(sIDX)}, 8
        s_mul_i32 {S(sT1)}, {S(sT1)}, {YTS}
        s_bfe_u32 {S(sT0)}, {S(sIDX)}, 0x20002
        s_mul_i32 {S(sT0)}, {S(sT0)}, {YGS}
        s_add_u32 {S(sT1)}, {S(sT1)}, {S(sT0)}
        s_bfe_u32 {S(sT0)}, {S(sIDX)}, 0x40004
        s_and_b32 {S(sT2)}, {S(sIDX)}, 3
        ''')
        ssum(sT1, (sT1, 0), (sT0, 4), (sT2, 2), YX)
        a(f'''
        v_mov_b32 {V(ya)}, {S(sT1)}
        s_and_b32 {S(sT0)}, {S(sKEY)}, {S(sHI)}
        s_xor_b32 {S(sT1)}, {S(sT0)}, 0x80000000
        s_xor_b32 {S(sT2)}, {S(sT0)}, {S(sHI)}
        s_bitcmp1_b32 {S(sT0)}, 31
        s_cselect_b32 {S(sT0)}, {S(sT1)}, {S(sT2)}
        v_mov_b32 {V(T[2])}, 0xbfb8aa3b
        v_mul_f32 {V(sg)}, {S(sT0)}, {V(T[2])}
        v_exp_f32 {V(sg)}, {V(sg)}
        v_mov_b32 {V(F+8)}, 0
        v_add_f32 {V(sg)}, 1.0, {V(sg)}
        v_rcp_f32 {V(sg)}, {V(sg)}
        v_mov_b32 {V(F+9)}, 0
        v_cvt_pk_bf16_f32 {V(sg)}, {V(sg)}, {V(sg)}
        v_mov_b32 {V(F+10)}, {S(sTAG)}
        v_and_b32 {V(sg)}, {S(sHI)}, {V(sg)}
        ''')
        for i, r in enumerate((y0, y1, y2, y3)): a(f'ds_read_b32 {V(r)}, {V(ya)} offset:{i*YWS}')
    def fin_polls():
        a(f'''
        global_load_dwordx4 {V(F,4)}, {V(hFPR)}, {S(sWS,2)} offset:-2048 sc1
        global_load_dwordx4 {V(F+4,4)}, {V(hFPR)}, {S(sWS,2)} sc1
        s_mov_b32 exec_hi, 0xfff
        global_load_dwordx4 {V(F+8,4)}, {V(hFPR)}, {S(sWS,2)} offset:2048 sc1
        s_mov_b64 exec, -1
        ''')
    fin_pre()
    fstamp(1)
    a(f's_cmp_lg_u32 {S(sBAD)}, 0\ns_cbranch_scc1 L_c_nob6\ns_barrier\nL_c_nob6:')
    if not o['polllate']: fin_polls()
    a(f'''
    s_waitcnt lgkmcnt(0)
    v_add_f32 {V(y0)}, {V(y0)}, {V(y2)}
    v_add_f32 {V(y1)}, {V(y1)}, {V(y3)}
    ''')
    rnd2(y0, y1, T[0])
    a(f'''
    v_and_b32 {V(T[1])}, {S(sHI)}, {V(sv)}
    v_lshlrev_b32 {V(T[2])}, 16, {V(sv)}
    v_rcp_f32 {V(T[1])}, {V(T[1])}
    v_lshlrev_b32 {V(x0)}, 16, {V(xv)}
    v_and_b32 {V(x1)}, {S(sHI)}, {V(xv)}
    v_sub_f32 {V(n0)}, {V(x0)}, {V(T[2])}
    v_sub_f32 {V(n1)}, {V(x1)}, {V(T[2])}
    ''')
    rnd2(n0, n1, T[0])
    a(f'v_mul_f32 {V(n0)}, {V(n0)}, {V(T[1])}\nv_mul_f32 {V(n1)}, {V(n1)}, {V(T[1])}')
    rnd2(n0, n1, T[0])
    a(f'v_mul_f32 {V(d0)}, {S(sDV)}, {V(n0)}\nv_mul_f32 {V(d1)}, {S(sDV+1)}, {V(n1)}')
    rnd2(d0, d1, T[0])
    a(f'v_add_f32 {V(y0)}, {V(y0)}, {V(d0)}\nv_add_f32 {V(y1)}, {V(y1)}, {V(d1)}')
    rnd2(y0, y1, T[0])
    if o['polllate']: fin_polls()
    spin_init()
    a('L_ffnspin:\ns_waitcnt vmcnt(0)')
    fstamp(2)
    for i in range(3): a(f'v_xor_b32 {V(T[i])}, {S(sTAG)}, {V(F+4*i+2)}')
    a(f'v_or3_b32 {V(T[0])}, {V(T[0])}, {V(T[1])}, {V(T[2])}\nv_cmp_ne_u32 vcc, 0, {V(T[0])}\ns_cbranch_vccz L_ffnok')
    if o['b7']:
        a(f"s_cmp_lg_u32 {S(sCNT)}, {o['spinmax']}\ns_cbranch_scc1 L_c_nob7\ns_cmp_lg_u32 {S(sBAD)}, 0\ns_cbranch_scc1 L_c_nob7")
        a(f'''
        s_mov_b32 {S(sT1)}, {o['spinmax']}
        L_b7spin:
        ds_read_b32 {V(T[0])}, {V(T[9])} offset:40
        s_sub_u32 {S(sT1)}, {S(sT1)}, 1
        s_cbranch_scc1 L_c_nob7
        s_waitcnt lgkmcnt(0)
        v_readfirstlane_b32 {S(sT0)}, {V(T[0])}
        s_cmp_eq_u32 {S(sT0)}, 0
        s_cbranch_scc1 L_b7spin
        L_c_nob7:
        s_waitcnt lgkmcnt(0)
        ''')
    fin_polls()
    spin_next('L_ffnspin')
    a('s_waitcnt vmcnt(0)\nL_ffnok:')
    fstamp(3)
    p0, p1 = F, F + 1
    for e in range(2): a(f'v_add_f32 {V(F+e)}, {V(F+e)}, {V(F+4+e)}')
    for e in range(2): a(f'v_add_f32 {V(F+e)}, {V(F+e)}, {V(F+8+e)}')
    for m in kred:
        for e in range(2): a(f'v_add_f32_dpp {V(F+e)}, {V(F+e)}, {V(F+e)} {m} bank_mask:0xf')
    rnd2(p0, p1, T[0])
    for e in range(2): a(f'v_mul_f32 {V(F+e)}, {V(F+e)}, {V(sg)}')
    rnd2(p0, p1, T[0])
    a(f'v_add_f32 {V(p0)}, {V(p0)}, {V(n0)}\nv_add_f32 {V(p1)}, {V(p1)}, {V(n1)}')
    rnd2(p0, p1, T[0])
    for e in range(2): a(f'v_mul_f32 {V(F+4+e)}, 0xbfb8aa3b, {V(F+e)}')
    for e in range(2): a(f'v_exp_f32 {V(F+4+e)}, {V(F+4+e)}')
    for e in range(2): a(f'v_add_f32 {V(F+4+e)}, 1.0, {V(F+4+e)}')
    for e in range(2): a(f'v_rcp_f32 {V(F+4+e)}, {V(F+4+e)}')
    for e in range(2): a(f'v_mul_f32 {V(F+e)}, {V(F+e)}, {V(F+4+e)}')
    rnd2(p0, p1, T[0])
    a(f'v_mul_f32 {V(p0)}, {V(p0)}, {V(y0)}\nv_mul_f32 {V(p1)}, {V(p1)}, {V(y1)}')
    rnd2(p0, p1, T[0])
    a(f'v_add_f32 {V(p0)}, {V(p0)}, {V(x0)}\nv_add_f32 {V(p1)}, {V(p1)}, {V(x1)}\nv_cvt_pk_bf16_f32 {V(T[0])}, {V(p0)}, {V(p1)}')
    lane63()
    a(f'global_store_dword {V(xo)}, {V(T[0])}, {S(sOUT,2)}')
    alllanes()
    stamp(11)
    if o['stamp'] or o['diag'] >= 0:
        a('s_waitcnt vmcnt(0)'); stamp(12)
    a('s_branch L_exit' if o['stamp'] else 's_branch L_diag0' if o['diag'] >= 0 else 's_endpgm')

    (hSTP, hRK, hSLW, hSLW1, hSLR, hSLR1, hINA, hINA1, hFLO, hFL, hXC, hIN, hST0, hST1, hXG, hXG1, hUW, hY,
     hWS0, hWS1, hWDA, hP1R, hP1F, hP1W, hWT, hWW, hXS, hXW, hXR, hFPA, hF2, hFPR, hPFI, hEP, hPFD, hAMW) = range(2, 38)
    vD, vS, vG, vXF, vXN, vE, XP, WR, vWD, WDF, WF, DD, XA, XS, GT = 40, 48, 56, 72, 88, 104, 120, 128, 144, 152, 168, 184, 200, 204, 206
    YR = WF; XV = 210
    hO0, hO1, hF2R, hWD1 = hWS0, hWS1, hFLO, hXR
    a('L_helper:')
    ssum(sT2, (sK, 18), (sJ, 13), (sWI, 11), W_IN)
    a(f'''
    v_lshl_add_u32 {V(hIN)}, {V(vL)}, 4, {S(sT2)}
    ''')
    a(f'''
    s_barrier
    s_lshl_b32 {S(sT0)}, {S(sCH0)}, 1
    s_load_dword {S(sDS)}, {S(sDSK,2)}, {S(sT0)}
    s_getreg_b32 {S(sXCC)}, hwreg(HW_REG_XCC_ID, 0, 4)
    s_mov_b32 {S(sONES)}, 0x3f803f80
    s_mov_b32 {S(sHI)}, 0xffff0000
    s_mul_i32 {S(sT0)}, {S(sK)}, 43
    s_lshr_b32 {S(sA)}, {S(sT0)}, 3
    s_add_u32 {S(sT0)}, {S(sT0)}, 43
    s_lshr_b32 {S(sT0)}, {S(sT0)}, 3
    s_sub_u32 {S(sR)}, {S(sT0)}, {S(sA)}
    s_cmp_eq_u32 {S(sWI)}, 0
    s_cselect_b32 {S(sFIN)}, 1, 0
    s_lshl_b32 {S(sT0)}, {S(sK)}, 1
    s_lshl_b32 {S(sCM)}, 0x00030003, {S(sT0)}
    s_mov_b32 {S(sCM+1)}, {S(sCM)}
    s_lshr_b32 {S(sT1)}, {S(sWI)}, 1
    s_and_b32 {S(sT2)}, {S(sWI)}, 1
    ''')
    ssum(sT0, (2, 5), (sT1, 4), (sT2, 13), W_ST)
    a(f'v_mov_b32 {V(hSTP)}, {S(sT0)}')
    ssum(sT0, (2, 3), (sWI, 1))
    a(f's_sub_u32 {S(sT0)}, 0xffff, {S(sT0)}\nv_sub_u32 {V(hRK)}, {S(sT0)}, {V(T[4])}')
    hFLR = hXR + 200
    ssum(sT0, (sK, 7), (sWI, 5), W_FL)
    a(f'v_and_b32 {V(T[0])}, 7, {V(vL)}\nv_lshl_add_u32 {V(hFLR)}, {V(T[0])}, 2, {S(sT0)}')
    ssum(sT0, (sK, 7), (sJ, 2), W_FL)
    ssum(sT1, (sK, 5), (sWI, 11), W_ST + 12)
    ssum(sT2, (sWI, 11), W_ST)
    a(f'''
    v_mov_b32 {V(hFL)}, {S(sT0)}
    v_and_b32 {V(T[0])}, 7, {V(vL)}
    v_lshl_add_u32 {V(hXC)}, {V(T[0])}, 8, {S(sT1)}
    v_lshl_add_u32 {V(hST0)}, {V(vL)}, 4, {S(sT2)}
    v_add_u32 {V(hST1)}, 8192, {V(hST0)}
    ''')
    ssum(sT0, (sWI, 19), (sCH0, 1))
    ssum(sT1, (sWI, 10), U + 480)
    ssum(sT2, (sWI, 2), AM)
    a(f'''
    v_lshl_add_u32 {V(hXG)}, {V(vL)}, 12, {S(sT0)}
    v_add_u32 {V(hXG1)}, 0x40000, {V(hXG)}
    v_lshl_add_u32 {V(hUW)}, {V(vL)}, 3, {S(sT1)}
    v_mov_b32 {V(hAMW)}, {S(sT2)}
    ''')

    def late_setup():
        xpose_addrs(hSLW, hSLW1, hSLR, hSLR1, hINA, hINA1)
        slice_off(hO0, hO1)

    def ffn_setup():
        smul(sT0, sWI, 2 * YTS, YX)
        ssum(sT1, (sWI, 12), WL)
        a(f'''
        v_and_b32 {V(T[2])}, 3, {V(vL)}
        v_lshrrev_b32 {V(T[3])}, 2, {V(vL)}
        v_mul_u32_u24 {V(T[4])}, {YGS}, {V(T[2])}
        v_lshl_add_u32 {V(T[4])}, {V(T[3])}, 4, {V(T[4])}
        v_add_u32 {V(hY)}, {S(sT0)}, {V(T[4])}
        v_lshl_add_u32 {V(T[2])}, {V(T[2])}, 3, {S(sT1)}
        v_lshl_add_u32 {V(hWT)}, {V(T[3])}, 7, {V(T[2])}
        v_lshl_add_u32 {V(hWW)}, {V(vL)}, 4, {S(sT1)}
        ''')
        smul(sT0, sK, 24)
        smul(sT1, sWI, 6)
        a(f's_add_u32 {S(sT0)}, {S(sT0)}, {S(sT1)}')
        ssum(sT0, (sT0, 12), (sJ, 7), W_P1)
        a(f'''
        s_lshl_b32 {S(sT1)}, {S(sJ)}, 5
        v_lshrrev_b32 {V(T[2])}, 4, {V(vL)}
        v_lshl_add_u32 {V(hXS)}, {V(T[2])}, 3, {S(sT1)}
        v_lshrrev_b32 {V(T[2])}, 3, {V(vL)}
        v_and_b32 {V(T[3])}, 7, {V(vL)}
        v_lshl_add_u32 {V(T[3])}, {V(T[3])}, 4, {S(sT0)}
        v_lshl_add_u32 {V(hP1W)}, {V(T[2])}, 12, {V(T[3])}
        s_mul_i32 {S(sT0)}, {S(sWI)}, 3
        s_lshl_b32 {S(sT1)}, {S(sR)}, 1
        s_sub_u32 {S(sT1)}, {S(sT1)}, {S(sT0)}
        s_min_u32 {S(sT1)}, {S(sT1)}, 3
        s_lshl_b32 {S(sT1)}, {S(sT1)}, 4
        s_bfm_b64 {S(sMK,2)}, {S(sT1)}, 0
        ''')
        ssum(sT0, (sK, 9), (sWI, 7), (sJ, 2), W_F2)
        a(f'v_mov_b32 {V(hF2)}, {S(sT0)}\ns_lshr_b32 {S(sT1)}, {S(sJ)}, 3')
        ssum(sT0, (sK, 9), (sT1, 7), W_F2)
        a(f'v_and_b32 {V(T[0])}, 31, {V(vL)}\nv_lshl_add_u32 {V(hF2R)}, {V(T[0])}, 2, {S(sT0)}')
        if not o['gap']: late_setup()
        a(f'''
        s_lshl_b32 {S(sT0)}, {S(sR)}, 2
        s_lshl_b32 {S(sF8)}, {S(sA)}, 2
        s_add_u32 {S(sF8)}, {S(sF8)}, {S(sJ)}
        s_cmp_lt_u32 {S(sJ)}, {S(sT0)}
        s_cselect_b32 {S(sF8)}, {S(sF8)}, {S(sJ)}
        s_cselect_b32 {S(sPROD)}, 1, 0
        s_cselect_b64 {S(sMK+2,2)}, -1, 1
        ''')
        ssum(sT1, (sF8, 13), (sWI, 8))
        smul(sT2, sK, 24)
        a(f's_add_u32 {S(sT2)}, {S(sT2)}, {S(sJ)}')
        ssum(sT2, (sT2, 12), (sWI, 10), W_P1)
        a(f'''
        v_and_b32 {V(T[0])}, 15, {V(vL)}
        v_lshrrev_b32 {V(T[1])}, 4, {V(vL)}
        v_lshl_add_u32 {V(hWDA)}, {V(T[0])}, 4, {S(sT1)}
        v_lshl_add_u32 {V(hWDA)}, {V(T[1])}, 10, {V(hWDA)}
        v_add_u32 {V(hWD1)}, 4096, {V(hWDA)}
        v_lshl_add_u32 {V(hP1F)}, {V(vL)}, 7, {S(sT2)}
        ''')
        if o['s2h']:
            if o['wdc'] == 1: ssum(sT1, (sWI, 11), WD2)
            else: ssum(sT1, (sWI, 12), WL)
            ssum(sT0, (sF8, 5), W_FP)
            a(f'''
            s_lshl_b32 {S(sT3)}, {S(sWI)}, 10
            s_sub_u32 {S(sT2)}, {S(sT2)}, {S(sT3)}
            v_lshl_add_u32 {V(hP1R)}, {V(vL)}, 4, {S(sT2)}
            v_lshl_add_u32 {V(hPFI)}, {V(vL)}, 2, {S(sT1)}
            v_bfe_u32 {V(T[4])}, v0, 1, 7
            v_mul_u32_u24 {V(T[4])}, 6144, {V(T[4])}
            v_and_b32 {V(T[3])}, 1, {V(vL)}
            v_lshl_add_u32 {V(T[4])}, {V(T[3])}, 4, {V(T[4])}
            v_add_u32 {V(hFPA)}, {S(sT0)}, {V(T[4])}
            ''')

    NE = 0

    S1, S2, S3, S4 = vXF, vXF + 1, vXF + 2, vXF + 3

    def red32(regs):
        for m in ('row_shr:1', 'row_shr:2', 'row_shr:4', 'row_shr:8'):
            for r in regs: a(f'v_add_f32_dpp {V(r)}, {V(r)}, {V(r)} {m} row_mask:0xf bank_mask:0xf')
        for r in regs: a(f'v_add_f32_dpp {V(r)}, {V(r)}, {V(r)} row_bcast:15 row_mask:0xa bank_mask:0xf')
    for r in (S1, S2, S3, S4): a(f'v_mov_b32 {V(r)}, 0')
    t = T[0]; g = vE
    a(f"s_setprio {o['lnprio']}\nv_mov_b32 {V(T[3])}, {AM}\ns_waitcnt vmcnt(3)")
    stamp(1)
    for i in range(8):
        a(f'v_dot2_f32_bf16 {V(S1)}, {V(vD+i)}, {S(sONES)}, {V(S1)}')
        a(f'v_dot2_f32_bf16 {V(S2)}, {V(vD+i)}, {V(vD+i)}, {V(S2)}')
    a(f'''
    s_waitcnt vmcnt(2)
    v_readfirstlane_b32 {S(sTAG)}, {V(hEP)}
    s_add_u32 {S(sTAG)}, {S(sTAG)}, 16
    s_and_b32 {S(sTAG)}, {S(sTAG)}, -16
    s_or_b32 {S(sTAGX)}, {S(sTAG)}, {S(sXCC)}
    v_mov_b32 {V(g+3)}, {S(sTAGX)}
    s_mov_b64 exec, 1
    ds_write_b32 {V(T[3])}, {V(g+3)} offset:20
    s_mov_b64 exec, -1
    s_waitcnt vmcnt(0)
    ''')
    for i in range(8):
        a(f'v_dot2_f32_bf16 {V(S3)}, {V(vD+i)}, {V(vG+i)}, {V(S3)}')
        a(f'v_dot2_f32_bf16 {V(S4)}, {V(vG+i)}, {S(sONES)}, {V(S4)}')
    red32([S1, S2, S3, S4])
    a(f'''
    v_mul_f32 {V(S1)}, 0x3b000000, {V(S1)}
    v_mul_f32 {V(S2)}, 0x3b000000, {V(S2)}
    v_fma_f32 {V(S2)}, -{V(S1)}, {V(S1)}, {V(S2)}
    v_max_f32 {V(S2)}, 0, {V(S2)}
    v_cvt_pk_bf16_f32 {V(t)}, {V(S1)}, {V(S2)}
    v_and_b32 {V(t)}, {S(sHI)}, {V(t)}
    v_add_f32 {V(t)}, 0x3727c5ac, {V(t)}
    v_cvt_pk_bf16_f32 {V(t)}, {V(t)}, {V(t)}
    v_and_b32 {V(t)}, {S(sHI)}, {V(t)}
    v_sqrt_f32 {V(t)}, {V(t)}
    v_cvt_pk_bf16_f32 {V(g+1)}, {V(S1)}, {V(t)}
    v_and_b32 {V(t)}, {S(sHI)}, {V(g+1)}
    v_lshlrev_b32 {V(t+1)}, 16, {V(g+1)}
    v_rcp_f32 {V(t)}, {V(t)}
    v_fma_f32 {V(S3)}, -{V(t+1)}, {V(S4)}, {V(S3)}
    v_readlane_b32 {S(sT0)}, {V(g+1)}, 31
    v_mul_f32 {V(S3)}, {V(S3)}, {V(t)}
    v_cvt_pk_bf16_f32 {V(S3)}, {V(S3)}, {V(S3)}
    v_mov_b32 {V(g)}, {S(sT0)}
    v_ashrrev_i32 {V(t)}, 31, {V(S3)}
    v_or_b32 {V(t)}, 0x80000000, {V(t)}
    v_xor_b32 {V(t)}, {V(t)}, {V(S3)}
    v_and_or_b32 {V(t)}, {V(t)}, {S(sHI)}, {V(hRK)}
    v_readlane_b32 {S(sT0)}, {V(t)}, 31
    v_max_u32 {V(g+2)}, {S(sT0)}, {V(t)}
    ''')
    lane63()
    a(f'global_store_dwordx4 {V(hSTP)}, {V(g,4)}, {S(sWS,2)} sc1')
    alllanes()
    stamp(2)
    a(f'''
    s_cmp_lg_u32 {S(sWI)}, 0
    s_barrier
    s_cbranch_scc1 L_noflag
    s_mov_b64 exec, 1
    global_store_dword {V(hFL)}, {V(g+3)}, {S(sWS,2)}
    s_mov_b64 exec, -1
    L_noflag:
    s_setprio 0
    ''')
    ffn_setup()
    a('s_waitcnt lgkmcnt(0)')
    stamp(3)

    KQ = vS
    NWD = {0: 4, 1: 1, 2: 3}[o['wdc']]
    def wd_loads():
        if o['wdc'] != 1: a(f'''
        s_mov_b64 exec, {S(sMK+2,2)}
        global_load_dwordx4 {V(vWD,4)}, {V(hWDA)}, {S(sWD,2)}
        global_load_dwordx4 {V(vWD+4,4)}, {V(hWD1)}, {S(sWD,2)}
        ''')
        if o['wdc'] == 0: a(f'''
        s_and_b64 exec, {S(sMK+2,2)}, 0xff
        global_load_dword {V(hPFD)}, {V(hP1F)}, {S(sWS,2)} nt
        ''')
        a(f's_mov_b64 exec, 1\nglobal_load_dword {V(hEP)}, {V(hF2R)}, {S(sWS,2)} sc1\ns_mov_b64 exec, -1')

    def stat_loads():
        for i in range(4):
            a(f'global_load_dwordx4 {V(vG+4*i,4)}, {V((hST0, hST1)[i&1])}, {S(sWS,2)} offset:{1024*(i>>1)} sc1')

    def key_loads():
        for i in range(2):
            a(f'global_load_dwordx4 {V(KQ+4*i,4)}, {V(hKR)}, {S(sWS,2)} offset:{1024*i} sc1')

    if o['force_slow']: a('s_branch L_gather')
    spin_init()
    a(f'''
    L_flagspin:
    global_load_dword {V(T[1])}, {V(hFLR)}, {S(sWS,2)} sc1
    s_waitcnt vmcnt(0)
    v_cmp_ne_u32 vcc, {S(sTAGX)}, {V(T[1])}
    s_cbranch_vccz L_fast
    s_sub_u32 {S(sCNT)}, {S(sCNT)}, 1
    s_and_b32 {S(sT0)}, {S(sCNT)}, 7
    s_cbranch_scc1 L_flagspin
    global_load_dword {V(T[0])}, {V(hXC)}, {S(sWS,2)} sc1
    s_waitcnt vmcnt(0)
    v_xor_b32 {V(T[0])}, {S(sTAGX)}, {V(T[0])}
    v_add_u32 {V(T[0])}, -1, {V(T[0])}
    v_cmp_gt_u32 vcc, 15, {V(T[0])}
    s_cbranch_vccnz L_gather
    s_cmp_lg_u32 {S(sCNT)}, 0
    s_cbranch_scc1 L_flagspin
    ''')
    a('L_gather:')
    for r in range(8):
        a(f'global_load_dword {V(vD+r)}, {V((hXG, hXG1)[r>>2])}, {S(sX,2)} offset:{(r&3)*1024}')
    a(f'''
    s_branch L_stats
    L_fast:
    global_load_dwordx4 {V(vD,4)}, {V(hIN)}, {S(sWS,2)} sc1
    global_load_dwordx4 {V(vD+4,4)}, {V(hIN)}, {S(sWS,2)} offset:1024 sc1
    L_stats:
    ''')
    stamp(4)
    stat_loads()
    if o['gap']: late_setup()
    if o['wde']: wd_loads()
    a(f"s_waitcnt vmcnt({NWD if o['wde'] else 0})")
    spin_init()
    a(f'''
    L_statspin:
    v_xor_b32 {V(T[0])}, {S(sTAG)}, {V(vG+3)}
    v_xor_b32 {V(T[1])}, {S(sTAG)}, {V(vG+7)}
    v_xor_b32 {V(T[2])}, {S(sTAG)}, {V(vG+11)}
    v_xor_b32 {V(T[3])}, {S(sTAG)}, {V(vG+15)}
    v_or3_b32 {V(T[1])}, {V(T[0])}, {V(T[1])}, {V(T[3])}
    v_or_b32 {V(T[1])}, {V(T[1])}, {V(T[2])}
    v_cmp_lt_u32 vcc, 15, {V(T[1])}
    s_cbranch_vccz L_statok
    ''')
    if o['backoff']: a(f"s_sleep {o['backoff']}")
    stat_loads()
    a('s_waitcnt vmcnt(0)')
    spin_next('L_statspin')
    a('L_statok:')
    stamp(7)
    a(f'''
    v_cmp_ne_u32 vcc, {S(sXCC)}, {V(T[0])}
    v_cmp_ne_u32 {S(sT2,2)}, {S(sXCC)}, {V(T[2])}
    v_max3_u32 {V(T[8])}, {V(vG+2)}, {V(vG+6)}, {V(vG+10)}
    s_or_b64 vcc, vcc, {S(sT2,2)}
    s_and_b64 vcc, vcc, {S(sCM,2)}
    v_max_u32 {V(T[8])}, {V(T[8])}, {V(vG+14)}
    {'s_nop 0' if o['force_bad'] else 's_cbranch_vccz L_local'}
    v_mov_b32 {V(T[0])}, {AM}
    v_mov_b32 {V(T[1])}, 1
    ds_write_b32 {V(T[0])}, {V(T[1])} offset:16
    L_local:
    ''')
    key = T[8]
    rho = [T[1], T[3], T[5], T[7]]; mu = [T[0], T[2], T[4], T[6]]
    for tau in range(2):
        stq = [vG + 8 * tau + i for i in (0, 1, 4, 5)]
        for r in range(4): a(f'v_and_b32 {V(rho[r])}, {S(sHI)}, {V(stq[r])}')
        for r in range(4):
            a(f'v_rcp_f32 {V(rho[r])}, {V(rho[r])}\nv_lshlrev_b32 {V(mu[r])}, 16, {V(stq[r])}')
        for r in range(4):
            e = 8 * tau + 2 * r
            a(f'''
            v_mul_f32_e64 {V(mu[r])}, -{V(mu[r])}, {V(rho[r])}
            v_lshlrev_b32 {V(vXF+e)}, 16, {V(vD+4*tau+r)}
            v_and_b32 {V(vXF+e+1)}, {S(sHI)}, {V(vD+4*tau+r)}
            ''')
            if r < 3: a(f'v_max_u32_dpp {V(key)}, {V(key)}, {V(key)} {kred[3*tau+r]} bank_mask:0xf')
            for c in range(2): a(f'v_fma_f32 {V(vXN+e+c)}, {V(vXF+e+c)}, {V(rho[r])}, {V(mu[r])}')
        for c in range(2):
            x = XP + 4 * tau + 2 * c; e = 8 * tau + c
            a(f'v_cvt_pk_bf16_f32 {V(x)}, {V(vXN+e)}, {V(vXN+e+2)}\nv_cvt_pk_bf16_f32 {V(x+1)}, {V(vXN+e+4)}, {V(vXN+e+6)}')
        for c in range(2):
            a(f'ds_write_b64 {V(hUW)}, {V(XP+4*tau+2*c,2)} offset:{c*US + 512*tau}')
    lane63()
    a(f'ds_write_b32 {V(hAMW)}, {V(key)}')
    alllanes()
    a('s_waitcnt lgkmcnt(0)')
    stamp(8)
    a(f"s_barrier\ns_setprio {o['ffnprio']}")
    read_idx()
    a(f's_lshl_b32 {S(sT0)}, {S(sIDX)}, 10\nv_add_u32 {V(T[0])}, {S(sT0)}, {V(hXS)}')
    stat_addr(T[1])
    a(f'global_load_dwordx2 {V(XS,2)}, {V(T[0])}, {S(sX,2)}\nglobal_load_dword {V(XV+1)}, {V(T[1])}, {S(sWS,2)} sc1')
    ssum(sT0, (sIDX, 10), (sCH0, 1))
    a(f'v_mov_b32 {V(T[2])}, {S(sT0)}\ns_mov_b64 exec, 1\nglobal_load_dword {V(XV)}, {V(T[2])}, {S(sX,2)}')
    if o['wde']: alllanes()
    else: wd_loads()
    for t_ in range(6): a(f'ds_read_b64_tr_b16 {V(WF+2*t_,2)}, {V(hWT)} offset:{2048*(t_//3) + 32*(t_%3)}')
    a('s_setprio 0')
    a(f'L_h_pre:\ns_lshl_b32 {S(sDV)}, {S(sDS)}, 16\ns_and_b32 {S(sDV+1)}, {S(sDS)}, {S(sHI)}')

    def ge(tau, h):
        el = [8 * tau + 4 * h + i for i in range(4)]
        for i, e in enumerate(el if o['gernd'] else ()):
            src = XP + 4 * tau + 2 * (i & 1) + h
            if i >> 1: a(f'v_and_b32 {V(vXN+e)}, {S(sHI)}, {V(src)}')
            else:      a(f'v_lshlrev_b32 {V(vXN+e)}, 16, {V(src)}')
        for i, e in enumerate(el): a(f'v_mul_f32 {V(GT+i)}, 0xbfb8aa3b, {V(vXN+e)}')
        for i in range(4): a(f'v_exp_f32 {V(GT+i)}, {V(GT+i)}')
        for i, e in enumerate(el):
            a(f'v_mul_f32 {V(vE+e)}, {S(sDV+(i&1))}, {V(vXN+e)}\nv_add_f32 {V(GT+i)}, 1.0, {V(GT+i)}')
        for i in range(4): a(f'v_rcp_f32 {V(GT+i)}, {V(GT+i)}')
        for i, e in enumerate(el): a(f'v_mul_f32 {V(vXN+e)}, {V(vXN+e)}, {V(GT+i)}')
        for i, e in enumerate(el): a(f'v_fma_f32 {V(vE+e)}, {V(vE+e)}, {V(vXN+e)}, {V(vXF+e)}')
    parts = [(0, 0), (0, 1), (1, 0), (1, 1)]
    for pt in parts[:o['gefirst']]: ge(*pt)
    gq = T[4]
    def x_part():
        X = [T[8 + i] for i in range(4)]
        a(f'''
        v_and_b32 {V(T[12])}, {S(sHI)}, {V(XV+1)}
        v_lshlrev_b32 {V(T[14])}, 16, {V(XV+1)}
        v_rcp_f32 {V(T[12])}, {V(T[12])}
        v_lshlrev_b32 {V(X[0])}, 16, {V(XS)}
        v_and_b32 {V(X[1])}, {S(sHI)}, {V(XS)}
        v_lshlrev_b32 {V(X[2])}, 16, {V(XS+1)}
        v_and_b32 {V(X[3])}, {S(sHI)}, {V(XS+1)}
        ''')
        for i in range(4): a(f'v_sub_f32 {V(X[i])}, {V(X[i])}, {V(T[14])}')
        rnd2(X[0], X[1], T[1]); rnd2(X[2], X[3], T[2])
        for i in range(4): a(f'v_mul_f32 {V(X[i])}, {V(X[i])}, {V(T[12])}')
        a(f'''
        v_cvt_pk_bf16_f32 {V(XA)}, {V(X[0])}, {V(X[1])}
        v_cvt_pk_bf16_f32 {V(XA+1)}, {V(X[2])}, {V(X[3])}
        v_mov_b32 {V(gq+2)}, {S(sTAG)}
        v_mov_b32 {V(gq+3)}, 0
        ''')
    a(f"s_setprio {o['ffnprio']}")
    a(f"s_waitcnt vmcnt({0 if o['wde'] else NWD})"); stamp(5)
    a(f's_mov_b64 exec, 1\nds_write_b64 {V(T[9])}, {V(XV,2)} offset:48\ns_mov_b64 exec, -1')
    x_part()
    a('s_waitcnt lgkmcnt(0)')
    DQ = [184, 188, 192, 196, 228, 232]
    for t_ in range(6): a(f'v_mfma_f32_16x16x16_bf16 {V(DQ[t_],4)}, {V(XA,2)}, {V(WF+2*t_,2)}, 0')
    a(f'''
    s_cmp_eq_u32 {S(sBAD)}, 0
    v_mov_b32 {V(gq)}, {V(DQ[0])}
    v_mov_b32 {V(gq+1)}, {V(DQ[3])}
    v_mov_b32_dpp {V(gq)}, {V(DQ[1])} quad_perm:[0,1,2,3] row_mask:0x2 bank_mask:0xf
    v_mov_b32_dpp {V(gq+1)}, {V(DQ[4])} quad_perm:[0,1,2,3] row_mask:0x2 bank_mask:0xf
    v_mov_b32_dpp {V(gq)}, {V(DQ[2])} quad_perm:[0,1,2,3] row_mask:0x4 bank_mask:0xf
    v_mov_b32_dpp {V(gq+1)}, {V(DQ[5])} quad_perm:[0,1,2,3] row_mask:0x4 bank_mask:0xf
    s_mov_b64 exec, {S(sMK,2)}
    s_cbranch_scc0 L_p1far
    global_store_dwordx4 {V(hP1W)}, {V(gq,4)}, {S(sWS,2)}{' nt' if o['int_'] else ''}
    s_branch L_p1done
    L_p1far:
    global_store_dwordx4 {V(hP1W)}, {V(gq,4)}, {S(sWS,2)} sc1
    L_p1done:
    s_mov_b64 exec, -1
    ''')
    stamp(6)
    def wd_put(n): a(f's_waitcnt vmcnt({n})\nds_write_b128 {V(hWW)}, {V(vWD,4)}\nds_write_b128 {V(hWW)}, {V(vWD+4,4)} offset:1024')
    GM = min(4, o['gefirst'] + o['gemid'])
    if o['gemid']:
        a('s_setprio 0')
        for pt in parts[o['gefirst']:GM]: ge(*pt)
        a(f"s_setprio {o['ffnprio']}")
    if o['s2h']:
        a(f's_cmp_eq_u32 {S(sPROD)}, 0\ns_cbranch_scc1 L_h_ge')
        stage2(WR, vWD, WDF, hPFI, hP1R, hFPA, None if o['wdc'] == 1 else (lambda: wd_put(NWD + 3)))
        stamp(10)
    a('L_h_ge:\ns_setprio 0')
    for pt in parts[GM:]: ge(*pt)
    if not o['s2h']:
        wd_put(3); a('s_waitcnt lgkmcnt(0)')
    OLD = vG + 8
    if o['dpoll']:
        a(f'''
        ds_read2_b32 {V(OLD,2)}, {V(hSLR)} offset0:0 offset1:32
        ds_read2_b32 {V(OLD+2,2)}, {V(hSLR)} offset0:64 offset1:96
        ds_read2_b32 {V(OLD+4,2)}, {V(hSLR1)} offset0:0 offset1:32
        ds_read2_b32 {V(OLD+6,2)}, {V(hSLR1)} offset0:64 offset1:96
        ''')
    stamp(9)
    a('s_barrier')
    for tau in range(2):
        for w in range(4): a(f'ds_read_b128 {V(YR+16*tau+4*w,4)}, {V(hY)} offset:{w*YWS + tau*YTS}')

    def out_tile(tau):
        a(f's_waitcnt lgkmcnt({4 - 4*tau})')
        for hf in range(2):
            for r in range(4):
                for c in range(2):
                    e = 8 * tau + 2 * r + c
                    a(f'v_fma_f32 {V(vE+e)}, {V(YR+16*tau+4*(2*hf+c)+r)}, {V(vXN+e)}, {V(vE+e)}')
        for r in range(4):
            a(f'v_cvt_pk_bf16_f32 {V(vD+4*tau+r)}, {V(vE+8*tau+2*r)}, {V(vE+8*tau+2*r+1)}')

    a(f's_cmp_lg_u32 {S(sBAD)}, 0\ns_cbranch_scc1 L_h_direct')
    for tau in range(2):
        out_tile(tau)
        if o['dpoll']:
            for r in range(4): a(f'v_not_b32 {V(vD+4*tau+r)}, {V(vD+4*tau+r)}')
        a(f"global_store_dwordx4 {V(hIN)}, {V(vD+4*tau,4)}, {S(sWS,2)} offset:{1024*tau}{' nt' if o['int_'] else ''}")
    fstamp(1)
    a('s_barrier')
    ssum(sT0, (sJ, 6), (sWI, 4))
    a(f'''
    s_sub_u32 {S(sT0)}, {S(sIDX)}, {S(sT0)}
    s_lshl_b32 {S(sT1)}, {S(sT0)}, 3
    s_lshl_b64 {S(sT2,2)}, 0xff, {S(sT1)}
    s_not_b64 {S(sT2,2)}, {S(sT2,2)}
    s_lshr_b32 {S(sT0)}, {S(sT0)}, 3
    s_cmp_eq_u32 {S(sT0)}, 0
    s_cselect_b64 {S(sMK+4,2)}, {S(sT2,2)}, -1
    s_cmp_eq_u32 {S(sT0)}, 1
    s_cselect_b64 {S(sMK+6,2)}, {S(sT2,2)}, -1
    ''')
    if o['dpoll']:
        def g_loads(): a(f'global_load_dwordx4 {V(vG,4)}, {V(hINA)}, {S(sWS,2)} sc1\nglobal_load_dwordx4 {V(vG+4,4)}, {V(hINA1)}, {S(sWS,2)} sc1')
        g_loads()
        a(f'''
        v_mov_b32 {V(T[0])}, {S(sTAGX)}
        s_mov_b64 exec, 1
        s_waitcnt vmcnt(2)
        global_store_dword {V(hF2)}, {V(T[0])}, {S(sWS,2)}
        s_mov_b64 exec, -1
        s_waitcnt vmcnt(1)
        ''')
        fstamp(2)
        spin_init()
        a('L_dspin:')
        for i in range(8): a(f'v_xor_b32 {V(T[i])}, {V(vG+i)}, {V(OLD+i)}')
        a(f'''
        v_min3_u32 {V(T[0])}, {V(T[0])}, {V(T[1])}, {V(T[2])}
        v_min3_u32 {V(T[3])}, {V(T[3])}, {V(T[4])}, {V(T[5])}
        v_min3_u32 {V(T[0])}, {V(T[0])}, {V(T[6])}, {V(T[7])}
        v_min_u32 {V(T[0])}, {V(T[0])}, {V(T[3])}
        v_cmp_eq_u32 vcc, 0, {V(T[0])}
        s_cbranch_vccz L_dok
        s_sub_u32 {S(sCNT)}, {S(sCNT)}, 1
        s_and_b32 {S(sT0)}, {S(sCNT)}, 7
        s_cbranch_scc1 L_dmore
        global_load_dword {V(T[0])}, {V(hF2R)}, {S(sWS,2)} sc1
        s_waitcnt vmcnt(0)
        v_cmp_ne_u32 vcc, {S(sTAGX)}, {V(T[0])}
        s_cbranch_vccz L_dlast
        s_cmp_eq_u32 {S(sCNT)}, 0
        s_cbranch_scc1 L_dlast
        L_dmore:
        ''')
        g_loads()
        a('s_waitcnt vmcnt(0)\ns_branch L_dspin\nL_dlast:')
        g_loads()
        a('s_waitcnt vmcnt(0)\nL_dok:')
        fstamp(3)
        for i in range(8): a(f'v_not_b32 {V(vG+i)}, {V(vG+i)}')
        a(f'''
        v_mov_b32 {V(T[1])}, {AM}
        s_mov_b64 exec, 1
        ds_write_b32 {V(T[1])}, {V(T[1])} offset:40
        s_mov_b64 exec, -1
        ds_write2_b32 {V(hSLR)}, {V(vG)}, {V(vG+1)} offset0:0 offset1:32
        ds_write2_b32 {V(hSLR)}, {V(vG+2)}, {V(vG+3)} offset0:64 offset1:96
        ds_write2_b32 {V(hSLR1)}, {V(vG+4)}, {V(vG+5)} offset0:0 offset1:32
        ds_write2_b32 {V(hSLR1)}, {V(vG+6)}, {V(vG+7)} offset0:64 offset1:96
        ''')
    else:
        a(f'''
        v_mov_b32 {V(T[0])}, {S(sTAGX)}
        s_mov_b64 exec, 1
        s_waitcnt vmcnt(0)
        global_store_dword {V(hF2)}, {V(T[0])}, {S(sWS,2)}
        s_mov_b64 exec, -1
        ''')
        fstamp(2)
        spin_init()
        if o['f2s']:
            a(f'L_f2spin:\ns_load_dwordx16 {S(sFL,16)}, {S(sFB,2)}, 0x0 glc\ns_load_dwordx16 {S(sFL+16,16)}, {S(sFB,2)}, 0x40 glc\ns_waitcnt lgkmcnt(0)')
            sflag_check(32, 'L_f2ok')
        else: a(f'''
        L_f2spin:
        global_load_dword {V(T[0])}, {V(hF2R)}, {S(sWS,2)} sc1
        s_waitcnt vmcnt(0)
        v_cmp_ne_u32 vcc, {S(sTAGX)}, {V(T[0])}
        s_cbranch_vccz L_f2ok
        ''')
        spin_next('L_f2spin')
        a('L_f2ok:')
        fstamp(3)
        a(f'''
        global_load_dwordx4 {V(vG,4)}, {V(hINA)}, {S(sWS,2)} sc1
        global_load_dwordx4 {V(vG+4,4)}, {V(hINA1)}, {S(sWS,2)} sc1
        v_mov_b32 {V(T[1])}, {AM}
        s_mov_b64 exec, 1
        ds_write_b32 {V(T[1])}, {V(T[1])} offset:40
        s_mov_b64 exec, -1
        s_waitcnt vmcnt(1)
        ds_write2_b32 {V(hSLR)}, {V(vG)}, {V(vG+1)} offset0:0 offset1:32
        ds_write2_b32 {V(hSLR)}, {V(vG+2)}, {V(vG+3)} offset0:64 offset1:96
        s_waitcnt vmcnt(0)
        ''')
        fstamp(4)
        a(f'''
        ds_write2_b32 {V(hSLR1)}, {V(vG+4)}, {V(vG+5)} offset0:0 offset1:32
        ds_write2_b32 {V(hSLR1)}, {V(vG+6)}, {V(vG+7)} offset0:64 offset1:96
        ''')
    a(f'''
    ds_read_b128 {V(vS,4)}, {V(hSLW)}
    ds_read_b128 {V(vS+4,4)}, {V(hSLW1)} offset:1024
    s_mov_b64 exec, {S(sMK+4,2)}
    s_waitcnt lgkmcnt(1)
    global_store_dwordx4 {V(hO0)}, {V(vS,4)}, {S(sOUT,2)}{' nt' if o['ont'] else ''}
    s_mov_b64 exec, {S(sMK+6,2)}
    s_waitcnt lgkmcnt(0)
    global_store_dwordx4 {V(hO1)}, {V(vS+4,4)}, {S(sOUT,2)}{' nt' if o['ont'] else ''}
    s_mov_b64 exec, -1
    ''')
    a(f'''
    s_branch L_h_done
    L_h_direct:
    s_lshr_b32 {S(sT0)}, {S(sIDX)}, 2
    s_lshl_b64 {S(sT2,2)}, 1, {S(sT0)}
    s_not_b64 {S(sT2,2)}, {S(sT2,2)}
    s_lshr_b32 {S(sT0)}, {S(sIDX)}, 8
    s_lshl_b32 {S(sT0)}, {S(sT0)}, 2
    s_and_b32 {S(sT1)}, {S(sIDX)}, 3
    s_add_u32 {S(sT0)}, {S(sT0)}, {S(sT1)}
    s_lshl_b32 {S(sT1)}, {S(sWI)}, 3
    s_sub_u32 {S(sT0)}, {S(sT0)}, {S(sT1)}
    ''')
    for tau in range(2):
        out_tile(tau)
        for r in range(4):
            a(f'''
            s_cmp_eq_u32 {S(sT0)}, {4*tau + r}
            s_cselect_b64 exec, {S(sT2,2)}, -1
            global_store_dword {V((hXG, hXG1)[tau])}, {V(vD+4*tau+r)}, {S(sOUT,2)} offset:{r*1024}
            ''')
        alllanes()
    a('L_h_done:')
    if o['stamp'] or o['diag'] >= 0:
        stamp(11)
        a('s_waitcnt vmcnt(0)')
        stamp(12)
    if o['diag'] >= 0:
        a('''
        L_diag0:
        s_memrealtime s[100:101]
        s_sub_u32 s98, s98, s96
        s_min_u32 s98, s98, 2000
        s_lshl_b32 s98, s98, 2
        s_waitcnt lgkmcnt(0)
        s_add_u32 s98, s98, s100
        L_diag:
        s_memrealtime s[100:101]
        s_waitcnt lgkmcnt(0)
        s_sub_u32 s100, s100, s98
        s_cmp_lt_i32 s100, 0
        s_cbranch_scc1 L_diag
        ''')
    a('L_exit:')
    if o['stamp']:
        a(f'global_store_dword {V(vSTA)}, v237, {S(sWS,2)}')
    a('L_end:\ns_endpgm')
    a.raw('''.section .rodata,"a"
.p2align 6
.amdhsa_kernel %s_kernel
  .amdhsa_next_free_vgpr 256
  .amdhsa_next_free_sgpr 102
  .amdhsa_accum_offset 256
  .amdhsa_group_segment_fixed_size 0
  .amdhsa_kernarg_size 136
  .amdhsa_user_sgpr_count 2
  .amdhsa_user_sgpr_kernarg_segment_ptr 1
  .amdhsa_system_sgpr_workgroup_id_x 1
.end_amdhsa_kernel''' % KN)
    return a.text()


if __name__ == '__main__':
    out = sys.argv[1]
    opt = {}
    for kv in sys.argv[2:]:
        k, val = kv.split('='); opt[k] = int(val, 0)
    open(out, 'w').write(generate(**opt))
```
